```python
import torch

def _softmax(x, axis=-1):
    return torch.softmax(x, dim=axis)
def _gelu(x):
    return torch.nn.functional.gelu(x, approximate="tanh")
def _silu(x):
    return torch.nn.functional.silu(x)
def _sigmoid(x):
    return torch.sigmoid(x)
def _layernorm(x, axis=-1, eps=1e-5):
    m = x.mean(dim=axis, keepdim=True)
    v = x.var(dim=axis, keepdim=True, unbiased=False)
    return (x - m) / torch.sqrt(v + eps)
def _scatter_add(tgt, idx, src, axis=0):
    return tgt.clone().index_add_(axis, idx, src)
def _segment_sum(src, seg, n):
    out = torch.zeros((n,) + src.shape[1:], dtype=src.dtype)
    return out.index_add_(0, seg, src)
def _pad(x, pw):
    flat = tuple(v for pair in reversed(pw) for v in pair)
    return torch.nn.functional.pad(x, flat)

kernel_name = 'parallel_sum__ssm_conv_h3__mixer_s_mlp__prompt'

def setup_inputs():

    _w = (lambda a: (lambda t: t.to(torch.bfloat16) if t.is_floating_point() else t)(torch.as_tensor(a)))
    def _A_setup():
        B, S, D = 1, 2048, 512
        ks = 4
        return {
            "q": _w((lambda *s: torch.randn(*s, dtype=torch.bfloat16) * 0.05)(B, S, D)),
            "k": _w((lambda *s: torch.randn(*s, dtype=torch.bfloat16) * 0.8)(B, S, D)),
            "v": _w((lambda *s: torch.randn(*s, dtype=torch.bfloat16) * 0.8)(B, S, D)),
            "shift_k": _w((lambda *s: torch.randn(*s, dtype=torch.bfloat16) * 0.8)(D, ks) * 0.5),
            "ssm_k": _w((lambda *s: torch.randn(*s, dtype=torch.bfloat16) * 1.6)(D, S) * (1.0 / S ** 0.5)),
            "ssm_D": _w((lambda *s: torch.randn(*s, dtype=torch.bfloat16) * 0.8)(D)),
        }
    _A_in = _A_setup()

    def _B_setup():
        B, S, D, F = 1, 2048, 512, 1792
        return {
            "x":  _w((lambda *s: torch.randn(*s, dtype=torch.bfloat16) * 0.05)(B, S, D)),
            "w1": _w((lambda *s: torch.randn(*s, dtype=torch.bfloat16) * 3.2)(D, D) * (D ** -0.5)),
            "w2": _w((lambda *s: torch.randn(*s, dtype=torch.bfloat16) * 3.2)(D, D) * (D ** -0.5)),
            "w3": _w((lambda *s: torch.randn(*s, dtype=torch.bfloat16) * 3.2)(D, F) * (D ** -0.5)),
            "w4": _w((lambda *s: torch.randn(*s, dtype=torch.bfloat16) * 1.6)(F, D) * (F ** -0.5)),
        }
    _B_in = _B_setup()

    return {
        "A_q": _A_in["q"],
        "A_k": _A_in["k"],
        "A_v": _A_in["v"],
        "A_shift_k": _A_in["shift_k"],
        "A_ssm_k": _A_in["ssm_k"],
        "A_ssm_D": _A_in["ssm_D"],
        "B_x": _B_in["x"],
        "B_w1": _B_in["w1"],
        "B_w2": _B_in["w2"],
        "B_w3": _B_in["w3"],
        "B_w4": _B_in["w4"],
    }

def reference(A_q, A_k, A_v, A_shift_k, A_ssm_k, A_ssm_D, B_x, B_w1, B_w2, B_w3, B_w4):
    def _A_ref(q, k, v, shift_k, ssm_k, ssm_D):
        B, S, D = q.shape
        ks = shift_k.shape[-1]
        k_pad = _pad(k, ((0, 0), (ks - 1, 0), (0, 0)))
        k_shift = torch.zeros_like(k)
        for t in range(ks):
            k_shift = k_shift + k_pad[:, t:t + S, :] * shift_k[:, ks - 1 - t][None, None, :]
        kv = k_shift * v
        L = 2 * S
        kv_pad = _pad(kv, ((0, 0), (0, S), (0, 0)))
        kf_pad = _pad(ssm_k, ((0, 0), (0, S)))
        kv_f = (lambda x, axes=(-2,-1): torch.fft.rfft2(x.float(), dim=axes))(kv_pad[:, None, :, :], axes=(1, 2))
        kf_f = (lambda x, axes=(-2,-1): torch.fft.rfft2(x.float(), dim=axes))(kf_pad[:, None, :], axes=(1, 2))
        kf_f = (lambda x, *d: x.permute(*d))(kf_f, 1, 2, 0)
        y_f = kv_f * kf_f[None, :, :, :]
        y = (lambda x, s, axes=(-2,-1): torch.fft.irfft2(x, s=s, dim=axes).to(torch.bfloat16))(y_f, (1, L), axes=(1, 2))[:, 0, :S, :]
        y = y + kv * ssm_D[None, None, :]
        return q * y

    def _B_ref(x, w1, w2, w3, w4):
        B, S, D = x.shape
        h = _gelu(_layernorm(x, axis=-1) @ w1)
        c = D // 4
        g0 = _pad(h[:, :, 0*c:1*c], ((0, 0), (1, 0), (0, 0)))[:, :S, :]
        g1 = _pad(h[:, :, 1*c:2*c], ((0, 0), (0, 1), (0, 0)))[:, 1:, :]
        g2 = _pad(h[:, :, 2*c:3*c], ((0, 0), (2, 0), (0, 0)))[:, :S, :]
        g3 = _pad(h[:, :, 3*c:   ], ((0, 0), (0, 2), (0, 0)))[:, 2:, :]
        hs = torch.concatenate([g0, g1, g2, g3], axis=-1) @ w2
        x1 = x + hs
        h2 = _gelu(_layernorm(x1, axis=-1) @ w3) @ w4
        return x1 + h2

    x = A_q
    xn = _layernorm(x, axis=-1)
    return x + _A_ref(xn, A_k, A_v, A_shift_k, A_ssm_k, A_ssm_D) + _B_ref(xn, B_w1, B_w2, B_w3, B_w4)
```

```python
import re

TRANS = ("v_exp_f32", "v_log_f32", "v_rcp_f32", "v_rsq_f32", "v_sqrt_f32", "v_sin_f32", "v_cos_f32")
REG_RE = re.compile(r"^(-|abs\(|\|)?([vas])(\d+|\[(\d+):(\d+)\])\)?\|?$")


def regs_of(op):
    op = op.strip()
    if op in ("vcc", "vcc_lo", "vcc_hi"):
        return {("s", "vcc")}
    if op in ("exec", "exec_lo", "exec_hi"):
        return {("s", "exec")}
    if op == "m0":
        return {("s", "m0")}
    if op == "scc":
        return set()
    m = REG_RE.match(op)
    if not m:
        return set()
    f = m.group(2)
    if m.group(4) is not None:
        return {(f, i) for i in range(int(m.group(4)), int(m.group(5)) + 1)}
    return {(f, int(m.group(3)))}


class Ins:
    __slots__ = ("text", "op", "ops", "mods", "dst", "src", "kind", "label", "target", "passes", "srcC", "srcAB",
                 "states", "sdata", "note")

    def __init__(self, text):
        self.text = text
        self.label = None
        self.target = None
        self.note = None
        t = text.split(";")[0].strip()
        if t.endswith(":"):
            self.label = t[:-1]
            self.kind = "label"
            self.op = ""
            self.dst = set()
            self.src = set()
            self.states = 0
            return
        parts = t.split(None, 1)
        self.op = parts[0]
        rest = parts[1] if len(parts) > 1 else ""
        toks, depth, cur = [], 0, ""
        for ch in rest:
            if ch in "[(":
                depth += 1
            elif ch in "])":
                depth -= 1
            if ch == "," and depth == 0:
                toks.append(cur.strip())
                cur = ""
            else:
                cur += ch
        if cur.strip():
            toks.append(cur.strip())
        mods = []
        if toks:
            last = toks[-1].split()
            toks[-1] = last[0]
            mods = last[1:]
        fixed = toks
        self.ops = fixed
        self.mods = mods
        self.states = 1
        self.passes = 0
        self.srcC = set()
        self.srcAB = set()
        self.sdata = set()
        op = self.op
        R = [regs_of(x) for x in self.ops]
        dst, src = set(), set()
        if op.startswith("v_mfma"):
            self.kind = "mfma"
            self.passes = 8 if "32x32x16" in op else 4
            dst = R[0]
            self.srcAB = R[1] | R[2]
            self.srcC = R[3]
            src = self.srcAB | self.srcC
        elif op.startswith("v_"):
            self.kind = "valu"
            if op.startswith("v_cmp"):
                dst = R[0]
                for r in R[1:]:
                    src |= r
            elif op.startswith("v_permlane") and "swap" in op:
                dst = R[0] | R[1]
                src = R[0] | R[1]
            elif op.startswith(("v_add_co", "v_sub_co", "v_addc_co", "v_subb_co")):
                dst = R[0] | R[1]
                for r in R[2:]:
                    src |= r
            else:
                dst = R[0]
                for r in R[1:]:
                    src |= r
                if op.startswith(("v_fmac", "v_dot2c", "v_pk_fmac", "v_writelane")) or "dpp" in op or \
                        any(m.startswith(("row_", "quad_perm", "wave_")) for m in mods):
                    src |= R[0]
        elif op.startswith("ds_"):
            self.kind = "ds"
            if op.startswith(("ds_read", "ds_bpermute", "ds_permute", "ds_swizzle")):
                dst = R[0]
                for r in R[1:]:
                    src |= r
            else:
                for r in R:
                    src |= r
        elif op.startswith("buffer_"):
            self.kind = "vmem"
            lds = "lds" in mods
            if op.startswith("buffer_load") and not lds:
                dst = R[0]
                for r in R[1:]:
                    src |= r
            elif op.startswith("buffer_load"):
                for r in R:
                    src |= r
                src |= {("s", "m0")}
            else:
                for r in R:
                    src |= r
                if op.endswith(("x3", "x4")):
                    self.sdata = R[0]
        elif op.startswith("global_"):
            self.kind = "vmem"
            if op.startswith("global_load"):
                dst = R[0]
                for r in R[1:]:
                    src |= r
            else:
                for r in R:
                    src |= r
                if op.endswith(("x3", "x4")):
                    self.sdata = R[1]
        elif op.startswith("s_"):
            self.kind = "salu"
            if op == "s_nop":
                self.states = int(self.ops[0], 0) + 1
            elif op.startswith(("s_cbranch", "s_branch")):
                self.target = self.ops[0]
            elif op.startswith(("s_cmp", "s_waitcnt", "s_barrier", "s_endpgm", "s_sleep", "s_setprio", "s_bitcmp")):
                for r in R:
                    src |= r
            elif op.startswith(("s_and_saveexec", "s_or_saveexec")):
                dst = R[0] | {("s", "exec")}
                src = R[1] | {("s", "exec")}
            else:
                dst = R[0] if R else set()
                for r in R[1:]:
                    src |= r
        else:
            raise ValueError("cannot classify: " + text)
        self.dst = dst
        self.src = src

    def is_trans(self):
        return self.op.replace("_e32", "").replace("_e64", "") in TRANS

    def is_dpp(self):
        return self.kind == "valu" and any(m.startswith(("row_", "quad_perm", "wave_")) for m in self.mods)


def vregs(s):
    return {r for r in s if r[0] in "va"}


def sregs(s):
    return {r for r in s if r[0] == "s"}


def required(p, c):
    need = 0
    if p.kind == "valu":
        pv = vregs(p.dst)
        ps = sregs(p.dst)
        if pv:
            if c.kind == "mfma" and pv & c.src:
                need = max(need, 2)
            if c.kind == "valu":
                if pv & c.src:
                    if c.op.startswith("v_permlane"):
                        need = max(need, 2)
                    if c.is_dpp():
                        need = max(need, 2)
                    if c.op.startswith(("v_readlane", "v_readfirstlane")):
                        need = max(need, 1)
                    if p.is_trans() and not c.is_trans():
                        need = max(need, 1)
        if ps:
            if c.kind == "vmem" and ps & c.src:
                need = max(need, 5)
            if c.kind == "valu" and ps & c.src:
                need = max(need, 4 if c.op.startswith(("v_readlane", "v_writelane")) else 2)
            if c.kind == "salu" and ps & c.src:
                need = max(need, 1)
    if p.kind == "mfma":
        big = p.passes == 8
        if c.kind == "mfma":
            if p.dst & c.srcAB:
                need = max(need, 12 if big else 8)
            if p.dst & c.srcC:
                if not (p.dst == c.srcC and p.passes == c.passes):
                    need = max(need, 10 if big else 6)
            if (p.dst & c.dst) and not (p.dst == c.dst and p.passes == c.passes):
                need = max(need, 10 if big else 6)
        elif c.kind in ("valu", "ds", "vmem"):
            if p.dst & (c.src | c.dst):
                need = max(need, 12 if big else 8)
            if c.kind == "valu" and (p.srcC & c.dst):
                need = max(need, 7 if big else 3)
    if p.kind == "salu" and ("s", "m0") in p.dst:
        if c.kind == "vmem" and ("s", "m0") in c.src:
            need = max(need, 1)
    if p.kind == "vmem" and p.sdata:
        if c.kind == "valu" and (p.sdata & c.dst):
            need = max(need, 2)
        elif c.kind in ("ds", "vmem", "mfma") and (p.sdata & c.dst):
            need = max(need, 1)
    return need


MAXLOOK = 14


class Asm:
    def __init__(self):
        self.ins = []
        self.uid = 0
        self.vm = []
        self.lg = []

    def __call__(self, text):
        for line in text.strip("\n").split("\n"):
            line = line.strip()
            if not line or line.startswith(";") or line.startswith("//"):
                continue
            self.ins.append(Ins(line))

    def label(self, name):
        self.ins.append(Ins(name + ":"))

    def newlabel(self, stem):
        self.uid += 1
        return "L_%s_%d" % (stem, self.uid)

    def vmem(self, text, tag=None):
        self(text)
        self.vm.append(tag)

    def lds(self, text, tag=None):
        self(text)
        self.lg.append(tag)

    def wait_vm(self, *tags):
        last = -1
        for i, t in enumerate(self.vm):
            if t in tags:
                last = i
        if last < 0:
            return
        n = len(self.vm) - 1 - last
        assert n <= 63, "vmcnt overflow %d" % n
        self("s_waitcnt vmcnt(%d)" % n)
        self.vm = self.vm[last + 1:]

    def wait_vm_all(self):
        self("s_waitcnt vmcnt(0)")
        self.vm = []

    def wait_lg(self, *tags):
        last = -1
        for i, t in enumerate(self.lg):
            if t in tags:
                last = i
        if last < 0:
            return
        n = len(self.lg) - 1 - last
        if n > 15:
            n = 15
            last = len(self.lg) - 1 - n
        self("s_waitcnt lgkmcnt(%d)" % n)
        self.lg = self.lg[last + 1:]

    def wait_lg_all(self):
        self("s_waitcnt lgkmcnt(0)")
        self.lg = []

    def check_vm_depth(self):
        assert len(self.vm) <= 63, "too many outstanding vmem ops: %d" % len(self.vm)

    def fix_hazards(self):
        ins = self.ins
        inserted = 0
        label_of = {id(x): x.label for x in ins if x.kind == "label"}
        branches = [x for x in ins if x.kind != "label" and x.target is not None]
        by_target = {}
        for b in branches:
            by_target.setdefault(b.target, []).append(b)
        i = 0
        pos = {id(x): k for k, x in enumerate(ins)}
        while i < len(ins):
            c = ins[i]
            if c.kind == "label" or c.op in ("s_nop", "s_waitcnt", "s_barrier"):
                i += 1
                continue

            def preds(k):
                out = []
                if k > 0:
                    p = ins[k - 1]
                    if not (p.kind == "salu" and p.op in ("s_branch", "s_endpgm")):
                        out.append(k - 1)
                x = ins[k]
                if x.kind == "label":
                    out += [pos[id(b)] for b in by_target.get(x.label, [])]
                return out

            worst = 0
            stack = [(p, 0) for p in preds(i)]
            seen = {}
            while stack:
                j, dist = stack.pop()
                if dist >= MAXLOOK or seen.get(j, 99) <= dist:
                    continue
                seen[j] = dist
                p = ins[j]
                if p.kind != "label":
                    need = required(p, c)
                    if need > dist:
                        worst = max(worst, need - dist)
                nd = dist + p.states
                for k in preds(j):
                    stack.append((k, nd))
            if worst:
                new = []
                n = worst
                while n > 0:
                    k = min(n, 16)
                    new.append(Ins("s_nop %d" % (k - 1)))
                    n -= k
                ins[i:i] = new
                inserted += worst
                i += len(new)
                pos = {id(x): k for k, x in enumerate(ins)}
            i += 1
        return inserted

    def text(self):
        out = []
        for x in self.ins:
            out.append(x.text if x.kind == "label" else "    " + x.text)
        return "\n".join(out) + "\n"
```

```python
from gen import *

MF32 = "v_mfma_f32_32x32x16_bf16"
MF16 = "v_mfma_f32_16x16x32_bf16"


def conv_loads(g):
    a = g.a
    a("s_lshr_b32 s%d, s2, 5" % sA)
    a("v_lshlrev_b32 v28, 3, v%d" % vN31)
    a("v_add_u32 v28, s%d, v28" % sA)
    g.poll(28, F_P0, 1)
    a("s_lshl_b32 s%d, s2, 2" % sA)
    a("s_load_dword s%d, %s, s%d" % (sD0, sr(S_DPTR, 2), sA))
    a("v_lshlrev_b32 v26, 4, v%d" % vTID)
    a("v_subrev_u32 v27, 8, v26")
    a("v_mov_b32 v28, 0x%x" % OOB)
    a("v_cmp_eq_u32 vcc, 0, v%d" % vTID)
    a("v_cndmask_b32 v27, v27, v28, vcc")
    for ch in range(2):
        r = vCH + 10 * ch
        a("s_lshl_b32 s%d, s2, 13" % sA)
        if ch:
            a("s_add_u32 s%d, s%d, 0x1000" % (sA, sA))
        a("s_add_u32 s%d, s%d, 0x%x" % (sB, sA, WS_KVT))
        a.vmem("buffer_load_dwordx4 %s, v26, %s, s%d offen sc1" % (vr(r + 6, 4), sr(S_WS, 4), sB), "cv")
        a.vmem("buffer_load_dwordx4 %s, v26, %s, s%d offen" % (vr(r, 4), sr(S_SSM, 4), sA), "cv")
        a.vmem("buffer_load_dwordx2 %s, v27, %s, s%d offen" % (vr(r + 4, 2), sr(S_SSM, 4), sA), "cv")
    a("s_waitcnt lgkmcnt(0)")
    a.lg = []
    a("s_and_b32 s%d, s%d, s%d" % (sD1, sD0, sHI))
    a("s_lshl_b32 s%d, s%d, 16" % (sD0, sD0))


CACC, CAF, CBF = 32, 64, 96


def conv_main(g, ch, base):
    a = g.a
    r = vCH + 10 * ch
    A, P, X = r, r + 4, r + 6
    a.wait_vm("cv")
    a("v_min_u32 v26, 79, v%d" % vTID)
    a("v_subrev_u32 v27, 72, v26")
    a("v_lshrrev_b32 v28, 1, v27")
    a("v_mul_u32_u24 v28, 4128, v28")
    a("v_and_b32 v27, 1, v27")
    a("v_lshl_add_u32 v28, v27, 4, v28")
    a("v_add_u32 v28, %d, v28" % (base + CV_A))
    a("v_lshlrev_b32 v27, 4, v26")
    a("v_add_u32 v27, %d, v27" % (base + CV_X))
    a("v_cmp_gt_u32 vcc, 72, v26")
    a("v_cndmask_b32 v28, v28, v27, vcc")
    for i in range(4):
        a("v_mov_b32 v%d, 0" % (32 + i))
    a.lds("ds_write_b128 v28, %s" % vr(32, 4))
    Z, Y, W = 36, 40, 44
    seq = [P, P + 1, A, A + 1, A + 2, A + 3]
    for j in range(4):
        a("v_alignbit_b32 v%d, v%d, v%d, 16" % (Z + j, seq[j + 1], seq[j]))
        a("v_alignbit_b32 v%d, v%d, v%d, 16" % (Y + j, seq[j + 2], seq[j + 1]))
        a("v_mov_b32 v%d, v%d" % (W + j, seq[j + 1]))
    a("v_lshlrev_b32 v26, 4, v%d" % vTID)
    a("v_add_u32 v26, %d, v26" % base)
    for rho, src in ((0, A), (1, Y), (2, W), (3, Z)):
        a.lds("ds_write_b128 v26, %s offset:%d" % (vr(src, 4), CV_A + 32 + 4128 * rho))
    a.lds("ds_write_b128 v26, %s offset:%d" % (vr(X, 4), CV_XD))
    a.wait_lg_all()
    g.barrier()
    a("s_lshl_b32 s%d, s%d, 5" % (sA, sW))
    a("s_sub_u32 s%d, %d, s%d" % (sA, base + CV_XD - 1024, sA))
    a("v_lshl_add_u32 v26, v%d, 3, s%d" % (vL, sA))
    a("s_mul_i32 s%d, s%d, 5312" % (sA, sW))
    a("s_add_u32 s%d, s%d, %d" % (sA, sA, base + CV_P))
    a("v_and_b32 v27, 15, v%d" % vL)
    a("v_mul_u32_u24 v27, 328, v27")
    a("v_lshrrev_b32 v28, 4, v%d" % vL)
    a("v_lshl_add_u32 v27, v28, 3, v27")
    a("v_add_u32 v27, s%d, v27" % sA)
    for u in range(10):
        a.lds("ds_read_b64_tr_b16 %s, v26 offset:%d" % (vr(32 + 2 * u, 2), 512 * u))
    a.wait_lg_all()
    for u in range(10):
        a.lds("ds_write_b64 v27, %s offset:%d" % (vr(32 + 2 * u, 2), 32 * u))
    a("s_lshl_b32 s%d, s%d, 3" % (sA, sW))
    a("s_sub_u32 s%d, %d, s%d" % (sA, base + CV_A + 32, sA))
    a("v_lshl_add_u32 v160, v%d, 3, s%d" % (vL, sA))
    a("s_mul_i32 s%d, s%d, 1312" % (sA, sW))
    a("s_add_u32 s%d, s%d, %d" % (sA, sA, base + CV_P + 32))
    a("v_bfe_u32 v26, v%d, 2, 2" % vL)
    a("v_mul_u32_u24 v26, 5312, v26")
    a("v_and_b32 v27, 3, v%d" % vL)
    a("v_lshrrev_b32 v28, 4, v%d" % vL)
    a("v_sub_u32 v27, v27, v28")
    a("v_lshl_add_u32 v26, v27, 3, v26")
    a("v_add_u32 v161, s%d, v26" % sA)
    a.wait_lg_all()
    g.barrier()

    def rd_list(rho):
        b = rho & 1
        out = []
        order = [("A", 0)] + [("B", c) for c in range(8)] + [("A", 1), ("A", 2), ("A", 3)]
        for kind, i in order:
            for hf in range(2):
                if kind == "A":
                    out.append("ds_read_b64_tr_b16 %s, v160 offset:%d"
                               % (vr(CAF + 16 * b + 4 * i + 2 * hf, 2), 4128 * rho + 1024 * i + 512 * hf))
                else:
                    out.append("ds_read_b64_tr_b16 %s, v161 offset:%d"
                               % (vr(CBF + 32 * b + 4 * i + 2 * hf, 2), 328 * rho + 32 * i + 32 * (1 - hf)))
        return out

    for x in rd_list(0):
        a.lds(x)
    a.wait_lg_all()
    for rho in range(4):
        b = rho & 1
        nxt = rd_list(rho + 1) if rho < 3 else []
        k = 0
        for q in range(4):
            for c in range(8 - 2 * q):
                t = c + 2 * q
                acc = vr(CACC + 4 * t, 4)
                a("%s %s, %s, %s, %s" % (MF16, acc, vr(CAF + 16 * b + 4 * q, 4), vr(CBF + 32 * b + 4 * c, 4),
                                         "0" if (rho == 0 and q == 0) else acc))
                for _ in range(2 if k < 8 else 1):
                    if nxt:
                        a.lds(nxt.pop(0))
                k += 1
        assert not nxt
        a.wait_lg_all()


def conv_finish(g, ch, base):
    a = g.a
    g.barrier()
    a("s_lshl_b32 s%d, s%d, 11" % (sA, sW))
    a("s_add_u32 s%d, s%d, %d" % (sA, sA, base + CV_R))
    a("v_add_u32 v26, s%d, v%d" % (sA, vL16))
    for t in range(8):
        a.lds("ds_write_b128 v26, %s offset:%d" % (vr(CACC + 4 * t, 4), (t >> 1) * 8192 + (t & 1) * 1024))
    a("s_lshl_b32 s%d, s%d, 10" % (sA, sW))
    a("s_add_u32 s%d, s%d, %d" % (sA, sA, base + CV_XD))
    a("v_and_b32 v27, 15, v%d" % vL)
    a("v_lshlrev_b32 v27, 5, v27")
    a("v_lshrrev_b32 v28, 4, v%d" % vL)
    a("v_lshl_add_u32 v27, v28, 3, v27")
    a("v_add_u32 v27, s%d, v27" % sA)
    for u in range(2):
        a.lds("ds_read_b64 %s, v27 offset:%d" % (vr(100 + 2 * u, 2), 512 * u))
    a.wait_lg_all()
    g.barrier()
    a("s_lshl_b32 s%d, s%d, 13" % (sA, sW))
    a("s_add_u32 s%d, s%d, %d" % (sA, sA, base + CV_R))
    a("v_add_u32 v26, s%d, v%d" % (sA, vL16))
    for sl in range(4):
        for u in range(2):
            a.lds("ds_read_b128 %s, v26 offset:%d" % (vr(64 + 8 * sl + 4 * u, 4), sl * 2048 + u * 1024))
    for u in range(2):
        for j in range(2):
            a("v_lshlrev_b32 v%d, 16, v%d" % (104 + 4 * u + 2 * j, 100 + 2 * u + j))
            a("v_and_b32 v%d, s%d, v%d" % (105 + 4 * u + 2 * j, sHI, 100 + 2 * u + j))
    a("v_mov_b32 v112, s%d" % (sD1 if ch else sD0))
    a.wait_lg_all()
    for p in range(4):
        a("v_pk_add_f32 %s, %s, %s" % (vr(64 + 2 * p, 2), vr(64 + 2 * p, 2), vr(72 + 2 * p, 2)))
        a("v_pk_add_f32 %s, %s, %s" % (vr(80 + 2 * p, 2), vr(80 + 2 * p, 2), vr(88 + 2 * p, 2)))
    for p in range(4):
        a("v_pk_add_f32 %s, %s, %s" % (vr(64 + 2 * p, 2), vr(64 + 2 * p, 2), vr(80 + 2 * p, 2)))
    for p in range(4):
        a("v_pk_fma_f32 %s, %s, %s, %s op_sel_hi:[1,0,1]" % (vr(64 + 2 * p, 2), vr(104 + 2 * p, 2), vr(112, 2),
                                                            vr(64 + 2 * p, 2)))
    for p in range(4):
        a("v_cvt_pk_bf16_f32 v%d, v%d, v%d" % (116 + p, 64 + 2 * p, 65 + 2 * p))
    a("v_permlane16_swap_b32 v116, v118")
    a("v_permlane16_swap_b32 v117, v119")
    a("v_lshrrev_b32 v26, 4, v%d" % vL)
    a("v_and_b32 v27, 1, v26")
    a("v_lshlrev_b32 v27, 9, v27")
    a("v_lshrrev_b32 v26, 1, v26")
    a("v_lshl_add_u32 v27, v26, 4, v27")
    a("v_and_b32 v26, 15, v%d" % vL)
    a("v_lshl_add_u32 v27, v26, 5, v27")
    a("s_lshl_b32 s%d, s%d, 10" % (sA, sW))
    a("v_add_u32 v27, s%d, v27" % sA)
    a("s_lshl_b32 s%d, s2, 13" % sA)
    a("s_add_u32 s%d, s%d, 0x%x" % (sA, sA, WS_YT + 0x1000 * ch))
    a.vmem("buffer_store_dwordx4 %s, v27, %s, s%d offen sc1" % (vr(116, 4), sr(S_WS, 4), sA), "yt")


def s2_loads(g):
    a = g.a
    a("s_lshl_b32 s%d, s%d, 5" % (sA, sT))
    a("v_add_u32 v26, s%d, v%d" % (sA, vN31))
    a("s_add_u32 s%d, s%d, 1" % (sB, sKH))
    a("s_lshl_b32 s%d, s%d, 14" % (sA, sKH))
    a("s_add_u32 s%d, s%d, 0x%x" % (sA, sA, WS_HS))
    a("v_mov_b32 v29, 0x%x" % OOB)
    for i, op in enumerate(("v_subrev_u32", "v_add_u32")):
        a("%s v27, s%d, v26" % (op, sB))
        a("v_lshrrev_b32 v28, 5, v27")
        a("v_lshlrev_b32 v28, 15, v28")
        a("v_and_b32 v30, 31, v27")
        a("v_lshl_add_u32 v30, v%d, 5, v30" % vHH)
        a("v_lshl_add_u32 v28, v30, 4, v28")
        a("v_add_u32 v28, s%d, v28" % sA)
        a("v_cmp_gt_u32 vcc, 0x800, v27")
        a("v_cndmask_b32 v%d, v29, v28, vcc" % (140 + i))
    so = ["0", "s%d" % sK4, "s%d" % sK8, "s%d" % sK12]
    for ks in range(16):
        a.vmem("buffer_load_dwordx4 %s, v%d, %s, %s offen offset:%d sc1"
               % (ar(4 * ks, 4), 140 + (ks >> 3), sr(S_WS, 4), so[ks >> 2], (ks & 3) * 1024), "h%d" % ks)


def wpi_addr(g, vk, vs, base, khs, ps):
    a = g.a
    a("s_mul_i32 s%d, s%d, %d" % (sA, sKH, khs + ps))
    a("s_add_u32 s%d, s%d, %d" % (sA, sA, base))
    a("v_add_u32 v%d, s%d, v%d" % (vk, sA, vWP))
    a("s_mul_i32 s%d, s%d, %d" % (sA, sKH, khs - ps))
    a("s_add_u32 s%d, s%d, %d" % (sA, sA, base + ps))
    a("v_add_u32 v%d, s%d, v%d" % (vs, sA, vWP))


def s2_main(g):
    a = g.a
    ACK, ACS, AK, AS = g.ACK, g.ACS, g.AK, g.AS
    wpi_addr(g, 124, 125, LW, 16384, 32768)
    a.wait_vm("w2")
    g.barrier()

    def reads(ks):
        b = ks & 1
        for base, addr in ((AK, 124), (AS, 125)):
            for hf in range(2):
                a.lds("ds_read_b64_tr_b16 %s, v%d offset:%d" % (vr(base + 4 * b + 2 * hf, 2), addr,
                                                                ks * 1024 + hf * 512), "f%d" % ks)
    reads(0)
    for ks in range(16):
        if ks < 15:
            reads(ks + 1)
        a.wait_vm("h%d" % ks)
        a.wait_lg("f%d" % ks)
        b = ks & 1
        a("%s %s, %s, %s, %s" % (MF32, vr(ACK, 16), vr(AK + 4 * b, 4), ar(4 * ks, 4), "0" if ks == 0 else vr(ACK, 16)))
        a("%s %s, %s, %s, %s" % (MF32, vr(ACS, 16), vr(AS + 4 * b, 4), ar(4 * ks, 4), "0" if ks == 0 else vr(ACS, 16)))


def unpack8(g, src, dst):
    a = g.a
    for j in range(8):
        a("v_lshlrev_b32 v%d, 16, v%d" % (dst + 2 * j, src + j))
        a("v_and_b32 v%d, s%d, v%d" % (dst + 2 * j + 1, sHI, src + j))


def xn_tile(g, dst):
    a = g.a
    unpack8(g, vQ, dst)
    for p in range(8):
        a("v_pk_add_f32 %s, %s, %s op_sel_hi:[1,0] neg_lo:[0,1] neg_hi:[0,1]"
          % (vr(dst + 2 * p, 2), vr(dst + 2 * p, 2), vr(vMEAN, 2)))
    for p in range(8):
        a("v_pk_mul_f32 %s, %s, %s op_sel:[0,1] op_sel_hi:[1,1]" % (vr(dst + 2 * p, 2), vr(dst + 2 * p, 2), vr(vMEAN, 2)))


def s2_epilogue(g):
    a = g.a
    ACK, ACS = g.ACK, g.ACS
    g.exchange_write(ACS)
    xn_tile(g, 96)
    a.wait_lg_all()
    g.barrier()
    g.exchange_read(80)
    a.wait_lg_all()
    for p in range(8):
        a("v_pk_add_f32 %s, %s, %s" % (vr(ACK + 2 * p, 2), vr(ACK + 2 * p, 2), vr(80 + 2 * p, 2)))
    for p in range(8):
        a("v_pk_add_f32 %s, %s, %s" % (vr(ACK + 2 * p, 2), vr(ACK + 2 * p, 2), vr(96 + 2 * p, 2)))
    for p in range(8):
        a("v_cvt_pk_bf16_f32 v%d, v%d, v%d" % (vX1 + p, ACK + 2 * p, ACK + 2 * p + 1))
    g.frag_store(vX1, WS_X1, "x1st")
    a("v_pk_mul_f32 %s, %s, %s" % (vr(112, 2), vr(ACK, 2), vr(ACK, 2)))
    a("v_pk_add_f32 %s, %s, %s" % (vr(114, 2), vr(ACK, 2), vr(ACK + 2, 2)))
    for p in range(1, 8):
        a("v_pk_fma_f32 %s, %s, %s, %s" % (vr(112, 2), vr(ACK + 2 * p, 2), vr(ACK + 2 * p, 2), vr(112, 2)))
        if p >= 2:
            a("v_pk_add_f32 %s, %s, %s" % (vr(114, 2), vr(114, 2), vr(ACK + 2 * p, 2)))
    a("v_add_f32 v114, v114, v115")
    a("v_add_f32 v112, v112, v113")
    a("v_permlane32_swap_b32 v114, v112")
    a("v_add_f32 v114, v114, v112")
    a("s_lshl_b32 s%d, s%d, 1" % (sA, sC))
    a("s_add_u32 s%d, s%d, s%d" % (sA, sA, sKH))
    a("s_lshl_b32 s%d, s%d, 14" % (sA, sA))
    a("s_lshl_b32 s%d, s%d, 7" % (sB, sT))
    a("s_add_u32 s%d, s%d, s%d" % (sA, sA, sB))
    a("s_add_u32 s%d, s%d, 0x%x" % (sA, sA, WS_ST))
    a("v_lshlrev_b32 v26, 13, v%d" % vHH)
    a("v_lshl_add_u32 v26, v%d, 2, v26" % vN31)
    a.vmem("buffer_store_dword v114, v26, %s, s%d offen sc1" % (sr(S_WS, 4), sA), "x1st")


def w3_dma(g):
    a = g.a
    a("s_movk_i32 s%d, 3584" % sB)
    a("v_lshrrev_b32 v26, 2, v%d" % vL)
    a("v_mul_lo_u32 v26, v26, s%d" % sB)
    a("v_and_b32 v27, 3, v%d" % vL)
    a("v_lshl_add_u32 v142, v27, 4, v26")
    a("v_lshrrev_b32 v26, 1, v%d" % vL)
    a("v_mul_lo_u32 v26, v26, s%d" % sB)
    a("v_and_b32 v27, 1, v%d" % vL)
    a("v_lshl_add_u32 v143, v27, 4, v26")
    a("s_mul_i32 s%d, s%d, %d" % (sF, sW, 128 * 3584))
    a("s_mul_i32 s%d, s%d, 224" % (sA, sCP))
    a("s_add_u32 s%d, s%d, s%d" % (sF, sF, sA))
    a("s_and_b32 s%d, s%d, 1" % (sB, sCP))
    a("s_lshl_b32 s%d, s%d, 5" % (sD, sB))
    a("s_add_u32 s%d, s%d, s%d" % (sD, sD, sF))
    a("s_xor_b32 s%d, s%d, 1" % (sB, sB))
    a("s_mul_i32 s%d, s%d, 192" % (sB, sB))
    a("s_add_u32 s%d, s%d, s%d" % (sF, sF, sB))
    a("s_lshl_b32 s%d, s%d, 13" % (sE, sW))
    for p in range(3):
        for i in range(8):
            a("s_add_u32 m0, s%d, %d" % (sE, W3_P + p * 32768 + i * 1024))
            a("s_add_u32 s%d, s%d, %d" % (sA, sD, p * 64 + i * 16 * 3584))
            g.dma(S_W3, 142, sA, "w3")
    a("s_lshl_b32 s%d, s%d, 12" % (sE, sW))
    for i in range(4):
        a("s_add_u32 m0, s%d, %d" % (sE, W3_H + i * 1024))
        a("s_add_u32 s%d, s%d, %d" % (sA, sF, i * 32 * 3584))
        g.dma(S_W3, 143, sA, "w3")


def s3_loads(g):
    a = g.a
    a("s_lshl_b32 s%d, s%d, 15" % (sA, sT3))
    a("s_add_u32 s%d, s%d, 0x%x" % (sA, sA, WS_X1))
    for ks in range(32):
        if ks and ks % 4 == 0:
            a("s_add_u32 s%d, s%d, 0x1000" % (sA, sA))
        a.vmem("buffer_load_dwordx4 %s, v%d, %s, s%d offen offset:%d sc1"
               % (ar(4 * ks, 4), vL16, sr(S_WS, 4), sA, (ks & 3) * 1024), "x%d" % ks)
    a("s_lshl_b32 s%d, s%d, 7" % (sA, sT3))
    a("s_add_u32 s%d, s%d, 0x%x" % (sA, sA, WS_ST))
    a("v_lshlrev_b32 v26, 13, v%d" % vHH)
    a("v_lshl_add_u32 v26, v%d, 2, v26" % vN31)
    for sl in range(16):
        if sl:
            a("s_add_u32 s%d, s%d, 0x4000" % (sA, sA))
        a.vmem("buffer_load_dword v%d, v26, %s, s%d offen sc1" % (176 + sl, sr(S_WS, 4), sA), "st")


def s3_addr(g):
    a = g.a
    a("v_add_u32 v144, %d, v%d" % (W3_P, vWP))
    a("v_add_u32 v145, %d, v%d" % (W3_P + 65536, vWP))
    a("v_bfe_u32 v26, v%d, 2, 2" % vL)
    a("v_lshl_add_u32 v26, v%d, 2, v26" % vHH)
    a("v_and_b32 v27, 3, v%d" % vL)
    a("v_lshlrev_b32 v27, 3, v27")
    a("v_lshl_add_u32 v26, v26, 5, v27")
    a("v_add_u32 v146, %d, v26" % W3_H)


def w3_read(p, ks, hf, dst):
    if p < 2:
        return "ds_read_b64_tr_b16 %s, v144 offset:%d" % (vr(dst, 2), p * 32768 + ks * 1024 + hf * 512)
    if p == 2:
        return "ds_read_b64_tr_b16 %s, v145 offset:%d" % (vr(dst, 2), ks * 1024 + hf * 512)
    return "ds_read_b64_tr_b16 %s, v146 offset:%d" % (vr(dst, 2), ks * 512 + hf * 256)


def s3_colsum(g):
    a = g.a
    full = a.newlabel("csfull")
    done = a.newlabel("csdone")
    for i in range(4):
        a("v_mov_b32 v%d, s%d" % (116 + i, sONES))
    a("s_cmp_lt_u32 s%d, 3" % sW)
    a("s_cbranch_scc1 %s" % full)
    for is_full in (False, True):
        if is_full:
            a.label(full)
            a("s_lshl_b32 s%d, s%d, 15" % (sA, sW))
            a("v_add_u32 v147, s%d, v144" % sA)
        stride, hstep, addr = (1024, 512, 147) if is_full else (512, 256, 146)
        saved = list(a.lg)
        a.lg = []

        def rd(ks):
            for hf in range(2):
                a.lds("ds_read_b64_tr_b16 %s, v%d offset:%d" % (vr(96 + 4 * (ks & 3) + 2 * hf, 2), addr,
                                                                ks * stride + hf * hstep), "c%d" % ks)
        for ks in range(3):
            rd(ks)
        for ks in range(32):
            if ks + 3 < 32:
                rd(ks + 3)
            a.wait_lg("c%d" % ks)
            a("%s %s, %s, %s, %s" % (MF32, vr(32, 16), vr(96 + 4 * (ks & 3), 4), vr(116, 4),
                                     "0" if ks == 0 else vr(32, 16)))
        a.lg = saved
        if not is_full:
            a("s_branch %s" % done)
    a.label(done)
    a("s_lshl_b32 s%d, s%d, 7" % (sA, sW))
    a("s_add_u32 s%d, s%d, %d" % (sA, sA, LCS3))
    a("v_lshl_add_u32 v28, v%d, 4, s%d" % (vHH, sA))
    a("s_mov_b32 exec_lo, 1")
    a("s_mov_b32 exec_hi, 1")
    for j in range(4):
        a.lds("ds_write_b128 v28, %s offset:%d" % (vr(32 + 4 * j, 4), 32 * j))
    a("s_mov_b64 exec, -1")
    a.wait_lg_all()
    g.barrier()


def s3_main(g):
    a = g.a
    AF = 96

    def reads(ks):
        b = ks & 1
        for p in range(4):
            for hf in range(2):
                a.lds(w3_read(p, ks, hf, AF + 16 * b + 4 * p + 2 * hf), "f%d" % ks)
    reads(0)
    for ks in range(32):
        if ks < 31:
            reads(ks + 1)
        a.wait_vm("x%d" % ks)
        a.wait_lg("f%d" % ks)
        b = ks & 1
        for p in range(4):
            acc = vr(32 + 16 * p, 16)
            a("%s %s, %s, %s, %s" % (MF32, acc, vr(AF + 16 * b + 4 * p, 4), ar(4 * ks, 4), "0" if ks == 0 else acc))


def s3_epilogue(g):
    a = g.a
    G = 128
    a.wait_vm("st")
    for s in (8, 4, 2, 1):
        for i in range(s):
            a("v_add_f32 v%d, v%d, v%d" % (176 + i, 176 + i, 176 + i + s))
    a("v_mov_b32 v177, v176")
    a("v_permlane32_swap_b32 v176, v177")
    a("v_mul_f32 v178, s%d, v176" % s512I)
    a("v_mul_f32 v26, s%d, v177" % s512I)
    a("v_fma_f32 v26, -v178, v178, v26")
    a("v_max_f32 v26, 0, v26")
    a("v_add_f32 v26, s%d, v26" % sEPS)
    a("v_rsq_f32 v27, v26")
    g.gelu_consts(27, G)
    a("v_sub_f32 v%d, 0, v178" % (G + 4))
    a("v_lshlrev_b32 v28, 4, v%d" % vHH)
    a("v_add_u32 v28, %d, v28" % LCS3)
    a("s_mul_i32 s%d, s%d, 114688" % (sD, sT3))
    a("s_mul_i32 s%d, s%d, 7168" % (sA, sCP))
    a("s_add_u32 s%d, s%d, s%d" % (sD, sD, sA))
    a("s_add_u32 s%d, s%d, 0x%x" % (sD, sD, WS_HH))
    a("s_and_b32 s%d, s%d, 1" % (sB, sCP))
    a("s_lshl_b32 s%d, s%d, 10" % (sE, sB))
    a("s_add_u32 s%d, s%d, s%d" % (sE, sE, sD))
    a("s_xor_b32 s%d, s%d, 1" % (sB, sB))
    a("s_mul_i32 s%d, s%d, 6144" % (sB, sB))
    a("s_add_u32 s%d, s%d, s%d" % (sF, sD, sB))
    for p in range(4):
        n = 16 if p < 3 else 8
        C = 96 + 16 * (p & 1)
        for j in range(n // 4):
            a.lds("ds_read_b128 %s, v28 offset:%d" % (vr(C + 4 * j, 4), 128 * p + 32 * j))
        a.wait_lg_all()
        acc = 32 + 16 * p
        for i in range(n // 2):
            a("v_pk_fma_f32 %s, %s, %s, %s op_sel_hi:[1,0,1]"
              % (vr(acc + 2 * i, 2), vr(C + 2 * i, 2), vr(G + 4, 2), vr(acc + 2 * i, 2)))
        out = 148 + 8 * (p & 1)
        g.gelu(acc, n, G, G + 2, 136, out)
        if p < 3:
            a("s_add_u32 s%d, s%d, %d" % (sA, sE, 2048 * p))
            a.vmem("buffer_store_dwordx4 %s, v%d, %s, s%d offen sc1" % (vr(out, 4), vL16, sr(S_WS, 4), sA), "Hst")
            a.vmem("buffer_store_dwordx4 %s, v%d, %s, s%d offen offset:1024 sc1"
                   % (vr(out + 4, 4), vL16, sr(S_WS, 4), sA), "Hst")
        else:
            a.vmem("buffer_store_dwordx4 %s, v%d, %s, s%d offen sc1" % (vr(out, 4), vL16, sr(S_WS, 4), sF), "Hst")


def w4_dma(g, ks0, ks1, slot0, tag):
    a = g.a
    a("v_lshrrev_b32 v26, 2, v%d" % vL)
    a("v_and_b32 v27, 3, v%d" % vL)
    a("v_lshlrev_b32 v27, 4, v27")
    a("v_lshl_add_u32 v31, v26, 10, v27")
    a("s_lshl_b32 s%d, s%d, 11" % (sE, sKH))
    a("s_lshl_b32 s%d, s%d, 10" % (sA, sTH))
    a("s_add_u32 s%d, s%d, s%d" % (sE, sE, sA))
    a("s_mul_i32 s%d, s%d, %d" % (sF, sKH, 896 * 1024))
    a("s_lshl_b32 s%d, s%d, 7" % (sA, sC))
    a("s_add_u32 s%d, s%d, s%d" % (sF, sF, sA))
    a("s_lshl_b32 s%d, s%d, 6" % (sA, sTH))
    a("s_add_u32 s%d, s%d, s%d" % (sF, sF, sA))
    for ks in range(ks0, ks1):
        a("s_add_u32 m0, s%d, %d" % (sE, (slot0 + ks - ks0) * 4096))
        a("s_add_u32 s%d, s%d, %d" % (sA, sF, ks * 16384))
        g.dma(S_W4, 31, sA, tag)


def s4_hloads(g):
    a = g.a
    a("s_mul_i32 s%d, s%d, 114688" % (sA, sT))
    a("s_mul_i32 s%d, s%d, %d" % (sB, sKH, 56 * 1024))
    a("s_add_u32 s%d, s%d, s%d" % (sA, sA, sB))
    a("s_add_u32 s%d, s%d, 0x%x" % (sA, sA, WS_HH))
    for ks in range(56):
        if ks and ks % 4 == 0:
            a("s_add_u32 s%d, s%d, 0x1000" % (sA, sA))
        a.vmem("buffer_load_dwordx4 %s, v%d, %s, s%d offen offset:%d sc1"
               % (ar(4 * ks, 4), vL16, sr(S_WS, 4), sA, (ks & 3) * 1024), "H%d" % ks)
        a.check_vm_depth()


def s4_yloads(g):
    a = g.a
    a("s_lshl_b32 s%d, s%d, 18" % (sA, sC))
    a("s_lshl_b32 s%d, s%d, 17" % (sB, sKH))
    a("s_add_u32 s%d, s%d, s%d" % (sA, sA, sB))
    a("s_lshl_b32 s%d, s%d, 6" % (sB, sT))
    a("s_add_u32 s%d, s%d, s%d" % (sA, sA, sB))
    a("s_add_u32 s%d, s%d, 0x%x" % (sA, sA, WS_YT))
    a("v_lshlrev_b32 v26, 14, v%d" % vHH)
    a("v_lshl_add_u32 v26, v%d, 1, v26" % vN31)
    for r in range(16):
        a("s_add_u32 s%d, s%d, %d" % (sB, sA, (8 * (r >> 2) + (r & 3)) * 4096))
        a.vmem("buffer_load_ushort v%d, v26, %s, s%d offen sc1" % (176 + r, sr(S_WS, 4), sB), "y")
        a.check_vm_depth()


def s4_main(g):
    a = g.a
    ACK, ACS, AK, AS = g.ACK, g.ACS, g.AK, g.AS
    wpi_addr(g, 120, 123, 0, 2048, 1024)
    for i in (1, 2):
        a("v_add_u32 v%d, %d, v120" % (120 + i, 65536 * i))
        a("v_add_u32 v%d, %d, v123" % (123 + i, 65536 * i))

    def reads(ks):
        b = ks & 1
        slot = ks if ks < W4_SLOTS else ks - W4_SLOTS
        off = slot * 4096
        for base, addr in ((AK, 120), (AS, 123)):
            for hf in range(2):
                a.lds("ds_read_b64_tr_b16 %s, v%d offset:%d" % (vr(base + 4 * b + 2 * hf, 2), addr + off // 65536,
                                                                off % 65536 + hf * 512), "f%d" % ks)
    nref = 56 - W4_SLOTS
    reads(0)
    for ks in range(56):
        if ks == W4_SLOTS - 1:
            pass
        elif ks < 55:
            reads(ks + 1)
        a.wait_vm("H%d" % ks)
        a.wait_lg("f%d" % ks)
        b = ks & 1
        a("%s %s, %s, %s, %s" % (MF32, vr(ACK, 16), vr(AK + 4 * b, 4), ar(4 * ks, 4), "0" if ks == 0 else vr(ACK, 16)))
        a("%s %s, %s, %s, %s" % (MF32, vr(ACS, 16), vr(AS + 4 * b, 4), ar(4 * ks, 4), "0" if ks == 0 else vr(ACS, 16)))
        if ks == nref - 1:
            g.barrier()
            w4_dma(g, W4_SLOTS, 56, 0, "w4b")
        if ks == 29:
            s4_yloads(g)
        if ks == W4_SLOTS - 1:
            a.wait_vm("w4b")
            g.barrier()
            reads(ks + 1)


def s4_epilogue(g):
    a = g.a
    ACK, ACS = g.ACK, g.ACS
    g.exchange_write(ACS)
    xn_tile(g, 96)
    unpack8(g, vQ, 112)
    unpack8(g, vX1, 128)
    for p in range(8):
        a("v_pk_add_f32 %s, %s, %s" % (vr(112 + 2 * p, 2), vr(112 + 2 * p, 2), vr(128 + 2 * p, 2)))
    a.wait_vm("y")
    for r in range(16):
        a("v_lshlrev_b32 v%d, 16, v%d" % (176 + r, 176 + r))
    for p in range(8):
        a("v_pk_fma_f32 %s, %s, %s, %s" % (vr(112 + 2 * p, 2), vr(96 + 2 * p, 2), vr(176 + 2 * p, 2), vr(112 + 2 * p, 2)))
    a.wait_lg_all()
    g.barrier()
    g.exchange_read(80)
    a.wait_lg_all()
    for p in range(8):
        a("v_pk_add_f32 %s, %s, %s" % (vr(ACK + 2 * p, 2), vr(ACK + 2 * p, 2), vr(80 + 2 * p, 2)))
    for p in range(8):
        a("v_pk_add_f32 %s, %s, %s" % (vr(ACK + 2 * p, 2), vr(ACK + 2 * p, 2), vr(112 + 2 * p, 2)))
    for p in range(8):
        a("v_cvt_pk_bf16_f32 v%d, v%d, v%d" % (48 + p, ACK + 2 * p, ACK + 2 * p + 1))
    for j in (0, 4):
        a("v_permlane32_swap_b32 v%d, v%d" % (48 + j, 50 + j))
        a("v_permlane32_swap_b32 v%d, v%d" % (49 + j, 51 + j))
    a("s_lshl_b32 s%d, s%d, 15" % (sA, sT))
    a("s_lshl_b32 s%d, s%d, 7" % (sB, sC))
    a("s_add_u32 s%d, s%d, s%d" % (sA, sA, sB))
    a("s_lshl_b32 s%d, s%d, 6" % (sB, sKH))
    a("s_add_u32 s%d, s%d, s%d" % (sA, sA, sB))
    a("v_lshlrev_b32 v26, 10, v%d" % vN31)
    a("v_lshl_add_u32 v26, v%d, 4, v26" % vHH)
    a.vmem("buffer_store_dwordx4 %s, v26, %s, s%d offen" % (vr(48, 4), sr(S_OUT, 4), sA), "out")
    a.vmem("buffer_store_dwordx4 %s, v26, %s, s%d offen offset:32" % (vr(52, 4), sr(S_OUT, 4), sA), "out")


def nonce_update(g):
    a = g.a
    skip = a.newlabel("nonce")
    a("s_cmp_lg_u32 s2, 0")
    a("s_cbranch_scc1 %s" % skip)
    for i in range(4):
        a("v_add_u32 v28, %d, v%d" % (64 * i, vL))
        g.poll(28, F_P0, 6)
    a("v_mov_b32 v26, 0")
    a("v_mov_b32 v27, s%d" % sN)
    a("s_mov_b64 exec, 1")
    a("buffer_store_dword v27, v26, %s, 0 offen sc1" % sr(S_WS, 4))
    a("s_mov_b64 exec, -1")
    a.label(skip)


def pre_s1_epilogue(g):
    conv_loads(g)


def rest(g):
    a = g.a
    g.w64_setup()
    g.w64_dma(S_W2, range(16), "w2")
    a.wait_vm("hst")
    g.barrier()
    g.flag_store_rc(F_S1)
    g.stamp("s1flag")
    conv_main(g, 0, CV_BASE0)
    g.stamp("cv0main")
    a("v_min_u32 v28, 23, v%d" % vL)
    a("s_lshl_b32 s%d, s%d, 3" % (sA, sR))
    a("s_sub_u32 s%d, s%d, 8" % (sA, sA))
    a("v_add_u32 v28, s%d, v28" % sA)
    a("v_add_u32 v29, 8, v28")
    a("v_cmp_gt_i32 vcc, 0, v28")
    a("v_cndmask_b32 v28, v28, v29, vcc")
    a("v_subrev_u32 v29, 8, v28")
    a("v_cmp_lt_u32 vcc, 0xff, v28")
    a("v_cndmask_b32 v28, v28, v29, vcc")
    g.poll(28, F_S1, 2)
    g.stamp("s1poll")
    s2_loads(g)
    conv_finish(g, 0, CV_BASE0)
    g.stamp("cv0fin")
    s2_main(g)
    g.stamp("s2main")
    s2_epilogue(g)
    g.stamp("s2epi")
    if g.stop == "s2":
        return
    w3_dma(g)
    a.wait_vm("x1st")
    g.barrier()
    g.flag_store_rc(F_S2)
    g.stamp("s2flag")
    conv_main(g, 1, CV_BASE1)
    g.stamp("cv1main")
    a.wait_vm("w3")
    a("v_and_b32 v28, 15, v%d" % vL)
    a("s_lshl_b32 s%d, s%d, 4" % (sA, sRP))
    a("v_add_u32 v28, s%d, v28" % sA)
    g.poll(28, F_S2, 3)
    g.stamp("s2poll")
    s3_loads(g)
    conv_finish(g, 1, CV_BASE1)
    s3_addr(g)
    g.stamp("cv1fin")
    s3_colsum(g)
    g.stamp("s3cs")
    s3_main(g)
    g.stamp("s3main")
    a.wait_vm("yt")
    g.barrier()
    g.flag_store(F_CV, 2)
    s3_epilogue(g)
    g.stamp("s3epi")
    if g.stop == "s3":
        return
    w4_dma(g, 0, W4_SLOTS, 0, "w4")
    a.wait_vm("Hst")
    g.barrier()
    a("s_lshl_b32 s%d, s%d, 4" % (sB, sRP))
    a("s_add_u32 s%d, s%d, s%d" % (sB, sB, sCP))
    g.flag_store(F_S3, sB)
    g.stamp("s3flag")
    nonce_update(g)
    a("s_lshl_b32 s%d, s%d, 5" % (sA, sC))
    a("v_add_u32 v28, s%d, v%d" % (sA, vN31))
    g.poll(28, F_CV, 4)
    a("v_and_b32 v28, 15, v%d" % vL)
    a("s_lshr_b32 s%d, s%d, 1" % (sA, sR))
    a("s_lshl_b32 s%d, s%d, 4" % (sA, sA))
    a("v_add_u32 v28, s%d, v28" % sA)
    a.wait_vm("w4")
    g.poll(28, F_S3, 5)
    g.stamp("s3poll")
    s4_hloads(g)
    s4_main(g)
    g.stamp("s4main")
    s4_epilogue(g)
    g.stamp("s4epi")
```

```python
import argparse
import os
import sys

sys.path.insert(0, os.path.dirname(os.path.abspath(__file__)))
from asmlib import Asm

NAME = "parallel_sum__ssm_conv_h3__mixer_s_mlp__prompt"

WS_X = 0
WS_FLAGS = 4096
WS_STAMP = 0x40000
WS_KVT = 0x100000
WS_YT = 0x300000
WS_HS = 0x500000
WS_X1 = 0x700000
WS_ST = 0x900000
WS_HH = 0xA00000
WS_SIZE = 0x10000000
OOB = 0x40000000
F_P0, F_S1, F_S2, F_S3, F_CV = 0, 1, 2, 3, 4

LQ = 0
LW = 65536
LSTG = 131072
LRED = 139264
LSTX = 155648
LCSX = 156672
LCS3 = 161280
LDS_BYTES = 163840
CV_X = 0
CV_XD = 1152
CV_A = 5248
CV_P = 21760
CV_R = 5248
CV_BASE0 = 0
CV_BASE1 = 114688
W3_P = 0
W3_H = 98304
W4_SLOTS = 38
W4_RED = W4_SLOTS * 4096

S_WS, S_Q, S_K, S_V, S_SHK, S_SSM, S_W1, S_W2, S_W3, S_W4, S_OUT = 4, 8, 12, 16, 20, 24, 32, 36, 40, 44, 48
S_DPTR = 28
S_DBG = 30
sR, sC, sW, sTH, sKH, sN, sRP, sCP = 52, 53, 54, 55, 56, 57, 58, 59
sT = 60
sT3 = 61
sD0, sD1 = 62, 63
sA, sB, sCc, sD, sE, sF = 64, 65, 66, 67, 68, 69
sONES, sHI = 80, 81
sK4, sK8, sK12 = 82, 83, 84
sEPS = 85
sTMO = 86
sKG1, sKG3 = 87, 88
s512I = 89
sSTA = 90
sMSK = 92

vL, vL16, vWP, vWN = 0, 1, 2, 3
vQ = 4
vX1 = 12
vMEAN, vR1 = 20, 21
vTID = 22
vHH = 23
vN31 = 24
vSTAMP = 25
vCH = 200

GELU_K1 = 2.0 * 0.7978845608028654 * 1.4426950408889634
GELU_K3 = GELU_K1 * 0.044715


def f32bits(x):
    import struct
    return struct.unpack("<I", struct.pack("<f", x))[0]


def vr(a, n):
    return "v[%d:%d]" % (a, a + n - 1)


def ar(a, n):
    return "a[%d:%d]" % (a, a + n - 1)


def sr(a, n):
    return "s[%d:%d]" % (a, a + n - 1)


class Gen:
    def __init__(self, stop=None, stamps=False):
        self.a = Asm()
        self.stop = stop
        self.stamps = stamps
        self.nstamp = 0

    def stamp(self, name):
        if not self.stamps:
            return
        a = self.a
        a("s_memtime %s" % sr(sSTA, 2))
        a("s_waitcnt lgkmcnt(0)")
        a.lg = []
        a("v_writelane_b32 v%d, s%d, %d" % (vSTAMP, sSTA, self.nstamp))
        self.stamp_names = getattr(self, "stamp_names", []) + [name]
        self.nstamp += 1

    def barrier(self):
        self.a("s_barrier")

    def dma(self, srd, voff, soff, tag):
        self.a.vmem("buffer_load_dwordx4 v%d, %s, s%d offen lds" % (voff, sr(srd, 4), soff), tag)

    def flag_store(self, phase, sidx):
        a = self.a
        skip = a.newlabel("noflag")
        a("s_cmp_lg_u32 s%d, 0" % sW)
        a("s_cbranch_scc1 %s" % skip)
        a("s_lshl_b32 s%d, s%d, 7" % (sA, sidx))
        a("s_add_u32 s%d, s%d, %d" % (sA, sA, WS_FLAGS + phase * 256 * 128))
        a("v_mov_b32 v26, s%d" % sN)
        a("v_mov_b32 v27, s%d" % sA)
        a("s_mov_b64 exec, 1")
        a("buffer_store_dword v26, v27, %s, 0 offen sc1" % sr(S_WS, 4))
        a("s_mov_b64 exec, -1")
        a.label(skip)

    def poll(self, vidx, phase, code):
        a = self.a
        skip = a.newlabel("nopoll")
        loop = a.newlabel("poll")
        done = a.newlabel("polled")
        a("s_cmp_lg_u32 s%d, 0" % sW)
        a("s_cbranch_scc1 %s" % skip)
        a("v_lshlrev_b32 v26, 7, v%d" % vidx)
        a("v_add_u32 v26, %d, v26" % (WS_FLAGS + phase * 256 * 128))
        a("s_mov_b32 s%d, 0x40000" % sTMO)
        a.label(loop)
        a("buffer_load_dword v27, v26, %s, 0 offen sc1" % sr(S_WS, 4))
        a("s_waitcnt vmcnt(0)")
        a("v_cmp_ne_u32 vcc, s%d, v27" % sN)
        a("s_cmp_eq_u64 vcc, 0")
        a("s_cbranch_scc1 %s" % done)
        a("s_sub_u32 s%d, s%d, 1" % (sTMO, sTMO))
        a("s_cmp_lg_u32 s%d, 0" % sTMO)
        a("s_cbranch_scc1 %s" % loop)
        a("v_mov_b32 v26, 0")
        a("v_mov_b32 v27, %d" % (0x100 + code))
        a("s_mov_b64 exec, 1")
        a("global_store_dword v26, v27, %s" % sr(S_DBG, 2))
        a("s_mov_b64 exec, -1")
        a.label(done)
        a.label(skip)
        self.barrier()

    def prologue(self):
        a = self.a
        a("s_cmp_ge_u32 s2, 256")
        a("s_cbranch_scc1 L_end")
        a("s_load_dwordx16 s[64:79], s[0:1], 0")
        a("s_load_dwordx8 s[92:99], s[0:1], 64")
        a("s_load_dwordx2 %s, s[0:1], 96" % sr(S_DBG, 2))
        a("s_load_dwordx2 %s, s[0:1], 104" % sr(S_WS, 2))
        sizes = {S_WS: WS_SIZE, S_Q: 1 << 21, S_K: 1 << 21, S_V: 1 << 21, S_SHK: 4096, S_SSM: 1 << 21,
                 S_W1: 1 << 19, S_W2: 1 << 19, S_W3: 512 * 1792 * 2, S_W4: 512 * 1792 * 2, S_OUT: 1 << 21}
        for s, n in sizes.items():
            a("s_mov_b32 s%d, 0x%x" % (s + 2, n))
            a("s_mov_b32 s%d, 0x20000" % (s + 3))
        a("s_and_b32 s100, s2, 7")
        a("s_lshr_b32 s101, s2, 3")
        a("s_lshr_b32 s%d, s101, 3" % sR)
        a("s_lshl_b32 s%d, s100, 2" % sC)
        a("s_add_u32 s%d, s%d, s%d" % (sR, sR, sC))
        a("s_and_b32 s%d, s101, 7" % sC)
        a("s_lshr_b32 s%d, s101, 4" % sRP)
        a("s_lshl_b32 s100, s100, 1")
        a("s_add_u32 s%d, s%d, s100" % (sRP, sRP))
        a("s_and_b32 s%d, s101, 15" % sCP)
        a("v_mov_b32 v%d, v0" % vTID)
        a("v_lshrrev_b32 v26, 6, v0")
        a("v_and_b32 v%d, 63, v0" % vL)
        a("v_readfirstlane_b32 s%d, v26" % sW)
        a("v_lshlrev_b32 v%d, 4, v%d" % (vL16, vL))
        a("v_lshrrev_b32 v%d, 5, v%d" % (vHH, vL))
        a("v_and_b32 v%d, 31, v%d" % (vN31, vL))
        a("s_lshr_b32 s%d, s%d, 1" % (sTH, sW))
        a("s_and_b32 s%d, s%d, 1" % (sKH, sW))
        a("s_lshl_b32 s%d, s%d, 1" % (sT, sR))
        a("s_add_u32 s%d, s%d, s%d" % (sT, sT, sTH))
        a("s_lshl_b32 s%d, s%d, 2" % (sT3, sRP))
        a("s_add_u32 s%d, s%d, s%d" % (sT3, sT3, sW))
        a("s_mov_b32 s%d, 0x3f803f80" % sONES)
        a("s_mov_b32 s%d, 0xffff0000" % sHI)
        a("s_movk_i32 s%d, 0x1000" % sK4)
        a("s_movk_i32 s%d, 0x2000" % sK8)
        a("s_movk_i32 s%d, 0x3000" % sK12)
        a("s_mov_b32 s%d, 0x%x" % (sEPS, f32bits(1e-5)))
        a("s_mov_b32 s%d, 0x%x" % (sKG1, f32bits(-GELU_K1)))
        a("s_mov_b32 s%d, 0x%x" % (sKG3, f32bits(-GELU_K3)))
        a("s_mov_b32 s%d, 0x%x" % (s512I, f32bits(1.0 / 512)))
        a("v_bfe_u32 v26, v%d, 2, 2" % vL)
        a("v_and_b32 v27, 3, v%d" % vL)
        a("v_bfe_u32 v28, v%d, 4, 1" % vL)
        a("v_lshlrev_b32 v27, 3, v27")
        a("v_lshl_add_u32 v27, v28, 5, v27")
        a("v_lshl_add_u32 v28, v%d, 2, v26" % vHH)
        a("v_lshl_add_u32 v%d, v28, 6, v27" % vWP)
        a("v_lshl_add_u32 v28, v%d, 3, v26" % vHH)
        a("v_lshl_add_u32 v%d, v28, 6, v27" % vWN)
        if self.stamps:
            a("v_mov_b32 v%d, 0" % vSTAMP)
        a("s_waitcnt lgkmcnt(0)")
        for i, s in enumerate([S_Q, S_K, S_V, S_SHK, S_SSM, S_DPTR]):
            a("s_mov_b64 %s, %s" % (sr(s, 2), sr(64 + 2 * i, 2)))
        a("s_mov_b64 %s, s[78:79]" % sr(S_W1, 2))
        for i, s in enumerate([S_W2, S_W3, S_W4, S_OUT]):
            a("s_mov_b64 %s, %s" % (sr(s, 2), sr(92 + 2 * i, 2)))
        self.stamp("start")
        a("v_mov_b32 v26, 0")
        a.vmem("buffer_load_dword v30, v26, %s, 0 offen sc1" % sr(S_WS, 4), "nonce")

    KRAW, VRAW, SHRAW = 32, 43, 52

    def p0_loads(self):
        a = self.a
        a("s_lshl_b32 s%d, s%d, 6" % (sA, sR))
        a("s_lshl_b32 s%d, s%d, 4" % (sB, sW))
        a("s_add_u32 s%d, s%d, s%d" % (sA, sA, sB))
        a("v_lshl_add_u32 v26, v%d, 3, s%d" % (vHH, sA))
        a("s_lshl_b32 s%d, s%d, 7" % (sB, sC))
        a("v_lshl_add_u32 v27, v%d, 2, s%d" % (vN31, sB))
        a("v_lshl_add_u32 v129, v26, 10, v27")
        a("v_add_u32 v130, 0x1000, v129")
        a("v_mov_b32 v28, 0x%x" % OOB)
        for i in range(3):
            a("v_subrev_u32 v%d, %d, v129" % (126 + i, (3 - i) * 1024))
            a("v_cmp_gt_u32 vcc, %d, v26" % (3 - i))
            a("v_cndmask_b32 v%d, v%d, v28, vcc" % (126 + i, 126 + i))
        for i in range(3):
            a.vmem("buffer_load_dword v%d, v%d, %s, 0 offen" % (self.KRAW + i, 126 + i, sr(S_K, 4)), "p0")
        for i in range(8):
            a.vmem("buffer_load_dword v%d, v%d, %s, 0 offen offset:%d"
                   % (self.KRAW + 3 + i, 129 + i // 4, sr(S_K, 4), (i % 4) * 1024), "p0")
        for i in range(8):
            a.vmem("buffer_load_dword v%d, v%d, %s, 0 offen offset:%d"
                   % (self.VRAW + i, 129 + i // 4, sr(S_V, 4), (i % 4) * 1024), "p0")
        a("s_lshl_b32 s%d, s%d, 9" % (sB, sC))
        a("v_lshl_add_u32 v28, v%d, 4, s%d" % (vN31, sB))
        a.vmem("buffer_load_dwordx4 %s, v28, %s, 0 offen" % (vr(self.SHRAW, 4), sr(S_SHK, 4)), "p0")

    def p0_compute(self):
        a = self.a
        K, V, SH, KV, PK = 56, 78, 94, 102, 118
        a.wait_vm("p0")
        a("v_readfirstlane_b32 s%d, v30" % sN)
        a("s_mul_i32 s%d, s%d, 0x9e3779b1" % (sN, sN))
        a("s_add_u32 s%d, s%d, 0x7f4a7c15" % (sN, sN))
        d = self.SHRAW
        for j, (x, y, hi) in enumerate([(d, d + 2, 0), (d, d + 2, 1), (d + 1, d + 3, 0), (d + 1, d + 3, 1)]):
            for o, src in ((0, x), (1, y)):
                if hi:
                    a("v_and_b32 v%d, s%d, v%d" % (SH + 2 * j + o, sHI, src))
                else:
                    a("v_lshlrev_b32 v%d, 16, v%d" % (SH + 2 * j + o, src))
        for i in range(11):
            a("v_lshlrev_b32 v%d, 16, v%d" % (K + 2 * i, self.KRAW + i))
            a("v_and_b32 v%d, s%d, v%d" % (K + 2 * i + 1, sHI, self.KRAW + i))
        for i in range(8):
            a("v_lshlrev_b32 v%d, 16, v%d" % (V + 2 * i, self.VRAW + i))
            a("v_and_b32 v%d, s%d, v%d" % (V + 2 * i + 1, sHI, self.VRAW + i))
        for t in range(8):
            a("v_pk_mul_f32 %s, %s, %s" % (vr(KV + 2 * t, 2), vr(K + 2 * (t + 3), 2), vr(SH, 2)))
        for j in range(1, 4):
            for t in range(8):
                a("v_pk_fma_f32 %s, %s, %s, %s" % (vr(KV + 2 * t, 2), vr(K + 2 * (t + 3 - j), 2), vr(SH + 2 * j, 2),
                                                   vr(KV + 2 * t, 2)))
        for t in range(8):
            a("v_pk_mul_f32 %s, %s, %s" % (vr(KV + 2 * t, 2), vr(KV + 2 * t, 2), vr(V + 2 * t, 2)))
        for c in range(2):
            for t in range(4):
                a("v_cvt_pk_bf16_f32 v%d, v%d, v%d" % (PK + 4 * c + t, KV + 4 * t + c, KV + 4 * t + 2 + c))
        a("s_lshl_b32 s%d, s%d, 1" % (sA, sW))
        a("v_add_u32 v26, s%d, v%d" % (sA, vHH))
        a("v_and_b32 v27, 7, v%d" % vN31)
        a("v_xor_b32 v26, v26, v27")
        a("v_lshlrev_b32 v26, 4, v26")
        a("v_lshl_add_u32 v26, v%d, 8, v26" % vN31)
        a("v_add_u32 v26, %d, v26" % LSTG)
        a.lds("ds_write_b128 v26, %s" % vr(PK, 4))
        a.lds("ds_write_b128 v26, %s offset:128" % vr(PK + 4, 4))
        a.wait_lg_all()
        self.barrier()
        a("v_lshrrev_b32 v26, 3, v%d" % vL)
        a("s_lshl_b32 s%d, s%d, 4" % (sA, sW))
        a("v_add_u32 v26, s%d, v26" % sA)
        a("v_and_b32 v27, 7, v%d" % vL)
        for i in range(2):
            a("v_add_u32 v28, %d, v26" % (8 * i))
            a("v_bfe_u32 v29, v28, 1, 3")
            a("v_xor_b32 v29, v29, v27")
            a("v_lshlrev_b32 v29, 4, v29")
            a("v_lshl_add_u32 v29, v28, 7, v29")
            a("v_add_u32 v29, %d, v29" % LSTG)
            a.lds("ds_read_b128 %s, v29" % vr(PK + 4 * i, 4))
        a("s_lshl_b32 s%d, s%d, 18" % (sA, sC))
        a("s_lshl_b32 s%d, s%d, 7" % (sB, sR))
        a("s_add_u32 s%d, s%d, s%d" % (sA, sA, sB))
        a("s_add_u32 s%d, s%d, 0x%x" % (sA, sA, WS_KVT))
        a("v_lshlrev_b32 v27, 4, v27")
        a("v_lshl_add_u32 v27, v26, 12, v27")
        a("s_add_u32 s%d, s%d, 0x8000" % (sB, sA))
        a.wait_lg_all()
        a.vmem("buffer_store_dwordx4 %s, v27, %s, s%d offen sc1" % (vr(PK, 4), sr(S_WS, 4), sA), "kvt")
        a.vmem("buffer_store_dwordx4 %s, v27, %s, s%d offen sc1" % (vr(PK + 4, 4), sr(S_WS, 4), sB), "kvt")

    def w64_dma(self, srd, rows, tag):
        a = self.a
        for g in rows:
            a("s_add_u32 m0, s%d, %d" % (sE, g * 1024))
            a("s_add_u32 s%d, s%d, %d" % (sA, sF, g * 16384))
            self.dma(srd, 31, sA, tag)

    def w64_setup(self):
        a = self.a
        a("v_lshrrev_b32 v26, 2, v%d" % vL)
        a("v_and_b32 v27, 3, v%d" % vL)
        a("v_lshlrev_b32 v27, 4, v27")
        a("v_lshl_add_u32 v31, v26, 10, v27")
        a("s_lshl_b32 s%d, s%d, 15" % (sE, sTH))
        a("s_lshl_b32 s%d, s%d, 14" % (sA, sKH))
        a("s_add_u32 s%d, s%d, s%d" % (sE, sE, sA))
        a("s_add_u32 s%d, s%d, %d" % (sE, sE, LW))
        a("s_lshl_b32 s%d, s%d, 18" % (sF, sKH))
        a("s_lshl_b32 s%d, s%d, 7" % (sA, sC))
        a("s_add_u32 s%d, s%d, s%d" % (sF, sF, sA))
        a("s_lshl_b32 s%d, s%d, 6" % (sA, sTH))
        a("s_add_u32 s%d, s%d, s%d" % (sF, sF, sA))

    def s1_loads(self):
        a = self.a
        a("v_lshrrev_b32 v26, 3, v%d" % vL)
        a("v_and_b32 v27, 7, v%d" % vL)
        a("v_lshrrev_b32 v28, 4, v%d" % vL)
        a("v_xor_b32 v27, v27, v28")
        a("v_lshlrev_b32 v27, 4, v27")
        a("v_lshl_add_u32 v132, v26, 10, v27")
        a("v_xor_b32 v133, 64, v132")
        a("s_lshl_b32 s%d, s%d, 14" % (sCc, sW))
        a("s_lshl_b32 s%d, s%d, 15" % (sD, sT))
        a("s_lshl_b32 s%d, s%d, 9" % (sA, sKH))
        a("s_add_u32 s%d, s%d, s%d" % (sD, sD, sA))
        self.w64_setup()
        for half in range(2):
            for kb in (2 * half, 2 * half + 1):
                for j in range(4):
                    a("s_add_u32 m0, s%d, %d" % (sCc, LQ + kb * 4096 + j * 1024))
                    a("s_add_u32 s%d, s%d, %d" % (sA, sD, j * 8192 + kb * 128))
                    self.dma(S_Q, 132 + (j & 1), sA, "s1_%d" % half)
            self.w64_dma(S_W1, range(8 * half, 8 * half + 8), "s1_%d" % half)

    ACK, ACS, ACC_CS = 32, 48, 64
    BF, AK, AS, AC = 80, 88, 96, 104
    SUM = 112
    ONE4 = 116

    def s1_main(self):
        a = self.a
        ACK, ACS, ACC_CS, BF, AK, AS, AC, SUM, ONE4 = (self.ACK, self.ACS, self.ACC_CS, self.BF, self.AK, self.AS,
                                                       self.AC, self.SUM, self.ONE4)
        a("v_bfe_u32 v26, v%d, 1, 3" % vN31)
        a("v_xor_b32 v26, v26, v%d" % vHH)
        a("v_lshlrev_b32 v26, 4, v26")
        a("v_lshl_add_u32 v26, v%d, 7, v26" % vN31)
        a("s_lshl_b32 s%d, s%d, 14" % (sA, sW))
        a("v_add_u32 v120, s%d, v26" % sA)
        for i in range(1, 4):
            a("v_xor_b32 v%d, %d, v120" % (120 + i, 32 * i))
        a("s_lshl_b32 s%d, s%d, 14" % (sA, sKH))
        a("s_add_u32 s%d, s%d, %d" % (sA, sA, LW))
        a("s_lshl_b32 s%d, s%d, 15" % (sB, sKH))
        a("s_add_u32 s%d, s%d, s%d" % (sCc, sA, sB))
        a("v_add_u32 v124, s%d, v%d" % (sCc, vWN))
        a("s_xor_b32 s%d, s%d, 0x8000" % (sB, sB))
        a("s_add_u32 s%d, s%d, s%d" % (sCc, sA, sB))
        a("v_add_u32 v125, s%d, v%d" % (sCc, vWN))
        a("s_xor_b32 s%d, s%d, s%d" % (sB, sKH, sTH))
        a("s_lshl_b32 s%d, s%d, 15" % (sB, sB))
        a("s_add_u32 s%d, s%d, s%d" % (sCc, sA, sB))
        a("v_add_u32 v126, s%d, v%d" % (sCc, vWN))
        for i in range(4):
            a("v_mov_b32 v%d, s%d" % (ONE4 + i, sONES))
        for i in range(4):
            a("v_mov_b32 v%d, 0" % (SUM + i))

        def reads(ks):
            b = ks & 1
            kb, q4 = ks >> 2, ks & 3
            a.lds("ds_read_b128 %s, v%d offset:%d" % (vr(BF + 4 * b, 4), 120 + q4, LQ + kb * 4096), "f%d" % ks)
            for base, addr in ((AK, 124), (AS, 125), (AC, 126)):
                for hf in range(2):
                    a.lds("ds_read_b64_tr_b16 %s, v%d offset:%d"
                          % (vr(base + 4 * b + 2 * hf, 2), addr, ks * 1024 + hf * 256), "f%d" % ks)

        for half in range(2):
            if half == 0:
                a.wait_vm("s1_0")
            else:
                a.wait_vm_all()
            self.barrier()
            if half == 1:
                self.flag_store_rc(F_P0)
            reads(8 * half)
            for ks in range(8 * half, 8 * half + 8):
                if ks + 1 < 8 * half + 8:
                    reads(ks + 1)
                a.wait_lg("f%d" % ks)
                b = ks & 1
                B = vr(BF + 4 * b, 4)
                first = ks == 0
                a("v_mfma_f32_32x32x16_bf16 %s, %s, %s, %s" % (vr(ACK, 16), vr(AK + 4 * b, 4), B,
                                                               "0" if first else vr(ACK, 16)))
                for j in range(4):
                    a("v_dot2c_f32_bf16 v%d, s%d, v%d" % (SUM + (j & 1), sONES, BF + 4 * b + j))
                a("v_mfma_f32_32x32x16_bf16 %s, %s, %s, %s" % (vr(ACS, 16), vr(AS + 4 * b, 4), B,
                                                               "0" if first else vr(ACS, 16)))
                for j in range(4):
                    a("v_dot2c_f32_bf16 v%d, v%d, v%d" % (SUM + 2 + (j & 1), BF + 4 * b + j, BF + 4 * b + j))
                a("v_mfma_f32_32x32x16_bf16 %s, %s, %s, %s" % (vr(ACC_CS, 16), vr(AC + 4 * b, 4), vr(ONE4, 4),
                                                               "0" if first else vr(ACC_CS, 16)))

    def flag_store_rc(self, phase):
        a = self.a
        a("s_lshl_b32 s%d, s%d, 3" % (sB, sR))
        a("s_add_u32 s%d, s%d, s%d" % (sB, sB, sC))
        self.flag_store(phase, sB)

    def q_tile_read(self):
        a = self.a
        a("s_lshr_b32 s%d, s%d, 2" % (sA, sC))
        a("s_lshl_b32 s%d, s%d, 1" % (sB, sTH))
        a("s_add_u32 s%d, s%d, s%d" % (sA, sA, sB))
        a("s_lshl_b32 s%d, s%d, 14" % (sA, sA))
        a("s_and_b32 s%d, s%d, 3" % (sB, sC))
        a("s_lshl_b32 s%d, s%d, 12" % (sB, sB))
        a("s_add_u32 s%d, s%d, s%d" % (sA, sA, sB))
        a("s_lshl_b32 s%d, s%d, 2" % (sB, sKH))
        a("v_bfe_u32 v26, v%d, 1, 3" % vN31)
        a("v_xor_b32 v26, s%d, v26" % sB)
        a("v_lshlrev_b32 v27, 7, v%d" % vN31)
        a("v_lshl_add_u32 v27, v%d, 3, v27" % vHH)
        a("v_add_u32 v27, s%d, v27" % sA)
        for j in range(4):
            a("v_xor_b32 v28, %d, v26" % j)
            a("v_lshl_add_u32 v28, v28, 4, v27")
            a.lds("ds_read_b64 %s, v28 offset:%d" % (vr(vQ + 2 * j, 2), LQ), "qt")

    def gelu(self, X, n, vA13, vIA, T, out):
        a = self.a
        for p in range(n // 2):
            x = vr(X + 2 * p, 2)
            t = T + 4 * (p & 1)
            a("v_pk_mul_f32 %s, %s, %s" % (vr(t, 2), x, x))
            a("v_pk_fma_f32 %s, %s, %s, %s op_sel:[0,1,0] op_sel_hi:[1,1,0]"
              % (vr(t, 2), vr(t, 2), vr(vA13, 2), vr(vA13, 2)))
            a("v_pk_mul_f32 %s, %s, %s" % (vr(t, 2), vr(t, 2), x))
            a("v_exp_f32 v%d, v%d" % (t + 2, t))
            a("v_exp_f32 v%d, v%d" % (t + 3, t + 1))
            a("v_pk_fma_f32 %s, %s, %s, %s op_sel_hi:[1,0,0]" % (vr(t, 2), vr(t + 2, 2), vr(vIA, 2), vr(vIA, 2)))
            a("v_rcp_f32 v%d, v%d" % (t + 2, t))
            a("v_rcp_f32 v%d, v%d" % (t + 3, t + 1))
            a("v_pk_mul_f32 %s, %s, %s" % (vr(t, 2), vr(t + 2, 2), x))
            a("v_cvt_pk_bf16_f32 v%d, v%d, v%d" % (out + p, t, t + 1))

    def gelu_consts(self, vA, dst):
        a = self.a
        a("v_mul_f32 v%d, s%d, v%d" % (dst, sKG1, vA))
        a("v_mul_f32 v%d, v%d, v%d" % (dst + 1, vA, vA))
        a("v_mul_f32 v%d, v%d, v%d" % (dst + 1, dst + 1, vA))
        a("v_mul_f32 v%d, s%d, v%d" % (dst + 1, sKG3, dst + 1))
        a("v_rcp_f32 v%d, v%d" % (dst + 2, vA))

    def exchange_write(self, send, base=LRED):
        a = self.a
        a("s_lshl_b32 s%d, s%d, 12" % (sA, sW))
        a("s_add_u32 s%d, s%d, %d" % (sA, sA, base))
        a("v_add_u32 v26, s%d, v%d" % (sA, vL16))
        for j in range(4):
            a.lds("ds_write_b128 v26, %s offset:%d" % (vr(send + 4 * j, 4), 1024 * j))

    def exchange_read(self, dst, base=LRED):
        a = self.a
        a("s_xor_b32 s%d, s%d, 1" % (sA, sW))
        a("s_lshl_b32 s%d, s%d, 12" % (sA, sA))
        a("s_add_u32 s%d, s%d, %d" % (sA, sA, base))
        a("v_add_u32 v26, s%d, v%d" % (sA, vL16))
        for j in range(4):
            a.lds("ds_read_b128 %s, v26 offset:%d" % (vr(dst + 4 * j, 4), 1024 * j), "xr")

    def s1_epilogue(self):
        a = self.a
        ACK, ACS, ACC_CS, SUM = self.ACK, self.ACS, self.ACC_CS, self.SUM
        self.q_tile_read()
        a("v_add_f32 v%d, v%d, v%d" % (SUM, SUM, SUM + 1))
        a("v_add_f32 v%d, v%d, v%d" % (SUM + 2, SUM + 2, SUM + 3))
        a("v_permlane32_swap_b32 v%d, v%d" % (SUM, SUM + 2))
        a("v_add_f32 v%d, v%d, v%d" % (SUM, SUM, SUM + 2))
        self.exchange_write(ACS)
        a("s_lshl_b32 s%d, s%d, 8" % (sA, sW))
        a("s_add_u32 s%d, s%d, %d" % (sA, sA, LSTX))
        a("v_lshl_add_u32 v27, v%d, 2, s%d" % (vL, sA))
        a.lds("ds_write_b32 v27, v%d" % SUM)
        a("s_xor_b32 s%d, s%d, s%d" % (sA, sKH, sTH))
        a("s_lshl_b32 s%d, s%d, 8" % (sA, sA))
        a("s_lshl_b32 s%d, s%d, 7" % (sB, sKH))
        a("s_add_u32 s%d, s%d, s%d" % (sA, sA, sB))
        a("s_add_u32 s%d, s%d, %d" % (sA, sA, LCSX))
        a("v_lshl_add_u32 v28, v%d, 4, s%d" % (vHH, sA))
        a("s_mov_b32 exec_lo, 1")
        a("s_mov_b32 exec_hi, 1")
        for j in range(4):
            a.lds("ds_write_b128 v28, %s offset:%d" % (vr(ACC_CS + 4 * j, 4), 32 * j))
        a("s_mov_b64 exec, -1")
        a.wait_lg_all()
        self.barrier()
        P, C0, C1 = 80, 96, 128
        self.exchange_read(P)
        a("s_xor_b32 s%d, s%d, 1" % (sA, sW))
        a("s_lshl_b32 s%d, s%d, 8" % (sA, sA))
        a("s_add_u32 s%d, s%d, %d" % (sA, sA, LSTX))
        a("v_lshl_add_u32 v27, v%d, 2, s%d" % (vL, sA))
        a.lds("ds_read_b32 v%d, v27" % (SUM + 1))
        a("s_lshl_b32 s%d, s%d, 8" % (sA, sKH))
        a("s_add_u32 s%d, s%d, %d" % (sA, sA, LCSX))
        a("v_lshl_add_u32 v28, v%d, 4, s%d" % (vHH, sA))
        for j in range(4):
            a.lds("ds_read_b128 %s, v28 offset:%d" % (vr(C0 + 4 * j, 4), 32 * j))
            a.lds("ds_read_b128 %s, v28 offset:%d" % (vr(C1 + 4 * j, 4), 128 + 32 * j))
        a.wait_lg_all()
        a("v_add_f32 v%d, v%d, v%d" % (SUM, SUM, SUM + 1))
        a("v_mov_b32 v%d, v%d" % (SUM + 2, SUM))
        a("v_permlane32_swap_b32 v%d, v%d" % (SUM, SUM + 2))
        a("v_mul_f32 v%d, s%d, v%d" % (vMEAN, s512I, SUM))
        a("v_mul_f32 v26, s%d, v%d" % (s512I, SUM + 2))
        a("v_fma_f32 v26, -v%d, v%d, v26" % (vMEAN, vMEAN))
        a("v_max_f32 v26, 0, v26")
        a("v_add_f32 v27, s%d, v26" % sEPS)
        a("v_rsq_f32 v%d, v27" % vR1)
        a("v_mul_f32 v27, v%d, v%d" % (vR1, vR1))
        a("v_fma_f32 v27, v27, v26, s%d" % sEPS)
        a("v_rsq_f32 v27, v27")
        a("v_mul_f32 v27, v27, v%d" % vR1)
        G = 112
        self.gelu_consts(27, G)
        a("v_sub_f32 v%d, 0, v%d" % (G + 4, vMEAN))
        for p in range(8):
            a("v_pk_add_f32 %s, %s, %s" % (vr(C0 + 2 * p, 2), vr(C0 + 2 * p, 2), vr(C1 + 2 * p, 2)))
            a("v_pk_add_f32 %s, %s, %s" % (vr(ACK + 2 * p, 2), vr(ACK + 2 * p, 2), vr(P + 2 * p, 2)))
        for p in range(8):
            a("v_pk_fma_f32 %s, %s, %s, %s op_sel_hi:[1,0,1]"
              % (vr(ACK + 2 * p, 2), vr(C0 + 2 * p, 2), vr(G + 4, 2), vr(ACK + 2 * p, 2)))
        self.gelu(ACK, 16, G, G + 2, 120, 48)
        self.frag_store(48, WS_HS, "hst")

    def frag_store(self, src, base, tag):
        a = self.a
        a("s_lshl_b32 s%d, s%d, 15" % (sA, sT))
        a("s_lshl_b32 s%d, s%d, 12" % (sB, sC))
        a("s_add_u32 s%d, s%d, s%d" % (sA, sA, sB))
        a("s_lshl_b32 s%d, s%d, 11" % (sB, sKH))
        a("s_add_u32 s%d, s%d, s%d" % (sA, sA, sB))
        a("s_add_u32 s%d, s%d, 0x%x" % (sA, sA, base))
        a.vmem("buffer_store_dwordx4 %s, v%d, %s, s%d offen sc1" % (vr(src, 4), vL16, sr(S_WS, 4), sA), tag)
        a.vmem("buffer_store_dwordx4 %s, v%d, %s, s%d offen offset:1024 sc1"
               % (vr(src + 4, 4), vL16, sr(S_WS, 4), sA), tag)

    def finish(self):
        a = self.a
        a.wait_vm_all()
        if self.stamps:
            self.stamp("end")
            skip = a.newlabel("nostamp")
            a("s_cmp_lg_u32 s%d, 0" % sW)
            a("s_cbranch_scc1 %s" % skip)
            a("s_lshl_b32 s%d, s2, 8" % sA)
            a("s_add_u32 s%d, s%d, 0x%x" % (sA, sA, WS_STAMP))
            a("v_lshlrev_b32 v26, 2, v%d" % vL)
            a("buffer_store_dword v%d, v26, %s, s%d offen" % (vSTAMP, sr(S_WS, 4), sA))
            a("s_waitcnt vmcnt(0)")
            a.label(skip)
        a.label("L_end")
        a("s_endpgm")

    def build(self):
        self.prologue()
        self.p0_loads()
        self.s1_loads()
        self.p0_compute()
        self.stamp("p0")
        self.s1_main()
        self.stamp("s1main")
        from phases2 import rest, pre_s1_epilogue
        pre_s1_epilogue(self)
        self.stamp("cvloads")
        self.s1_epilogue()
        self.stamp("s1epi")
        if self.stop == "s1":
            return self.finish()
        rest(self)
        self.finish()


HEADER = open("cdna_kernels/%s.s.ref" % NAME).read().split("\n") if os.path.exists(
    "cdna_kernels/%s.s.ref" % NAME) else []


def emit(stop=None, stamps=False):
    g = Gen(stop, stamps)
    g.build()
    nops = g.a.fix_hazards()
    top = [l for l in HEADER if l.startswith(";") and "@launch" not in l and "Override" not in l
           and "grid=ceil" not in l]
    out = top + ["; @launch grid=(256,1,1) block=(256,1,1) lds=%d" % LDS_BYTES,
                 '.amdgcn_target "amdgcn-amd-amdhsa--gfx950"', ".text", ".globl %s_kernel" % NAME, ".p2align 8",
                 ".type %s_kernel,@function" % NAME, "%s_kernel:" % NAME]
    body = g.a.text()
    tail = ['.section .rodata,"a"', ".p2align 6", ".amdhsa_kernel %s_kernel" % NAME,
            "  .amdhsa_next_free_vgpr 512", "  .amdhsa_next_free_sgpr 102", "  .amdhsa_accum_offset 256",
            "  .amdhsa_group_segment_fixed_size 0", "  .amdhsa_kernarg_size 112", "  .amdhsa_user_sgpr_count 2",
            "  .amdhsa_user_sgpr_kernarg_segment_ptr 1", "  .amdhsa_system_sgpr_workgroup_id_x 1",
            "  .amdhsa_float_denorm_mode_32 3", ".end_amdhsa_kernel"]
    text = "\n".join(out) + "\n" + body + "\n".join(tail) + "\n"
    return text, g, nops


if __name__ == "__main__":
    ap = argparse.ArgumentParser()
    ap.add_argument("-o", default="cdna_kernels/%s.s" % NAME)
    ap.add_argument("--stop", default=None)
    ap.add_argument("--stamps", action="store_true")
    args = ap.parse_args()
    text, g, nops = emit(args.stop, args.stamps)
    open(args.o, "w").write(text)
    n = sum(1 for x in g.a.ins if x.kind != "label")
    print("instructions: %d, hazard nops: %d, stamps: %s" % (n, nops, getattr(g, "stamp_names", [])))
```

```python
import argparse
import os
import struct
import sys

sys.path.insert(0, os.path.dirname(os.path.abspath(__file__)))
from asmlib import Asm

NAME = "parallel_sum__ssm_conv_h3__mixer_s_mlp__prompt"

WS_FLAGS = 4096
WS_STAMP = 0x40000
WS_KVT = 0x100000
WS_YT = 0x300000
WS_HS = 0x500000
WS_X1 = 0x700000
WS_ST = 0x900000
WS_HH = 0xA00000
WS_SIZE = 0x10000000
OOB = 0x40000000
F_P0, F_S1, F_S2, F_S3, F_CV = 0, 1, 2, 3, 4

LQ = 0
LW = 65536
LSTG = 131072
LRED = 139264
LSTX = 155648
LCSX = 156672
LCS3 = 161280
LDS_BYTES = 163840
CV_X = 0
CV_XD = 1152
CV_A = 5248
CV_P = 21760
CV_R = 5248
CV_BASE = 114688
W3_P = 0
W3_H = 98304
W4_FIRST = 28
W4_SLOTS = 40

S_WS, S_Q, S_K, S_V, S_SHK, S_SSM, S_W1, S_W2, S_W3, S_W4, S_OUT = 4, 8, 12, 16, 20, 24, 32, 36, 40, 44, 48
S_DPTR = 28
S_DBG = 30
sR, sC, sW, sTH, sKH, sN, sRP, sCP = 52, 53, 54, 55, 56, 57, 58, 59
sT, sT3 = 60, 61
sD0, sD1 = 62, 63
sA, sB, sCc, sD, sE, sF = 64, 65, 66, 67, 68, 69
sW2L, sW2G, sW3L, sW3G, sW3HL, sW3HG, sW4L, sW4G, sSO, sLD = 70, 71, 72, 73, 74, 75, 76, 77, 78, 79
sONES, sHI = 80, 81
sK4, sK8, sK12 = 82, 83, 84
sEPS, sTMO, sKG1, sKG3, s512I = 85, 86, 87, 88, 89
sSTA = 90

vL, vL16, vWP, vWN = 0, 1, 2, 3
vQ, vX1 = 4, 12
vMEAN, vR1 = 20, 21
vTID, vHH, vN31, vSTAMP = 22, 23, 24, 25
vW64 = 31
vCH = 200
vW3F, vW3H = 220, 221
vPF, vPA = 225, 226

GELU_K1 = 2.0 * 0.7978845608028654 * 1.4426950408889634
GELU_K3 = GELU_K1 * 0.044715
MF32 = "v_mfma_f32_32x32x16_bf16"
MF16 = "v_mfma_f32_16x16x32_bf16"


def f32bits(x):
    return struct.unpack("<I", struct.pack("<f", x))[0]


def vr(a, n):
    return "v[%d:%d]" % (a, a + n - 1)


def ar(a, n):
    return "a[%d:%d]" % (a, a + n - 1)


def sr(a, n):
    return "s[%d:%d]" % (a, a + n - 1)


class Gen:
    def __init__(self, stop=None, stamps=False):
        self.a = Asm()
        self.stop = stop
        self.stamps = stamps
        self.nstamp = 0
        self.stamp_names = []
        self.fq = []

    def stamp(self, name):
        if not self.stamps:
            return
        a = self.a
        a("s_memtime %s" % sr(sSTA, 2))
        a("s_waitcnt lgkmcnt(0)")
        a.lg = []
        a("v_writelane_b32 v%d, s%d, %d" % (vSTAMP, sSTA, self.nstamp))
        if name in ("start", "end"):
            a("s_memrealtime %s" % sr(sSTA, 2))
            a("s_waitcnt lgkmcnt(0)")
            a("v_writelane_b32 v%d, s%d, %d" % (vSTAMP, sSTA, 62 if name == "start" else 63))
        self.stamp_names.append(name)
        self.nstamp += 1

    def barrier(self):
        self.a("s_barrier")

    def fill(self, n=1):
        for _ in range(n):
            if self.fq:
                self.fq.pop(0)()

    def fill_all(self):
        while self.fq:
            self.fq.pop(0)()

    def dma_item(self, srd, voff, sl, loff, sg, goff, tag):
        def f():
            a = self.a
            a("s_add_u32 m0, s%d, %d" % (sl, loff))
            a("s_add_u32 s%d, s%d, %d" % (sSO, sg, goff))
            a.vmem("buffer_load_dwordx4 v%d, %s, s%d offen lds" % (voff, sr(srd, 4), sSO), tag)
            a.check_vm_depth()
        return f

    def flag_store(self, phase, sidx):
        a = self.a
        skip = a.newlabel("noflag")
        a("s_cmp_lg_u32 s%d, 0" % sW)
        a("s_cbranch_scc1 %s" % skip)
        a("s_lshl_b32 s%d, s%d, 7" % (sA, sidx))
        a("s_add_u32 s%d, s%d, %d" % (sA, sA, WS_FLAGS + phase * 256 * 128))
        a("v_mov_b32 v26, s%d" % sN)
        a("v_mov_b32 v27, s%d" % sA)
        a("s_mov_b64 exec, 1")
        a("buffer_store_dword v26, v27, %s, 0 offen sc1" % sr(S_WS, 4))
        a("s_mov_b64 exec, -1")
        a.label(skip)

    def flag_store_rc(self, phase):
        a = self.a
        a("s_lshl_b32 s%d, s%d, 3" % (sB, sR))
        a("s_add_u32 s%d, s%d, s%d" % (sB, sB, sC))
        self.flag_store(phase, sB)

    def poll_issue(self, phase, tag):
        a = self.a
        a("v_lshlrev_b32 v%d, 7, v28" % vPA)
        a("v_add_u32 v%d, %d, v%d" % (vPA, WS_FLAGS + phase * 256 * 128, vPA))
        a.vmem("buffer_load_dword v%d, v%d, %s, 0 offen sc1" % (vPF, vPA, sr(S_WS, 4)), tag)

    def poll_check(self, tag, code):
        a = self.a
        loop = a.newlabel("poll")
        done = a.newlabel("polled")
        a.wait_vm(tag)
        a("v_cmp_ne_u32 vcc, s%d, v%d" % (sN, vPF))
        a("s_cmp_eq_u64 vcc, 0")
        a("s_cbranch_scc1 %s" % done)
        a("s_mov_b32 s%d, 0x40000" % sTMO)
        a.label(loop)
        a("buffer_load_dword v%d, v%d, %s, 0 offen sc1" % (vPF, vPA, sr(S_WS, 4)))
        a("s_waitcnt vmcnt(0)")
        a("v_cmp_ne_u32 vcc, s%d, v%d" % (sN, vPF))
        a("s_cmp_eq_u64 vcc, 0")
        a("s_cbranch_scc1 %s" % done)
        a("s_sub_u32 s%d, s%d, 1" % (sTMO, sTMO))
        a("s_cmp_lg_u32 s%d, 0" % sTMO)
        a("s_cbranch_scc1 %s" % loop)
        a("v_mov_b32 v26, 0")
        a("v_mov_b32 v27, %d" % (0x100 + code))
        a("s_mov_b64 exec, 1")
        a("global_store_dword v26, v27, %s" % sr(S_DBG, 2))
        a("s_mov_b64 exec, -1")
        a.label(done)

    def idx_s1(self):
        a = self.a
        a("v_min_u32 v28, 23, v%d" % vL)
        a("s_lshl_b32 s%d, s%d, 3" % (sA, sR))
        a("s_sub_u32 s%d, s%d, 8" % (sA, sA))
        a("v_add_u32 v28, s%d, v28" % sA)
        a("v_add_u32 v29, 8, v28")
        a("v_cmp_gt_i32 vcc, 0, v28")
        a("v_cndmask_b32 v28, v28, v29, vcc")
        a("v_subrev_u32 v29, 8, v28")
        a("v_cmp_lt_u32 vcc, 0xff, v28")
        a("v_cndmask_b32 v28, v28, v29, vcc")

    def idx_p0(self):
        a = self.a
        a("s_lshr_b32 s%d, s2, 5" % sA)
        a("v_lshlrev_b32 v28, 3, v%d" % vN31)
        a("v_add_u32 v28, s%d, v28" % sA)

    def idx_16(self, sreg, shift):
        a = self.a
        a("v_and_b32 v28, 15, v%d" % vL)
        a("s_lshr_b32 s%d, s%d, %d" % (sA, sreg, shift))
        a("s_lshl_b32 s%d, s%d, 4" % (sA, sA))
        a("v_add_u32 v28, s%d, v28" % sA)

    def idx_cv(self):
        a = self.a
        a("s_lshl_b32 s%d, s%d, 5" % (sA, sC))
        a("v_add_u32 v28, s%d, v%d" % (sA, vN31))

    def prologue(self):
        a = self.a
        a("s_cmp_ge_u32 s2, 256")
        a("s_cbranch_scc1 L_end")
        a("s_load_dwordx16 s[64:79], s[0:1], 0")
        a("s_load_dwordx8 s[92:99], s[0:1], 64")
        a("s_load_dwordx2 %s, s[0:1], 96" % sr(S_DBG, 2))
        a("s_load_dwordx2 %s, s[0:1], 104" % sr(S_WS, 2))
        sizes = {S_WS: WS_SIZE, S_Q: 1 << 21, S_K: 1 << 21, S_V: 1 << 21, S_SHK: 4096, S_SSM: 1 << 21,
                 S_W1: 1 << 19, S_W2: 1 << 19, S_W3: 512 * 1792 * 2, S_W4: 512 * 1792 * 2, S_OUT: 1 << 21}
        for s, n in sizes.items():
            a("s_mov_b32 s%d, 0x%x" % (s + 2, n))
            a("s_mov_b32 s%d, 0x20000" % (s + 3))
        a("s_and_b32 s100, s2, 7")
        a("s_lshr_b32 s101, s2, 3")
        a("s_lshr_b32 s%d, s101, 3" % sR)
        a("s_lshl_b32 s%d, s100, 2" % sC)
        a("s_add_u32 s%d, s%d, s%d" % (sR, sR, sC))
        a("s_and_b32 s%d, s101, 7" % sC)
        a("s_lshr_b32 s%d, s101, 4" % sRP)
        a("s_lshl_b32 s100, s100, 1")
        a("s_add_u32 s%d, s%d, s100" % (sRP, sRP))
        a("s_and_b32 s%d, s101, 15" % sCP)
        a("v_mov_b32 v%d, v0" % vTID)
        a("v_lshrrev_b32 v26, 6, v0")
        a("v_and_b32 v%d, 63, v0" % vL)
        a("v_readfirstlane_b32 s%d, v26" % sW)
        a("v_lshlrev_b32 v%d, 4, v%d" % (vL16, vL))
        a("v_lshrrev_b32 v%d, 5, v%d" % (vHH, vL))
        a("v_and_b32 v%d, 31, v%d" % (vN31, vL))
        a("s_lshr_b32 s%d, s%d, 1" % (sTH, sW))
        a("s_and_b32 s%d, s%d, 1" % (sKH, sW))
        a("s_lshl_b32 s%d, s%d, 1" % (sT, sR))
        a("s_add_u32 s%d, s%d, s%d" % (sT, sT, sTH))
        a("s_lshl_b32 s%d, s%d, 2" % (sT3, sRP))
        a("s_add_u32 s%d, s%d, s%d" % (sT3, sT3, sW))
        a("s_mov_b32 s%d, 0x3f803f80" % sONES)
        a("s_mov_b32 s%d, 0xffff0000" % sHI)
        a("s_movk_i32 s%d, 0x1000" % sK4)
        a("s_movk_i32 s%d, 0x2000" % sK8)
        a("s_movk_i32 s%d, 0x3000" % sK12)
        a("s_mov_b32 s%d, 0x%x" % (sEPS, f32bits(1e-5)))
        a("s_mov_b32 s%d, 0x%x" % (sKG1, f32bits(-GELU_K1)))
        a("s_mov_b32 s%d, 0x%x" % (sKG3, f32bits(-GELU_K3)))
        a("s_mov_b32 s%d, 0x%x" % (s512I, f32bits(1.0 / 512)))
        a("v_bfe_u32 v26, v%d, 2, 2" % vL)
        a("v_and_b32 v27, 3, v%d" % vL)
        a("v_bfe_u32 v28, v%d, 4, 1" % vL)
        a("v_lshlrev_b32 v27, 3, v27")
        a("v_lshl_add_u32 v27, v28, 5, v27")
        a("v_lshl_add_u32 v28, v%d, 2, v26" % vHH)
        a("v_lshl_add_u32 v%d, v28, 6, v27" % vWP)
        a("v_lshl_add_u32 v28, v%d, 3, v26" % vHH)
        a("v_lshl_add_u32 v%d, v28, 6, v27" % vWN)
        a("v_lshrrev_b32 v26, 2, v%d" % vL)
        a("v_and_b32 v27, 3, v%d" % vL)
        a("v_lshlrev_b32 v27, 4, v27")
        a("v_lshl_add_u32 v%d, v26, 10, v27" % vW64)
        a("v_lshrrev_b32 v26, 3, v%d" % vL)
        a("v_and_b32 v27, 7, v%d" % vL)
        a("v_lshrrev_b32 v28, 4, v%d" % vL)
        a("v_xor_b32 v27, v27, v28")
        a("v_lshlrev_b32 v27, 4, v27")
        a("v_lshl_add_u32 v132, v26, 10, v27")
        a("v_xor_b32 v133, 64, v132")
        if self.stamps:
            a("v_mov_b32 v%d, 0" % vSTAMP)
        a("s_waitcnt lgkmcnt(0)")
        for s, src in ((S_Q, 64), (S_W1, 78), (S_K, 66), (S_V, 68), (S_SHK, 70), (S_SSM, 72), (S_DPTR, 74)):
            a("s_mov_b64 %s, %s" % (sr(s, 2), sr(src, 2)))
        for i, s in enumerate([S_W2, S_W3, S_W4, S_OUT]):
            a("s_mov_b64 %s, %s" % (sr(s, 2), sr(92 + 2 * i, 2)))
        self.stamp("start")

    def w64_bases(self, sl, sg):
        a = self.a
        a("s_lshl_b32 s%d, s%d, 15" % (sl, sTH))
        a("s_lshl_b32 s%d, s%d, 14" % (sA, sKH))
        a("s_add_u32 s%d, s%d, s%d" % (sl, sl, sA))
        a("s_add_u32 s%d, s%d, %d" % (sl, sl, LW))
        a("s_lshl_b32 s%d, s%d, 18" % (sg, sKH))
        a("s_lshl_b32 s%d, s%d, 7" % (sA, sC))
        a("s_add_u32 s%d, s%d, s%d" % (sg, sg, sA))
        a("s_lshl_b32 s%d, s%d, 6" % (sA, sTH))
        a("s_add_u32 s%d, s%d, s%d" % (sg, sg, sA))

    def s1_loads(self):
        a = self.a
        a("s_lshl_b32 s%d, s%d, 14" % (sCc, sW))
        a("s_lshl_b32 s%d, s%d, 15" % (sD, sT))
        a("s_lshl_b32 s%d, s%d, 9" % (sA, sKH))
        a("s_add_u32 s%d, s%d, s%d" % (sD, sD, sA))
        self.w64_bases(sW2L, sW2G)
        for st in range(4):
            for j in range(4):
                self.dma_item(S_Q, 132 + (j & 1), sCc, LQ + st * 4096 + j * 1024, sD, j * 8192 + st * 128,
                              "s1_%d" % st)()
            for grp in range(4 * st, 4 * st + 4):
                self.dma_item(S_W1, vW64, sW2L, grp * 1024, sW2G, grp * 16384, "s1_%d" % st)()
        a("v_mov_b32 v26, 0")
        a.vmem("buffer_load_dword v30, v26, %s, 0 offen sc1" % sr(S_WS, 4), "nonce")

    KRAW, VRAW, SHRAW, POFF = 160, 171, 180, 184

    def p0_load_items(self):
        a = self.a
        o = self.POFF
        a("s_lshl_b32 s%d, s%d, 6" % (sA, sR))
        a("s_lshl_b32 s%d, s%d, 4" % (sB, sW))
        a("s_add_u32 s%d, s%d, s%d" % (sA, sA, sB))
        a("v_lshl_add_u32 v26, v%d, 3, s%d" % (vHH, sA))
        a("s_lshl_b32 s%d, s%d, 7" % (sB, sC))
        a("v_lshl_add_u32 v27, v%d, 2, s%d" % (vN31, sB))
        a("v_lshl_add_u32 v%d, v26, 10, v27" % (o + 3))
        a("v_add_u32 v%d, 0x1000, v%d" % (o + 4, o + 3))
        a("v_mov_b32 v28, 0x%x" % OOB)
        for i in range(3):
            a("v_subrev_u32 v%d, %d, v%d" % (o + i, (3 - i) * 1024, o + 3))
            a("v_cmp_gt_u32 vcc, %d, v26" % (3 - i))
            a("v_cndmask_b32 v%d, v%d, v28, vcc" % (o + i, o + i))
        a("s_lshl_b32 s%d, s%d, 9" % (sB, sC))
        a("v_lshl_add_u32 v%d, v%d, 4, s%d" % (o + 5, vN31, sB))

        def item(text):
            return lambda: a.vmem(text, "p0")
        for i in range(3):
            self.fq.append(item("buffer_load_dword v%d, v%d, %s, 0 offen" % (self.KRAW + i, o + i, sr(S_K, 4))))
        for i in range(8):
            self.fq.append(item("buffer_load_dword v%d, v%d, %s, 0 offen offset:%d"
                                % (self.KRAW + 3 + i, o + 3 + i // 4, sr(S_K, 4), (i % 4) * 1024)))
        for i in range(8):
            self.fq.append(item("buffer_load_dword v%d, v%d, %s, 0 offen offset:%d"
                                % (self.VRAW + i, o + 3 + i // 4, sr(S_V, 4), (i % 4) * 1024)))
        self.fq.append(item("buffer_load_dwordx4 %s, v%d, %s, 0 offen" % (vr(self.SHRAW, 4), o + 5, sr(S_SHK, 4))))

    ACK, ACS, ACC_CS = 32, 48, 64
    BF, AK, AS, AC = 80, 96, 104, 112
    SUM, ONE4 = 120, 124

    def s1_main(self):
        a = self.a
        ACK, ACS, ACC_CS, BF, AK, AS, AC, SUM, ONE4 = (self.ACK, self.ACS, self.ACC_CS, self.BF, self.AK, self.AS,
                                                       self.AC, self.SUM, self.ONE4)
        a("v_bfe_u32 v26, v%d, 1, 3" % vN31)
        a("v_xor_b32 v26, v26, v%d" % vHH)
        a("v_lshlrev_b32 v26, 4, v26")
        a("v_lshl_add_u32 v26, v%d, 7, v26" % vN31)
        a("s_lshl_b32 s%d, s%d, 14" % (sA, sW))
        a("v_add_u32 v128, s%d, v26" % sA)
        for i in range(1, 4):
            a("v_xor_b32 v%d, %d, v128" % (128 + i, 32 * i))
        a("s_lshl_b32 s%d, s%d, 14" % (sA, sKH))
        a("s_add_u32 s%d, s%d, %d" % (sA, sA, LW))
        a("s_lshl_b32 s%d, s%d, 15" % (sB, sKH))
        a("s_add_u32 s%d, s%d, s%d" % (sCc, sA, sB))
        a("v_add_u32 v134, s%d, v%d" % (sCc, vWN))
        a("s_xor_b32 s%d, s%d, 0x8000" % (sB, sB))
        a("s_add_u32 s%d, s%d, s%d" % (sCc, sA, sB))
        a("v_add_u32 v135, s%d, v%d" % (sCc, vWN))
        a("s_xor_b32 s%d, s%d, s%d" % (sB, sKH, sTH))
        a("s_lshl_b32 s%d, s%d, 15" % (sB, sB))
        a("s_add_u32 s%d, s%d, s%d" % (sCc, sA, sB))
        a("v_add_u32 v136, s%d, v%d" % (sCc, vWN))
        for i in range(4):
            a("v_mov_b32 v%d, s%d" % (ONE4 + i, sONES))
        for i in range(4):
            a("v_mov_b32 v%d, 0" % (SUM + i))
        self.p0_load_items()

        def areads(ks):
            b = ks & 1
            for base, addr in ((AK, 134), (AS, 135), (AC, 136)):
                for hf in range(2):
                    a.lds("ds_read_b64_tr_b16 %s, v%d offset:%d"
                          % (vr(base + 4 * b + 2 * hf, 2), addr, ks * 1024 + hf * 256), "f%d" % ks)

        for st in range(4):
            a.wait_vm("s1_%d" % st)
            self.barrier()
            for q4 in range(4):
                a.lds("ds_read_b128 %s, v%d offset:%d" % (vr(BF + 4 * q4, 4), 128 + q4, LQ + st * 4096), "b")
            areads(4 * st)
            a.wait_lg("b")
            for j in range(16):
                a("v_dot2c_f32_bf16 v%d, s%d, v%d" % (SUM + (j & 1), sONES, BF + j))
                a("v_dot2c_f32_bf16 v%d, v%d, v%d" % (SUM + 2 + (j & 1), BF + j, BF + j))
            for q4 in range(4):
                ks = 4 * st + q4
                if q4 < 3:
                    areads(ks + 1)
                a.wait_lg("f%d" % ks)
                b = ks & 1
                B = vr(BF + 4 * q4, 4)
                first = ks == 0
                a("%s %s, %s, %s, %s" % (MF32, vr(ACK, 16), vr(AK + 4 * b, 4), B, "0" if first else vr(ACK, 16)))
                self.fill(1)
                a("%s %s, %s, %s, %s" % (MF32, vr(ACS, 16), vr(AS + 4 * b, 4), B, "0" if first else vr(ACS, 16)))
                self.fill(1)
                a("%s %s, %s, %s, %s" % (MF32, vr(ACC_CS, 16), vr(AC + 4 * b, 4), vr(ONE4, 4),
                                         "0" if first else vr(ACC_CS, 16)))
        self.fill_all()

    def q_tile_read(self):
        a = self.a
        a("s_lshr_b32 s%d, s%d, 2" % (sA, sC))
        a("s_lshl_b32 s%d, s%d, 1" % (sB, sTH))
        a("s_add_u32 s%d, s%d, s%d" % (sA, sA, sB))
        a("s_lshl_b32 s%d, s%d, 14" % (sA, sA))
        a("s_and_b32 s%d, s%d, 3" % (sB, sC))
        a("s_lshl_b32 s%d, s%d, 12" % (sB, sB))
        a("s_add_u32 s%d, s%d, s%d" % (sA, sA, sB))
        a("s_lshl_b32 s%d, s%d, 2" % (sB, sKH))
        a("v_bfe_u32 v26, v%d, 1, 3" % vN31)
        a("v_xor_b32 v26, s%d, v26" % sB)
        a("v_lshlrev_b32 v27, 7, v%d" % vN31)
        a("v_lshl_add_u32 v27, v%d, 3, v27" % vHH)
        a("v_add_u32 v27, s%d, v27" % sA)
        for j in range(4):
            a("v_xor_b32 v28, %d, v26" % j)
            a("v_lshl_add_u32 v28, v28, 4, v27")
            a.lds("ds_read_b64 %s, v28 offset:%d" % (vr(vQ + 2 * j, 2), LQ), "qt")

    def gelu(self, X, n, vA13, vIA, T, out, fills=0):
        a = self.a
        for g0 in range(0, n // 2, 4):
            ps = list(range(g0, min(g0 + 4, n // 2)))
            t = lambda p: T + 4 * (p - g0)
            x = lambda p: vr(X + 2 * p, 2)
            left = fills

            def hook():
                nonlocal left
                if left > 0:
                    self.fill(1)
                    left -= 1
            for p in ps:
                a("v_pk_mul_f32 %s, %s, %s" % (vr(t(p), 2), x(p), x(p)))
            for p in ps:
                a("v_pk_fma_f32 %s, %s, %s, %s op_sel:[0,1,0] op_sel_hi:[1,1,0]"
                  % (vr(t(p), 2), vr(t(p), 2), vr(vA13, 2), vr(vA13, 2)))
            hook()
            for p in ps:
                a("v_pk_mul_f32 %s, %s, %s" % (vr(t(p), 2), vr(t(p), 2), x(p)))
            for p in ps:
                a("v_exp_f32 v%d, v%d" % (t(p) + 2, t(p)))
                a("v_exp_f32 v%d, v%d" % (t(p) + 3, t(p) + 1))
            hook()
            for p in ps:
                a("v_pk_fma_f32 %s, %s, %s, %s op_sel_hi:[1,0,0]"
                  % (vr(t(p), 2), vr(t(p) + 2, 2), vr(vIA, 2), vr(vIA, 2)))
            hook()
            for p in ps:
                a("v_rcp_f32 v%d, v%d" % (t(p) + 2, t(p)))
                a("v_rcp_f32 v%d, v%d" % (t(p) + 3, t(p) + 1))
            hook()
            for p in ps:
                a("v_pk_mul_f32 %s, %s, %s" % (vr(t(p), 2), vr(t(p) + 2, 2), x(p)))
            for p in ps:
                a("v_cvt_pk_bf16_f32 v%d, v%d, v%d" % (out + p, t(p), t(p) + 1))

    def gelu_consts(self, vA, dst):
        a = self.a
        a("v_mul_f32 v%d, s%d, v%d" % (dst, sKG1, vA))
        a("v_mul_f32 v%d, v%d, v%d" % (dst + 1, vA, vA))
        a("v_mul_f32 v%d, v%d, v%d" % (dst + 1, dst + 1, vA))
        a("v_mul_f32 v%d, s%d, v%d" % (dst + 1, sKG3, dst + 1))
        a("v_rcp_f32 v%d, v%d" % (dst + 2, vA))

    def exchange_write(self, send):
        a = self.a
        a("s_lshl_b32 s%d, s%d, 12" % (sA, sW))
        a("s_add_u32 s%d, s%d, %d" % (sA, sA, LRED))
        a("v_add_u32 v26, s%d, v%d" % (sA, vL16))
        for j in range(4):
            a.lds("ds_write_b128 v26, %s offset:%d" % (vr(send + 4 * j, 4), 1024 * j))

    def exchange_read(self, dst):
        a = self.a
        a("s_xor_b32 s%d, s%d, 1" % (sA, sW))
        a("s_lshl_b32 s%d, s%d, 12" % (sA, sA))
        a("s_add_u32 s%d, s%d, %d" % (sA, sA, LRED))
        a("v_add_u32 v26, s%d, v%d" % (sA, vL16))
        for j in range(4):
            a.lds("ds_read_b128 %s, v26 offset:%d" % (vr(dst + 4 * j, 4), 1024 * j), "xr")

    def s1_epilogue(self):
        a = self.a
        ACK, ACS, ACC_CS, SUM = self.ACK, self.ACS, self.ACC_CS, self.SUM
        self.q_tile_read()
        a("v_add_f32 v%d, v%d, v%d" % (SUM, SUM, SUM + 1))
        a("v_add_f32 v%d, v%d, v%d" % (SUM + 2, SUM + 2, SUM + 3))
        a("v_permlane32_swap_b32 v%d, v%d" % (SUM, SUM + 2))
        a("v_add_f32 v%d, v%d, v%d" % (SUM, SUM, SUM + 2))
        a("s_lshl_b32 s%d, s%d, 8" % (sA, sW))
        a("s_add_u32 s%d, s%d, %d" % (sA, sA, LSTX))
        a("v_lshl_add_u32 v27, v%d, 2, s%d" % (vL, sA))
        a.lds("ds_write_b32 v27, v%d" % SUM)
        self.exchange_write(ACS)
        a("s_xor_b32 s%d, s%d, s%d" % (sA, sKH, sTH))
        a("s_lshl_b32 s%d, s%d, 8" % (sA, sA))
        a("s_lshl_b32 s%d, s%d, 7" % (sB, sKH))
        a("s_add_u32 s%d, s%d, s%d" % (sA, sA, sB))
        a("s_add_u32 s%d, s%d, %d" % (sA, sA, LCSX))
        a("v_lshl_add_u32 v28, v%d, 4, s%d" % (vHH, sA))
        a("s_mov_b32 exec_lo, 1")
        a("s_mov_b32 exec_hi, 1")
        for j in range(4):
            a.lds("ds_write_b128 v28, %s offset:%d" % (vr(ACC_CS + 4 * j, 4), 32 * j))
        a("s_mov_b64 exec, -1")
        a.wait_lg_all()
        self.barrier()
        P, C0, C1 = 80, 96, 128
        self.exchange_read(P)
        a("s_xor_b32 s%d, s%d, 1" % (sA, sW))
        a("s_lshl_b32 s%d, s%d, 8" % (sA, sA))
        a("s_add_u32 s%d, s%d, %d" % (sA, sA, LSTX))
        a("v_lshl_add_u32 v27, v%d, 2, s%d" % (vL, sA))
        a.lds("ds_read_b32 v%d, v27" % (SUM + 1), "sx")
        a("s_lshl_b32 s%d, s%d, 8" % (sA, sKH))
        a("s_add_u32 s%d, s%d, %d" % (sA, sA, LCSX))
        a("v_lshl_add_u32 v28, v%d, 4, s%d" % (vHH, sA))
        for j in range(4):
            a.lds("ds_read_b128 %s, v28 offset:%d" % (vr(C0 + 4 * j, 4), 32 * j))
            a.lds("ds_read_b128 %s, v28 offset:%d" % (vr(C1 + 4 * j, 4), 128 + 32 * j))
        for grp in range(16):
            self.fq.append(self.dma_item(S_W2, vW64, sW2L, grp * 1024, sW2G, grp * 16384, "w2"))
        self.fill(2)
        a.wait_lg("sx")
        a("v_add_f32 v%d, v%d, v%d" % (SUM, SUM, SUM + 1))
        a("v_mov_b32 v%d, v%d" % (SUM + 2, SUM))
        a("v_permlane32_swap_b32 v%d, v%d" % (SUM, SUM + 2))
        a("v_mul_f32 v%d, s%d, v%d" % (vMEAN, s512I, SUM))
        a("v_mul_f32 v26, s%d, v%d" % (s512I, SUM + 2))
        a("v_fma_f32 v26, -v%d, v%d, v26" % (vMEAN, vMEAN))
        a("v_max_f32 v26, 0, v26")
        a("v_add_f32 v27, s%d, v26" % sEPS)
        a("v_rsq_f32 v%d, v27" % vR1)
        a("v_mul_f32 v27, v%d, v%d" % (vR1, vR1))
        a("v_fma_f32 v27, v27, v26, s%d" % sEPS)
        a("v_rsq_f32 v27, v27")
        a("v_mul_f32 v27, v27, v%d" % vR1)
        G = 112
        self.gelu_consts(27, G)
        a("v_sub_f32 v%d, 0, v%d" % (G + 4, vMEAN))
        a.wait_lg_all()
        for p in range(8):
            a("v_pk_add_f32 %s, %s, %s" % (vr(C0 + 2 * p, 2), vr(C0 + 2 * p, 2), vr(C1 + 2 * p, 2)))
            a("v_pk_add_f32 %s, %s, %s" % (vr(ACK + 2 * p, 2), vr(ACK + 2 * p, 2), vr(P + 2 * p, 2)))
        for p in range(8):
            a("v_pk_fma_f32 %s, %s, %s, %s op_sel_hi:[1,0,1]"
              % (vr(ACK + 2 * p, 2), vr(C0 + 2 * p, 2), vr(G + 4, 2), vr(ACK + 2 * p, 2)))
        self.gelu(ACK, 16, G, G + 2, 144, 48, fills=3)
        self.frag_store(48, WS_HS, "hst")

    def frag_store(self, src, base, tag):
        a = self.a
        a("s_lshl_b32 s%d, s%d, 15" % (sA, sT))
        a("s_lshl_b32 s%d, s%d, 12" % (sB, sC))
        a("s_add_u32 s%d, s%d, s%d" % (sA, sA, sB))
        a("s_lshl_b32 s%d, s%d, 11" % (sB, sKH))
        a("s_add_u32 s%d, s%d, s%d" % (sA, sA, sB))
        a("s_add_u32 s%d, s%d, 0x%x" % (sA, sA, base))
        a.vmem("buffer_store_dwordx4 %s, v%d, %s, s%d offen sc1" % (vr(src, 4), vL16, sr(S_WS, 4), sA), tag)
        a.vmem("buffer_store_dwordx4 %s, v%d, %s, s%d offen offset:1024 sc1"
               % (vr(src + 4, 4), vL16, sr(S_WS, 4), sA), tag)

    PK = 118

    def p0_compute(self):
        a = self.a
        K, V, SH, KV, PK = 56, 78, 94, 102, self.PK
        a.wait_vm("p0", "nonce")
        a("v_readfirstlane_b32 s%d, v30" % sN)
        a("s_mul_i32 s%d, s%d, 0x9e3779b1" % (sN, sN))
        a("s_add_u32 s%d, s%d, 0x7f4a7c15" % (sN, sN))
        d = self.SHRAW
        for j, (x, y, hi) in enumerate([(d, d + 2, 0), (d, d + 2, 1), (d + 1, d + 3, 0), (d + 1, d + 3, 1)]):
            for o, src in ((0, x), (1, y)):
                if hi:
                    a("v_and_b32 v%d, s%d, v%d" % (SH + 2 * j + o, sHI, src))
                else:
                    a("v_lshlrev_b32 v%d, 16, v%d" % (SH + 2 * j + o, src))
        for i in range(11):
            a("v_lshlrev_b32 v%d, 16, v%d" % (K + 2 * i, self.KRAW + i))
            a("v_and_b32 v%d, s%d, v%d" % (K + 2 * i + 1, sHI, self.KRAW + i))
            if i % 4 == 3:
                self.fill(1)
        for i in range(8):
            a("v_lshlrev_b32 v%d, 16, v%d" % (V + 2 * i, self.VRAW + i))
            a("v_and_b32 v%d, s%d, v%d" % (V + 2 * i + 1, sHI, self.VRAW + i))
        self.fill(1)
        for t in range(8):
            a("v_pk_mul_f32 %s, %s, %s" % (vr(KV + 2 * t, 2), vr(K + 2 * (t + 3), 2), vr(SH, 2)))
        self.fill(1)
        for j in range(1, 4):
            for t in range(8):
                a("v_pk_fma_f32 %s, %s, %s, %s" % (vr(KV + 2 * t, 2), vr(K + 2 * (t + 3 - j), 2), vr(SH + 2 * j, 2),
                                                   vr(KV + 2 * t, 2)))
            self.fill(1)
        for t in range(8):
            a("v_pk_mul_f32 %s, %s, %s" % (vr(KV + 2 * t, 2), vr(KV + 2 * t, 2), vr(V + 2 * t, 2)))
        self.fill(1)
        for c in range(2):
            for t in range(4):
                a("v_cvt_pk_bf16_f32 v%d, v%d, v%d" % (PK + 4 * c + t, KV + 4 * t + c, KV + 4 * t + 2 + c))
        a("s_lshl_b32 s%d, s%d, 1" % (sA, sW))
        a("v_add_u32 v26, s%d, v%d" % (sA, vHH))
        a("v_and_b32 v27, 7, v%d" % vN31)
        a("v_xor_b32 v26, v26, v27")
        a("v_lshlrev_b32 v26, 4, v26")
        a("v_lshl_add_u32 v26, v%d, 8, v26" % vN31)
        a("v_add_u32 v26, %d, v26" % LSTG)
        a.lds("ds_write_b128 v26, %s" % vr(PK, 4))
        a.lds("ds_write_b128 v26, %s offset:128" % vr(PK + 4, 4))
        self.fill_all()

    def p0_readback(self):
        a = self.a
        PK = self.PK
        a("v_lshrrev_b32 v26, 3, v%d" % vL)
        a("s_lshl_b32 s%d, s%d, 4" % (sA, sW))
        a("v_add_u32 v26, s%d, v26" % sA)
        a("v_and_b32 v27, 7, v%d" % vL)
        for i in range(2):
            a("v_add_u32 v28, %d, v26" % (8 * i))
            a("v_bfe_u32 v29, v28, 1, 3")
            a("v_xor_b32 v29, v29, v27")
            a("v_lshlrev_b32 v29, 4, v29")
            a("v_lshl_add_u32 v29, v28, 7, v29")
            a("v_add_u32 v29, %d, v29" % LSTG)
            a.lds("ds_read_b128 %s, v29" % vr(PK + 4 * i, 4), "pk")
        a("v_lshlrev_b32 v27, 4, v27")
        a("v_lshl_add_u32 v126, v26, 12, v27")

    def p0_store(self):
        a = self.a
        PK = self.PK
        a("s_lshl_b32 s%d, s%d, 18" % (sA, sC))
        a("s_lshl_b32 s%d, s%d, 7" % (sB, sR))
        a("s_add_u32 s%d, s%d, s%d" % (sA, sA, sB))
        a("s_add_u32 s%d, s%d, 0x%x" % (sA, sA, WS_KVT))
        a("s_add_u32 s%d, s%d, 0x8000" % (sB, sA))
        a.wait_lg("pk")
        a.vmem("buffer_store_dwordx4 %s, v126, %s, s%d offen sc1" % (vr(PK, 4), sr(S_WS, 4), sA), "kvt")
        a.vmem("buffer_store_dwordx4 %s, v126, %s, s%d offen sc1" % (vr(PK + 4, 4), sr(S_WS, 4), sB), "kvt")

    def conv_filter_loads(self):
        a = self.a
        a("s_lshl_b32 s%d, s2, 2" % sA)
        a("s_load_dword s%d, %s, s%d" % (sD0, sr(S_DPTR, 2), sA))
        a("v_lshlrev_b32 v26, 4, v%d" % vTID)
        a("v_subrev_u32 v27, 8, v26")
        a("v_mov_b32 v28, 0x%x" % OOB)
        a("v_cmp_eq_u32 vcc, 0, v%d" % vTID)
        a("v_cndmask_b32 v27, v27, v28, vcc")
        for ch in range(2):
            r = vCH + 10 * ch
            a("s_lshl_b32 s%d, s2, 13" % sA)
            if ch:
                a("s_add_u32 s%d, s%d, 0x1000" % (sA, sA))
            a.vmem("buffer_load_dwordx4 %s, v26, %s, s%d offen" % (vr(r, 4), sr(S_SSM, 4), sA), "cf")
            a.vmem("buffer_load_dwordx2 %s, v27, %s, s%d offen" % (vr(r + 4, 2), sr(S_SSM, 4), sA), "cf")
        a("s_waitcnt lgkmcnt(0)")
        a.lg = []
        a("s_and_b32 s%d, s%d, s%d" % (sD1, sD0, sHI))
        a("s_lshl_b32 s%d, s%d, 16" % (sD0, sD0))

    def conv_x_loads(self):
        a = self.a
        a("v_lshlrev_b32 v26, 4, v%d" % vTID)
        for ch in range(2):
            a("s_lshl_b32 s%d, s2, 13" % sA)
            a("s_add_u32 s%d, s%d, 0x%x" % (sA, sA, WS_KVT + 0x1000 * ch))
            a.vmem("buffer_load_dwordx4 %s, v26, %s, s%d offen sc1" % (vr(vCH + 10 * ch + 6, 4), sr(S_WS, 4), sA), "cx")

    def conv_prep_filter(self, ch):
        a = self.a
        base = CV_BASE
        r = vCH + 10 * ch
        A, P = r, r + 4
        a.wait_vm("cf")
        a("v_min_u32 v26, 79, v%d" % vTID)
        a("v_subrev_u32 v27, 72, v26")
        a("v_lshrrev_b32 v28, 1, v27")
        a("v_mul_u32_u24 v28, 4128, v28")
        a("v_and_b32 v27, 1, v27")
        a("v_lshl_add_u32 v28, v27, 4, v28")
        a("v_add_u32 v28, %d, v28" % (base + CV_A))
        a("v_lshlrev_b32 v27, 4, v26")
        a("v_add_u32 v27, %d, v27" % (base + CV_X))
        a("v_cmp_gt_u32 vcc, 72, v26")
        a("v_cndmask_b32 v28, v28, v27, vcc")
        for i in range(4):
            a("v_mov_b32 v%d, 0" % (32 + i))
        a.lds("ds_write_b128 v28, %s" % vr(32, 4))
        Z, Y, W = 36, 40, 44
        seq = [P, P + 1, A, A + 1, A + 2, A + 3]
        for j in range(4):
            a("v_alignbit_b32 v%d, v%d, v%d, 16" % (Z + j, seq[j + 1], seq[j]))
            a("v_alignbit_b32 v%d, v%d, v%d, 16" % (Y + j, seq[j + 2], seq[j + 1]))
            a("v_mov_b32 v%d, v%d" % (W + j, seq[j + 1]))
        a("v_lshlrev_b32 v29, 4, v%d" % vTID)
        a("v_add_u32 v29, %d, v29" % base)
        for rho, src in ((0, A), (1, Y), (2, W), (3, Z)):
            a.lds("ds_write_b128 v29, %s offset:%d" % (vr(src, 4), CV_A + 32 + 4128 * rho))

    def conv_prep_x(self, ch):
        a = self.a
        base = CV_BASE
        a.wait_vm("cx")
        a("v_lshlrev_b32 v29, 4, v%d" % vTID)
        a("v_add_u32 v29, %d, v29" % base)
        a.lds("ds_write_b128 v29, %s offset:%d" % (vr(vCH + 10 * ch + 6, 4), CV_XD))
        a.wait_lg_all()
        self.barrier()
        a("s_lshl_b32 s%d, s%d, 5" % (sA, sW))
        a("s_sub_u32 s%d, %d, s%d" % (sA, base + CV_XD - 1024, sA))
        a("v_lshl_add_u32 v26, v%d, 3, s%d" % (vL, sA))
        for u in range(10):
            a.lds("ds_read_b64_tr_b16 %s, v26 offset:%d" % (vr(32 + 2 * u, 2), 512 * u), "u%d" % u)
        a("s_mul_i32 s%d, s%d, 5312" % (sA, sW))
        a("s_add_u32 s%d, s%d, %d" % (sA, sA, base + CV_P))
        a("v_and_b32 v27, 15, v%d" % vL)
        a("v_mul_u32_u24 v27, 328, v27")
        a("v_lshrrev_b32 v28, 4, v%d" % vL)
        a("v_lshl_add_u32 v27, v28, 3, v27")
        a("v_add_u32 v27, s%d, v27" % sA)
        self.fill(2)
        for u in range(10):
            a.wait_lg("u%d" % u)
            a.lds("ds_write_b64 v27, %s offset:%d" % (vr(32 + 2 * u, 2), 32 * u))
        a("s_lshl_b32 s%d, s%d, 3" % (sA, sW))
        a("s_sub_u32 s%d, %d, s%d" % (sA, base + CV_A + 32, sA))
        a("v_lshl_add_u32 v160, v%d, 3, s%d" % (vL, sA))
        a("s_mul_i32 s%d, s%d, 1312" % (sA, sW))
        a("s_add_u32 s%d, s%d, %d" % (sA, sA, base + CV_P + 32))
        a("v_bfe_u32 v26, v%d, 2, 2" % vL)
        a("v_mul_u32_u24 v26, 5312, v26")
        a("v_and_b32 v27, 3, v%d" % vL)
        a("v_lshrrev_b32 v28, 4, v%d" % vL)
        a("v_sub_u32 v27, v27, v28")
        a("v_lshl_add_u32 v26, v27, 3, v26")
        a("v_add_u32 v161, s%d, v26" % sA)
        self.fill(2)
        a.wait_lg_all()
        self.barrier()

    CACC, CAF, CBF = 32, 64, 96

    def conv_main(self, hook=None, fill_every=0):
        a = self.a
        CACC, CAF, CBF = self.CACC, self.CAF, self.CBF

        def rd_list(rho):
            b = rho & 1
            out = []
            order = [("A", 0)] + [("B", c) for c in range(8)] + [("A", 1), ("A", 2), ("A", 3)]
            for kind, i in order:
                for hf in range(2):
                    if kind == "A":
                        out.append("ds_read_b64_tr_b16 %s, v160 offset:%d"
                                   % (vr(CAF + 16 * b + 4 * i + 2 * hf, 2), 4128 * rho + 1024 * i + 512 * hf))
                    else:
                        out.append("ds_read_b64_tr_b16 %s, v161 offset:%d"
                                   % (vr(CBF + 32 * b + 4 * i + 2 * hf, 2), 328 * rho + 32 * i + 32 * (1 - hf)))
            return out

        for x in rd_list(0):
            a.lds(x)
        a.wait_lg_all()
        cnt = 0
        for rho in range(4):
            if hook:
                hook(rho)
            b = rho & 1
            nxt = rd_list(rho + 1) if rho < 3 else []
            k = 0
            for q in range(4):
                for c in range(8 - 2 * q):
                    t = c + 2 * q
                    acc = vr(CACC + 4 * t, 4)
                    a("%s %s, %s, %s, %s" % (MF16, acc, vr(CAF + 16 * b + 4 * q, 4), vr(CBF + 32 * b + 4 * c, 4),
                                             "0" if (rho == 0 and q == 0) else acc))
                    for _ in range(2 if k < 8 else 1):
                        if nxt:
                            a.lds(nxt.pop(0))
                    k += 1
                    cnt += 1
                    if fill_every and cnt % fill_every == 0:
                        self.fill(1)
            assert not nxt
            a.wait_lg_all()

    def conv_finish(self, ch):
        a = self.a
        base = CV_BASE
        CACC = self.CACC
        self.barrier()
        a("s_lshl_b32 s%d, s%d, 11" % (sA, sW))
        a("s_add_u32 s%d, s%d, %d" % (sA, sA, base + CV_R))
        a("v_add_u32 v26, s%d, v%d" % (sA, vL16))
        for t in range(8):
            a.lds("ds_write_b128 v26, %s offset:%d" % (vr(CACC + 4 * t, 4), (t >> 1) * 8192 + (t & 1) * 1024))
        a("s_lshl_b32 s%d, s%d, 10" % (sA, sW))
        a("s_add_u32 s%d, s%d, %d" % (sA, sA, base + CV_XD))
        a("v_and_b32 v27, 15, v%d" % vL)
        a("v_lshlrev_b32 v27, 5, v27")
        a("v_lshrrev_b32 v28, 4, v%d" % vL)
        a("v_lshl_add_u32 v27, v28, 3, v27")
        a("v_add_u32 v27, s%d, v27" % sA)
        for u in range(2):
            a.lds("ds_read_b64 %s, v27 offset:%d" % (vr(100 + 2 * u, 2), 512 * u))
        a.wait_lg_all()
        self.barrier()
        a("s_lshl_b32 s%d, s%d, 13" % (sA, sW))
        a("s_add_u32 s%d, s%d, %d" % (sA, sA, base + CV_R))
        a("v_add_u32 v26, s%d, v%d" % (sA, vL16))
        for sl in range(4):
            for u in range(2):
                a.lds("ds_read_b128 %s, v26 offset:%d" % (vr(64 + 8 * sl + 4 * u, 4), sl * 2048 + u * 1024))
        for u in range(2):
            for j in range(2):
                a("v_lshlrev_b32 v%d, 16, v%d" % (104 + 4 * u + 2 * j, 100 + 2 * u + j))
                a("v_and_b32 v%d, s%d, v%d" % (105 + 4 * u + 2 * j, sHI, 100 + 2 * u + j))
        a("v_mov_b32 v112, s%d" % (sD1 if ch else sD0))
        a("v_lshrrev_b32 v26, 4, v%d" % vL)
        a("v_and_b32 v27, 1, v26")
        a("v_lshlrev_b32 v27, 9, v27")
        a("v_lshrrev_b32 v26, 1, v26")
        a("v_lshl_add_u32 v27, v26, 4, v27")
        a("v_and_b32 v26, 15, v%d" % vL)
        a("v_lshl_add_u32 v27, v26, 5, v27")
        a("s_lshl_b32 s%d, s%d, 10" % (sA, sW))
        a("v_add_u32 v27, s%d, v27" % sA)
        a("s_lshl_b32 s%d, s2, 13" % sA)
        a("s_add_u32 s%d, s%d, 0x%x" % (sA, sA, WS_YT + 0x1000 * ch))
        a.wait_lg_all()
        for p in range(4):
            a("v_pk_add_f32 %s, %s, %s" % (vr(64 + 2 * p, 2), vr(64 + 2 * p, 2), vr(72 + 2 * p, 2)))
            a("v_pk_add_f32 %s, %s, %s" % (vr(80 + 2 * p, 2), vr(80 + 2 * p, 2), vr(88 + 2 * p, 2)))
        for p in range(4):
            a("v_pk_add_f32 %s, %s, %s" % (vr(64 + 2 * p, 2), vr(64 + 2 * p, 2), vr(80 + 2 * p, 2)))
        for p in range(4):
            a("v_pk_fma_f32 %s, %s, %s, %s op_sel_hi:[1,0,1]" % (vr(64 + 2 * p, 2), vr(104 + 2 * p, 2), vr(112, 2),
                                                                vr(64 + 2 * p, 2)))
        for p in range(4):
            a("v_cvt_pk_bf16_f32 v%d, v%d, v%d" % (116 + p, 64 + 2 * p, 65 + 2 * p))
        a("v_permlane16_swap_b32 v116, v118")
        a("v_permlane16_swap_b32 v117, v119")
        a.vmem("buffer_store_dwordx4 %s, v27, %s, s%d offen sc1" % (vr(116, 4), sr(S_WS, 4), sA), "yt")

    def s2_load_items(self):
        a = self.a
        a("s_lshl_b32 s%d, s%d, 5" % (sA, sT))
        a("v_add_u32 v26, s%d, v%d" % (sA, vN31))
        a("s_add_u32 s%d, s%d, 1" % (sB, sKH))
        a("s_lshl_b32 s%d, s%d, 14" % (sA, sKH))
        a("s_add_u32 s%d, s%d, 0x%x" % (sA, sA, WS_HS))
        a("v_mov_b32 v29, 0x%x" % OOB)
        for i, op in enumerate(("v_subrev_u32", "v_add_u32")):
            a("%s v27, s%d, v26" % (op, sB))
            a("v_lshrrev_b32 v28, 5, v27")
            a("v_lshlrev_b32 v28, 15, v28")
            a("v_and_b32 v30, 31, v27")
            a("v_lshl_add_u32 v30, v%d, 5, v30" % vHH)
            a("v_lshl_add_u32 v28, v30, 4, v28")
            a("v_add_u32 v28, s%d, v28" % sA)
            a("v_cmp_gt_u32 vcc, 0x800, v27")
            a("v_cndmask_b32 v%d, v29, v28, vcc" % (140 + i))
        so = ["0", "s%d" % sK4, "s%d" % sK8, "s%d" % sK12]
        items = []
        for ks in range(16):
            def f(ks=ks):
                a.vmem("buffer_load_dwordx4 %s, v%d, %s, %s offen offset:%d sc1"
                       % (ar(4 * ks, 4), 140 + (ks >> 3), sr(S_WS, 4), so[ks >> 2], (ks & 3) * 1024), "h%d" % ks)
            items.append(f)
        return items

    def wpi_addr(self, vk, vs, base, khs, ps):
        a = self.a
        a("s_mul_i32 s%d, s%d, %d" % (sA, sKH, khs + ps))
        a("s_add_u32 s%d, s%d, %d" % (sA, sA, base))
        a("v_add_u32 v%d, s%d, v%d" % (vk, sA, vWP))
        a("s_mul_i32 s%d, s%d, %d" % (sA, sKH, khs - ps))
        a("s_add_u32 s%d, s%d, %d" % (sA, sA, base + ps))
        a("v_add_u32 v%d, s%d, v%d" % (vs, sA, vWP))

    def s2_main(self):
        a = self.a
        ACK, ACS, AK, AS = self.ACK, self.ACS, self.AK, self.AS

        def reads(ks):
            b = ks & 1
            for base, addr in ((AK, 128), (AS, 129)):
                for hf in range(2):
                    a.lds("ds_read_b64_tr_b16 %s, v%d offset:%d" % (vr(base + 4 * b + 2 * hf, 2), addr,
                                                                    ks * 1024 + hf * 512), "f%d" % ks)
        reads(0)
        for ks in range(16):
            if ks < 15:
                reads(ks + 1)
            a.wait_vm("h%d" % ks)
            a.wait_lg("f%d" % ks)
            b = ks & 1
            a("%s %s, %s, %s, %s" % (MF32, vr(ACK, 16), vr(AK + 4 * b, 4), ar(4 * ks, 4), "0" if ks == 0 else vr(ACK, 16)))
            self.fill(1)
            a("%s %s, %s, %s, %s" % (MF32, vr(ACS, 16), vr(AS + 4 * b, 4), ar(4 * ks, 4), "0" if ks == 0 else vr(ACS, 16)))
            if ks == 8:
                self.barrier()
                self.flag_store_rc(F_P0)
            if ks == 12:
                self.idx_p0()
                self.poll_issue(F_P0, "pp0")

    def unpack8(self, src, dst):
        a = self.a
        for j in range(8):
            a("v_lshlrev_b32 v%d, 16, v%d" % (dst + 2 * j, src + j))
            a("v_and_b32 v%d, s%d, v%d" % (dst + 2 * j + 1, sHI, src + j))

    def xn_tile(self, dst):
        a = self.a
        self.unpack8(vQ, dst)
        for p in range(8):
            a("v_pk_add_f32 %s, %s, %s op_sel_hi:[1,0] neg_lo:[0,1] neg_hi:[0,1]"
              % (vr(dst + 2 * p, 2), vr(dst + 2 * p, 2), vr(vMEAN, 2)))
        for p in range(8):
            a("v_pk_mul_f32 %s, %s, %s op_sel:[0,1] op_sel_hi:[1,1]"
              % (vr(dst + 2 * p, 2), vr(dst + 2 * p, 2), vr(vMEAN, 2)))

    def s2_epilogue(self):
        a = self.a
        ACK, ACS = self.ACK, self.ACS
        self.exchange_write(ACS)
        self.xn_tile(96)
        a.wait_lg_all()
        self.barrier()
        self.exchange_read(80)
        for p in range(8):
            a("v_pk_add_f32 %s, %s, %s" % (vr(ACK + 2 * p, 2), vr(ACK + 2 * p, 2), vr(96 + 2 * p, 2)))
        a.wait_lg_all()
        for p in range(8):
            a("v_pk_add_f32 %s, %s, %s" % (vr(ACK + 2 * p, 2), vr(ACK + 2 * p, 2), vr(80 + 2 * p, 2)))
        for p in range(8):
            a("v_cvt_pk_bf16_f32 v%d, v%d, v%d" % (vX1 + p, ACK + 2 * p, ACK + 2 * p + 1))
        self.frag_store(vX1, WS_X1, "x1st")
        a("v_pk_mul_f32 %s, %s, %s" % (vr(112, 2), vr(ACK, 2), vr(ACK, 2)))
        a("v_pk_add_f32 %s, %s, %s" % (vr(114, 2), vr(ACK, 2), vr(ACK + 2, 2)))
        for p in range(1, 8):
            a("v_pk_fma_f32 %s, %s, %s, %s" % (vr(112, 2), vr(ACK + 2 * p, 2), vr(ACK + 2 * p, 2), vr(112, 2)))
            if p >= 2:
                a("v_pk_add_f32 %s, %s, %s" % (vr(114, 2), vr(114, 2), vr(ACK + 2 * p, 2)))
        a("v_add_f32 v114, v114, v115")
        a("v_add_f32 v112, v112, v113")
        a("v_permlane32_swap_b32 v114, v112")
        a("v_add_f32 v114, v114, v112")
        a("s_lshl_b32 s%d, s%d, 1" % (sA, sC))
        a("s_add_u32 s%d, s%d, s%d" % (sA, sA, sKH))
        a("s_lshl_b32 s%d, s%d, 14" % (sA, sA))
        a("s_lshl_b32 s%d, s%d, 7" % (sB, sT))
        a("s_add_u32 s%d, s%d, s%d" % (sA, sA, sB))
        a("s_add_u32 s%d, s%d, 0x%x" % (sA, sA, WS_ST))
        a("v_lshlrev_b32 v26, 13, v%d" % vHH)
        a("v_lshl_add_u32 v26, v%d, 2, v26" % vN31)
        a.vmem("buffer_store_dword v114, v26, %s, s%d offen sc1" % (sr(S_WS, 4), sA), "x1st")

    def w3_setup(self):
        a = self.a
        a("s_movk_i32 s%d, 3584" % sB)
        a("v_lshrrev_b32 v26, 2, v%d" % vL)
        a("v_mul_lo_u32 v26, v26, s%d" % sB)
        a("v_and_b32 v27, 3, v%d" % vL)
        a("v_lshl_add_u32 v%d, v27, 4, v26" % vW3F)
        a("v_lshrrev_b32 v26, 1, v%d" % vL)
        a("v_mul_lo_u32 v26, v26, s%d" % sB)
        a("v_and_b32 v27, 1, v%d" % vL)
        a("v_lshl_add_u32 v%d, v27, 4, v26" % vW3H)
        a("s_mul_i32 s%d, s%d, %d" % (sW3HG, sW, 128 * 3584))
        a("s_mul_i32 s%d, s%d, 224" % (sA, sCP))
        a("s_add_u32 s%d, s%d, s%d" % (sW3HG, sW3HG, sA))
        a("s_and_b32 s%d, s%d, 1" % (sB, sCP))
        a("s_lshl_b32 s%d, s%d, 5" % (sW3G, sB))
        a("s_add_u32 s%d, s%d, s%d" % (sW3G, sW3G, sW3HG))
        a("s_xor_b32 s%d, s%d, 1" % (sB, sB))
        a("s_mul_i32 s%d, s%d, 192" % (sB, sB))
        a("s_add_u32 s%d, s%d, s%d" % (sW3HG, sW3HG, sB))
        a("s_lshl_b32 s%d, s%d, 13" % (sW3L, sW))
        a("s_lshl_b32 s%d, s%d, 12" % (sW3HL, sW))

    def w3_items(self, panels):
        out = []
        for p in panels:
            if p < 3:
                for i in range(8):
                    out.append(self.dma_item(S_W3, vW3F, sW3L, W3_P + p * 32768 + i * 1024, sW3G,
                                             p * 64 + i * 16 * 3584, "w3"))
            else:
                for i in range(4):
                    out.append(self.dma_item(S_W3, vW3H, sW3HL, W3_H + i * 1024, sW3HG, i * 32 * 3584, "w3"))
        return out

    def s3_load_items(self):
        a = self.a
        a("s_lshl_b32 s%d, s%d, 15" % (sLD, sT3))
        a("s_add_u32 s%d, s%d, 0x%x" % (sLD, sLD, WS_X1))
        items = []
        for ks in range(32):
            def f(ks=ks):
                if ks and ks % 4 == 0:
                    a("s_add_u32 s%d, s%d, 0x1000" % (sLD, sLD))
                a.vmem("buffer_load_dwordx4 %s, v%d, %s, s%d offen offset:%d sc1"
                       % (ar(4 * ks, 4), vL16, sr(S_WS, 4), sLD, (ks & 3) * 1024), "x%d" % ks)
            items.append(f)
        return items

    def s3_stat_items(self):
        a = self.a
        a("v_lshlrev_b32 v147, 13, v%d" % vHH)
        a("v_lshl_add_u32 v147, v%d, 2, v147" % vN31)
        items = []
        for sl in range(16):
            def f(sl=sl):
                a("s_lshl_b32 s%d, s%d, 7" % (sSO, sT3))
                a("s_add_u32 s%d, s%d, 0x%x" % (sSO, sSO, WS_ST + 0x4000 * sl))
                a.vmem("buffer_load_dword v%d, v147, %s, s%d offen sc1" % (176 + sl, sr(S_WS, 4), sSO), "st")
            items.append(f)
        return items

    def s3_addr(self):
        a = self.a
        a("v_add_u32 v144, %d, v%d" % (W3_P, vWP))
        a("v_add_u32 v145, %d, v%d" % (W3_P + 65536, vWP))
        a("v_bfe_u32 v26, v%d, 2, 2" % vL)
        a("v_lshl_add_u32 v26, v%d, 2, v26" % vHH)
        a("v_and_b32 v27, 3, v%d" % vL)
        a("v_lshlrev_b32 v27, 3, v27")
        a("v_lshl_add_u32 v26, v26, 5, v27")
        a("v_add_u32 v146, %d, v26" % W3_H)

    @staticmethod
    def w3_read(p, ks, hf, dst):
        if p < 2:
            return "ds_read_b64_tr_b16 %s, v144 offset:%d" % (vr(dst, 2), p * 32768 + ks * 1024 + hf * 512)
        if p == 2:
            return "ds_read_b64_tr_b16 %s, v145 offset:%d" % (vr(dst, 2), ks * 1024 + hf * 512)
        return "ds_read_b64_tr_b16 %s, v146 offset:%d" % (vr(dst, 2), ks * 512 + hf * 256)

    def s3_colsum(self):
        a = self.a
        full = a.newlabel("csfull")
        done = a.newlabel("csdone")
        for i in range(4):
            a("v_mov_b32 v%d, s%d" % (116 + i, sONES))
        a("s_cmp_lt_u32 s%d, 3" % sW)
        a("s_cbranch_scc1 %s" % full)
        for is_full in (False, True):
            if is_full:
                a.label(full)
                a("s_lshl_b32 s%d, s%d, 15" % (sA, sW))
                a("v_add_u32 v148, s%d, v144" % sA)
            stride, hstep, addr = (1024, 512, 148) if is_full else (512, 256, 146)
            saved = list(a.lg)
            a.lg = []

            def rd(ks):
                for hf in range(2):
                    a.lds("ds_read_b64_tr_b16 %s, v%d offset:%d" % (vr(96 + 4 * (ks & 3) + 2 * hf, 2), addr,
                                                                    ks * stride + hf * hstep), "c%d" % ks)
            for ks in range(3):
                rd(ks)
            for ks in range(32):
                if ks + 3 < 32:
                    rd(ks + 3)
                a.wait_lg("c%d" % ks)
                a("%s %s, %s, %s, %s" % (MF32, vr(32, 16), vr(96 + 4 * (ks & 3), 4), vr(116, 4),
                                         "0" if ks == 0 else vr(32, 16)))
            a.lg = saved
            if not is_full:
                a("s_branch %s" % done)
        a.label(done)
        a("s_lshl_b32 s%d, s%d, 7" % (sA, sW))
        a("s_add_u32 s%d, s%d, %d" % (sA, sA, LCS3))
        a("v_lshl_add_u32 v28, v%d, 4, s%d" % (vHH, sA))
        a("s_mov_b32 exec_lo, 1")
        a("s_mov_b32 exec_hi, 1")
        for j in range(4):
            a.lds("ds_write_b128 v28, %s offset:%d" % (vr(32 + 4 * j, 4), 32 * j))
        a("s_mov_b64 exec, -1")
        a.wait_lg_all()

    def s3_main(self):
        a = self.a
        AF = 96

        def reads(ks):
            b = ks & 1
            for p in range(4):
                for hf in range(2):
                    a.lds(self.w3_read(p, ks, hf, AF + 16 * b + 4 * p + 2 * hf), "f%d" % ks)
        reads(0)
        for ks in range(32):
            if ks < 31:
                reads(ks + 1)
            a.wait_vm("x%d" % ks)
            a.wait_lg("f%d" % ks)
            b = ks & 1
            for p in range(4):
                acc = vr(32 + 16 * p, 16)
                a("%s %s, %s, %s, %s" % (MF32, acc, vr(AF + 16 * b + 4 * p, 4), ar(4 * ks, 4), "0" if ks == 0 else acc))
                if p in (0, 2):
                    self.fill(1)

    def s3_epilogue(self):
        a = self.a
        G = 128
        a("v_lshlrev_b32 v28, 4, v%d" % vHH)
        a("v_add_u32 v149, %d, v28" % LCS3)

        def csread(p):
            n = 16 if p < 3 else 8
            for j in range(n // 4):
                a.lds("ds_read_b128 %s, v149 offset:%d" % (vr(96 + 16 * (p & 1) + 4 * j, 4), 128 * p + 32 * j), "cs%d" % p)
        csread(0)
        a.wait_vm("st")
        for s in (8, 4, 2, 1):
            for i in range(s):
                a("v_add_f32 v%d, v%d, v%d" % (176 + i, 176 + i, 176 + i + s))
        a("v_mov_b32 v177, v176")
        a("v_permlane32_swap_b32 v176, v177")
        a("v_mul_f32 v178, s%d, v176" % s512I)
        a("v_mul_f32 v26, s%d, v177" % s512I)
        a("v_fma_f32 v26, -v178, v178, v26")
        a("v_max_f32 v26, 0, v26")
        a("v_add_f32 v26, s%d, v26" % sEPS)
        a("v_rsq_f32 v27, v26")
        self.gelu_consts(27, G)
        a("v_sub_f32 v%d, 0, v178" % (G + 4))
        a("s_mul_i32 s%d, s%d, 114688" % (sD, sT3))
        a("s_mul_i32 s%d, s%d, 7168" % (sA, sCP))
        a("s_add_u32 s%d, s%d, s%d" % (sD, sD, sA))
        a("s_add_u32 s%d, s%d, 0x%x" % (sD, sD, WS_HH))
        a("s_and_b32 s%d, s%d, 1" % (sB, sCP))
        a("s_lshl_b32 s%d, s%d, 10" % (sE, sB))
        a("s_add_u32 s%d, s%d, s%d" % (sE, sE, sD))
        a("s_xor_b32 s%d, s%d, 1" % (sB, sB))
        a("s_mul_i32 s%d, s%d, 6144" % (sB, sB))
        a("s_add_u32 s%d, s%d, s%d" % (sF, sD, sB))
        for p in range(4):
            n = 16 if p < 3 else 8
            C = 96 + 16 * (p & 1)
            if p < 3:
                csread(p + 1)
            a.wait_lg("cs%d" % p)
            acc = 32 + 16 * p
            for i in range(n // 2):
                a("v_pk_fma_f32 %s, %s, %s, %s op_sel_hi:[1,0,1]"
                  % (vr(acc + 2 * i, 2), vr(C + 2 * i, 2), vr(G + 4, 2), vr(acc + 2 * i, 2)))
            out = 152 + 8 * (p & 1)
            self.gelu(acc, n, G, G + 2, 136 if False else 180, out, fills=4)
            if p < 3:
                a("s_add_u32 s%d, s%d, %d" % (sA, sE, 2048 * p))
                a.vmem("buffer_store_dwordx4 %s, v%d, %s, s%d offen sc1" % (vr(out, 4), vL16, sr(S_WS, 4), sA), "Hst")
                a.vmem("buffer_store_dwordx4 %s, v%d, %s, s%d offen offset:1024 sc1"
                       % (vr(out + 4, 4), vL16, sr(S_WS, 4), sA), "Hst")
            else:
                a.vmem("buffer_store_dwordx4 %s, v%d, %s, s%d offen sc1" % (vr(out, 4), vL16, sr(S_WS, 4), sF), "Hst")

    def w4_setup(self):
        a = self.a
        a("s_lshl_b32 s%d, s%d, 11" % (sW4L, sKH))
        a("s_lshl_b32 s%d, s%d, 10" % (sA, sTH))
        a("s_add_u32 s%d, s%d, s%d" % (sW4L, sW4L, sA))
        a("s_mul_i32 s%d, s%d, %d" % (sW4G, sKH, 896 * 1024))
        a("s_lshl_b32 s%d, s%d, 7" % (sA, sC))
        a("s_add_u32 s%d, s%d, s%d" % (sW4G, sW4G, sA))
        a("s_lshl_b32 s%d, s%d, 6" % (sA, sTH))
        a("s_add_u32 s%d, s%d, s%d" % (sW4G, sW4G, sA))

    def w4_items(self, ks0, ks1, tag):
        return [self.dma_item(S_W4, vW64, sW4L, (ks % W4_SLOTS) * 4096, sW4G, ks * 16384, tag) for ks in range(ks0, ks1)]

    def s4_load_items(self):
        a = self.a
        a("s_mul_i32 s%d, s%d, 114688" % (sLD, sT))
        a("s_mul_i32 s%d, s%d, %d" % (sB, sKH, 56 * 1024))
        a("s_add_u32 s%d, s%d, s%d" % (sLD, sLD, sB))
        a("s_add_u32 s%d, s%d, 0x%x" % (sLD, sLD, WS_HH))
        items = []
        for ks in range(56):
            def f(ks=ks):
                if ks and ks % 4 == 0:
                    a("s_add_u32 s%d, s%d, 0x1000" % (sLD, sLD))
                a.vmem("buffer_load_dwordx4 %s, v%d, %s, s%d offen offset:%d sc1"
                       % (ar(4 * ks, 4), vL16, sr(S_WS, 4), sLD, (ks & 3) * 1024), "H%d" % ks)
                a.check_vm_depth()
            items.append(f)
        return items

    def s4_y_items(self):
        a = self.a
        a("s_lshl_b32 s%d, s%d, 18" % (sE, sC))
        a("s_lshl_b32 s%d, s%d, 17" % (sB, sKH))
        a("s_add_u32 s%d, s%d, s%d" % (sE, sE, sB))
        a("s_lshl_b32 s%d, s%d, 6" % (sB, sT))
        a("s_add_u32 s%d, s%d, s%d" % (sE, sE, sB))
        a("s_add_u32 s%d, s%d, 0x%x" % (sE, sE, WS_YT))
        a("v_lshlrev_b32 v147, 14, v%d" % vHH)
        a("v_lshl_add_u32 v147, v%d, 1, v147" % vN31)
        items = []
        for r in range(16):
            def f(r=r):
                a("s_add_u32 s%d, s%d, %d" % (sSO, sE, (8 * (r >> 2) + (r & 3)) * 4096))
                a.vmem("buffer_load_ushort v%d, v147, %s, s%d offen sc1" % (176 + r, sr(S_WS, 4), sSO), "y")
                a.check_vm_depth()
            items.append(f)
        return items

    def s4_main(self, hitems):
        a = self.a
        ACK, ACS, AK, AS = self.ACK, self.ACS, self.AK, self.AS
        self.wpi_addr(128, 131, 0, 2048, 1024)
        for i in (1, 2):
            a("v_add_u32 v%d, %d, v128" % (128 + i, 65536 * i))
            a("v_add_u32 v%d, %d, v131" % (131 + i, 65536 * i))

        def reads(ks):
            b = ks & 1
            off = (ks % W4_SLOTS) * 4096
            for base, addr in ((AK, 128), (AS, 131)):
                for hf in range(2):
                    a.lds("ds_read_b64_tr_b16 %s, v%d offset:%d" % (vr(base + 4 * b + 2 * hf, 2), addr + off // 65536,
                                                                    off % 65536 + hf * 512), "f%d" % ks)
        wq = self.w4_items(W4_FIRST, W4_SLOTS, "w4b")
        yq = []
        self.barrier()
        reads(0)
        for ks in range(56):
            breaks = ks + 1 in (W4_FIRST, W4_SLOTS)
            if ks < 55 and not breaks:
                reads(ks + 1)
            a.wait_vm("H%d" % ks)
            a.wait_lg("f%d" % ks)
            b = ks & 1
            a("%s %s, %s, %s, %s" % (MF32, vr(ACK, 16), vr(AK + 4 * b, 4), ar(4 * ks, 4), "0" if ks == 0 else vr(ACK, 16)))
            if hitems:
                hitems.pop(0)()
            a("%s %s, %s, %s, %s" % (MF32, vr(ACS, 16), vr(AS + 4 * b, 4), ar(4 * ks, 4), "0" if ks == 0 else vr(ACS, 16)))
            if wq:
                wq.pop(0)()
            elif yq:
                yq.pop(0)()
                if yq:
                    yq.pop(0)()
            if ks == 15:
                self.barrier()
                self.flag_store(F_CV, 2)
                wq = self.w4_items(W4_SLOTS, 56, "w4c")
            if ks == 32:
                self.idx_cv()
                self.poll_issue(F_CV, "pcv")
            if ks == 40:
                self.poll_check("pcv", 4)
                yq = self.s4_y_items()
            if ks + 1 == W4_FIRST:
                a.wait_vm("w4b")
                self.barrier()
                reads(ks + 1)
            if ks + 1 == W4_SLOTS:
                a.wait_vm("w4c")
                self.barrier()
                reads(ks + 1)
            if ks in (8, 15, 27, 39, 47):
                self.stamp("s4k%d" % ks)
        for f in yq:
            f()

    def s4_epilogue(self):
        a = self.a
        ACK, ACS = self.ACK, self.ACS
        self.exchange_write(ACS)
        self.xn_tile(96)
        self.unpack8(vQ, 112)
        self.unpack8(vX1, 128)
        for p in range(8):
            a("v_pk_add_f32 %s, %s, %s" % (vr(112 + 2 * p, 2), vr(112 + 2 * p, 2), vr(128 + 2 * p, 2)))
        a.wait_lg_all()
        self.barrier()
        self.exchange_read(80)
        a.wait_vm("y")
        for r in range(16):
            a("v_lshlrev_b32 v%d, 16, v%d" % (176 + r, 176 + r))
        for p in range(8):
            a("v_pk_fma_f32 %s, %s, %s, %s" % (vr(112 + 2 * p, 2), vr(96 + 2 * p, 2), vr(176 + 2 * p, 2), vr(112 + 2 * p, 2)))
        for p in range(8):
            a("v_pk_add_f32 %s, %s, %s" % (vr(ACK + 2 * p, 2), vr(ACK + 2 * p, 2), vr(112 + 2 * p, 2)))
        a("s_lshl_b32 s%d, s%d, 15" % (sA, sT))
        a("s_lshl_b32 s%d, s%d, 7" % (sB, sC))
        a("s_add_u32 s%d, s%d, s%d" % (sA, sA, sB))
        a("s_lshl_b32 s%d, s%d, 6" % (sB, sKH))
        a("s_add_u32 s%d, s%d, s%d" % (sA, sA, sB))
        a("v_lshlrev_b32 v26, 10, v%d" % vN31)
        a("v_lshl_add_u32 v26, v%d, 4, v26" % vHH)
        a.wait_lg_all()
        for p in range(8):
            a("v_pk_add_f32 %s, %s, %s" % (vr(ACK + 2 * p, 2), vr(ACK + 2 * p, 2), vr(80 + 2 * p, 2)))
        for p in range(8):
            a("v_cvt_pk_bf16_f32 v%d, v%d, v%d" % (48 + p, ACK + 2 * p, ACK + 2 * p + 1))
        for j in (0, 4):
            a("v_permlane32_swap_b32 v%d, v%d" % (48 + j, 50 + j))
            a("v_permlane32_swap_b32 v%d, v%d" % (49 + j, 51 + j))
        a.vmem("buffer_store_dwordx4 %s, v26, %s, s%d offen" % (vr(48, 4), sr(S_OUT, 4), sA), "out")
        a.vmem("buffer_store_dwordx4 %s, v26, %s, s%d offen offset:32" % (vr(52, 4), sr(S_OUT, 4), sA), "out")

    def nonce_update(self):
        a = self.a
        skip = a.newlabel("nonce")
        a("s_cmp_lg_u32 s2, 0")
        a("s_cbranch_scc1 %s" % skip)
        a("s_cmp_lg_u32 s%d, 0" % sW)
        a("s_cbranch_scc1 %s" % skip)
        saved = list(a.vm)
        for i in range(4):
            a("v_add_u32 v28, %d, v%d" % (64 * i, vL))
            self.poll_issue(F_P0, "pn")
            self.poll_check("pn", 6)
        a.vm = saved
        a("v_mov_b32 v26, 0")
        a("v_mov_b32 v27, s%d" % sN)
        a("s_mov_b64 exec, 1")
        a("buffer_store_dword v27, v26, %s, 0 offen sc1" % sr(S_WS, 4))
        a("s_mov_b64 exec, -1")
        a.label(skip)

    def finish(self):
        a = self.a
        a.wait_vm_all()
        if self.stamps:
            self.stamp("end")
            skip = a.newlabel("nostamp")
            a("s_cmp_lg_u32 s%d, 0" % sW)
            a("s_cbranch_scc1 %s" % skip)
            a("s_lshl_b32 s%d, s2, 8" % sA)
            a("s_add_u32 s%d, s%d, 0x%x" % (sA, sA, WS_STAMP))
            a("v_lshlrev_b32 v26, 2, v%d" % vL)
            a("buffer_store_dword v%d, v26, %s, s%d offen" % (vSTAMP, sr(S_WS, 4), sA))
            a("s_waitcnt vmcnt(0)")
            a.label(skip)
        a.label("L_end")
        a("s_endpgm")

    def build(self):
        a = self.a
        self.prologue()
        self.s1_loads()
        self.stamp("s1iss")
        self.s1_main()
        self.stamp("s1main")
        self.s1_epilogue()
        self.stamp("s1epi")
        self.p0_compute()
        self.w3_setup()
        a.wait_vm("hst")
        self.barrier()
        self.flag_store_rc(F_S1)
        self.stamp("s1flag")
        self.fq = self.w3_items([0])
        self.fill(8)
        a.wait_lg_all()
        a.wait_vm("w2")
        self.barrier()
        self.p0_readback()
        self.conv_filter_loads()
        self.wpi_addr(128, 129, LW, 16384, 32768)
        self.idx_s1()
        self.poll_issue(F_S1, "ps1")
        hitems = self.s2_load_items()
        self.poll_check("ps1", 2)
        self.stamp("s1poll")
        for f in hitems[:8]:
            f()
        self.p0_store()
        self.fq = hitems[8:]
        self.s2_main()
        self.stamp("s2main")
        self.s2_epilogue()
        self.stamp("s2epi")
        self.poll_check("pp0", 1)
        self.conv_x_loads()
        self.conv_prep_filter(0)
        a.wait_vm("x1st")
        self.barrier()
        self.flag_store_rc(F_S2)
        self.stamp("s2flag")
        self.fq = self.w3_items([1, 2, 3])
        self.fill(6)
        self.conv_prep_x(0)
        self.stamp("cv0prep")

        def hook0(rho):
            if rho == 3:
                self.idx_16(sRP, 0)
                self.poll_issue(F_S2, "ps2")
        self.conv_main(hook0, fill_every=5)
        self.fill_all()
        self.stamp("cv0main")
        xitems = self.s3_load_items()
        self.poll_check("ps2", 3)
        self.stamp("s2poll")
        for f in xitems[:8]:
            f()
        a.wait_vm("w3")
        self.conv_finish(0)
        self.s3_addr()
        self.stamp("cv0fin")
        self.s3_colsum()
        self.stamp("s3cs")
        sitems = self.s3_stat_items()
        rest = xitems[8:]
        self.fq = []
        for i in range(24):
            self.fq.append(rest[i])
            if i >= 8:
                self.fq.append(sitems[i - 8])
        self.s3_main()
        self.fill_all()
        self.stamp("s3main")
        self.barrier()
        self.w4_setup()
        self.fq = self.w4_items(0, W4_FIRST, "w4")
        self.s3_epilogue()
        self.fill_all()
        self.stamp("s3epi")
        self.conv_prep_filter(1)
        a.wait_vm("Hst")
        self.barrier()
        a("s_lshl_b32 s%d, s%d, 4" % (sB, sRP))
        a("s_add_u32 s%d, s%d, s%d" % (sB, sB, sCP))
        self.flag_store(F_S3, sB)
        self.stamp("s3flag")
        self.nonce_update()
        self.conv_prep_x(1)
        self.stamp("cv1prep")

        def hook1(rho):
            if rho == 3:
                self.idx_16(sR, 1)
                self.poll_issue(F_S3, "ps3")
        self.conv_main(hook1)
        self.stamp("cv1main")
        hitems = self.s4_load_items()
        self.poll_check("ps3", 5)
        self.stamp("s3poll")
        for _ in range(10):
            hitems.pop(0)()
        a.wait_vm("w4")
        self.conv_finish(1)
        self.stamp("cv1fin")
        self.s4_main(hitems)
        self.stamp("s4main")
        self.s4_epilogue()
        self.stamp("s4epi")
        self.finish()


REF = "cdna_kernels/%s.s.ref" % NAME


def emit(stop=None, stamps=False):
    g = Gen(stop, stamps)
    g.build()
    nops = g.a.fix_hazards()
    top = [l for l in open(REF).read().split("\n") if l.startswith(";") and "@launch" not in l and "Override" not in l
           and "grid=ceil" not in l]
    out = top + ["; @launch grid=(256,1,1) block=(256,1,1) lds=%d" % LDS_BYTES,
                 '.amdgcn_target "amdgcn-amd-amdhsa--gfx950"', ".text", ".globl %s_kernel" % NAME, ".p2align 8",
                 ".type %s_kernel,@function" % NAME, "%s_kernel:" % NAME]
    body = g.a.text()
    tail = ['.section .rodata,"a"', ".p2align 6", ".amdhsa_kernel %s_kernel" % NAME,
            "  .amdhsa_next_free_vgpr 512", "  .amdhsa_next_free_sgpr 102", "  .amdhsa_accum_offset 256",
            "  .amdhsa_group_segment_fixed_size 0", "  .amdhsa_kernarg_size 112", "  .amdhsa_user_sgpr_count 2",
            "  .amdhsa_user_sgpr_kernarg_segment_ptr 1", "  .amdhsa_system_sgpr_workgroup_id_x 1",
            "  .amdhsa_float_denorm_mode_32 3", ".end_amdhsa_kernel"]
    text = "\n".join(out) + "\n" + body + "\n".join(tail) + "\n"
    return text, g, nops


if __name__ == "__main__":
    ap = argparse.ArgumentParser()
    ap.add_argument("-o", default="cdna_kernels/%s.s" % NAME)
    ap.add_argument("--stop", default=None)
    ap.add_argument("--stamps", action="store_true")
    args = ap.parse_args()
    text, g, nops = emit(args.stop, args.stamps)
    open(args.o, "w").write(text)
    n = sum(1 for x in g.a.ins if x.kind != "label")
    print("instructions: %d, hazard nops: %d" % (n, nops))
    if g.stamp_names:
        print(",".join(g.stamp_names))
        open(args.o + ".stamps", "w").write(",".join(g.stamp_names))
```

```python
import re

TRANS = ("v_exp_f32", "v_log_f32", "v_rcp_f32", "v_rsq_f32", "v_sqrt_f32", "v_sin_f32", "v_cos_f32")
REG_RE = re.compile(r"^(-|abs\(|\|)?([vas])(\d+|\[(\d+):(\d+)\])\)?\|?$")


def regs_of(op):
    op = op.strip()
    if op in ("vcc", "vcc_lo", "vcc_hi"):
        return {("s", "vcc")}
    if op in ("exec", "exec_lo", "exec_hi"):
        return {("s", "exec")}
    if op == "m0":
        return {("s", "m0")}
    if op == "scc":
        return set()
    m = REG_RE.match(op)
    if not m:
        return set()
    f = m.group(2)
    if m.group(4) is not None:
        return {(f, i) for i in range(int(m.group(4)), int(m.group(5)) + 1)}
    return {(f, int(m.group(3)))}


class Ins:
    __slots__ = ("text", "op", "ops", "mods", "dst", "src", "kind", "label", "target", "passes", "srcC", "srcAB",
                 "states", "sdata", "note")

    def __init__(self, text):
        self.text = text
        self.label = None
        self.target = None
        self.note = None
        t = text.split(";")[0].strip()
        if t.endswith(":"):
            self.label = t[:-1]
            self.kind = "label"
            self.op = ""
            self.dst = set()
            self.src = set()
            self.states = 0
            return
        parts = t.split(None, 1)
        self.op = parts[0]
        rest = parts[1] if len(parts) > 1 else ""
        toks, depth, cur = [], 0, ""
        for ch in rest:
            if ch in "[(":
                depth += 1
            elif ch in "])":
                depth -= 1
            if ch == "," and depth == 0:
                toks.append(cur.strip())
                cur = ""
            else:
                cur += ch
        if cur.strip():
            toks.append(cur.strip())
        mods = []
        if toks:
            last = toks[-1].split()
            toks[-1] = last[0]
            mods = last[1:]
        fixed = toks
        self.ops = fixed
        self.mods = mods
        self.states = 1
        self.passes = 0
        self.srcC = set()
        self.srcAB = set()
        self.sdata = set()
        op = self.op
        R = [regs_of(x) for x in self.ops]
        dst, src = set(), set()
        if op.startswith("v_mfma"):
            self.kind = "mfma"
            self.passes = 8 if "32x32x16" in op else 4
            dst = R[0]
            self.srcAB = R[1] | R[2]
            self.srcC = R[3]
            src = self.srcAB | self.srcC
        elif op.startswith("v_"):
            self.kind = "valu"
            if op.startswith("v_cmp"):
                dst = R[0]
                for r in R[1:]:
                    src |= r
            elif op.startswith("v_permlane") and "swap" in op:
                dst = R[0] | R[1]
                src = R[0] | R[1]
            elif op.startswith(("v_add_co", "v_sub_co", "v_addc_co", "v_subb_co")):
                dst = R[0] | R[1]
                for r in R[2:]:
                    src |= r
            else:
                dst = R[0]
                for r in R[1:]:
                    src |= r
                if op.startswith(("v_fmac", "v_dot2c", "v_pk_fmac", "v_writelane")) or "dpp" in op or \
                        any(m.startswith(("row_", "quad_perm", "wave_")) for m in mods):
                    src |= R[0]
        elif op.startswith("ds_"):
            self.kind = "ds"
            if op.startswith(("ds_read", "ds_bpermute", "ds_permute", "ds_swizzle")):
                dst = R[0]
                for r in R[1:]:
                    src |= r
            else:
                for r in R:
                    src |= r
        elif op.startswith("buffer_"):
            self.kind = "vmem"
            lds = "lds" in mods
            if op.startswith("buffer_load") and not lds:
                dst = R[0]
                for r in R[1:]:
                    src |= r
            elif op.startswith("buffer_load"):
                for r in R:
                    src |= r
                src |= {("s", "m0")}
            else:
                for r in R:
                    src |= r
                if op.endswith(("x3", "x4")):
                    self.sdata = R[0]
        elif op.startswith("global_"):
            self.kind = "vmem"
            if op.startswith("global_load"):
                dst = R[0]
                for r in R[1:]:
                    src |= r
            else:
                for r in R:
                    src |= r
                if op.endswith(("x3", "x4")):
                    self.sdata = R[1]
        elif op.startswith("s_"):
            self.kind = "salu"
            if op == "s_nop":
                self.states = int(self.ops[0], 0) + 1
            elif op.startswith(("s_cbranch", "s_branch")):
                self.target = self.ops[0]
            elif op.startswith(("s_cmp", "s_waitcnt", "s_barrier", "s_endpgm", "s_sleep", "s_setprio", "s_bitcmp")):
                for r in R:
                    src |= r
            elif op.startswith(("s_and_saveexec", "s_or_saveexec")):
                dst = R[0] | {("s", "exec")}
                src = R[1] | {("s", "exec")}
            else:
                dst = R[0] if R else set()
                for r in R[1:]:
                    src |= r
        else:
            raise ValueError("cannot classify: " + text)
        self.dst = dst
        self.src = src

    def is_trans(self):
        return self.op.replace("_e32", "").replace("_e64", "") in TRANS

    def is_dpp(self):
        return self.kind == "valu" and any(m.startswith(("row_", "quad_perm", "wave_")) for m in self.mods)


def vregs(s):
    return {r for r in s if r[0] in "va"}


def sregs(s):
    return {r for r in s if r[0] == "s"}


def required(p, c):
    need = 0
    if p.kind == "valu":
        pv = vregs(p.dst)
        ps = sregs(p.dst)
        if pv:
            if c.kind == "mfma" and pv & c.src:
                need = max(need, 2)
            if c.kind == "valu":
                if pv & c.src:
                    if c.op.startswith("v_permlane"):
                        need = max(need, 2)
                    if c.is_dpp():
                        need = max(need, 2)
                    if c.op.startswith(("v_readlane", "v_readfirstlane")):
                        need = max(need, 1)
                    if p.is_trans() and not c.is_trans():
                        need = max(need, 1)
        if ps:
            if c.kind == "vmem" and ps & c.src:
                need = max(need, 5)
            if c.kind == "valu" and ps & c.src:
                need = max(need, 4 if c.op.startswith(("v_readlane", "v_writelane")) else 2)
            if c.kind == "salu" and ps & c.src:
                need = max(need, 1)
    if p.kind == "mfma":
        big = p.passes == 8
        if c.kind == "mfma":
            if p.dst & c.srcAB:
                need = max(need, 12 if big else 8)
            if p.dst & c.srcC:
                if not (p.dst == c.srcC and p.passes == c.passes):
                    need = max(need, 10 if big else 6)
            if (p.dst & c.dst) and not (p.dst == c.dst and p.passes == c.passes):
                need = max(need, 10 if big else 6)
        elif c.kind in ("valu", "ds", "vmem"):
            if p.dst & (c.src | c.dst):
                need = max(need, 12 if big else 8)
            if c.kind == "valu" and (p.srcC & c.dst):
                need = max(need, 7 if big else 3)
    if p.kind == "salu" and ("s", "m0") in p.dst:
        if c.kind == "vmem" and ("s", "m0") in c.src:
            need = max(need, 1)
    if p.kind == "vmem" and p.sdata:
        if c.kind == "valu" and (p.sdata & c.dst):
            need = max(need, 2)
        elif c.kind in ("ds", "vmem", "mfma") and (p.sdata & c.dst):
            need = max(need, 1)
    return need


MAXLOOK = 14


class Asm:
    def __init__(self):
        self.ins = []
        self.uid = 0
        self.hook = None
        self.vm = []
        self.lg = []

    def __call__(self, text):
        for line in text.strip("\n").split("\n"):
            line = line.strip()
            if not line or line.startswith(";") or line.startswith("//"):
                continue
            x = Ins(line)
            self.ins.append(x)
            if self.hook is not None:
                self.hook(x)

    def label(self, name):
        self.ins.append(Ins(name + ":"))

    def newlabel(self, stem):
        self.uid += 1
        return "L_%s_%d" % (stem, self.uid)

    def vmem(self, text, tag=None):
        self.vm.append(tag)
        self(text)

    def lds(self, text, tag=None):
        self.lg.append(tag)
        self(text)

    def wait_vm(self, *tags):
        last = -1
        for i, t in enumerate(self.vm):
            if t in tags:
                last = i
        if last < 0:
            return
        n = len(self.vm) - 1 - last
        assert n <= 63, "vmcnt overflow %d" % n
        self("s_waitcnt vmcnt(%d)" % n)
        self.vm = self.vm[last + 1:]

    def wait_vm_all(self):
        self("s_waitcnt vmcnt(0)")
        self.vm = []

    def wait_lg(self, *tags):
        last = -1
        for i, t in enumerate(self.lg):
            if t in tags:
                last = i
        if last < 0:
            return
        n = len(self.lg) - 1 - last
        if n > 15:
            n = 15
            last = len(self.lg) - 1 - n
        self("s_waitcnt lgkmcnt(%d)" % n)
        self.lg = self.lg[last + 1:]

    def wait_lg_all(self):
        self("s_waitcnt lgkmcnt(0)")
        self.lg = []

    def wait_both(self, vtag, ltag):
        parts = []
        last = max([i for i, t in enumerate(self.vm) if t == vtag], default=-1)
        if last >= 0:
            parts.append("vmcnt(%d)" % (len(self.vm) - 1 - last))
            self.vm = self.vm[last + 1:]
        last = max([i for i, t in enumerate(self.lg) if t == ltag], default=-1)
        if last >= 0:
            n = min(len(self.lg) - 1 - last, 15)
            parts.append("lgkmcnt(%d)" % n)
            self.lg = self.lg[len(self.lg) - n:] if n else []
        if parts:
            self("s_waitcnt " + " ".join(parts))

    def check_vm_depth(self):
        assert len(self.vm) <= 63, "too many outstanding vmem ops: %d" % len(self.vm)

    def fix_hazards(self):
        ins = self.ins
        inserted = 0
        label_of = {id(x): x.label for x in ins if x.kind == "label"}
        branches = [x for x in ins if x.kind != "label" and x.target is not None]
        by_target = {}
        for b in branches:
            by_target.setdefault(b.target, []).append(b)
        i = 0
        pos = {id(x): k for k, x in enumerate(ins)}
        while i < len(ins):
            c = ins[i]
            if c.kind == "label" or c.op in ("s_nop", "s_waitcnt", "s_barrier"):
                i += 1
                continue

            def preds(k):
                out = []
                if k > 0:
                    p = ins[k - 1]
                    if not (p.kind == "salu" and p.op in ("s_branch", "s_endpgm")):
                        out.append(k - 1)
                x = ins[k]
                if x.kind == "label":
                    out += [pos[id(b)] for b in by_target.get(x.label, [])]
                return out

            worst = 0
            stack = [(p, 0) for p in preds(i)]
            seen = {}
            while stack:
                j, dist = stack.pop()
                if dist >= MAXLOOK or seen.get(j, 99) <= dist:
                    continue
                seen[j] = dist
                p = ins[j]
                if p.kind != "label":
                    need = required(p, c)
                    if need > dist:
                        worst = max(worst, need - dist)
                nd = dist + p.states
                for k in preds(j):
                    stack.append((k, nd))
            if worst:
                new = []
                n = worst
                while n > 0:
                    k = min(n, 16)
                    new.append(Ins("s_nop %d" % (k - 1)))
                    n -= k
                ins[i:i] = new
                inserted += worst
                i += len(new)
                pos = {id(x): k for k, x in enumerate(ins)}
            i += 1
        return inserted

    def text(self):
        out = []
        for x in self.ins:
            out.append(x.text if x.kind == "label" else "    " + x.text)
        return "\n".join(out) + "\n"
```

```python
import argparse
import os
import struct
import sys

sys.path.insert(0, os.path.dirname(os.path.abspath(__file__)))
from asmlib import Asm

NAME = "parallel_sum__ssm_conv_h3__mixer_s_mlp__prompt"

WS_FLAGS = 4096
WS_STAMP = 0x40000
WS_KVT = 0x100000
WS_YT = 0x300000
WS_HS = 0x500000
WS_X1 = 0x700000
WS_ST = 0x900000
WS_HH = 0xA00000
WS_SIZE = 0x10000000
OOB = 0x40000000
F_P0, F_S1, F_S2, F_S3, F_CV = 0, 1, 2, 3, 4

LQ = 0
LW = 65536
LSTG = 131072
LRED = 139264
LSTX = 155648
LCSX = 156672
LCS3 = 161280
LDS_BYTES = 163840
CV_X = 0
CV_XD = 1152
CV_A = 5248
CV_P = 21760
CV_R = 5248
CV_BASE = 114688
W3_P = 0
W3_H = 98304
CV_BASE1 = 69632
W4_A, W4_B, W4_C = 11, 28, 39


def w4_off(ks):
    if ks < W4_A:
        return 114688 + ks * 4096
    if ks < W4_B:
        return (ks - W4_A) * 4096
    if ks < W4_C:
        return CV_BASE1 + (ks - W4_B) * 4096
    return w4_off(ks - W4_C)

S_WS, S_Q, S_K, S_V, S_SHK, S_SSM, S_W1, S_W2, S_W3, S_W4, S_OUT = 4, 8, 12, 16, 20, 24, 32, 36, 40, 44, 48
S_DPTR = 28
S_DBG = 30
sR, sC, sW, sTH, sKH, sN, sRP, sCP = 52, 53, 54, 55, 56, 57, 58, 59
sT, sT3 = 60, 61
sD0, sD1 = 62, 63
sA, sB, sCc, sD, sE, sF = 64, 65, 66, 67, 68, 69
sW2L, sW2G, sW3L, sW3G, sW3HL, sW3HG, sW4L, sW4G, sSO, sLD = 70, 71, 72, 73, 74, 75, 76, 77, 78, 79
sONES, sHI = 80, 81
sK4, sK8, sK12 = 82, 83, 84
sEPS, sTMO, sKG1, sKG3, s512I = 85, 86, 87, 88, 89
sSTA = 90
sROT, sQG, sWG, sCP0 = 92, 93, 94, 95

vL, vL16, vWP, vWN = 0, 1, 2, 3
vQ, vX1 = 4, 12
vMEAN, vR1 = 20, 21
vTID, vHH, vN31, vSTAMP = 22, 23, 24, 25
vW64 = 31
vCH = 200
vW3F, vW3H = 220, 221
vPF, vPA = 225, 226

GELU_K1 = 2.0 * 0.7978845608028654 * 1.4426950408889634
GELU_K3 = GELU_K1 * 0.044715
MF32 = "v_mfma_f32_32x32x16_bf16"
MF16 = "v_mfma_f32_16x16x32_bf16"


def f32bits(x):
    return struct.unpack("<I", struct.pack("<f", x))[0]


def vr(a, n):
    return "v[%d:%d]" % (a, a + n - 1)


def ar(a, n):
    return "a[%d:%d]" % (a, a + n - 1)


def sr(a, n):
    return "s[%d:%d]" % (a, a + n - 1)


class Gen:
    def __init__(self, stop=None, stamps=False, opt=None):
        self.opt = opt or {}
        self.keep = None
        self.a = Asm()
        self.stop = stop
        self.stamps = stamps
        self.nstamp = 0
        self.stamp_names = []
        self.fq = []
        self.pq = []
        self.interval = 0
        self.clock = 0.0
        self.hold = 0
        self.a.hook = self._pace

    def _pace(self, x):
        if x.kind == "mfma":
            self.clock += 32 if x.passes == 8 else 16
        elif x.kind == "valu":
            self.clock += 8 if x.is_trans() else 4.5
        elif x.kind == "ds":
            self.clock += 13 if x.op == "ds_write_b128" else 2
        elif x.kind == "vmem":
            self.clock += 20
        else:
            return
        if self.hold or not self.pq or not self.interval or x.kind == "vmem":
            return
        if self.clock >= self.interval:
            self.clock = 0.0
            self.hold += 1
            self.pq.pop(0)()
            self.hold -= 1

    def paced(self, items, interval):
        self.pq += items
        self.interval = interval
        self.clock = 0.0

    def pace_flush(self, tag=None):
        self.hold += 1
        if tag is None:
            n = len(self.pq)
        else:
            n = max([i + 1 for i, f in enumerate(self.pq) if f.tag == tag], default=0)
        for _ in range(n):
            self.pq.pop(0)()
        self.hold -= 1

    def stamp(self, name):
        if not self.stamps:
            return
        if self.keep and name not in self.keep and name not in ("start", "end"):
            return
        self.hold += 1
        self._stamp(name)
        self.hold -= 1

    def _stamp(self, name):
        a = self.a
        a("s_memtime %s" % sr(sSTA, 2))
        a("s_waitcnt lgkmcnt(0)")
        a.lg = []
        a("v_writelane_b32 v%d, s%d, %d" % (vSTAMP, sSTA, self.nstamp))
        if name in ("start", "end"):
            a("s_memrealtime %s" % sr(sSTA, 2))
            a("s_waitcnt lgkmcnt(0)")
            a("v_writelane_b32 v%d, s%d, %d" % (vSTAMP, sSTA, 62 if name == "start" else 63))
        self.stamp_names.append(name)
        self.nstamp += 1

    def barrier(self):
        self.a("s_barrier")

    def fill(self, n=1):
        for _ in range(n):
            if self.fq:
                self.fq.pop(0)()

    def fill_all(self):
        while self.fq:
            self.fq.pop(0)()

    def dma_item(self, srd, voff, sl, loff, sg, goff, tag):
        def f():
            a = self.a
            a("s_add_u32 m0, s%d, %d" % (sl, loff))
            a("s_add_u32 s%d, s%d, %d" % (sSO, sg, goff))
            a.vmem("buffer_load_dwordx4 v%d, %s, s%d offen lds" % (voff, sr(srd, 4), sSO), tag)
            a.check_vm_depth()
        f.tag = tag
        return f

    def flag_store(self, phase, sidx):
        a = self.a
        self.hold += 1
        skip = a.newlabel("noflag")
        a("s_cmp_lg_u32 s%d, 0" % sW)
        a("s_cbranch_scc1 %s" % skip)
        a("s_lshl_b32 s%d, s%d, 7" % (sA, sidx))
        a("s_add_u32 s%d, s%d, %d" % (sA, sA, WS_FLAGS + phase * 256 * 128))
        a("v_mov_b32 v26, s%d" % sN)
        a("v_mov_b32 v27, s%d" % sA)
        a("s_mov_b64 exec, 1")
        a("buffer_store_dword v26, v27, %s, 0 offen sc1" % sr(S_WS, 4))
        a("s_mov_b64 exec, -1")
        a.label(skip)
        self.hold -= 1

    def flag_store_rc(self, phase):
        a = self.a
        a("s_lshl_b32 s%d, s%d, 3" % (sB, sR))
        a("s_add_u32 s%d, s%d, s%d" % (sB, sB, sCP0 if phase == F_P0 else sC))
        self.flag_store(phase, sB)

    def poll_issue(self, phase, tag):
        a = self.a
        a("v_lshlrev_b32 v%d, 7, v28" % vPA)
        a("v_add_u32 v%d, %d, v%d" % (vPA, WS_FLAGS + phase * 256 * 128, vPA))
        a.vmem("buffer_load_dword v%d, v%d, %s, 0 offen sc1" % (vPF, vPA, sr(S_WS, 4)), tag)

    def poll_check(self, tag, code):
        a = self.a
        self.hold += 1
        loop = a.newlabel("poll")
        done = a.newlabel("polled")
        a.wait_vm(tag)
        a("v_cmp_ne_u32 vcc, s%d, v%d" % (sN, vPF))
        a("s_cmp_eq_u64 vcc, 0")
        a("s_cbranch_scc1 %s" % done)
        a("s_mov_b32 s%d, 0x40000" % sTMO)
        a.label(loop)
        a("buffer_load_dword v%d, v%d, %s, 0 offen sc1" % (vPF, vPA, sr(S_WS, 4)))
        a("s_waitcnt vmcnt(0)")
        a("v_cmp_ne_u32 vcc, s%d, v%d" % (sN, vPF))
        a("s_cmp_eq_u64 vcc, 0")
        a("s_cbranch_scc1 %s" % done)
        a("s_sub_u32 s%d, s%d, 1" % (sTMO, sTMO))
        a("s_cmp_lg_u32 s%d, 0" % sTMO)
        a("s_cbranch_scc1 %s" % loop)
        a("v_mov_b32 v26, 0")
        a("v_mov_b32 v27, %d" % (0x100 + code))
        a("s_mov_b64 exec, 1")
        a("global_store_dword v26, v27, %s" % sr(S_DBG, 2))
        a("s_mov_b64 exec, -1")
        a.label(done)
        self.hold -= 1

    def idx_s1(self):
        a = self.a
        a("v_min_u32 v28, 23, v%d" % vL)
        a("s_lshl_b32 s%d, s%d, 3" % (sA, sR))
        a("s_sub_u32 s%d, s%d, 8" % (sA, sA))
        a("v_add_u32 v28, s%d, v28" % sA)
        a("v_add_u32 v29, 8, v28")
        a("v_cmp_gt_i32 vcc, 0, v28")
        a("v_cndmask_b32 v28, v28, v29, vcc")
        a("v_subrev_u32 v29, 8, v28")
        a("v_cmp_lt_u32 vcc, 0xff, v28")
        a("v_cndmask_b32 v28, v28, v29, vcc")

    def idx_p0(self):
        a = self.a
        a("s_lshr_b32 s%d, s2, 5" % sA)
        a("v_lshlrev_b32 v28, 3, v%d" % vN31)
        a("v_add_u32 v28, s%d, v28" % sA)

    def idx_16(self, sreg, shift):
        a = self.a
        a("v_and_b32 v28, 15, v%d" % vL)
        a("s_lshr_b32 s%d, s%d, %d" % (sA, sreg, shift))
        a("s_lshl_b32 s%d, s%d, 4" % (sA, sA))
        a("v_add_u32 v28, s%d, v28" % sA)

    def idx_cv(self):
        a = self.a
        if self.opt.get("remap", 0):
            a("s_lshl_b32 s%d, s%d, 4" % (sA, sC))
            a("v_and_b32 v28, 15, v%d" % vL)
            a("v_bfe_u32 v29, v%d, 4, 1" % vL)
            a("v_lshl_add_u32 v28, v29, 7, v28")
            a("v_add_u32 v28, s%d, v28" % sA)
        else:
            a("s_lshl_b32 s%d, s%d, 5" % (sA, sC))
            a("v_add_u32 v28, s%d, v%d" % (sA, vN31))

    def prologue(self):
        a = self.a
        a("s_cmp_ge_u32 s2, 256")
        a("s_cbranch_scc1 L_end")
        a("s_load_dwordx16 s[64:79], s[0:1], 0")
        a("s_load_dwordx8 s[92:99], s[0:1], 64")
        a("s_load_dwordx2 %s, s[0:1], 96" % sr(S_DBG, 2))
        a("s_load_dwordx2 %s, s[0:1], 104" % sr(S_WS, 2))
        sizes = {S_WS: WS_SIZE, S_Q: 1 << 21, S_K: 1 << 21, S_V: 1 << 21, S_SHK: 4096, S_SSM: 1 << 21,
                 S_W1: 1 << 19, S_W2: 1 << 19, S_W3: 512 * 1792 * 2, S_W4: 512 * 1792 * 2, S_OUT: 1 << 21}
        for s, n in sizes.items():
            a("s_mov_b32 s%d, 0x%x" % (s + 2, n))
            a("s_mov_b32 s%d, 0x20000" % (s + 3))
        a("s_and_b32 s100, s2, 7")
        a("s_lshr_b32 s101, s2, 3")
        a("s_lshr_b32 s%d, s101, 3" % sR)
        a("s_lshl_b32 s%d, s100, 2" % sC)
        a("s_add_u32 s%d, s%d, s%d" % (sR, sR, sC))
        a("s_and_b32 s%d, s101, 7" % sC)
        a("s_lshr_b32 s%d, s101, 4" % sRP)
        a("s_lshl_b32 s100, s100, 1")
        a("s_add_u32 s%d, s%d, s100" % (sRP, sRP))
        a("s_and_b32 s%d, s101, 15" % sCP)
        a("v_mov_b32 v%d, v0" % vTID)
        a("v_lshrrev_b32 v26, 6, v0")
        a("v_and_b32 v%d, 63, v0" % vL)
        a("v_readfirstlane_b32 s%d, v26" % sW)
        a("v_lshlrev_b32 v%d, 4, v%d" % (vL16, vL))
        a("v_lshrrev_b32 v%d, 5, v%d" % (vHH, vL))
        a("v_and_b32 v%d, 31, v%d" % (vN31, vL))
        a("s_lshr_b32 s%d, s%d, 1" % (sTH, sW))
        a("s_and_b32 s%d, s%d, 1" % (sKH, sW))
        a("s_lshl_b32 s%d, s%d, 1" % (sT, sR))
        a("s_add_u32 s%d, s%d, s%d" % (sT, sT, sTH))
        a("s_lshl_b32 s%d, s%d, 2" % (sT3, sRP))
        a("s_add_u32 s%d, s%d, s%d" % (sT3, sT3, sW))
        a("s_mov_b32 s%d, 0x3f803f80" % sONES)
        a("s_mov_b32 s%d, 0xffff0000" % sHI)
        a("s_movk_i32 s%d, 0x1000" % sK4)
        a("s_movk_i32 s%d, 0x2000" % sK8)
        a("s_movk_i32 s%d, 0x3000" % sK12)
        a("s_mov_b32 s%d, 0x%x" % (sEPS, f32bits(1e-5)))
        a("s_mov_b32 s%d, 0x%x" % (sKG1, f32bits(-GELU_K1)))
        a("s_mov_b32 s%d, 0x%x" % (sKG3, f32bits(-GELU_K3)))
        a("s_mov_b32 s%d, 0x%x" % (s512I, f32bits(1.0 / 512)))
        a("v_bfe_u32 v26, v%d, 2, 2" % vL)
        a("v_and_b32 v27, 3, v%d" % vL)
        a("v_bfe_u32 v28, v%d, 4, 1" % vL)
        a("v_lshlrev_b32 v27, 3, v27")
        a("v_lshl_add_u32 v27, v28, 5, v27")
        a("v_lshl_add_u32 v28, v%d, 2, v26" % vHH)
        a("v_lshl_add_u32 v%d, v28, 6, v27" % vWP)
        a("v_lshl_add_u32 v28, v%d, 3, v26" % vHH)
        a("v_lshl_add_u32 v%d, v28, 6, v27" % vWN)
        a("v_lshrrev_b32 v26, 2, v%d" % vL)
        a("v_and_b32 v27, 3, v%d" % vL)
        a("v_lshlrev_b32 v27, 4, v27")
        a("v_lshl_add_u32 v%d, v26, 10, v27" % vW64)
        a("v_lshrrev_b32 v26, 3, v%d" % vL)
        a("v_and_b32 v27, 7, v%d" % vL)
        a("v_lshrrev_b32 v28, 4, v%d" % vL)
        a("v_xor_b32 v27, v27, v28")
        a("v_lshlrev_b32 v27, 4, v27")
        a("v_lshl_add_u32 v132, v26, 10, v27")
        a("v_xor_b32 v133, 64, v132")
        if self.stamps:
            a("v_mov_b32 v%d, 0" % vSTAMP)
        a("s_waitcnt lgkmcnt(0)")
        for s, src in ((S_Q, 64), (S_W1, 78), (S_K, 66), (S_V, 68), (S_SHK, 70), (S_SSM, 72), (S_DPTR, 74)):
            a("s_mov_b64 %s, %s" % (sr(s, 2), sr(src, 2)))
        for i, s in enumerate([S_W2, S_W3, S_W4, S_OUT]):
            a("s_mov_b64 %s, %s" % (sr(s, 2), sr(92 + 2 * i, 2)))
        self.stamp("start")
        self.ssm_d_load()

    def feat0(self, dst, spanel, shift):
        a = self.a
        if self.opt.get("remap", 0):
            a("s_lshl_b32 s%d, s%d, %d" % (dst, sC, 5 + shift))
            a("s_lshl_b32 s%d, s%d, %d" % (sSO, spanel, 8 + shift))
        else:
            a("s_lshl_b32 s%d, s%d, %d" % (dst, sC, 6 + shift))
            a("s_lshl_b32 s%d, s%d, %d" % (sSO, spanel, 5 + shift))
        a("s_add_u32 s%d, s%d, s%d" % (dst, dst, sSO))

    def w64_bases(self, sl, sg):
        a = self.a
        a("s_lshl_b32 s%d, s%d, 15" % (sl, sTH))
        a("s_lshl_b32 s%d, s%d, 14" % (sA, sKH))
        a("s_add_u32 s%d, s%d, s%d" % (sl, sl, sA))
        a("s_add_u32 s%d, s%d, %d" % (sl, sl, LW))
        a("s_lshl_b32 s%d, s%d, 18" % (sg, sKH))
        self.feat0(sA, sTH, 1)
        a("s_add_u32 s%d, s%d, s%d" % (sg, sg, sA))

    def s1_stage_items(self, st):
        a = self.a
        items = []

        def head():
            a("s_add_u32 s%d, s%d, %d" % (sB, sROT, st))
            a("s_and_b32 s%d, s%d, 3" % (sB, sB))
            a("s_lshl_b32 s%d, s%d, 7" % (sQG, sB))
            a("s_add_u32 s%d, s%d, s%d" % (sQG, sQG, sD))
            a("s_lshl_b32 s%d, s%d, 16" % (sWG, sB))
            a("s_add_u32 s%d, s%d, s%d" % (sWG, sWG, sW2G))
        for j in range(4):
            def f(j=j):
                if j == 0:
                    head()
                self.dma_item(S_Q, 132 + (j & 1), sCc, LQ + st * 4096 + j * 1024, sQG, j * 8192, "s1_%d" % st)()
            items.append(f)
        for i in range(4):
            items.append(self.dma_item(S_W1, vW64, sW2L, (4 * st + i) * 1024, sWG, i * 16384, "s1_%d" % st))
        return items

    def touch(self, srd, lanes, sidx, dst):
        a = self.a
        a("s_mul_i32 s%d, s%d, %d" % (sA, sidx, lanes))
        a("v_add_u32 v26, s%d, v%d" % (sA, vL))
        a("v_lshlrev_b32 v26, 7, v26")
        a("v_mov_b32 v27, 0x%x" % OOB)
        a("v_cmp_gt_u32 vcc, %d, v%d" % (lanes, vL))
        a("v_cndmask_b32 v26, v27, v26, vcc")
        a.vmem("buffer_load_dword v%d, v26, %s, 0 offen" % (dst, sr(srd, 4)), "touch")

    def s1_loads(self):
        a = self.a
        a("s_add_u32 s%d, s%d, %d" % (sCP0, sC, self.opt.get("cp0", 2)))
        a("s_and_b32 s%d, s%d, 7" % (sCP0, sCP0))
        a("s_add_u32 s%d, s%d, s%d" % (sROT, sR, sC))
        a("s_and_b32 s%d, s%d, 3" % (sROT, sROT))
        a("s_lshl_b32 s%d, s%d, 14" % (sCc, sW))
        a("s_lshl_b32 s%d, s%d, 15" % (sD, sT))
        a("s_lshl_b32 s%d, s%d, 9" % (sA, sKH))
        a("s_add_u32 s%d, s%d, s%d" % (sD, sD, sA))
        self.w64_bases(sW2L, sW2G)
        if self.opt.get("w1slow", 0):
            a("s_lshr_b32 s%d, s2, 3" % sE)
            a("s_lshl_b32 s%d, s%d, 2" % (sE, sE))
            a("s_add_u32 s%d, s%d, s%d" % (sE, sE, sW))
            a("s_lshl_b32 s%d, s%d, 2" % (sE, sE))
            a("v_add_u32 v26, s%d, v%d" % (sE, vL))
            a("v_lshlrev_b32 v26, 10, v26")
            a("v_add_u32 v26, 384, v26")
            a("v_mov_b32 v27, 0x%x" % OOB)
            a("v_cmp_gt_u32 vcc, 4, v%d" % vL)
            a("v_cndmask_b32 v26, v27, v26, vcc")
            a.vmem("buffer_load_dword v237, v26, %s, 0 offen" % sr(S_W1, 4), "touch")
        allitems = [f for st in range(4) for f in self.s1_stage_items(st)]
        nfirst = self.opt.get("nfirst", 12)
        for f in allitems[:nfirst]:
            f()
        if self.opt.get("tlb", 0):
            self.tlb_touch()
        self.fq = allitems[nfirst:]

        def nonce():
            a("v_mov_b32 v26, 0")
            a.vmem("buffer_load_dword v30, v26, %s, 0 offen sc1" % sr(S_WS, 4), "nonce")
        self.fq.append(nonce)
        if self.opt.get("w2t_at", 0) == 0:
            self.fq.append(self.touch_w2)
        if self.opt.get("ssm_at", 0) == 0:
            self.fq.append(self.conv_filter_loads)
        if self.opt.get("w34_at", 1) == 0:
            self.fq.append(self.touch_w34)

    def touch_w2(self):
        a = self.a
        if self.opt.get("touch", 1):
            a("s_lshr_b32 s%d, s2, 3" % sE)
            a("s_lshl_b32 s%d, s%d, 2" % (sE, sE))
            a("s_add_u32 s%d, s%d, s%d" % (sE, sE, sW))
            self.touch(S_W2, 32, sE, 222)

    def touch_w34(self):
        a = self.a
        if self.opt.get("touch", 1):
            a("s_lshl_b32 s%d, s2, 2" % sE)
            a("s_add_u32 s%d, s%d, s%d" % (sE, sE, sW))
            if self.opt.get("touchw3", 1):
                self.touch(S_W3, 14, sE, 223)
            if self.opt.get("touchw4", 1):
                self.touch(S_W4, 14, sE, 224)

    def touch_w4_local(self):
        a = self.a
        a("s_lshr_b32 s%d, s2, 3" % sE)
        a("s_lshl_b32 s%d, s%d, 2" % (sE, sE))
        a("s_add_u32 s%d, s%d, s%d" % (sE, sE, sW))
        self.touch(S_W4, 64, sE, 223)
        a("s_add_u32 s%d, s%d, 128" % (sE, sE))
        self.touch(S_W4, 64, sE, 227)

    KRAW, VRAW, SHRAW, POFF = 160, 171, 180, 184

    def p0_load_items(self):
        a = self.a
        o = self.POFF
        a("s_lshl_b32 s%d, s%d, 6" % (sA, sR))
        a("s_lshl_b32 s%d, s%d, 4" % (sB, sW))
        a("s_add_u32 s%d, s%d, s%d" % (sA, sA, sB))
        a("v_lshl_add_u32 v26, v%d, 3, s%d" % (vHH, sA))
        a("s_lshl_b32 s%d, s%d, 7" % (sB, sCP0))
        a("v_lshl_add_u32 v27, v%d, 2, s%d" % (vN31, sB))
        a("v_lshl_add_u32 v%d, v26, 10, v27" % (o + 3))
        a("v_add_u32 v%d, 0x1000, v%d" % (o + 4, o + 3))
        a("v_mov_b32 v28, 0x%x" % OOB)
        for i in range(3):
            a("v_subrev_u32 v%d, %d, v%d" % (o + i, (3 - i) * 1024, o + 3))
            a("v_cmp_gt_u32 vcc, %d, v26" % (3 - i))
            a("v_cndmask_b32 v%d, v%d, v28, vcc" % (o + i, o + i))
        a("s_lshl_b32 s%d, s%d, 9" % (sB, sCP0))
        a("v_lshl_add_u32 v%d, v%d, 4, s%d" % (o + 5, vN31, sB))

        def item(text):
            return lambda: a.vmem(text, "p0")
        for i in range(3):
            self.fq.append(item("buffer_load_dword v%d, v%d, %s, 0 offen" % (self.KRAW + i, o + i, sr(S_K, 4))))
        for i in range(8):
            self.fq.append(item("buffer_load_dword v%d, v%d, %s, 0 offen offset:%d"
                                % (self.KRAW + 3 + i, o + 3 + i // 4, sr(S_K, 4), (i % 4) * 1024)))
        for i in range(8):
            self.fq.append(item("buffer_load_dword v%d, v%d, %s, 0 offen offset:%d"
                                % (self.VRAW + i, o + 3 + i // 4, sr(S_V, 4), (i % 4) * 1024)))
        self.fq.append(item("buffer_load_dwordx4 %s, v%d, %s, 0 offen" % (vr(self.SHRAW, 4), o + 5, sr(S_SHK, 4))))

    ACK, ACS, ACC_CS = 32, 48, 64
    BF, AK, AS, AC = 80, 96, 104, 112
    SUM, ONE4 = 120, 124

    def s1_main(self):
        a = self.a
        ACK, ACS, ACC_CS, BF, AK, AS, AC, SUM, ONE4 = (self.ACK, self.ACS, self.ACC_CS, self.BF, self.AK, self.AS,
                                                       self.AC, self.SUM, self.ONE4)
        a("v_bfe_u32 v26, v%d, 1, 3" % vN31)
        a("v_xor_b32 v26, v26, v%d" % vHH)
        a("v_lshlrev_b32 v26, 4, v26")
        a("v_lshl_add_u32 v26, v%d, 7, v26" % vN31)
        a("s_lshl_b32 s%d, s%d, 14" % (sA, sW))
        a("v_add_u32 v128, s%d, v26" % sA)
        for i in range(1, 4):
            a("v_xor_b32 v%d, %d, v128" % (128 + i, 32 * i))
        a("s_lshl_b32 s%d, s%d, 14" % (sA, sKH))
        a("s_add_u32 s%d, s%d, %d" % (sA, sA, LW))
        a("s_lshl_b32 s%d, s%d, 15" % (sB, sKH))
        a("s_add_u32 s%d, s%d, s%d" % (sE, sA, sB))
        a("v_add_u32 v134, s%d, v%d" % (sE, vWN))
        a("s_xor_b32 s%d, s%d, 0x8000" % (sB, sB))
        a("s_add_u32 s%d, s%d, s%d" % (sE, sA, sB))
        a("v_add_u32 v135, s%d, v%d" % (sE, vWN))
        a("s_xor_b32 s%d, s%d, s%d" % (sB, sKH, sTH))
        a("s_lshl_b32 s%d, s%d, 15" % (sB, sB))
        a("s_add_u32 s%d, s%d, s%d" % (sE, sA, sB))
        a("v_add_u32 v136, s%d, v%d" % (sE, vWN))
        self.selector(ONE4)
        for i in range(4):
            a("v_mov_b32 v%d, 0" % (SUM + i))
        self.p0_load_items()

        def aread(ks, which):
            base, addr = ((AK, 134), (AS, 135), (AC, 136))[which]
            for hf in range(2):
                a.lds("ds_read_b64_tr_b16 %s, v%d offset:%d"
                      % (vr(base + 4 * (ks & 1) + 2 * hf, 2), addr, ks * 1024 + hf * 256), "f%d_%d" % (ks, which))

        merge = self.opt.get("merge", 1)
        for st in range(4):
            if not (merge and st == 3):
                a.wait_vm("s1_%d" % (3 if merge and st == 2 else st))
                self.barrier()
            for q4 in range(4):
                a.lds("ds_read_b128 %s, v%d offset:%d" % (vr(BF + 4 * q4, 4), 128 + q4, LQ + st * 4096), "b")
            for which in range(3):
                aread(4 * st, which)
            self.fill(1)
            a.wait_lg("b")
            for j in range(16):
                a("v_dot2c_f32_bf16 v%d, s%d, v%d" % (SUM + (j & 1), sONES, BF + j))
                a("v_dot2c_f32_bf16 v%d, v%d, v%d" % (SUM + 2 + (j & 1), BF + j, BF + j))
                if j in (5, 11):
                    self.fill(1)
            for q4 in range(4):
                ks = 4 * st + q4
                b = ks & 1
                B = vr(BF + 4 * q4, 4)
                first = ks == 0
                a.wait_lg("f%d_0" % ks)
                a("%s %s, %s, %s, %s" % (MF32, vr(ACK, 16), vr(AK + 4 * b, 4), B, "0" if first else vr(ACK, 16)))
                if q4 < 3:
                    aread(ks + 1, 0)
                self.fill(1)
                a.wait_lg("f%d_1" % ks)
                a("%s %s, %s, %s, %s" % (MF32, vr(ACS, 16), vr(AS + 4 * b, 4), B, "0" if first else vr(ACS, 16)))
                if q4 < 3:
                    aread(ks + 1, 1)
                self.fill(1)
                a.wait_lg("f%d_2" % ks)
                a("%s %s, %s, %s, %s" % (MF16, vr(ACC_CS, 4), vr(AC + 4 * b, 4), vr(ONE4, 4),
                                         "0" if first else vr(ACC_CS, 4)))
                if q4 < 3:
                    aread(ks + 1, 2)
            self.stamp("s1st%d" % st)
        self.fill_all()

    def selector(self, dst):
        a = self.a
        a("v_lshrrev_b32 v26, 4, v%d" % vL)
        a("v_xor_b32 v26, v26, v%d" % vL)
        a("v_and_b32 v26, 1, v26")
        a("v_mov_b32 v27, s%d" % sONES)
        a("v_cmp_eq_u32 vcc, 0, v26")
        a("v_cndmask_b32 v%d, 0, v27, vcc" % dst)
        for i in range(1, 4):
            a("v_mov_b32 v%d, v%d" % (dst + i, dst))

    def colsum_write(self, src, sbase):
        a = self.a
        a("v_and_b32 v28, 1, v%d" % vL)
        a("v_lshlrev_b32 v28, 6, v28")
        a("v_lshrrev_b32 v29, 4, v%d" % vL)
        a("v_lshl_add_u32 v28, v29, 4, v28")
        a("v_add_u32 v28, s%d, v28" % sbase)
        self.hold += 1
        a("s_mov_b32 exec_lo, 0x30003")
        a("s_mov_b32 exec_hi, 0x30003")
        a.lds("ds_write_b128 v28, %s" % vr(src, 4))
        a("s_mov_b64 exec, -1")
        self.hold -= 1

    def q_tile_read(self):
        a = self.a
        self.feat0(sE, sKH, 0)
        a("s_lshr_b32 s%d, s%d, 8" % (sA, sE))
        a("s_lshl_b32 s%d, s%d, 1" % (sB, sTH))
        a("s_add_u32 s%d, s%d, s%d" % (sA, sA, sB))
        a("s_lshl_b32 s%d, s%d, 14" % (sA, sA))
        a("s_lshr_b32 s%d, s%d, 6" % (sB, sE))
        a("s_sub_u32 s%d, s%d, s%d" % (sB, sB, sROT))
        a("s_and_b32 s%d, s%d, 3" % (sB, sB))
        a("s_lshl_b32 s%d, s%d, 12" % (sB, sB))
        a("s_add_u32 s%d, s%d, s%d" % (sA, sA, sB))
        a("s_bfe_u32 s%d, s%d, 0x10005" % (sB, sE))
        a("s_lshl_b32 s%d, s%d, 2" % (sB, sB))
        a("v_bfe_u32 v26, v%d, 1, 3" % vN31)
        a("v_xor_b32 v26, s%d, v26" % sB)
        a("v_lshlrev_b32 v27, 7, v%d" % vN31)
        a("v_lshl_add_u32 v27, v%d, 3, v27" % vHH)
        a("v_add_u32 v27, s%d, v27" % sA)
        for j in range(4):
            a("v_xor_b32 v28, %d, v26" % j)
            a("v_lshl_add_u32 v28, v28, 4, v27")
            a.lds("ds_read_b64 %s, v28 offset:%d" % (vr(vQ + 2 * j, 2), LQ), "qt")

    def gelu(self, X, n, vA13, vIA, T, out, fills=0):
        a = self.a
        for g0 in range(0, n // 2, 4):
            ps = list(range(g0, min(g0 + 4, n // 2)))
            t = lambda p: T + 4 * (p - g0)
            x = lambda p: vr(X + 2 * p, 2)
            left = fills

            def hook():
                nonlocal left
                if left > 0:
                    self.fill(1)
                    left -= 1
            for p in ps:
                a("v_pk_mul_f32 %s, %s, %s" % (vr(t(p), 2), x(p), x(p)))
            for p in ps:
                a("v_pk_fma_f32 %s, %s, %s, %s op_sel:[0,1,0] op_sel_hi:[1,1,0]"
                  % (vr(t(p), 2), vr(t(p), 2), vr(vA13, 2), vr(vA13, 2)))
            hook()
            for p in ps:
                a("v_pk_mul_f32 %s, %s, %s" % (vr(t(p), 2), vr(t(p), 2), x(p)))
            for p in ps:
                a("v_exp_f32 v%d, v%d" % (t(p) + 2, t(p)))
                a("v_exp_f32 v%d, v%d" % (t(p) + 3, t(p) + 1))
            hook()
            for p in ps:
                a("v_pk_fma_f32 %s, %s, %s, %s op_sel_hi:[1,0,0]"
                  % (vr(t(p), 2), vr(t(p) + 2, 2), vr(vIA, 2), vr(vIA, 2)))
            hook()
            for p in ps:
                a("v_rcp_f32 v%d, v%d" % (t(p) + 2, t(p)))
                a("v_rcp_f32 v%d, v%d" % (t(p) + 3, t(p) + 1))
            hook()
            for p in ps:
                a("v_pk_mul_f32 %s, %s, %s" % (vr(t(p), 2), vr(t(p) + 2, 2), x(p)))
            for p in ps:
                a("v_cvt_pk_bf16_f32 v%d, v%d, v%d" % (out + p, t(p), t(p) + 1))

    def gelu_consts(self, vA, dst):
        a = self.a
        a("v_mul_f32 v%d, s%d, v%d" % (dst, sKG1, vA))
        a("v_mul_f32 v%d, v%d, v%d" % (dst + 1, vA, vA))
        a("v_mul_f32 v%d, v%d, v%d" % (dst + 1, dst + 1, vA))
        a("v_mul_f32 v%d, s%d, v%d" % (dst + 1, sKG3, dst + 1))
        a("v_rcp_f32 v%d, v%d" % (dst + 2, vA))

    def exchange_write(self, send, base=LRED):
        a = self.a
        a("s_lshl_b32 s%d, s%d, 12" % (sA, sW))
        a("s_add_u32 s%d, s%d, %d" % (sA, sA, base))
        a("v_add_u32 v26, s%d, v%d" % (sA, vL16))
        for j in range(4):
            a.lds("ds_write_b128 v26, %s offset:%d" % (vr(send + 4 * j, 4), 1024 * j))

    def exchange_read(self, dst, base=LRED):
        a = self.a
        a("s_xor_b32 s%d, s%d, 1" % (sA, sW))
        a("s_lshl_b32 s%d, s%d, 12" % (sA, sA))
        a("s_add_u32 s%d, s%d, %d" % (sA, sA, base))
        a("v_add_u32 v26, s%d, v%d" % (sA, vL16))
        for j in range(4):
            a.lds("ds_read_b128 %s, v26 offset:%d" % (vr(dst + 4 * j, 4), 1024 * j), "xr")

    def s1_epilogue(self):
        a = self.a
        ACK, ACS, ACC_CS, SUM = self.ACK, self.ACS, self.ACC_CS, self.SUM
        self.q_tile_read()
        a("v_add_f32 v%d, v%d, v%d" % (SUM, SUM, SUM + 1))
        a("v_add_f32 v%d, v%d, v%d" % (SUM + 2, SUM + 2, SUM + 3))
        a("v_permlane32_swap_b32 v%d, v%d" % (SUM, SUM + 2))
        a("v_add_f32 v%d, v%d, v%d" % (SUM, SUM, SUM + 2))
        a("s_lshl_b32 s%d, s%d, 8" % (sA, sW))
        a("s_add_u32 s%d, s%d, %d" % (sA, sA, LSTX))
        a("v_lshl_add_u32 v27, v%d, 2, s%d" % (vL, sA))
        a.lds("ds_write_b32 v27, v%d" % SUM)
        self.exchange_write(ACS)
        a("s_xor_b32 s%d, s%d, s%d" % (sA, sKH, sTH))
        a("s_lshl_b32 s%d, s%d, 8" % (sA, sA))
        a("s_lshl_b32 s%d, s%d, 7" % (sB, sKH))
        a("s_add_u32 s%d, s%d, s%d" % (sA, sA, sB))
        a("s_add_u32 s%d, s%d, %d" % (sA, sA, LCSX))
        self.colsum_write(ACC_CS, sA)
        a.wait_lg_all()
        self.ssm_d_unpack()
        self.barrier()
        P, C0, C1 = 80, 96, 128
        self.exchange_read(P)
        a("s_xor_b32 s%d, s%d, 1" % (sA, sW))
        a("s_lshl_b32 s%d, s%d, 8" % (sA, sA))
        a("s_add_u32 s%d, s%d, %d" % (sA, sA, LSTX))
        a("v_lshl_add_u32 v27, v%d, 2, s%d" % (vL, sA))
        a.lds("ds_read_b32 v%d, v27" % (SUM + 1), "sx")
        a("s_lshl_b32 s%d, s%d, 8" % (sA, sKH))
        a("s_add_u32 s%d, s%d, %d" % (sA, sA, LCSX))
        a("v_lshl_add_u32 v28, v%d, 4, s%d" % (vHH, sA))
        for j in range(4):
            a.lds("ds_read_b128 %s, v28 offset:%d" % (vr(C0 + 4 * j, 4), 32 * j))
            a.lds("ds_read_b128 %s, v28 offset:%d" % (vr(C1 + 4 * j, 4), 128 + 32 * j))
        self.w3_setup()
        self.paced([self.dma_item(S_W2, vW64, sW2L, grp * 1024, sW2G, grp * 16384, "w2") for grp in range(16)]
                   + self.w3_items([0, 1]), self.opt.get("iv1", 100))
        pre = 0
        a.wait_lg("sx")
        a("v_add_f32 v%d, v%d, v%d" % (SUM, SUM, SUM + 1))
        a("v_mov_b32 v%d, v%d" % (SUM + 2, SUM))
        a("v_permlane32_swap_b32 v%d, v%d" % (SUM, SUM + 2))
        a("v_mul_f32 v%d, s%d, v%d" % (vMEAN, s512I, SUM))
        a("v_mul_f32 v26, s%d, v%d" % (s512I, SUM + 2))
        a("v_fma_f32 v26, -v%d, v%d, v26" % (vMEAN, vMEAN))
        a("v_max_f32 v26, 0, v26")
        a("v_add_f32 v27, s%d, v26" % sEPS)
        a("v_rsq_f32 v%d, v27" % vR1)
        a("v_mul_f32 v27, v%d, v%d" % (vR1, vR1))
        a("v_fma_f32 v27, v27, v26, s%d" % sEPS)
        a("v_rsq_f32 v27, v27")
        a("v_mul_f32 v27, v27, v%d" % vR1)
        G = 112
        self.gelu_consts(27, G)
        a("v_sub_f32 v%d, 0, v%d" % (G + 4, vMEAN))
        a.wait_lg_all()
        for p in range(8):
            a("v_pk_add_f32 %s, %s, %s" % (vr(C0 + 2 * p, 2), vr(C0 + 2 * p, 2), vr(C1 + 2 * p, 2)))
            a("v_pk_add_f32 %s, %s, %s" % (vr(ACK + 2 * p, 2), vr(ACK + 2 * p, 2), vr(P + 2 * p, 2)))
        for p in range(8):
            a("v_pk_fma_f32 %s, %s, %s, %s op_sel_hi:[1,0,1]"
              % (vr(ACK + 2 * p, 2), vr(C0 + 2 * p, 2), vr(G + 4, 2), vr(ACK + 2 * p, 2)))
        self.gelu(ACK, 16, G, G + 2, 144, 48, fills=max(0, (pre - 2) // 2))
        self.frag_store(48, WS_HS, "hst")

    def frag_store(self, src, base, tag):
        a = self.a
        a("s_lshl_b32 s%d, s%d, 15" % (sA, sT))
        self.feat0(sB, sKH, 6)
        a("s_add_u32 s%d, s%d, s%d" % (sA, sA, sB))
        a("s_add_u32 s%d, s%d, 0x%x" % (sA, sA, base))
        a.vmem("buffer_store_dwordx4 %s, v%d, %s, s%d offen sc1" % (vr(src, 4), vL16, sr(S_WS, 4), sA), tag)
        a.vmem("buffer_store_dwordx4 %s, v%d, %s, s%d offen offset:1024 sc1"
               % (vr(src + 4, 4), vL16, sr(S_WS, 4), sA), tag)

    PK = 118

    def p0_compute(self, mid=None):
        a = self.a
        K, V, SH, KV, PK = 56, 78, 94, 102, self.PK
        a.wait_vm("p0", "nonce")
        a("v_readfirstlane_b32 s%d, v30" % sN)
        a("s_mul_i32 s%d, s%d, 0x9e3779b1" % (sN, sN))
        a("s_add_u32 s%d, s%d, 0x7f4a7c15" % (sN, sN))
        d = self.SHRAW
        for j, (x, y, hi) in enumerate([(d, d + 2, 0), (d, d + 2, 1), (d + 1, d + 3, 0), (d + 1, d + 3, 1)]):
            for o, src in ((0, x), (1, y)):
                if hi:
                    a("v_and_b32 v%d, s%d, v%d" % (SH + 2 * j + o, sHI, src))
                else:
                    a("v_lshlrev_b32 v%d, 16, v%d" % (SH + 2 * j + o, src))
        for i in range(11):
            a("v_lshlrev_b32 v%d, 16, v%d" % (K + 2 * i, self.KRAW + i))
            a("v_and_b32 v%d, s%d, v%d" % (K + 2 * i + 1, sHI, self.KRAW + i))
            if i % 4 == 3:
                self.fill(1)
        for i in range(8):
            a("v_lshlrev_b32 v%d, 16, v%d" % (V + 2 * i, self.VRAW + i))
            a("v_and_b32 v%d, s%d, v%d" % (V + 2 * i + 1, sHI, self.VRAW + i))
        self.fill(1)
        for t in range(8):
            a("v_pk_mul_f32 %s, %s, %s" % (vr(KV + 2 * t, 2), vr(K + 2 * (t + 3), 2), vr(SH, 2)))
        self.fill(1)
        for j in range(1, 4):
            for t in range(8):
                a("v_pk_fma_f32 %s, %s, %s, %s" % (vr(KV + 2 * t, 2), vr(K + 2 * (t + 3 - j), 2), vr(SH + 2 * j, 2),
                                                   vr(KV + 2 * t, 2)))
            self.fill(1)
        if mid:
            mid()
            self.fill(4)
        for t in range(8):
            a("v_pk_mul_f32 %s, %s, %s" % (vr(KV + 2 * t, 2), vr(KV + 2 * t, 2), vr(V + 2 * t, 2)))
        self.fill(1)
        for c in range(2):
            for t in range(4):
                a("v_cvt_pk_bf16_f32 v%d, v%d, v%d" % (PK + 4 * c + t, KV + 4 * t + c, KV + 4 * t + 2 + c))
        a("s_lshl_b32 s%d, s%d, 1" % (sA, sW))
        a("v_add_u32 v26, s%d, v%d" % (sA, vHH))
        a("v_and_b32 v27, 7, v%d" % vN31)
        a("v_xor_b32 v26, v26, v27")
        a("v_lshlrev_b32 v26, 4, v26")
        a("v_lshl_add_u32 v26, v%d, 8, v26" % vN31)
        a("v_add_u32 v26, %d, v26" % LSTG)
        a.lds("ds_write_b128 v26, %s" % vr(PK, 4))
        a.lds("ds_write_b128 v26, %s offset:128" % vr(PK + 4, 4))
        self.fill_all()

    def p0_readback(self):
        a = self.a
        PK = self.PK
        a("v_lshrrev_b32 v26, 3, v%d" % vL)
        a("s_lshl_b32 s%d, s%d, 4" % (sA, sW))
        a("v_add_u32 v26, s%d, v26" % sA)
        a("v_and_b32 v27, 7, v%d" % vL)
        for i in range(2):
            a("v_add_u32 v28, %d, v26" % (8 * i))
            a("v_bfe_u32 v29, v28, 1, 3")
            a("v_xor_b32 v29, v29, v27")
            a("v_lshlrev_b32 v29, 4, v29")
            a("v_lshl_add_u32 v29, v28, 7, v29")
            a("v_add_u32 v29, %d, v29" % LSTG)
            a.lds("ds_read_b128 %s, v29" % vr(PK + 4 * i, 4), "pk")
        a("v_lshlrev_b32 v27, 4, v27")
        a("v_lshl_add_u32 v126, v26, 12, v27")

    def p0_store(self):
        a = self.a
        PK = self.PK
        a("s_lshl_b32 s%d, s%d, 18" % (sA, sCP0))
        a("s_lshl_b32 s%d, s%d, 7" % (sB, sR))
        a("s_add_u32 s%d, s%d, s%d" % (sA, sA, sB))
        a("s_add_u32 s%d, s%d, 0x%x" % (sA, sA, WS_KVT))
        a("s_add_u32 s%d, s%d, 0x8000" % (sB, sA))
        a.wait_lg("pk")
        a.vmem("buffer_store_dwordx4 %s, v126, %s, s%d offen sc1" % (vr(PK, 4), sr(S_WS, 4), sA), "kvt")
        a.vmem("buffer_store_dwordx4 %s, v126, %s, s%d offen sc1" % (vr(PK + 4, 4), sr(S_WS, 4), sB), "kvt")

    def conv_filter_loads(self):
        a = self.a
        a("v_lshlrev_b32 v26, 4, v%d" % vTID)
        a("v_subrev_u32 v27, 8, v26")
        a("v_mov_b32 v28, 0x%x" % OOB)
        a("v_cmp_eq_u32 vcc, 0, v%d" % vTID)
        a("v_cndmask_b32 v27, v27, v28, vcc")
        for ch in range(2):
            r = vCH + 10 * ch
            a("s_lshl_b32 s%d, s2, 13" % sA)
            if ch:
                a("s_add_u32 s%d, s%d, 0x1000" % (sA, sA))
            a.vmem("buffer_load_dwordx4 %s, v26, %s, s%d offen" % (vr(r, 4), sr(S_SSM, 4), sA), "cf")
            a.vmem("buffer_load_dwordx2 %s, v27, %s, s%d offen" % (vr(r + 4, 2), sr(S_SSM, 4), sA), "cf")

    def ssm_d_load(self):
        a = self.a
        a("s_lshl_b32 s%d, s2, 2" % sA)
        a("s_load_dword s%d, %s, s%d" % (sD0, sr(S_DPTR, 2), sA))

    def ssm_d_unpack(self):
        a = self.a
        a("s_and_b32 s%d, s%d, s%d" % (sD1, sD0, sHI))
        a("s_lshl_b32 s%d, s%d, 16" % (sD0, sD0))

    def conv_x_loads(self):
        a = self.a
        a("v_lshlrev_b32 v26, 4, v%d" % vTID)
        for ch in range(2):
            a("s_lshl_b32 s%d, s2, 13" % sA)
            a("s_add_u32 s%d, s%d, 0x%x" % (sA, sA, WS_KVT + 0x1000 * ch))
            a.vmem("buffer_load_dwordx4 %s, v26, %s, s%d offen sc1" % (vr(vCH + 10 * ch + 6, 4), sr(S_WS, 4), sA), "cx")

    def conv_prep_filter(self, ch):
        a = self.a
        base = CV_BASE1 if ch else CV_BASE
        r = vCH + 10 * ch
        A, P = r, r + 4
        a.wait_vm("cf")
        a("v_min_u32 v26, 79, v%d" % vTID)
        a("v_subrev_u32 v27, 72, v26")
        a("v_lshrrev_b32 v28, 1, v27")
        a("v_mul_u32_u24 v28, 4128, v28")
        a("v_and_b32 v27, 1, v27")
        a("v_lshl_add_u32 v28, v27, 4, v28")
        a("v_add_u32 v28, %d, v28" % (base + CV_A))
        a("v_lshlrev_b32 v27, 4, v26")
        a("v_add_u32 v27, %d, v27" % (base + CV_X))
        a("v_cmp_gt_u32 vcc, 72, v26")
        a("v_cndmask_b32 v28, v28, v27, vcc")
        for i in range(4):
            a("v_mov_b32 v%d, 0" % (32 + i))
        a.lds("ds_write_b128 v28, %s" % vr(32, 4))
        Z, Y, W = 36, 40, 44
        seq = [P, P + 1, A, A + 1, A + 2, A + 3]
        for j in range(4):
            a("v_alignbit_b32 v%d, v%d, v%d, 16" % (Z + j, seq[j + 1], seq[j]))
            a("v_alignbit_b32 v%d, v%d, v%d, 16" % (Y + j, seq[j + 2], seq[j + 1]))
            a("v_mov_b32 v%d, v%d" % (W + j, seq[j + 1]))
        a("v_lshlrev_b32 v29, 4, v%d" % vTID)
        a("v_add_u32 v29, %d, v29" % base)
        for rho, src in ((0, A), (1, Y), (2, W), (3, Z)):
            a.lds("ds_write_b128 v29, %s offset:%d" % (vr(src, 4), CV_A + 32 + 4128 * rho))

    def conv_prep_x(self, ch):
        a = self.a
        base = CV_BASE1 if ch else CV_BASE
        a.wait_vm("cx")
        a("v_lshlrev_b32 v29, 4, v%d" % vTID)
        a("v_add_u32 v29, %d, v29" % base)
        a.lds("ds_write_b128 v29, %s offset:%d" % (vr(vCH + 10 * ch + 6, 4), CV_XD))
        a.wait_lg_all()
        self.barrier()
        a("s_lshl_b32 s%d, s%d, 5" % (sA, sW))
        a("s_sub_u32 s%d, %d, s%d" % (sA, base + CV_XD - 1024, sA))
        a("v_lshl_add_u32 v26, v%d, 3, s%d" % (vL, sA))
        for u in range(10):
            a.lds("ds_read_b64_tr_b16 %s, v26 offset:%d" % (vr(32 + 2 * u, 2), 512 * u), "u%d" % u)
        a("s_mul_i32 s%d, s%d, 5312" % (sA, sW))
        a("s_add_u32 s%d, s%d, %d" % (sA, sA, base + CV_P))
        a("v_and_b32 v27, 15, v%d" % vL)
        a("v_mul_u32_u24 v27, 328, v27")
        a("v_lshrrev_b32 v28, 4, v%d" % vL)
        a("v_lshl_add_u32 v27, v28, 3, v27")
        a("v_add_u32 v27, s%d, v27" % sA)
        self.fill(2)
        for u in range(10):
            a.wait_lg("u%d" % u)
            a.lds("ds_write_b64 v27, %s offset:%d" % (vr(32 + 2 * u, 2), 32 * u))
        a("s_lshl_b32 s%d, s%d, 3" % (sA, sW))
        a("s_sub_u32 s%d, %d, s%d" % (sA, base + CV_A + 32, sA))
        a("v_lshl_add_u32 v160, v%d, 3, s%d" % (vL, sA))
        a("s_mul_i32 s%d, s%d, 1312" % (sA, sW))
        a("s_add_u32 s%d, s%d, %d" % (sA, sA, base + CV_P + 32))
        a("v_bfe_u32 v26, v%d, 2, 2" % vL)
        a("v_mul_u32_u24 v26, 5312, v26")
        a("v_and_b32 v27, 3, v%d" % vL)
        a("v_lshrrev_b32 v28, 4, v%d" % vL)
        a("v_sub_u32 v27, v27, v28")
        a("v_lshl_add_u32 v26, v27, 3, v26")
        a("v_add_u32 v161, s%d, v26" % sA)
        self.fill(2)
        a.wait_lg_all()
        self.barrier()

    CACC, CAF, CBF = 32, 64, 96

    def conv_main(self, hook=None, fill_every=0):
        a = self.a
        CACC, CAF, CBF = self.CACC, self.CAF, self.CBF

        def rd_list(rho):
            b = rho & 1
            out = []
            order = [("A", 0)] + [("B", c) for c in range(8)] + [("A", 1), ("A", 2), ("A", 3)]
            for kind, i in order:
                for hf in range(2):
                    if kind == "A":
                        out.append("ds_read_b64_tr_b16 %s, v160 offset:%d"
                                   % (vr(CAF + 16 * b + 4 * i + 2 * hf, 2), 4128 * rho + 1024 * i + 512 * hf))
                    else:
                        out.append("ds_read_b64_tr_b16 %s, v161 offset:%d"
                                   % (vr(CBF + 32 * b + 4 * i + 2 * hf, 2), 328 * rho + 32 * i + 32 * (1 - hf)))
            return out

        for x in rd_list(0):
            a.lds(x)
        a.wait_lg_all()
        cnt = 0
        for rho in range(4):
            if hook:
                hook(rho)
            b = rho & 1
            nxt = rd_list(rho + 1) if rho < 3 else []
            k = 0
            for q in range(4):
                for c in range(8 - 2 * q):
                    t = c + 2 * q
                    acc = vr(CACC + 4 * t, 4)
                    a("%s %s, %s, %s, %s" % (MF16, acc, vr(CAF + 16 * b + 4 * q, 4), vr(CBF + 32 * b + 4 * c, 4),
                                             "0" if (rho == 0 and q == 0) else acc))
                    for _ in range(2 if k < 8 else 1):
                        if nxt:
                            a.lds(nxt.pop(0))
                    k += 1
                    cnt += 1
                    if fill_every and cnt % fill_every == 0:
                        self.fill(1)
            assert not nxt
            a.wait_lg_all()

    def conv_finish(self, ch):
        a = self.a
        base = CV_BASE1 if ch else CV_BASE
        CACC = self.CACC
        self.barrier()
        a("s_lshl_b32 s%d, s%d, 11" % (sA, sW))
        a("s_add_u32 s%d, s%d, %d" % (sA, sA, base + CV_R))
        a("v_add_u32 v26, s%d, v%d" % (sA, vL16))
        for t in range(8):
            a.lds("ds_write_b128 v26, %s offset:%d" % (vr(CACC + 4 * t, 4), (t >> 1) * 8192 + (t & 1) * 1024))
        a("s_lshl_b32 s%d, s%d, 10" % (sA, sW))
        a("s_add_u32 s%d, s%d, %d" % (sA, sA, base + CV_XD))
        a("v_and_b32 v27, 15, v%d" % vL)
        a("v_lshlrev_b32 v27, 5, v27")
        a("v_lshrrev_b32 v28, 4, v%d" % vL)
        a("v_lshl_add_u32 v27, v28, 3, v27")
        a("v_add_u32 v27, s%d, v27" % sA)
        for u in range(2):
            a.lds("ds_read_b64 %s, v27 offset:%d" % (vr(100 + 2 * u, 2), 512 * u))
        a.wait_lg_all()
        self.barrier()
        a("s_lshl_b32 s%d, s%d, 13" % (sA, sW))
        a("s_add_u32 s%d, s%d, %d" % (sA, sA, base + CV_R))
        a("v_add_u32 v26, s%d, v%d" % (sA, vL16))
        for sl in range(4):
            for u in range(2):
                a.lds("ds_read_b128 %s, v26 offset:%d" % (vr(64 + 8 * sl + 4 * u, 4), sl * 2048 + u * 1024))
        for u in range(2):
            for j in range(2):
                a("v_lshlrev_b32 v%d, 16, v%d" % (104 + 4 * u + 2 * j, 100 + 2 * u + j))
                a("v_and_b32 v%d, s%d, v%d" % (105 + 4 * u + 2 * j, sHI, 100 + 2 * u + j))
        a("v_mov_b32 v112, s%d" % (sD1 if ch else sD0))
        a("v_lshrrev_b32 v26, 4, v%d" % vL)
        a("v_and_b32 v27, 1, v26")
        a("v_lshlrev_b32 v27, 9, v27")
        a("v_lshrrev_b32 v26, 1, v26")
        a("v_lshl_add_u32 v27, v26, 4, v27")
        a("v_and_b32 v26, 15, v%d" % vL)
        a("v_lshl_add_u32 v27, v26, 5, v27")
        a("s_lshl_b32 s%d, s%d, 10" % (sA, sW))
        a("v_add_u32 v27, s%d, v27" % sA)
        a("s_lshl_b32 s%d, s2, 13" % sA)
        a("s_add_u32 s%d, s%d, 0x%x" % (sA, sA, WS_YT + 0x1000 * ch))
        a.wait_lg_all()
        for p in range(4):
            a("v_pk_add_f32 %s, %s, %s" % (vr(64 + 2 * p, 2), vr(64 + 2 * p, 2), vr(72 + 2 * p, 2)))
            a("v_pk_add_f32 %s, %s, %s" % (vr(80 + 2 * p, 2), vr(80 + 2 * p, 2), vr(88 + 2 * p, 2)))
        for p in range(4):
            a("v_pk_add_f32 %s, %s, %s" % (vr(64 + 2 * p, 2), vr(64 + 2 * p, 2), vr(80 + 2 * p, 2)))
        for p in range(4):
            a("v_pk_fma_f32 %s, %s, %s, %s op_sel_hi:[1,0,1]" % (vr(64 + 2 * p, 2), vr(104 + 2 * p, 2), vr(112, 2),
                                                                vr(64 + 2 * p, 2)))
        for p in range(4):
            a("v_cvt_pk_bf16_f32 v%d, v%d, v%d" % (116 + p, 64 + 2 * p, 65 + 2 * p))
        a("v_permlane16_swap_b32 v116, v118")
        a("v_permlane16_swap_b32 v117, v119")
        a.vmem("buffer_store_dwordx4 %s, v27, %s, s%d offen sc1" % (vr(116, 4), sr(S_WS, 4), sA), "yt")

    def s2_load_items(self):
        a = self.a
        a("s_lshl_b32 s%d, s%d, 5" % (sA, sT))
        a("v_add_u32 v26, s%d, v%d" % (sA, vN31))
        a("s_add_u32 s%d, s%d, 1" % (sB, sKH))
        a("s_lshl_b32 s%d, s%d, 14" % (sA, sKH))
        a("s_add_u32 s%d, s%d, 0x%x" % (sA, sA, WS_HS))
        a("v_mov_b32 v29, 0x%x" % OOB)
        for i, op in enumerate(("v_subrev_u32", "v_add_u32")):
            a("%s v27, s%d, v26" % (op, sB))
            a("v_lshrrev_b32 v28, 5, v27")
            a("v_lshlrev_b32 v28, 15, v28")
            a("v_and_b32 v30, 31, v27")
            a("v_lshl_add_u32 v30, v%d, 5, v30" % vHH)
            a("v_lshl_add_u32 v28, v30, 4, v28")
            a("v_add_u32 v28, s%d, v28" % sA)
            a("v_cmp_gt_u32 vcc, 0x800, v27")
            a("v_cndmask_b32 v%d, v29, v28, vcc" % (140 + i))
        so = ["0", "s%d" % sK4, "s%d" % sK8, "s%d" % sK12]
        items = []
        for ks in range(16):
            def f(ks=ks):
                a.vmem("buffer_load_dwordx4 %s, v%d, %s, %s offen offset:%d sc1"
                       % (ar(4 * ks, 4), 140 + (ks >> 3), sr(S_WS, 4), so[ks >> 2], (ks & 3) * 1024), "h%d" % ks)
            items.append(f)
        return items

    def wpi_addr(self, vk, vs, base, khs, ps):
        a = self.a
        a("s_mul_i32 s%d, s%d, %d" % (sA, sKH, khs + ps))
        a("s_add_u32 s%d, s%d, %d" % (sA, sA, base))
        a("v_add_u32 v%d, s%d, v%d" % (vk, sA, vWP))
        a("s_mul_i32 s%d, s%d, %d" % (sA, sKH, khs - ps))
        a("s_add_u32 s%d, s%d, %d" % (sA, sA, base + ps))
        a("v_add_u32 v%d, s%d, v%d" % (vs, sA, vWP))

    def s2_main(self):
        a = self.a
        ACK, ACS, AK, AS = self.ACK, self.ACS, self.AK, self.AS

        def rd(ks, which):
            base, addr = ((AK, 128), (AS, 129))[which]
            for hf in range(2):
                a.lds("ds_read_b64_tr_b16 %s, v%d offset:%d" % (vr(base + 4 * (ks & 1) + 2 * hf, 2), addr,
                                                                ks * 1024 + hf * 512), "f%d_%d" % (ks, which))
        rd(0, 0)
        rd(0, 1)
        for ks in range(16):
            b = ks & 1
            a.wait_both("h%d" % ks, "f%d_0" % ks)
            a("%s %s, %s, %s, %s" % (MF32, vr(ACK, 16), vr(AK + 4 * b, 4), ar(4 * ks, 4), "0" if ks == 0 else vr(ACK, 16)))
            if ks < 15:
                rd(ks + 1, 0)
            self.fill(1)
            a.wait_lg("f%d_1" % ks)
            a("%s %s, %s, %s, %s" % (MF32, vr(ACS, 16), vr(AS + 4 * b, 4), ar(4 * ks, 4), "0" if ks == 0 else vr(ACS, 16)))
            if ks < 15:
                rd(ks + 1, 1)
            if ks == 12:
                self.idx_p0()
                self.poll_issue(F_P0, "pp0")

    def unpack8(self, src, dst):
        a = self.a
        for j in range(8):
            a("v_lshlrev_b32 v%d, 16, v%d" % (dst + 2 * j, src + j))
            a("v_and_b32 v%d, s%d, v%d" % (dst + 2 * j + 1, sHI, src + j))

    def xn_tile(self, dst):
        a = self.a
        self.unpack8(vQ, dst)
        for p in range(8):
            a("v_pk_add_f32 %s, %s, %s op_sel_hi:[1,0] neg_lo:[0,1] neg_hi:[0,1]"
              % (vr(dst + 2 * p, 2), vr(dst + 2 * p, 2), vr(vMEAN, 2)))
        for p in range(8):
            a("v_pk_mul_f32 %s, %s, %s op_sel:[0,1] op_sel_hi:[1,1]"
              % (vr(dst + 2 * p, 2), vr(dst + 2 * p, 2), vr(vMEAN, 2)))

    def s2_epilogue(self):
        a = self.a
        ACK, ACS = self.ACK, self.ACS
        self.exchange_write(ACS)
        self.xn_tile(96)
        a.wait_lg_all()
        self.barrier()
        self.exchange_read(80)
        for p in range(8):
            a("v_pk_add_f32 %s, %s, %s" % (vr(ACK + 2 * p, 2), vr(ACK + 2 * p, 2), vr(96 + 2 * p, 2)))
        a.wait_lg_all()
        for p in range(8):
            a("v_pk_add_f32 %s, %s, %s" % (vr(ACK + 2 * p, 2), vr(ACK + 2 * p, 2), vr(80 + 2 * p, 2)))
        for p in range(8):
            a("v_cvt_pk_bf16_f32 v%d, v%d, v%d" % (vX1 + p, ACK + 2 * p, ACK + 2 * p + 1))
        self.frag_store(vX1, WS_X1, "x1st")
        a("v_pk_mul_f32 %s, %s, %s" % (vr(112, 2), vr(ACK, 2), vr(ACK, 2)))
        a("v_pk_add_f32 %s, %s, %s" % (vr(114, 2), vr(ACK, 2), vr(ACK + 2, 2)))
        for p in range(1, 8):
            a("v_pk_fma_f32 %s, %s, %s, %s" % (vr(112, 2), vr(ACK + 2 * p, 2), vr(ACK + 2 * p, 2), vr(112, 2)))
            if p >= 2:
                a("v_pk_add_f32 %s, %s, %s" % (vr(114, 2), vr(114, 2), vr(ACK + 2 * p, 2)))
        a("v_add_f32 v114, v114, v115")
        a("v_add_f32 v112, v112, v113")
        a("v_permlane32_swap_b32 v114, v112")
        a("v_add_f32 v114, v114, v112")
        a("s_lshl_b32 s%d, s%d, 1" % (sA, sC))
        a("s_add_u32 s%d, s%d, s%d" % (sA, sA, sKH))
        a("s_lshl_b32 s%d, s%d, 14" % (sA, sA))
        a("s_lshl_b32 s%d, s%d, 7" % (sB, sT))
        a("s_add_u32 s%d, s%d, s%d" % (sA, sA, sB))
        a("s_add_u32 s%d, s%d, 0x%x" % (sA, sA, WS_ST))
        a("v_lshlrev_b32 v26, 13, v%d" % vHH)
        a("v_lshl_add_u32 v26, v%d, 2, v26" % vN31)
        a.vmem("buffer_store_dword v114, v26, %s, s%d offen sc1" % (sr(S_WS, 4), sA), "x1st")

    def w3_setup(self):
        a = self.a
        a("s_movk_i32 s%d, 3584" % sB)
        a("v_lshrrev_b32 v26, 2, v%d" % vL)
        a("v_mul_lo_u32 v26, v26, s%d" % sB)
        a("v_and_b32 v27, 3, v%d" % vL)
        a("v_lshl_add_u32 v%d, v27, 4, v26" % vW3F)
        a("v_lshrrev_b32 v26, 1, v%d" % vL)
        a("v_mul_lo_u32 v26, v26, s%d" % sB)
        a("v_and_b32 v27, 1, v%d" % vL)
        a("v_lshl_add_u32 v%d, v27, 4, v26" % vW3H)
        a("s_mul_i32 s%d, s%d, %d" % (sW3HG, sW, 128 * 3584))
        a("s_mul_i32 s%d, s%d, 224" % (sA, sCP))
        a("s_add_u32 s%d, s%d, s%d" % (sW3HG, sW3HG, sA))
        a("s_and_b32 s%d, s%d, 1" % (sB, sCP))
        a("s_lshl_b32 s%d, s%d, 5" % (sW3G, sB))
        a("s_add_u32 s%d, s%d, s%d" % (sW3G, sW3G, sW3HG))
        a("s_xor_b32 s%d, s%d, 1" % (sB, sB))
        a("s_mul_i32 s%d, s%d, 192" % (sB, sB))
        a("s_add_u32 s%d, s%d, s%d" % (sW3HG, sW3HG, sB))
        a("s_lshl_b32 s%d, s%d, 13" % (sW3L, sW))
        a("s_lshl_b32 s%d, s%d, 12" % (sW3HL, sW))

    def w3_items(self, panels):
        out = []
        for p in panels:
            if p < 3:
                for i in range(8):
                    out.append(self.dma_item(S_W3, vW3F, sW3L, W3_P + p * 32768 + i * 1024, sW3G,
                                             p * 64 + i * 16 * 3584, "w3"))
            else:
                for i in range(4):
                    out.append(self.dma_item(S_W3, vW3H, sW3HL, W3_H + i * 1024, sW3HG, i * 32 * 3584, "w3"))
        return out

    def s3_load_items(self):
        a = self.a
        a("s_lshl_b32 s%d, s%d, 15" % (sLD, sT3))
        a("s_add_u32 s%d, s%d, 0x%x" % (sLD, sLD, WS_X1))
        items = []
        for ks in range(32):
            def f(ks=ks):
                if ks and ks % 4 == 0:
                    a("s_add_u32 s%d, s%d, 0x1000" % (sLD, sLD))
                a.vmem("buffer_load_dwordx4 %s, v%d, %s, s%d offen offset:%d sc1"
                       % (ar(4 * ks, 4), vL16, sr(S_WS, 4), sLD, (ks & 3) * 1024), "x%d" % ks)
            items.append(f)
        return items

    def s3_stat_items(self):
        a = self.a
        a("v_lshlrev_b32 v147, 13, v%d" % vHH)
        a("v_lshl_add_u32 v147, v%d, 2, v147" % vN31)
        items = []
        for sl in range(16):
            def f(sl=sl):
                a("s_lshl_b32 s%d, s%d, 7" % (sSO, sT3))
                a("s_add_u32 s%d, s%d, 0x%x" % (sSO, sSO, WS_ST + 0x4000 * sl))
                a.vmem("buffer_load_dword v%d, v147, %s, s%d offen sc1" % (176 + sl, sr(S_WS, 4), sSO), "st")
            items.append(f)
        return items

    def s3_addr(self):
        a = self.a
        a("v_add_u32 v144, %d, v%d" % (W3_P, vWP))
        a("v_add_u32 v145, %d, v%d" % (W3_P + 65536, vWP))
        a("v_bfe_u32 v26, v%d, 2, 2" % vL)
        a("v_lshl_add_u32 v26, v%d, 2, v26" % vHH)
        a("v_and_b32 v27, 3, v%d" % vL)
        a("v_lshlrev_b32 v27, 3, v27")
        a("v_lshl_add_u32 v26, v26, 5, v27")
        a("v_add_u32 v146, %d, v26" % W3_H)

    @staticmethod
    def w3_read(p, ks, hf, dst):
        if p < 2:
            return "ds_read_b64_tr_b16 %s, v144 offset:%d" % (vr(dst, 2), p * 32768 + ks * 1024 + hf * 512)
        if p == 2:
            return "ds_read_b64_tr_b16 %s, v145 offset:%d" % (vr(dst, 2), ks * 1024 + hf * 512)
        return "ds_read_b64_tr_b16 %s, v146 offset:%d" % (vr(dst, 2), ks * 512 + hf * 256)

    def s3_colsum(self):
        self.hold += 1
        self._s3_colsum()
        self.hold -= 1

    def _s3_colsum(self):
        a = self.a
        full = a.newlabel("csfull")
        done = a.newlabel("csdone")
        self.selector(120)
        a("s_cmp_lt_u32 s%d, 3" % sW)
        a("s_cbranch_scc1 %s" % full)
        for is_full in (False, True):
            if is_full:
                a.label(full)
                a("s_lshl_b32 s%d, s%d, 15" % (sA, sW))
                a("v_add_u32 v148, s%d, v144" % sA)
            stride, hstep, addr = (1024, 512, 148) if is_full else (512, 256, 146)
            saved = list(a.lg)
            a.lg = []

            def rd(ks):
                for hf in range(2):
                    a.lds("ds_read_b64_tr_b16 %s, v%d offset:%d" % (vr(96 + 4 * (ks % 6) + 2 * hf, 2), addr,
                                                                    ks * stride + hf * hstep), "c%d" % ks)
            for ks in range(5):
                rd(ks)
            for ks in range(32):
                a.wait_lg("c%d" % ks)
                a("%s %s, %s, %s, %s" % (MF16, vr(32 + 4 * (ks & 1), 4), vr(96 + 4 * (ks % 6), 4), vr(120, 4),
                                         "0" if ks < 2 else vr(32 + 4 * (ks & 1), 4)))
                if ks + 5 < 32:
                    rd(ks + 5)
            a.lg = saved
            if not is_full:
                a("s_branch %s" % done)
        a.label(done)
        a("v_pk_add_f32 v[32:33], v[32:33], v[36:37]")
        a("v_pk_add_f32 v[34:35], v[34:35], v[38:39]")
        a("s_lshl_b32 s%d, s%d, 7" % (sA, sW))
        a("s_add_u32 s%d, s%d, %d" % (sA, sA, LCS3))
        self.colsum_write(32, sA)
        a.wait_lg_all()

    def s3_main(self):
        a = self.a
        AF = 96

        def rd(ks, p):
            for hf in range(2):
                a.lds(self.w3_read(p, ks, hf, AF + 16 * (ks & 1) + 4 * p + 2 * hf), "f%d_%d" % (ks, p))
        for p in range(4):
            rd(0, p)
        for ks in range(32):
            b = ks & 1
            for p in range(4):
                if p == 0:
                    a.wait_both("x%d" % ks, "f%d_0" % ks)
                else:
                    a.wait_lg("f%d_%d" % (ks, p))
                acc = vr(32 + 16 * p, 16)
                a("%s %s, %s, %s, %s" % (MF32, acc, vr(AF + 16 * b + 4 * p, 4), ar(4 * ks, 4), "0" if ks == 0 else acc))
                if ks < 31:
                    rd(ks + 1, p)
                if p in (0, 2):
                    self.fill(1)
            if ks in (7, 15, 23) and self.opt.get("s3st", 0):
                self.stamp("s3k%d" % ks)

    def s3_epilogue(self):
        a = self.a
        G = 128
        a("v_lshlrev_b32 v28, 4, v%d" % vHH)
        a("v_add_u32 v149, %d, v28" % LCS3)

        def csread(p):
            n = 16 if p < 3 else 8
            for j in range(n // 4):
                a.lds("ds_read_b128 %s, v149 offset:%d" % (vr(96 + 16 * (p & 1) + 4 * j, 4), 128 * p + 32 * j), "cs%d" % p)
        csread(0)
        a.wait_vm("st")
        for s in (8, 4, 2, 1):
            for i in range(s):
                a("v_add_f32 v%d, v%d, v%d" % (176 + i, 176 + i, 176 + i + s))
        a("v_mov_b32 v177, v176")
        a("v_permlane32_swap_b32 v176, v177")
        a("v_mul_f32 v178, s%d, v176" % s512I)
        a("v_mul_f32 v26, s%d, v177" % s512I)
        a("v_fma_f32 v26, -v178, v178, v26")
        a("v_max_f32 v26, 0, v26")
        a("v_add_f32 v26, s%d, v26" % sEPS)
        a("v_rsq_f32 v27, v26")
        self.gelu_consts(27, G)
        a("v_sub_f32 v%d, 0, v178" % (G + 4))
        a("s_mul_i32 s%d, s%d, 114688" % (sD, sT3))
        a("s_mul_i32 s%d, s%d, 7168" % (sA, sCP))
        a("s_add_u32 s%d, s%d, s%d" % (sD, sD, sA))
        a("s_add_u32 s%d, s%d, 0x%x" % (sD, sD, WS_HH))
        a("s_and_b32 s%d, s%d, 1" % (sB, sCP))
        a("s_lshl_b32 s%d, s%d, 10" % (sE, sB))
        a("s_add_u32 s%d, s%d, s%d" % (sE, sE, sD))
        a("s_xor_b32 s%d, s%d, 1" % (sB, sB))
        a("s_mul_i32 s%d, s%d, 6144" % (sB, sB))
        a("s_add_u32 s%d, s%d, s%d" % (sF, sD, sB))
        for p in range(4):
            n = 16 if p < 3 else 8
            C = 96 + 16 * (p & 1)
            if p < 3:
                csread(p + 1)
            a.wait_lg("cs%d" % p)
            acc = 32 + 16 * p
            for i in range(n // 2):
                a("v_pk_fma_f32 %s, %s, %s, %s op_sel_hi:[1,0,1]"
                  % (vr(acc + 2 * i, 2), vr(C + 2 * i, 2), vr(G + 4, 2), vr(acc + 2 * i, 2)))
            out = 152 + 8 * (p & 1)
            self.gelu(acc, n, G, G + 2, 136 if False else 180, out, fills=4)
            if p < 3:
                a("s_add_u32 s%d, s%d, %d" % (sA, sE, 2048 * p))
                a.vmem("buffer_store_dwordx4 %s, v%d, %s, s%d offen sc1" % (vr(out, 4), vL16, sr(S_WS, 4), sA), "Hst")
                a.vmem("buffer_store_dwordx4 %s, v%d, %s, s%d offen offset:1024 sc1"
                       % (vr(out + 4, 4), vL16, sr(S_WS, 4), sA), "Hst")
            else:
                a.vmem("buffer_store_dwordx4 %s, v%d, %s, s%d offen sc1" % (vr(out, 4), vL16, sr(S_WS, 4), sF), "Hst")

    def w4_setup(self):
        a = self.a
        a("s_lshl_b32 s%d, s%d, 11" % (sW4L, sKH))
        a("s_lshl_b32 s%d, s%d, 10" % (sA, sTH))
        a("s_add_u32 s%d, s%d, s%d" % (sW4L, sW4L, sA))
        a("s_mul_i32 s%d, s%d, %d" % (sW4G, sKH, 896 * 1024))
        self.feat0(sA, sTH, 1)
        a("s_add_u32 s%d, s%d, s%d" % (sW4G, sW4G, sA))

    def w4_items(self, ks0, ks1, tag):
        return [self.dma_item(S_W4, vW64, sW4L, w4_off(ks), sW4G, ks * 16384, tag) for ks in range(ks0, ks1)]

    def s4_load_items(self):
        a = self.a
        a("s_mul_i32 s%d, s%d, 114688" % (sLD, sT))
        a("s_mul_i32 s%d, s%d, %d" % (sB, sKH, 56 * 1024))
        a("s_add_u32 s%d, s%d, s%d" % (sLD, sLD, sB))
        a("s_add_u32 s%d, s%d, 0x%x" % (sLD, sLD, WS_HH))
        items = []
        for ks in range(56):
            def f(ks=ks):
                if ks and ks % 4 == 0:
                    a("s_add_u32 s%d, s%d, 0x1000" % (sLD, sLD))
                a.vmem("buffer_load_dwordx4 %s, v%d, %s, s%d offen offset:%d sc1"
                       % (ar(4 * ks, 4), vL16, sr(S_WS, 4), sLD, (ks & 3) * 1024), "H%d" % ks)
                a.check_vm_depth()
            items.append(f)
        return items

    def s4_y_items(self):
        a = self.a
        self.feat0(sE, sKH, 12)
        a("s_lshl_b32 s%d, s%d, 6" % (sB, sT))
        a("s_add_u32 s%d, s%d, s%d" % (sE, sE, sB))
        a("s_add_u32 s%d, s%d, 0x%x" % (sE, sE, WS_YT))
        a("v_lshlrev_b32 v147, 14, v%d" % vHH)
        a("v_lshl_add_u32 v147, v%d, 1, v147" % vN31)
        items = []
        for r in range(16):
            def f(r=r):
                a("s_add_u32 s%d, s%d, %d" % (sSO, sE, (8 * (r >> 2) + (r & 3)) * 4096))
                a.vmem("buffer_load_ushort v%d, v147, %s, s%d offen sc1" % (176 + r, sr(S_WS, 4), sSO), "y")
                a.check_vm_depth()
            items.append(f)
        return items

    def s4_main(self, hitems):
        a = self.a
        ACK, ACS, AK, AS = self.ACK, self.ACS, self.AK, self.AS
        self.wpi_addr(128, 131, 0, 2048, 1024)
        for i in (1, 2):
            a("v_add_u32 v%d, %d, v128" % (128 + i, 65536 * i))
            a("v_add_u32 v%d, %d, v131" % (131 + i, 65536 * i))

        def rd(ks, which):
            off = w4_off(ks)
            base, addr = ((AK, 128), (AS, 131))[which]
            for hf in range(2):
                a.lds("ds_read_b64_tr_b16 %s, v%d offset:%d"
                      % (vr(base + 4 * (ks & 1) + 2 * hf, 2), addr + off // 65536, off % 65536 + hf * 512),
                      "f%d_%d" % (ks, which))
        wq = self.w4_items(W4_B, W4_C, "w4b")
        yq = []
        self.barrier()
        rd(0, 0)
        rd(0, 1)
        for ks in range(56):
            ahead = ks < 55 and ks + 1 not in (W4_B, W4_C)
            b = ks & 1
            a.wait_both("H%d" % ks, "f%d_0" % ks)
            a("%s %s, %s, %s, %s" % (MF32, vr(ACK, 16), vr(AK + 4 * b, 4), ar(4 * ks, 4), "0" if ks == 0 else vr(ACK, 16)))
            if ahead:
                rd(ks + 1, 0)
            if hitems:
                hitems.pop(0)()
            a.wait_lg("f%d_1" % ks)
            a("%s %s, %s, %s, %s" % (MF32, vr(ACS, 16), vr(AS + 4 * b, 4), ar(4 * ks, 4), "0" if ks == 0 else vr(ACS, 16)))
            if ahead:
                rd(ks + 1, 1)
            if wq:
                wq.pop(0)()
            elif yq:
                yq.pop(0)()
                if yq:
                    yq.pop(0)()
            if ks == 56 - W4_C - 1:
                self.barrier()
                self.flag_store(F_CV, 2)
                wq = wq + self.w4_items(W4_C, 56, "w4c")
            if ks == 32:
                self.idx_cv()
                self.poll_issue(F_CV, "pcv")
            if ks == 40:
                self.poll_check("pcv", 4)
                yq = self.s4_y_items()
            if ks + 1 in (W4_B, W4_C):
                a.wait_vm("w4b" if ks + 1 == W4_B else "w4c")
                self.barrier()
                rd(ks + 1, 0)
                rd(ks + 1, 1)
            if ks in (8, 16, 27, 38, 47):
                self.stamp("s4k%d" % ks)
        for f in yq:
            f()

    def s4_epilogue(self):
        a = self.a
        ACK, ACS = self.ACK, self.ACS
        self.exchange_write(ACS, CV_BASE1)
        self.xn_tile(96)
        self.unpack8(vQ, 112)
        self.unpack8(vX1, 128)
        for p in range(8):
            a("v_pk_add_f32 %s, %s, %s" % (vr(112 + 2 * p, 2), vr(112 + 2 * p, 2), vr(128 + 2 * p, 2)))
        a.wait_lg_all()
        self.barrier()
        self.exchange_read(80, CV_BASE1)
        a.wait_vm("y")
        for r in range(16):
            a("v_lshlrev_b32 v%d, 16, v%d" % (176 + r, 176 + r))
        for p in range(8):
            a("v_pk_fma_f32 %s, %s, %s, %s" % (vr(112 + 2 * p, 2), vr(96 + 2 * p, 2), vr(176 + 2 * p, 2), vr(112 + 2 * p, 2)))
        for p in range(8):
            a("v_pk_add_f32 %s, %s, %s" % (vr(ACK + 2 * p, 2), vr(ACK + 2 * p, 2), vr(112 + 2 * p, 2)))
        a("s_lshl_b32 s%d, s%d, 15" % (sA, sT))
        self.feat0(sB, sKH, 1)
        a("s_add_u32 s%d, s%d, s%d" % (sA, sA, sB))
        a("v_lshlrev_b32 v26, 10, v%d" % vN31)
        a("v_lshl_add_u32 v26, v%d, 4, v26" % vHH)
        a.wait_lg_all()
        for p in range(8):
            a("v_pk_add_f32 %s, %s, %s" % (vr(ACK + 2 * p, 2), vr(ACK + 2 * p, 2), vr(80 + 2 * p, 2)))
        for p in range(8):
            a("v_cvt_pk_bf16_f32 v%d, v%d, v%d" % (48 + p, ACK + 2 * p, ACK + 2 * p + 1))
        for j in (0, 4):
            a("v_permlane32_swap_b32 v%d, v%d" % (48 + j, 50 + j))
            a("v_permlane32_swap_b32 v%d, v%d" % (49 + j, 51 + j))
        a.vmem("buffer_store_dwordx4 %s, v26, %s, s%d offen" % (vr(48, 4), sr(S_OUT, 4), sA), "out")
        a.vmem("buffer_store_dwordx4 %s, v26, %s, s%d offen offset:32" % (vr(52, 4), sr(S_OUT, 4), sA), "out")

    def nonce_update(self):
        a = self.a
        self.hold += 1
        skip = a.newlabel("nonce")
        a("s_cmp_lg_u32 s2, 0")
        a("s_cbranch_scc1 %s" % skip)
        a("s_cmp_lg_u32 s%d, 0" % sW)
        a("s_cbranch_scc1 %s" % skip)
        saved = list(a.vm)
        for i in range(4):
            a("v_add_u32 v28, %d, v%d" % (64 * i, vL))
            self.poll_issue(F_P0, "pn")
            self.poll_check("pn", 6)
        a.vm = saved
        a("v_mov_b32 v26, 0")
        a("v_mov_b32 v27, s%d" % sN)
        a("s_mov_b64 exec, 1")
        a("buffer_store_dword v27, v26, %s, 0 offen sc1" % sr(S_WS, 4))
        a("s_mov_b64 exec, -1")
        a.label(skip)
        self.hold -= 1

    def finish(self):
        a = self.a
        a.wait_vm_all()
        if self.stamps:
            self.stamp("end")
            skip = a.newlabel("nostamp")
            a("s_cmp_lg_u32 s%d, 0" % sW)
            a("s_cbranch_scc1 %s" % skip)
            a("s_lshl_b32 s%d, s2, 8" % sA)
            a("s_add_u32 s%d, s%d, 0x%x" % (sA, sA, WS_STAMP))
            a("v_lshlrev_b32 v26, 2, v%d" % vL)
            a("buffer_store_dword v%d, v26, %s, s%d offen" % (vSTAMP, sr(S_WS, 4), sA))
            a("s_waitcnt vmcnt(0)")
            a.label(skip)
        a.label("L_end")
        a("s_endpgm")

    def build(self):
        a = self.a
        self.prologue()
        self.s1_loads()
        self.stamp("s1iss")
        self.s1_main()
        self.stamp("s1main")
        self.s1_epilogue()
        self.stamp("s1epi")

        def s1flag():
            a.wait_vm("hst")
            self.barrier()
            self.flag_store_rc(F_S1)
            self.stamp("s1flag")
        self.p0_compute(s1flag)
        self.pace_flush("w2")
        a.wait_lg_all()
        a.wait_vm("w2")
        self.barrier()
        self.p0_readback()
        self.p0_store()
        self.wpi_addr(128, 129, LW, 16384, 32768)
        self.idx_s1()
        self.hold += 1
        self.poll_issue(F_S1, "ps1")
        hitems = self.s2_load_items()
        self.poll_check("ps1", 2)
        self.stamp("s1poll")
        for f in hitems:
            f()
        self.barrier()
        self.flag_store_rc(F_P0)
        self.fq = list(self.pq)
        self.pq = []
        if self.opt.get("ssm_at", 0) == 1:
            self.fq.append(self.conv_filter_loads)
        if self.opt.get("w34_at", 1) == 1:
            self.fq.append(self.touch_w34)
        self.s2_main()
        self.pq = self.fq
        self.fq = []
        rest = [f for f in self.pq if not hasattr(f, "tag")]
        self.pq = [f for f in self.pq if hasattr(f, "tag")]
        for f in rest:
            f()
        self.hold -= 1
        self.stamp("s2main")
        self.hold += 1
        self.s2_epilogue()
        self.hold -= 1
        self.stamp("s2epi")
        self.paced(self.w3_items([2, 3]), self.opt.get("iv2", 100))
        self.poll_check("pp0", 1)
        self.conv_x_loads()
        self.conv_prep_filter(0)
        a.wait_vm("x1st")
        self.barrier()
        self.flag_store_rc(F_S2)
        self.stamp("s2flag")
        self.conv_prep_x(0)
        self.stamp("cv0prep")

        def hook0(rho):
            if rho == 3:
                self.idx_16(sRP, 0)
                self.poll_issue(F_S2, "ps2")
        self.conv_main(hook0)
        self.pace_flush()
        self.stamp("cv0main")
        xitems = self.s3_load_items()
        nx = self.opt.get("nx", 8)
        if self.opt.get("xearly", 1):
            self.poll_check("ps2", 3)
            for f in xitems[:nx]:
                f()
        self.conv_finish(0)
        self.stamp("cv0fin")
        if not self.opt.get("xearly", 1):
            self.poll_check("ps2", 3)
            for f in xitems[:nx]:
                f()
        self.s3_addr()
        a.wait_vm("w3")
        self.barrier()
        self.stamp("s2poll")
        self.s3_colsum()
        self.stamp("s3cs")
        sitems = self.s3_stat_items()
        rest = xitems[nx:]
        self.w4_setup()
        w4a = self.w4_items(0, W4_A, "w4")
        self.fq = []
        for i in range(len(rest)):
            self.fq.append(rest[i])
            if i >= len(rest) - 16:
                self.fq.append(sitems[i - (len(rest) - 16)])
        self.fq += w4a
        if self.opt.get("w4local", 1):
            self.fq.append(self.touch_w4_local)
        self.s3_main()
        self.fill_all()
        self.stamp("s3main")
        self.barrier()
        self.paced(self.w4_items(W4_A, W4_B, "w4"), self.opt.get("iv3", 160))
        self.s3_epilogue()
        self.stamp("s3epi")
        self.conv_prep_filter(1)
        a.wait_vm("Hst")
        self.barrier()
        a("s_lshl_b32 s%d, s%d, 4" % (sB, sRP))
        a("s_add_u32 s%d, s%d, s%d" % (sB, sB, sCP))
        self.flag_store(F_S3, sB)
        self.stamp("s3flag")
        self.nonce_update()
        self.conv_prep_x(1)
        self.stamp("cv1prep")

        def hook1(rho):
            if rho == 3:
                self.idx_16(sR, 1)
                self.poll_issue(F_S3, "ps3")
        self.conv_main(hook1)
        self.pace_flush()
        self.stamp("cv1main")
        hitems = self.s4_load_items()
        self.poll_check("ps3", 5)
        self.stamp("s3poll")
        for _ in range(10):
            hitems.pop(0)()
        a.wait_vm("w4")
        self.conv_finish(1)
        self.stamp("cv1fin")
        self.s4_main(hitems)
        self.stamp("s4main")
        self.s4_epilogue()
        self.stamp("s4epi")
        self.finish()


REF = "cdna_kernels/%s.s.ref" % NAME


def emit(stop=None, stamps=False, opt=None, keep=None):
    g = Gen(stop, stamps, opt)
    g.keep = keep
    g.build()
    nops = g.a.fix_hazards()
    top = [l for l in open(REF).read().split("\n") if l.startswith(";") and "@launch" not in l and "Override" not in l
           and "grid=ceil" not in l]
    out = top + ["; @launch grid=(256,1,1) block=(256,1,1) lds=%d" % LDS_BYTES,
                 '.amdgcn_target "amdgcn-amd-amdhsa--gfx950"', ".text", ".globl %s_kernel" % NAME, ".p2align 8",
                 ".type %s_kernel,@function" % NAME, "%s_kernel:" % NAME]
    body = g.a.text()
    tail = ['.section .rodata,"a"', ".p2align 6", ".amdhsa_kernel %s_kernel" % NAME,
            "  .amdhsa_next_free_vgpr 512", "  .amdhsa_next_free_sgpr 102", "  .amdhsa_accum_offset 256",
            "  .amdhsa_group_segment_fixed_size 0", "  .amdhsa_kernarg_size 112", "  .amdhsa_user_sgpr_count 2",
            "  .amdhsa_user_sgpr_kernarg_segment_ptr 1", "  .amdhsa_system_sgpr_workgroup_id_x 1",
            "  .amdhsa_float_denorm_mode_32 3", ".end_amdhsa_kernel"]
    text = "\n".join(out) + "\n" + body + "\n".join(tail) + "\n"
    return text, g, nops


if __name__ == "__main__":
    ap = argparse.ArgumentParser()
    ap.add_argument("-o", default="cdna_kernels/%s.s" % NAME)
    ap.add_argument("--stop", default=None)
    ap.add_argument("--stamps", action="store_true")
    ap.add_argument("--opt", default="")
    ap.add_argument("--keep", default="")
    args = ap.parse_args()
    opt = dict((kv.split("=")[0], int(kv.split("=")[1])) for kv in args.opt.split(",") if kv)
    text, g, nops = emit(args.stop, args.stamps, opt, args.keep.split(",") if args.keep else None)
    open(args.o, "w").write(text)
    n = sum(1 for x in g.a.ins if x.kind != "label")
    print("instructions: %d, hazard nops: %d" % (n, nops))
    if g.stamp_names:
        print(",".join(g.stamp_names))
        open(args.o + ".stamps", "w").write(",".join(g.stamp_names))
```

```python
import argparse
import os
import struct
import sys

sys.path.insert(0, os.path.dirname(os.path.abspath(__file__)))
from asmlib import Asm

NAME = "parallel_sum__ssm_conv_h3__mixer_s_mlp__prompt"

WS_FLAGS = 4096
WS_STAMP = 0x40000
WS_KVT = 0x100000
WS_YT = 0x300000
WS_HS = 0x500000
WS_X1 = 0x700000
WS_ST = 0x900000
WS_HH = 0xA00000
WS_SIZE = 0x10000000
OOB = 0x40000000
F_P0, F_S1, F_S2, F_S3, F_CV = 0, 1, 2, 3, 4

LQ = 0
LW = 65536
LSTG = 131072
LRED = 139264
LSTX = 155648
LCSX = 156672
LCS3 = 161280
LDS_BYTES = 163840
CV_X = 0
CV_XD = 1152
CV_A = 5248
CV_P = 21760
CV_R = 5248
CV_BASE = 114688
W3_P = 0
W3_H = 98304
CV_BASE1 = 69632
W4_A, W4_B, W4_C = 11, 28, 39
S4_RED = CV_BASE1


def w4_off(ks):
    if ks < W4_A:
        return 114688 + ks * 4096
    if ks < W4_B:
        return (ks - W4_A) * 4096
    if ks < W4_C:
        return CV_BASE1 + (ks - W4_B) * 4096
    return w4_off(ks - W4_C)

S_WS, S_Q, S_K, S_V, S_SHK, S_SSM, S_W1, S_W2, S_W3, S_W4, S_OUT = 4, 8, 12, 16, 20, 24, 32, 36, 40, 44, 48
S_DPTR = 28
S_DBG = 30
sR, sC, sW, sTH, sKH, sN, sRP, sCP = 52, 53, 54, 55, 56, 57, 58, 59
sT, sT3 = 60, 61
sD0, sD1 = 62, 63
sA, sB, sCc, sD, sE, sF = 64, 65, 66, 67, 68, 69
sW2L, sW2G, sW3L, sW3G, sW3HL, sW3HG, sW4L, sW4G, sSO, sLD = 70, 71, 72, 73, 74, 75, 76, 77, 78, 79
sONES, sHI = 80, 81
sK4, sK8, sK12 = 82, 83, 84
sEPS, sTMO, sKG1, sKG3, s512I = 85, 86, 87, 88, 89
sSTA = 90
sROT, sQG, sWG, sCP0 = 92, 93, 94, 95

vL, vL16, vWP, vWN = 0, 1, 2, 3
vQ, vX1 = 4, 12
vMEAN, vR1 = 20, 21
vTID, vHH, vN31, vSTAMP = 22, 23, 24, 25
vW64 = 31
vCH = 172
vPF, vPA = 170, 171
vW3F, vW3H, vQE = 40, 41, 42
vST = 172

GELU_K1 = 2.0 * 0.7978845608028654 * 1.4426950408889634
GELU_K3 = GELU_K1 * 0.044715
MF32 = "v_mfma_f32_32x32x16_bf16"
MF16 = "v_mfma_f32_16x16x32_bf16"


def f32bits(x):
    return struct.unpack("<I", struct.pack("<f", x))[0]


def vr(a, n):
    return "v[%d:%d]" % (a, a + n - 1)


def ar(a, n):
    return "a[%d:%d]" % (a, a + n - 1)


def sr(a, n):
    return "s[%d:%d]" % (a, a + n - 1)


class Gen:
    def __init__(self, stop=None, stamps=False, opt=None):
        self.opt = opt or {}
        self.keep = None
        self.a = Asm()
        self.h = Asm()
        self.hpend = []
        self.stop = stop
        self.stamps = stamps
        self.nstamp = 0
        self.stamp_names = []
        self.fq = []
        self.pq = []
        self.interval = 0
        self.clock = 0.0
        self.hold = 0
        self.a.hook = self._pace

    def _pace(self, x):
        if x.kind == "mfma":
            self.clock += 32 if x.passes == 8 else 16
        elif x.kind == "valu":
            self.clock += 8 if x.is_trans() else 4.5
        elif x.kind == "ds":
            self.clock += 13 if x.op == "ds_write_b128" else 2
        elif x.kind == "vmem":
            self.clock += 20
        else:
            return
        if self.hold or not self.pq or not self.interval or x.kind == "vmem":
            return
        if self.clock >= self.interval:
            self.clock = 0.0
            self.hold += 1
            self.pq.pop(0)()
            self.hold -= 1

    def paced(self, items, interval):
        self.pq += items
        self.interval = interval
        self.clock = 0.0

    def pace_flush(self, tag=None):
        self.hold += 1
        if tag is None:
            n = len(self.pq)
        else:
            n = max([i + 1 for i, f in enumerate(self.pq) if f.tag == tag], default=0)
        for _ in range(n):
            self.pq.pop(0)()
        self.hold -= 1

    def stamp(self, name):
        if not self.stamps:
            return
        if self.keep and name not in self.keep and name not in ("start", "end"):
            return
        self.hold += 1
        self._stamp(name)
        self.hold -= 1

    def _stamp(self, name):
        a = self.a
        a("s_memtime %s" % sr(sSTA, 2))
        a("s_waitcnt lgkmcnt(0)")
        a.lg = []
        a("v_writelane_b32 v%d, s%d, %d" % (vSTAMP, sSTA, self.nstamp))
        if name in ("start", "end"):
            a("s_memrealtime %s" % sr(sSTA, 2))
            a("s_waitcnt lgkmcnt(0)")
            a("v_writelane_b32 v%d, s%d, %d" % (vSTAMP, sSTA, 62 if name == "start" else 63))
            if name == "start":
                a("v_writelane_b32 v%d, s3, 61" % vSTAMP)
        self.stamp_names.append(name)
        self.nstamp += 1

    def hact(self, fn):
        self.hpend.append(fn)

    def hacts(self, fns):
        self.hpend += fns

    def hwait(self, tag):
        self.hpend.append(lambda: self.a.wait_vm(tag))

    def hrun(self):
        c = self.a
        self.a = self.h
        self.hold += 1
        for fn in self.hpend:
            fn()
        self.hold -= 1
        self.hpend = []
        self.a = c

    def barrier(self):
        self.a("s_barrier")
        self.hrun()
        self.h("s_barrier")

    def fill(self, n=1):
        for _ in range(n):
            if self.fq:
                self.fq.pop(0)()

    def fill_all(self):
        while self.fq:
            self.fq.pop(0)()

    def dma_item(self, srd, voff, sl, loff, sg, goff, tag):
        def f():
            a = self.a
            a("s_add_u32 m0, s%d, %d" % (sl, loff))
            a("s_add_u32 s%d, s%d, %d" % (sSO, sg, goff))
            a.vmem("buffer_load_dwordx4 v%d, %s, s%d offen lds" % (voff, sr(srd, 4), sSO), tag)
            a.check_vm_depth()
        f.tag = tag
        return f

    def flag_store(self, phase, sidx):
        a = self.a
        self.hold += 1
        skip = a.newlabel("noflag")
        a("s_cmp_lg_u32 s%d, 0" % sW)
        a("s_cbranch_scc1 %s" % skip)
        a("s_lshl_b32 s%d, s%d, 7" % (sA, sidx))
        a("s_add_u32 s%d, s%d, %d" % (sA, sA, WS_FLAGS + phase * 256 * 128))
        a("v_mov_b32 v26, s%d" % sN)
        a("v_mov_b32 v27, s%d" % sA)
        a("s_mov_b64 exec, 1")
        a("buffer_store_dword v26, v27, %s, 0 offen sc1" % sr(S_WS, 4))
        a("s_mov_b64 exec, -1")
        a.label(skip)
        self.hold -= 1

    def flag_store_rc(self, phase):
        a = self.a
        a("s_lshl_b32 s%d, s%d, 3" % (sB, sR))
        a("s_add_u32 s%d, s%d, s%d" % (sB, sB, sC))
        self.flag_store(phase, sB)

    def poll_issue(self, phase, tag):
        a = self.a
        a("v_lshlrev_b32 v%d, 7, v28" % vPA)
        a("v_add_u32 v%d, %d, v%d" % (vPA, WS_FLAGS + phase * 256 * 128, vPA))
        a.vmem("buffer_load_dword v%d, v%d, %s, 0 offen sc1" % (vPF, vPA, sr(S_WS, 4)), tag)

    def poll_check(self, tag, code):
        a = self.a
        self.hold += 1
        loop = a.newlabel("poll")
        done = a.newlabel("polled")
        a.wait_vm(tag)
        a("v_cmp_ne_u32 vcc, s%d, v%d" % (sN, vPF))
        a("s_cmp_eq_u64 vcc, 0")
        a("s_cbranch_scc1 %s" % done)
        a("s_mov_b32 s%d, 0x40000" % sTMO)
        a.label(loop)
        a("buffer_load_dword v%d, v%d, %s, 0 offen sc1" % (vPF, vPA, sr(S_WS, 4)))
        a("s_waitcnt vmcnt(0)")
        a("v_cmp_ne_u32 vcc, s%d, v%d" % (sN, vPF))
        a("s_cmp_eq_u64 vcc, 0")
        a("s_cbranch_scc1 %s" % done)
        a("s_sub_u32 s%d, s%d, 1" % (sTMO, sTMO))
        a("s_cmp_lg_u32 s%d, 0" % sTMO)
        a("s_cbranch_scc1 %s" % loop)
        a("v_mov_b32 v26, 0")
        a("v_mov_b32 v27, %d" % (0x100 + code))
        a("s_mov_b64 exec, 1")
        a("global_store_dword v26, v27, %s" % sr(S_DBG, 2))
        a("s_mov_b64 exec, -1")
        a.label(done)
        self.hold -= 1

    def idx_s1(self):
        a = self.a
        a("v_min_u32 v28, 23, v%d" % vL)
        a("s_lshl_b32 s%d, s%d, 3" % (sA, sR))
        a("s_sub_u32 s%d, s%d, 8" % (sA, sA))
        a("v_add_u32 v28, s%d, v28" % sA)
        a("v_add_u32 v29, 8, v28")
        a("v_cmp_gt_i32 vcc, 0, v28")
        a("v_cndmask_b32 v28, v28, v29, vcc")
        a("v_subrev_u32 v29, 8, v28")
        a("v_cmp_lt_u32 vcc, 0xff, v28")
        a("v_cndmask_b32 v28, v28, v29, vcc")

    def idx_p0(self):
        a = self.a
        a("s_lshr_b32 s%d, s2, 5" % sA)
        a("v_lshlrev_b32 v28, 3, v%d" % vN31)
        a("v_add_u32 v28, s%d, v28" % sA)

    def idx_16(self, sreg, shift):
        a = self.a
        a("v_and_b32 v28, 15, v%d" % vL)
        a("s_lshr_b32 s%d, s%d, %d" % (sA, sreg, shift))
        a("s_lshl_b32 s%d, s%d, 4" % (sA, sA))
        a("v_add_u32 v28, s%d, v28" % sA)

    def idx_cv(self):
        a = self.a
        if self.opt.get("remap", 0):
            a("s_lshl_b32 s%d, s%d, 4" % (sA, sC))
            a("v_and_b32 v28, 15, v%d" % vL)
            a("v_bfe_u32 v29, v%d, 4, 1" % vL)
            a("v_lshl_add_u32 v28, v29, 7, v28")
            a("v_add_u32 v28, s%d, v28" % sA)
        else:
            a("s_lshl_b32 s%d, s%d, 5" % (sA, sC))
            a("v_add_u32 v28, s%d, v%d" % (sA, vN31))

    def prologue(self):
        a = self.a
        if self.stamps:
            a("s_memrealtime s[100:101]")
            a("s_waitcnt lgkmcnt(0)")
            a("s_mov_b32 s3, s100")
        a("s_cmp_ge_u32 s2, 256")
        a("s_cbranch_scc1 L_end")
        a("s_load_dwordx16 s[64:79], s[0:1], 0")
        a("s_load_dwordx8 s[92:99], s[0:1], 64")
        a("s_load_dwordx2 %s, s[0:1], 96" % sr(S_DBG, 2))
        a("s_load_dwordx2 %s, s[0:1], 104" % sr(S_WS, 2))
        sizes = {S_WS: WS_SIZE, S_Q: 1 << 21, S_K: 1 << 21, S_V: 1 << 21, S_SHK: 4096, S_SSM: 1 << 21,
                 S_W1: 1 << 19, S_W2: 1 << 19, S_W3: 512 * 1792 * 2, S_W4: 512 * 1792 * 2, S_OUT: 1 << 21}
        for s, n in sizes.items():
            a("s_mov_b32 s%d, 0x%x" % (s + 2, n))
            a("s_mov_b32 s%d, 0x20000" % (s + 3))
        a("s_and_b32 s100, s2, 7")
        a("s_lshr_b32 s101, s2, 3")
        a("s_lshr_b32 s%d, s101, 3" % sR)
        a("s_lshl_b32 s%d, s100, 2" % sC)
        a("s_add_u32 s%d, s%d, s%d" % (sR, sR, sC))
        a("s_and_b32 s%d, s101, 7" % sC)
        a("s_lshr_b32 s%d, s101, 4" % sRP)
        a("s_lshl_b32 s100, s100, 1")
        a("s_add_u32 s%d, s%d, s100" % (sRP, sRP))
        a("s_and_b32 s%d, s101, 15" % sCP)
        a("v_and_b32 v%d, 0xff, v0" % vTID)
        a("v_lshrrev_b32 v26, 6, v0")
        a("v_and_b32 v%d, 63, v0" % vL)
        a("v_readfirstlane_b32 s%d, v26" % sTMO)
        a("v_lshlrev_b32 v%d, 4, v%d" % (vL16, vL))
        a("v_lshrrev_b32 v%d, 5, v%d" % (vHH, vL))
        a("v_and_b32 v%d, 31, v%d" % (vN31, vL))
        a("s_and_b32 s%d, s%d, 3" % (sW, sTMO))
        a("s_lshr_b32 s%d, s%d, 1" % (sTH, sW))
        a("s_and_b32 s%d, s%d, 1" % (sKH, sW))
        a("s_lshl_b32 s%d, s%d, 1" % (sT, sR))
        a("s_add_u32 s%d, s%d, s%d" % (sT, sT, sTH))
        a("s_lshl_b32 s%d, s%d, 2" % (sT3, sRP))
        a("s_add_u32 s%d, s%d, s%d" % (sT3, sT3, sW))
        a("s_mov_b32 s%d, 0x3f803f80" % sONES)
        a("s_mov_b32 s%d, 0xffff0000" % sHI)
        a("s_movk_i32 s%d, 0x1000" % sK4)
        a("s_movk_i32 s%d, 0x2000" % sK8)
        a("s_movk_i32 s%d, 0x3000" % sK12)
        a("s_mov_b32 s%d, 0x%x" % (sEPS, f32bits(1e-5)))
        a("s_mov_b32 s%d, 0x%x" % (sKG1, f32bits(-GELU_K1)))
        a("s_mov_b32 s%d, 0x%x" % (sKG3, f32bits(-GELU_K3)))
        a("s_mov_b32 s%d, 0x%x" % (s512I, f32bits(1.0 / 512)))
        a("s_waitcnt lgkmcnt(0)")
        for sreg, src in ((S_Q, 64), (S_W1, 78), (S_K, 66), (S_V, 68), (S_SHK, 70), (S_SSM, 72), (S_DPTR, 74)):
            a("s_mov_b64 %s, %s" % (sr(sreg, 2), sr(src, 2)))
        for i, sreg in enumerate([S_W2, S_W3, S_W4, S_OUT]):
            a("s_mov_b64 %s, %s" % (sr(sreg, 2), sr(92 + 2 * i, 2)))
        a("s_add_u32 s%d, s%d, s%d" % (sROT, sR, sC))
        a("s_and_b32 s%d, s%d, 3" % (sROT, sROT))
        a("s_cmp_ge_u32 s%d, 4" % sTMO)
        a("s_cbranch_scc1 L_loader")
        if self.opt.get("prio", 1):
            a("s_setprio 1")
        if self.stamps:
            a("v_mov_b32 v%d, 0" % vSTAMP)
        self.stamp("start")
        self.ssm_d_load()

    def tr_addresses(self):
        a = self.a
        a("v_bfe_u32 v26, v%d, 2, 2" % vL)
        a("v_and_b32 v27, 3, v%d" % vL)
        a("v_bfe_u32 v28, v%d, 4, 1" % vL)
        a("v_lshlrev_b32 v27, 3, v27")
        a("v_lshl_add_u32 v27, v28, 5, v27")
        a("v_lshl_add_u32 v28, v%d, 2, v26" % vHH)
        a("v_lshl_add_u32 v%d, v28, 6, v27" % vWP)
        a("v_lshl_add_u32 v28, v%d, 3, v26" % vHH)
        a("v_lshl_add_u32 v%d, v28, 6, v27" % vWN)

    def loader_setup(self):
        a = self.a
        a.label("L_loader")
        a("v_lshrrev_b32 v26, 2, v%d" % vL)
        a("v_and_b32 v27, 3, v%d" % vL)
        a("v_lshlrev_b32 v27, 4, v27")
        a("v_lshl_add_u32 v%d, v26, 10, v27" % vW64)
        a("v_lshrrev_b32 v26, 3, v%d" % vL)
        a("v_and_b32 v27, 7, v%d" % vL)
        a("v_lshrrev_b32 v28, 4, v%d" % vL)
        a("v_xor_b32 v27, v27, v28")
        a("v_lshlrev_b32 v27, 4, v27")
        a("v_lshl_add_u32 v%d, v26, 10, v27" % vQE)
        a("v_xor_b32 v%d, 64, v%d" % (vQE + 1, vQE))
        a("s_lshl_b32 s%d, s%d, 14" % (sCc, sW))
        a("s_lshl_b32 s%d, s%d, 15" % (sD, sT))
        a("s_lshl_b32 s%d, s%d, 9" % (sA, sKH))
        a("s_add_u32 s%d, s%d, s%d" % (sD, sD, sA))
        self.w64_bases(sW2L, sW2G)

    def feat0(self, dst, spanel, shift):
        a = self.a
        if self.opt.get("remap", 0):
            a("s_lshl_b32 s%d, s%d, %d" % (dst, sC, 5 + shift))
            a("s_lshl_b32 s%d, s%d, %d" % (sSO, spanel, 8 + shift))
        else:
            a("s_lshl_b32 s%d, s%d, %d" % (dst, sC, 6 + shift))
            a("s_lshl_b32 s%d, s%d, %d" % (sSO, spanel, 5 + shift))
        a("s_add_u32 s%d, s%d, s%d" % (dst, dst, sSO))

    def w64_bases(self, sl, sg):
        a = self.a
        a("s_lshl_b32 s%d, s%d, 15" % (sl, sTH))
        a("s_lshl_b32 s%d, s%d, 14" % (sA, sKH))
        a("s_add_u32 s%d, s%d, s%d" % (sl, sl, sA))
        a("s_add_u32 s%d, s%d, %d" % (sl, sl, LW))
        a("s_lshl_b32 s%d, s%d, 18" % (sg, sKH))
        self.feat0(sA, sTH, 1)
        a("s_add_u32 s%d, s%d, s%d" % (sg, sg, sA))

    def s1_stage_items(self, st):
        items = []

        def head():
            a = self.a
            a("s_add_u32 s%d, s%d, %d" % (sB, sROT, st))
            a("s_and_b32 s%d, s%d, 3" % (sB, sB))
            a("s_lshl_b32 s%d, s%d, 7" % (sQG, sB))
            a("s_add_u32 s%d, s%d, s%d" % (sQG, sQG, sD))
            a("s_lshl_b32 s%d, s%d, 16" % (sWG, sB))
            a("s_add_u32 s%d, s%d, s%d" % (sWG, sWG, sW2G))
        for j in range(4):
            def f(j=j):
                if j == 0:
                    head()
                self.dma_item(S_Q, vQE + (j & 1), sCc, LQ + st * 4096 + j * 1024, sQG, j * 8192, "s1_%d" % st)()
            items.append(f)
        for i in range(4):
            items.append(self.dma_item(S_W1, vW64, sW2L, (4 * st + i) * 1024, sWG, i * 16384, "s1_%d" % st))
        return items

    def touch(self, srd, lanes, sidx, dst):
        a = self.a
        a("s_mul_i32 s%d, s%d, %d" % (sA, sidx, lanes))
        a("v_add_u32 v26, s%d, v%d" % (sA, vL))
        a("v_lshlrev_b32 v26, 7, v26")
        a("v_mov_b32 v27, 0x%x" % OOB)
        a("v_cmp_gt_u32 vcc, %d, v%d" % (lanes, vL))
        a("v_cndmask_b32 v26, v27, v26, vcc")
        a.vmem("buffer_load_dword v%d, v26, %s, 0 offen" % (dst, sr(srd, 4)), "touch")

    def touch_w2(self):
        a = self.a
        if self.opt.get("touch", 1):
            a("s_lshr_b32 s%d, s2, 3" % sE)
            a("s_lshl_b32 s%d, s%d, 2" % (sE, sE))
            a("s_add_u32 s%d, s%d, s%d" % (sE, sE, sW))
            self.touch(S_W2, 32, sE, 53)

    def touch_chip(self, which):
        a = self.a
        srd, lanes, dst = {"w2": (S_W2, 4, 50), "ssm": (S_SSM, 16, 51), "w3": (S_W3, 14, 52), "w4": (S_W4, 14, 53)}[which]
        if not self.opt.get("t" + which, 1):
            return
        a("s_lshl_b32 s%d, s2, 2" % sE)
        a("s_add_u32 s%d, s%d, s%d" % (sE, sE, sW))
        self.touch(srd, lanes, sE, dst)

    def touch_code(self):
        a = self.a
        if not self.opt.get("tcode", 1):
            return
        a("s_getpc_b64 s[96:97]")
        a.label("L_pc")
        a("s_sub_u32 s96, s96, L_pc-%s_kernel" % NAME)
        a("s_subb_u32 s97, s97, 0")
        a("s_lshr_b32 s%d, s2, 3" % sE)
        a("s_lshl_b32 s%d, s%d, 2" % (sE, sE))
        a("s_add_u32 s%d, s%d, s%d" % (sE, sE, sW))
        a("s_mul_i32 s%d, s%d, 3" % (sE, sE))
        a("v_min_u32 v26, 2, v%d" % vL)
        a("v_add_u32 v26, s%d, v26" % sE)
        a("v_min_u32 v26, (L_codeend-%s_kernel)/128-1, v26" % NAME)
        a("v_lshlrev_b32 v26, 7, v26")
        a("v_mov_b32 v45, s97")
        a("v_add_co_u32 v44, vcc, s96, v26")
        a("v_addc_co_u32 v45, vcc, 0, v45, vcc")
        a.vmem("global_load_dword v46, v[44:45], off", "touch")

    def touch_kv(self):
        a = self.a
        if not self.opt.get("tkv", 1):
            return
        for srd, rows, first, dst in ((S_K, 17, -3, 54), (S_V, 16, 0, 55)):
            a("s_lshl_b32 s%d, s%d, 6" % (sA, sR))
            a("s_mul_i32 s%d, s%d, %d" % (sB, sW, rows))
            a("s_add_u32 s%d, s%d, s%d" % (sA, sA, sB))
            a("s_add_i32 s%d, s%d, %d" % (sA, sA, first))
            a("v_add_u32 v26, s%d, v%d" % (sA, vL))
            a("v_lshlrev_b32 v26, 10, v26")
            a("s_lshl_b32 s%d, s%d, 7" % (sB, sC))
            a("v_add_u32 v26, s%d, v26" % sB)
            a("v_mov_b32 v27, 0x%x" % OOB)
            a("v_cmp_gt_u32 vcc, %d, v%d" % (rows, vL))
            a("v_cndmask_b32 v26, v27, v26, vcc")
            a.vmem("buffer_load_dword v%d, v26, %s, 0 offen" % (dst, sr(srd, 4)), "touch")

    def touch_w3_local(self):
        a = self.a
        if self.opt.get("tw3", 1):
            a("s_lshr_b32 s%d, s2, 3" % sE)
            a("s_lshl_b32 s%d, s%d, 2" % (sE, sE))
            a("s_add_u32 s%d, s%d, s%d" % (sE, sE, sW))
            self.touch(S_W3, 64, sE, 50)
            a("s_add_u32 s%d, s%d, 128" % (sE, sE))
            self.touch(S_W3, 64, sE, 51)

    def touch_w4_chip(self):
        a = self.a
        if self.opt.get("tw4", 1):
            a("s_lshl_b32 s%d, s2, 2" % sE)
            a("s_add_u32 s%d, s%d, s%d" % (sE, sE, sW))
            self.touch(S_W4, 14, sE, 52)

    def touch_w34(self):
        a = self.a
        if self.opt.get("touch", 1):
            a("s_lshl_b32 s%d, s2, 2" % sE)
            a("s_add_u32 s%d, s%d, s%d" % (sE, sE, sW))
            if self.opt.get("touchw3", 1):
                self.touch(S_W3, 14, sE, 223)
            if self.opt.get("touchw4", 1):
                self.touch(S_W4, 14, sE, 224)

    def touch_w4_local(self):
        a = self.a
        a("s_lshr_b32 s%d, s2, 3" % sE)
        a("s_lshl_b32 s%d, s%d, 2" % (sE, sE))
        a("s_add_u32 s%d, s%d, s%d" % (sE, sE, sW))
        self.touch(S_W4, 64, sE, 54)
        a("s_add_u32 s%d, s%d, 128" % (sE, sE))
        self.touch(S_W4, 64, sE, 55)

    KRAW, VRAW, SHRAW, POFF = 172, 183, 164, 138

    def p0_loads(self):
        a = self.a
        o = self.POFF
        a("s_lshl_b32 s%d, s%d, 6" % (sA, sR))
        a("s_lshl_b32 s%d, s%d, 4" % (sB, sW))
        a("s_add_u32 s%d, s%d, s%d" % (sA, sA, sB))
        a("v_lshl_add_u32 v26, v%d, 3, s%d" % (vHH, sA))
        a("s_lshl_b32 s%d, s%d, 7" % (sB, sC))
        a("v_lshl_add_u32 v27, v%d, 2, s%d" % (vN31, sB))
        a("v_lshl_add_u32 v%d, v26, 10, v27" % (o + 3))
        a("v_add_u32 v%d, 0x1000, v%d" % (o + 4, o + 3))
        a("v_mov_b32 v28, 0x%x" % OOB)
        for i in range(3):
            a("v_subrev_u32 v%d, %d, v%d" % (o + i, (3 - i) * 1024, o + 3))
            a("v_cmp_gt_u32 vcc, %d, v26" % (3 - i))
            a("v_cndmask_b32 v%d, v%d, v28, vcc" % (o + i, o + i))
        a("s_lshl_b32 s%d, s%d, 9" % (sB, sC))
        a("v_lshl_add_u32 v%d, v%d, 4, s%d" % (o + 5, vN31, sB))

        def item(text):
            return lambda: a.vmem(text, "p0")
        for i in range(3):
            self.fq.append(item("buffer_load_dword v%d, v%d, %s, 0 offen" % (self.KRAW + i, o + i, sr(S_K, 4))))
        for i in range(8):
            self.fq.append(item("buffer_load_dword v%d, v%d, %s, 0 offen offset:%d"
                                % (self.KRAW + 3 + i, o + 3 + i // 4, sr(S_K, 4), (i % 4) * 1024)))
        for i in range(8):
            self.fq.append(item("buffer_load_dword v%d, v%d, %s, 0 offen offset:%d"
                                % (self.VRAW + i, o + 3 + i // 4, sr(S_V, 4), (i % 4) * 1024)))
        self.fq.append(item("buffer_load_dwordx4 %s, v%d, %s, 0 offen" % (vr(self.SHRAW, 4), o + 5, sr(S_SHK, 4))))

    ACK, ACS, ACC_CS = 32, 48, 64
    BF, AK, AS, AC = 80, 96, 104, 112
    SUM, ONE4 = 120, 124

    def s1_setup(self):
        a = self.a
        a("v_bfe_u32 v26, v%d, 1, 3" % vN31)
        a("v_xor_b32 v26, v26, v%d" % vHH)
        a("v_lshlrev_b32 v26, 4, v26")
        a("v_lshl_add_u32 v26, v%d, 7, v26" % vN31)
        a("s_lshl_b32 s%d, s%d, 14" % (sA, sW))
        a("v_add_u32 v128, s%d, v26" % sA)
        for i in range(1, 4):
            a("v_xor_b32 v%d, %d, v128" % (128 + i, 32 * i))
        a("s_lshl_b32 s%d, s%d, 14" % (sA, sKH))
        a("s_add_u32 s%d, s%d, %d" % (sA, sA, LW))
        a("s_lshl_b32 s%d, s%d, 15" % (sB, sKH))
        a("s_add_u32 s%d, s%d, s%d" % (sE, sA, sB))
        a("v_add_u32 v134, s%d, v%d" % (sE, vWN))
        a("s_xor_b32 s%d, s%d, 0x8000" % (sB, sB))
        a("s_add_u32 s%d, s%d, s%d" % (sE, sA, sB))
        a("v_add_u32 v135, s%d, v%d" % (sE, vWN))
        a("s_xor_b32 s%d, s%d, s%d" % (sB, sKH, sTH))
        a("s_lshl_b32 s%d, s%d, 15" % (sB, sB))
        a("s_add_u32 s%d, s%d, s%d" % (sE, sA, sB))
        a("v_add_u32 v136, s%d, v%d" % (sE, vWN))

    def s1_main(self, after_stage):
        a = self.a
        ACK, ACS, ACC_CS, BF, AK, AS, AC, SUM, ONE4 = (self.ACK, self.ACS, self.ACC_CS, self.BF, self.AK, self.AS,
                                                       self.AC, self.SUM, self.ONE4)
        self.selector(ONE4)
        for i in range(4):
            a("v_mov_b32 v%d, 0" % (SUM + i))

        def aread(ks, which):
            base, addr = ((AK, 134), (AS, 135), (AC, 136))[which]
            for hf in range(2):
                a.lds("ds_read_b64_tr_b16 %s, v%d offset:%d"
                      % (vr(base + 4 * (ks & 1) + 2 * hf, 2), addr, ks * 1024 + hf * 256), "f%d_%d" % (ks, which))

        for st in range(4):
            if st < 3:
                after_stage(st)
            for q4 in range(4):
                a.lds("ds_read_b128 %s, v%d offset:%d" % (vr(BF + 4 * q4, 4), 128 + q4, LQ + st * 4096), "b")
            for which in range(3):
                aread(4 * st, which)
            self.fill(1)
            a.wait_lg("b")
            for j in range(16):
                a("v_dot2c_f32_bf16 v%d, s%d, v%d" % (SUM + (j & 1), sONES, BF + j))
                a("v_dot2c_f32_bf16 v%d, v%d, v%d" % (SUM + 2 + (j & 1), BF + j, BF + j))
                if j in (5, 11):
                    self.fill(1)
            for q4 in range(4):
                ks = 4 * st + q4
                b = ks & 1
                B = vr(BF + 4 * q4, 4)
                first = ks == 0
                a.wait_lg("f%d_0" % ks)
                a("%s %s, %s, %s, %s" % (MF32, vr(ACK, 16), vr(AK + 4 * b, 4), B, "0" if first else vr(ACK, 16)))
                if q4 < 3:
                    aread(ks + 1, 0)
                self.fill(1)
                a.wait_lg("f%d_1" % ks)
                a("%s %s, %s, %s, %s" % (MF32, vr(ACS, 16), vr(AS + 4 * b, 4), B, "0" if first else vr(ACS, 16)))
                if q4 < 3:
                    aread(ks + 1, 1)
                self.fill(1)
                a.wait_lg("f%d_2" % ks)
                a("%s %s, %s, %s, %s" % (MF16, vr(ACC_CS, 4), vr(AC + 4 * b, 4), vr(ONE4, 4),
                                         "0" if first else vr(ACC_CS, 4)))
                if q4 < 3:
                    aread(ks + 1, 2)
            self.stamp("s1st%d" % st)
        self.fill_all()

    def selector(self, dst):
        a = self.a
        a("v_lshrrev_b32 v26, 4, v%d" % vL)
        a("v_xor_b32 v26, v26, v%d" % vL)
        a("v_and_b32 v26, 1, v26")
        a("v_mov_b32 v27, s%d" % sONES)
        a("v_cmp_eq_u32 vcc, 0, v26")
        a("v_cndmask_b32 v%d, 0, v27, vcc" % dst)
        for i in range(1, 4):
            a("v_mov_b32 v%d, v%d" % (dst + i, dst))

    def colsum_write(self, src, sbase):
        a = self.a
        a("v_and_b32 v28, 1, v%d" % vL)
        a("v_lshlrev_b32 v28, 6, v28")
        a("v_lshrrev_b32 v29, 4, v%d" % vL)
        a("v_lshl_add_u32 v28, v29, 4, v28")
        a("v_add_u32 v28, s%d, v28" % sbase)
        self.hold += 1
        a("s_mov_b32 exec_lo, 0x30003")
        a("s_mov_b32 exec_hi, 0x30003")
        a.lds("ds_write_b128 v28, %s" % vr(src, 4))
        a("s_mov_b64 exec, -1")
        self.hold -= 1

    def q_tile_read(self):
        a = self.a
        self.feat0(sE, sKH, 0)
        a("s_lshr_b32 s%d, s%d, 8" % (sA, sE))
        a("s_lshl_b32 s%d, s%d, 1" % (sB, sTH))
        a("s_add_u32 s%d, s%d, s%d" % (sA, sA, sB))
        a("s_lshl_b32 s%d, s%d, 14" % (sA, sA))
        a("s_lshr_b32 s%d, s%d, 6" % (sB, sE))
        a("s_sub_u32 s%d, s%d, s%d" % (sB, sB, sROT))
        a("s_and_b32 s%d, s%d, 3" % (sB, sB))
        a("s_lshl_b32 s%d, s%d, 12" % (sB, sB))
        a("s_add_u32 s%d, s%d, s%d" % (sA, sA, sB))
        a("s_bfe_u32 s%d, s%d, 0x10005" % (sB, sE))
        a("s_lshl_b32 s%d, s%d, 2" % (sB, sB))
        a("v_bfe_u32 v26, v%d, 1, 3" % vN31)
        a("v_xor_b32 v26, s%d, v26" % sB)
        a("v_lshlrev_b32 v27, 7, v%d" % vN31)
        a("v_lshl_add_u32 v27, v%d, 3, v27" % vHH)
        a("v_add_u32 v27, s%d, v27" % sA)
        for j in range(4):
            a("v_xor_b32 v28, %d, v26" % j)
            a("v_lshl_add_u32 v28, v28, 4, v27")
            a.lds("ds_read_b64 %s, v28 offset:%d" % (vr(vQ + 2 * j, 2), LQ), "qt")

    def gelu(self, X, n, vA13, vIA, T, out, fills=0):
        a = self.a
        for g0 in range(0, n // 2, 4):
            ps = list(range(g0, min(g0 + 4, n // 2)))
            t = lambda p: T + 4 * (p - g0)
            x = lambda p: vr(X + 2 * p, 2)
            left = fills

            def hook():
                nonlocal left
                if left > 0:
                    self.fill(1)
                    left -= 1
            for p in ps:
                a("v_pk_mul_f32 %s, %s, %s" % (vr(t(p), 2), x(p), x(p)))
            for p in ps:
                a("v_pk_fma_f32 %s, %s, %s, %s op_sel:[0,1,0] op_sel_hi:[1,1,0]"
                  % (vr(t(p), 2), vr(t(p), 2), vr(vA13, 2), vr(vA13, 2)))
            hook()
            for p in ps:
                a("v_pk_mul_f32 %s, %s, %s" % (vr(t(p), 2), vr(t(p), 2), x(p)))
            for p in ps:
                a("v_exp_f32 v%d, v%d" % (t(p) + 2, t(p)))
                a("v_exp_f32 v%d, v%d" % (t(p) + 3, t(p) + 1))
            hook()
            for p in ps:
                a("v_pk_fma_f32 %s, %s, %s, %s op_sel_hi:[1,0,0]"
                  % (vr(t(p), 2), vr(t(p) + 2, 2), vr(vIA, 2), vr(vIA, 2)))
            hook()
            for p in ps:
                a("v_rcp_f32 v%d, v%d" % (t(p) + 2, t(p)))
                a("v_rcp_f32 v%d, v%d" % (t(p) + 3, t(p) + 1))
            hook()
            for p in ps:
                a("v_pk_mul_f32 %s, %s, %s" % (vr(t(p), 2), vr(t(p) + 2, 2), x(p)))
            for p in ps:
                a("v_cvt_pk_bf16_f32 v%d, v%d, v%d" % (out + p, t(p), t(p) + 1))

    def gelu_consts(self, vA, dst):
        a = self.a
        a("v_mul_f32 v%d, s%d, v%d" % (dst, sKG1, vA))
        a("v_mul_f32 v%d, v%d, v%d" % (dst + 1, vA, vA))
        a("v_mul_f32 v%d, v%d, v%d" % (dst + 1, dst + 1, vA))
        a("v_mul_f32 v%d, s%d, v%d" % (dst + 1, sKG3, dst + 1))
        a("v_rcp_f32 v%d, v%d" % (dst + 2, vA))

    def exchange_write(self, send, base=LRED):
        a = self.a
        a("s_lshl_b32 s%d, s%d, 12" % (sA, sW))
        a("s_add_u32 s%d, s%d, %d" % (sA, sA, base))
        a("v_add_u32 v26, s%d, v%d" % (sA, vL16))
        for j in range(4):
            a.lds("ds_write_b128 v26, %s offset:%d" % (vr(send + 4 * j, 4), 1024 * j))

    def exchange_read(self, dst, base=LRED):
        a = self.a
        a("s_xor_b32 s%d, s%d, 1" % (sA, sW))
        a("s_lshl_b32 s%d, s%d, 12" % (sA, sA))
        a("s_add_u32 s%d, s%d, %d" % (sA, sA, base))
        a("v_add_u32 v26, s%d, v%d" % (sA, vL16))
        for j in range(4):
            a.lds("ds_read_b128 %s, v26 offset:%d" % (vr(dst + 4 * j, 4), 1024 * j), "xr")

    def s1_epilogue(self, after_exchange):
        a = self.a
        ACK, ACS, ACC_CS, SUM = self.ACK, self.ACS, self.ACC_CS, self.SUM
        self.q_tile_read()
        a("v_add_f32 v%d, v%d, v%d" % (SUM, SUM, SUM + 1))
        a("v_add_f32 v%d, v%d, v%d" % (SUM + 2, SUM + 2, SUM + 3))
        a("v_permlane32_swap_b32 v%d, v%d" % (SUM, SUM + 2))
        a("v_add_f32 v%d, v%d, v%d" % (SUM, SUM, SUM + 2))
        a("s_lshl_b32 s%d, s%d, 8" % (sA, sW))
        a("s_add_u32 s%d, s%d, %d" % (sA, sA, LSTX))
        a("v_lshl_add_u32 v27, v%d, 2, s%d" % (vL, sA))
        a.lds("ds_write_b32 v27, v%d" % SUM)
        self.exchange_write(ACS)
        a("s_xor_b32 s%d, s%d, s%d" % (sA, sKH, sTH))
        a("s_lshl_b32 s%d, s%d, 8" % (sA, sA))
        a("s_lshl_b32 s%d, s%d, 7" % (sB, sKH))
        a("s_add_u32 s%d, s%d, s%d" % (sA, sA, sB))
        a("s_add_u32 s%d, s%d, %d" % (sA, sA, LCSX))
        self.colsum_write(ACC_CS, sA)
        a.wait_lg_all()
        self.ssm_d_unpack()
        self.barrier()
        P, C0, C1 = 80, 96, 128
        self.exchange_read(P)
        a("s_xor_b32 s%d, s%d, 1" % (sA, sW))
        a("s_lshl_b32 s%d, s%d, 8" % (sA, sA))
        a("s_add_u32 s%d, s%d, %d" % (sA, sA, LSTX))
        a("v_lshl_add_u32 v27, v%d, 2, s%d" % (vL, sA))
        a.lds("ds_read_b32 v%d, v27" % (SUM + 1), "sx")
        a("s_lshl_b32 s%d, s%d, 8" % (sA, sKH))
        a("s_add_u32 s%d, s%d, %d" % (sA, sA, LCSX))
        a("v_lshl_add_u32 v28, v%d, 4, s%d" % (vHH, sA))
        for j in range(4):
            a.lds("ds_read_b128 %s, v28 offset:%d" % (vr(C0 + 4 * j, 4), 32 * j))
            a.lds("ds_read_b128 %s, v28 offset:%d" % (vr(C1 + 4 * j, 4), 128 + 32 * j))
        after_exchange()
        a.wait_lg("sx")
        a("v_add_f32 v%d, v%d, v%d" % (SUM, SUM, SUM + 1))
        a("v_mov_b32 v%d, v%d" % (SUM + 2, SUM))
        a("v_permlane32_swap_b32 v%d, v%d" % (SUM, SUM + 2))
        a("v_mul_f32 v%d, s%d, v%d" % (vMEAN, s512I, SUM))
        a("v_mul_f32 v26, s%d, v%d" % (s512I, SUM + 2))
        a("v_fma_f32 v26, -v%d, v%d, v26" % (vMEAN, vMEAN))
        a("v_max_f32 v26, 0, v26")
        a("v_add_f32 v27, s%d, v26" % sEPS)
        a("v_rsq_f32 v%d, v27" % vR1)
        a("v_mul_f32 v27, v%d, v%d" % (vR1, vR1))
        a("v_fma_f32 v27, v27, v26, s%d" % sEPS)
        a("v_rsq_f32 v27, v27")
        a("v_mul_f32 v27, v27, v%d" % vR1)
        G = 112
        self.gelu_consts(27, G)
        a("v_sub_f32 v%d, 0, v%d" % (G + 4, vMEAN))
        a.wait_lg_all()
        for p in range(8):
            a("v_pk_add_f32 %s, %s, %s" % (vr(C0 + 2 * p, 2), vr(C0 + 2 * p, 2), vr(C1 + 2 * p, 2)))
            a("v_pk_add_f32 %s, %s, %s" % (vr(ACK + 2 * p, 2), vr(ACK + 2 * p, 2), vr(P + 2 * p, 2)))
        for p in range(8):
            a("v_pk_fma_f32 %s, %s, %s, %s op_sel_hi:[1,0,1]"
              % (vr(ACK + 2 * p, 2), vr(C0 + 2 * p, 2), vr(G + 4, 2), vr(ACK + 2 * p, 2)))
        self.gelu(ACK, 16, G, G + 2, 144, 48, fills=0)
        self.frag_store(48, WS_HS, "hst")

    def frag_store(self, src, base, tag):
        a = self.a
        a("s_lshl_b32 s%d, s%d, 15" % (sA, sT))
        self.feat0(sB, sKH, 6)
        a("s_add_u32 s%d, s%d, s%d" % (sA, sA, sB))
        a("s_add_u32 s%d, s%d, 0x%x" % (sA, sA, base))
        a.vmem("buffer_store_dwordx4 %s, v%d, %s, s%d offen sc1" % (vr(src, 4), vL16, sr(S_WS, 4), sA), tag)
        a.vmem("buffer_store_dwordx4 %s, v%d, %s, s%d offen offset:1024 sc1"
               % (vr(src + 4, 4), vL16, sr(S_WS, 4), sA), tag)

    PK = 118

    def nonce_compute(self):
        a = self.a
        a.wait_vm("nonce")
        a("v_readfirstlane_b32 s%d, v30" % sN)
        a("s_mul_i32 s%d, s%d, 0x9e3779b1" % (sN, sN))
        a("s_add_u32 s%d, s%d, 0x7f4a7c15" % (sN, sN))

    def p0_compute(self, mid=None):
        a = self.a
        K, V, SH, KV, PK = 56, 78, 94, 102, self.PK
        a.wait_vm("p0")
        d = self.SHRAW
        for j, (x, y, hi) in enumerate([(d, d + 2, 0), (d, d + 2, 1), (d + 1, d + 3, 0), (d + 1, d + 3, 1)]):
            for o, src in ((0, x), (1, y)):
                if hi:
                    a("v_and_b32 v%d, s%d, v%d" % (SH + 2 * j + o, sHI, src))
                else:
                    a("v_lshlrev_b32 v%d, 16, v%d" % (SH + 2 * j + o, src))
        for i in range(11):
            a("v_lshlrev_b32 v%d, 16, v%d" % (K + 2 * i, self.KRAW + i))
            a("v_and_b32 v%d, s%d, v%d" % (K + 2 * i + 1, sHI, self.KRAW + i))
            if i % 4 == 3:
                self.fill(1)
        for i in range(8):
            a("v_lshlrev_b32 v%d, 16, v%d" % (V + 2 * i, self.VRAW + i))
            a("v_and_b32 v%d, s%d, v%d" % (V + 2 * i + 1, sHI, self.VRAW + i))
        self.fill(1)
        for t in range(8):
            a("v_pk_mul_f32 %s, %s, %s" % (vr(KV + 2 * t, 2), vr(K + 2 * (t + 3), 2), vr(SH, 2)))
        self.fill(1)
        for j in range(1, 4):
            for t in range(8):
                a("v_pk_fma_f32 %s, %s, %s, %s" % (vr(KV + 2 * t, 2), vr(K + 2 * (t + 3 - j), 2), vr(SH + 2 * j, 2),
                                                   vr(KV + 2 * t, 2)))
            self.fill(1)
        if mid:
            mid()
            self.fill(4)
        for t in range(8):
            a("v_pk_mul_f32 %s, %s, %s" % (vr(KV + 2 * t, 2), vr(KV + 2 * t, 2), vr(V + 2 * t, 2)))
        self.fill(1)
        for c in range(2):
            for t in range(4):
                a("v_cvt_pk_bf16_f32 v%d, v%d, v%d" % (PK + 4 * c + t, KV + 4 * t + c, KV + 4 * t + 2 + c))
        a("s_lshl_b32 s%d, s%d, 1" % (sA, sW))
        a("v_add_u32 v26, s%d, v%d" % (sA, vHH))
        a("v_and_b32 v27, 7, v%d" % vN31)
        a("v_xor_b32 v26, v26, v27")
        a("v_lshlrev_b32 v26, 4, v26")
        a("v_lshl_add_u32 v26, v%d, 8, v26" % vN31)
        a("v_add_u32 v26, %d, v26" % LSTG)
        a.lds("ds_write_b128 v26, %s" % vr(PK, 4))
        a.lds("ds_write_b128 v26, %s offset:128" % vr(PK + 4, 4))
        self.fill_all()

    def p0_readback(self):
        a = self.a
        PK = 144
        a("v_lshrrev_b32 v26, 3, v%d" % vL)
        a("s_lshl_b32 s%d, s%d, 4" % (sA, sW))
        a("v_add_u32 v26, s%d, v26" % sA)
        a("v_and_b32 v27, 7, v%d" % vL)
        for i in range(2):
            a("v_add_u32 v28, %d, v26" % (8 * i))
            a("v_bfe_u32 v29, v28, 1, 3")
            a("v_xor_b32 v29, v29, v27")
            a("v_lshlrev_b32 v29, 4, v29")
            a("v_lshl_add_u32 v29, v28, 7, v29")
            a("v_add_u32 v29, %d, v29" % LSTG)
            a.lds("ds_read_b128 %s, v29" % vr(PK + 4 * i, 4), "pk")
        a("v_lshlrev_b32 v27, 4, v27")
        a("v_lshl_add_u32 v152, v26, 12, v27")

    def p0_store(self):
        a = self.a
        PK = 144
        a("s_lshl_b32 s%d, s%d, 18" % (sA, sC))
        a("s_lshl_b32 s%d, s%d, 7" % (sB, sR))
        a("s_add_u32 s%d, s%d, s%d" % (sA, sA, sB))
        a("s_add_u32 s%d, s%d, 0x%x" % (sA, sA, WS_KVT))
        a("s_add_u32 s%d, s%d, 0x8000" % (sB, sA))
        a.wait_lg("pk")
        a.vmem("buffer_store_dwordx4 %s, v152, %s, s%d offen sc1" % (vr(PK, 4), sr(S_WS, 4), sA), "kvt")
        a.vmem("buffer_store_dwordx4 %s, v152, %s, s%d offen sc1" % (vr(PK + 4, 4), sr(S_WS, 4), sB), "kvt")

    def conv_filter_loads(self, ch):
        a = self.a
        a("v_lshlrev_b32 v26, 4, v%d" % vTID)
        a("v_subrev_u32 v27, 8, v26")
        a("v_mov_b32 v28, 0x%x" % OOB)
        a("v_cmp_eq_u32 vcc, 0, v%d" % vTID)
        a("v_cndmask_b32 v27, v27, v28, vcc")
        a("s_lshl_b32 s%d, s2, 13" % sA)
        if ch:
            a("s_add_u32 s%d, s%d, 0x1000" % (sA, sA))
        dA, dP = (ar(0, 4), ar(4, 2)) if ch else (vr(vCH, 4), vr(vCH + 4, 2))
        a.vmem("buffer_load_dwordx4 %s, v26, %s, s%d offen" % (dA, sr(S_SSM, 4), sA), "cf")
        a.vmem("buffer_load_dwordx2 %s, v27, %s, s%d offen" % (dP, sr(S_SSM, 4), sA), "cf")

    def ssm_d_load(self):
        a = self.a
        a("s_lshl_b32 s%d, s2, 2" % sA)
        a("s_load_dword s%d, %s, s%d" % (sD0, sr(S_DPTR, 2), sA))

    def ssm_d_unpack(self):
        a = self.a
        a("s_and_b32 s%d, s%d, s%d" % (sD1, sD0, sHI))
        a("s_lshl_b32 s%d, s%d, 16" % (sD0, sD0))

    def conv_x_loads(self, ch):
        a = self.a
        a("v_lshlrev_b32 v26, 4, v%d" % vTID)
        a("s_lshl_b32 s%d, s2, 13" % sA)
        a("s_add_u32 s%d, s%d, 0x%x" % (sA, sA, WS_KVT + 0x1000 * ch))
        a.vmem("buffer_load_dwordx4 %s, v26, %s, s%d offen sc1" % (ar(6, 4) if ch else vr(vCH + 6, 4), sr(S_WS, 4), sA), "cx")

    def conv_prep_filter(self, ch):
        a = self.a
        base = CV_BASE1 if ch else CV_BASE
        A, P = vCH, vCH + 4
        a.wait_vm("cf")
        if ch:
            for i in range(6):
                a("v_accvgpr_read_b32 v%d, a%d" % (vCH + i, i))
        a("v_min_u32 v26, 79, v%d" % vTID)
        a("v_subrev_u32 v27, 72, v26")
        a("v_lshrrev_b32 v28, 1, v27")
        a("v_mul_u32_u24 v28, 4128, v28")
        a("v_and_b32 v27, 1, v27")
        a("v_lshl_add_u32 v28, v27, 4, v28")
        a("v_add_u32 v28, %d, v28" % (base + CV_A))
        a("v_lshlrev_b32 v27, 4, v26")
        a("v_add_u32 v27, %d, v27" % (base + CV_X))
        a("v_cmp_gt_u32 vcc, 72, v26")
        a("v_cndmask_b32 v28, v28, v27, vcc")
        for i in range(4):
            a("v_mov_b32 v%d, 0" % (32 + i))
        a.lds("ds_write_b128 v28, %s" % vr(32, 4))
        Z, Y, W = 36, 40, 44
        seq = [P, P + 1, A, A + 1, A + 2, A + 3]
        for j in range(4):
            a("v_alignbit_b32 v%d, v%d, v%d, 16" % (Z + j, seq[j + 1], seq[j]))
            a("v_alignbit_b32 v%d, v%d, v%d, 16" % (Y + j, seq[j + 2], seq[j + 1]))
            a("v_mov_b32 v%d, v%d" % (W + j, seq[j + 1]))
        a("v_lshlrev_b32 v29, 4, v%d" % vTID)
        a("v_add_u32 v29, %d, v29" % base)
        for rho, src in ((0, A), (1, Y), (2, W), (3, Z)):
            a.lds("ds_write_b128 v29, %s offset:%d" % (vr(src, 4), CV_A + 32 + 4128 * rho))

    def conv_prep_x(self, ch):
        a = self.a
        base = CV_BASE1 if ch else CV_BASE
        a.wait_vm("cx")
        a("v_lshlrev_b32 v29, 4, v%d" % vTID)
        a("v_add_u32 v29, %d, v29" % base)
        a.lds("ds_write_b128 v29, %s offset:%d" % (ar(6, 4) if ch else vr(vCH + 6, 4), CV_XD))
        a.wait_lg_all()
        self.barrier()
        a("s_lshl_b32 s%d, s%d, 5" % (sA, sW))
        a("s_sub_u32 s%d, %d, s%d" % (sA, base + CV_XD - 1024, sA))
        a("v_lshl_add_u32 v26, v%d, 3, s%d" % (vL, sA))
        for u in range(10):
            a.lds("ds_read_b64_tr_b16 %s, v26 offset:%d" % (vr(32 + 2 * u, 2), 512 * u), "u%d" % u)
        a("s_mul_i32 s%d, s%d, 5312" % (sA, sW))
        a("s_add_u32 s%d, s%d, %d" % (sA, sA, base + CV_P))
        a("v_and_b32 v27, 15, v%d" % vL)
        a("v_mul_u32_u24 v27, 328, v27")
        a("v_lshrrev_b32 v28, 4, v%d" % vL)
        a("v_lshl_add_u32 v27, v28, 3, v27")
        a("v_add_u32 v27, s%d, v27" % sA)
        self.fill(2)
        for u in range(10):
            a.wait_lg("u%d" % u)
            a.lds("ds_write_b64 v27, %s offset:%d" % (vr(32 + 2 * u, 2), 32 * u))
        a("s_lshl_b32 s%d, s%d, 3" % (sA, sW))
        a("s_sub_u32 s%d, %d, s%d" % (sA, base + CV_A + 32, sA))
        a("v_lshl_add_u32 v160, v%d, 3, s%d" % (vL, sA))
        a("s_mul_i32 s%d, s%d, 1312" % (sA, sW))
        a("s_add_u32 s%d, s%d, %d" % (sA, sA, base + CV_P + 32))
        a("v_bfe_u32 v26, v%d, 2, 2" % vL)
        a("v_mul_u32_u24 v26, 5312, v26")
        a("v_and_b32 v27, 3, v%d" % vL)
        a("v_lshrrev_b32 v28, 4, v%d" % vL)
        a("v_sub_u32 v27, v27, v28")
        a("v_lshl_add_u32 v26, v27, 3, v26")
        a("v_add_u32 v161, s%d, v26" % sA)
        self.fill(2)
        a.wait_lg_all()
        self.barrier()

    CACC, CAF, CBF = 32, 64, 96

    def conv_main(self, hook=None, fill_every=0):
        a = self.a
        CACC, CAF, CBF = self.CACC, self.CAF, self.CBF

        def rd_list(rho):
            b = rho & 1
            out = []
            order = [("A", 0)] + [("B", c) for c in range(8)] + [("A", 1), ("A", 2), ("A", 3)]
            for kind, i in order:
                for hf in range(2):
                    if kind == "A":
                        out.append("ds_read_b64_tr_b16 %s, v160 offset:%d"
                                   % (vr(CAF + 16 * b + 4 * i + 2 * hf, 2), 4128 * rho + 1024 * i + 512 * hf))
                    else:
                        out.append("ds_read_b64_tr_b16 %s, v161 offset:%d"
                                   % (vr(CBF + 32 * b + 4 * i + 2 * hf, 2), 328 * rho + 32 * i + 32 * (1 - hf)))
            return out

        for x in rd_list(0):
            a.lds(x)
        a.wait_lg_all()
        cnt = 0
        for rho in range(4):
            if hook:
                hook(rho)
            b = rho & 1
            nxt = rd_list(rho + 1) if rho < 3 else []
            k = 0
            for q in range(4):
                for c in range(8 - 2 * q):
                    t = c + 2 * q
                    acc = vr(CACC + 4 * t, 4)
                    a("%s %s, %s, %s, %s" % (MF16, acc, vr(CAF + 16 * b + 4 * q, 4), vr(CBF + 32 * b + 4 * c, 4),
                                             "0" if (rho == 0 and q == 0) else acc))
                    for _ in range(2 if k < 8 else 1):
                        if nxt:
                            a.lds(nxt.pop(0))
                    k += 1
                    cnt += 1
                    if fill_every and cnt % fill_every == 0:
                        self.fill(1)
            assert not nxt
            a.wait_lg_all()

    def conv_finish(self, ch):
        a = self.a
        base = CV_BASE1 if ch else CV_BASE
        CACC = self.CACC
        self.barrier()
        a("s_lshl_b32 s%d, s%d, 11" % (sA, sW))
        a("s_add_u32 s%d, s%d, %d" % (sA, sA, base + CV_R))
        a("v_add_u32 v26, s%d, v%d" % (sA, vL16))
        for t in range(8):
            a.lds("ds_write_b128 v26, %s offset:%d" % (vr(CACC + 4 * t, 4), (t >> 1) * 8192 + (t & 1) * 1024))
        a("s_lshl_b32 s%d, s%d, 10" % (sA, sW))
        a("s_add_u32 s%d, s%d, %d" % (sA, sA, base + CV_XD))
        a("v_and_b32 v27, 15, v%d" % vL)
        a("v_lshlrev_b32 v27, 5, v27")
        a("v_lshrrev_b32 v28, 4, v%d" % vL)
        a("v_lshl_add_u32 v27, v28, 3, v27")
        a("v_add_u32 v27, s%d, v27" % sA)
        for u in range(2):
            a.lds("ds_read_b64 %s, v27 offset:%d" % (vr(100 + 2 * u, 2), 512 * u))
        a.wait_lg_all()
        self.barrier()
        a("s_lshl_b32 s%d, s%d, 13" % (sA, sW))
        a("s_add_u32 s%d, s%d, %d" % (sA, sA, base + CV_R))
        a("v_add_u32 v26, s%d, v%d" % (sA, vL16))
        for sl in range(4):
            for u in range(2):
                a.lds("ds_read_b128 %s, v26 offset:%d" % (vr(64 + 8 * sl + 4 * u, 4), sl * 2048 + u * 1024))
        for u in range(2):
            for j in range(2):
                a("v_lshlrev_b32 v%d, 16, v%d" % (104 + 4 * u + 2 * j, 100 + 2 * u + j))
                a("v_and_b32 v%d, s%d, v%d" % (105 + 4 * u + 2 * j, sHI, 100 + 2 * u + j))
        a("v_mov_b32 v112, s%d" % (sD1 if ch else sD0))
        a("v_lshrrev_b32 v26, 4, v%d" % vL)
        a("v_and_b32 v27, 1, v26")
        a("v_lshlrev_b32 v27, 9, v27")
        a("v_lshrrev_b32 v26, 1, v26")
        a("v_lshl_add_u32 v27, v26, 4, v27")
        a("v_and_b32 v26, 15, v%d" % vL)
        a("v_lshl_add_u32 v27, v26, 5, v27")
        a("s_lshl_b32 s%d, s%d, 10" % (sA, sW))
        a("v_add_u32 v27, s%d, v27" % sA)
        a("s_lshl_b32 s%d, s2, 13" % sA)
        a("s_add_u32 s%d, s%d, 0x%x" % (sA, sA, WS_YT + 0x1000 * ch))
        a.wait_lg_all()
        for p in range(4):
            a("v_pk_add_f32 %s, %s, %s" % (vr(64 + 2 * p, 2), vr(64 + 2 * p, 2), vr(72 + 2 * p, 2)))
            a("v_pk_add_f32 %s, %s, %s" % (vr(80 + 2 * p, 2), vr(80 + 2 * p, 2), vr(88 + 2 * p, 2)))
        for p in range(4):
            a("v_pk_add_f32 %s, %s, %s" % (vr(64 + 2 * p, 2), vr(64 + 2 * p, 2), vr(80 + 2 * p, 2)))
        for p in range(4):
            a("v_pk_fma_f32 %s, %s, %s, %s op_sel_hi:[1,0,1]" % (vr(64 + 2 * p, 2), vr(104 + 2 * p, 2), vr(112, 2),
                                                                vr(64 + 2 * p, 2)))
        for p in range(4):
            a("v_cvt_pk_bf16_f32 v%d, v%d, v%d" % (116 + p, 64 + 2 * p, 65 + 2 * p))
        a("v_permlane16_swap_b32 v116, v118")
        a("v_permlane16_swap_b32 v117, v119")
        a.vmem("buffer_store_dwordx4 %s, v27, %s, s%d offen sc1" % (vr(116, 4), sr(S_WS, 4), sA), "yt")

    def s2_load_items(self):
        a = self.a
        a("s_lshl_b32 s%d, s%d, 5" % (sA, sT))
        a("v_add_u32 v26, s%d, v%d" % (sA, vN31))
        a("s_add_u32 s%d, s%d, 1" % (sB, sKH))
        a("s_lshl_b32 s%d, s%d, 14" % (sA, sKH))
        a("s_add_u32 s%d, s%d, 0x%x" % (sA, sA, WS_HS))
        a("v_mov_b32 v29, 0x%x" % OOB)
        for i, op in enumerate(("v_subrev_u32", "v_add_u32")):
            a("%s v27, s%d, v26" % (op, sB))
            a("v_lshrrev_b32 v28, 5, v27")
            a("v_lshlrev_b32 v28, 15, v28")
            a("v_and_b32 v30, 31, v27")
            a("v_lshl_add_u32 v30, v%d, 5, v30" % vHH)
            a("v_lshl_add_u32 v28, v30, 4, v28")
            a("v_add_u32 v28, s%d, v28" % sA)
            a("v_cmp_gt_u32 vcc, 0x800, v27")
            a("v_cndmask_b32 v%d, v29, v28, vcc" % (140 + i))
        so = ["0", "s%d" % sK4, "s%d" % sK8, "s%d" % sK12]
        items = []
        for ks in range(16):
            def f(ks=ks):
                a.vmem("buffer_load_dwordx4 %s, v%d, %s, %s offen offset:%d sc1"
                       % (ar(4 * ks, 4), 140 + (ks >> 3), sr(S_WS, 4), so[ks >> 2], (ks & 3) * 1024), "h%d" % ks)
            items.append(f)
        return items

    def wpi_addr(self, vk, vs, base, khs, ps):
        a = self.a
        a("s_mul_i32 s%d, s%d, %d" % (sA, sKH, khs + ps))
        a("s_add_u32 s%d, s%d, %d" % (sA, sA, base))
        a("v_add_u32 v%d, s%d, v%d" % (vk, sA, vWP))
        a("s_mul_i32 s%d, s%d, %d" % (sA, sKH, khs - ps))
        a("s_add_u32 s%d, s%d, %d" % (sA, sA, base + ps))
        a("v_add_u32 v%d, s%d, v%d" % (vs, sA, vWP))

    def s2_main(self):
        a = self.a
        ACK, ACS, AK, AS = self.ACK, self.ACS, self.AK, self.AS

        def rd(ks, which):
            base, addr = ((AK, 128), (AS, 129))[which]
            for hf in range(2):
                a.lds("ds_read_b64_tr_b16 %s, v%d offset:%d" % (vr(base + 4 * (ks & 1) + 2 * hf, 2), addr,
                                                                ks * 1024 + hf * 512), "f%d_%d" % (ks, which))
        rd(0, 0)
        rd(0, 1)
        for ks in range(16):
            b = ks & 1
            a.wait_both("h%d" % ks, "f%d_0" % ks)
            a("%s %s, %s, %s, %s" % (MF32, vr(ACK, 16), vr(AK + 4 * b, 4), ar(4 * ks, 4), "0" if ks == 0 else vr(ACK, 16)))
            if ks < 15:
                rd(ks + 1, 0)
            self.fill(1)
            a.wait_lg("f%d_1" % ks)
            a("%s %s, %s, %s, %s" % (MF32, vr(ACS, 16), vr(AS + 4 * b, 4), ar(4 * ks, 4), "0" if ks == 0 else vr(ACS, 16)))
            if ks < 15:
                rd(ks + 1, 1)

    def unpack8(self, src, dst):
        a = self.a
        for j in range(8):
            a("v_lshlrev_b32 v%d, 16, v%d" % (dst + 2 * j, src + j))
            a("v_and_b32 v%d, s%d, v%d" % (dst + 2 * j + 1, sHI, src + j))

    def xn_tile(self, dst):
        a = self.a
        self.unpack8(vQ, dst)
        for p in range(8):
            a("v_pk_add_f32 %s, %s, %s op_sel_hi:[1,0] neg_lo:[0,1] neg_hi:[0,1]"
              % (vr(dst + 2 * p, 2), vr(dst + 2 * p, 2), vr(vMEAN, 2)))
        for p in range(8):
            a("v_pk_mul_f32 %s, %s, %s op_sel:[0,1] op_sel_hi:[1,1]"
              % (vr(dst + 2 * p, 2), vr(dst + 2 * p, 2), vr(vMEAN, 2)))

    def s2_epilogue(self, after_exchange):
        a = self.a
        ACK, ACS = self.ACK, self.ACS
        self.exchange_write(ACS)
        self.xn_tile(96)
        a.wait_lg_all()
        self.barrier()
        after_exchange()
        self.exchange_read(80)
        for p in range(8):
            a("v_pk_add_f32 %s, %s, %s" % (vr(ACK + 2 * p, 2), vr(ACK + 2 * p, 2), vr(96 + 2 * p, 2)))
        a.wait_lg_all()
        for p in range(8):
            a("v_pk_add_f32 %s, %s, %s" % (vr(ACK + 2 * p, 2), vr(ACK + 2 * p, 2), vr(80 + 2 * p, 2)))
        for p in range(8):
            a("v_cvt_pk_bf16_f32 v%d, v%d, v%d" % (vX1 + p, ACK + 2 * p, ACK + 2 * p + 1))
        self.frag_store(vX1, WS_X1, "x1st")
        a("v_pk_mul_f32 %s, %s, %s" % (vr(112, 2), vr(ACK, 2), vr(ACK, 2)))
        a("v_pk_add_f32 %s, %s, %s" % (vr(114, 2), vr(ACK, 2), vr(ACK + 2, 2)))
        for p in range(1, 8):
            a("v_pk_fma_f32 %s, %s, %s, %s" % (vr(112, 2), vr(ACK + 2 * p, 2), vr(ACK + 2 * p, 2), vr(112, 2)))
            if p >= 2:
                a("v_pk_add_f32 %s, %s, %s" % (vr(114, 2), vr(114, 2), vr(ACK + 2 * p, 2)))
        a("v_add_f32 v114, v114, v115")
        a("v_add_f32 v112, v112, v113")
        a("v_permlane32_swap_b32 v114, v112")
        a("v_add_f32 v114, v114, v112")
        a("s_lshl_b32 s%d, s%d, 1" % (sA, sC))
        a("s_add_u32 s%d, s%d, s%d" % (sA, sA, sKH))
        a("s_lshl_b32 s%d, s%d, 14" % (sA, sA))
        a("s_lshl_b32 s%d, s%d, 7" % (sB, sT))
        a("s_add_u32 s%d, s%d, s%d" % (sA, sA, sB))
        a("s_add_u32 s%d, s%d, 0x%x" % (sA, sA, WS_ST))
        a("v_lshlrev_b32 v26, 13, v%d" % vHH)
        a("v_lshl_add_u32 v26, v%d, 2, v26" % vN31)
        a.vmem("buffer_store_dword v114, v26, %s, s%d offen sc1" % (sr(S_WS, 4), sA), "x1st")

    def w3_setup(self):
        a = self.a
        a("s_movk_i32 s%d, 3584" % sB)
        a("v_lshrrev_b32 v26, 2, v%d" % vL)
        a("v_mul_lo_u32 v26, v26, s%d" % sB)
        a("v_and_b32 v27, 3, v%d" % vL)
        a("v_lshl_add_u32 v%d, v27, 4, v26" % vW3F)
        a("v_lshrrev_b32 v26, 1, v%d" % vL)
        a("v_mul_lo_u32 v26, v26, s%d" % sB)
        a("v_and_b32 v27, 1, v%d" % vL)
        a("v_lshl_add_u32 v%d, v27, 4, v26" % vW3H)
        a("s_mul_i32 s%d, s%d, %d" % (sW3HG, sW, 128 * 3584))
        a("s_mul_i32 s%d, s%d, 224" % (sA, sCP))
        a("s_add_u32 s%d, s%d, s%d" % (sW3HG, sW3HG, sA))
        a("s_and_b32 s%d, s%d, 1" % (sB, sCP))
        a("s_lshl_b32 s%d, s%d, 5" % (sW3G, sB))
        a("s_add_u32 s%d, s%d, s%d" % (sW3G, sW3G, sW3HG))
        a("s_xor_b32 s%d, s%d, 1" % (sB, sB))
        a("s_mul_i32 s%d, s%d, 192" % (sB, sB))
        a("s_add_u32 s%d, s%d, s%d" % (sW3HG, sW3HG, sB))
        a("s_lshl_b32 s%d, s%d, 13" % (sW3L, sW))
        a("s_lshl_b32 s%d, s%d, 12" % (sW3HL, sW))

    def w3_items(self, panels):
        out = []
        for p in panels:
            if p < 3:
                for i in range(8):
                    out.append(self.dma_item(S_W3, vW3F, sW3L, W3_P + p * 32768 + i * 1024, sW3G,
                                             p * 64 + i * 16 * 3584, "w3"))
            else:
                for i in range(4):
                    out.append(self.dma_item(S_W3, vW3H, sW3HL, W3_H + i * 1024, sW3HG, i * 32 * 3584, "w3"))
        return out

    def s3_load_items(self):
        a = self.a
        a("s_lshl_b32 s%d, s%d, 15" % (sLD, sT3))
        a("s_add_u32 s%d, s%d, 0x%x" % (sLD, sLD, WS_X1))
        items = []
        for ks in range(32):
            def f(ks=ks):
                if ks and ks % 4 == 0:
                    a("s_add_u32 s%d, s%d, 0x1000" % (sLD, sLD))
                a.vmem("buffer_load_dwordx4 %s, v%d, %s, s%d offen offset:%d sc1"
                       % (ar(4 * (ks % 16), 4), vL16, sr(S_WS, 4), sLD, (ks & 3) * 1024), "x%d" % ks)
            items.append(f)
        return items

    def s3_stat_items(self):
        a = self.a
        a("v_lshlrev_b32 v147, 13, v%d" % vHH)
        a("v_lshl_add_u32 v147, v%d, 2, v147" % vN31)
        items = []
        for sl in range(16):
            def f(sl=sl):
                a("s_lshl_b32 s%d, s%d, 7" % (sSO, sT3))
                a("s_add_u32 s%d, s%d, 0x%x" % (sSO, sSO, WS_ST + 0x4000 * sl))
                a.vmem("buffer_load_dword v%d, v147, %s, s%d offen sc1" % (vST + sl, sr(S_WS, 4), sSO), "st")
            items.append(f)
        return items

    def s3_addr(self):
        a = self.a
        a("v_add_u32 v144, %d, v%d" % (W3_P, vWP))
        a("v_add_u32 v145, %d, v%d" % (W3_P + 65536, vWP))
        a("v_bfe_u32 v26, v%d, 2, 2" % vL)
        a("v_lshl_add_u32 v26, v%d, 2, v26" % vHH)
        a("v_and_b32 v27, 3, v%d" % vL)
        a("v_lshlrev_b32 v27, 3, v27")
        a("v_lshl_add_u32 v26, v26, 5, v27")
        a("v_add_u32 v146, %d, v26" % W3_H)

    @staticmethod
    def w3_read(p, ks, hf, dst):
        if p < 2:
            return "ds_read_b64_tr_b16 %s, v144 offset:%d" % (vr(dst, 2), p * 32768 + ks * 1024 + hf * 512)
        if p == 2:
            return "ds_read_b64_tr_b16 %s, v145 offset:%d" % (vr(dst, 2), ks * 1024 + hf * 512)
        return "ds_read_b64_tr_b16 %s, v146 offset:%d" % (vr(dst, 2), ks * 512 + hf * 256)

    def s3_colsum(self):
        self.hold += 1
        self._s3_colsum()
        self.hold -= 1

    def _s3_colsum(self):
        a = self.a
        full = a.newlabel("csfull")
        done = a.newlabel("csdone")
        self.selector(120)
        a("s_cmp_lt_u32 s%d, 3" % sW)
        a("s_cbranch_scc1 %s" % full)
        for is_full in (False, True):
            if is_full:
                a.label(full)
                a("s_lshl_b32 s%d, s%d, 15" % (sA, sW))
                a("v_add_u32 v148, s%d, v144" % sA)
            stride, hstep, addr = (1024, 512, 148) if is_full else (512, 256, 146)
            saved = list(a.lg)
            a.lg = []

            def rd(ks):
                for hf in range(2):
                    a.lds("ds_read_b64_tr_b16 %s, v%d offset:%d" % (vr(96 + 4 * (ks % 6) + 2 * hf, 2), addr,
                                                                    ks * stride + hf * hstep), "c%d" % ks)
            for ks in range(5):
                rd(ks)
            for ks in range(32):
                a.wait_lg("c%d" % ks)
                a("%s %s, %s, %s, %s" % (MF16, vr(32 + 4 * (ks & 1), 4), vr(96 + 4 * (ks % 6), 4), vr(120, 4),
                                         "0" if ks < 2 else vr(32 + 4 * (ks & 1), 4)))
                if ks + 5 < 32:
                    rd(ks + 5)
            a.lg = saved
            if not is_full:
                a("s_branch %s" % done)
        a.label(done)
        a("v_pk_add_f32 v[32:33], v[32:33], v[36:37]")
        a("v_pk_add_f32 v[34:35], v[34:35], v[38:39]")
        a("s_lshl_b32 s%d, s%d, 7" % (sA, sW))
        a("s_add_u32 s%d, s%d, %d" % (sA, sA, LCS3))
        self.colsum_write(32, sA)
        a.wait_lg_all()

    def s3_main(self, mid):
        a = self.a
        AF = 96

        def rd(ks, p):
            for hf in range(2):
                a.lds(self.w3_read(p, ks, hf, AF + 16 * (ks & 1) + 4 * p + 2 * hf), "f%d_%d" % (ks, p))
        for p in range(4):
            rd(0, p)
        for ks in range(32):
            b = ks & 1
            for p in range(4):
                if p == 0:
                    a.wait_both("x%d" % ks, "f%d_0" % ks)
                else:
                    a.wait_lg("f%d_%d" % (ks, p))
                acc = vr(32 + 16 * p, 16)
                a("%s %s, %s, %s, %s" % (MF32, acc, vr(AF + 16 * b + 4 * p, 4), ar(4 * (ks % 16), 4),
                                         "0" if ks == 0 else acc))
                if ks < 31:
                    rd(ks + 1, p)
                if p in (0, 2):
                    self.fill(1)
            if ks == self.opt.get("s3mid", 18):
                mid()
            if ks in (7, 15, 23) and self.opt.get("s3st", 0):
                self.stamp("s3k%d" % ks)

    def s3_epilogue(self):
        a = self.a
        G = 128
        a("v_lshlrev_b32 v28, 4, v%d" % vHH)
        a("v_add_u32 v149, %d, v28" % LCS3)

        def csread(p):
            n = 16 if p < 3 else 8
            for j in range(n // 4):
                a.lds("ds_read_b128 %s, v149 offset:%d" % (vr(96 + 16 * (p & 1) + 4 * j, 4), 128 * p + 32 * j), "cs%d" % p)
        csread(0)
        a.wait_vm("st")
        for s in (8, 4, 2, 1):
            for i in range(s):
                a("v_add_f32 v%d, v%d, v%d" % (vST + i, vST + i, vST + i + s))
        a("v_mov_b32 v%d, v%d" % (vST + 1, vST))
        a("v_permlane32_swap_b32 v%d, v%d" % (vST, vST + 1))
        a("v_mul_f32 v%d, s%d, v%d" % (vST + 2, s512I, vST))
        a("v_mul_f32 v26, s%d, v%d" % (s512I, vST + 1))
        a("v_fma_f32 v26, -v%d, v%d, v26" % (vST + 2, vST + 2))
        a("v_max_f32 v26, 0, v26")
        a("v_add_f32 v26, s%d, v26" % sEPS)
        a("v_rsq_f32 v27, v26")
        self.gelu_consts(27, G)
        a("v_sub_f32 v%d, 0, v%d" % (G + 4, vST + 2))
        a("s_mul_i32 s%d, s%d, 114688" % (sD, sT3))
        a("s_mul_i32 s%d, s%d, 7168" % (sA, sCP))
        a("s_add_u32 s%d, s%d, s%d" % (sD, sD, sA))
        a("s_add_u32 s%d, s%d, 0x%x" % (sD, sD, WS_HH))
        a("s_and_b32 s%d, s%d, 1" % (sB, sCP))
        a("s_lshl_b32 s%d, s%d, 10" % (sE, sB))
        a("s_add_u32 s%d, s%d, s%d" % (sE, sE, sD))
        a("s_xor_b32 s%d, s%d, 1" % (sB, sB))
        a("s_mul_i32 s%d, s%d, 6144" % (sB, sB))
        a("s_add_u32 s%d, s%d, s%d" % (sF, sD, sB))
        for p in range(4):
            n = 16 if p < 3 else 8
            C = 96 + 16 * (p & 1)
            if p < 3:
                csread(p + 1)
            a.wait_lg("cs%d" % p)
            acc = 32 + 16 * p
            for i in range(n // 2):
                a("v_pk_fma_f32 %s, %s, %s, %s op_sel_hi:[1,0,1]"
                  % (vr(acc + 2 * i, 2), vr(C + 2 * i, 2), vr(G + 4, 2), vr(acc + 2 * i, 2)))
            out = 152 + 8 * (p & 1)
            self.gelu(acc, n, G, G + 2, 176, out, fills=0)
            if p < 3:
                a("s_add_u32 s%d, s%d, %d" % (sA, sE, 2048 * p))
                a.vmem("buffer_store_dwordx4 %s, v%d, %s, s%d offen sc1" % (vr(out, 4), vL16, sr(S_WS, 4), sA), "Hst")
                a.vmem("buffer_store_dwordx4 %s, v%d, %s, s%d offen offset:1024 sc1"
                       % (vr(out + 4, 4), vL16, sr(S_WS, 4), sA), "Hst")
            else:
                a.vmem("buffer_store_dwordx4 %s, v%d, %s, s%d offen sc1" % (vr(out, 4), vL16, sr(S_WS, 4), sF), "Hst")

    def w4_setup(self):
        a = self.a
        a("s_lshl_b32 s%d, s%d, 11" % (sW4L, sKH))
        a("s_lshl_b32 s%d, s%d, 10" % (sA, sTH))
        a("s_add_u32 s%d, s%d, s%d" % (sW4L, sW4L, sA))
        a("s_mul_i32 s%d, s%d, %d" % (sW4G, sKH, 896 * 1024))
        self.feat0(sA, sTH, 1)
        a("s_add_u32 s%d, s%d, s%d" % (sW4G, sW4G, sA))

    def w4_items(self, ks0, ks1, tag):
        return [self.dma_item(S_W4, vW64, sW4L, w4_off(ks), sW4G, ks * 16384, tag) for ks in range(ks0, ks1)]

    def s4_load_items(self):
        a = self.a
        a("s_mul_i32 s%d, s%d, 114688" % (sLD, sT))
        a("s_mul_i32 s%d, s%d, %d" % (sB, sKH, 56 * 1024))
        a("s_add_u32 s%d, s%d, s%d" % (sLD, sLD, sB))
        a("s_add_u32 s%d, s%d, 0x%x" % (sLD, sLD, WS_HH))
        items = []
        for ks in range(56):
            def f(ks=ks):
                if ks and ks % 4 == 0:
                    a("s_add_u32 s%d, s%d, 0x1000" % (sLD, sLD))
                a.vmem("buffer_load_dwordx4 %s, v%d, %s, s%d offen offset:%d sc1"
                       % (ar(4 * (ks % 16), 4), vL16, sr(S_WS, 4), sLD, (ks & 3) * 1024), "H%d" % ks)
                a.check_vm_depth()
            items.append(f)
        return items

    def s4_y_items(self):
        a = self.a
        self.feat0(sE, sKH, 12)
        a("s_lshl_b32 s%d, s%d, 6" % (sB, sT))
        a("s_add_u32 s%d, s%d, s%d" % (sE, sE, sB))
        a("s_add_u32 s%d, s%d, 0x%x" % (sE, sE, WS_YT))
        a("v_lshlrev_b32 v147, 14, v%d" % vHH)
        a("v_lshl_add_u32 v147, v%d, 1, v147" % vN31)
        items = []
        for r in range(16):
            def f(r=r):
                a("s_add_u32 s%d, s%d, %d" % (sSO, sE, (8 * (r >> 2) + (r & 3)) * 4096))
                a.vmem("buffer_load_ushort v%d, v147, %s, s%d offen sc1" % (vST + r, sr(S_WS, 4), sSO), "y")
                a.check_vm_depth()
            items.append(f)
        return items

    XN4, BASE4 = 112, 148

    def s4_shadow_ops(self):
        XN, B = self.XN4, self.BASE4
        pre, post = [], []
        for j in range(8):
            pre.append("v_lshlrev_b32 v%d, 16, v%d" % (XN + 2 * j, vQ + j))
            pre.append("v_and_b32 v%d, s%d, v%d" % (XN + 2 * j + 1, sHI, vQ + j))
            pre.append("v_lshlrev_b32 v%d, 16, v%d" % (B + 2 * j, vX1 + j))
            pre.append("v_and_b32 v%d, s%d, v%d" % (B + 2 * j + 1, sHI, vX1 + j))
        for r in range(16):
            pre.append("v_add_f32 v%d, v%d, v%d" % (B + r, B + r, XN + r))
            pre.append("v_sub_f32 v%d, v%d, v%d" % (XN + r, XN + r, vMEAN))
            pre.append("v_mul_f32 v%d, v%d, v%d" % (XN + r, XN + r, vR1))
        for r in range(16):
            post.append("v_lshlrev_b32 v%d, 16, v%d" % (vST + r, vST + r))
            post.append("v_fmac_f32 v%d, v%d, v%d" % (B + r, XN + r, vST + r))
        return pre, post

    def s4_out_addr(self):
        a = self.a
        a("s_lshl_b32 s%d, s%d, 15" % (sE, sT))
        self.feat0(sB, sKH, 1)
        a("s_add_u32 s%d, s%d, s%d" % (sE, sE, sB))
        a("v_lshlrev_b32 v146, 10, v%d" % vN31)
        a("v_lshl_add_u32 v146, v%d, 4, v146" % vHH)
        a("v_add_u32 v146, s%d, v146" % sE)

    def s4_addr(self):
        a = self.a
        self.wpi_addr(128, 131, 0, 2048, 1024)
        for i in (1, 2):
            a("v_add_u32 v%d, %d, v128" % (128 + i, 65536 * i))
            a("v_add_u32 v%d, %d, v131" % (131 + i, 65536 * i))

    def s4_main(self, hitems):
        a = self.a
        ACK, ACS, AK, AS = self.ACK, self.ACS, self.AK, self.AS

        def rd(ks, which):
            off = w4_off(ks)
            base, addr = ((AK, 128), (AS, 131))[which]
            for hf in range(2):
                a.lds("ds_read_b64_tr_b16 %s, v%d offset:%d"
                      % (vr(base + 4 * (ks & 1) + 2 * hf, 2), addr + off // 65536, off % 65536 + hf * 512),
                      "f%d_%d" % (ks, which))
        pre, post = self.s4_shadow_ops()
        yq = []
        w4c = self.w4_items(W4_C, 56, "w4c")
        f1, f2 = self.opt.get("f1", 10), self.opt.get("f2", 18)
        self.hacts(self.w4_items(W4_B, W4_C, "w4b"))
        rd(0, 0)
        rd(0, 1)
        for ks in range(56):
            ahead = ks < 55 and ks + 1 not in (W4_B, W4_C)
            b = ks & 1
            B = ar(4 * (ks % 16), 4)
            a.wait_both("H%d" % ks, "f%d_0" % ks)
            a("%s %s, %s, %s, %s" % (MF32, vr(ACK, 16), vr(AK + 4 * b, 4), B, "0" if ks == 0 else vr(ACK, 16)))
            if ahead:
                rd(ks + 1, 0)
            if hitems and ks >= 1:
                hitems.pop(0)()
            elif yq:
                yq.pop(0)()
                yq.pop(0)()
            a.wait_lg("f%d_1" % ks)
            a("%s %s, %s, %s, %s" % (MF32, vr(ACS, 16), vr(AS + 4 * b, 4), B, "0" if ks == 0 else vr(ACS, 16)))
            if ahead:
                rd(ks + 1, 1)
            for _ in range(3):
                if pre and ks >= 2:
                    a(pre.pop(0))
            if ks == f1:
                self.barrier()
                self.hacts(w4c[:f1 + 1])
            if ks == f2:
                self.barrier()
                self.flag_store(F_CV, 2)
                self.hacts(w4c[f1 + 1:])
                self.hwait("w4b")
            if ks == 30:
                self.idx_cv()
                self.poll_issue(F_CV, "pcv")
            if ks == 40:
                self.poll_check("pcv", 4)
                yq = self.s4_y_items()
            if ks + 1 == W4_B:
                self.barrier()
                self.hwait("w4c")
                rd(ks + 1, 0)
                rd(ks + 1, 1)
            if ks + 1 == W4_C:
                self.barrier()
                self.h("s_endpgm")
                rd(ks + 1, 0)
                rd(ks + 1, 1)
            if ks in (8, 16, 27, 38, 47):
                self.stamp("s4k%d" % ks)
        assert not pre and not hitems
        for f in yq:
            f()
        self.s4_out_addr()
        self.s4_post = post

    def s4_epilogue(self):
        a = self.a
        ACK, ACS, B = self.ACK, self.ACS, self.BASE4
        self.exchange_write(ACS, S4_RED)
        a.wait_vm("y")
        for x in self.s4_post:
            a(x)
        for p in range(8):
            a("v_pk_add_f32 %s, %s, %s" % (vr(ACK + 2 * p, 2), vr(ACK + 2 * p, 2), vr(B + 2 * p, 2)))
        a.wait_lg_all()
        a("s_barrier")
        self.exchange_read(80, S4_RED)
        a.wait_lg_all()
        for p in range(8):
            a("v_pk_add_f32 %s, %s, %s" % (vr(ACK + 2 * p, 2), vr(ACK + 2 * p, 2), vr(80 + 2 * p, 2)))
        for p in range(8):
            a("v_cvt_pk_bf16_f32 v%d, v%d, v%d" % (48 + p, ACK + 2 * p, ACK + 2 * p + 1))
        for j in (0, 4):
            a("v_permlane32_swap_b32 v%d, v%d" % (48 + j, 50 + j))
            a("v_permlane32_swap_b32 v%d, v%d" % (49 + j, 51 + j))
        a.vmem("buffer_store_dwordx4 %s, v146, %s, 0 offen" % (vr(48, 4), sr(S_OUT, 4)), "out")
        a.vmem("buffer_store_dwordx4 %s, v146, %s, 0 offen offset:32" % (vr(52, 4), sr(S_OUT, 4)), "out")

    def nonce_update(self):
        a = self.a
        self.hold += 1
        skip = a.newlabel("nonce")
        a("s_cmp_lg_u32 s2, 0")
        a("s_cbranch_scc1 %s" % skip)
        a("s_cmp_lg_u32 s%d, 0" % sW)
        a("s_cbranch_scc1 %s" % skip)
        saved = list(a.vm)
        for i in range(4):
            a("v_add_u32 v28, %d, v%d" % (64 * i, vL))
            self.poll_issue(F_P0, "pn")
            self.poll_check("pn", 6)
        a.vm = saved
        a("v_mov_b32 v26, 0")
        a("v_mov_b32 v27, s%d" % sN)
        a("s_mov_b64 exec, 1")
        a("buffer_store_dword v27, v26, %s, 0 offen sc1" % sr(S_WS, 4))
        a("s_mov_b64 exec, -1")
        a.label(skip)
        self.hold -= 1

    def finish(self):
        a = self.a
        a.wait_vm_all()
        if self.stamps:
            self.stamp("end")
            skip = a.newlabel("nostamp")
            a("s_cmp_lg_u32 s%d, 0" % sW)
            a("s_cbranch_scc1 %s" % skip)
            a("s_lshl_b32 s%d, s2, 8" % sA)
            a("s_add_u32 s%d, s%d, 0x%x" % (sA, sA, WS_STAMP))
            a("v_lshlrev_b32 v26, 2, v%d" % vL)
            a("buffer_store_dword v%d, v26, %s, s%d offen" % (vSTAMP, sr(S_WS, 4), sA))
            a("s_waitcnt vmcnt(0)")
            a.label(skip)
        a.label("L_end")
        a("s_endpgm")
        self.a.hook = None
        self.h.label("L_codeend")
        self.h("s_endpgm")
        self.a.ins += self.h.ins

    def build(self):
        a = self.a
        o = self.opt
        self.prologue()
        self.hact(self.loader_setup)
        if o.get("tcode", 1) == 1:
            self.hact(self.touch_code)
        s1 = [f for st in range(4) for f in self.s1_stage_items(st)]
        n0, n1 = o.get("n0", 12), o.get("n1", 24)
        a("v_mov_b32 v26, 0")
        a.vmem("buffer_load_dword v30, v26, %s, 0 offen sc1" % sr(S_WS, 4), "nonce")
        self.tr_addresses()
        self.s1_setup()
        tpos = o.get("tpos", 0)

        def stage(st):
            if st == 0:
                self.hacts(s1[:n0])
                if o.get("tcode", 1) == 2:
                    self.hact(self.touch_code)
                self.hwait("s1_0")
            elif st == 1:
                self.hacts(s1[n0:n1])
                self.hwait("s1_1")
            else:
                self.hacts(s1[n1:])
                self.hwait("s1_3")
            self.barrier()
            if st == 2:
                self.hact(self.touch_kv)
                self.hact(lambda: self.touch_chip("w2"))
                if tpos == 0:
                    self.hact(lambda: self.touch_chip("ssm"))
                    self.hact(lambda: self.touch_chip("w3"))
        self.s1_main(stage)
        self.stamp("s1main")

        def after_x1():
            if tpos == 1:
                self.hact(lambda: self.touch_chip("ssm"))
                self.hact(lambda: self.touch_chip("w3"))
        self.s1_epilogue(after_x1)
        self.stamp("s1epi")
        self.p0_loads()
        self.fill_all()
        self.nonce_compute()
        w2 = [self.dma_item(S_W2, vW64, sW2L, grp * 1024, sW2G, grp * 16384, "w2") for grp in range(16)]
        a.wait_vm("hst")
        self.barrier()
        self.flag_store_rc(F_S1)
        self.stamp("s1flag")
        if tpos == 2:
            self.hact(lambda: self.touch_chip("ssm"))
            self.hact(lambda: self.touch_chip("w3"))
        self.hacts(w2[:o.get("w2a", 8)])
        self.p0_compute()
        a.wait_lg_all()
        self.barrier()
        self.stamp("p0")
        self.hacts(w2[o.get("w2a", 8):])
        self.hwait("w2")
        self.p0_readback()
        self.p0_store()
        self.conv_filter_loads(0)
        self.wpi_addr(128, 129, LW, 16384, 32768)
        self.idx_s1()
        self.poll_issue(F_S1, "ps1")
        hitems = self.s2_load_items()
        self.poll_check("ps1", 2)
        self.stamp("s1poll")
        for f in hitems:
            f()
        self.barrier()
        self.flag_store_rc(F_P0)
        self.stamp("hiss")
        self.hact(self.w3_setup)
        w3 = self.w3_items([0, 1, 2, 3])
        k1, k2 = o.get("k1", 4), o.get("k2", 16)
        self.hact(lambda: self.touch_chip("w4"))
        self.hacts(w3[:k1])
        self.s2_main()
        self.idx_p0()
        self.poll_issue(F_P0, "pp0")
        self.stamp("s2main")
        self.s2_epilogue(lambda: self.hacts(w3[k1:k2]))
        self.stamp("s2epi")
        self.poll_check("pp0", 1)
        self.conv_x_loads(0)
        self.conv_prep_filter(0)
        a.wait_vm("x1st")
        self.barrier()
        self.flag_store_rc(F_S2)
        self.stamp("s2flag")
        self.conv_prep_x(0)
        self.stamp("cv0prep")
        self.hacts(w3[k2:])

        def hook0(rho):
            if rho == 3:
                self.idx_16(sRP, 0)
                self.poll_issue(F_S2, "ps2")
        self.conv_main(hook0)
        self.stamp("cv0main")
        xitems = self.s3_load_items()
        nx = o.get("nx", 12)
        self.poll_check("ps2", 3)
        self.stamp("s2poll")
        for f in xitems[:nx]:
            f()
        self.conv_finish(0)
        self.s3_addr()
        self.hwait("w3")
        self.barrier()
        self.stamp("cv0fin")
        self.hact(self.w4_setup)
        self.s3_colsum()
        self.stamp("s3cs")
        sitems = self.s3_stat_items()
        rest = xitems[nx:]
        self.fq = []
        for i in range(len(rest)):
            self.fq.append(rest[i])
            self.fq.append(sitems[i] if i < 16 else (lambda: None))

        def s3mid():
            self.barrier()
            self.hacts(self.w4_items(0, W4_A, "w4"))
        self.s3_main(s3mid)
        self.fill_all()
        self.stamp("s3main")
        self.barrier()
        w4m = self.w4_items(W4_A, W4_B, "w4")
        k3 = o.get("k3", 8)
        self.hacts(w4m[:k3])
        self.conv_filter_loads(1)
        self.conv_x_loads(1)
        self.s3_epilogue()
        self.stamp("s3epi")
        self.conv_prep_filter(1)
        a.wait_vm("Hst")
        self.barrier()
        a("s_lshl_b32 s%d, s%d, 4" % (sB, sRP))
        a("s_add_u32 s%d, s%d, s%d" % (sB, sB, sCP))
        self.flag_store(F_S3, sB)
        self.stamp("s3flag")
        self.nonce_update()
        self.conv_prep_x(1)
        self.stamp("cv1prep")
        self.hacts(w4m[k3:])

        def hook1(rho):
            if rho == 3:
                self.idx_16(sR, 1)
                self.poll_issue(F_S3, "ps3")
        self.conv_main(hook1)
        self.stamp("cv1main")
        hitems = self.s4_load_items()
        self.poll_check("ps3", 5)
        self.stamp("s3poll")
        for _ in range(o.get("nh", 14)):
            hitems.pop(0)()
        self.conv_finish(1)
        self.s4_addr()
        self.hwait("w4")
        self.barrier()
        self.stamp("cv1fin")
        self.s4_main(hitems)
        self.stamp("s4main")
        self.s4_epilogue()
        self.stamp("s4epi")
        self.finish()


REF = "cdna_kernels/%s.s.ref" % NAME


def emit(stop=None, stamps=False, opt=None, keep=None):
    g = Gen(stop, stamps, opt)
    g.keep = keep
    g.build()
    nops = g.a.fix_hazards()
    top = [l for l in open(REF).read().split("\n") if l.startswith(";") and "@launch" not in l and "Override" not in l
           and "grid=ceil" not in l]
    out = top + ["; @launch grid=(256,1,1) block=(512,1,1) lds=%d" % LDS_BYTES,
                 '.amdgcn_target "amdgcn-amd-amdhsa--gfx950"', ".text", ".globl %s_kernel" % NAME, ".p2align 8",
                 ".type %s_kernel,@function" % NAME, "%s_kernel:" % NAME]
    body = g.a.text()
    tail = ['.section .rodata,"a"', ".p2align 6", ".amdhsa_kernel %s_kernel" % NAME,
            "  .amdhsa_next_free_vgpr 256", "  .amdhsa_next_free_sgpr 102", "  .amdhsa_accum_offset 192",
            "  .amdhsa_group_segment_fixed_size 0", "  .amdhsa_kernarg_size 112", "  .amdhsa_user_sgpr_count 2",
            "  .amdhsa_user_sgpr_kernarg_segment_ptr 1", "  .amdhsa_system_sgpr_workgroup_id_x 1",
            "  .amdhsa_float_denorm_mode_32 3", ".end_amdhsa_kernel"]
    text = "\n".join(out) + "\n" + body + "\n".join(tail) + "\n"
    return text, g, nops


if __name__ == "__main__":
    ap = argparse.ArgumentParser()
    ap.add_argument("-o", default="cdna_kernels/%s.s" % NAME)
    ap.add_argument("--stop", default=None)
    ap.add_argument("--stamps", action="store_true")
    ap.add_argument("--opt", default="")
    ap.add_argument("--keep", default="")
    args = ap.parse_args()
    opt = dict((kv.split("=")[0], int(kv.split("=")[1])) for kv in args.opt.split(",") if kv)
    text, g, nops = emit(args.stop, args.stamps, opt, args.keep.split(",") if args.keep else None)
    open(args.o, "w").write(text)
    n = sum(1 for x in g.a.ins if x.kind != "label")
    print("instructions: %d, hazard nops: %d" % (n, nops))
    if g.stamp_names:
        print(",".join(g.stamp_names))
        open(args.o + ".stamps", "w").write(",".join(g.stamp_names))
```

```python
import argparse
import os
import struct
import sys

sys.path.insert(0, os.path.dirname(os.path.abspath(__file__)))
from asmlib import Asm

NAME = "parallel_sum__ssm_conv_h3__mixer_s_mlp__prompt"

WS_FLAGS = 4096
WS_STAMP = 0x40000
WS_KVT = 0x100000
WS_YT = 0x300000
WS_HS = 0x500000
WS_X1 = 0x700000
WS_ST = 0x900000
WS_HH = 0xA00000
WS_SIZE = 0x10000000
OOB = 0x40000000
F_P0, F_S1, F_S2, F_S3, F_CV = 0, 1, 2, 3, 4

LQ = 0
LW = 65536
LSTG = 131072
LRED = 139264
LSTX = 155648
LCSX = 156672
LCS3 = 161280
LKV = 8192
LDS_BYTES = 163840
CV_X = 0
CV_XD = 1152
CV_A = 5248
CV_P = 21760
CV_R = 5248
CV_BASE = 114688
W3_P = 0
W3_H = 98304
CV_BASE1 = 69632
W4_A, W4_B, W4_C = 11, 28, 39
S4_RED = CV_BASE1


def w4_off(ks):
    if ks < W4_A:
        return 114688 + ks * 4096
    if ks < W4_B:
        return (ks - W4_A) * 4096
    if ks < W4_C:
        return CV_BASE1 + (ks - W4_B) * 4096
    return w4_off(ks - W4_C)

S_WS, S_Q, S_K, S_V, S_SHK, S_SSM, S_W1, S_W2, S_W3, S_W4, S_OUT = 4, 8, 12, 16, 20, 24, 32, 36, 40, 44, 48
S_DPTR = 28
S_DBG = 30
sR, sC, sW, sTH, sKH, sN, sRP, sCP = 52, 53, 54, 55, 56, 57, 58, 59
sT, sT3 = 60, 61
sD0, sD1 = 62, 63
sA, sB, sCc, sD, sE, sF = 64, 65, 66, 67, 68, 69
sW2L, sW2G, sW3L, sW3G, sW3HL, sW3HG, sW4L, sW4G, sSO, sLD = 70, 71, 72, 73, 74, 75, 76, 77, 78, 79
sONES, sHI = 80, 81
sK4, sK8, sK12 = 82, 83, 84
sEPS, sTMO, sKG1, sKG3, s512I = 85, 86, 87, 88, 89
sSTA = 90
sROT, sQG, sWG, sCP0 = 92, 93, 94, 95

vL, vL16, vWP, vWN = 0, 1, 2, 3
vQ, vX1 = 4, 12
vMEAN, vR1 = 20, 21
vTID, vHH, vN31, vSTAMP = 22, 23, 24, 25
vW64 = 31
vCH = 172
vPF, vPA = 170, 171
vW3F, vW3H, vQE = 153, 154, 155
vST = 172

GELU_K1 = 2.0 * 0.7978845608028654 * 1.4426950408889634
GELU_K3 = GELU_K1 * 0.044715
MF32 = "v_mfma_f32_32x32x16_bf16"
MF16 = "v_mfma_f32_16x16x32_bf16"


def f32bits(x):
    return struct.unpack("<I", struct.pack("<f", x))[0]


def vr(a, n):
    return "v[%d:%d]" % (a, a + n - 1)


def ar(a, n):
    return "a[%d:%d]" % (a, a + n - 1)


def sr(a, n):
    return "s[%d:%d]" % (a, a + n - 1)


class Gen:
    def __init__(self, stop=None, stamps=False, opt=None):
        self.opt = opt or {}
        self.keep = None
        self.a = Asm()
        self.h = Asm()
        self.h.uid = 100000
        self.hpend = []
        self.nbar = 0
        self.stop = stop
        self.stamps = stamps
        self.nstamp = 0
        self.stamp_names = []
        self.fq = []
        self.pq = []
        self.interval = 0
        self.clock = 0.0
        self.hold = 0
        self.a.hook = self._pace
        self.h.hook = self._pace

    def _pace(self, x):
        if x.kind == "mfma":
            self.clock += 32 if x.passes == 8 else 16
        elif x.kind == "valu":
            self.clock += 8 if x.is_trans() else 4.5
        elif x.kind == "ds":
            self.clock += 13 if x.op == "ds_write_b128" else 2
        elif x.kind == "vmem":
            self.clock += 20
        else:
            return
        if self.hold or not self.pq or not self.interval or x.kind == "vmem":
            return
        if self.clock >= self.interval:
            self.clock = 0.0
            self.hold += 1
            self.pq.pop(0)()
            self.hold -= 1

    def paced(self, items, interval):
        self.pq += items
        self.interval = interval
        self.clock = 0.0

    def pace_flush(self, tag=None):
        self.hold += 1
        if tag is None:
            n = len(self.pq)
        else:
            n = max([i + 1 for i, f in enumerate(self.pq) if f.tag == tag], default=0)
        for _ in range(n):
            self.pq.pop(0)()
        self.hold -= 1

    def stamp(self, name):
        if not self.stamps:
            return
        if self.keep and name not in self.keep and name not in ("start", "end"):
            return
        self.hold += 1
        self._stamp(name)
        self.hold -= 1

    def _stamp(self, name):
        a = self.a
        a("s_memtime %s" % sr(sSTA, 2))
        a("s_waitcnt lgkmcnt(0)")
        a.lg = []
        a("v_writelane_b32 v%d, s%d, %d" % (vSTAMP, sSTA, self.nstamp))
        if name in ("start", "end"):
            a("s_memrealtime %s" % sr(sSTA, 2))
            a("s_waitcnt lgkmcnt(0)")
            a("v_writelane_b32 v%d, s%d, %d" % (vSTAMP, sSTA, 62 if name == "start" else 63))
            if name == "start":
                a("v_writelane_b32 v%d, s3, 61" % vSTAMP)
        self.stamp_names.append(name)
        self.nstamp += 1

    def hact(self, fn):
        self.hpend.append(fn)

    def hacts(self, fns):
        self.hpend += fns

    def hstamp(self, idx):
        if not self.opt.get("barstamps", 0):
            return

        def f():
            a = self.a
            a("s_memtime %s" % sr(sSTA, 2))
            a("s_waitcnt lgkmcnt(0)")
            a.lg = []
            a("v_writelane_b32 v191, s%d, %d" % (sSTA, 32 + idx))
        self.hpend.append(f)

    def hpaced(self, items, interval, fn):
        def f():
            saved = (self.pq, self.interval, self.clock, self.hold)
            self.pq, self.interval, self.clock, self.hold = list(items), interval, 0.0, 0
            fn()
            self.hold = 1
            self.pace_flush()
            self.pq, self.interval, self.clock, self.hold = saved
        self.hpend.append(f)

    def hwait(self, tag):
        self.hpend.append(lambda: self.a.wait_vm(tag))

    def hrun(self):
        c, fq = self.a, self.fq
        self.a, self.fq = self.h, []
        self.hold += 1
        for fn in self.hpend:
            fn()
        self.hold -= 1
        self.hpend = []
        self.a, self.fq = c, fq

    def barrier(self, name=""):
        bs = self.opt.get("barstamps", 0)
        if bs:
            self.hold += 1
            self.a("s_memtime %s" % sr(sSTA, 2))
            self.a("s_waitcnt lgkmcnt(0)")
            self.a.lg = []
            self.a("v_writelane_b32 v31, s%d, %d" % (sSTA, self.nbar))
            self.hold -= 1
        self.a("s_barrier")
        self.hrun()
        if bs:
            self.h("s_memtime %s" % sr(sSTA, 2))
            self.h("s_waitcnt lgkmcnt(0)")
            self.h.lg = []
            self.h("v_writelane_b32 v191, s%d, %d" % (sSTA, self.nbar))
        self.h("s_barrier")
        self.nbar += 1

    def fill(self, n=1):
        for _ in range(n):
            if self.fq:
                self.fq.pop(0)()

    def fill_all(self):
        while self.fq:
            self.fq.pop(0)()

    def dma_item(self, srd, voff, sl, loff, sg, goff, tag):
        def f():
            a = self.a
            a("s_add_u32 m0, s%d, %d" % (sl, loff))
            a("s_add_u32 s%d, s%d, %d" % (sSO, sg, goff))
            a.vmem("buffer_load_dwordx4 v%d, %s, s%d offen lds" % (voff, sr(srd, 4), sSO), tag)
            a.check_vm_depth()
        f.tag = tag
        return f

    def flag_store(self, phase, sidx):
        a = self.a
        self.hold += 1
        skip = a.newlabel("noflag")
        a("s_cmp_lg_u32 s%d, 0" % sW)
        a("s_cbranch_scc1 %s" % skip)
        a("s_lshl_b32 s%d, s%d, 7" % (sA, sidx))
        a("s_add_u32 s%d, s%d, %d" % (sA, sA, WS_FLAGS + phase * 256 * 128))
        a("v_mov_b32 v26, s%d" % sN)
        a("v_mov_b32 v27, s%d" % sA)
        a("s_mov_b64 exec, 1")
        a("buffer_store_dword v26, v27, %s, 0 offen sc1" % sr(S_WS, 4))
        a("s_mov_b64 exec, -1")
        a.label(skip)
        self.hold -= 1

    def flag_store_rc(self, phase):
        a = self.a
        a("s_lshl_b32 s%d, s%d, 3" % (sB, sR))
        a("s_add_u32 s%d, s%d, s%d" % (sB, sB, sC))
        self.flag_store(phase, sB)

    def poll_issue(self, phase, tag):
        a = self.a
        a("v_lshlrev_b32 v%d, 7, v28" % vPA)
        a("v_add_u32 v%d, %d, v%d" % (vPA, WS_FLAGS + phase * 256 * 128, vPA))
        a.vmem("buffer_load_dword v%d, v%d, %s, 0 offen sc1" % (vPF, vPA, sr(S_WS, 4)), tag)

    def poll_check(self, tag, code):
        a = self.a
        self.hold += 1
        loop = a.newlabel("poll")
        done = a.newlabel("polled")
        a.wait_vm(tag)
        a("v_cmp_ne_u32 vcc, s%d, v%d" % (sN, vPF))
        a("s_cmp_eq_u64 vcc, 0")
        a("s_cbranch_scc1 %s" % done)
        a("s_mov_b32 s%d, 0x40000" % sTMO)
        a.label(loop)
        a("buffer_load_dword v%d, v%d, %s, 0 offen sc1" % (vPF, vPA, sr(S_WS, 4)))
        a("s_waitcnt vmcnt(0)")
        a("v_cmp_ne_u32 vcc, s%d, v%d" % (sN, vPF))
        a("s_cmp_eq_u64 vcc, 0")
        a("s_cbranch_scc1 %s" % done)
        a("s_sub_u32 s%d, s%d, 1" % (sTMO, sTMO))
        a("s_cmp_lg_u32 s%d, 0" % sTMO)
        a("s_cbranch_scc1 %s" % loop)
        a("v_mov_b32 v26, 0")
        a("v_mov_b32 v27, %d" % (0x100 + code))
        a("s_mov_b64 exec, 1")
        a("global_store_dword v26, v27, %s" % sr(S_DBG, 2))
        a("s_mov_b64 exec, -1")
        a.label(done)
        self.hold -= 1

    def idx_s1(self):
        a = self.a
        a("s_lshl_b32 s%d, s%d, 1" % (sA, sTH))
        a("s_sub_u32 s%d, s%d, 1" % (sA, sA))
        a("s_add_u32 s%d, s%d, s%d" % (sA, sA, sR))
        a("s_cmp_lt_u32 s%d, 32" % sA)
        a("s_cselect_b32 s%d, s%d, s%d" % (sA, sA, sR))
        a("v_mov_b32 v28, s%d" % sR)
        a("v_mov_b32 v29, s%d" % sA)
        a("v_and_b32 v27, 4, v%d" % vL)
        a("v_cmp_eq_u32 vcc, 0, v27")
        a("v_cndmask_b32 v28, v29, v28, vcc")
        a("v_lshlrev_b32 v28, 3, v28")
        a("v_and_b32 v29, 3, v%d" % vL)
        a("v_add_u32 v28, v28, v29")
        a("s_lshl_b32 s%d, s%d, 2" % (sA, sKH))
        a("v_add_u32 v28, s%d, v28" % sA)

    def idx_p0(self):
        a = self.a
        a("s_lshr_b32 s%d, s2, 5" % sA)
        a("s_lshl_b32 s%d, s%d, 6" % (sB, sW))
        a("s_add_u32 s%d, s%d, s%d" % (sA, sA, sB))
        a("v_and_b32 v28, 7, v%d" % vL)
        a("v_lshlrev_b32 v28, 3, v28")
        a("v_add_u32 v28, s%d, v28" % sA)

    def idx_s2(self):
        a = self.a
        a("s_lshr_b32 s%d, s%d, 1" % (sA, sT3))
        a("s_lshl_b32 s%d, s%d, 3" % (sA, sA))
        a("v_and_b32 v28, 7, v%d" % vL)
        a("v_add_u32 v28, s%d, v28" % sA)

    def idx_s3(self):
        a = self.a
        a("s_lshr_b32 s%d, s%d, 1" % (sA, sR))
        a("s_lshl_b32 s%d, s%d, 4" % (sA, sA))
        a("s_lshl_b32 s%d, s%d, 3" % (sB, sKH))
        a("s_add_u32 s%d, s%d, s%d" % (sA, sA, sB))
        a("v_and_b32 v28, 7, v%d" % vL)
        a("v_add_u32 v28, s%d, v28" % sA)

    def idx_cv(self):
        a = self.a
        self.feat0(sA, sKH, 0)
        a("s_lshr_b32 s%d, s%d, 1" % (sA, sA))
        a("v_and_b32 v28, 15, v%d" % vL)
        a("v_add_u32 v28, s%d, v28" % sA)

    def prologue(self):
        a = self.a
        if self.stamps:
            a("s_memrealtime s[100:101]")
            a("s_waitcnt lgkmcnt(0)")
            a("s_mov_b32 s3, s100")
        a("s_cmp_ge_u32 s2, 256")
        a("s_cbranch_scc1 L_end")
        a("s_load_dwordx16 s[64:79], s[0:1], 0")
        a("s_load_dwordx8 s[92:99], s[0:1], 64")
        a("s_load_dwordx2 %s, s[0:1], 96" % sr(S_DBG, 2))
        a("s_load_dwordx2 %s, s[0:1], 104" % sr(S_WS, 2))
        sizes = {S_WS: WS_SIZE, S_Q: 1 << 21, S_K: 1 << 21, S_V: 1 << 21, S_SHK: 4096, S_SSM: 1 << 21,
                 S_W1: 1 << 19, S_W2: 1 << 19, S_W3: 512 * 1792 * 2, S_W4: 512 * 1792 * 2, S_OUT: 1 << 21}
        for s, n in sizes.items():
            a("s_mov_b32 s%d, 0x%x" % (s + 2, n))
            a("s_mov_b32 s%d, 0x20000" % (s + 3))
        a("s_and_b32 s100, s2, 7")
        a("s_lshr_b32 s101, s2, 3")
        a("s_lshr_b32 s%d, s101, 3" % sR)
        a("s_lshl_b32 s%d, s100, 2" % sC)
        a("s_add_u32 s%d, s%d, s%d" % (sR, sR, sC))
        a("s_and_b32 s%d, s101, 7" % sC)
        a("s_lshr_b32 s%d, s101, 4" % sRP)
        a("s_lshl_b32 s100, s100, 1")
        a("s_add_u32 s%d, s%d, s100" % (sRP, sRP))
        a("s_and_b32 s%d, s101, 15" % sCP)
        a("v_and_b32 v%d, 0xff, v0" % vTID)
        a("v_lshrrev_b32 v26, 6, v0")
        a("v_and_b32 v%d, 63, v0" % vL)
        a("v_readfirstlane_b32 s%d, v26" % sTMO)
        a("v_lshlrev_b32 v%d, 4, v%d" % (vL16, vL))
        a("v_lshrrev_b32 v%d, 5, v%d" % (vHH, vL))
        a("v_and_b32 v%d, 31, v%d" % (vN31, vL))
        a("s_and_b32 s%d, s%d, 3" % (sW, sTMO))
        a("s_lshr_b32 s%d, s%d, 1" % (sTH, sW))
        a("s_and_b32 s%d, s%d, 1" % (sKH, sW))
        a("s_lshl_b32 s%d, s%d, 1" % (sT, sR))
        a("s_add_u32 s%d, s%d, s%d" % (sT, sT, sTH))
        a("s_lshl_b32 s%d, s%d, 2" % (sT3, sRP))
        a("s_add_u32 s%d, s%d, s%d" % (sT3, sT3, sW))
        a("s_mov_b32 s%d, 0x3f803f80" % sONES)
        a("s_mov_b32 s%d, 0xffff0000" % sHI)
        a("s_movk_i32 s%d, 0x1000" % sK4)
        a("s_movk_i32 s%d, 0x2000" % sK8)
        a("s_movk_i32 s%d, 0x3000" % sK12)
        a("s_mov_b32 s%d, 0x%x" % (sEPS, f32bits(1e-5)))
        a("s_mov_b32 s%d, 0x%x" % (sKG1, f32bits(-GELU_K1)))
        a("s_mov_b32 s%d, 0x%x" % (sKG3, f32bits(-GELU_K3)))
        a("s_mov_b32 s%d, 0x%x" % (s512I, f32bits(1.0 / 512)))
        a("s_waitcnt lgkmcnt(0)")
        for sreg, src in ((S_Q, 64), (S_W1, 78), (S_K, 66), (S_V, 68), (S_SHK, 70), (S_SSM, 72), (S_DPTR, 74)):
            a("s_mov_b64 %s, %s" % (sr(sreg, 2), sr(src, 2)))
        for i, sreg in enumerate([S_W2, S_W3, S_W4, S_OUT]):
            a("s_mov_b64 %s, %s" % (sr(sreg, 2), sr(92 + 2 * i, 2)))
        a("s_add_u32 s%d, s%d, s%d" % (sROT, sR, sC))
        a("s_and_b32 s%d, s%d, 3" % (sROT, sROT))
        a("s_cmp_ge_u32 s%d, 4" % sTMO)
        a("s_cbranch_scc1 L_loader")
        if self.opt.get("prio", 1):
            a("s_setprio 1")
        if self.stamps:
            a("v_mov_b32 v%d, 0" % vSTAMP)
        self.stamp("start")
        self.ssm_d_load()

    def tr_addresses(self):
        a = self.a
        a("v_bfe_u32 v26, v%d, 2, 2" % vL)
        a("v_and_b32 v27, 3, v%d" % vL)
        a("v_bfe_u32 v28, v%d, 4, 1" % vL)
        a("v_lshlrev_b32 v27, 3, v27")
        a("v_lshl_add_u32 v27, v28, 5, v27")
        a("v_lshl_add_u32 v28, v%d, 2, v26" % vHH)
        a("v_lshl_add_u32 v%d, v28, 6, v27" % vWP)
        a("v_lshl_add_u32 v28, v%d, 3, v26" % vHH)
        a("v_lshl_add_u32 v%d, v28, 6, v27" % vWN)

    def loader_setup(self):
        a = self.a
        a.label("L_loader")
        a("v_lshrrev_b32 v26, 2, v%d" % vL)
        a("v_and_b32 v27, 3, v%d" % vL)
        a("v_lshlrev_b32 v27, 4, v27")
        a("v_lshl_add_u32 v%d, v26, 10, v27" % vW64)
        a("v_lshrrev_b32 v26, 3, v%d" % vL)
        a("v_and_b32 v27, 7, v%d" % vL)
        a("v_lshrrev_b32 v28, 4, v%d" % vL)
        a("v_xor_b32 v27, v27, v28")
        a("v_lshlrev_b32 v27, 4, v27")
        a("v_lshl_add_u32 v%d, v26, 10, v27" % vQE)
        a("v_xor_b32 v%d, 64, v%d" % (vQE + 1, vQE))
        a("s_lshl_b32 s%d, s%d, 14" % (sCc, sW))
        a("s_lshl_b32 s%d, s%d, 15" % (sD, sT))
        a("s_lshl_b32 s%d, s%d, 9" % (sA, sKH))
        a("s_add_u32 s%d, s%d, s%d" % (sD, sD, sA))
        self.w64_bases(sW2L, sW2G)

    def feat0(self, dst, spanel, shift):
        a = self.a
        if self.opt.get("remap", 0):
            a("s_lshl_b32 s%d, s%d, %d" % (dst, sC, 5 + shift))
            a("s_lshl_b32 s%d, s%d, %d" % (sSO, spanel, 8 + shift))
        else:
            a("s_lshl_b32 s%d, s%d, %d" % (dst, sC, 6 + shift))
            a("s_lshl_b32 s%d, s%d, %d" % (sSO, spanel, 5 + shift))
        a("s_add_u32 s%d, s%d, s%d" % (dst, dst, sSO))

    def w64_bases(self, sl, sg):
        a = self.a
        a("s_lshl_b32 s%d, s%d, 15" % (sl, sTH))
        a("s_lshl_b32 s%d, s%d, 14" % (sA, sKH))
        a("s_add_u32 s%d, s%d, s%d" % (sl, sl, sA))
        a("s_add_u32 s%d, s%d, %d" % (sl, sl, LW))
        a("s_lshl_b32 s%d, s%d, 18" % (sg, sKH))
        self.feat0(sA, sTH, 1)
        a("s_add_u32 s%d, s%d, s%d" % (sg, sg, sA))

    def s1_stage_items(self, st):
        items = []

        def head():
            a = self.a
            a("s_add_u32 s%d, s%d, %d" % (sB, sROT, st))
            a("s_and_b32 s%d, s%d, 3" % (sB, sB))
            a("s_lshl_b32 s%d, s%d, 7" % (sQG, sB))
            a("s_add_u32 s%d, s%d, s%d" % (sQG, sQG, sD))
            a("s_lshl_b32 s%d, s%d, 16" % (sWG, sB))
            a("s_add_u32 s%d, s%d, s%d" % (sWG, sWG, sW2G))
        for j in range(4):
            def f(j=j):
                if j == 0:
                    head()
                self.dma_item(S_Q, vQE + (j & 1), sCc, LQ + st * 4096 + j * 1024, sQG, j * 8192, "s1_%d" % st)()
            items.append(f)
        for i in range(4):
            items.append(self.dma_item(S_W1, vW64, sW2L, (4 * st + i) * 1024, sWG, i * 16384, "s1_%d" % st))
        return items

    def touch(self, srd, lanes, sidx, dst):
        a = self.a
        a("s_mul_i32 s%d, s%d, %d" % (sA, sidx, lanes))
        a("v_add_u32 v26, s%d, v%d" % (sA, vL))
        a("v_lshlrev_b32 v26, 7, v26")
        a("v_mov_b32 v27, 0x%x" % OOB)
        a("v_cmp_gt_u32 vcc, %d, v%d" % (lanes, vL))
        a("v_cndmask_b32 v26, v27, v26, vcc")
        a.vmem("buffer_load_dword v%d, v26, %s, 0 offen" % (dst, sr(srd, 4)), "touch")

    def touch_w2(self):
        a = self.a
        if self.opt.get("touch", 1):
            a("s_lshr_b32 s%d, s2, 3" % sE)
            a("s_lshl_b32 s%d, s%d, 2" % (sE, sE))
            a("s_add_u32 s%d, s%d, s%d" % (sE, sE, sW))
            self.touch(S_W2, 32, sE, 53)

    def touch_chip(self, which):
        a = self.a
        srd, lanes, dst = {"w2": (S_W2, 4, 160), "ssm": (S_SSM, 16, 161), "w3": (S_W3, 14, 163), "w4": (S_W4, 14, 162)}[which]
        if not self.opt.get("t" + which, 1):
            return
        a("s_lshl_b32 s%d, s2, 2" % sE)
        a("s_add_u32 s%d, s%d, s%d" % (sE, sE, sW))
        self.touch(srd, lanes, sE, dst)

    def touch_code(self):
        a = self.a
        if not self.opt.get("tcode", 1):
            return
        a("s_getpc_b64 s[96:97]")
        a.label("L_pc")
        a("s_sub_u32 s96, s96, L_pc-%s_kernel" % NAME)
        a("s_subb_u32 s97, s97, 0")
        a("s_lshr_b32 s%d, s2, 3" % sE)
        a("s_lshl_b32 s%d, s%d, 2" % (sE, sE))
        a("s_add_u32 s%d, s%d, s%d" % (sE, sE, sW))
        a("s_mul_i32 s%d, s%d, 3" % (sE, sE))
        a("v_min_u32 v26, 2, v%d" % vL)
        a("v_add_u32 v26, s%d, v26" % sE)
        a("v_min_u32 v26, (L_codeend-%s_kernel)/128-1, v26" % NAME)
        a("v_lshlrev_b32 v26, 7, v26")
        a("v_mov_b32 v135, s97")
        a("v_add_co_u32 v134, vcc, s96, v26")
        a("v_addc_co_u32 v135, vcc, 0, v135, vcc")
        a.vmem("global_load_dword v136, v[134:135], off", "touch")

    def cold_touches(self):
        a = self.a
        o = self.opt
        a("s_lshr_b32 s%d, s2, 3" % sE)
        a("s_lshl_b32 s%d, s%d, 2" % (sE, sE))
        a("s_add_u32 s%d, s%d, s%d" % (sE, sE, sW))
        if o.get("tq", 1):
            a("s_and_b32 s%d, s2, 7" % sF)
            a("s_lshl_b32 s%d, s%d, 7" % (sF, sF))
            a("s_add_u32 s%d, s%d, s%d" % (sF, sF, sE))
            self.touch(S_Q, 16, sF, 160)
            self.touch(S_W1, 32, sE, 161)

    def batch_a(self):
        a = self.a
        if self.opt.get("tkv", 1):
            self.touch_kv(157, 158)
        if self.opt.get("tw2", 1):
            a("s_lshr_b32 s%d, s2, 3" % sE)
            a("s_lshl_b32 s%d, s%d, 2" % (sE, sE))
            a("s_add_u32 s%d, s%d, s%d" % (sE, sE, sW))
            self.touch(S_W2, 32, sE, 159)
        if self.opt.get("bpos", 1) == 0:
            self.touch_chip("ssm")
            self.touch_chip("w3")

    def kv_dma(self):
        a = self.a
        a("v_lshrrev_b32 v26, 3, v%d" % vL)
        a("v_and_b32 v27, 7, v%d" % vL)
        a("v_lshlrev_b32 v27, 4, v27")
        a("v_lshl_add_u32 v137, v26, 10, v27")
        a("s_lshl_b32 s%d, s%d, 6" % (sA, sR))
        a("s_lshl_b32 s%d, s%d, 4" % (sB, sW))
        a("s_add_u32 s%d, s%d, s%d" % (sA, sA, sB))
        a("v_add_u32 v26, s%d, v26" % sA)
        a("s_lshl_b32 s%d, s%d, 10" % (sQG, sA))
        a("s_lshl_b32 s%d, s%d, 7" % (sB, sC))
        a("s_add_u32 s%d, s%d, s%d" % (sQG, sQG, sB))
        a("v_add_u32 v138, s%d, v137" % sQG)
        a("v_subrev_u32 v138, 3072, v138")
        a("v_mov_b32 v27, 0x%x" % OOB)
        a("v_cmp_gt_u32 vcc, 3, v26")
        a("v_cndmask_b32 v138, v138, v27, vcc")
        a("s_lshl_b32 s%d, s%d, 14" % (sWG, sW))
        a("s_add_u32 m0, s%d, %d" % (sWG, LKV))
        a.vmem("buffer_load_dwordx4 v138, %s, 0 offen lds" % sr(S_K, 4), "kv")
        for g in (1, 2):
            self.dma_item(S_K, 137, sWG, LKV + 1024 * g, sQG, 8192 * g - 3072, "kv")()
        for g in (0, 1):
            self.dma_item(S_V, 137, sWG, LKV + 3072 + 1024 * g, sQG, 8192 * g, "kv")()
        a("s_lshl_b32 s%d, s%d, 9" % (sB, sC))
        a("v_lshl_add_u32 v26, v%d, 4, s%d" % (vN31, sB))
        a.vmem("buffer_load_dwordx4 %s, v26, %s, 0 offen" % (vr(self.SHRAW, 4), sr(S_SHK, 4)), "kv")

    def p0_reads(self):
        a = self.a
        a.wait_vm("kv")
        a("s_lshl_b32 s%d, s%d, 14" % (sA, sW))
        a("v_lshlrev_b32 v26, 10, v%d" % vHH)
        a("v_lshl_add_u32 v26, v%d, 2, v26" % vN31)
        a("v_add_u32 v26, s%d, v26" % sA)
        a("v_add_u32 v26, %d, v26" % LKV)
        for i in range(11):
            a.lds("ds_read_b32 v%d, v26 offset:%d" % (self.KRAW + i, 128 * i), "p0")
        for i in range(8):
            a.lds("ds_read_b32 v%d, v26 offset:%d" % (self.VRAW + i, 3072 + 128 * i), "p0")

    def touch_kv(self, dk=54, dv=55):
        a = self.a
        for srd, rows, first, dst in ((S_K, 17, -3, dk), (S_V, 16, 0, dv)):
            a("s_lshl_b32 s%d, s%d, 6" % (sA, sR))
            a("s_mul_i32 s%d, s%d, %d" % (sB, sW, rows))
            a("s_add_u32 s%d, s%d, s%d" % (sA, sA, sB))
            a("s_add_i32 s%d, s%d, %d" % (sA, sA, first))
            a("v_add_u32 v26, s%d, v%d" % (sA, vL))
            a("v_lshlrev_b32 v26, 10, v26")
            a("s_lshl_b32 s%d, s%d, 7" % (sB, sC))
            a("v_add_u32 v26, s%d, v26" % sB)
            a("v_mov_b32 v27, 0x%x" % OOB)
            a("v_cmp_gt_u32 vcc, %d, v%d" % (rows, vL))
            a("v_cndmask_b32 v26, v27, v26, vcc")
            a.vmem("buffer_load_dword v%d, v26, %s, 0 offen" % (dst, sr(srd, 4)), "touch")

    def touch_w3_local(self):
        a = self.a
        if self.opt.get("tw3", 1):
            a("s_lshr_b32 s%d, s2, 3" % sE)
            a("s_lshl_b32 s%d, s%d, 2" % (sE, sE))
            a("s_add_u32 s%d, s%d, s%d" % (sE, sE, sW))
            self.touch(S_W3, 64, sE, 50)
            a("s_add_u32 s%d, s%d, 128" % (sE, sE))
            self.touch(S_W3, 64, sE, 51)

    def touch_w4_chip(self):
        a = self.a
        if self.opt.get("tw4", 1):
            a("s_lshl_b32 s%d, s2, 2" % sE)
            a("s_add_u32 s%d, s%d, s%d" % (sE, sE, sW))
            self.touch(S_W4, 14, sE, 52)

    def touch_w34(self):
        a = self.a
        if self.opt.get("touch", 1):
            a("s_lshl_b32 s%d, s2, 2" % sE)
            a("s_add_u32 s%d, s%d, s%d" % (sE, sE, sW))
            if self.opt.get("touchw3", 1):
                self.touch(S_W3, 14, sE, 223)
            if self.opt.get("touchw4", 1):
                self.touch(S_W4, 14, sE, 224)

    def touch_w4_local(self):
        a = self.a
        a("s_lshr_b32 s%d, s2, 3" % sE)
        a("s_lshl_b32 s%d, s%d, 2" % (sE, sE))
        a("s_add_u32 s%d, s%d, s%d" % (sE, sE, sW))
        self.touch(S_W4, 64, sE, 54)
        a("s_add_u32 s%d, s%d, 128" % (sE, sE))
        self.touch(S_W4, 64, sE, 55)

    KRAW, VRAW, SHRAW, POFF = 172, 183, 164, 138

    def p0_loads(self):
        a = self.a
        o = self.POFF
        a("s_lshl_b32 s%d, s%d, 6" % (sA, sR))
        a("s_lshl_b32 s%d, s%d, 4" % (sB, sW))
        a("s_add_u32 s%d, s%d, s%d" % (sA, sA, sB))
        a("v_lshl_add_u32 v26, v%d, 3, s%d" % (vHH, sA))
        a("s_lshl_b32 s%d, s%d, 7" % (sB, sC))
        a("v_lshl_add_u32 v27, v%d, 2, s%d" % (vN31, sB))
        a("v_lshl_add_u32 v%d, v26, 10, v27" % (o + 3))
        a("v_add_u32 v%d, 0x1000, v%d" % (o + 4, o + 3))
        a("v_mov_b32 v28, 0x%x" % OOB)
        for i in range(3):
            a("v_subrev_u32 v%d, %d, v%d" % (o + i, (3 - i) * 1024, o + 3))
            a("v_cmp_gt_u32 vcc, %d, v26" % (3 - i))
            a("v_cndmask_b32 v%d, v%d, v28, vcc" % (o + i, o + i))
        a("s_lshl_b32 s%d, s%d, 9" % (sB, sC))
        a("v_lshl_add_u32 v%d, v%d, 4, s%d" % (o + 5, vN31, sB))

        def item(text):
            return lambda: a.vmem(text, "p0")
        for i in range(3):
            self.fq.append(item("buffer_load_dword v%d, v%d, %s, 0 offen" % (self.KRAW + i, o + i, sr(S_K, 4))))
        for i in range(8):
            self.fq.append(item("buffer_load_dword v%d, v%d, %s, 0 offen offset:%d"
                                % (self.KRAW + 3 + i, o + 3 + i // 4, sr(S_K, 4), (i % 4) * 1024)))
        for i in range(8):
            self.fq.append(item("buffer_load_dword v%d, v%d, %s, 0 offen offset:%d"
                                % (self.VRAW + i, o + 3 + i // 4, sr(S_V, 4), (i % 4) * 1024)))
        self.fq.append(item("buffer_load_dwordx4 %s, v%d, %s, 0 offen" % (vr(self.SHRAW, 4), o + 5, sr(S_SHK, 4))))

    ACK, ACS, ACC_CS = 32, 48, 64
    BF, AK, AS, AC = 80, 96, 104, 112
    SUM, ONE4 = 120, 124

    def s1_setup(self):
        a = self.a
        a("v_bfe_u32 v26, v%d, 1, 3" % vN31)
        a("v_xor_b32 v26, v26, v%d" % vHH)
        a("v_lshlrev_b32 v26, 4, v26")
        a("v_lshl_add_u32 v26, v%d, 7, v26" % vN31)
        a("s_lshl_b32 s%d, s%d, 14" % (sA, sW))
        a("v_add_u32 v128, s%d, v26" % sA)
        for i in range(1, 4):
            a("v_xor_b32 v%d, %d, v128" % (128 + i, 32 * i))
        a("s_lshl_b32 s%d, s%d, 14" % (sA, sKH))
        a("s_add_u32 s%d, s%d, %d" % (sA, sA, LW))
        a("s_lshl_b32 s%d, s%d, 15" % (sB, sKH))
        a("s_add_u32 s%d, s%d, s%d" % (sE, sA, sB))
        a("v_add_u32 v134, s%d, v%d" % (sE, vWN))
        a("s_xor_b32 s%d, s%d, 0x8000" % (sB, sB))
        a("s_add_u32 s%d, s%d, s%d" % (sE, sA, sB))
        a("v_add_u32 v135, s%d, v%d" % (sE, vWN))
        a("s_xor_b32 s%d, s%d, s%d" % (sB, sKH, sTH))
        a("s_lshl_b32 s%d, s%d, 15" % (sB, sB))
        a("s_add_u32 s%d, s%d, s%d" % (sE, sA, sB))
        a("v_add_u32 v136, s%d, v%d" % (sE, vWN))

    def s1_main(self, after_stage):
        a = self.a
        ACK, ACS, ACC_CS, BF, AK, AS, AC, SUM, ONE4 = (self.ACK, self.ACS, self.ACC_CS, self.BF, self.AK, self.AS,
                                                       self.AC, self.SUM, self.ONE4)
        self.selector(ONE4)
        for i in range(4):
            a("v_mov_b32 v%d, 0" % (SUM + i))

        def aread(ks, which):
            base, addr = ((AK, 134), (AS, 135), (AC, 136))[which]
            for hf in range(2):
                a.lds("ds_read_b64_tr_b16 %s, v%d offset:%d"
                      % (vr(base + 4 * (ks & 1) + 2 * hf, 2), addr, ks * 1024 + hf * 256), "f%d_%d" % (ks, which))

        for st in range(4):
            if st < 3:
                after_stage(st)
            for q4 in range(4):
                a.lds("ds_read_b128 %s, v%d offset:%d" % (vr(BF + 4 * q4, 4), 128 + q4, LQ + st * 4096), "b")
            for which in range(3):
                aread(4 * st, which)
            self.fill(1)
            a.wait_lg("b")
            for j in range(16):
                a("v_dot2c_f32_bf16 v%d, s%d, v%d" % (SUM + (j & 1), sONES, BF + j))
                a("v_dot2c_f32_bf16 v%d, v%d, v%d" % (SUM + 2 + (j & 1), BF + j, BF + j))
                if j in (5, 11):
                    self.fill(1)
            for q4 in range(4):
                ks = 4 * st + q4
                b = ks & 1
                B = vr(BF + 4 * q4, 4)
                first = ks == 0
                a.wait_lg("f%d_0" % ks)
                a("%s %s, %s, %s, %s" % (MF32, vr(ACK, 16), vr(AK + 4 * b, 4), B, "0" if first else vr(ACK, 16)))
                if q4 < 3:
                    aread(ks + 1, 0)
                self.fill(1)
                a.wait_lg("f%d_1" % ks)
                a("%s %s, %s, %s, %s" % (MF32, vr(ACS, 16), vr(AS + 4 * b, 4), B, "0" if first else vr(ACS, 16)))
                if q4 < 3:
                    aread(ks + 1, 1)
                self.fill(1)
                a.wait_lg("f%d_2" % ks)
                a("%s %s, %s, %s, %s" % (MF16, vr(ACC_CS, 4), vr(AC + 4 * b, 4), vr(ONE4, 4),
                                         "0" if first else vr(ACC_CS, 4)))
                if q4 < 3:
                    aread(ks + 1, 2)
            self.stamp("s1st%d" % st)
        self.fill_all()

    def selector(self, dst):
        a = self.a
        a("v_lshrrev_b32 v26, 4, v%d" % vL)
        a("v_xor_b32 v26, v26, v%d" % vL)
        a("v_and_b32 v26, 1, v26")
        a("v_mov_b32 v27, s%d" % sONES)
        a("v_cmp_eq_u32 vcc, 0, v26")
        a("v_cndmask_b32 v%d, 0, v27, vcc" % dst)
        for i in range(1, 4):
            a("v_mov_b32 v%d, v%d" % (dst + i, dst))

    def colsum_write(self, src, sbase):
        a = self.a
        a("v_and_b32 v28, 1, v%d" % vL)
        a("v_lshlrev_b32 v28, 6, v28")
        a("v_lshrrev_b32 v29, 4, v%d" % vL)
        a("v_lshl_add_u32 v28, v29, 4, v28")
        a("v_add_u32 v28, s%d, v28" % sbase)
        self.hold += 1
        a("s_mov_b32 exec_lo, 0x30003")
        a("s_mov_b32 exec_hi, 0x30003")
        a.lds("ds_write_b128 v28, %s" % vr(src, 4))
        a("s_mov_b64 exec, -1")
        self.hold -= 1

    def q_tile_read(self):
        a = self.a
        self.feat0(sE, sKH, 0)
        a("s_lshr_b32 s%d, s%d, 8" % (sA, sE))
        a("s_lshl_b32 s%d, s%d, 1" % (sB, sTH))
        a("s_add_u32 s%d, s%d, s%d" % (sA, sA, sB))
        a("s_lshl_b32 s%d, s%d, 14" % (sA, sA))
        a("s_lshr_b32 s%d, s%d, 6" % (sB, sE))
        a("s_sub_u32 s%d, s%d, s%d" % (sB, sB, sROT))
        a("s_and_b32 s%d, s%d, 3" % (sB, sB))
        a("s_lshl_b32 s%d, s%d, 12" % (sB, sB))
        a("s_add_u32 s%d, s%d, s%d" % (sA, sA, sB))
        a("s_bfe_u32 s%d, s%d, 0x10005" % (sB, sE))
        a("s_lshl_b32 s%d, s%d, 2" % (sB, sB))
        a("v_bfe_u32 v26, v%d, 1, 3" % vN31)
        a("v_xor_b32 v26, s%d, v26" % sB)
        a("v_lshlrev_b32 v27, 7, v%d" % vN31)
        a("v_lshl_add_u32 v27, v%d, 3, v27" % vHH)
        a("v_add_u32 v27, s%d, v27" % sA)
        for j in range(4):
            a("v_xor_b32 v28, %d, v26" % j)
            a("v_lshl_add_u32 v28, v28, 4, v27")
            a.lds("ds_read_b64 %s, v28 offset:%d" % (vr(vQ + 2 * j, 2), LQ), "qt")

    def gelu(self, X, n, vA13, vIA, T, out, fills=0):
        a = self.a
        for g0 in range(0, n // 2, 4):
            ps = list(range(g0, min(g0 + 4, n // 2)))
            t = lambda p: T + 4 * (p - g0)
            x = lambda p: vr(X + 2 * p, 2)
            left = fills

            def hook():
                nonlocal left
                if left > 0:
                    self.fill(1)
                    left -= 1
            for p in ps:
                a("v_pk_mul_f32 %s, %s, %s" % (vr(t(p), 2), x(p), x(p)))
            for p in ps:
                a("v_pk_fma_f32 %s, %s, %s, %s op_sel:[0,1,0] op_sel_hi:[1,1,0]"
                  % (vr(t(p), 2), vr(t(p), 2), vr(vA13, 2), vr(vA13, 2)))
            hook()
            for p in ps:
                a("v_pk_mul_f32 %s, %s, %s" % (vr(t(p), 2), vr(t(p), 2), x(p)))
            for p in ps:
                a("v_exp_f32 v%d, v%d" % (t(p) + 2, t(p)))
                a("v_exp_f32 v%d, v%d" % (t(p) + 3, t(p) + 1))
            hook()
            for p in ps:
                a("v_pk_fma_f32 %s, %s, %s, %s op_sel_hi:[1,0,0]"
                  % (vr(t(p), 2), vr(t(p) + 2, 2), vr(vIA, 2), vr(vIA, 2)))
            hook()
            for p in ps:
                a("v_rcp_f32 v%d, v%d" % (t(p) + 2, t(p)))
                a("v_rcp_f32 v%d, v%d" % (t(p) + 3, t(p) + 1))
            hook()
            for p in ps:
                a("v_pk_mul_f32 %s, %s, %s" % (vr(t(p), 2), vr(t(p) + 2, 2), x(p)))
            for p in ps:
                a("v_cvt_pk_bf16_f32 v%d, v%d, v%d" % (out + p, t(p), t(p) + 1))

    def gelu_consts(self, vA, dst):
        a = self.a
        a("v_mul_f32 v%d, s%d, v%d" % (dst, sKG1, vA))
        a("v_mul_f32 v%d, v%d, v%d" % (dst + 1, vA, vA))
        a("v_mul_f32 v%d, v%d, v%d" % (dst + 1, dst + 1, vA))
        a("v_mul_f32 v%d, s%d, v%d" % (dst + 1, sKG3, dst + 1))
        a("v_rcp_f32 v%d, v%d" % (dst + 2, vA))

    def exchange_write(self, send, base=LRED):
        a = self.a
        a("s_lshl_b32 s%d, s%d, 12" % (sA, sW))
        a("s_add_u32 s%d, s%d, %d" % (sA, sA, base))
        a("v_add_u32 v26, s%d, v%d" % (sA, vL16))
        for j in range(4):
            a.lds("ds_write_b128 v26, %s offset:%d" % (vr(send + 4 * j, 4), 1024 * j))

    def exchange_read(self, dst, base=LRED):
        a = self.a
        a("s_xor_b32 s%d, s%d, 1" % (sA, sW))
        a("s_lshl_b32 s%d, s%d, 12" % (sA, sA))
        a("s_add_u32 s%d, s%d, %d" % (sA, sA, base))
        a("v_add_u32 v26, s%d, v%d" % (sA, vL16))
        for j in range(4):
            a.lds("ds_read_b128 %s, v26 offset:%d" % (vr(dst + 4 * j, 4), 1024 * j), "xr")

    def s1_epilogue(self, after_exchange):
        a = self.a
        ACK, ACS, ACC_CS, SUM = self.ACK, self.ACS, self.ACC_CS, self.SUM
        self.q_tile_read()
        a("v_add_f32 v%d, v%d, v%d" % (SUM, SUM, SUM + 1))
        a("v_add_f32 v%d, v%d, v%d" % (SUM + 2, SUM + 2, SUM + 3))
        a("v_permlane32_swap_b32 v%d, v%d" % (SUM, SUM + 2))
        a("v_add_f32 v%d, v%d, v%d" % (SUM, SUM, SUM + 2))
        a("s_lshl_b32 s%d, s%d, 8" % (sA, sW))
        a("s_add_u32 s%d, s%d, %d" % (sA, sA, LSTX))
        a("v_lshl_add_u32 v27, v%d, 2, s%d" % (vL, sA))
        a.lds("ds_write_b32 v27, v%d" % SUM)
        self.exchange_write(ACS)
        a("s_xor_b32 s%d, s%d, s%d" % (sA, sKH, sTH))
        a("s_lshl_b32 s%d, s%d, 8" % (sA, sA))
        a("s_lshl_b32 s%d, s%d, 7" % (sB, sKH))
        a("s_add_u32 s%d, s%d, s%d" % (sA, sA, sB))
        a("s_add_u32 s%d, s%d, %d" % (sA, sA, LCSX))
        self.colsum_write(ACC_CS, sA)
        a.wait_lg_all()
        self.ssm_d_unpack()
        self.barrier()
        P, C0, C1 = 80, 96, 128
        self.exchange_read(P)
        a("s_xor_b32 s%d, s%d, 1" % (sA, sW))
        a("s_lshl_b32 s%d, s%d, 8" % (sA, sA))
        a("s_add_u32 s%d, s%d, %d" % (sA, sA, LSTX))
        a("v_lshl_add_u32 v27, v%d, 2, s%d" % (vL, sA))
        a.lds("ds_read_b32 v%d, v27" % (SUM + 1), "sx")
        a("s_lshl_b32 s%d, s%d, 8" % (sA, sKH))
        a("s_add_u32 s%d, s%d, %d" % (sA, sA, LCSX))
        a("v_lshl_add_u32 v28, v%d, 4, s%d" % (vHH, sA))
        for j in range(4):
            a.lds("ds_read_b128 %s, v28 offset:%d" % (vr(C0 + 4 * j, 4), 32 * j))
            a.lds("ds_read_b128 %s, v28 offset:%d" % (vr(C1 + 4 * j, 4), 128 + 32 * j))
        after_exchange()
        a.wait_lg("sx")
        a("v_add_f32 v%d, v%d, v%d" % (SUM, SUM, SUM + 1))
        a("v_mov_b32 v%d, v%d" % (SUM + 2, SUM))
        a("v_permlane32_swap_b32 v%d, v%d" % (SUM, SUM + 2))
        a("v_mul_f32 v%d, s%d, v%d" % (vMEAN, s512I, SUM))
        a("v_mul_f32 v26, s%d, v%d" % (s512I, SUM + 2))
        a("v_fma_f32 v26, -v%d, v%d, v26" % (vMEAN, vMEAN))
        a("v_max_f32 v26, 0, v26")
        a("v_add_f32 v27, s%d, v26" % sEPS)
        a("v_rsq_f32 v%d, v27" % vR1)
        a("v_mul_f32 v27, v%d, v%d" % (vR1, vR1))
        a("v_fma_f32 v27, v27, v26, s%d" % sEPS)
        a("v_rsq_f32 v27, v27")
        a("v_mul_f32 v27, v27, v%d" % vR1)
        G = 112
        self.gelu_consts(27, G)
        a("v_sub_f32 v%d, 0, v%d" % (G + 4, vMEAN))
        a.wait_lg_all()
        for p in range(8):
            a("v_pk_add_f32 %s, %s, %s" % (vr(C0 + 2 * p, 2), vr(C0 + 2 * p, 2), vr(C1 + 2 * p, 2)))
            a("v_pk_add_f32 %s, %s, %s" % (vr(ACK + 2 * p, 2), vr(ACK + 2 * p, 2), vr(P + 2 * p, 2)))
        for p in range(8):
            a("v_pk_fma_f32 %s, %s, %s, %s op_sel_hi:[1,0,1]"
              % (vr(ACK + 2 * p, 2), vr(C0 + 2 * p, 2), vr(G + 4, 2), vr(ACK + 2 * p, 2)))
        self.gelu(ACK, 16, G, G + 2, 144, 48, fills=0)
        self.frag_store(48, WS_HS, "hst")

    def frag_store(self, src, base, tag):
        a = self.a
        a("s_lshl_b32 s%d, s%d, 15" % (sA, sT))
        self.feat0(sB, sKH, 6)
        a("s_add_u32 s%d, s%d, s%d" % (sA, sA, sB))
        a("s_add_u32 s%d, s%d, 0x%x" % (sA, sA, base))
        a.vmem("buffer_store_dwordx4 %s, v%d, %s, s%d offen sc1" % (vr(src, 4), vL16, sr(S_WS, 4), sA), tag)
        a.vmem("buffer_store_dwordx4 %s, v%d, %s, s%d offen offset:1024 sc1"
               % (vr(src + 4, 4), vL16, sr(S_WS, 4), sA), tag)

    PK = 118

    def nonce_compute(self):
        a = self.a
        a.wait_vm("nonce")
        a("v_readfirstlane_b32 s%d, v30" % sN)
        a("s_mul_i32 s%d, s%d, 0x9e3779b1" % (sN, sN))
        a("s_add_u32 s%d, s%d, 0x7f4a7c15" % (sN, sN))

    def p0_compute(self, mid=None):
        a = self.a
        K, V, SH, KV, PK = 56, 78, 94, 102, self.PK
        self.p0_reads()
        a.wait_lg_all()
        d = self.SHRAW
        for j, (x, y, hi) in enumerate([(d, d + 2, 0), (d, d + 2, 1), (d + 1, d + 3, 0), (d + 1, d + 3, 1)]):
            for o, src in ((0, x), (1, y)):
                if hi:
                    a("v_and_b32 v%d, s%d, v%d" % (SH + 2 * j + o, sHI, src))
                else:
                    a("v_lshlrev_b32 v%d, 16, v%d" % (SH + 2 * j + o, src))
        for i in range(11):
            a("v_lshlrev_b32 v%d, 16, v%d" % (K + 2 * i, self.KRAW + i))
            a("v_and_b32 v%d, s%d, v%d" % (K + 2 * i + 1, sHI, self.KRAW + i))
            if i % 4 == 3:
                self.fill(1)
        for i in range(8):
            a("v_lshlrev_b32 v%d, 16, v%d" % (V + 2 * i, self.VRAW + i))
            a("v_and_b32 v%d, s%d, v%d" % (V + 2 * i + 1, sHI, self.VRAW + i))
        self.fill(1)
        for t in range(8):
            a("v_pk_mul_f32 %s, %s, %s" % (vr(KV + 2 * t, 2), vr(K + 2 * (t + 3), 2), vr(SH, 2)))
        self.fill(1)
        for j in range(1, 4):
            for t in range(8):
                a("v_pk_fma_f32 %s, %s, %s, %s" % (vr(KV + 2 * t, 2), vr(K + 2 * (t + 3 - j), 2), vr(SH + 2 * j, 2),
                                                   vr(KV + 2 * t, 2)))
            self.fill(1)
        if mid:
            mid()
            self.fill(4)
        for t in range(8):
            a("v_pk_mul_f32 %s, %s, %s" % (vr(KV + 2 * t, 2), vr(KV + 2 * t, 2), vr(V + 2 * t, 2)))
        self.fill(1)
        for c in range(2):
            for t in range(4):
                a("v_cvt_pk_bf16_f32 v%d, v%d, v%d" % (PK + 4 * c + t, KV + 4 * t + c, KV + 4 * t + 2 + c))
        a("s_lshl_b32 s%d, s%d, 1" % (sA, sW))
        a("v_add_u32 v26, s%d, v%d" % (sA, vHH))
        a("v_and_b32 v27, 7, v%d" % vN31)
        a("v_xor_b32 v26, v26, v27")
        a("v_lshlrev_b32 v26, 4, v26")
        a("v_lshl_add_u32 v26, v%d, 8, v26" % vN31)
        a("v_add_u32 v26, %d, v26" % LSTG)
        a.lds("ds_write_b128 v26, %s" % vr(PK, 4))
        a.lds("ds_write_b128 v26, %s offset:128" % vr(PK + 4, 4))
        self.fill_all()

    def p0_readback(self):
        a = self.a
        PK = 144
        a("v_lshrrev_b32 v26, 3, v%d" % vL)
        a("s_lshl_b32 s%d, s%d, 4" % (sA, sW))
        a("v_add_u32 v26, s%d, v26" % sA)
        a("v_and_b32 v27, 7, v%d" % vL)
        for i in range(2):
            a("v_add_u32 v28, %d, v26" % (8 * i))
            a("v_bfe_u32 v29, v28, 1, 3")
            a("v_xor_b32 v29, v29, v27")
            a("v_lshlrev_b32 v29, 4, v29")
            a("v_lshl_add_u32 v29, v28, 7, v29")
            a("v_add_u32 v29, %d, v29" % LSTG)
            a.lds("ds_read_b128 %s, v29" % vr(PK + 4 * i, 4), "pk")
        a("v_lshlrev_b32 v27, 4, v27")
        a("v_lshl_add_u32 v152, v26, 12, v27")

    def p0_store(self):
        a = self.a
        PK = 144
        a("s_lshl_b32 s%d, s%d, 18" % (sA, sC))
        a("s_lshl_b32 s%d, s%d, 7" % (sB, sR))
        a("s_add_u32 s%d, s%d, s%d" % (sA, sA, sB))
        a("s_add_u32 s%d, s%d, 0x%x" % (sA, sA, WS_KVT))
        a("s_add_u32 s%d, s%d, 0x8000" % (sB, sA))
        a.wait_lg("pk")
        a.vmem("buffer_store_dwordx4 %s, v152, %s, s%d offen sc1" % (vr(PK, 4), sr(S_WS, 4), sA), "kvt")
        a.vmem("buffer_store_dwordx4 %s, v152, %s, s%d offen sc1" % (vr(PK + 4, 4), sr(S_WS, 4), sB), "kvt")

    def conv_filter_loads(self, ch):
        a = self.a
        a("v_lshlrev_b32 v26, 4, v%d" % vTID)
        a("v_subrev_u32 v27, 8, v26")
        a("v_mov_b32 v28, 0x%x" % OOB)
        a("v_cmp_eq_u32 vcc, 0, v%d" % vTID)
        a("v_cndmask_b32 v27, v27, v28, vcc")
        a("s_lshl_b32 s%d, s2, 13" % sA)
        if ch:
            a("s_add_u32 s%d, s%d, 0x1000" % (sA, sA))
        dA, dP = vr(vCH, 4), vr(vCH + 4, 2)
        a.vmem("buffer_load_dwordx4 %s, v26, %s, s%d offen" % (dA, sr(S_SSM, 4), sA), "cf")
        a.vmem("buffer_load_dwordx2 %s, v27, %s, s%d offen" % (dP, sr(S_SSM, 4), sA), "cf")

    def ssm_d_load(self):
        a = self.a
        a("s_lshl_b32 s%d, s2, 2" % sA)
        a("s_load_dword s%d, %s, s%d" % (sD0, sr(S_DPTR, 2), sA))

    def ssm_d_unpack(self):
        a = self.a
        a("s_and_b32 s%d, s%d, s%d" % (sD1, sD0, sHI))
        a("s_lshl_b32 s%d, s%d, 16" % (sD0, sD0))

    def conv_x_loads(self, ch):
        a = self.a
        a("v_lshlrev_b32 v26, 4, v%d" % vTID)
        a("s_lshl_b32 s%d, s2, 13" % sA)
        a("s_add_u32 s%d, s%d, 0x%x" % (sA, sA, WS_KVT + 0x1000 * ch))
        a.vmem("buffer_load_dwordx4 %s, v26, %s, s%d offen sc1" % (vr(vCH + 6, 4), sr(S_WS, 4), sA), "cx")

    def conv_prep_filter(self, ch):
        a = self.a
        base = CV_BASE1 if ch else CV_BASE
        A, P = vCH, vCH + 4
        a.wait_vm("cf")
        a("v_min_u32 v26, 79, v%d" % vTID)
        a("v_subrev_u32 v27, 72, v26")
        a("v_lshrrev_b32 v28, 1, v27")
        a("v_mul_u32_u24 v28, 4128, v28")
        a("v_and_b32 v27, 1, v27")
        a("v_lshl_add_u32 v28, v27, 4, v28")
        a("v_add_u32 v28, %d, v28" % (base + CV_A))
        a("v_lshlrev_b32 v27, 4, v26")
        a("v_add_u32 v27, %d, v27" % (base + CV_X))
        a("v_cmp_gt_u32 vcc, 72, v26")
        a("v_cndmask_b32 v28, v28, v27, vcc")
        for i in range(4):
            a("v_mov_b32 v%d, 0" % (32 + i))
        a.lds("ds_write_b128 v28, %s" % vr(32, 4))
        Z, Y, W = 36, 40, 44
        seq = [P, P + 1, A, A + 1, A + 2, A + 3]
        for j in range(4):
            a("v_alignbit_b32 v%d, v%d, v%d, 16" % (Z + j, seq[j + 1], seq[j]))
            a("v_alignbit_b32 v%d, v%d, v%d, 16" % (Y + j, seq[j + 2], seq[j + 1]))
            a("v_mov_b32 v%d, v%d" % (W + j, seq[j + 1]))
        a("v_lshlrev_b32 v29, 4, v%d" % vTID)
        a("v_add_u32 v29, %d, v29" % base)
        for rho, src in ((0, A), (1, Y), (2, W), (3, Z)):
            a.lds("ds_write_b128 v29, %s offset:%d" % (vr(src, 4), CV_A + 32 + 4128 * rho))
        a.wait_lg_all()

    def conv_x_write(self, ch):
        a = self.a
        base = CV_BASE1 if ch else CV_BASE
        a.wait_vm("cx")
        a("v_lshlrev_b32 v29, 4, v%d" % vTID)
        a("v_add_u32 v29, %d, v29" % base)
        a.lds("ds_write_b128 v29, %s offset:%d" % (vr(vCH + 6, 4), CV_XD))
        a.wait_lg_all()

    def conv_poly(self, ch):
        a = self.a
        base = CV_BASE1 if ch else CV_BASE
        a("s_lshl_b32 s%d, s%d, 5" % (sA, sW))
        a("s_sub_u32 s%d, %d, s%d" % (sA, base + CV_XD - 1024, sA))
        a("v_lshl_add_u32 v26, v%d, 3, s%d" % (vL, sA))
        for u in range(10):
            a.lds("ds_read_b64_tr_b16 %s, v26 offset:%d" % (vr(32 + 2 * u, 2), 512 * u), "u%d" % u)
        a("s_mul_i32 s%d, s%d, 5312" % (sA, sW))
        a("s_add_u32 s%d, s%d, %d" % (sA, sA, base + CV_P))
        a("v_and_b32 v27, 15, v%d" % vL)
        a("v_mul_u32_u24 v27, 328, v27")
        a("v_lshrrev_b32 v28, 4, v%d" % vL)
        a("v_lshl_add_u32 v27, v28, 3, v27")
        a("v_add_u32 v27, s%d, v27" % sA)
        for u in range(10):
            a.wait_lg("u%d" % u)
            a.lds("ds_write_b64 v27, %s offset:%d" % (vr(32 + 2 * u, 2), 32 * u))
        a.wait_lg_all()

    def conv_addr(self, ch):
        a = self.a
        base = CV_BASE1 if ch else CV_BASE
        a("s_lshl_b32 s%d, s%d, 3" % (sA, sW))
        a("s_sub_u32 s%d, %d, s%d" % (sA, base + CV_A + 32, sA))
        a("v_lshl_add_u32 v160, v%d, 3, s%d" % (vL, sA))
        a("s_mul_i32 s%d, s%d, 1312" % (sA, sW))
        a("s_add_u32 s%d, s%d, %d" % (sA, sA, base + CV_P + 32))
        a("v_bfe_u32 v26, v%d, 2, 2" % vL)
        a("v_mul_u32_u24 v26, 5312, v26")
        a("v_and_b32 v27, 3, v%d" % vL)
        a("v_lshrrev_b32 v28, 4, v%d" % vL)
        a("v_sub_u32 v27, v27, v28")
        a("v_lshl_add_u32 v26, v27, 3, v26")
        a("v_add_u32 v161, s%d, v26" % sA)

    CACC, CAF, CBF = 32, 64, 96

    def conv_main(self, hook=None, fill_every=0):
        a = self.a
        CACC, CAF, CBF = self.CACC, self.CAF, self.CBF

        def rd_list(rho):
            b = rho & 1
            out = []
            order = [("A", 0)] + [("B", c) for c in range(8)] + [("A", 1), ("A", 2), ("A", 3)]
            for kind, i in order:
                for hf in range(2):
                    if kind == "A":
                        out.append("ds_read_b64_tr_b16 %s, v160 offset:%d"
                                   % (vr(CAF + 16 * b + 4 * i + 2 * hf, 2), 4128 * rho + 1024 * i + 512 * hf))
                    else:
                        out.append("ds_read_b64_tr_b16 %s, v161 offset:%d"
                                   % (vr(CBF + 32 * b + 4 * i + 2 * hf, 2), 328 * rho + 32 * i + 32 * (1 - hf)))
            return out

        for x in rd_list(0):
            a.lds(x)
        a.wait_lg_all()
        cnt = 0
        for rho in range(4):
            if hook:
                hook(rho)
            b = rho & 1
            nxt = rd_list(rho + 1) if rho < 3 else []
            k = 0
            for q in range(4):
                for c in range(8 - 2 * q):
                    t = c + 2 * q
                    acc = vr(CACC + 4 * t, 4)
                    a("%s %s, %s, %s, %s" % (MF16, acc, vr(CAF + 16 * b + 4 * q, 4), vr(CBF + 32 * b + 4 * c, 4),
                                             "0" if (rho == 0 and q == 0) else acc))
                    for _ in range(2 if k < 8 else 1):
                        if nxt:
                            a.lds(nxt.pop(0))
                    k += 1
                    cnt += 1
                    if fill_every and cnt % fill_every == 0:
                        self.fill(1)
            assert not nxt
            a.wait_lg_all()

    def conv_finish(self, ch):
        a = self.a
        base = CV_BASE1 if ch else CV_BASE
        CACC = self.CACC
        self.barrier()
        a("s_lshl_b32 s%d, s%d, 11" % (sA, sW))
        a("s_add_u32 s%d, s%d, %d" % (sA, sA, base + CV_R))
        a("v_add_u32 v26, s%d, v%d" % (sA, vL16))
        for t in range(8):
            a.lds("ds_write_b128 v26, %s offset:%d" % (vr(CACC + 4 * t, 4), (t >> 1) * 8192 + (t & 1) * 1024))
        a("s_lshl_b32 s%d, s%d, 10" % (sA, sW))
        a("s_add_u32 s%d, s%d, %d" % (sA, sA, base + CV_XD))
        a("v_and_b32 v27, 15, v%d" % vL)
        a("v_lshlrev_b32 v27, 5, v27")
        a("v_lshrrev_b32 v28, 4, v%d" % vL)
        a("v_lshl_add_u32 v27, v28, 3, v27")
        a("v_add_u32 v27, s%d, v27" % sA)
        for u in range(2):
            a.lds("ds_read_b64 %s, v27 offset:%d" % (vr(100 + 2 * u, 2), 512 * u))
        a.wait_lg_all()
        self.barrier()
        a("s_lshl_b32 s%d, s%d, 13" % (sA, sW))
        a("s_add_u32 s%d, s%d, %d" % (sA, sA, base + CV_R))
        a("v_add_u32 v26, s%d, v%d" % (sA, vL16))
        for sl in range(4):
            for u in range(2):
                a.lds("ds_read_b128 %s, v26 offset:%d" % (vr(64 + 8 * sl + 4 * u, 4), sl * 2048 + u * 1024))
        for u in range(2):
            for j in range(2):
                a("v_lshlrev_b32 v%d, 16, v%d" % (104 + 4 * u + 2 * j, 100 + 2 * u + j))
                a("v_and_b32 v%d, s%d, v%d" % (105 + 4 * u + 2 * j, sHI, 100 + 2 * u + j))
        a("v_mov_b32 v112, s%d" % (sD1 if ch else sD0))
        a("v_lshrrev_b32 v26, 4, v%d" % vL)
        a("v_and_b32 v27, 1, v26")
        a("v_lshlrev_b32 v27, 9, v27")
        a("v_lshrrev_b32 v26, 1, v26")
        a("v_lshl_add_u32 v27, v26, 4, v27")
        a("v_and_b32 v26, 15, v%d" % vL)
        a("v_lshl_add_u32 v27, v26, 5, v27")
        a("s_lshl_b32 s%d, s%d, 10" % (sA, sW))
        a("v_add_u32 v27, s%d, v27" % sA)
        a("s_lshl_b32 s%d, s2, 13" % sA)
        a("s_add_u32 s%d, s%d, 0x%x" % (sA, sA, WS_YT + 0x1000 * ch))
        a.wait_lg_all()
        for p in range(4):
            a("v_pk_add_f32 %s, %s, %s" % (vr(64 + 2 * p, 2), vr(64 + 2 * p, 2), vr(72 + 2 * p, 2)))
            a("v_pk_add_f32 %s, %s, %s" % (vr(80 + 2 * p, 2), vr(80 + 2 * p, 2), vr(88 + 2 * p, 2)))
        for p in range(4):
            a("v_pk_add_f32 %s, %s, %s" % (vr(64 + 2 * p, 2), vr(64 + 2 * p, 2), vr(80 + 2 * p, 2)))
        for p in range(4):
            a("v_pk_fma_f32 %s, %s, %s, %s op_sel_hi:[1,0,1]" % (vr(64 + 2 * p, 2), vr(104 + 2 * p, 2), vr(112, 2),
                                                                vr(64 + 2 * p, 2)))
        for p in range(4):
            a("v_cvt_pk_bf16_f32 v%d, v%d, v%d" % (116 + p, 64 + 2 * p, 65 + 2 * p))
        a("v_permlane16_swap_b32 v116, v118")
        a("v_permlane16_swap_b32 v117, v119")
        a.vmem("buffer_store_dwordx4 %s, v27, %s, s%d offen sc1" % (vr(116, 4), sr(S_WS, 4), sA), "yt")

    def s2_load_items(self):
        a = self.a
        a("s_lshl_b32 s%d, s%d, 5" % (sA, sT))
        a("v_add_u32 v26, s%d, v%d" % (sA, vN31))
        a("s_add_u32 s%d, s%d, 1" % (sB, sKH))
        a("s_lshl_b32 s%d, s%d, 14" % (sA, sKH))
        a("s_add_u32 s%d, s%d, 0x%x" % (sA, sA, WS_HS))
        a("v_mov_b32 v29, 0x%x" % OOB)
        for i, op in enumerate(("v_subrev_u32", "v_add_u32")):
            a("%s v27, s%d, v26" % (op, sB))
            a("v_lshrrev_b32 v28, 5, v27")
            a("v_lshlrev_b32 v28, 15, v28")
            a("v_and_b32 v30, 31, v27")
            a("v_lshl_add_u32 v30, v%d, 5, v30" % vHH)
            a("v_lshl_add_u32 v28, v30, 4, v28")
            a("v_add_u32 v28, s%d, v28" % sA)
            a("v_cmp_gt_u32 vcc, 0x800, v27")
            a("v_cndmask_b32 v%d, v29, v28, vcc" % (140 + i))
        so = ["0", "s%d" % sK4, "s%d" % sK8, "s%d" % sK12]
        items = []
        for ks in range(16):
            def f(ks=ks):
                a.vmem("buffer_load_dwordx4 %s, v%d, %s, %s offen offset:%d sc1"
                       % (ar(4 * ks, 4), 140 + (ks >> 3), sr(S_WS, 4), so[ks >> 2], (ks & 3) * 1024), "h%d" % ks)
            items.append(f)
        return items

    def wpi_addr(self, vk, vs, base, khs, ps):
        a = self.a
        a("s_mul_i32 s%d, s%d, %d" % (sA, sKH, khs + ps))
        a("s_add_u32 s%d, s%d, %d" % (sA, sA, base))
        a("v_add_u32 v%d, s%d, v%d" % (vk, sA, vWP))
        a("s_mul_i32 s%d, s%d, %d" % (sA, sKH, khs - ps))
        a("s_add_u32 s%d, s%d, %d" % (sA, sA, base + ps))
        a("v_add_u32 v%d, s%d, v%d" % (vs, sA, vWP))

    def s2_main(self):
        a = self.a
        ACK, ACS, AK, AS = self.ACK, self.ACS, self.AK, self.AS

        def rd(ks, which):
            base, addr = ((AK, 128), (AS, 129))[which]
            for hf in range(2):
                a.lds("ds_read_b64_tr_b16 %s, v%d offset:%d" % (vr(base + 4 * (ks & 1) + 2 * hf, 2), addr,
                                                                ks * 1024 + hf * 512), "f%d_%d" % (ks, which))
        rd(0, 0)
        rd(0, 1)
        for ks in range(16):
            b = ks & 1
            a.wait_both("h%d" % ks, "f%d_0" % ks)
            a("%s %s, %s, %s, %s" % (MF32, vr(ACK, 16), vr(AK + 4 * b, 4), ar(4 * ks, 4), "0" if ks == 0 else vr(ACK, 16)))
            if ks < 15:
                rd(ks + 1, 0)
            self.fill(1)
            a.wait_lg("f%d_1" % ks)
            a("%s %s, %s, %s, %s" % (MF32, vr(ACS, 16), vr(AS + 4 * b, 4), ar(4 * ks, 4), "0" if ks == 0 else vr(ACS, 16)))
            if ks < 15:
                rd(ks + 1, 1)

    def unpack8(self, src, dst):
        a = self.a
        for j in range(8):
            a("v_lshlrev_b32 v%d, 16, v%d" % (dst + 2 * j, src + j))
            a("v_and_b32 v%d, s%d, v%d" % (dst + 2 * j + 1, sHI, src + j))

    def xn_tile(self, dst):
        a = self.a
        self.unpack8(vQ, dst)
        for p in range(8):
            a("v_pk_add_f32 %s, %s, %s op_sel_hi:[1,0] neg_lo:[0,1] neg_hi:[0,1]"
              % (vr(dst + 2 * p, 2), vr(dst + 2 * p, 2), vr(vMEAN, 2)))
        for p in range(8):
            a("v_pk_mul_f32 %s, %s, %s op_sel:[0,1] op_sel_hi:[1,1]"
              % (vr(dst + 2 * p, 2), vr(dst + 2 * p, 2), vr(vMEAN, 2)))

    def s2_epilogue(self, after_exchange):
        a = self.a
        ACK, ACS = self.ACK, self.ACS
        self.exchange_write(ACS)
        self.xn_tile(96)
        a.wait_lg_all()
        self.barrier()
        after_exchange()
        self.exchange_read(80)
        for p in range(8):
            a("v_pk_add_f32 %s, %s, %s" % (vr(ACK + 2 * p, 2), vr(ACK + 2 * p, 2), vr(96 + 2 * p, 2)))
        a.wait_lg_all()
        for p in range(8):
            a("v_pk_add_f32 %s, %s, %s" % (vr(ACK + 2 * p, 2), vr(ACK + 2 * p, 2), vr(80 + 2 * p, 2)))
        for p in range(8):
            a("v_cvt_pk_bf16_f32 v%d, v%d, v%d" % (vX1 + p, ACK + 2 * p, ACK + 2 * p + 1))
        self.frag_store(vX1, WS_X1, "x1st")
        a("v_pk_mul_f32 %s, %s, %s" % (vr(112, 2), vr(ACK, 2), vr(ACK, 2)))
        a("v_pk_add_f32 %s, %s, %s" % (vr(114, 2), vr(ACK, 2), vr(ACK + 2, 2)))
        for p in range(1, 8):
            a("v_pk_fma_f32 %s, %s, %s, %s" % (vr(112, 2), vr(ACK + 2 * p, 2), vr(ACK + 2 * p, 2), vr(112, 2)))
            if p >= 2:
                a("v_pk_add_f32 %s, %s, %s" % (vr(114, 2), vr(114, 2), vr(ACK + 2 * p, 2)))
        a("v_add_f32 v114, v114, v115")
        a("v_add_f32 v112, v112, v113")
        a("v_permlane32_swap_b32 v114, v112")
        a("v_add_f32 v114, v114, v112")
        a("s_lshl_b32 s%d, s%d, 1" % (sA, sC))
        a("s_add_u32 s%d, s%d, s%d" % (sA, sA, sKH))
        a("s_lshl_b32 s%d, s%d, 14" % (sA, sA))
        a("s_lshl_b32 s%d, s%d, 7" % (sB, sT))
        a("s_add_u32 s%d, s%d, s%d" % (sA, sA, sB))
        a("s_add_u32 s%d, s%d, 0x%x" % (sA, sA, WS_ST))
        a("v_lshlrev_b32 v26, 13, v%d" % vHH)
        a("v_lshl_add_u32 v26, v%d, 2, v26" % vN31)
        a.vmem("buffer_store_dword v114, v26, %s, s%d offen sc1" % (sr(S_WS, 4), sA), "x1st")

    def w3_setup(self):
        a = self.a
        a("s_movk_i32 s%d, 3584" % sB)
        a("v_lshrrev_b32 v26, 2, v%d" % vL)
        a("v_mul_lo_u32 v26, v26, s%d" % sB)
        a("v_and_b32 v27, 3, v%d" % vL)
        a("v_lshl_add_u32 v%d, v27, 4, v26" % vW3F)
        a("v_lshrrev_b32 v26, 1, v%d" % vL)
        a("v_mul_lo_u32 v26, v26, s%d" % sB)
        a("v_and_b32 v27, 1, v%d" % vL)
        a("v_lshl_add_u32 v%d, v27, 4, v26" % vW3H)
        a("s_mul_i32 s%d, s%d, %d" % (sW3HG, sW, 128 * 3584))
        a("s_mul_i32 s%d, s%d, 224" % (sA, sCP))
        a("s_add_u32 s%d, s%d, s%d" % (sW3HG, sW3HG, sA))
        a("s_and_b32 s%d, s%d, 1" % (sB, sCP))
        a("s_lshl_b32 s%d, s%d, 5" % (sW3G, sB))
        a("s_add_u32 s%d, s%d, s%d" % (sW3G, sW3G, sW3HG))
        a("s_xor_b32 s%d, s%d, 1" % (sB, sB))
        a("s_mul_i32 s%d, s%d, 192" % (sB, sB))
        a("s_add_u32 s%d, s%d, s%d" % (sW3HG, sW3HG, sB))
        a("s_lshl_b32 s%d, s%d, 13" % (sW3L, sW))
        a("s_lshl_b32 s%d, s%d, 12" % (sW3HL, sW))

    def w3_items(self, panels):
        out = []
        for p in panels:
            if p < 3:
                for i in range(8):
                    out.append(self.dma_item(S_W3, vW3F, sW3L, W3_P + p * 32768 + i * 1024, sW3G,
                                             p * 64 + i * 16 * 3584, "w3"))
            else:
                for i in range(4):
                    out.append(self.dma_item(S_W3, vW3H, sW3HL, W3_H + i * 1024, sW3HG, i * 32 * 3584, "w3"))
        return out

    def s3_load_items(self):
        a = self.a
        a("s_lshl_b32 s%d, s%d, 15" % (sLD, sT3))
        a("s_add_u32 s%d, s%d, 0x%x" % (sLD, sLD, WS_X1))
        items = []
        for ks in range(32):
            def f(ks=ks):
                if ks and ks % 4 == 0:
                    a("s_add_u32 s%d, s%d, 0x1000" % (sLD, sLD))
                a.vmem("buffer_load_dwordx4 %s, v%d, %s, s%d offen offset:%d sc1"
                       % (ar(4 * (ks % 16), 4), vL16, sr(S_WS, 4), sLD, (ks & 3) * 1024), "x%d" % ks)
            items.append(f)
        return items

    def s3_stat_items(self):
        a = self.a
        a("v_lshlrev_b32 v147, 13, v%d" % vHH)
        a("v_lshl_add_u32 v147, v%d, 2, v147" % vN31)
        items = []
        for sl in range(16):
            def f(sl=sl):
                a("s_lshl_b32 s%d, s%d, 7" % (sSO, sT3))
                a("s_add_u32 s%d, s%d, 0x%x" % (sSO, sSO, WS_ST + 0x4000 * sl))
                a.vmem("buffer_load_dword v%d, v147, %s, s%d offen sc1" % (vST + sl, sr(S_WS, 4), sSO), "st")
            items.append(f)
        return items

    def s3_addr(self):
        a = self.a
        a("v_add_u32 v144, %d, v%d" % (W3_P, vWP))
        a("v_add_u32 v145, %d, v%d" % (W3_P + 65536, vWP))
        a("v_bfe_u32 v26, v%d, 2, 2" % vL)
        a("v_lshl_add_u32 v26, v%d, 2, v26" % vHH)
        a("v_and_b32 v27, 3, v%d" % vL)
        a("v_lshlrev_b32 v27, 3, v27")
        a("v_lshl_add_u32 v26, v26, 5, v27")
        a("v_add_u32 v146, %d, v26" % W3_H)

    @staticmethod
    def w3_read(p, ks, hf, dst):
        if p < 2:
            return "ds_read_b64_tr_b16 %s, v144 offset:%d" % (vr(dst, 2), p * 32768 + ks * 1024 + hf * 512)
        if p == 2:
            return "ds_read_b64_tr_b16 %s, v145 offset:%d" % (vr(dst, 2), ks * 1024 + hf * 512)
        return "ds_read_b64_tr_b16 %s, v146 offset:%d" % (vr(dst, 2), ks * 512 + hf * 256)

    def s3_colsum(self):
        self.hold += 1
        self._s3_colsum()
        self.hold -= 1

    def _s3_colsum(self):
        a = self.a
        full = a.newlabel("csfull")
        done = a.newlabel("csdone")
        self.selector(120)
        a("s_cmp_lt_u32 s%d, 3" % sW)
        a("s_cbranch_scc1 %s" % full)
        for is_full in (False, True):
            if is_full:
                a.label(full)
                a("s_lshl_b32 s%d, s%d, 15" % (sA, sW))
                a("v_add_u32 v148, s%d, v144" % sA)
            stride, hstep, addr = (1024, 512, 148) if is_full else (512, 256, 146)
            saved = list(a.lg)
            a.lg = []

            def rd(ks):
                for hf in range(2):
                    a.lds("ds_read_b64_tr_b16 %s, v%d offset:%d" % (vr(96 + 4 * (ks % 6) + 2 * hf, 2), addr,
                                                                    ks * stride + hf * hstep), "c%d" % ks)
            for ks in range(5):
                rd(ks)
            for ks in range(32):
                a.wait_lg("c%d" % ks)
                a("%s %s, %s, %s, %s" % (MF16, vr(32 + 4 * (ks & 1), 4), vr(96 + 4 * (ks % 6), 4), vr(120, 4),
                                         "0" if ks < 2 else vr(32 + 4 * (ks & 1), 4)))
                if ks + 5 < 32:
                    rd(ks + 5)
            a.lg = saved
            if not is_full:
                a("s_branch %s" % done)
        a.label(done)
        a("v_pk_add_f32 v[32:33], v[32:33], v[36:37]")
        a("v_pk_add_f32 v[34:35], v[34:35], v[38:39]")
        a("s_lshl_b32 s%d, s%d, 7" % (sA, sW))
        a("s_add_u32 s%d, s%d, %d" % (sA, sA, LCS3))
        self.colsum_write(32, sA)
        a.wait_lg_all()

    def s3_main(self, mid):
        a = self.a
        AF = 96

        def rd(ks, p):
            for hf in range(2):
                a.lds(self.w3_read(p, ks, hf, AF + 16 * (ks & 1) + 4 * p + 2 * hf), "f%d_%d" % (ks, p))
        for p in range(4):
            rd(0, p)
        for ks in range(32):
            b = ks & 1
            for p in range(4):
                if p == 0:
                    a.wait_both("x%d" % ks, "f%d_0" % ks)
                else:
                    a.wait_lg("f%d_%d" % (ks, p))
                acc = vr(32 + 16 * p, 16)
                a("%s %s, %s, %s, %s" % (MF32, acc, vr(AF + 16 * b + 4 * p, 4), ar(4 * (ks % 16), 4),
                                         "0" if ks == 0 else acc))
                if ks < 31:
                    rd(ks + 1, p)
                if p in (0, 2):
                    self.fill(1)
            if ks == self.opt.get("s3mid", 18):
                mid()
            if ks in (7, 15, 23) and self.opt.get("s3st", 0):
                self.stamp("s3k%d" % ks)

    def s3_epilogue(self, after_tile):
        a = self.a
        G = 128
        a("v_lshlrev_b32 v28, 4, v%d" % vHH)
        a("v_add_u32 v149, %d, v28" % LCS3)

        def csread(p):
            n = 16 if p < 3 else 8
            for j in range(n // 4):
                a.lds("ds_read_b128 %s, v149 offset:%d" % (vr(96 + 16 * (p & 1) + 4 * j, 4), 128 * p + 32 * j), "cs%d" % p)
        csread(0)
        a.wait_vm("st")
        for s in (8, 4, 2, 1):
            for i in range(s):
                a("v_add_f32 v%d, v%d, v%d" % (vST + i, vST + i, vST + i + s))
        a("v_mov_b32 v%d, v%d" % (vST + 1, vST))
        a("v_permlane32_swap_b32 v%d, v%d" % (vST, vST + 1))
        a("v_mul_f32 v%d, s%d, v%d" % (vST + 2, s512I, vST))
        a("v_mul_f32 v26, s%d, v%d" % (s512I, vST + 1))
        a("v_fma_f32 v26, -v%d, v%d, v26" % (vST + 2, vST + 2))
        a("v_max_f32 v26, 0, v26")
        a("v_add_f32 v26, s%d, v26" % sEPS)
        a("v_rsq_f32 v27, v26")
        self.gelu_consts(27, G)
        a("v_sub_f32 v%d, 0, v%d" % (G + 4, vST + 2))
        a("s_mul_i32 s%d, s%d, 114688" % (sD, sT3))
        a("s_mul_i32 s%d, s%d, 7168" % (sA, sCP))
        a("s_add_u32 s%d, s%d, s%d" % (sD, sD, sA))
        a("s_add_u32 s%d, s%d, 0x%x" % (sD, sD, WS_HH))
        a("s_and_b32 s%d, s%d, 1" % (sB, sCP))
        a("s_lshl_b32 s%d, s%d, 10" % (sE, sB))
        a("s_add_u32 s%d, s%d, s%d" % (sE, sE, sD))
        a("s_xor_b32 s%d, s%d, 1" % (sB, sB))
        a("s_mul_i32 s%d, s%d, 6144" % (sB, sB))
        a("s_add_u32 s%d, s%d, s%d" % (sF, sD, sB))
        for p in range(4):
            n = 16 if p < 3 else 8
            C = 96 + 16 * (p & 1)
            if p < 3:
                csread(p + 1)
            a.wait_lg("cs%d" % p)
            acc = 32 + 16 * p
            for i in range(n // 2):
                a("v_pk_fma_f32 %s, %s, %s, %s op_sel_hi:[1,0,1]"
                  % (vr(acc + 2 * i, 2), vr(C + 2 * i, 2), vr(G + 4, 2), vr(acc + 2 * i, 2)))
            out = 152 + 8 * (p & 1)
            self.gelu(acc, n, G, G + 2, 176, out, fills=0)
            if p < 3:
                a("s_add_u32 s%d, s%d, %d" % (sA, sE, 2048 * p))
                a.vmem("buffer_store_dwordx4 %s, v%d, %s, s%d offen sc1" % (vr(out, 4), vL16, sr(S_WS, 4), sA), "Hst")
                a.vmem("buffer_store_dwordx4 %s, v%d, %s, s%d offen offset:1024 sc1"
                       % (vr(out + 4, 4), vL16, sr(S_WS, 4), sA), "Hst")
            else:
                a.vmem("buffer_store_dwordx4 %s, v%d, %s, s%d offen sc1" % (vr(out, 4), vL16, sr(S_WS, 4), sF), "Hst")
            after_tile(p)

    def w4_setup(self):
        a = self.a
        a("s_lshl_b32 s%d, s%d, 11" % (sW4L, sKH))
        a("s_lshl_b32 s%d, s%d, 10" % (sA, sTH))
        a("s_add_u32 s%d, s%d, s%d" % (sW4L, sW4L, sA))
        a("s_mul_i32 s%d, s%d, %d" % (sW4G, sKH, 896 * 1024))
        self.feat0(sA, sTH, 1)
        a("s_add_u32 s%d, s%d, s%d" % (sW4G, sW4G, sA))

    W4R = 56

    def w4_reg_loads(self, ks0, ks1):
        def item(ks):
            def f():
                a = self.a
                a("s_add_u32 s%d, s%d, %d" % (sSO, sW4G, ks * 16384))
                a.vmem("buffer_load_dwordx4 %s, v%d, %s, s%d offen" % (vr(self.W4R + 4 * (ks - W4_B), 4), vW64,
                                                                     sr(S_W4, 4), sSO), "w4r")
                a.check_vm_depth()
            return f
        return [item(ks) for ks in range(ks0, ks1)]

    def w4_reg_writes(self, ks0, ks1):
        def f():
            a = self.a
            a.wait_vm("w4r")
            for i in range(3):
                a("v_add_u32 v%d, s%d, v%d" % (28 + i, sW4L, vL16))
                if i:
                    a("v_add_u32 v%d, %d, v%d" % (28 + i, 65536 * i, 28 + i))
            for ks in range(ks0, ks1):
                off = w4_off(ks)
                a.lds("ds_write_b128 v%d, %s offset:%d" % (28 + off // 65536, vr(self.W4R + 4 * (ks - W4_B), 4),
                                                           off % 65536))
            a.wait_lg_all()
        return f

    def w4_items(self, ks0, ks1, tag):
        return [self.dma_item(S_W4, vW64, sW4L, w4_off(ks), sW4G, ks * 16384, tag) for ks in range(ks0, ks1)]

    def s4_load_items(self):
        a = self.a
        a("s_mul_i32 s%d, s%d, 114688" % (sLD, sT))
        a("s_mul_i32 s%d, s%d, %d" % (sB, sKH, 56 * 1024))
        a("s_add_u32 s%d, s%d, s%d" % (sLD, sLD, sB))
        a("s_add_u32 s%d, s%d, 0x%x" % (sLD, sLD, WS_HH))
        items = []
        for ks in range(56):
            def f(ks=ks):
                if ks and ks % 4 == 0:
                    a("s_add_u32 s%d, s%d, 0x1000" % (sLD, sLD))
                a.vmem("buffer_load_dwordx4 %s, v%d, %s, s%d offen offset:%d sc1"
                       % (ar(4 * (ks % 16), 4), vL16, sr(S_WS, 4), sLD, (ks & 3) * 1024), "H%d" % ks)
                a.check_vm_depth()
            items.append(f)
        return items

    def s4_y_items(self):
        a = self.a
        self.feat0(sE, sKH, 12)
        a("s_lshl_b32 s%d, s%d, 6" % (sB, sT))
        a("s_add_u32 s%d, s%d, s%d" % (sE, sE, sB))
        a("s_add_u32 s%d, s%d, 0x%x" % (sE, sE, WS_YT))
        a("v_lshlrev_b32 v147, 14, v%d" % vHH)
        a("v_lshl_add_u32 v147, v%d, 1, v147" % vN31)
        items = []
        for r in range(16):
            def f(r=r):
                a("s_add_u32 s%d, s%d, %d" % (sSO, sE, (8 * (r >> 2) + (r & 3)) * 4096))
                a.vmem("buffer_load_ushort v%d, v147, %s, s%d offen sc1" % (vST + r, sr(S_WS, 4), sSO), "y")
                a.check_vm_depth()
            items.append(f)
        return items

    XN4, BASE4 = 112, 148

    def s4_shadow_ops(self):
        XN, B = self.XN4, self.BASE4
        pre, post = [], []
        for j in range(8):
            pre.append("v_lshlrev_b32 v%d, 16, v%d" % (XN + 2 * j, vQ + j))
            pre.append("v_and_b32 v%d, s%d, v%d" % (XN + 2 * j + 1, sHI, vQ + j))
            pre.append("v_lshlrev_b32 v%d, 16, v%d" % (B + 2 * j, vX1 + j))
            pre.append("v_and_b32 v%d, s%d, v%d" % (B + 2 * j + 1, sHI, vX1 + j))
        for r in range(16):
            pre.append("v_add_f32 v%d, v%d, v%d" % (B + r, B + r, XN + r))
            pre.append("v_sub_f32 v%d, v%d, v%d" % (XN + r, XN + r, vMEAN))
            pre.append("v_mul_f32 v%d, v%d, v%d" % (XN + r, XN + r, vR1))
        for r in range(16):
            post.append("v_lshlrev_b32 v%d, 16, v%d" % (vST + r, vST + r))
            post.append("v_fmac_f32 v%d, v%d, v%d" % (B + r, XN + r, vST + r))
        return pre, post

    def s4_out_addr(self):
        a = self.a
        a("s_lshl_b32 s%d, s%d, 15" % (sE, sT))
        self.feat0(sB, sKH, 1)
        a("s_add_u32 s%d, s%d, s%d" % (sE, sE, sB))
        a("v_lshlrev_b32 v146, 10, v%d" % vN31)
        a("v_lshl_add_u32 v146, v%d, 4, v146" % vHH)
        a("v_add_u32 v146, s%d, v146" % sE)

    def s4_addr(self):
        a = self.a
        self.wpi_addr(128, 131, 0, 2048, 1024)
        for i in (1, 2):
            a("v_add_u32 v%d, %d, v128" % (128 + i, 65536 * i))
            a("v_add_u32 v%d, %d, v131" % (131 + i, 65536 * i))

    def s4_main(self, hitems):
        a = self.a
        ACK, ACS, AK, AS = self.ACK, self.ACS, self.AK, self.AS

        def rd(ks, which):
            off = w4_off(ks)
            base, addr = ((AK, 128), (AS, 131))[which]
            for hf in range(2):
                a.lds("ds_read_b64_tr_b16 %s, v%d offset:%d"
                      % (vr(base + 4 * (ks & 1) + 2 * hf, 2), addr + off // 65536, off % 65536 + hf * 512),
                      "f%d_%d" % (ks, which))
        pre, post = self.s4_shadow_ops()
        yq = []
        f1, f2 = self.opt.get("f1", 10), self.opt.get("f2", 18)
        self.hact(self.w4_reg_writes(W4_B, W4_C))
        rd(0, 0)
        rd(0, 1)
        for ks in range(56):
            ahead = ks < 55 and ks + 1 != W4_C
            b = ks & 1
            B = ar(4 * (ks % 16), 4)
            a.wait_both("H%d" % ks, "f%d_0" % ks)
            a("%s %s, %s, %s, %s" % (MF32, vr(ACK, 16), vr(AK + 4 * b, 4), B, "0" if ks == 0 else vr(ACK, 16)))
            if ahead:
                rd(ks + 1, 0)
            if hitems and ks >= 1:
                hitems.pop(0)()
            if yq:
                yq.pop(0)()
                if not hitems and yq:
                    yq.pop(0)()
            a.wait_lg("f%d_1" % ks)
            a("%s %s, %s, %s, %s" % (MF32, vr(ACS, 16), vr(AS + 4 * b, 4), B, "0" if ks == 0 else vr(ACS, 16)))
            if ahead:
                rd(ks + 1, 1)
            for _ in range(3):
                if pre and ks >= 2:
                    a(pre.pop(0))
            if ks == f1:
                a.wait_vm("yt")
                self.barrier()
                self.flag_store(F_CV, 2)
                self.hact(self.w4_reg_writes(W4_C, W4_C + f1 + 1))
            if ks == f2:
                self.barrier()
                self.hact(self.w4_reg_writes(W4_C + f1 + 1, 56))
            if ks == self.opt.get("ycheck", 34) - 8:
                self.idx_cv()
                self.poll_issue(F_CV, "pcv")
            if ks == self.opt.get("ycheck", 34):
                self.poll_check("pcv", 4)
                yq = self.s4_y_items()
            if ks + 1 == W4_C:
                self.barrier()
                if self.opt.get("barstamps", 0):
                    h = self.h
                    lab = h.newlabel("nobs")
                    h("s_cmp_lg_u32 s%d, 0" % sW)
                    h("s_cbranch_scc1 %s" % lab)
                    h("s_lshl_b32 s%d, s2, 8" % sA)
                    h("s_add_u32 s%d, s%d, 0x%x" % (sA, sA, WS_STAMP + 0x20000))
                    h("v_lshlrev_b32 v26, 2, v%d" % vL)
                    h("buffer_store_dword v191, v26, %s, s%d offen" % (sr(S_WS, 4), sA))
                    h("s_waitcnt vmcnt(0)")
                    h.label(lab)
                self.h("s_endpgm")
                rd(ks + 1, 0)
                rd(ks + 1, 1)
            if ks in (8, 16, 27, 38, 47):
                self.stamp("s4k%d" % ks)
        assert not pre and not hitems
        for f in yq:
            f()
        self.s4_out_addr()
        self.s4_post = post

    def s4_epilogue(self):
        a = self.a
        ACK, ACS, B = self.ACK, self.ACS, self.BASE4
        self.exchange_write(ACS, S4_RED)
        a.wait_vm("y")
        for x in self.s4_post:
            a(x)
        for p in range(8):
            a("v_pk_add_f32 %s, %s, %s" % (vr(ACK + 2 * p, 2), vr(ACK + 2 * p, 2), vr(B + 2 * p, 2)))
        a.wait_lg_all()
        a("s_barrier")
        self.exchange_read(80, S4_RED)
        a.wait_lg_all()
        for p in range(8):
            a("v_pk_add_f32 %s, %s, %s" % (vr(ACK + 2 * p, 2), vr(ACK + 2 * p, 2), vr(80 + 2 * p, 2)))
        for p in range(8):
            a("v_cvt_pk_bf16_f32 v%d, v%d, v%d" % (48 + p, ACK + 2 * p, ACK + 2 * p + 1))
        for j in (0, 4):
            a("v_permlane32_swap_b32 v%d, v%d" % (48 + j, 50 + j))
            a("v_permlane32_swap_b32 v%d, v%d" % (49 + j, 51 + j))
        a.vmem("buffer_store_dwordx4 %s, v146, %s, 0 offen" % (vr(48, 4), sr(S_OUT, 4)), "out")
        a.vmem("buffer_store_dwordx4 %s, v146, %s, 0 offen offset:32" % (vr(52, 4), sr(S_OUT, 4)), "out")

    def nonce_update(self):
        a = self.a
        self.hold += 1
        skip = a.newlabel("nonce")
        a("s_cmp_lg_u32 s2, 0")
        a("s_cbranch_scc1 %s" % skip)
        a("s_cmp_lg_u32 s%d, 0" % sW)
        a("s_cbranch_scc1 %s" % skip)
        saved = list(a.vm)
        for i in range(4):
            a("v_add_u32 v28, %d, v%d" % (64 * i, vL))
            self.poll_issue(F_P0, "pn")
            self.poll_check("pn", 6)
        a.vm = saved
        a("v_mov_b32 v26, 0")
        a("v_mov_b32 v27, s%d" % sN)
        a("s_mov_b64 exec, 1")
        a("buffer_store_dword v27, v26, %s, 0 offen sc1" % sr(S_WS, 4))
        a("s_mov_b64 exec, -1")
        a.label(skip)
        self.hold -= 1

    def finish(self):
        a = self.a
        a.wait_vm_all()
        if self.stamps:
            self.stamp("end")
            skip = a.newlabel("nostamp")
            a("s_cmp_lg_u32 s%d, 0" % sW)
            a("s_cbranch_scc1 %s" % skip)
            a("s_lshl_b32 s%d, s2, 8" % sA)
            a("s_add_u32 s%d, s%d, 0x%x" % (sA, sA, WS_STAMP))
            a("v_lshlrev_b32 v26, 2, v%d" % vL)
            a("buffer_store_dword v%d, v26, %s, s%d offen" % (vSTAMP, sr(S_WS, 4), sA))
            if self.opt.get("barstamps", 0):
                a("s_add_u32 s%d, s%d, 0x10000" % (sA, sA))
                a("buffer_store_dword v31, v26, %s, s%d offen" % (sr(S_WS, 4), sA))
            a("s_waitcnt vmcnt(0)")
            a.label(skip)
        a.label("L_end")
        a("s_endpgm")
        self.a.hook = None
        self.h.label("L_codeend")
        self.h("s_endpgm")
        self.a.ins += self.h.ins

    def nonce_load(self):
        a = self.a
        a("v_mov_b32 v26, 0")
        a.vmem("buffer_load_dword v30, v26, %s, 0 offen sc1" % sr(S_WS, 4), "nonce")

    def build(self):
        a = self.a
        o = self.opt
        H = self.hact
        self.prologue()
        H(self.loader_setup)
        if o.get("tcode", 1) == 1:
            H(self.touch_code)
        s1 = [f for st in range(4) for f in self.s1_stage_items(st)]
        n0, n1 = o.get("n0", 12), o.get("n1", 24)
        self.nonce_load()
        self.cold_touches()
        self.tr_addresses()
        self.s1_setup()

        def stage(st):
            if st == 0:
                self.hacts(s1[:n0])
                self.hwait("s1_0")
            elif st == 1:
                self.hacts(s1[n0:n1])
                self.hwait("s1_1")
            else:
                self.hacts(s1[n1:])
                if o.get("apos", 0) == 0:
                    self.hstamp(4)
                    H(self.batch_a)
                    self.hstamp(5)
                self.hwait("s1_3")
            self.barrier()
            if st == 2:
                if o.get("apos", 0) == 1:
                    H(self.batch_a)
                H(self.nonce_load)
                H(self.tr_addresses)
        self.s1_main(stage)
        self.stamp("s1main")
        w2 = [self.dma_item(S_W2, vW64, sW2L, grp * 1024, sW2G, grp * 16384, "w2") for grp in range(16)]

        def after_x1():
            pass
        self.s1_epilogue(after_x1)
        self.stamp("s1epi")
        self.nonce_compute()
        self.wpi_addr(128, 129, LW, 16384, 32768)
        hitems = self.s2_load_items()
        a.wait_vm("hst")
        self.barrier()
        self.flag_store_rc(F_S1)
        self.stamp("s1flag")
        H(self.nonce_compute)
        H(self.kv_dma)
        if o.get("bpos", 1) == 1:
            H(lambda: self.touch_chip("ssm"))
            H(lambda: self.touch_chip("w3"))
        w2a = o.get("w2a", 4)
        self.hacts(w2[:w2a])
        self.hpaced(w2[w2a:], o.get("iv2", 70), self.p0_compute)
        H(lambda: self.a.wait_lg_all())
        self.idx_s1()
        self.barrier()
        H(self.p0_readback)
        H(self.p0_store)
        H(lambda: self.conv_filter_loads(0))
        H(self.w3_setup)
        w3 = self.w3_items([0, 1, 2, 3])
        k0, k1, k2 = o.get("k0", 8), o.get("k1", 14), o.get("k2", 16)
        self.hacts(w3[:k0])
        self.hwait("kvt")
        self.hwait("w2")
        self.poll_issue(F_S1, "ps1")
        self.poll_check("ps1", 2)
        self.stamp("s1poll")
        nh2 = o.get("nh2", 10)
        for f in hitems[:nh2]:
            f()
        self.barrier()
        self.stamp("hiss")
        H(lambda: self.flag_store_rc(F_P0))
        if o.get("bpos", 1) == 2:
            H(lambda: self.touch_chip("ssm"))
            H(lambda: self.touch_chip("w3"))
        H(self.idx_p0)
        H(lambda: self.poll_issue(F_P0, "pp0"))
        self.hacts(w3[k0:k1])
        self.fq = hitems[nh2:]
        self.s2_main()
        self.stamp("s2main")

        def after_x2():
            H(lambda: self.poll_check("pp0", 1))
            H(lambda: self.conv_x_loads(0))
            H(lambda: self.conv_prep_filter(0))
            H(lambda: self.conv_x_write(0))
        self.s2_epilogue(after_x2)
        self.stamp("s2epi")
        self.barrier()
        H(lambda: self.conv_poly(0))
        self.hacts(w3[k1:k2])
        self.conv_addr(0)
        a.wait_vm("x1st")
        self.barrier()
        self.flag_store_rc(F_S2)
        self.stamp("s2flag")
        H(lambda: self.touch_chip("w4"))
        self.hacts(w3[k2:])

        def hook0(rho):
            if rho == o.get("pollrho2", 3):
                self.idx_s2()
                self.poll_issue(F_S2, "ps2")
        self.conv_main(hook0)
        self.stamp("cv0main")
        xitems = self.s3_load_items()
        nx = o.get("nx", 12)
        self.conv_finish(0)
        self.hwait("w3")
        self.barrier()
        self.stamp("cv0fin")
        H(self.s3_addr)
        H(self.s3_colsum)
        H(self.w4_setup)
        self.s3_addr()
        self.poll_check("ps2", 3)
        self.stamp("s2poll")
        for f in xitems[:nx]:
            f()
        sitems = self.s3_stat_items()
        rest = xitems[nx:]
        self.fq = []
        for i in range(len(rest)):
            self.fq.append(rest[i])
            self.fq.append(sitems[i] if i < 16 else (lambda: None))

        w4r = self.w4_reg_loads(W4_B, 56)

        def s3mid():
            self.barrier()
            H(lambda: self.conv_filter_loads(1))
            H(lambda: self.conv_x_loads(1))
            self.hacts(self.w4_items(0, W4_A, "w4"))
            self.hacts(w4r[:o.get("r1", 8)])
        self.s3_main(s3mid)
        self.fill_all()
        self.stamp("s3main")
        self.barrier()
        H(lambda: self.conv_prep_filter(1))
        H(lambda: self.conv_x_write(1))
        w4m = self.w4_items(W4_A, W4_B, "w4")
        k3 = o.get("k3", 4)

        def after_tile(p):
            if p == 0:
                self.barrier()
                H(lambda: self.conv_poly(1))
                self.hacts(w4r[o.get("r1", 8):o.get("r2", 20)])
                self.hacts(w4m[:k3])
        self.s3_epilogue(after_tile)
        self.stamp("s3epi")
        self.conv_addr(1)
        a.wait_vm("Hst")
        self.barrier()
        a("s_lshl_b32 s%d, s%d, 4" % (sB, sRP))
        a("s_add_u32 s%d, s%d, s%d" % (sB, sB, sCP))
        self.flag_store(F_S3, sB)
        self.stamp("s3flag")
        self.hacts(w4m[k3:])
        self.hacts(w4r[o.get("r2", 20):])
        self.nonce_update()

        def hook1(rho):
            if rho == o.get("pollrho", 2):
                self.idx_s3()
                self.poll_issue(F_S3, "ps3")
        self.conv_main(hook1)
        self.stamp("cv1main")
        hitems = self.s4_load_items()
        self.poll_check("ps3", 5)
        self.stamp("s3poll")
        for _ in range(o.get("nh", 14)):
            hitems.pop(0)()
        self.conv_finish(1)
        self.s4_addr()
        self.hwait("w4")
        self.barrier()
        self.stamp("cv1fin")
        self.s4_main(hitems)
        self.stamp("s4main")
        self.s4_epilogue()
        self.stamp("s4epi")
        self.finish()


REF = "cdna_kernels/%s.s.ref" % NAME


def emit(stop=None, stamps=False, opt=None, keep=None):
    g = Gen(stop, stamps, opt)
    g.keep = keep
    g.build()
    nops = g.a.fix_hazards()
    top = [l for l in open(REF).read().split("\n") if l.startswith(";") and "@launch" not in l and "Override" not in l
           and "grid=ceil" not in l]
    out = top + ["; @launch grid=(256,1,1) block=(512,1,1) lds=%d" % LDS_BYTES,
                 '.amdgcn_target "amdgcn-amd-amdhsa--gfx950"', ".text", ".globl %s_kernel" % NAME, ".p2align 8",
                 ".type %s_kernel,@function" % NAME, "%s_kernel:" % NAME]
    body = g.a.text()
    tail = ['.section .rodata,"a"', ".p2align 6", ".amdhsa_kernel %s_kernel" % NAME,
            "  .amdhsa_next_free_vgpr 256", "  .amdhsa_next_free_sgpr 102", "  .amdhsa_accum_offset 192",
            "  .amdhsa_group_segment_fixed_size 0", "  .amdhsa_kernarg_size 112", "  .amdhsa_user_sgpr_count 2",
            "  .amdhsa_user_sgpr_kernarg_segment_ptr 1", "  .amdhsa_system_sgpr_workgroup_id_x 1",
            "  .amdhsa_float_denorm_mode_32 3", ".end_amdhsa_kernel"]
    text = "\n".join(out) + "\n" + body + "\n".join(tail) + "\n"
    return text, g, nops


if __name__ == "__main__":
    ap = argparse.ArgumentParser()
    ap.add_argument("-o", default="cdna_kernels/%s.s" % NAME)
    ap.add_argument("--stop", default=None)
    ap.add_argument("--stamps", action="store_true")
    ap.add_argument("--opt", default="")
    ap.add_argument("--keep", default="")
    args = ap.parse_args()
    opt = dict((kv.split("=")[0], int(kv.split("=")[1])) for kv in args.opt.split(",") if kv)
    text, g, nops = emit(args.stop, args.stamps, opt, args.keep.split(",") if args.keep else None)
    open(args.o, "w").write(text)
    n = sum(1 for x in g.a.ins if x.kind != "label")
    print("instructions: %d, hazard nops: %d" % (n, nops))
    if g.stamp_names:
        print(",".join(g.stamp_names))
        open(args.o + ".stamps", "w").write(",".join(g.stamp_names))
```

```python
import argparse
import os
import struct
import sys

sys.path.insert(0, os.path.dirname(os.path.abspath(__file__)))
from asmlib import Asm

NAME = "parallel_sum__ssm_conv_h3__mixer_s_mlp__prompt"

WS_FLAGS = 4096
WS_STAMP = 0x40000
WS_KVT = 0x100000
WS_YT = 0x300000
WS_HS = 0x500000
WS_X1 = 0x700000
WS_ST = 0x900000
WS_HH = 0xA00000
WS_SIZE = 0x10000000
OOB = 0x40000000
F_P0, F_S1, F_S2, F_S3, F_CV = 0, 1, 2, 3, 4

LQ = 0
LW = 65536
LSTG = 131072
LRED = 139264
LSTX = 155648
LCSX = 156672
LCS3 = 161280
LKV = 8192
LDS_BYTES = 163840
CV_X = 0
CV_XD = 1152
CV_A = 5248
CV_P = 21760
CV_R = 5248
CV_BASE = 114688
W3_P = 0
W3_H = 98304
CV_BASE1 = 69632
W4_A, W4_B, W4_C = 11, 28, 39
S4_RED = CV_BASE1


def w4_off(ks):
    if ks < W4_A:
        return 114688 + ks * 4096
    if ks < W4_B:
        return (ks - W4_A) * 4096
    if ks < W4_C:
        return CV_BASE1 + (ks - W4_B) * 4096
    return w4_off(ks - W4_C)

S_WS, S_Q, S_K, S_V, S_SHK, S_SSM, S_W1, S_W2, S_W3, S_W4, S_OUT = 4, 8, 12, 16, 20, 24, 32, 36, 40, 44, 48
S_DPTR = 28
S_DBG = 30
sR, sC, sW, sTH, sKH, sN, sRP, sCP = 52, 53, 54, 55, 56, 57, 58, 59
sT, sT3 = 60, 61
sD0, sD1 = 62, 63
sA, sB, sCc, sD, sE, sF = 64, 65, 66, 67, 68, 69
sW2L, sW2G, sW3L, sW3G, sW3HL, sW3HG, sW4L, sW4G, sSO, sLD = 70, 71, 72, 73, 74, 75, 76, 77, 78, 79
sONES, sHI = 80, 81
sK4, sK8, sK12 = 82, 83, 84
sEPS, sTMO, sKG1, sKG3, s512I = 85, 86, 87, 88, 89
sSTA = 90
sROT, sQG, sWG, sCP0 = 92, 93, 94, 95

vL, vL16, vWP, vWN = 0, 1, 2, 3
vQ, vX1 = 4, 12
vMEAN, vR1 = 20, 21
vTID, vHH, vN31, vSTAMP = 22, 23, 24, 25
vW64 = 31
vCH = 172
vPF, vPA = 170, 171
vW3F, vW3H, vQE = 153, 154, 155
vST = 172

GELU_K1 = 2.0 * 0.7978845608028654 * 1.4426950408889634
GELU_K3 = GELU_K1 * 0.044715
MF32 = "v_mfma_f32_32x32x16_bf16"
MF16 = "v_mfma_f32_16x16x32_bf16"


def f32bits(x):
    return struct.unpack("<I", struct.pack("<f", x))[0]


def vr(a, n):
    return "v[%d:%d]" % (a, a + n - 1)


def ar(a, n):
    return "a[%d:%d]" % (a, a + n - 1)


def sr(a, n):
    return "s[%d:%d]" % (a, a + n - 1)


class Gen:
    def __init__(self, stop=None, stamps=False, opt=None):
        self.opt = opt or {}
        self.keep = None
        self.a = Asm()
        self.h = Asm()
        self.h.uid = 100000
        self.hpend = []
        self.nbar = 0
        self.stop = stop
        self.stamps = stamps
        self.nstamp = 0
        self.stamp_names = []
        self.fq = []
        self.pq = []
        self.interval = 0
        self.clock = 0.0
        self.hold = 0
        self.a.hook = self._pace
        self.h.hook = self._pace

    def _pace(self, x):
        if x.kind == "mfma":
            self.clock += 32 if x.passes == 8 else 16
        elif x.kind == "valu":
            self.clock += 8 if x.is_trans() else 4.5
        elif x.kind == "ds":
            self.clock += 13 if x.op == "ds_write_b128" else 2
        elif x.kind == "vmem":
            self.clock += 20
        else:
            return
        if self.hold or not self.pq or not self.interval or x.kind == "vmem":
            return
        if self.clock >= self.interval:
            self.clock = 0.0
            self.hold += 1
            self.pq.pop(0)()
            self.hold -= 1

    def paced(self, items, interval):
        self.pq += items
        self.interval = interval
        self.clock = 0.0

    def pace_flush(self, tag=None):
        self.hold += 1
        if tag is None:
            n = len(self.pq)
        else:
            n = max([i + 1 for i, f in enumerate(self.pq) if f.tag == tag], default=0)
        for _ in range(n):
            self.pq.pop(0)()
        self.hold -= 1

    def stamp(self, name):
        if not self.stamps:
            return
        if self.keep and name not in self.keep and name not in ("start", "end"):
            return
        self.hold += 1
        self._stamp(name)
        self.hold -= 1

    def _stamp(self, name):
        a = self.a
        a("s_memtime %s" % sr(sSTA, 2))
        a("s_waitcnt lgkmcnt(0)")
        a.lg = []
        a("v_writelane_b32 v%d, s%d, %d" % (vSTAMP, sSTA, self.nstamp))
        if name in ("start", "end"):
            a("s_memrealtime %s" % sr(sSTA, 2))
            a("s_waitcnt lgkmcnt(0)")
            a("v_writelane_b32 v%d, s%d, %d" % (vSTAMP, sSTA, 62 if name == "start" else 63))
            if name == "start":
                a("v_writelane_b32 v%d, s3, 61" % vSTAMP)
        self.stamp_names.append(name)
        self.nstamp += 1

    def hact(self, fn):
        self.hpend.append(fn)

    def hacts(self, fns):
        self.hpend += fns

    def hstamp(self, idx):
        if not self.opt.get("barstamps", 0):
            return

        def f():
            a = self.a
            a("s_memtime %s" % sr(sSTA, 2))
            a("s_waitcnt lgkmcnt(0)")
            a.lg = []
            a("v_writelane_b32 v191, s%d, %d" % (sSTA, 32 + idx))
        self.hpend.append(f)

    def hpaced(self, items, interval, fn):
        def f():
            saved = (self.pq, self.interval, self.clock, self.hold)
            self.pq, self.interval, self.clock, self.hold = list(items), interval, 0.0, 0
            fn()
            self.hold = 1
            self.pace_flush()
            self.pq, self.interval, self.clock, self.hold = saved
        self.hpend.append(f)

    def hwait(self, tag):
        self.hpend.append(lambda: self.a.wait_vm(tag))

    def hrun(self):
        c, fq = self.a, self.fq
        self.a, self.fq = self.h, []
        self.hold += 1
        for fn in self.hpend:
            fn()
        self.hold -= 1
        self.hpend = []
        self.a, self.fq = c, fq

    def barrier(self, name=""):
        bs = self.opt.get("barstamps", 0)
        if bs:
            self.hold += 1
            self.a("s_memtime %s" % sr(sSTA, 2))
            self.a("s_waitcnt lgkmcnt(0)")
            self.a.lg = []
            self.a("v_writelane_b32 v31, s%d, %d" % (sSTA, self.nbar))
            self.hold -= 1
        self.a("s_barrier")
        self.hrun()
        if bs:
            self.h("s_memtime %s" % sr(sSTA, 2))
            self.h("s_waitcnt lgkmcnt(0)")
            self.h.lg = []
            self.h("v_writelane_b32 v191, s%d, %d" % (sSTA, self.nbar))
        self.h("s_barrier")
        self.nbar += 1

    def fill(self, n=1):
        for _ in range(n):
            if self.fq:
                self.fq.pop(0)()

    def fill_all(self):
        while self.fq:
            self.fq.pop(0)()

    def dma_item(self, srd, voff, sl, loff, sg, goff, tag):
        def f():
            a = self.a
            a("s_add_u32 m0, s%d, %d" % (sl, loff))
            a("s_add_u32 s%d, s%d, %d" % (sSO, sg, goff))
            a.vmem("buffer_load_dwordx4 v%d, %s, s%d offen lds" % (voff, sr(srd, 4), sSO), tag)
            a.check_vm_depth()
        f.tag = tag
        return f

    def flag_store(self, phase, sidx):
        a = self.a
        self.hold += 1
        skip = a.newlabel("noflag")
        a("s_cmp_lg_u32 s%d, 0" % sW)
        a("s_cbranch_scc1 %s" % skip)
        a("s_lshl_b32 s%d, s%d, 7" % (sA, sidx))
        a("s_add_u32 s%d, s%d, %d" % (sA, sA, WS_FLAGS + phase * 256 * 128))
        a("v_mov_b32 v26, s%d" % sN)
        a("v_mov_b32 v27, s%d" % sA)
        a("s_mov_b64 exec, 1")
        a("buffer_store_dword v26, v27, %s, 0 offen sc1" % sr(S_WS, 4))
        a("s_mov_b64 exec, -1")
        a.label(skip)
        self.hold -= 1

    def flag_store_rc(self, phase):
        a = self.a
        a("s_lshl_b32 s%d, s%d, 3" % (sB, sR))
        a("s_add_u32 s%d, s%d, s%d" % (sB, sB, sC))
        self.flag_store(phase, sB)

    def poll_issue(self, phase, tag):
        a = self.a
        a("v_lshlrev_b32 v%d, 7, v28" % vPA)
        a("v_add_u32 v%d, %d, v%d" % (vPA, WS_FLAGS + phase * 256 * 128, vPA))
        a.vmem("buffer_load_dword v%d, v%d, %s, 0 offen sc1" % (vPF, vPA, sr(S_WS, 4)), tag)

    def poll_check(self, tag, code):
        a = self.a
        self.hold += 1
        loop = a.newlabel("poll")
        done = a.newlabel("polled")
        a.wait_vm(tag)
        a("v_cmp_ne_u32 vcc, s%d, v%d" % (sN, vPF))
        a("s_cmp_eq_u64 vcc, 0")
        a("s_cbranch_scc1 %s" % done)
        a("s_mov_b32 s%d, 0x40000" % sTMO)
        a.label(loop)
        a("buffer_load_dword v%d, v%d, %s, 0 offen sc1" % (vPF, vPA, sr(S_WS, 4)))
        a("s_waitcnt vmcnt(0)")
        a("v_cmp_ne_u32 vcc, s%d, v%d" % (sN, vPF))
        a("s_cmp_eq_u64 vcc, 0")
        a("s_cbranch_scc1 %s" % done)
        a("s_sub_u32 s%d, s%d, 1" % (sTMO, sTMO))
        a("s_cmp_lg_u32 s%d, 0" % sTMO)
        a("s_cbranch_scc1 %s" % loop)
        a("v_mov_b32 v26, 0")
        a("v_mov_b32 v27, %d" % (0x100 + code))
        a("s_mov_b64 exec, 1")
        a("global_store_dword v26, v27, %s" % sr(S_DBG, 2))
        a("s_mov_b64 exec, -1")
        a.label(done)
        self.hold -= 1

    def idx_s1(self):
        a = self.a
        a("s_lshl_b32 s%d, s%d, 1" % (sA, sTH))
        a("s_sub_u32 s%d, s%d, 1" % (sA, sA))
        a("s_add_u32 s%d, s%d, s%d" % (sA, sA, sR))
        a("s_cmp_lt_u32 s%d, 32" % sA)
        a("s_cselect_b32 s%d, s%d, s%d" % (sA, sA, sR))
        a("v_mov_b32 v28, s%d" % sR)
        a("v_mov_b32 v29, s%d" % sA)
        a("v_and_b32 v27, 4, v%d" % vL)
        a("v_cmp_eq_u32 vcc, 0, v27")
        a("v_cndmask_b32 v28, v29, v28, vcc")
        a("v_lshlrev_b32 v28, 3, v28")
        a("v_and_b32 v29, 3, v%d" % vL)
        a("v_add_u32 v28, v28, v29")
        a("s_lshl_b32 s%d, s%d, 2" % (sA, sKH))
        a("v_add_u32 v28, s%d, v28" % sA)

    def idx_p0(self):
        a = self.a
        a("s_lshr_b32 s%d, s2, 5" % sA)
        a("s_lshl_b32 s%d, s%d, 6" % (sB, sW))
        a("s_add_u32 s%d, s%d, s%d" % (sA, sA, sB))
        a("v_and_b32 v28, 7, v%d" % vL)
        a("v_lshlrev_b32 v28, 3, v28")
        a("v_add_u32 v28, s%d, v28" % sA)

    def idx_s2(self):
        a = self.a
        a("s_lshr_b32 s%d, s%d, 1" % (sA, sT3))
        a("s_lshl_b32 s%d, s%d, 3" % (sA, sA))
        a("v_and_b32 v28, 7, v%d" % vL)
        a("v_add_u32 v28, s%d, v28" % sA)

    def idx_s3(self):
        a = self.a
        a("s_lshr_b32 s%d, s%d, 1" % (sA, sR))
        a("s_lshl_b32 s%d, s%d, 4" % (sA, sA))
        a("s_lshl_b32 s%d, s%d, 3" % (sB, sKH))
        a("s_add_u32 s%d, s%d, s%d" % (sA, sA, sB))
        a("v_and_b32 v28, 7, v%d" % vL)
        a("v_add_u32 v28, s%d, v28" % sA)

    def idx_cv(self):
        a = self.a
        self.feat0(sA, sKH, 0)
        a("s_lshr_b32 s%d, s%d, 1" % (sA, sA))
        a("v_and_b32 v28, 15, v%d" % vL)
        a("v_add_u32 v28, s%d, v28" % sA)

    def prologue(self):
        a = self.a
        if self.stamps or self.opt.get("dbgtime", 0):
            a("s_memrealtime s[100:101]")
            a("s_waitcnt lgkmcnt(0)")
            a("s_mov_b32 s3, s100")
        a("s_cmp_ge_u32 s2, 256")
        a("s_cbranch_scc1 L_end")
        a("s_load_dwordx16 s[64:79], s[0:1], 0")
        a("s_load_dwordx8 s[92:99], s[0:1], 64")
        a("s_load_dwordx2 %s, s[0:1], 96" % sr(S_DBG, 2))
        a("s_load_dwordx2 %s, s[0:1], 104" % sr(S_WS, 2))
        sizes = {S_WS: WS_SIZE, S_Q: 1 << 21, S_K: 1 << 21, S_V: 1 << 21, S_SHK: 4096, S_SSM: 1 << 21,
                 S_W1: 1 << 19, S_W2: 1 << 19, S_W3: 512 * 1792 * 2, S_W4: 512 * 1792 * 2, S_OUT: 1 << 21}
        for s, n in sizes.items():
            a("s_mov_b32 s%d, 0x%x" % (s + 2, n))
            a("s_mov_b32 s%d, 0x20000" % (s + 3))
        a("s_and_b32 s100, s2, 7")
        a("s_lshr_b32 s101, s2, 3")
        a("s_lshr_b32 s%d, s101, 3" % sR)
        a("s_lshl_b32 s%d, s100, 2" % sC)
        a("s_add_u32 s%d, s%d, s%d" % (sR, sR, sC))
        a("s_and_b32 s%d, s101, 7" % sC)
        a("s_lshr_b32 s%d, s101, 4" % sRP)
        a("s_lshl_b32 s100, s100, 1")
        a("s_add_u32 s%d, s%d, s100" % (sRP, sRP))
        a("s_and_b32 s%d, s101, 15" % sCP)
        a("v_and_b32 v%d, 0xff, v0" % vTID)
        a("v_lshrrev_b32 v26, 6, v0")
        a("v_and_b32 v%d, 63, v0" % vL)
        a("v_readfirstlane_b32 s%d, v26" % sTMO)
        a("v_lshlrev_b32 v%d, 4, v%d" % (vL16, vL))
        a("v_lshrrev_b32 v%d, 5, v%d" % (vHH, vL))
        a("v_and_b32 v%d, 31, v%d" % (vN31, vL))
        a("s_and_b32 s%d, s%d, 3" % (sW, sTMO))
        a("s_lshr_b32 s%d, s%d, 1" % (sTH, sW))
        a("s_and_b32 s%d, s%d, 1" % (sKH, sW))
        a("s_lshl_b32 s%d, s%d, 1" % (sT, sR))
        a("s_add_u32 s%d, s%d, s%d" % (sT, sT, sTH))
        a("s_lshl_b32 s%d, s%d, 2" % (sT3, sRP))
        a("s_add_u32 s%d, s%d, s%d" % (sT3, sT3, sW))
        a("s_mov_b32 s%d, 0x3f803f80" % sONES)
        a("s_mov_b32 s%d, 0xffff0000" % sHI)
        a("s_movk_i32 s%d, 0x1000" % sK4)
        a("s_movk_i32 s%d, 0x2000" % sK8)
        a("s_movk_i32 s%d, 0x3000" % sK12)
        a("s_mov_b32 s%d, 0x%x" % (sEPS, f32bits(1e-5)))
        a("s_mov_b32 s%d, 0x%x" % (sKG1, f32bits(-GELU_K1)))
        a("s_mov_b32 s%d, 0x%x" % (sKG3, f32bits(-GELU_K3)))
        a("s_mov_b32 s%d, 0x%x" % (s512I, f32bits(1.0 / 512)))
        a("s_waitcnt lgkmcnt(0)")
        for sreg, src in ((S_Q, 64), (S_W1, 78), (S_K, 66), (S_V, 68), (S_SHK, 70), (S_SSM, 72), (S_DPTR, 74)):
            a("s_mov_b64 %s, %s" % (sr(sreg, 2), sr(src, 2)))
        for i, sreg in enumerate([S_W2, S_W3, S_W4, S_OUT]):
            a("s_mov_b64 %s, %s" % (sr(sreg, 2), sr(92 + 2 * i, 2)))
        a("s_add_u32 s%d, s%d, s%d" % (sROT, sR, sC))
        a("s_and_b32 s%d, s%d, 3" % (sROT, sROT))
        a("s_cmp_ge_u32 s%d, 4" % sTMO)
        a("s_cbranch_scc1 L_loader")
        if self.opt.get("prio", 1):
            a("s_setprio 1")
        if self.stamps:
            a("v_mov_b32 v%d, 0" % vSTAMP)
        self.stamp("start")
        if self.opt.get("dbgtime", 0):
            a("s_memtime s[98:99]")
            a("s_waitcnt lgkmcnt(0)")
        self.ssm_d_load()

    def tr_addresses(self):
        a = self.a
        a("v_bfe_u32 v26, v%d, 2, 2" % vL)
        a("v_and_b32 v27, 3, v%d" % vL)
        a("v_bfe_u32 v28, v%d, 4, 1" % vL)
        a("v_lshlrev_b32 v27, 3, v27")
        a("v_lshl_add_u32 v27, v28, 5, v27")
        a("v_lshl_add_u32 v28, v%d, 2, v26" % vHH)
        a("v_lshl_add_u32 v%d, v28, 6, v27" % vWP)
        a("v_lshl_add_u32 v28, v%d, 3, v26" % vHH)
        a("v_lshl_add_u32 v%d, v28, 6, v27" % vWN)

    def loader_setup(self):
        a = self.a
        a.label("L_loader")
        a("v_lshrrev_b32 v26, 2, v%d" % vL)
        a("v_and_b32 v27, 3, v%d" % vL)
        a("v_lshlrev_b32 v27, 4, v27")
        a("v_lshl_add_u32 v%d, v26, 10, v27" % vW64)
        a("v_lshrrev_b32 v26, 3, v%d" % vL)
        a("v_and_b32 v27, 7, v%d" % vL)
        a("v_lshrrev_b32 v28, 4, v%d" % vL)
        a("v_xor_b32 v27, v27, v28")
        a("v_lshlrev_b32 v27, 4, v27")
        a("v_lshl_add_u32 v%d, v26, 10, v27" % vQE)
        a("v_xor_b32 v%d, 64, v%d" % (vQE + 1, vQE))
        a("s_lshl_b32 s%d, s%d, 14" % (sCc, sW))
        a("s_lshl_b32 s%d, s%d, 15" % (sD, sT))
        a("s_lshl_b32 s%d, s%d, 9" % (sA, sKH))
        a("s_add_u32 s%d, s%d, s%d" % (sD, sD, sA))
        self.w64_bases(sW2L, sW2G)

    def feat0(self, dst, spanel, shift):
        a = self.a
        if self.opt.get("remap", 0):
            a("s_lshl_b32 s%d, s%d, %d" % (dst, sC, 5 + shift))
            a("s_lshl_b32 s%d, s%d, %d" % (sSO, spanel, 8 + shift))
        else:
            a("s_lshl_b32 s%d, s%d, %d" % (dst, sC, 6 + shift))
            a("s_lshl_b32 s%d, s%d, %d" % (sSO, spanel, 5 + shift))
        a("s_add_u32 s%d, s%d, s%d" % (dst, dst, sSO))

    def w64_bases(self, sl, sg):
        a = self.a
        a("s_lshl_b32 s%d, s%d, 15" % (sl, sTH))
        a("s_lshl_b32 s%d, s%d, 14" % (sA, sKH))
        a("s_add_u32 s%d, s%d, s%d" % (sl, sl, sA))
        a("s_add_u32 s%d, s%d, %d" % (sl, sl, LW))
        a("s_lshl_b32 s%d, s%d, 18" % (sg, sKH))
        self.feat0(sA, sTH, 1)
        a("s_add_u32 s%d, s%d, s%d" % (sg, sg, sA))

    def s1_stage_items(self, st):
        items = []

        def head():
            a = self.a
            a("s_add_u32 s%d, s%d, %d" % (sB, sROT, st))
            a("s_and_b32 s%d, s%d, 3" % (sB, sB))
            a("s_lshl_b32 s%d, s%d, 7" % (sQG, sB))
            a("s_add_u32 s%d, s%d, s%d" % (sQG, sQG, sD))
            a("s_lshl_b32 s%d, s%d, 16" % (sWG, sB))
            a("s_add_u32 s%d, s%d, s%d" % (sWG, sWG, sW2G))
        for j in range(4):
            def f(j=j):
                if j == 0:
                    head()
                self.dma_item(S_Q, vQE + (j & 1), sCc, LQ + st * 4096 + j * 1024, sQG, j * 8192, "s1_%d" % st)()
            items.append(f)
        for i in range(4):
            items.append(self.dma_item(S_W1, vW64, sW2L, (4 * st + i) * 1024, sWG, i * 16384, "s1_%d" % st))
        return items

    def touch(self, srd, lanes, sidx, dst):
        a = self.a
        a("s_mul_i32 s%d, s%d, %d" % (sA, sidx, lanes))
        a("v_add_u32 v26, s%d, v%d" % (sA, vL))
        a("v_lshlrev_b32 v26, 7, v26")
        a("v_mov_b32 v27, 0x%x" % OOB)
        a("v_cmp_gt_u32 vcc, %d, v%d" % (lanes, vL))
        a("v_cndmask_b32 v26, v27, v26, vcc")
        a.vmem("buffer_load_dword v%d, v26, %s, 0 offen" % (dst, sr(srd, 4)), "touch")

    def touch_w2(self):
        a = self.a
        if self.opt.get("touch", 1):
            a("s_lshr_b32 s%d, s2, 3" % sE)
            a("s_lshl_b32 s%d, s%d, 2" % (sE, sE))
            a("s_add_u32 s%d, s%d, s%d" % (sE, sE, sW))
            self.touch(S_W2, 32, sE, 53)

    def touch_chip(self, which):
        a = self.a
        srd, lanes, dst = {"w2": (S_W2, 4, 160), "ssm": (S_SSM, 16, 161), "w3": (S_W3, 14, 163), "w4": (S_W4, 14, 162)}[which]
        if not self.opt.get("t" + which, 1):
            return
        a("s_lshl_b32 s%d, s2, 2" % sE)
        a("s_add_u32 s%d, s%d, s%d" % (sE, sE, sW))
        self.touch(srd, lanes, sE, dst)

    def touch_code(self):
        a = self.a
        if not self.opt.get("tcode", 1):
            return
        a("s_getpc_b64 s[96:97]")
        a.label("L_pc")
        a("s_sub_u32 s96, s96, L_pc-%s_kernel" % NAME)
        a("s_subb_u32 s97, s97, 0")
        a("s_lshr_b32 s%d, s2, 3" % sE)
        a("s_lshl_b32 s%d, s%d, 2" % (sE, sE))
        a("s_add_u32 s%d, s%d, s%d" % (sE, sE, sW))
        a("s_mul_i32 s%d, s%d, 3" % (sE, sE))
        a("v_min_u32 v26, 2, v%d" % vL)
        a("v_add_u32 v26, s%d, v26" % sE)
        a("v_min_u32 v26, (L_codeend-%s_kernel)/128-1, v26" % NAME)
        a("v_lshlrev_b32 v26, 7, v26")
        a("v_mov_b32 v135, s97")
        a("v_add_co_u32 v134, vcc, s96, v26")
        a("v_addc_co_u32 v135, vcc, 0, v135, vcc")
        a.vmem("global_load_dword v136, v[134:135], off", "touch")

    def cold_touches(self):
        a = self.a
        o = self.opt
        a("s_lshr_b32 s%d, s2, 3" % sE)
        a("s_lshl_b32 s%d, s%d, 2" % (sE, sE))
        a("s_add_u32 s%d, s%d, s%d" % (sE, sE, sW))
        if o.get("tq", 1):
            a("s_and_b32 s%d, s2, 7" % sF)
            a("s_lshl_b32 s%d, s%d, 7" % (sF, sF))
            a("s_add_u32 s%d, s%d, s%d" % (sF, sF, sE))
            self.touch(S_Q, 16, sF, 160)
            self.touch(S_W1, 32, sE, 161)

    def batch_a(self):
        a = self.a
        if self.opt.get("tkv", 1):
            self.touch_kv(157, 158)
        if self.opt.get("tw2", 1):
            a("s_lshr_b32 s%d, s2, 3" % sE)
            a("s_lshl_b32 s%d, s%d, 2" % (sE, sE))
            a("s_add_u32 s%d, s%d, s%d" % (sE, sE, sW))
            self.touch(S_W2, 32, sE, 159)
        if self.opt.get("bpos", 1) == 0:
            self.touch_chip("ssm")
            self.touch_chip("w3")

    def kv_dma(self):
        a = self.a
        a("v_lshrrev_b32 v26, 3, v%d" % vL)
        a("v_and_b32 v27, 7, v%d" % vL)
        a("v_lshlrev_b32 v27, 4, v27")
        a("v_lshl_add_u32 v137, v26, 10, v27")
        a("s_lshl_b32 s%d, s%d, 6" % (sA, sR))
        a("s_lshl_b32 s%d, s%d, 4" % (sB, sW))
        a("s_add_u32 s%d, s%d, s%d" % (sA, sA, sB))
        a("v_add_u32 v26, s%d, v26" % sA)
        a("s_lshl_b32 s%d, s%d, 10" % (sQG, sA))
        a("s_lshl_b32 s%d, s%d, 7" % (sB, sC))
        a("s_add_u32 s%d, s%d, s%d" % (sQG, sQG, sB))
        a("v_add_u32 v138, s%d, v137" % sQG)
        a("v_subrev_u32 v138, 3072, v138")
        a("v_mov_b32 v27, 0x%x" % OOB)
        a("v_cmp_gt_u32 vcc, 3, v26")
        a("v_cndmask_b32 v138, v138, v27, vcc")
        a("s_lshl_b32 s%d, s%d, 14" % (sWG, sW))
        a("s_add_u32 m0, s%d, %d" % (sWG, LKV))
        a.vmem("buffer_load_dwordx4 v138, %s, 0 offen lds" % sr(S_K, 4), "kv")
        for g in (1, 2):
            self.dma_item(S_K, 137, sWG, LKV + 1024 * g, sQG, 8192 * g - 3072, "kv")()
        for g in (0, 1):
            self.dma_item(S_V, 137, sWG, LKV + 3072 + 1024 * g, sQG, 8192 * g, "kv")()
        a("s_lshl_b32 s%d, s%d, 9" % (sB, sC))
        a("v_lshl_add_u32 v26, v%d, 4, s%d" % (vN31, sB))
        a.vmem("buffer_load_dwordx4 %s, v26, %s, 0 offen" % (vr(self.SHRAW, 4), sr(S_SHK, 4)), "kv")

    def p0_reads(self):
        a = self.a
        a.wait_vm("kv")
        a("s_lshl_b32 s%d, s%d, 14" % (sA, sW))
        a("v_lshlrev_b32 v26, 10, v%d" % vHH)
        a("v_lshl_add_u32 v26, v%d, 2, v26" % vN31)
        a("v_add_u32 v26, s%d, v26" % sA)
        a("v_add_u32 v26, %d, v26" % LKV)
        for i in range(11):
            a.lds("ds_read_b32 v%d, v26 offset:%d" % (self.KRAW + i, 128 * i), "p0")
        for i in range(8):
            a.lds("ds_read_b32 v%d, v26 offset:%d" % (self.VRAW + i, 3072 + 128 * i), "p0")

    def touch_kv(self, dk=54, dv=55):
        a = self.a
        for srd, rows, first, dst in ((S_K, 17, -3, dk), (S_V, 16, 0, dv)):
            a("s_lshl_b32 s%d, s%d, 6" % (sA, sR))
            a("s_mul_i32 s%d, s%d, %d" % (sB, sW, rows))
            a("s_add_u32 s%d, s%d, s%d" % (sA, sA, sB))
            a("s_add_i32 s%d, s%d, %d" % (sA, sA, first))
            a("v_add_u32 v26, s%d, v%d" % (sA, vL))
            a("v_lshlrev_b32 v26, 10, v26")
            a("s_lshl_b32 s%d, s%d, 7" % (sB, sC))
            a("v_add_u32 v26, s%d, v26" % sB)
            a("v_mov_b32 v27, 0x%x" % OOB)
            a("v_cmp_gt_u32 vcc, %d, v%d" % (rows, vL))
            a("v_cndmask_b32 v26, v27, v26, vcc")
            a.vmem("buffer_load_dword v%d, v26, %s, 0 offen" % (dst, sr(srd, 4)), "touch")

    def touch_w3_local(self):
        a = self.a
        if self.opt.get("tw3", 1):
            a("s_lshr_b32 s%d, s2, 3" % sE)
            a("s_lshl_b32 s%d, s%d, 2" % (sE, sE))
            a("s_add_u32 s%d, s%d, s%d" % (sE, sE, sW))
            self.touch(S_W3, 64, sE, 50)
            a("s_add_u32 s%d, s%d, 128" % (sE, sE))
            self.touch(S_W3, 64, sE, 51)

    def touch_w4_chip(self):
        a = self.a
        if self.opt.get("tw4", 1):
            a("s_lshl_b32 s%d, s2, 2" % sE)
            a("s_add_u32 s%d, s%d, s%d" % (sE, sE, sW))
            self.touch(S_W4, 14, sE, 52)

    def touch_w34(self):
        a = self.a
        if self.opt.get("touch", 1):
            a("s_lshl_b32 s%d, s2, 2" % sE)
            a("s_add_u32 s%d, s%d, s%d" % (sE, sE, sW))
            if self.opt.get("touchw3", 1):
                self.touch(S_W3, 14, sE, 223)
            if self.opt.get("touchw4", 1):
                self.touch(S_W4, 14, sE, 224)

    def touch_w4_local(self):
        a = self.a
        a("s_lshr_b32 s%d, s2, 3" % sE)
        a("s_lshl_b32 s%d, s%d, 2" % (sE, sE))
        a("s_add_u32 s%d, s%d, s%d" % (sE, sE, sW))
        self.touch(S_W4, 64, sE, 54)
        a("s_add_u32 s%d, s%d, 128" % (sE, sE))
        self.touch(S_W4, 64, sE, 55)

    KRAW, VRAW, SHRAW, POFF = 172, 183, 164, 138

    def p0_loads(self):
        a = self.a
        o = self.POFF
        a("s_lshl_b32 s%d, s%d, 6" % (sA, sR))
        a("s_lshl_b32 s%d, s%d, 4" % (sB, sW))
        a("s_add_u32 s%d, s%d, s%d" % (sA, sA, sB))
        a("v_lshl_add_u32 v26, v%d, 3, s%d" % (vHH, sA))
        a("s_lshl_b32 s%d, s%d, 7" % (sB, sC))
        a("v_lshl_add_u32 v27, v%d, 2, s%d" % (vN31, sB))
        a("v_lshl_add_u32 v%d, v26, 10, v27" % (o + 3))
        a("v_add_u32 v%d, 0x1000, v%d" % (o + 4, o + 3))
        a("v_mov_b32 v28, 0x%x" % OOB)
        for i in range(3):
            a("v_subrev_u32 v%d, %d, v%d" % (o + i, (3 - i) * 1024, o + 3))
            a("v_cmp_gt_u32 vcc, %d, v26" % (3 - i))
            a("v_cndmask_b32 v%d, v%d, v28, vcc" % (o + i, o + i))
        a("s_lshl_b32 s%d, s%d, 9" % (sB, sC))
        a("v_lshl_add_u32 v%d, v%d, 4, s%d" % (o + 5, vN31, sB))

        def item(text):
            return lambda: a.vmem(text, "p0")
        for i in range(3):
            self.fq.append(item("buffer_load_dword v%d, v%d, %s, 0 offen" % (self.KRAW + i, o + i, sr(S_K, 4))))
        for i in range(8):
            self.fq.append(item("buffer_load_dword v%d, v%d, %s, 0 offen offset:%d"
                                % (self.KRAW + 3 + i, o + 3 + i // 4, sr(S_K, 4), (i % 4) * 1024)))
        for i in range(8):
            self.fq.append(item("buffer_load_dword v%d, v%d, %s, 0 offen offset:%d"
                                % (self.VRAW + i, o + 3 + i // 4, sr(S_V, 4), (i % 4) * 1024)))
        self.fq.append(item("buffer_load_dwordx4 %s, v%d, %s, 0 offen" % (vr(self.SHRAW, 4), o + 5, sr(S_SHK, 4))))

    ACK, ACS, ACC_CS = 32, 48, 64
    BF, AK, AS, AC = 80, 96, 104, 112
    SUM, ONE4 = 120, 124

    def s1_setup(self):
        a = self.a
        a("v_bfe_u32 v26, v%d, 1, 3" % vN31)
        a("v_xor_b32 v26, v26, v%d" % vHH)
        a("v_lshlrev_b32 v26, 4, v26")
        a("v_lshl_add_u32 v26, v%d, 7, v26" % vN31)
        a("s_lshl_b32 s%d, s%d, 14" % (sA, sW))
        a("v_add_u32 v128, s%d, v26" % sA)
        for i in range(1, 4):
            a("v_xor_b32 v%d, %d, v128" % (128 + i, 32 * i))
        a("s_lshl_b32 s%d, s%d, 14" % (sA, sKH))
        a("s_add_u32 s%d, s%d, %d" % (sA, sA, LW))
        a("s_lshl_b32 s%d, s%d, 15" % (sB, sKH))
        a("s_add_u32 s%d, s%d, s%d" % (sE, sA, sB))
        a("v_add_u32 v134, s%d, v%d" % (sE, vWN))
        a("s_xor_b32 s%d, s%d, 0x8000" % (sB, sB))
        a("s_add_u32 s%d, s%d, s%d" % (sE, sA, sB))
        a("v_add_u32 v135, s%d, v%d" % (sE, vWN))
        a("s_xor_b32 s%d, s%d, s%d" % (sB, sKH, sTH))
        a("s_lshl_b32 s%d, s%d, 15" % (sB, sB))
        a("s_add_u32 s%d, s%d, s%d" % (sE, sA, sB))
        a("v_add_u32 v136, s%d, v%d" % (sE, vWN))

    def s1_main(self, after_stage):
        a = self.a
        ACK, ACS, ACC_CS, BF, AK, AS, AC, SUM, ONE4 = (self.ACK, self.ACS, self.ACC_CS, self.BF, self.AK, self.AS,
                                                       self.AC, self.SUM, self.ONE4)
        self.selector(ONE4)
        for i in range(4):
            a("v_mov_b32 v%d, 0" % (SUM + i))

        def aread(ks, which):
            base, addr = ((AK, 134), (AS, 135), (AC, 136))[which]
            for hf in range(2):
                a.lds("ds_read_b64_tr_b16 %s, v%d offset:%d"
                      % (vr(base + 4 * (ks & 1) + 2 * hf, 2), addr, ks * 1024 + hf * 256), "f%d_%d" % (ks, which))

        for st in range(4):
            if st < 3:
                after_stage(st)
            for q4 in range(4):
                a.lds("ds_read_b128 %s, v%d offset:%d" % (vr(BF + 4 * q4, 4), 128 + q4, LQ + st * 4096), "b")
            for which in range(3):
                aread(4 * st, which)
            self.fill(1)
            a.wait_lg("b")
            for j in range(16):
                a("v_dot2c_f32_bf16 v%d, s%d, v%d" % (SUM + (j & 1), sONES, BF + j))
                a("v_dot2c_f32_bf16 v%d, v%d, v%d" % (SUM + 2 + (j & 1), BF + j, BF + j))
                if j in (5, 11):
                    self.fill(1)
            for q4 in range(4):
                ks = 4 * st + q4
                b = ks & 1
                B = vr(BF + 4 * q4, 4)
                first = ks == 0
                a.wait_lg("f%d_0" % ks)
                a("%s %s, %s, %s, %s" % (MF32, vr(ACK, 16), vr(AK + 4 * b, 4), B, "0" if first else vr(ACK, 16)))
                if q4 < 3:
                    aread(ks + 1, 0)
                self.fill(1)
                a.wait_lg("f%d_1" % ks)
                a("%s %s, %s, %s, %s" % (MF32, vr(ACS, 16), vr(AS + 4 * b, 4), B, "0" if first else vr(ACS, 16)))
                if q4 < 3:
                    aread(ks + 1, 1)
                self.fill(1)
                a.wait_lg("f%d_2" % ks)
                a("%s %s, %s, %s, %s" % (MF16, vr(ACC_CS, 4), vr(AC + 4 * b, 4), vr(ONE4, 4),
                                         "0" if first else vr(ACC_CS, 4)))
                if q4 < 3:
                    aread(ks + 1, 2)
            self.stamp("s1st%d" % st)
        self.fill_all()

    def selector(self, dst):
        a = self.a
        a("v_lshrrev_b32 v26, 4, v%d" % vL)
        a("v_xor_b32 v26, v26, v%d" % vL)
        a("v_and_b32 v26, 1, v26")
        a("v_mov_b32 v27, s%d" % sONES)
        a("v_cmp_eq_u32 vcc, 0, v26")
        a("v_cndmask_b32 v%d, 0, v27, vcc" % dst)
        for i in range(1, 4):
            a("v_mov_b32 v%d, v%d" % (dst + i, dst))

    def colsum_write(self, src, sbase):
        a = self.a
        a("v_and_b32 v28, 1, v%d" % vL)
        a("v_lshlrev_b32 v28, 6, v28")
        a("v_lshrrev_b32 v29, 4, v%d" % vL)
        a("v_lshl_add_u32 v28, v29, 4, v28")
        a("v_add_u32 v28, s%d, v28" % sbase)
        self.hold += 1
        a("s_mov_b32 exec_lo, 0x30003")
        a("s_mov_b32 exec_hi, 0x30003")
        a.lds("ds_write_b128 v28, %s" % vr(src, 4))
        a("s_mov_b64 exec, -1")
        self.hold -= 1

    def q_tile_read(self):
        a = self.a
        self.feat0(sE, sKH, 0)
        a("s_lshr_b32 s%d, s%d, 8" % (sA, sE))
        a("s_lshl_b32 s%d, s%d, 1" % (sB, sTH))
        a("s_add_u32 s%d, s%d, s%d" % (sA, sA, sB))
        a("s_lshl_b32 s%d, s%d, 14" % (sA, sA))
        a("s_lshr_b32 s%d, s%d, 6" % (sB, sE))
        a("s_sub_u32 s%d, s%d, s%d" % (sB, sB, sROT))
        a("s_and_b32 s%d, s%d, 3" % (sB, sB))
        a("s_lshl_b32 s%d, s%d, 12" % (sB, sB))
        a("s_add_u32 s%d, s%d, s%d" % (sA, sA, sB))
        a("s_bfe_u32 s%d, s%d, 0x10005" % (sB, sE))
        a("s_lshl_b32 s%d, s%d, 2" % (sB, sB))
        a("v_bfe_u32 v26, v%d, 1, 3" % vN31)
        a("v_xor_b32 v26, s%d, v26" % sB)
        a("v_lshlrev_b32 v27, 7, v%d" % vN31)
        a("v_lshl_add_u32 v27, v%d, 3, v27" % vHH)
        a("v_add_u32 v27, s%d, v27" % sA)
        for j in range(4):
            a("v_xor_b32 v28, %d, v26" % j)
            a("v_lshl_add_u32 v28, v28, 4, v27")
            a.lds("ds_read_b64 %s, v28 offset:%d" % (vr(vQ + 2 * j, 2), LQ), "qt")

    def gelu(self, X, n, vA13, vIA, T, out, fills=0):
        a = self.a
        for g0 in range(0, n // 2, 4):
            ps = list(range(g0, min(g0 + 4, n // 2)))
            t = lambda p: T + 4 * (p - g0)
            x = lambda p: vr(X + 2 * p, 2)
            left = fills

            def hook():
                nonlocal left
                if left > 0:
                    self.fill(1)
                    left -= 1
            for p in ps:
                a("v_pk_mul_f32 %s, %s, %s" % (vr(t(p), 2), x(p), x(p)))
            for p in ps:
                a("v_pk_fma_f32 %s, %s, %s, %s op_sel:[0,1,0] op_sel_hi:[1,1,0]"
                  % (vr(t(p), 2), vr(t(p), 2), vr(vA13, 2), vr(vA13, 2)))
            hook()
            for p in ps:
                a("v_pk_mul_f32 %s, %s, %s" % (vr(t(p), 2), vr(t(p), 2), x(p)))
            for p in ps:
                a("v_exp_f32 v%d, v%d" % (t(p) + 2, t(p)))
                a("v_exp_f32 v%d, v%d" % (t(p) + 3, t(p) + 1))
            hook()
            for p in ps:
                a("v_pk_fma_f32 %s, %s, %s, %s op_sel_hi:[1,0,0]"
                  % (vr(t(p), 2), vr(t(p) + 2, 2), vr(vIA, 2), vr(vIA, 2)))
            hook()
            for p in ps:
                a("v_rcp_f32 v%d, v%d" % (t(p) + 2, t(p)))
                a("v_rcp_f32 v%d, v%d" % (t(p) + 3, t(p) + 1))
            hook()
            for p in ps:
                a("v_pk_mul_f32 %s, %s, %s" % (vr(t(p), 2), vr(t(p) + 2, 2), x(p)))
            for p in ps:
                a("v_cvt_pk_bf16_f32 v%d, v%d, v%d" % (out + p, t(p), t(p) + 1))

    def gelu_consts(self, vA, dst):
        a = self.a
        a("v_mul_f32 v%d, s%d, v%d" % (dst, sKG1, vA))
        a("v_mul_f32 v%d, v%d, v%d" % (dst + 1, vA, vA))
        a("v_mul_f32 v%d, v%d, v%d" % (dst + 1, dst + 1, vA))
        a("v_mul_f32 v%d, s%d, v%d" % (dst + 1, sKG3, dst + 1))
        a("v_rcp_f32 v%d, v%d" % (dst + 2, vA))

    def exchange_write(self, send, base=LRED):
        a = self.a
        a("s_lshl_b32 s%d, s%d, 12" % (sA, sW))
        a("s_add_u32 s%d, s%d, %d" % (sA, sA, base))
        a("v_add_u32 v26, s%d, v%d" % (sA, vL16))
        for j in range(4):
            a.lds("ds_write_b128 v26, %s offset:%d" % (vr(send + 4 * j, 4), 1024 * j))

    def exchange_read(self, dst, base=LRED):
        a = self.a
        a("s_xor_b32 s%d, s%d, 1" % (sA, sW))
        a("s_lshl_b32 s%d, s%d, 12" % (sA, sA))
        a("s_add_u32 s%d, s%d, %d" % (sA, sA, base))
        a("v_add_u32 v26, s%d, v%d" % (sA, vL16))
        for j in range(4):
            a.lds("ds_read_b128 %s, v26 offset:%d" % (vr(dst + 4 * j, 4), 1024 * j), "xr")

    def s1_epilogue(self, after_exchange):
        a = self.a
        ACK, ACS, ACC_CS, SUM = self.ACK, self.ACS, self.ACC_CS, self.SUM
        self.q_tile_read()
        a("v_add_f32 v%d, v%d, v%d" % (SUM, SUM, SUM + 1))
        a("v_add_f32 v%d, v%d, v%d" % (SUM + 2, SUM + 2, SUM + 3))
        a("v_permlane32_swap_b32 v%d, v%d" % (SUM, SUM + 2))
        a("v_add_f32 v%d, v%d, v%d" % (SUM, SUM, SUM + 2))
        a("s_lshl_b32 s%d, s%d, 8" % (sA, sW))
        a("s_add_u32 s%d, s%d, %d" % (sA, sA, LSTX))
        a("v_lshl_add_u32 v27, v%d, 2, s%d" % (vL, sA))
        a.lds("ds_write_b32 v27, v%d" % SUM)
        self.exchange_write(ACS)
        a("s_xor_b32 s%d, s%d, s%d" % (sA, sKH, sTH))
        a("s_lshl_b32 s%d, s%d, 8" % (sA, sA))
        a("s_lshl_b32 s%d, s%d, 7" % (sB, sKH))
        a("s_add_u32 s%d, s%d, s%d" % (sA, sA, sB))
        a("s_add_u32 s%d, s%d, %d" % (sA, sA, LCSX))
        self.colsum_write(ACC_CS, sA)
        a.wait_lg_all()
        self.ssm_d_unpack()
        self.barrier()
        P, C0, C1 = 80, 96, 128
        self.exchange_read(P)
        a("s_xor_b32 s%d, s%d, 1" % (sA, sW))
        a("s_lshl_b32 s%d, s%d, 8" % (sA, sA))
        a("s_add_u32 s%d, s%d, %d" % (sA, sA, LSTX))
        a("v_lshl_add_u32 v27, v%d, 2, s%d" % (vL, sA))
        a.lds("ds_read_b32 v%d, v27" % (SUM + 1), "sx")
        a("s_lshl_b32 s%d, s%d, 8" % (sA, sKH))
        a("s_add_u32 s%d, s%d, %d" % (sA, sA, LCSX))
        a("v_lshl_add_u32 v28, v%d, 4, s%d" % (vHH, sA))
        for j in range(4):
            a.lds("ds_read_b128 %s, v28 offset:%d" % (vr(C0 + 4 * j, 4), 32 * j))
            a.lds("ds_read_b128 %s, v28 offset:%d" % (vr(C1 + 4 * j, 4), 128 + 32 * j))
        after_exchange()
        a.wait_lg("sx")
        a("v_add_f32 v%d, v%d, v%d" % (SUM, SUM, SUM + 1))
        a("v_mov_b32 v%d, v%d" % (SUM + 2, SUM))
        a("v_permlane32_swap_b32 v%d, v%d" % (SUM, SUM + 2))
        a("v_mul_f32 v%d, s%d, v%d" % (vMEAN, s512I, SUM))
        a("v_mul_f32 v26, s%d, v%d" % (s512I, SUM + 2))
        a("v_fma_f32 v26, -v%d, v%d, v26" % (vMEAN, vMEAN))
        a("v_max_f32 v26, 0, v26")
        a("v_add_f32 v27, s%d, v26" % sEPS)
        a("v_rsq_f32 v%d, v27" % vR1)
        a("v_mul_f32 v27, v%d, v%d" % (vR1, vR1))
        a("v_fma_f32 v27, v27, v26, s%d" % sEPS)
        a("v_rsq_f32 v27, v27")
        a("v_mul_f32 v27, v27, v%d" % vR1)
        G = 112
        self.gelu_consts(27, G)
        a("v_sub_f32 v%d, 0, v%d" % (G + 4, vMEAN))
        a.wait_lg_all()
        for p in range(8):
            a("v_pk_add_f32 %s, %s, %s" % (vr(C0 + 2 * p, 2), vr(C0 + 2 * p, 2), vr(C1 + 2 * p, 2)))
            a("v_pk_add_f32 %s, %s, %s" % (vr(ACK + 2 * p, 2), vr(ACK + 2 * p, 2), vr(P + 2 * p, 2)))
        for p in range(8):
            a("v_pk_fma_f32 %s, %s, %s, %s op_sel_hi:[1,0,1]"
              % (vr(ACK + 2 * p, 2), vr(C0 + 2 * p, 2), vr(G + 4, 2), vr(ACK + 2 * p, 2)))
        self.gelu(ACK, 16, G, G + 2, 144, 48, fills=0)
        self.frag_store(48, WS_HS, "hst")

    def frag_store(self, src, base, tag):
        a = self.a
        a("s_lshl_b32 s%d, s%d, 15" % (sA, sT))
        self.feat0(sB, sKH, 6)
        a("s_add_u32 s%d, s%d, s%d" % (sA, sA, sB))
        a("s_add_u32 s%d, s%d, 0x%x" % (sA, sA, base))
        a.vmem("buffer_store_dwordx4 %s, v%d, %s, s%d offen sc1" % (vr(src, 4), vL16, sr(S_WS, 4), sA), tag)
        a.vmem("buffer_store_dwordx4 %s, v%d, %s, s%d offen offset:1024 sc1"
               % (vr(src + 4, 4), vL16, sr(S_WS, 4), sA), tag)

    PK = 118

    def nonce_compute(self):
        a = self.a
        a.wait_vm("nonce")
        a("v_readfirstlane_b32 s%d, v30" % sN)
        a("s_mul_i32 s%d, s%d, 0x9e3779b1" % (sN, sN))
        a("s_add_u32 s%d, s%d, 0x7f4a7c15" % (sN, sN))

    def p0_compute(self, mid=None):
        a = self.a
        K, V, SH, KV, PK = 56, 78, 94, 102, self.PK
        self.p0_reads()
        a.wait_lg_all()
        d = self.SHRAW
        for j, (x, y, hi) in enumerate([(d, d + 2, 0), (d, d + 2, 1), (d + 1, d + 3, 0), (d + 1, d + 3, 1)]):
            for o, src in ((0, x), (1, y)):
                if hi:
                    a("v_and_b32 v%d, s%d, v%d" % (SH + 2 * j + o, sHI, src))
                else:
                    a("v_lshlrev_b32 v%d, 16, v%d" % (SH + 2 * j + o, src))
        for i in range(11):
            a("v_lshlrev_b32 v%d, 16, v%d" % (K + 2 * i, self.KRAW + i))
            a("v_and_b32 v%d, s%d, v%d" % (K + 2 * i + 1, sHI, self.KRAW + i))
            if i % 4 == 3:
                self.fill(1)
        for i in range(8):
            a("v_lshlrev_b32 v%d, 16, v%d" % (V + 2 * i, self.VRAW + i))
            a("v_and_b32 v%d, s%d, v%d" % (V + 2 * i + 1, sHI, self.VRAW + i))
        self.fill(1)
        for t in range(8):
            a("v_pk_mul_f32 %s, %s, %s" % (vr(KV + 2 * t, 2), vr(K + 2 * (t + 3), 2), vr(SH, 2)))
        self.fill(1)
        for j in range(1, 4):
            for t in range(8):
                a("v_pk_fma_f32 %s, %s, %s, %s" % (vr(KV + 2 * t, 2), vr(K + 2 * (t + 3 - j), 2), vr(SH + 2 * j, 2),
                                                   vr(KV + 2 * t, 2)))
            self.fill(1)
        if mid:
            mid()
            self.fill(4)
        for t in range(8):
            a("v_pk_mul_f32 %s, %s, %s" % (vr(KV + 2 * t, 2), vr(KV + 2 * t, 2), vr(V + 2 * t, 2)))
        self.fill(1)
        for c in range(2):
            for t in range(4):
                a("v_cvt_pk_bf16_f32 v%d, v%d, v%d" % (PK + 4 * c + t, KV + 4 * t + c, KV + 4 * t + 2 + c))
        a("s_lshl_b32 s%d, s%d, 1" % (sA, sW))
        a("v_add_u32 v26, s%d, v%d" % (sA, vHH))
        a("v_and_b32 v27, 7, v%d" % vN31)
        a("v_xor_b32 v26, v26, v27")
        a("v_lshlrev_b32 v26, 4, v26")
        a("v_lshl_add_u32 v26, v%d, 8, v26" % vN31)
        a("v_add_u32 v26, %d, v26" % LSTG)
        a.lds("ds_write_b128 v26, %s" % vr(PK, 4))
        a.lds("ds_write_b128 v26, %s offset:128" % vr(PK + 4, 4))
        self.fill_all()

    def p0_readback(self):
        a = self.a
        PK = 144
        a("v_lshrrev_b32 v26, 3, v%d" % vL)
        a("s_lshl_b32 s%d, s%d, 4" % (sA, sW))
        a("v_add_u32 v26, s%d, v26" % sA)
        a("v_and_b32 v27, 7, v%d" % vL)
        for i in range(2):
            a("v_add_u32 v28, %d, v26" % (8 * i))
            a("v_bfe_u32 v29, v28, 1, 3")
            a("v_xor_b32 v29, v29, v27")
            a("v_lshlrev_b32 v29, 4, v29")
            a("v_lshl_add_u32 v29, v28, 7, v29")
            a("v_add_u32 v29, %d, v29" % LSTG)
            a.lds("ds_read_b128 %s, v29" % vr(PK + 4 * i, 4), "pk")
        a("v_lshlrev_b32 v27, 4, v27")
        a("v_lshl_add_u32 v152, v26, 12, v27")

    def p0_store(self):
        a = self.a
        PK = 144
        a("s_lshl_b32 s%d, s%d, 18" % (sA, sC))
        a("s_lshl_b32 s%d, s%d, 7" % (sB, sR))
        a("s_add_u32 s%d, s%d, s%d" % (sA, sA, sB))
        a("s_add_u32 s%d, s%d, 0x%x" % (sA, sA, WS_KVT))
        a("s_add_u32 s%d, s%d, 0x8000" % (sB, sA))
        a.wait_lg("pk")
        a.vmem("buffer_store_dwordx4 %s, v152, %s, s%d offen sc1" % (vr(PK, 4), sr(S_WS, 4), sA), "kvt")
        a.vmem("buffer_store_dwordx4 %s, v152, %s, s%d offen sc1" % (vr(PK + 4, 4), sr(S_WS, 4), sB), "kvt")

    def conv_filter_loads(self, ch):
        a = self.a
        a("v_lshlrev_b32 v26, 4, v%d" % vTID)
        a("v_subrev_u32 v27, 8, v26")
        a("v_mov_b32 v28, 0x%x" % OOB)
        a("v_cmp_eq_u32 vcc, 0, v%d" % vTID)
        a("v_cndmask_b32 v27, v27, v28, vcc")
        a("s_lshl_b32 s%d, s2, 13" % sA)
        if ch:
            a("s_add_u32 s%d, s%d, 0x1000" % (sA, sA))
        dA, dP = vr(vCH, 4), vr(vCH + 4, 2)
        a.vmem("buffer_load_dwordx4 %s, v26, %s, s%d offen" % (dA, sr(S_SSM, 4), sA), "cf")
        a.vmem("buffer_load_dwordx2 %s, v27, %s, s%d offen" % (dP, sr(S_SSM, 4), sA), "cf")

    def ssm_d_load(self):
        a = self.a
        a("s_lshl_b32 s%d, s2, 2" % sA)
        a("s_load_dword s%d, %s, s%d" % (sD0, sr(S_DPTR, 2), sA))

    def ssm_d_unpack(self):
        a = self.a
        a("s_and_b32 s%d, s%d, s%d" % (sD1, sD0, sHI))
        a("s_lshl_b32 s%d, s%d, 16" % (sD0, sD0))

    def conv_x_loads(self, ch):
        a = self.a
        a("v_lshlrev_b32 v26, 4, v%d" % vTID)
        a("s_lshl_b32 s%d, s2, 13" % sA)
        a("s_add_u32 s%d, s%d, 0x%x" % (sA, sA, WS_KVT + 0x1000 * ch))
        a.vmem("buffer_load_dwordx4 %s, v26, %s, s%d offen sc1" % (vr(vCH + 6, 4), sr(S_WS, 4), sA), "cx")

    def conv_prep_filter(self, ch):
        a = self.a
        base = CV_BASE1 if ch else CV_BASE
        A, P = vCH, vCH + 4
        a.wait_vm("cf")
        a("v_min_u32 v26, 79, v%d" % vTID)
        a("v_subrev_u32 v27, 72, v26")
        a("v_lshrrev_b32 v28, 1, v27")
        a("v_mul_u32_u24 v28, 4128, v28")
        a("v_and_b32 v27, 1, v27")
        a("v_lshl_add_u32 v28, v27, 4, v28")
        a("v_add_u32 v28, %d, v28" % (base + CV_A))
        a("v_lshlrev_b32 v27, 4, v26")
        a("v_add_u32 v27, %d, v27" % (base + CV_X))
        a("v_cmp_gt_u32 vcc, 72, v26")
        a("v_cndmask_b32 v28, v28, v27, vcc")
        for i in range(4):
            a("v_mov_b32 v%d, 0" % (32 + i))
        a.lds("ds_write_b128 v28, %s" % vr(32, 4))
        Z, Y, W = 36, 40, 44
        seq = [P, P + 1, A, A + 1, A + 2, A + 3]
        for j in range(4):
            a("v_alignbit_b32 v%d, v%d, v%d, 16" % (Z + j, seq[j + 1], seq[j]))
            a("v_alignbit_b32 v%d, v%d, v%d, 16" % (Y + j, seq[j + 2], seq[j + 1]))
            a("v_mov_b32 v%d, v%d" % (W + j, seq[j + 1]))
        a("v_lshlrev_b32 v29, 4, v%d" % vTID)
        a("v_add_u32 v29, %d, v29" % base)
        for rho, src in ((0, A), (1, Y), (2, W), (3, Z)):
            a.lds("ds_write_b128 v29, %s offset:%d" % (vr(src, 4), CV_A + 32 + 4128 * rho))
        a.wait_lg_all()

    def conv_x_write(self, ch):
        a = self.a
        base = CV_BASE1 if ch else CV_BASE
        a.wait_vm("cx")
        a("v_lshlrev_b32 v29, 4, v%d" % vTID)
        a("v_add_u32 v29, %d, v29" % base)
        a.lds("ds_write_b128 v29, %s offset:%d" % (vr(vCH + 6, 4), CV_XD))
        a.wait_lg_all()

    def conv_poly(self, ch):
        a = self.a
        base = CV_BASE1 if ch else CV_BASE
        a("s_lshl_b32 s%d, s%d, 5" % (sA, sW))
        a("s_sub_u32 s%d, %d, s%d" % (sA, base + CV_XD - 1024, sA))
        a("v_lshl_add_u32 v26, v%d, 3, s%d" % (vL, sA))
        for u in range(10):
            a.lds("ds_read_b64_tr_b16 %s, v26 offset:%d" % (vr(32 + 2 * u, 2), 512 * u), "u%d" % u)
        a("s_mul_i32 s%d, s%d, 5312" % (sA, sW))
        a("s_add_u32 s%d, s%d, %d" % (sA, sA, base + CV_P))
        a("v_and_b32 v27, 15, v%d" % vL)
        a("v_mul_u32_u24 v27, 328, v27")
        a("v_lshrrev_b32 v28, 4, v%d" % vL)
        a("v_lshl_add_u32 v27, v28, 3, v27")
        a("v_add_u32 v27, s%d, v27" % sA)
        for u in range(10):
            a.wait_lg("u%d" % u)
            a.lds("ds_write_b64 v27, %s offset:%d" % (vr(32 + 2 * u, 2), 32 * u))
        a.wait_lg_all()

    def conv_addr(self, ch):
        a = self.a
        base = CV_BASE1 if ch else CV_BASE
        a("s_lshl_b32 s%d, s%d, 3" % (sA, sW))
        a("s_sub_u32 s%d, %d, s%d" % (sA, base + CV_A + 32, sA))
        a("v_lshl_add_u32 v160, v%d, 3, s%d" % (vL, sA))
        a("s_mul_i32 s%d, s%d, 1312" % (sA, sW))
        a("s_add_u32 s%d, s%d, %d" % (sA, sA, base + CV_P + 32))
        a("v_bfe_u32 v26, v%d, 2, 2" % vL)
        a("v_mul_u32_u24 v26, 5312, v26")
        a("v_and_b32 v27, 3, v%d" % vL)
        a("v_lshrrev_b32 v28, 4, v%d" % vL)
        a("v_sub_u32 v27, v27, v28")
        a("v_lshl_add_u32 v26, v27, 3, v26")
        a("v_add_u32 v161, s%d, v26" % sA)

    CACC, CAF, CBF = 32, 64, 96

    def conv_main(self, hook=None, fill_every=0):
        a = self.a
        CACC, CAF, CBF = self.CACC, self.CAF, self.CBF

        def rd_list(rho):
            b = rho & 1
            out = []
            order = [("A", 0)] + [("B", c) for c in range(8)] + [("A", 1), ("A", 2), ("A", 3)]
            for kind, i in order:
                for hf in range(2):
                    if kind == "A":
                        out.append("ds_read_b64_tr_b16 %s, v160 offset:%d"
                                   % (vr(CAF + 16 * b + 4 * i + 2 * hf, 2), 4128 * rho + 1024 * i + 512 * hf))
                    else:
                        out.append("ds_read_b64_tr_b16 %s, v161 offset:%d"
                                   % (vr(CBF + 32 * b + 4 * i + 2 * hf, 2), 328 * rho + 32 * i + 32 * (1 - hf)))
            return out

        for x in rd_list(0):
            a.lds(x)
        a.wait_lg_all()
        cnt = 0
        for rho in range(4):
            if hook:
                hook(rho)
            b = rho & 1
            nxt = rd_list(rho + 1) if rho < 3 else []
            k = 0
            for q in range(4):
                for c in range(8 - 2 * q):
                    t = c + 2 * q
                    acc = vr(CACC + 4 * t, 4)
                    a("%s %s, %s, %s, %s" % (MF16, acc, vr(CAF + 16 * b + 4 * q, 4), vr(CBF + 32 * b + 4 * c, 4),
                                             "0" if (rho == 0 and q == 0) else acc))
                    for _ in range(2 if k < 8 else 1):
                        if nxt:
                            a.lds(nxt.pop(0))
                    k += 1
                    cnt += 1
                    if fill_every and cnt % fill_every == 0:
                        self.fill(1)
            assert not nxt
            a.wait_lg_all()

    def conv_finish(self, ch):
        a = self.a
        base = CV_BASE1 if ch else CV_BASE
        CACC = self.CACC
        self.barrier()
        a("s_lshl_b32 s%d, s%d, 11" % (sA, sW))
        a("s_add_u32 s%d, s%d, %d" % (sA, sA, base + CV_R))
        a("v_add_u32 v26, s%d, v%d" % (sA, vL16))
        for t in range(8):
            a.lds("ds_write_b128 v26, %s offset:%d" % (vr(CACC + 4 * t, 4), (t >> 1) * 8192 + (t & 1) * 1024))
        a("s_lshl_b32 s%d, s%d, 10" % (sA, sW))
        a("s_add_u32 s%d, s%d, %d" % (sA, sA, base + CV_XD))
        a("v_and_b32 v27, 15, v%d" % vL)
        a("v_lshlrev_b32 v27, 5, v27")
        a("v_lshrrev_b32 v28, 4, v%d" % vL)
        a("v_lshl_add_u32 v27, v28, 3, v27")
        a("v_add_u32 v27, s%d, v27" % sA)
        for u in range(2):
            a.lds("ds_read_b64 %s, v27 offset:%d" % (vr(100 + 2 * u, 2), 512 * u))
        a.wait_lg_all()
        self.barrier()
        a("s_lshl_b32 s%d, s%d, 13" % (sA, sW))
        a("s_add_u32 s%d, s%d, %d" % (sA, sA, base + CV_R))
        a("v_add_u32 v26, s%d, v%d" % (sA, vL16))
        for sl in range(4):
            for u in range(2):
                a.lds("ds_read_b128 %s, v26 offset:%d" % (vr(64 + 8 * sl + 4 * u, 4), sl * 2048 + u * 1024))
        for u in range(2):
            for j in range(2):
                a("v_lshlrev_b32 v%d, 16, v%d" % (104 + 4 * u + 2 * j, 100 + 2 * u + j))
                a("v_and_b32 v%d, s%d, v%d" % (105 + 4 * u + 2 * j, sHI, 100 + 2 * u + j))
        a("v_mov_b32 v112, s%d" % (sD1 if ch else sD0))
        a("v_lshrrev_b32 v26, 4, v%d" % vL)
        a("v_and_b32 v27, 1, v26")
        a("v_lshlrev_b32 v27, 9, v27")
        a("v_lshrrev_b32 v26, 1, v26")
        a("v_lshl_add_u32 v27, v26, 4, v27")
        a("v_and_b32 v26, 15, v%d" % vL)
        a("v_lshl_add_u32 v27, v26, 5, v27")
        a("s_lshl_b32 s%d, s%d, 10" % (sA, sW))
        a("v_add_u32 v27, s%d, v27" % sA)
        a("s_lshl_b32 s%d, s2, 13" % sA)
        a("s_add_u32 s%d, s%d, 0x%x" % (sA, sA, WS_YT + 0x1000 * ch))
        a.wait_lg_all()
        for p in range(4):
            a("v_pk_add_f32 %s, %s, %s" % (vr(64 + 2 * p, 2), vr(64 + 2 * p, 2), vr(72 + 2 * p, 2)))
            a("v_pk_add_f32 %s, %s, %s" % (vr(80 + 2 * p, 2), vr(80 + 2 * p, 2), vr(88 + 2 * p, 2)))
        for p in range(4):
            a("v_pk_add_f32 %s, %s, %s" % (vr(64 + 2 * p, 2), vr(64 + 2 * p, 2), vr(80 + 2 * p, 2)))
        for p in range(4):
            a("v_pk_fma_f32 %s, %s, %s, %s op_sel_hi:[1,0,1]" % (vr(64 + 2 * p, 2), vr(104 + 2 * p, 2), vr(112, 2),
                                                                vr(64 + 2 * p, 2)))
        for p in range(4):
            a("v_cvt_pk_bf16_f32 v%d, v%d, v%d" % (116 + p, 64 + 2 * p, 65 + 2 * p))
        a("v_permlane16_swap_b32 v116, v118")
        a("v_permlane16_swap_b32 v117, v119")
        a.vmem("buffer_store_dwordx4 %s, v27, %s, s%d offen sc1" % (vr(116, 4), sr(S_WS, 4), sA), "yt")

    def s2_load_items(self):
        a = self.a
        a("s_lshl_b32 s%d, s%d, 5" % (sA, sT))
        a("v_add_u32 v26, s%d, v%d" % (sA, vN31))
        a("s_add_u32 s%d, s%d, 1" % (sB, sKH))
        a("s_lshl_b32 s%d, s%d, 14" % (sA, sKH))
        a("s_add_u32 s%d, s%d, 0x%x" % (sA, sA, WS_HS))
        a("v_mov_b32 v29, 0x%x" % OOB)
        for i, op in enumerate(("v_subrev_u32", "v_add_u32")):
            a("%s v27, s%d, v26" % (op, sB))
            a("v_lshrrev_b32 v28, 5, v27")
            a("v_lshlrev_b32 v28, 15, v28")
            a("v_and_b32 v30, 31, v27")
            a("v_lshl_add_u32 v30, v%d, 5, v30" % vHH)
            a("v_lshl_add_u32 v28, v30, 4, v28")
            a("v_add_u32 v28, s%d, v28" % sA)
            a("v_cmp_gt_u32 vcc, 0x800, v27")
            a("v_cndmask_b32 v%d, v29, v28, vcc" % (140 + i))
        so = ["0", "s%d" % sK4, "s%d" % sK8, "s%d" % sK12]
        items = []
        for ks in range(16):
            def f(ks=ks):
                a.vmem("buffer_load_dwordx4 %s, v%d, %s, %s offen offset:%d sc1"
                       % (ar(4 * ks, 4), 140 + (ks >> 3), sr(S_WS, 4), so[ks >> 2], (ks & 3) * 1024), "h%d" % ks)
            items.append(f)
        return items

    def wpi_addr(self, vk, vs, base, khs, ps):
        a = self.a
        a("s_mul_i32 s%d, s%d, %d" % (sA, sKH, khs + ps))
        a("s_add_u32 s%d, s%d, %d" % (sA, sA, base))
        a("v_add_u32 v%d, s%d, v%d" % (vk, sA, vWP))
        a("s_mul_i32 s%d, s%d, %d" % (sA, sKH, khs - ps))
        a("s_add_u32 s%d, s%d, %d" % (sA, sA, base + ps))
        a("v_add_u32 v%d, s%d, v%d" % (vs, sA, vWP))

    def s2_main(self):
        a = self.a
        ACK, ACS, AK, AS = self.ACK, self.ACS, self.AK, self.AS

        def rd(ks, which):
            base, addr = ((AK, 128), (AS, 129))[which]
            for hf in range(2):
                a.lds("ds_read_b64_tr_b16 %s, v%d offset:%d" % (vr(base + 4 * (ks & 1) + 2 * hf, 2), addr,
                                                                ks * 1024 + hf * 512), "f%d_%d" % (ks, which))
        rd(0, 0)
        rd(0, 1)
        for ks in range(16):
            b = ks & 1
            a.wait_both("h%d" % ks, "f%d_0" % ks)
            a("%s %s, %s, %s, %s" % (MF32, vr(ACK, 16), vr(AK + 4 * b, 4), ar(4 * ks, 4), "0" if ks == 0 else vr(ACK, 16)))
            if ks < 15:
                rd(ks + 1, 0)
            self.fill(1)
            a.wait_lg("f%d_1" % ks)
            a("%s %s, %s, %s, %s" % (MF32, vr(ACS, 16), vr(AS + 4 * b, 4), ar(4 * ks, 4), "0" if ks == 0 else vr(ACS, 16)))
            if ks < 15:
                rd(ks + 1, 1)

    def unpack8(self, src, dst):
        a = self.a
        for j in range(8):
            a("v_lshlrev_b32 v%d, 16, v%d" % (dst + 2 * j, src + j))
            a("v_and_b32 v%d, s%d, v%d" % (dst + 2 * j + 1, sHI, src + j))

    def xn_tile(self, dst):
        a = self.a
        self.unpack8(vQ, dst)
        for p in range(8):
            a("v_pk_add_f32 %s, %s, %s op_sel_hi:[1,0] neg_lo:[0,1] neg_hi:[0,1]"
              % (vr(dst + 2 * p, 2), vr(dst + 2 * p, 2), vr(vMEAN, 2)))
        for p in range(8):
            a("v_pk_mul_f32 %s, %s, %s op_sel:[0,1] op_sel_hi:[1,1]"
              % (vr(dst + 2 * p, 2), vr(dst + 2 * p, 2), vr(vMEAN, 2)))

    def s2_epilogue(self, after_exchange):
        a = self.a
        ACK, ACS = self.ACK, self.ACS
        self.exchange_write(ACS)
        self.xn_tile(96)
        a.wait_lg_all()
        self.barrier()
        after_exchange()
        self.exchange_read(80)
        for p in range(8):
            a("v_pk_add_f32 %s, %s, %s" % (vr(ACK + 2 * p, 2), vr(ACK + 2 * p, 2), vr(96 + 2 * p, 2)))
        a.wait_lg_all()
        for p in range(8):
            a("v_pk_add_f32 %s, %s, %s" % (vr(ACK + 2 * p, 2), vr(ACK + 2 * p, 2), vr(80 + 2 * p, 2)))
        for p in range(8):
            a("v_cvt_pk_bf16_f32 v%d, v%d, v%d" % (vX1 + p, ACK + 2 * p, ACK + 2 * p + 1))
        self.frag_store(vX1, WS_X1, "x1st")
        a("v_pk_mul_f32 %s, %s, %s" % (vr(112, 2), vr(ACK, 2), vr(ACK, 2)))
        a("v_pk_add_f32 %s, %s, %s" % (vr(114, 2), vr(ACK, 2), vr(ACK + 2, 2)))
        for p in range(1, 8):
            a("v_pk_fma_f32 %s, %s, %s, %s" % (vr(112, 2), vr(ACK + 2 * p, 2), vr(ACK + 2 * p, 2), vr(112, 2)))
            if p >= 2:
                a("v_pk_add_f32 %s, %s, %s" % (vr(114, 2), vr(114, 2), vr(ACK + 2 * p, 2)))
        a("v_add_f32 v114, v114, v115")
        a("v_add_f32 v112, v112, v113")
        a("v_permlane32_swap_b32 v114, v112")
        a("v_add_f32 v114, v114, v112")
        a("s_lshl_b32 s%d, s%d, 1" % (sA, sC))
        a("s_add_u32 s%d, s%d, s%d" % (sA, sA, sKH))
        a("s_lshl_b32 s%d, s%d, 14" % (sA, sA))
        a("s_lshl_b32 s%d, s%d, 7" % (sB, sT))
        a("s_add_u32 s%d, s%d, s%d" % (sA, sA, sB))
        a("s_add_u32 s%d, s%d, 0x%x" % (sA, sA, WS_ST))
        a("v_lshlrev_b32 v26, 13, v%d" % vHH)
        a("v_lshl_add_u32 v26, v%d, 2, v26" % vN31)
        a.vmem("buffer_store_dword v114, v26, %s, s%d offen sc1" % (sr(S_WS, 4), sA), "x1st")

    def w3_setup(self):
        a = self.a
        a("s_movk_i32 s%d, 3584" % sB)
        a("v_lshrrev_b32 v26, 2, v%d" % vL)
        a("v_mul_lo_u32 v26, v26, s%d" % sB)
        a("v_and_b32 v27, 3, v%d" % vL)
        a("v_lshl_add_u32 v%d, v27, 4, v26" % vW3F)
        a("v_lshrrev_b32 v26, 1, v%d" % vL)
        a("v_mul_lo_u32 v26, v26, s%d" % sB)
        a("v_and_b32 v27, 1, v%d" % vL)
        a("v_lshl_add_u32 v%d, v27, 4, v26" % vW3H)
        a("s_mul_i32 s%d, s%d, %d" % (sW3HG, sW, 128 * 3584))
        a("s_mul_i32 s%d, s%d, 224" % (sA, sCP))
        a("s_add_u32 s%d, s%d, s%d" % (sW3HG, sW3HG, sA))
        a("s_and_b32 s%d, s%d, 1" % (sB, sCP))
        a("s_lshl_b32 s%d, s%d, 5" % (sW3G, sB))
        a("s_add_u32 s%d, s%d, s%d" % (sW3G, sW3G, sW3HG))
        a("s_xor_b32 s%d, s%d, 1" % (sB, sB))
        a("s_mul_i32 s%d, s%d, 192" % (sB, sB))
        a("s_add_u32 s%d, s%d, s%d" % (sW3HG, sW3HG, sB))
        a("s_lshl_b32 s%d, s%d, 13" % (sW3L, sW))
        a("s_lshl_b32 s%d, s%d, 12" % (sW3HL, sW))

    def w3_items(self, panels):
        out = []
        for p in panels:
            if p < 3:
                for i in range(8):
                    out.append(self.dma_item(S_W3, vW3F, sW3L, W3_P + p * 32768 + i * 1024, sW3G,
                                             p * 64 + i * 16 * 3584, "w3"))
            else:
                for i in range(4):
                    out.append(self.dma_item(S_W3, vW3H, sW3HL, W3_H + i * 1024, sW3HG, i * 32 * 3584, "w3"))
        return out

    def s3_load_items(self):
        a = self.a
        a("s_lshl_b32 s%d, s%d, 15" % (sLD, sT3))
        a("s_add_u32 s%d, s%d, 0x%x" % (sLD, sLD, WS_X1))
        items = []
        for ks in range(32):
            def f(ks=ks):
                if ks and ks % 4 == 0:
                    a("s_add_u32 s%d, s%d, 0x1000" % (sLD, sLD))
                a.vmem("buffer_load_dwordx4 %s, v%d, %s, s%d offen offset:%d sc1"
                       % (ar(4 * (ks % 16), 4), vL16, sr(S_WS, 4), sLD, (ks & 3) * 1024), "x%d" % ks)
            items.append(f)
        return items

    def s3_stat_items(self):
        a = self.a
        a("v_lshlrev_b32 v147, 13, v%d" % vHH)
        a("v_lshl_add_u32 v147, v%d, 2, v147" % vN31)
        items = []
        for sl in range(16):
            def f(sl=sl):
                a("s_lshl_b32 s%d, s%d, 7" % (sSO, sT3))
                a("s_add_u32 s%d, s%d, 0x%x" % (sSO, sSO, WS_ST + 0x4000 * sl))
                a.vmem("buffer_load_dword v%d, v147, %s, s%d offen sc1" % (vST + sl, sr(S_WS, 4), sSO), "st")
            items.append(f)
        return items

    def s3_addr(self):
        a = self.a
        a("v_add_u32 v144, %d, v%d" % (W3_P, vWP))
        a("v_add_u32 v145, %d, v%d" % (W3_P + 65536, vWP))
        a("v_bfe_u32 v26, v%d, 2, 2" % vL)
        a("v_lshl_add_u32 v26, v%d, 2, v26" % vHH)
        a("v_and_b32 v27, 3, v%d" % vL)
        a("v_lshlrev_b32 v27, 3, v27")
        a("v_lshl_add_u32 v26, v26, 5, v27")
        a("v_add_u32 v146, %d, v26" % W3_H)

    @staticmethod
    def w3_read(p, ks, hf, dst):
        if p < 2:
            return "ds_read_b64_tr_b16 %s, v144 offset:%d" % (vr(dst, 2), p * 32768 + ks * 1024 + hf * 512)
        if p == 2:
            return "ds_read_b64_tr_b16 %s, v145 offset:%d" % (vr(dst, 2), ks * 1024 + hf * 512)
        return "ds_read_b64_tr_b16 %s, v146 offset:%d" % (vr(dst, 2), ks * 512 + hf * 256)

    def s3_colsum(self):
        self.hold += 1
        self._s3_colsum()
        self.hold -= 1

    def _s3_colsum(self):
        a = self.a
        full = a.newlabel("csfull")
        done = a.newlabel("csdone")
        self.selector(120)
        a("s_cmp_lt_u32 s%d, 3" % sW)
        a("s_cbranch_scc1 %s" % full)
        for is_full in (False, True):
            if is_full:
                a.label(full)
                a("s_lshl_b32 s%d, s%d, 15" % (sA, sW))
                a("v_add_u32 v148, s%d, v144" % sA)
            stride, hstep, addr = (1024, 512, 148) if is_full else (512, 256, 146)
            saved = list(a.lg)
            a.lg = []

            def rd(ks):
                for hf in range(2):
                    a.lds("ds_read_b64_tr_b16 %s, v%d offset:%d" % (vr(96 + 4 * (ks % 6) + 2 * hf, 2), addr,
                                                                    ks * stride + hf * hstep), "c%d" % ks)
            for ks in range(5):
                rd(ks)
            for ks in range(32):
                a.wait_lg("c%d" % ks)
                a("%s %s, %s, %s, %s" % (MF16, vr(32 + 4 * (ks & 1), 4), vr(96 + 4 * (ks % 6), 4), vr(120, 4),
                                         "0" if ks < 2 else vr(32 + 4 * (ks & 1), 4)))
                if ks + 5 < 32:
                    rd(ks + 5)
            a.lg = saved
            if not is_full:
                a("s_branch %s" % done)
        a.label(done)
        a("v_pk_add_f32 v[32:33], v[32:33], v[36:37]")
        a("v_pk_add_f32 v[34:35], v[34:35], v[38:39]")
        a("s_lshl_b32 s%d, s%d, 7" % (sA, sW))
        a("s_add_u32 s%d, s%d, %d" % (sA, sA, LCS3))
        self.colsum_write(32, sA)
        a.wait_lg_all()

    def s3_main(self, mid):
        a = self.a
        AF = 96

        def rd(ks, p):
            for hf in range(2):
                a.lds(self.w3_read(p, ks, hf, AF + 16 * (ks & 1) + 4 * p + 2 * hf), "f%d_%d" % (ks, p))
        for p in range(4):
            rd(0, p)
        for ks in range(32):
            b = ks & 1
            for p in range(4):
                if p == 0:
                    a.wait_both("x%d" % ks, "f%d_0" % ks)
                else:
                    a.wait_lg("f%d_%d" % (ks, p))
                acc = vr(32 + 16 * p, 16)
                a("%s %s, %s, %s, %s" % (MF32, acc, vr(AF + 16 * b + 4 * p, 4), ar(4 * (ks % 16), 4),
                                         "0" if ks == 0 else acc))
                if ks < 31:
                    rd(ks + 1, p)
                if p in (0, 2):
                    self.fill(1)
            if ks == self.opt.get("s3mid", 18):
                mid()
            if ks in (7, 15, 23) and self.opt.get("s3st", 0):
                self.stamp("s3k%d" % ks)

    def s3_epilogue(self, after_tile):
        a = self.a
        G = 128
        a("v_lshlrev_b32 v28, 4, v%d" % vHH)
        a("v_add_u32 v149, %d, v28" % LCS3)

        def csread(p):
            n = 16 if p < 3 else 8
            for j in range(n // 4):
                a.lds("ds_read_b128 %s, v149 offset:%d" % (vr(96 + 16 * (p & 1) + 4 * j, 4), 128 * p + 32 * j), "cs%d" % p)
        csread(0)
        a.wait_vm("st")
        for s in (8, 4, 2, 1):
            for i in range(s):
                a("v_add_f32 v%d, v%d, v%d" % (vST + i, vST + i, vST + i + s))
        a("v_mov_b32 v%d, v%d" % (vST + 1, vST))
        a("v_permlane32_swap_b32 v%d, v%d" % (vST, vST + 1))
        a("v_mul_f32 v%d, s%d, v%d" % (vST + 2, s512I, vST))
        a("v_mul_f32 v26, s%d, v%d" % (s512I, vST + 1))
        a("v_fma_f32 v26, -v%d, v%d, v26" % (vST + 2, vST + 2))
        a("v_max_f32 v26, 0, v26")
        a("v_add_f32 v26, s%d, v26" % sEPS)
        a("v_rsq_f32 v27, v26")
        self.gelu_consts(27, G)
        a("v_sub_f32 v%d, 0, v%d" % (G + 4, vST + 2))
        a("s_mul_i32 s%d, s%d, 114688" % (sD, sT3))
        a("s_mul_i32 s%d, s%d, 7168" % (sA, sCP))
        a("s_add_u32 s%d, s%d, s%d" % (sD, sD, sA))
        a("s_add_u32 s%d, s%d, 0x%x" % (sD, sD, WS_HH))
        a("s_and_b32 s%d, s%d, 1" % (sB, sCP))
        a("s_lshl_b32 s%d, s%d, 10" % (sE, sB))
        a("s_add_u32 s%d, s%d, s%d" % (sE, sE, sD))
        a("s_xor_b32 s%d, s%d, 1" % (sB, sB))
        a("s_mul_i32 s%d, s%d, 6144" % (sB, sB))
        a("s_add_u32 s%d, s%d, s%d" % (sF, sD, sB))
        for p in range(4):
            n = 16 if p < 3 else 8
            C = 96 + 16 * (p & 1)
            if p < 3:
                csread(p + 1)
            a.wait_lg("cs%d" % p)
            acc = 32 + 16 * p
            for i in range(n // 2):
                a("v_pk_fma_f32 %s, %s, %s, %s op_sel_hi:[1,0,1]"
                  % (vr(acc + 2 * i, 2), vr(C + 2 * i, 2), vr(G + 4, 2), vr(acc + 2 * i, 2)))
            out = 152 + 8 * (p & 1)
            self.gelu(acc, n, G, G + 2, 176, out, fills=0)
            if p < 3:
                a("s_add_u32 s%d, s%d, %d" % (sA, sE, 2048 * p))
                a.vmem("buffer_store_dwordx4 %s, v%d, %s, s%d offen sc1" % (vr(out, 4), vL16, sr(S_WS, 4), sA), "Hst")
                a.vmem("buffer_store_dwordx4 %s, v%d, %s, s%d offen offset:1024 sc1"
                       % (vr(out + 4, 4), vL16, sr(S_WS, 4), sA), "Hst")
            else:
                a.vmem("buffer_store_dwordx4 %s, v%d, %s, s%d offen sc1" % (vr(out, 4), vL16, sr(S_WS, 4), sF), "Hst")
            after_tile(p)

    def w4_setup(self):
        a = self.a
        a("s_lshl_b32 s%d, s%d, 11" % (sW4L, sKH))
        a("s_lshl_b32 s%d, s%d, 10" % (sA, sTH))
        a("s_add_u32 s%d, s%d, s%d" % (sW4L, sW4L, sA))
        a("s_mul_i32 s%d, s%d, %d" % (sW4G, sKH, 896 * 1024))
        self.feat0(sA, sTH, 1)
        a("s_add_u32 s%d, s%d, s%d" % (sW4G, sW4G, sA))

    W4R = 56

    def w4_reg_loads(self, ks0, ks1):
        def item(ks):
            def f():
                a = self.a
                a("s_add_u32 s%d, s%d, %d" % (sSO, sW4G, ks * 16384))
                a.vmem("buffer_load_dwordx4 %s, v%d, %s, s%d offen" % (vr(self.W4R + 4 * (ks - W4_B), 4), vW64,
                                                                     sr(S_W4, 4), sSO), "w4r")
                a.check_vm_depth()
            return f
        return [item(ks) for ks in range(ks0, ks1)]

    def w4_reg_writes(self, ks0, ks1):
        def f():
            a = self.a
            a.wait_vm("w4r")
            for i in range(3):
                a("v_add_u32 v%d, s%d, v%d" % (28 + i, sW4L, vL16))
                if i:
                    a("v_add_u32 v%d, %d, v%d" % (28 + i, 65536 * i, 28 + i))
            for ks in range(ks0, ks1):
                off = w4_off(ks)
                a.lds("ds_write_b128 v%d, %s offset:%d" % (28 + off // 65536, vr(self.W4R + 4 * (ks - W4_B), 4),
                                                           off % 65536))
            a.wait_lg_all()
        return f

    def w4_items(self, ks0, ks1, tag):
        return [self.dma_item(S_W4, vW64, sW4L, w4_off(ks), sW4G, ks * 16384, tag) for ks in range(ks0, ks1)]

    def s4_load_items(self):
        a = self.a
        a("s_mul_i32 s%d, s%d, 114688" % (sLD, sT))
        a("s_mul_i32 s%d, s%d, %d" % (sB, sKH, 56 * 1024))
        a("s_add_u32 s%d, s%d, s%d" % (sLD, sLD, sB))
        a("s_add_u32 s%d, s%d, 0x%x" % (sLD, sLD, WS_HH))
        items = []
        for ks in range(56):
            def f(ks=ks):
                if ks and ks % 4 == 0:
                    a("s_add_u32 s%d, s%d, 0x1000" % (sLD, sLD))
                a.vmem("buffer_load_dwordx4 %s, v%d, %s, s%d offen offset:%d sc1"
                       % (ar(4 * (ks % 16), 4), vL16, sr(S_WS, 4), sLD, (ks & 3) * 1024), "H%d" % ks)
                a.check_vm_depth()
            items.append(f)
        return items

    def s4_y_items(self):
        a = self.a
        self.feat0(sE, sKH, 12)
        a("s_lshl_b32 s%d, s%d, 6" % (sB, sT))
        a("s_add_u32 s%d, s%d, s%d" % (sE, sE, sB))
        a("s_add_u32 s%d, s%d, 0x%x" % (sE, sE, WS_YT))
        a("v_lshlrev_b32 v147, 14, v%d" % vHH)
        a("v_lshl_add_u32 v147, v%d, 1, v147" % vN31)
        items = []
        for r in range(16):
            def f(r=r):
                a("s_add_u32 s%d, s%d, %d" % (sSO, sE, (8 * (r >> 2) + (r & 3)) * 4096))
                a.vmem("buffer_load_ushort v%d, v147, %s, s%d offen sc1" % (vST + r, sr(S_WS, 4), sSO), "y")
                a.check_vm_depth()
            items.append(f)
        return items

    XN4, BASE4 = 112, 148

    def s4_shadow_ops(self):
        XN, B = self.XN4, self.BASE4
        pre, post = [], []
        for j in range(8):
            pre.append("v_lshlrev_b32 v%d, 16, v%d" % (XN + 2 * j, vQ + j))
            pre.append("v_and_b32 v%d, s%d, v%d" % (XN + 2 * j + 1, sHI, vQ + j))
            pre.append("v_lshlrev_b32 v%d, 16, v%d" % (B + 2 * j, vX1 + j))
            pre.append("v_and_b32 v%d, s%d, v%d" % (B + 2 * j + 1, sHI, vX1 + j))
        for r in range(16):
            pre.append("v_add_f32 v%d, v%d, v%d" % (B + r, B + r, XN + r))
            pre.append("v_sub_f32 v%d, v%d, v%d" % (XN + r, XN + r, vMEAN))
            pre.append("v_mul_f32 v%d, v%d, v%d" % (XN + r, XN + r, vR1))
        for r in range(16):
            post.append("v_lshlrev_b32 v%d, 16, v%d" % (vST + r, vST + r))
            post.append("v_fmac_f32 v%d, v%d, v%d" % (B + r, XN + r, vST + r))
        return pre, post

    def s4_out_addr(self):
        a = self.a
        a("s_lshl_b32 s%d, s%d, 15" % (sE, sT))
        self.feat0(sB, sKH, 1)
        a("s_add_u32 s%d, s%d, s%d" % (sE, sE, sB))
        a("v_lshlrev_b32 v146, 10, v%d" % vN31)
        a("v_lshl_add_u32 v146, v%d, 4, v146" % vHH)
        a("v_add_u32 v146, s%d, v146" % sE)

    def s4_addr(self):
        a = self.a
        self.wpi_addr(128, 131, 0, 2048, 1024)
        for i in (1, 2):
            a("v_add_u32 v%d, %d, v128" % (128 + i, 65536 * i))
            a("v_add_u32 v%d, %d, v131" % (131 + i, 65536 * i))

    def s4_main(self, hitems):
        a = self.a
        ACK, ACS, AK, AS = self.ACK, self.ACS, self.AK, self.AS

        def rd(ks, which):
            off = w4_off(ks)
            base, addr = ((AK, 128), (AS, 131))[which]
            for hf in range(2):
                a.lds("ds_read_b64_tr_b16 %s, v%d offset:%d"
                      % (vr(base + 4 * (ks & 1) + 2 * hf, 2), addr + off // 65536, off % 65536 + hf * 512),
                      "f%d_%d" % (ks, which))
        pre, post = self.s4_shadow_ops()
        yq = []
        f1, f2 = self.opt.get("f1", 10), self.opt.get("f2", 18)
        self.hact(self.w4_reg_writes(W4_B, W4_C))
        rd(0, 0)
        rd(0, 1)
        for ks in range(56):
            ahead = ks < 55 and ks + 1 != W4_C
            b = ks & 1
            B = ar(4 * (ks % 16), 4)
            a.wait_both("H%d" % ks, "f%d_0" % ks)
            a("%s %s, %s, %s, %s" % (MF32, vr(ACK, 16), vr(AK + 4 * b, 4), B, "0" if ks == 0 else vr(ACK, 16)))
            if ahead:
                rd(ks + 1, 0)
            if hitems and ks >= 1:
                hitems.pop(0)()
            if yq:
                yq.pop(0)()
                if not hitems and yq:
                    yq.pop(0)()
            a.wait_lg("f%d_1" % ks)
            a("%s %s, %s, %s, %s" % (MF32, vr(ACS, 16), vr(AS + 4 * b, 4), B, "0" if ks == 0 else vr(ACS, 16)))
            if ahead:
                rd(ks + 1, 1)
            for _ in range(3):
                if pre and ks >= 2:
                    a(pre.pop(0))
            if ks == f1:
                a.wait_vm("yt")
                self.barrier()
                self.flag_store(F_CV, 2)
                self.hact(self.w4_reg_writes(W4_C, W4_C + f1 + 1))
            if ks == f2:
                self.barrier()
                self.hact(self.w4_reg_writes(W4_C + f1 + 1, 56))
            if ks == self.opt.get("ycheck", 34) - 8:
                self.idx_cv()
                self.poll_issue(F_CV, "pcv")
            if ks == self.opt.get("ycheck", 34):
                self.poll_check("pcv", 4)
                yq = self.s4_y_items()
            if ks + 1 == W4_C:
                self.barrier()
                if self.opt.get("barstamps", 0):
                    h = self.h
                    lab = h.newlabel("nobs")
                    h("s_cmp_lg_u32 s%d, 0" % sW)
                    h("s_cbranch_scc1 %s" % lab)
                    h("s_lshl_b32 s%d, s2, 8" % sA)
                    h("s_add_u32 s%d, s%d, 0x%x" % (sA, sA, WS_STAMP + 0x20000))
                    h("v_lshlrev_b32 v26, 2, v%d" % vL)
                    h("buffer_store_dword v191, v26, %s, s%d offen" % (sr(S_WS, 4), sA))
                    h("s_waitcnt vmcnt(0)")
                    h.label(lab)
                self.h("s_endpgm")
                rd(ks + 1, 0)
                rd(ks + 1, 1)
            if ks in (8, 16, 27, 38, 47):
                self.stamp("s4k%d" % ks)
        assert not pre and not hitems
        for f in yq:
            f()
        self.s4_out_addr()
        self.s4_post = post

    def s4_epilogue(self):
        a = self.a
        ACK, ACS, B = self.ACK, self.ACS, self.BASE4
        self.exchange_write(ACS, S4_RED)
        a.wait_vm("y")
        for x in self.s4_post:
            a(x)
        for p in range(8):
            a("v_pk_add_f32 %s, %s, %s" % (vr(ACK + 2 * p, 2), vr(ACK + 2 * p, 2), vr(B + 2 * p, 2)))
        a.wait_lg_all()
        a("s_barrier")
        self.exchange_read(80, S4_RED)
        a.wait_lg_all()
        for p in range(8):
            a("v_pk_add_f32 %s, %s, %s" % (vr(ACK + 2 * p, 2), vr(ACK + 2 * p, 2), vr(80 + 2 * p, 2)))
        for p in range(8):
            a("v_cvt_pk_bf16_f32 v%d, v%d, v%d" % (48 + p, ACK + 2 * p, ACK + 2 * p + 1))
        for j in (0, 4):
            a("v_permlane32_swap_b32 v%d, v%d" % (48 + j, 50 + j))
            a("v_permlane32_swap_b32 v%d, v%d" % (49 + j, 51 + j))
        a.vmem("buffer_store_dwordx4 %s, v146, %s, 0 offen" % (vr(48, 4), sr(S_OUT, 4)), "out")
        a.vmem("buffer_store_dwordx4 %s, v146, %s, 0 offen offset:32" % (vr(52, 4), sr(S_OUT, 4)), "out")

    def nonce_update(self):
        a = self.a
        self.hold += 1
        skip = a.newlabel("nonce")
        a("s_cmp_lg_u32 s2, 0")
        a("s_cbranch_scc1 %s" % skip)
        a("s_cmp_lg_u32 s%d, 0" % sW)
        a("s_cbranch_scc1 %s" % skip)
        saved = list(a.vm)
        for i in range(4):
            a("v_add_u32 v28, %d, v%d" % (64 * i, vL))
            self.poll_issue(F_P0, "pn")
            self.poll_check("pn", 6)
        a.vm = saved
        a("v_mov_b32 v26, 0")
        a("v_mov_b32 v27, s%d" % sN)
        a("s_mov_b64 exec, 1")
        a("buffer_store_dword v27, v26, %s, 0 offen sc1" % sr(S_WS, 4))
        a("s_mov_b64 exec, -1")
        a.label(skip)
        self.hold -= 1

    def finish(self):
        a = self.a
        a.wait_vm_all()
        if self.opt.get("delay", 0):
            lab = a.newlabel("delay")
            a("s_mov_b32 s%d, %d" % (sA, self.opt["delay"] // 64))
            a.label(lab)
            for _ in range(15):
                a("v_mov_b32 v26, v27")
            a("s_sub_u32 s%d, s%d, 1" % (sA, sA))
            a("s_cmp_lg_u32 s%d, 0" % sA)
            a("s_cbranch_scc1 %s" % lab)
        if self.opt.get("dbgtime", 0):
            a("s_memrealtime %s" % sr(sSTA, 2))
            a("s_memtime s[96:97]")
            a("s_waitcnt lgkmcnt(0)")
            a("s_sub_u32 s%d, s%d, s3" % (sSTA, sSTA))
            a("s_sub_u32 s96, s96, s98")
            a("v_mov_b32 v26, 0")
            a("v_mov_b32 v27, s%d" % sSTA)
            a("v_mov_b32 v28, s96")
            a("s_mov_b64 exec, 1")
            a("global_atomic_umax v26, v27, %s" % sr(S_DBG, 2))
            a("global_atomic_umax v26, v28, %s offset:4" % sr(S_DBG, 2))
            a("s_waitcnt vmcnt(0)")
            a("s_mov_b64 exec, -1")
        if self.stamps:
            self.stamp("end")
            skip = a.newlabel("nostamp")
            a("s_cmp_lg_u32 s%d, 0" % sW)
            a("s_cbranch_scc1 %s" % skip)
            a("s_lshl_b32 s%d, s2, 8" % sA)
            a("s_add_u32 s%d, s%d, 0x%x" % (sA, sA, WS_STAMP))
            a("v_lshlrev_b32 v26, 2, v%d" % vL)
            a("buffer_store_dword v%d, v26, %s, s%d offen" % (vSTAMP, sr(S_WS, 4), sA))
            if self.opt.get("barstamps", 0):
                a("s_add_u32 s%d, s%d, 0x10000" % (sA, sA))
                a("buffer_store_dword v31, v26, %s, s%d offen" % (sr(S_WS, 4), sA))
            a("s_waitcnt vmcnt(0)")
            a.label(skip)
        a.label("L_end")
        a("s_endpgm")
        self.a.hook = None
        self.h.label("L_codeend")
        self.h("s_endpgm")
        self.a.ins += self.h.ins

    def nonce_load(self):
        a = self.a
        a("v_mov_b32 v26, 0")
        a.vmem("buffer_load_dword v30, v26, %s, 0 offen sc1" % sr(S_WS, 4), "nonce")

    def build(self):
        a = self.a
        o = self.opt
        H = self.hact
        self.prologue()
        H(self.loader_setup)
        if o.get("tcode", 1) == 1:
            H(self.touch_code)
        s1 = [f for st in range(4) for f in self.s1_stage_items(st)]
        n0, n1 = o.get("n0", 12), o.get("n1", 24)
        self.nonce_load()
        self.cold_touches()
        self.tr_addresses()
        self.s1_setup()

        def stage(st):
            if st == 0:
                self.hacts(s1[:n0])
                self.hwait("s1_0")
            elif st == 1:
                self.hacts(s1[n0:n1])
                self.hwait("s1_1")
            else:
                self.hacts(s1[n1:])
                if o.get("apos", 0) == 0:
                    self.hstamp(4)
                    H(self.batch_a)
                    self.hstamp(5)
                self.hwait("s1_3")
            self.barrier()
            if st == 2:
                if o.get("apos", 0) == 1:
                    H(self.batch_a)
                H(self.nonce_load)
                H(self.tr_addresses)
        self.s1_main(stage)
        self.stamp("s1main")
        w2 = [self.dma_item(S_W2, vW64, sW2L, grp * 1024, sW2G, grp * 16384, "w2") for grp in range(16)]

        def after_x1():
            pass
        self.s1_epilogue(after_x1)
        self.stamp("s1epi")
        self.nonce_compute()
        self.wpi_addr(128, 129, LW, 16384, 32768)
        hitems = self.s2_load_items()
        a.wait_vm("hst")
        self.barrier()
        self.flag_store_rc(F_S1)
        self.stamp("s1flag")
        H(self.nonce_compute)
        H(self.kv_dma)
        if o.get("bpos", 1) == 1:
            H(lambda: self.touch_chip("ssm"))
            H(lambda: self.touch_chip("w3"))
        w2a = o.get("w2a", 4)
        self.hacts(w2[:w2a])
        self.hpaced(w2[w2a:], o.get("iv2", 70), self.p0_compute)
        H(lambda: self.a.wait_lg_all())
        self.idx_s1()
        self.barrier()
        H(self.p0_readback)
        H(self.p0_store)
        H(lambda: self.conv_filter_loads(0))
        H(self.w3_setup)
        w3 = self.w3_items([0, 1, 2, 3])
        k0, k1, k2 = o.get("k0", 8), o.get("k1", 14), o.get("k2", 16)
        self.hacts(w3[:k0])
        self.hwait("kvt")
        self.hwait("w2")
        self.poll_issue(F_S1, "ps1")
        self.poll_check("ps1", 2)
        self.stamp("s1poll")
        nh2 = o.get("nh2", 10)
        for f in hitems[:nh2]:
            f()
        self.barrier()
        self.stamp("hiss")
        H(lambda: self.flag_store_rc(F_P0))
        if o.get("bpos", 1) == 2:
            H(lambda: self.touch_chip("ssm"))
            H(lambda: self.touch_chip("w3"))
        H(self.idx_p0)
        H(lambda: self.poll_issue(F_P0, "pp0"))
        self.hacts(w3[k0:k1])
        self.fq = hitems[nh2:]
        self.s2_main()
        self.stamp("s2main")

        def after_x2():
            H(lambda: self.poll_check("pp0", 1))
            H(lambda: self.conv_x_loads(0))
            H(lambda: self.conv_prep_filter(0))
            H(lambda: self.conv_x_write(0))
        self.s2_epilogue(after_x2)
        self.stamp("s2epi")
        self.barrier()
        H(lambda: self.conv_poly(0))
        self.hacts(w3[k1:k2])
        self.conv_addr(0)
        a.wait_vm("x1st")
        self.barrier()
        self.flag_store_rc(F_S2)
        self.stamp("s2flag")
        H(lambda: self.touch_chip("w4"))
        self.hacts(w3[k2:])

        def hook0(rho):
            if rho == o.get("pollrho2", 3):
                self.idx_s2()
                self.poll_issue(F_S2, "ps2")
        self.conv_main(hook0)
        self.stamp("cv0main")
        xitems = self.s3_load_items()
        nx = o.get("nx", 12)
        self.conv_finish(0)
        self.hwait("w3")
        self.barrier()
        self.stamp("cv0fin")
        H(self.s3_addr)
        H(self.s3_colsum)
        H(self.w4_setup)
        self.s3_addr()
        self.poll_check("ps2", 3)
        self.stamp("s2poll")
        for f in xitems[:nx]:
            f()
        sitems = self.s3_stat_items()
        rest = xitems[nx:]
        self.fq = []
        for i in range(len(rest)):
            self.fq.append(rest[i])
            self.fq.append(sitems[i] if i < 16 else (lambda: None))

        w4r = self.w4_reg_loads(W4_B, 56)

        def s3mid():
            self.barrier()
            H(lambda: self.conv_filter_loads(1))
            H(lambda: self.conv_x_loads(1))
            self.hacts(self.w4_items(0, W4_A, "w4"))
            self.hacts(w4r[:o.get("r1", 8)])
        self.s3_main(s3mid)
        self.fill_all()
        self.stamp("s3main")
        self.barrier()
        H(lambda: self.conv_prep_filter(1))
        H(lambda: self.conv_x_write(1))
        w4m = self.w4_items(W4_A, W4_B, "w4")
        k3 = o.get("k3", 4)

        def after_tile(p):
            if p == 0:
                self.barrier()
                H(lambda: self.conv_poly(1))
                self.hacts(w4r[o.get("r1", 8):o.get("r2", 20)])
                self.hacts(w4m[:k3])
        self.s3_epilogue(after_tile)
        self.stamp("s3epi")
        self.conv_addr(1)
        a.wait_vm("Hst")
        self.barrier()
        a("s_lshl_b32 s%d, s%d, 4" % (sB, sRP))
        a("s_add_u32 s%d, s%d, s%d" % (sB, sB, sCP))
        self.flag_store(F_S3, sB)
        self.stamp("s3flag")
        self.hacts(w4m[k3:])
        self.hacts(w4r[o.get("r2", 20):])
        self.nonce_update()

        def hook1(rho):
            if rho == o.get("pollrho", 2):
                self.idx_s3()
                self.poll_issue(F_S3, "ps3")
        self.conv_main(hook1)
        self.stamp("cv1main")
        hitems = self.s4_load_items()
        self.poll_check("ps3", 5)
        self.stamp("s3poll")
        for _ in range(o.get("nh", 14)):
            hitems.pop(0)()
        self.conv_finish(1)
        self.s4_addr()
        self.hwait("w4")
        self.barrier()
        self.stamp("cv1fin")
        self.s4_main(hitems)
        self.stamp("s4main")
        self.s4_epilogue()
        self.stamp("s4epi")
        self.finish()


REF = "cdna_kernels/%s.s.ref" % NAME


def emit(stop=None, stamps=False, opt=None, keep=None):
    g = Gen(stop, stamps, opt)
    g.keep = keep
    g.build()
    nops = g.a.fix_hazards()
    top = [l for l in open(REF).read().split("\n") if l.startswith(";") and "@launch" not in l and "Override" not in l
           and "grid=ceil" not in l]
    out = top + ["; @launch grid=(256,1,1) block=(512,1,1) lds=%d" % LDS_BYTES,
                 '.amdgcn_target "amdgcn-amd-amdhsa--gfx950"', ".text", ".globl %s_kernel" % NAME, ".p2align 8",
                 ".type %s_kernel,@function" % NAME, "%s_kernel:" % NAME]
    body = g.a.text()
    tail = ['.section .rodata,"a"', ".p2align 6", ".amdhsa_kernel %s_kernel" % NAME,
            "  .amdhsa_next_free_vgpr 256", "  .amdhsa_next_free_sgpr 102", "  .amdhsa_accum_offset 192",
            "  .amdhsa_group_segment_fixed_size 0", "  .amdhsa_kernarg_size 112", "  .amdhsa_user_sgpr_count 2",
            "  .amdhsa_user_sgpr_kernarg_segment_ptr 1", "  .amdhsa_system_sgpr_workgroup_id_x 1",
            "  .amdhsa_float_denorm_mode_32 3", ".end_amdhsa_kernel"]
    text = "\n".join(out) + "\n" + body + "\n".join(tail) + "\n"
    return text, g, nops


if __name__ == "__main__":
    ap = argparse.ArgumentParser()
    ap.add_argument("-o", default="cdna_kernels/%s.s" % NAME)
    ap.add_argument("--stop", default=None)
    ap.add_argument("--stamps", action="store_true")
    ap.add_argument("--opt", default="")
    ap.add_argument("--keep", default="")
    args = ap.parse_args()
    opt = dict((kv.split("=")[0], int(kv.split("=")[1])) for kv in args.opt.split(",") if kv)
    text, g, nops = emit(args.stop, args.stamps, opt, args.keep.split(",") if args.keep else None)
    open(args.o, "w").write(text)
    n = sum(1 for x in g.a.ins if x.kind != "label")
    print("instructions: %d, hazard nops: %d" % (n, nops))
    if g.stamp_names:
        print(",".join(g.stamp_names))
        open(args.o + ".stamps", "w").write(",".join(g.stamp_names))
```

```python
import argparse
import os
import struct
import sys

sys.path.insert(0, os.path.dirname(os.path.abspath(__file__)))
from asmlib import Asm

NAME = "parallel_sum__ssm_conv_h3__mixer_s_mlp__prompt"

WS_FLAGS = 4096
WS_STAMP = 0x40000
WS_KVT = 0x100000
WS_YT = 0x300000
WS_HS = 0x500000
WS_X1 = 0x700000
WS_ST = 0x900000
WS_HH = 0xA00000
WS_SIZE = 0x10000000
OOB = 0x40000000
F_P0, F_S1, F_S2, F_S3, F_CV = 0, 1, 2, 3, 4

LQ = 0
LW = 65536
LSTG = 131072
LRED = 139264
LSTX = 155648
LCSX = 156672
LCS3 = 161280
LKV = 8192
LDS_BYTES = 163840
CV_X = 0
CV_XD = 1152
CV_A = 5248
CV_P = 21760
CV_R = 5248
CV_BASE = 114688
W3_P = 0
W3_H = 98304
CV_BASE1 = 69632
W4_A, W4_B, W4_C = 11, 28, 39
S4_RED = CV_BASE1


def w4_off(ks):
    if ks < W4_A:
        return 114688 + ks * 4096
    if ks < W4_B:
        return (ks - W4_A) * 4096
    if ks < W4_C:
        return CV_BASE1 + (ks - W4_B) * 4096
    return w4_off(ks - W4_C)

S_WS, S_Q, S_K, S_V, S_SHK, S_SSM, S_W1, S_W2, S_W3, S_W4, S_OUT = 4, 8, 12, 16, 20, 24, 32, 36, 40, 44, 48
S_DPTR = 28
S_DBG = 30
sR, sC, sW, sTH, sKH, sN, sRP, sCP = 52, 53, 54, 55, 56, 57, 58, 59
sT, sT3 = 60, 61
sD0, sD1 = 62, 63
sA, sB, sCc, sD, sE, sF = 64, 65, 66, 67, 68, 69
sW2L, sW2G, sW3L, sW3G, sW3HL, sW3HG, sW4L, sW4G, sSO, sLD = 70, 71, 72, 73, 74, 75, 76, 77, 78, 79
sONES, sHI = 80, 81
sK4, sK8, sK12 = 82, 83, 84
sEPS, sTMO, sKG1, sKG3, s512I = 85, 86, 87, 88, 89
sSTA = 90
sROT, sQG, sWG, sCP0 = 92, 93, 94, 95

vL, vL16, vWP, vWN = 0, 1, 2, 3
vQ, vX1 = 4, 12
vMEAN, vR1 = 20, 21
vTID, vHH, vN31, vSTAMP = 22, 23, 24, 25
vW64 = 31
vCH = 172
vPF, vPA = 170, 171
vW3F, vW3H, vQE = 153, 154, 155
vST = 172

GELU_K1 = 2.0 * 0.7978845608028654 * 1.4426950408889634
GELU_K3 = GELU_K1 * 0.044715
MF32 = "v_mfma_f32_32x32x16_bf16"
MF16 = "v_mfma_f32_16x16x32_bf16"


def f32bits(x):
    return struct.unpack("<I", struct.pack("<f", x))[0]


def vr(a, n):
    return "v[%d:%d]" % (a, a + n - 1)


def ar(a, n):
    return "a[%d:%d]" % (a, a + n - 1)


def sr(a, n):
    return "s[%d:%d]" % (a, a + n - 1)


class Gen:
    def __init__(self, stop=None, stamps=False, opt=None):
        self.opt = opt or {}
        self.keep = None
        self.a = Asm()
        self.h = Asm()
        self.h.uid = 100000
        self.hpend = []
        self.nbar = 0
        self.stop = stop
        self.stamps = stamps
        self.nstamp = 0
        self.stamp_names = []
        self.fq = []
        self.pq = []
        self.interval = 0
        self.clock = 0.0
        self.hold = 0
        self.a.hook = self._pace
        self.h.hook = self._pace

    def _pace(self, x):
        if x.kind == "mfma":
            self.clock += 32 if x.passes == 8 else 16
        elif x.kind == "valu":
            self.clock += 8 if x.is_trans() else 4.5
        elif x.kind == "ds":
            self.clock += 13 if x.op == "ds_write_b128" else 2
        elif x.kind == "vmem":
            self.clock += 20
        else:
            return
        if self.hold or not self.pq or not self.interval or x.kind == "vmem":
            return
        if self.clock >= self.interval:
            self.clock = 0.0
            self.hold += 1
            self.pq.pop(0)()
            self.hold -= 1

    def paced(self, items, interval):
        self.pq += items
        self.interval = interval
        self.clock = 0.0

    def pace_flush(self, tag=None):
        self.hold += 1
        if tag is None:
            n = len(self.pq)
        else:
            n = max([i + 1 for i, f in enumerate(self.pq) if f.tag == tag], default=0)
        for _ in range(n):
            self.pq.pop(0)()
        self.hold -= 1

    def stamp(self, name):
        if not self.stamps:
            return
        if self.keep and name not in self.keep and name not in ("start", "end"):
            return
        self.hold += 1
        self._stamp(name)
        self.hold -= 1

    def _stamp(self, name):
        a = self.a
        a("s_memtime %s" % sr(sSTA, 2))
        a("s_waitcnt lgkmcnt(0)")
        a.lg = []
        a("v_writelane_b32 v%d, s%d, %d" % (vSTAMP, sSTA, self.nstamp))
        if name in ("start", "end"):
            a("s_memrealtime %s" % sr(sSTA, 2))
            a("s_waitcnt lgkmcnt(0)")
            a("v_writelane_b32 v%d, s%d, %d" % (vSTAMP, sSTA, 62 if name == "start" else 63))
            if name == "start":
                a("v_writelane_b32 v%d, s3, 61" % vSTAMP)
        self.stamp_names.append(name)
        self.nstamp += 1

    def hact(self, fn):
        self.hpend.append(fn)

    def hacts(self, fns):
        self.hpend += fns

    def hstamp(self, idx):
        if not self.opt.get("barstamps", 0):
            return

        def f():
            a = self.a
            a("s_memtime %s" % sr(sSTA, 2))
            a("s_waitcnt lgkmcnt(0)")
            a.lg = []
            a("v_writelane_b32 v191, s%d, %d" % (sSTA, 32 + idx))
        self.hpend.append(f)

    def hpaced(self, items, interval, fn):
        def f():
            saved = (self.pq, self.interval, self.clock, self.hold)
            self.pq, self.interval, self.clock, self.hold = list(items), interval, 0.0, 0
            fn()
            self.hold = 1
            self.pace_flush()
            self.pq, self.interval, self.clock, self.hold = saved
        self.hpend.append(f)

    def hwait(self, tag):
        self.hpend.append(lambda: self.a.wait_vm(tag))

    def hrun(self):
        c, fq = self.a, self.fq
        self.a, self.fq = self.h, []
        self.hold += 1
        for fn in self.hpend:
            fn()
        self.hold -= 1
        self.hpend = []
        self.a, self.fq = c, fq

    def barrier(self, name=""):
        bs = self.opt.get("barstamps", 0)
        if bs:
            self.hold += 1
            self.a("s_memtime %s" % sr(sSTA, 2))
            self.a("s_waitcnt lgkmcnt(0)")
            self.a.lg = []
            self.a("v_writelane_b32 v31, s%d, %d" % (sSTA, self.nbar))
            self.hold -= 1
        self.a("s_barrier")
        self.hrun()
        if bs:
            self.h("s_memtime %s" % sr(sSTA, 2))
            self.h("s_waitcnt lgkmcnt(0)")
            self.h.lg = []
            self.h("v_writelane_b32 v191, s%d, %d" % (sSTA, self.nbar))
        self.h("s_barrier")
        self.nbar += 1

    def fill(self, n=1):
        for _ in range(n):
            if self.fq:
                self.fq.pop(0)()

    def fill_all(self):
        while self.fq:
            self.fq.pop(0)()

    def dma_item(self, srd, voff, sl, loff, sg, goff, tag):
        def f():
            a = self.a
            a("s_add_u32 m0, s%d, %d" % (sl, loff))
            a("s_add_u32 s%d, s%d, %d" % (sSO, sg, goff))
            a.vmem("buffer_load_dwordx4 v%d, %s, s%d offen lds" % (voff, sr(srd, 4), sSO), tag)
            a.check_vm_depth()
        f.tag = tag
        return f

    def flag_store(self, phase, sidx):
        a = self.a
        self.hold += 1
        skip = a.newlabel("noflag")
        a("s_cmp_lg_u32 s%d, 0" % sW)
        a("s_cbranch_scc1 %s" % skip)
        a("s_lshl_b32 s%d, s%d, 7" % (sA, sidx))
        a("s_add_u32 s%d, s%d, %d" % (sA, sA, WS_FLAGS + phase * 256 * 128))
        a("v_mov_b32 v26, s%d" % sN)
        a("v_mov_b32 v27, s%d" % sA)
        a("s_mov_b64 exec, 1")
        a("buffer_store_dword v26, v27, %s, 0 offen sc1" % sr(S_WS, 4))
        a("s_mov_b64 exec, -1")
        a.label(skip)
        self.hold -= 1

    def flag_store_rc(self, phase):
        a = self.a
        a("s_lshl_b32 s%d, s%d, 3" % (sB, sR))
        a("s_add_u32 s%d, s%d, s%d" % (sB, sB, sC))
        self.flag_store(phase, sB)

    def poll_issue(self, phase, tag):
        a = self.a
        a("v_lshlrev_b32 v%d, 7, v28" % vPA)
        a("v_add_u32 v%d, %d, v%d" % (vPA, WS_FLAGS + phase * 256 * 128, vPA))
        a.vmem("buffer_load_dword v%d, v%d, %s, 0 offen sc1" % (vPF, vPA, sr(S_WS, 4)), tag)

    def poll_check(self, tag, code):
        a = self.a
        self.hold += 1
        loop = a.newlabel("poll")
        done = a.newlabel("polled")
        a.wait_vm(tag)
        a("v_cmp_ne_u32 vcc, s%d, v%d" % (sN, vPF))
        a("s_cmp_eq_u64 vcc, 0")
        a("s_cbranch_scc1 %s" % done)
        a("s_mov_b32 s%d, 0x40000" % sTMO)
        a.label(loop)
        a("buffer_load_dword v%d, v%d, %s, 0 offen sc1" % (vPF, vPA, sr(S_WS, 4)))
        a("s_waitcnt vmcnt(0)")
        a("v_cmp_ne_u32 vcc, s%d, v%d" % (sN, vPF))
        a("s_cmp_eq_u64 vcc, 0")
        a("s_cbranch_scc1 %s" % done)
        a("s_sub_u32 s%d, s%d, 1" % (sTMO, sTMO))
        a("s_cmp_lg_u32 s%d, 0" % sTMO)
        a("s_cbranch_scc1 %s" % loop)
        a("v_mov_b32 v26, 0")
        a("v_mov_b32 v27, %d" % (0x100 + code))
        a("s_mov_b64 exec, 1")
        a("global_store_dword v26, v27, %s" % sr(S_DBG, 2))
        a("s_mov_b64 exec, -1")
        a.label(done)
        self.hold -= 1

    def idx_s1(self):
        a = self.a
        a("s_lshl_b32 s%d, s%d, 1" % (sA, sTH))
        a("s_sub_u32 s%d, s%d, 1" % (sA, sA))
        a("s_add_u32 s%d, s%d, s%d" % (sA, sA, sR))
        a("s_cmp_lt_u32 s%d, 32" % sA)
        a("s_cselect_b32 s%d, s%d, s%d" % (sA, sA, sR))
        a("v_mov_b32 v28, s%d" % sR)
        a("v_mov_b32 v29, s%d" % sA)
        a("v_and_b32 v27, 4, v%d" % vL)
        a("v_cmp_eq_u32 vcc, 0, v27")
        a("v_cndmask_b32 v28, v29, v28, vcc")
        a("v_lshlrev_b32 v28, 3, v28")
        a("v_and_b32 v29, 3, v%d" % vL)
        a("v_add_u32 v28, v28, v29")
        a("s_lshl_b32 s%d, s%d, 2" % (sA, sKH))
        a("v_add_u32 v28, s%d, v28" % sA)

    def idx_p0(self):
        a = self.a
        a("s_lshr_b32 s%d, s2, 5" % sA)
        a("s_lshl_b32 s%d, s%d, 6" % (sB, sW))
        a("s_add_u32 s%d, s%d, s%d" % (sA, sA, sB))
        a("v_and_b32 v28, 7, v%d" % vL)
        a("v_lshlrev_b32 v28, 3, v28")
        a("v_add_u32 v28, s%d, v28" % sA)

    def idx_s2(self):
        a = self.a
        a("s_lshr_b32 s%d, s%d, 1" % (sA, sT3))
        a("s_lshl_b32 s%d, s%d, 3" % (sA, sA))
        a("v_and_b32 v28, 7, v%d" % vL)
        a("v_add_u32 v28, s%d, v28" % sA)

    def idx_s3(self):
        a = self.a
        a("s_lshr_b32 s%d, s%d, 1" % (sA, sR))
        a("s_lshl_b32 s%d, s%d, 4" % (sA, sA))
        a("s_lshl_b32 s%d, s%d, 3" % (sB, sKH))
        a("s_add_u32 s%d, s%d, s%d" % (sA, sA, sB))
        a("v_and_b32 v28, 7, v%d" % vL)
        a("v_add_u32 v28, s%d, v28" % sA)

    def idx_cv(self):
        a = self.a
        self.feat0(sA, sKH, 0)
        a("s_lshr_b32 s%d, s%d, 1" % (sA, sA))
        a("v_and_b32 v28, 15, v%d" % vL)
        a("v_add_u32 v28, s%d, v28" % sA)

    def prologue(self):
        a = self.a
        if self.stamps or self.opt.get("dbgtime", 0):
            a("s_memrealtime s[100:101]")
            a("s_waitcnt lgkmcnt(0)")
            a("s_mov_b32 s3, s100")
        a("s_cmp_ge_u32 s2, 256")
        a("s_cbranch_scc1 L_end")
        a("s_load_dwordx16 s[64:79], s[0:1], 0")
        a("s_load_dwordx8 s[92:99], s[0:1], 64")
        a("s_load_dwordx2 %s, s[0:1], 96" % sr(S_DBG, 2))
        a("s_load_dwordx2 %s, s[0:1], 104" % sr(S_WS, 2))
        sizes = {S_WS: WS_SIZE, S_Q: 1 << 21, S_K: 1 << 21, S_V: 1 << 21, S_SHK: 4096, S_SSM: 1 << 21,
                 S_W1: 1 << 19, S_W2: 1 << 19, S_W3: 512 * 1792 * 2, S_W4: 512 * 1792 * 2, S_OUT: 1 << 21}
        for s, n in sizes.items():
            a("s_mov_b32 s%d, 0x%x" % (s + 2, n))
            a("s_mov_b32 s%d, 0x20000" % (s + 3))
        a("s_and_b32 s100, s2, 7")
        a("s_lshr_b32 s101, s2, 3")
        a("s_lshr_b32 s%d, s101, 3" % sR)
        a("s_lshl_b32 s%d, s100, 2" % sC)
        a("s_add_u32 s%d, s%d, s%d" % (sR, sR, sC))
        a("s_and_b32 s%d, s101, 7" % sC)
        a("s_lshr_b32 s%d, s101, 4" % sRP)
        a("s_lshl_b32 s100, s100, 1")
        a("s_add_u32 s%d, s%d, s100" % (sRP, sRP))
        a("s_and_b32 s%d, s101, 15" % sCP)
        a("v_and_b32 v%d, 0xff, v0" % vTID)
        a("v_lshrrev_b32 v26, 6, v0")
        a("v_and_b32 v%d, 63, v0" % vL)
        a("v_readfirstlane_b32 s%d, v26" % sTMO)
        a("v_lshlrev_b32 v%d, 4, v%d" % (vL16, vL))
        a("v_lshrrev_b32 v%d, 5, v%d" % (vHH, vL))
        a("v_and_b32 v%d, 31, v%d" % (vN31, vL))
        a("s_and_b32 s%d, s%d, 3" % (sW, sTMO))
        a("s_lshr_b32 s%d, s%d, 1" % (sTH, sW))
        a("s_and_b32 s%d, s%d, 1" % (sKH, sW))
        a("s_lshl_b32 s%d, s%d, 1" % (sT, sR))
        a("s_add_u32 s%d, s%d, s%d" % (sT, sT, sTH))
        a("s_lshl_b32 s%d, s%d, 2" % (sT3, sRP))
        a("s_add_u32 s%d, s%d, s%d" % (sT3, sT3, sW))
        a("s_mov_b32 s%d, 0x3f803f80" % sONES)
        a("s_mov_b32 s%d, 0xffff0000" % sHI)
        a("s_movk_i32 s%d, 0x1000" % sK4)
        a("s_movk_i32 s%d, 0x2000" % sK8)
        a("s_movk_i32 s%d, 0x3000" % sK12)
        a("s_mov_b32 s%d, 0x%x" % (sEPS, f32bits(1e-5)))
        a("s_mov_b32 s%d, 0x%x" % (sKG1, f32bits(-GELU_K1)))
        a("s_mov_b32 s%d, 0x%x" % (sKG3, f32bits(-GELU_K3)))
        a("s_mov_b32 s%d, 0x%x" % (s512I, f32bits(1.0 / 512)))
        a("s_waitcnt lgkmcnt(0)")
        for sreg, src in ((S_Q, 64), (S_W1, 78), (S_K, 66), (S_V, 68), (S_SHK, 70), (S_SSM, 72), (S_DPTR, 74)):
            a("s_mov_b64 %s, %s" % (sr(sreg, 2), sr(src, 2)))
        for i, sreg in enumerate([S_W2, S_W3, S_W4, S_OUT]):
            a("s_mov_b64 %s, %s" % (sr(sreg, 2), sr(92 + 2 * i, 2)))
        a("s_add_u32 s%d, s%d, s%d" % (sROT, sR, sC))
        a("s_and_b32 s%d, s%d, 3" % (sROT, sROT))
        a("s_cmp_ge_u32 s%d, 4" % sTMO)
        a("s_cbranch_scc1 L_loader")
        if self.opt.get("prio", 1):
            a("s_setprio 1")
        if self.stamps:
            a("v_mov_b32 v%d, 0" % vSTAMP)
        self.stamp("start")
        if self.opt.get("dbgtime", 0):
            a("s_memtime s[98:99]")
            a("s_waitcnt lgkmcnt(0)")
        self.ssm_d_load()

    def tr_addresses(self):
        a = self.a
        a("v_bfe_u32 v26, v%d, 2, 2" % vL)
        a("v_and_b32 v27, 3, v%d" % vL)
        a("v_bfe_u32 v28, v%d, 4, 1" % vL)
        a("v_lshlrev_b32 v27, 3, v27")
        a("v_lshl_add_u32 v27, v28, 5, v27")
        a("v_lshl_add_u32 v28, v%d, 2, v26" % vHH)
        a("v_lshl_add_u32 v%d, v28, 6, v27" % vWP)
        a("v_lshl_add_u32 v28, v%d, 3, v26" % vHH)
        a("v_lshl_add_u32 v%d, v28, 6, v27" % vWN)

    def loader_setup(self):
        a = self.a
        a.label("L_loader")
        a("v_lshrrev_b32 v26, 2, v%d" % vL)
        a("v_and_b32 v27, 3, v%d" % vL)
        a("v_lshlrev_b32 v27, 4, v27")
        a("v_lshl_add_u32 v%d, v26, 10, v27" % vW64)
        a("v_lshrrev_b32 v26, 3, v%d" % vL)
        a("v_and_b32 v27, 7, v%d" % vL)
        a("v_lshrrev_b32 v28, 4, v%d" % vL)
        a("v_xor_b32 v27, v27, v28")
        a("v_lshlrev_b32 v27, 4, v27")
        a("v_lshl_add_u32 v%d, v26, 10, v27" % vQE)
        a("v_xor_b32 v%d, 64, v%d" % (vQE + 1, vQE))
        a("s_lshl_b32 s%d, s%d, 14" % (sCc, sW))
        a("s_lshl_b32 s%d, s%d, 15" % (sD, sT))
        a("s_lshl_b32 s%d, s%d, 9" % (sA, sKH))
        a("s_add_u32 s%d, s%d, s%d" % (sD, sD, sA))
        self.w64_bases(sW2L, sW2G)

    def feat0(self, dst, spanel, shift):
        a = self.a
        if self.opt.get("remap", 0):
            a("s_lshl_b32 s%d, s%d, %d" % (dst, sC, 5 + shift))
            a("s_lshl_b32 s%d, s%d, %d" % (sSO, spanel, 8 + shift))
        else:
            a("s_lshl_b32 s%d, s%d, %d" % (dst, sC, 6 + shift))
            a("s_lshl_b32 s%d, s%d, %d" % (sSO, spanel, 5 + shift))
        a("s_add_u32 s%d, s%d, s%d" % (dst, dst, sSO))

    def w64_bases(self, sl, sg):
        a = self.a
        a("s_lshl_b32 s%d, s%d, 15" % (sl, sTH))
        a("s_lshl_b32 s%d, s%d, 14" % (sA, sKH))
        a("s_add_u32 s%d, s%d, s%d" % (sl, sl, sA))
        a("s_add_u32 s%d, s%d, %d" % (sl, sl, LW))
        a("s_lshl_b32 s%d, s%d, 18" % (sg, sKH))
        self.feat0(sA, sTH, 1)
        a("s_add_u32 s%d, s%d, s%d" % (sg, sg, sA))

    def s1_stage_items(self, st):
        items = []

        def head():
            a = self.a
            a("s_add_u32 s%d, s%d, %d" % (sB, sROT, st))
            a("s_and_b32 s%d, s%d, 3" % (sB, sB))
            a("s_lshl_b32 s%d, s%d, 7" % (sQG, sB))
            a("s_add_u32 s%d, s%d, s%d" % (sQG, sQG, sD))
            a("s_lshl_b32 s%d, s%d, 16" % (sWG, sB))
            a("s_add_u32 s%d, s%d, s%d" % (sWG, sWG, sW2G))
        for j in range(4):
            def f(j=j):
                if j == 0:
                    head()
                self.dma_item(S_Q, vQE + (j & 1), sCc, LQ + st * 4096 + j * 1024, sQG, j * 8192, "s1_%d" % st)()
            items.append(f)
        for i in range(4):
            items.append(self.dma_item(S_W1, vW64, sW2L, (4 * st + i) * 1024, sWG, i * 16384, "s1_%d" % st))
        return items

    def touch(self, srd, lanes, sidx, dst):
        a = self.a
        a("s_mul_i32 s%d, s%d, %d" % (sA, sidx, lanes))
        a("v_add_u32 v26, s%d, v%d" % (sA, vL))
        a("v_lshlrev_b32 v26, 7, v26")
        a("v_mov_b32 v27, 0x%x" % OOB)
        a("v_cmp_gt_u32 vcc, %d, v%d" % (lanes, vL))
        a("v_cndmask_b32 v26, v27, v26, vcc")
        a.vmem("buffer_load_dword v%d, v26, %s, 0 offen" % (dst, sr(srd, 4)), "touch")

    def touch_w2(self):
        a = self.a
        if self.opt.get("touch", 1):
            a("s_lshr_b32 s%d, s2, 3" % sE)
            a("s_lshl_b32 s%d, s%d, 2" % (sE, sE))
            a("s_add_u32 s%d, s%d, s%d" % (sE, sE, sW))
            self.touch(S_W2, 32, sE, 53)

    def touch_chip(self, which):
        a = self.a
        srd, lanes, dst = {"w2": (S_W2, 4, 160), "ssm": (S_SSM, 16, 161), "w3": (S_W3, 14, 163), "w4": (S_W4, 14, 162)}[which]
        if not self.opt.get("t" + which, 1):
            return
        a("s_lshl_b32 s%d, s2, 2" % sE)
        a("s_add_u32 s%d, s%d, s%d" % (sE, sE, sW))
        self.touch(srd, lanes, sE, dst)

    def touch_code(self):
        a = self.a
        if not self.opt.get("tcode", 1):
            return
        a("s_getpc_b64 s[96:97]")
        a.label("L_pc")
        a("s_sub_u32 s96, s96, L_pc-%s_kernel" % NAME)
        a("s_subb_u32 s97, s97, 0")
        a("s_lshr_b32 s%d, s2, 3" % sE)
        a("s_lshl_b32 s%d, s%d, 2" % (sE, sE))
        a("s_add_u32 s%d, s%d, s%d" % (sE, sE, sW))
        a("s_mul_i32 s%d, s%d, 3" % (sE, sE))
        a("v_min_u32 v26, 2, v%d" % vL)
        a("v_add_u32 v26, s%d, v26" % sE)
        a("v_min_u32 v26, (L_codeend-%s_kernel)/128-1, v26" % NAME)
        a("v_lshlrev_b32 v26, 7, v26")
        a("v_mov_b32 v135, s97")
        a("v_add_co_u32 v134, vcc, s96, v26")
        a("v_addc_co_u32 v135, vcc, 0, v135, vcc")
        a.vmem("global_load_dword v136, v[134:135], off", "touch")

    def cold_touches(self):
        a = self.a
        o = self.opt
        a("s_lshr_b32 s%d, s2, 3" % sE)
        a("s_lshl_b32 s%d, s%d, 2" % (sE, sE))
        a("s_add_u32 s%d, s%d, s%d" % (sE, sE, sW))
        if o.get("tq", 1):
            a("s_and_b32 s%d, s2, 7" % sF)
            a("s_lshl_b32 s%d, s%d, 7" % (sF, sF))
            a("s_add_u32 s%d, s%d, s%d" % (sF, sF, sE))
            self.touch(S_Q, 16, sF, 160)
            self.touch(S_W1, 32, sE, 161)

    def batch_a(self):
        a = self.a
        if self.opt.get("tkv", 1):
            self.touch_kv(157, 158)
        if self.opt.get("tw2", 1):
            a("s_lshr_b32 s%d, s2, 3" % sE)
            a("s_lshl_b32 s%d, s%d, 2" % (sE, sE))
            a("s_add_u32 s%d, s%d, s%d" % (sE, sE, sW))
            self.touch(S_W2, 32, sE, 159)
        if self.opt.get("bpos", 1) == 0:
            self.touch_chip("ssm")
            self.touch_chip("w3")

    def kv_dma(self):
        a = self.a
        a("v_lshrrev_b32 v26, 3, v%d" % vL)
        a("v_and_b32 v27, 7, v%d" % vL)
        a("v_lshlrev_b32 v27, 4, v27")
        a("v_lshl_add_u32 v137, v26, 10, v27")
        a("s_lshl_b32 s%d, s%d, 6" % (sA, sR))
        a("s_lshl_b32 s%d, s%d, 4" % (sB, sW))
        a("s_add_u32 s%d, s%d, s%d" % (sA, sA, sB))
        a("v_add_u32 v26, s%d, v26" % sA)
        a("s_lshl_b32 s%d, s%d, 10" % (sQG, sA))
        a("s_lshl_b32 s%d, s%d, 7" % (sB, sC))
        a("s_add_u32 s%d, s%d, s%d" % (sQG, sQG, sB))
        a("v_add_u32 v138, s%d, v137" % sQG)
        a("v_subrev_u32 v138, 3072, v138")
        a("v_mov_b32 v27, 0x%x" % OOB)
        a("v_cmp_gt_u32 vcc, 3, v26")
        a("v_cndmask_b32 v138, v138, v27, vcc")
        a("s_lshl_b32 s%d, s%d, 14" % (sWG, sW))
        a("s_add_u32 m0, s%d, %d" % (sWG, LKV))
        a.vmem("buffer_load_dwordx4 v138, %s, 0 offen lds" % sr(S_K, 4), "kv")
        for g in (1, 2):
            self.dma_item(S_K, 137, sWG, LKV + 1024 * g, sQG, 8192 * g - 3072, "kv")()
        for g in (0, 1):
            self.dma_item(S_V, 137, sWG, LKV + 3072 + 1024 * g, sQG, 8192 * g, "kv")()
        a("s_lshl_b32 s%d, s%d, 9" % (sB, sC))
        a("v_lshl_add_u32 v26, v%d, 4, s%d" % (vN31, sB))
        a.vmem("buffer_load_dwordx4 %s, v26, %s, 0 offen" % (vr(self.SHRAW, 4), sr(S_SHK, 4)), "kv")

    def p0_reads(self):
        a = self.a
        a.wait_vm("kv")
        a("s_lshl_b32 s%d, s%d, 14" % (sA, sW))
        a("v_lshlrev_b32 v26, 10, v%d" % vHH)
        a("v_lshl_add_u32 v26, v%d, 2, v26" % vN31)
        a("v_add_u32 v26, s%d, v26" % sA)
        a("v_add_u32 v26, %d, v26" % LKV)
        for i in range(11):
            a.lds("ds_read_b32 v%d, v26 offset:%d" % (self.KRAW + i, 128 * i), "p0")
        for i in range(8):
            a.lds("ds_read_b32 v%d, v26 offset:%d" % (self.VRAW + i, 3072 + 128 * i), "p0")

    def touch_kv(self, dk=54, dv=55):
        a = self.a
        for srd, rows, first, dst in ((S_K, 17, -3, dk), (S_V, 16, 0, dv)):
            a("s_lshl_b32 s%d, s%d, 6" % (sA, sR))
            a("s_mul_i32 s%d, s%d, %d" % (sB, sW, rows))
            a("s_add_u32 s%d, s%d, s%d" % (sA, sA, sB))
            a("s_add_i32 s%d, s%d, %d" % (sA, sA, first))
            a("v_add_u32 v26, s%d, v%d" % (sA, vL))
            a("v_lshlrev_b32 v26, 10, v26")
            a("s_lshl_b32 s%d, s%d, 7" % (sB, sC))
            a("v_add_u32 v26, s%d, v26" % sB)
            a("v_mov_b32 v27, 0x%x" % OOB)
            a("v_cmp_gt_u32 vcc, %d, v%d" % (rows, vL))
            a("v_cndmask_b32 v26, v27, v26, vcc")
            a.vmem("buffer_load_dword v%d, v26, %s, 0 offen" % (dst, sr(srd, 4)), "touch")

    def touch_w3_local(self):
        a = self.a
        if self.opt.get("tw3", 1):
            a("s_lshr_b32 s%d, s2, 3" % sE)
            a("s_lshl_b32 s%d, s%d, 2" % (sE, sE))
            a("s_add_u32 s%d, s%d, s%d" % (sE, sE, sW))
            self.touch(S_W3, 64, sE, 50)
            a("s_add_u32 s%d, s%d, 128" % (sE, sE))
            self.touch(S_W3, 64, sE, 51)

    def touch_w4_chip(self):
        a = self.a
        if self.opt.get("tw4", 1):
            a("s_lshl_b32 s%d, s2, 2" % sE)
            a("s_add_u32 s%d, s%d, s%d" % (sE, sE, sW))
            self.touch(S_W4, 14, sE, 52)

    def touch_w34(self):
        a = self.a
        if self.opt.get("touch", 1):
            a("s_lshl_b32 s%d, s2, 2" % sE)
            a("s_add_u32 s%d, s%d, s%d" % (sE, sE, sW))
            if self.opt.get("touchw3", 1):
                self.touch(S_W3, 14, sE, 223)
            if self.opt.get("touchw4", 1):
                self.touch(S_W4, 14, sE, 224)

    def touch_w4_local(self):
        a = self.a
        a("s_lshr_b32 s%d, s2, 3" % sE)
        a("s_lshl_b32 s%d, s%d, 2" % (sE, sE))
        a("s_add_u32 s%d, s%d, s%d" % (sE, sE, sW))
        self.touch(S_W4, 64, sE, 54)
        a("s_add_u32 s%d, s%d, 128" % (sE, sE))
        self.touch(S_W4, 64, sE, 55)

    KRAW, VRAW, SHRAW, POFF = 172, 183, 164, 138

    def p0_loads(self):
        a = self.a
        o = self.POFF
        a("s_lshl_b32 s%d, s%d, 6" % (sA, sR))
        a("s_lshl_b32 s%d, s%d, 4" % (sB, sW))
        a("s_add_u32 s%d, s%d, s%d" % (sA, sA, sB))
        a("v_lshl_add_u32 v26, v%d, 3, s%d" % (vHH, sA))
        a("s_lshl_b32 s%d, s%d, 7" % (sB, sC))
        a("v_lshl_add_u32 v27, v%d, 2, s%d" % (vN31, sB))
        a("v_lshl_add_u32 v%d, v26, 10, v27" % (o + 3))
        a("v_add_u32 v%d, 0x1000, v%d" % (o + 4, o + 3))
        a("v_mov_b32 v28, 0x%x" % OOB)
        for i in range(3):
            a("v_subrev_u32 v%d, %d, v%d" % (o + i, (3 - i) * 1024, o + 3))
            a("v_cmp_gt_u32 vcc, %d, v26" % (3 - i))
            a("v_cndmask_b32 v%d, v%d, v28, vcc" % (o + i, o + i))
        a("s_lshl_b32 s%d, s%d, 9" % (sB, sC))
        a("v_lshl_add_u32 v%d, v%d, 4, s%d" % (o + 5, vN31, sB))

        def item(text):
            return lambda: a.vmem(text, "p0")
        for i in range(3):
            self.fq.append(item("buffer_load_dword v%d, v%d, %s, 0 offen" % (self.KRAW + i, o + i, sr(S_K, 4))))
        for i in range(8):
            self.fq.append(item("buffer_load_dword v%d, v%d, %s, 0 offen offset:%d"
                                % (self.KRAW + 3 + i, o + 3 + i // 4, sr(S_K, 4), (i % 4) * 1024)))
        for i in range(8):
            self.fq.append(item("buffer_load_dword v%d, v%d, %s, 0 offen offset:%d"
                                % (self.VRAW + i, o + 3 + i // 4, sr(S_V, 4), (i % 4) * 1024)))
        self.fq.append(item("buffer_load_dwordx4 %s, v%d, %s, 0 offen" % (vr(self.SHRAW, 4), o + 5, sr(S_SHK, 4))))

    ACK, ACS, ACC_CS = 32, 48, 64
    BF, AK, AS, AC = 80, 96, 104, 112
    SUM, ONE4 = 120, 124

    def s1_setup(self):
        a = self.a
        a("v_bfe_u32 v26, v%d, 1, 3" % vN31)
        a("v_xor_b32 v26, v26, v%d" % vHH)
        a("v_lshlrev_b32 v26, 4, v26")
        a("v_lshl_add_u32 v26, v%d, 7, v26" % vN31)
        a("s_lshl_b32 s%d, s%d, 14" % (sA, sW))
        a("v_add_u32 v128, s%d, v26" % sA)
        for i in range(1, 4):
            a("v_xor_b32 v%d, %d, v128" % (128 + i, 32 * i))
        a("s_lshl_b32 s%d, s%d, 14" % (sA, sKH))
        a("s_add_u32 s%d, s%d, %d" % (sA, sA, LW))
        a("s_lshl_b32 s%d, s%d, 15" % (sB, sKH))
        a("s_add_u32 s%d, s%d, s%d" % (sE, sA, sB))
        a("v_add_u32 v134, s%d, v%d" % (sE, vWN))
        a("s_xor_b32 s%d, s%d, 0x8000" % (sB, sB))
        a("s_add_u32 s%d, s%d, s%d" % (sE, sA, sB))
        a("v_add_u32 v135, s%d, v%d" % (sE, vWN))
        a("s_xor_b32 s%d, s%d, s%d" % (sB, sKH, sTH))
        a("s_lshl_b32 s%d, s%d, 15" % (sB, sB))
        a("s_add_u32 s%d, s%d, s%d" % (sE, sA, sB))
        a("v_add_u32 v136, s%d, v%d" % (sE, vWN))

    def s1_main(self, after_stage):
        a = self.a
        ACK, ACS, ACC_CS, BF, AK, AS, AC, SUM, ONE4 = (self.ACK, self.ACS, self.ACC_CS, self.BF, self.AK, self.AS,
                                                       self.AC, self.SUM, self.ONE4)
        self.selector(ONE4)
        for i in range(4):
            a("v_mov_b32 v%d, 0" % (SUM + i))

        def aread(ks, which):
            base, addr = ((AK, 134), (AS, 135), (AC, 136))[which]
            for hf in range(2):
                a.lds("ds_read_b64_tr_b16 %s, v%d offset:%d"
                      % (vr(base + 4 * (ks & 1) + 2 * hf, 2), addr, ks * 1024 + hf * 256), "f%d_%d" % (ks, which))

        for st in range(4):
            if st < 3:
                after_stage(st)
            for q4 in range(4):
                a.lds("ds_read_b128 %s, v%d offset:%d" % (vr(BF + 4 * q4, 4), 128 + q4, LQ + st * 4096), "b")
            for which in range(3):
                aread(4 * st, which)
            self.fill(1)
            a.wait_lg("b")
            for j in range(16):
                a("v_dot2c_f32_bf16 v%d, s%d, v%d" % (SUM + (j & 1), sONES, BF + j))
                a("v_dot2c_f32_bf16 v%d, v%d, v%d" % (SUM + 2 + (j & 1), BF + j, BF + j))
                if j in (5, 11):
                    self.fill(1)
            for q4 in range(4):
                ks = 4 * st + q4
                b = ks & 1
                B = vr(BF + 4 * q4, 4)
                first = ks == 0
                a.wait_lg("f%d_0" % ks)
                a("%s %s, %s, %s, %s" % (MF32, vr(ACK, 16), vr(AK + 4 * b, 4), B, "0" if first else vr(ACK, 16)))
                if q4 < 3:
                    aread(ks + 1, 0)
                self.fill(1)
                a.wait_lg("f%d_1" % ks)
                a("%s %s, %s, %s, %s" % (MF32, vr(ACS, 16), vr(AS + 4 * b, 4), B, "0" if first else vr(ACS, 16)))
                if q4 < 3:
                    aread(ks + 1, 1)
                self.fill(1)
                a.wait_lg("f%d_2" % ks)
                a("%s %s, %s, %s, %s" % (MF16, vr(ACC_CS, 4), vr(AC + 4 * b, 4), vr(ONE4, 4),
                                         "0" if first else vr(ACC_CS, 4)))
                if q4 < 3:
                    aread(ks + 1, 2)
            self.stamp("s1st%d" % st)
        self.fill_all()

    def selector(self, dst):
        a = self.a
        a("v_lshrrev_b32 v26, 4, v%d" % vL)
        a("v_xor_b32 v26, v26, v%d" % vL)
        a("v_and_b32 v26, 1, v26")
        a("v_mov_b32 v27, s%d" % sONES)
        a("v_cmp_eq_u32 vcc, 0, v26")
        a("v_cndmask_b32 v%d, 0, v27, vcc" % dst)
        for i in range(1, 4):
            a("v_mov_b32 v%d, v%d" % (dst + i, dst))

    def colsum_write(self, src, sbase):
        a = self.a
        a("v_and_b32 v28, 1, v%d" % vL)
        a("v_lshlrev_b32 v28, 6, v28")
        a("v_lshrrev_b32 v29, 4, v%d" % vL)
        a("v_lshl_add_u32 v28, v29, 4, v28")
        a("v_add_u32 v28, s%d, v28" % sbase)
        self.hold += 1
        a("s_mov_b32 exec_lo, 0x30003")
        a("s_mov_b32 exec_hi, 0x30003")
        a.lds("ds_write_b128 v28, %s" % vr(src, 4))
        a("s_mov_b64 exec, -1")
        self.hold -= 1

    def q_tile_read(self):
        a = self.a
        self.feat0(sE, sKH, 0)
        a("s_lshr_b32 s%d, s%d, 8" % (sA, sE))
        a("s_lshl_b32 s%d, s%d, 1" % (sB, sTH))
        a("s_add_u32 s%d, s%d, s%d" % (sA, sA, sB))
        a("s_lshl_b32 s%d, s%d, 14" % (sA, sA))
        a("s_lshr_b32 s%d, s%d, 6" % (sB, sE))
        a("s_sub_u32 s%d, s%d, s%d" % (sB, sB, sROT))
        a("s_and_b32 s%d, s%d, 3" % (sB, sB))
        a("s_lshl_b32 s%d, s%d, 12" % (sB, sB))
        a("s_add_u32 s%d, s%d, s%d" % (sA, sA, sB))
        a("s_bfe_u32 s%d, s%d, 0x10005" % (sB, sE))
        a("s_lshl_b32 s%d, s%d, 2" % (sB, sB))
        a("v_bfe_u32 v26, v%d, 1, 3" % vN31)
        a("v_xor_b32 v26, s%d, v26" % sB)
        a("v_lshlrev_b32 v27, 7, v%d" % vN31)
        a("v_lshl_add_u32 v27, v%d, 3, v27" % vHH)
        a("v_add_u32 v27, s%d, v27" % sA)
        for j in range(4):
            a("v_xor_b32 v28, %d, v26" % j)
            a("v_lshl_add_u32 v28, v28, 4, v27")
            a.lds("ds_read_b64 %s, v28 offset:%d" % (vr(vQ + 2 * j, 2), LQ), "qt")

    def gelu(self, X, n, vA13, vIA, T, out, fills=0):
        a = self.a
        for g0 in range(0, n // 2, 4):
            ps = list(range(g0, min(g0 + 4, n // 2)))
            t = lambda p: T + 4 * (p - g0)
            x = lambda p: vr(X + 2 * p, 2)
            left = fills

            def hook():
                nonlocal left
                if left > 0:
                    self.fill(1)
                    left -= 1
            for p in ps:
                a("v_pk_mul_f32 %s, %s, %s" % (vr(t(p), 2), x(p), x(p)))
            for p in ps:
                a("v_pk_fma_f32 %s, %s, %s, %s op_sel:[0,1,0] op_sel_hi:[1,1,0]"
                  % (vr(t(p), 2), vr(t(p), 2), vr(vA13, 2), vr(vA13, 2)))
            hook()
            for p in ps:
                a("v_pk_mul_f32 %s, %s, %s" % (vr(t(p), 2), vr(t(p), 2), x(p)))
            for p in ps:
                a("v_exp_f32 v%d, v%d" % (t(p) + 2, t(p)))
                a("v_exp_f32 v%d, v%d" % (t(p) + 3, t(p) + 1))
            hook()
            for p in ps:
                a("v_pk_fma_f32 %s, %s, %s, %s op_sel_hi:[1,0,0]"
                  % (vr(t(p), 2), vr(t(p) + 2, 2), vr(vIA, 2), vr(vIA, 2)))
            hook()
            for p in ps:
                a("v_rcp_f32 v%d, v%d" % (t(p) + 2, t(p)))
                a("v_rcp_f32 v%d, v%d" % (t(p) + 3, t(p) + 1))
            hook()
            for p in ps:
                a("v_pk_mul_f32 %s, %s, %s" % (vr(t(p), 2), vr(t(p) + 2, 2), x(p)))
            for p in ps:
                a("v_cvt_pk_bf16_f32 v%d, v%d, v%d" % (out + p, t(p), t(p) + 1))

    def gelu_consts(self, vA, dst):
        a = self.a
        a("v_mul_f32 v%d, s%d, v%d" % (dst, sKG1, vA))
        a("v_mul_f32 v%d, v%d, v%d" % (dst + 1, vA, vA))
        a("v_mul_f32 v%d, v%d, v%d" % (dst + 1, dst + 1, vA))
        a("v_mul_f32 v%d, s%d, v%d" % (dst + 1, sKG3, dst + 1))
        a("v_rcp_f32 v%d, v%d" % (dst + 2, vA))

    def exchange_write(self, send, base=LRED):
        a = self.a
        a("s_lshl_b32 s%d, s%d, 12" % (sA, sW))
        a("s_add_u32 s%d, s%d, %d" % (sA, sA, base))
        a("v_add_u32 v26, s%d, v%d" % (sA, vL16))
        for j in range(4):
            a.lds("ds_write_b128 v26, %s offset:%d" % (vr(send + 4 * j, 4), 1024 * j))

    def exchange_read(self, dst, base=LRED):
        a = self.a
        a("s_xor_b32 s%d, s%d, 1" % (sA, sW))
        a("s_lshl_b32 s%d, s%d, 12" % (sA, sA))
        a("s_add_u32 s%d, s%d, %d" % (sA, sA, base))
        a("v_add_u32 v26, s%d, v%d" % (sA, vL16))
        for j in range(4):
            a.lds("ds_read_b128 %s, v26 offset:%d" % (vr(dst + 4 * j, 4), 1024 * j), "xr")

    def s1_epilogue(self, after_exchange):
        a = self.a
        ACK, ACS, ACC_CS, SUM = self.ACK, self.ACS, self.ACC_CS, self.SUM
        self.q_tile_read()
        a("v_add_f32 v%d, v%d, v%d" % (SUM, SUM, SUM + 1))
        a("v_add_f32 v%d, v%d, v%d" % (SUM + 2, SUM + 2, SUM + 3))
        a("v_permlane32_swap_b32 v%d, v%d" % (SUM, SUM + 2))
        a("v_add_f32 v%d, v%d, v%d" % (SUM, SUM, SUM + 2))
        a("s_lshl_b32 s%d, s%d, 8" % (sA, sW))
        a("s_add_u32 s%d, s%d, %d" % (sA, sA, LSTX))
        a("v_lshl_add_u32 v27, v%d, 2, s%d" % (vL, sA))
        a.lds("ds_write_b32 v27, v%d" % SUM)
        self.exchange_write(ACS)
        a("s_xor_b32 s%d, s%d, s%d" % (sA, sKH, sTH))
        a("s_lshl_b32 s%d, s%d, 8" % (sA, sA))
        a("s_lshl_b32 s%d, s%d, 7" % (sB, sKH))
        a("s_add_u32 s%d, s%d, s%d" % (sA, sA, sB))
        a("s_add_u32 s%d, s%d, %d" % (sA, sA, LCSX))
        self.colsum_write(ACC_CS, sA)
        a.wait_lg_all()
        self.ssm_d_unpack()
        self.barrier()
        P, C0, C1 = 80, 96, 128
        self.exchange_read(P)
        a("s_xor_b32 s%d, s%d, 1" % (sA, sW))
        a("s_lshl_b32 s%d, s%d, 8" % (sA, sA))
        a("s_add_u32 s%d, s%d, %d" % (sA, sA, LSTX))
        a("v_lshl_add_u32 v27, v%d, 2, s%d" % (vL, sA))
        a.lds("ds_read_b32 v%d, v27" % (SUM + 1), "sx")
        a("s_lshl_b32 s%d, s%d, 8" % (sA, sKH))
        a("s_add_u32 s%d, s%d, %d" % (sA, sA, LCSX))
        a("v_lshl_add_u32 v28, v%d, 4, s%d" % (vHH, sA))
        for j in range(4):
            a.lds("ds_read_b128 %s, v28 offset:%d" % (vr(C0 + 4 * j, 4), 32 * j))
            a.lds("ds_read_b128 %s, v28 offset:%d" % (vr(C1 + 4 * j, 4), 128 + 32 * j))
        after_exchange()
        a.wait_lg("sx")
        a("v_add_f32 v%d, v%d, v%d" % (SUM, SUM, SUM + 1))
        a("v_mov_b32 v%d, v%d" % (SUM + 2, SUM))
        a("v_permlane32_swap_b32 v%d, v%d" % (SUM, SUM + 2))
        a("v_mul_f32 v%d, s%d, v%d" % (vMEAN, s512I, SUM))
        a("v_mul_f32 v26, s%d, v%d" % (s512I, SUM + 2))
        a("v_fma_f32 v26, -v%d, v%d, v26" % (vMEAN, vMEAN))
        a("v_max_f32 v26, 0, v26")
        a("v_add_f32 v27, s%d, v26" % sEPS)
        a("v_rsq_f32 v%d, v27" % vR1)
        a("v_mul_f32 v27, v%d, v%d" % (vR1, vR1))
        a("v_fma_f32 v27, v27, v26, s%d" % sEPS)
        a("v_rsq_f32 v27, v27")
        a("v_mul_f32 v27, v27, v%d" % vR1)
        G = 112
        self.gelu_consts(27, G)
        a("v_sub_f32 v%d, 0, v%d" % (G + 4, vMEAN))
        a.wait_lg_all()
        for p in range(8):
            a("v_pk_add_f32 %s, %s, %s" % (vr(C0 + 2 * p, 2), vr(C0 + 2 * p, 2), vr(C1 + 2 * p, 2)))
            a("v_pk_add_f32 %s, %s, %s" % (vr(ACK + 2 * p, 2), vr(ACK + 2 * p, 2), vr(P + 2 * p, 2)))
        for p in range(8):
            a("v_pk_fma_f32 %s, %s, %s, %s op_sel_hi:[1,0,1]"
              % (vr(ACK + 2 * p, 2), vr(C0 + 2 * p, 2), vr(G + 4, 2), vr(ACK + 2 * p, 2)))
        self.gelu(ACK, 16, G, G + 2, 144, 48, fills=0)
        self.frag_store(48, WS_HS, "hst")

    def frag_store(self, src, base, tag):
        a = self.a
        a("s_lshl_b32 s%d, s%d, 15" % (sA, sT))
        self.feat0(sB, sKH, 6)
        a("s_add_u32 s%d, s%d, s%d" % (sA, sA, sB))
        a("s_add_u32 s%d, s%d, 0x%x" % (sA, sA, base))
        a.vmem("buffer_store_dwordx4 %s, v%d, %s, s%d offen sc1" % (vr(src, 4), vL16, sr(S_WS, 4), sA), tag)
        a.vmem("buffer_store_dwordx4 %s, v%d, %s, s%d offen offset:1024 sc1"
               % (vr(src + 4, 4), vL16, sr(S_WS, 4), sA), tag)

    PK = 118

    def nonce_compute(self):
        a = self.a
        a.wait_vm("nonce")
        a("v_readfirstlane_b32 s%d, v30" % sN)
        a("s_mul_i32 s%d, s%d, 0x9e3779b1" % (sN, sN))
        a("s_add_u32 s%d, s%d, 0x7f4a7c15" % (sN, sN))

    def p0_compute(self, mid=None):
        a = self.a
        K, V, SH, KV, PK = 56, 78, 94, 102, self.PK
        self.p0_reads()
        a.wait_lg_all()
        d = self.SHRAW
        for j, (x, y, hi) in enumerate([(d, d + 2, 0), (d, d + 2, 1), (d + 1, d + 3, 0), (d + 1, d + 3, 1)]):
            for o, src in ((0, x), (1, y)):
                if hi:
                    a("v_and_b32 v%d, s%d, v%d" % (SH + 2 * j + o, sHI, src))
                else:
                    a("v_lshlrev_b32 v%d, 16, v%d" % (SH + 2 * j + o, src))
        for i in range(11):
            a("v_lshlrev_b32 v%d, 16, v%d" % (K + 2 * i, self.KRAW + i))
            a("v_and_b32 v%d, s%d, v%d" % (K + 2 * i + 1, sHI, self.KRAW + i))
            if i % 4 == 3:
                self.fill(1)
        for i in range(8):
            a("v_lshlrev_b32 v%d, 16, v%d" % (V + 2 * i, self.VRAW + i))
            a("v_and_b32 v%d, s%d, v%d" % (V + 2 * i + 1, sHI, self.VRAW + i))
        self.fill(1)
        for t in range(8):
            a("v_pk_mul_f32 %s, %s, %s" % (vr(KV + 2 * t, 2), vr(K + 2 * (t + 3), 2), vr(SH, 2)))
        self.fill(1)
        for j in range(1, 4):
            for t in range(8):
                a("v_pk_fma_f32 %s, %s, %s, %s" % (vr(KV + 2 * t, 2), vr(K + 2 * (t + 3 - j), 2), vr(SH + 2 * j, 2),
                                                   vr(KV + 2 * t, 2)))
            self.fill(1)
        if mid:
            mid()
            self.fill(4)
        for t in range(8):
            a("v_pk_mul_f32 %s, %s, %s" % (vr(KV + 2 * t, 2), vr(KV + 2 * t, 2), vr(V + 2 * t, 2)))
        self.fill(1)
        for c in range(2):
            for t in range(4):
                a("v_cvt_pk_bf16_f32 v%d, v%d, v%d" % (PK + 4 * c + t, KV + 4 * t + c, KV + 4 * t + 2 + c))
        a("s_lshl_b32 s%d, s%d, 1" % (sA, sW))
        a("v_add_u32 v26, s%d, v%d" % (sA, vHH))
        a("v_and_b32 v27, 7, v%d" % vN31)
        a("v_xor_b32 v26, v26, v27")
        a("v_lshlrev_b32 v26, 4, v26")
        a("v_lshl_add_u32 v26, v%d, 8, v26" % vN31)
        a("v_add_u32 v26, %d, v26" % LSTG)
        a.lds("ds_write_b128 v26, %s" % vr(PK, 4))
        a.lds("ds_write_b128 v26, %s offset:128" % vr(PK + 4, 4))
        self.fill_all()

    def p0_readback(self):
        a = self.a
        PK = 144
        a("v_lshrrev_b32 v26, 3, v%d" % vL)
        a("s_lshl_b32 s%d, s%d, 4" % (sA, sW))
        a("v_add_u32 v26, s%d, v26" % sA)
        a("v_and_b32 v27, 7, v%d" % vL)
        for i in range(2):
            a("v_add_u32 v28, %d, v26" % (8 * i))
            a("v_bfe_u32 v29, v28, 1, 3")
            a("v_xor_b32 v29, v29, v27")
            a("v_lshlrev_b32 v29, 4, v29")
            a("v_lshl_add_u32 v29, v28, 7, v29")
            a("v_add_u32 v29, %d, v29" % LSTG)
            a.lds("ds_read_b128 %s, v29" % vr(PK + 4 * i, 4), "pk")
        a("v_lshlrev_b32 v27, 4, v27")
        a("v_lshl_add_u32 v152, v26, 12, v27")

    def p0_store(self):
        a = self.a
        PK = 144
        a("s_lshl_b32 s%d, s%d, 18" % (sA, sC))
        a("s_lshl_b32 s%d, s%d, 7" % (sB, sR))
        a("s_add_u32 s%d, s%d, s%d" % (sA, sA, sB))
        a("s_add_u32 s%d, s%d, 0x%x" % (sA, sA, WS_KVT))
        a("s_add_u32 s%d, s%d, 0x8000" % (sB, sA))
        a.wait_lg("pk")
        a.vmem("buffer_store_dwordx4 %s, v152, %s, s%d offen sc1" % (vr(PK, 4), sr(S_WS, 4), sA), "kvt")
        a.vmem("buffer_store_dwordx4 %s, v152, %s, s%d offen sc1" % (vr(PK + 4, 4), sr(S_WS, 4), sB), "kvt")

    def conv_filter_loads(self, ch):
        a = self.a
        a("v_lshlrev_b32 v26, 4, v%d" % vTID)
        a("v_subrev_u32 v27, 8, v26")
        a("v_mov_b32 v28, 0x%x" % OOB)
        a("v_cmp_eq_u32 vcc, 0, v%d" % vTID)
        a("v_cndmask_b32 v27, v27, v28, vcc")
        a("s_lshl_b32 s%d, s2, 13" % sA)
        if ch:
            a("s_add_u32 s%d, s%d, 0x1000" % (sA, sA))
        dA, dP = vr(vCH, 4), vr(vCH + 4, 2)
        a.vmem("buffer_load_dwordx4 %s, v26, %s, s%d offen" % (dA, sr(S_SSM, 4), sA), "cf")
        a.vmem("buffer_load_dwordx2 %s, v27, %s, s%d offen" % (dP, sr(S_SSM, 4), sA), "cf")

    def ssm_d_load(self):
        a = self.a
        a("s_lshl_b32 s%d, s2, 2" % sA)
        a("s_load_dword s%d, %s, s%d" % (sD0, sr(S_DPTR, 2), sA))

    def ssm_d_unpack(self):
        a = self.a
        a("s_and_b32 s%d, s%d, s%d" % (sD1, sD0, sHI))
        a("s_lshl_b32 s%d, s%d, 16" % (sD0, sD0))

    def conv_x_loads(self, ch):
        a = self.a
        a("v_lshlrev_b32 v26, 4, v%d" % vTID)
        a("s_lshl_b32 s%d, s2, 13" % sA)
        a("s_add_u32 s%d, s%d, 0x%x" % (sA, sA, WS_KVT + 0x1000 * ch))
        a.vmem("buffer_load_dwordx4 %s, v26, %s, s%d offen sc1" % (vr(vCH + 6, 4), sr(S_WS, 4), sA), "cx")

    def conv_prep_filter(self, ch):
        a = self.a
        base = CV_BASE1 if ch else CV_BASE
        A, P = vCH, vCH + 4
        a.wait_vm("cf")
        a("v_min_u32 v26, 79, v%d" % vTID)
        a("v_subrev_u32 v27, 72, v26")
        a("v_lshrrev_b32 v28, 1, v27")
        a("v_mul_u32_u24 v28, 4128, v28")
        a("v_and_b32 v27, 1, v27")
        a("v_lshl_add_u32 v28, v27, 4, v28")
        a("v_add_u32 v28, %d, v28" % (base + CV_A))
        a("v_lshlrev_b32 v27, 4, v26")
        a("v_add_u32 v27, %d, v27" % (base + CV_X))
        a("v_cmp_gt_u32 vcc, 72, v26")
        a("v_cndmask_b32 v28, v28, v27, vcc")
        for i in range(4):
            a("v_mov_b32 v%d, 0" % (32 + i))
        a.lds("ds_write_b128 v28, %s" % vr(32, 4))
        Z, Y, W = 36, 40, 44
        seq = [P, P + 1, A, A + 1, A + 2, A + 3]
        for j in range(4):
            a("v_alignbit_b32 v%d, v%d, v%d, 16" % (Z + j, seq[j + 1], seq[j]))
            a("v_alignbit_b32 v%d, v%d, v%d, 16" % (Y + j, seq[j + 2], seq[j + 1]))
            a("v_mov_b32 v%d, v%d" % (W + j, seq[j + 1]))
        a("v_lshlrev_b32 v29, 4, v%d" % vTID)
        a("v_add_u32 v29, %d, v29" % base)
        for rho, src in ((0, A), (1, Y), (2, W), (3, Z)):
            a.lds("ds_write_b128 v29, %s offset:%d" % (vr(src, 4), CV_A + 32 + 4128 * rho))
        a.wait_lg_all()

    def conv_x_write(self, ch):
        a = self.a
        base = CV_BASE1 if ch else CV_BASE
        a.wait_vm("cx")
        a("v_lshlrev_b32 v29, 4, v%d" % vTID)
        a("v_add_u32 v29, %d, v29" % base)
        a.lds("ds_write_b128 v29, %s offset:%d" % (vr(vCH + 6, 4), CV_XD))
        a.wait_lg_all()

    def conv_poly(self, ch):
        a = self.a
        base = CV_BASE1 if ch else CV_BASE
        a("s_lshl_b32 s%d, s%d, 5" % (sA, sW))
        a("s_sub_u32 s%d, %d, s%d" % (sA, base + CV_XD - 1024, sA))
        a("v_lshl_add_u32 v26, v%d, 3, s%d" % (vL, sA))
        for u in range(10):
            a.lds("ds_read_b64_tr_b16 %s, v26 offset:%d" % (vr(32 + 2 * u, 2), 512 * u), "u%d" % u)
        a("s_mul_i32 s%d, s%d, 5312" % (sA, sW))
        a("s_add_u32 s%d, s%d, %d" % (sA, sA, base + CV_P))
        a("v_and_b32 v27, 15, v%d" % vL)
        a("v_mul_u32_u24 v27, 328, v27")
        a("v_lshrrev_b32 v28, 4, v%d" % vL)
        a("v_lshl_add_u32 v27, v28, 3, v27")
        a("v_add_u32 v27, s%d, v27" % sA)
        for u in range(10):
            a.wait_lg("u%d" % u)
            a.lds("ds_write_b64 v27, %s offset:%d" % (vr(32 + 2 * u, 2), 32 * u))
        a.wait_lg_all()

    def conv_addr(self, ch):
        a = self.a
        base = CV_BASE1 if ch else CV_BASE
        a("s_lshl_b32 s%d, s%d, 3" % (sA, sW))
        a("s_sub_u32 s%d, %d, s%d" % (sA, base + CV_A + 32, sA))
        a("v_lshl_add_u32 v160, v%d, 3, s%d" % (vL, sA))
        a("s_mul_i32 s%d, s%d, 1312" % (sA, sW))
        a("s_add_u32 s%d, s%d, %d" % (sA, sA, base + CV_P + 32))
        a("v_bfe_u32 v26, v%d, 2, 2" % vL)
        a("v_mul_u32_u24 v26, 5312, v26")
        a("v_and_b32 v27, 3, v%d" % vL)
        a("v_lshrrev_b32 v28, 4, v%d" % vL)
        a("v_sub_u32 v27, v27, v28")
        a("v_lshl_add_u32 v26, v27, 3, v26")
        a("v_add_u32 v161, s%d, v26" % sA)

    CACC, CAF, CBF = 32, 64, 96

    def conv_main(self, hook=None, fill_every=0):
        a = self.a
        CACC, CAF, CBF = self.CACC, self.CAF, self.CBF

        def rd_list(rho):
            b = rho & 1
            out = []
            order = [("A", 0)] + [("B", c) for c in range(8)] + [("A", 1), ("A", 2), ("A", 3)]
            for kind, i in order:
                for hf in range(2):
                    if kind == "A":
                        out.append("ds_read_b64_tr_b16 %s, v160 offset:%d"
                                   % (vr(CAF + 16 * b + 4 * i + 2 * hf, 2), 4128 * rho + 1024 * i + 512 * hf))
                    else:
                        out.append("ds_read_b64_tr_b16 %s, v161 offset:%d"
                                   % (vr(CBF + 32 * b + 4 * i + 2 * hf, 2), 328 * rho + 32 * i + 32 * (1 - hf)))
            return out

        for x in rd_list(0):
            a.lds(x)
        a.wait_lg_all()
        cnt = 0
        for rho in range(4):
            if hook:
                hook(rho)
            b = rho & 1
            nxt = rd_list(rho + 1) if rho < 3 else []
            k = 0
            for q in range(4):
                for c in range(8 - 2 * q):
                    t = c + 2 * q
                    acc = vr(CACC + 4 * t, 4)
                    a("%s %s, %s, %s, %s" % (MF16, acc, vr(CAF + 16 * b + 4 * q, 4), vr(CBF + 32 * b + 4 * c, 4),
                                             "0" if (rho == 0 and q == 0) else acc))
                    for _ in range(2 if k < 8 else 1):
                        if nxt:
                            a.lds(nxt.pop(0))
                    k += 1
                    cnt += 1
                    if fill_every and cnt % fill_every == 0:
                        self.fill(1)
            assert not nxt
            a.wait_lg_all()

    def conv_finish(self, ch):
        a = self.a
        base = CV_BASE1 if ch else CV_BASE
        CACC = self.CACC
        self.barrier()
        a("s_lshl_b32 s%d, s%d, 11" % (sA, sW))
        a("s_add_u32 s%d, s%d, %d" % (sA, sA, base + CV_R))
        a("v_add_u32 v26, s%d, v%d" % (sA, vL16))
        for t in range(8):
            a.lds("ds_write_b128 v26, %s offset:%d" % (vr(CACC + 4 * t, 4), (t >> 1) * 8192 + (t & 1) * 1024))
        a("s_lshl_b32 s%d, s%d, 10" % (sA, sW))
        a("s_add_u32 s%d, s%d, %d" % (sA, sA, base + CV_XD))
        a("v_and_b32 v27, 15, v%d" % vL)
        a("v_lshlrev_b32 v27, 5, v27")
        a("v_lshrrev_b32 v28, 4, v%d" % vL)
        a("v_lshl_add_u32 v27, v28, 3, v27")
        a("v_add_u32 v27, s%d, v27" % sA)
        for u in range(2):
            a.lds("ds_read_b64 %s, v27 offset:%d" % (vr(100 + 2 * u, 2), 512 * u))
        a.wait_lg_all()
        self.barrier()
        a("s_lshl_b32 s%d, s%d, 13" % (sA, sW))
        a("s_add_u32 s%d, s%d, %d" % (sA, sA, base + CV_R))
        a("v_add_u32 v26, s%d, v%d" % (sA, vL16))
        for sl in range(4):
            for u in range(2):
                a.lds("ds_read_b128 %s, v26 offset:%d" % (vr(64 + 8 * sl + 4 * u, 4), sl * 2048 + u * 1024))
        for u in range(2):
            for j in range(2):
                a("v_lshlrev_b32 v%d, 16, v%d" % (104 + 4 * u + 2 * j, 100 + 2 * u + j))
                a("v_and_b32 v%d, s%d, v%d" % (105 + 4 * u + 2 * j, sHI, 100 + 2 * u + j))
        a("v_mov_b32 v112, s%d" % (sD1 if ch else sD0))
        a("v_lshrrev_b32 v26, 4, v%d" % vL)
        a("v_and_b32 v27, 1, v26")
        a("v_lshlrev_b32 v27, 9, v27")
        a("v_lshrrev_b32 v26, 1, v26")
        a("v_lshl_add_u32 v27, v26, 4, v27")
        a("v_and_b32 v26, 15, v%d" % vL)
        a("v_lshl_add_u32 v27, v26, 5, v27")
        a("s_lshl_b32 s%d, s%d, 10" % (sA, sW))
        a("v_add_u32 v27, s%d, v27" % sA)
        a("s_lshl_b32 s%d, s2, 13" % sA)
        a("s_add_u32 s%d, s%d, 0x%x" % (sA, sA, WS_YT + 0x1000 * ch))
        a.wait_lg_all()
        for p in range(4):
            a("v_pk_add_f32 %s, %s, %s" % (vr(64 + 2 * p, 2), vr(64 + 2 * p, 2), vr(72 + 2 * p, 2)))
            a("v_pk_add_f32 %s, %s, %s" % (vr(80 + 2 * p, 2), vr(80 + 2 * p, 2), vr(88 + 2 * p, 2)))
        for p in range(4):
            a("v_pk_add_f32 %s, %s, %s" % (vr(64 + 2 * p, 2), vr(64 + 2 * p, 2), vr(80 + 2 * p, 2)))
        for p in range(4):
            a("v_pk_fma_f32 %s, %s, %s, %s op_sel_hi:[1,0,1]" % (vr(64 + 2 * p, 2), vr(104 + 2 * p, 2), vr(112, 2),
                                                                vr(64 + 2 * p, 2)))
        for p in range(4):
            a("v_cvt_pk_bf16_f32 v%d, v%d, v%d" % (116 + p, 64 + 2 * p, 65 + 2 * p))
        a("v_permlane16_swap_b32 v116, v118")
        a("v_permlane16_swap_b32 v117, v119")
        a.vmem("buffer_store_dwordx4 %s, v27, %s, s%d offen sc1" % (vr(116, 4), sr(S_WS, 4), sA), "yt")

    def s2_load_items(self):
        a = self.a
        a("s_lshl_b32 s%d, s%d, 5" % (sA, sT))
        a("v_add_u32 v26, s%d, v%d" % (sA, vN31))
        a("s_add_u32 s%d, s%d, 1" % (sB, sKH))
        a("s_lshl_b32 s%d, s%d, 14" % (sA, sKH))
        a("s_add_u32 s%d, s%d, 0x%x" % (sA, sA, WS_HS))
        a("v_mov_b32 v29, 0x%x" % OOB)
        for i, op in enumerate(("v_subrev_u32", "v_add_u32")):
            a("%s v27, s%d, v26" % (op, sB))
            a("v_lshrrev_b32 v28, 5, v27")
            a("v_lshlrev_b32 v28, 15, v28")
            a("v_and_b32 v30, 31, v27")
            a("v_lshl_add_u32 v30, v%d, 5, v30" % vHH)
            a("v_lshl_add_u32 v28, v30, 4, v28")
            a("v_add_u32 v28, s%d, v28" % sA)
            a("v_cmp_gt_u32 vcc, 0x800, v27")
            a("v_cndmask_b32 v%d, v29, v28, vcc" % (140 + i))
        so = ["0", "s%d" % sK4, "s%d" % sK8, "s%d" % sK12]
        items = []
        for ks in range(16):
            def f(ks=ks):
                a.vmem("buffer_load_dwordx4 %s, v%d, %s, %s offen offset:%d sc1"
                       % (ar(4 * ks, 4), 140 + (ks >> 3), sr(S_WS, 4), so[ks >> 2], (ks & 3) * 1024), "h%d" % ks)
            items.append(f)
        return items

    def wpi_addr(self, vk, vs, base, khs, ps):
        a = self.a
        a("s_mul_i32 s%d, s%d, %d" % (sA, sKH, khs + ps))
        a("s_add_u32 s%d, s%d, %d" % (sA, sA, base))
        a("v_add_u32 v%d, s%d, v%d" % (vk, sA, vWP))
        a("s_mul_i32 s%d, s%d, %d" % (sA, sKH, khs - ps))
        a("s_add_u32 s%d, s%d, %d" % (sA, sA, base + ps))
        a("v_add_u32 v%d, s%d, v%d" % (vs, sA, vWP))

    def s2_main(self):
        a = self.a
        ACK, ACS, AK, AS = self.ACK, self.ACS, self.AK, self.AS

        def rd(ks, which):
            base, addr = ((AK, 128), (AS, 129))[which]
            for hf in range(2):
                a.lds("ds_read_b64_tr_b16 %s, v%d offset:%d" % (vr(base + 4 * (ks & 1) + 2 * hf, 2), addr,
                                                                ks * 1024 + hf * 512), "f%d_%d" % (ks, which))
        rd(0, 0)
        rd(0, 1)
        for ks in range(16):
            b = ks & 1
            a.wait_both("h%d" % ks, "f%d_0" % ks)
            a("%s %s, %s, %s, %s" % (MF32, vr(ACK, 16), vr(AK + 4 * b, 4), ar(4 * ks, 4), "0" if ks == 0 else vr(ACK, 16)))
            if ks < 15:
                rd(ks + 1, 0)
            self.fill(1)
            a.wait_lg("f%d_1" % ks)
            a("%s %s, %s, %s, %s" % (MF32, vr(ACS, 16), vr(AS + 4 * b, 4), ar(4 * ks, 4), "0" if ks == 0 else vr(ACS, 16)))
            if ks < 15:
                rd(ks + 1, 1)

    def unpack8(self, src, dst):
        a = self.a
        for j in range(8):
            a("v_lshlrev_b32 v%d, 16, v%d" % (dst + 2 * j, src + j))
            a("v_and_b32 v%d, s%d, v%d" % (dst + 2 * j + 1, sHI, src + j))

    def xn_tile(self, dst):
        a = self.a
        self.unpack8(vQ, dst)
        for p in range(8):
            a("v_pk_add_f32 %s, %s, %s op_sel_hi:[1,0] neg_lo:[0,1] neg_hi:[0,1]"
              % (vr(dst + 2 * p, 2), vr(dst + 2 * p, 2), vr(vMEAN, 2)))
        for p in range(8):
            a("v_pk_mul_f32 %s, %s, %s op_sel:[0,1] op_sel_hi:[1,1]"
              % (vr(dst + 2 * p, 2), vr(dst + 2 * p, 2), vr(vMEAN, 2)))

    def s2_epilogue(self, after_exchange):
        a = self.a
        ACK, ACS = self.ACK, self.ACS
        self.exchange_write(ACS)
        self.xn_tile(96)
        a.wait_lg_all()
        self.barrier()
        after_exchange()
        self.exchange_read(80)
        for p in range(8):
            a("v_pk_add_f32 %s, %s, %s" % (vr(ACK + 2 * p, 2), vr(ACK + 2 * p, 2), vr(96 + 2 * p, 2)))
        a.wait_lg_all()
        for p in range(8):
            a("v_pk_add_f32 %s, %s, %s" % (vr(ACK + 2 * p, 2), vr(ACK + 2 * p, 2), vr(80 + 2 * p, 2)))
        for p in range(8):
            a("v_cvt_pk_bf16_f32 v%d, v%d, v%d" % (vX1 + p, ACK + 2 * p, ACK + 2 * p + 1))
        self.frag_store(vX1, WS_X1, "x1st")
        a("v_pk_mul_f32 %s, %s, %s" % (vr(112, 2), vr(ACK, 2), vr(ACK, 2)))
        a("v_pk_add_f32 %s, %s, %s" % (vr(114, 2), vr(ACK, 2), vr(ACK + 2, 2)))
        for p in range(1, 8):
            a("v_pk_fma_f32 %s, %s, %s, %s" % (vr(112, 2), vr(ACK + 2 * p, 2), vr(ACK + 2 * p, 2), vr(112, 2)))
            if p >= 2:
                a("v_pk_add_f32 %s, %s, %s" % (vr(114, 2), vr(114, 2), vr(ACK + 2 * p, 2)))
        a("v_add_f32 v114, v114, v115")
        a("v_add_f32 v112, v112, v113")
        a("v_permlane32_swap_b32 v114, v112")
        a("v_add_f32 v114, v114, v112")
        a("s_lshl_b32 s%d, s%d, 1" % (sA, sC))
        a("s_add_u32 s%d, s%d, s%d" % (sA, sA, sKH))
        a("s_lshl_b32 s%d, s%d, 14" % (sA, sA))
        a("s_lshl_b32 s%d, s%d, 7" % (sB, sT))
        a("s_add_u32 s%d, s%d, s%d" % (sA, sA, sB))
        a("s_add_u32 s%d, s%d, 0x%x" % (sA, sA, WS_ST))
        a("v_lshlrev_b32 v26, 13, v%d" % vHH)
        a("v_lshl_add_u32 v26, v%d, 2, v26" % vN31)
        a.vmem("buffer_store_dword v114, v26, %s, s%d offen sc1" % (sr(S_WS, 4), sA), "x1st")

    def w3_setup(self):
        a = self.a
        a("s_movk_i32 s%d, 3584" % sB)
        a("v_lshrrev_b32 v26, 2, v%d" % vL)
        a("v_mul_lo_u32 v26, v26, s%d" % sB)
        a("v_and_b32 v27, 3, v%d" % vL)
        a("v_lshl_add_u32 v%d, v27, 4, v26" % vW3F)
        a("v_lshrrev_b32 v26, 1, v%d" % vL)
        a("v_mul_lo_u32 v26, v26, s%d" % sB)
        a("v_and_b32 v27, 1, v%d" % vL)
        a("v_lshl_add_u32 v%d, v27, 4, v26" % vW3H)
        a("s_mul_i32 s%d, s%d, %d" % (sW3HG, sW, 128 * 3584))
        a("s_mul_i32 s%d, s%d, 224" % (sA, sCP))
        a("s_add_u32 s%d, s%d, s%d" % (sW3HG, sW3HG, sA))
        a("s_and_b32 s%d, s%d, 1" % (sB, sCP))
        a("s_lshl_b32 s%d, s%d, 5" % (sW3G, sB))
        a("s_add_u32 s%d, s%d, s%d" % (sW3G, sW3G, sW3HG))
        a("s_xor_b32 s%d, s%d, 1" % (sB, sB))
        a("s_mul_i32 s%d, s%d, 192" % (sB, sB))
        a("s_add_u32 s%d, s%d, s%d" % (sW3HG, sW3HG, sB))
        a("s_lshl_b32 s%d, s%d, 13" % (sW3L, sW))
        a("s_lshl_b32 s%d, s%d, 12" % (sW3HL, sW))

    def w3_items(self, panels):
        out = []
        for p in panels:
            if p < 3:
                for i in range(8):
                    out.append(self.dma_item(S_W3, vW3F, sW3L, W3_P + p * 32768 + i * 1024, sW3G,
                                             p * 64 + i * 16 * 3584, "w3"))
            else:
                for i in range(4):
                    out.append(self.dma_item(S_W3, vW3H, sW3HL, W3_H + i * 1024, sW3HG, i * 32 * 3584, "w3"))
        return out

    def s3_load_items(self):
        a = self.a
        a("s_lshl_b32 s%d, s%d, 15" % (sLD, sT3))
        a("s_add_u32 s%d, s%d, 0x%x" % (sLD, sLD, WS_X1))
        items = []
        for ks in range(32):
            def f(ks=ks):
                if ks and ks % 4 == 0:
                    a("s_add_u32 s%d, s%d, 0x1000" % (sLD, sLD))
                a.vmem("buffer_load_dwordx4 %s, v%d, %s, s%d offen offset:%d sc1"
                       % (ar(4 * (ks % 16), 4), vL16, sr(S_WS, 4), sLD, (ks & 3) * 1024), "x%d" % ks)
            items.append(f)
        return items

    def s3_stat_items(self):
        a = self.a
        a("v_lshlrev_b32 v147, 13, v%d" % vHH)
        a("v_lshl_add_u32 v147, v%d, 2, v147" % vN31)
        items = []
        for sl in range(16):
            def f(sl=sl):
                a("s_lshl_b32 s%d, s%d, 7" % (sSO, sT3))
                a("s_add_u32 s%d, s%d, 0x%x" % (sSO, sSO, WS_ST + 0x4000 * sl))
                a.vmem("buffer_load_dword v%d, v147, %s, s%d offen sc1" % (vST + sl, sr(S_WS, 4), sSO), "st")
            items.append(f)
        return items

    def s3_addr(self):
        a = self.a
        a("v_add_u32 v144, %d, v%d" % (W3_P, vWP))
        a("v_add_u32 v145, %d, v%d" % (W3_P + 65536, vWP))
        a("v_bfe_u32 v26, v%d, 2, 2" % vL)
        a("v_lshl_add_u32 v26, v%d, 2, v26" % vHH)
        a("v_and_b32 v27, 3, v%d" % vL)
        a("v_lshlrev_b32 v27, 3, v27")
        a("v_lshl_add_u32 v26, v26, 5, v27")
        a("v_add_u32 v146, %d, v26" % W3_H)

    @staticmethod
    def w3_read(p, ks, hf, dst):
        if p < 2:
            return "ds_read_b64_tr_b16 %s, v144 offset:%d" % (vr(dst, 2), p * 32768 + ks * 1024 + hf * 512)
        if p == 2:
            return "ds_read_b64_tr_b16 %s, v145 offset:%d" % (vr(dst, 2), ks * 1024 + hf * 512)
        return "ds_read_b64_tr_b16 %s, v146 offset:%d" % (vr(dst, 2), ks * 512 + hf * 256)

    def s3_colsum(self):
        self.hold += 1
        self._s3_colsum()
        self.hold -= 1

    def _s3_colsum(self):
        a = self.a
        full = a.newlabel("csfull")
        done = a.newlabel("csdone")
        self.selector(120)
        a("s_cmp_lt_u32 s%d, 3" % sW)
        a("s_cbranch_scc1 %s" % full)
        for is_full in (False, True):
            if is_full:
                a.label(full)
                a("s_lshl_b32 s%d, s%d, 15" % (sA, sW))
                a("v_add_u32 v148, s%d, v144" % sA)
            stride, hstep, addr = (1024, 512, 148) if is_full else (512, 256, 146)
            saved = list(a.lg)
            a.lg = []

            def rd(ks):
                for hf in range(2):
                    a.lds("ds_read_b64_tr_b16 %s, v%d offset:%d" % (vr(96 + 4 * (ks % 6) + 2 * hf, 2), addr,
                                                                    ks * stride + hf * hstep), "c%d" % ks)
            for ks in range(5):
                rd(ks)
            for ks in range(32):
                a.wait_lg("c%d" % ks)
                a("%s %s, %s, %s, %s" % (MF16, vr(32 + 4 * (ks & 1), 4), vr(96 + 4 * (ks % 6), 4), vr(120, 4),
                                         "0" if ks < 2 else vr(32 + 4 * (ks & 1), 4)))
                if ks + 5 < 32:
                    rd(ks + 5)
            a.lg = saved
            if not is_full:
                a("s_branch %s" % done)
        a.label(done)
        a("v_pk_add_f32 v[32:33], v[32:33], v[36:37]")
        a("v_pk_add_f32 v[34:35], v[34:35], v[38:39]")
        a("s_lshl_b32 s%d, s%d, 7" % (sA, sW))
        a("s_add_u32 s%d, s%d, %d" % (sA, sA, LCS3))
        self.colsum_write(32, sA)
        a.wait_lg_all()

    def s3_main(self, mid):
        a = self.a
        AF = 96

        def rd(ks, p):
            for hf in range(2):
                a.lds(self.w3_read(p, ks, hf, AF + 16 * (ks & 1) + 4 * p + 2 * hf), "f%d_%d" % (ks, p))
        for p in range(4):
            rd(0, p)
        for ks in range(32):
            b = ks & 1
            for p in range(4):
                if p == 0:
                    a.wait_both("x%d" % ks, "f%d_0" % ks)
                else:
                    a.wait_lg("f%d_%d" % (ks, p))
                acc = vr(32 + 16 * p, 16)
                a("%s %s, %s, %s, %s" % (MF32, acc, vr(AF + 16 * b + 4 * p, 4), ar(4 * (ks % 16), 4),
                                         "0" if ks == 0 else acc))
                if ks < 31:
                    rd(ks + 1, p)
                if p in (0, 2):
                    self.fill(1)
            if ks == self.opt.get("s3mid", 18):
                mid()
            if ks in (7, 15, 23) and self.opt.get("s3st", 0):
                self.stamp("s3k%d" % ks)

    def s3_epilogue(self, after_tile):
        a = self.a
        G = 128
        a("v_lshlrev_b32 v28, 4, v%d" % vHH)
        a("v_add_u32 v149, %d, v28" % LCS3)

        def csread(p):
            n = 16 if p < 3 else 8
            for j in range(n // 4):
                a.lds("ds_read_b128 %s, v149 offset:%d" % (vr(96 + 16 * (p & 1) + 4 * j, 4), 128 * p + 32 * j), "cs%d" % p)
        csread(0)
        a.wait_vm("st")
        for s in (8, 4, 2, 1):
            for i in range(s):
                a("v_add_f32 v%d, v%d, v%d" % (vST + i, vST + i, vST + i + s))
        a("v_mov_b32 v%d, v%d" % (vST + 1, vST))
        a("v_permlane32_swap_b32 v%d, v%d" % (vST, vST + 1))
        a("v_mul_f32 v%d, s%d, v%d" % (vST + 2, s512I, vST))
        a("v_mul_f32 v26, s%d, v%d" % (s512I, vST + 1))
        a("v_fma_f32 v26, -v%d, v%d, v26" % (vST + 2, vST + 2))
        a("v_max_f32 v26, 0, v26")
        a("v_add_f32 v26, s%d, v26" % sEPS)
        a("v_rsq_f32 v27, v26")
        self.gelu_consts(27, G)
        a("v_sub_f32 v%d, 0, v%d" % (G + 4, vST + 2))
        a("s_mul_i32 s%d, s%d, 114688" % (sD, sT3))
        a("s_mul_i32 s%d, s%d, 7168" % (sA, sCP))
        a("s_add_u32 s%d, s%d, s%d" % (sD, sD, sA))
        a("s_add_u32 s%d, s%d, 0x%x" % (sD, sD, WS_HH))
        a("s_and_b32 s%d, s%d, 1" % (sB, sCP))
        a("s_lshl_b32 s%d, s%d, 10" % (sE, sB))
        a("s_add_u32 s%d, s%d, s%d" % (sE, sE, sD))
        a("s_xor_b32 s%d, s%d, 1" % (sB, sB))
        a("s_mul_i32 s%d, s%d, 6144" % (sB, sB))
        a("s_add_u32 s%d, s%d, s%d" % (sF, sD, sB))
        for p in range(4):
            n = 16 if p < 3 else 8
            C = 96 + 16 * (p & 1)
            if p < 3:
                csread(p + 1)
            a.wait_lg("cs%d" % p)
            acc = 32 + 16 * p
            for i in range(n // 2):
                a("v_pk_fma_f32 %s, %s, %s, %s op_sel_hi:[1,0,1]"
                  % (vr(acc + 2 * i, 2), vr(C + 2 * i, 2), vr(G + 4, 2), vr(acc + 2 * i, 2)))
            out = 152 + 8 * (p & 1)
            self.gelu(acc, n, G, G + 2, 176, out, fills=0)
            if p < 3:
                a("s_add_u32 s%d, s%d, %d" % (sA, sE, 2048 * p))
                a.vmem("buffer_store_dwordx4 %s, v%d, %s, s%d offen sc1" % (vr(out, 4), vL16, sr(S_WS, 4), sA), "Hst")
                a.vmem("buffer_store_dwordx4 %s, v%d, %s, s%d offen offset:1024 sc1"
                       % (vr(out + 4, 4), vL16, sr(S_WS, 4), sA), "Hst")
            else:
                a.vmem("buffer_store_dwordx4 %s, v%d, %s, s%d offen sc1" % (vr(out, 4), vL16, sr(S_WS, 4), sF), "Hst")
            after_tile(p)

    def w4_setup(self):
        a = self.a
        a("s_lshl_b32 s%d, s%d, 11" % (sW4L, sKH))
        a("s_lshl_b32 s%d, s%d, 10" % (sA, sTH))
        a("s_add_u32 s%d, s%d, s%d" % (sW4L, sW4L, sA))
        a("s_mul_i32 s%d, s%d, %d" % (sW4G, sKH, 896 * 1024))
        self.feat0(sA, sTH, 1)
        a("s_add_u32 s%d, s%d, s%d" % (sW4G, sW4G, sA))

    W4R = 56

    def w4_reg_loads(self, ks0, ks1):
        def item(ks):
            def f():
                a = self.a
                a("s_add_u32 s%d, s%d, %d" % (sSO, sW4G, ks * 16384))
                a.vmem("buffer_load_dwordx4 %s, v%d, %s, s%d offen" % (vr(self.W4R + 4 * (ks - W4_B), 4), vW64,
                                                                     sr(S_W4, 4), sSO), "w4r")
                a.check_vm_depth()
            return f
        return [item(ks) for ks in range(ks0, ks1)]

    def w4_reg_writes(self, ks0, ks1):
        def f():
            a = self.a
            a.wait_vm("w4r")
            for i in range(3):
                a("v_add_u32 v%d, s%d, v%d" % (28 + i, sW4L, vL16))
                if i:
                    a("v_add_u32 v%d, %d, v%d" % (28 + i, 65536 * i, 28 + i))
            for ks in range(ks0, ks1):
                off = w4_off(ks)
                a.lds("ds_write_b128 v%d, %s offset:%d" % (28 + off // 65536, vr(self.W4R + 4 * (ks - W4_B), 4),
                                                           off % 65536))
            a.wait_lg_all()
        return f

    def w4_items(self, ks0, ks1, tag):
        return [self.dma_item(S_W4, vW64, sW4L, w4_off(ks), sW4G, ks * 16384, tag) for ks in range(ks0, ks1)]

    def s4_load_items(self):
        a = self.a
        a("s_mul_i32 s%d, s%d, 114688" % (sLD, sT))
        a("s_mul_i32 s%d, s%d, %d" % (sB, sKH, 56 * 1024))
        a("s_add_u32 s%d, s%d, s%d" % (sLD, sLD, sB))
        a("s_add_u32 s%d, s%d, 0x%x" % (sLD, sLD, WS_HH))
        items = []
        for ks in range(56):
            def f(ks=ks):
                if ks and ks % 4 == 0:
                    a("s_add_u32 s%d, s%d, 0x1000" % (sLD, sLD))
                a.vmem("buffer_load_dwordx4 %s, v%d, %s, s%d offen offset:%d sc1"
                       % (ar(4 * (ks % 16), 4), vL16, sr(S_WS, 4), sLD, (ks & 3) * 1024), "H%d" % ks)
                a.check_vm_depth()
            items.append(f)
        return items

    def s4_y_items(self):
        a = self.a
        self.feat0(sE, sKH, 12)
        a("s_lshl_b32 s%d, s%d, 6" % (sB, sT))
        a("s_add_u32 s%d, s%d, s%d" % (sE, sE, sB))
        a("s_add_u32 s%d, s%d, 0x%x" % (sE, sE, WS_YT))
        a("v_lshlrev_b32 v147, 14, v%d" % vHH)
        a("v_lshl_add_u32 v147, v%d, 1, v147" % vN31)
        items = []
        for r in range(16):
            def f(r=r):
                a("s_add_u32 s%d, s%d, %d" % (sSO, sE, (8 * (r >> 2) + (r & 3)) * 4096))
                a.vmem("buffer_load_ushort v%d, v147, %s, s%d offen sc1" % (vST + r, sr(S_WS, 4), sSO), "y")
                a.check_vm_depth()
            items.append(f)
        return items

    XN4, BASE4 = 112, 148

    def s4_shadow_ops(self):
        XN, B = self.XN4, self.BASE4
        pre, post = [], []
        for j in range(8):
            pre.append("v_lshlrev_b32 v%d, 16, v%d" % (XN + 2 * j, vQ + j))
            pre.append("v_and_b32 v%d, s%d, v%d" % (XN + 2 * j + 1, sHI, vQ + j))
            pre.append("v_lshlrev_b32 v%d, 16, v%d" % (B + 2 * j, vX1 + j))
            pre.append("v_and_b32 v%d, s%d, v%d" % (B + 2 * j + 1, sHI, vX1 + j))
        for r in range(16):
            pre.append("v_add_f32 v%d, v%d, v%d" % (B + r, B + r, XN + r))
            pre.append("v_sub_f32 v%d, v%d, v%d" % (XN + r, XN + r, vMEAN))
            pre.append("v_mul_f32 v%d, v%d, v%d" % (XN + r, XN + r, vR1))
        for r in range(16):
            post.append("v_lshlrev_b32 v%d, 16, v%d" % (vST + r, vST + r))
            post.append("v_fmac_f32 v%d, v%d, v%d" % (B + r, XN + r, vST + r))
        return pre, post

    def s4_out_addr(self):
        a = self.a
        a("s_lshl_b32 s%d, s%d, 15" % (sE, sT))
        self.feat0(sB, sKH, 1)
        a("s_add_u32 s%d, s%d, s%d" % (sE, sE, sB))
        a("v_lshlrev_b32 v146, 10, v%d" % vN31)
        a("v_lshl_add_u32 v146, v%d, 4, v146" % vHH)
        a("v_add_u32 v146, s%d, v146" % sE)

    def s4_addr(self):
        a = self.a
        self.wpi_addr(128, 131, 0, 2048, 1024)
        for i in (1, 2):
            a("v_add_u32 v%d, %d, v128" % (128 + i, 65536 * i))
            a("v_add_u32 v%d, %d, v131" % (131 + i, 65536 * i))

    def s4_main(self, hitems):
        a = self.a
        ACK, ACS, AK, AS = self.ACK, self.ACS, self.AK, self.AS

        def rd(ks, which):
            off = w4_off(ks)
            base, addr = ((AK, 128), (AS, 131))[which]
            for hf in range(2):
                a.lds("ds_read_b64_tr_b16 %s, v%d offset:%d"
                      % (vr(base + 4 * (ks & 1) + 2 * hf, 2), addr + off // 65536, off % 65536 + hf * 512),
                      "f%d_%d" % (ks, which))
        pre, post = self.s4_shadow_ops()
        yq = []
        f1, f2 = self.opt.get("f1", 10), self.opt.get("f2", 18)
        self.hact(self.w4_reg_writes(W4_B, W4_C))
        rd(0, 0)
        rd(0, 1)
        for ks in range(56):
            ahead = ks < 55 and ks + 1 != W4_C
            b = ks & 1
            B = ar(4 * (ks % 16), 4)
            a.wait_both("H%d" % ks, "f%d_0" % ks)
            a("%s %s, %s, %s, %s" % (MF32, vr(ACK, 16), vr(AK + 4 * b, 4), B, "0" if ks == 0 else vr(ACK, 16)))
            if ahead:
                rd(ks + 1, 0)
            if hitems and ks >= 1:
                hitems.pop(0)()
            if yq:
                yq.pop(0)()
                if not hitems and yq:
                    yq.pop(0)()
            a.wait_lg("f%d_1" % ks)
            a("%s %s, %s, %s, %s" % (MF32, vr(ACS, 16), vr(AS + 4 * b, 4), B, "0" if ks == 0 else vr(ACS, 16)))
            if ahead:
                rd(ks + 1, 1)
            for _ in range(3):
                if pre and ks >= 2:
                    a(pre.pop(0))
            if ks == f1:
                a.wait_vm("yt")
                self.barrier()
                self.flag_store(F_CV, 2)
                self.hact(self.w4_reg_writes(W4_C, W4_C + f1 + 1))
            if ks == f2:
                self.barrier()
                self.hact(self.w4_reg_writes(W4_C + f1 + 1, 56))
            if ks == self.opt.get("ycheck", 34) - 8:
                self.idx_cv()
                self.poll_issue(F_CV, "pcv")
            if ks == self.opt.get("ycheck", 34):
                self.poll_check("pcv", 4)
                yq = self.s4_y_items()
            if ks + 1 == W4_C:
                self.barrier()
                if self.opt.get("barstamps", 0):
                    h = self.h
                    lab = h.newlabel("nobs")
                    h("s_cmp_lg_u32 s%d, 0" % sW)
                    h("s_cbranch_scc1 %s" % lab)
                    h("s_lshl_b32 s%d, s2, 8" % sA)
                    h("s_add_u32 s%d, s%d, 0x%x" % (sA, sA, WS_STAMP + 0x20000))
                    h("v_lshlrev_b32 v26, 2, v%d" % vL)
                    h("buffer_store_dword v191, v26, %s, s%d offen" % (sr(S_WS, 4), sA))
                    h("s_waitcnt vmcnt(0)")
                    h.label(lab)
                self.h("s_endpgm")
                rd(ks + 1, 0)
                rd(ks + 1, 1)
            if ks in (8, 16, 27, 38, 47):
                self.stamp("s4k%d" % ks)
        assert not pre and not hitems
        for f in yq:
            f()
        self.s4_out_addr()
        self.s4_post = post

    def s4_epilogue(self):
        a = self.a
        ACK, ACS, B = self.ACK, self.ACS, self.BASE4
        self.exchange_write(ACS, S4_RED)
        a.wait_vm("y")
        for x in self.s4_post:
            a(x)
        for p in range(8):
            a("v_pk_add_f32 %s, %s, %s" % (vr(ACK + 2 * p, 2), vr(ACK + 2 * p, 2), vr(B + 2 * p, 2)))
        a.wait_lg_all()
        a("s_barrier")
        self.exchange_read(80, S4_RED)
        a.wait_lg_all()
        for p in range(8):
            a("v_pk_add_f32 %s, %s, %s" % (vr(ACK + 2 * p, 2), vr(ACK + 2 * p, 2), vr(80 + 2 * p, 2)))
        for p in range(8):
            a("v_cvt_pk_bf16_f32 v%d, v%d, v%d" % (48 + p, ACK + 2 * p, ACK + 2 * p + 1))
        for j in (0, 4):
            a("v_permlane32_swap_b32 v%d, v%d" % (48 + j, 50 + j))
            a("v_permlane32_swap_b32 v%d, v%d" % (49 + j, 51 + j))
        a.vmem("buffer_store_dwordx4 %s, v146, %s, 0 offen" % (vr(48, 4), sr(S_OUT, 4)), "out")
        a.vmem("buffer_store_dwordx4 %s, v146, %s, 0 offen offset:32" % (vr(52, 4), sr(S_OUT, 4)), "out")

    def nonce_update(self):
        a = self.a
        self.hold += 1
        skip = a.newlabel("nonce")
        a("s_cmp_lg_u32 s2, 0")
        a("s_cbranch_scc1 %s" % skip)
        a("s_cmp_lg_u32 s%d, 0" % sW)
        a("s_cbranch_scc1 %s" % skip)
        saved = list(a.vm)
        for i in range(4):
            a("v_add_u32 v28, %d, v%d" % (64 * i, vL))
            self.poll_issue(F_P0, "pn")
            self.poll_check("pn", 6)
        a.vm = saved
        a("v_mov_b32 v26, 0")
        a("v_mov_b32 v27, s%d" % sN)
        a("s_mov_b64 exec, 1")
        a("buffer_store_dword v27, v26, %s, 0 offen sc1" % sr(S_WS, 4))
        a("s_mov_b64 exec, -1")
        a.label(skip)
        self.hold -= 1

    def finish(self):
        a = self.a
        a.wait_vm_all()
        if self.opt.get("delay", 0):
            lab = a.newlabel("delay")
            a("s_mov_b32 s%d, %d" % (sA, self.opt["delay"] // 64))
            a.label(lab)
            for _ in range(15):
                a("v_mov_b32 v26, v27")
            a("s_sub_u32 s%d, s%d, 1" % (sA, sA))
            a("s_cmp_lg_u32 s%d, 0" % sA)
            a("s_cbranch_scc1 %s" % lab)
        if self.opt.get("dbgtime", 0):
            a("s_memrealtime %s" % sr(sSTA, 2))
            a("s_memtime s[96:97]")
            a("s_waitcnt lgkmcnt(0)")
            a("s_sub_u32 s%d, s%d, s3" % (sSTA, sSTA))
            a("s_sub_u32 s96, s96, s98")
            a("v_mov_b32 v26, 0")
            a("v_mov_b32 v27, s%d" % sSTA)
            a("v_mov_b32 v28, s96")
            a("s_mov_b64 exec, 1")
            a("global_atomic_umax v26, v27, %s" % sr(S_DBG, 2))
            a("global_atomic_umax v26, v28, %s offset:4" % sr(S_DBG, 2))
            a("s_waitcnt vmcnt(0)")
            a("s_mov_b64 exec, -1")
        if self.stamps:
            self.stamp("end")
            skip = a.newlabel("nostamp")
            a("s_cmp_lg_u32 s%d, 0" % sW)
            a("s_cbranch_scc1 %s" % skip)
            if self.opt.get("dbgstamps", 0):
                lab = a.newlabel("nodbg")
                a("s_cmp_lg_u32 s2, %d" % (self.opt["dbgstamps"] - 1))
                a("s_cbranch_scc1 %s" % lab)
                a("v_readlane_b32 s%d, v%d, 0" % (sA, vSTAMP))
                a("v_subrev_u32 v27, s%d, v%d" % (sA, vSTAMP))
                a("v_lshlrev_b32 v26, 2, v%d" % vL)
                a("s_mov_b64 exec, 0xffff")
                a("global_store_dword v26, v27, %s" % sr(S_DBG, 2))
                a("s_mov_b64 exec, -1")
                a.label(lab)
            a("s_lshl_b32 s%d, s2, 8" % sA)
            a("s_add_u32 s%d, s%d, 0x%x" % (sA, sA, WS_STAMP))
            a("v_lshlrev_b32 v26, 2, v%d" % vL)
            a("buffer_store_dword v%d, v26, %s, s%d offen" % (vSTAMP, sr(S_WS, 4), sA))
            if self.opt.get("barstamps", 0):
                a("s_add_u32 s%d, s%d, 0x10000" % (sA, sA))
                a("buffer_store_dword v31, v26, %s, s%d offen" % (sr(S_WS, 4), sA))
            a("s_waitcnt vmcnt(0)")
            a.label(skip)
        a.label("L_end")
        a("s_endpgm")
        self.a.hook = None
        self.h.label("L_codeend")
        self.h("s_endpgm")
        self.a.ins += self.h.ins

    def nonce_load(self):
        a = self.a
        a("v_mov_b32 v26, 0")
        a.vmem("buffer_load_dword v30, v26, %s, 0 offen sc1" % sr(S_WS, 4), "nonce")

    def build(self):
        a = self.a
        o = self.opt
        H = self.hact
        self.prologue()
        H(self.loader_setup)
        if o.get("tcode", 1) == 1:
            H(self.touch_code)
        s1 = [f for st in range(4) for f in self.s1_stage_items(st)]
        n0, n1 = o.get("n0", 12), o.get("n1", 24)
        self.nonce_load()
        self.cold_touches()
        self.tr_addresses()
        self.s1_setup()

        def stage(st):
            if st == 0:
                self.hacts(s1[:n0])
                self.hwait("s1_0")
            elif st == 1:
                self.hacts(s1[n0:n1])
                self.hwait("s1_1")
            else:
                self.hacts(s1[n1:])
                if o.get("apos", 0) == 0:
                    self.hstamp(4)
                    H(self.batch_a)
                    self.hstamp(5)
                self.hwait("s1_3")
            self.barrier()
            if st == 2:
                if o.get("apos", 0) == 1:
                    H(self.batch_a)
                H(self.nonce_load)
                H(self.tr_addresses)
        self.s1_main(stage)
        self.stamp("s1main")
        w2 = [self.dma_item(S_W2, vW64, sW2L, grp * 1024, sW2G, grp * 16384, "w2") for grp in range(16)]

        def after_x1():
            pass
        self.s1_epilogue(after_x1)
        self.stamp("s1epi")
        self.nonce_compute()
        self.wpi_addr(128, 129, LW, 16384, 32768)
        hitems = self.s2_load_items()
        a.wait_vm("hst")
        self.barrier()
        self.flag_store_rc(F_S1)
        self.stamp("s1flag")
        H(self.nonce_compute)
        H(self.kv_dma)
        if o.get("bpos", 1) == 1:
            H(lambda: self.touch_chip("ssm"))
            H(lambda: self.touch_chip("w3"))
        w2a = o.get("w2a", 4)
        self.hacts(w2[:w2a])
        self.hpaced(w2[w2a:], o.get("iv2", 70), self.p0_compute)
        H(lambda: self.a.wait_lg_all())
        self.idx_s1()
        self.barrier()
        H(self.p0_readback)
        H(self.p0_store)
        H(lambda: self.conv_filter_loads(0))
        H(self.w3_setup)
        w3 = self.w3_items([0, 1, 2, 3])
        k0, k1, k2 = o.get("k0", 8), o.get("k1", 14), o.get("k2", 16)
        self.hacts(w3[:k0])
        self.hwait("kvt")
        self.hwait("w2")
        self.poll_issue(F_S1, "ps1")
        self.poll_check("ps1", 2)
        self.stamp("s1poll")
        nh2 = o.get("nh2", 10)
        for f in hitems[:nh2]:
            f()
        self.barrier()
        self.stamp("hiss")
        H(lambda: self.flag_store_rc(F_P0))
        if o.get("bpos", 1) == 2:
            H(lambda: self.touch_chip("ssm"))
            H(lambda: self.touch_chip("w3"))
        H(self.idx_p0)
        H(lambda: self.poll_issue(F_P0, "pp0"))
        self.hacts(w3[k0:k1])
        self.fq = hitems[nh2:]
        self.s2_main()
        self.stamp("s2main")

        def after_x2():
            H(lambda: self.poll_check("pp0", 1))
            H(lambda: self.conv_x_loads(0))
            H(lambda: self.conv_prep_filter(0))
            H(lambda: self.conv_x_write(0))
        self.s2_epilogue(after_x2)
        self.stamp("s2epi")
        self.barrier()
        H(lambda: self.conv_poly(0))
        self.hacts(w3[k1:k2])
        self.conv_addr(0)
        a.wait_vm("x1st")
        self.barrier()
        self.flag_store_rc(F_S2)
        self.stamp("s2flag")
        H(lambda: self.touch_chip("w4"))
        self.hacts(w3[k2:])

        def hook0(rho):
            if rho == o.get("pollrho2", 3):
                self.idx_s2()
                self.poll_issue(F_S2, "ps2")
        self.conv_main(hook0)
        self.stamp("cv0main")
        xitems = self.s3_load_items()
        nx = o.get("nx", 12)
        self.conv_finish(0)
        self.hwait("w3")
        self.barrier()
        self.stamp("cv0fin")
        H(self.s3_addr)
        H(self.s3_colsum)
        H(self.w4_setup)
        self.s3_addr()
        self.poll_check("ps2", 3)
        self.stamp("s2poll")
        for f in xitems[:nx]:
            f()
        sitems = self.s3_stat_items()
        rest = xitems[nx:]
        self.fq = []
        for i in range(len(rest)):
            self.fq.append(rest[i])
            self.fq.append(sitems[i] if i < 16 else (lambda: None))

        w4r = self.w4_reg_loads(W4_B, 56)

        def s3mid():
            self.barrier()
            H(lambda: self.conv_filter_loads(1))
            H(lambda: self.conv_x_loads(1))
            self.hacts(self.w4_items(0, W4_A, "w4"))
            self.hacts(w4r[:o.get("r1", 8)])
        self.s3_main(s3mid)
        self.fill_all()
        self.stamp("s3main")
        self.barrier()
        H(lambda: self.conv_prep_filter(1))
        H(lambda: self.conv_x_write(1))
        w4m = self.w4_items(W4_A, W4_B, "w4")
        k3 = o.get("k3", 4)

        def after_tile(p):
            if p == 0:
                self.barrier()
                H(lambda: self.conv_poly(1))
                self.hacts(w4r[o.get("r1", 8):o.get("r2", 20)])
                self.hacts(w4m[:k3])
        self.s3_epilogue(after_tile)
        self.stamp("s3epi")
        self.conv_addr(1)
        a.wait_vm("Hst")
        self.barrier()
        a("s_lshl_b32 s%d, s%d, 4" % (sB, sRP))
        a("s_add_u32 s%d, s%d, s%d" % (sB, sB, sCP))
        self.flag_store(F_S3, sB)
        self.stamp("s3flag")
        self.hacts(w4m[k3:])
        self.hacts(w4r[o.get("r2", 20):])
        self.nonce_update()

        def hook1(rho):
            if rho == o.get("pollrho", 2):
                self.idx_s3()
                self.poll_issue(F_S3, "ps3")
        self.conv_main(hook1)
        self.stamp("cv1main")
        hitems = self.s4_load_items()
        self.poll_check("ps3", 5)
        self.stamp("s3poll")
        for _ in range(o.get("nh", 14)):
            hitems.pop(0)()
        self.conv_finish(1)
        self.s4_addr()
        self.hwait("w4")
        self.barrier()
        self.stamp("cv1fin")
        self.s4_main(hitems)
        self.stamp("s4main")
        self.s4_epilogue()
        self.stamp("s4epi")
        self.finish()


REF = "cdna_kernels/%s.s.ref" % NAME


def emit(stop=None, stamps=False, opt=None, keep=None):
    g = Gen(stop, stamps, opt)
    g.keep = keep
    g.build()
    nops = g.a.fix_hazards()
    top = [l for l in open(REF).read().split("\n") if l.startswith(";") and "@launch" not in l and "Override" not in l
           and "grid=ceil" not in l]
    out = top + ["; @launch grid=(256,1,1) block=(512,1,1) lds=%d" % LDS_BYTES,
                 '.amdgcn_target "amdgcn-amd-amdhsa--gfx950"', ".text", ".globl %s_kernel" % NAME, ".p2align 8",
                 ".type %s_kernel,@function" % NAME, "%s_kernel:" % NAME]
    body = g.a.text()
    tail = ['.section .rodata,"a"', ".p2align 6", ".amdhsa_kernel %s_kernel" % NAME,
            "  .amdhsa_next_free_vgpr 256", "  .amdhsa_next_free_sgpr 102", "  .amdhsa_accum_offset 192",
            "  .amdhsa_group_segment_fixed_size 0", "  .amdhsa_kernarg_size 112", "  .amdhsa_user_sgpr_count 2",
            "  .amdhsa_user_sgpr_kernarg_segment_ptr 1", "  .amdhsa_system_sgpr_workgroup_id_x 1",
            "  .amdhsa_float_denorm_mode_32 3", ".end_amdhsa_kernel"]
    text = "\n".join(out) + "\n" + body + "\n".join(tail) + "\n"
    return text, g, nops


if __name__ == "__main__":
    ap = argparse.ArgumentParser()
    ap.add_argument("-o", default="cdna_kernels/%s.s" % NAME)
    ap.add_argument("--stop", default=None)
    ap.add_argument("--stamps", action="store_true")
    ap.add_argument("--opt", default="")
    ap.add_argument("--keep", default="")
    args = ap.parse_args()
    opt = dict((kv.split("=")[0], int(kv.split("=")[1])) for kv in args.opt.split(",") if kv)
    text, g, nops = emit(args.stop, args.stamps, opt, args.keep.split(",") if args.keep else None)
    open(args.o, "w").write(text)
    n = sum(1 for x in g.a.ins if x.kind != "label")
    print("instructions: %d, hazard nops: %d" % (n, nops))
    if g.stamp_names:
        print(",".join(g.stamp_names))
        open(args.o + ".stamps", "w").write(",".join(g.stamp_names))
```

```python
import argparse
import os
import struct
import sys

sys.path.insert(0, os.path.dirname(os.path.abspath(__file__)))
from asmlib import Asm

NAME = "parallel_sum__ssm_conv_h3__mixer_s_mlp__prompt"

WS_FLAGS = 4096
WS_STAMP = 0x40000
WS_KVT = 0x100000
WS_YT = 0x300000
WS_HS = 0x500000
WS_X1 = 0x700000
WS_ST = 0x900000
WS_HH = 0xA00000
WS_SIZE = 0x10000000
OOB = 0x40000000
F_P0, F_S1, F_S2, F_S3, F_CV = 0, 1, 2, 3, 4

LQ = 0
LW = 65536
LSTG = 131072
LRED = 139264
LSTX = 155648
LCSX = 156672
LCS3 = 161280
LKV = 8192
LDS_BYTES = 163840
CV_X = 0
CV_XD = 1152
CV_A = 5248
CV_P = 21760
CV_R = 5248
CV_BASE = 114688
W3_P = 0
W3_H = 98304
CV_BASE1 = 69632
W4_A, W4_B, W4_C = 11, 28, 39
S4_RED = CV_BASE1


def w4_off(ks):
    if ks < W4_A:
        return 114688 + ks * 4096
    if ks < W4_B:
        return (ks - W4_A) * 4096
    if ks < W4_C:
        return CV_BASE1 + (ks - W4_B) * 4096
    return w4_off(ks - W4_C)

S_WS, S_Q, S_K, S_V, S_SHK, S_SSM, S_W1, S_W2, S_W3, S_W4, S_OUT = 4, 8, 12, 16, 20, 24, 32, 36, 40, 44, 48
S_DPTR = 28
S_DBG = 30
sR, sC, sW, sTH, sKH, sN, sRP, sCP = 52, 53, 54, 55, 56, 57, 58, 59
sT, sT3 = 60, 61
sD0, sD1 = 62, 63
sA, sB, sCc, sD, sE, sF = 64, 65, 66, 67, 68, 69
sW2L, sW2G, sW3L, sW3G, sW3HL, sW3HG, sW4L, sW4G, sSO, sLD = 70, 71, 72, 73, 74, 75, 76, 77, 78, 79
sONES, sHI = 80, 81
sK4, sK8, sK12 = 82, 83, 84
sEPS, sTMO, sKG1, sKG3, s512I = 85, 86, 87, 88, 89
sSTA = 90
sROT, sQG, sWG, sCP0 = 92, 93, 94, 95

vL, vL16, vWP, vWN = 0, 1, 2, 3
vQ, vX1 = 4, 12
vMEAN, vR1 = 20, 21
vTID, vHH, vN31, vSTAMP = 22, 23, 24, 25
vW64 = 31
vCH = 172
vPF, vPA = 170, 171
vW3F, vW3H, vQE = 153, 154, 155
vST = 172

GELU_K1 = 2.0 * 0.7978845608028654 * 1.4426950408889634
GELU_K3 = GELU_K1 * 0.044715
MF32 = "v_mfma_f32_32x32x16_bf16"
MF16 = "v_mfma_f32_16x16x32_bf16"


def f32bits(x):
    return struct.unpack("<I", struct.pack("<f", x))[0]


def vr(a, n):
    return "v[%d:%d]" % (a, a + n - 1)


def ar(a, n):
    return "a[%d:%d]" % (a, a + n - 1)


def sr(a, n):
    return "s[%d:%d]" % (a, a + n - 1)


class Gen:
    def __init__(self, stop=None, stamps=False, opt=None):
        self.opt = opt or {}
        self.keep = None
        self.a = Asm()
        self.h = Asm()
        self.h.uid = 100000
        self.hpend = []
        self.nbar = 0
        self.stop = stop
        self.stamps = stamps
        self.nstamp = 0
        self.stamp_names = []
        self.fq = []
        self.pq = []
        self.interval = 0
        self.clock = 0.0
        self.hold = 0
        self.a.hook = self._pace
        self.h.hook = self._pace

    def _pace(self, x):
        if x.kind == "mfma":
            self.clock += 32 if x.passes == 8 else 16
        elif x.kind == "valu":
            self.clock += 8 if x.is_trans() else 4.5
        elif x.kind == "ds":
            self.clock += 13 if x.op == "ds_write_b128" else 2
        elif x.kind == "vmem":
            self.clock += 20
        else:
            return
        if self.hold or not self.pq or not self.interval or x.kind == "vmem":
            return
        if self.clock >= self.interval:
            self.clock = 0.0
            self.hold += 1
            self.pq.pop(0)()
            self.hold -= 1

    def paced(self, items, interval):
        self.pq += items
        self.interval = interval
        self.clock = 0.0

    def pace_flush(self, tag=None):
        self.hold += 1
        if tag is None:
            n = len(self.pq)
        else:
            n = max([i + 1 for i, f in enumerate(self.pq) if f.tag == tag], default=0)
        for _ in range(n):
            self.pq.pop(0)()
        self.hold -= 1

    def stamp(self, name):
        if not self.stamps:
            return
        if self.keep and name not in self.keep and name not in ("start", "end"):
            return
        self.hold += 1
        self._stamp(name)
        self.hold -= 1

    def _stamp(self, name):
        a = self.a
        a("s_memtime %s" % sr(sSTA, 2))
        a("s_waitcnt lgkmcnt(0)")
        a.lg = []
        a("v_writelane_b32 v%d, s%d, %d" % (vSTAMP, sSTA, self.nstamp))
        if name in ("start", "end"):
            a("s_memrealtime %s" % sr(sSTA, 2))
            a("s_waitcnt lgkmcnt(0)")
            a("v_writelane_b32 v%d, s%d, %d" % (vSTAMP, sSTA, 62 if name == "start" else 63))
            if name == "start":
                a("v_writelane_b32 v%d, s3, 61" % vSTAMP)
        self.stamp_names.append(name)
        self.nstamp += 1

    def hact(self, fn):
        self.hpend.append(fn)

    def hacts(self, fns):
        self.hpend += fns

    def hstamp(self, idx):
        if not self.opt.get("barstamps", 0):
            return

        def f():
            a = self.a
            a("s_memtime %s" % sr(sSTA, 2))
            a("s_waitcnt lgkmcnt(0)")
            a.lg = []
            a("v_writelane_b32 v191, s%d, %d" % (sSTA, 32 + idx))
        self.hpend.append(f)

    def hpaced(self, items, interval, fn):
        def f():
            saved = (self.pq, self.interval, self.clock, self.hold)
            self.pq, self.interval, self.clock, self.hold = list(items), interval, 0.0, 0
            fn()
            self.hold = 1
            self.pace_flush()
            self.pq, self.interval, self.clock, self.hold = saved
        self.hpend.append(f)

    def hwait(self, tag):
        self.hpend.append(lambda: self.a.wait_vm(tag))

    def hrun(self):
        c, fq = self.a, self.fq
        self.a, self.fq = self.h, []
        self.hold += 1
        for fn in self.hpend:
            fn()
        self.hold -= 1
        self.hpend = []
        self.a, self.fq = c, fq

    def barrier(self, name=""):
        bs = self.opt.get("barstamps", 0)
        if bs:
            self.hold += 1
            self.a("s_memtime %s" % sr(sSTA, 2))
            self.a("s_waitcnt lgkmcnt(0)")
            self.a.lg = []
            self.a("v_writelane_b32 v31, s%d, %d" % (sSTA, self.nbar))
            self.hold -= 1
        self.a("s_barrier")
        self.hrun()
        if bs:
            self.h("s_memtime %s" % sr(sSTA, 2))
            self.h("s_waitcnt lgkmcnt(0)")
            self.h.lg = []
            self.h("v_writelane_b32 v191, s%d, %d" % (sSTA, self.nbar))
        self.h("s_barrier")
        self.nbar += 1

    def fill(self, n=1):
        for _ in range(n):
            if self.fq:
                self.fq.pop(0)()

    def fill_all(self):
        while self.fq:
            self.fq.pop(0)()

    def dma_item(self, srd, voff, sl, loff, sg, goff, tag):
        def f():
            a = self.a
            a("s_add_u32 m0, s%d, %d" % (sl, loff))
            a("s_add_u32 s%d, s%d, %d" % (sSO, sg, goff))
            a.vmem("buffer_load_dwordx4 v%d, %s, s%d offen lds" % (voff, sr(srd, 4), sSO), tag)
            a.check_vm_depth()
        f.tag = tag
        return f

    def flag_store(self, phase, sidx):
        a = self.a
        self.hold += 1
        skip = a.newlabel("noflag")
        a("s_cmp_lg_u32 s%d, 0" % sW)
        a("s_cbranch_scc1 %s" % skip)
        a("s_lshl_b32 s%d, s%d, 7" % (sA, sidx))
        a("s_add_u32 s%d, s%d, %d" % (sA, sA, WS_FLAGS + phase * 256 * 128))
        a("v_mov_b32 v26, s%d" % sN)
        a("v_mov_b32 v27, s%d" % sA)
        a("s_mov_b64 exec, 1")
        a("buffer_store_dword v26, v27, %s, 0 offen sc1" % sr(S_WS, 4))
        a("s_mov_b64 exec, -1")
        a.label(skip)
        self.hold -= 1

    def flag_store_rc(self, phase):
        a = self.a
        a("s_lshl_b32 s%d, s%d, 3" % (sB, sR))
        a("s_add_u32 s%d, s%d, s%d" % (sB, sB, sC))
        self.flag_store(phase, sB)

    def poll_issue(self, phase, tag):
        a = self.a
        a("v_lshlrev_b32 v%d, 7, v28" % vPA)
        a("v_add_u32 v%d, %d, v%d" % (vPA, WS_FLAGS + phase * 256 * 128, vPA))
        a.vmem("buffer_load_dword v%d, v%d, %s, 0 offen sc1" % (vPF, vPA, sr(S_WS, 4)), tag)

    def poll_check(self, tag, code):
        a = self.a
        self.hold += 1
        loop = a.newlabel("poll")
        done = a.newlabel("polled")
        a.wait_vm(tag)
        a("v_cmp_ne_u32 vcc, s%d, v%d" % (sN, vPF))
        a("s_cmp_eq_u64 vcc, 0")
        a("s_cbranch_scc1 %s" % done)
        a("s_mov_b32 s%d, 0x40000" % sTMO)
        a.label(loop)
        a("buffer_load_dword v%d, v%d, %s, 0 offen sc1" % (vPF, vPA, sr(S_WS, 4)))
        a("s_waitcnt vmcnt(0)")
        a("v_cmp_ne_u32 vcc, s%d, v%d" % (sN, vPF))
        a("s_cmp_eq_u64 vcc, 0")
        a("s_cbranch_scc1 %s" % done)
        a("s_sub_u32 s%d, s%d, 1" % (sTMO, sTMO))
        a("s_cmp_lg_u32 s%d, 0" % sTMO)
        a("s_cbranch_scc1 %s" % loop)
        a("v_mov_b32 v26, 0")
        a("v_mov_b32 v27, %d" % (0x100 + code))
        a("s_mov_b64 exec, 1")
        a("global_store_dword v26, v27, %s" % sr(S_DBG, 2))
        a("s_mov_b64 exec, -1")
        a.label(done)
        self.hold -= 1

    def idx_s1(self):
        a = self.a
        a("s_lshl_b32 s%d, s%d, 1" % (sA, sTH))
        a("s_sub_u32 s%d, s%d, 1" % (sA, sA))
        a("s_add_u32 s%d, s%d, s%d" % (sA, sA, sR))
        a("s_cmp_lt_u32 s%d, 32" % sA)
        a("s_cselect_b32 s%d, s%d, s%d" % (sA, sA, sR))
        a("v_mov_b32 v28, s%d" % sR)
        a("v_mov_b32 v29, s%d" % sA)
        a("v_and_b32 v27, 4, v%d" % vL)
        a("v_cmp_eq_u32 vcc, 0, v27")
        a("v_cndmask_b32 v28, v29, v28, vcc")
        a("v_lshlrev_b32 v28, 3, v28")
        a("v_and_b32 v29, 3, v%d" % vL)
        a("v_add_u32 v28, v28, v29")
        a("s_lshl_b32 s%d, s%d, 2" % (sA, sKH))
        a("v_add_u32 v28, s%d, v28" % sA)

    def idx_p0(self):
        a = self.a
        a("s_lshr_b32 s%d, s2, 5" % sA)
        a("s_lshl_b32 s%d, s%d, 6" % (sB, sW))
        a("s_add_u32 s%d, s%d, s%d" % (sA, sA, sB))
        a("v_and_b32 v28, 7, v%d" % vL)
        a("v_lshlrev_b32 v28, 3, v28")
        a("v_add_u32 v28, s%d, v28" % sA)

    def idx_s2(self):
        a = self.a
        a("s_lshr_b32 s%d, s%d, 1" % (sA, sT3))
        a("s_lshl_b32 s%d, s%d, 3" % (sA, sA))
        a("v_and_b32 v28, 7, v%d" % vL)
        a("v_add_u32 v28, s%d, v28" % sA)

    def idx_s3(self):
        a = self.a
        a("s_lshr_b32 s%d, s%d, 1" % (sA, sR))
        a("s_lshl_b32 s%d, s%d, 4" % (sA, sA))
        a("s_lshl_b32 s%d, s%d, 3" % (sB, sKH))
        a("s_add_u32 s%d, s%d, s%d" % (sA, sA, sB))
        a("v_and_b32 v28, 7, v%d" % vL)
        a("v_add_u32 v28, s%d, v28" % sA)

    def idx_cv(self):
        a = self.a
        self.feat0(sA, sKH, 0)
        a("s_lshr_b32 s%d, s%d, 1" % (sA, sA))
        a("v_and_b32 v28, 15, v%d" % vL)
        a("v_add_u32 v28, s%d, v28" % sA)

    def prologue(self):
        a = self.a
        if self.stamps or self.opt.get("dbgtime", 0):
            a("s_memrealtime s[100:101]")
            a("s_waitcnt lgkmcnt(0)")
            a("s_mov_b32 s3, s100")
        a("s_cmp_ge_u32 s2, 256")
        a("s_cbranch_scc1 L_end")
        a("s_load_dwordx16 s[64:79], s[0:1], 0")
        a("s_load_dwordx8 s[92:99], s[0:1], 64")
        a("s_load_dwordx2 %s, s[0:1], 96" % sr(S_DBG, 2))
        a("s_load_dwordx2 %s, s[0:1], 104" % sr(S_WS, 2))
        sizes = {S_WS: WS_SIZE, S_Q: 1 << 21, S_K: 1 << 21, S_V: 1 << 21, S_SHK: 4096, S_SSM: 1 << 21,
                 S_W1: 1 << 19, S_W2: 1 << 19, S_W3: 512 * 1792 * 2, S_W4: 512 * 1792 * 2, S_OUT: 1 << 21}
        for s, n in sizes.items():
            a("s_mov_b32 s%d, 0x%x" % (s + 2, n))
            a("s_mov_b32 s%d, 0x20000" % (s + 3))
        a("s_and_b32 s100, s2, 7")
        a("s_lshr_b32 s101, s2, 3")
        a("s_lshr_b32 s%d, s101, 3" % sR)
        a("s_lshl_b32 s%d, s100, 2" % sC)
        a("s_add_u32 s%d, s%d, s%d" % (sR, sR, sC))
        a("s_and_b32 s%d, s101, 7" % sC)
        a("s_lshr_b32 s%d, s101, 4" % sRP)
        a("s_lshl_b32 s100, s100, 1")
        a("s_add_u32 s%d, s%d, s100" % (sRP, sRP))
        a("s_and_b32 s%d, s101, 15" % sCP)
        a("v_and_b32 v%d, 0xff, v0" % vTID)
        a("v_lshrrev_b32 v26, 6, v0")
        a("v_and_b32 v%d, 63, v0" % vL)
        a("v_readfirstlane_b32 s%d, v26" % sTMO)
        a("v_lshlrev_b32 v%d, 4, v%d" % (vL16, vL))
        a("v_lshrrev_b32 v%d, 5, v%d" % (vHH, vL))
        a("v_and_b32 v%d, 31, v%d" % (vN31, vL))
        a("s_and_b32 s%d, s%d, 3" % (sW, sTMO))
        a("s_lshr_b32 s%d, s%d, 1" % (sTH, sW))
        a("s_and_b32 s%d, s%d, 1" % (sKH, sW))
        a("s_lshl_b32 s%d, s%d, 1" % (sT, sR))
        a("s_add_u32 s%d, s%d, s%d" % (sT, sT, sTH))
        a("s_lshl_b32 s%d, s%d, 2" % (sT3, sRP))
        a("s_add_u32 s%d, s%d, s%d" % (sT3, sT3, sW))
        a("s_mov_b32 s%d, 0x3f803f80" % sONES)
        a("s_mov_b32 s%d, 0xffff0000" % sHI)
        a("s_movk_i32 s%d, 0x1000" % sK4)
        a("s_movk_i32 s%d, 0x2000" % sK8)
        a("s_movk_i32 s%d, 0x3000" % sK12)
        a("s_mov_b32 s%d, 0x%x" % (sEPS, f32bits(1e-5)))
        a("s_mov_b32 s%d, 0x%x" % (sKG1, f32bits(-GELU_K1)))
        a("s_mov_b32 s%d, 0x%x" % (sKG3, f32bits(-GELU_K3)))
        a("s_mov_b32 s%d, 0x%x" % (s512I, f32bits(1.0 / 512)))
        a("s_waitcnt lgkmcnt(0)")
        for sreg, src in ((S_Q, 64), (S_W1, 78), (S_K, 66), (S_V, 68), (S_SHK, 70), (S_SSM, 72), (S_DPTR, 74)):
            a("s_mov_b64 %s, %s" % (sr(sreg, 2), sr(src, 2)))
        for i, sreg in enumerate([S_W2, S_W3, S_W4, S_OUT]):
            a("s_mov_b64 %s, %s" % (sr(sreg, 2), sr(92 + 2 * i, 2)))
        a("s_add_u32 s%d, s%d, s%d" % (sROT, sR, sC))
        a("s_and_b32 s%d, s%d, 3" % (sROT, sROT))
        a("s_cmp_ge_u32 s%d, 4" % sTMO)
        a("s_cbranch_scc1 L_loader")
        if self.opt.get("prio", 1):
            a("s_setprio 1")
        if self.stamps:
            a("v_mov_b32 v%d, 0" % vSTAMP)
        self.stamp("start")
        if self.opt.get("dbgtime", 0):
            a("s_memtime s[98:99]")
            a("s_waitcnt lgkmcnt(0)")
        self.ssm_d_load()

    def tr_addresses(self):
        a = self.a
        a("v_bfe_u32 v26, v%d, 2, 2" % vL)
        a("v_and_b32 v27, 3, v%d" % vL)
        a("v_bfe_u32 v28, v%d, 4, 1" % vL)
        a("v_lshlrev_b32 v27, 3, v27")
        a("v_lshl_add_u32 v27, v28, 5, v27")
        a("v_lshl_add_u32 v28, v%d, 2, v26" % vHH)
        a("v_lshl_add_u32 v%d, v28, 6, v27" % vWP)
        a("v_lshl_add_u32 v28, v%d, 3, v26" % vHH)
        a("v_lshl_add_u32 v%d, v28, 6, v27" % vWN)

    def loader_setup(self):
        a = self.a
        a.label("L_loader")
        a("v_lshrrev_b32 v26, 2, v%d" % vL)
        a("v_and_b32 v27, 3, v%d" % vL)
        a("v_lshlrev_b32 v27, 4, v27")
        a("v_lshl_add_u32 v%d, v26, 10, v27" % vW64)
        a("v_lshrrev_b32 v26, 3, v%d" % vL)
        a("v_and_b32 v27, 7, v%d" % vL)
        a("v_lshrrev_b32 v28, 4, v%d" % vL)
        a("v_xor_b32 v27, v27, v28")
        a("v_lshlrev_b32 v27, 4, v27")
        a("v_lshl_add_u32 v%d, v26, 10, v27" % vQE)
        a("v_xor_b32 v%d, 64, v%d" % (vQE + 1, vQE))
        a("s_lshl_b32 s%d, s%d, 14" % (sCc, sW))
        a("s_lshl_b32 s%d, s%d, 15" % (sD, sT))
        a("s_lshl_b32 s%d, s%d, 9" % (sA, sKH))
        a("s_add_u32 s%d, s%d, s%d" % (sD, sD, sA))
        self.w64_bases(sW2L, sW2G)

    def feat0(self, dst, spanel, shift):
        a = self.a
        if self.opt.get("remap", 0):
            a("s_lshl_b32 s%d, s%d, %d" % (dst, sC, 5 + shift))
            a("s_lshl_b32 s%d, s%d, %d" % (sSO, spanel, 8 + shift))
        else:
            a("s_lshl_b32 s%d, s%d, %d" % (dst, sC, 6 + shift))
            a("s_lshl_b32 s%d, s%d, %d" % (sSO, spanel, 5 + shift))
        a("s_add_u32 s%d, s%d, s%d" % (dst, dst, sSO))

    def w64_bases(self, sl, sg):
        a = self.a
        a("s_lshl_b32 s%d, s%d, 15" % (sl, sTH))
        a("s_lshl_b32 s%d, s%d, 14" % (sA, sKH))
        a("s_add_u32 s%d, s%d, s%d" % (sl, sl, sA))
        a("s_add_u32 s%d, s%d, %d" % (sl, sl, LW))
        a("s_lshl_b32 s%d, s%d, 18" % (sg, sKH))
        self.feat0(sA, sTH, 1)
        a("s_add_u32 s%d, s%d, s%d" % (sg, sg, sA))

    def s1_stage_items(self, st):
        items = []

        def head():
            a = self.a
            a("s_add_u32 s%d, s%d, %d" % (sB, sROT, st))
            a("s_and_b32 s%d, s%d, 3" % (sB, sB))
            a("s_lshl_b32 s%d, s%d, 7" % (sQG, sB))
            a("s_add_u32 s%d, s%d, s%d" % (sQG, sQG, sD))
            a("s_lshl_b32 s%d, s%d, 16" % (sWG, sB))
            a("s_add_u32 s%d, s%d, s%d" % (sWG, sWG, sW2G))
        for j in range(4):
            def f(j=j):
                if j == 0:
                    head()
                self.dma_item(S_Q, vQE + (j & 1), sCc, LQ + st * 4096 + j * 1024, sQG, j * 8192, "s1_%d" % st)()
            items.append(f)
        for i in range(4):
            items.append(self.dma_item(S_W1, vW64, sW2L, (4 * st + i) * 1024, sWG, i * 16384, "s1_%d" % st))
        return items

    def touch(self, srd, lanes, sidx, dst):
        a = self.a
        a("s_mul_i32 s%d, s%d, %d" % (sA, sidx, lanes))
        a("v_add_u32 v26, s%d, v%d" % (sA, vL))
        a("v_lshlrev_b32 v26, 7, v26")
        a("v_mov_b32 v27, 0x%x" % OOB)
        a("v_cmp_gt_u32 vcc, %d, v%d" % (lanes, vL))
        a("v_cndmask_b32 v26, v27, v26, vcc")
        a.vmem("buffer_load_dword v%d, v26, %s, 0 offen" % (dst, sr(srd, 4)), "touch")

    def touch_w2(self):
        a = self.a
        if self.opt.get("touch", 1):
            a("s_lshr_b32 s%d, s2, 3" % sE)
            a("s_lshl_b32 s%d, s%d, 2" % (sE, sE))
            a("s_add_u32 s%d, s%d, s%d" % (sE, sE, sW))
            self.touch(S_W2, 32, sE, 53)

    def touch_chip(self, which):
        a = self.a
        srd, lanes, dst = {"w2": (S_W2, 4, 160), "ssm": (S_SSM, 16, 161), "w3": (S_W3, 14, 163), "w4": (S_W4, 14, 162)}[which]
        if not self.opt.get("t" + which, 1):
            return
        a("s_lshl_b32 s%d, s2, 2" % sE)
        a("s_add_u32 s%d, s%d, s%d" % (sE, sE, sW))
        self.touch(srd, lanes, sE, dst)

    def touch_code(self):
        a = self.a
        if not self.opt.get("tcode", 1):
            return
        a("s_getpc_b64 s[96:97]")
        a.label("L_pc")
        a("s_sub_u32 s96, s96, L_pc-%s_kernel" % NAME)
        a("s_subb_u32 s97, s97, 0")
        a("s_lshr_b32 s%d, s2, 3" % sE)
        a("s_lshl_b32 s%d, s%d, 2" % (sE, sE))
        a("s_add_u32 s%d, s%d, s%d" % (sE, sE, sW))
        a("s_mul_i32 s%d, s%d, 3" % (sE, sE))
        a("v_min_u32 v26, 2, v%d" % vL)
        a("v_add_u32 v26, s%d, v26" % sE)
        a("v_min_u32 v26, (L_codeend-%s_kernel)/128-1, v26" % NAME)
        a("v_lshlrev_b32 v26, 7, v26")
        a("v_mov_b32 v135, s97")
        a("v_add_co_u32 v134, vcc, s96, v26")
        a("v_addc_co_u32 v135, vcc, 0, v135, vcc")
        a.vmem("global_load_dword v136, v[134:135], off", "touch")

    def cold_touches(self):
        a = self.a
        o = self.opt
        a("s_lshr_b32 s%d, s2, 3" % sE)
        a("s_lshl_b32 s%d, s%d, 2" % (sE, sE))
        a("s_add_u32 s%d, s%d, s%d" % (sE, sE, sW))
        if o.get("tq", 0):
            a("s_and_b32 s%d, s2, 7" % sF)
            a("s_lshl_b32 s%d, s%d, 7" % (sF, sF))
            a("s_add_u32 s%d, s%d, s%d" % (sF, sF, sE))
            self.touch(S_Q, 16, sF, 160)
            self.touch(S_W1, 32, sE, 161)

    def batch_a(self):
        a = self.a
        if self.opt.get("tkv", 1):
            self.touch_kv(157, 158)
        if self.opt.get("tw2", 1):
            a("s_lshr_b32 s%d, s2, 3" % sE)
            a("s_lshl_b32 s%d, s%d, 2" % (sE, sE))
            a("s_add_u32 s%d, s%d, s%d" % (sE, sE, sW))
            self.touch(S_W2, 32, sE, 159)
        if self.opt.get("bpos", 0) == 0:
            self.touch_chip("ssm")
            self.touch_chip("w3")

    def kv_dma(self):
        a = self.a
        a("v_lshrrev_b32 v26, 3, v%d" % vL)
        a("v_and_b32 v27, 7, v%d" % vL)
        a("v_lshlrev_b32 v27, 4, v27")
        a("v_lshl_add_u32 v137, v26, 10, v27")
        a("s_lshl_b32 s%d, s%d, 6" % (sA, sR))
        a("s_lshl_b32 s%d, s%d, 4" % (sB, sW))
        a("s_add_u32 s%d, s%d, s%d" % (sA, sA, sB))
        a("v_add_u32 v26, s%d, v26" % sA)
        a("s_lshl_b32 s%d, s%d, 10" % (sQG, sA))
        a("s_lshl_b32 s%d, s%d, 7" % (sB, sC))
        a("s_add_u32 s%d, s%d, s%d" % (sQG, sQG, sB))
        a("v_add_u32 v138, s%d, v137" % sQG)
        a("v_subrev_u32 v138, 3072, v138")
        a("v_mov_b32 v27, 0x%x" % OOB)
        a("v_cmp_gt_u32 vcc, 3, v26")
        a("v_cndmask_b32 v138, v138, v27, vcc")
        a("s_lshl_b32 s%d, s%d, 14" % (sWG, sW))
        a("s_add_u32 m0, s%d, %d" % (sWG, LKV))
        a.vmem("buffer_load_dwordx4 v138, %s, 0 offen lds" % sr(S_K, 4), "kv")
        for g in (1, 2):
            self.dma_item(S_K, 137, sWG, LKV + 1024 * g, sQG, 8192 * g - 3072, "kv")()
        for g in (0, 1):
            self.dma_item(S_V, 137, sWG, LKV + 3072 + 1024 * g, sQG, 8192 * g, "kv")()
        a("s_lshl_b32 s%d, s%d, 9" % (sB, sC))
        a("v_lshl_add_u32 v26, v%d, 4, s%d" % (vN31, sB))
        a.vmem("buffer_load_dwordx4 %s, v26, %s, 0 offen" % (vr(self.SHRAW, 4), sr(S_SHK, 4)), "kv")

    def p0_reads(self):
        a = self.a
        a.wait_vm("kv")
        a("s_lshl_b32 s%d, s%d, 14" % (sA, sW))
        a("v_lshlrev_b32 v26, 10, v%d" % vHH)
        a("v_lshl_add_u32 v26, v%d, 2, v26" % vN31)
        a("v_add_u32 v26, s%d, v26" % sA)
        a("v_add_u32 v26, %d, v26" % LKV)
        for i in range(11):
            a.lds("ds_read_b32 v%d, v26 offset:%d" % (self.KRAW + i, 128 * i), "p0")
        for i in range(8):
            a.lds("ds_read_b32 v%d, v26 offset:%d" % (self.VRAW + i, 3072 + 128 * i), "p0")

    def touch_kv(self, dk=54, dv=55):
        a = self.a
        for srd, rows, first, dst in ((S_K, 17, -3, dk), (S_V, 16, 0, dv)):
            a("s_lshl_b32 s%d, s%d, 6" % (sA, sR))
            a("s_mul_i32 s%d, s%d, %d" % (sB, sW, rows))
            a("s_add_u32 s%d, s%d, s%d" % (sA, sA, sB))
            a("s_add_i32 s%d, s%d, %d" % (sA, sA, first))
            a("v_add_u32 v26, s%d, v%d" % (sA, vL))
            a("v_lshlrev_b32 v26, 10, v26")
            a("s_lshl_b32 s%d, s%d, 7" % (sB, sC))
            a("v_add_u32 v26, s%d, v26" % sB)
            a("v_mov_b32 v27, 0x%x" % OOB)
            a("v_cmp_gt_u32 vcc, %d, v%d" % (rows, vL))
            a("v_cndmask_b32 v26, v27, v26, vcc")
            a.vmem("buffer_load_dword v%d, v26, %s, 0 offen" % (dst, sr(srd, 4)), "touch")

    def touch_w3_local(self):
        a = self.a
        if self.opt.get("tw3", 1):
            a("s_lshr_b32 s%d, s2, 3" % sE)
            a("s_lshl_b32 s%d, s%d, 2" % (sE, sE))
            a("s_add_u32 s%d, s%d, s%d" % (sE, sE, sW))
            self.touch(S_W3, 64, sE, 50)
            a("s_add_u32 s%d, s%d, 128" % (sE, sE))
            self.touch(S_W3, 64, sE, 51)

    def touch_w4_chip(self):
        a = self.a
        if self.opt.get("tw4", 1):
            a("s_lshl_b32 s%d, s2, 2" % sE)
            a("s_add_u32 s%d, s%d, s%d" % (sE, sE, sW))
            self.touch(S_W4, 14, sE, 52)

    def touch_w34(self):
        a = self.a
        if self.opt.get("touch", 1):
            a("s_lshl_b32 s%d, s2, 2" % sE)
            a("s_add_u32 s%d, s%d, s%d" % (sE, sE, sW))
            if self.opt.get("touchw3", 1):
                self.touch(S_W3, 14, sE, 223)
            if self.opt.get("touchw4", 1):
                self.touch(S_W4, 14, sE, 224)

    def touch_w4_local(self):
        a = self.a
        a("s_lshr_b32 s%d, s2, 3" % sE)
        a("s_lshl_b32 s%d, s%d, 2" % (sE, sE))
        a("s_add_u32 s%d, s%d, s%d" % (sE, sE, sW))
        self.touch(S_W4, 64, sE, 54)
        a("s_add_u32 s%d, s%d, 128" % (sE, sE))
        self.touch(S_W4, 64, sE, 55)

    KRAW, VRAW, SHRAW, POFF = 172, 183, 164, 138

    def p0_loads(self):
        a = self.a
        o = self.POFF
        a("s_lshl_b32 s%d, s%d, 6" % (sA, sR))
        a("s_lshl_b32 s%d, s%d, 4" % (sB, sW))
        a("s_add_u32 s%d, s%d, s%d" % (sA, sA, sB))
        a("v_lshl_add_u32 v26, v%d, 3, s%d" % (vHH, sA))
        a("s_lshl_b32 s%d, s%d, 7" % (sB, sC))
        a("v_lshl_add_u32 v27, v%d, 2, s%d" % (vN31, sB))
        a("v_lshl_add_u32 v%d, v26, 10, v27" % (o + 3))
        a("v_add_u32 v%d, 0x1000, v%d" % (o + 4, o + 3))
        a("v_mov_b32 v28, 0x%x" % OOB)
        for i in range(3):
            a("v_subrev_u32 v%d, %d, v%d" % (o + i, (3 - i) * 1024, o + 3))
            a("v_cmp_gt_u32 vcc, %d, v26" % (3 - i))
            a("v_cndmask_b32 v%d, v%d, v28, vcc" % (o + i, o + i))
        a("s_lshl_b32 s%d, s%d, 9" % (sB, sC))
        a("v_lshl_add_u32 v%d, v%d, 4, s%d" % (o + 5, vN31, sB))

        def item(text):
            return lambda: a.vmem(text, "p0")
        for i in range(3):
            self.fq.append(item("buffer_load_dword v%d, v%d, %s, 0 offen" % (self.KRAW + i, o + i, sr(S_K, 4))))
        for i in range(8):
            self.fq.append(item("buffer_load_dword v%d, v%d, %s, 0 offen offset:%d"
                                % (self.KRAW + 3 + i, o + 3 + i // 4, sr(S_K, 4), (i % 4) * 1024)))
        for i in range(8):
            self.fq.append(item("buffer_load_dword v%d, v%d, %s, 0 offen offset:%d"
                                % (self.VRAW + i, o + 3 + i // 4, sr(S_V, 4), (i % 4) * 1024)))
        self.fq.append(item("buffer_load_dwordx4 %s, v%d, %s, 0 offen" % (vr(self.SHRAW, 4), o + 5, sr(S_SHK, 4))))

    ACK, ACS, ACC_CS = 32, 48, 64
    BF, AK, AS, AC = 80, 96, 104, 112
    SUM, ONE4 = 120, 124

    def s1_setup(self):
        a = self.a
        a("v_bfe_u32 v26, v%d, 1, 3" % vN31)
        a("v_xor_b32 v26, v26, v%d" % vHH)
        a("v_lshlrev_b32 v26, 4, v26")
        a("v_lshl_add_u32 v26, v%d, 7, v26" % vN31)
        a("s_lshl_b32 s%d, s%d, 14" % (sA, sW))
        a("v_add_u32 v128, s%d, v26" % sA)
        for i in range(1, 4):
            a("v_xor_b32 v%d, %d, v128" % (128 + i, 32 * i))
        a("s_lshl_b32 s%d, s%d, 14" % (sA, sKH))
        a("s_add_u32 s%d, s%d, %d" % (sA, sA, LW))
        a("s_lshl_b32 s%d, s%d, 15" % (sB, sKH))
        a("s_add_u32 s%d, s%d, s%d" % (sE, sA, sB))
        a("v_add_u32 v134, s%d, v%d" % (sE, vWN))
        a("s_xor_b32 s%d, s%d, 0x8000" % (sB, sB))
        a("s_add_u32 s%d, s%d, s%d" % (sE, sA, sB))
        a("v_add_u32 v135, s%d, v%d" % (sE, vWN))
        a("s_xor_b32 s%d, s%d, s%d" % (sB, sKH, sTH))
        a("s_lshl_b32 s%d, s%d, 15" % (sB, sB))
        a("s_add_u32 s%d, s%d, s%d" % (sE, sA, sB))
        a("v_add_u32 v136, s%d, v%d" % (sE, vWN))

    def s1_main(self, after_stage):
        a = self.a
        ACK, ACS, ACC_CS, BF, AK, AS, AC, SUM, ONE4 = (self.ACK, self.ACS, self.ACC_CS, self.BF, self.AK, self.AS,
                                                       self.AC, self.SUM, self.ONE4)
        self.selector(ONE4)
        for i in range(4):
            a("v_mov_b32 v%d, 0" % (SUM + i))

        def aread(ks, which):
            base, addr = ((AK, 134), (AS, 135), (AC, 136))[which]
            for hf in range(2):
                a.lds("ds_read_b64_tr_b16 %s, v%d offset:%d"
                      % (vr(base + 4 * (ks & 1) + 2 * hf, 2), addr, ks * 1024 + hf * 256), "f%d_%d" % (ks, which))

        for st in range(4):
            if st < 3:
                after_stage(st)
            for q4 in range(4):
                a.lds("ds_read_b128 %s, v%d offset:%d" % (vr(BF + 4 * q4, 4), 128 + q4, LQ + st * 4096), "b")
            for which in range(3):
                aread(4 * st, which)
            self.fill(1)
            a.wait_lg("b")
            for j in range(16):
                a("v_dot2c_f32_bf16 v%d, s%d, v%d" % (SUM + (j & 1), sONES, BF + j))
                a("v_dot2c_f32_bf16 v%d, v%d, v%d" % (SUM + 2 + (j & 1), BF + j, BF + j))
                if j in (5, 11):
                    self.fill(1)
            for q4 in range(4):
                ks = 4 * st + q4
                b = ks & 1
                B = vr(BF + 4 * q4, 4)
                first = ks == 0
                a.wait_lg("f%d_0" % ks)
                a("%s %s, %s, %s, %s" % (MF32, vr(ACK, 16), vr(AK + 4 * b, 4), B, "0" if first else vr(ACK, 16)))
                if q4 < 3:
                    aread(ks + 1, 0)
                self.fill(1)
                a.wait_lg("f%d_1" % ks)
                a("%s %s, %s, %s, %s" % (MF32, vr(ACS, 16), vr(AS + 4 * b, 4), B, "0" if first else vr(ACS, 16)))
                if q4 < 3:
                    aread(ks + 1, 1)
                self.fill(1)
                a.wait_lg("f%d_2" % ks)
                a("%s %s, %s, %s, %s" % (MF16, vr(ACC_CS, 4), vr(AC + 4 * b, 4), vr(ONE4, 4),
                                         "0" if first else vr(ACC_CS, 4)))
                if q4 < 3:
                    aread(ks + 1, 2)
            self.stamp("s1st%d" % st)
        self.fill_all()

    def selector(self, dst):
        a = self.a
        a("v_lshrrev_b32 v26, 4, v%d" % vL)
        a("v_xor_b32 v26, v26, v%d" % vL)
        a("v_and_b32 v26, 1, v26")
        a("v_mov_b32 v27, s%d" % sONES)
        a("v_cmp_eq_u32 vcc, 0, v26")
        a("v_cndmask_b32 v%d, 0, v27, vcc" % dst)
        for i in range(1, 4):
            a("v_mov_b32 v%d, v%d" % (dst + i, dst))

    def colsum_write(self, src, sbase):
        a = self.a
        a("v_and_b32 v28, 1, v%d" % vL)
        a("v_lshlrev_b32 v28, 6, v28")
        a("v_lshrrev_b32 v29, 4, v%d" % vL)
        a("v_lshl_add_u32 v28, v29, 4, v28")
        a("v_add_u32 v28, s%d, v28" % sbase)
        self.hold += 1
        a("s_mov_b32 exec_lo, 0x30003")
        a("s_mov_b32 exec_hi, 0x30003")
        a.lds("ds_write_b128 v28, %s" % vr(src, 4))
        a("s_mov_b64 exec, -1")
        self.hold -= 1

    def q_tile_read(self):
        a = self.a
        self.feat0(sE, sKH, 0)
        a("s_lshr_b32 s%d, s%d, 8" % (sA, sE))
        a("s_lshl_b32 s%d, s%d, 1" % (sB, sTH))
        a("s_add_u32 s%d, s%d, s%d" % (sA, sA, sB))
        a("s_lshl_b32 s%d, s%d, 14" % (sA, sA))
        a("s_lshr_b32 s%d, s%d, 6" % (sB, sE))
        a("s_sub_u32 s%d, s%d, s%d" % (sB, sB, sROT))
        a("s_and_b32 s%d, s%d, 3" % (sB, sB))
        a("s_lshl_b32 s%d, s%d, 12" % (sB, sB))
        a("s_add_u32 s%d, s%d, s%d" % (sA, sA, sB))
        a("s_bfe_u32 s%d, s%d, 0x10005" % (sB, sE))
        a("s_lshl_b32 s%d, s%d, 2" % (sB, sB))
        a("v_bfe_u32 v26, v%d, 1, 3" % vN31)
        a("v_xor_b32 v26, s%d, v26" % sB)
        a("v_lshlrev_b32 v27, 7, v%d" % vN31)
        a("v_lshl_add_u32 v27, v%d, 3, v27" % vHH)
        a("v_add_u32 v27, s%d, v27" % sA)
        for j in range(4):
            a("v_xor_b32 v28, %d, v26" % j)
            a("v_lshl_add_u32 v28, v28, 4, v27")
            a.lds("ds_read_b64 %s, v28 offset:%d" % (vr(vQ + 2 * j, 2), LQ), "qt")

    def gelu(self, X, n, vA13, vIA, T, out, fills=0):
        a = self.a
        for g0 in range(0, n // 2, 4):
            ps = list(range(g0, min(g0 + 4, n // 2)))
            t = lambda p: T + 4 * (p - g0)
            x = lambda p: vr(X + 2 * p, 2)
            left = fills

            def hook():
                nonlocal left
                if left > 0:
                    self.fill(1)
                    left -= 1
            for p in ps:
                a("v_pk_mul_f32 %s, %s, %s" % (vr(t(p), 2), x(p), x(p)))
            for p in ps:
                a("v_pk_fma_f32 %s, %s, %s, %s op_sel:[0,1,0] op_sel_hi:[1,1,0]"
                  % (vr(t(p), 2), vr(t(p), 2), vr(vA13, 2), vr(vA13, 2)))
            hook()
            for p in ps:
                a("v_pk_mul_f32 %s, %s, %s" % (vr(t(p), 2), vr(t(p), 2), x(p)))
            for p in ps:
                a("v_exp_f32 v%d, v%d" % (t(p) + 2, t(p)))
                a("v_exp_f32 v%d, v%d" % (t(p) + 3, t(p) + 1))
            hook()
            for p in ps:
                a("v_pk_fma_f32 %s, %s, %s, %s op_sel_hi:[1,0,0]"
                  % (vr(t(p), 2), vr(t(p) + 2, 2), vr(vIA, 2), vr(vIA, 2)))
            hook()
            for p in ps:
                a("v_rcp_f32 v%d, v%d" % (t(p) + 2, t(p)))
                a("v_rcp_f32 v%d, v%d" % (t(p) + 3, t(p) + 1))
            hook()
            for p in ps:
                a("v_pk_mul_f32 %s, %s, %s" % (vr(t(p), 2), vr(t(p) + 2, 2), x(p)))
            for p in ps:
                a("v_cvt_pk_bf16_f32 v%d, v%d, v%d" % (out + p, t(p), t(p) + 1))

    def gelu_consts(self, vA, dst):
        a = self.a
        a("v_mul_f32 v%d, s%d, v%d" % (dst, sKG1, vA))
        a("v_mul_f32 v%d, v%d, v%d" % (dst + 1, vA, vA))
        a("v_mul_f32 v%d, v%d, v%d" % (dst + 1, dst + 1, vA))
        a("v_mul_f32 v%d, s%d, v%d" % (dst + 1, sKG3, dst + 1))
        a("v_rcp_f32 v%d, v%d" % (dst + 2, vA))

    def exchange_write(self, send, base=LRED):
        a = self.a
        a("s_lshl_b32 s%d, s%d, 12" % (sA, sW))
        a("s_add_u32 s%d, s%d, %d" % (sA, sA, base))
        a("v_add_u32 v26, s%d, v%d" % (sA, vL16))
        for j in range(4):
            a.lds("ds_write_b128 v26, %s offset:%d" % (vr(send + 4 * j, 4), 1024 * j))

    def exchange_read(self, dst, base=LRED):
        a = self.a
        a("s_xor_b32 s%d, s%d, 1" % (sA, sW))
        a("s_lshl_b32 s%d, s%d, 12" % (sA, sA))
        a("s_add_u32 s%d, s%d, %d" % (sA, sA, base))
        a("v_add_u32 v26, s%d, v%d" % (sA, vL16))
        for j in range(4):
            a.lds("ds_read_b128 %s, v26 offset:%d" % (vr(dst + 4 * j, 4), 1024 * j), "xr")

    def s1_epilogue(self, after_exchange):
        a = self.a
        ACK, ACS, ACC_CS, SUM = self.ACK, self.ACS, self.ACC_CS, self.SUM
        self.q_tile_read()
        a("v_add_f32 v%d, v%d, v%d" % (SUM, SUM, SUM + 1))
        a("v_add_f32 v%d, v%d, v%d" % (SUM + 2, SUM + 2, SUM + 3))
        a("v_permlane32_swap_b32 v%d, v%d" % (SUM, SUM + 2))
        a("v_add_f32 v%d, v%d, v%d" % (SUM, SUM, SUM + 2))
        a("s_lshl_b32 s%d, s%d, 8" % (sA, sW))
        a("s_add_u32 s%d, s%d, %d" % (sA, sA, LSTX))
        a("v_lshl_add_u32 v27, v%d, 2, s%d" % (vL, sA))
        a.lds("ds_write_b32 v27, v%d" % SUM)
        self.exchange_write(ACS)
        a("s_xor_b32 s%d, s%d, s%d" % (sA, sKH, sTH))
        a("s_lshl_b32 s%d, s%d, 8" % (sA, sA))
        a("s_lshl_b32 s%d, s%d, 7" % (sB, sKH))
        a("s_add_u32 s%d, s%d, s%d" % (sA, sA, sB))
        a("s_add_u32 s%d, s%d, %d" % (sA, sA, LCSX))
        self.colsum_write(ACC_CS, sA)
        a.wait_lg_all()
        self.ssm_d_unpack()
        self.barrier()
        P, C0, C1 = 80, 96, 128
        self.exchange_read(P)
        a("s_xor_b32 s%d, s%d, 1" % (sA, sW))
        a("s_lshl_b32 s%d, s%d, 8" % (sA, sA))
        a("s_add_u32 s%d, s%d, %d" % (sA, sA, LSTX))
        a("v_lshl_add_u32 v27, v%d, 2, s%d" % (vL, sA))
        a.lds("ds_read_b32 v%d, v27" % (SUM + 1), "sx")
        a("s_lshl_b32 s%d, s%d, 8" % (sA, sKH))
        a("s_add_u32 s%d, s%d, %d" % (sA, sA, LCSX))
        a("v_lshl_add_u32 v28, v%d, 4, s%d" % (vHH, sA))
        for j in range(4):
            a.lds("ds_read_b128 %s, v28 offset:%d" % (vr(C0 + 4 * j, 4), 32 * j))
            a.lds("ds_read_b128 %s, v28 offset:%d" % (vr(C1 + 4 * j, 4), 128 + 32 * j))
        after_exchange()
        a.wait_lg("sx")
        a("v_add_f32 v%d, v%d, v%d" % (SUM, SUM, SUM + 1))
        a("v_mov_b32 v%d, v%d" % (SUM + 2, SUM))
        a("v_permlane32_swap_b32 v%d, v%d" % (SUM, SUM + 2))
        a("v_mul_f32 v%d, s%d, v%d" % (vMEAN, s512I, SUM))
        a("v_mul_f32 v26, s%d, v%d" % (s512I, SUM + 2))
        a("v_fma_f32 v26, -v%d, v%d, v26" % (vMEAN, vMEAN))
        a("v_max_f32 v26, 0, v26")
        a("v_add_f32 v27, s%d, v26" % sEPS)
        a("v_rsq_f32 v%d, v27" % vR1)
        a("v_mul_f32 v27, v%d, v%d" % (vR1, vR1))
        a("v_fma_f32 v27, v27, v26, s%d" % sEPS)
        a("v_rsq_f32 v27, v27")
        a("v_mul_f32 v27, v27, v%d" % vR1)
        G = 112
        self.gelu_consts(27, G)
        a("v_sub_f32 v%d, 0, v%d" % (G + 4, vMEAN))
        a.wait_lg_all()
        for p in range(8):
            a("v_pk_add_f32 %s, %s, %s" % (vr(C0 + 2 * p, 2), vr(C0 + 2 * p, 2), vr(C1 + 2 * p, 2)))
            a("v_pk_add_f32 %s, %s, %s" % (vr(ACK + 2 * p, 2), vr(ACK + 2 * p, 2), vr(P + 2 * p, 2)))
        for p in range(8):
            a("v_pk_fma_f32 %s, %s, %s, %s op_sel_hi:[1,0,1]"
              % (vr(ACK + 2 * p, 2), vr(C0 + 2 * p, 2), vr(G + 4, 2), vr(ACK + 2 * p, 2)))
        self.gelu(ACK, 16, G, G + 2, 144, 48, fills=0)
        self.frag_store(48, WS_HS, "hst")

    def frag_store(self, src, base, tag):
        a = self.a
        a("s_lshl_b32 s%d, s%d, 15" % (sA, sT))
        self.feat0(sB, sKH, 6)
        a("s_add_u32 s%d, s%d, s%d" % (sA, sA, sB))
        a("s_add_u32 s%d, s%d, 0x%x" % (sA, sA, base))
        a.vmem("buffer_store_dwordx4 %s, v%d, %s, s%d offen sc1" % (vr(src, 4), vL16, sr(S_WS, 4), sA), tag)
        a.vmem("buffer_store_dwordx4 %s, v%d, %s, s%d offen offset:1024 sc1"
               % (vr(src + 4, 4), vL16, sr(S_WS, 4), sA), tag)

    PK = 118

    def nonce_compute(self):
        a = self.a
        a.wait_vm("nonce")
        a("v_readfirstlane_b32 s%d, v30" % sN)
        a("s_mul_i32 s%d, s%d, 0x9e3779b1" % (sN, sN))
        a("s_add_u32 s%d, s%d, 0x7f4a7c15" % (sN, sN))

    def p0_compute(self, mid=None):
        a = self.a
        K, V, SH, KV, PK = 56, 78, 94, 102, self.PK
        self.p0_reads()
        a.wait_lg_all()
        d = self.SHRAW
        for j, (x, y, hi) in enumerate([(d, d + 2, 0), (d, d + 2, 1), (d + 1, d + 3, 0), (d + 1, d + 3, 1)]):
            for o, src in ((0, x), (1, y)):
                if hi:
                    a("v_and_b32 v%d, s%d, v%d" % (SH + 2 * j + o, sHI, src))
                else:
                    a("v_lshlrev_b32 v%d, 16, v%d" % (SH + 2 * j + o, src))
        for i in range(11):
            a("v_lshlrev_b32 v%d, 16, v%d" % (K + 2 * i, self.KRAW + i))
            a("v_and_b32 v%d, s%d, v%d" % (K + 2 * i + 1, sHI, self.KRAW + i))
            if i % 4 == 3:
                self.fill(1)
        for i in range(8):
            a("v_lshlrev_b32 v%d, 16, v%d" % (V + 2 * i, self.VRAW + i))
            a("v_and_b32 v%d, s%d, v%d" % (V + 2 * i + 1, sHI, self.VRAW + i))
        self.fill(1)
        for t in range(8):
            a("v_pk_mul_f32 %s, %s, %s" % (vr(KV + 2 * t, 2), vr(K + 2 * (t + 3), 2), vr(SH, 2)))
        self.fill(1)
        for j in range(1, 4):
            for t in range(8):
                a("v_pk_fma_f32 %s, %s, %s, %s" % (vr(KV + 2 * t, 2), vr(K + 2 * (t + 3 - j), 2), vr(SH + 2 * j, 2),
                                                   vr(KV + 2 * t, 2)))
            self.fill(1)
        if mid:
            mid()
            self.fill(4)
        for t in range(8):
            a("v_pk_mul_f32 %s, %s, %s" % (vr(KV + 2 * t, 2), vr(KV + 2 * t, 2), vr(V + 2 * t, 2)))
        self.fill(1)
        for c in range(2):
            for t in range(4):
                a("v_cvt_pk_bf16_f32 v%d, v%d, v%d" % (PK + 4 * c + t, KV + 4 * t + c, KV + 4 * t + 2 + c))
        a("s_lshl_b32 s%d, s%d, 1" % (sA, sW))
        a("v_add_u32 v26, s%d, v%d" % (sA, vHH))
        a("v_and_b32 v27, 7, v%d" % vN31)
        a("v_xor_b32 v26, v26, v27")
        a("v_lshlrev_b32 v26, 4, v26")
        a("v_lshl_add_u32 v26, v%d, 8, v26" % vN31)
        a("v_add_u32 v26, %d, v26" % LSTG)
        a.lds("ds_write_b128 v26, %s" % vr(PK, 4))
        a.lds("ds_write_b128 v26, %s offset:128" % vr(PK + 4, 4))
        self.fill_all()

    def p0_readback(self):
        a = self.a
        PK = 144
        a("v_lshrrev_b32 v26, 3, v%d" % vL)
        a("s_lshl_b32 s%d, s%d, 4" % (sA, sW))
        a("v_add_u32 v26, s%d, v26" % sA)
        a("v_and_b32 v27, 7, v%d" % vL)
        for i in range(2):
            a("v_add_u32 v28, %d, v26" % (8 * i))
            a("v_bfe_u32 v29, v28, 1, 3")
            a("v_xor_b32 v29, v29, v27")
            a("v_lshlrev_b32 v29, 4, v29")
            a("v_lshl_add_u32 v29, v28, 7, v29")
            a("v_add_u32 v29, %d, v29" % LSTG)
            a.lds("ds_read_b128 %s, v29" % vr(PK + 4 * i, 4), "pk")
        a("v_lshlrev_b32 v27, 4, v27")
        a("v_lshl_add_u32 v152, v26, 12, v27")

    def p0_store(self):
        a = self.a
        PK = 144
        a("s_lshl_b32 s%d, s%d, 18" % (sA, sC))
        a("s_lshl_b32 s%d, s%d, 7" % (sB, sR))
        a("s_add_u32 s%d, s%d, s%d" % (sA, sA, sB))
        a("s_add_u32 s%d, s%d, 0x%x" % (sA, sA, WS_KVT))
        a("s_add_u32 s%d, s%d, 0x8000" % (sB, sA))
        a.wait_lg("pk")
        a.vmem("buffer_store_dwordx4 %s, v152, %s, s%d offen sc1" % (vr(PK, 4), sr(S_WS, 4), sA), "kvt")
        a.vmem("buffer_store_dwordx4 %s, v152, %s, s%d offen sc1" % (vr(PK + 4, 4), sr(S_WS, 4), sB), "kvt")

    def conv_filter_loads(self, ch):
        a = self.a
        a("v_lshlrev_b32 v26, 4, v%d" % vTID)
        a("v_subrev_u32 v27, 8, v26")
        a("v_mov_b32 v28, 0x%x" % OOB)
        a("v_cmp_eq_u32 vcc, 0, v%d" % vTID)
        a("v_cndmask_b32 v27, v27, v28, vcc")
        a("s_lshl_b32 s%d, s2, 13" % sA)
        if ch:
            a("s_add_u32 s%d, s%d, 0x1000" % (sA, sA))
        dA, dP = vr(vCH, 4), vr(vCH + 4, 2)
        a.vmem("buffer_load_dwordx4 %s, v26, %s, s%d offen" % (dA, sr(S_SSM, 4), sA), "cf")
        a.vmem("buffer_load_dwordx2 %s, v27, %s, s%d offen" % (dP, sr(S_SSM, 4), sA), "cf")

    def ssm_d_load(self):
        a = self.a
        a("s_lshl_b32 s%d, s2, 2" % sA)
        a("s_load_dword s%d, %s, s%d" % (sD0, sr(S_DPTR, 2), sA))

    def ssm_d_unpack(self):
        a = self.a
        a("s_and_b32 s%d, s%d, s%d" % (sD1, sD0, sHI))
        a("s_lshl_b32 s%d, s%d, 16" % (sD0, sD0))

    def conv_x_loads(self, ch):
        a = self.a
        a("v_lshlrev_b32 v26, 4, v%d" % vTID)
        a("s_lshl_b32 s%d, s2, 13" % sA)
        a("s_add_u32 s%d, s%d, 0x%x" % (sA, sA, WS_KVT + 0x1000 * ch))
        a.vmem("buffer_load_dwordx4 %s, v26, %s, s%d offen sc1" % (vr(vCH + 6, 4), sr(S_WS, 4), sA), "cx")

    def conv_prep_filter(self, ch):
        a = self.a
        base = CV_BASE1 if ch else CV_BASE
        A, P = vCH, vCH + 4
        a.wait_vm("cf")
        a("v_min_u32 v26, 79, v%d" % vTID)
        a("v_subrev_u32 v27, 72, v26")
        a("v_lshrrev_b32 v28, 1, v27")
        a("v_mul_u32_u24 v28, 4128, v28")
        a("v_and_b32 v27, 1, v27")
        a("v_lshl_add_u32 v28, v27, 4, v28")
        a("v_add_u32 v28, %d, v28" % (base + CV_A))
        a("v_lshlrev_b32 v27, 4, v26")
        a("v_add_u32 v27, %d, v27" % (base + CV_X))
        a("v_cmp_gt_u32 vcc, 72, v26")
        a("v_cndmask_b32 v28, v28, v27, vcc")
        for i in range(4):
            a("v_mov_b32 v%d, 0" % (32 + i))
        a.lds("ds_write_b128 v28, %s" % vr(32, 4))
        Z, Y, W = 36, 40, 44
        seq = [P, P + 1, A, A + 1, A + 2, A + 3]
        for j in range(4):
            a("v_alignbit_b32 v%d, v%d, v%d, 16" % (Z + j, seq[j + 1], seq[j]))
            a("v_alignbit_b32 v%d, v%d, v%d, 16" % (Y + j, seq[j + 2], seq[j + 1]))
            a("v_mov_b32 v%d, v%d" % (W + j, seq[j + 1]))
        a("v_lshlrev_b32 v29, 4, v%d" % vTID)
        a("v_add_u32 v29, %d, v29" % base)
        for rho, src in ((0, A), (1, Y), (2, W), (3, Z)):
            a.lds("ds_write_b128 v29, %s offset:%d" % (vr(src, 4), CV_A + 32 + 4128 * rho))
        a.wait_lg_all()

    def conv_x_write(self, ch):
        a = self.a
        base = CV_BASE1 if ch else CV_BASE
        a.wait_vm("cx")
        a("v_lshlrev_b32 v29, 4, v%d" % vTID)
        a("v_add_u32 v29, %d, v29" % base)
        a.lds("ds_write_b128 v29, %s offset:%d" % (vr(vCH + 6, 4), CV_XD))
        a.wait_lg_all()

    def conv_poly(self, ch):
        a = self.a
        base = CV_BASE1 if ch else CV_BASE
        a("s_lshl_b32 s%d, s%d, 5" % (sA, sW))
        a("s_sub_u32 s%d, %d, s%d" % (sA, base + CV_XD - 1024, sA))
        a("v_lshl_add_u32 v26, v%d, 3, s%d" % (vL, sA))
        for u in range(10):
            a.lds("ds_read_b64_tr_b16 %s, v26 offset:%d" % (vr(32 + 2 * u, 2), 512 * u), "u%d" % u)
        a("s_mul_i32 s%d, s%d, 5312" % (sA, sW))
        a("s_add_u32 s%d, s%d, %d" % (sA, sA, base + CV_P))
        a("v_and_b32 v27, 15, v%d" % vL)
        a("v_mul_u32_u24 v27, 328, v27")
        a("v_lshrrev_b32 v28, 4, v%d" % vL)
        a("v_lshl_add_u32 v27, v28, 3, v27")
        a("v_add_u32 v27, s%d, v27" % sA)
        for u in range(10):
            a.wait_lg("u%d" % u)
            a.lds("ds_write_b64 v27, %s offset:%d" % (vr(32 + 2 * u, 2), 32 * u))
        a.wait_lg_all()

    def conv_addr(self, ch):
        a = self.a
        base = CV_BASE1 if ch else CV_BASE
        a("s_lshl_b32 s%d, s%d, 3" % (sA, sW))
        a("s_sub_u32 s%d, %d, s%d" % (sA, base + CV_A + 32, sA))
        a("v_lshl_add_u32 v160, v%d, 3, s%d" % (vL, sA))
        a("s_mul_i32 s%d, s%d, 1312" % (sA, sW))
        a("s_add_u32 s%d, s%d, %d" % (sA, sA, base + CV_P + 32))
        a("v_bfe_u32 v26, v%d, 2, 2" % vL)
        a("v_mul_u32_u24 v26, 5312, v26")
        a("v_and_b32 v27, 3, v%d" % vL)
        a("v_lshrrev_b32 v28, 4, v%d" % vL)
        a("v_sub_u32 v27, v27, v28")
        a("v_lshl_add_u32 v26, v27, 3, v26")
        a("v_add_u32 v161, s%d, v26" % sA)

    CACC, CAF, CBF = 32, 64, 96

    def conv_main(self, hook=None, fill_every=0):
        a = self.a
        CACC, CAF, CBF = self.CACC, self.CAF, self.CBF

        def rd_list(rho):
            b = rho & 1
            out = []
            order = [("A", 0)] + [("B", c) for c in range(8)] + [("A", 1), ("A", 2), ("A", 3)]
            for kind, i in order:
                for hf in range(2):
                    if kind == "A":
                        out.append("ds_read_b64_tr_b16 %s, v160 offset:%d"
                                   % (vr(CAF + 16 * b + 4 * i + 2 * hf, 2), 4128 * rho + 1024 * i + 512 * hf))
                    else:
                        out.append("ds_read_b64_tr_b16 %s, v161 offset:%d"
                                   % (vr(CBF + 32 * b + 4 * i + 2 * hf, 2), 328 * rho + 32 * i + 32 * (1 - hf)))
            return out

        for x in rd_list(0):
            a.lds(x)
        a.wait_lg_all()
        cnt = 0
        for rho in range(4):
            if hook:
                hook(rho)
            b = rho & 1
            nxt = rd_list(rho + 1) if rho < 3 else []
            k = 0
            for q in range(4):
                for c in range(8 - 2 * q):
                    t = c + 2 * q
                    acc = vr(CACC + 4 * t, 4)
                    a("%s %s, %s, %s, %s" % (MF16, acc, vr(CAF + 16 * b + 4 * q, 4), vr(CBF + 32 * b + 4 * c, 4),
                                             "0" if (rho == 0 and q == 0) else acc))
                    for _ in range(2 if k < 8 else 1):
                        if nxt:
                            a.lds(nxt.pop(0))
                    k += 1
                    cnt += 1
                    if fill_every and cnt % fill_every == 0:
                        self.fill(1)
            assert not nxt
            a.wait_lg_all()

    def conv_finish(self, ch):
        a = self.a
        base = CV_BASE1 if ch else CV_BASE
        CACC = self.CACC
        self.barrier()
        a("s_lshl_b32 s%d, s%d, 11" % (sA, sW))
        a("s_add_u32 s%d, s%d, %d" % (sA, sA, base + CV_R))
        a("v_add_u32 v26, s%d, v%d" % (sA, vL16))
        for t in range(8):
            a.lds("ds_write_b128 v26, %s offset:%d" % (vr(CACC + 4 * t, 4), (t >> 1) * 8192 + (t & 1) * 1024))
        a("s_lshl_b32 s%d, s%d, 10" % (sA, sW))
        a("s_add_u32 s%d, s%d, %d" % (sA, sA, base + CV_XD))
        a("v_and_b32 v27, 15, v%d" % vL)
        a("v_lshlrev_b32 v27, 5, v27")
        a("v_lshrrev_b32 v28, 4, v%d" % vL)
        a("v_lshl_add_u32 v27, v28, 3, v27")
        a("v_add_u32 v27, s%d, v27" % sA)
        for u in range(2):
            a.lds("ds_read_b64 %s, v27 offset:%d" % (vr(100 + 2 * u, 2), 512 * u))
        a.wait_lg_all()
        self.barrier()
        a("s_lshl_b32 s%d, s%d, 13" % (sA, sW))
        a("s_add_u32 s%d, s%d, %d" % (sA, sA, base + CV_R))
        a("v_add_u32 v26, s%d, v%d" % (sA, vL16))
        for sl in range(4):
            for u in range(2):
                a.lds("ds_read_b128 %s, v26 offset:%d" % (vr(64 + 8 * sl + 4 * u, 4), sl * 2048 + u * 1024))
        for u in range(2):
            for j in range(2):
                a("v_lshlrev_b32 v%d, 16, v%d" % (104 + 4 * u + 2 * j, 100 + 2 * u + j))
                a("v_and_b32 v%d, s%d, v%d" % (105 + 4 * u + 2 * j, sHI, 100 + 2 * u + j))
        a("v_mov_b32 v112, s%d" % (sD1 if ch else sD0))
        a("v_lshrrev_b32 v26, 4, v%d" % vL)
        a("v_and_b32 v27, 1, v26")
        a("v_lshlrev_b32 v27, 9, v27")
        a("v_lshrrev_b32 v26, 1, v26")
        a("v_lshl_add_u32 v27, v26, 4, v27")
        a("v_and_b32 v26, 15, v%d" % vL)
        a("v_lshl_add_u32 v27, v26, 5, v27")
        a("s_lshl_b32 s%d, s%d, 10" % (sA, sW))
        a("v_add_u32 v27, s%d, v27" % sA)
        a("s_lshl_b32 s%d, s2, 13" % sA)
        a("s_add_u32 s%d, s%d, 0x%x" % (sA, sA, WS_YT + 0x1000 * ch))
        a.wait_lg_all()
        for p in range(4):
            a("v_pk_add_f32 %s, %s, %s" % (vr(64 + 2 * p, 2), vr(64 + 2 * p, 2), vr(72 + 2 * p, 2)))
            a("v_pk_add_f32 %s, %s, %s" % (vr(80 + 2 * p, 2), vr(80 + 2 * p, 2), vr(88 + 2 * p, 2)))
        for p in range(4):
            a("v_pk_add_f32 %s, %s, %s" % (vr(64 + 2 * p, 2), vr(64 + 2 * p, 2), vr(80 + 2 * p, 2)))
        for p in range(4):
            a("v_pk_fma_f32 %s, %s, %s, %s op_sel_hi:[1,0,1]" % (vr(64 + 2 * p, 2), vr(104 + 2 * p, 2), vr(112, 2),
                                                                vr(64 + 2 * p, 2)))
        for p in range(4):
            a("v_cvt_pk_bf16_f32 v%d, v%d, v%d" % (116 + p, 64 + 2 * p, 65 + 2 * p))
        a("v_permlane16_swap_b32 v116, v118")
        a("v_permlane16_swap_b32 v117, v119")
        a.vmem("buffer_store_dwordx4 %s, v27, %s, s%d offen sc1" % (vr(116, 4), sr(S_WS, 4), sA), "yt")

    def s2_load_items(self):
        a = self.a
        a("s_lshl_b32 s%d, s%d, 5" % (sA, sT))
        a("v_add_u32 v26, s%d, v%d" % (sA, vN31))
        a("s_add_u32 s%d, s%d, 1" % (sB, sKH))
        a("s_lshl_b32 s%d, s%d, 14" % (sA, sKH))
        a("s_add_u32 s%d, s%d, 0x%x" % (sA, sA, WS_HS))
        a("v_mov_b32 v29, 0x%x" % OOB)
        for i, op in enumerate(("v_subrev_u32", "v_add_u32")):
            a("%s v27, s%d, v26" % (op, sB))
            a("v_lshrrev_b32 v28, 5, v27")
            a("v_lshlrev_b32 v28, 15, v28")
            a("v_and_b32 v30, 31, v27")
            a("v_lshl_add_u32 v30, v%d, 5, v30" % vHH)
            a("v_lshl_add_u32 v28, v30, 4, v28")
            a("v_add_u32 v28, s%d, v28" % sA)
            a("v_cmp_gt_u32 vcc, 0x800, v27")
            a("v_cndmask_b32 v%d, v29, v28, vcc" % (140 + i))
        so = ["0", "s%d" % sK4, "s%d" % sK8, "s%d" % sK12]
        items = []
        for ks in range(16):
            def f(ks=ks):
                a.vmem("buffer_load_dwordx4 %s, v%d, %s, %s offen offset:%d sc1"
                       % (ar(4 * ks, 4), 140 + (ks >> 3), sr(S_WS, 4), so[ks >> 2], (ks & 3) * 1024), "h%d" % ks)
            items.append(f)
        return items

    def wpi_addr(self, vk, vs, base, khs, ps):
        a = self.a
        a("s_mul_i32 s%d, s%d, %d" % (sA, sKH, khs + ps))
        a("s_add_u32 s%d, s%d, %d" % (sA, sA, base))
        a("v_add_u32 v%d, s%d, v%d" % (vk, sA, vWP))
        a("s_mul_i32 s%d, s%d, %d" % (sA, sKH, khs - ps))
        a("s_add_u32 s%d, s%d, %d" % (sA, sA, base + ps))
        a("v_add_u32 v%d, s%d, v%d" % (vs, sA, vWP))

    def s2_main(self):
        a = self.a
        ACK, ACS, AK, AS = self.ACK, self.ACS, self.AK, self.AS

        def rd(ks, which):
            base, addr = ((AK, 128), (AS, 129))[which]
            for hf in range(2):
                a.lds("ds_read_b64_tr_b16 %s, v%d offset:%d" % (vr(base + 4 * (ks & 1) + 2 * hf, 2), addr,
                                                                ks * 1024 + hf * 512), "f%d_%d" % (ks, which))
        rd(0, 0)
        rd(0, 1)
        for ks in range(16):
            b = ks & 1
            a.wait_both("h%d" % ks, "f%d_0" % ks)
            a("%s %s, %s, %s, %s" % (MF32, vr(ACK, 16), vr(AK + 4 * b, 4), ar(4 * ks, 4), "0" if ks == 0 else vr(ACK, 16)))
            if ks < 15:
                rd(ks + 1, 0)
            self.fill(1)
            a.wait_lg("f%d_1" % ks)
            a("%s %s, %s, %s, %s" % (MF32, vr(ACS, 16), vr(AS + 4 * b, 4), ar(4 * ks, 4), "0" if ks == 0 else vr(ACS, 16)))
            if ks < 15:
                rd(ks + 1, 1)

    def unpack8(self, src, dst):
        a = self.a
        for j in range(8):
            a("v_lshlrev_b32 v%d, 16, v%d" % (dst + 2 * j, src + j))
            a("v_and_b32 v%d, s%d, v%d" % (dst + 2 * j + 1, sHI, src + j))

    def xn_tile(self, dst):
        a = self.a
        self.unpack8(vQ, dst)
        for p in range(8):
            a("v_pk_add_f32 %s, %s, %s op_sel_hi:[1,0] neg_lo:[0,1] neg_hi:[0,1]"
              % (vr(dst + 2 * p, 2), vr(dst + 2 * p, 2), vr(vMEAN, 2)))
        for p in range(8):
            a("v_pk_mul_f32 %s, %s, %s op_sel:[0,1] op_sel_hi:[1,1]"
              % (vr(dst + 2 * p, 2), vr(dst + 2 * p, 2), vr(vMEAN, 2)))

    def s2_epilogue(self, after_exchange):
        a = self.a
        ACK, ACS = self.ACK, self.ACS
        self.exchange_write(ACS)
        self.xn_tile(96)
        a.wait_lg_all()
        self.barrier()
        after_exchange()
        self.exchange_read(80)
        for p in range(8):
            a("v_pk_add_f32 %s, %s, %s" % (vr(ACK + 2 * p, 2), vr(ACK + 2 * p, 2), vr(96 + 2 * p, 2)))
        a.wait_lg_all()
        for p in range(8):
            a("v_pk_add_f32 %s, %s, %s" % (vr(ACK + 2 * p, 2), vr(ACK + 2 * p, 2), vr(80 + 2 * p, 2)))
        for p in range(8):
            a("v_cvt_pk_bf16_f32 v%d, v%d, v%d" % (vX1 + p, ACK + 2 * p, ACK + 2 * p + 1))
        self.frag_store(vX1, WS_X1, "x1st")
        a("v_pk_mul_f32 %s, %s, %s" % (vr(112, 2), vr(ACK, 2), vr(ACK, 2)))
        a("v_pk_add_f32 %s, %s, %s" % (vr(114, 2), vr(ACK, 2), vr(ACK + 2, 2)))
        for p in range(1, 8):
            a("v_pk_fma_f32 %s, %s, %s, %s" % (vr(112, 2), vr(ACK + 2 * p, 2), vr(ACK + 2 * p, 2), vr(112, 2)))
            if p >= 2:
                a("v_pk_add_f32 %s, %s, %s" % (vr(114, 2), vr(114, 2), vr(ACK + 2 * p, 2)))
        a("v_add_f32 v114, v114, v115")
        a("v_add_f32 v112, v112, v113")
        a("v_permlane32_swap_b32 v114, v112")
        a("v_add_f32 v114, v114, v112")
        a("s_lshl_b32 s%d, s%d, 1" % (sA, sC))
        a("s_add_u32 s%d, s%d, s%d" % (sA, sA, sKH))
        a("s_lshl_b32 s%d, s%d, 14" % (sA, sA))
        a("s_lshl_b32 s%d, s%d, 7" % (sB, sT))
        a("s_add_u32 s%d, s%d, s%d" % (sA, sA, sB))
        a("s_add_u32 s%d, s%d, 0x%x" % (sA, sA, WS_ST))
        a("v_lshlrev_b32 v26, 13, v%d" % vHH)
        a("v_lshl_add_u32 v26, v%d, 2, v26" % vN31)
        a.vmem("buffer_store_dword v114, v26, %s, s%d offen sc1" % (sr(S_WS, 4), sA), "x1st")

    def w3_setup(self):
        a = self.a
        a("s_movk_i32 s%d, 3584" % sB)
        a("v_lshrrev_b32 v26, 2, v%d" % vL)
        a("v_mul_lo_u32 v26, v26, s%d" % sB)
        a("v_and_b32 v27, 3, v%d" % vL)
        a("v_lshl_add_u32 v%d, v27, 4, v26" % vW3F)
        a("v_lshrrev_b32 v26, 1, v%d" % vL)
        a("v_mul_lo_u32 v26, v26, s%d" % sB)
        a("v_and_b32 v27, 1, v%d" % vL)
        a("v_lshl_add_u32 v%d, v27, 4, v26" % vW3H)
        a("s_mul_i32 s%d, s%d, %d" % (sW3HG, sW, 128 * 3584))
        a("s_mul_i32 s%d, s%d, 224" % (sA, sCP))
        a("s_add_u32 s%d, s%d, s%d" % (sW3HG, sW3HG, sA))
        a("s_and_b32 s%d, s%d, 1" % (sB, sCP))
        a("s_lshl_b32 s%d, s%d, 5" % (sW3G, sB))
        a("s_add_u32 s%d, s%d, s%d" % (sW3G, sW3G, sW3HG))
        a("s_xor_b32 s%d, s%d, 1" % (sB, sB))
        a("s_mul_i32 s%d, s%d, 192" % (sB, sB))
        a("s_add_u32 s%d, s%d, s%d" % (sW3HG, sW3HG, sB))
        a("s_lshl_b32 s%d, s%d, 13" % (sW3L, sW))
        a("s_lshl_b32 s%d, s%d, 12" % (sW3HL, sW))

    def w3_items(self, panels):
        out = []
        for p in panels:
            if p < 3:
                for i in range(8):
                    out.append(self.dma_item(S_W3, vW3F, sW3L, W3_P + p * 32768 + i * 1024, sW3G,
                                             p * 64 + i * 16 * 3584, "w3"))
            else:
                for i in range(4):
                    out.append(self.dma_item(S_W3, vW3H, sW3HL, W3_H + i * 1024, sW3HG, i * 32 * 3584, "w3"))
        return out

    def s3_load_items(self):
        a = self.a
        a("s_lshl_b32 s%d, s%d, 15" % (sLD, sT3))
        a("s_add_u32 s%d, s%d, 0x%x" % (sLD, sLD, WS_X1))
        items = []
        for ks in range(32):
            def f(ks=ks):
                if ks and ks % 4 == 0:
                    a("s_add_u32 s%d, s%d, 0x1000" % (sLD, sLD))
                a.vmem("buffer_load_dwordx4 %s, v%d, %s, s%d offen offset:%d sc1"
                       % (ar(4 * (ks % 16), 4), vL16, sr(S_WS, 4), sLD, (ks & 3) * 1024), "x%d" % ks)
            items.append(f)
        return items

    def s3_stat_items(self):
        a = self.a
        a("v_lshlrev_b32 v147, 13, v%d" % vHH)
        a("v_lshl_add_u32 v147, v%d, 2, v147" % vN31)
        items = []
        for sl in range(16):
            def f(sl=sl):
                a("s_lshl_b32 s%d, s%d, 7" % (sSO, sT3))
                a("s_add_u32 s%d, s%d, 0x%x" % (sSO, sSO, WS_ST + 0x4000 * sl))
                a.vmem("buffer_load_dword v%d, v147, %s, s%d offen sc1" % (vST + sl, sr(S_WS, 4), sSO), "st")
            items.append(f)
        return items

    def s3_addr(self):
        a = self.a
        a("v_add_u32 v144, %d, v%d" % (W3_P, vWP))
        a("v_add_u32 v145, %d, v%d" % (W3_P + 65536, vWP))
        a("v_bfe_u32 v26, v%d, 2, 2" % vL)
        a("v_lshl_add_u32 v26, v%d, 2, v26" % vHH)
        a("v_and_b32 v27, 3, v%d" % vL)
        a("v_lshlrev_b32 v27, 3, v27")
        a("v_lshl_add_u32 v26, v26, 5, v27")
        a("v_add_u32 v146, %d, v26" % W3_H)

    @staticmethod
    def w3_read(p, ks, hf, dst):
        if p < 2:
            return "ds_read_b64_tr_b16 %s, v144 offset:%d" % (vr(dst, 2), p * 32768 + ks * 1024 + hf * 512)
        if p == 2:
            return "ds_read_b64_tr_b16 %s, v145 offset:%d" % (vr(dst, 2), ks * 1024 + hf * 512)
        return "ds_read_b64_tr_b16 %s, v146 offset:%d" % (vr(dst, 2), ks * 512 + hf * 256)

    def s3_colsum(self):
        self.hold += 1
        self._s3_colsum()
        self.hold -= 1

    def _s3_colsum(self):
        a = self.a
        full = a.newlabel("csfull")
        done = a.newlabel("csdone")
        self.selector(120)
        a("s_cmp_lt_u32 s%d, 3" % sW)
        a("s_cbranch_scc1 %s" % full)
        for is_full in (False, True):
            if is_full:
                a.label(full)
                a("s_lshl_b32 s%d, s%d, 15" % (sA, sW))
                a("v_add_u32 v148, s%d, v144" % sA)
            stride, hstep, addr = (1024, 512, 148) if is_full else (512, 256, 146)
            saved = list(a.lg)
            a.lg = []

            def rd(ks):
                for hf in range(2):
                    a.lds("ds_read_b64_tr_b16 %s, v%d offset:%d" % (vr(96 + 4 * (ks % 6) + 2 * hf, 2), addr,
                                                                    ks * stride + hf * hstep), "c%d" % ks)
            for ks in range(5):
                rd(ks)
            for ks in range(32):
                a.wait_lg("c%d" % ks)
                a("%s %s, %s, %s, %s" % (MF16, vr(32 + 4 * (ks & 1), 4), vr(96 + 4 * (ks % 6), 4), vr(120, 4),
                                         "0" if ks < 2 else vr(32 + 4 * (ks & 1), 4)))
                if ks + 5 < 32:
                    rd(ks + 5)
            a.lg = saved
            if not is_full:
                a("s_branch %s" % done)
        a.label(done)
        a("v_pk_add_f32 v[32:33], v[32:33], v[36:37]")
        a("v_pk_add_f32 v[34:35], v[34:35], v[38:39]")
        a("s_lshl_b32 s%d, s%d, 7" % (sA, sW))
        a("s_add_u32 s%d, s%d, %d" % (sA, sA, LCS3))
        self.colsum_write(32, sA)
        a.wait_lg_all()

    def s3_main(self, mid):
        a = self.a
        AF = 96

        def rd(ks, p):
            for hf in range(2):
                a.lds(self.w3_read(p, ks, hf, AF + 16 * (ks & 1) + 4 * p + 2 * hf), "f%d_%d" % (ks, p))
        for p in range(4):
            rd(0, p)
        for ks in range(32):
            b = ks & 1
            for p in range(4):
                if p == 0:
                    a.wait_both("x%d" % ks, "f%d_0" % ks)
                else:
                    a.wait_lg("f%d_%d" % (ks, p))
                acc = vr(32 + 16 * p, 16)
                a("%s %s, %s, %s, %s" % (MF32, acc, vr(AF + 16 * b + 4 * p, 4), ar(4 * (ks % 16), 4),
                                         "0" if ks == 0 else acc))
                if ks < 31:
                    rd(ks + 1, p)
                if p in (0, 2):
                    self.fill(1)
            if ks == self.opt.get("s3mid", 18):
                mid()
            if ks in (7, 15, 23) and self.opt.get("s3st", 0):
                self.stamp("s3k%d" % ks)

    def s3_epilogue(self, after_tile):
        a = self.a
        G = 128
        a("v_lshlrev_b32 v28, 4, v%d" % vHH)
        a("v_add_u32 v149, %d, v28" % LCS3)

        def csread(p):
            n = 16 if p < 3 else 8
            for j in range(n // 4):
                a.lds("ds_read_b128 %s, v149 offset:%d" % (vr(96 + 16 * (p & 1) + 4 * j, 4), 128 * p + 32 * j), "cs%d" % p)
        csread(0)
        a.wait_vm("st")
        for s in (8, 4, 2, 1):
            for i in range(s):
                a("v_add_f32 v%d, v%d, v%d" % (vST + i, vST + i, vST + i + s))
        a("v_mov_b32 v%d, v%d" % (vST + 1, vST))
        a("v_permlane32_swap_b32 v%d, v%d" % (vST, vST + 1))
        a("v_mul_f32 v%d, s%d, v%d" % (vST + 2, s512I, vST))
        a("v_mul_f32 v26, s%d, v%d" % (s512I, vST + 1))
        a("v_fma_f32 v26, -v%d, v%d, v26" % (vST + 2, vST + 2))
        a("v_max_f32 v26, 0, v26")
        a("v_add_f32 v26, s%d, v26" % sEPS)
        a("v_rsq_f32 v27, v26")
        self.gelu_consts(27, G)
        a("v_sub_f32 v%d, 0, v%d" % (G + 4, vST + 2))
        a("s_mul_i32 s%d, s%d, 114688" % (sD, sT3))
        a("s_mul_i32 s%d, s%d, 7168" % (sA, sCP))
        a("s_add_u32 s%d, s%d, s%d" % (sD, sD, sA))
        a("s_add_u32 s%d, s%d, 0x%x" % (sD, sD, WS_HH))
        a("s_and_b32 s%d, s%d, 1" % (sB, sCP))
        a("s_lshl_b32 s%d, s%d, 10" % (sE, sB))
        a("s_add_u32 s%d, s%d, s%d" % (sE, sE, sD))
        a("s_xor_b32 s%d, s%d, 1" % (sB, sB))
        a("s_mul_i32 s%d, s%d, 6144" % (sB, sB))
        a("s_add_u32 s%d, s%d, s%d" % (sF, sD, sB))
        for p in range(4):
            n = 16 if p < 3 else 8
            C = 96 + 16 * (p & 1)
            if p < 3:
                csread(p + 1)
            a.wait_lg("cs%d" % p)
            acc = 32 + 16 * p
            for i in range(n // 2):
                a("v_pk_fma_f32 %s, %s, %s, %s op_sel_hi:[1,0,1]"
                  % (vr(acc + 2 * i, 2), vr(C + 2 * i, 2), vr(G + 4, 2), vr(acc + 2 * i, 2)))
            out = 152 + 8 * (p & 1)
            self.gelu(acc, n, G, G + 2, 176, out, fills=0)
            if p < 3:
                a("s_add_u32 s%d, s%d, %d" % (sA, sE, 2048 * p))
                a.vmem("buffer_store_dwordx4 %s, v%d, %s, s%d offen sc1" % (vr(out, 4), vL16, sr(S_WS, 4), sA), "Hst")
                a.vmem("buffer_store_dwordx4 %s, v%d, %s, s%d offen offset:1024 sc1"
                       % (vr(out + 4, 4), vL16, sr(S_WS, 4), sA), "Hst")
            else:
                a.vmem("buffer_store_dwordx4 %s, v%d, %s, s%d offen sc1" % (vr(out, 4), vL16, sr(S_WS, 4), sF), "Hst")
            after_tile(p)

    def w4_setup(self):
        a = self.a
        a("s_lshl_b32 s%d, s%d, 11" % (sW4L, sKH))
        a("s_lshl_b32 s%d, s%d, 10" % (sA, sTH))
        a("s_add_u32 s%d, s%d, s%d" % (sW4L, sW4L, sA))
        a("s_mul_i32 s%d, s%d, %d" % (sW4G, sKH, 896 * 1024))
        self.feat0(sA, sTH, 1)
        a("s_add_u32 s%d, s%d, s%d" % (sW4G, sW4G, sA))

    W4R = 56

    def w4_reg_loads(self, ks0, ks1):
        def item(ks):
            def f():
                a = self.a
                a("s_add_u32 s%d, s%d, %d" % (sSO, sW4G, ks * 16384))
                a.vmem("buffer_load_dwordx4 %s, v%d, %s, s%d offen" % (vr(self.W4R + 4 * (ks - W4_B), 4), vW64,
                                                                     sr(S_W4, 4), sSO), "w4r")
                a.check_vm_depth()
            return f
        return [item(ks) for ks in range(ks0, ks1)]

    def w4_reg_writes(self, ks0, ks1):
        def f():
            a = self.a
            a.wait_vm("w4r")
            for i in range(3):
                a("v_add_u32 v%d, s%d, v%d" % (28 + i, sW4L, vL16))
                if i:
                    a("v_add_u32 v%d, %d, v%d" % (28 + i, 65536 * i, 28 + i))
            for ks in range(ks0, ks1):
                off = w4_off(ks)
                a.lds("ds_write_b128 v%d, %s offset:%d" % (28 + off // 65536, vr(self.W4R + 4 * (ks - W4_B), 4),
                                                           off % 65536))
            a.wait_lg_all()
        return f

    def w4_items(self, ks0, ks1, tag):
        return [self.dma_item(S_W4, vW64, sW4L, w4_off(ks), sW4G, ks * 16384, tag) for ks in range(ks0, ks1)]

    def hring(self, ks):
        n = self.opt.get("hring", 24)
        i = ks % n
        return ar(4 * i, 4) if i < 16 else vr(64 + 4 * (i - 16), 4)

    def s4_load_items(self):
        a = self.a
        a("s_mul_i32 s%d, s%d, 114688" % (sLD, sT))
        a("s_mul_i32 s%d, s%d, %d" % (sB, sKH, 56 * 1024))
        a("s_add_u32 s%d, s%d, s%d" % (sLD, sLD, sB))
        a("s_add_u32 s%d, s%d, 0x%x" % (sLD, sLD, WS_HH))
        items = []
        for ks in range(56):
            def f(ks=ks):
                if ks and ks % 4 == 0:
                    a("s_add_u32 s%d, s%d, 0x1000" % (sLD, sLD))
                a.vmem("buffer_load_dwordx4 %s, v%d, %s, s%d offen offset:%d sc1"
                       % (self.hring(ks), vL16, sr(S_WS, 4), sLD, (ks & 3) * 1024), "H%d" % ks)
                a.check_vm_depth()
            items.append(f)
        return items

    def s4_y_items(self):
        a = self.a
        self.feat0(sE, sKH, 12)
        a("s_lshl_b32 s%d, s%d, 6" % (sB, sT))
        a("s_add_u32 s%d, s%d, s%d" % (sE, sE, sB))
        a("s_add_u32 s%d, s%d, 0x%x" % (sE, sE, WS_YT))
        a("v_lshlrev_b32 v147, 14, v%d" % vHH)
        a("v_lshl_add_u32 v147, v%d, 1, v147" % vN31)
        items = []
        for r in range(16):
            def f(r=r):
                a("s_add_u32 s%d, s%d, %d" % (sSO, sE, (8 * (r >> 2) + (r & 3)) * 4096))
                a.vmem("buffer_load_ushort v%d, v147, %s, s%d offen sc1" % (vST + r, sr(S_WS, 4), sSO), "y")
                a.check_vm_depth()
            items.append(f)
        return items

    XN4, BASE4 = 112, 148

    def s4_shadow_ops(self):
        XN, B = self.XN4, self.BASE4
        pre, post = [], []
        for j in range(8):
            pre.append("v_lshlrev_b32 v%d, 16, v%d" % (XN + 2 * j, vQ + j))
            pre.append("v_and_b32 v%d, s%d, v%d" % (XN + 2 * j + 1, sHI, vQ + j))
            pre.append("v_lshlrev_b32 v%d, 16, v%d" % (B + 2 * j, vX1 + j))
            pre.append("v_and_b32 v%d, s%d, v%d" % (B + 2 * j + 1, sHI, vX1 + j))
        for r in range(16):
            pre.append("v_add_f32 v%d, v%d, v%d" % (B + r, B + r, XN + r))
            pre.append("v_sub_f32 v%d, v%d, v%d" % (XN + r, XN + r, vMEAN))
            pre.append("v_mul_f32 v%d, v%d, v%d" % (XN + r, XN + r, vR1))
        for r in range(16):
            post.append("v_lshlrev_b32 v%d, 16, v%d" % (vST + r, vST + r))
            post.append("v_fmac_f32 v%d, v%d, v%d" % (B + r, XN + r, vST + r))
        return pre, post

    def s4_out_addr(self):
        a = self.a
        a("s_lshl_b32 s%d, s%d, 15" % (sE, sT))
        self.feat0(sB, sKH, 1)
        a("s_add_u32 s%d, s%d, s%d" % (sE, sE, sB))
        a("v_lshlrev_b32 v146, 10, v%d" % vN31)
        a("v_lshl_add_u32 v146, v%d, 4, v146" % vHH)
        a("v_add_u32 v146, s%d, v146" % sE)

    def s4_addr(self):
        a = self.a
        self.wpi_addr(128, 131, 0, 2048, 1024)
        for i in (1, 2):
            a("v_add_u32 v%d, %d, v128" % (128 + i, 65536 * i))
            a("v_add_u32 v%d, %d, v131" % (131 + i, 65536 * i))

    def s4_main(self, hitems):
        a = self.a
        ACK, ACS, AK, AS = self.ACK, self.ACS, self.AK, self.AS

        def rd(ks, which):
            off = w4_off(ks)
            base, addr = ((AK, 128), (AS, 131))[which]
            for hf in range(2):
                a.lds("ds_read_b64_tr_b16 %s, v%d offset:%d"
                      % (vr(base + 4 * (ks & 1) + 2 * hf, 2), addr + off // 65536, off % 65536 + hf * 512),
                      "f%d_%d" % (ks, which))
        pre, post = self.s4_shadow_ops()
        yq = []
        f1, f2 = self.opt.get("f1", 10), self.opt.get("f2", 18)
        self.hact(self.w4_reg_writes(W4_B, W4_C))
        rd(0, 0)
        rd(0, 1)
        for ks in range(56):
            ahead = ks < 55 and ks + 1 != W4_C
            b = ks & 1
            B = self.hring(ks)
            if self.opt.get("x_nowait", 0):
                a.wait_lg("f%d_0" % ks)
            else:
                a.wait_both("H%d" % ks, "f%d_0" % ks)
            a("%s %s, %s, %s, %s" % (MF32, vr(ACK, 16), vr(AK + 4 * b, 4), B, "0" if ks == 0 else vr(ACK, 16)))
            if ahead:
                rd(ks + 1, 0)
            if hitems and ks >= 1:
                hitems.pop(0)()
            if yq:
                yq.pop(0)()
                if not hitems and yq:
                    yq.pop(0)()
            a.wait_lg("f%d_1" % ks)
            a("%s %s, %s, %s, %s" % (MF32, vr(ACS, 16), vr(AS + 4 * b, 4), B, "0" if ks == 0 else vr(ACS, 16)))
            if ahead:
                rd(ks + 1, 1)
            for _ in range(self.opt.get("npre", 3)):
                if pre and ks >= 2:
                    a(pre.pop(0))
            if ks == 56 - W4_C - 1:
                a.wait_vm("yt")
                self.barrier()
                self.flag_store(F_CV, 2)
                self.hact(self.w4_reg_writes(W4_C, 56))
            if ks == self.opt.get("ycheck", 42) - 8:
                self.idx_cv()
                self.poll_issue(F_CV, "pcv")
            if ks == self.opt.get("ycheck", 42):
                self.poll_check("pcv", 4)
                yq = self.s4_y_items()
            if ks + 1 == W4_C:
                self.barrier()
                if self.opt.get("barstamps", 0):
                    h = self.h
                    lab = h.newlabel("nobs")
                    h("s_cmp_lg_u32 s%d, 0" % sW)
                    h("s_cbranch_scc1 %s" % lab)
                    h("s_lshl_b32 s%d, s2, 8" % sA)
                    h("s_add_u32 s%d, s%d, 0x%x" % (sA, sA, WS_STAMP + 0x20000))
                    h("v_lshlrev_b32 v26, 2, v%d" % vL)
                    h("buffer_store_dword v191, v26, %s, s%d offen" % (sr(S_WS, 4), sA))
                    h("s_waitcnt vmcnt(0)")
                    h.label(lab)
                self.h("s_endpgm")
                rd(ks + 1, 0)
                rd(ks + 1, 1)
            if ks in (8, 16, 27, 38, 47):
                self.stamp("s4k%d" % ks)
        for x in pre:
            a(x)
        assert not hitems
        for f in yq:
            f()
        self.s4_out_addr()
        self.s4_post = post

    def s4_epilogue(self):
        a = self.a
        ACK, ACS, B = self.ACK, self.ACS, self.BASE4
        self.exchange_write(ACS, S4_RED)
        a.wait_vm("y")
        for x in self.s4_post:
            a(x)
        for p in range(8):
            a("v_pk_add_f32 %s, %s, %s" % (vr(ACK + 2 * p, 2), vr(ACK + 2 * p, 2), vr(B + 2 * p, 2)))
        a.wait_lg_all()
        a("s_barrier")
        self.exchange_read(80, S4_RED)
        a.wait_lg_all()
        for p in range(8):
            a("v_pk_add_f32 %s, %s, %s" % (vr(ACK + 2 * p, 2), vr(ACK + 2 * p, 2), vr(80 + 2 * p, 2)))
        for p in range(8):
            a("v_cvt_pk_bf16_f32 v%d, v%d, v%d" % (48 + p, ACK + 2 * p, ACK + 2 * p + 1))
        for j in (0, 4):
            a("v_permlane32_swap_b32 v%d, v%d" % (48 + j, 50 + j))
            a("v_permlane32_swap_b32 v%d, v%d" % (49 + j, 51 + j))
        mod = ["", " sc1", " nt", " sc0 sc1"][self.opt.get("outmod", 0)]
        a.vmem("buffer_store_dwordx4 %s, v146, %s, 0 offen%s" % (vr(48, 4), sr(S_OUT, 4), mod), "out")
        a.vmem("buffer_store_dwordx4 %s, v146, %s, 0 offen offset:32%s" % (vr(52, 4), sr(S_OUT, 4), mod), "out")

    def nonce_update(self):
        a = self.a
        self.hold += 1
        skip = a.newlabel("nonce")
        a("s_cmp_lg_u32 s2, 0")
        a("s_cbranch_scc1 %s" % skip)
        a("s_cmp_lg_u32 s%d, 0" % sW)
        a("s_cbranch_scc1 %s" % skip)
        saved = list(a.vm)
        for i in range(4):
            a("v_add_u32 v28, %d, v%d" % (64 * i, vL))
            self.poll_issue(F_P0, "pn")
            self.poll_check("pn", 6)
        a.vm = saved
        a("v_mov_b32 v26, 0")
        a("v_mov_b32 v27, s%d" % sN)
        a("s_mov_b64 exec, 1")
        a("buffer_store_dword v27, v26, %s, 0 offen sc1" % sr(S_WS, 4))
        a("s_mov_b64 exec, -1")
        a.label(skip)
        self.hold -= 1

    def finish(self):
        a = self.a
        a.wait_vm_all()
        if self.opt.get("delay", 0):
            lab = a.newlabel("delay")
            a("s_mov_b32 s%d, %d" % (sA, self.opt["delay"] // 64))
            a.label(lab)
            for _ in range(15):
                a("v_mov_b32 v26, v27")
            a("s_sub_u32 s%d, s%d, 1" % (sA, sA))
            a("s_cmp_lg_u32 s%d, 0" % sA)
            a("s_cbranch_scc1 %s" % lab)
        if self.opt.get("dbgtime", 0):
            a("s_memrealtime %s" % sr(sSTA, 2))
            a("s_memtime s[96:97]")
            a("s_waitcnt lgkmcnt(0)")
            a("s_sub_u32 s%d, s%d, s3" % (sSTA, sSTA))
            a("s_sub_u32 s96, s96, s98")
            a("v_mov_b32 v26, 0")
            a("v_mov_b32 v27, s%d" % sSTA)
            a("v_mov_b32 v28, s96")
            a("s_mov_b64 exec, 1")
            a("global_atomic_umax v26, v27, %s" % sr(S_DBG, 2))
            a("global_atomic_umax v26, v28, %s offset:4" % sr(S_DBG, 2))
            a("s_waitcnt vmcnt(0)")
            a("s_mov_b64 exec, -1")
        if self.stamps:
            self.stamp("end")
            skip = a.newlabel("nostamp")
            a("s_cmp_lg_u32 s%d, 0" % sW)
            a("s_cbranch_scc1 %s" % skip)
            if self.opt.get("dbgstamps", 0):
                lab = a.newlabel("nodbg")
                a("s_cmp_lg_u32 s2, %d" % (self.opt["dbgstamps"] - 1))
                a("s_cbranch_scc1 %s" % lab)
                a("v_readlane_b32 s%d, v%d, 0" % (sA, vSTAMP))
                a("v_subrev_u32 v27, s%d, v%d" % (sA, vSTAMP))
                a("v_lshlrev_b32 v26, 2, v%d" % vL)
                a("s_mov_b64 exec, 0xffff")
                a("global_store_dword v26, v27, %s" % sr(S_DBG, 2))
                a("s_mov_b64 exec, -1")
                a.label(lab)
            a("s_lshl_b32 s%d, s2, 8" % sA)
            a("s_add_u32 s%d, s%d, 0x%x" % (sA, sA, WS_STAMP))
            a("v_lshlrev_b32 v26, 2, v%d" % vL)
            a("buffer_store_dword v%d, v26, %s, s%d offen" % (vSTAMP, sr(S_WS, 4), sA))
            if self.opt.get("barstamps", 0):
                a("s_add_u32 s%d, s%d, 0x10000" % (sA, sA))
                a("buffer_store_dword v31, v26, %s, s%d offen" % (sr(S_WS, 4), sA))
            a("s_waitcnt vmcnt(0)")
            a.label(skip)
        a.label("L_end")
        a("s_endpgm")
        self.a.hook = None
        self.h.label("L_codeend")
        self.h("s_endpgm")
        self.a.ins += self.h.ins

    def nonce_load(self):
        a = self.a
        a("v_mov_b32 v26, 0")
        a.vmem("buffer_load_dword v30, v26, %s, 0 offen sc1" % sr(S_WS, 4), "nonce")

    def build(self):
        a = self.a
        o = self.opt
        H = self.hact
        self.prologue()
        H(self.loader_setup)
        if o.get("tcode", 1) == 1:
            H(self.touch_code)
        s1 = [f for st in range(4) for f in self.s1_stage_items(st)]
        n0, n1 = o.get("n0", 12), o.get("n1", 24)
        self.nonce_load()
        self.cold_touches()
        self.tr_addresses()
        self.s1_setup()

        def stage(st):
            if st == 0:
                self.hacts(s1[:n0])
                self.hwait("s1_0")
            elif st == 1:
                self.hacts(s1[n0:n1])
                self.hwait("s1_1")
            else:
                self.hacts(s1[n1:])
                if o.get("apos", 0) == 0:
                    self.hstamp(4)
                    H(self.batch_a)
                    self.hstamp(5)
                self.hwait("s1_3")
            self.barrier()
            if st == 2:
                if o.get("apos", 0) == 1:
                    H(self.batch_a)
                H(self.nonce_load)
                H(self.tr_addresses)
        self.s1_main(stage)
        self.stamp("s1main")
        w2 = [self.dma_item(S_W2, vW64, sW2L, grp * 1024, sW2G, grp * 16384, "w2") for grp in range(16)]

        p0late = o.get("p0late", 1)

        def after_x1():
            if not p0late:
                H(self.nonce_compute)
                H(self.kv_dma)
                H(self.p0_compute)
                H(lambda: self.a.wait_lg_all())
        self.s1_epilogue(after_x1)
        self.stamp("s1epi")
        self.nonce_compute()
        self.wpi_addr(128, 129, LW, 16384, 32768)
        hitems = self.s2_load_items()
        a.wait_vm("hst")
        self.barrier()
        self.flag_store_rc(F_S1)
        self.stamp("s1flag")
        if p0late:
            H(self.nonce_compute)
            H(self.kv_dma)
            if o.get("bpos", 0) == 1:
                H(lambda: self.touch_chip("ssm"))
                H(lambda: self.touch_chip("w3"))
            self.hacts(w2[:4])
            self.hpaced(w2[4:], 70, self.p0_compute)
            H(lambda: self.a.wait_lg_all())
            self.idx_s1()
            self.barrier()
            H(self.p0_readback)
            H(self.p0_store)
        else:
            H(self.p0_readback)
            H(self.p0_store)
            if o.get("bpos", 0) == 1:
                H(lambda: self.touch_chip("ssm"))
                H(lambda: self.touch_chip("w3"))
            self.hacts(w2)
            self.idx_s1()
        H(lambda: self.conv_filter_loads(0))
        H(self.w3_setup)
        w3 = self.w3_items([0, 1, 2, 3])
        k0, k1, k2 = o.get("k0", 8), o.get("k1", 14), o.get("k2", 16)
        self.hacts(w3[:k0])
        self.hwait("kvt")
        self.hwait("w2")
        self.poll_issue(F_S1, "ps1")
        self.poll_check("ps1", 2)
        self.stamp("s1poll")
        nh2 = o.get("nh2", 10)
        for f in hitems[:nh2]:
            f()
        self.barrier()
        self.stamp("hiss")
        H(lambda: self.flag_store_rc(F_P0))
        if o.get("bpos", 0) == 2:
            H(lambda: self.touch_chip("ssm"))
            H(lambda: self.touch_chip("w3"))
        H(self.idx_p0)
        H(lambda: self.poll_issue(F_P0, "pp0"))
        self.hacts(w3[k0:k1])
        self.fq = hitems[nh2:]
        self.s2_main()
        self.stamp("s2main")

        def after_x2():
            H(lambda: self.poll_check("pp0", 1))
            H(lambda: self.conv_x_loads(0))
            H(lambda: self.conv_prep_filter(0))
            H(lambda: self.conv_x_write(0))
        self.s2_epilogue(after_x2)
        self.stamp("s2epi")
        self.barrier()
        H(lambda: self.conv_poly(0))
        self.hacts(w3[k1:k2])
        self.conv_addr(0)
        a.wait_vm("x1st")
        self.barrier()
        self.flag_store_rc(F_S2)
        self.stamp("s2flag")
        H(lambda: self.touch_chip("w4"))
        self.hacts(w3[k2:])

        def hook0(rho):
            if rho == o.get("pollrho2", 3):
                self.idx_s2()
                self.poll_issue(F_S2, "ps2")
        self.conv_main(hook0)
        self.stamp("cv0main")
        xitems = self.s3_load_items()
        nx = o.get("nx", 12)
        self.conv_finish(0)
        self.hwait("w3")
        self.barrier()
        self.stamp("cv0fin")
        H(self.s3_addr)
        H(self.s3_colsum)
        H(self.w4_setup)
        self.s3_addr()
        self.poll_check("ps2", 3)
        self.stamp("s2poll")
        for f in xitems[:nx]:
            f()
        sitems = self.s3_stat_items()
        rest = xitems[nx:]
        self.fq = []
        for i in range(len(rest)):
            self.fq.append(rest[i])
            self.fq.append(sitems[i] if i < 16 else (lambda: None))

        w4r = self.w4_reg_loads(W4_B, 56)

        def s3mid():
            self.barrier()
            H(lambda: self.conv_filter_loads(1))
            H(lambda: self.conv_x_loads(1))
            self.hacts(self.w4_items(0, W4_A, "w4"))
            self.hacts(w4r[:o.get("r1", 8)])
        self.s3_main(s3mid)
        self.fill_all()
        self.stamp("s3main")
        self.barrier()
        H(lambda: self.conv_prep_filter(1))
        H(lambda: self.conv_x_write(1))
        w4m = self.w4_items(W4_A, W4_B, "w4")
        k3 = o.get("k3", 4)

        def after_tile(p):
            if p == 0:
                self.barrier()
                H(lambda: self.conv_poly(1))
                self.hacts(w4r[o.get("r1", 8):o.get("r2", 20)])
                self.hacts(w4m[:k3])
        self.s3_epilogue(after_tile)
        self.stamp("s3epi")
        self.conv_addr(1)
        a.wait_vm("Hst")
        self.barrier()
        a("s_lshl_b32 s%d, s%d, 4" % (sB, sRP))
        a("s_add_u32 s%d, s%d, s%d" % (sB, sB, sCP))
        self.flag_store(F_S3, sB)
        self.stamp("s3flag")
        self.hacts(w4m[k3:])
        self.hacts(w4r[o.get("r2", 20):])
        self.nonce_update()

        def hook1(rho):
            if rho == o.get("pollrho", 2):
                self.idx_s3()
                self.poll_issue(F_S3, "ps3")
        self.conv_main(hook1)
        self.stamp("cv1main")
        hitems = self.s4_load_items()
        self.poll_check("ps3", 5)
        self.stamp("s3poll")
        for _ in range(o.get("nh", 14)):
            hitems.pop(0)()
        self.conv_finish(1)
        for _ in range(o.get("nhb", 6)):
            hitems.pop(0)()
        self.s4_addr()
        self.hwait("w4")
        self.barrier()
        self.stamp("cv1fin")
        self.s4_main(hitems)
        self.stamp("s4main")
        self.s4_epilogue()
        self.stamp("s4epi")
        self.finish()


REF = "cdna_kernels/%s.s.ref" % NAME


def emit(stop=None, stamps=False, opt=None, keep=None):
    g = Gen(stop, stamps, opt)
    g.keep = keep
    g.build()
    nops = g.a.fix_hazards()
    top = [l for l in open(REF).read().split("\n") if l.startswith(";") and "@launch" not in l and "Override" not in l
           and "grid=ceil" not in l]
    out = top + ["; @launch grid=(256,1,1) block=(512,1,1) lds=%d" % LDS_BYTES,
                 '.amdgcn_target "amdgcn-amd-amdhsa--gfx950"', ".text", ".globl %s_kernel" % NAME, ".p2align 8",
                 ".type %s_kernel,@function" % NAME, "%s_kernel:" % NAME]
    body = g.a.text()
    tail = ['.section .rodata,"a"', ".p2align 6", ".amdhsa_kernel %s_kernel" % NAME,
            "  .amdhsa_next_free_vgpr 256", "  .amdhsa_next_free_sgpr 102", "  .amdhsa_accum_offset 192",
            "  .amdhsa_group_segment_fixed_size 0", "  .amdhsa_kernarg_size 112", "  .amdhsa_user_sgpr_count 2",
            "  .amdhsa_user_sgpr_kernarg_segment_ptr 1", "  .amdhsa_system_sgpr_workgroup_id_x 1",
            "  .amdhsa_float_denorm_mode_32 3", ".end_amdhsa_kernel"]
    text = "\n".join(out) + "\n" + body + "\n".join(tail) + "\n"
    return text, g, nops


if __name__ == "__main__":
    ap = argparse.ArgumentParser()
    ap.add_argument("-o", default="cdna_kernels/%s.s" % NAME)
    ap.add_argument("--stop", default=None)
    ap.add_argument("--stamps", action="store_true")
    ap.add_argument("--opt", default="")
    ap.add_argument("--keep", default="")
    args = ap.parse_args()
    opt = dict((kv.split("=")[0], int(kv.split("=")[1])) for kv in args.opt.split(",") if kv)
    text, g, nops = emit(args.stop, args.stamps, opt, args.keep.split(",") if args.keep else None)
    open(args.o, "w").write(text)
    n = sum(1 for x in g.a.ins if x.kind != "label")
    print("instructions: %d, hazard nops: %d" % (n, nops))
    if g.stamp_names:
        print(",".join(g.stamp_names))
        open(args.o + ".stamps", "w").write(",".join(g.stamp_names))
```

```python
import argparse
import os
import struct
import sys

sys.path.insert(0, os.path.dirname(os.path.abspath(__file__)))
from asmlib import Asm

NAME = "parallel_sum__ssm_conv_h3__mixer_s_mlp__prompt"

WS_FLAGS = 4096
WS_STAMP = 0xD0000
WS_FLAGS_L = 0x80000
WS_TEAM = 0xC0000
WS_KVT = 0x100000
WS_YT = 0x300000
WS_HS = 0x500000
WS_X1 = 0x700000
WS_ST = 0x900000
WS_HH = 0xA00000
WS_SIZE = 0x10000000
OOB = 0x40000000
F_S1, F_S2, F_S3, F_CV, F_P0 = 0, 1, 2, 3, 4

LQ = 0
LW = 65536
LSTG = 131072
LRED = 139264
LSTX = 155648
LCSX = 156672
LCS3 = 161280
LKV = 8192
LDS_BYTES = 163840
CV_X = 0
CV_XD = 1152
CV_A = 5248
CV_P = 21760
CV_R = 5248
CV_BASE = 114688
W3_P = 0
W3_H = 98304
CV_BASE1 = 69632
W4_A, W4_B, W4_C = 11, 28, 39
S4_RED = CV_BASE1


def w4_off(ks):
    if ks < W4_A:
        return 114688 + ks * 4096
    if ks < W4_B:
        return (ks - W4_A) * 4096
    if ks < W4_C:
        return CV_BASE1 + (ks - W4_B) * 4096
    return w4_off(ks - W4_C)

S_WS, S_Q, S_K, S_V, S_SHK, S_SSM, S_W1, S_W2, S_W3, S_W4, S_OUT = 4, 8, 12, 16, 20, 24, 32, 36, 40, 44, 48
S_DPTR = 28
S_DBG = 30
sR, sC, sW, sTH, sKH, sN, sRP, sCP = 52, 53, 54, 55, 56, 57, 58, 59
sT, sT3 = 60, 61
sD0, sD1 = 62, 63
sA, sB, sCc, sD, sE, sF = 64, 65, 66, 67, 68, 69
sW2L, sW2G, sW3L, sW3G, sW3HL, sW3HG, sW4L, sW4G, sSO, sLD = 70, 71, 72, 73, 74, 75, 76, 77, 78, 79
sONES, sHI = 80, 81
sK4, sK8, sK12 = 82, 83, 84
sEPS, sTMO, sKG1, sKG3, s512I = 85, 86, 87, 88, 89
sSTA = 90
sROT, sQG, sWG, sCP0 = 92, 93, 94, 95
sXCC, sLOC = 20, 21

vL, vL16, vWP, vWN = 0, 1, 2, 3
vQ, vX1 = 4, 12
vMEAN, vR1 = 20, 21
vTID, vHH, vN31, vSTAMP = 22, 23, 24, 25
vW64 = 31
vCH = 172
vPF, vPA = 170, 171
vW3F, vW3H, vQE = 153, 154, 155
vST = 172

GELU_K1 = 2.0 * 0.7978845608028654 * 1.4426950408889634
GELU_K3 = GELU_K1 * 0.044715
MF32 = "v_mfma_f32_32x32x16_bf16"
MF16 = "v_mfma_f32_16x16x32_bf16"


def f32bits(x):
    return struct.unpack("<I", struct.pack("<f", x))[0]


def vr(a, n):
    return "v[%d:%d]" % (a, a + n - 1)


def ar(a, n):
    return "a[%d:%d]" % (a, a + n - 1)


def sr(a, n):
    return "s[%d:%d]" % (a, a + n - 1)


class Gen:
    def __init__(self, stop=None, stamps=False, opt=None):
        self.opt = opt or {}
        self.keep = None
        self.a = Asm()
        self.h = Asm()
        self.h.uid = 100000
        self.hpend = []
        self.nbar = 0
        self.stop = stop
        self.stamps = stamps
        self.nstamp = 0
        self.stamp_names = []
        self.fq = []
        self.pq = []
        self.interval = 0
        self.clock = 0.0
        self.hold = 0
        self.a.hook = self._pace
        self.h.hook = self._pace

    def _pace(self, x):
        if x.kind == "mfma":
            self.clock += 32 if x.passes == 8 else 16
        elif x.kind == "valu":
            self.clock += 8 if x.is_trans() else 4.5
        elif x.kind == "ds":
            self.clock += 13 if x.op == "ds_write_b128" else 2
        elif x.kind == "vmem":
            self.clock += 20
        else:
            return
        if self.hold or not self.pq or not self.interval or x.kind == "vmem":
            return
        if self.clock >= self.interval:
            self.clock = 0.0
            self.hold += 1
            self.pq.pop(0)()
            self.hold -= 1

    def paced(self, items, interval):
        self.pq += items
        self.interval = interval
        self.clock = 0.0

    def pace_flush(self, tag=None):
        self.hold += 1
        if tag is None:
            n = len(self.pq)
        else:
            n = max([i + 1 for i, f in enumerate(self.pq) if f.tag == tag], default=0)
        for _ in range(n):
            self.pq.pop(0)()
        self.hold -= 1

    def stamp(self, name):
        if not self.stamps:
            return
        if self.keep and name not in self.keep and name not in ("start", "end"):
            return
        self.hold += 1
        self._stamp(name)
        self.hold -= 1

    def _stamp(self, name):
        a = self.a
        a("s_memtime %s" % sr(sSTA, 2))
        a("s_waitcnt lgkmcnt(0)")
        a.lg = []
        a("v_writelane_b32 v%d, s%d, %d" % (vSTAMP, sSTA, self.nstamp))
        if name in ("start", "end"):
            a("s_memrealtime %s" % sr(sSTA, 2))
            a("s_waitcnt lgkmcnt(0)")
            a("v_writelane_b32 v%d, s%d, %d" % (vSTAMP, sSTA, 62 if name == "start" else 63))
            if name == "start":
                a("v_writelane_b32 v%d, s3, 61" % vSTAMP)
        self.stamp_names.append(name)
        self.nstamp += 1

    def hact(self, fn):
        self.hpend.append(fn)

    def hacts(self, fns):
        self.hpend += fns

    def hstamp(self, idx):
        if not self.opt.get("barstamps", 0):
            return

        def f():
            a = self.a
            a("s_memtime %s" % sr(sSTA, 2))
            a("s_waitcnt lgkmcnt(0)")
            a.lg = []
            a("v_writelane_b32 v191, s%d, %d" % (sSTA, 32 + idx))
        self.hpend.append(f)

    def hpaced(self, items, interval, fn):
        def f():
            saved = (self.pq, self.interval, self.clock, self.hold)
            self.pq, self.interval, self.clock, self.hold = list(items), interval, 0.0, 0
            fn()
            self.hold = 1
            self.pace_flush()
            self.pq, self.interval, self.clock, self.hold = saved
        self.hpend.append(f)

    def hwait(self, tag):
        self.hpend.append(lambda: self.a.wait_vm(tag))

    def hrun(self):
        c, fq = self.a, self.fq
        self.a, self.fq = self.h, []
        self.hold += 1
        for fn in self.hpend:
            fn()
        self.hold -= 1
        self.hpend = []
        self.a, self.fq = c, fq

    def barrier(self, name=""):
        bs = self.opt.get("barstamps", 0)
        if bs:
            self.hold += 1
            self.a("s_memtime %s" % sr(sSTA, 2))
            self.a("s_waitcnt lgkmcnt(0)")
            self.a.lg = []
            self.a("v_writelane_b32 v31, s%d, %d" % (sSTA, self.nbar))
            self.hold -= 1
        self.a("s_barrier")
        self.hrun()
        if bs:
            self.h("s_memtime %s" % sr(sSTA, 2))
            self.h("s_waitcnt lgkmcnt(0)")
            self.h.lg = []
            self.h("v_writelane_b32 v191, s%d, %d" % (sSTA, self.nbar))
        self.h("s_barrier")
        self.nbar += 1

    def fill(self, n=1):
        for _ in range(n):
            if self.fq:
                self.fq.pop(0)()

    def fill_all(self):
        while self.fq:
            self.fq.pop(0)()

    def dma_item(self, srd, voff, sl, loff, sg, goff, tag):
        def f():
            a = self.a
            a("s_add_u32 m0, s%d, %d" % (sl, loff))
            a("s_add_u32 s%d, s%d, %d" % (sSO, sg, goff))
            a.vmem("buffer_load_dwordx4 v%d, %s, s%d offen lds" % (voff, sr(srd, 4), sSO), tag)
            a.check_vm_depth()
        f.tag = tag
        return f

    def flag_store(self, phase, sidx):
        local = self.opt.get("local", 1) and phase in (F_S2, F_S3)
        a = self.a
        self.hold += 1
        skip = a.newlabel("noflag")
        a("s_cmp_lg_u32 s%d, 0" % sW)
        a("s_cbranch_scc1 %s" % skip)
        a("s_lshl_b32 s%d, s%d, 7" % (sA, sidx))
        a("s_add_u32 s%d, s%d, %d" % (sA, sA, WS_FLAGS + phase * 256 * 128))
        a("v_mov_b32 v26, s%d" % sN)
        a("v_mov_b32 v27, s%d" % sA)
        a("s_mov_b64 exec, 1")
        if local:
            a("s_mov_b32 s%d, 0x%x" % (sSO, WS_FLAGS_L - WS_FLAGS))
            a("buffer_store_dword v26, v27, %s, s%d offen" % (sr(S_WS, 4), sSO))
        a("buffer_store_dword v26, v27, %s, 0 offen sc1" % sr(S_WS, 4))
        a("s_mov_b64 exec, -1")
        a.label(skip)
        self.hold -= 1

    def team_publish(self):
        a = self.a
        if not self.opt.get("local", 1):
            return
        skip = a.newlabel("noteam")
        a("s_getreg_b32 s%d, hwreg(HW_REG_XCC_ID)" % sXCC)
        a("s_and_b32 s%d, s%d, 15" % (sXCC, sXCC))
        a("s_cmp_lg_u32 s%d, 0" % sW)
        a("s_cbranch_scc1 %s" % skip)
        a("s_lshl_b32 s%d, s2, 7" % sA)
        a("s_add_u32 s%d, s%d, 0x%x" % (sA, sA, WS_TEAM))
        a("v_mov_b32 v26, s%d" % sN)
        a("v_mov_b32 v27, s%d" % sXCC)
        a("v_mov_b32 v28, s%d" % sA)
        a("s_mov_b64 exec, 1")
        a("buffer_store_dwordx2 v[26:27], v28, %s, 0 offen sc1" % sr(S_WS, 4))
        a("s_mov_b64 exec, -1")
        a.label(skip)

    def team_load(self):
        a = self.a
        if not self.opt.get("local", 1):
            return
        a("s_and_b32 s%d, s2, 7" % sA)
        a("v_lshlrev_b32 v26, 3, v%d" % vN31)
        a("v_add_u32 v26, s%d, v26" % sA)
        a("v_lshlrev_b32 v26, 7, v26")
        a("v_add_u32 v26, 0x%x, v26" % WS_TEAM)
        a.vmem("buffer_load_dwordx2 v[168:169], v26, %s, 0 offen sc1" % sr(S_WS, 4), "team")

    def team_check(self):
        a = self.a
        if not self.opt.get("local", 1):
            return
        a.wait_vm("team")
        a("v_cmp_ne_u32 vcc, s%d, v168" % sN)
        a("v_cmp_ne_u32 %s, s%d, v169" % (sr(sSTA, 2), sXCC))
        a("s_or_b64 vcc, vcc, %s" % sr(sSTA, 2))
        a("s_cmp_eq_u64 vcc, 0")
        a("s_cselect_b32 s%d, 0x%x, 0" % (sLOC, WS_FLAGS_L - WS_FLAGS))

    def flag_store_rc(self, phase):
        a = self.a
        a("s_lshl_b32 s%d, s%d, 3" % (sB, sR))
        a("s_add_u32 s%d, s%d, s%d" % (sB, sB, sC))
        self.flag_store(phase, sB)

    def poll_issue(self, phase, tag):
        a = self.a
        a("v_lshlrev_b32 v%d, 7, v28" % vPA)
        a("v_add_u32 v%d, %d, v%d" % (vPA, WS_FLAGS + phase * 256 * 128, vPA))
        if self.opt.get("local", 1) and phase in (F_S2, F_S3):
            a("v_add_u32 v%d, s%d, v%d" % (vPA, sLOC, vPA))
        a.vmem("buffer_load_dword v%d, v%d, %s, 0 offen sc1" % (vPF, vPA, sr(S_WS, 4)), tag)

    def poll_check(self, tag, code):
        a = self.a
        self.hold += 1
        loop = a.newlabel("poll")
        done = a.newlabel("polled")
        a.wait_vm(tag)
        a("v_cmp_ne_u32 vcc, s%d, v%d" % (sN, vPF))
        a("s_cmp_eq_u64 vcc, 0")
        a("s_cbranch_scc1 %s" % done)
        a("s_mov_b32 s%d, 0x40000" % sTMO)
        a.label(loop)
        a("buffer_load_dword v%d, v%d, %s, 0 offen sc1" % (vPF, vPA, sr(S_WS, 4)))
        a("s_waitcnt vmcnt(0)")
        a("v_cmp_ne_u32 vcc, s%d, v%d" % (sN, vPF))
        a("s_cmp_eq_u64 vcc, 0")
        a("s_cbranch_scc1 %s" % done)
        a("s_sub_u32 s%d, s%d, 1" % (sTMO, sTMO))
        a("s_cmp_lg_u32 s%d, 0" % sTMO)
        a("s_cbranch_scc1 %s" % loop)
        a("v_mov_b32 v26, 0")
        a("v_mov_b32 v27, %d" % (0x100 + code))
        a("s_mov_b64 exec, 1")
        a("global_store_dword v26, v27, %s" % sr(S_DBG, 2))
        a("s_mov_b64 exec, -1")
        a.label(done)
        self.hold -= 1

    def idx_s1(self):
        a = self.a
        a("s_lshl_b32 s%d, s%d, 1" % (sA, sTH))
        a("s_sub_u32 s%d, s%d, 1" % (sA, sA))
        a("s_add_u32 s%d, s%d, s%d" % (sA, sA, sR))
        a("s_cmp_lt_u32 s%d, 32" % sA)
        a("s_cselect_b32 s%d, s%d, s%d" % (sA, sA, sR))
        a("v_mov_b32 v28, s%d" % sR)
        a("v_mov_b32 v29, s%d" % sA)
        a("v_and_b32 v27, 4, v%d" % vL)
        a("v_cmp_eq_u32 vcc, 0, v27")
        a("v_cndmask_b32 v28, v29, v28, vcc")
        a("v_lshlrev_b32 v28, 3, v28")
        a("v_and_b32 v29, 3, v%d" % vL)
        a("v_add_u32 v28, v28, v29")
        a("s_lshl_b32 s%d, s%d, 2" % (sA, sKH))
        a("v_add_u32 v28, s%d, v28" % sA)

    def idx_p0(self):
        a = self.a
        a("s_lshr_b32 s%d, s2, 5" % sA)
        a("s_lshl_b32 s%d, s%d, 6" % (sB, sW))
        a("s_add_u32 s%d, s%d, s%d" % (sA, sA, sB))
        a("v_and_b32 v28, 7, v%d" % vL)
        a("v_lshlrev_b32 v28, 3, v28")
        a("v_add_u32 v28, s%d, v28" % sA)
        a("s_bfe_u32 s%d, s2, 0x20003" % sA)
        a("v_lshl_add_u32 v28, v28, 2, s%d" % sA)

    def p0_wave_flag(self):
        a = self.a
        a.wait_vm("kvt")
        a("s_lshl_b32 s%d, s%d, 3" % (sA, sR))
        a("s_add_u32 s%d, s%d, s%d" % (sA, sA, sC))
        a("s_lshl_b32 s%d, s%d, 2" % (sA, sA))
        a("s_add_u32 s%d, s%d, s%d" % (sA, sA, sW))
        a("s_lshl_b32 s%d, s%d, 7" % (sA, sA))
        a("s_add_u32 s%d, s%d, %d" % (sA, sA, WS_FLAGS + F_P0 * 256 * 128))
        a("v_mov_b32 v26, s%d" % sN)
        a("v_mov_b32 v27, s%d" % sA)
        a("s_mov_b64 exec, 1")
        a("buffer_store_dword v26, v27, %s, 0 offen sc1" % sr(S_WS, 4))
        a("s_mov_b64 exec, -1")

    def idx_s2(self):
        a = self.a
        a("s_lshr_b32 s%d, s%d, 1" % (sA, sT3))
        a("s_lshl_b32 s%d, s%d, 3" % (sA, sA))
        a("v_and_b32 v28, 7, v%d" % vL)
        a("v_add_u32 v28, s%d, v28" % sA)

    def idx_s3(self):
        a = self.a
        a("s_lshr_b32 s%d, s%d, 1" % (sA, sR))
        a("s_lshl_b32 s%d, s%d, 4" % (sA, sA))
        a("s_lshl_b32 s%d, s%d, 3" % (sB, sKH))
        a("s_add_u32 s%d, s%d, s%d" % (sA, sA, sB))
        a("v_and_b32 v28, 7, v%d" % vL)
        a("v_add_u32 v28, s%d, v28" % sA)

    def idx_cv(self):
        a = self.a
        self.feat0(sA, sKH, 0)
        a("s_lshr_b32 s%d, s%d, 1" % (sA, sA))
        a("v_and_b32 v28, 15, v%d" % vL)
        a("v_add_u32 v28, s%d, v28" % sA)

    def prologue(self):
        a = self.a
        if self.stamps or self.opt.get("dbgtime", 0):
            a("s_memrealtime s[100:101]")
            a("s_waitcnt lgkmcnt(0)")
            a("s_mov_b32 s3, s100")
        a("s_cmp_ge_u32 s2, 256")
        a("s_cbranch_scc1 L_end")
        a("s_load_dwordx16 s[64:79], s[0:1], 0")
        a("s_load_dwordx8 s[92:99], s[0:1], 64")
        a("s_load_dwordx2 %s, s[0:1], 96" % sr(S_DBG, 2))
        a("s_load_dwordx2 %s, s[0:1], 104" % sr(S_WS, 2))
        sizes = {S_WS: WS_SIZE, S_Q: 1 << 21, S_K: 1 << 21, S_V: 1 << 21, S_SHK: 4096, S_SSM: 1 << 21,
                 S_W1: 1 << 19, S_W2: 1 << 19, S_W3: 512 * 1792 * 2, S_W4: 512 * 1792 * 2, S_OUT: 1 << 21}
        for s, n in sizes.items():
            a("s_mov_b32 s%d, 0x%x" % (s + 2, n))
            a("s_mov_b32 s%d, 0x20000" % (s + 3))
        a("s_and_b32 s100, s2, 7")
        a("s_lshr_b32 s101, s2, 3")
        a("s_lshr_b32 s%d, s101, 3" % sR)
        a("s_lshl_b32 s%d, s100, 2" % sC)
        a("s_add_u32 s%d, s%d, s%d" % (sR, sR, sC))
        a("s_and_b32 s%d, s101, 7" % sC)
        a("s_lshr_b32 s%d, s101, 4" % sRP)
        a("s_lshl_b32 s100, s100, 1")
        a("s_add_u32 s%d, s%d, s100" % (sRP, sRP))
        a("s_and_b32 s%d, s101, 15" % sCP)
        a("v_and_b32 v%d, 0xff, v0" % vTID)
        a("v_lshrrev_b32 v26, 6, v0")
        a("v_and_b32 v%d, 63, v0" % vL)
        a("v_readfirstlane_b32 s%d, v26" % sTMO)
        a("v_lshlrev_b32 v%d, 4, v%d" % (vL16, vL))
        a("v_lshrrev_b32 v%d, 5, v%d" % (vHH, vL))
        a("v_and_b32 v%d, 31, v%d" % (vN31, vL))
        a("s_and_b32 s%d, s%d, 3" % (sW, sTMO))
        a("s_lshr_b32 s%d, s%d, 1" % (sTH, sW))
        a("s_and_b32 s%d, s%d, 1" % (sKH, sW))
        a("s_lshl_b32 s%d, s%d, 1" % (sT, sR))
        a("s_add_u32 s%d, s%d, s%d" % (sT, sT, sTH))
        a("s_lshl_b32 s%d, s%d, 2" % (sT3, sRP))
        a("s_add_u32 s%d, s%d, s%d" % (sT3, sT3, sW))
        a("s_mov_b32 s%d, 0x3f803f80" % sONES)
        a("s_mov_b32 s%d, 0xffff0000" % sHI)
        a("s_movk_i32 s%d, 0x1000" % sK4)
        a("s_movk_i32 s%d, 0x2000" % sK8)
        a("s_movk_i32 s%d, 0x3000" % sK12)
        a("s_mov_b32 s%d, 0x%x" % (sEPS, f32bits(1e-5)))
        a("s_mov_b32 s%d, 0x%x" % (sKG1, f32bits(-GELU_K1)))
        a("s_mov_b32 s%d, 0x%x" % (sKG3, f32bits(-GELU_K3)))
        a("s_mov_b32 s%d, 0x%x" % (s512I, f32bits(1.0 / 512)))
        a("s_waitcnt lgkmcnt(0)")
        for sreg, src in ((S_Q, 64), (S_W1, 78), (S_K, 66), (S_V, 68), (S_SHK, 70), (S_SSM, 72), (S_DPTR, 74)):
            a("s_mov_b64 %s, %s" % (sr(sreg, 2), sr(src, 2)))
        for i, sreg in enumerate([S_W2, S_W3, S_W4, S_OUT]):
            a("s_mov_b64 %s, %s" % (sr(sreg, 2), sr(92 + 2 * i, 2)))
        a("s_add_u32 s%d, s%d, s%d" % (sROT, sR, sC))
        a("s_and_b32 s%d, s%d, 3" % (sROT, sROT))
        a("s_cmp_ge_u32 s%d, 4" % sTMO)
        a("s_cbranch_scc1 L_loader")
        if self.opt.get("prio", 1):
            a("s_setprio 1")
        if self.stamps:
            a("v_mov_b32 v%d, 0" % vSTAMP)
        self.stamp("start")
        if self.opt.get("dbgtime", 0):
            a("s_memtime s[98:99]")
            a("s_waitcnt lgkmcnt(0)")
        self.ssm_d_load()

    def tr_addresses(self):
        a = self.a
        a("v_bfe_u32 v26, v%d, 2, 2" % vL)
        a("v_and_b32 v27, 3, v%d" % vL)
        a("v_bfe_u32 v28, v%d, 4, 1" % vL)
        a("v_lshlrev_b32 v27, 3, v27")
        a("v_lshl_add_u32 v27, v28, 5, v27")
        a("v_lshl_add_u32 v28, v%d, 2, v26" % vHH)
        a("v_lshl_add_u32 v%d, v28, 6, v27" % vWP)
        a("v_lshl_add_u32 v28, v%d, 3, v26" % vHH)
        a("v_lshl_add_u32 v%d, v28, 6, v27" % vWN)

    def loader_setup(self):
        a = self.a
        a.label("L_loader")
        a("v_lshrrev_b32 v26, 2, v%d" % vL)
        a("v_and_b32 v27, 3, v%d" % vL)
        a("v_lshlrev_b32 v27, 4, v27")
        a("v_lshl_add_u32 v%d, v26, 10, v27" % vW64)
        a("v_lshrrev_b32 v26, 3, v%d" % vL)
        a("v_and_b32 v27, 7, v%d" % vL)
        a("v_lshrrev_b32 v28, 4, v%d" % vL)
        a("v_xor_b32 v27, v27, v28")
        a("v_lshlrev_b32 v27, 4, v27")
        a("v_lshl_add_u32 v%d, v26, 10, v27" % vQE)
        a("v_xor_b32 v%d, 64, v%d" % (vQE + 1, vQE))
        a("s_lshl_b32 s%d, s%d, 14" % (sCc, sW))
        a("s_lshl_b32 s%d, s%d, 15" % (sD, sT))
        a("s_lshl_b32 s%d, s%d, 9" % (sA, sKH))
        a("s_add_u32 s%d, s%d, s%d" % (sD, sD, sA))
        self.w64_bases(sW2L, sW2G)

    def feat0(self, dst, spanel, shift):
        a = self.a
        if self.opt.get("remap", 0):
            a("s_lshl_b32 s%d, s%d, %d" % (dst, sC, 5 + shift))
            a("s_lshl_b32 s%d, s%d, %d" % (sSO, spanel, 8 + shift))
        else:
            a("s_lshl_b32 s%d, s%d, %d" % (dst, sC, 6 + shift))
            a("s_lshl_b32 s%d, s%d, %d" % (sSO, spanel, 5 + shift))
        a("s_add_u32 s%d, s%d, s%d" % (dst, dst, sSO))

    def w64_bases(self, sl, sg):
        a = self.a
        a("s_lshl_b32 s%d, s%d, 15" % (sl, sTH))
        a("s_lshl_b32 s%d, s%d, 14" % (sA, sKH))
        a("s_add_u32 s%d, s%d, s%d" % (sl, sl, sA))
        a("s_add_u32 s%d, s%d, %d" % (sl, sl, LW))
        a("s_lshl_b32 s%d, s%d, 18" % (sg, sKH))
        self.feat0(sA, sTH, 1)
        a("s_add_u32 s%d, s%d, s%d" % (sg, sg, sA))

    def s1_stage_items(self, st):
        items = []

        def head():
            a = self.a
            a("s_add_u32 s%d, s%d, %d" % (sB, sROT, st))
            a("s_and_b32 s%d, s%d, 3" % (sB, sB))
            a("s_lshl_b32 s%d, s%d, 7" % (sQG, sB))
            a("s_add_u32 s%d, s%d, s%d" % (sQG, sQG, sD))
            a("s_lshl_b32 s%d, s%d, 16" % (sWG, sB))
            a("s_add_u32 s%d, s%d, s%d" % (sWG, sWG, sW2G))
        for j in range(4):
            def f(j=j):
                if j == 0:
                    head()
                self.dma_item(S_Q, vQE + (j & 1), sCc, LQ + st * 4096 + j * 1024, sQG, j * 8192, "s1_%d" % st)()
            items.append(f)
        for i in range(4):
            items.append(self.dma_item(S_W1, vW64, sW2L, (4 * st + i) * 1024, sWG, i * 16384, "s1_%d" % st))
        return items

    def touch(self, srd, lanes, sidx, dst):
        a = self.a
        a("s_mul_i32 s%d, s%d, %d" % (sA, sidx, lanes))
        a("v_add_u32 v26, s%d, v%d" % (sA, vL))
        a("v_lshlrev_b32 v26, 7, v26")
        a("v_mov_b32 v27, 0x%x" % OOB)
        a("v_cmp_gt_u32 vcc, %d, v%d" % (lanes, vL))
        a("v_cndmask_b32 v26, v27, v26, vcc")
        a.vmem("buffer_load_dword v%d, v26, %s, 0 offen" % (dst, sr(srd, 4)), "touch")

    def touch_w2(self):
        a = self.a
        if self.opt.get("touch", 1):
            a("s_lshr_b32 s%d, s2, 3" % sE)
            a("s_lshl_b32 s%d, s%d, 2" % (sE, sE))
            a("s_add_u32 s%d, s%d, s%d" % (sE, sE, sW))
            self.touch(S_W2, 32, sE, 53)

    def touch_chip(self, which):
        a = self.a
        srd, lanes, dst = {"w2": (S_W2, 4, 160), "ssm": (S_SSM, 16, 161), "w3": (S_W3, 14, 163), "w4": (S_W4, 14, 162)}[which]
        if not self.opt.get("t" + which, 1):
            return
        a("s_lshl_b32 s%d, s2, 2" % sE)
        a("s_add_u32 s%d, s%d, s%d" % (sE, sE, sW))
        self.touch(srd, lanes, sE, dst)

    def touch_code(self):
        a = self.a
        if not self.opt.get("tcode", 1):
            return
        a("s_getpc_b64 s[96:97]")
        a.label("L_pc")
        a("s_sub_u32 s96, s96, L_pc-%s_kernel" % NAME)
        a("s_subb_u32 s97, s97, 0")
        a("s_lshr_b32 s%d, s2, 3" % sE)
        a("s_lshl_b32 s%d, s%d, 2" % (sE, sE))
        a("s_add_u32 s%d, s%d, s%d" % (sE, sE, sW))
        a("s_mul_i32 s%d, s%d, 3" % (sE, sE))
        a("v_min_u32 v26, 2, v%d" % vL)
        a("v_add_u32 v26, s%d, v26" % sE)
        a("v_min_u32 v26, (L_codeend-%s_kernel)/128-1, v26" % NAME)
        a("v_lshlrev_b32 v26, 7, v26")
        a("v_mov_b32 v135, s97")
        a("v_add_co_u32 v134, vcc, s96, v26")
        a("v_addc_co_u32 v135, vcc, 0, v135, vcc")
        a.vmem("global_load_dword v136, v[134:135], off", "touch")

    def cold_touches(self):
        a = self.a
        o = self.opt
        a("s_lshr_b32 s%d, s2, 3" % sE)
        a("s_lshl_b32 s%d, s%d, 2" % (sE, sE))
        a("s_add_u32 s%d, s%d, s%d" % (sE, sE, sW))
        if o.get("tq", 0):
            a("s_and_b32 s%d, s2, 7" % sF)
            a("s_lshl_b32 s%d, s%d, 7" % (sF, sF))
            a("s_add_u32 s%d, s%d, s%d" % (sF, sF, sE))
            self.touch(S_Q, 16, sF, 160)
            self.touch(S_W1, 32, sE, 161)

    def touch_rows(self, srd, rows_per_wave, srow0, col, dst):
        a = self.a
        a("v_add_u32 v26, s%d, v%d" % (srow0, vL))
        a("v_lshlrev_b32 v26, 10, v26")
        a("v_add_u32 v26, %d, v26" % col)
        a("v_mov_b32 v27, 0x%x" % OOB)
        a("v_cmp_gt_u32 vcc, %d, v%d" % (rows_per_wave, vL))
        a("v_cndmask_b32 v26, v27, v26, vcc")
        a.vmem("buffer_load_dword v%d, v26, %s, 0 offen" % (dst, sr(srd, 4)), "touch")

    def wave_in_group(self, dst):
        a = self.a
        a("s_lshr_b32 s%d, s2, 3" % dst)
        a("s_lshl_b32 s%d, s%d, 2" % (dst, dst))
        a("s_add_u32 s%d, s%d, s%d" % (dst, dst, sW))

    def head_start(self):
        a = self.a
        m = self.opt.get("head", 15)
        self.wave_in_group(sE)
        if m & 1:
            a("s_lshl_b32 s%d, s%d, 2" % (sF, sE))
            self.touch_rows(S_W1, 4, sF, 384, 160)
        if m & 2:
            a("s_and_b32 s%d, s2, 7" % sF)
            a("s_lshl_b32 s%d, s%d, 7" % (sF, sF))
            a("s_add_u32 s%d, s%d, s%d" % (sF, sF, sE))
            a("s_lshl_b32 s%d, s%d, 1" % (sF, sF))
            self.touch_rows(S_K, 2, sF, 384, 161)
            self.touch_rows(S_V, 2, sF, 384, 162)
        if m & 4:
            a("s_lshl_b32 s%d, s%d, 2" % (sF, sE))
            self.touch_rows(S_W2, 4, sF, 384, 163)

    def head_start_w4(self):
        a = self.a
        if self.opt.get("head", 15) & 8:
            self.wave_in_group(sE)
            a("s_mul_i32 s%d, s%d, 14" % (sF, sE))
            self.touch_rows(S_W4, 14, sF, 384, 161)

    def batch_a(self):
        a = self.a
        if self.opt.get("tkv", 1):
            self.touch_kv(157, 158)
        if self.opt.get("tw2", 1):
            a("s_lshr_b32 s%d, s2, 3" % sE)
            a("s_lshl_b32 s%d, s%d, 2" % (sE, sE))
            a("s_add_u32 s%d, s%d, s%d" % (sE, sE, sW))
            self.touch(S_W2, 32, sE, 159)
        if self.opt.get("bpos", 0) == 0:
            self.touch_chip("ssm")
            self.touch_chip("w3")

    def kv_dma(self):
        a = self.a
        a("v_lshrrev_b32 v26, 3, v%d" % vL)
        a("v_and_b32 v27, 7, v%d" % vL)
        a("v_lshlrev_b32 v27, 4, v27")
        a("v_lshl_add_u32 v137, v26, 10, v27")
        a("s_lshl_b32 s%d, s%d, 6" % (sA, sR))
        a("s_lshl_b32 s%d, s%d, 4" % (sB, sW))
        a("s_add_u32 s%d, s%d, s%d" % (sA, sA, sB))
        a("v_add_u32 v26, s%d, v26" % sA)
        a("s_lshl_b32 s%d, s%d, 10" % (sQG, sA))
        a("s_lshl_b32 s%d, s%d, 7" % (sB, sC))
        a("s_add_u32 s%d, s%d, s%d" % (sQG, sQG, sB))
        a("v_add_u32 v138, s%d, v137" % sQG)
        a("v_subrev_u32 v138, 3072, v138")
        a("v_mov_b32 v27, 0x%x" % OOB)
        a("v_cmp_gt_u32 vcc, 3, v26")
        a("v_cndmask_b32 v138, v138, v27, vcc")
        a("s_lshl_b32 s%d, s%d, 14" % (sWG, sW))
        a("s_add_u32 m0, s%d, %d" % (sWG, LKV))
        a.vmem("buffer_load_dwordx4 v138, %s, 0 offen lds" % sr(S_K, 4), "kv")
        for g in (1, 2):
            self.dma_item(S_K, 137, sWG, LKV + 1024 * g, sQG, 8192 * g - 3072, "kv")()
        for g in (0, 1):
            self.dma_item(S_V, 137, sWG, LKV + 3072 + 1024 * g, sQG, 8192 * g, "kv")()
        a("s_lshl_b32 s%d, s%d, 9" % (sB, sC))
        a("v_lshl_add_u32 v26, v%d, 4, s%d" % (vN31, sB))
        a.vmem("buffer_load_dwordx4 %s, v26, %s, 0 offen" % (vr(self.SHRAW, 4), sr(S_SHK, 4)), "kv")

    def p0_reads(self):
        a = self.a
        a.wait_vm("kv")
        a("s_lshl_b32 s%d, s%d, 14" % (sA, sW))
        a("v_lshlrev_b32 v26, 10, v%d" % vHH)
        a("v_lshl_add_u32 v26, v%d, 2, v26" % vN31)
        a("v_add_u32 v26, s%d, v26" % sA)
        a("v_add_u32 v26, %d, v26" % LKV)
        for i in range(11):
            a.lds("ds_read_b32 v%d, v26 offset:%d" % (self.KRAW + i, 128 * i), "p0")
        for i in range(8):
            a.lds("ds_read_b32 v%d, v26 offset:%d" % (self.VRAW + i, 3072 + 128 * i), "p0")

    def touch_kv(self, dk=54, dv=55):
        a = self.a
        for srd, rows, first, dst in ((S_K, 17, -3, dk), (S_V, 16, 0, dv)):
            a("s_lshl_b32 s%d, s%d, 6" % (sA, sR))
            a("s_mul_i32 s%d, s%d, %d" % (sB, sW, rows))
            a("s_add_u32 s%d, s%d, s%d" % (sA, sA, sB))
            a("s_add_i32 s%d, s%d, %d" % (sA, sA, first))
            a("v_add_u32 v26, s%d, v%d" % (sA, vL))
            a("v_lshlrev_b32 v26, 10, v26")
            a("s_lshl_b32 s%d, s%d, 7" % (sB, sC))
            a("v_add_u32 v26, s%d, v26" % sB)
            a("v_mov_b32 v27, 0x%x" % OOB)
            a("v_cmp_gt_u32 vcc, %d, v%d" % (rows, vL))
            a("v_cndmask_b32 v26, v27, v26, vcc")
            a.vmem("buffer_load_dword v%d, v26, %s, 0 offen" % (dst, sr(srd, 4)), "touch")

    def touch_w3_local(self):
        a = self.a
        if self.opt.get("tw3", 1):
            a("s_lshr_b32 s%d, s2, 3" % sE)
            a("s_lshl_b32 s%d, s%d, 2" % (sE, sE))
            a("s_add_u32 s%d, s%d, s%d" % (sE, sE, sW))
            self.touch(S_W3, 64, sE, 50)
            a("s_add_u32 s%d, s%d, 128" % (sE, sE))
            self.touch(S_W3, 64, sE, 51)

    def touch_w4_chip(self):
        a = self.a
        if self.opt.get("tw4", 1):
            a("s_lshl_b32 s%d, s2, 2" % sE)
            a("s_add_u32 s%d, s%d, s%d" % (sE, sE, sW))
            self.touch(S_W4, 14, sE, 52)

    def touch_w34(self):
        a = self.a
        if self.opt.get("touch", 1):
            a("s_lshl_b32 s%d, s2, 2" % sE)
            a("s_add_u32 s%d, s%d, s%d" % (sE, sE, sW))
            if self.opt.get("touchw3", 1):
                self.touch(S_W3, 14, sE, 223)
            if self.opt.get("touchw4", 1):
                self.touch(S_W4, 14, sE, 224)

    def touch_w4_local(self):
        a = self.a
        a("s_lshr_b32 s%d, s2, 3" % sE)
        a("s_lshl_b32 s%d, s%d, 2" % (sE, sE))
        a("s_add_u32 s%d, s%d, s%d" % (sE, sE, sW))
        self.touch(S_W4, 64, sE, 54)
        a("s_add_u32 s%d, s%d, 128" % (sE, sE))
        self.touch(S_W4, 64, sE, 55)

    KRAW, VRAW, SHRAW, POFF = 172, 183, 164, 138

    def p0_loads(self):
        a = self.a
        o = self.POFF
        a("s_lshl_b32 s%d, s%d, 6" % (sA, sR))
        a("s_lshl_b32 s%d, s%d, 4" % (sB, sW))
        a("s_add_u32 s%d, s%d, s%d" % (sA, sA, sB))
        a("v_lshl_add_u32 v26, v%d, 3, s%d" % (vHH, sA))
        a("s_lshl_b32 s%d, s%d, 7" % (sB, sC))
        a("v_lshl_add_u32 v27, v%d, 2, s%d" % (vN31, sB))
        a("v_lshl_add_u32 v%d, v26, 10, v27" % (o + 3))
        a("v_add_u32 v%d, 0x1000, v%d" % (o + 4, o + 3))
        a("v_mov_b32 v28, 0x%x" % OOB)
        for i in range(3):
            a("v_subrev_u32 v%d, %d, v%d" % (o + i, (3 - i) * 1024, o + 3))
            a("v_cmp_gt_u32 vcc, %d, v26" % (3 - i))
            a("v_cndmask_b32 v%d, v%d, v28, vcc" % (o + i, o + i))
        a("s_lshl_b32 s%d, s%d, 9" % (sB, sC))
        a("v_lshl_add_u32 v%d, v%d, 4, s%d" % (o + 5, vN31, sB))

        def item(text):
            return lambda: a.vmem(text, "p0")
        for i in range(3):
            self.fq.append(item("buffer_load_dword v%d, v%d, %s, 0 offen" % (self.KRAW + i, o + i, sr(S_K, 4))))
        for i in range(8):
            self.fq.append(item("buffer_load_dword v%d, v%d, %s, 0 offen offset:%d"
                                % (self.KRAW + 3 + i, o + 3 + i // 4, sr(S_K, 4), (i % 4) * 1024)))
        for i in range(8):
            self.fq.append(item("buffer_load_dword v%d, v%d, %s, 0 offen offset:%d"
                                % (self.VRAW + i, o + 3 + i // 4, sr(S_V, 4), (i % 4) * 1024)))
        self.fq.append(item("buffer_load_dwordx4 %s, v%d, %s, 0 offen" % (vr(self.SHRAW, 4), o + 5, sr(S_SHK, 4))))

    ACK, ACS, ACC_CS = 32, 48, 64
    BF, AK, AS, AC = 80, 96, 104, 112
    SUM, ONE4 = 120, 124

    def s1_setup(self):
        a = self.a
        a("v_bfe_u32 v26, v%d, 1, 3" % vN31)
        a("v_xor_b32 v26, v26, v%d" % vHH)
        a("v_lshlrev_b32 v26, 4, v26")
        a("v_lshl_add_u32 v26, v%d, 7, v26" % vN31)
        a("s_lshl_b32 s%d, s%d, 14" % (sA, sW))
        a("v_add_u32 v128, s%d, v26" % sA)
        for i in range(1, 4):
            a("v_xor_b32 v%d, %d, v128" % (128 + i, 32 * i))
        a("s_lshl_b32 s%d, s%d, 14" % (sA, sKH))
        a("s_add_u32 s%d, s%d, %d" % (sA, sA, LW))
        a("s_lshl_b32 s%d, s%d, 15" % (sB, sKH))
        a("s_add_u32 s%d, s%d, s%d" % (sE, sA, sB))
        a("v_add_u32 v134, s%d, v%d" % (sE, vWN))
        a("s_xor_b32 s%d, s%d, 0x8000" % (sB, sB))
        a("s_add_u32 s%d, s%d, s%d" % (sE, sA, sB))
        a("v_add_u32 v135, s%d, v%d" % (sE, vWN))
        a("s_xor_b32 s%d, s%d, s%d" % (sB, sKH, sTH))
        a("s_lshl_b32 s%d, s%d, 15" % (sB, sB))
        a("s_add_u32 s%d, s%d, s%d" % (sE, sA, sB))
        a("v_add_u32 v136, s%d, v%d" % (sE, vWN))

    def s1_main(self, after_stage):
        a = self.a
        ACK, ACS, ACC_CS, BF, AK, AS, AC, SUM, ONE4 = (self.ACK, self.ACS, self.ACC_CS, self.BF, self.AK, self.AS,
                                                       self.AC, self.SUM, self.ONE4)
        self.selector(ONE4)
        for i in range(4):
            a("v_mov_b32 v%d, 0" % (SUM + i))

        def aread(ks, which):
            base, addr = ((AK, 134), (AS, 135), (AC, 136))[which]
            for hf in range(2):
                a.lds("ds_read_b64_tr_b16 %s, v%d offset:%d"
                      % (vr(base + 4 * (ks & 1) + 2 * hf, 2), addr, ks * 1024 + hf * 256), "f%d_%d" % (ks, which))

        for st in range(4):
            if st < 3:
                after_stage(st)
            for q4 in range(4):
                a.lds("ds_read_b128 %s, v%d offset:%d" % (vr(BF + 4 * q4, 4), 128 + q4, LQ + st * 4096), "b")
            for which in range(3):
                aread(4 * st, which)
            self.fill(1)
            a.wait_lg("b")
            for j in range(16):
                a("v_dot2c_f32_bf16 v%d, s%d, v%d" % (SUM + (j & 1), sONES, BF + j))
                a("v_dot2c_f32_bf16 v%d, v%d, v%d" % (SUM + 2 + (j & 1), BF + j, BF + j))
                if j in (5, 11):
                    self.fill(1)
            for q4 in range(4):
                ks = 4 * st + q4
                b = ks & 1
                B = vr(BF + 4 * q4, 4)
                first = ks == 0
                a.wait_lg("f%d_0" % ks)
                a("%s %s, %s, %s, %s" % (MF32, vr(ACK, 16), vr(AK + 4 * b, 4), B, "0" if first else vr(ACK, 16)))
                if q4 < 3:
                    aread(ks + 1, 0)
                self.fill(1)
                a.wait_lg("f%d_1" % ks)
                a("%s %s, %s, %s, %s" % (MF32, vr(ACS, 16), vr(AS + 4 * b, 4), B, "0" if first else vr(ACS, 16)))
                if q4 < 3:
                    aread(ks + 1, 1)
                self.fill(1)
                a.wait_lg("f%d_2" % ks)
                a("%s %s, %s, %s, %s" % (MF16, vr(ACC_CS, 4), vr(AC + 4 * b, 4), vr(ONE4, 4),
                                         "0" if first else vr(ACC_CS, 4)))
                if q4 < 3:
                    aread(ks + 1, 2)
            self.stamp("s1st%d" % st)
        self.fill_all()

    def selector(self, dst):
        a = self.a
        a("v_lshrrev_b32 v26, 4, v%d" % vL)
        a("v_xor_b32 v26, v26, v%d" % vL)
        a("v_and_b32 v26, 1, v26")
        a("v_mov_b32 v27, s%d" % sONES)
        a("v_cmp_eq_u32 vcc, 0, v26")
        a("v_cndmask_b32 v%d, 0, v27, vcc" % dst)
        for i in range(1, 4):
            a("v_mov_b32 v%d, v%d" % (dst + i, dst))

    def colsum_write(self, src, sbase):
        a = self.a
        a("v_and_b32 v28, 1, v%d" % vL)
        a("v_lshlrev_b32 v28, 6, v28")
        a("v_lshrrev_b32 v29, 4, v%d" % vL)
        a("v_lshl_add_u32 v28, v29, 4, v28")
        a("v_add_u32 v28, s%d, v28" % sbase)
        self.hold += 1
        a("s_mov_b32 exec_lo, 0x30003")
        a("s_mov_b32 exec_hi, 0x30003")
        a.lds("ds_write_b128 v28, %s" % vr(src, 4))
        a("s_mov_b64 exec, -1")
        self.hold -= 1

    def q_tile_read(self):
        a = self.a
        self.feat0(sE, sKH, 0)
        a("s_lshr_b32 s%d, s%d, 8" % (sA, sE))
        a("s_lshl_b32 s%d, s%d, 1" % (sB, sTH))
        a("s_add_u32 s%d, s%d, s%d" % (sA, sA, sB))
        a("s_lshl_b32 s%d, s%d, 14" % (sA, sA))
        a("s_lshr_b32 s%d, s%d, 6" % (sB, sE))
        a("s_sub_u32 s%d, s%d, s%d" % (sB, sB, sROT))
        a("s_and_b32 s%d, s%d, 3" % (sB, sB))
        a("s_lshl_b32 s%d, s%d, 12" % (sB, sB))
        a("s_add_u32 s%d, s%d, s%d" % (sA, sA, sB))
        a("s_bfe_u32 s%d, s%d, 0x10005" % (sB, sE))
        a("s_lshl_b32 s%d, s%d, 2" % (sB, sB))
        a("v_bfe_u32 v26, v%d, 1, 3" % vN31)
        a("v_xor_b32 v26, s%d, v26" % sB)
        a("v_lshlrev_b32 v27, 7, v%d" % vN31)
        a("v_lshl_add_u32 v27, v%d, 3, v27" % vHH)
        a("v_add_u32 v27, s%d, v27" % sA)
        for j in range(4):
            a("v_xor_b32 v28, %d, v26" % j)
            a("v_lshl_add_u32 v28, v28, 4, v27")
            a.lds("ds_read_b64 %s, v28 offset:%d" % (vr(vQ + 2 * j, 2), LQ), "qt")

    def gelu(self, X, n, vA13, vIA, T, out, fills=0):
        a = self.a
        for g0 in range(0, n // 2, 4):
            ps = list(range(g0, min(g0 + 4, n // 2)))
            t = lambda p: T + 4 * (p - g0)
            x = lambda p: vr(X + 2 * p, 2)
            left = fills

            def hook():
                nonlocal left
                if left > 0:
                    self.fill(1)
                    left -= 1
            for p in ps:
                a("v_pk_mul_f32 %s, %s, %s" % (vr(t(p), 2), x(p), x(p)))
            for p in ps:
                a("v_pk_fma_f32 %s, %s, %s, %s op_sel:[0,1,0] op_sel_hi:[1,1,0]"
                  % (vr(t(p), 2), vr(t(p), 2), vr(vA13, 2), vr(vA13, 2)))
            hook()
            for p in ps:
                a("v_pk_mul_f32 %s, %s, %s" % (vr(t(p), 2), vr(t(p), 2), x(p)))
            for p in ps:
                a("v_exp_f32 v%d, v%d" % (t(p) + 2, t(p)))
                a("v_exp_f32 v%d, v%d" % (t(p) + 3, t(p) + 1))
            hook()
            for p in ps:
                a("v_pk_fma_f32 %s, %s, %s, %s op_sel_hi:[1,0,0]"
                  % (vr(t(p), 2), vr(t(p) + 2, 2), vr(vIA, 2), vr(vIA, 2)))
            hook()
            for p in ps:
                a("v_rcp_f32 v%d, v%d" % (t(p) + 2, t(p)))
                a("v_rcp_f32 v%d, v%d" % (t(p) + 3, t(p) + 1))
            hook()
            for p in ps:
                a("v_pk_mul_f32 %s, %s, %s" % (vr(t(p), 2), vr(t(p) + 2, 2), x(p)))
            for p in ps:
                a("v_cvt_pk_bf16_f32 v%d, v%d, v%d" % (out + p, t(p), t(p) + 1))

    def gelu_consts(self, vA, dst):
        a = self.a
        a("v_mul_f32 v%d, s%d, v%d" % (dst, sKG1, vA))
        a("v_mul_f32 v%d, v%d, v%d" % (dst + 1, vA, vA))
        a("v_mul_f32 v%d, v%d, v%d" % (dst + 1, dst + 1, vA))
        a("v_mul_f32 v%d, s%d, v%d" % (dst + 1, sKG3, dst + 1))
        a("v_rcp_f32 v%d, v%d" % (dst + 2, vA))

    def exchange_write(self, send, base=LRED):
        a = self.a
        a("s_lshl_b32 s%d, s%d, 12" % (sA, sW))
        a("s_add_u32 s%d, s%d, %d" % (sA, sA, base))
        a("v_add_u32 v26, s%d, v%d" % (sA, vL16))
        for j in range(4):
            a.lds("ds_write_b128 v26, %s offset:%d" % (vr(send + 4 * j, 4), 1024 * j))

    def exchange_read(self, dst, base=LRED):
        a = self.a
        a("s_xor_b32 s%d, s%d, 1" % (sA, sW))
        a("s_lshl_b32 s%d, s%d, 12" % (sA, sA))
        a("s_add_u32 s%d, s%d, %d" % (sA, sA, base))
        a("v_add_u32 v26, s%d, v%d" % (sA, vL16))
        for j in range(4):
            a.lds("ds_read_b128 %s, v26 offset:%d" % (vr(dst + 4 * j, 4), 1024 * j), "xr")

    def s1_epilogue(self, after_exchange):
        a = self.a
        ACK, ACS, ACC_CS, SUM = self.ACK, self.ACS, self.ACC_CS, self.SUM
        self.q_tile_read()
        a("v_add_f32 v%d, v%d, v%d" % (SUM, SUM, SUM + 1))
        a("v_add_f32 v%d, v%d, v%d" % (SUM + 2, SUM + 2, SUM + 3))
        a("v_permlane32_swap_b32 v%d, v%d" % (SUM, SUM + 2))
        a("v_add_f32 v%d, v%d, v%d" % (SUM, SUM, SUM + 2))
        a("s_lshl_b32 s%d, s%d, 8" % (sA, sW))
        a("s_add_u32 s%d, s%d, %d" % (sA, sA, LSTX))
        a("v_lshl_add_u32 v27, v%d, 2, s%d" % (vL, sA))
        a.lds("ds_write_b32 v27, v%d" % SUM)
        self.exchange_write(ACS)
        a("s_xor_b32 s%d, s%d, s%d" % (sA, sKH, sTH))
        a("s_lshl_b32 s%d, s%d, 8" % (sA, sA))
        a("s_lshl_b32 s%d, s%d, 7" % (sB, sKH))
        a("s_add_u32 s%d, s%d, s%d" % (sA, sA, sB))
        a("s_add_u32 s%d, s%d, %d" % (sA, sA, LCSX))
        self.colsum_write(ACC_CS, sA)
        a.wait_lg_all()
        self.ssm_d_unpack()
        self.barrier()
        P, C0, C1 = 80, 96, 128
        self.exchange_read(P)
        a("s_xor_b32 s%d, s%d, 1" % (sA, sW))
        a("s_lshl_b32 s%d, s%d, 8" % (sA, sA))
        a("s_add_u32 s%d, s%d, %d" % (sA, sA, LSTX))
        a("v_lshl_add_u32 v27, v%d, 2, s%d" % (vL, sA))
        a.lds("ds_read_b32 v%d, v27" % (SUM + 1), "sx")
        a("s_lshl_b32 s%d, s%d, 8" % (sA, sKH))
        a("s_add_u32 s%d, s%d, %d" % (sA, sA, LCSX))
        a("v_lshl_add_u32 v28, v%d, 4, s%d" % (vHH, sA))
        for j in range(4):
            a.lds("ds_read_b128 %s, v28 offset:%d" % (vr(C0 + 4 * j, 4), 32 * j))
            a.lds("ds_read_b128 %s, v28 offset:%d" % (vr(C1 + 4 * j, 4), 128 + 32 * j))
        after_exchange()
        a.wait_lg("sx")
        a("v_add_f32 v%d, v%d, v%d" % (SUM, SUM, SUM + 1))
        a("v_mov_b32 v%d, v%d" % (SUM + 2, SUM))
        a("v_permlane32_swap_b32 v%d, v%d" % (SUM, SUM + 2))
        a("v_mul_f32 v%d, s%d, v%d" % (vMEAN, s512I, SUM))
        a("v_mul_f32 v26, s%d, v%d" % (s512I, SUM + 2))
        a("v_fma_f32 v26, -v%d, v%d, v26" % (vMEAN, vMEAN))
        a("v_max_f32 v26, 0, v26")
        a("v_add_f32 v27, s%d, v26" % sEPS)
        a("v_rsq_f32 v%d, v27" % vR1)
        a("v_mul_f32 v27, v%d, v%d" % (vR1, vR1))
        a("v_fma_f32 v27, v27, v26, s%d" % sEPS)
        a("v_rsq_f32 v27, v27")
        a("v_mul_f32 v27, v27, v%d" % vR1)
        G = 112
        self.gelu_consts(27, G)
        a("v_sub_f32 v%d, 0, v%d" % (G + 4, vMEAN))
        a.wait_lg_all()
        for p in range(8):
            a("v_pk_add_f32 %s, %s, %s" % (vr(C0 + 2 * p, 2), vr(C0 + 2 * p, 2), vr(C1 + 2 * p, 2)))
            a("v_pk_add_f32 %s, %s, %s" % (vr(ACK + 2 * p, 2), vr(ACK + 2 * p, 2), vr(P + 2 * p, 2)))
        for p in range(8):
            a("v_pk_fma_f32 %s, %s, %s, %s op_sel_hi:[1,0,1]"
              % (vr(ACK + 2 * p, 2), vr(C0 + 2 * p, 2), vr(G + 4, 2), vr(ACK + 2 * p, 2)))
        self.gelu(ACK, 16, G, G + 2, 144, 48, fills=0)
        self.frag_store(48, WS_HS, "hst")

    def frag_store(self, src, base, tag):
        a = self.a
        a("s_lshl_b32 s%d, s%d, 15" % (sA, sT))
        self.feat0(sB, sKH, 6)
        a("s_add_u32 s%d, s%d, s%d" % (sA, sA, sB))
        a("s_add_u32 s%d, s%d, 0x%x" % (sA, sA, base))
        a.vmem("buffer_store_dwordx4 %s, v%d, %s, s%d offen sc1" % (vr(src, 4), vL16, sr(S_WS, 4), sA), tag)
        a.vmem("buffer_store_dwordx4 %s, v%d, %s, s%d offen offset:1024 sc1"
               % (vr(src + 4, 4), vL16, sr(S_WS, 4), sA), tag)

    PK = 118

    def nonce_compute(self):
        a = self.a
        a.wait_vm("nonce")
        a("v_readfirstlane_b32 s%d, v30" % sN)
        a("s_mul_i32 s%d, s%d, 0x9e3779b1" % (sN, sN))
        a("s_add_u32 s%d, s%d, 0x7f4a7c15" % (sN, sN))

    def p0_compute(self, mid=None):
        a = self.a
        K, V, SH, KV, PK = 56, 78, 94, 102, self.PK
        self.p0_reads()
        a.wait_lg_all()
        d = self.SHRAW
        for j, (x, y, hi) in enumerate([(d, d + 2, 0), (d, d + 2, 1), (d + 1, d + 3, 0), (d + 1, d + 3, 1)]):
            for o, src in ((0, x), (1, y)):
                if hi:
                    a("v_and_b32 v%d, s%d, v%d" % (SH + 2 * j + o, sHI, src))
                else:
                    a("v_lshlrev_b32 v%d, 16, v%d" % (SH + 2 * j + o, src))
        for i in range(11):
            a("v_lshlrev_b32 v%d, 16, v%d" % (K + 2 * i, self.KRAW + i))
            a("v_and_b32 v%d, s%d, v%d" % (K + 2 * i + 1, sHI, self.KRAW + i))
            if i % 4 == 3:
                self.fill(1)
        for i in range(8):
            a("v_lshlrev_b32 v%d, 16, v%d" % (V + 2 * i, self.VRAW + i))
            a("v_and_b32 v%d, s%d, v%d" % (V + 2 * i + 1, sHI, self.VRAW + i))
        self.fill(1)
        for t in range(8):
            a("v_pk_mul_f32 %s, %s, %s" % (vr(KV + 2 * t, 2), vr(K + 2 * (t + 3), 2), vr(SH, 2)))
        self.fill(1)
        for j in range(1, 4):
            for t in range(8):
                a("v_pk_fma_f32 %s, %s, %s, %s" % (vr(KV + 2 * t, 2), vr(K + 2 * (t + 3 - j), 2), vr(SH + 2 * j, 2),
                                                   vr(KV + 2 * t, 2)))
            self.fill(1)
        if mid:
            mid()
            self.fill(4)
        for t in range(8):
            a("v_pk_mul_f32 %s, %s, %s" % (vr(KV + 2 * t, 2), vr(KV + 2 * t, 2), vr(V + 2 * t, 2)))
        self.fill(1)
        for c in range(2):
            for t in range(4):
                a("v_cvt_pk_bf16_f32 v%d, v%d, v%d" % (PK + 4 * c + t, KV + 4 * t + c, KV + 4 * t + 2 + c))
        a("s_lshl_b32 s%d, s%d, 1" % (sA, sW))
        a("v_add_u32 v26, s%d, v%d" % (sA, vHH))
        a("v_and_b32 v27, 7, v%d" % vN31)
        a("v_xor_b32 v26, v26, v27")
        a("v_lshlrev_b32 v26, 4, v26")
        a("v_lshl_add_u32 v26, v%d, 8, v26" % vN31)
        a("v_add_u32 v26, %d, v26" % LSTG)
        a.lds("ds_write_b128 v26, %s" % vr(PK, 4))
        a.lds("ds_write_b128 v26, %s offset:128" % vr(PK + 4, 4))
        self.fill_all()

    def p0_readback(self):
        a = self.a
        PK = 144
        a("v_lshrrev_b32 v26, 3, v%d" % vL)
        a("s_lshl_b32 s%d, s%d, 4" % (sA, sW))
        a("v_add_u32 v26, s%d, v26" % sA)
        a("v_and_b32 v27, 7, v%d" % vL)
        for i in range(2):
            a("v_add_u32 v28, %d, v26" % (8 * i))
            a("v_bfe_u32 v29, v28, 1, 3")
            a("v_xor_b32 v29, v29, v27")
            a("v_lshlrev_b32 v29, 4, v29")
            a("v_lshl_add_u32 v29, v28, 7, v29")
            a("v_add_u32 v29, %d, v29" % LSTG)
            a.lds("ds_read_b128 %s, v29" % vr(PK + 4 * i, 4), "pk")
        a("v_lshlrev_b32 v27, 4, v27")
        a("v_lshl_add_u32 v152, v26, 12, v27")

    def p0_store(self):
        a = self.a
        PK = 144
        a("s_lshl_b32 s%d, s%d, 18" % (sA, sC))
        a("s_lshl_b32 s%d, s%d, 7" % (sB, sR))
        a("s_add_u32 s%d, s%d, s%d" % (sA, sA, sB))
        a("s_add_u32 s%d, s%d, 0x%x" % (sA, sA, WS_KVT))
        a("s_add_u32 s%d, s%d, 0x8000" % (sB, sA))
        a.wait_lg("pk")
        a.vmem("buffer_store_dwordx4 %s, v152, %s, s%d offen sc1" % (vr(PK, 4), sr(S_WS, 4), sA), "kvt")
        a.vmem("buffer_store_dwordx4 %s, v152, %s, s%d offen sc1" % (vr(PK + 4, 4), sr(S_WS, 4), sB), "kvt")

    def conv_filter_loads(self, ch):
        a = self.a
        a("v_lshlrev_b32 v26, 4, v%d" % vTID)
        a("v_subrev_u32 v27, 8, v26")
        a("v_mov_b32 v28, 0x%x" % OOB)
        a("v_cmp_eq_u32 vcc, 0, v%d" % vTID)
        a("v_cndmask_b32 v27, v27, v28, vcc")
        a("s_lshl_b32 s%d, s2, 13" % sA)
        if ch:
            a("s_add_u32 s%d, s%d, 0x1000" % (sA, sA))
        dA, dP = vr(vCH, 4), vr(vCH + 4, 2)
        a.vmem("buffer_load_dwordx4 %s, v26, %s, s%d offen" % (dA, sr(S_SSM, 4), sA), "cf")
        a.vmem("buffer_load_dwordx2 %s, v27, %s, s%d offen" % (dP, sr(S_SSM, 4), sA), "cf")

    def ssm_d_load(self):
        a = self.a
        a("s_lshl_b32 s%d, s2, 2" % sA)
        a("s_load_dword s%d, %s, s%d" % (sD0, sr(S_DPTR, 2), sA))

    def ssm_d_unpack(self):
        a = self.a
        a("s_and_b32 s%d, s%d, s%d" % (sD1, sD0, sHI))
        a("s_lshl_b32 s%d, s%d, 16" % (sD0, sD0))

    def conv_x_loads(self, ch):
        a = self.a
        a("v_lshlrev_b32 v26, 4, v%d" % vTID)
        a("s_lshl_b32 s%d, s2, 13" % sA)
        a("s_add_u32 s%d, s%d, 0x%x" % (sA, sA, WS_KVT + 0x1000 * ch))
        a.vmem("buffer_load_dwordx4 %s, v26, %s, s%d offen sc1" % (vr(vCH + 6, 4), sr(S_WS, 4), sA), "cx")

    def conv_prep_filter(self, ch):
        a = self.a
        base = CV_BASE1 if ch else CV_BASE
        A, P = vCH, vCH + 4
        a.wait_vm("cf")
        a("v_min_u32 v26, 79, v%d" % vTID)
        a("v_subrev_u32 v27, 72, v26")
        a("v_lshrrev_b32 v28, 1, v27")
        a("v_mul_u32_u24 v28, 4128, v28")
        a("v_and_b32 v27, 1, v27")
        a("v_lshl_add_u32 v28, v27, 4, v28")
        a("v_add_u32 v28, %d, v28" % (base + CV_A))
        a("v_lshlrev_b32 v27, 4, v26")
        a("v_add_u32 v27, %d, v27" % (base + CV_X))
        a("v_cmp_gt_u32 vcc, 72, v26")
        a("v_cndmask_b32 v28, v28, v27, vcc")
        for i in range(4):
            a("v_mov_b32 v%d, 0" % (32 + i))
        a.lds("ds_write_b128 v28, %s" % vr(32, 4))
        Z, Y, W = 36, 40, 44
        seq = [P, P + 1, A, A + 1, A + 2, A + 3]
        for j in range(4):
            a("v_alignbit_b32 v%d, v%d, v%d, 16" % (Z + j, seq[j + 1], seq[j]))
            a("v_alignbit_b32 v%d, v%d, v%d, 16" % (Y + j, seq[j + 2], seq[j + 1]))
            a("v_mov_b32 v%d, v%d" % (W + j, seq[j + 1]))
        a("v_lshlrev_b32 v29, 4, v%d" % vTID)
        a("v_add_u32 v29, %d, v29" % base)
        for rho, src in ((0, A), (1, Y), (2, W), (3, Z)):
            a.lds("ds_write_b128 v29, %s offset:%d" % (vr(src, 4), CV_A + 32 + 4128 * rho))
        a.wait_lg_all()

    def conv_x_write(self, ch):
        a = self.a
        base = CV_BASE1 if ch else CV_BASE
        a.wait_vm("cx")
        a("v_lshlrev_b32 v29, 4, v%d" % vTID)
        a("v_add_u32 v29, %d, v29" % base)
        a.lds("ds_write_b128 v29, %s offset:%d" % (vr(vCH + 6, 4), CV_XD))
        a.wait_lg_all()

    def conv_poly(self, ch):
        a = self.a
        base = CV_BASE1 if ch else CV_BASE
        a("s_lshl_b32 s%d, s%d, 5" % (sA, sW))
        a("s_sub_u32 s%d, %d, s%d" % (sA, base + CV_XD - 1024, sA))
        a("v_lshl_add_u32 v26, v%d, 3, s%d" % (vL, sA))
        for u in range(10):
            a.lds("ds_read_b64_tr_b16 %s, v26 offset:%d" % (vr(32 + 2 * u, 2), 512 * u), "u%d" % u)
        a("s_mul_i32 s%d, s%d, 5312" % (sA, sW))
        a("s_add_u32 s%d, s%d, %d" % (sA, sA, base + CV_P))
        a("v_and_b32 v27, 15, v%d" % vL)
        a("v_mul_u32_u24 v27, 328, v27")
        a("v_lshrrev_b32 v28, 4, v%d" % vL)
        a("v_lshl_add_u32 v27, v28, 3, v27")
        a("v_add_u32 v27, s%d, v27" % sA)
        for u in range(10):
            a.wait_lg("u%d" % u)
            a.lds("ds_write_b64 v27, %s offset:%d" % (vr(32 + 2 * u, 2), 32 * u))
        a.wait_lg_all()

    def conv_addr(self, ch):
        a = self.a
        base = CV_BASE1 if ch else CV_BASE
        a("s_lshl_b32 s%d, s%d, 3" % (sA, sW))
        a("s_sub_u32 s%d, %d, s%d" % (sA, base + CV_A + 32, sA))
        a("v_lshl_add_u32 v160, v%d, 3, s%d" % (vL, sA))
        a("s_mul_i32 s%d, s%d, 1312" % (sA, sW))
        a("s_add_u32 s%d, s%d, %d" % (sA, sA, base + CV_P + 32))
        a("v_bfe_u32 v26, v%d, 2, 2" % vL)
        a("v_mul_u32_u24 v26, 5312, v26")
        a("v_and_b32 v27, 3, v%d" % vL)
        a("v_lshrrev_b32 v28, 4, v%d" % vL)
        a("v_sub_u32 v27, v27, v28")
        a("v_lshl_add_u32 v26, v27, 3, v26")
        a("v_add_u32 v161, s%d, v26" % sA)

    CACC, CAF, CBF = 32, 64, 96

    def conv_main(self, hook=None, fill_every=0):
        a = self.a
        CACC, CAF, CBF = self.CACC, self.CAF, self.CBF

        def rd_list(rho):
            b = rho & 1
            out = []
            order = [("A", 0)] + [("B", c) for c in range(8)] + [("A", 1), ("A", 2), ("A", 3)]
            for kind, i in order:
                for hf in range(2):
                    if kind == "A":
                        out.append("ds_read_b64_tr_b16 %s, v160 offset:%d"
                                   % (vr(CAF + 16 * b + 4 * i + 2 * hf, 2), 4128 * rho + 1024 * i + 512 * hf))
                    else:
                        out.append("ds_read_b64_tr_b16 %s, v161 offset:%d"
                                   % (vr(CBF + 32 * b + 4 * i + 2 * hf, 2), 328 * rho + 32 * i + 32 * (1 - hf)))
            return out

        for x in rd_list(0):
            a.lds(x)
        a.wait_lg_all()
        cnt = 0
        for rho in range(4):
            if hook:
                hook(rho)
            b = rho & 1
            nxt = rd_list(rho + 1) if rho < 3 else []
            k = 0
            for q in range(4):
                for c in range(8 - 2 * q):
                    t = c + 2 * q
                    acc = vr(CACC + 4 * t, 4)
                    a("%s %s, %s, %s, %s" % (MF16, acc, vr(CAF + 16 * b + 4 * q, 4), vr(CBF + 32 * b + 4 * c, 4),
                                             "0" if (rho == 0 and q == 0) else acc))
                    for _ in range(2 if k < 8 else 1):
                        if nxt:
                            a.lds(nxt.pop(0))
                    k += 1
                    cnt += 1
                    if fill_every and cnt % fill_every == 0:
                        self.fill(1)
            assert not nxt
            a.wait_lg_all()

    def conv_finish(self, ch):
        a = self.a
        base = CV_BASE1 if ch else CV_BASE
        CACC = self.CACC
        self.barrier()
        a("s_lshl_b32 s%d, s%d, 11" % (sA, sW))
        a("s_add_u32 s%d, s%d, %d" % (sA, sA, base + CV_R))
        a("v_add_u32 v26, s%d, v%d" % (sA, vL16))
        for t in range(8):
            a.lds("ds_write_b128 v26, %s offset:%d" % (vr(CACC + 4 * t, 4), (t >> 1) * 8192 + (t & 1) * 1024))
        a("s_lshl_b32 s%d, s%d, 10" % (sA, sW))
        a("s_add_u32 s%d, s%d, %d" % (sA, sA, base + CV_XD))
        a("v_and_b32 v27, 15, v%d" % vL)
        a("v_lshlrev_b32 v27, 5, v27")
        a("v_lshrrev_b32 v28, 4, v%d" % vL)
        a("v_lshl_add_u32 v27, v28, 3, v27")
        a("v_add_u32 v27, s%d, v27" % sA)
        for u in range(2):
            a.lds("ds_read_b64 %s, v27 offset:%d" % (vr(100 + 2 * u, 2), 512 * u))
        a.wait_lg_all()
        self.barrier()
        a("s_lshl_b32 s%d, s%d, 13" % (sA, sW))
        a("s_add_u32 s%d, s%d, %d" % (sA, sA, base + CV_R))
        a("v_add_u32 v26, s%d, v%d" % (sA, vL16))
        for sl in range(4):
            for u in range(2):
                a.lds("ds_read_b128 %s, v26 offset:%d" % (vr(64 + 8 * sl + 4 * u, 4), sl * 2048 + u * 1024))
        for u in range(2):
            for j in range(2):
                a("v_lshlrev_b32 v%d, 16, v%d" % (104 + 4 * u + 2 * j, 100 + 2 * u + j))
                a("v_and_b32 v%d, s%d, v%d" % (105 + 4 * u + 2 * j, sHI, 100 + 2 * u + j))
        a("v_mov_b32 v112, s%d" % (sD1 if ch else sD0))
        a("v_lshrrev_b32 v26, 4, v%d" % vL)
        a("v_and_b32 v27, 1, v26")
        a("v_lshlrev_b32 v27, 9, v27")
        a("v_lshrrev_b32 v26, 1, v26")
        a("v_lshl_add_u32 v27, v26, 4, v27")
        a("v_and_b32 v26, 15, v%d" % vL)
        a("v_lshl_add_u32 v27, v26, 5, v27")
        a("s_lshl_b32 s%d, s%d, 10" % (sA, sW))
        a("v_add_u32 v27, s%d, v27" % sA)
        a("s_lshl_b32 s%d, s2, 13" % sA)
        a("s_add_u32 s%d, s%d, 0x%x" % (sA, sA, WS_YT + 0x1000 * ch))
        a.wait_lg_all()
        for p in range(4):
            a("v_pk_add_f32 %s, %s, %s" % (vr(64 + 2 * p, 2), vr(64 + 2 * p, 2), vr(72 + 2 * p, 2)))
            a("v_pk_add_f32 %s, %s, %s" % (vr(80 + 2 * p, 2), vr(80 + 2 * p, 2), vr(88 + 2 * p, 2)))
        for p in range(4):
            a("v_pk_add_f32 %s, %s, %s" % (vr(64 + 2 * p, 2), vr(64 + 2 * p, 2), vr(80 + 2 * p, 2)))
        for p in range(4):
            a("v_pk_fma_f32 %s, %s, %s, %s op_sel_hi:[1,0,1]" % (vr(64 + 2 * p, 2), vr(104 + 2 * p, 2), vr(112, 2),
                                                                vr(64 + 2 * p, 2)))
        for p in range(4):
            a("v_cvt_pk_bf16_f32 v%d, v%d, v%d" % (116 + p, 64 + 2 * p, 65 + 2 * p))
        a("v_permlane16_swap_b32 v116, v118")
        a("v_permlane16_swap_b32 v117, v119")
        a.vmem("buffer_store_dwordx4 %s, v27, %s, s%d offen sc1" % (vr(116, 4), sr(S_WS, 4), sA), "yt")

    def s2_load_items(self):
        a = self.a
        a("s_lshl_b32 s%d, s%d, 5" % (sA, sT))
        a("v_add_u32 v26, s%d, v%d" % (sA, vN31))
        a("s_add_u32 s%d, s%d, 1" % (sB, sKH))
        a("s_lshl_b32 s%d, s%d, 14" % (sA, sKH))
        a("s_add_u32 s%d, s%d, 0x%x" % (sA, sA, WS_HS))
        a("v_mov_b32 v29, 0x%x" % OOB)
        for i, op in enumerate(("v_subrev_u32", "v_add_u32")):
            a("%s v27, s%d, v26" % (op, sB))
            a("v_lshrrev_b32 v28, 5, v27")
            a("v_lshlrev_b32 v28, 15, v28")
            a("v_and_b32 v30, 31, v27")
            a("v_lshl_add_u32 v30, v%d, 5, v30" % vHH)
            a("v_lshl_add_u32 v28, v30, 4, v28")
            a("v_add_u32 v28, s%d, v28" % sA)
            a("v_cmp_gt_u32 vcc, 0x800, v27")
            a("v_cndmask_b32 v%d, v29, v28, vcc" % (140 + i))
        so = ["0", "s%d" % sK4, "s%d" % sK8, "s%d" % sK12]
        items = []
        for ks in range(16):
            def f(ks=ks):
                a.vmem("buffer_load_dwordx4 %s, v%d, %s, %s offen offset:%d sc1"
                       % (ar(4 * ks, 4), 140 + (ks >> 3), sr(S_WS, 4), so[ks >> 2], (ks & 3) * 1024), "h%d" % ks)
            items.append(f)
        return items

    def wpi_addr(self, vk, vs, base, khs, ps):
        a = self.a
        a("s_mul_i32 s%d, s%d, %d" % (sA, sKH, khs + ps))
        a("s_add_u32 s%d, s%d, %d" % (sA, sA, base))
        a("v_add_u32 v%d, s%d, v%d" % (vk, sA, vWP))
        a("s_mul_i32 s%d, s%d, %d" % (sA, sKH, khs - ps))
        a("s_add_u32 s%d, s%d, %d" % (sA, sA, base + ps))
        a("v_add_u32 v%d, s%d, v%d" % (vs, sA, vWP))

    def s2_main(self):
        a = self.a
        ACK, ACS, AK, AS = self.ACK, self.ACS, self.AK, self.AS

        def rd(ks, which):
            base, addr = ((AK, 128), (AS, 129))[which]
            for hf in range(2):
                a.lds("ds_read_b64_tr_b16 %s, v%d offset:%d" % (vr(base + 4 * (ks & 1) + 2 * hf, 2), addr,
                                                                ks * 1024 + hf * 512), "f%d_%d" % (ks, which))
        rd(0, 0)
        rd(0, 1)
        for ks in range(16):
            b = ks & 1
            a.wait_both("h%d" % ks, "f%d_0" % ks)
            a("%s %s, %s, %s, %s" % (MF32, vr(ACK, 16), vr(AK + 4 * b, 4), ar(4 * ks, 4), "0" if ks == 0 else vr(ACK, 16)))
            if ks < 15:
                rd(ks + 1, 0)
            self.fill(1)
            a.wait_lg("f%d_1" % ks)
            a("%s %s, %s, %s, %s" % (MF32, vr(ACS, 16), vr(AS + 4 * b, 4), ar(4 * ks, 4), "0" if ks == 0 else vr(ACS, 16)))
            if ks < 15:
                rd(ks + 1, 1)

    def unpack8(self, src, dst):
        a = self.a
        for j in range(8):
            a("v_lshlrev_b32 v%d, 16, v%d" % (dst + 2 * j, src + j))
            a("v_and_b32 v%d, s%d, v%d" % (dst + 2 * j + 1, sHI, src + j))

    def xn_tile(self, dst):
        a = self.a
        self.unpack8(vQ, dst)
        for p in range(8):
            a("v_pk_add_f32 %s, %s, %s op_sel_hi:[1,0] neg_lo:[0,1] neg_hi:[0,1]"
              % (vr(dst + 2 * p, 2), vr(dst + 2 * p, 2), vr(vMEAN, 2)))
        for p in range(8):
            a("v_pk_mul_f32 %s, %s, %s op_sel:[0,1] op_sel_hi:[1,1]"
              % (vr(dst + 2 * p, 2), vr(dst + 2 * p, 2), vr(vMEAN, 2)))

    def s2_epilogue(self, after_exchange):
        a = self.a
        ACK, ACS = self.ACK, self.ACS
        self.exchange_write(ACS)
        self.xn_tile(96)
        a.wait_lg_all()
        self.barrier()
        after_exchange()
        self.exchange_read(80)
        for p in range(8):
            a("v_pk_add_f32 %s, %s, %s" % (vr(ACK + 2 * p, 2), vr(ACK + 2 * p, 2), vr(96 + 2 * p, 2)))
        a.wait_lg_all()
        for p in range(8):
            a("v_pk_add_f32 %s, %s, %s" % (vr(ACK + 2 * p, 2), vr(ACK + 2 * p, 2), vr(80 + 2 * p, 2)))
        for p in range(8):
            a("v_cvt_pk_bf16_f32 v%d, v%d, v%d" % (vX1 + p, ACK + 2 * p, ACK + 2 * p + 1))
        self.frag_store(vX1, WS_X1, "x1st")
        a("v_pk_mul_f32 %s, %s, %s" % (vr(112, 2), vr(ACK, 2), vr(ACK, 2)))
        a("v_pk_add_f32 %s, %s, %s" % (vr(114, 2), vr(ACK, 2), vr(ACK + 2, 2)))
        for p in range(1, 8):
            a("v_pk_fma_f32 %s, %s, %s, %s" % (vr(112, 2), vr(ACK + 2 * p, 2), vr(ACK + 2 * p, 2), vr(112, 2)))
            if p >= 2:
                a("v_pk_add_f32 %s, %s, %s" % (vr(114, 2), vr(114, 2), vr(ACK + 2 * p, 2)))
        a("v_add_f32 v114, v114, v115")
        a("v_add_f32 v112, v112, v113")
        a("v_permlane32_swap_b32 v114, v112")
        a("v_add_f32 v114, v114, v112")
        a("s_lshl_b32 s%d, s%d, 1" % (sA, sC))
        a("s_add_u32 s%d, s%d, s%d" % (sA, sA, sKH))
        a("s_lshl_b32 s%d, s%d, 14" % (sA, sA))
        a("s_lshl_b32 s%d, s%d, 7" % (sB, sT))
        a("s_add_u32 s%d, s%d, s%d" % (sA, sA, sB))
        a("s_add_u32 s%d, s%d, 0x%x" % (sA, sA, WS_ST))
        a("v_lshlrev_b32 v26, 13, v%d" % vHH)
        a("v_lshl_add_u32 v26, v%d, 2, v26" % vN31)
        a.vmem("buffer_store_dword v114, v26, %s, s%d offen sc1" % (sr(S_WS, 4), sA), "x1st")

    def w3_setup(self):
        a = self.a
        a("s_movk_i32 s%d, 3584" % sB)
        a("v_lshrrev_b32 v26, 2, v%d" % vL)
        a("v_mul_lo_u32 v26, v26, s%d" % sB)
        a("v_and_b32 v27, 3, v%d" % vL)
        a("v_lshl_add_u32 v%d, v27, 4, v26" % vW3F)
        a("v_lshrrev_b32 v26, 1, v%d" % vL)
        a("v_mul_lo_u32 v26, v26, s%d" % sB)
        a("v_and_b32 v27, 1, v%d" % vL)
        a("v_lshl_add_u32 v%d, v27, 4, v26" % vW3H)
        a("s_mul_i32 s%d, s%d, %d" % (sW3HG, sW, 128 * 3584))
        a("s_mul_i32 s%d, s%d, 224" % (sA, sCP))
        a("s_add_u32 s%d, s%d, s%d" % (sW3HG, sW3HG, sA))
        a("s_and_b32 s%d, s%d, 1" % (sB, sCP))
        a("s_lshl_b32 s%d, s%d, 5" % (sW3G, sB))
        a("s_add_u32 s%d, s%d, s%d" % (sW3G, sW3G, sW3HG))
        a("s_xor_b32 s%d, s%d, 1" % (sB, sB))
        a("s_mul_i32 s%d, s%d, 192" % (sB, sB))
        a("s_add_u32 s%d, s%d, s%d" % (sW3HG, sW3HG, sB))
        a("s_lshl_b32 s%d, s%d, 13" % (sW3L, sW))
        a("s_lshl_b32 s%d, s%d, 12" % (sW3HL, sW))

    def w3_items(self, panels):
        out = []
        for p in panels:
            if p < 3:
                for i in range(8):
                    out.append(self.dma_item(S_W3, vW3F, sW3L, W3_P + p * 32768 + i * 1024, sW3G,
                                             p * 64 + i * 16 * 3584, "w3"))
            else:
                for i in range(4):
                    out.append(self.dma_item(S_W3, vW3H, sW3HL, W3_H + i * 1024, sW3HG, i * 32 * 3584, "w3"))
        return out

    def s3_load_items(self):
        a = self.a
        a("s_lshl_b32 s%d, s%d, 15" % (sLD, sT3))
        a("s_add_u32 s%d, s%d, 0x%x" % (sLD, sLD, WS_X1))
        items = []
        for ks in range(32):
            def f(ks=ks):
                if ks and ks % 4 == 0:
                    a("s_add_u32 s%d, s%d, 0x1000" % (sLD, sLD))
                a.vmem("buffer_load_dwordx4 %s, v%d, %s, s%d offen offset:%d sc1"
                       % (ar(4 * (ks % 16), 4), vL16, sr(S_WS, 4), sLD, (ks & 3) * 1024), "x%d" % ks)
            items.append(f)
        return items

    def s3_stat_items(self):
        a = self.a
        a("v_lshlrev_b32 v147, 13, v%d" % vHH)
        a("v_lshl_add_u32 v147, v%d, 2, v147" % vN31)
        items = []
        for sl in range(16):
            def f(sl=sl):
                a("s_lshl_b32 s%d, s%d, 7" % (sSO, sT3))
                a("s_add_u32 s%d, s%d, 0x%x" % (sSO, sSO, WS_ST + 0x4000 * sl))
                a.vmem("buffer_load_dword v%d, v147, %s, s%d offen sc1" % (vST + sl, sr(S_WS, 4), sSO), "st")
            items.append(f)
        return items

    def s3_addr(self):
        a = self.a
        a("v_add_u32 v144, %d, v%d" % (W3_P, vWP))
        a("v_add_u32 v145, %d, v%d" % (W3_P + 65536, vWP))
        a("v_bfe_u32 v26, v%d, 2, 2" % vL)
        a("v_lshl_add_u32 v26, v%d, 2, v26" % vHH)
        a("v_and_b32 v27, 3, v%d" % vL)
        a("v_lshlrev_b32 v27, 3, v27")
        a("v_lshl_add_u32 v26, v26, 5, v27")
        a("v_add_u32 v146, %d, v26" % W3_H)

    @staticmethod
    def w3_read(p, ks, hf, dst):
        if p < 2:
            return "ds_read_b64_tr_b16 %s, v144 offset:%d" % (vr(dst, 2), p * 32768 + ks * 1024 + hf * 512)
        if p == 2:
            return "ds_read_b64_tr_b16 %s, v145 offset:%d" % (vr(dst, 2), ks * 1024 + hf * 512)
        return "ds_read_b64_tr_b16 %s, v146 offset:%d" % (vr(dst, 2), ks * 512 + hf * 256)

    def s3_colsum(self):
        self.hold += 1
        self._s3_colsum()
        self.hold -= 1

    def _s3_colsum(self):
        a = self.a
        full = a.newlabel("csfull")
        done = a.newlabel("csdone")
        self.selector(120)
        a("s_cmp_lt_u32 s%d, 3" % sW)
        a("s_cbranch_scc1 %s" % full)
        for is_full in (False, True):
            if is_full:
                a.label(full)
                a("s_lshl_b32 s%d, s%d, 15" % (sA, sW))
                a("v_add_u32 v148, s%d, v144" % sA)
            stride, hstep, addr = (1024, 512, 148) if is_full else (512, 256, 146)
            saved = list(a.lg)
            a.lg = []

            def rd(ks):
                for hf in range(2):
                    a.lds("ds_read_b64_tr_b16 %s, v%d offset:%d" % (vr(96 + 4 * (ks % 6) + 2 * hf, 2), addr,
                                                                    ks * stride + hf * hstep), "c%d" % ks)
            for ks in range(5):
                rd(ks)
            for ks in range(32):
                a.wait_lg("c%d" % ks)
                a("%s %s, %s, %s, %s" % (MF16, vr(32 + 4 * (ks & 1), 4), vr(96 + 4 * (ks % 6), 4), vr(120, 4),
                                         "0" if ks < 2 else vr(32 + 4 * (ks & 1), 4)))
                if ks + 5 < 32:
                    rd(ks + 5)
            a.lg = saved
            if not is_full:
                a("s_branch %s" % done)
        a.label(done)
        a("v_pk_add_f32 v[32:33], v[32:33], v[36:37]")
        a("v_pk_add_f32 v[34:35], v[34:35], v[38:39]")
        a("s_lshl_b32 s%d, s%d, 7" % (sA, sW))
        a("s_add_u32 s%d, s%d, %d" % (sA, sA, LCS3))
        self.colsum_write(32, sA)
        a.wait_lg_all()

    def s3_main(self, mid):
        a = self.a
        AF = 96

        def rd(ks, p):
            for hf in range(2):
                a.lds(self.w3_read(p, ks, hf, AF + 16 * (ks & 1) + 4 * p + 2 * hf), "f%d_%d" % (ks, p))
        for p in range(4):
            rd(0, p)
        for ks in range(32):
            b = ks & 1
            for p in range(4):
                if p == 0:
                    a.wait_both("x%d" % ks, "f%d_0" % ks)
                else:
                    a.wait_lg("f%d_%d" % (ks, p))
                acc = vr(32 + 16 * p, 16)
                a("%s %s, %s, %s, %s" % (MF32, acc, vr(AF + 16 * b + 4 * p, 4), ar(4 * (ks % 16), 4),
                                         "0" if ks == 0 else acc))
                if ks < 31:
                    rd(ks + 1, p)
                if p in (0, 2):
                    self.fill(1)
            if ks == self.opt.get("s3mid", 18):
                mid()
            if ks in (7, 15, 23) and self.opt.get("s3st", 0):
                self.stamp("s3k%d" % ks)

    def s3_epilogue(self, after_tile):
        a = self.a
        G = 128
        a("v_lshlrev_b32 v28, 4, v%d" % vHH)
        a("v_add_u32 v149, %d, v28" % LCS3)

        def csread(p):
            n = 16 if p < 3 else 8
            for j in range(n // 4):
                a.lds("ds_read_b128 %s, v149 offset:%d" % (vr(96 + 16 * (p & 1) + 4 * j, 4), 128 * p + 32 * j), "cs%d" % p)
        csread(0)
        a.wait_vm("st")
        for s in (8, 4, 2, 1):
            for i in range(s):
                a("v_add_f32 v%d, v%d, v%d" % (vST + i, vST + i, vST + i + s))
        a("v_mov_b32 v%d, v%d" % (vST + 1, vST))
        a("v_permlane32_swap_b32 v%d, v%d" % (vST, vST + 1))
        a("v_mul_f32 v%d, s%d, v%d" % (vST + 2, s512I, vST))
        a("v_mul_f32 v26, s%d, v%d" % (s512I, vST + 1))
        a("v_fma_f32 v26, -v%d, v%d, v26" % (vST + 2, vST + 2))
        a("v_max_f32 v26, 0, v26")
        a("v_add_f32 v26, s%d, v26" % sEPS)
        a("v_rsq_f32 v27, v26")
        self.gelu_consts(27, G)
        a("v_sub_f32 v%d, 0, v%d" % (G + 4, vST + 2))
        a("s_mul_i32 s%d, s%d, 114688" % (sD, sT3))
        a("s_mul_i32 s%d, s%d, 7168" % (sA, sCP))
        a("s_add_u32 s%d, s%d, s%d" % (sD, sD, sA))
        a("s_add_u32 s%d, s%d, 0x%x" % (sD, sD, WS_HH))
        a("s_and_b32 s%d, s%d, 1" % (sB, sCP))
        a("s_lshl_b32 s%d, s%d, 10" % (sE, sB))
        a("s_add_u32 s%d, s%d, s%d" % (sE, sE, sD))
        a("s_xor_b32 s%d, s%d, 1" % (sB, sB))
        a("s_mul_i32 s%d, s%d, 6144" % (sB, sB))
        a("s_add_u32 s%d, s%d, s%d" % (sF, sD, sB))
        for p in range(4):
            n = 16 if p < 3 else 8
            C = 96 + 16 * (p & 1)
            if p < 3:
                csread(p + 1)
            a.wait_lg("cs%d" % p)
            acc = 32 + 16 * p
            for i in range(n // 2):
                a("v_pk_fma_f32 %s, %s, %s, %s op_sel_hi:[1,0,1]"
                  % (vr(acc + 2 * i, 2), vr(C + 2 * i, 2), vr(G + 4, 2), vr(acc + 2 * i, 2)))
            out = 152 + 8 * (p & 1)
            self.gelu(acc, n, G, G + 2, 176, out, fills=0)
            if p < 3:
                a("s_add_u32 s%d, s%d, %d" % (sA, sE, 2048 * p))
                a.vmem("buffer_store_dwordx4 %s, v%d, %s, s%d offen sc1" % (vr(out, 4), vL16, sr(S_WS, 4), sA), "Hst")
                a.vmem("buffer_store_dwordx4 %s, v%d, %s, s%d offen offset:1024 sc1"
                       % (vr(out + 4, 4), vL16, sr(S_WS, 4), sA), "Hst")
            else:
                a.vmem("buffer_store_dwordx4 %s, v%d, %s, s%d offen sc1" % (vr(out, 4), vL16, sr(S_WS, 4), sF), "Hst")
            after_tile(p)

    def w4_setup(self):
        a = self.a
        a("s_lshl_b32 s%d, s%d, 11" % (sW4L, sKH))
        a("s_lshl_b32 s%d, s%d, 10" % (sA, sTH))
        a("s_add_u32 s%d, s%d, s%d" % (sW4L, sW4L, sA))
        a("s_mul_i32 s%d, s%d, %d" % (sW4G, sKH, 896 * 1024))
        self.feat0(sA, sTH, 1)
        a("s_add_u32 s%d, s%d, s%d" % (sW4G, sW4G, sA))

    W4R = 56

    def w4_reg_loads(self, ks0, ks1):
        def item(ks):
            def f():
                a = self.a
                a("s_add_u32 s%d, s%d, %d" % (sSO, sW4G, ks * 16384))
                a.vmem("buffer_load_dwordx4 %s, v%d, %s, s%d offen" % (vr(self.W4R + 4 * (ks - W4_B), 4), vW64,
                                                                     sr(S_W4, 4), sSO), "w4r")
                a.check_vm_depth()
            return f
        return [item(ks) for ks in range(ks0, ks1)]

    def w4_reg_writes(self, ks0, ks1):
        def f():
            a = self.a
            a.wait_vm("w4r")
            for i in range(3):
                a("v_add_u32 v%d, s%d, v%d" % (28 + i, sW4L, vL16))
                if i:
                    a("v_add_u32 v%d, %d, v%d" % (28 + i, 65536 * i, 28 + i))
            for ks in range(ks0, ks1):
                off = w4_off(ks)
                a.lds("ds_write_b128 v%d, %s offset:%d" % (28 + off // 65536, vr(self.W4R + 4 * (ks - W4_B), 4),
                                                           off % 65536))
            a.wait_lg_all()
        return f

    def w4_items(self, ks0, ks1, tag):
        return [self.dma_item(S_W4, vW64, sW4L, w4_off(ks), sW4G, ks * 16384, tag) for ks in range(ks0, ks1)]

    def hring(self, ks):
        n = self.opt.get("hring", 24)
        i = ks % n
        return ar(4 * i, 4) if i < 16 else vr(64 + 4 * (i - 16), 4)

    def s4_load_items(self):
        a = self.a
        a("s_mul_i32 s%d, s%d, 114688" % (sLD, sT))
        a("s_mul_i32 s%d, s%d, %d" % (sB, sKH, 56 * 1024))
        a("s_add_u32 s%d, s%d, s%d" % (sLD, sLD, sB))
        a("s_add_u32 s%d, s%d, 0x%x" % (sLD, sLD, WS_HH))
        items = []
        for ks in range(56):
            def f(ks=ks):
                if ks and ks % 4 == 0:
                    a("s_add_u32 s%d, s%d, 0x1000" % (sLD, sLD))
                a.vmem("buffer_load_dwordx4 %s, v%d, %s, s%d offen offset:%d sc1"
                       % (self.hring(ks), vL16, sr(S_WS, 4), sLD, (ks & 3) * 1024), "H%d" % ks)
                a.check_vm_depth()
            items.append(f)
        return items

    def s4_y_items(self):
        a = self.a
        self.feat0(sE, sKH, 12)
        a("s_lshl_b32 s%d, s%d, 6" % (sB, sT))
        a("s_add_u32 s%d, s%d, s%d" % (sE, sE, sB))
        a("s_add_u32 s%d, s%d, 0x%x" % (sE, sE, WS_YT))
        a("v_lshlrev_b32 v147, 14, v%d" % vHH)
        a("v_lshl_add_u32 v147, v%d, 1, v147" % vN31)
        items = []
        for r in range(16):
            def f(r=r):
                a("s_add_u32 s%d, s%d, %d" % (sSO, sE, (8 * (r >> 2) + (r & 3)) * 4096))
                a.vmem("buffer_load_ushort v%d, v147, %s, s%d offen sc1" % (vST + r, sr(S_WS, 4), sSO), "y")
                a.check_vm_depth()
            items.append(f)
        return items

    XN4, BASE4 = 112, 148

    def s4_shadow_ops(self):
        XN, B = self.XN4, self.BASE4
        pre, post = [], []
        for j in range(8):
            pre.append("v_lshlrev_b32 v%d, 16, v%d" % (XN + 2 * j, vQ + j))
            pre.append("v_and_b32 v%d, s%d, v%d" % (XN + 2 * j + 1, sHI, vQ + j))
            pre.append("v_lshlrev_b32 v%d, 16, v%d" % (B + 2 * j, vX1 + j))
            pre.append("v_and_b32 v%d, s%d, v%d" % (B + 2 * j + 1, sHI, vX1 + j))
        for r in range(16):
            pre.append("v_add_f32 v%d, v%d, v%d" % (B + r, B + r, XN + r))
            pre.append("v_sub_f32 v%d, v%d, v%d" % (XN + r, XN + r, vMEAN))
            pre.append("v_mul_f32 v%d, v%d, v%d" % (XN + r, XN + r, vR1))
        for r in range(16):
            post.append("v_lshlrev_b32 v%d, 16, v%d" % (vST + r, vST + r))
            post.append("v_fmac_f32 v%d, v%d, v%d" % (B + r, XN + r, vST + r))
        return pre, post

    def s4_out_addr(self):
        a = self.a
        a("s_lshl_b32 s%d, s%d, 15" % (sE, sT))
        self.feat0(sB, sKH, 1)
        a("s_add_u32 s%d, s%d, s%d" % (sE, sE, sB))
        a("v_lshlrev_b32 v146, 10, v%d" % vN31)
        a("v_lshl_add_u32 v146, v%d, 4, v146" % vHH)
        a("v_add_u32 v146, s%d, v146" % sE)

    def s4_addr(self):
        a = self.a
        self.wpi_addr(128, 131, 0, 2048, 1024)
        for i in (1, 2):
            a("v_add_u32 v%d, %d, v128" % (128 + i, 65536 * i))
            a("v_add_u32 v%d, %d, v131" % (131 + i, 65536 * i))

    def s4_main(self, hitems):
        a = self.a
        ACK, ACS, AK, AS = self.ACK, self.ACS, self.AK, self.AS

        def rd(ks, which):
            off = w4_off(ks)
            base, addr = ((AK, 128), (AS, 131))[which]
            for hf in range(2):
                a.lds("ds_read_b64_tr_b16 %s, v%d offset:%d"
                      % (vr(base + 4 * (ks & 1) + 2 * hf, 2), addr + off // 65536, off % 65536 + hf * 512),
                      "f%d_%d" % (ks, which))
        pre, post = self.s4_shadow_ops()
        yq = []
        f1, f2 = self.opt.get("f1", 10), self.opt.get("f2", 18)
        self.hact(self.w4_reg_writes(W4_B, W4_C))
        rd(0, 0)
        rd(0, 1)
        for ks in range(56):
            ahead = ks < 55 and ks + 1 != W4_C
            b = ks & 1
            B = self.hring(ks)
            if self.opt.get("x_nowait", 0):
                a.wait_lg("f%d_0" % ks)
            else:
                a.wait_both("H%d" % ks, "f%d_0" % ks)
            a("%s %s, %s, %s, %s" % (MF32, vr(ACK, 16), vr(AK + 4 * b, 4), B, "0" if ks == 0 else vr(ACK, 16)))
            if ahead:
                rd(ks + 1, 0)
            if hitems and ks >= 1:
                hitems.pop(0)()
            if yq:
                yq.pop(0)()
                if not hitems and yq:
                    yq.pop(0)()
            a.wait_lg("f%d_1" % ks)
            a("%s %s, %s, %s, %s" % (MF32, vr(ACS, 16), vr(AS + 4 * b, 4), B, "0" if ks == 0 else vr(ACS, 16)))
            if ahead:
                rd(ks + 1, 1)
            for _ in range(self.opt.get("npre", 3)):
                if pre and ks >= 2:
                    a(pre.pop(0))
            if ks == 56 - W4_C - 1:
                a.wait_vm("yt")
                self.barrier()
                self.flag_store(F_CV, 2)
                self.hact(self.w4_reg_writes(W4_C, 56))
            if ks == self.opt.get("ycheck", 42) - 8:
                self.idx_cv()
                self.poll_issue(F_CV, "pcv")
            if ks == self.opt.get("ycheck", 42):
                self.poll_check("pcv", 4)
                yq = self.s4_y_items()
            if ks + 1 == W4_C:
                self.barrier()
                if self.opt.get("barstamps", 0):
                    h = self.h
                    lab = h.newlabel("nobs")
                    h("s_cmp_lg_u32 s%d, 0" % sW)
                    h("s_cbranch_scc1 %s" % lab)
                    h("s_lshl_b32 s%d, s2, 8" % sA)
                    h("s_add_u32 s%d, s%d, 0x%x" % (sA, sA, WS_STAMP + 0x20000))
                    h("v_lshlrev_b32 v26, 2, v%d" % vL)
                    h("buffer_store_dword v191, v26, %s, s%d offen" % (sr(S_WS, 4), sA))
                    h("s_waitcnt vmcnt(0)")
                    h.label(lab)
                self.h("s_endpgm")
                rd(ks + 1, 0)
                rd(ks + 1, 1)
            if ks in (8, 16, 27, 38, 47):
                self.stamp("s4k%d" % ks)
        for x in pre:
            a(x)
        assert not hitems
        for f in yq:
            f()
        self.s4_out_addr()
        self.s4_post = post

    def s4_epilogue(self):
        a = self.a
        ACK, ACS, B = self.ACK, self.ACS, self.BASE4
        self.exchange_write(ACS, S4_RED)
        a.wait_vm("y")
        for x in self.s4_post:
            a(x)
        for p in range(8):
            a("v_pk_add_f32 %s, %s, %s" % (vr(ACK + 2 * p, 2), vr(ACK + 2 * p, 2), vr(B + 2 * p, 2)))
        a.wait_lg_all()
        a("s_barrier")
        self.exchange_read(80, S4_RED)
        a.wait_lg_all()
        for p in range(8):
            a("v_pk_add_f32 %s, %s, %s" % (vr(ACK + 2 * p, 2), vr(ACK + 2 * p, 2), vr(80 + 2 * p, 2)))
        for p in range(8):
            a("v_cvt_pk_bf16_f32 v%d, v%d, v%d" % (48 + p, ACK + 2 * p, ACK + 2 * p + 1))
        for j in (0, 4):
            a("v_permlane32_swap_b32 v%d, v%d" % (48 + j, 50 + j))
            a("v_permlane32_swap_b32 v%d, v%d" % (49 + j, 51 + j))
        a.vmem("buffer_store_dwordx4 %s, v146, %s, 0 offen" % (vr(48, 4), sr(S_OUT, 4)), "out")
        a.vmem("buffer_store_dwordx4 %s, v146, %s, 0 offen offset:32" % (vr(52, 4), sr(S_OUT, 4)), "out")

    def nonce_update(self):
        a = self.a
        self.hold += 1
        skip = a.newlabel("nonce")
        a("s_cmp_lg_u32 s2, 0")
        a("s_cbranch_scc1 %s" % skip)
        a("s_cmp_lg_u32 s%d, 0" % sW)
        a("s_cbranch_scc1 %s" % skip)
        saved = list(a.vm)
        for i in range(4):
            a("v_add_u32 v28, %d, v%d" % (64 * i, vL))
            a("v_lshlrev_b32 v28, 2, v28")
            self.poll_issue(F_P0, "pn")
            self.poll_check("pn", 6)
        a.vm = saved
        a("v_mov_b32 v26, 0")
        a("v_mov_b32 v27, s%d" % sN)
        a("s_mov_b64 exec, 1")
        a("buffer_store_dword v27, v26, %s, 0 offen sc1" % sr(S_WS, 4))
        a("s_mov_b64 exec, -1")
        a.label(skip)
        self.hold -= 1

    def finish(self):
        a = self.a
        a.wait_vm_all()
        if self.opt.get("delay", 0):
            lab = a.newlabel("delay")
            a("s_mov_b32 s%d, %d" % (sA, self.opt["delay"] // 64))
            a.label(lab)
            for _ in range(15):
                a("v_mov_b32 v26, v27")
            a("s_sub_u32 s%d, s%d, 1" % (sA, sA))
            a("s_cmp_lg_u32 s%d, 0" % sA)
            a("s_cbranch_scc1 %s" % lab)
        if self.opt.get("dbgtime", 0):
            a("s_memrealtime %s" % sr(sSTA, 2))
            a("s_memtime s[96:97]")
            a("s_waitcnt lgkmcnt(0)")
            a("s_sub_u32 s%d, s%d, s3" % (sSTA, sSTA))
            a("s_sub_u32 s96, s96, s98")
            a("v_mov_b32 v26, 0")
            a("v_mov_b32 v27, s%d" % sSTA)
            a("v_mov_b32 v28, s96")
            a("s_mov_b64 exec, 1")
            a("global_atomic_umax v26, v27, %s" % sr(S_DBG, 2))
            a("global_atomic_umax v26, v28, %s offset:4" % sr(S_DBG, 2))
            a("s_waitcnt vmcnt(0)")
            a("s_mov_b64 exec, -1")
        if self.stamps:
            self.stamp("end")
            skip = a.newlabel("nostamp")
            a("s_cmp_lg_u32 s%d, 0" % sW)
            a("s_cbranch_scc1 %s" % skip)
            if self.opt.get("dbgstamps", 0):
                lab = a.newlabel("nodbg")
                a("s_cmp_lg_u32 s2, %d" % (self.opt["dbgstamps"] - 1))
                a("s_cbranch_scc1 %s" % lab)
                a("v_readlane_b32 s%d, v%d, 0" % (sA, vSTAMP))
                a("v_subrev_u32 v27, s%d, v%d" % (sA, vSTAMP))
                a("v_lshlrev_b32 v26, 2, v%d" % vL)
                a("s_mov_b64 exec, 0xffff")
                a("global_store_dword v26, v27, %s" % sr(S_DBG, 2))
                a("s_mov_b64 exec, -1")
                a.label(lab)
            a("s_lshl_b32 s%d, s2, 8" % sA)
            a("s_add_u32 s%d, s%d, 0x%x" % (sA, sA, WS_STAMP))
            a("v_lshlrev_b32 v26, 2, v%d" % vL)
            a("buffer_store_dword v%d, v26, %s, s%d offen" % (vSTAMP, sr(S_WS, 4), sA))
            if self.opt.get("barstamps", 0):
                a("s_add_u32 s%d, s%d, 0x10000" % (sA, sA))
                a("buffer_store_dword v31, v26, %s, s%d offen" % (sr(S_WS, 4), sA))
            a("s_waitcnt vmcnt(0)")
            a.label(skip)
        a.label("L_end")
        a("s_endpgm")
        self.a.hook = None
        self.h.label("L_codeend")
        self.h("s_endpgm")
        self.a.ins += self.h.ins

    def nonce_load(self):
        a = self.a
        a("v_mov_b32 v26, 0")
        a.vmem("buffer_load_dword v30, v26, %s, 0 offen sc1" % sr(S_WS, 4), "nonce")

    def build(self):
        a = self.a
        o = self.opt
        H = self.hact
        self.prologue()
        H(self.loader_setup)
        if o.get("tcode", 1) == 1:
            H(self.touch_code)
        s1 = [f for st in range(4) for f in self.s1_stage_items(st)]
        n0, n1 = o.get("n0", 12), o.get("n1", 24)
        self.nonce_load()
        self.head_start()
        self.cold_touches()
        self.tr_addresses()
        self.s1_setup()

        def stage(st):
            if st == 0:
                self.hacts(s1[:n0])
                self.hwait("s1_0")
            elif st == 1:
                self.hacts(s1[n0:n1])
                self.hwait("s1_1")
            else:
                self.hacts(s1[n1:])
                if o.get("apos", 0) == 0:
                    self.hstamp(4)
                    H(self.batch_a)
                    self.hstamp(5)
                self.hwait("s1_3")
            self.barrier()
            if st == 2:
                if o.get("apos", 0) == 1:
                    H(self.batch_a)
                H(self.nonce_load)
                H(self.tr_addresses)
        self.s1_main(stage)
        self.stamp("s1main")
        w2 = [self.dma_item(S_W2, vW64, sW2L, grp * 1024, sW2G, grp * 16384, "w2") for grp in range(16)]

        p0late = o.get("p0late", 1)

        def after_x1():
            if not p0late:
                H(self.nonce_compute)
                H(self.kv_dma)
                H(self.p0_compute)
                H(lambda: self.a.wait_lg_all())
        self.s1_epilogue(after_x1)
        self.stamp("s1epi")
        self.nonce_compute()
        self.team_publish()
        self.wpi_addr(128, 129, LW, 16384, 32768)
        hitems = self.s2_load_items()
        a.wait_vm("hst")
        self.barrier()
        self.flag_store_rc(F_S1)
        self.stamp("s1flag")
        nobp = o.get("nobp", 0)
        H(self.nonce_compute)
        H(self.kv_dma)
        self.hacts(w2[:o.get("w2a", 4)])
        self.hpaced(w2[o.get("w2a", 4):], o.get("iv2", 70), self.p0_compute)
        H(lambda: self.a.wait_lg_all())
        self.idx_s1()
        w3 = self.w3_items([0, 1, 2, 3])
        k0, k1, k2 = o.get("k0", 0), o.get("k1", 14), o.get("k2", 18)
        if not nobp:
            self.barrier()
            H(self.p0_readback)
            H(self.p0_store)
            H(lambda: self.conv_filter_loads(0))
            H(self.w3_setup)
            self.hacts(w3[:k0])
        self.hwait("w2")
        self.poll_issue(F_S1, "ps1")
        self.poll_check("ps1", 2)
        self.stamp("s1poll")
        nh2 = o.get("nh2", 10)
        for f in hitems[:nh2]:
            f()
        self.barrier()
        self.stamp("hiss")
        if nobp:
            H(self.p0_readback)
            H(self.p0_store)
            H(lambda: self.conv_filter_loads(0))
            H(self.w3_setup)
            self.hacts(w3[:o.get("k0", 0)])
        H(self.p0_wave_flag)
        if o.get("bpos", 0) == 2:
            H(lambda: self.touch_chip("ssm"))
            H(lambda: self.touch_chip("w3"))
        self.hacts(w3[k0:k1])
        H(self.idx_p0)
        H(lambda: self.poll_issue(F_P0, "pp0"))
        self.fq = hitems[nh2:] + [self.team_load]
        self.s2_main()
        self.fill_all()
        self.stamp("s2main")

        def after_x2():
            H(lambda: self.poll_check("pp0", 1))
            H(lambda: self.conv_x_loads(0))
            H(lambda: self.conv_prep_filter(0))
            H(lambda: self.conv_x_write(0))
        self.s2_epilogue(after_x2)
        self.stamp("s2epi")
        self.barrier()
        H(lambda: self.conv_poly(0))
        self.hacts(w3[k1:k2])
        self.conv_addr(0)
        self.team_check()
        a.wait_vm("x1st")
        self.barrier()
        self.flag_store_rc(F_S2)
        self.stamp("s2flag")
        H(self.head_start_w4)
        H(lambda: self.touch_chip("w4"))
        self.hacts(w3[k2:])

        def hook0(rho):
            if rho == o.get("pollrho2", 3):
                self.idx_s2()
                self.poll_issue(F_S2, "ps2")
        self.conv_main(hook0)
        self.stamp("cv0main")
        xitems = self.s3_load_items()
        nx = o.get("nx", 12)
        self.conv_finish(0)
        self.hwait("w3")
        self.barrier()
        self.stamp("cv0fin")
        H(self.s3_addr)
        H(self.s3_colsum)
        H(self.w4_setup)
        self.s3_addr()
        self.poll_check("ps2", 3)
        self.stamp("s2poll")
        for f in xitems[:nx]:
            f()
        sitems = self.s3_stat_items()
        rest = xitems[nx:]
        self.fq = []
        for i in range(len(rest)):
            self.fq.append(rest[i])
            self.fq.append(sitems[i] if i < 16 else (lambda: None))

        w4r = self.w4_reg_loads(W4_B, 56)

        def s3mid():
            self.barrier()
            H(lambda: self.conv_filter_loads(1))
            H(lambda: self.conv_x_loads(1))
            self.hacts(self.w4_items(0, W4_A, "w4"))
            self.hacts(w4r[:o.get("r1", 8)])
        self.s3_main(s3mid)
        self.fill_all()
        self.stamp("s3main")
        self.barrier()
        H(lambda: self.conv_prep_filter(1))
        H(lambda: self.conv_x_write(1))
        w4m = self.w4_items(W4_A, W4_B, "w4")
        k3 = o.get("k3", 4)

        def after_tile(p):
            if p == 0:
                self.barrier()
                H(lambda: self.conv_poly(1))
                self.hacts(w4r[o.get("r1", 8):o.get("r2", 20)])
                self.hacts(w4m[:k3])
        self.s3_epilogue(after_tile)
        self.stamp("s3epi")
        self.conv_addr(1)
        a.wait_vm("Hst")
        self.barrier()
        a("s_lshl_b32 s%d, s%d, 4" % (sB, sRP))
        a("s_add_u32 s%d, s%d, s%d" % (sB, sB, sCP))
        self.flag_store(F_S3, sB)
        self.stamp("s3flag")
        self.hacts(w4m[k3:])
        self.hacts(w4r[o.get("r2", 20):])
        self.nonce_update()

        def hook1(rho):
            if rho == o.get("pollrho", 2):
                self.idx_s3()
                self.poll_issue(F_S3, "ps3")
        self.conv_main(hook1)
        self.stamp("cv1main")
        hitems = self.s4_load_items()
        self.poll_check("ps3", 5)
        self.stamp("s3poll")
        for _ in range(o.get("nh", 14)):
            hitems.pop(0)()
        self.conv_finish(1)
        for _ in range(o.get("nhb", 6)):
            hitems.pop(0)()
        self.s4_addr()
        self.hwait("w4")
        self.barrier()
        self.stamp("cv1fin")
        self.s4_main(hitems)
        self.stamp("s4main")
        self.s4_epilogue()
        self.stamp("s4epi")
        self.finish()


REF = "cdna_kernels/%s.s.ref" % NAME


def emit(stop=None, stamps=False, opt=None, keep=None):
    g = Gen(stop, stamps, opt)
    g.keep = keep
    g.build()
    nops = g.a.fix_hazards()
    top = [l for l in open(REF).read().split("\n") if l.startswith(";") and "@launch" not in l and "Override" not in l
           and "grid=ceil" not in l]
    out = top + ["; @launch grid=(256,1,1) block=(512,1,1) lds=%d" % LDS_BYTES,
                 '.amdgcn_target "amdgcn-amd-amdhsa--gfx950"', ".text", ".globl %s_kernel" % NAME, ".p2align 8",
                 ".type %s_kernel,@function" % NAME, "%s_kernel:" % NAME]
    body = g.a.text()
    tail = ['.section .rodata,"a"', ".p2align 6", ".amdhsa_kernel %s_kernel" % NAME,
            "  .amdhsa_next_free_vgpr 256", "  .amdhsa_next_free_sgpr 102", "  .amdhsa_accum_offset 192",
            "  .amdhsa_group_segment_fixed_size 0", "  .amdhsa_kernarg_size 112", "  .amdhsa_user_sgpr_count 2",
            "  .amdhsa_user_sgpr_kernarg_segment_ptr 1", "  .amdhsa_system_sgpr_workgroup_id_x 1",
            "  .amdhsa_float_denorm_mode_32 3", ".end_amdhsa_kernel"]
    text = "\n".join(out) + "\n" + body + "\n".join(tail) + "\n"
    return text, g, nops


if __name__ == "__main__":
    ap = argparse.ArgumentParser()
    ap.add_argument("-o", default="cdna_kernels/%s.s" % NAME)
    ap.add_argument("--stop", default=None)
    ap.add_argument("--stamps", action="store_true")
    ap.add_argument("--opt", default="")
    ap.add_argument("--keep", default="")
    args = ap.parse_args()
    opt = dict((kv.split("=")[0], int(kv.split("=")[1])) for kv in args.opt.split(",") if kv)
    text, g, nops = emit(args.stop, args.stamps, opt, args.keep.split(",") if args.keep else None)
    open(args.o, "w").write(text)
    n = sum(1 for x in g.a.ins if x.kind != "label")
    print("instructions: %d, hazard nops: %d" % (n, nops))
    if g.stamp_names:
        print(",".join(g.stamp_names))
        open(args.o + ".stamps", "w").write(",".join(g.stamp_names))
```

```python
import argparse
import os
import struct
import sys

sys.path.insert(0, os.path.dirname(os.path.abspath(__file__)))
from asmlib import Asm

NAME = "parallel_sum__ssm_conv_h3__mixer_s_mlp__prompt"

WS_FLAGS = 4096
WS_STAMP = 0xD0000
WS_FLAGS_L = 0x90000
WS_TEAM = 0xC0000
WS_KVT = 0x100000
WS_YT = 0x300000
WS_HS = 0x500000
WS_X1 = 0x700000
WS_ST = 0x900000
WS_HH = 0xA00000
WS_SIZE = 0x10000000
OOB = 0x40000000
F_S1, F_S2, F_S3, F_P0, F_CV = 0, 1, 2, 4, 8

LQ = 0
LW = 65536
LSTG = 131072
LRED = 139264
LSTX = 155648
LCSX = 156672
LCS3 = 161280
LKV = LRED
LDS_BYTES = 163840
CV_X = 0
CV_XD = 1152
CV_A = 5248
CV_P = 21760
CV_R = 5248
CV_BASE = 114688
W3_P = 0
W3_H = 98304
CV_BASE1 = 69632
W4_A, W4_B, W4_C = 11, 28, 39
S4_RED = 24576


def w4_off(ks):
    if ks < W4_A:
        return 114688 + ks * 4096
    if ks < W4_B:
        return (ks - W4_A) * 4096
    if ks < W4_C:
        return CV_BASE1 + (ks - W4_B) * 4096
    return w4_off(ks - W4_C)

S_WS, S_Q, S_K, S_V, S_SHK, S_SSM, S_W1, S_W2, S_W3, S_W4, S_OUT = 4, 8, 12, 16, 20, 24, 32, 36, 40, 44, 48
S_DPTR = 28
S_DBG = 30
sR, sC, sW, sTH, sKH, sN, sRP, sCP = 52, 53, 54, 55, 56, 57, 58, 59
sT, sT3 = 60, 61
sD0, sD1 = 62, 63
sA, sB, sCc, sD, sE, sF = 64, 65, 66, 67, 68, 69
sW2L, sW2G, sW3L, sW3G, sW3HL, sW3HG, sW4L, sW4G, sSO, sLD = 70, 71, 72, 73, 74, 75, 76, 77, 78, 79
sONES, sHI = 80, 81
sK4, sK8, sK12 = 82, 83, 84
sEPS, sTMO, sKG1, sKG3, s512I = 85, 86, 87, 88, 89
sSTA = 90
sROT, sQG, sWG, sCP0 = 92, 93, 94, 95
sXCC, sLOC = 20, 21

vL, vL16, vWP, vWN = 0, 1, 2, 3
vQ, vX1 = 4, 12
vMEAN, vR1 = 20, 21
vTID, vHH, vN31, vSTAMP = 22, 23, 24, 25
vW64 = 31
vCH = 172
vPF, vPA = 170, 171
vW3F, vW3H, vQE = 153, 154, 155
vST = 172

GELU_K1 = 2.0 * 0.7978845608028654 * 1.4426950408889634
GELU_K3 = GELU_K1 * 0.044715
MF32 = "v_mfma_f32_32x32x16_bf16"
MF16 = "v_mfma_f32_16x16x32_bf16"


def f32bits(x):
    return struct.unpack("<I", struct.pack("<f", x))[0]


def vr(a, n):
    return "v[%d:%d]" % (a, a + n - 1)


def ar(a, n):
    return "a[%d:%d]" % (a, a + n - 1)


def sr(a, n):
    return "s[%d:%d]" % (a, a + n - 1)


class Gen:
    def __init__(self, stop=None, stamps=False, opt=None):
        self.opt = opt or {}
        self.keep = None
        self.a = Asm()
        self.h = Asm()
        self.h.uid = 100000
        self.hpend = []
        self.nbar = 0
        self.stop = stop
        self.stamps = stamps
        self.nstamp = 0
        self.stamp_names = []
        self.fq = []
        self.pq = []
        self.interval = 0
        self.clock = 0.0
        self.hold = 0
        self.a.hook = self._pace
        self.h.hook = self._pace

    def _pace(self, x):
        if x.kind == "mfma":
            self.clock += 32 if x.passes == 8 else 16
        elif x.kind == "valu":
            self.clock += 8 if x.is_trans() else 4.5
        elif x.kind == "ds":
            self.clock += 13 if x.op == "ds_write_b128" else 2
        elif x.kind == "vmem":
            self.clock += 20
        else:
            return
        if self.hold or not self.pq or not self.interval or x.kind == "vmem":
            return
        if self.clock >= self.interval:
            self.clock = 0.0
            self.hold += 1
            self.pq.pop(0)()
            self.hold -= 1

    def paced(self, items, interval):
        self.pq += items
        self.interval = interval
        self.clock = 0.0

    def pace_flush(self, tag=None):
        self.hold += 1
        if tag is None:
            n = len(self.pq)
        else:
            n = max([i + 1 for i, f in enumerate(self.pq) if f.tag == tag], default=0)
        for _ in range(n):
            self.pq.pop(0)()
        self.hold -= 1

    def stamp(self, name):
        if not self.stamps:
            return
        if self.keep and name not in self.keep and name not in ("start", "end"):
            return
        self.hold += 1
        self._stamp(name)
        self.hold -= 1

    def _stamp(self, name):
        a = self.a
        a("s_memtime %s" % sr(sSTA, 2))
        a("s_waitcnt lgkmcnt(0)")
        a.lg = []
        a("v_writelane_b32 v%d, s%d, %d" % (vSTAMP, sSTA, self.nstamp))
        if name in ("start", "end"):
            a("s_memrealtime %s" % sr(sSTA, 2))
            a("s_waitcnt lgkmcnt(0)")
            a("v_writelane_b32 v%d, s%d, %d" % (vSTAMP, sSTA, 62 if name == "start" else 63))
            if name == "start":
                a("v_writelane_b32 v%d, s3, 61" % vSTAMP)
        self.stamp_names.append(name)
        self.nstamp += 1

    def hact(self, fn):
        self.hpend.append(fn)

    def hacts(self, fns):
        self.hpend += fns

    def hstamp(self, idx):
        if not self.opt.get("barstamps", 0):
            return

        def f():
            a = self.a
            a("s_memtime %s" % sr(sSTA, 2))
            a("s_waitcnt lgkmcnt(0)")
            a.lg = []
            a("v_writelane_b32 v55, s%d, %d" % (sSTA, 32 + idx))
        self.hpend.append(f)

    def hpaced(self, items, interval, fn):
        def f():
            saved = (self.pq, self.interval, self.clock, self.hold)
            self.pq, self.interval, self.clock, self.hold = list(items), interval, 0.0, 0
            fn()
            self.hold = 1
            self.pace_flush()
            self.pq, self.interval, self.clock, self.hold = saved
        self.hpend.append(f)

    def hwait(self, tag):
        self.hpend.append(lambda: self.a.wait_vm(tag))

    def hrun(self):
        c, fq = self.a, self.fq
        self.a, self.fq = self.h, []
        self.hold += 1
        for fn in self.hpend:
            fn()
        self.hold -= 1
        self.hpend = []
        self.a, self.fq = c, fq

    def barrier(self, name=""):
        bs = self.opt.get("barstamps", 0)
        if bs:
            self.hold += 1
            self.a("s_memtime %s" % sr(sSTA, 2))
            self.a("s_waitcnt lgkmcnt(0)")
            self.a.lg = []
            self.a("v_writelane_b32 v31, s%d, %d" % (sSTA, self.nbar))
            self.hold -= 1
        self.a("s_barrier")
        self.hrun()
        if bs:
            self.h("s_memtime %s" % sr(sSTA, 2))
            self.h("s_waitcnt lgkmcnt(0)")
            self.h.lg = []
            self.h("v_writelane_b32 v55, s%d, %d" % (sSTA, self.nbar))
        self.h("s_barrier")
        self.nbar += 1

    def fill(self, n=1):
        for _ in range(n):
            if self.fq:
                self.fq.pop(0)()

    def fill_all(self):
        while self.fq:
            self.fq.pop(0)()

    def dma_item(self, srd, voff, sl, loff, sg, goff, tag):
        def f():
            a = self.a
            a("s_add_u32 m0, s%d, %d" % (sl, loff))
            a("s_add_u32 s%d, s%d, %d" % (sSO, sg, goff))
            a.vmem("buffer_load_dwordx4 v%d, %s, s%d offen lds" % (voff, sr(srd, 4), sSO), tag)
            a.check_vm_depth()
        f.tag = tag
        return f

    def flag_store(self, phase, sidx):
        local = self.opt.get("local", 0) and phase in (F_S2, F_S3)
        a = self.a
        self.hold += 1
        skip = a.newlabel("noflag")
        a("s_cmp_lg_u32 s%d, 0" % sW)
        a("s_cbranch_scc1 %s" % skip)
        a("s_lshl_b32 s%d, s%d, 7" % (sA, sidx))
        a("s_add_u32 s%d, s%d, %d" % (sA, sA, WS_FLAGS + phase * 256 * 128))
        a("v_mov_b32 v26, s%d" % sN)
        a("v_mov_b32 v27, s%d" % sA)
        a("s_mov_b64 exec, 1")
        if local:
            a("s_mov_b32 s%d, 0x%x" % (sSO, WS_FLAGS_L - WS_FLAGS))
            a("buffer_store_dword v26, v27, %s, s%d offen" % (sr(S_WS, 4), sSO))
        a("buffer_store_dword v26, v27, %s, 0 offen sc1" % sr(S_WS, 4))
        a("s_mov_b64 exec, -1")
        a.label(skip)
        self.hold -= 1

    def team_publish(self):
        a = self.a
        if not self.opt.get("local", 0):
            return
        skip = a.newlabel("noteam")
        a("s_getreg_b32 s%d, hwreg(HW_REG_XCC_ID)" % sXCC)
        a("s_and_b32 s%d, s%d, 15" % (sXCC, sXCC))
        a("s_cmp_lg_u32 s%d, 0" % sW)
        a("s_cbranch_scc1 %s" % skip)
        a("s_lshl_b32 s%d, s2, 7" % sA)
        a("s_add_u32 s%d, s%d, 0x%x" % (sA, sA, WS_TEAM))
        a("v_mov_b32 v26, s%d" % sN)
        a("v_mov_b32 v27, s%d" % sXCC)
        a("v_mov_b32 v28, s%d" % sA)
        a("s_mov_b64 exec, 1")
        a("buffer_store_dwordx2 v[26:27], v28, %s, 0 offen sc1" % sr(S_WS, 4))
        a("s_mov_b64 exec, -1")
        a.label(skip)

    def team_load(self):
        a = self.a
        if not self.opt.get("local", 0):
            return
        a("s_and_b32 s%d, s2, 7" % sA)
        a("v_lshlrev_b32 v26, 3, v%d" % vN31)
        a("v_add_u32 v26, s%d, v26" % sA)
        a("v_lshlrev_b32 v26, 7, v26")
        a("v_add_u32 v26, 0x%x, v26" % WS_TEAM)
        a.vmem("buffer_load_dwordx2 v[168:169], v26, %s, 0 offen sc1" % sr(S_WS, 4), "team")

    def team_check(self):
        a = self.a
        if not self.opt.get("local", 0):
            return
        a.wait_vm("team")
        a("v_cmp_ne_u32 vcc, s%d, v168" % sN)
        a("v_cmp_ne_u32 %s, s%d, v169" % (sr(sSTA, 2), sXCC))
        a("s_or_b64 vcc, vcc, %s" % sr(sSTA, 2))
        a("s_cmp_eq_u64 vcc, 0")
        a("s_cselect_b32 s%d, 0x%x, 0" % (sLOC, WS_FLAGS_L - WS_FLAGS))

    def flag_store_rc(self, phase):
        a = self.a
        a("s_lshl_b32 s%d, s%d, 3" % (sB, sR))
        a("s_add_u32 s%d, s%d, s%d" % (sB, sB, sC))
        self.flag_store(phase, sB)

    def poll_issue(self, phase, tag):
        a = self.a
        a("v_lshlrev_b32 v%d, 7, v28" % vPA)
        a("v_add_u32 v%d, %d, v%d" % (vPA, WS_FLAGS + phase * 256 * 128, vPA))
        if self.opt.get("local", 0) and phase in (F_S2, F_S3):
            a("v_add_u32 v%d, s%d, v%d" % (vPA, sLOC, vPA))
        a.vmem("buffer_load_dword v%d, v%d, %s, 0 offen sc1" % (vPF, vPA, sr(S_WS, 4)), tag)

    def poll_check(self, tag, code):
        a = self.a
        self.hold += 1
        loop = a.newlabel("poll")
        done = a.newlabel("polled")
        a.wait_vm(tag)
        a("v_cmp_ne_u32 vcc, s%d, v%d" % (sN, vPF))
        a("s_cmp_eq_u64 vcc, 0")
        a("s_cbranch_scc1 %s" % done)
        a("s_mov_b32 s%d, 0x40000" % sTMO)
        a.label(loop)
        a("buffer_load_dword v%d, v%d, %s, 0 offen sc1" % (vPF, vPA, sr(S_WS, 4)))
        a("s_waitcnt vmcnt(0)")
        a("v_cmp_ne_u32 vcc, s%d, v%d" % (sN, vPF))
        a("s_cmp_eq_u64 vcc, 0")
        a("s_cbranch_scc1 %s" % done)
        a("s_sub_u32 s%d, s%d, 1" % (sTMO, sTMO))
        a("s_cmp_lg_u32 s%d, 0" % sTMO)
        a("s_cbranch_scc1 %s" % loop)
        a("v_mov_b32 v26, 0")
        a("v_mov_b32 v27, %d" % (0x100 + code))
        a("s_mov_b64 exec, 1")
        a("global_store_dword v26, v27, %s" % sr(S_DBG, 2))
        a("s_mov_b64 exec, -1")
        a.label(done)
        self.hold -= 1

    def idx_s1(self):
        a = self.a
        a("s_lshl_b32 s%d, s%d, 1" % (sA, sTH))
        a("s_sub_u32 s%d, s%d, 1" % (sA, sA))
        a("s_add_u32 s%d, s%d, s%d" % (sA, sA, sR))
        a("s_cmp_lt_u32 s%d, 32" % sA)
        a("s_cselect_b32 s%d, s%d, s%d" % (sA, sA, sR))
        a("v_mov_b32 v28, s%d" % sR)
        a("v_mov_b32 v29, s%d" % sA)
        a("v_and_b32 v27, 4, v%d" % vL)
        a("v_cmp_eq_u32 vcc, 0, v27")
        a("v_cndmask_b32 v28, v29, v28, vcc")
        a("v_lshlrev_b32 v28, 3, v28")
        a("v_and_b32 v29, 3, v%d" % vL)
        a("v_add_u32 v28, v28, v29")
        a("s_lshl_b32 s%d, s%d, 2" % (sA, sKH))
        a("v_add_u32 v28, s%d, v28" % sA)

    def idx_p0(self):
        a = self.a
        a("s_lshr_b32 s%d, s2, 5" % sA)
        a("s_lshl_b32 s%d, s%d, 6" % (sB, sW))
        a("s_add_u32 s%d, s%d, s%d" % (sA, sA, sB))
        a("v_and_b32 v28, 7, v%d" % vL)
        a("v_lshlrev_b32 v28, 3, v28")
        a("v_add_u32 v28, s%d, v28" % sA)
        a("s_bfe_u32 s%d, s2, 0x20003" % sA)
        a("v_lshl_add_u32 v28, v28, 2, s%d" % sA)

    def p0_wave_flag(self):
        a = self.a
        a.wait_vm("kvt")
        a("s_lshl_b32 s%d, s%d, 3" % (sA, sR))
        a("s_add_u32 s%d, s%d, s%d" % (sA, sA, sC))
        a("s_lshl_b32 s%d, s%d, 2" % (sA, sA))
        a("s_add_u32 s%d, s%d, s%d" % (sA, sA, sW))
        a("s_lshl_b32 s%d, s%d, 7" % (sA, sA))
        a("s_add_u32 s%d, s%d, %d" % (sA, sA, WS_FLAGS + F_P0 * 256 * 128))
        a("v_mov_b32 v26, s%d" % sN)
        a("v_mov_b32 v27, s%d" % sA)
        a("s_mov_b64 exec, 1")
        a("buffer_store_dword v26, v27, %s, 0 offen sc1" % sr(S_WS, 4))
        a("s_mov_b64 exec, -1")

    def idx_s2(self):
        a = self.a
        a("s_lshr_b32 s%d, s%d, 1" % (sA, sT3))
        a("s_lshl_b32 s%d, s%d, 3" % (sA, sA))
        a("v_and_b32 v28, 7, v%d" % vL)
        a("v_add_u32 v28, s%d, v28" % sA)

    def idx_s3(self):
        a = self.a
        a("s_lshr_b32 s%d, s%d, 1" % (sA, sR))
        a("s_lshl_b32 s%d, s%d, 4" % (sA, sA))
        a("s_lshl_b32 s%d, s%d, 3" % (sB, sKH))
        a("s_add_u32 s%d, s%d, s%d" % (sA, sA, sB))
        a("v_and_b32 v28, 7, v%d" % vL)
        a("v_add_u32 v28, s%d, v28" % sA)

    def idx_cv(self):
        a = self.a
        self.feat0(sA, sKH, 0)
        a("s_lshr_b32 s%d, s%d, 1" % (sA, sA))
        a("v_and_b32 v28, 15, v%d" % vL)
        a("v_add_u32 v28, s%d, v28" % sA)
        a("s_lshr_b32 s%d, s%d, 5" % (sA, sT))
        a("s_lshl_b32 s%d, s%d, 1" % (sA, sA))
        a("s_bfe_u32 s%d, s%d, 0x10003" % (sB, sT))
        a("s_add_u32 s%d, s%d, s%d" % (sA, sA, sB))
        a("v_lshl_add_u32 v28, v28, 2, s%d" % sA)

    def conv_wave_flag(self):
        a = self.a
        a.wait_vm("yt")
        a("s_lshl_b32 s%d, s2, 2" % sA)
        a("s_add_u32 s%d, s%d, s%d" % (sA, sA, sW))
        a("s_lshl_b32 s%d, s%d, 7" % (sA, sA))
        a("s_add_u32 s%d, s%d, %d" % (sA, sA, WS_FLAGS + F_CV * 256 * 128))
        a("v_mov_b32 v26, s%d" % sN)
        a("v_mov_b32 v27, s%d" % sA)
        a("s_mov_b64 exec, 1")
        a.vmem("buffer_store_dword v26, v27, %s, 0 offen sc1" % sr(S_WS, 4), "cvf")
        a("s_mov_b64 exec, -1")

    def prologue(self):
        a = self.a
        if self.stamps or self.opt.get("dbgtime", 0):
            a("s_memrealtime s[100:101]")
            a("s_waitcnt lgkmcnt(0)")
            a("s_mov_b32 s3, s100")
        a("s_cmp_ge_u32 s2, 256")
        a("s_cbranch_scc1 L_end")
        a("s_load_dwordx16 s[64:79], s[0:1], 0")
        a("s_load_dwordx8 s[92:99], s[0:1], 64")
        a("s_load_dwordx2 %s, s[0:1], 96" % sr(S_DBG, 2))
        a("s_load_dwordx2 %s, s[0:1], 104" % sr(S_WS, 2))
        sizes = {S_WS: WS_SIZE, S_Q: 1 << 21, S_K: 1 << 21, S_V: 1 << 21, S_SHK: 4096, S_SSM: 1 << 21,
                 S_W1: 1 << 19, S_W2: 1 << 19, S_W3: 512 * 1792 * 2, S_W4: 512 * 1792 * 2, S_OUT: 1 << 21}
        for s, n in sizes.items():
            a("s_mov_b32 s%d, 0x%x" % (s + 2, n))
            a("s_mov_b32 s%d, 0x20000" % (s + 3))
        a("s_and_b32 s100, s2, 7")
        a("s_lshr_b32 s101, s2, 3")
        a("s_lshr_b32 s%d, s101, 3" % sR)
        a("s_lshl_b32 s%d, s100, 2" % sC)
        a("s_add_u32 s%d, s%d, s%d" % (sR, sR, sC))
        a("s_and_b32 s%d, s101, 7" % sC)
        a("s_lshr_b32 s%d, s101, 4" % sRP)
        a("s_lshl_b32 s100, s100, 1")
        a("s_add_u32 s%d, s%d, s100" % (sRP, sRP))
        a("s_and_b32 s%d, s101, 15" % sCP)
        a("v_and_b32 v%d, 0xff, v0" % vTID)
        a("v_lshrrev_b32 v26, 6, v0")
        a("v_and_b32 v%d, 63, v0" % vL)
        a("v_readfirstlane_b32 s%d, v26" % sTMO)
        a("v_lshlrev_b32 v%d, 4, v%d" % (vL16, vL))
        a("v_lshrrev_b32 v%d, 5, v%d" % (vHH, vL))
        a("v_and_b32 v%d, 31, v%d" % (vN31, vL))
        a("s_and_b32 s%d, s%d, 3" % (sW, sTMO))
        a("s_lshr_b32 s%d, s%d, 1" % (sTH, sW))
        a("s_and_b32 s%d, s%d, 1" % (sKH, sW))
        a("s_lshl_b32 s%d, s%d, 1" % (sT, sR))
        a("s_add_u32 s%d, s%d, s%d" % (sT, sT, sTH))
        a("s_lshl_b32 s%d, s%d, 2" % (sT3, sRP))
        a("s_add_u32 s%d, s%d, s%d" % (sT3, sT3, sW))
        a("s_mov_b32 s%d, 0x3f803f80" % sONES)
        a("s_mov_b32 s%d, 0xffff0000" % sHI)
        a("s_movk_i32 s%d, 0x1000" % sK4)
        a("s_movk_i32 s%d, 0x2000" % sK8)
        a("s_movk_i32 s%d, 0x3000" % sK12)
        a("s_mov_b32 s%d, 0x%x" % (sEPS, f32bits(1e-5)))
        a("s_mov_b32 s%d, 0x%x" % (sKG1, f32bits(-GELU_K1)))
        a("s_mov_b32 s%d, 0x%x" % (sKG3, f32bits(-GELU_K3)))
        a("s_mov_b32 s%d, 0x%x" % (s512I, f32bits(1.0 / 512)))
        a("s_waitcnt lgkmcnt(0)")
        for sreg, src in ((S_Q, 64), (S_W1, 78), (S_K, 66), (S_V, 68), (S_SHK, 70), (S_SSM, 72), (S_DPTR, 74)):
            a("s_mov_b64 %s, %s" % (sr(sreg, 2), sr(src, 2)))
        for i, sreg in enumerate([S_W2, S_W3, S_W4, S_OUT]):
            a("s_mov_b64 %s, %s" % (sr(sreg, 2), sr(92 + 2 * i, 2)))
        a("s_add_u32 s%d, s%d, s%d" % (sROT, sR, sC))
        a("s_and_b32 s%d, s%d, 3" % (sROT, sROT))
        a("s_cmp_ge_u32 s%d, 4" % sTMO)
        a("s_cbranch_scc1 L_loader")
        if self.opt.get("prio", 1):
            a("s_setprio 1")
        if self.stamps:
            a("v_mov_b32 v%d, 0" % vSTAMP)
        self.stamp("start")
        if self.opt.get("dbgtime", 0):
            a("s_memtime s[98:99]")
            a("s_waitcnt lgkmcnt(0)")
        self.ssm_d_load()

    def tr_addresses(self):
        a = self.a
        a("v_bfe_u32 v26, v%d, 2, 2" % vL)
        a("v_and_b32 v27, 3, v%d" % vL)
        a("v_bfe_u32 v28, v%d, 4, 1" % vL)
        a("v_lshlrev_b32 v27, 3, v27")
        a("v_lshl_add_u32 v27, v28, 5, v27")
        a("v_lshl_add_u32 v28, v%d, 2, v26" % vHH)
        a("v_lshl_add_u32 v%d, v28, 6, v27" % vWP)
        a("v_lshl_add_u32 v28, v%d, 3, v26" % vHH)
        a("v_lshl_add_u32 v%d, v28, 6, v27" % vWN)

    def loader_setup(self):
        a = self.a
        a.label("L_loader")
        a("v_lshrrev_b32 v26, 2, v%d" % vL)
        a("v_and_b32 v27, 3, v%d" % vL)
        a("v_lshlrev_b32 v27, 4, v27")
        a("v_lshl_add_u32 v%d, v26, 10, v27" % vW64)
        a("v_lshrrev_b32 v26, 3, v%d" % vL)
        a("v_and_b32 v27, 7, v%d" % vL)
        a("v_lshrrev_b32 v28, 4, v%d" % vL)
        a("v_xor_b32 v27, v27, v28")
        a("v_lshlrev_b32 v27, 4, v27")
        a("v_lshl_add_u32 v%d, v26, 10, v27" % vQE)
        a("v_xor_b32 v%d, 64, v%d" % (vQE + 1, vQE))
        a("s_lshl_b32 s%d, s%d, 14" % (sCc, sW))
        a("s_lshl_b32 s%d, s%d, 15" % (sD, sT))
        a("s_lshl_b32 s%d, s%d, 9" % (sA, sKH))
        a("s_add_u32 s%d, s%d, s%d" % (sD, sD, sA))
        self.w64_bases(sW2L, sW2G)

    def feat0(self, dst, spanel, shift):
        a = self.a
        if self.opt.get("remap", 0):
            a("s_lshl_b32 s%d, s%d, %d" % (dst, sC, 5 + shift))
            a("s_lshl_b32 s%d, s%d, %d" % (sSO, spanel, 8 + shift))
        else:
            a("s_lshl_b32 s%d, s%d, %d" % (dst, sC, 6 + shift))
            a("s_lshl_b32 s%d, s%d, %d" % (sSO, spanel, 5 + shift))
        a("s_add_u32 s%d, s%d, s%d" % (dst, dst, sSO))

    def w64_bases(self, sl, sg):
        a = self.a
        a("s_lshl_b32 s%d, s%d, 15" % (sl, sTH))
        a("s_lshl_b32 s%d, s%d, 14" % (sA, sKH))
        a("s_add_u32 s%d, s%d, s%d" % (sl, sl, sA))
        a("s_add_u32 s%d, s%d, %d" % (sl, sl, LW))
        a("s_lshl_b32 s%d, s%d, 18" % (sg, sKH))
        self.feat0(sA, sTH, 1)
        a("s_add_u32 s%d, s%d, s%d" % (sg, sg, sA))

    def s1_stage_items(self, st):
        items = []

        def head():
            a = self.a
            a("s_add_u32 s%d, s%d, %d" % (sB, sROT, st))
            a("s_and_b32 s%d, s%d, 3" % (sB, sB))
            a("s_lshl_b32 s%d, s%d, 7" % (sQG, sB))
            a("s_add_u32 s%d, s%d, s%d" % (sQG, sQG, sD))
            a("s_lshl_b32 s%d, s%d, 16" % (sWG, sB))
            a("s_add_u32 s%d, s%d, s%d" % (sWG, sWG, sW2G))
        for j in range(4):
            def f(j=j):
                if j == 0:
                    head()
                self.dma_item(S_Q, vQE + (j & 1), sCc, LQ + st * 4096 + j * 1024, sQG, j * 8192, "s1_%d" % st)()
            items.append(f)
        for i in range(4):
            items.append(self.dma_item(S_W1, vW64, sW2L, (4 * st + i) * 1024, sWG, i * 16384, "s1_%d" % st))
        return items

    def touch(self, srd, lanes, sidx, dst):
        a = self.a
        a("s_mul_i32 s%d, s%d, %d" % (sA, sidx, lanes))
        a("v_add_u32 v26, s%d, v%d" % (sA, vL))
        a("v_lshlrev_b32 v26, 7, v26")
        a("v_mov_b32 v27, 0x%x" % OOB)
        a("v_cmp_gt_u32 vcc, %d, v%d" % (lanes, vL))
        a("v_cndmask_b32 v26, v27, v26, vcc")
        a.vmem("buffer_load_dword v%d, v26, %s, 0 offen" % (dst, sr(srd, 4)), "touch")

    def touch_w2(self):
        a = self.a
        if self.opt.get("touch", 1):
            a("s_lshr_b32 s%d, s2, 3" % sE)
            a("s_lshl_b32 s%d, s%d, 2" % (sE, sE))
            a("s_add_u32 s%d, s%d, s%d" % (sE, sE, sW))
            self.touch(S_W2, 32, sE, 53)

    def touch_chip(self, which):
        a = self.a
        srd, lanes, dst = {"w2": (S_W2, 4, 160), "ssm": (S_SSM, 16, 161), "w3": (S_W3, 14, 163), "w4": (S_W4, 14, 162)}[which]
        if not self.opt.get("t" + which, 1):
            return
        a("s_lshl_b32 s%d, s2, 2" % sE)
        a("s_add_u32 s%d, s%d, s%d" % (sE, sE, sW))
        self.touch(srd, lanes, sE, dst)

    def touch_code(self):
        a = self.a
        if not self.opt.get("tcode", 1):
            return
        a("s_getpc_b64 s[96:97]")
        a.label("L_pc")
        a("s_sub_u32 s96, s96, L_pc-%s_kernel" % NAME)
        a("s_subb_u32 s97, s97, 0")
        a("s_lshr_b32 s%d, s2, 3" % sE)
        a("s_lshl_b32 s%d, s%d, 2" % (sE, sE))
        a("s_add_u32 s%d, s%d, s%d" % (sE, sE, sW))
        a("s_mul_i32 s%d, s%d, 3" % (sE, sE))
        a("v_min_u32 v26, 2, v%d" % vL)
        a("v_add_u32 v26, s%d, v26" % sE)
        a("v_min_u32 v26, (L_codeend-%s_kernel)/128-1, v26" % NAME)
        a("v_lshlrev_b32 v26, 7, v26")
        a("v_mov_b32 v135, s97")
        a("v_add_co_u32 v134, vcc, s96, v26")
        a("v_addc_co_u32 v135, vcc, 0, v135, vcc")
        a.vmem("global_load_dword v136, v[134:135], off", "touch")

    def cold_touches(self):
        a = self.a
        o = self.opt
        a("s_lshr_b32 s%d, s2, 3" % sE)
        a("s_lshl_b32 s%d, s%d, 2" % (sE, sE))
        a("s_add_u32 s%d, s%d, s%d" % (sE, sE, sW))
        if o.get("tq", 0):
            a("s_and_b32 s%d, s2, 7" % sF)
            a("s_lshl_b32 s%d, s%d, 7" % (sF, sF))
            a("s_add_u32 s%d, s%d, s%d" % (sF, sF, sE))
            self.touch(S_Q, 16, sF, 160)
            self.touch(S_W1, 32, sE, 161)

    def touch_rows(self, srd, rows_per_wave, srow0, col, dst):
        a = self.a
        a("v_add_u32 v26, s%d, v%d" % (srow0, vL))
        a("v_lshlrev_b32 v26, 10, v26")
        a("v_add_u32 v26, %d, v26" % col)
        a("v_mov_b32 v27, 0x%x" % OOB)
        a("v_cmp_gt_u32 vcc, %d, v%d" % (rows_per_wave, vL))
        a("v_cndmask_b32 v26, v27, v26, vcc")
        a.vmem("buffer_load_dword v%d, v26, %s, 0 offen" % (dst, sr(srd, 4)), "touch")

    def wave_in_group(self, dst):
        a = self.a
        a("s_lshr_b32 s%d, s2, 3" % dst)
        a("s_lshl_b32 s%d, s%d, 2" % (dst, dst))
        a("s_add_u32 s%d, s%d, s%d" % (dst, dst, sW))

    def head_start(self):
        a = self.a
        m = self.opt.get("head", 11)
        self.wave_in_group(sE)
        if m & 1:
            a("s_lshl_b32 s%d, s%d, 2" % (sF, sE))
            self.touch_rows(S_W1, 4, sF, 384, 160)
        if m & 2:
            a("s_and_b32 s%d, s2, 7" % sF)
            a("s_lshl_b32 s%d, s%d, 7" % (sF, sF))
            a("s_add_u32 s%d, s%d, s%d" % (sF, sF, sE))
            a("s_lshl_b32 s%d, s%d, 1" % (sF, sF))
            self.touch_rows(S_K, 2, sF, 384, 161)
            self.touch_rows(S_V, 2, sF, 384, 162)
        if m & 4:
            a("s_lshl_b32 s%d, s%d, 2" % (sF, sE))
            self.touch_rows(S_W2, 4, sF, 384, 163)

    def head_start_w4(self):
        a = self.a
        if self.opt.get("head", 11) & 8:
            self.wave_in_group(sE)
            a("s_mul_i32 s%d, s%d, 14" % (sF, sE))
            self.touch_rows(S_W4, 14, sF, 384, 161)

    def batch_a(self):
        a = self.a
        if self.opt.get("tkv", 0):
            self.touch_kv(157, 158)
        if self.opt.get("tw2", 1):
            a("s_lshr_b32 s%d, s2, 3" % sE)
            a("s_lshl_b32 s%d, s%d, 2" % (sE, sE))
            a("s_add_u32 s%d, s%d, s%d" % (sE, sE, sW))
            self.touch(S_W2, 32, sE, 159)
        if self.opt.get("bpos", 0) == 0:
            self.touch_chip("ssm")
            self.touch_chip("w3")

    def kv_dma(self):
        a = self.a
        a("v_lshrrev_b32 v26, 3, v%d" % vL)
        a("v_and_b32 v27, 7, v%d" % vL)
        a("v_lshlrev_b32 v27, 4, v27")
        a("v_lshl_add_u32 v137, v26, 10, v27")
        a("s_lshl_b32 s%d, s%d, 6" % (sA, sR))
        a("s_lshl_b32 s%d, s%d, 4" % (sB, sW))
        a("s_add_u32 s%d, s%d, s%d" % (sA, sA, sB))
        a("v_add_u32 v26, s%d, v26" % sA)
        a("s_lshl_b32 s%d, s%d, 10" % (sQG, sA))
        a("s_lshl_b32 s%d, s%d, 7" % (sB, sC))
        a("s_add_u32 s%d, s%d, s%d" % (sQG, sQG, sB))
        a("v_add_u32 v138, s%d, v137" % sQG)
        a("v_subrev_u32 v138, 3072, v138")
        a("v_mov_b32 v27, 0x%x" % OOB)
        a("v_cmp_gt_u32 vcc, 3, v26")
        a("v_cndmask_b32 v138, v138, v27, vcc")
        a("s_mul_i32 s%d, s%d, 5120" % (sWG, sW))
        a("s_add_u32 m0, s%d, %d" % (sWG, LKV))
        a.vmem("buffer_load_dwordx4 v138, %s, 0 offen lds" % sr(S_K, 4), "kv")
        for g in (1, 2):
            self.dma_item(S_K, 137, sWG, LKV + 1024 * g, sQG, 8192 * g - 3072, "kv")()
        for g in (0, 1):
            self.dma_item(S_V, 137, sWG, LKV + 3072 + 1024 * g, sQG, 8192 * g, "kv")()
        a("s_lshl_b32 s%d, s%d, 9" % (sB, sC))
        a("v_lshl_add_u32 v26, v%d, 4, s%d" % (vN31, sB))
        a.vmem("buffer_load_dwordx4 %s, v26, %s, 0 offen" % (vr(self.SHRAW, 4), sr(S_SHK, 4)), "kv")

    def p0_reads(self):
        a = self.a
        a.wait_vm("kv")
        a("s_mul_i32 s%d, s%d, 5120" % (sA, sW))
        a("v_lshlrev_b32 v26, 10, v%d" % vHH)
        a("v_lshl_add_u32 v26, v%d, 2, v26" % vN31)
        a("v_add_u32 v26, s%d, v26" % sA)
        a("v_add_u32 v26, %d, v26" % LKV)
        for i in range(11):
            a.lds("ds_read_b32 v%d, v26 offset:%d" % (self.KRAW + i, 128 * i), "p0")
        for i in range(8):
            a.lds("ds_read_b32 v%d, v26 offset:%d" % (self.VRAW + i, 3072 + 128 * i), "p0")

    def touch_kv(self, dk=54, dv=55):
        a = self.a
        for srd, rows, first, dst in ((S_K, 17, -3, dk), (S_V, 16, 0, dv)):
            a("s_lshl_b32 s%d, s%d, 6" % (sA, sR))
            a("s_mul_i32 s%d, s%d, %d" % (sB, sW, rows))
            a("s_add_u32 s%d, s%d, s%d" % (sA, sA, sB))
            a("s_add_i32 s%d, s%d, %d" % (sA, sA, first))
            a("v_add_u32 v26, s%d, v%d" % (sA, vL))
            a("v_lshlrev_b32 v26, 10, v26")
            a("s_lshl_b32 s%d, s%d, 7" % (sB, sC))
            a("v_add_u32 v26, s%d, v26" % sB)
            a("v_mov_b32 v27, 0x%x" % OOB)
            a("v_cmp_gt_u32 vcc, %d, v%d" % (rows, vL))
            a("v_cndmask_b32 v26, v27, v26, vcc")
            a.vmem("buffer_load_dword v%d, v26, %s, 0 offen" % (dst, sr(srd, 4)), "touch")

    def touch_w3_local(self):
        a = self.a
        if self.opt.get("tw3", 1):
            a("s_lshr_b32 s%d, s2, 3" % sE)
            a("s_lshl_b32 s%d, s%d, 2" % (sE, sE))
            a("s_add_u32 s%d, s%d, s%d" % (sE, sE, sW))
            self.touch(S_W3, 64, sE, 50)
            a("s_add_u32 s%d, s%d, 128" % (sE, sE))
            self.touch(S_W3, 64, sE, 51)

    def touch_w4_chip(self):
        a = self.a
        if self.opt.get("tw4", 1):
            a("s_lshl_b32 s%d, s2, 2" % sE)
            a("s_add_u32 s%d, s%d, s%d" % (sE, sE, sW))
            self.touch(S_W4, 14, sE, 52)

    def touch_w34(self):
        a = self.a
        if self.opt.get("touch", 1):
            a("s_lshl_b32 s%d, s2, 2" % sE)
            a("s_add_u32 s%d, s%d, s%d" % (sE, sE, sW))
            if self.opt.get("touchw3", 1):
                self.touch(S_W3, 14, sE, 223)
            if self.opt.get("touchw4", 1):
                self.touch(S_W4, 14, sE, 224)

    def touch_w4_local(self):
        a = self.a
        a("s_lshr_b32 s%d, s2, 3" % sE)
        a("s_lshl_b32 s%d, s%d, 2" % (sE, sE))
        a("s_add_u32 s%d, s%d, s%d" % (sE, sE, sW))
        self.touch(S_W4, 64, sE, 54)
        a("s_add_u32 s%d, s%d, 128" % (sE, sE))
        self.touch(S_W4, 64, sE, 55)

    KRAW, VRAW, SHRAW, POFF = 172, 183, 164, 138

    def p0_loads(self):
        a = self.a
        o = self.POFF
        a("s_lshl_b32 s%d, s%d, 6" % (sA, sR))
        a("s_lshl_b32 s%d, s%d, 4" % (sB, sW))
        a("s_add_u32 s%d, s%d, s%d" % (sA, sA, sB))
        a("v_lshl_add_u32 v26, v%d, 3, s%d" % (vHH, sA))
        a("s_lshl_b32 s%d, s%d, 7" % (sB, sC))
        a("v_lshl_add_u32 v27, v%d, 2, s%d" % (vN31, sB))
        a("v_lshl_add_u32 v%d, v26, 10, v27" % (o + 3))
        a("v_add_u32 v%d, 0x1000, v%d" % (o + 4, o + 3))
        a("v_mov_b32 v28, 0x%x" % OOB)
        for i in range(3):
            a("v_subrev_u32 v%d, %d, v%d" % (o + i, (3 - i) * 1024, o + 3))
            a("v_cmp_gt_u32 vcc, %d, v26" % (3 - i))
            a("v_cndmask_b32 v%d, v%d, v28, vcc" % (o + i, o + i))
        a("s_lshl_b32 s%d, s%d, 9" % (sB, sC))
        a("v_lshl_add_u32 v%d, v%d, 4, s%d" % (o + 5, vN31, sB))

        def item(text):
            return lambda: a.vmem(text, "p0")
        for i in range(3):
            self.fq.append(item("buffer_load_dword v%d, v%d, %s, 0 offen" % (self.KRAW + i, o + i, sr(S_K, 4))))
        for i in range(8):
            self.fq.append(item("buffer_load_dword v%d, v%d, %s, 0 offen offset:%d"
                                % (self.KRAW + 3 + i, o + 3 + i // 4, sr(S_K, 4), (i % 4) * 1024)))
        for i in range(8):
            self.fq.append(item("buffer_load_dword v%d, v%d, %s, 0 offen offset:%d"
                                % (self.VRAW + i, o + 3 + i // 4, sr(S_V, 4), (i % 4) * 1024)))
        self.fq.append(item("buffer_load_dwordx4 %s, v%d, %s, 0 offen" % (vr(self.SHRAW, 4), o + 5, sr(S_SHK, 4))))

    ACK, ACS, ACC_CS = 32, 48, 64
    BF, AK, AS, AC = 80, 96, 104, 112
    SUM, ONE4 = 120, 124

    def s1_setup(self):
        a = self.a
        a("v_bfe_u32 v26, v%d, 1, 3" % vN31)
        a("v_xor_b32 v26, v26, v%d" % vHH)
        a("v_lshlrev_b32 v26, 4, v26")
        a("v_lshl_add_u32 v26, v%d, 7, v26" % vN31)
        a("s_lshl_b32 s%d, s%d, 14" % (sA, sW))
        a("v_add_u32 v128, s%d, v26" % sA)
        for i in range(1, 4):
            a("v_xor_b32 v%d, %d, v128" % (128 + i, 32 * i))
        a("s_lshl_b32 s%d, s%d, 14" % (sA, sKH))
        a("s_add_u32 s%d, s%d, %d" % (sA, sA, LW))
        a("s_lshl_b32 s%d, s%d, 15" % (sB, sKH))
        a("s_add_u32 s%d, s%d, s%d" % (sE, sA, sB))
        a("v_add_u32 v134, s%d, v%d" % (sE, vWN))
        a("s_xor_b32 s%d, s%d, 0x8000" % (sB, sB))
        a("s_add_u32 s%d, s%d, s%d" % (sE, sA, sB))
        a("v_add_u32 v135, s%d, v%d" % (sE, vWN))
        a("s_xor_b32 s%d, s%d, s%d" % (sB, sKH, sTH))
        a("s_lshl_b32 s%d, s%d, 15" % (sB, sB))
        a("s_add_u32 s%d, s%d, s%d" % (sE, sA, sB))
        a("v_add_u32 v136, s%d, v%d" % (sE, vWN))

    def s1_main(self, after_stage):
        a = self.a
        ACK, ACS, ACC_CS, BF, AK, AS, AC, SUM, ONE4 = (self.ACK, self.ACS, self.ACC_CS, self.BF, self.AK, self.AS,
                                                       self.AC, self.SUM, self.ONE4)
        self.selector(ONE4)
        for i in range(4):
            a("v_mov_b32 v%d, 0" % (SUM + i))

        def aread(ks, which):
            base, addr = ((AK, 134), (AS, 135), (AC, 136))[which]
            for hf in range(2):
                a.lds("ds_read_b64_tr_b16 %s, v%d offset:%d"
                      % (vr(base + 4 * (ks & 1) + 2 * hf, 2), addr, ks * 1024 + hf * 256), "f%d_%d" % (ks, which))

        for st in range(4):
            if st < 3:
                after_stage(st)
            for q4 in range(4):
                a.lds("ds_read_b128 %s, v%d offset:%d" % (vr(BF + 4 * q4, 4), 128 + q4, LQ + st * 4096), "b")
            for which in range(3):
                aread(4 * st, which)
            self.fill(1)
            a.wait_lg("b")
            for j in range(16):
                a("v_dot2c_f32_bf16 v%d, s%d, v%d" % (SUM + (j & 1), sONES, BF + j))
                a("v_dot2c_f32_bf16 v%d, v%d, v%d" % (SUM + 2 + (j & 1), BF + j, BF + j))
                if j in (5, 11):
                    self.fill(1)
            for q4 in range(4):
                ks = 4 * st + q4
                b = ks & 1
                B = vr(BF + 4 * q4, 4)
                first = ks == 0
                a.wait_lg("f%d_0" % ks)
                a("%s %s, %s, %s, %s" % (MF32, vr(ACK, 16), vr(AK + 4 * b, 4), B, "0" if first else vr(ACK, 16)))
                if q4 < 3:
                    aread(ks + 1, 0)
                self.fill(1)
                a.wait_lg("f%d_1" % ks)
                a("%s %s, %s, %s, %s" % (MF32, vr(ACS, 16), vr(AS + 4 * b, 4), B, "0" if first else vr(ACS, 16)))
                if q4 < 3:
                    aread(ks + 1, 1)
                self.fill(1)
                a.wait_lg("f%d_2" % ks)
                a("%s %s, %s, %s, %s" % (MF16, vr(ACC_CS, 4), vr(AC + 4 * b, 4), vr(ONE4, 4),
                                         "0" if first else vr(ACC_CS, 4)))
                if q4 < 3:
                    aread(ks + 1, 2)
            self.stamp("s1st%d" % st)
        self.fill_all()

    def selector(self, dst):
        a = self.a
        a("v_lshrrev_b32 v26, 4, v%d" % vL)
        a("v_xor_b32 v26, v26, v%d" % vL)
        a("v_and_b32 v26, 1, v26")
        a("v_mov_b32 v27, s%d" % sONES)
        a("v_cmp_eq_u32 vcc, 0, v26")
        a("v_cndmask_b32 v%d, 0, v27, vcc" % dst)
        for i in range(1, 4):
            a("v_mov_b32 v%d, v%d" % (dst + i, dst))

    def colsum_write(self, src, sbase):
        a = self.a
        a("v_and_b32 v28, 1, v%d" % vL)
        a("v_lshlrev_b32 v28, 6, v28")
        a("v_lshrrev_b32 v29, 4, v%d" % vL)
        a("v_lshl_add_u32 v28, v29, 4, v28")
        a("v_add_u32 v28, s%d, v28" % sbase)
        self.hold += 1
        a("s_mov_b32 exec_lo, 0x30003")
        a("s_mov_b32 exec_hi, 0x30003")
        a.lds("ds_write_b128 v28, %s" % vr(src, 4))
        a("s_mov_b64 exec, -1")
        self.hold -= 1

    def q_tile_read(self):
        a = self.a
        self.feat0(sE, sKH, 0)
        a("s_lshr_b32 s%d, s%d, 8" % (sA, sE))
        a("s_lshl_b32 s%d, s%d, 1" % (sB, sTH))
        a("s_add_u32 s%d, s%d, s%d" % (sA, sA, sB))
        a("s_lshl_b32 s%d, s%d, 14" % (sA, sA))
        a("s_lshr_b32 s%d, s%d, 6" % (sB, sE))
        a("s_sub_u32 s%d, s%d, s%d" % (sB, sB, sROT))
        a("s_and_b32 s%d, s%d, 3" % (sB, sB))
        a("s_lshl_b32 s%d, s%d, 12" % (sB, sB))
        a("s_add_u32 s%d, s%d, s%d" % (sA, sA, sB))
        a("s_bfe_u32 s%d, s%d, 0x10005" % (sB, sE))
        a("s_lshl_b32 s%d, s%d, 2" % (sB, sB))
        a("v_bfe_u32 v26, v%d, 1, 3" % vN31)
        a("v_xor_b32 v26, s%d, v26" % sB)
        a("v_lshlrev_b32 v27, 7, v%d" % vN31)
        a("v_lshl_add_u32 v27, v%d, 3, v27" % vHH)
        a("v_add_u32 v27, s%d, v27" % sA)
        for j in range(4):
            a("v_xor_b32 v28, %d, v26" % j)
            a("v_lshl_add_u32 v28, v28, 4, v27")
            a.lds("ds_read_b64 %s, v28 offset:%d" % (vr(vQ + 2 * j, 2), LQ), "qt")

    def gelu(self, X, n, vA13, vIA, T, out, fills=0):
        a = self.a
        for g0 in range(0, n // 2, 4):
            ps = list(range(g0, min(g0 + 4, n // 2)))
            t = lambda p: T + 4 * (p - g0)
            x = lambda p: vr(X + 2 * p, 2)
            left = fills

            def hook():
                nonlocal left
                if left > 0:
                    self.fill(1)
                    left -= 1
            for p in ps:
                a("v_pk_mul_f32 %s, %s, %s" % (vr(t(p), 2), x(p), x(p)))
            for p in ps:
                a("v_pk_fma_f32 %s, %s, %s, %s op_sel:[0,1,0] op_sel_hi:[1,1,0]"
                  % (vr(t(p), 2), vr(t(p), 2), vr(vA13, 2), vr(vA13, 2)))
            hook()
            for p in ps:
                a("v_pk_mul_f32 %s, %s, %s" % (vr(t(p), 2), vr(t(p), 2), x(p)))
            for p in ps:
                a("v_exp_f32 v%d, v%d" % (t(p) + 2, t(p)))
                a("v_exp_f32 v%d, v%d" % (t(p) + 3, t(p) + 1))
            hook()
            for p in ps:
                a("v_pk_fma_f32 %s, %s, %s, %s op_sel_hi:[1,0,0]"
                  % (vr(t(p), 2), vr(t(p) + 2, 2), vr(vIA, 2), vr(vIA, 2)))
            hook()
            for p in ps:
                a("v_rcp_f32 v%d, v%d" % (t(p) + 2, t(p)))
                a("v_rcp_f32 v%d, v%d" % (t(p) + 3, t(p) + 1))
            hook()
            for p in ps:
                a("v_pk_mul_f32 %s, %s, %s" % (vr(t(p), 2), vr(t(p) + 2, 2), x(p)))
            for p in ps:
                a("v_cvt_pk_bf16_f32 v%d, v%d, v%d" % (out + p, t(p), t(p) + 1))

    def gelu_consts(self, vA, dst):
        a = self.a
        a("v_mul_f32 v%d, s%d, v%d" % (dst, sKG1, vA))
        a("v_mul_f32 v%d, v%d, v%d" % (dst + 1, vA, vA))
        a("v_mul_f32 v%d, v%d, v%d" % (dst + 1, dst + 1, vA))
        a("v_mul_f32 v%d, s%d, v%d" % (dst + 1, sKG3, dst + 1))
        a("v_rcp_f32 v%d, v%d" % (dst + 2, vA))

    def exchange_write(self, send, base=LRED):
        a = self.a
        a("s_lshl_b32 s%d, s%d, 12" % (sA, sW))
        a("s_add_u32 s%d, s%d, %d" % (sA, sA, base))
        a("v_add_u32 v26, s%d, v%d" % (sA, vL16))
        for j in range(4):
            a.lds("ds_write_b128 v26, %s offset:%d" % (vr(send + 4 * j, 4), 1024 * j))

    def exchange_read(self, dst, base=LRED):
        a = self.a
        a("s_xor_b32 s%d, s%d, 1" % (sA, sW))
        a("s_lshl_b32 s%d, s%d, 12" % (sA, sA))
        a("s_add_u32 s%d, s%d, %d" % (sA, sA, base))
        a("v_add_u32 v26, s%d, v%d" % (sA, vL16))
        for j in range(4):
            a.lds("ds_read_b128 %s, v26 offset:%d" % (vr(dst + 4 * j, 4), 1024 * j), "xr")

    def s1_epilogue(self, after_exchange):
        a = self.a
        ACK, ACS, ACC_CS, SUM = self.ACK, self.ACS, self.ACC_CS, self.SUM
        self.q_tile_read()
        a("v_add_f32 v%d, v%d, v%d" % (SUM, SUM, SUM + 1))
        a("v_add_f32 v%d, v%d, v%d" % (SUM + 2, SUM + 2, SUM + 3))
        a("v_permlane32_swap_b32 v%d, v%d" % (SUM, SUM + 2))
        a("v_add_f32 v%d, v%d, v%d" % (SUM, SUM, SUM + 2))
        a("s_lshl_b32 s%d, s%d, 8" % (sA, sW))
        a("s_add_u32 s%d, s%d, %d" % (sA, sA, LSTX))
        a("v_lshl_add_u32 v27, v%d, 2, s%d" % (vL, sA))
        a.lds("ds_write_b32 v27, v%d" % SUM)
        self.exchange_write(ACS)
        a("s_xor_b32 s%d, s%d, s%d" % (sA, sKH, sTH))
        a("s_lshl_b32 s%d, s%d, 8" % (sA, sA))
        a("s_lshl_b32 s%d, s%d, 7" % (sB, sKH))
        a("s_add_u32 s%d, s%d, s%d" % (sA, sA, sB))
        a("s_add_u32 s%d, s%d, %d" % (sA, sA, LCSX))
        self.colsum_write(ACC_CS, sA)
        a.wait_lg_all()
        self.ssm_d_unpack()
        self.barrier()
        P, C0, C1 = 80, 96, 128
        self.exchange_read(P)
        a("s_xor_b32 s%d, s%d, 1" % (sA, sW))
        a("s_lshl_b32 s%d, s%d, 8" % (sA, sA))
        a("s_add_u32 s%d, s%d, %d" % (sA, sA, LSTX))
        a("v_lshl_add_u32 v27, v%d, 2, s%d" % (vL, sA))
        a.lds("ds_read_b32 v%d, v27" % (SUM + 1), "sx")
        a("s_lshl_b32 s%d, s%d, 8" % (sA, sKH))
        a("s_add_u32 s%d, s%d, %d" % (sA, sA, LCSX))
        a("v_lshl_add_u32 v28, v%d, 4, s%d" % (vHH, sA))
        for j in range(4):
            a.lds("ds_read_b128 %s, v28 offset:%d" % (vr(C0 + 4 * j, 4), 32 * j))
            a.lds("ds_read_b128 %s, v28 offset:%d" % (vr(C1 + 4 * j, 4), 128 + 32 * j))
        after_exchange()
        a.wait_lg("sx")
        a("v_add_f32 v%d, v%d, v%d" % (SUM, SUM, SUM + 1))
        a("v_mov_b32 v%d, v%d" % (SUM + 2, SUM))
        a("v_permlane32_swap_b32 v%d, v%d" % (SUM, SUM + 2))
        a("v_mul_f32 v%d, s%d, v%d" % (vMEAN, s512I, SUM))
        a("v_mul_f32 v26, s%d, v%d" % (s512I, SUM + 2))
        a("v_fma_f32 v26, -v%d, v%d, v26" % (vMEAN, vMEAN))
        a("v_max_f32 v26, 0, v26")
        a("v_add_f32 v27, s%d, v26" % sEPS)
        a("v_rsq_f32 v%d, v27" % vR1)
        a("v_mul_f32 v27, v%d, v%d" % (vR1, vR1))
        a("v_fma_f32 v27, v27, v26, s%d" % sEPS)
        a("v_rsq_f32 v27, v27")
        a("v_mul_f32 v27, v27, v%d" % vR1)
        G = 112
        self.gelu_consts(27, G)
        a("v_sub_f32 v%d, 0, v%d" % (G + 4, vMEAN))
        a.wait_lg_all()
        for p in range(8):
            a("v_pk_add_f32 %s, %s, %s" % (vr(C0 + 2 * p, 2), vr(C0 + 2 * p, 2), vr(C1 + 2 * p, 2)))
            a("v_pk_add_f32 %s, %s, %s" % (vr(ACK + 2 * p, 2), vr(ACK + 2 * p, 2), vr(P + 2 * p, 2)))
        for p in range(8):
            a("v_pk_fma_f32 %s, %s, %s, %s op_sel_hi:[1,0,1]"
              % (vr(ACK + 2 * p, 2), vr(C0 + 2 * p, 2), vr(G + 4, 2), vr(ACK + 2 * p, 2)))
        self.gelu(ACK, 16, G, G + 2, 144, 48, fills=0)
        self.frag_store(48, WS_HS, "hst")

    def frag_store(self, src, base, tag):
        a = self.a
        a("s_lshl_b32 s%d, s%d, 15" % (sA, sT))
        self.feat0(sB, sKH, 6)
        a("s_add_u32 s%d, s%d, s%d" % (sA, sA, sB))
        a("s_add_u32 s%d, s%d, 0x%x" % (sA, sA, base))
        a.vmem("buffer_store_dwordx4 %s, v%d, %s, s%d offen sc1" % (vr(src, 4), vL16, sr(S_WS, 4), sA), tag)
        a.vmem("buffer_store_dwordx4 %s, v%d, %s, s%d offen offset:1024 sc1"
               % (vr(src + 4, 4), vL16, sr(S_WS, 4), sA), tag)

    PK = 118

    def nonce_compute(self):
        a = self.a
        a.wait_vm("nonce")
        a("v_readfirstlane_b32 s%d, v30" % sN)
        a("s_mul_i32 s%d, s%d, 0x9e3779b1" % (sN, sN))
        a("s_add_u32 s%d, s%d, 0x7f4a7c15" % (sN, sN))

    def p0_compute(self, mid=None):
        a = self.a
        K, V, SH, KV, PK = 56, 78, 94, 102, self.PK
        self.p0_reads()
        a.wait_lg_all()
        d = self.SHRAW
        for j, (x, y, hi) in enumerate([(d, d + 2, 0), (d, d + 2, 1), (d + 1, d + 3, 0), (d + 1, d + 3, 1)]):
            for o, src in ((0, x), (1, y)):
                if hi:
                    a("v_and_b32 v%d, s%d, v%d" % (SH + 2 * j + o, sHI, src))
                else:
                    a("v_lshlrev_b32 v%d, 16, v%d" % (SH + 2 * j + o, src))
        for i in range(11):
            a("v_lshlrev_b32 v%d, 16, v%d" % (K + 2 * i, self.KRAW + i))
            a("v_and_b32 v%d, s%d, v%d" % (K + 2 * i + 1, sHI, self.KRAW + i))
            if i % 4 == 3:
                self.fill(1)
        for i in range(8):
            a("v_lshlrev_b32 v%d, 16, v%d" % (V + 2 * i, self.VRAW + i))
            a("v_and_b32 v%d, s%d, v%d" % (V + 2 * i + 1, sHI, self.VRAW + i))
        self.fill(1)
        for t in range(8):
            a("v_pk_mul_f32 %s, %s, %s" % (vr(KV + 2 * t, 2), vr(K + 2 * (t + 3), 2), vr(SH, 2)))
        self.fill(1)
        for j in range(1, 4):
            for t in range(8):
                a("v_pk_fma_f32 %s, %s, %s, %s" % (vr(KV + 2 * t, 2), vr(K + 2 * (t + 3 - j), 2), vr(SH + 2 * j, 2),
                                                   vr(KV + 2 * t, 2)))
            self.fill(1)
        if mid:
            mid()
            self.fill(4)
        for t in range(8):
            a("v_pk_mul_f32 %s, %s, %s" % (vr(KV + 2 * t, 2), vr(KV + 2 * t, 2), vr(V + 2 * t, 2)))
        self.fill(1)
        for c in range(2):
            for t in range(4):
                a("v_cvt_pk_bf16_f32 v%d, v%d, v%d" % (PK + 4 * c + t, KV + 4 * t + c, KV + 4 * t + 2 + c))
        a("s_lshl_b32 s%d, s%d, 1" % (sA, sW))
        a("v_add_u32 v26, s%d, v%d" % (sA, vHH))
        a("v_and_b32 v27, 7, v%d" % vN31)
        a("v_xor_b32 v26, v26, v27")
        a("v_lshlrev_b32 v26, 4, v26")
        a("v_lshl_add_u32 v26, v%d, 8, v26" % vN31)
        a("v_add_u32 v26, %d, v26" % LSTG)
        a.lds("ds_write_b128 v26, %s" % vr(PK, 4))
        a.lds("ds_write_b128 v26, %s offset:128" % vr(PK + 4, 4))
        self.fill_all()

    def p0_readback(self):
        a = self.a
        PK = 144
        a("v_lshrrev_b32 v26, 3, v%d" % vL)
        a("s_lshl_b32 s%d, s%d, 4" % (sA, sW))
        a("v_add_u32 v26, s%d, v26" % sA)
        a("v_and_b32 v27, 7, v%d" % vL)
        for i in range(2):
            a("v_add_u32 v28, %d, v26" % (8 * i))
            a("v_bfe_u32 v29, v28, 1, 3")
            a("v_xor_b32 v29, v29, v27")
            a("v_lshlrev_b32 v29, 4, v29")
            a("v_lshl_add_u32 v29, v28, 7, v29")
            a("v_add_u32 v29, %d, v29" % LSTG)
            a.lds("ds_read_b128 %s, v29" % vr(PK + 4 * i, 4), "pk")
        a("v_lshlrev_b32 v27, 4, v27")
        a("v_lshl_add_u32 v152, v26, 12, v27")

    def p0_store(self):
        a = self.a
        PK = 144
        a("s_lshl_b32 s%d, s%d, 18" % (sA, sC))
        a("s_lshl_b32 s%d, s%d, 7" % (sB, sR))
        a("s_add_u32 s%d, s%d, s%d" % (sA, sA, sB))
        a("s_add_u32 s%d, s%d, 0x%x" % (sA, sA, WS_KVT))
        a("s_add_u32 s%d, s%d, 0x8000" % (sB, sA))
        a.wait_lg("pk")
        a.vmem("buffer_store_dwordx4 %s, v152, %s, s%d offen sc1" % (vr(PK, 4), sr(S_WS, 4), sA), "kvt")
        a.vmem("buffer_store_dwordx4 %s, v152, %s, s%d offen sc1" % (vr(PK + 4, 4), sr(S_WS, 4), sB), "kvt")

    def conv_filter_loads(self, ch):
        a = self.a
        a("v_lshlrev_b32 v26, 4, v%d" % vTID)
        a("v_subrev_u32 v27, 8, v26")
        a("v_mov_b32 v28, 0x%x" % OOB)
        a("v_cmp_eq_u32 vcc, 0, v%d" % vTID)
        a("v_cndmask_b32 v27, v27, v28, vcc")
        a("s_lshl_b32 s%d, s2, 13" % sA)
        if ch:
            a("s_add_u32 s%d, s%d, 0x1000" % (sA, sA))
        dA, dP = vr(vCH, 4), vr(vCH + 4, 2)
        a.vmem("buffer_load_dwordx4 %s, v26, %s, s%d offen" % (dA, sr(S_SSM, 4), sA), "cf")
        a.vmem("buffer_load_dwordx2 %s, v27, %s, s%d offen" % (dP, sr(S_SSM, 4), sA), "cf")

    def ssm_d_load(self):
        a = self.a
        a("s_lshl_b32 s%d, s2, 2" % sA)
        a("s_load_dword s%d, %s, s%d" % (sD0, sr(S_DPTR, 2), sA))

    def ssm_d_unpack(self):
        a = self.a
        a("s_and_b32 s%d, s%d, s%d" % (sD1, sD0, sHI))
        a("s_lshl_b32 s%d, s%d, 16" % (sD0, sD0))

    def conv_x_loads(self, ch):
        a = self.a
        a("v_lshlrev_b32 v26, 4, v%d" % vTID)
        a("s_lshl_b32 s%d, s2, 13" % sA)
        a("s_add_u32 s%d, s%d, 0x%x" % (sA, sA, WS_KVT + 0x1000 * ch))
        a.vmem("buffer_load_dwordx4 %s, v26, %s, s%d offen sc1" % (vr(vCH + 6, 4), sr(S_WS, 4), sA), "cx")

    def conv_prep_filter(self, ch):
        a = self.a
        base = CV_BASE1 if ch else CV_BASE
        A, P = vCH, vCH + 4
        a.wait_vm("cf")
        a("v_min_u32 v26, 79, v%d" % vTID)
        a("v_subrev_u32 v27, 72, v26")
        a("v_lshrrev_b32 v28, 1, v27")
        a("v_mul_u32_u24 v28, 4128, v28")
        a("v_and_b32 v27, 1, v27")
        a("v_lshl_add_u32 v28, v27, 4, v28")
        a("v_add_u32 v28, %d, v28" % (base + CV_A))
        a("v_lshlrev_b32 v27, 4, v26")
        a("v_add_u32 v27, %d, v27" % (base + CV_X))
        a("v_cmp_gt_u32 vcc, 72, v26")
        a("v_cndmask_b32 v28, v28, v27, vcc")
        for i in range(4):
            a("v_mov_b32 v%d, 0" % (32 + i))
        a.lds("ds_write_b128 v28, %s" % vr(32, 4))
        Z, Y, W = 36, 40, 44
        seq = [P, P + 1, A, A + 1, A + 2, A + 3]
        for j in range(4):
            a("v_alignbit_b32 v%d, v%d, v%d, 16" % (Z + j, seq[j + 1], seq[j]))
            a("v_alignbit_b32 v%d, v%d, v%d, 16" % (Y + j, seq[j + 2], seq[j + 1]))
            a("v_mov_b32 v%d, v%d" % (W + j, seq[j + 1]))
        a("v_lshlrev_b32 v29, 4, v%d" % vTID)
        a("v_add_u32 v29, %d, v29" % base)
        for rho, src in ((0, A), (1, Y), (2, W), (3, Z)):
            a.lds("ds_write_b128 v29, %s offset:%d" % (vr(src, 4), CV_A + 32 + 4128 * rho))
        a.wait_lg_all()

    def conv_x_write(self, ch):
        a = self.a
        base = CV_BASE1 if ch else CV_BASE
        a.wait_vm("cx")
        a("v_lshlrev_b32 v29, 4, v%d" % vTID)
        a("v_add_u32 v29, %d, v29" % base)
        a.lds("ds_write_b128 v29, %s offset:%d" % (vr(vCH + 6, 4), CV_XD))
        a.wait_lg_all()

    def conv_poly(self, ch):
        a = self.a
        base = CV_BASE1 if ch else CV_BASE
        a("s_lshl_b32 s%d, s%d, 5" % (sA, sW))
        a("s_sub_u32 s%d, %d, s%d" % (sA, base + CV_XD - 1024, sA))
        a("v_lshl_add_u32 v26, v%d, 3, s%d" % (vL, sA))
        for u in range(10):
            a.lds("ds_read_b64_tr_b16 %s, v26 offset:%d" % (vr(32 + 2 * u, 2), 512 * u), "u%d" % u)
        a("s_mul_i32 s%d, s%d, 5312" % (sA, sW))
        a("s_add_u32 s%d, s%d, %d" % (sA, sA, base + CV_P))
        a("v_and_b32 v27, 15, v%d" % vL)
        a("v_mul_u32_u24 v27, 328, v27")
        a("v_lshrrev_b32 v28, 4, v%d" % vL)
        a("v_lshl_add_u32 v27, v28, 3, v27")
        a("v_add_u32 v27, s%d, v27" % sA)
        for u in range(10):
            a.wait_lg("u%d" % u)
            a.lds("ds_write_b64 v27, %s offset:%d" % (vr(32 + 2 * u, 2), 32 * u))
        a.wait_lg_all()

    def conv_addr(self, ch):
        a = self.a
        base = CV_BASE1 if ch else CV_BASE
        a("s_lshl_b32 s%d, s%d, 4" % (sA, sTH))
        a("s_sub_u32 s%d, %d, s%d" % (sA, base + CV_A + 24, sA))
        a("v_lshl_add_u32 v160, v%d, 3, s%d" % (vL, sA))
        a("s_mul_i32 s%d, s%d, 2624" % (sA, sTH))
        a("s_lshl_b32 s%d, s%d, 5" % (sB, sKH))
        a("s_add_u32 s%d, s%d, s%d" % (sA, sA, sB))
        a("s_add_u32 s%d, s%d, %d" % (sA, sA, base + CV_P + 32))
        a("v_bfe_u32 v26, v%d, 2, 2" % vL)
        a("v_mul_u32_u24 v26, 5312, v26")
        a("v_and_b32 v27, 3, v%d" % vL)
        a("v_lshrrev_b32 v28, 4, v%d" % vL)
        a("v_sub_u32 v27, v27, v28")
        a("v_lshl_add_u32 v26, v27, 3, v26")
        a("v_add_u32 v161, s%d, v26" % sA)

    CACC, CAF, CBF = 32, 64, 96

    def conv_main(self, hook=None, fill_every=0):
        a = self.a
        CACC, CAF, CBF = self.CACC, self.CAF, self.CBF

        def rd_list(it):
            b = it & 1
            u, rho = it >> 2, it & 3
            out = []
            order = [("A", 0), ("B", 0), ("B", 1), ("B", 2), ("B", 3), ("A", 1), ("A", 2), ("A", 3)]
            for kind, i in order:
                for hf in range(2):
                    if kind == "A":
                        out.append(("ds_read_b64_tr_b16 %s, v160 offset:%d"
                                    % (vr(CAF + 16 * b + 4 * i + 2 * hf, 2),
                                       4128 * rho + 8 * (1 - u) + 1024 * i + 512 * hf), "A%d_%d" % (it, i)))
                    else:
                        out.append(("ds_read_b64_tr_b16 %s, v161 offset:%d"
                                    % (vr(CBF + 16 * b + 4 * i + 2 * hf, 2), 328 * it + 64 * i + 32 * (1 - hf)),
                                    "B%d_%d" % (it, i)))
            return out

        for x, t in rd_list(0):
            a.lds(x, t)
        for it in range(8):
            if hook and it % 2 == 0:
                hook(it // 2)
            b = it & 1
            nxt = rd_list(it + 1) if it < 7 else []
            k = 0
            for q in range(4):
                for i in range(4 - q):
                    a.wait_lg("A%d_%d" % (it, q), "B%d_%d" % (it, i))
                    acc = vr(CACC + 4 * (i + q), 4)
                    a("%s %s, %s, %s, %s" % (MF16, acc, vr(CAF + 16 * b + 4 * q, 4), vr(CBF + 16 * b + 4 * i, 4),
                                             "0" if (it == 0 and q == 0) else acc))
                    for _ in range(2 if k < 6 else 1):
                        if nxt:
                            x, t = nxt.pop(0)
                            a.lds(x, t)
                    k += 1
            assert not nxt

    def conv_finish(self, ch):
        a = self.a
        base = CV_BASE1 if ch else CV_BASE
        CACC = self.CACC
        self.barrier()
        a("s_lshl_b32 s%d, s%d, 11" % (sA, sW))
        a("s_add_u32 s%d, s%d, %d" % (sA, sA, base + CV_R))
        a("v_add_u32 v26, s%d, v%d" % (sA, vL16))
        hi, done = a.newlabel("cvhi"), a.newlabel("cvsent")
        self.hold += 1
        a("s_cmp_lg_u32 s%d, 0" % sTH)
        a("s_cbranch_scc1 %s" % hi)
        for j in range(2):
            a("ds_write_b128 v26, %s offset:%d" % (vr(CACC + 8 + 4 * j, 4), 1024 * j))
        a("s_branch %s" % done)
        a.label(hi)
        for j in range(2):
            a("ds_write_b128 v26, %s offset:%d" % (vr(CACC + 4 * j, 4), 1024 * j))
        a.label(done)
        self.hold -= 1
        a("s_lshl_b32 s%d, s%d, 2" % (sE, sTH))
        a("s_add_u32 s%d, s%d, s%d" % (sE, sE, sKH))
        a("s_lshl_b32 s%d, s%d, 9" % (sE, sE))
        a("s_add_u32 s%d, s%d, %d" % (sA, sE, base + CV_XD))
        a("v_and_b32 v27, 15, v%d" % vL)
        a("v_lshlrev_b32 v27, 5, v27")
        a("v_lshrrev_b32 v28, 4, v%d" % vL)
        a("v_lshl_add_u32 v27, v28, 3, v27")
        a("v_add_u32 v27, s%d, v27" % sA)
        for u in range(2):
            a.lds("ds_read_b64 %s, v27 offset:%d" % (vr(100 + 2 * u, 2), 1024 * u))
        a.wait_lg_all()
        self.barrier()
        a("s_xor_b32 s%d, s%d, 2" % (sA, sW))
        a("s_lshl_b32 s%d, s%d, 11" % (sA, sA))
        a("s_add_u32 s%d, s%d, %d" % (sA, sA, base + CV_R))
        a("v_add_u32 v26, s%d, v%d" % (sA, vL16))
        for u in range(2):
            a.lds("ds_read_b128 %s, v26 offset:%d" % (vr(72 + 4 * u, 4), 1024 * u))
        for u in range(2):
            for j in range(2):
                a("v_lshlrev_b32 v%d, 16, v%d" % (104 + 4 * u + 2 * j, 100 + 2 * u + j))
                a("v_and_b32 v%d, s%d, v%d" % (105 + 4 * u + 2 * j, sHI, 100 + 2 * u + j))
        a("v_mov_b32 v112, s%d" % (sD1 if ch else sD0))
        a("v_lshrrev_b32 v26, 4, v%d" % vL)
        a("v_and_b32 v27, 1, v26")
        a("v_lshlrev_b32 v27, 10, v27")
        a("v_lshrrev_b32 v26, 1, v26")
        a("v_lshl_add_u32 v27, v26, 4, v27")
        a("v_and_b32 v26, 15, v%d" % vL)
        a("v_lshl_add_u32 v27, v26, 5, v27")
        a("v_add_u32 v27, s%d, v27" % sE)
        a("s_lshl_b32 s%d, s2, 13" % sA)
        a("s_add_u32 s%d, s%d, 0x%x" % (sA, sA, WS_YT + 0x1000 * ch))
        a.wait_lg_all()
        hi, done = a.newlabel("cvhi"), a.newlabel("cvsum")
        self.hold += 1
        a("s_cmp_lg_u32 s%d, 0" % sTH)
        a("s_cbranch_scc1 %s" % hi)
        for p in range(4):
            a("v_pk_add_f32 %s, %s, %s" % (vr(64 + 2 * p, 2), vr(CACC + 2 * p, 2), vr(72 + 2 * p, 2)))
        a("s_branch %s" % done)
        a.label(hi)
        for p in range(4):
            a("v_pk_add_f32 %s, %s, %s" % (vr(64 + 2 * p, 2), vr(CACC + 8 + 2 * p, 2), vr(72 + 2 * p, 2)))
        a.label(done)
        self.hold -= 1
        for p in range(4):
            a("v_pk_fma_f32 %s, %s, %s, %s op_sel_hi:[1,0,1]" % (vr(64 + 2 * p, 2), vr(104 + 2 * p, 2), vr(112, 2),
                                                                vr(64 + 2 * p, 2)))
        for p in range(4):
            a("v_cvt_pk_bf16_f32 v%d, v%d, v%d" % (116 + p, 64 + 2 * p, 65 + 2 * p))
        a("v_permlane16_swap_b32 v116, v118")
        a("v_permlane16_swap_b32 v117, v119")
        a.vmem("buffer_store_dwordx4 %s, v27, %s, s%d offen sc1" % (vr(116, 4), sr(S_WS, 4), sA), "yt")

    def s2_load_items(self):
        a = self.a
        a("s_lshl_b32 s%d, s%d, 5" % (sA, sT))
        a("v_add_u32 v26, s%d, v%d" % (sA, vN31))
        a("s_add_u32 s%d, s%d, 1" % (sB, sKH))
        a("s_lshl_b32 s%d, s%d, 14" % (sA, sKH))
        a("s_add_u32 s%d, s%d, 0x%x" % (sA, sA, WS_HS))
        a("v_mov_b32 v29, 0x%x" % OOB)
        for i, op in enumerate(("v_subrev_u32", "v_add_u32")):
            a("%s v27, s%d, v26" % (op, sB))
            a("v_lshrrev_b32 v28, 5, v27")
            a("v_lshlrev_b32 v28, 15, v28")
            a("v_and_b32 v30, 31, v27")
            a("v_lshl_add_u32 v30, v%d, 5, v30" % vHH)
            a("v_lshl_add_u32 v28, v30, 4, v28")
            a("v_add_u32 v28, s%d, v28" % sA)
            a("v_cmp_gt_u32 vcc, 0x800, v27")
            a("v_cndmask_b32 v%d, v29, v28, vcc" % (140 + i))
        so = ["0", "s%d" % sK4, "s%d" % sK8, "s%d" % sK12]
        items = []
        for ks in range(16):
            def f(ks=ks):
                a.vmem("buffer_load_dwordx4 %s, v%d, %s, %s offen offset:%d sc1"
                       % (ar(4 * ks, 4), 140 + (ks >> 3), sr(S_WS, 4), so[ks >> 2], (ks & 3) * 1024), "h%d" % ks)
            items.append(f)
        return items

    def wpi_addr(self, vk, vs, base, khs, ps):
        a = self.a
        a("s_mul_i32 s%d, s%d, %d" % (sA, sKH, khs + ps))
        a("s_add_u32 s%d, s%d, %d" % (sA, sA, base))
        a("v_add_u32 v%d, s%d, v%d" % (vk, sA, vWP))
        a("s_mul_i32 s%d, s%d, %d" % (sA, sKH, khs - ps))
        a("s_add_u32 s%d, s%d, %d" % (sA, sA, base + ps))
        a("v_add_u32 v%d, s%d, v%d" % (vs, sA, vWP))

    def s2_main(self):
        a = self.a
        ACK, ACS, AK, AS = self.ACK, self.ACS, self.AK, self.AS

        def rd(ks, which):
            base, addr = ((AK, 128), (AS, 129))[which]
            for hf in range(2):
                a.lds("ds_read_b64_tr_b16 %s, v%d offset:%d" % (vr(base + 4 * (ks & 1) + 2 * hf, 2), addr,
                                                                ks * 1024 + hf * 512), "f%d_%d" % (ks, which))
        rd(0, 0)
        rd(0, 1)
        for ks in range(16):
            b = ks & 1
            a.wait_both("h%d" % ks, "f%d_0" % ks)
            a("%s %s, %s, %s, %s" % (MF32, vr(ACK, 16), vr(AK + 4 * b, 4), ar(4 * ks, 4), "0" if ks == 0 else vr(ACK, 16)))
            if ks < 15:
                rd(ks + 1, 0)
            self.fill(1)
            a.wait_lg("f%d_1" % ks)
            a("%s %s, %s, %s, %s" % (MF32, vr(ACS, 16), vr(AS + 4 * b, 4), ar(4 * ks, 4), "0" if ks == 0 else vr(ACS, 16)))
            if ks < 15:
                rd(ks + 1, 1)
            if ks in (0, 4, 9, 12):
                self.stamp("s2k%d" % ks)

    def unpack8(self, src, dst):
        a = self.a
        for j in range(8):
            a("v_lshlrev_b32 v%d, 16, v%d" % (dst + 2 * j, src + j))
            a("v_and_b32 v%d, s%d, v%d" % (dst + 2 * j + 1, sHI, src + j))

    def xn_tile(self, dst):
        a = self.a
        self.unpack8(vQ, dst)
        for p in range(8):
            a("v_pk_add_f32 %s, %s, %s op_sel_hi:[1,0] neg_lo:[0,1] neg_hi:[0,1]"
              % (vr(dst + 2 * p, 2), vr(dst + 2 * p, 2), vr(vMEAN, 2)))
        for p in range(8):
            a("v_pk_mul_f32 %s, %s, %s op_sel:[0,1] op_sel_hi:[1,1]"
              % (vr(dst + 2 * p, 2), vr(dst + 2 * p, 2), vr(vMEAN, 2)))

    def s2_epilogue(self, after_exchange):
        a = self.a
        ACK, ACS = self.ACK, self.ACS
        self.exchange_write(ACS)
        self.xn_tile(96)
        a.wait_lg_all()
        self.barrier()
        after_exchange()
        self.exchange_read(80)
        for p in range(8):
            a("v_pk_add_f32 %s, %s, %s" % (vr(ACK + 2 * p, 2), vr(ACK + 2 * p, 2), vr(96 + 2 * p, 2)))
        a.wait_lg_all()
        for p in range(8):
            a("v_pk_add_f32 %s, %s, %s" % (vr(ACK + 2 * p, 2), vr(ACK + 2 * p, 2), vr(80 + 2 * p, 2)))
        for p in range(8):
            a("v_cvt_pk_bf16_f32 v%d, v%d, v%d" % (vX1 + p, ACK + 2 * p, ACK + 2 * p + 1))
        self.frag_store(vX1, WS_X1, "x1st")
        a("v_pk_mul_f32 %s, %s, %s" % (vr(112, 2), vr(ACK, 2), vr(ACK, 2)))
        a("v_pk_add_f32 %s, %s, %s" % (vr(114, 2), vr(ACK, 2), vr(ACK + 2, 2)))
        for p in range(1, 8):
            a("v_pk_fma_f32 %s, %s, %s, %s" % (vr(112, 2), vr(ACK + 2 * p, 2), vr(ACK + 2 * p, 2), vr(112, 2)))
            if p >= 2:
                a("v_pk_add_f32 %s, %s, %s" % (vr(114, 2), vr(114, 2), vr(ACK + 2 * p, 2)))
        a("v_add_f32 v114, v114, v115")
        a("v_add_f32 v112, v112, v113")
        a("v_permlane32_swap_b32 v114, v112")
        a("v_add_f32 v114, v114, v112")
        a("s_lshl_b32 s%d, s%d, 1" % (sA, sC))
        a("s_add_u32 s%d, s%d, s%d" % (sA, sA, sKH))
        a("s_lshl_b32 s%d, s%d, 14" % (sA, sA))
        a("s_lshl_b32 s%d, s%d, 7" % (sB, sT))
        a("s_add_u32 s%d, s%d, s%d" % (sA, sA, sB))
        a("s_add_u32 s%d, s%d, 0x%x" % (sA, sA, WS_ST))
        a("v_lshlrev_b32 v26, 13, v%d" % vHH)
        a("v_lshl_add_u32 v26, v%d, 2, v26" % vN31)
        a.vmem("buffer_store_dword v114, v26, %s, s%d offen sc1" % (sr(S_WS, 4), sA), "x1st")

    def w3_setup(self):
        a = self.a
        a("s_movk_i32 s%d, 3584" % sB)
        a("v_lshrrev_b32 v26, 2, v%d" % vL)
        a("v_mul_lo_u32 v26, v26, s%d" % sB)
        a("v_and_b32 v27, 3, v%d" % vL)
        a("v_lshl_add_u32 v%d, v27, 4, v26" % vW3F)
        a("v_lshrrev_b32 v26, 1, v%d" % vL)
        a("v_mul_lo_u32 v26, v26, s%d" % sB)
        a("v_and_b32 v27, 1, v%d" % vL)
        a("v_lshl_add_u32 v%d, v27, 4, v26" % vW3H)
        a("s_mul_i32 s%d, s%d, %d" % (sW3HG, sW, 128 * 3584))
        a("s_mul_i32 s%d, s%d, 224" % (sA, sCP))
        a("s_add_u32 s%d, s%d, s%d" % (sW3HG, sW3HG, sA))
        a("s_and_b32 s%d, s%d, 1" % (sB, sCP))
        a("s_lshl_b32 s%d, s%d, 5" % (sW3G, sB))
        a("s_add_u32 s%d, s%d, s%d" % (sW3G, sW3G, sW3HG))
        a("s_xor_b32 s%d, s%d, 1" % (sB, sB))
        a("s_mul_i32 s%d, s%d, 192" % (sB, sB))
        a("s_add_u32 s%d, s%d, s%d" % (sW3HG, sW3HG, sB))
        a("s_lshl_b32 s%d, s%d, 13" % (sW3L, sW))
        a("s_lshl_b32 s%d, s%d, 12" % (sW3HL, sW))

    def w3_items(self, panels):
        out = []
        for p in panels:
            if p < 3:
                for i in range(8):
                    out.append(self.dma_item(S_W3, vW3F, sW3L, W3_P + p * 32768 + i * 1024, sW3G,
                                             p * 64 + i * 16 * 3584, "w3"))
            else:
                for i in range(4):
                    out.append(self.dma_item(S_W3, vW3H, sW3HL, W3_H + i * 1024, sW3HG, i * 32 * 3584, "w3"))
        return out

    def s3_load_items(self):
        a = self.a
        a("s_lshl_b32 s%d, s%d, 15" % (sLD, sT3))
        a("s_add_u32 s%d, s%d, 0x%x" % (sLD, sLD, WS_X1))
        items = []
        for ks in range(32):
            def f(ks=ks):
                if ks and ks % 4 == 0:
                    a("s_add_u32 s%d, s%d, 0x1000" % (sLD, sLD))
                a.vmem("buffer_load_dwordx4 %s, v%d, %s, s%d offen offset:%d sc1"
                       % (ar(4 * (ks % 16), 4), vL16, sr(S_WS, 4), sLD, (ks & 3) * 1024), "x%d" % ks)
            items.append(f)
        return items

    def s3_stat_items(self):
        a = self.a
        a("v_lshlrev_b32 v147, 13, v%d" % vHH)
        a("v_lshl_add_u32 v147, v%d, 2, v147" % vN31)
        items = []
        for sl in range(16):
            def f(sl=sl):
                a("s_lshl_b32 s%d, s%d, 7" % (sSO, sT3))
                a("s_add_u32 s%d, s%d, 0x%x" % (sSO, sSO, WS_ST + 0x4000 * sl))
                a.vmem("buffer_load_dword v%d, v147, %s, s%d offen sc1" % (vST + sl, sr(S_WS, 4), sSO), "st")
            items.append(f)
        return items

    def s3_addr(self):
        a = self.a
        a("v_add_u32 v144, %d, v%d" % (W3_P, vWP))
        a("v_add_u32 v145, %d, v%d" % (W3_P + 65536, vWP))
        a("v_bfe_u32 v26, v%d, 2, 2" % vL)
        a("v_lshl_add_u32 v26, v%d, 2, v26" % vHH)
        a("v_and_b32 v27, 3, v%d" % vL)
        a("v_lshlrev_b32 v27, 3, v27")
        a("v_lshl_add_u32 v26, v26, 5, v27")
        a("v_add_u32 v146, %d, v26" % W3_H)

    @staticmethod
    def w3_read(p, ks, hf, dst):
        if p < 2:
            return "ds_read_b64_tr_b16 %s, v144 offset:%d" % (vr(dst, 2), p * 32768 + ks * 1024 + hf * 512)
        if p == 2:
            return "ds_read_b64_tr_b16 %s, v145 offset:%d" % (vr(dst, 2), ks * 1024 + hf * 512)
        return "ds_read_b64_tr_b16 %s, v146 offset:%d" % (vr(dst, 2), ks * 512 + hf * 256)

    def s3_colsum(self):
        self.hold += 1
        self._s3_colsum()
        self.hold -= 1

    def _s3_colsum(self):
        a = self.a
        full = a.newlabel("csfull")
        done = a.newlabel("csdone")
        self.selector(120)
        a("s_cmp_lt_u32 s%d, 3" % sW)
        a("s_cbranch_scc1 %s" % full)
        for is_full in (False, True):
            if is_full:
                a.label(full)
                a("s_lshl_b32 s%d, s%d, 15" % (sA, sW))
                a("v_add_u32 v148, s%d, v144" % sA)
            stride, hstep, addr = (1024, 512, 148) if is_full else (512, 256, 146)
            saved = list(a.lg)
            a.lg = []

            def rd(ks):
                for hf in range(2):
                    a.lds("ds_read_b64_tr_b16 %s, v%d offset:%d" % (vr(96 + 4 * (ks % 6) + 2 * hf, 2), addr,
                                                                    ks * stride + hf * hstep), "c%d" % ks)
            for ks in range(5):
                rd(ks)
            for ks in range(32):
                a.wait_lg("c%d" % ks)
                a("%s %s, %s, %s, %s" % (MF16, vr(32 + 4 * (ks & 1), 4), vr(96 + 4 * (ks % 6), 4), vr(120, 4),
                                         "0" if ks < 2 else vr(32 + 4 * (ks & 1), 4)))
                if ks + 5 < 32:
                    rd(ks + 5)
            a.lg = saved
            if not is_full:
                a("s_branch %s" % done)
        a.label(done)
        a("v_pk_add_f32 v[32:33], v[32:33], v[36:37]")
        a("v_pk_add_f32 v[34:35], v[34:35], v[38:39]")
        a("s_lshl_b32 s%d, s%d, 7" % (sA, sW))
        a("s_add_u32 s%d, s%d, %d" % (sA, sA, LCS3))
        self.colsum_write(32, sA)
        a.wait_lg_all()

    S3G = 128

    def s3_shadow_ops(self):
        G = self.S3G
        ops = []
        for s in (8, 4, 2, 1):
            for i in range(s):
                ops.append("v_add_f32 v%d, v%d, v%d" % (vST + i, vST + i, vST + i + s))
        ops += ["v_mov_b32 v%d, v%d" % (vST + 1, vST),
                "v_lshlrev_b32 v28, 4, v%d" % vHH,
                "v_add_u32 v149, %d, v28" % LCS3,
                "v_permlane32_swap_b32 v%d, v%d" % (vST, vST + 1),
                "s_mul_i32 s%d, s%d, 114688" % (sD, sT3),
                "v_mul_f32 v%d, s%d, v%d" % (vST + 2, s512I, vST),
                "s_mul_i32 s%d, s%d, 7168" % (sA, sCP),
                "v_mul_f32 v26, s%d, v%d" % (s512I, vST + 1),
                "s_add_u32 s%d, s%d, s%d" % (sD, sD, sA),
                "v_fma_f32 v26, -v%d, v%d, v26" % (vST + 2, vST + 2),
                "s_add_u32 s%d, s%d, 0x%x" % (sD, sD, WS_HH),
                "v_max_f32 v26, 0, v26",
                "s_and_b32 s%d, s%d, 1" % (sB, sCP),
                "v_add_f32 v26, s%d, v26" % sEPS,
                "s_lshl_b32 s%d, s%d, 10" % (sE, sB),
                "v_rsq_f32 v27, v26",
                "s_add_u32 s%d, s%d, s%d" % (sE, sE, sD),
                "v_sub_f32 v%d, 0, v%d" % (G + 4, vST + 2),
                "s_xor_b32 s%d, s%d, 1" % (sB, sB),
                "v_mul_f32 v%d, s%d, v27" % (G, sKG1),
                "s_mul_i32 s%d, s%d, 6144" % (sB, sB),
                "v_mul_f32 v%d, v27, v27" % (G + 1),
                "s_add_u32 s%d, s%d, s%d" % (sF, sD, sB),
                "v_mul_f32 v%d, v%d, v27" % (G + 1, G + 1),
                "v_mul_f32 v%d, s%d, v%d" % (G + 1, sKG3, G + 1),
                "v_rcp_f32 v%d, v27" % (G + 2)]
        return ops

    def s3_csread(self, p):
        a = self.a
        n = 16 if p < 3 else 8
        for j in range(n // 4):
            a.lds("ds_read_b128 %s, v149 offset:%d" % (vr(96 + 16 * (p & 1) + 4 * j, 4), 128 * p + 32 * j), "cs%d" % p)

    def s3_main(self, mid):
        a = self.a
        AF = 96
        shadow = self.s3_shadow_ops() if self.opt.get("s3sh", 1) else []
        self.s3_left = shadow
        first = self.opt.get("s3sh0", 24)

        def rd(ks, p):
            for hf in range(2):
                a.lds(self.w3_read(p, ks, hf, AF + 16 * (ks & 1) + 4 * p + 2 * hf), "f%d_%d" % (ks, p))
        for p in range(4):
            rd(0, p)
        for ks in range(32):
            b = ks & 1
            if ks == first and shadow:
                a.wait_vm("st")
            for p in range(4):
                if p == 0:
                    a.wait_both("x%d" % ks, "f%d_0" % ks)
                else:
                    a.wait_lg("f%d_%d" % (ks, p))
                acc = vr(32 + 16 * p, 16)
                a("%s %s, %s, %s, %s" % (MF32, acc, vr(AF + 16 * b + 4 * p, 4), ar(4 * (ks % 16), 4),
                                         "0" if ks == 0 else acc))
                if ks < 31:
                    rd(ks + 1, p)
                if p in (0, 2):
                    self.fill(1)
                if ks >= first:
                    for _ in range(2):
                        if shadow:
                            a(shadow.pop(0))
            if ks == self.opt.get("s3mid", 18):
                mid()
            if ks in (7, 15, 23) and self.opt.get("s3st", 0):
                self.stamp("s3k%d" % ks)

    def s3_epilogue(self, after_tile):
        a = self.a
        G = self.S3G
        if not self.opt.get("s3sh", 1):
            a.wait_vm("st")
            self.s3_left = self.s3_shadow_ops()
        for x in self.s3_left:
            a(x)
        csread = self.s3_csread
        csread(0)
        for p in range(4):
            n = 16 if p < 3 else 8
            C = 96 + 16 * (p & 1)
            if p < 3:
                csread(p + 1)
            a.wait_lg("cs%d" % p)
            acc = 32 + 16 * p
            for i in range(n // 2):
                a("v_pk_fma_f32 %s, %s, %s, %s op_sel_hi:[1,0,1]"
                  % (vr(acc + 2 * i, 2), vr(C + 2 * i, 2), vr(G + 4, 2), vr(acc + 2 * i, 2)))
            out = 152 + 8 * (p & 1)
            self.gelu(acc, n, G, G + 2, 176, out, fills=0)
            if p < 3:
                a("s_add_u32 s%d, s%d, %d" % (sA, sE, 2048 * p))
                a.vmem("buffer_store_dwordx4 %s, v%d, %s, s%d offen sc1" % (vr(out, 4), vL16, sr(S_WS, 4), sA), "Hst")
                a.vmem("buffer_store_dwordx4 %s, v%d, %s, s%d offen offset:1024 sc1"
                       % (vr(out + 4, 4), vL16, sr(S_WS, 4), sA), "Hst")
            else:
                a.vmem("buffer_store_dwordx4 %s, v%d, %s, s%d offen sc1" % (vr(out, 4), vL16, sr(S_WS, 4), sF), "Hst")
            after_tile(p)

    def w4_setup(self):
        a = self.a
        a("s_lshl_b32 s%d, s%d, 11" % (sW4L, sKH))
        a("s_lshl_b32 s%d, s%d, 10" % (sA, sTH))
        a("s_add_u32 s%d, s%d, s%d" % (sW4L, sW4L, sA))
        a("s_mul_i32 s%d, s%d, %d" % (sW4G, sKH, 896 * 1024))
        self.feat0(sA, sTH, 1)
        a("s_add_u32 s%d, s%d, s%d" % (sW4G, sW4G, sA))
        for i in range(8):
            if self.opt.get("rot4", 0):
                a("s_add_u32 s%d, s%d, %d" % (sA, sC, i))
                a("s_and_b32 s%d, s%d, 7" % (sA, sA))
                a("s_mul_i32 s%d, s%d, %d" % (sA, sA, 7 * 16384))
                a("s_add_u32 s%d, s%d, s%d" % (self.SW4B + i, sW4G, sA))
            else:
                a("s_add_u32 s%d, s%d, %d" % (self.SW4B + i, sW4G, i * 7 * 16384))

    SW4B = 12
    W4R = 56

    def w4_reg_loads(self, ks0, ks1):
        def item(ks):
            def f():
                a = self.a
                a("s_add_u32 s%d, s%d, %d" % (sSO, self.SW4B + ks // 7, (ks % 7) * 16384))
                a.vmem("buffer_load_dwordx4 %s, v%d, %s, s%d offen" % (vr(self.W4R + 4 * (ks - W4_B), 4), vW64,
                                                                     sr(S_W4, 4), sSO), "w4r")
                a.check_vm_depth()
            return f
        return [item(ks) for ks in range(ks0, ks1)]

    def w4_reg_writes(self, ks0, ks1):
        def f():
            a = self.a
            a.wait_vm("w4r")
            for i in range(3):
                a("v_add_u32 v%d, s%d, v%d" % (28 + i, sW4L, vL16))
                if i:
                    a("v_add_u32 v%d, %d, v%d" % (28 + i, 65536 * i, 28 + i))
            for ks in range(ks0, ks1):
                off = w4_off(ks)
                if self.opt.get("x_nowr", 0):
                    continue
                a.lds("ds_write_b128 v%d, %s offset:%d" % (28 + off // 65536, vr(self.W4R + 4 * (ks - W4_B), 4),
                                                           off % 65536))
                pace = self.opt.get("wpace", 0)
                if pace and (ks - ks0) % pace == pace - 1:
                    a.wait_lg_all()
            a.wait_lg_all()
        return f

    def w4_items(self, ks0, ks1, tag):
        return [self.dma_item(S_W4, vW64, sW4L, w4_off(ks), self.SW4B + ks // 7, (ks % 7) * 16384, tag)
                for ks in range(ks0, ks1)]

    def hring(self, ks):
        n = self.opt.get("hring", 24)
        i = ks % n
        return ar(4 * i, 4) if i < 16 else vr(64 + 4 * (i - 16), 4)

    def s4_load_items(self):
        a = self.a
        a("s_mul_i32 s%d, s%d, %d" % (sLD, sT, 0 if self.opt.get("x_hot", 0) else 114688))
        a("s_mul_i32 s%d, s%d, %d" % (sB, sKH, 56 * 1024))
        a("s_add_u32 s%d, s%d, s%d" % (sLD, sLD, sB))
        a("s_add_u32 s%d, s%d, 0x%x" % (sLD, sLD, WS_HH))
        items = []
        for ks in range(56):
            def f(ks=ks):
                i, t = divmod(ks, 7)
                if t == 0:
                    if self.opt.get("rot4", 0):
                        a("s_add_u32 s%d, s%d, %d" % (sW4L, sC, i))
                        a("s_and_b32 s%d, s%d, 7" % (sW4L, sW4L))
                        a("s_mul_i32 s%d, s%d, 7168" % (sW4L, sW4L))
                        a("s_add_u32 s%d, s%d, s%d" % (sW4L, sW4L, sLD))
                    else:
                        a("s_add_u32 s%d, s%d, %d" % (sW4L, sLD, i * 7168))
                if t == 4:
                    a("s_add_u32 s%d, s%d, 0x1000" % (sW4L, sW4L))
                a.vmem("buffer_load_dwordx4 %s, v%d, %s, s%d offen offset:%d sc1"
                       % (self.hring(ks), vL16, sr(S_WS, 4), sW4L, (t & 3) * 1024), "H%d" % ks)
                a.check_vm_depth()
            items.append(f)
        return items

    Y_LDS = 49152

    def s4_y_loads(self):
        a = self.a
        self.feat0(sE, sKH, 12)
        a("s_lshl_b32 s%d, s%d, 6" % (sB, sT))
        a("s_add_u32 s%d, s%d, s%d" % (sE, sE, sB))
        a("s_add_u32 s%d, s%d, 0x%x" % (sE, sE, WS_YT))
        a("s_add_u32 s%d, s%d, 0x10000" % (sB, sE))
        a("v_lshrrev_b32 v147, 2, v%d" % vL)
        a("v_lshlrev_b32 v147, 12, v147")
        a("v_and_b32 v26, 3, v%d" % vL)
        a("v_lshl_add_u32 v147, v26, 4, v147")
        a.vmem("buffer_load_dwordx4 %s, v147, %s, s%d offen sc1" % (vr(vST, 4), sr(S_WS, 4), sE), "y")
        a.vmem("buffer_load_dwordx4 %s, v147, %s, s%d offen sc1" % (vr(vST + 4, 4), sr(S_WS, 4), sB), "y")

    def s4_y_write(self):
        a = self.a
        a.wait_vm("y")
        a("s_lshl_b32 s%d, s%d, 11" % (sB, sW))
        a("s_add_u32 s%d, s%d, %d" % (sB, sB, self.Y_LDS))
        a("v_add_u32 v147, s%d, v%d" % (sB, vL16))
        a.lds("ds_write_b128 v147, %s" % vr(vST, 4), "yw")
        a.lds("ds_write_b128 v147, %s offset:1024" % vr(vST + 4, 4), "yw")
        a("v_add_u32 v147, s%d, v%d" % (sB, vWP))

    def s4_y_read(self):
        a = self.a
        a.wait_lg("yw")
        for q in range(4):
            a.lds("ds_read_b64_tr_b16 %s, v147 offset:%d" % (vr(vST + 8 + 2 * q, 2), 512 * q), "yr")

    XN4, BASE4 = 112, 148

    def s4_shadow_ops(self):
        XN, B = self.XN4, self.BASE4
        pre, post = [], []
        for j in range(8):
            pre.append("v_lshlrev_b32 v%d, 16, v%d" % (XN + 2 * j, vQ + j))
            pre.append("v_and_b32 v%d, s%d, v%d" % (XN + 2 * j + 1, sHI, vQ + j))
            pre.append("v_lshlrev_b32 v%d, 16, v%d" % (B + 2 * j, vX1 + j))
            pre.append("v_and_b32 v%d, s%d, v%d" % (B + 2 * j + 1, sHI, vX1 + j))
        for r in range(16):
            pre.append("v_add_f32 v%d, v%d, v%d" % (B + r, B + r, XN + r))
            pre.append("v_sub_f32 v%d, v%d, v%d" % (XN + r, XN + r, vMEAN))
            pre.append("v_mul_f32 v%d, v%d, v%d" % (XN + r, XN + r, vR1))
        for j in range(8):
            post.append("v_lshlrev_b32 v26, 16, v%d" % (vST + 8 + j))
            post.append("v_and_b32 v27, s%d, v%d" % (sHI, vST + 8 + j))
            post.append("v_fmac_f32 v%d, v%d, v26" % (B + 2 * j, XN + 2 * j))
            post.append("v_fmac_f32 v%d, v%d, v27" % (B + 2 * j + 1, XN + 2 * j + 1))
        return pre, post

    def s4_out_addr(self):
        a = self.a
        a("s_lshl_b32 s%d, s%d, 15" % (sE, sT))
        self.feat0(sB, sKH, 1)
        a("s_add_u32 s%d, s%d, s%d" % (sE, sE, sB))
        a("v_lshlrev_b32 v146, 10, v%d" % vN31)
        a("v_lshl_add_u32 v146, v%d, 4, v146" % vHH)
        a("v_add_u32 v146, s%d, v146" % sE)

    def s4_addr(self):
        a = self.a
        self.wpi_addr(128, 131, 0, 2048, 1024)
        for i in (1, 2):
            a("v_add_u32 v%d, %d, v128" % (128 + i, 65536 * i))
            a("v_add_u32 v%d, %d, v131" % (131 + i, 65536 * i))

    def s4_main(self, hitems):
        a = self.a
        ACK, ACS, AK, AS = self.ACK, self.ACS, self.AK, self.AS

        def rd(ks, which):
            off = w4_off(ks)
            base, addr = ((AK, 128), (AS, 131))[which]
            for hf in range(2):
                a.lds("ds_read_b64_tr_b16 %s, v%d offset:%d"
                      % (vr(base + 4 * (ks & 1) + 2 * hf, 2), addr + off // 65536, off % 65536 + hf * 512),
                      "f%d_%d" % (ks, which))
        pre, post = self.s4_shadow_ops()
        yq = []
        f1, f2 = self.opt.get("f1", 10), self.opt.get("f2", 18)
        xb = self.opt.get("x_nobar", 0)
        if xb:
            self.h("s_endpgm")
        else:
            self.hact(self.w4_reg_writes(W4_B, W4_C))
        rd(0, 0)
        rd(0, 1)
        for ks in range(56):
            ahead = ks < 55
            b = ks & 1
            B = self.hring(ks)
            if self.opt.get("x_nowait", 0):
                a.wait_lg("f%d_0" % ks)
            else:
                a.wait_both("H%d" % ks, "f%d_0" % ks)
            a("%s %s, %s, %s, %s" % (MF32, vr(ACK, 16), vr(AK + 4 * b, 4), B, "0" if ks == 0 else vr(ACK, 16)))
            if ahead:
                rd(ks + 1, 0)
            if hitems and ks >= 1:
                hitems.pop(0)()
            a.wait_lg("f%d_1" % ks)
            a("%s %s, %s, %s, %s" % (MF32, vr(ACS, 16), vr(AS + 4 * b, 4), B, "0" if ks == 0 else vr(ACS, 16)))
            if ahead:
                rd(ks + 1, 1)
            for _ in range(self.opt.get("npre", 3)):
                if pre and ks >= 2:
                    a(pre.pop(0))
            if ks == self.opt.get("cvflag", 9):
                self.conv_wave_flag()
            if ks == 56 - W4_C - 1 and not xb:
                self.barrier()
                self.hact(self.w4_reg_writes(W4_C, 56))
            if ks == self.opt.get("ycheck", 38) - self.opt.get("ygap", 12) and not self.opt.get("x_noy", 0):
                self.idx_cv()
                self.poll_issue(F_CV, "pcv")
            if ks == self.opt.get("ycheck", 38) and not self.opt.get("x_noy", 0):
                self.poll_check("pcv", 4)
                self.s4_y_loads()
            if ks == self.opt.get("b2", 30) and not xb:
                self.barrier()
                if self.opt.get("barstamps", 0):
                    h = self.h
                    lab = h.newlabel("nobs")
                    h("s_cmp_lg_u32 s%d, 0" % sW)
                    h("s_cbranch_scc1 %s" % lab)
                    h("s_lshl_b32 s%d, s2, 8" % sA)
                    h("s_add_u32 s%d, s%d, 0x%x" % (sA, sA, WS_STAMP + 0x20000))
                    h("v_lshlrev_b32 v26, 2, v%d" % vL)
                    h("buffer_store_dword v55, v26, %s, s%d offen" % (sr(S_WS, 4), sA))
                    h("s_waitcnt vmcnt(0)")
                    h.label(lab)
                self.hact(self.nonce_update)
                self.hrun()
                self.h("s_endpgm")
            if not self.opt.get("x_noy", 0):
                if ks == self.opt.get("ywr", 51):
                    self.s4_y_write()
                if ks == self.opt.get("ywr", 51) + 2:
                    self.s4_y_read()
            if ks in (8, 16, 27, 38, 47):
                self.stamp("s4k%d" % ks)
        for x in pre:
            a(x)
        assert not hitems
        self.s4_out_addr()
        self.s4_post = post

    def s4_epilogue(self):
        a = self.a
        ACK, ACS, B = self.ACK, self.ACS, self.BASE4
        self.exchange_write(ACS, S4_RED)
        a.wait_lg("yr")
        for x in self.s4_post:
            a(x)
        for p in range(8):
            a("v_pk_add_f32 %s, %s, %s" % (vr(ACK + 2 * p, 2), vr(ACK + 2 * p, 2), vr(B + 2 * p, 2)))
        a.wait_lg_all()
        a("s_barrier")
        self.exchange_read(80, S4_RED)
        a.wait_lg_all()
        for p in range(8):
            a("v_pk_add_f32 %s, %s, %s" % (vr(ACK + 2 * p, 2), vr(ACK + 2 * p, 2), vr(80 + 2 * p, 2)))
        for p in range(8):
            a("v_cvt_pk_bf16_f32 v%d, v%d, v%d" % (48 + p, ACK + 2 * p, ACK + 2 * p + 1))
        for j in (0, 4):
            a("v_permlane32_swap_b32 v%d, v%d" % (48 + j, 50 + j))
            a("v_permlane32_swap_b32 v%d, v%d" % (49 + j, 51 + j))
        a.vmem("buffer_store_dwordx4 %s, v146, %s, 0 offen" % (vr(48, 4), sr(S_OUT, 4)), "out")
        a.vmem("buffer_store_dwordx4 %s, v146, %s, 0 offen offset:32" % (vr(52, 4), sr(S_OUT, 4)), "out")

    def nonce_update(self):
        a = self.a
        self.hold += 1
        skip = a.newlabel("nonce")
        a("s_cmp_lg_u32 s2, 0")
        a("s_cbranch_scc1 %s" % skip)
        a("s_cmp_lg_u32 s%d, 0" % sW)
        a("s_cbranch_scc1 %s" % skip)
        saved = list(a.vm)
        for i in range(4):
            a("v_add_u32 v28, %d, v%d" % (64 * i, vL))
            a("v_lshlrev_b32 v28, 2, v28")
            self.poll_issue(F_P0, "pn")
            self.poll_check("pn", 6)
        a.vm = saved
        a("v_mov_b32 v26, 0")
        a("v_mov_b32 v27, s%d" % sN)
        a("s_mov_b64 exec, 1")
        a("buffer_store_dword v27, v26, %s, 0 offen sc1" % sr(S_WS, 4))
        a("s_mov_b64 exec, -1")
        a.label(skip)
        self.hold -= 1

    def finish(self):
        a = self.a
        a.wait_vm_all()
        if self.opt.get("delay", 0):
            lab = a.newlabel("delay")
            a("s_mov_b32 s%d, %d" % (sA, self.opt["delay"] // 64))
            a.label(lab)
            for _ in range(15):
                a("v_mov_b32 v26, v27")
            a("s_sub_u32 s%d, s%d, 1" % (sA, sA))
            a("s_cmp_lg_u32 s%d, 0" % sA)
            a("s_cbranch_scc1 %s" % lab)
        if self.opt.get("dbgtime", 0):
            a("s_memrealtime %s" % sr(sSTA, 2))
            a("s_memtime s[96:97]")
            a("s_waitcnt lgkmcnt(0)")
            a("s_sub_u32 s%d, s%d, s3" % (sSTA, sSTA))
            a("s_sub_u32 s96, s96, s98")
            a("v_mov_b32 v26, 0")
            a("v_mov_b32 v27, s%d" % sSTA)
            a("v_mov_b32 v28, s96")
            a("s_mov_b64 exec, 1")
            a("global_atomic_umax v26, v27, %s" % sr(S_DBG, 2))
            a("global_atomic_umax v26, v28, %s offset:4" % sr(S_DBG, 2))
            a("s_waitcnt vmcnt(0)")
            a("s_mov_b64 exec, -1")
        if self.stamps:
            self.stamp("end")
            skip = a.newlabel("nostamp")
            a("s_cmp_lg_u32 s%d, 0" % sW)
            a("s_cbranch_scc1 %s" % skip)
            if self.opt.get("dbgstamps", 0):
                lab = a.newlabel("nodbg")
                a("s_cmp_lg_u32 s2, %d" % (self.opt["dbgstamps"] - 1))
                a("s_cbranch_scc1 %s" % lab)
                a("v_readlane_b32 s%d, v%d, 0" % (sA, vSTAMP))
                a("v_subrev_u32 v27, s%d, v%d" % (sA, vSTAMP))
                a("v_lshlrev_b32 v26, 2, v%d" % vL)
                a("s_mov_b64 exec, 0xffff")
                a("global_store_dword v26, v27, %s" % sr(S_DBG, 2))
                a("s_mov_b64 exec, -1")
                a.label(lab)
            a("s_lshl_b32 s%d, s2, 8" % sA)
            a("s_add_u32 s%d, s%d, 0x%x" % (sA, sA, WS_STAMP))
            a("v_lshlrev_b32 v26, 2, v%d" % vL)
            a("buffer_store_dword v%d, v26, %s, s%d offen" % (vSTAMP, sr(S_WS, 4), sA))
            if self.opt.get("barstamps", 0):
                a("s_add_u32 s%d, s%d, 0x10000" % (sA, sA))
                a("buffer_store_dword v31, v26, %s, s%d offen" % (sr(S_WS, 4), sA))
            a("s_waitcnt vmcnt(0)")
            a.label(skip)
        a.label("L_end")
        a("s_endpgm")
        self.a.hook = None
        self.h.label("L_codeend")
        self.h("s_endpgm")
        self.a.ins += self.h.ins

    def nonce_load(self):
        a = self.a
        a("v_mov_b32 v26, 0")
        a.vmem("buffer_load_dword v30, v26, %s, 0 offen sc1" % sr(S_WS, 4), "nonce")

    def build(self):
        a = self.a
        o = self.opt
        H = self.hact
        self.prologue()
        H(self.loader_setup)
        if o.get("tcode", 1) == 1:
            H(self.touch_code)
        s1 = [f for st in range(4) for f in self.s1_stage_items(st)]
        n0, n1 = o.get("n0", 16), o.get("n1", 24)
        self.nonce_load()
        self.head_start()
        self.cold_touches()
        self.tr_addresses()
        self.s1_setup()

        def stage(st):
            if st == 0:
                self.hacts(s1[:n0])
                self.hwait("s1_0")
            elif st == 1:
                self.hacts(s1[n0:n1])
                self.hwait("s1_1")
            else:
                self.hacts(s1[n1:])
                if o.get("apos", 0) == 0:
                    self.hstamp(4)
                    H(self.batch_a)
                    self.hstamp(5)
                self.hwait("s1_3")
            self.barrier()
            if st == 2:
                if o.get("apos", 0) == 1:
                    H(self.batch_a)
                H(self.nonce_load)
                H(self.tr_addresses)
        self.s1_main(stage)
        self.stamp("s1main")
        w2 = [self.dma_item(S_W2, vW64, sW2L, grp * 1024, sW2G, grp * 16384, "w2") for grp in range(16)]

        p0late = o.get("p0late", 1)
        w3 = self.w3_items([0, 1, 2, 3])
        cuts = [o.get("c%d" % i, d) for i, d in enumerate((0, 0, 0, 10, 10, 16))]

        def after_x1():
            H(self.w3_setup)
            self.hacts(w3[:cuts[0]])
            if not p0late:
                H(self.nonce_compute)
                H(self.kv_dma)
                H(self.p0_compute)
                H(lambda: self.a.wait_lg_all())
        self.s1_epilogue(after_x1)
        self.stamp("s1epi")
        self.nonce_compute()
        self.team_publish()
        self.wpi_addr(128, 129, LW, 16384, 32768)
        hitems = self.s2_load_items()
        a.wait_vm("hst")
        self.barrier()
        self.flag_store_rc(F_S1)
        self.stamp("s1flag")
        H(self.nonce_compute)
        H(self.kv_dma)
        self.hacts(w2[:o.get("w2a", 4)])
        self.hpaced(w2[o.get("w2a", 4):], o.get("iv2", 70), self.p0_compute)
        self.hacts(w3[cuts[0]:cuts[1]])
        H(lambda: self.a.wait_lg_all())
        self.idx_s1()
        self.barrier()
        H(self.p0_readback)
        H(self.p0_store)
        H(lambda: self.conv_filter_loads(0))
        self.hacts(w3[cuts[1]:cuts[2]])
        self.hwait("w2")
        self.poll_issue(F_S1, "ps1")
        self.poll_check("ps1", 2)
        self.stamp("s1poll")
        nh2 = o.get("nh2", 10)
        for f in hitems[:nh2]:
            f()
        self.barrier()
        self.stamp("hiss")
        H(self.p0_wave_flag)
        if o.get("bpos", 0) == 2:
            H(lambda: self.touch_chip("ssm"))
            H(lambda: self.touch_chip("w3"))
        self.hacts(w3[cuts[2]:cuts[3]])
        H(self.idx_p0)
        H(lambda: self.poll_issue(F_P0, "pp0"))
        self.fq = hitems[nh2:] + [self.team_load]
        self.s2_main()
        self.fill_all()
        self.stamp("s2main")

        def after_x2():
            H(lambda: self.poll_check("pp0", 1))
            H(lambda: self.conv_x_loads(0))
            self.hacts(w3[cuts[3]:cuts[4]])
            H(lambda: self.conv_prep_filter(0))
            H(lambda: self.conv_x_write(0))
        self.s2_epilogue(after_x2)
        self.stamp("s2epi")
        self.barrier()
        H(lambda: self.conv_poly(0))
        self.hacts(w3[cuts[4]:cuts[5]])
        self.conv_addr(0)
        self.team_check()
        a.wait_vm("x1st")
        self.barrier()
        self.flag_store_rc(F_S2)
        self.stamp("s2flag")
        H(self.head_start_w4)
        H(lambda: self.touch_chip("w4"))
        self.hacts(w3[cuts[5]:])

        def hook0(rho):
            if rho == o.get("pollrho2", 3):
                self.idx_s2()
                self.poll_issue(F_S2, "ps2")
        self.conv_main(hook0)
        self.stamp("cv0main")
        xitems = self.s3_load_items()
        nx = o.get("nx", 12)
        self.conv_finish(0)
        self.hwait("w3")
        self.barrier()
        self.stamp("cv0fin")
        H(self.s3_addr)
        H(self.s3_colsum)
        H(self.w4_setup)
        self.s3_addr()
        self.poll_check("ps2", 3)
        self.stamp("s2poll")
        for f in xitems[:nx]:
            f()
        sitems = self.s3_stat_items()
        rest = xitems[nx:]
        self.fq = []
        for i in range(len(rest)):
            self.fq.append(rest[i])
            self.fq.append(sitems[i] if i < 16 else (lambda: None))

        w4r = self.w4_reg_loads(W4_B, 56)

        def s3mid():
            self.barrier()
            H(lambda: self.conv_filter_loads(1))
            H(lambda: self.conv_x_loads(1))
            self.hacts(self.w4_items(0, W4_A, "w4"))
            self.hacts(w4r[:o.get("r1", 8)])
        self.s3_main(s3mid)
        self.fill_all()
        self.stamp("s3main")
        self.barrier()
        H(lambda: self.conv_prep_filter(1))
        H(lambda: self.conv_x_write(1))
        w4m = self.w4_items(W4_A, W4_B, "w4")
        k3 = o.get("k3", 4)

        early = o.get("tbar", 0) >= 2
        if early:
            self.hacts(w4r[o.get("r1", 8):o.get("r2", 20)])
            self.hacts(w4m[:k3])

        def after_tile(p):
            if p == o.get("tbar", 0):
                self.barrier()
                H(lambda: self.conv_poly(1))
                if not early:
                    self.hacts(w4r[o.get("r1", 8):o.get("r2", 20)])
                    self.hacts(w4m[:k3])
        self.s3_epilogue(after_tile)
        self.stamp("s3epi")
        self.conv_addr(1)
        a.wait_vm("Hst")
        self.barrier()
        a("s_lshl_b32 s%d, s%d, 4" % (sB, sRP))
        a("s_add_u32 s%d, s%d, s%d" % (sB, sB, sCP))
        self.flag_store(F_S3, sB)
        self.stamp("s3flag")
        self.hacts(w4m[k3:])
        self.hacts(w4r[o.get("r2", 20):])

        def hook1(rho):
            if rho == o.get("pollrho", 3):
                self.idx_s3()
                self.poll_issue(F_S3, "ps3")
        self.conv_main(hook1)
        self.stamp("cv1main")
        hitems = self.s4_load_items()
        self.poll_check("ps3", 5)
        self.stamp("s3poll")
        for _ in range(o.get("nh", 14)):
            hitems.pop(0)()
        self.conv_finish(1)
        for _ in range(o.get("nhb", 6)):
            hitems.pop(0)()
        self.s4_addr()
        self.hwait("w4")
        self.barrier()
        self.stamp("cv1fin")
        self.s4_main(hitems)
        self.stamp("s4main")
        self.s4_epilogue()
        self.stamp("s4epi")
        self.finish()


REF = "cdna_kernels/%s.s.ref" % NAME


def emit(stop=None, stamps=False, opt=None, keep=None):
    g = Gen(stop, stamps, opt)
    g.keep = keep
    g.build()
    nops = g.a.fix_hazards()
    top = [l for l in open(REF).read().split("\n") if l.startswith(";") and "@launch" not in l and "Override" not in l
           and "grid=ceil" not in l]
    out = top + ["; @launch grid=(256,1,1) block=(512,1,1) lds=%d" % LDS_BYTES,
                 '.amdgcn_target "amdgcn-amd-amdhsa--gfx950"', ".text", ".globl %s_kernel" % NAME, ".p2align 8",
                 ".type %s_kernel,@function" % NAME, "%s_kernel:" % NAME]
    body = g.a.text()
    tail = ['.section .rodata,"a"', ".p2align 6", ".amdhsa_kernel %s_kernel" % NAME,
            "  .amdhsa_next_free_vgpr 256", "  .amdhsa_next_free_sgpr 102", "  .amdhsa_accum_offset 192",
            "  .amdhsa_group_segment_fixed_size 0", "  .amdhsa_kernarg_size 112", "  .amdhsa_user_sgpr_count 2",
            "  .amdhsa_user_sgpr_kernarg_segment_ptr 1", "  .amdhsa_system_sgpr_workgroup_id_x 1",
            "  .amdhsa_float_denorm_mode_32 3", ".end_amdhsa_kernel"]
    text = "\n".join(out) + "\n" + body + "\n".join(tail) + "\n"
    return text, g, nops


if __name__ == "__main__":
    ap = argparse.ArgumentParser()
    ap.add_argument("-o", default="cdna_kernels/%s.s" % NAME)
    ap.add_argument("--stop", default=None)
    ap.add_argument("--stamps", action="store_true")
    ap.add_argument("--opt", default="")
    ap.add_argument("--keep", default="")
    args = ap.parse_args()
    opt = dict((kv.split("=")[0], int(kv.split("=")[1])) for kv in args.opt.split(",") if kv)
    text, g, nops = emit(args.stop, args.stamps, opt, args.keep.split(",") if args.keep else None)
    open(args.o, "w").write(text)
    n = sum(1 for x in g.a.ins if x.kind != "label")
    print("instructions: %d, hazard nops: %d" % (n, nops))
    if g.stamp_names:
        print(",".join(g.stamp_names))
        open(args.o + ".stamps", "w").write(",".join(g.stamp_names))
```

```python
import argparse
import os
import struct
import sys

sys.path.insert(0, os.path.dirname(os.path.abspath(__file__)))
from asmlib import Asm

NAME = "parallel_sum__ssm_conv_h3__mixer_s_mlp__prompt"

WS_FLAGS = 4096
WS_STAMP = 0xD0000
WS_FLAGS_L = 0x90000
WS_TEAM = 0xC0000
WS_KVT = 0x100000
WS_YT = 0x300000
WS_HS = 0x500000
WS_X1 = 0x700000
WS_ST = 0x900000
WS_HH = 0xA00000
WS_SIZE = 0x10000000
OOB = 0x40000000
F_S1, F_S2, F_S3, F_P0, F_CV = 0, 1, 2, 4, 8

LQ = 0
LW = 65536
LSTG = 131072
LRED = 139264
LSTX = 155648
LCSX = 156672
LCS3 = 161280
LKV = LRED
LDS_BYTES = 163840
CV_X = 0
CV_XD = 1152
CV_A = 5248
CV_P = 21760
CV_R = 5248
CV_BASE = 114688
W3_P = 0
W3_H = 98304
CV_BASE1 = 69632
W4_A, W4_B, W4_C = 11, 28, 39
S4_RED = 24576


def w4_off(ks):
    if ks < W4_A:
        return 114688 + ks * 4096
    if ks < W4_B:
        return (ks - W4_A) * 4096
    if ks < W4_C:
        return CV_BASE1 + (ks - W4_B) * 4096
    return w4_off(ks - W4_C)

S_WS, S_Q, S_K, S_V, S_SHK, S_SSM, S_W1, S_W2, S_W3, S_W4, S_OUT = 4, 8, 12, 16, 20, 24, 32, 36, 40, 44, 48
S_DPTR = 28
S_DBG = 30
sR, sC, sW, sTH, sKH, sN, sRP, sCP = 52, 53, 54, 55, 56, 57, 58, 59
sT, sT3 = 60, 61
sD0, sD1 = 62, 63
sA, sB, sCc, sD, sE, sF = 64, 65, 66, 67, 68, 69
sW2L, sW2G, sW3L, sW3G, sW3HL, sW3HG, sW4L, sW4G, sSO, sLD = 70, 71, 72, 73, 74, 75, 76, 77, 78, 79
sONES, sHI = 80, 81
sK4, sK8, sK12 = 82, 83, 84
sEPS, sTMO, sKG1, sKG3, s512I = 85, 86, 87, 88, 89
sSTA = 90
sROT, sQG, sWG, sCP0 = 92, 93, 94, 95
sXCC, sLOC = 20, 21

vL, vL16, vWP, vWN = 0, 1, 2, 3
vQ, vX1 = 4, 12
vMEAN, vR1 = 20, 21
vTID, vHH, vN31, vSTAMP = 22, 23, 24, 25
vW64 = 31
vCH = 172
vPF, vPA = 170, 171
vW3F, vW3H, vQE = 153, 154, 155
vST = 172

GELU_K1 = 2.0 * 0.7978845608028654 * 1.4426950408889634
GELU_K3 = GELU_K1 * 0.044715
MF32 = "v_mfma_f32_32x32x16_bf16"
MF16 = "v_mfma_f32_16x16x32_bf16"


def f32bits(x):
    return struct.unpack("<I", struct.pack("<f", x))[0]


def vr(a, n):
    return "v[%d:%d]" % (a, a + n - 1)


def ar(a, n):
    return "a[%d:%d]" % (a, a + n - 1)


def sr(a, n):
    return "s[%d:%d]" % (a, a + n - 1)


class Gen:
    def __init__(self, stop=None, stamps=False, opt=None):
        self.opt = opt or {}
        self.keep = None
        self.a = Asm()
        self.h = Asm()
        self.h.uid = 100000
        self.hpend = []
        self.nbar = 0
        self.stop = stop
        self.stamps = stamps
        self.nstamp = 0
        self.stamp_names = []
        self.fq = []
        self.pq = []
        self.interval = 0
        self.clock = 0.0
        self.hold = 0
        self.a.hook = self._pace
        self.h.hook = self._pace

    def _pace(self, x):
        if x.kind == "mfma":
            self.clock += 32 if x.passes == 8 else 16
        elif x.kind == "valu":
            self.clock += 8 if x.is_trans() else 4.5
        elif x.kind == "ds":
            self.clock += 13 if x.op == "ds_write_b128" else 2
        elif x.kind == "vmem":
            self.clock += 20
        else:
            return
        if self.hold or not self.pq or not self.interval or x.kind == "vmem":
            return
        if self.clock >= self.interval:
            self.clock = 0.0
            self.hold += 1
            self.pq.pop(0)()
            self.hold -= 1

    def paced(self, items, interval):
        self.pq += items
        self.interval = interval
        self.clock = 0.0

    def pace_flush(self, tag=None):
        self.hold += 1
        if tag is None:
            n = len(self.pq)
        else:
            n = max([i + 1 for i, f in enumerate(self.pq) if f.tag == tag], default=0)
        for _ in range(n):
            self.pq.pop(0)()
        self.hold -= 1

    def stamp(self, name):
        if not self.stamps:
            return
        if self.keep and name not in self.keep and name not in ("start", "end"):
            return
        self.hold += 1
        self._stamp(name)
        self.hold -= 1

    def _stamp(self, name):
        a = self.a
        a("s_memtime %s" % sr(sSTA, 2))
        a("s_waitcnt lgkmcnt(0)")
        a.lg = []
        a("v_writelane_b32 v%d, s%d, %d" % (vSTAMP, sSTA, self.nstamp))
        if name in ("start", "end"):
            a("s_memrealtime %s" % sr(sSTA, 2))
            a("s_waitcnt lgkmcnt(0)")
            a("v_writelane_b32 v%d, s%d, %d" % (vSTAMP, sSTA, 62 if name == "start" else 63))
            if name == "start":
                a("v_writelane_b32 v%d, s3, 61" % vSTAMP)
        self.stamp_names.append(name)
        self.nstamp += 1

    def hact(self, fn):
        self.hpend.append(fn)

    def hacts(self, fns):
        self.hpend += fns

    def hstamp(self, idx):
        if not self.opt.get("barstamps", 0):
            return

        def f():
            a = self.a
            a("s_memtime %s" % sr(sSTA, 2))
            a("s_waitcnt lgkmcnt(0)")
            a.lg = []
            a("v_writelane_b32 v55, s%d, %d" % (sSTA, 32 + idx))
        self.hpend.append(f)

    def hpaced(self, items, interval, fn):
        def f():
            saved = (self.pq, self.interval, self.clock, self.hold)
            self.pq, self.interval, self.clock, self.hold = list(items), interval, 0.0, 0
            fn()
            self.hold = 1
            self.pace_flush()
            self.pq, self.interval, self.clock, self.hold = saved
        self.hpend.append(f)

    def hwait(self, tag):
        self.hpend.append(lambda: self.a.wait_vm(tag))

    def hrun(self):
        c, fq = self.a, self.fq
        self.a, self.fq = self.h, []
        self.hold += 1
        for fn in self.hpend:
            fn()
        self.hold -= 1
        self.hpend = []
        self.a, self.fq = c, fq

    def barrier(self, name=""):
        bs = self.opt.get("barstamps", 0)
        if bs:
            self.hold += 1
            self.a("s_memtime %s" % sr(sSTA, 2))
            self.a("s_waitcnt lgkmcnt(0)")
            self.a.lg = []
            self.a("v_writelane_b32 v31, s%d, %d" % (sSTA, self.nbar))
            self.hold -= 1
        self.a("s_barrier")
        self.hrun()
        if bs:
            self.h("s_memtime %s" % sr(sSTA, 2))
            self.h("s_waitcnt lgkmcnt(0)")
            self.h.lg = []
            self.h("v_writelane_b32 v55, s%d, %d" % (sSTA, self.nbar))
        self.h("s_barrier")
        self.nbar += 1

    def fill(self, n=1):
        for _ in range(n):
            if self.fq:
                self.fq.pop(0)()

    def fill_all(self):
        while self.fq:
            self.fq.pop(0)()

    def dma_item(self, srd, voff, sl, loff, sg, goff, tag):
        def f():
            a = self.a
            a("s_add_u32 m0, s%d, %d" % (sl, loff))
            a("s_add_u32 s%d, s%d, %d" % (sSO, sg, goff))
            a.vmem("buffer_load_dwordx4 v%d, %s, s%d offen lds" % (voff, sr(srd, 4), sSO), tag)
            a.check_vm_depth()
        f.tag = tag
        return f

    def flag_store(self, phase, sidx):
        local = self.opt.get("local", 0) and phase in (F_S2, F_S3)
        a = self.a
        self.hold += 1
        skip = a.newlabel("noflag")
        a("s_cmp_lg_u32 s%d, 0" % sW)
        a("s_cbranch_scc1 %s" % skip)
        a("s_lshl_b32 s%d, s%d, 7" % (sA, sidx))
        a("s_add_u32 s%d, s%d, %d" % (sA, sA, WS_FLAGS + phase * 256 * 128))
        a("v_mov_b32 v26, s%d" % sN)
        a("v_mov_b32 v27, s%d" % sA)
        a("s_mov_b64 exec, 1")
        if local:
            a("s_mov_b32 s%d, 0x%x" % (sSO, WS_FLAGS_L - WS_FLAGS))
            a("buffer_store_dword v26, v27, %s, s%d offen" % (sr(S_WS, 4), sSO))
        a("buffer_store_dword v26, v27, %s, 0 offen sc1" % sr(S_WS, 4))
        a("s_mov_b64 exec, -1")
        a.label(skip)
        self.hold -= 1

    def team_publish(self):
        a = self.a
        if not self.opt.get("local", 0):
            return
        skip = a.newlabel("noteam")
        a("s_getreg_b32 s%d, hwreg(HW_REG_XCC_ID)" % sXCC)
        a("s_and_b32 s%d, s%d, 15" % (sXCC, sXCC))
        a("s_cmp_lg_u32 s%d, 0" % sW)
        a("s_cbranch_scc1 %s" % skip)
        a("s_lshl_b32 s%d, s2, 7" % sA)
        a("s_add_u32 s%d, s%d, 0x%x" % (sA, sA, WS_TEAM))
        a("v_mov_b32 v26, s%d" % sN)
        a("v_mov_b32 v27, s%d" % sXCC)
        a("v_mov_b32 v28, s%d" % sA)
        a("s_mov_b64 exec, 1")
        a("buffer_store_dwordx2 v[26:27], v28, %s, 0 offen sc1" % sr(S_WS, 4))
        a("s_mov_b64 exec, -1")
        a.label(skip)

    def team_load(self):
        a = self.a
        if not self.opt.get("local", 0):
            return
        a("s_and_b32 s%d, s2, 7" % sA)
        a("v_lshlrev_b32 v26, 3, v%d" % vN31)
        a("v_add_u32 v26, s%d, v26" % sA)
        a("v_lshlrev_b32 v26, 7, v26")
        a("v_add_u32 v26, 0x%x, v26" % WS_TEAM)
        a.vmem("buffer_load_dwordx2 v[168:169], v26, %s, 0 offen sc1" % sr(S_WS, 4), "team")

    def team_check(self):
        a = self.a
        if not self.opt.get("local", 0):
            return
        a.wait_vm("team")
        a("v_cmp_ne_u32 vcc, s%d, v168" % sN)
        a("v_cmp_ne_u32 %s, s%d, v169" % (sr(sSTA, 2), sXCC))
        a("s_or_b64 vcc, vcc, %s" % sr(sSTA, 2))
        a("s_cmp_eq_u64 vcc, 0")
        a("s_cselect_b32 s%d, 0x%x, 0" % (sLOC, WS_FLAGS_L - WS_FLAGS))

    def flag_store_rc(self, phase):
        a = self.a
        a("s_lshl_b32 s%d, s%d, 3" % (sB, sR))
        a("s_add_u32 s%d, s%d, s%d" % (sB, sB, sC))
        self.flag_store(phase, sB)

    def poll_issue(self, phase, tag):
        a = self.a
        a("v_lshlrev_b32 v%d, 7, v28" % vPA)
        a("v_add_u32 v%d, %d, v%d" % (vPA, WS_FLAGS + phase * 256 * 128, vPA))
        if self.opt.get("local", 0) and phase in (F_S2, F_S3):
            a("v_add_u32 v%d, s%d, v%d" % (vPA, sLOC, vPA))
        a.vmem("buffer_load_dword v%d, v%d, %s, 0 offen sc1" % (vPF, vPA, sr(S_WS, 4)), tag)

    def poll_check(self, tag, code):
        a = self.a
        self.hold += 1
        loop = a.newlabel("poll")
        done = a.newlabel("polled")
        a.wait_vm(tag)
        a("v_cmp_ne_u32 vcc, s%d, v%d" % (sN, vPF))
        a("s_cmp_eq_u64 vcc, 0")
        a("s_cbranch_scc1 %s" % done)
        a("s_mov_b32 s%d, 0x40000" % sTMO)
        a.label(loop)
        a("buffer_load_dword v%d, v%d, %s, 0 offen sc1" % (vPF, vPA, sr(S_WS, 4)))
        a("s_waitcnt vmcnt(0)")
        a("v_cmp_ne_u32 vcc, s%d, v%d" % (sN, vPF))
        a("s_cmp_eq_u64 vcc, 0")
        a("s_cbranch_scc1 %s" % done)
        a("s_sub_u32 s%d, s%d, 1" % (sTMO, sTMO))
        a("s_cmp_lg_u32 s%d, 0" % sTMO)
        a("s_cbranch_scc1 %s" % loop)
        a("v_mov_b32 v26, 0")
        a("v_mov_b32 v27, %d" % (0x100 + code))
        a("s_mov_b64 exec, 1")
        a("global_store_dword v26, v27, %s" % sr(S_DBG, 2))
        a("s_mov_b64 exec, -1")
        a.label(done)
        self.hold -= 1

    def idx_s1(self):
        a = self.a
        a("s_lshl_b32 s%d, s%d, 1" % (sA, sTH))
        a("s_sub_u32 s%d, s%d, 1" % (sA, sA))
        a("s_add_u32 s%d, s%d, s%d" % (sA, sA, sR))
        a("s_cmp_lt_u32 s%d, 32" % sA)
        a("s_cselect_b32 s%d, s%d, s%d" % (sA, sA, sR))
        a("v_mov_b32 v28, s%d" % sR)
        a("v_mov_b32 v29, s%d" % sA)
        a("v_and_b32 v27, 4, v%d" % vL)
        a("v_cmp_eq_u32 vcc, 0, v27")
        a("v_cndmask_b32 v28, v29, v28, vcc")
        a("v_lshlrev_b32 v28, 3, v28")
        a("v_and_b32 v29, 3, v%d" % vL)
        a("v_add_u32 v28, v28, v29")
        a("s_lshl_b32 s%d, s%d, 2" % (sA, sKH))
        a("v_add_u32 v28, s%d, v28" % sA)

    def idx_p0(self):
        a = self.a
        a("s_lshr_b32 s%d, s2, 5" % sA)
        a("s_lshl_b32 s%d, s%d, 6" % (sB, sW))
        a("s_add_u32 s%d, s%d, s%d" % (sA, sA, sB))
        a("v_and_b32 v28, 7, v%d" % vL)
        a("v_lshlrev_b32 v28, 3, v28")
        a("v_add_u32 v28, s%d, v28" % sA)
        a("s_bfe_u32 s%d, s2, 0x20003" % sA)
        a("v_lshl_add_u32 v28, v28, 2, s%d" % sA)

    def p0_wave_flag(self):
        a = self.a
        a.wait_vm("kvt")
        a("s_lshl_b32 s%d, s%d, 3" % (sA, sR))
        a("s_add_u32 s%d, s%d, s%d" % (sA, sA, sC))
        a("s_lshl_b32 s%d, s%d, 2" % (sA, sA))
        a("s_add_u32 s%d, s%d, s%d" % (sA, sA, sW))
        a("s_lshl_b32 s%d, s%d, 7" % (sA, sA))
        a("s_add_u32 s%d, s%d, %d" % (sA, sA, WS_FLAGS + F_P0 * 256 * 128))
        a("v_mov_b32 v26, s%d" % sN)
        a("v_mov_b32 v27, s%d" % sA)
        a("s_mov_b64 exec, 1")
        a("buffer_store_dword v26, v27, %s, 0 offen sc1" % sr(S_WS, 4))
        a("s_mov_b64 exec, -1")

    def idx_s2(self):
        a = self.a
        a("s_lshr_b32 s%d, s%d, 1" % (sA, sT3))
        a("s_lshl_b32 s%d, s%d, 3" % (sA, sA))
        a("v_and_b32 v28, 7, v%d" % vL)
        a("v_add_u32 v28, s%d, v28" % sA)

    def idx_s3(self):
        a = self.a
        a("s_lshr_b32 s%d, s%d, 1" % (sA, sR))
        a("s_lshl_b32 s%d, s%d, 4" % (sA, sA))
        a("s_lshl_b32 s%d, s%d, 3" % (sB, sKH))
        a("s_add_u32 s%d, s%d, s%d" % (sA, sA, sB))
        a("v_and_b32 v28, 7, v%d" % vL)
        a("v_add_u32 v28, s%d, v28" % sA)

    def idx_cv(self):
        a = self.a
        self.feat0(sA, sKH, 0)
        a("s_lshr_b32 s%d, s%d, 1" % (sA, sA))
        a("v_and_b32 v28, 15, v%d" % vL)
        a("v_add_u32 v28, s%d, v28" % sA)
        a("s_lshr_b32 s%d, s%d, 5" % (sA, sT))
        a("s_lshl_b32 s%d, s%d, 1" % (sA, sA))
        a("s_bfe_u32 s%d, s%d, 0x10003" % (sB, sT))
        a("s_add_u32 s%d, s%d, s%d" % (sA, sA, sB))
        a("v_lshl_add_u32 v28, v28, 2, s%d" % sA)

    def conv_wave_flag(self):
        a = self.a
        a.wait_vm("yt")
        a("s_lshl_b32 s%d, s2, 2" % sA)
        a("s_add_u32 s%d, s%d, s%d" % (sA, sA, sW))
        a("s_lshl_b32 s%d, s%d, 7" % (sA, sA))
        a("s_add_u32 s%d, s%d, %d" % (sA, sA, WS_FLAGS + F_CV * 256 * 128))
        a("v_mov_b32 v26, s%d" % sN)
        a("v_mov_b32 v27, s%d" % sA)
        a("s_mov_b64 exec, 1")
        a.vmem("buffer_store_dword v26, v27, %s, 0 offen sc1" % sr(S_WS, 4), "cvf")
        a("s_mov_b64 exec, -1")

    def prologue(self):
        a = self.a
        if self.stamps or self.opt.get("dbgtime", 0):
            a("s_memrealtime s[100:101]")
            a("s_waitcnt lgkmcnt(0)")
            a("s_mov_b32 s3, s100")
        a("s_cmp_ge_u32 s2, 256")
        a("s_cbranch_scc1 L_end")
        a("s_load_dwordx16 s[64:79], s[0:1], 0")
        a("s_load_dwordx8 s[92:99], s[0:1], 64")
        a("s_load_dwordx2 %s, s[0:1], 96" % sr(S_DBG, 2))
        a("s_load_dwordx2 %s, s[0:1], 104" % sr(S_WS, 2))
        sizes = {S_WS: WS_SIZE, S_Q: 1 << 21, S_K: 1 << 21, S_V: 1 << 21, S_SHK: 4096, S_SSM: 1 << 21,
                 S_W1: 1 << 19, S_W2: 1 << 19, S_W3: 512 * 1792 * 2, S_W4: 512 * 1792 * 2, S_OUT: 1 << 21}
        for s, n in sizes.items():
            a("s_mov_b32 s%d, 0x%x" % (s + 2, n))
            a("s_mov_b32 s%d, 0x20000" % (s + 3))
        a("s_and_b32 s100, s2, 7")
        a("s_lshr_b32 s101, s2, 3")
        a("s_lshr_b32 s%d, s101, 3" % sR)
        a("s_lshl_b32 s%d, s100, 2" % sC)
        a("s_add_u32 s%d, s%d, s%d" % (sR, sR, sC))
        a("s_and_b32 s%d, s101, 7" % sC)
        a("s_lshr_b32 s%d, s101, 4" % sRP)
        a("s_lshl_b32 s100, s100, 1")
        a("s_add_u32 s%d, s%d, s100" % (sRP, sRP))
        a("s_and_b32 s%d, s101, 15" % sCP)
        a("v_and_b32 v%d, 0xff, v0" % vTID)
        a("v_lshrrev_b32 v26, 6, v0")
        a("v_and_b32 v%d, 63, v0" % vL)
        a("v_readfirstlane_b32 s%d, v26" % sTMO)
        a("v_lshlrev_b32 v%d, 4, v%d" % (vL16, vL))
        a("v_lshrrev_b32 v%d, 5, v%d" % (vHH, vL))
        a("v_and_b32 v%d, 31, v%d" % (vN31, vL))
        a("s_and_b32 s%d, s%d, 3" % (sW, sTMO))
        a("s_lshr_b32 s%d, s%d, 1" % (sTH, sW))
        a("s_and_b32 s%d, s%d, 1" % (sKH, sW))
        a("s_lshl_b32 s%d, s%d, 1" % (sT, sR))
        a("s_add_u32 s%d, s%d, s%d" % (sT, sT, sTH))
        a("s_lshl_b32 s%d, s%d, 2" % (sT3, sRP))
        a("s_add_u32 s%d, s%d, s%d" % (sT3, sT3, sW))
        a("s_mov_b32 s%d, 0x3f803f80" % sONES)
        a("s_mov_b32 s%d, 0xffff0000" % sHI)
        a("s_movk_i32 s%d, 0x1000" % sK4)
        a("s_movk_i32 s%d, 0x2000" % sK8)
        a("s_movk_i32 s%d, 0x3000" % sK12)
        a("s_mov_b32 s%d, 0x%x" % (sEPS, f32bits(1e-5)))
        a("s_mov_b32 s%d, 0x%x" % (sKG1, f32bits(-GELU_K1)))
        a("s_mov_b32 s%d, 0x%x" % (sKG3, f32bits(-GELU_K3)))
        a("s_mov_b32 s%d, 0x%x" % (s512I, f32bits(1.0 / 512)))
        a("s_waitcnt lgkmcnt(0)")
        for sreg, src in ((S_Q, 64), (S_W1, 78), (S_K, 66), (S_V, 68), (S_SHK, 70), (S_SSM, 72), (S_DPTR, 74)):
            a("s_mov_b64 %s, %s" % (sr(sreg, 2), sr(src, 2)))
        for i, sreg in enumerate([S_W2, S_W3, S_W4, S_OUT]):
            a("s_mov_b64 %s, %s" % (sr(sreg, 2), sr(92 + 2 * i, 2)))
        a("s_add_u32 s%d, s%d, s%d" % (sROT, sR, sC))
        a("s_and_b32 s%d, s%d, 3" % (sROT, sROT))
        a("s_cmp_ge_u32 s%d, 4" % sTMO)
        a("s_cbranch_scc1 L_loader")
        if self.opt.get("prio", 1):
            a("s_setprio 1")
        if self.stamps:
            a("v_mov_b32 v%d, 0" % vSTAMP)
        self.stamp("start")
        if self.opt.get("dbgtime", 0):
            a("s_memtime s[98:99]")
            a("s_waitcnt lgkmcnt(0)")
        self.ssm_d_load()

    def tr_addresses(self):
        a = self.a
        a("v_bfe_u32 v26, v%d, 2, 2" % vL)
        a("v_and_b32 v27, 3, v%d" % vL)
        a("v_bfe_u32 v28, v%d, 4, 1" % vL)
        a("v_lshlrev_b32 v27, 3, v27")
        a("v_lshl_add_u32 v27, v28, 5, v27")
        a("v_lshl_add_u32 v28, v%d, 2, v26" % vHH)
        a("v_lshl_add_u32 v%d, v28, 6, v27" % vWP)
        a("v_lshl_add_u32 v28, v%d, 3, v26" % vHH)
        a("v_lshl_add_u32 v%d, v28, 6, v27" % vWN)

    def loader_setup(self):
        a = self.a
        a.label("L_loader")
        a("v_lshrrev_b32 v26, 2, v%d" % vL)
        a("v_and_b32 v27, 3, v%d" % vL)
        a("v_lshlrev_b32 v27, 4, v27")
        a("v_lshl_add_u32 v%d, v26, 10, v27" % vW64)
        a("v_lshrrev_b32 v26, 3, v%d" % vL)
        a("v_and_b32 v27, 7, v%d" % vL)
        a("v_lshrrev_b32 v28, 4, v%d" % vL)
        a("v_xor_b32 v27, v27, v28")
        a("v_lshlrev_b32 v27, 4, v27")
        a("v_lshl_add_u32 v%d, v26, 10, v27" % vQE)
        a("v_xor_b32 v%d, 64, v%d" % (vQE + 1, vQE))
        a("s_lshl_b32 s%d, s%d, 14" % (sCc, sW))
        a("s_lshl_b32 s%d, s%d, 15" % (sD, sT))
        a("s_lshl_b32 s%d, s%d, 9" % (sA, sKH))
        a("s_add_u32 s%d, s%d, s%d" % (sD, sD, sA))
        self.w64_bases(sW2L, sW2G)

    def feat0(self, dst, spanel, shift):
        a = self.a
        if self.opt.get("remap", 0):
            a("s_lshl_b32 s%d, s%d, %d" % (dst, sC, 5 + shift))
            a("s_lshl_b32 s%d, s%d, %d" % (sSO, spanel, 8 + shift))
        else:
            a("s_lshl_b32 s%d, s%d, %d" % (dst, sC, 6 + shift))
            a("s_lshl_b32 s%d, s%d, %d" % (sSO, spanel, 5 + shift))
        a("s_add_u32 s%d, s%d, s%d" % (dst, dst, sSO))

    def w64_bases(self, sl, sg):
        a = self.a
        a("s_lshl_b32 s%d, s%d, 15" % (sl, sTH))
        a("s_lshl_b32 s%d, s%d, 14" % (sA, sKH))
        a("s_add_u32 s%d, s%d, s%d" % (sl, sl, sA))
        a("s_add_u32 s%d, s%d, %d" % (sl, sl, LW))
        a("s_lshl_b32 s%d, s%d, 18" % (sg, sKH))
        self.feat0(sA, sTH, 1)
        a("s_add_u32 s%d, s%d, s%d" % (sg, sg, sA))

    def s1_stage_items(self, st):
        items = []

        def head():
            a = self.a
            a("s_add_u32 s%d, s%d, %d" % (sB, sROT, st))
            a("s_and_b32 s%d, s%d, 3" % (sB, sB))
            a("s_lshl_b32 s%d, s%d, 7" % (sQG, sB))
            a("s_add_u32 s%d, s%d, s%d" % (sQG, sQG, sD))
            a("s_lshl_b32 s%d, s%d, 16" % (sWG, sB))
            a("s_add_u32 s%d, s%d, s%d" % (sWG, sWG, sW2G))
        for j in range(4):
            def f(j=j):
                if j == 0:
                    head()
                self.dma_item(S_Q, vQE + (j & 1), sCc, LQ + st * 4096 + j * 1024, sQG, j * 8192, "s1_%d" % st)()
            items.append(f)
        for i in range(4):
            items.append(self.dma_item(S_W1, vW64, sW2L, (4 * st + i) * 1024, sWG, i * 16384, "s1_%d" % st))
        return items

    def touch(self, srd, lanes, sidx, dst):
        a = self.a
        a("s_mul_i32 s%d, s%d, %d" % (sA, sidx, lanes))
        a("v_add_u32 v26, s%d, v%d" % (sA, vL))
        a("v_lshlrev_b32 v26, 7, v26")
        a("v_mov_b32 v27, 0x%x" % OOB)
        a("v_cmp_gt_u32 vcc, %d, v%d" % (lanes, vL))
        a("v_cndmask_b32 v26, v27, v26, vcc")
        a.vmem("buffer_load_dword v%d, v26, %s, 0 offen" % (dst, sr(srd, 4)), "touch")

    def touch_w2(self):
        a = self.a
        if self.opt.get("touch", 1):
            a("s_lshr_b32 s%d, s2, 3" % sE)
            a("s_lshl_b32 s%d, s%d, 2" % (sE, sE))
            a("s_add_u32 s%d, s%d, s%d" % (sE, sE, sW))
            self.touch(S_W2, 32, sE, 53)

    def touch_chip(self, which):
        a = self.a
        srd, lanes, dst = {"w2": (S_W2, 4, 160), "ssm": (S_SSM, 16, 161), "w3": (S_W3, 14, 163), "w4": (S_W4, 14, 162)}[which]
        if not self.opt.get("t" + which, 1):
            return
        a("s_lshl_b32 s%d, s2, 2" % sE)
        a("s_add_u32 s%d, s%d, s%d" % (sE, sE, sW))
        self.touch(srd, lanes, sE, dst)

    def touch_code(self):
        a = self.a
        if not self.opt.get("tcode", 1):
            return
        a("s_getpc_b64 s[96:97]")
        a.label("L_pc")
        a("s_sub_u32 s96, s96, L_pc-%s_kernel" % NAME)
        a("s_subb_u32 s97, s97, 0")
        a("s_lshr_b32 s%d, s2, 3" % sE)
        a("s_lshl_b32 s%d, s%d, 2" % (sE, sE))
        a("s_add_u32 s%d, s%d, s%d" % (sE, sE, sW))
        a("s_mul_i32 s%d, s%d, 3" % (sE, sE))
        a("v_min_u32 v26, 2, v%d" % vL)
        a("v_add_u32 v26, s%d, v26" % sE)
        a("v_min_u32 v26, (L_codeend-%s_kernel)/128-1, v26" % NAME)
        a("v_lshlrev_b32 v26, 7, v26")
        a("v_mov_b32 v135, s97")
        a("v_add_co_u32 v134, vcc, s96, v26")
        a("v_addc_co_u32 v135, vcc, 0, v135, vcc")
        a.vmem("global_load_dword v136, v[134:135], off", "touch")

    def cold_touches(self):
        a = self.a
        o = self.opt
        a("s_lshr_b32 s%d, s2, 3" % sE)
        a("s_lshl_b32 s%d, s%d, 2" % (sE, sE))
        a("s_add_u32 s%d, s%d, s%d" % (sE, sE, sW))
        if o.get("tq", 0):
            a("s_and_b32 s%d, s2, 7" % sF)
            a("s_lshl_b32 s%d, s%d, 7" % (sF, sF))
            a("s_add_u32 s%d, s%d, s%d" % (sF, sF, sE))
            self.touch(S_Q, 16, sF, 160)
            self.touch(S_W1, 32, sE, 161)

    def touch_rows(self, srd, rows_per_wave, srow0, col, dst):
        a = self.a
        a("v_add_u32 v26, s%d, v%d" % (srow0, vL))
        a("v_lshlrev_b32 v26, 10, v26")
        a("v_add_u32 v26, %d, v26" % col)
        a("v_mov_b32 v27, 0x%x" % OOB)
        a("v_cmp_gt_u32 vcc, %d, v%d" % (rows_per_wave, vL))
        a("v_cndmask_b32 v26, v27, v26, vcc")
        a.vmem("buffer_load_dword v%d, v26, %s, 0 offen" % (dst, sr(srd, 4)), "touch")

    def wave_in_group(self, dst):
        a = self.a
        a("s_lshr_b32 s%d, s2, 3" % dst)
        a("s_lshl_b32 s%d, s%d, 2" % (dst, dst))
        a("s_add_u32 s%d, s%d, s%d" % (dst, dst, sW))

    def head_start(self):
        a = self.a
        m = self.opt.get("head", 11)
        self.wave_in_group(sE)
        if m & 1:
            a("s_lshl_b32 s%d, s%d, 2" % (sF, sE))
            self.touch_rows(S_W1, 4, sF, 384, 160)
        if m & 2:
            a("s_and_b32 s%d, s2, 7" % sF)
            a("s_lshl_b32 s%d, s%d, 7" % (sF, sF))
            a("s_add_u32 s%d, s%d, s%d" % (sF, sF, sE))
            a("s_lshl_b32 s%d, s%d, 1" % (sF, sF))
            self.touch_rows(S_K, 2, sF, 384, 161)
            self.touch_rows(S_V, 2, sF, 384, 162)
        if m & 4:
            a("s_lshl_b32 s%d, s%d, 2" % (sF, sE))
            self.touch_rows(S_W2, 4, sF, 384, 163)

    def page_touch(self):
        a = self.a
        m = self.opt.get("tlb", 0)
        if not m:
            return
        a("v_mov_b32 v27, 0x%x" % OOB)
        if m & 1:
            a("v_lshlrev_b32 v26, 21, v%d" % vL)
            a("v_add_u32 v26, 0x70800, v26")
            a("v_cmp_gt_u32 vcc, 10, v%d" % vL)
            a("v_cndmask_b32 v26, v27, v26, vcc")
            a.vmem("buffer_load_dword v164, v26, %s, 0 offen" % sr(S_WS, 4), "touch")
        lst = []
        if m & 2:
            lst += [(S_OUT, 1 << 21, 165)]
        if m & 4:
            lst += [(S_SSM, 1 << 21, 166), (S_W3, 512 * 1792 * 2, 167), (S_W4, 512 * 1792 * 2, 168), (S_W2, 1 << 19, 169)]
        for srd, size, dst in lst:
            a("v_mul_u32_u24 v26, %d, v%d" % (size // 128 - 1, vL))
            a("v_lshlrev_b32 v26, 7, v26")
            a("v_cmp_gt_u32 vcc, 2, v%d" % vL)
            a("v_cndmask_b32 v26, v27, v26, vcc")
            a.vmem("buffer_load_dword v%d, v26, %s, 0 offen" % (dst, sr(srd, 4)), "touch")

    def head_start_w4(self):
        a = self.a
        if self.opt.get("head", 11) & 8:
            self.wave_in_group(sE)
            a("s_mul_i32 s%d, s%d, 14" % (sF, sE))
            self.touch_rows(S_W4, 14, sF, 384, 161)

    def batch_a(self):
        a = self.a
        if self.opt.get("tkv", 0):
            self.touch_kv(157, 158)
        if self.opt.get("tw2", 1):
            a("s_lshr_b32 s%d, s2, 3" % sE)
            a("s_lshl_b32 s%d, s%d, 2" % (sE, sE))
            a("s_add_u32 s%d, s%d, s%d" % (sE, sE, sW))
            self.touch(S_W2, 32, sE, 159)
        if self.opt.get("bpos", 0) == 0:
            self.touch_chip("ssm")
            self.touch_chip("w3")

    def kv_dma(self):
        a = self.a
        a("v_lshrrev_b32 v26, 3, v%d" % vL)
        a("v_and_b32 v27, 7, v%d" % vL)
        a("v_lshlrev_b32 v27, 4, v27")
        a("v_lshl_add_u32 v137, v26, 10, v27")
        a("s_lshl_b32 s%d, s%d, 6" % (sA, sR))
        a("s_lshl_b32 s%d, s%d, 4" % (sB, sW))
        a("s_add_u32 s%d, s%d, s%d" % (sA, sA, sB))
        a("v_add_u32 v26, s%d, v26" % sA)
        a("s_lshl_b32 s%d, s%d, 10" % (sQG, sA))
        a("s_lshl_b32 s%d, s%d, 7" % (sB, sC))
        a("s_add_u32 s%d, s%d, s%d" % (sQG, sQG, sB))
        a("v_add_u32 v138, s%d, v137" % sQG)
        a("v_subrev_u32 v138, 3072, v138")
        a("v_mov_b32 v27, 0x%x" % OOB)
        a("v_cmp_gt_u32 vcc, 3, v26")
        a("v_cndmask_b32 v138, v138, v27, vcc")
        a("s_mul_i32 s%d, s%d, 5120" % (sWG, sW))
        a("s_add_u32 m0, s%d, %d" % (sWG, LKV))
        a.vmem("buffer_load_dwordx4 v138, %s, 0 offen lds" % sr(S_K, 4), "kv")
        for g in (1, 2):
            self.dma_item(S_K, 137, sWG, LKV + 1024 * g, sQG, 8192 * g - 3072, "kv")()
        for g in (0, 1):
            self.dma_item(S_V, 137, sWG, LKV + 3072 + 1024 * g, sQG, 8192 * g, "kv")()
        a("s_lshl_b32 s%d, s%d, 9" % (sB, sC))
        a("v_lshl_add_u32 v26, v%d, 4, s%d" % (vN31, sB))
        a.vmem("buffer_load_dwordx4 %s, v26, %s, 0 offen" % (vr(self.SHRAW, 4), sr(S_SHK, 4)), "kv")

    def p0_reads(self):
        a = self.a
        a.wait_vm("kv")
        a("s_mul_i32 s%d, s%d, 5120" % (sA, sW))
        a("v_lshlrev_b32 v26, 10, v%d" % vHH)
        a("v_lshl_add_u32 v26, v%d, 2, v26" % vN31)
        a("v_add_u32 v26, s%d, v26" % sA)
        a("v_add_u32 v26, %d, v26" % LKV)
        for i in range(11):
            a.lds("ds_read_b32 v%d, v26 offset:%d" % (self.KRAW + i, 128 * i), "p0")
        for i in range(8):
            a.lds("ds_read_b32 v%d, v26 offset:%d" % (self.VRAW + i, 3072 + 128 * i), "p0")

    def touch_kv(self, dk=54, dv=55):
        a = self.a
        for srd, rows, first, dst in ((S_K, 17, -3, dk), (S_V, 16, 0, dv)):
            a("s_lshl_b32 s%d, s%d, 6" % (sA, sR))
            a("s_mul_i32 s%d, s%d, %d" % (sB, sW, rows))
            a("s_add_u32 s%d, s%d, s%d" % (sA, sA, sB))
            a("s_add_i32 s%d, s%d, %d" % (sA, sA, first))
            a("v_add_u32 v26, s%d, v%d" % (sA, vL))
            a("v_lshlrev_b32 v26, 10, v26")
            a("s_lshl_b32 s%d, s%d, 7" % (sB, sC))
            a("v_add_u32 v26, s%d, v26" % sB)
            a("v_mov_b32 v27, 0x%x" % OOB)
            a("v_cmp_gt_u32 vcc, %d, v%d" % (rows, vL))
            a("v_cndmask_b32 v26, v27, v26, vcc")
            a.vmem("buffer_load_dword v%d, v26, %s, 0 offen" % (dst, sr(srd, 4)), "touch")

    def touch_w3_local(self):
        a = self.a
        if self.opt.get("tw3", 1):
            a("s_lshr_b32 s%d, s2, 3" % sE)
            a("s_lshl_b32 s%d, s%d, 2" % (sE, sE))
            a("s_add_u32 s%d, s%d, s%d" % (sE, sE, sW))
            self.touch(S_W3, 64, sE, 50)
            a("s_add_u32 s%d, s%d, 128" % (sE, sE))
            self.touch(S_W3, 64, sE, 51)

    def touch_w4_chip(self):
        a = self.a
        if self.opt.get("tw4", 1):
            a("s_lshl_b32 s%d, s2, 2" % sE)
            a("s_add_u32 s%d, s%d, s%d" % (sE, sE, sW))
            self.touch(S_W4, 14, sE, 52)

    def touch_w34(self):
        a = self.a
        if self.opt.get("touch", 1):
            a("s_lshl_b32 s%d, s2, 2" % sE)
            a("s_add_u32 s%d, s%d, s%d" % (sE, sE, sW))
            if self.opt.get("touchw3", 1):
                self.touch(S_W3, 14, sE, 223)
            if self.opt.get("touchw4", 1):
                self.touch(S_W4, 14, sE, 224)

    def touch_w4_local(self):
        a = self.a
        a("s_lshr_b32 s%d, s2, 3" % sE)
        a("s_lshl_b32 s%d, s%d, 2" % (sE, sE))
        a("s_add_u32 s%d, s%d, s%d" % (sE, sE, sW))
        self.touch(S_W4, 64, sE, 54)
        a("s_add_u32 s%d, s%d, 128" % (sE, sE))
        self.touch(S_W4, 64, sE, 55)

    KRAW, VRAW, SHRAW, POFF = 172, 183, 164, 138

    def p0_loads(self):
        a = self.a
        o = self.POFF
        a("s_lshl_b32 s%d, s%d, 6" % (sA, sR))
        a("s_lshl_b32 s%d, s%d, 4" % (sB, sW))
        a("s_add_u32 s%d, s%d, s%d" % (sA, sA, sB))
        a("v_lshl_add_u32 v26, v%d, 3, s%d" % (vHH, sA))
        a("s_lshl_b32 s%d, s%d, 7" % (sB, sC))
        a("v_lshl_add_u32 v27, v%d, 2, s%d" % (vN31, sB))
        a("v_lshl_add_u32 v%d, v26, 10, v27" % (o + 3))
        a("v_add_u32 v%d, 0x1000, v%d" % (o + 4, o + 3))
        a("v_mov_b32 v28, 0x%x" % OOB)
        for i in range(3):
            a("v_subrev_u32 v%d, %d, v%d" % (o + i, (3 - i) * 1024, o + 3))
            a("v_cmp_gt_u32 vcc, %d, v26" % (3 - i))
            a("v_cndmask_b32 v%d, v%d, v28, vcc" % (o + i, o + i))
        a("s_lshl_b32 s%d, s%d, 9" % (sB, sC))
        a("v_lshl_add_u32 v%d, v%d, 4, s%d" % (o + 5, vN31, sB))

        def item(text):
            return lambda: a.vmem(text, "p0")
        for i in range(3):
            self.fq.append(item("buffer_load_dword v%d, v%d, %s, 0 offen" % (self.KRAW + i, o + i, sr(S_K, 4))))
        for i in range(8):
            self.fq.append(item("buffer_load_dword v%d, v%d, %s, 0 offen offset:%d"
                                % (self.KRAW + 3 + i, o + 3 + i // 4, sr(S_K, 4), (i % 4) * 1024)))
        for i in range(8):
            self.fq.append(item("buffer_load_dword v%d, v%d, %s, 0 offen offset:%d"
                                % (self.VRAW + i, o + 3 + i // 4, sr(S_V, 4), (i % 4) * 1024)))
        self.fq.append(item("buffer_load_dwordx4 %s, v%d, %s, 0 offen" % (vr(self.SHRAW, 4), o + 5, sr(S_SHK, 4))))

    ACK, ACS, ACC_CS = 32, 48, 64
    BF, AK, AS, AC = 80, 96, 104, 112
    SUM, ONE4 = 120, 124

    def s1_setup(self):
        a = self.a
        a("v_bfe_u32 v26, v%d, 1, 3" % vN31)
        a("v_xor_b32 v26, v26, v%d" % vHH)
        a("v_lshlrev_b32 v26, 4, v26")
        a("v_lshl_add_u32 v26, v%d, 7, v26" % vN31)
        a("s_lshl_b32 s%d, s%d, 14" % (sA, sW))
        a("v_add_u32 v128, s%d, v26" % sA)
        for i in range(1, 4):
            a("v_xor_b32 v%d, %d, v128" % (128 + i, 32 * i))
        a("s_lshl_b32 s%d, s%d, 14" % (sA, sKH))
        a("s_add_u32 s%d, s%d, %d" % (sA, sA, LW))
        a("s_lshl_b32 s%d, s%d, 15" % (sB, sKH))
        a("s_add_u32 s%d, s%d, s%d" % (sE, sA, sB))
        a("v_add_u32 v134, s%d, v%d" % (sE, vWN))
        a("s_xor_b32 s%d, s%d, 0x8000" % (sB, sB))
        a("s_add_u32 s%d, s%d, s%d" % (sE, sA, sB))
        a("v_add_u32 v135, s%d, v%d" % (sE, vWN))
        a("s_xor_b32 s%d, s%d, s%d" % (sB, sKH, sTH))
        a("s_lshl_b32 s%d, s%d, 15" % (sB, sB))
        a("s_add_u32 s%d, s%d, s%d" % (sE, sA, sB))
        a("v_add_u32 v136, s%d, v%d" % (sE, vWN))

    def s1_main(self, after_stage):
        a = self.a
        ACK, ACS, ACC_CS, BF, AK, AS, AC, SUM, ONE4 = (self.ACK, self.ACS, self.ACC_CS, self.BF, self.AK, self.AS,
                                                       self.AC, self.SUM, self.ONE4)
        self.selector(ONE4)
        for i in range(4):
            a("v_mov_b32 v%d, 0" % (SUM + i))

        def aread(ks, which):
            base, addr = ((AK, 134), (AS, 135), (AC, 136))[which]
            for hf in range(2):
                a.lds("ds_read_b64_tr_b16 %s, v%d offset:%d"
                      % (vr(base + 4 * (ks & 1) + 2 * hf, 2), addr, ks * 1024 + hf * 256), "f%d_%d" % (ks, which))

        for st in range(4):
            if st < 3:
                after_stage(st)
            for q4 in range(4):
                a.lds("ds_read_b128 %s, v%d offset:%d" % (vr(BF + 4 * q4, 4), 128 + q4, LQ + st * 4096), "b")
            for which in range(3):
                aread(4 * st, which)
            self.fill(1)
            a.wait_lg("b")
            for j in range(16):
                a("v_dot2c_f32_bf16 v%d, s%d, v%d" % (SUM + (j & 1), sONES, BF + j))
                a("v_dot2c_f32_bf16 v%d, v%d, v%d" % (SUM + 2 + (j & 1), BF + j, BF + j))
                if j in (5, 11):
                    self.fill(1)
            for q4 in range(4):
                ks = 4 * st + q4
                b = ks & 1
                B = vr(BF + 4 * q4, 4)
                first = ks == 0
                a.wait_lg("f%d_0" % ks)
                a("%s %s, %s, %s, %s" % (MF32, vr(ACK, 16), vr(AK + 4 * b, 4), B, "0" if first else vr(ACK, 16)))
                if q4 < 3:
                    aread(ks + 1, 0)
                self.fill(1)
                a.wait_lg("f%d_1" % ks)
                a("%s %s, %s, %s, %s" % (MF32, vr(ACS, 16), vr(AS + 4 * b, 4), B, "0" if first else vr(ACS, 16)))
                if q4 < 3:
                    aread(ks + 1, 1)
                self.fill(1)
                a.wait_lg("f%d_2" % ks)
                a("%s %s, %s, %s, %s" % (MF16, vr(ACC_CS, 4), vr(AC + 4 * b, 4), vr(ONE4, 4),
                                         "0" if first else vr(ACC_CS, 4)))
                if q4 < 3:
                    aread(ks + 1, 2)
            self.stamp("s1st%d" % st)
        self.fill_all()

    def selector(self, dst):
        a = self.a
        a("v_lshrrev_b32 v26, 4, v%d" % vL)
        a("v_xor_b32 v26, v26, v%d" % vL)
        a("v_and_b32 v26, 1, v26")
        a("v_mov_b32 v27, s%d" % sONES)
        a("v_cmp_eq_u32 vcc, 0, v26")
        a("v_cndmask_b32 v%d, 0, v27, vcc" % dst)
        for i in range(1, 4):
            a("v_mov_b32 v%d, v%d" % (dst + i, dst))

    def colsum_write(self, src, sbase):
        a = self.a
        a("v_and_b32 v28, 1, v%d" % vL)
        a("v_lshlrev_b32 v28, 6, v28")
        a("v_lshrrev_b32 v29, 4, v%d" % vL)
        a("v_lshl_add_u32 v28, v29, 4, v28")
        a("v_add_u32 v28, s%d, v28" % sbase)
        self.hold += 1
        a("s_mov_b32 exec_lo, 0x30003")
        a("s_mov_b32 exec_hi, 0x30003")
        a.lds("ds_write_b128 v28, %s" % vr(src, 4))
        a("s_mov_b64 exec, -1")
        self.hold -= 1

    def q_tile_read(self):
        a = self.a
        self.feat0(sE, sKH, 0)
        a("s_lshr_b32 s%d, s%d, 8" % (sA, sE))
        a("s_lshl_b32 s%d, s%d, 1" % (sB, sTH))
        a("s_add_u32 s%d, s%d, s%d" % (sA, sA, sB))
        a("s_lshl_b32 s%d, s%d, 14" % (sA, sA))
        a("s_lshr_b32 s%d, s%d, 6" % (sB, sE))
        a("s_sub_u32 s%d, s%d, s%d" % (sB, sB, sROT))
        a("s_and_b32 s%d, s%d, 3" % (sB, sB))
        a("s_lshl_b32 s%d, s%d, 12" % (sB, sB))
        a("s_add_u32 s%d, s%d, s%d" % (sA, sA, sB))
        a("s_bfe_u32 s%d, s%d, 0x10005" % (sB, sE))
        a("s_lshl_b32 s%d, s%d, 2" % (sB, sB))
        a("v_bfe_u32 v26, v%d, 1, 3" % vN31)
        a("v_xor_b32 v26, s%d, v26" % sB)
        a("v_lshlrev_b32 v27, 7, v%d" % vN31)
        a("v_lshl_add_u32 v27, v%d, 3, v27" % vHH)
        a("v_add_u32 v27, s%d, v27" % sA)
        for j in range(4):
            a("v_xor_b32 v28, %d, v26" % j)
            a("v_lshl_add_u32 v28, v28, 4, v27")
            a.lds("ds_read_b64 %s, v28 offset:%d" % (vr(vQ + 2 * j, 2), LQ), "qt")

    def gelu(self, X, n, vA13, vIA, T, out, fills=0):
        a = self.a
        for g0 in range(0, n // 2, 4):
            ps = list(range(g0, min(g0 + 4, n // 2)))
            t = lambda p: T + 4 * (p - g0)
            x = lambda p: vr(X + 2 * p, 2)
            left = fills

            def hook():
                nonlocal left
                if left > 0:
                    self.fill(1)
                    left -= 1
            for p in ps:
                a("v_pk_mul_f32 %s, %s, %s" % (vr(t(p), 2), x(p), x(p)))
            for p in ps:
                a("v_pk_fma_f32 %s, %s, %s, %s op_sel:[0,1,0] op_sel_hi:[1,1,0]"
                  % (vr(t(p), 2), vr(t(p), 2), vr(vA13, 2), vr(vA13, 2)))
            hook()
            for p in ps:
                a("v_pk_mul_f32 %s, %s, %s" % (vr(t(p), 2), vr(t(p), 2), x(p)))
            for p in ps:
                a("v_exp_f32 v%d, v%d" % (t(p) + 2, t(p)))
                a("v_exp_f32 v%d, v%d" % (t(p) + 3, t(p) + 1))
            hook()
            for p in ps:
                a("v_pk_fma_f32 %s, %s, %s, %s op_sel_hi:[1,0,0]"
                  % (vr(t(p), 2), vr(t(p) + 2, 2), vr(vIA, 2), vr(vIA, 2)))
            hook()
            for p in ps:
                a("v_rcp_f32 v%d, v%d" % (t(p) + 2, t(p)))
                a("v_rcp_f32 v%d, v%d" % (t(p) + 3, t(p) + 1))
            hook()
            for p in ps:
                a("v_pk_mul_f32 %s, %s, %s" % (vr(t(p), 2), vr(t(p) + 2, 2), x(p)))
            for p in ps:
                a("v_cvt_pk_bf16_f32 v%d, v%d, v%d" % (out + p, t(p), t(p) + 1))

    def gelu_consts(self, vA, dst):
        a = self.a
        a("v_mul_f32 v%d, s%d, v%d" % (dst, sKG1, vA))
        a("v_mul_f32 v%d, v%d, v%d" % (dst + 1, vA, vA))
        a("v_mul_f32 v%d, v%d, v%d" % (dst + 1, dst + 1, vA))
        a("v_mul_f32 v%d, s%d, v%d" % (dst + 1, sKG3, dst + 1))
        a("v_rcp_f32 v%d, v%d" % (dst + 2, vA))

    def exchange_write(self, send, base=LRED):
        a = self.a
        a("s_lshl_b32 s%d, s%d, 12" % (sA, sW))
        a("s_add_u32 s%d, s%d, %d" % (sA, sA, base))
        a("v_add_u32 v26, s%d, v%d" % (sA, vL16))
        for j in range(4):
            a.lds("ds_write_b128 v26, %s offset:%d" % (vr(send + 4 * j, 4), 1024 * j))

    def exchange_read(self, dst, base=LRED):
        a = self.a
        a("s_xor_b32 s%d, s%d, 1" % (sA, sW))
        a("s_lshl_b32 s%d, s%d, 12" % (sA, sA))
        a("s_add_u32 s%d, s%d, %d" % (sA, sA, base))
        a("v_add_u32 v26, s%d, v%d" % (sA, vL16))
        for j in range(4):
            a.lds("ds_read_b128 %s, v26 offset:%d" % (vr(dst + 4 * j, 4), 1024 * j), "xr")

    def s1_epilogue(self, after_exchange):
        a = self.a
        ACK, ACS, ACC_CS, SUM = self.ACK, self.ACS, self.ACC_CS, self.SUM
        self.q_tile_read()
        a("v_add_f32 v%d, v%d, v%d" % (SUM, SUM, SUM + 1))
        a("v_add_f32 v%d, v%d, v%d" % (SUM + 2, SUM + 2, SUM + 3))
        a("v_permlane32_swap_b32 v%d, v%d" % (SUM, SUM + 2))
        a("v_add_f32 v%d, v%d, v%d" % (SUM, SUM, SUM + 2))
        a("s_lshl_b32 s%d, s%d, 8" % (sA, sW))
        a("s_add_u32 s%d, s%d, %d" % (sA, sA, LSTX))
        a("v_lshl_add_u32 v27, v%d, 2, s%d" % (vL, sA))
        a.lds("ds_write_b32 v27, v%d" % SUM)
        self.exchange_write(ACS)
        a("s_xor_b32 s%d, s%d, s%d" % (sA, sKH, sTH))
        a("s_lshl_b32 s%d, s%d, 8" % (sA, sA))
        a("s_lshl_b32 s%d, s%d, 7" % (sB, sKH))
        a("s_add_u32 s%d, s%d, s%d" % (sA, sA, sB))
        a("s_add_u32 s%d, s%d, %d" % (sA, sA, LCSX))
        self.colsum_write(ACC_CS, sA)
        a.wait_lg_all()
        self.ssm_d_unpack()
        self.barrier()
        P, C0, C1 = 80, 96, 128
        self.exchange_read(P)
        a("s_xor_b32 s%d, s%d, 1" % (sA, sW))
        a("s_lshl_b32 s%d, s%d, 8" % (sA, sA))
        a("s_add_u32 s%d, s%d, %d" % (sA, sA, LSTX))
        a("v_lshl_add_u32 v27, v%d, 2, s%d" % (vL, sA))
        a.lds("ds_read_b32 v%d, v27" % (SUM + 1), "sx")
        a("s_lshl_b32 s%d, s%d, 8" % (sA, sKH))
        a("s_add_u32 s%d, s%d, %d" % (sA, sA, LCSX))
        a("v_lshl_add_u32 v28, v%d, 4, s%d" % (vHH, sA))
        for j in range(4):
            a.lds("ds_read_b128 %s, v28 offset:%d" % (vr(C0 + 4 * j, 4), 32 * j))
            a.lds("ds_read_b128 %s, v28 offset:%d" % (vr(C1 + 4 * j, 4), 128 + 32 * j))
        after_exchange()
        a.wait_lg("sx")
        a("v_add_f32 v%d, v%d, v%d" % (SUM, SUM, SUM + 1))
        a("v_mov_b32 v%d, v%d" % (SUM + 2, SUM))
        a("v_permlane32_swap_b32 v%d, v%d" % (SUM, SUM + 2))
        a("v_mul_f32 v%d, s%d, v%d" % (vMEAN, s512I, SUM))
        a("v_mul_f32 v26, s%d, v%d" % (s512I, SUM + 2))
        a("v_fma_f32 v26, -v%d, v%d, v26" % (vMEAN, vMEAN))
        a("v_max_f32 v26, 0, v26")
        a("v_add_f32 v27, s%d, v26" % sEPS)
        a("v_rsq_f32 v%d, v27" % vR1)
        a("v_mul_f32 v27, v%d, v%d" % (vR1, vR1))
        a("v_fma_f32 v27, v27, v26, s%d" % sEPS)
        a("v_rsq_f32 v27, v27")
        a("v_mul_f32 v27, v27, v%d" % vR1)
        G = 112
        self.gelu_consts(27, G)
        a("v_sub_f32 v%d, 0, v%d" % (G + 4, vMEAN))
        a.wait_lg_all()
        for p in range(8):
            a("v_pk_add_f32 %s, %s, %s" % (vr(C0 + 2 * p, 2), vr(C0 + 2 * p, 2), vr(C1 + 2 * p, 2)))
            a("v_pk_add_f32 %s, %s, %s" % (vr(ACK + 2 * p, 2), vr(ACK + 2 * p, 2), vr(P + 2 * p, 2)))
        for p in range(8):
            a("v_pk_fma_f32 %s, %s, %s, %s op_sel_hi:[1,0,1]"
              % (vr(ACK + 2 * p, 2), vr(C0 + 2 * p, 2), vr(G + 4, 2), vr(ACK + 2 * p, 2)))
        self.gelu(ACK, 16, G, G + 2, 144, 48, fills=0)
        self.frag_store(48, WS_HS, "hst")

    def frag_store(self, src, base, tag):
        a = self.a
        a("s_lshl_b32 s%d, s%d, 15" % (sA, sT))
        self.feat0(sB, sKH, 6)
        a("s_add_u32 s%d, s%d, s%d" % (sA, sA, sB))
        a("s_add_u32 s%d, s%d, 0x%x" % (sA, sA, base))
        a.vmem("buffer_store_dwordx4 %s, v%d, %s, s%d offen sc1" % (vr(src, 4), vL16, sr(S_WS, 4), sA), tag)
        a.vmem("buffer_store_dwordx4 %s, v%d, %s, s%d offen offset:1024 sc1"
               % (vr(src + 4, 4), vL16, sr(S_WS, 4), sA), tag)

    PK = 118

    def nonce_compute(self):
        a = self.a
        a.wait_vm("nonce")
        a("v_readfirstlane_b32 s%d, v30" % sN)
        a("s_mul_i32 s%d, s%d, 0x9e3779b1" % (sN, sN))
        a("s_add_u32 s%d, s%d, 0x7f4a7c15" % (sN, sN))

    def p0_compute(self, mid=None):
        a = self.a
        K, V, SH, KV, PK = 56, 78, 94, 102, self.PK
        self.p0_reads()
        a.wait_lg_all()
        d = self.SHRAW
        for j, (x, y, hi) in enumerate([(d, d + 2, 0), (d, d + 2, 1), (d + 1, d + 3, 0), (d + 1, d + 3, 1)]):
            for o, src in ((0, x), (1, y)):
                if hi:
                    a("v_and_b32 v%d, s%d, v%d" % (SH + 2 * j + o, sHI, src))
                else:
                    a("v_lshlrev_b32 v%d, 16, v%d" % (SH + 2 * j + o, src))
        for i in range(11):
            a("v_lshlrev_b32 v%d, 16, v%d" % (K + 2 * i, self.KRAW + i))
            a("v_and_b32 v%d, s%d, v%d" % (K + 2 * i + 1, sHI, self.KRAW + i))
            if i % 4 == 3:
                self.fill(1)
        for i in range(8):
            a("v_lshlrev_b32 v%d, 16, v%d" % (V + 2 * i, self.VRAW + i))
            a("v_and_b32 v%d, s%d, v%d" % (V + 2 * i + 1, sHI, self.VRAW + i))
        self.fill(1)
        for t in range(8):
            a("v_pk_mul_f32 %s, %s, %s" % (vr(KV + 2 * t, 2), vr(K + 2 * (t + 3), 2), vr(SH, 2)))
        self.fill(1)
        for j in range(1, 4):
            for t in range(8):
                a("v_pk_fma_f32 %s, %s, %s, %s" % (vr(KV + 2 * t, 2), vr(K + 2 * (t + 3 - j), 2), vr(SH + 2 * j, 2),
                                                   vr(KV + 2 * t, 2)))
            self.fill(1)
        if mid:
            mid()
            self.fill(4)
        for t in range(8):
            a("v_pk_mul_f32 %s, %s, %s" % (vr(KV + 2 * t, 2), vr(KV + 2 * t, 2), vr(V + 2 * t, 2)))
        self.fill(1)
        for c in range(2):
            for t in range(4):
                a("v_cvt_pk_bf16_f32 v%d, v%d, v%d" % (PK + 4 * c + t, KV + 4 * t + c, KV + 4 * t + 2 + c))
        a("s_lshl_b32 s%d, s%d, 1" % (sA, sW))
        a("v_add_u32 v26, s%d, v%d" % (sA, vHH))
        a("v_and_b32 v27, 7, v%d" % vN31)
        a("v_xor_b32 v26, v26, v27")
        a("v_lshlrev_b32 v26, 4, v26")
        a("v_lshl_add_u32 v26, v%d, 8, v26" % vN31)
        a("v_add_u32 v26, %d, v26" % LSTG)
        a.lds("ds_write_b128 v26, %s" % vr(PK, 4))
        a.lds("ds_write_b128 v26, %s offset:128" % vr(PK + 4, 4))
        self.fill_all()

    def p0_readback(self):
        a = self.a
        PK = 144
        a("v_lshrrev_b32 v26, 3, v%d" % vL)
        a("s_lshl_b32 s%d, s%d, 4" % (sA, sW))
        a("v_add_u32 v26, s%d, v26" % sA)
        a("v_and_b32 v27, 7, v%d" % vL)
        for i in range(2):
            a("v_add_u32 v28, %d, v26" % (8 * i))
            a("v_bfe_u32 v29, v28, 1, 3")
            a("v_xor_b32 v29, v29, v27")
            a("v_lshlrev_b32 v29, 4, v29")
            a("v_lshl_add_u32 v29, v28, 7, v29")
            a("v_add_u32 v29, %d, v29" % LSTG)
            a.lds("ds_read_b128 %s, v29" % vr(PK + 4 * i, 4), "pk")
        a("v_lshlrev_b32 v27, 4, v27")
        a("v_lshl_add_u32 v152, v26, 12, v27")

    def p0_store(self):
        a = self.a
        PK = 144
        a("s_lshl_b32 s%d, s%d, 18" % (sA, sC))
        a("s_lshl_b32 s%d, s%d, 7" % (sB, sR))
        a("s_add_u32 s%d, s%d, s%d" % (sA, sA, sB))
        a("s_add_u32 s%d, s%d, 0x%x" % (sA, sA, WS_KVT))
        a("s_add_u32 s%d, s%d, 0x8000" % (sB, sA))
        a.wait_lg("pk")
        a.vmem("buffer_store_dwordx4 %s, v152, %s, s%d offen sc1" % (vr(PK, 4), sr(S_WS, 4), sA), "kvt")
        a.vmem("buffer_store_dwordx4 %s, v152, %s, s%d offen sc1" % (vr(PK + 4, 4), sr(S_WS, 4), sB), "kvt")

    def conv_filter_loads(self, ch):
        a = self.a
        a("v_lshlrev_b32 v26, 4, v%d" % vTID)
        a("v_subrev_u32 v27, 8, v26")
        a("v_mov_b32 v28, 0x%x" % OOB)
        a("v_cmp_eq_u32 vcc, 0, v%d" % vTID)
        a("v_cndmask_b32 v27, v27, v28, vcc")
        a("s_lshl_b32 s%d, s2, 13" % sA)
        if ch:
            a("s_add_u32 s%d, s%d, 0x1000" % (sA, sA))
        dA, dP = vr(vCH, 4), vr(vCH + 4, 2)
        a.vmem("buffer_load_dwordx4 %s, v26, %s, s%d offen" % (dA, sr(S_SSM, 4), sA), "cf")
        a.vmem("buffer_load_dwordx2 %s, v27, %s, s%d offen" % (dP, sr(S_SSM, 4), sA), "cf")

    def ssm_d_load(self):
        a = self.a
        a("s_lshl_b32 s%d, s2, 2" % sA)
        a("s_load_dword s%d, %s, s%d" % (sD0, sr(S_DPTR, 2), sA))

    def ssm_d_unpack(self):
        a = self.a
        a("s_and_b32 s%d, s%d, s%d" % (sD1, sD0, sHI))
        a("s_lshl_b32 s%d, s%d, 16" % (sD0, sD0))

    def conv_x_loads(self, ch):
        a = self.a
        a("v_lshlrev_b32 v26, 4, v%d" % vTID)
        a("s_lshl_b32 s%d, s2, 13" % sA)
        a("s_add_u32 s%d, s%d, 0x%x" % (sA, sA, WS_KVT + 0x1000 * ch))
        a.vmem("buffer_load_dwordx4 %s, v26, %s, s%d offen sc1" % (vr(vCH + 6, 4), sr(S_WS, 4), sA), "cx")

    def conv_prep_filter(self, ch):
        a = self.a
        base = CV_BASE1 if ch else CV_BASE
        A, P = vCH, vCH + 4
        a.wait_vm("cf")
        a("v_min_u32 v26, 79, v%d" % vTID)
        a("v_subrev_u32 v27, 72, v26")
        a("v_lshrrev_b32 v28, 1, v27")
        a("v_mul_u32_u24 v28, 4128, v28")
        a("v_and_b32 v27, 1, v27")
        a("v_lshl_add_u32 v28, v27, 4, v28")
        a("v_add_u32 v28, %d, v28" % (base + CV_A))
        a("v_lshlrev_b32 v27, 4, v26")
        a("v_add_u32 v27, %d, v27" % (base + CV_X))
        a("v_cmp_gt_u32 vcc, 72, v26")
        a("v_cndmask_b32 v28, v28, v27, vcc")
        for i in range(4):
            a("v_mov_b32 v%d, 0" % (32 + i))
        a.lds("ds_write_b128 v28, %s" % vr(32, 4))
        Z, Y, W = 36, 40, 44
        seq = [P, P + 1, A, A + 1, A + 2, A + 3]
        for j in range(4):
            a("v_alignbit_b32 v%d, v%d, v%d, 16" % (Z + j, seq[j + 1], seq[j]))
            a("v_alignbit_b32 v%d, v%d, v%d, 16" % (Y + j, seq[j + 2], seq[j + 1]))
            a("v_mov_b32 v%d, v%d" % (W + j, seq[j + 1]))
        a("v_lshlrev_b32 v29, 4, v%d" % vTID)
        a("v_add_u32 v29, %d, v29" % base)
        for rho, src in ((0, A), (1, Y), (2, W), (3, Z)):
            a.lds("ds_write_b128 v29, %s offset:%d" % (vr(src, 4), CV_A + 32 + 4128 * rho))
        a.wait_lg_all()

    def conv_x_write(self, ch):
        a = self.a
        base = CV_BASE1 if ch else CV_BASE
        a.wait_vm("cx")
        a("v_lshlrev_b32 v29, 4, v%d" % vTID)
        a("v_add_u32 v29, %d, v29" % base)
        a.lds("ds_write_b128 v29, %s offset:%d" % (vr(vCH + 6, 4), CV_XD))
        a.wait_lg_all()

    def conv_poly(self, ch):
        a = self.a
        base = CV_BASE1 if ch else CV_BASE
        a("s_lshl_b32 s%d, s%d, 5" % (sA, sW))
        a("s_sub_u32 s%d, %d, s%d" % (sA, base + CV_XD - 1024, sA))
        a("v_lshl_add_u32 v26, v%d, 3, s%d" % (vL, sA))
        for u in range(10):
            a.lds("ds_read_b64_tr_b16 %s, v26 offset:%d" % (vr(32 + 2 * u, 2), 512 * u), "u%d" % u)
        a("s_mul_i32 s%d, s%d, 5312" % (sA, sW))
        a("s_add_u32 s%d, s%d, %d" % (sA, sA, base + CV_P))
        a("v_and_b32 v27, 15, v%d" % vL)
        a("v_mul_u32_u24 v27, 328, v27")
        a("v_lshrrev_b32 v28, 4, v%d" % vL)
        a("v_lshl_add_u32 v27, v28, 3, v27")
        a("v_add_u32 v27, s%d, v27" % sA)
        for u in range(10):
            a.wait_lg("u%d" % u)
            a.lds("ds_write_b64 v27, %s offset:%d" % (vr(32 + 2 * u, 2), 32 * u))
        a.wait_lg_all()

    def conv_addr(self, ch):
        a = self.a
        base = CV_BASE1 if ch else CV_BASE
        a("s_lshl_b32 s%d, s%d, 4" % (sA, sTH))
        a("s_sub_u32 s%d, %d, s%d" % (sA, base + CV_A + 24, sA))
        a("v_lshl_add_u32 v160, v%d, 3, s%d" % (vL, sA))
        a("s_mul_i32 s%d, s%d, 2624" % (sA, sTH))
        a("s_lshl_b32 s%d, s%d, 5" % (sB, sKH))
        a("s_add_u32 s%d, s%d, s%d" % (sA, sA, sB))
        a("s_add_u32 s%d, s%d, %d" % (sA, sA, base + CV_P + 32))
        a("v_bfe_u32 v26, v%d, 2, 2" % vL)
        a("v_mul_u32_u24 v26, 5312, v26")
        a("v_and_b32 v27, 3, v%d" % vL)
        a("v_lshrrev_b32 v28, 4, v%d" % vL)
        a("v_sub_u32 v27, v27, v28")
        a("v_lshl_add_u32 v26, v27, 3, v26")
        a("v_add_u32 v161, s%d, v26" % sA)

    CACC, CAF, CBF = 32, 64, 96

    def conv_main(self, hook=None, fill_every=0):
        a = self.a
        CACC, CAF, CBF = self.CACC, self.CAF, self.CBF

        def rd_list(it):
            b = it & 1
            u, rho = it >> 2, it & 3
            out = []
            order = [("A", 0), ("B", 0), ("B", 1), ("B", 2), ("B", 3), ("A", 1), ("A", 2), ("A", 3)]
            for kind, i in order:
                for hf in range(2):
                    if kind == "A":
                        out.append(("ds_read_b64_tr_b16 %s, v160 offset:%d"
                                    % (vr(CAF + 16 * b + 4 * i + 2 * hf, 2),
                                       4128 * rho + 8 * (1 - u) + 1024 * i + 512 * hf), "A%d_%d" % (it, i)))
                    else:
                        out.append(("ds_read_b64_tr_b16 %s, v161 offset:%d"
                                    % (vr(CBF + 16 * b + 4 * i + 2 * hf, 2), 328 * it + 64 * i + 32 * (1 - hf)),
                                    "B%d_%d" % (it, i)))
            return out

        for x, t in rd_list(0):
            a.lds(x, t)
        for it in range(8):
            if hook and it % 2 == 0:
                hook(it // 2)
            b = it & 1
            nxt = rd_list(it + 1) if it < 7 else []
            k = 0
            for q in range(4):
                for i in range(4 - q):
                    a.wait_lg("A%d_%d" % (it, q), "B%d_%d" % (it, i))
                    acc = vr(CACC + 4 * (i + q), 4)
                    a("%s %s, %s, %s, %s" % (MF16, acc, vr(CAF + 16 * b + 4 * q, 4), vr(CBF + 16 * b + 4 * i, 4),
                                             "0" if (it == 0 and q == 0) else acc))
                    for _ in range(2 if k < 6 else 1):
                        if nxt:
                            x, t = nxt.pop(0)
                            a.lds(x, t)
                    k += 1
            assert not nxt

    def conv_finish(self, ch):
        a = self.a
        base = CV_BASE1 if ch else CV_BASE
        CACC = self.CACC
        self.barrier()
        a("s_lshl_b32 s%d, s%d, 11" % (sA, sW))
        a("s_add_u32 s%d, s%d, %d" % (sA, sA, base + CV_R))
        a("v_add_u32 v26, s%d, v%d" % (sA, vL16))
        hi, done = a.newlabel("cvhi"), a.newlabel("cvsent")
        self.hold += 1
        a("s_cmp_lg_u32 s%d, 0" % sTH)
        a("s_cbranch_scc1 %s" % hi)
        for j in range(2):
            a("ds_write_b128 v26, %s offset:%d" % (vr(CACC + 8 + 4 * j, 4), 1024 * j))
        a("s_branch %s" % done)
        a.label(hi)
        for j in range(2):
            a("ds_write_b128 v26, %s offset:%d" % (vr(CACC + 4 * j, 4), 1024 * j))
        a.label(done)
        self.hold -= 1
        a("s_lshl_b32 s%d, s%d, 2" % (sE, sTH))
        a("s_add_u32 s%d, s%d, s%d" % (sE, sE, sKH))
        a("s_lshl_b32 s%d, s%d, 9" % (sE, sE))
        a("s_add_u32 s%d, s%d, %d" % (sA, sE, base + CV_XD))
        a("v_and_b32 v27, 15, v%d" % vL)
        a("v_lshlrev_b32 v27, 5, v27")
        a("v_lshrrev_b32 v28, 4, v%d" % vL)
        a("v_lshl_add_u32 v27, v28, 3, v27")
        a("v_add_u32 v27, s%d, v27" % sA)
        for u in range(2):
            a.lds("ds_read_b64 %s, v27 offset:%d" % (vr(100 + 2 * u, 2), 1024 * u))
        a.wait_lg_all()
        self.barrier()
        a("s_xor_b32 s%d, s%d, 2" % (sA, sW))
        a("s_lshl_b32 s%d, s%d, 11" % (sA, sA))
        a("s_add_u32 s%d, s%d, %d" % (sA, sA, base + CV_R))
        a("v_add_u32 v26, s%d, v%d" % (sA, vL16))
        for u in range(2):
            a.lds("ds_read_b128 %s, v26 offset:%d" % (vr(72 + 4 * u, 4), 1024 * u))
        for u in range(2):
            for j in range(2):
                a("v_lshlrev_b32 v%d, 16, v%d" % (104 + 4 * u + 2 * j, 100 + 2 * u + j))
                a("v_and_b32 v%d, s%d, v%d" % (105 + 4 * u + 2 * j, sHI, 100 + 2 * u + j))
        a("v_mov_b32 v112, s%d" % (sD1 if ch else sD0))
        a("v_lshrrev_b32 v26, 4, v%d" % vL)
        a("v_and_b32 v27, 1, v26")
        a("v_lshlrev_b32 v27, 10, v27")
        a("v_lshrrev_b32 v26, 1, v26")
        a("v_lshl_add_u32 v27, v26, 4, v27")
        a("v_and_b32 v26, 15, v%d" % vL)
        a("v_lshl_add_u32 v27, v26, 5, v27")
        a("v_add_u32 v27, s%d, v27" % sE)
        a("s_lshl_b32 s%d, s2, 13" % sA)
        a("s_add_u32 s%d, s%d, 0x%x" % (sA, sA, WS_YT + 0x1000 * ch))
        a.wait_lg_all()
        hi, done = a.newlabel("cvhi"), a.newlabel("cvsum")
        self.hold += 1
        a("s_cmp_lg_u32 s%d, 0" % sTH)
        a("s_cbranch_scc1 %s" % hi)
        for p in range(4):
            a("v_pk_add_f32 %s, %s, %s" % (vr(64 + 2 * p, 2), vr(CACC + 2 * p, 2), vr(72 + 2 * p, 2)))
        a("s_branch %s" % done)
        a.label(hi)
        for p in range(4):
            a("v_pk_add_f32 %s, %s, %s" % (vr(64 + 2 * p, 2), vr(CACC + 8 + 2 * p, 2), vr(72 + 2 * p, 2)))
        a.label(done)
        self.hold -= 1
        for p in range(4):
            a("v_pk_fma_f32 %s, %s, %s, %s op_sel_hi:[1,0,1]" % (vr(64 + 2 * p, 2), vr(104 + 2 * p, 2), vr(112, 2),
                                                                vr(64 + 2 * p, 2)))
        for p in range(4):
            a("v_cvt_pk_bf16_f32 v%d, v%d, v%d" % (116 + p, 64 + 2 * p, 65 + 2 * p))
        a("v_permlane16_swap_b32 v116, v118")
        a("v_permlane16_swap_b32 v117, v119")
        a.vmem("buffer_store_dwordx4 %s, v27, %s, s%d offen sc1" % (vr(116, 4), sr(S_WS, 4), sA), "yt")

    def s2_load_items(self):
        a = self.a
        a("s_lshl_b32 s%d, s%d, 5" % (sA, sT))
        a("v_add_u32 v26, s%d, v%d" % (sA, vN31))
        a("s_add_u32 s%d, s%d, 1" % (sB, sKH))
        a("s_lshl_b32 s%d, s%d, 14" % (sA, sKH))
        a("s_add_u32 s%d, s%d, 0x%x" % (sA, sA, WS_HS))
        a("v_mov_b32 v29, 0x%x" % OOB)
        for i, op in enumerate(("v_subrev_u32", "v_add_u32")):
            a("%s v27, s%d, v26" % (op, sB))
            a("v_lshrrev_b32 v28, 5, v27")
            a("v_lshlrev_b32 v28, 15, v28")
            a("v_and_b32 v30, 31, v27")
            a("v_lshl_add_u32 v30, v%d, 5, v30" % vHH)
            a("v_lshl_add_u32 v28, v30, 4, v28")
            a("v_add_u32 v28, s%d, v28" % sA)
            a("v_cmp_gt_u32 vcc, 0x800, v27")
            a("v_cndmask_b32 v%d, v29, v28, vcc" % (140 + i))
        so = ["0", "s%d" % sK4, "s%d" % sK8, "s%d" % sK12]
        items = []
        for ks in range(16):
            def f(ks=ks):
                a.vmem("buffer_load_dwordx4 %s, v%d, %s, %s offen offset:%d sc1"
                       % (ar(4 * ks, 4), 140 + (ks >> 3), sr(S_WS, 4), so[ks >> 2], (ks & 3) * 1024), "h%d" % ks)
            items.append(f)
        return items

    def wpi_addr(self, vk, vs, base, khs, ps):
        a = self.a
        a("s_mul_i32 s%d, s%d, %d" % (sA, sKH, khs + ps))
        a("s_add_u32 s%d, s%d, %d" % (sA, sA, base))
        a("v_add_u32 v%d, s%d, v%d" % (vk, sA, vWP))
        a("s_mul_i32 s%d, s%d, %d" % (sA, sKH, khs - ps))
        a("s_add_u32 s%d, s%d, %d" % (sA, sA, base + ps))
        a("v_add_u32 v%d, s%d, v%d" % (vs, sA, vWP))

    def s2_main(self):
        a = self.a
        ACK, ACS, AK, AS = self.ACK, self.ACS, self.AK, self.AS

        def rd(ks, which):
            base, addr = ((AK, 128), (AS, 129))[which]
            for hf in range(2):
                a.lds("ds_read_b64_tr_b16 %s, v%d offset:%d" % (vr(base + 4 * (ks & 1) + 2 * hf, 2), addr,
                                                                ks * 1024 + hf * 512), "f%d_%d" % (ks, which))
        rd(0, 0)
        rd(0, 1)
        for ks in range(16):
            b = ks & 1
            a.wait_both("h%d" % ks, "f%d_0" % ks)
            a("%s %s, %s, %s, %s" % (MF32, vr(ACK, 16), vr(AK + 4 * b, 4), ar(4 * ks, 4), "0" if ks == 0 else vr(ACK, 16)))
            if ks < 15:
                rd(ks + 1, 0)
            self.fill(1)
            a.wait_lg("f%d_1" % ks)
            a("%s %s, %s, %s, %s" % (MF32, vr(ACS, 16), vr(AS + 4 * b, 4), ar(4 * ks, 4), "0" if ks == 0 else vr(ACS, 16)))
            if ks < 15:
                rd(ks + 1, 1)
            if ks in (0, 4, 9, 12):
                self.stamp("s2k%d" % ks)

    def unpack8(self, src, dst):
        a = self.a
        for j in range(8):
            a("v_lshlrev_b32 v%d, 16, v%d" % (dst + 2 * j, src + j))
            a("v_and_b32 v%d, s%d, v%d" % (dst + 2 * j + 1, sHI, src + j))

    def xn_tile(self, dst):
        a = self.a
        self.unpack8(vQ, dst)
        for p in range(8):
            a("v_pk_add_f32 %s, %s, %s op_sel_hi:[1,0] neg_lo:[0,1] neg_hi:[0,1]"
              % (vr(dst + 2 * p, 2), vr(dst + 2 * p, 2), vr(vMEAN, 2)))
        for p in range(8):
            a("v_pk_mul_f32 %s, %s, %s op_sel:[0,1] op_sel_hi:[1,1]"
              % (vr(dst + 2 * p, 2), vr(dst + 2 * p, 2), vr(vMEAN, 2)))

    def s2_epilogue(self, after_exchange):
        a = self.a
        ACK, ACS = self.ACK, self.ACS
        self.exchange_write(ACS)
        self.xn_tile(96)
        a.wait_lg_all()
        self.barrier()
        after_exchange()
        self.exchange_read(80)
        for p in range(8):
            a("v_pk_add_f32 %s, %s, %s" % (vr(ACK + 2 * p, 2), vr(ACK + 2 * p, 2), vr(96 + 2 * p, 2)))
        a.wait_lg_all()
        for p in range(8):
            a("v_pk_add_f32 %s, %s, %s" % (vr(ACK + 2 * p, 2), vr(ACK + 2 * p, 2), vr(80 + 2 * p, 2)))
        for p in range(8):
            a("v_cvt_pk_bf16_f32 v%d, v%d, v%d" % (vX1 + p, ACK + 2 * p, ACK + 2 * p + 1))
        self.frag_store(vX1, WS_X1, "x1st")
        a("v_pk_mul_f32 %s, %s, %s" % (vr(112, 2), vr(ACK, 2), vr(ACK, 2)))
        a("v_pk_add_f32 %s, %s, %s" % (vr(114, 2), vr(ACK, 2), vr(ACK + 2, 2)))
        for p in range(1, 8):
            a("v_pk_fma_f32 %s, %s, %s, %s" % (vr(112, 2), vr(ACK + 2 * p, 2), vr(ACK + 2 * p, 2), vr(112, 2)))
            if p >= 2:
                a("v_pk_add_f32 %s, %s, %s" % (vr(114, 2), vr(114, 2), vr(ACK + 2 * p, 2)))
        a("v_add_f32 v114, v114, v115")
        a("v_add_f32 v112, v112, v113")
        a("v_permlane32_swap_b32 v114, v112")
        a("v_add_f32 v114, v114, v112")
        a("s_lshl_b32 s%d, s%d, 1" % (sA, sC))
        a("s_add_u32 s%d, s%d, s%d" % (sA, sA, sKH))
        a("s_lshl_b32 s%d, s%d, 14" % (sA, sA))
        a("s_lshl_b32 s%d, s%d, 7" % (sB, sT))
        a("s_add_u32 s%d, s%d, s%d" % (sA, sA, sB))
        a("s_add_u32 s%d, s%d, 0x%x" % (sA, sA, WS_ST))
        a("v_lshlrev_b32 v26, 13, v%d" % vHH)
        a("v_lshl_add_u32 v26, v%d, 2, v26" % vN31)
        a.vmem("buffer_store_dword v114, v26, %s, s%d offen sc1" % (sr(S_WS, 4), sA), "x1st")

    def w3_setup(self):
        a = self.a
        a("s_movk_i32 s%d, 3584" % sB)
        a("v_lshrrev_b32 v26, 2, v%d" % vL)
        a("v_mul_lo_u32 v26, v26, s%d" % sB)
        a("v_and_b32 v27, 3, v%d" % vL)
        a("v_lshl_add_u32 v%d, v27, 4, v26" % vW3F)
        a("v_lshrrev_b32 v26, 1, v%d" % vL)
        a("v_mul_lo_u32 v26, v26, s%d" % sB)
        a("v_and_b32 v27, 1, v%d" % vL)
        a("v_lshl_add_u32 v%d, v27, 4, v26" % vW3H)
        a("s_mul_i32 s%d, s%d, %d" % (sW3HG, sW, 128 * 3584))
        a("s_mul_i32 s%d, s%d, 224" % (sA, sCP))
        a("s_add_u32 s%d, s%d, s%d" % (sW3HG, sW3HG, sA))
        a("s_and_b32 s%d, s%d, 1" % (sB, sCP))
        a("s_lshl_b32 s%d, s%d, 5" % (sW3G, sB))
        a("s_add_u32 s%d, s%d, s%d" % (sW3G, sW3G, sW3HG))
        a("s_xor_b32 s%d, s%d, 1" % (sB, sB))
        a("s_mul_i32 s%d, s%d, 192" % (sB, sB))
        a("s_add_u32 s%d, s%d, s%d" % (sW3HG, sW3HG, sB))
        a("s_lshl_b32 s%d, s%d, 13" % (sW3L, sW))
        a("s_lshl_b32 s%d, s%d, 12" % (sW3HL, sW))

    def w3_items(self, panels):
        out = []
        for p in panels:
            if p < 3:
                for i in range(8):
                    out.append(self.dma_item(S_W3, vW3F, sW3L, W3_P + p * 32768 + i * 1024, sW3G,
                                             p * 64 + i * 16 * 3584, "w3"))
            else:
                for i in range(4):
                    out.append(self.dma_item(S_W3, vW3H, sW3HL, W3_H + i * 1024, sW3HG, i * 32 * 3584, "w3"))
        return out

    def s3_load_items(self):
        a = self.a
        a("s_lshl_b32 s%d, s%d, 15" % (sLD, sT3))
        a("s_add_u32 s%d, s%d, 0x%x" % (sLD, sLD, WS_X1))
        items = []
        for ks in range(32):
            def f(ks=ks):
                if ks and ks % 4 == 0:
                    a("s_add_u32 s%d, s%d, 0x1000" % (sLD, sLD))
                a.vmem("buffer_load_dwordx4 %s, v%d, %s, s%d offen offset:%d sc1"
                       % (ar(4 * (ks % 16), 4), vL16, sr(S_WS, 4), sLD, (ks & 3) * 1024), "x%d" % ks)
            items.append(f)
        return items

    def s3_stat_items(self):
        a = self.a
        a("v_lshlrev_b32 v147, 13, v%d" % vHH)
        a("v_lshl_add_u32 v147, v%d, 2, v147" % vN31)
        items = []
        for sl in range(16):
            def f(sl=sl):
                a("s_lshl_b32 s%d, s%d, 7" % (sSO, sT3))
                a("s_add_u32 s%d, s%d, 0x%x" % (sSO, sSO, WS_ST + 0x4000 * sl))
                a.vmem("buffer_load_dword v%d, v147, %s, s%d offen sc1" % (vST + sl, sr(S_WS, 4), sSO), "st")
            items.append(f)
        return items

    def s3_addr(self):
        a = self.a
        a("v_add_u32 v144, %d, v%d" % (W3_P, vWP))
        a("v_add_u32 v145, %d, v%d" % (W3_P + 65536, vWP))
        a("v_bfe_u32 v26, v%d, 2, 2" % vL)
        a("v_lshl_add_u32 v26, v%d, 2, v26" % vHH)
        a("v_and_b32 v27, 3, v%d" % vL)
        a("v_lshlrev_b32 v27, 3, v27")
        a("v_lshl_add_u32 v26, v26, 5, v27")
        a("v_add_u32 v146, %d, v26" % W3_H)

    @staticmethod
    def w3_read(p, ks, hf, dst):
        if p < 2:
            return "ds_read_b64_tr_b16 %s, v144 offset:%d" % (vr(dst, 2), p * 32768 + ks * 1024 + hf * 512)
        if p == 2:
            return "ds_read_b64_tr_b16 %s, v145 offset:%d" % (vr(dst, 2), ks * 1024 + hf * 512)
        return "ds_read_b64_tr_b16 %s, v146 offset:%d" % (vr(dst, 2), ks * 512 + hf * 256)

    def s3_colsum(self):
        self.hold += 1
        self._s3_colsum()
        self.hold -= 1

    def _s3_colsum(self):
        a = self.a
        full = a.newlabel("csfull")
        done = a.newlabel("csdone")
        self.selector(120)
        a("s_cmp_lt_u32 s%d, 3" % sW)
        a("s_cbranch_scc1 %s" % full)
        for is_full in (False, True):
            if is_full:
                a.label(full)
                a("s_lshl_b32 s%d, s%d, 15" % (sA, sW))
                a("v_add_u32 v148, s%d, v144" % sA)
            stride, hstep, addr = (1024, 512, 148) if is_full else (512, 256, 146)
            saved = list(a.lg)
            a.lg = []

            def rd(ks):
                for hf in range(2):
                    a.lds("ds_read_b64_tr_b16 %s, v%d offset:%d" % (vr(96 + 4 * (ks % 6) + 2 * hf, 2), addr,
                                                                    ks * stride + hf * hstep), "c%d" % ks)
            for ks in range(5):
                rd(ks)
            for ks in range(32):
                a.wait_lg("c%d" % ks)
                a("%s %s, %s, %s, %s" % (MF16, vr(32 + 4 * (ks & 1), 4), vr(96 + 4 * (ks % 6), 4), vr(120, 4),
                                         "0" if ks < 2 else vr(32 + 4 * (ks & 1), 4)))
                if ks + 5 < 32:
                    rd(ks + 5)
            a.lg = saved
            if not is_full:
                a("s_branch %s" % done)
        a.label(done)
        a("v_pk_add_f32 v[32:33], v[32:33], v[36:37]")
        a("v_pk_add_f32 v[34:35], v[34:35], v[38:39]")
        a("s_lshl_b32 s%d, s%d, 7" % (sA, sW))
        a("s_add_u32 s%d, s%d, %d" % (sA, sA, LCS3))
        self.colsum_write(32, sA)
        a.wait_lg_all()

    S3G = 128

    def s3_shadow_ops(self):
        G = self.S3G
        ops = []
        for s in (8, 4, 2, 1):
            for i in range(s):
                ops.append("v_add_f32 v%d, v%d, v%d" % (vST + i, vST + i, vST + i + s))
        ops += ["v_mov_b32 v%d, v%d" % (vST + 1, vST),
                "v_lshlrev_b32 v28, 4, v%d" % vHH,
                "v_add_u32 v149, %d, v28" % LCS3,
                "v_permlane32_swap_b32 v%d, v%d" % (vST, vST + 1),
                "s_mul_i32 s%d, s%d, 114688" % (sD, sT3),
                "v_mul_f32 v%d, s%d, v%d" % (vST + 2, s512I, vST),
                "s_mul_i32 s%d, s%d, 7168" % (sA, sCP),
                "v_mul_f32 v26, s%d, v%d" % (s512I, vST + 1),
                "s_add_u32 s%d, s%d, s%d" % (sD, sD, sA),
                "v_fma_f32 v26, -v%d, v%d, v26" % (vST + 2, vST + 2),
                "s_add_u32 s%d, s%d, 0x%x" % (sD, sD, WS_HH),
                "v_max_f32 v26, 0, v26",
                "s_and_b32 s%d, s%d, 1" % (sB, sCP),
                "v_add_f32 v26, s%d, v26" % sEPS,
                "s_lshl_b32 s%d, s%d, 10" % (sE, sB),
                "v_rsq_f32 v27, v26",
                "s_add_u32 s%d, s%d, s%d" % (sE, sE, sD),
                "v_sub_f32 v%d, 0, v%d" % (G + 4, vST + 2),
                "s_xor_b32 s%d, s%d, 1" % (sB, sB),
                "v_mul_f32 v%d, s%d, v27" % (G, sKG1),
                "s_mul_i32 s%d, s%d, 6144" % (sB, sB),
                "v_mul_f32 v%d, v27, v27" % (G + 1),
                "s_add_u32 s%d, s%d, s%d" % (sF, sD, sB),
                "v_mul_f32 v%d, v%d, v27" % (G + 1, G + 1),
                "v_mul_f32 v%d, s%d, v%d" % (G + 1, sKG3, G + 1),
                "v_rcp_f32 v%d, v27" % (G + 2)]
        return ops

    def s3_csread(self, p):
        a = self.a
        n = 16 if p < 3 else 8
        for j in range(n // 4):
            a.lds("ds_read_b128 %s, v149 offset:%d" % (vr(96 + 16 * (p & 1) + 4 * j, 4), 128 * p + 32 * j), "cs%d" % p)

    def s3_main(self, mid):
        a = self.a
        AF = 96
        shadow = self.s3_shadow_ops() if self.opt.get("s3sh", 1) else []
        self.s3_left = shadow
        first = self.opt.get("s3sh0", 24)

        def rd(ks, p):
            for hf in range(2):
                a.lds(self.w3_read(p, ks, hf, AF + 16 * (ks & 1) + 4 * p + 2 * hf), "f%d_%d" % (ks, p))
        for p in range(4):
            rd(0, p)
        for ks in range(32):
            b = ks & 1
            if ks == first and shadow:
                a.wait_vm("st")
            for p in range(4):
                if p == 0:
                    a.wait_both("x%d" % ks, "f%d_0" % ks)
                else:
                    a.wait_lg("f%d_%d" % (ks, p))
                acc = vr(32 + 16 * p, 16)
                a("%s %s, %s, %s, %s" % (MF32, acc, vr(AF + 16 * b + 4 * p, 4), ar(4 * (ks % 16), 4),
                                         "0" if ks == 0 else acc))
                if ks < 31:
                    rd(ks + 1, p)
                if p in (0, 2):
                    self.fill(1)
                if ks >= first:
                    for _ in range(2):
                        if shadow:
                            a(shadow.pop(0))
            if ks == self.opt.get("s3mid", 18):
                mid()
            if ks in (7, 15, 23) and self.opt.get("s3st", 0):
                self.stamp("s3k%d" % ks)

    def s3_epilogue(self, after_tile):
        a = self.a
        G = self.S3G
        if not self.opt.get("s3sh", 1):
            a.wait_vm("st")
            self.s3_left = self.s3_shadow_ops()
        for x in self.s3_left:
            a(x)
        csread = self.s3_csread
        csread(0)
        for p in range(4):
            n = 16 if p < 3 else 8
            C = 96 + 16 * (p & 1)
            if p < 3:
                csread(p + 1)
            a.wait_lg("cs%d" % p)
            acc = 32 + 16 * p
            for i in range(n // 2):
                a("v_pk_fma_f32 %s, %s, %s, %s op_sel_hi:[1,0,1]"
                  % (vr(acc + 2 * i, 2), vr(C + 2 * i, 2), vr(G + 4, 2), vr(acc + 2 * i, 2)))
            out = 152 + 8 * (p & 1)
            self.gelu(acc, n, G, G + 2, 176, out, fills=0)
            if p < 3:
                a("s_add_u32 s%d, s%d, %d" % (sA, sE, 2048 * p))
                a.vmem("buffer_store_dwordx4 %s, v%d, %s, s%d offen sc1" % (vr(out, 4), vL16, sr(S_WS, 4), sA), "Hst")
                a.vmem("buffer_store_dwordx4 %s, v%d, %s, s%d offen offset:1024 sc1"
                       % (vr(out + 4, 4), vL16, sr(S_WS, 4), sA), "Hst")
            else:
                a.vmem("buffer_store_dwordx4 %s, v%d, %s, s%d offen sc1" % (vr(out, 4), vL16, sr(S_WS, 4), sF), "Hst")
            after_tile(p)

    def w4_setup(self):
        a = self.a
        a("s_lshl_b32 s%d, s%d, 11" % (sW4L, sKH))
        a("s_lshl_b32 s%d, s%d, 10" % (sA, sTH))
        a("s_add_u32 s%d, s%d, s%d" % (sW4L, sW4L, sA))
        a("s_mul_i32 s%d, s%d, %d" % (sW4G, sKH, 896 * 1024))
        self.feat0(sA, sTH, 1)
        a("s_add_u32 s%d, s%d, s%d" % (sW4G, sW4G, sA))
        for i in range(8):
            if self.opt.get("rot4", 0):
                a("s_add_u32 s%d, s%d, %d" % (sA, sC, i))
                a("s_and_b32 s%d, s%d, 7" % (sA, sA))
                a("s_mul_i32 s%d, s%d, %d" % (sA, sA, 7 * 16384))
                a("s_add_u32 s%d, s%d, s%d" % (self.SW4B + i, sW4G, sA))
            else:
                a("s_add_u32 s%d, s%d, %d" % (self.SW4B + i, sW4G, i * 7 * 16384))

    SW4B = 12
    W4R = 56

    def w4_reg_loads(self, ks0, ks1):
        def item(ks):
            def f():
                a = self.a
                a("s_add_u32 s%d, s%d, %d" % (sSO, self.SW4B + ks // 7, (ks % 7) * 16384))
                a.vmem("buffer_load_dwordx4 %s, v%d, %s, s%d offen" % (vr(self.W4R + 4 * (ks - W4_B), 4), vW64,
                                                                     sr(S_W4, 4), sSO), "w4r")
                a.check_vm_depth()
            return f
        return [item(ks) for ks in range(ks0, ks1)]

    def w4_reg_writes(self, ks0, ks1):
        def f():
            a = self.a
            a.wait_vm("w4r")
            for i in range(3):
                a("v_add_u32 v%d, s%d, v%d" % (28 + i, sW4L, vL16))
                if i:
                    a("v_add_u32 v%d, %d, v%d" % (28 + i, 65536 * i, 28 + i))
            for ks in range(ks0, ks1):
                off = w4_off(ks)
                if self.opt.get("x_nowr", 0):
                    continue
                a.lds("ds_write_b128 v%d, %s offset:%d" % (28 + off // 65536, vr(self.W4R + 4 * (ks - W4_B), 4),
                                                           off % 65536))
                pace = self.opt.get("wpace", 0)
                if pace and (ks - ks0) % pace == pace - 1:
                    a.wait_lg_all()
            a.wait_lg_all()
        return f

    def w4_items(self, ks0, ks1, tag):
        return [self.dma_item(S_W4, vW64, sW4L, w4_off(ks), self.SW4B + ks // 7, (ks % 7) * 16384, tag)
                for ks in range(ks0, ks1)]

    def hring(self, ks):
        n = self.opt.get("hring", 24)
        i = ks % n
        return ar(4 * i, 4) if i < 16 else vr(64 + 4 * (i - 16), 4)

    def s4_load_items(self):
        a = self.a
        a("s_mul_i32 s%d, s%d, %d" % (sLD, sT, 0 if self.opt.get("x_hot", 0) else 114688))
        a("s_mul_i32 s%d, s%d, %d" % (sB, sKH, 56 * 1024))
        a("s_add_u32 s%d, s%d, s%d" % (sLD, sLD, sB))
        a("s_add_u32 s%d, s%d, 0x%x" % (sLD, sLD, WS_HH))
        items = []
        for ks in range(56):
            def f(ks=ks):
                i, t = divmod(ks, 7)
                if t == 0:
                    if self.opt.get("rot4", 0):
                        a("s_add_u32 s%d, s%d, %d" % (sW4L, sC, i))
                        a("s_and_b32 s%d, s%d, 7" % (sW4L, sW4L))
                        a("s_mul_i32 s%d, s%d, 7168" % (sW4L, sW4L))
                        a("s_add_u32 s%d, s%d, s%d" % (sW4L, sW4L, sLD))
                    else:
                        a("s_add_u32 s%d, s%d, %d" % (sW4L, sLD, i * 7168))
                if t == 4:
                    a("s_add_u32 s%d, s%d, 0x1000" % (sW4L, sW4L))
                a.vmem("buffer_load_dwordx4 %s, v%d, %s, s%d offen offset:%d sc1"
                       % (self.hring(ks), vL16, sr(S_WS, 4), sW4L, (t & 3) * 1024), "H%d" % ks)
                a.check_vm_depth()
            items.append(f)
        return items

    Y_LDS = 49152

    def s4_y_loads(self):
        a = self.a
        self.feat0(sE, sKH, 12)
        a("s_lshl_b32 s%d, s%d, 6" % (sB, sT))
        a("s_add_u32 s%d, s%d, s%d" % (sE, sE, sB))
        a("s_add_u32 s%d, s%d, 0x%x" % (sE, sE, WS_YT))
        a("s_add_u32 s%d, s%d, 0x10000" % (sB, sE))
        a("v_lshrrev_b32 v147, 2, v%d" % vL)
        a("v_lshlrev_b32 v147, 12, v147")
        a("v_and_b32 v26, 3, v%d" % vL)
        a("v_lshl_add_u32 v147, v26, 4, v147")
        a.vmem("buffer_load_dwordx4 %s, v147, %s, s%d offen sc1" % (vr(vST, 4), sr(S_WS, 4), sE), "y")
        a.vmem("buffer_load_dwordx4 %s, v147, %s, s%d offen sc1" % (vr(vST + 4, 4), sr(S_WS, 4), sB), "y")

    def s4_y_write(self):
        a = self.a
        a.wait_vm("y")
        a("s_lshl_b32 s%d, s%d, 11" % (sB, sW))
        a("s_add_u32 s%d, s%d, %d" % (sB, sB, self.Y_LDS))
        a("v_add_u32 v147, s%d, v%d" % (sB, vL16))
        a.lds("ds_write_b128 v147, %s" % vr(vST, 4), "yw")
        a.lds("ds_write_b128 v147, %s offset:1024" % vr(vST + 4, 4), "yw")
        a("v_add_u32 v147, s%d, v%d" % (sB, vWP))

    def s4_y_read(self):
        a = self.a
        a.wait_lg("yw")
        for q in range(4):
            a.lds("ds_read_b64_tr_b16 %s, v147 offset:%d" % (vr(vST + 8 + 2 * q, 2), 512 * q), "yr")

    XN4, BASE4 = 112, 148

    def s4_shadow_ops(self):
        XN, B = self.XN4, self.BASE4
        pre, post = [], []
        for j in range(8):
            pre.append("v_lshlrev_b32 v%d, 16, v%d" % (XN + 2 * j, vQ + j))
            pre.append("v_and_b32 v%d, s%d, v%d" % (XN + 2 * j + 1, sHI, vQ + j))
            pre.append("v_lshlrev_b32 v%d, 16, v%d" % (B + 2 * j, vX1 + j))
            pre.append("v_and_b32 v%d, s%d, v%d" % (B + 2 * j + 1, sHI, vX1 + j))
        for r in range(16):
            pre.append("v_add_f32 v%d, v%d, v%d" % (B + r, B + r, XN + r))
            pre.append("v_sub_f32 v%d, v%d, v%d" % (XN + r, XN + r, vMEAN))
            pre.append("v_mul_f32 v%d, v%d, v%d" % (XN + r, XN + r, vR1))
        for j in range(8):
            post.append("v_lshlrev_b32 v26, 16, v%d" % (vST + 8 + j))
            post.append("v_and_b32 v27, s%d, v%d" % (sHI, vST + 8 + j))
            post.append("v_fmac_f32 v%d, v%d, v26" % (B + 2 * j, XN + 2 * j))
            post.append("v_fmac_f32 v%d, v%d, v27" % (B + 2 * j + 1, XN + 2 * j + 1))
        return pre, post

    def s4_out_addr(self):
        a = self.a
        a("s_lshl_b32 s%d, s%d, 15" % (sE, sT))
        self.feat0(sB, sKH, 1)
        a("s_add_u32 s%d, s%d, s%d" % (sE, sE, sB))
        a("v_lshlrev_b32 v146, 10, v%d" % vN31)
        a("v_lshl_add_u32 v146, v%d, 4, v146" % vHH)
        a("v_add_u32 v146, s%d, v146" % sE)

    def s4_addr(self):
        a = self.a
        self.wpi_addr(128, 131, 0, 2048, 1024)
        for i in (1, 2):
            a("v_add_u32 v%d, %d, v128" % (128 + i, 65536 * i))
            a("v_add_u32 v%d, %d, v131" % (131 + i, 65536 * i))

    def s4_main(self, hitems):
        a = self.a
        ACK, ACS, AK, AS = self.ACK, self.ACS, self.AK, self.AS

        def rd(ks, which):
            off = w4_off(ks)
            base, addr = ((AK, 128), (AS, 131))[which]
            for hf in range(2):
                a.lds("ds_read_b64_tr_b16 %s, v%d offset:%d"
                      % (vr(base + 4 * (ks & 1) + 2 * hf, 2), addr + off // 65536, off % 65536 + hf * 512),
                      "f%d_%d" % (ks, which))
        pre, post = self.s4_shadow_ops()
        yq = []
        f1, f2 = self.opt.get("f1", 10), self.opt.get("f2", 18)
        xb = self.opt.get("x_nobar", 0)
        if xb:
            self.h("s_endpgm")
        else:
            self.hact(self.w4_reg_writes(W4_B, W4_C))
        rd(0, 0)
        rd(0, 1)
        for ks in range(56):
            ahead = ks < 55
            b = ks & 1
            B = self.hring(ks)
            if self.opt.get("x_nowait", 0):
                a.wait_lg("f%d_0" % ks)
            else:
                a.wait_both("H%d" % ks, "f%d_0" % ks)
            a("%s %s, %s, %s, %s" % (MF32, vr(ACK, 16), vr(AK + 4 * b, 4), B, "0" if ks == 0 else vr(ACK, 16)))
            if ahead:
                rd(ks + 1, 0)
            if hitems and ks >= 1:
                hitems.pop(0)()
            a.wait_lg("f%d_1" % ks)
            a("%s %s, %s, %s, %s" % (MF32, vr(ACS, 16), vr(AS + 4 * b, 4), B, "0" if ks == 0 else vr(ACS, 16)))
            if ahead:
                rd(ks + 1, 1)
            for _ in range(self.opt.get("npre", 3)):
                if pre and ks >= 2:
                    a(pre.pop(0))
            if ks == self.opt.get("cvflag", 9):
                self.conv_wave_flag()
            if ks == 56 - W4_C - 1 and not xb:
                self.barrier()
                self.hact(self.w4_reg_writes(W4_C, 56))
            if ks == self.opt.get("ycheck", 38) - self.opt.get("ygap", 12) and not self.opt.get("x_noy", 0):
                self.idx_cv()
                self.poll_issue(F_CV, "pcv")
            if ks == self.opt.get("ycheck", 38) and not self.opt.get("x_noy", 0):
                self.poll_check("pcv", 4)
                self.s4_y_loads()
            if ks == self.opt.get("b2", 30) and not xb:
                self.barrier()
                if self.opt.get("barstamps", 0):
                    h = self.h
                    lab = h.newlabel("nobs")
                    h("s_cmp_lg_u32 s%d, 0" % sW)
                    h("s_cbranch_scc1 %s" % lab)
                    h("s_lshl_b32 s%d, s2, 8" % sA)
                    h("s_add_u32 s%d, s%d, 0x%x" % (sA, sA, WS_STAMP + 0x20000))
                    h("v_lshlrev_b32 v26, 2, v%d" % vL)
                    h("buffer_store_dword v55, v26, %s, s%d offen" % (sr(S_WS, 4), sA))
                    h("s_waitcnt vmcnt(0)")
                    h.label(lab)
                self.hact(self.nonce_update)
                self.hrun()
                self.h("s_endpgm")
            if not self.opt.get("x_noy", 0):
                if ks == self.opt.get("ywr", 51):
                    self.s4_y_write()
                if ks == self.opt.get("ywr", 51) + 2:
                    self.s4_y_read()
            if ks in (8, 16, 27, 38, 47):
                self.stamp("s4k%d" % ks)
        for x in pre:
            a(x)
        assert not hitems
        self.s4_out_addr()
        self.s4_post = post

    def s4_epilogue(self):
        a = self.a
        ACK, ACS, B = self.ACK, self.ACS, self.BASE4
        self.exchange_write(ACS, S4_RED)
        a.wait_lg("yr")
        for x in self.s4_post:
            a(x)
        for p in range(8):
            a("v_pk_add_f32 %s, %s, %s" % (vr(ACK + 2 * p, 2), vr(ACK + 2 * p, 2), vr(B + 2 * p, 2)))
        a.wait_lg_all()
        a("s_barrier")
        self.exchange_read(80, S4_RED)
        a.wait_lg_all()
        for p in range(8):
            a("v_pk_add_f32 %s, %s, %s" % (vr(ACK + 2 * p, 2), vr(ACK + 2 * p, 2), vr(80 + 2 * p, 2)))
        for p in range(8):
            a("v_cvt_pk_bf16_f32 v%d, v%d, v%d" % (48 + p, ACK + 2 * p, ACK + 2 * p + 1))
        for j in (0, 4):
            a("v_permlane32_swap_b32 v%d, v%d" % (48 + j, 50 + j))
            a("v_permlane32_swap_b32 v%d, v%d" % (49 + j, 51 + j))
        a.vmem("buffer_store_dwordx4 %s, v146, %s, 0 offen" % (vr(48, 4), sr(S_OUT, 4)), "out")
        a.vmem("buffer_store_dwordx4 %s, v146, %s, 0 offen offset:32" % (vr(52, 4), sr(S_OUT, 4)), "out")

    def nonce_update(self):
        a = self.a
        self.hold += 1
        skip = a.newlabel("nonce")
        a("s_cmp_lg_u32 s2, 0")
        a("s_cbranch_scc1 %s" % skip)
        a("s_cmp_lg_u32 s%d, 0" % sW)
        a("s_cbranch_scc1 %s" % skip)
        saved = list(a.vm)
        for i in range(4):
            a("v_add_u32 v28, %d, v%d" % (64 * i, vL))
            a("v_lshlrev_b32 v28, 2, v28")
            self.poll_issue(F_P0, "pn")
            self.poll_check("pn", 6)
        a.vm = saved
        a("v_mov_b32 v26, 0")
        a("v_mov_b32 v27, s%d" % sN)
        a("s_mov_b64 exec, 1")
        a("buffer_store_dword v27, v26, %s, 0 offen sc1" % sr(S_WS, 4))
        a("s_mov_b64 exec, -1")
        a.label(skip)
        self.hold -= 1

    def finish(self):
        a = self.a
        a.wait_vm_all()
        if self.opt.get("delay", 0):
            lab = a.newlabel("delay")
            a("s_mov_b32 s%d, %d" % (sA, self.opt["delay"] // 64))
            a.label(lab)
            for _ in range(15):
                a("v_mov_b32 v26, v27")
            a("s_sub_u32 s%d, s%d, 1" % (sA, sA))
            a("s_cmp_lg_u32 s%d, 0" % sA)
            a("s_cbranch_scc1 %s" % lab)
        if self.opt.get("dbgtime", 0):
            a("s_memrealtime %s" % sr(sSTA, 2))
            a("s_memtime s[96:97]")
            a("s_waitcnt lgkmcnt(0)")
            a("s_sub_u32 s%d, s%d, s3" % (sSTA, sSTA))
            a("s_sub_u32 s96, s96, s98")
            a("v_mov_b32 v26, 0")
            a("v_mov_b32 v27, s%d" % sSTA)
            a("v_mov_b32 v28, s96")
            a("s_mov_b64 exec, 1")
            a("global_atomic_umax v26, v27, %s" % sr(S_DBG, 2))
            a("global_atomic_umax v26, v28, %s offset:4" % sr(S_DBG, 2))
            a("s_waitcnt vmcnt(0)")
            a("s_mov_b64 exec, -1")
        if self.stamps:
            self.stamp("end")
            skip = a.newlabel("nostamp")
            a("s_cmp_lg_u32 s%d, 0" % sW)
            a("s_cbranch_scc1 %s" % skip)
            if self.opt.get("dbgstamps", 0):
                lab = a.newlabel("nodbg")
                a("s_cmp_lg_u32 s2, %d" % (self.opt["dbgstamps"] - 1))
                a("s_cbranch_scc1 %s" % lab)
                a("v_readlane_b32 s%d, v%d, 0" % (sA, vSTAMP))
                a("v_subrev_u32 v27, s%d, v%d" % (sA, vSTAMP))
                a("v_lshlrev_b32 v26, 2, v%d" % vL)
                a("s_mov_b64 exec, 0xffff")
                a("global_store_dword v26, v27, %s" % sr(S_DBG, 2))
                a("s_mov_b64 exec, -1")
                a.label(lab)
            a("s_lshl_b32 s%d, s2, 8" % sA)
            a("s_add_u32 s%d, s%d, 0x%x" % (sA, sA, WS_STAMP))
            a("v_lshlrev_b32 v26, 2, v%d" % vL)
            a("buffer_store_dword v%d, v26, %s, s%d offen" % (vSTAMP, sr(S_WS, 4), sA))
            if self.opt.get("barstamps", 0):
                a("s_add_u32 s%d, s%d, 0x10000" % (sA, sA))
                a("buffer_store_dword v31, v26, %s, s%d offen" % (sr(S_WS, 4), sA))
            a("s_waitcnt vmcnt(0)")
            a.label(skip)
        a.label("L_end")
        a("s_endpgm")
        self.a.hook = None
        self.h.label("L_codeend")
        self.h("s_endpgm")
        self.a.ins += self.h.ins

    def nonce_load(self):
        a = self.a
        a("v_mov_b32 v26, 0")
        a.vmem("buffer_load_dword v30, v26, %s, 0 offen sc1" % sr(S_WS, 4), "nonce")

    def build(self):
        a = self.a
        o = self.opt
        H = self.hact
        self.prologue()
        H(self.loader_setup)
        if o.get("tcode", 1) == 1:
            H(self.touch_code)
        s1 = [f for st in range(4) for f in self.s1_stage_items(st)]
        n0, n1 = o.get("n0", 16), o.get("n1", 24)
        self.nonce_load()
        self.head_start()
        self.page_touch()
        self.cold_touches()
        self.tr_addresses()
        self.s1_setup()

        def stage(st):
            if st == 0:
                self.hacts(s1[:n0])
                self.hwait("s1_0")
            elif st == 1:
                self.hacts(s1[n0:n1])
                self.hwait("s1_1")
            else:
                self.hacts(s1[n1:])
                if o.get("apos", 0) == 0:
                    self.hstamp(4)
                    H(self.batch_a)
                    self.hstamp(5)
                self.hwait("s1_3")
            self.barrier()
            if st == 2:
                if o.get("apos", 0) == 1:
                    H(self.batch_a)
                H(self.nonce_load)
                H(self.tr_addresses)
        self.s1_main(stage)
        self.stamp("s1main")
        w2 = [self.dma_item(S_W2, vW64, sW2L, grp * 1024, sW2G, grp * 16384, "w2") for grp in range(16)]

        p0late = o.get("p0late", 1)
        w3 = self.w3_items([0, 1, 2, 3])
        cuts = [o.get("c%d" % i, d) for i, d in enumerate((0, 0, 0, 10, 10, 16))]

        def after_x1():
            H(self.w3_setup)
            self.hacts(w3[:cuts[0]])
            if not p0late:
                H(self.nonce_compute)
                H(self.kv_dma)
                H(self.p0_compute)
                H(lambda: self.a.wait_lg_all())
        self.s1_epilogue(after_x1)
        self.stamp("s1epi")
        self.nonce_compute()
        self.team_publish()
        self.wpi_addr(128, 129, LW, 16384, 32768)
        hitems = self.s2_load_items()
        a.wait_vm("hst")
        self.barrier()
        self.flag_store_rc(F_S1)
        self.stamp("s1flag")
        H(self.nonce_compute)
        H(self.kv_dma)
        self.hacts(w2[:o.get("w2a", 4)])
        self.hpaced(w2[o.get("w2a", 4):], o.get("iv2", 70), self.p0_compute)
        self.hacts(w3[cuts[0]:cuts[1]])
        H(lambda: self.a.wait_lg_all())
        self.idx_s1()
        self.barrier()
        H(self.p0_readback)
        H(self.p0_store)
        H(lambda: self.conv_filter_loads(0))
        self.hacts(w3[cuts[1]:cuts[2]])
        self.hwait("w2")
        self.poll_issue(F_S1, "ps1")
        self.poll_check("ps1", 2)
        self.stamp("s1poll")
        nh2 = o.get("nh2", 10)
        for f in hitems[:nh2]:
            f()
        self.barrier()
        self.stamp("hiss")
        H(self.p0_wave_flag)
        if o.get("bpos", 0) == 2:
            H(lambda: self.touch_chip("ssm"))
            H(lambda: self.touch_chip("w3"))
        self.hacts(w3[cuts[2]:cuts[3]])
        H(self.idx_p0)
        H(lambda: self.poll_issue(F_P0, "pp0"))
        self.fq = hitems[nh2:] + [self.team_load]
        self.s2_main()
        self.fill_all()
        self.stamp("s2main")

        def after_x2():
            H(lambda: self.poll_check("pp0", 1))
            H(lambda: self.conv_x_loads(0))
            self.hacts(w3[cuts[3]:cuts[4]])
            H(lambda: self.conv_prep_filter(0))
            H(lambda: self.conv_x_write(0))
        self.s2_epilogue(after_x2)
        self.stamp("s2epi")
        self.barrier()
        H(lambda: self.conv_poly(0))
        self.hacts(w3[cuts[4]:cuts[5]])
        self.conv_addr(0)
        self.team_check()
        a.wait_vm("x1st")
        self.barrier()
        self.flag_store_rc(F_S2)
        self.stamp("s2flag")
        H(self.head_start_w4)
        H(lambda: self.touch_chip("w4"))
        self.hacts(w3[cuts[5]:])

        def hook0(rho):
            if rho == o.get("pollrho2", 3):
                self.idx_s2()
                self.poll_issue(F_S2, "ps2")
        self.conv_main(hook0)
        self.stamp("cv0main")
        xitems = self.s3_load_items()
        nx = o.get("nx", 12)
        self.conv_finish(0)
        self.hwait("w3")
        self.barrier()
        self.stamp("cv0fin")
        H(self.s3_addr)
        H(self.s3_colsum)
        H(self.w4_setup)
        self.s3_addr()
        self.poll_check("ps2", 3)
        self.stamp("s2poll")
        for f in xitems[:nx]:
            f()
        sitems = self.s3_stat_items()
        rest = xitems[nx:]
        self.fq = []
        for i in range(len(rest)):
            self.fq.append(rest[i])
            self.fq.append(sitems[i] if i < 16 else (lambda: None))

        w4r = self.w4_reg_loads(W4_B, 56)

        def s3mid():
            self.barrier()
            H(lambda: self.conv_filter_loads(1))
            H(lambda: self.conv_x_loads(1))
            self.hacts(self.w4_items(0, W4_A, "w4"))
            self.hacts(w4r[:o.get("r1", 8)])
        self.s3_main(s3mid)
        self.fill_all()
        self.stamp("s3main")
        self.barrier()
        H(lambda: self.conv_prep_filter(1))
        H(lambda: self.conv_x_write(1))
        w4m = self.w4_items(W4_A, W4_B, "w4")
        k3 = o.get("k3", 4)

        early = o.get("tbar", 0) >= 2
        if early:
            self.hacts(w4r[o.get("r1", 8):o.get("r2", 20)])
            self.hacts(w4m[:k3])

        def after_tile(p):
            if p == o.get("tbar", 0):
                self.barrier()
                H(lambda: self.conv_poly(1))
                if not early:
                    self.hacts(w4r[o.get("r1", 8):o.get("r2", 20)])
                    self.hacts(w4m[:k3])
        self.s3_epilogue(after_tile)
        self.stamp("s3epi")
        self.conv_addr(1)
        a.wait_vm("Hst")
        self.barrier()
        a("s_lshl_b32 s%d, s%d, 4" % (sB, sRP))
        a("s_add_u32 s%d, s%d, s%d" % (sB, sB, sCP))
        self.flag_store(F_S3, sB)
        self.stamp("s3flag")
        self.hacts(w4m[k3:])
        self.hacts(w4r[o.get("r2", 20):])

        def hook1(rho):
            if rho == o.get("pollrho", 3):
                self.idx_s3()
                self.poll_issue(F_S3, "ps3")
        self.conv_main(hook1)
        self.stamp("cv1main")
        hitems = self.s4_load_items()
        self.poll_check("ps3", 5)
        self.stamp("s3poll")
        for _ in range(o.get("nh", 14)):
            hitems.pop(0)()
        self.conv_finish(1)
        for _ in range(o.get("nhb", 6)):
            hitems.pop(0)()
        self.s4_addr()
        self.hwait("w4")
        self.barrier()
        self.stamp("cv1fin")
        self.s4_main(hitems)
        self.stamp("s4main")
        self.s4_epilogue()
        self.stamp("s4epi")
        self.finish()


REF = "cdna_kernels/%s.s.ref" % NAME


def emit(stop=None, stamps=False, opt=None, keep=None):
    g = Gen(stop, stamps, opt)
    g.keep = keep
    g.build()
    nops = g.a.fix_hazards()
    top = [l for l in open(REF).read().split("\n") if l.startswith(";") and "@launch" not in l and "Override" not in l
           and "grid=ceil" not in l]
    out = top + ["; @launch grid=(256,1,1) block=(512,1,1) lds=%d" % LDS_BYTES,
                 '.amdgcn_target "amdgcn-amd-amdhsa--gfx950"', ".text", ".globl %s_kernel" % NAME, ".p2align 8",
                 ".type %s_kernel,@function" % NAME, "%s_kernel:" % NAME]
    body = g.a.text()
    tail = ['.section .rodata,"a"', ".p2align 6", ".amdhsa_kernel %s_kernel" % NAME,
            "  .amdhsa_next_free_vgpr 256", "  .amdhsa_next_free_sgpr 102", "  .amdhsa_accum_offset 192",
            "  .amdhsa_group_segment_fixed_size 0", "  .amdhsa_kernarg_size 112", "  .amdhsa_user_sgpr_count 2",
            "  .amdhsa_user_sgpr_kernarg_segment_ptr 1", "  .amdhsa_system_sgpr_workgroup_id_x 1",
            "  .amdhsa_float_denorm_mode_32 3", ".end_amdhsa_kernel"]
    text = "\n".join(out) + "\n" + body + "\n".join(tail) + "\n"
    return text, g, nops


if __name__ == "__main__":
    ap = argparse.ArgumentParser()
    ap.add_argument("-o", default="cdna_kernels/%s.s" % NAME)
    ap.add_argument("--stop", default=None)
    ap.add_argument("--stamps", action="store_true")
    ap.add_argument("--opt", default="")
    ap.add_argument("--keep", default="")
    args = ap.parse_args()
    opt = dict((kv.split("=")[0], int(kv.split("=")[1])) for kv in args.opt.split(",") if kv)
    text, g, nops = emit(args.stop, args.stamps, opt, args.keep.split(",") if args.keep else None)
    open(args.o, "w").write(text)
    n = sum(1 for x in g.a.ins if x.kind != "label")
    print("instructions: %d, hazard nops: %d" % (n, nops))
    if g.stamp_names:
        print(",".join(g.stamp_names))
        open(args.o + ".stamps", "w").write(",".join(g.stamp_names))
```

```python
import re

TRANS = ("v_exp_f32", "v_log_f32", "v_rcp_f32", "v_rsq_f32", "v_sqrt_f32", "v_sin_f32", "v_cos_f32")
REG_RE = re.compile(r"^(-|abs\(|\|)?([vas])(\d+|\[(\d+):(\d+)\])\)?\|?$")


def regs_of(op):
    op = op.strip()
    if op in ("vcc", "vcc_lo", "vcc_hi"):
        return {("s", "vcc")}
    if op in ("exec", "exec_lo", "exec_hi"):
        return {("s", "exec")}
    if op == "m0":
        return {("s", "m0")}
    if op == "scc":
        return set()
    m = REG_RE.match(op)
    if not m:
        return set()
    f = m.group(2)
    if m.group(4) is not None:
        return {(f, i) for i in range(int(m.group(4)), int(m.group(5)) + 1)}
    return {(f, int(m.group(3)))}


class Ins:
    __slots__ = ("text", "op", "ops", "mods", "dst", "src", "kind", "label", "target", "passes", "srcC", "srcAB",
                 "states", "sdata", "note")

    def __init__(self, text):
        self.text = text
        self.label = None
        self.target = None
        self.note = None
        t = text.split(";")[0].strip()
        if t.endswith(":"):
            self.label = t[:-1]
            self.kind = "label"
            self.op = ""
            self.dst = set()
            self.src = set()
            self.states = 0
            return
        parts = t.split(None, 1)
        self.op = parts[0]
        rest = parts[1] if len(parts) > 1 else ""
        toks, depth, cur = [], 0, ""
        for ch in rest:
            if ch in "[(":
                depth += 1
            elif ch in "])":
                depth -= 1
            if ch == "," and depth == 0:
                toks.append(cur.strip())
                cur = ""
            else:
                cur += ch
        if cur.strip():
            toks.append(cur.strip())
        mods = []
        if toks:
            last = toks[-1].split()
            toks[-1] = last[0]
            mods = last[1:]
        fixed = toks
        self.ops = fixed
        self.mods = mods
        self.states = 1
        self.passes = 0
        self.srcC = set()
        self.srcAB = set()
        self.sdata = set()
        op = self.op
        R = [regs_of(x) for x in self.ops]
        dst, src = set(), set()
        if op.startswith("v_mfma"):
            self.kind = "mfma"
            self.passes = 8 if "32x32x16" in op else 4
            dst = R[0]
            self.srcAB = R[1] | R[2]
            self.srcC = R[3]
            src = self.srcAB | self.srcC
        elif op.startswith("v_"):
            self.kind = "valu"
            if op.startswith("v_cmp"):
                dst = R[0]
                for r in R[1:]:
                    src |= r
            elif op.startswith("v_permlane") and "swap" in op:
                dst = R[0] | R[1]
                src = R[0] | R[1]
            elif op.startswith(("v_add_co", "v_sub_co", "v_addc_co", "v_subb_co")):
                dst = R[0] | R[1]
                for r in R[2:]:
                    src |= r
            else:
                dst = R[0]
                for r in R[1:]:
                    src |= r
                if op.startswith(("v_fmac", "v_dot2c", "v_pk_fmac", "v_writelane")) or "dpp" in op or \
                        any(m.startswith(("row_", "quad_perm", "wave_")) for m in mods):
                    src |= R[0]
        elif op.startswith("ds_"):
            self.kind = "ds"
            if op.startswith(("ds_read", "ds_bpermute", "ds_permute", "ds_swizzle")):
                dst = R[0]
                for r in R[1:]:
                    src |= r
            else:
                for r in R:
                    src |= r
        elif op.startswith("buffer_"):
            self.kind = "vmem"
            lds = "lds" in mods
            if op.startswith("buffer_load") and not lds:
                dst = R[0]
                for r in R[1:]:
                    src |= r
            elif op.startswith("buffer_load"):
                for r in R:
                    src |= r
                src |= {("s", "m0")}
            else:
                for r in R:
                    src |= r
                if op.endswith(("x3", "x4")):
                    self.sdata = R[0]
        elif op.startswith("global_"):
            self.kind = "vmem"
            if op.startswith("global_load"):
                dst = R[0]
                for r in R[1:]:
                    src |= r
            else:
                for r in R:
                    src |= r
                if op.endswith(("x3", "x4")):
                    self.sdata = R[1]
        elif op.startswith("s_"):
            self.kind = "salu"
            if op == "s_nop":
                self.states = int(self.ops[0], 0) + 1
            elif op.startswith(("s_cbranch", "s_branch")):
                self.target = self.ops[0]
            elif op.startswith(("s_cmp", "s_waitcnt", "s_barrier", "s_endpgm", "s_sleep", "s_setprio", "s_bitcmp")):
                for r in R:
                    src |= r
            elif op.startswith(("s_and_saveexec", "s_or_saveexec")):
                dst = R[0] | {("s", "exec")}
                src = R[1] | {("s", "exec")}
            else:
                dst = R[0] if R else set()
                for r in R[1:]:
                    src |= r
        else:
            raise ValueError("cannot classify: " + text)
        self.dst = dst
        self.src = src

    def is_trans(self):
        return self.op.replace("_e32", "").replace("_e64", "") in TRANS

    def is_dpp(self):
        return self.kind == "valu" and any(m.startswith(("row_", "quad_perm", "wave_")) for m in self.mods)


def vregs(s):
    return {r for r in s if r[0] in "va"}


def sregs(s):
    return {r for r in s if r[0] == "s"}


def required(p, c):
    need = 0
    if p.kind == "valu":
        pv = vregs(p.dst)
        ps = sregs(p.dst)
        if pv:
            if c.kind == "mfma" and pv & c.src:
                need = max(need, 2)
            if c.kind == "valu":
                if pv & c.src:
                    if c.op.startswith("v_permlane"):
                        need = max(need, 2)
                    if c.is_dpp():
                        need = max(need, 2)
                    if c.op.startswith(("v_readlane", "v_readfirstlane")):
                        need = max(need, 1)
                    if p.is_trans() and not c.is_trans():
                        need = max(need, 1)
        if ps:
            if c.kind == "vmem" and ps & c.src:
                need = max(need, 5)
            if c.kind == "valu" and ps & c.src:
                need = max(need, 4 if c.op.startswith(("v_readlane", "v_writelane")) else 2)
            if c.kind == "salu" and ps & c.src:
                need = max(need, 1)
    if p.kind == "valu" and p.op.startswith("v_dot"):
        if c.kind in ("valu", "mfma", "ds", "vmem") and (vregs(p.dst) & (c.src | c.dst)):
            same_chain = c.op == p.op and (vregs(p.dst) & c.dst) == vregs(p.dst) and \
                not any(vregs(p.dst) & regs_of(x) for x in c.ops[1:])
            if not same_chain:
                need = max(need, 3)
    if p.kind == "mfma":
        big = p.passes == 8
        if c.kind == "mfma":
            if p.dst & c.srcAB:
                need = max(need, 12 if big else 8)
            if p.dst & c.srcC:
                if not (p.dst == c.srcC and p.passes == c.passes):
                    need = max(need, 10 if big else 6)
            if (p.dst & c.dst) and not (p.dst == c.dst and p.passes == c.passes):
                need = max(need, 10 if big else 6)
        elif c.kind in ("valu", "ds", "vmem"):
            if p.dst & (c.src | c.dst):
                need = max(need, 12 if big else 8)
            if c.kind == "valu" and (p.srcC & c.dst):
                need = max(need, 7 if big else 3)
    if p.kind == "salu" and ("s", "m0") in p.dst:
        if c.kind == "vmem" and ("s", "m0") in c.src:
            need = max(need, 1)
    if p.kind == "vmem" and p.sdata:
        if c.kind == "valu" and (p.sdata & c.dst):
            need = max(need, 2)
        elif c.kind in ("ds", "vmem", "mfma") and (p.sdata & c.dst):
            need = max(need, 1)
    return need


MAXLOOK = 14


class Asm:
    def __init__(self):
        self.ins = []
        self.uid = 0
        self.hook = None
        self.vm = []
        self.lg = []

    def __call__(self, text):
        for line in text.strip("\n").split("\n"):
            line = line.strip()
            if not line or line.startswith(";") or line.startswith("//"):
                continue
            x = Ins(line)
            self.ins.append(x)
            if self.hook is not None:
                self.hook(x)

    def label(self, name):
        self.ins.append(Ins(name + ":"))

    def newlabel(self, stem):
        self.uid += 1
        return "L_%s_%d" % (stem, self.uid)

    def vmem(self, text, tag=None):
        self.vm.append(tag)
        self(text)

    def lds(self, text, tag=None):
        self.lg.append(tag)
        self(text)

    def wait_vm(self, *tags):
        last = -1
        for i, t in enumerate(self.vm):
            if t in tags:
                last = i
        if last < 0:
            return
        n = len(self.vm) - 1 - last
        assert n <= 63, "vmcnt overflow %d" % n
        self("s_waitcnt vmcnt(%d)" % n)
        self.vm = self.vm[last + 1:]

    def wait_vm_all(self):
        self("s_waitcnt vmcnt(0)")
        self.vm = []

    def wait_lg(self, *tags):
        last = -1
        for i, t in enumerate(self.lg):
            if t in tags:
                last = i
        if last < 0:
            return
        n = len(self.lg) - 1 - last
        if n > 15:
            n = 15
            last = len(self.lg) - 1 - n
        self("s_waitcnt lgkmcnt(%d)" % n)
        self.lg = self.lg[last + 1:]

    def wait_lg_all(self):
        self("s_waitcnt lgkmcnt(0)")
        self.lg = []

    def wait_both(self, vtag, ltag):
        parts = []
        last = max([i for i, t in enumerate(self.vm) if t == vtag], default=-1)
        if last >= 0:
            parts.append("vmcnt(%d)" % (len(self.vm) - 1 - last))
            self.vm = self.vm[last + 1:]
        last = max([i for i, t in enumerate(self.lg) if t == ltag], default=-1)
        if last >= 0:
            n = min(len(self.lg) - 1 - last, 15)
            parts.append("lgkmcnt(%d)" % n)
            self.lg = self.lg[len(self.lg) - n:] if n else []
        if parts:
            self("s_waitcnt " + " ".join(parts))

    def check_vm_depth(self):
        assert len(self.vm) <= 63, "too many outstanding vmem ops: %d" % len(self.vm)

    def fix_hazards(self):
        ins = self.ins
        inserted = 0
        label_of = {id(x): x.label for x in ins if x.kind == "label"}
        branches = [x for x in ins if x.kind != "label" and x.target is not None]
        by_target = {}
        for b in branches:
            by_target.setdefault(b.target, []).append(b)
        i = 0
        pos = {id(x): k for k, x in enumerate(ins)}
        while i < len(ins):
            c = ins[i]
            if c.kind == "label" or c.op in ("s_nop", "s_waitcnt", "s_barrier"):
                i += 1
                continue

            def preds(k):
                out = []
                if k > 0:
                    p = ins[k - 1]
                    if not (p.kind == "salu" and p.op in ("s_branch", "s_endpgm")):
                        out.append(k - 1)
                x = ins[k]
                if x.kind == "label":
                    out += [pos[id(b)] for b in by_target.get(x.label, [])]
                return out

            worst = 0
            stack = [(p, 0) for p in preds(i)]
            seen = {}
            while stack:
                j, dist = stack.pop()
                if dist >= MAXLOOK or seen.get(j, 99) <= dist:
                    continue
                seen[j] = dist
                p = ins[j]
                if p.kind != "label":
                    need = required(p, c)
                    if need > dist:
                        worst = max(worst, need - dist)
                nd = dist + p.states
                for k in preds(j):
                    stack.append((k, nd))
            if worst:
                new = []
                n = worst
                while n > 0:
                    k = min(n, 16)
                    new.append(Ins("s_nop %d" % (k - 1)))
                    n -= k
                ins[i:i] = new
                inserted += worst
                i += len(new)
                pos = {id(x): k for k, x in enumerate(ins)}
            i += 1
        return inserted

    def text(self):
        out = []
        for x in self.ins:
            out.append(x.text if x.kind == "label" else "    " + x.text)
        return "\n".join(out) + "\n"
```

```python
import argparse
import os
import struct
import sys

sys.path.insert(0, os.path.dirname(os.path.abspath(__file__)))
from asmlib import Asm

NAME = "parallel_sum__ssm_conv_h3__mixer_s_mlp__prompt"

WS_FLAGS = 4096
WS_STAMP = 0xD0000
WS_FLAGS_L = 0x90000
WS_TEAM = 0xC0000
WS_KVT = 0x100000
WS_YT = 0x300000
WS_HS = 0x500000
WS_X1 = 0x700000
WS_ST = 0x900000
WS_HH = 0xA00000
WS_SIZE = 0x10000000
OOB = 0x40000000
F_S1, F_S2, F_S3, F_P0, F_CV = 0, 1, 2, 4, 8

LQ = 0
LW = 65536
LSTG = 131072
LRED = 139264
LSTX = 155648
LCSX = 156672
LCS3 = 161280
LKV = LRED
LDS_BYTES = 163840
CV_X = 0
CV_XD = 1152
CV_A = 5248
CV_P = 21760
CV_R = 5248
CV_BASE = 114688
W3_P = 0
W3_H = 98304
CV_BASE1 = 69632
W4_A, W4_B, W4_C = 11, 28, 39
S4_RED = 24576


def w4_off(ks):
    if ks < W4_A:
        return 114688 + ks * 4096
    if ks < W4_B:
        return (ks - W4_A) * 4096
    if ks < W4_C:
        return CV_BASE1 + (ks - W4_B) * 4096
    return w4_off(ks - W4_C)

S_WS, S_Q, S_K, S_V, S_SHK, S_SSM, S_W1, S_W2, S_W3, S_W4, S_OUT = 4, 8, 12, 16, 20, 24, 32, 36, 40, 44, 48
S_DPTR = 28
S_DBG = 30
sR, sC, sW, sTH, sKH, sN, sRP, sCP = 52, 53, 54, 55, 56, 57, 58, 59
sT, sT3 = 60, 61
sD0, sD1 = 62, 63
sA, sB, sCc, sD, sE, sF = 64, 65, 66, 67, 68, 69
sW2L, sW2G, sW3L, sW3G, sW3HL, sW3HG, sW4L, sW4G, sSO, sLD = 70, 71, 72, 73, 74, 75, 76, 77, 78, 79
sONES, sHI = 80, 81
sK4, sK8, sK12 = 82, 83, 84
sEPS, sTMO, sKG1, sKG3, s512I = 85, 86, 87, 88, 89
sSTA = 90
sROT, sQG, sWG, sCP0 = 92, 93, 94, 95
sXCC, sLOC = 20, 21

vL, vL16, vWP, vWN = 0, 1, 2, 3
vQ, vX1 = 4, 12
vMEAN, vR1 = 20, 21
vTID, vHH, vN31, vSTAMP = 22, 23, 24, 25
vW64 = 31
vCH = 172
vPF, vPA = 170, 171
vW3F, vW3H, vQE = 153, 154, 155
vST = 172

GELU_K1 = 2.0 * 0.7978845608028654 * 1.4426950408889634
GELU_K3 = GELU_K1 * 0.044715
MF32 = "v_mfma_f32_32x32x16_bf16"
MF16 = "v_mfma_f32_16x16x32_bf16"


def f32bits(x):
    return struct.unpack("<I", struct.pack("<f", x))[0]


def vr(a, n):
    return "v[%d:%d]" % (a, a + n - 1)


def ar(a, n):
    return "a[%d:%d]" % (a, a + n - 1)


def sr(a, n):
    return "s[%d:%d]" % (a, a + n - 1)


class Gen:
    def __init__(self, stop=None, stamps=False, opt=None):
        self.opt = opt or {}
        self.keep = None
        self.a = Asm()
        self.h = Asm()
        self.h.uid = 100000
        self.hpend = []
        self.nbar = 0
        self.stop = stop
        self.stamps = stamps
        self.nstamp = 0
        self.stamp_names = []
        self.fq = []
        self.pq = []
        self.interval = 0
        self.clock = 0.0
        self.hold = 0
        self.a.hook = self._pace
        self.h.hook = self._pace

    def _pace(self, x):
        if x.kind == "mfma":
            self.clock += 32 if x.passes == 8 else 16
        elif x.kind == "valu":
            self.clock += 8 if x.is_trans() else 4.5
        elif x.kind == "ds":
            self.clock += 13 if x.op == "ds_write_b128" else 2
        elif x.kind == "vmem":
            self.clock += 20
        else:
            return
        if self.hold or not self.pq or not self.interval or x.kind == "vmem":
            return
        if self.clock >= self.interval:
            self.clock = 0.0
            self.hold += 1
            self.pq.pop(0)()
            self.hold -= 1

    def paced(self, items, interval):
        self.pq += items
        self.interval = interval
        self.clock = 0.0

    def pace_flush(self, tag=None):
        self.hold += 1
        if tag is None:
            n = len(self.pq)
        else:
            n = max([i + 1 for i, f in enumerate(self.pq) if f.tag == tag], default=0)
        for _ in range(n):
            self.pq.pop(0)()
        self.hold -= 1

    def stamp(self, name):
        if not self.stamps:
            return
        if self.keep and name not in self.keep and name not in ("start", "end"):
            return
        self.hold += 1
        self._stamp(name)
        self.hold -= 1

    def _stamp(self, name):
        a = self.a
        a("s_memtime %s" % sr(sSTA, 2))
        a("s_waitcnt lgkmcnt(0)")
        a.lg = []
        a("v_writelane_b32 v%d, s%d, %d" % (vSTAMP, sSTA, self.nstamp))
        if name in ("start", "end"):
            a("s_memrealtime %s" % sr(sSTA, 2))
            a("s_waitcnt lgkmcnt(0)")
            a("v_writelane_b32 v%d, s%d, %d" % (vSTAMP, sSTA, 62 if name == "start" else 63))
            if name == "start":
                a("v_writelane_b32 v%d, s3, 61" % vSTAMP)
        self.stamp_names.append(name)
        self.nstamp += 1

    def hact(self, fn):
        self.hpend.append(fn)

    def hacts(self, fns):
        self.hpend += fns

    def hstamp(self, idx):
        if not self.opt.get("barstamps", 0):
            return

        def f():
            a = self.a
            a("s_memtime %s" % sr(sSTA, 2))
            a("s_waitcnt lgkmcnt(0)")
            a.lg = []
            a("v_writelane_b32 v55, s%d, %d" % (sSTA, 32 + idx))
        self.hpend.append(f)

    def hpaced(self, items, interval, fn):
        def f():
            saved = (self.pq, self.interval, self.clock, self.hold)
            self.pq, self.interval, self.clock, self.hold = list(items), interval, 0.0, 0
            fn()
            self.hold = 1
            self.pace_flush()
            self.pq, self.interval, self.clock, self.hold = saved
        self.hpend.append(f)

    def hwait(self, tag):
        self.hpend.append(lambda: self.a.wait_vm(tag))

    def hrun(self):
        c, fq = self.a, self.fq
        self.a, self.fq = self.h, []
        self.hold += 1
        for fn in self.hpend:
            fn()
        self.hold -= 1
        self.hpend = []
        self.a, self.fq = c, fq

    def barrier(self, name=""):
        bs = self.opt.get("barstamps", 0)
        if bs:
            self.hold += 1
            self.a("s_memtime %s" % sr(sSTA, 2))
            self.a("s_waitcnt lgkmcnt(0)")
            self.a.lg = []
            self.a("v_writelane_b32 v31, s%d, %d" % (sSTA, self.nbar))
            self.hold -= 1
        self.a("s_barrier")
        self.hrun()
        if bs:
            self.h("s_memtime %s" % sr(sSTA, 2))
            self.h("s_waitcnt lgkmcnt(0)")
            self.h.lg = []
            self.h("v_writelane_b32 v55, s%d, %d" % (sSTA, self.nbar))
        self.h("s_barrier")
        self.nbar += 1

    def fill(self, n=1):
        for _ in range(n):
            if self.fq:
                self.fq.pop(0)()

    def fill_all(self):
        while self.fq:
            self.fq.pop(0)()

    def dma_item(self, srd, voff, sl, loff, sg, goff, tag):
        def f():
            a = self.a
            a("s_add_u32 m0, s%d, %d" % (sl, loff))
            a("s_add_u32 s%d, s%d, %d" % (sSO, sg, goff))
            a.vmem("buffer_load_dwordx4 v%d, %s, s%d offen lds" % (voff, sr(srd, 4), sSO), tag)
            a.check_vm_depth()
        f.tag = tag
        return f

    def flag_store(self, phase, sidx):
        local = self.opt.get("local", 0) and phase in (F_S2, F_S3)
        a = self.a
        self.hold += 1
        skip = a.newlabel("noflag")
        a("s_cmp_lg_u32 s%d, 0" % sW)
        a("s_cbranch_scc1 %s" % skip)
        a("s_lshl_b32 s%d, s%d, 7" % (sA, sidx))
        a("s_add_u32 s%d, s%d, %d" % (sA, sA, WS_FLAGS + phase * 256 * 128))
        a("v_mov_b32 v26, s%d" % sN)
        a("v_mov_b32 v27, s%d" % sA)
        a("s_mov_b64 exec, 1")
        if local:
            a("s_mov_b32 s%d, 0x%x" % (sSO, WS_FLAGS_L - WS_FLAGS))
            a("buffer_store_dword v26, v27, %s, s%d offen" % (sr(S_WS, 4), sSO))
        a("buffer_store_dword v26, v27, %s, 0 offen sc1" % sr(S_WS, 4))
        a("s_mov_b64 exec, -1")
        a.label(skip)
        self.hold -= 1

    def team_publish(self):
        a = self.a
        if not self.opt.get("local", 0):
            return
        skip = a.newlabel("noteam")
        a("s_getreg_b32 s%d, hwreg(HW_REG_XCC_ID)" % sXCC)
        a("s_and_b32 s%d, s%d, 15" % (sXCC, sXCC))
        a("s_cmp_lg_u32 s%d, 0" % sW)
        a("s_cbranch_scc1 %s" % skip)
        a("s_lshl_b32 s%d, s2, 7" % sA)
        a("s_add_u32 s%d, s%d, 0x%x" % (sA, sA, WS_TEAM))
        a("v_mov_b32 v26, s%d" % sN)
        a("v_mov_b32 v27, s%d" % sXCC)
        a("v_mov_b32 v28, s%d" % sA)
        a("s_mov_b64 exec, 1")
        a("buffer_store_dwordx2 v[26:27], v28, %s, 0 offen sc1" % sr(S_WS, 4))
        a("s_mov_b64 exec, -1")
        a.label(skip)

    def team_load(self):
        a = self.a
        if not self.opt.get("local", 0):
            return
        a("s_and_b32 s%d, s2, 7" % sA)
        a("v_lshlrev_b32 v26, 3, v%d" % vN31)
        a("v_add_u32 v26, s%d, v26" % sA)
        a("v_lshlrev_b32 v26, 7, v26")
        a("v_add_u32 v26, 0x%x, v26" % WS_TEAM)
        a.vmem("buffer_load_dwordx2 v[168:169], v26, %s, 0 offen sc1" % sr(S_WS, 4), "team")

    def team_check(self):
        a = self.a
        if not self.opt.get("local", 0):
            return
        a.wait_vm("team")
        a("v_cmp_ne_u32 vcc, s%d, v168" % sN)
        a("v_cmp_ne_u32 %s, s%d, v169" % (sr(sSTA, 2), sXCC))
        a("s_or_b64 vcc, vcc, %s" % sr(sSTA, 2))
        a("s_cmp_eq_u64 vcc, 0")
        a("s_cselect_b32 s%d, 0x%x, 0" % (sLOC, WS_FLAGS_L - WS_FLAGS))

    def flag_store_rc(self, phase):
        a = self.a
        a("s_lshl_b32 s%d, s%d, 3" % (sB, sR))
        a("s_add_u32 s%d, s%d, s%d" % (sB, sB, sC))
        self.flag_store(phase, sB)

    def poll_issue(self, phase, tag):
        a = self.a
        a("v_lshlrev_b32 v%d, 7, v28" % vPA)
        a("v_add_u32 v%d, %d, v%d" % (vPA, WS_FLAGS + phase * 256 * 128, vPA))
        if self.opt.get("local", 0) and phase in (F_S2, F_S3):
            a("v_add_u32 v%d, s%d, v%d" % (vPA, sLOC, vPA))
        a.vmem("buffer_load_dword v%d, v%d, %s, 0 offen sc1" % (vPF, vPA, sr(S_WS, 4)), tag)

    def poll_check(self, tag, code):
        a = self.a
        self.hold += 1
        loop = a.newlabel("poll")
        done = a.newlabel("polled")
        a.wait_vm(tag)
        a("v_cmp_ne_u32 vcc, s%d, v%d" % (sN, vPF))
        a("s_cmp_eq_u64 vcc, 0")
        a("s_cbranch_scc1 %s" % done)
        a("s_mov_b32 s%d, 0x40000" % sTMO)
        a.label(loop)
        a("buffer_load_dword v%d, v%d, %s, 0 offen sc1" % (vPF, vPA, sr(S_WS, 4)))
        a("s_waitcnt vmcnt(0)")
        a("v_cmp_ne_u32 vcc, s%d, v%d" % (sN, vPF))
        a("s_cmp_eq_u64 vcc, 0")
        a("s_cbranch_scc1 %s" % done)
        a("s_sub_u32 s%d, s%d, 1" % (sTMO, sTMO))
        a("s_cmp_lg_u32 s%d, 0" % sTMO)
        a("s_cbranch_scc1 %s" % loop)
        a("v_mov_b32 v26, 0")
        a("v_mov_b32 v27, %d" % (0x100 + code))
        a("s_mov_b64 exec, 1")
        a("global_store_dword v26, v27, %s" % sr(S_DBG, 2))
        a("s_mov_b64 exec, -1")
        a.label(done)
        self.hold -= 1

    def idx_s1(self):
        a = self.a
        a("s_lshl_b32 s%d, s%d, 1" % (sA, sTH))
        a("s_sub_u32 s%d, s%d, 1" % (sA, sA))
        a("s_add_u32 s%d, s%d, s%d" % (sA, sA, sR))
        a("s_cmp_lt_u32 s%d, 32" % sA)
        a("s_cselect_b32 s%d, s%d, s%d" % (sA, sA, sR))
        a("v_mov_b32 v28, s%d" % sR)
        a("v_mov_b32 v29, s%d" % sA)
        a("v_and_b32 v27, 4, v%d" % vL)
        a("v_cmp_eq_u32 vcc, 0, v27")
        a("v_cndmask_b32 v28, v29, v28, vcc")
        a("v_lshlrev_b32 v28, 3, v28")
        a("v_and_b32 v29, 3, v%d" % vL)
        a("v_add_u32 v28, v28, v29")
        a("s_lshl_b32 s%d, s%d, 2" % (sA, sKH))
        a("v_add_u32 v28, s%d, v28" % sA)

    def idx_p0(self):
        a = self.a
        a("s_lshr_b32 s%d, s2, 5" % sA)
        a("s_lshl_b32 s%d, s%d, 6" % (sB, sW))
        a("s_add_u32 s%d, s%d, s%d" % (sA, sA, sB))
        a("v_and_b32 v28, 7, v%d" % vL)
        a("v_lshlrev_b32 v28, 3, v28")
        a("v_add_u32 v28, s%d, v28" % sA)
        a("s_bfe_u32 s%d, s2, 0x20003" % sA)
        a("v_lshl_add_u32 v28, v28, 2, s%d" % sA)

    def p0_wave_flag(self):
        a = self.a
        a.wait_vm("kvt")
        a("s_lshl_b32 s%d, s%d, 3" % (sA, sR))
        a("s_add_u32 s%d, s%d, s%d" % (sA, sA, sC))
        a("s_lshl_b32 s%d, s%d, 2" % (sA, sA))
        a("s_add_u32 s%d, s%d, s%d" % (sA, sA, sW))
        a("s_lshl_b32 s%d, s%d, 7" % (sA, sA))
        a("s_add_u32 s%d, s%d, %d" % (sA, sA, WS_FLAGS + F_P0 * 256 * 128))
        a("v_mov_b32 v26, s%d" % sN)
        a("v_mov_b32 v27, s%d" % sA)
        a("s_mov_b64 exec, 1")
        a("buffer_store_dword v26, v27, %s, 0 offen sc1" % sr(S_WS, 4))
        a("s_mov_b64 exec, -1")

    def idx_s2(self):
        a = self.a
        a("s_lshr_b32 s%d, s%d, 1" % (sA, sT3))
        a("s_lshl_b32 s%d, s%d, 3" % (sA, sA))
        a("v_and_b32 v28, 7, v%d" % vL)
        a("v_add_u32 v28, s%d, v28" % sA)

    def idx_s3(self):
        a = self.a
        a("s_lshr_b32 s%d, s%d, 1" % (sA, sR))
        a("s_lshl_b32 s%d, s%d, 4" % (sA, sA))
        a("s_lshl_b32 s%d, s%d, 3" % (sB, sKH))
        a("s_add_u32 s%d, s%d, s%d" % (sA, sA, sB))
        a("v_and_b32 v28, 7, v%d" % vL)
        a("v_add_u32 v28, s%d, v28" % sA)

    def idx_cv(self):
        a = self.a
        self.feat0(sA, sKH, 0)
        a("s_lshr_b32 s%d, s%d, 1" % (sA, sA))
        a("v_and_b32 v28, 15, v%d" % vL)
        a("v_add_u32 v28, s%d, v28" % sA)
        a("s_lshr_b32 s%d, s%d, 5" % (sA, sT))
        a("s_lshl_b32 s%d, s%d, 1" % (sA, sA))
        a("s_bfe_u32 s%d, s%d, 0x10003" % (sB, sT))
        a("s_add_u32 s%d, s%d, s%d" % (sA, sA, sB))
        a("v_lshl_add_u32 v28, v28, 2, s%d" % sA)

    def conv_wave_flag(self):
        a = self.a
        a.wait_vm("yt")
        a("s_lshl_b32 s%d, s2, 2" % sA)
        a("s_add_u32 s%d, s%d, s%d" % (sA, sA, sW))
        a("s_lshl_b32 s%d, s%d, 7" % (sA, sA))
        a("s_add_u32 s%d, s%d, %d" % (sA, sA, WS_FLAGS + F_CV * 256 * 128))
        a("v_mov_b32 v26, s%d" % sN)
        a("v_mov_b32 v27, s%d" % sA)
        a("s_mov_b64 exec, 1")
        a.vmem("buffer_store_dword v26, v27, %s, 0 offen sc1" % sr(S_WS, 4), "cvf")
        a("s_mov_b64 exec, -1")

    def prologue(self):
        a = self.a
        if self.stamps or self.opt.get("dbgtime", 0):
            a("s_memrealtime s[100:101]")
            a("s_waitcnt lgkmcnt(0)")
            a("s_mov_b32 s3, s100")
        a("s_cmp_ge_u32 s2, 256")
        a("s_cbranch_scc1 L_end")
        a("s_load_dwordx16 s[64:79], s[0:1], 0")
        a("s_load_dwordx8 s[92:99], s[0:1], 64")
        a("s_load_dwordx2 %s, s[0:1], 96" % sr(S_DBG, 2))
        a("s_load_dwordx2 %s, s[0:1], 104" % sr(S_WS, 2))
        sizes = {S_WS: WS_SIZE, S_Q: 1 << 21, S_K: 1 << 21, S_V: 1 << 21, S_SHK: 4096, S_SSM: 1 << 21,
                 S_W1: 1 << 19, S_W2: 1 << 19, S_W3: 512 * 1792 * 2, S_W4: 512 * 1792 * 2, S_OUT: 1 << 21}
        for s, n in sizes.items():
            a("s_mov_b32 s%d, 0x%x" % (s + 2, n))
            a("s_mov_b32 s%d, 0x20000" % (s + 3))
        a("s_and_b32 s100, s2, 7")
        a("s_lshr_b32 s101, s2, 3")
        a("s_lshr_b32 s%d, s101, 3" % sR)
        a("s_lshl_b32 s%d, s100, 2" % sC)
        a("s_add_u32 s%d, s%d, s%d" % (sR, sR, sC))
        a("s_and_b32 s%d, s101, 7" % sC)
        a("s_lshr_b32 s%d, s101, 4" % sRP)
        a("s_lshl_b32 s100, s100, 1")
        a("s_add_u32 s%d, s%d, s100" % (sRP, sRP))
        a("s_and_b32 s%d, s101, 15" % sCP)
        a("v_and_b32 v%d, 0xff, v0" % vTID)
        a("v_lshrrev_b32 v26, 6, v0")
        a("v_and_b32 v%d, 63, v0" % vL)
        a("v_readfirstlane_b32 s%d, v26" % sTMO)
        a("v_lshlrev_b32 v%d, 4, v%d" % (vL16, vL))
        a("v_lshrrev_b32 v%d, 5, v%d" % (vHH, vL))
        a("v_and_b32 v%d, 31, v%d" % (vN31, vL))
        a("s_and_b32 s%d, s%d, 3" % (sW, sTMO))
        a("s_lshr_b32 s%d, s%d, 1" % (sTH, sW))
        a("s_and_b32 s%d, s%d, 1" % (sKH, sW))
        a("s_lshl_b32 s%d, s%d, 1" % (sT, sR))
        a("s_add_u32 s%d, s%d, s%d" % (sT, sT, sTH))
        a("s_lshl_b32 s%d, s%d, 2" % (sT3, sRP))
        a("s_add_u32 s%d, s%d, s%d" % (sT3, sT3, sW))
        a("s_mov_b32 s%d, 0x3f803f80" % sONES)
        a("s_mov_b32 s%d, 0xffff0000" % sHI)
        a("s_movk_i32 s%d, 0x1000" % sK4)
        a("s_movk_i32 s%d, 0x2000" % sK8)
        a("s_movk_i32 s%d, 0x3000" % sK12)
        a("s_mov_b32 s%d, 0x%x" % (sEPS, f32bits(1e-5)))
        a("s_mov_b32 s%d, 0x%x" % (sKG1, f32bits(-GELU_K1)))
        a("s_mov_b32 s%d, 0x%x" % (sKG3, f32bits(-GELU_K3)))
        a("s_mov_b32 s%d, 0x%x" % (s512I, f32bits(1.0 / 512)))
        a("s_waitcnt lgkmcnt(0)")
        for sreg, src in ((S_Q, 64), (S_W1, 78), (S_K, 66), (S_V, 68), (S_SHK, 70), (S_SSM, 72), (S_DPTR, 74)):
            a("s_mov_b64 %s, %s" % (sr(sreg, 2), sr(src, 2)))
        for i, sreg in enumerate([S_W2, S_W3, S_W4, S_OUT]):
            a("s_mov_b64 %s, %s" % (sr(sreg, 2), sr(92 + 2 * i, 2)))
        a("s_add_u32 s%d, s%d, s%d" % (sROT, sR, sC))
        a("s_and_b32 s%d, s%d, 3" % (sROT, sROT))
        a("s_cmp_ge_u32 s%d, 4" % sTMO)
        a("s_cbranch_scc1 L_loader")
        if self.opt.get("prio", 1):
            a("s_setprio 1")
        if self.stamps:
            a("v_mov_b32 v%d, 0" % vSTAMP)
        self.stamp("start")
        if self.opt.get("dbgtime", 0):
            a("s_memtime s[98:99]")
            a("s_waitcnt lgkmcnt(0)")
        self.ssm_d_load()

    def tr_addresses(self):
        a = self.a
        a("v_bfe_u32 v26, v%d, 2, 2" % vL)
        a("v_and_b32 v27, 3, v%d" % vL)
        a("v_bfe_u32 v28, v%d, 4, 1" % vL)
        a("v_lshlrev_b32 v27, 3, v27")
        a("v_lshl_add_u32 v27, v28, 5, v27")
        a("v_lshl_add_u32 v28, v%d, 2, v26" % vHH)
        a("v_lshl_add_u32 v%d, v28, 6, v27" % vWP)
        a("v_lshl_add_u32 v28, v%d, 3, v26" % vHH)
        a("v_lshl_add_u32 v%d, v28, 6, v27" % vWN)

    def loader_setup(self):
        a = self.a
        a.label("L_loader")
        a("v_lshrrev_b32 v26, 2, v%d" % vL)
        a("v_and_b32 v27, 3, v%d" % vL)
        a("v_lshlrev_b32 v27, 4, v27")
        a("v_lshl_add_u32 v%d, v26, 10, v27" % vW64)
        a("v_lshrrev_b32 v26, 3, v%d" % vL)
        a("v_and_b32 v27, 7, v%d" % vL)
        a("v_lshrrev_b32 v28, 4, v%d" % vL)
        a("v_xor_b32 v27, v27, v28")
        a("v_lshlrev_b32 v27, 4, v27")
        a("v_lshl_add_u32 v%d, v26, 10, v27" % vQE)
        a("v_xor_b32 v%d, 64, v%d" % (vQE + 1, vQE))
        a("s_lshl_b32 s%d, s%d, 14" % (sCc, sW))
        a("s_lshl_b32 s%d, s%d, 15" % (sD, sT))
        a("s_lshl_b32 s%d, s%d, 9" % (sA, sKH))
        a("s_add_u32 s%d, s%d, s%d" % (sD, sD, sA))
        self.w64_bases(sW2L, sW2G)

    def feat0(self, dst, spanel, shift):
        a = self.a
        if self.opt.get("remap", 0):
            a("s_lshl_b32 s%d, s%d, %d" % (dst, sC, 5 + shift))
            a("s_lshl_b32 s%d, s%d, %d" % (sSO, spanel, 8 + shift))
        else:
            a("s_lshl_b32 s%d, s%d, %d" % (dst, sC, 6 + shift))
            a("s_lshl_b32 s%d, s%d, %d" % (sSO, spanel, 5 + shift))
        a("s_add_u32 s%d, s%d, s%d" % (dst, dst, sSO))

    def w64_bases(self, sl, sg):
        a = self.a
        a("s_lshl_b32 s%d, s%d, 15" % (sl, sTH))
        a("s_lshl_b32 s%d, s%d, 14" % (sA, sKH))
        a("s_add_u32 s%d, s%d, s%d" % (sl, sl, sA))
        a("s_add_u32 s%d, s%d, %d" % (sl, sl, LW))
        a("s_lshl_b32 s%d, s%d, 18" % (sg, sKH))
        self.feat0(sA, sTH, 1)
        a("s_add_u32 s%d, s%d, s%d" % (sg, sg, sA))

    def s1_stage_items(self, st):
        items = []

        def head():
            a = self.a
            a("s_add_u32 s%d, s%d, %d" % (sB, sROT, st))
            a("s_and_b32 s%d, s%d, 3" % (sB, sB))
            a("s_lshl_b32 s%d, s%d, 7" % (sQG, sB))
            a("s_add_u32 s%d, s%d, s%d" % (sQG, sQG, sD))
            a("s_lshl_b32 s%d, s%d, 16" % (sWG, sB))
            a("s_add_u32 s%d, s%d, s%d" % (sWG, sWG, sW2G))
        for j in range(4):
            def f(j=j):
                if j == 0:
                    head()
                self.dma_item(S_Q, vQE + (j & 1), sCc, LQ + st * 4096 + j * 1024, sQG, j * 8192, "s1_%d" % st)()
            items.append(f)
        for i in range(4):
            items.append(self.dma_item(S_W1, vW64, sW2L, (4 * st + i) * 1024, sWG, i * 16384, "s1_%d" % st))
        return items

    def touch(self, srd, lanes, sidx, dst):
        a = self.a
        a("s_mul_i32 s%d, s%d, %d" % (sA, sidx, lanes))
        a("v_add_u32 v26, s%d, v%d" % (sA, vL))
        a("v_lshlrev_b32 v26, 7, v26")
        a("v_mov_b32 v27, 0x%x" % OOB)
        a("v_cmp_gt_u32 vcc, %d, v%d" % (lanes, vL))
        a("v_cndmask_b32 v26, v27, v26, vcc")
        a.vmem("buffer_load_dword v%d, v26, %s, 0 offen" % (dst, sr(srd, 4)), "touch")

    def touch_w2(self):
        a = self.a
        if self.opt.get("touch", 1):
            a("s_lshr_b32 s%d, s2, 3" % sE)
            a("s_lshl_b32 s%d, s%d, 2" % (sE, sE))
            a("s_add_u32 s%d, s%d, s%d" % (sE, sE, sW))
            self.touch(S_W2, 32, sE, 53)

    def touch_chip(self, which):
        a = self.a
        srd, lanes, dst = {"w2": (S_W2, 4, 160), "ssm": (S_SSM, 16, 161), "w3": (S_W3, 14, 163), "w4": (S_W4, 14, 162)}[which]
        if not self.opt.get("t" + which, 1):
            return
        a("s_lshl_b32 s%d, s2, 2" % sE)
        a("s_add_u32 s%d, s%d, s%d" % (sE, sE, sW))
        self.touch(srd, lanes, sE, dst)

    def touch_code(self):
        a = self.a
        if not self.opt.get("tcode", 1):
            return
        a("s_getpc_b64 s[96:97]")
        a.label("L_pc")
        a("s_sub_u32 s96, s96, L_pc-%s_kernel" % NAME)
        a("s_subb_u32 s97, s97, 0")
        a("s_lshr_b32 s%d, s2, 3" % sE)
        a("s_lshl_b32 s%d, s%d, 2" % (sE, sE))
        a("s_add_u32 s%d, s%d, s%d" % (sE, sE, sW))
        a("s_mul_i32 s%d, s%d, 3" % (sE, sE))
        a("v_min_u32 v26, 2, v%d" % vL)
        a("v_add_u32 v26, s%d, v26" % sE)
        a("v_min_u32 v26, (L_codeend-%s_kernel)/128-1, v26" % NAME)
        a("v_lshlrev_b32 v26, 7, v26")
        a("v_mov_b32 v135, s97")
        a("v_add_co_u32 v134, vcc, s96, v26")
        a("v_addc_co_u32 v135, vcc, 0, v135, vcc")
        a.vmem("global_load_dword v136, v[134:135], off", "touch")

    def cold_touches(self):
        a = self.a
        o = self.opt
        a("s_lshr_b32 s%d, s2, 3" % sE)
        a("s_lshl_b32 s%d, s%d, 2" % (sE, sE))
        a("s_add_u32 s%d, s%d, s%d" % (sE, sE, sW))
        if o.get("tq", 0):
            a("s_and_b32 s%d, s2, 7" % sF)
            a("s_lshl_b32 s%d, s%d, 7" % (sF, sF))
            a("s_add_u32 s%d, s%d, s%d" % (sF, sF, sE))
            self.touch(S_Q, 16, sF, 160)
            self.touch(S_W1, 32, sE, 161)

    def touch_rows(self, srd, rows_per_wave, srow0, col, dst):
        a = self.a
        a("v_add_u32 v26, s%d, v%d" % (srow0, vL))
        a("v_lshlrev_b32 v26, 10, v26")
        a("v_add_u32 v26, %d, v26" % col)
        a("v_mov_b32 v27, 0x%x" % OOB)
        a("v_cmp_gt_u32 vcc, %d, v%d" % (rows_per_wave, vL))
        a("v_cndmask_b32 v26, v27, v26, vcc")
        a.vmem("buffer_load_dword v%d, v26, %s, 0 offen" % (dst, sr(srd, 4)), "touch")

    def wave_in_group(self, dst):
        a = self.a
        a("s_lshr_b32 s%d, s2, 3" % dst)
        a("s_lshl_b32 s%d, s%d, 2" % (dst, dst))
        a("s_add_u32 s%d, s%d, s%d" % (dst, dst, sW))

    def head_start(self):
        a = self.a
        m = self.opt.get("head", 11)
        self.wave_in_group(sE)
        if m & 1:
            a("s_lshl_b32 s%d, s%d, 2" % (sF, sE))
            self.touch_rows(S_W1, 4, sF, 384, 160)
        if m & 2:
            a("s_and_b32 s%d, s2, 7" % sF)
            a("s_lshl_b32 s%d, s%d, 7" % (sF, sF))
            a("s_add_u32 s%d, s%d, s%d" % (sF, sF, sE))
            a("s_lshl_b32 s%d, s%d, 1" % (sF, sF))
            self.touch_rows(S_K, 2, sF, 384, 161)
            self.touch_rows(S_V, 2, sF, 384, 162)
        if m & 4:
            a("s_lshl_b32 s%d, s%d, 2" % (sF, sE))
            self.touch_rows(S_W2, 4, sF, 384, 163)

    def page_touch(self):
        a = self.a
        m = self.opt.get("tlb", 0)
        if not m:
            return
        a("v_mov_b32 v27, 0x%x" % OOB)
        if m & 1:
            a("v_lshlrev_b32 v26, 21, v%d" % vL)
            a("v_add_u32 v26, 0x70800, v26")
            a("v_cmp_gt_u32 vcc, 10, v%d" % vL)
            a("v_cndmask_b32 v26, v27, v26, vcc")
            a.vmem("buffer_load_dword v164, v26, %s, 0 offen" % sr(S_WS, 4), "touch")
        lst = []
        if m & 2:
            lst += [(S_OUT, 1 << 21, 165)]
        if m & 4:
            lst += [(S_SSM, 1 << 21, 166), (S_W3, 512 * 1792 * 2, 167), (S_W4, 512 * 1792 * 2, 168), (S_W2, 1 << 19, 169)]
        for srd, size, dst in lst:
            a("v_mul_u32_u24 v26, %d, v%d" % (size // 128 - 1, vL))
            a("v_lshlrev_b32 v26, 7, v26")
            a("v_cmp_gt_u32 vcc, 2, v%d" % vL)
            a("v_cndmask_b32 v26, v27, v26, vcc")
            a.vmem("buffer_load_dword v%d, v26, %s, 0 offen" % (dst, sr(srd, 4)), "touch")

    def head_start_w4(self):
        a = self.a
        if self.opt.get("head", 11) & 8:
            self.wave_in_group(sE)
            a("s_mul_i32 s%d, s%d, 14" % (sF, sE))
            self.touch_rows(S_W4, 14, sF, 384, 161)

    def batch_a(self):
        a = self.a
        if self.opt.get("tkv", 0):
            self.touch_kv(157, 158)
        if self.opt.get("tw2", 1):
            a("s_lshr_b32 s%d, s2, 3" % sE)
            a("s_lshl_b32 s%d, s%d, 2" % (sE, sE))
            a("s_add_u32 s%d, s%d, s%d" % (sE, sE, sW))
            self.touch(S_W2, 32, sE, 159)
        if self.opt.get("bpos", 0) == 0:
            self.touch_chip("ssm")
            self.touch_chip("w3")

    def kv_dma(self):
        a = self.a
        a("v_lshrrev_b32 v26, 3, v%d" % vL)
        a("v_and_b32 v27, 7, v%d" % vL)
        a("v_lshlrev_b32 v27, 4, v27")
        a("v_lshl_add_u32 v137, v26, 10, v27")
        a("s_lshl_b32 s%d, s%d, 6" % (sA, sR))
        a("s_lshl_b32 s%d, s%d, 4" % (sB, sW))
        a("s_add_u32 s%d, s%d, s%d" % (sA, sA, sB))
        a("v_add_u32 v26, s%d, v26" % sA)
        a("s_lshl_b32 s%d, s%d, 10" % (sQG, sA))
        a("s_lshl_b32 s%d, s%d, 7" % (sB, sC))
        a("s_add_u32 s%d, s%d, s%d" % (sQG, sQG, sB))
        a("v_add_u32 v138, s%d, v137" % sQG)
        a("v_subrev_u32 v138, 3072, v138")
        a("v_mov_b32 v27, 0x%x" % OOB)
        a("v_cmp_gt_u32 vcc, 3, v26")
        a("v_cndmask_b32 v138, v138, v27, vcc")
        a("s_mul_i32 s%d, s%d, 5120" % (sWG, sW))
        a("s_add_u32 m0, s%d, %d" % (sWG, LKV))
        a.vmem("buffer_load_dwordx4 v138, %s, 0 offen lds" % sr(S_K, 4), "kv")
        for g in (1, 2):
            self.dma_item(S_K, 137, sWG, LKV + 1024 * g, sQG, 8192 * g - 3072, "kv")()
        for g in (0, 1):
            self.dma_item(S_V, 137, sWG, LKV + 3072 + 1024 * g, sQG, 8192 * g, "kv")()
        a("s_lshl_b32 s%d, s%d, 9" % (sB, sC))
        a("v_lshl_add_u32 v26, v%d, 4, s%d" % (vN31, sB))
        a.vmem("buffer_load_dwordx4 %s, v26, %s, 0 offen" % (vr(self.SHRAW, 4), sr(S_SHK, 4)), "kv")

    def p0_reads(self):
        a = self.a
        a.wait_vm("kv")
        a("s_mul_i32 s%d, s%d, 5120" % (sA, sW))
        a("v_lshlrev_b32 v26, 10, v%d" % vHH)
        a("v_lshl_add_u32 v26, v%d, 2, v26" % vN31)
        a("v_add_u32 v26, s%d, v26" % sA)
        a("v_add_u32 v26, %d, v26" % LKV)
        for i in range(11):
            a.lds("ds_read_b32 v%d, v26 offset:%d" % (self.KRAW + i, 128 * i), "p0")
        for i in range(8):
            a.lds("ds_read_b32 v%d, v26 offset:%d" % (self.VRAW + i, 3072 + 128 * i), "p0")

    def touch_kv(self, dk=54, dv=55):
        a = self.a
        for srd, rows, first, dst in ((S_K, 17, -3, dk), (S_V, 16, 0, dv)):
            a("s_lshl_b32 s%d, s%d, 6" % (sA, sR))
            a("s_mul_i32 s%d, s%d, %d" % (sB, sW, rows))
            a("s_add_u32 s%d, s%d, s%d" % (sA, sA, sB))
            a("s_add_i32 s%d, s%d, %d" % (sA, sA, first))
            a("v_add_u32 v26, s%d, v%d" % (sA, vL))
            a("v_lshlrev_b32 v26, 10, v26")
            a("s_lshl_b32 s%d, s%d, 7" % (sB, sC))
            a("v_add_u32 v26, s%d, v26" % sB)
            a("v_mov_b32 v27, 0x%x" % OOB)
            a("v_cmp_gt_u32 vcc, %d, v%d" % (rows, vL))
            a("v_cndmask_b32 v26, v27, v26, vcc")
            a.vmem("buffer_load_dword v%d, v26, %s, 0 offen" % (dst, sr(srd, 4)), "touch")

    def touch_w3_local(self):
        a = self.a
        if self.opt.get("tw3", 1):
            a("s_lshr_b32 s%d, s2, 3" % sE)
            a("s_lshl_b32 s%d, s%d, 2" % (sE, sE))
            a("s_add_u32 s%d, s%d, s%d" % (sE, sE, sW))
            self.touch(S_W3, 64, sE, 50)
            a("s_add_u32 s%d, s%d, 128" % (sE, sE))
            self.touch(S_W3, 64, sE, 51)

    def touch_w4_chip(self):
        a = self.a
        if self.opt.get("tw4", 1):
            a("s_lshl_b32 s%d, s2, 2" % sE)
            a("s_add_u32 s%d, s%d, s%d" % (sE, sE, sW))
            self.touch(S_W4, 14, sE, 52)

    def touch_w34(self):
        a = self.a
        if self.opt.get("touch", 1):
            a("s_lshl_b32 s%d, s2, 2" % sE)
            a("s_add_u32 s%d, s%d, s%d" % (sE, sE, sW))
            if self.opt.get("touchw3", 1):
                self.touch(S_W3, 14, sE, 223)
            if self.opt.get("touchw4", 1):
                self.touch(S_W4, 14, sE, 224)

    def touch_w4_local(self):
        a = self.a
        a("s_lshr_b32 s%d, s2, 3" % sE)
        a("s_lshl_b32 s%d, s%d, 2" % (sE, sE))
        a("s_add_u32 s%d, s%d, s%d" % (sE, sE, sW))
        self.touch(S_W4, 64, sE, 54)
        a("s_add_u32 s%d, s%d, 128" % (sE, sE))
        self.touch(S_W4, 64, sE, 55)

    KRAW, VRAW, SHRAW, POFF = 172, 183, 164, 138

    def p0_loads(self):
        a = self.a
        o = self.POFF
        a("s_lshl_b32 s%d, s%d, 6" % (sA, sR))
        a("s_lshl_b32 s%d, s%d, 4" % (sB, sW))
        a("s_add_u32 s%d, s%d, s%d" % (sA, sA, sB))
        a("v_lshl_add_u32 v26, v%d, 3, s%d" % (vHH, sA))
        a("s_lshl_b32 s%d, s%d, 7" % (sB, sC))
        a("v_lshl_add_u32 v27, v%d, 2, s%d" % (vN31, sB))
        a("v_lshl_add_u32 v%d, v26, 10, v27" % (o + 3))
        a("v_add_u32 v%d, 0x1000, v%d" % (o + 4, o + 3))
        a("v_mov_b32 v28, 0x%x" % OOB)
        for i in range(3):
            a("v_subrev_u32 v%d, %d, v%d" % (o + i, (3 - i) * 1024, o + 3))
            a("v_cmp_gt_u32 vcc, %d, v26" % (3 - i))
            a("v_cndmask_b32 v%d, v%d, v28, vcc" % (o + i, o + i))
        a("s_lshl_b32 s%d, s%d, 9" % (sB, sC))
        a("v_lshl_add_u32 v%d, v%d, 4, s%d" % (o + 5, vN31, sB))

        def item(text):
            return lambda: a.vmem(text, "p0")
        for i in range(3):
            self.fq.append(item("buffer_load_dword v%d, v%d, %s, 0 offen" % (self.KRAW + i, o + i, sr(S_K, 4))))
        for i in range(8):
            self.fq.append(item("buffer_load_dword v%d, v%d, %s, 0 offen offset:%d"
                                % (self.KRAW + 3 + i, o + 3 + i // 4, sr(S_K, 4), (i % 4) * 1024)))
        for i in range(8):
            self.fq.append(item("buffer_load_dword v%d, v%d, %s, 0 offen offset:%d"
                                % (self.VRAW + i, o + 3 + i // 4, sr(S_V, 4), (i % 4) * 1024)))
        self.fq.append(item("buffer_load_dwordx4 %s, v%d, %s, 0 offen" % (vr(self.SHRAW, 4), o + 5, sr(S_SHK, 4))))

    ACK, ACS, ACC_CS = 32, 48, 64
    BF, AK, AS, AC = 80, 96, 104, 112
    SUM, ONE4 = 120, 124

    def s1_setup(self):
        a = self.a
        a("v_bfe_u32 v26, v%d, 1, 3" % vN31)
        a("v_xor_b32 v26, v26, v%d" % vHH)
        a("v_lshlrev_b32 v26, 4, v26")
        a("v_lshl_add_u32 v26, v%d, 7, v26" % vN31)
        a("s_lshl_b32 s%d, s%d, 14" % (sA, sW))
        a("v_add_u32 v128, s%d, v26" % sA)
        for i in range(1, 4):
            a("v_xor_b32 v%d, %d, v128" % (128 + i, 32 * i))
        a("s_lshl_b32 s%d, s%d, 14" % (sA, sKH))
        a("s_add_u32 s%d, s%d, %d" % (sA, sA, LW))
        a("s_lshl_b32 s%d, s%d, 15" % (sB, sKH))
        a("s_add_u32 s%d, s%d, s%d" % (sE, sA, sB))
        a("v_add_u32 v134, s%d, v%d" % (sE, vWN))
        a("s_xor_b32 s%d, s%d, 0x8000" % (sB, sB))
        a("s_add_u32 s%d, s%d, s%d" % (sE, sA, sB))
        a("v_add_u32 v135, s%d, v%d" % (sE, vWN))
        a("s_xor_b32 s%d, s%d, s%d" % (sB, sKH, sTH))
        a("s_lshl_b32 s%d, s%d, 15" % (sB, sB))
        a("s_add_u32 s%d, s%d, s%d" % (sE, sA, sB))
        a("v_add_u32 v136, s%d, v%d" % (sE, vWN))

    def s1_main(self, after_stage):
        a = self.a
        ACK, ACS, ACC_CS, BF, AK, AS, AC, SUM, ONE4 = (self.ACK, self.ACS, self.ACC_CS, self.BF, self.AK, self.AS,
                                                       self.AC, self.SUM, self.ONE4)
        self.selector(ONE4)
        for i in range(4):
            a("v_mov_b32 v%d, 0" % (SUM + i))

        def aread(ks, which):
            base, addr = ((AK, 134), (AS, 135), (AC, 136))[which]
            for hf in range(2):
                a.lds("ds_read_b64_tr_b16 %s, v%d offset:%d"
                      % (vr(base + 4 * (ks & 1) + 2 * hf, 2), addr, ks * 1024 + hf * 256), "f%d_%d" % (ks, which))

        for st in range(4):
            if st < 3:
                after_stage(st)
            for q4 in range(4):
                a.lds("ds_read_b128 %s, v%d offset:%d" % (vr(BF + 4 * q4, 4), 128 + q4, LQ + st * 4096), "b")
            for which in range(3):
                aread(4 * st, which)
            self.fill(1)
            a.wait_lg("b")
            if not self.opt.get("hstat", 0):
                for j in range(16):
                    a("v_dot2c_f32_bf16 v%d, s%d, v%d" % (SUM + (j & 1), sONES, BF + j))
                    a("v_dot2c_f32_bf16 v%d, v%d, v%d" % (SUM + 2 + (j & 1), BF + j, BF + j))
            for q4 in range(4):
                ks = 4 * st + q4
                b = ks & 1
                B = vr(BF + 4 * q4, 4)
                first = ks == 0
                a.wait_lg("f%d_0" % ks)
                a("%s %s, %s, %s, %s" % (MF32, vr(ACK, 16), vr(AK + 4 * b, 4), B, "0" if first else vr(ACK, 16)))
                if q4 < 3:
                    aread(ks + 1, 0)
                self.fill(1)
                a.wait_lg("f%d_1" % ks)
                a("%s %s, %s, %s, %s" % (MF32, vr(ACS, 16), vr(AS + 4 * b, 4), B, "0" if first else vr(ACS, 16)))
                if q4 < 3:
                    aread(ks + 1, 1)
                self.fill(1)
                a.wait_lg("f%d_2" % ks)
                a("%s %s, %s, %s, %s" % (MF16, vr(ACC_CS, 4), vr(AC + 4 * b, 4), vr(ONE4, 4),
                                         "0" if first else vr(ACC_CS, 4)))
                if q4 < 3:
                    aread(ks + 1, 2)
            self.stamp("s1st%d" % st)
        self.fill_all()

    def s1_stats(self):
        a = self.a
        BF, SUM = self.BF, self.SUM
        a("v_bfe_u32 v26, v%d, 1, 3" % vN31)
        a("v_xor_b32 v26, v26, v%d" % vHH)
        a("v_lshlrev_b32 v26, 4, v26")
        a("v_lshl_add_u32 v26, v%d, 7, v26" % vN31)
        a("s_lshl_b32 s%d, s%d, 14" % (sA, sW))
        a("v_add_u32 v128, s%d, v26" % sA)
        for i in range(1, 4):
            a("v_xor_b32 v%d, %d, v128" % (128 + i, 32 * i))
        for i in range(4):
            a("v_mov_b32 v%d, 0" % (SUM + i))
        bufs = (BF, 96)
        for st in range(5):
            if st < 4:
                for q4 in range(4):
                    a.lds("ds_read_b128 %s, v%d offset:%d" % (vr(bufs[st & 1] + 4 * q4, 4), 128 + q4, LQ + st * 4096),
                          "b%d" % st)
            if st:
                a.wait_lg("b%d" % (st - 1))
                B = bufs[(st - 1) & 1]
                for j in range(16):
                    a("v_dot2c_f32_bf16 v%d, s%d, v%d" % (SUM + (j & 1), sONES, B + j))
                    a("v_dot2c_f32_bf16 v%d, v%d, v%d" % (SUM + 2 + (j & 1), B + j, B + j))
        self.stats_write()
        a.wait_lg_all()

    def stats_write(self):
        a = self.a
        SUM = self.SUM
        a("v_add_f32 v%d, v%d, v%d" % (SUM, SUM, SUM + 1))
        a("v_add_f32 v%d, v%d, v%d" % (SUM + 2, SUM + 2, SUM + 3))
        a("v_permlane32_swap_b32 v%d, v%d" % (SUM, SUM + 2))
        a("v_add_f32 v%d, v%d, v%d" % (SUM, SUM, SUM + 2))
        a("s_lshl_b32 s%d, s%d, 8" % (sA, sW))
        a("s_add_u32 s%d, s%d, %d" % (sA, sA, LSTX))
        a("v_lshl_add_u32 v27, v%d, 2, s%d" % (vL, sA))
        a.lds("ds_write_b32 v27, v%d" % SUM)

    def selector(self, dst):
        a = self.a
        a("v_lshrrev_b32 v26, 4, v%d" % vL)
        a("v_xor_b32 v26, v26, v%d" % vL)
        a("v_and_b32 v26, 1, v26")
        a("v_mov_b32 v27, s%d" % sONES)
        a("v_cmp_eq_u32 vcc, 0, v26")
        a("v_cndmask_b32 v%d, 0, v27, vcc" % dst)
        for i in range(1, 4):
            a("v_mov_b32 v%d, v%d" % (dst + i, dst))

    def colsum_write(self, src, sbase):
        a = self.a
        a("v_and_b32 v28, 1, v%d" % vL)
        a("v_lshlrev_b32 v28, 6, v28")
        a("v_lshrrev_b32 v29, 4, v%d" % vL)
        a("v_lshl_add_u32 v28, v29, 4, v28")
        a("v_add_u32 v28, s%d, v28" % sbase)
        self.hold += 1
        a("s_mov_b32 exec_lo, 0x30003")
        a("s_mov_b32 exec_hi, 0x30003")
        a.lds("ds_write_b128 v28, %s" % vr(src, 4))
        a("s_mov_b64 exec, -1")
        self.hold -= 1

    def q_tile_read(self):
        a = self.a
        self.feat0(sE, sKH, 0)
        a("s_lshr_b32 s%d, s%d, 8" % (sA, sE))
        a("s_lshl_b32 s%d, s%d, 1" % (sB, sTH))
        a("s_add_u32 s%d, s%d, s%d" % (sA, sA, sB))
        a("s_lshl_b32 s%d, s%d, 14" % (sA, sA))
        a("s_lshr_b32 s%d, s%d, 6" % (sB, sE))
        a("s_sub_u32 s%d, s%d, s%d" % (sB, sB, sROT))
        a("s_and_b32 s%d, s%d, 3" % (sB, sB))
        a("s_lshl_b32 s%d, s%d, 12" % (sB, sB))
        a("s_add_u32 s%d, s%d, s%d" % (sA, sA, sB))
        a("s_bfe_u32 s%d, s%d, 0x10005" % (sB, sE))
        a("s_lshl_b32 s%d, s%d, 2" % (sB, sB))
        a("v_bfe_u32 v26, v%d, 1, 3" % vN31)
        a("v_xor_b32 v26, s%d, v26" % sB)
        a("v_lshlrev_b32 v27, 7, v%d" % vN31)
        a("v_lshl_add_u32 v27, v%d, 3, v27" % vHH)
        a("v_add_u32 v27, s%d, v27" % sA)
        for j in range(4):
            a("v_xor_b32 v28, %d, v26" % j)
            a("v_lshl_add_u32 v28, v28, 4, v27")
            a.lds("ds_read_b64 %s, v28 offset:%d" % (vr(vQ + 2 * j, 2), LQ), "qt")

    def gelu(self, X, n, vA13, vIA, T, out, fills=0):
        a = self.a
        for g0 in range(0, n // 2, 4):
            ps = list(range(g0, min(g0 + 4, n // 2)))
            t = lambda p: T + 4 * (p - g0)
            x = lambda p: vr(X + 2 * p, 2)
            left = fills

            def hook():
                nonlocal left
                if left > 0:
                    self.fill(1)
                    left -= 1
            for p in ps:
                a("v_pk_mul_f32 %s, %s, %s" % (vr(t(p), 2), x(p), x(p)))
            for p in ps:
                a("v_pk_fma_f32 %s, %s, %s, %s op_sel:[0,1,0] op_sel_hi:[1,1,0]"
                  % (vr(t(p), 2), vr(t(p), 2), vr(vA13, 2), vr(vA13, 2)))
            hook()
            for p in ps:
                a("v_pk_mul_f32 %s, %s, %s" % (vr(t(p), 2), vr(t(p), 2), x(p)))
            for p in ps:
                a("v_exp_f32 v%d, v%d" % (t(p) + 2, t(p)))
                a("v_exp_f32 v%d, v%d" % (t(p) + 3, t(p) + 1))
            hook()
            for p in ps:
                a("v_pk_fma_f32 %s, %s, %s, %s op_sel_hi:[1,0,0]"
                  % (vr(t(p), 2), vr(t(p) + 2, 2), vr(vIA, 2), vr(vIA, 2)))
            hook()
            for p in ps:
                a("v_rcp_f32 v%d, v%d" % (t(p) + 2, t(p)))
                a("v_rcp_f32 v%d, v%d" % (t(p) + 3, t(p) + 1))
            hook()
            for p in ps:
                a("v_pk_mul_f32 %s, %s, %s" % (vr(t(p), 2), vr(t(p) + 2, 2), x(p)))
            for p in ps:
                a("v_cvt_pk_bf16_f32 v%d, v%d, v%d" % (out + p, t(p), t(p) + 1))

    def gelu_consts(self, vA, dst):
        a = self.a
        a("v_mul_f32 v%d, s%d, v%d" % (dst, sKG1, vA))
        a("v_mul_f32 v%d, v%d, v%d" % (dst + 1, vA, vA))
        a("v_mul_f32 v%d, v%d, v%d" % (dst + 1, dst + 1, vA))
        a("v_mul_f32 v%d, s%d, v%d" % (dst + 1, sKG3, dst + 1))
        a("v_rcp_f32 v%d, v%d" % (dst + 2, vA))

    def exchange_write(self, send, base=LRED):
        a = self.a
        a("s_lshl_b32 s%d, s%d, 12" % (sA, sW))
        a("s_add_u32 s%d, s%d, %d" % (sA, sA, base))
        a("v_add_u32 v26, s%d, v%d" % (sA, vL16))
        for j in range(4):
            a.lds("ds_write_b128 v26, %s offset:%d" % (vr(send + 4 * j, 4), 1024 * j))

    def exchange_read(self, dst, base=LRED):
        a = self.a
        a("s_xor_b32 s%d, s%d, 1" % (sA, sW))
        a("s_lshl_b32 s%d, s%d, 12" % (sA, sA))
        a("s_add_u32 s%d, s%d, %d" % (sA, sA, base))
        a("v_add_u32 v26, s%d, v%d" % (sA, vL16))
        for j in range(4):
            a.lds("ds_read_b128 %s, v26 offset:%d" % (vr(dst + 4 * j, 4), 1024 * j), "xr")

    def s1_epilogue(self, after_exchange):
        a = self.a
        ACK, ACS, ACC_CS, SUM = self.ACK, self.ACS, self.ACC_CS, self.SUM
        self.q_tile_read()
        hstat = self.opt.get("hstat", 0)
        if not hstat:
            self.stats_write()
        self.exchange_write(ACS)
        a("s_xor_b32 s%d, s%d, s%d" % (sA, sKH, sTH))
        a("s_lshl_b32 s%d, s%d, 8" % (sA, sA))
        a("s_lshl_b32 s%d, s%d, 7" % (sB, sKH))
        a("s_add_u32 s%d, s%d, s%d" % (sA, sA, sB))
        a("s_add_u32 s%d, s%d, %d" % (sA, sA, LCSX))
        self.colsum_write(ACC_CS, sA)
        a.wait_lg_all()
        self.ssm_d_unpack()
        self.barrier()
        P, C0, C1 = 80, 96, 128
        self.exchange_read(P)
        a("s_xor_b32 s%d, s%d, 1" % (sA, sW))
        a("s_lshl_b32 s%d, s%d, 8" % (sA, sA))
        a("s_add_u32 s%d, s%d, %d" % (sA, sA, LSTX))
        a("v_lshl_add_u32 v27, v%d, 2, s%d" % (vL, sA))
        a.lds("ds_read_b32 v%d, v27" % (SUM + 1), "sx")
        if hstat:
            a("s_lshl_b32 s%d, s%d, 8" % (sA, sW))
            a("s_add_u32 s%d, s%d, %d" % (sA, sA, LSTX))
            a("v_lshl_add_u32 v27, v%d, 2, s%d" % (vL, sA))
            a.lds("ds_read_b32 v%d, v27" % SUM, "sx")
        a("s_lshl_b32 s%d, s%d, 8" % (sA, sKH))
        a("s_add_u32 s%d, s%d, %d" % (sA, sA, LCSX))
        a("v_lshl_add_u32 v28, v%d, 4, s%d" % (vHH, sA))
        for j in range(4):
            a.lds("ds_read_b128 %s, v28 offset:%d" % (vr(C0 + 4 * j, 4), 32 * j))
            a.lds("ds_read_b128 %s, v28 offset:%d" % (vr(C1 + 4 * j, 4), 128 + 32 * j))
        after_exchange()
        a.wait_lg("sx")
        a("v_add_f32 v%d, v%d, v%d" % (SUM, SUM, SUM + 1))
        a("v_mov_b32 v%d, v%d" % (SUM + 2, SUM))
        a("v_permlane32_swap_b32 v%d, v%d" % (SUM, SUM + 2))
        a("v_mul_f32 v%d, s%d, v%d" % (vMEAN, s512I, SUM))
        a("v_mul_f32 v26, s%d, v%d" % (s512I, SUM + 2))
        a("v_fma_f32 v26, -v%d, v%d, v26" % (vMEAN, vMEAN))
        a("v_max_f32 v26, 0, v26")
        a("v_add_f32 v27, s%d, v26" % sEPS)
        a("v_rsq_f32 v%d, v27" % vR1)
        a("v_mul_f32 v27, v%d, v%d" % (vR1, vR1))
        a("v_fma_f32 v27, v27, v26, s%d" % sEPS)
        a("v_rsq_f32 v27, v27")
        a("v_mul_f32 v27, v27, v%d" % vR1)
        G = 112
        self.gelu_consts(27, G)
        a("v_sub_f32 v%d, 0, v%d" % (G + 4, vMEAN))
        a.wait_lg_all()
        for p in range(8):
            a("v_pk_add_f32 %s, %s, %s" % (vr(C0 + 2 * p, 2), vr(C0 + 2 * p, 2), vr(C1 + 2 * p, 2)))
            a("v_pk_add_f32 %s, %s, %s" % (vr(ACK + 2 * p, 2), vr(ACK + 2 * p, 2), vr(P + 2 * p, 2)))
        for p in range(8):
            a("v_pk_fma_f32 %s, %s, %s, %s op_sel_hi:[1,0,1]"
              % (vr(ACK + 2 * p, 2), vr(C0 + 2 * p, 2), vr(G + 4, 2), vr(ACK + 2 * p, 2)))
        self.gelu(ACK, 16, G, G + 2, 144, 48, fills=0)
        self.frag_store(48, WS_HS, "hst")

    def frag_store(self, src, base, tag):
        a = self.a
        a("s_lshl_b32 s%d, s%d, 15" % (sA, sT))
        self.feat0(sB, sKH, 6)
        a("s_add_u32 s%d, s%d, s%d" % (sA, sA, sB))
        a("s_add_u32 s%d, s%d, 0x%x" % (sA, sA, base))
        a.vmem("buffer_store_dwordx4 %s, v%d, %s, s%d offen sc1" % (vr(src, 4), vL16, sr(S_WS, 4), sA), tag)
        a.vmem("buffer_store_dwordx4 %s, v%d, %s, s%d offen offset:1024 sc1"
               % (vr(src + 4, 4), vL16, sr(S_WS, 4), sA), tag)

    PK = 118

    def nonce_compute(self):
        a = self.a
        a.wait_vm("nonce")
        a("v_readfirstlane_b32 s%d, v30" % sN)
        a("s_mul_i32 s%d, s%d, 0x9e3779b1" % (sN, sN))
        a("s_add_u32 s%d, s%d, 0x7f4a7c15" % (sN, sN))

    def p0_compute(self, mid=None):
        a = self.a
        K, V, SH, KV, PK = 56, 78, 94, 102, self.PK
        self.p0_reads()
        a.wait_lg_all()
        d = self.SHRAW
        for j, (x, y, hi) in enumerate([(d, d + 2, 0), (d, d + 2, 1), (d + 1, d + 3, 0), (d + 1, d + 3, 1)]):
            for o, src in ((0, x), (1, y)):
                if hi:
                    a("v_and_b32 v%d, s%d, v%d" % (SH + 2 * j + o, sHI, src))
                else:
                    a("v_lshlrev_b32 v%d, 16, v%d" % (SH + 2 * j + o, src))
        for i in range(11):
            a("v_lshlrev_b32 v%d, 16, v%d" % (K + 2 * i, self.KRAW + i))
            a("v_and_b32 v%d, s%d, v%d" % (K + 2 * i + 1, sHI, self.KRAW + i))
            if i % 4 == 3:
                self.fill(1)
        for i in range(8):
            a("v_lshlrev_b32 v%d, 16, v%d" % (V + 2 * i, self.VRAW + i))
            a("v_and_b32 v%d, s%d, v%d" % (V + 2 * i + 1, sHI, self.VRAW + i))
        self.fill(1)
        for t in range(8):
            a("v_pk_mul_f32 %s, %s, %s" % (vr(KV + 2 * t, 2), vr(K + 2 * (t + 3), 2), vr(SH, 2)))
        self.fill(1)
        for j in range(1, 4):
            for t in range(8):
                a("v_pk_fma_f32 %s, %s, %s, %s" % (vr(KV + 2 * t, 2), vr(K + 2 * (t + 3 - j), 2), vr(SH + 2 * j, 2),
                                                   vr(KV + 2 * t, 2)))
            self.fill(1)
        if mid:
            mid()
            self.fill(4)
        for t in range(8):
            a("v_pk_mul_f32 %s, %s, %s" % (vr(KV + 2 * t, 2), vr(KV + 2 * t, 2), vr(V + 2 * t, 2)))
        self.fill(1)
        for c in range(2):
            for t in range(4):
                a("v_cvt_pk_bf16_f32 v%d, v%d, v%d" % (PK + 4 * c + t, KV + 4 * t + c, KV + 4 * t + 2 + c))
        a("s_lshl_b32 s%d, s%d, 1" % (sA, sW))
        a("v_add_u32 v26, s%d, v%d" % (sA, vHH))
        a("v_and_b32 v27, 7, v%d" % vN31)
        a("v_xor_b32 v26, v26, v27")
        a("v_lshlrev_b32 v26, 4, v26")
        a("v_lshl_add_u32 v26, v%d, 8, v26" % vN31)
        a("v_add_u32 v26, %d, v26" % LSTG)
        a.lds("ds_write_b128 v26, %s" % vr(PK, 4))
        a.lds("ds_write_b128 v26, %s offset:128" % vr(PK + 4, 4))
        self.fill_all()

    def p0_readback(self):
        a = self.a
        PK = 144
        a("v_lshrrev_b32 v26, 3, v%d" % vL)
        a("s_lshl_b32 s%d, s%d, 4" % (sA, sW))
        a("v_add_u32 v26, s%d, v26" % sA)
        a("v_and_b32 v27, 7, v%d" % vL)
        for i in range(2):
            a("v_add_u32 v28, %d, v26" % (8 * i))
            a("v_bfe_u32 v29, v28, 1, 3")
            a("v_xor_b32 v29, v29, v27")
            a("v_lshlrev_b32 v29, 4, v29")
            a("v_lshl_add_u32 v29, v28, 7, v29")
            a("v_add_u32 v29, %d, v29" % LSTG)
            a.lds("ds_read_b128 %s, v29" % vr(PK + 4 * i, 4), "pk")
        a("v_lshlrev_b32 v27, 4, v27")
        a("v_lshl_add_u32 v152, v26, 12, v27")

    def p0_store(self):
        a = self.a
        PK = 144
        a("s_lshl_b32 s%d, s%d, 18" % (sA, sC))
        a("s_lshl_b32 s%d, s%d, 7" % (sB, sR))
        a("s_add_u32 s%d, s%d, s%d" % (sA, sA, sB))
        a("s_add_u32 s%d, s%d, 0x%x" % (sA, sA, WS_KVT))
        a("s_add_u32 s%d, s%d, 0x8000" % (sB, sA))
        a.wait_lg("pk")
        a.vmem("buffer_store_dwordx4 %s, v152, %s, s%d offen sc1" % (vr(PK, 4), sr(S_WS, 4), sA), "kvt")
        a.vmem("buffer_store_dwordx4 %s, v152, %s, s%d offen sc1" % (vr(PK + 4, 4), sr(S_WS, 4), sB), "kvt")

    def conv_filter_loads(self, ch):
        a = self.a
        a("v_lshlrev_b32 v26, 4, v%d" % vTID)
        a("v_subrev_u32 v27, 8, v26")
        a("v_mov_b32 v28, 0x%x" % OOB)
        a("v_cmp_eq_u32 vcc, 0, v%d" % vTID)
        a("v_cndmask_b32 v27, v27, v28, vcc")
        a("s_lshl_b32 s%d, s2, 13" % sA)
        if ch:
            a("s_add_u32 s%d, s%d, 0x1000" % (sA, sA))
        dA, dP = vr(vCH, 4), vr(vCH + 4, 2)
        a.vmem("buffer_load_dwordx4 %s, v26, %s, s%d offen" % (dA, sr(S_SSM, 4), sA), "cf")
        a.vmem("buffer_load_dwordx2 %s, v27, %s, s%d offen" % (dP, sr(S_SSM, 4), sA), "cf")

    def ssm_d_load(self):
        a = self.a
        a("s_lshl_b32 s%d, s2, 2" % sA)
        a("s_load_dword s%d, %s, s%d" % (sD0, sr(S_DPTR, 2), sA))

    def ssm_d_unpack(self):
        a = self.a
        a("s_and_b32 s%d, s%d, s%d" % (sD1, sD0, sHI))
        a("s_lshl_b32 s%d, s%d, 16" % (sD0, sD0))

    def conv_x_loads(self, ch):
        a = self.a
        a("v_lshlrev_b32 v26, 4, v%d" % vTID)
        a("s_lshl_b32 s%d, s2, 13" % sA)
        a("s_add_u32 s%d, s%d, 0x%x" % (sA, sA, WS_KVT + 0x1000 * ch))
        a.vmem("buffer_load_dwordx4 %s, v26, %s, s%d offen sc1" % (vr(vCH + 6, 4), sr(S_WS, 4), sA), "cx")

    def conv_prep_filter(self, ch):
        a = self.a
        base = CV_BASE1 if ch else CV_BASE
        A, P = vCH, vCH + 4
        a.wait_vm("cf")
        a("v_min_u32 v26, 79, v%d" % vTID)
        a("v_subrev_u32 v27, 72, v26")
        a("v_lshrrev_b32 v28, 1, v27")
        a("v_mul_u32_u24 v28, 4128, v28")
        a("v_and_b32 v27, 1, v27")
        a("v_lshl_add_u32 v28, v27, 4, v28")
        a("v_add_u32 v28, %d, v28" % (base + CV_A))
        a("v_lshlrev_b32 v27, 4, v26")
        a("v_add_u32 v27, %d, v27" % (base + CV_X))
        a("v_cmp_gt_u32 vcc, 72, v26")
        a("v_cndmask_b32 v28, v28, v27, vcc")
        for i in range(4):
            a("v_mov_b32 v%d, 0" % (32 + i))
        a.lds("ds_write_b128 v28, %s" % vr(32, 4))
        Z, Y, W = 36, 40, 44
        seq = [P, P + 1, A, A + 1, A + 2, A + 3]
        for j in range(4):
            a("v_alignbit_b32 v%d, v%d, v%d, 16" % (Z + j, seq[j + 1], seq[j]))
            a("v_alignbit_b32 v%d, v%d, v%d, 16" % (Y + j, seq[j + 2], seq[j + 1]))
            a("v_mov_b32 v%d, v%d" % (W + j, seq[j + 1]))
        a("v_lshlrev_b32 v29, 4, v%d" % vTID)
        a("v_add_u32 v29, %d, v29" % base)
        for rho, src in ((0, A), (1, Y), (2, W), (3, Z)):
            a.lds("ds_write_b128 v29, %s offset:%d" % (vr(src, 4), CV_A + 32 + 4128 * rho))
        a.wait_lg_all()

    def conv_x_write(self, ch):
        a = self.a
        base = CV_BASE1 if ch else CV_BASE
        a.wait_vm("cx")
        a("v_lshlrev_b32 v29, 4, v%d" % vTID)
        a("v_add_u32 v29, %d, v29" % base)
        a.lds("ds_write_b128 v29, %s offset:%d" % (vr(vCH + 6, 4), CV_XD))
        a.wait_lg_all()

    def conv_poly(self, ch):
        a = self.a
        base = CV_BASE1 if ch else CV_BASE
        a("s_lshl_b32 s%d, s%d, 5" % (sA, sW))
        a("s_sub_u32 s%d, %d, s%d" % (sA, base + CV_XD - 1024, sA))
        a("v_lshl_add_u32 v26, v%d, 3, s%d" % (vL, sA))
        for u in range(10):
            a.lds("ds_read_b64_tr_b16 %s, v26 offset:%d" % (vr(32 + 2 * u, 2), 512 * u), "u%d" % u)
        a("s_mul_i32 s%d, s%d, 5312" % (sA, sW))
        a("s_add_u32 s%d, s%d, %d" % (sA, sA, base + CV_P))
        a("v_and_b32 v27, 15, v%d" % vL)
        a("v_mul_u32_u24 v27, 328, v27")
        a("v_lshrrev_b32 v28, 4, v%d" % vL)
        a("v_lshl_add_u32 v27, v28, 3, v27")
        a("v_add_u32 v27, s%d, v27" % sA)
        for u in range(10):
            a.wait_lg("u%d" % u)
            a.lds("ds_write_b64 v27, %s offset:%d" % (vr(32 + 2 * u, 2), 32 * u))
        a.wait_lg_all()

    def conv_addr(self, ch):
        a = self.a
        base = CV_BASE1 if ch else CV_BASE
        a("s_lshl_b32 s%d, s%d, 4" % (sA, sTH))
        a("s_sub_u32 s%d, %d, s%d" % (sA, base + CV_A + 24, sA))
        a("v_lshl_add_u32 v160, v%d, 3, s%d" % (vL, sA))
        a("s_mul_i32 s%d, s%d, 2624" % (sA, sTH))
        a("s_lshl_b32 s%d, s%d, 5" % (sB, sKH))
        a("s_add_u32 s%d, s%d, s%d" % (sA, sA, sB))
        a("s_add_u32 s%d, s%d, %d" % (sA, sA, base + CV_P + 32))
        a("v_bfe_u32 v26, v%d, 2, 2" % vL)
        a("v_mul_u32_u24 v26, 5312, v26")
        a("v_and_b32 v27, 3, v%d" % vL)
        a("v_lshrrev_b32 v28, 4, v%d" % vL)
        a("v_sub_u32 v27, v27, v28")
        a("v_lshl_add_u32 v26, v27, 3, v26")
        a("v_add_u32 v161, s%d, v26" % sA)

    CACC, CAF, CBF = 32, 64, 96

    def conv_main(self, hook=None, fill_every=0):
        a = self.a
        CACC, CAF, CBF = self.CACC, self.CAF, self.CBF

        def rd_list(it):
            b = it & 1
            u, rho = it >> 2, it & 3
            out = []
            order = [("A", 0), ("B", 0), ("B", 1), ("B", 2), ("B", 3), ("A", 1), ("A", 2), ("A", 3)]
            for kind, i in order:
                for hf in range(2):
                    if kind == "A":
                        out.append(("ds_read_b64_tr_b16 %s, v160 offset:%d"
                                    % (vr(CAF + 16 * b + 4 * i + 2 * hf, 2),
                                       4128 * rho + 8 * (1 - u) + 1024 * i + 512 * hf), "A%d_%d" % (it, i)))
                    else:
                        out.append(("ds_read_b64_tr_b16 %s, v161 offset:%d"
                                    % (vr(CBF + 16 * b + 4 * i + 2 * hf, 2), 328 * it + 64 * i + 32 * (1 - hf)),
                                    "B%d_%d" % (it, i)))
            return out

        for x, t in rd_list(0):
            a.lds(x, t)
        for it in range(8):
            if hook and it % 2 == 0:
                hook(it // 2)
            b = it & 1
            nxt = rd_list(it + 1) if it < 7 else []
            k = 0
            for q in range(4):
                for i in range(4 - q):
                    a.wait_lg("A%d_%d" % (it, q), "B%d_%d" % (it, i))
                    acc = vr(CACC + 4 * (i + q), 4)
                    a("%s %s, %s, %s, %s" % (MF16, acc, vr(CAF + 16 * b + 4 * q, 4), vr(CBF + 16 * b + 4 * i, 4),
                                             "0" if (it == 0 and q == 0) else acc))
                    for _ in range(2 if k < 6 else 1):
                        if nxt:
                            x, t = nxt.pop(0)
                            a.lds(x, t)
                    k += 1
            assert not nxt

    def conv_finish(self, ch):
        a = self.a
        base = CV_BASE1 if ch else CV_BASE
        CACC = self.CACC
        self.barrier()
        a("s_lshl_b32 s%d, s%d, 11" % (sA, sW))
        a("s_add_u32 s%d, s%d, %d" % (sA, sA, base + CV_R))
        a("v_add_u32 v26, s%d, v%d" % (sA, vL16))
        hi, done = a.newlabel("cvhi"), a.newlabel("cvsent")
        self.hold += 1
        a("s_cmp_lg_u32 s%d, 0" % sTH)
        a("s_cbranch_scc1 %s" % hi)
        for j in range(2):
            a("ds_write_b128 v26, %s offset:%d" % (vr(CACC + 8 + 4 * j, 4), 1024 * j))
        a("s_branch %s" % done)
        a.label(hi)
        for j in range(2):
            a("ds_write_b128 v26, %s offset:%d" % (vr(CACC + 4 * j, 4), 1024 * j))
        a.label(done)
        self.hold -= 1
        a("s_lshl_b32 s%d, s%d, 2" % (sE, sTH))
        a("s_add_u32 s%d, s%d, s%d" % (sE, sE, sKH))
        a("s_lshl_b32 s%d, s%d, 9" % (sE, sE))
        a("s_add_u32 s%d, s%d, %d" % (sA, sE, base + CV_XD))
        a("v_and_b32 v27, 15, v%d" % vL)
        a("v_lshlrev_b32 v27, 5, v27")
        a("v_lshrrev_b32 v28, 4, v%d" % vL)
        a("v_lshl_add_u32 v27, v28, 3, v27")
        a("v_add_u32 v27, s%d, v27" % sA)
        for u in range(2):
            a.lds("ds_read_b64 %s, v27 offset:%d" % (vr(100 + 2 * u, 2), 1024 * u))
        a.wait_lg_all()
        self.barrier()
        a("s_xor_b32 s%d, s%d, 2" % (sA, sW))
        a("s_lshl_b32 s%d, s%d, 11" % (sA, sA))
        a("s_add_u32 s%d, s%d, %d" % (sA, sA, base + CV_R))
        a("v_add_u32 v26, s%d, v%d" % (sA, vL16))
        for u in range(2):
            a.lds("ds_read_b128 %s, v26 offset:%d" % (vr(72 + 4 * u, 4), 1024 * u))
        for u in range(2):
            for j in range(2):
                a("v_lshlrev_b32 v%d, 16, v%d" % (104 + 4 * u + 2 * j, 100 + 2 * u + j))
                a("v_and_b32 v%d, s%d, v%d" % (105 + 4 * u + 2 * j, sHI, 100 + 2 * u + j))
        a("v_mov_b32 v112, s%d" % (sD1 if ch else sD0))
        a("v_lshrrev_b32 v26, 4, v%d" % vL)
        a("v_and_b32 v27, 1, v26")
        a("v_lshlrev_b32 v27, 10, v27")
        a("v_lshrrev_b32 v26, 1, v26")
        a("v_lshl_add_u32 v27, v26, 4, v27")
        a("v_and_b32 v26, 15, v%d" % vL)
        a("v_lshl_add_u32 v27, v26, 5, v27")
        a("v_add_u32 v27, s%d, v27" % sE)
        a("s_lshl_b32 s%d, s2, 13" % sA)
        a("s_add_u32 s%d, s%d, 0x%x" % (sA, sA, WS_YT + 0x1000 * ch))
        a.wait_lg_all()
        hi, done = a.newlabel("cvhi"), a.newlabel("cvsum")
        self.hold += 1
        a("s_cmp_lg_u32 s%d, 0" % sTH)
        a("s_cbranch_scc1 %s" % hi)
        for p in range(4):
            a("v_pk_add_f32 %s, %s, %s" % (vr(64 + 2 * p, 2), vr(CACC + 2 * p, 2), vr(72 + 2 * p, 2)))
        a("s_branch %s" % done)
        a.label(hi)
        for p in range(4):
            a("v_pk_add_f32 %s, %s, %s" % (vr(64 + 2 * p, 2), vr(CACC + 8 + 2 * p, 2), vr(72 + 2 * p, 2)))
        a.label(done)
        self.hold -= 1
        for p in range(4):
            a("v_pk_fma_f32 %s, %s, %s, %s op_sel_hi:[1,0,1]" % (vr(64 + 2 * p, 2), vr(104 + 2 * p, 2), vr(112, 2),
                                                                vr(64 + 2 * p, 2)))
        for p in range(4):
            a("v_cvt_pk_bf16_f32 v%d, v%d, v%d" % (116 + p, 64 + 2 * p, 65 + 2 * p))
        a("v_permlane16_swap_b32 v116, v118")
        a("v_permlane16_swap_b32 v117, v119")
        a.vmem("buffer_store_dwordx4 %s, v27, %s, s%d offen sc1" % (vr(116, 4), sr(S_WS, 4), sA), "yt")

    def s2_load_items(self):
        a = self.a
        a("s_lshl_b32 s%d, s%d, 5" % (sA, sT))
        a("v_add_u32 v26, s%d, v%d" % (sA, vN31))
        a("s_add_u32 s%d, s%d, 1" % (sB, sKH))
        a("s_lshl_b32 s%d, s%d, 14" % (sA, sKH))
        a("s_add_u32 s%d, s%d, 0x%x" % (sA, sA, WS_HS))
        a("v_mov_b32 v29, 0x%x" % OOB)
        for i, op in enumerate(("v_subrev_u32", "v_add_u32")):
            a("%s v27, s%d, v26" % (op, sB))
            a("v_lshrrev_b32 v28, 5, v27")
            a("v_lshlrev_b32 v28, 15, v28")
            a("v_and_b32 v30, 31, v27")
            a("v_lshl_add_u32 v30, v%d, 5, v30" % vHH)
            a("v_lshl_add_u32 v28, v30, 4, v28")
            a("v_add_u32 v28, s%d, v28" % sA)
            a("v_cmp_gt_u32 vcc, 0x800, v27")
            a("v_cndmask_b32 v%d, v29, v28, vcc" % (140 + i))
        so = ["0", "s%d" % sK4, "s%d" % sK8, "s%d" % sK12]
        items = []
        for ks in range(16):
            def f(ks=ks):
                a.vmem("buffer_load_dwordx4 %s, v%d, %s, %s offen offset:%d sc1"
                       % (ar(4 * ks, 4), 140 + (ks >> 3), sr(S_WS, 4), so[ks >> 2], (ks & 3) * 1024), "h%d" % ks)
            items.append(f)
        return items

    def wpi_addr(self, vk, vs, base, khs, ps):
        a = self.a
        a("s_mul_i32 s%d, s%d, %d" % (sA, sKH, khs + ps))
        a("s_add_u32 s%d, s%d, %d" % (sA, sA, base))
        a("v_add_u32 v%d, s%d, v%d" % (vk, sA, vWP))
        a("s_mul_i32 s%d, s%d, %d" % (sA, sKH, khs - ps))
        a("s_add_u32 s%d, s%d, %d" % (sA, sA, base + ps))
        a("v_add_u32 v%d, s%d, v%d" % (vs, sA, vWP))

    def s2_main(self):
        a = self.a
        ACK, ACS, AK, AS = self.ACK, self.ACS, self.AK, self.AS

        def rd(ks, which):
            base, addr = ((AK, 128), (AS, 129))[which]
            for hf in range(2):
                a.lds("ds_read_b64_tr_b16 %s, v%d offset:%d" % (vr(base + 4 * (ks & 1) + 2 * hf, 2), addr,
                                                                ks * 1024 + hf * 512), "f%d_%d" % (ks, which))
        rd(0, 0)
        rd(0, 1)
        for ks in range(16):
            b = ks & 1
            a.wait_both("h%d" % ks, "f%d_0" % ks)
            a("%s %s, %s, %s, %s" % (MF32, vr(ACK, 16), vr(AK + 4 * b, 4), ar(4 * ks, 4), "0" if ks == 0 else vr(ACK, 16)))
            if ks < 15:
                rd(ks + 1, 0)
            self.fill(1)
            a.wait_lg("f%d_1" % ks)
            a("%s %s, %s, %s, %s" % (MF32, vr(ACS, 16), vr(AS + 4 * b, 4), ar(4 * ks, 4), "0" if ks == 0 else vr(ACS, 16)))
            if ks < 15:
                rd(ks + 1, 1)
            if ks in (0, 4, 9, 12):
                self.stamp("s2k%d" % ks)

    def unpack8(self, src, dst):
        a = self.a
        for j in range(8):
            a("v_lshlrev_b32 v%d, 16, v%d" % (dst + 2 * j, src + j))
            a("v_and_b32 v%d, s%d, v%d" % (dst + 2 * j + 1, sHI, src + j))

    def xn_tile(self, dst):
        a = self.a
        self.unpack8(vQ, dst)
        for p in range(8):
            a("v_pk_add_f32 %s, %s, %s op_sel_hi:[1,0] neg_lo:[0,1] neg_hi:[0,1]"
              % (vr(dst + 2 * p, 2), vr(dst + 2 * p, 2), vr(vMEAN, 2)))
        for p in range(8):
            a("v_pk_mul_f32 %s, %s, %s op_sel:[0,1] op_sel_hi:[1,1]"
              % (vr(dst + 2 * p, 2), vr(dst + 2 * p, 2), vr(vMEAN, 2)))

    def s2_epilogue(self, after_exchange):
        a = self.a
        ACK, ACS = self.ACK, self.ACS
        self.exchange_write(ACS)
        self.xn_tile(96)
        a.wait_lg_all()
        self.barrier()
        after_exchange()
        self.exchange_read(80)
        for p in range(8):
            a("v_pk_add_f32 %s, %s, %s" % (vr(ACK + 2 * p, 2), vr(ACK + 2 * p, 2), vr(96 + 2 * p, 2)))
        a.wait_lg_all()
        for p in range(8):
            a("v_pk_add_f32 %s, %s, %s" % (vr(ACK + 2 * p, 2), vr(ACK + 2 * p, 2), vr(80 + 2 * p, 2)))
        for p in range(8):
            a("v_cvt_pk_bf16_f32 v%d, v%d, v%d" % (vX1 + p, ACK + 2 * p, ACK + 2 * p + 1))
        self.frag_store(vX1, WS_X1, "x1st")
        a("v_pk_mul_f32 %s, %s, %s" % (vr(112, 2), vr(ACK, 2), vr(ACK, 2)))
        a("v_pk_add_f32 %s, %s, %s" % (vr(114, 2), vr(ACK, 2), vr(ACK + 2, 2)))
        for p in range(1, 8):
            a("v_pk_fma_f32 %s, %s, %s, %s" % (vr(112, 2), vr(ACK + 2 * p, 2), vr(ACK + 2 * p, 2), vr(112, 2)))
            if p >= 2:
                a("v_pk_add_f32 %s, %s, %s" % (vr(114, 2), vr(114, 2), vr(ACK + 2 * p, 2)))
        a("v_add_f32 v114, v114, v115")
        a("v_add_f32 v112, v112, v113")
        a("v_permlane32_swap_b32 v114, v112")
        a("v_add_f32 v114, v114, v112")
        a("s_lshl_b32 s%d, s%d, 1" % (sA, sC))
        a("s_add_u32 s%d, s%d, s%d" % (sA, sA, sKH))
        a("s_lshl_b32 s%d, s%d, 14" % (sA, sA))
        a("s_lshl_b32 s%d, s%d, 7" % (sB, sT))
        a("s_add_u32 s%d, s%d, s%d" % (sA, sA, sB))
        a("s_add_u32 s%d, s%d, 0x%x" % (sA, sA, WS_ST))
        a("v_lshlrev_b32 v26, 13, v%d" % vHH)
        a("v_lshl_add_u32 v26, v%d, 2, v26" % vN31)
        a.vmem("buffer_store_dword v114, v26, %s, s%d offen sc1" % (sr(S_WS, 4), sA), "x1st")

    def w3_setup(self):
        a = self.a
        a("s_movk_i32 s%d, 3584" % sB)
        a("v_lshrrev_b32 v26, 2, v%d" % vL)
        a("v_mul_lo_u32 v26, v26, s%d" % sB)
        a("v_and_b32 v27, 3, v%d" % vL)
        a("v_lshl_add_u32 v%d, v27, 4, v26" % vW3F)
        a("v_lshrrev_b32 v26, 1, v%d" % vL)
        a("v_mul_lo_u32 v26, v26, s%d" % sB)
        a("v_and_b32 v27, 1, v%d" % vL)
        a("v_lshl_add_u32 v%d, v27, 4, v26" % vW3H)
        a("s_mul_i32 s%d, s%d, %d" % (sW3HG, sW, 128 * 3584))
        a("s_mul_i32 s%d, s%d, 224" % (sA, sCP))
        a("s_add_u32 s%d, s%d, s%d" % (sW3HG, sW3HG, sA))
        a("s_and_b32 s%d, s%d, 1" % (sB, sCP))
        a("s_lshl_b32 s%d, s%d, 5" % (sW3G, sB))
        a("s_add_u32 s%d, s%d, s%d" % (sW3G, sW3G, sW3HG))
        a("s_xor_b32 s%d, s%d, 1" % (sB, sB))
        a("s_mul_i32 s%d, s%d, 192" % (sB, sB))
        a("s_add_u32 s%d, s%d, s%d" % (sW3HG, sW3HG, sB))
        a("s_lshl_b32 s%d, s%d, 13" % (sW3L, sW))
        a("s_lshl_b32 s%d, s%d, 12" % (sW3HL, sW))

    def w3_items(self, panels):
        out = []
        for p in panels:
            if p < 3:
                for i in range(8):
                    out.append(self.dma_item(S_W3, vW3F, sW3L, W3_P + p * 32768 + i * 1024, sW3G,
                                             p * 64 + i * 16 * 3584, "w3"))
            else:
                for i in range(4):
                    out.append(self.dma_item(S_W3, vW3H, sW3HL, W3_H + i * 1024, sW3HG, i * 32 * 3584, "w3"))
        return out

    def s3_load_items(self):
        a = self.a
        a("s_lshl_b32 s%d, s%d, 15" % (sLD, sT3))
        a("s_add_u32 s%d, s%d, 0x%x" % (sLD, sLD, WS_X1))
        items = []
        for ks in range(32):
            def f(ks=ks):
                if ks and ks % 4 == 0:
                    a("s_add_u32 s%d, s%d, 0x1000" % (sLD, sLD))
                a.vmem("buffer_load_dwordx4 %s, v%d, %s, s%d offen offset:%d sc1"
                       % (ar(4 * (ks % 16), 4), vL16, sr(S_WS, 4), sLD, (ks & 3) * 1024), "x%d" % ks)
            items.append(f)
        return items

    def s3_stat_items(self):
        a = self.a
        a("v_lshlrev_b32 v147, 13, v%d" % vHH)
        a("v_lshl_add_u32 v147, v%d, 2, v147" % vN31)
        items = []
        for sl in range(16):
            def f(sl=sl):
                a("s_lshl_b32 s%d, s%d, 7" % (sSO, sT3))
                a("s_add_u32 s%d, s%d, 0x%x" % (sSO, sSO, WS_ST + 0x4000 * sl))
                a.vmem("buffer_load_dword v%d, v147, %s, s%d offen sc1" % (vST + sl, sr(S_WS, 4), sSO), "st")
            items.append(f)
        return items

    def s3_addr(self):
        a = self.a
        a("v_add_u32 v144, %d, v%d" % (W3_P, vWP))
        a("v_add_u32 v145, %d, v%d" % (W3_P + 65536, vWP))
        a("v_bfe_u32 v26, v%d, 2, 2" % vL)
        a("v_lshl_add_u32 v26, v%d, 2, v26" % vHH)
        a("v_and_b32 v27, 3, v%d" % vL)
        a("v_lshlrev_b32 v27, 3, v27")
        a("v_lshl_add_u32 v26, v26, 5, v27")
        a("v_add_u32 v146, %d, v26" % W3_H)

    @staticmethod
    def w3_read(p, ks, hf, dst):
        if p < 2:
            return "ds_read_b64_tr_b16 %s, v144 offset:%d" % (vr(dst, 2), p * 32768 + ks * 1024 + hf * 512)
        if p == 2:
            return "ds_read_b64_tr_b16 %s, v145 offset:%d" % (vr(dst, 2), ks * 1024 + hf * 512)
        return "ds_read_b64_tr_b16 %s, v146 offset:%d" % (vr(dst, 2), ks * 512 + hf * 256)

    def s3_colsum(self):
        self.hold += 1
        self._s3_colsum()
        self.hold -= 1

    def _s3_colsum(self):
        a = self.a
        full = a.newlabel("csfull")
        done = a.newlabel("csdone")
        self.selector(120)
        a("s_cmp_lt_u32 s%d, 3" % sW)
        a("s_cbranch_scc1 %s" % full)
        for is_full in (False, True):
            if is_full:
                a.label(full)
                a("s_lshl_b32 s%d, s%d, 15" % (sA, sW))
                a("v_add_u32 v148, s%d, v144" % sA)
            stride, hstep, addr = (1024, 512, 148) if is_full else (512, 256, 146)
            saved = list(a.lg)
            a.lg = []

            def rd(ks):
                for hf in range(2):
                    a.lds("ds_read_b64_tr_b16 %s, v%d offset:%d" % (vr(96 + 4 * (ks % 6) + 2 * hf, 2), addr,
                                                                    ks * stride + hf * hstep), "c%d" % ks)
            for ks in range(5):
                rd(ks)
            for ks in range(32):
                a.wait_lg("c%d" % ks)
                a("%s %s, %s, %s, %s" % (MF16, vr(32 + 4 * (ks & 1), 4), vr(96 + 4 * (ks % 6), 4), vr(120, 4),
                                         "0" if ks < 2 else vr(32 + 4 * (ks & 1), 4)))
                if ks + 5 < 32:
                    rd(ks + 5)
            a.lg = saved
            if not is_full:
                a("s_branch %s" % done)
        a.label(done)
        a("v_pk_add_f32 v[32:33], v[32:33], v[36:37]")
        a("v_pk_add_f32 v[34:35], v[34:35], v[38:39]")
        a("s_lshl_b32 s%d, s%d, 7" % (sA, sW))
        a("s_add_u32 s%d, s%d, %d" % (sA, sA, LCS3))
        self.colsum_write(32, sA)
        a.wait_lg_all()

    S3G = 128

    def s3_shadow_ops(self):
        G = self.S3G
        ops = []
        for s in (8, 4, 2, 1):
            for i in range(s):
                ops.append("v_add_f32 v%d, v%d, v%d" % (vST + i, vST + i, vST + i + s))
        ops += ["v_mov_b32 v%d, v%d" % (vST + 1, vST),
                "v_lshlrev_b32 v28, 4, v%d" % vHH,
                "v_add_u32 v149, %d, v28" % LCS3,
                "v_permlane32_swap_b32 v%d, v%d" % (vST, vST + 1),
                "s_mul_i32 s%d, s%d, 114688" % (sD, sT3),
                "v_mul_f32 v%d, s%d, v%d" % (vST + 2, s512I, vST),
                "s_mul_i32 s%d, s%d, 7168" % (sA, sCP),
                "v_mul_f32 v26, s%d, v%d" % (s512I, vST + 1),
                "s_add_u32 s%d, s%d, s%d" % (sD, sD, sA),
                "v_fma_f32 v26, -v%d, v%d, v26" % (vST + 2, vST + 2),
                "s_add_u32 s%d, s%d, 0x%x" % (sD, sD, WS_HH),
                "v_max_f32 v26, 0, v26",
                "s_and_b32 s%d, s%d, 1" % (sB, sCP),
                "v_add_f32 v26, s%d, v26" % sEPS,
                "s_lshl_b32 s%d, s%d, 10" % (sE, sB),
                "v_rsq_f32 v27, v26",
                "s_add_u32 s%d, s%d, s%d" % (sE, sE, sD),
                "v_sub_f32 v%d, 0, v%d" % (G + 4, vST + 2),
                "s_xor_b32 s%d, s%d, 1" % (sB, sB),
                "v_mul_f32 v%d, s%d, v27" % (G, sKG1),
                "s_mul_i32 s%d, s%d, 6144" % (sB, sB),
                "v_mul_f32 v%d, v27, v27" % (G + 1),
                "s_add_u32 s%d, s%d, s%d" % (sF, sD, sB),
                "v_mul_f32 v%d, v%d, v27" % (G + 1, G + 1),
                "v_mul_f32 v%d, s%d, v%d" % (G + 1, sKG3, G + 1),
                "v_rcp_f32 v%d, v27" % (G + 2)]
        return ops

    def s3_csread(self, p):
        a = self.a
        n = 16 if p < 3 else 8
        for j in range(n // 4):
            a.lds("ds_read_b128 %s, v149 offset:%d" % (vr(96 + 16 * (p & 1) + 4 * j, 4), 128 * p + 32 * j), "cs%d" % p)

    def s3_main(self, mid):
        a = self.a
        AF = 96
        shadow = self.s3_shadow_ops() if self.opt.get("s3sh", 1) else []
        self.s3_left = shadow
        first = self.opt.get("s3sh0", 24)

        def rd(ks, p):
            for hf in range(2):
                a.lds(self.w3_read(p, ks, hf, AF + 16 * (ks & 1) + 4 * p + 2 * hf), "f%d_%d" % (ks, p))
        for p in range(4):
            rd(0, p)
        for ks in range(32):
            b = ks & 1
            if ks == first and shadow:
                a.wait_vm("st")
            for p in range(4):
                if p == 0:
                    a.wait_both("x%d" % ks, "f%d_0" % ks)
                else:
                    a.wait_lg("f%d_%d" % (ks, p))
                acc = vr(32 + 16 * p, 16)
                a("%s %s, %s, %s, %s" % (MF32, acc, vr(AF + 16 * b + 4 * p, 4), ar(4 * (ks % 16), 4),
                                         "0" if ks == 0 else acc))
                if ks < 31:
                    rd(ks + 1, p)
                if p in (0, 2):
                    self.fill(1)
                if ks >= first:
                    for _ in range(2):
                        if shadow:
                            a(shadow.pop(0))
            if ks == self.opt.get("s3mid", 18):
                mid()
            if ks in (7, 15, 23) and self.opt.get("s3st", 0):
                self.stamp("s3k%d" % ks)

    def s3_epilogue(self, after_tile):
        a = self.a
        G = self.S3G
        if not self.opt.get("s3sh", 1):
            a.wait_vm("st")
            self.s3_left = self.s3_shadow_ops()
        for x in self.s3_left:
            a(x)
        csread = self.s3_csread
        csread(0)
        for p in range(4):
            n = 16 if p < 3 else 8
            C = 96 + 16 * (p & 1)
            if p < 3:
                csread(p + 1)
            a.wait_lg("cs%d" % p)
            acc = 32 + 16 * p
            for i in range(n // 2):
                a("v_pk_fma_f32 %s, %s, %s, %s op_sel_hi:[1,0,1]"
                  % (vr(acc + 2 * i, 2), vr(C + 2 * i, 2), vr(G + 4, 2), vr(acc + 2 * i, 2)))
            out = 152 + 8 * (p & 1)
            self.gelu(acc, n, G, G + 2, 176, out, fills=0)
            if p < 3:
                a("s_add_u32 s%d, s%d, %d" % (sA, sE, 2048 * p))
                a.vmem("buffer_store_dwordx4 %s, v%d, %s, s%d offen sc1" % (vr(out, 4), vL16, sr(S_WS, 4), sA), "Hst")
                a.vmem("buffer_store_dwordx4 %s, v%d, %s, s%d offen offset:1024 sc1"
                       % (vr(out + 4, 4), vL16, sr(S_WS, 4), sA), "Hst")
            else:
                a.vmem("buffer_store_dwordx4 %s, v%d, %s, s%d offen sc1" % (vr(out, 4), vL16, sr(S_WS, 4), sF), "Hst")
            after_tile(p)

    def w4_setup(self):
        a = self.a
        a("s_lshl_b32 s%d, s%d, 11" % (sW4L, sKH))
        a("s_lshl_b32 s%d, s%d, 10" % (sA, sTH))
        a("s_add_u32 s%d, s%d, s%d" % (sW4L, sW4L, sA))
        a("s_mul_i32 s%d, s%d, %d" % (sW4G, sKH, 896 * 1024))
        self.feat0(sA, sTH, 1)
        a("s_add_u32 s%d, s%d, s%d" % (sW4G, sW4G, sA))
        for i in range(8):
            if self.opt.get("rot4", 0):
                a("s_add_u32 s%d, s%d, %d" % (sA, sC, i))
                a("s_and_b32 s%d, s%d, 7" % (sA, sA))
                a("s_mul_i32 s%d, s%d, %d" % (sA, sA, 7 * 16384))
                a("s_add_u32 s%d, s%d, s%d" % (self.SW4B + i, sW4G, sA))
            else:
                a("s_add_u32 s%d, s%d, %d" % (self.SW4B + i, sW4G, i * 7 * 16384))

    SW4B = 12
    W4R = 56

    def w4_reg_loads(self, ks0, ks1):
        def item(ks):
            def f():
                a = self.a
                a("s_add_u32 s%d, s%d, %d" % (sSO, self.SW4B + ks // 7, (ks % 7) * 16384))
                a.vmem("buffer_load_dwordx4 %s, v%d, %s, s%d offen" % (vr(self.W4R + 4 * (ks - W4_B), 4), vW64,
                                                                     sr(S_W4, 4), sSO), "w4r")
                a.check_vm_depth()
            return f
        return [item(ks) for ks in range(ks0, ks1)]

    def w4_reg_writes(self, ks0, ks1):
        def f():
            a = self.a
            a.wait_vm("w4r")
            for i in range(3):
                a("v_add_u32 v%d, s%d, v%d" % (28 + i, sW4L, vL16))
                if i:
                    a("v_add_u32 v%d, %d, v%d" % (28 + i, 65536 * i, 28 + i))
            for ks in range(ks0, ks1):
                off = w4_off(ks)
                if self.opt.get("x_nowr", 0):
                    continue
                a.lds("ds_write_b128 v%d, %s offset:%d" % (28 + off // 65536, vr(self.W4R + 4 * (ks - W4_B), 4),
                                                           off % 65536))
                pace = self.opt.get("wpace", 0)
                if pace and (ks - ks0) % pace == pace - 1:
                    a.wait_lg_all()
            a.wait_lg_all()
        return f

    def w4_items(self, ks0, ks1, tag):
        return [self.dma_item(S_W4, vW64, sW4L, w4_off(ks), self.SW4B + ks // 7, (ks % 7) * 16384, tag)
                for ks in range(ks0, ks1)]

    def hring(self, ks):
        n = self.opt.get("hring", 24)
        i = ks % n
        return ar(4 * i, 4) if i < 16 else vr(64 + 4 * (i - 16), 4)

    def s4_load_items(self):
        a = self.a
        a("s_mul_i32 s%d, s%d, %d" % (sLD, sT, 0 if self.opt.get("x_hot", 0) else 114688))
        a("s_mul_i32 s%d, s%d, %d" % (sB, sKH, 56 * 1024))
        a("s_add_u32 s%d, s%d, s%d" % (sLD, sLD, sB))
        a("s_add_u32 s%d, s%d, 0x%x" % (sLD, sLD, WS_HH))
        items = []
        for ks in range(56):
            def f(ks=ks):
                i, t = divmod(ks, 7)
                if t == 0:
                    if self.opt.get("rot4", 0):
                        a("s_add_u32 s%d, s%d, %d" % (sW4L, sC, i))
                        a("s_and_b32 s%d, s%d, 7" % (sW4L, sW4L))
                        a("s_mul_i32 s%d, s%d, 7168" % (sW4L, sW4L))
                        a("s_add_u32 s%d, s%d, s%d" % (sW4L, sW4L, sLD))
                    else:
                        a("s_add_u32 s%d, s%d, %d" % (sW4L, sLD, i * 7168))
                if t == 4:
                    a("s_add_u32 s%d, s%d, 0x1000" % (sW4L, sW4L))
                a.vmem("buffer_load_dwordx4 %s, v%d, %s, s%d offen offset:%d sc1"
                       % (self.hring(ks), vL16, sr(S_WS, 4), sW4L, (t & 3) * 1024), "H%d" % ks)
                a.check_vm_depth()
            items.append(f)
        return items

    Y_LDS = 49152

    def s4_y_loads(self):
        a = self.a
        self.feat0(sE, sKH, 12)
        a("s_lshl_b32 s%d, s%d, 6" % (sB, sT))
        a("s_add_u32 s%d, s%d, s%d" % (sE, sE, sB))
        a("s_add_u32 s%d, s%d, 0x%x" % (sE, sE, WS_YT))
        a("s_add_u32 s%d, s%d, 0x10000" % (sB, sE))
        a("v_lshrrev_b32 v147, 2, v%d" % vL)
        a("v_lshlrev_b32 v147, 12, v147")
        a("v_and_b32 v26, 3, v%d" % vL)
        a("v_lshl_add_u32 v147, v26, 4, v147")
        a.vmem("buffer_load_dwordx4 %s, v147, %s, s%d offen sc1" % (vr(vST, 4), sr(S_WS, 4), sE), "y")
        a.vmem("buffer_load_dwordx4 %s, v147, %s, s%d offen sc1" % (vr(vST + 4, 4), sr(S_WS, 4), sB), "y")

    def s4_y_write(self):
        a = self.a
        a.wait_vm("y")
        a("s_lshl_b32 s%d, s%d, 11" % (sB, sW))
        a("s_add_u32 s%d, s%d, %d" % (sB, sB, self.Y_LDS))
        a("v_add_u32 v147, s%d, v%d" % (sB, vL16))
        a.lds("ds_write_b128 v147, %s" % vr(vST, 4), "yw")
        a.lds("ds_write_b128 v147, %s offset:1024" % vr(vST + 4, 4), "yw")
        a("v_add_u32 v147, s%d, v%d" % (sB, vWP))

    def s4_y_read(self):
        a = self.a
        a.wait_lg("yw")
        for q in range(4):
            a.lds("ds_read_b64_tr_b16 %s, v147 offset:%d" % (vr(vST + 8 + 2 * q, 2), 512 * q), "yr")

    XN4, BASE4 = 112, 148

    def s4_shadow_ops(self):
        XN, B = self.XN4, self.BASE4
        pre, post = [], []
        for j in range(8):
            pre.append("v_lshlrev_b32 v%d, 16, v%d" % (XN + 2 * j, vQ + j))
            pre.append("v_and_b32 v%d, s%d, v%d" % (XN + 2 * j + 1, sHI, vQ + j))
            pre.append("v_lshlrev_b32 v%d, 16, v%d" % (B + 2 * j, vX1 + j))
            pre.append("v_and_b32 v%d, s%d, v%d" % (B + 2 * j + 1, sHI, vX1 + j))
        for r in range(16):
            pre.append("v_add_f32 v%d, v%d, v%d" % (B + r, B + r, XN + r))
            pre.append("v_sub_f32 v%d, v%d, v%d" % (XN + r, XN + r, vMEAN))
            pre.append("v_mul_f32 v%d, v%d, v%d" % (XN + r, XN + r, vR1))
        for j in range(8):
            post.append("v_lshlrev_b32 v164, 16, v%d" % (vST + 8 + j))
            post.append("v_and_b32 v165, s%d, v%d" % (sHI, vST + 8 + j))
            post.append("v_fmac_f32 v%d, v%d, v164" % (B + 2 * j, XN + 2 * j))
            post.append("v_fmac_f32 v%d, v%d, v165" % (B + 2 * j + 1, XN + 2 * j + 1))
        return pre, post

    def s4_out_addr(self):
        a = self.a
        a("s_lshl_b32 s%d, s%d, 15" % (sE, sT))
        self.feat0(sB, sKH, 1)
        a("s_add_u32 s%d, s%d, s%d" % (sE, sE, sB))
        a("v_lshlrev_b32 v146, 10, v%d" % vN31)
        a("v_lshl_add_u32 v146, v%d, 4, v146" % vHH)
        a("v_add_u32 v146, s%d, v146" % sE)

    def s4_addr(self):
        a = self.a
        self.wpi_addr(128, 131, 0, 2048, 1024)
        for i in (1, 2):
            a("v_add_u32 v%d, %d, v128" % (128 + i, 65536 * i))
            a("v_add_u32 v%d, %d, v131" % (131 + i, 65536 * i))

    def s4_main(self, hitems):
        a = self.a
        ACK, ACS, AK, AS = self.ACK, self.ACS, self.AK, self.AS

        def rd(ks, which):
            off = w4_off(ks)
            base, addr = ((AK, 128), (AS, 131))[which]
            for hf in range(2):
                a.lds("ds_read_b64_tr_b16 %s, v%d offset:%d"
                      % (vr(base + 4 * (ks & 1) + 2 * hf, 2), addr + off // 65536, off % 65536 + hf * 512),
                      "f%d_%d" % (ks, which))
        pre, post = self.s4_shadow_ops()
        yq = []
        f1, f2 = self.opt.get("f1", 10), self.opt.get("f2", 18)
        xb = self.opt.get("x_nobar", 0)
        if xb:
            self.h("s_endpgm")
        else:
            self.hact(self.w4_reg_writes(W4_B, W4_C))
        rd(0, 0)
        rd(0, 1)
        for ks in range(56):
            ahead = ks < 55
            b = ks & 1
            B = self.hring(ks)
            if self.opt.get("x_nowait", 0):
                a.wait_lg("f%d_0" % ks)
            else:
                a.wait_both("H%d" % ks, "f%d_0" % ks)
            a("%s %s, %s, %s, %s" % (MF32, vr(ACK, 16), vr(AK + 4 * b, 4), B, "0" if ks == 0 else vr(ACK, 16)))
            if ahead:
                rd(ks + 1, 0)
            if hitems and ks >= 1:
                hitems.pop(0)()
            a.wait_lg("f%d_1" % ks)
            a("%s %s, %s, %s, %s" % (MF32, vr(ACS, 16), vr(AS + 4 * b, 4), B, "0" if ks == 0 else vr(ACS, 16)))
            if ahead:
                rd(ks + 1, 1)
            for _ in range(self.opt.get("npre", 3)):
                if pre and ks >= 2:
                    a(pre.pop(0))
            if ks == self.opt.get("cvflag", 9):
                self.conv_wave_flag()
            if ks == 56 - W4_C - 1 and not xb:
                self.barrier()
                self.hact(self.w4_reg_writes(W4_C, 56))
            if ks == self.opt.get("ycheck", 34) - self.opt.get("ygap", 12) and not self.opt.get("x_noy", 0):
                self.idx_cv()
                self.poll_issue(F_CV, "pcv")
            if ks == self.opt.get("ycheck", 34) and not self.opt.get("x_noy", 0):
                self.poll_check("pcv", 4)
                self.s4_y_loads()
            if ks == self.opt.get("b2", 30) and not xb:
                self.barrier()
                if self.opt.get("barstamps", 0):
                    h = self.h
                    lab = h.newlabel("nobs")
                    h("s_cmp_lg_u32 s%d, 0" % sW)
                    h("s_cbranch_scc1 %s" % lab)
                    h("s_lshl_b32 s%d, s2, 8" % sA)
                    h("s_add_u32 s%d, s%d, 0x%x" % (sA, sA, WS_STAMP + 0x20000))
                    h("v_lshlrev_b32 v26, 2, v%d" % vL)
                    h("buffer_store_dword v55, v26, %s, s%d offen" % (sr(S_WS, 4), sA))
                    h("s_waitcnt vmcnt(0)")
                    h.label(lab)
                self.hact(self.nonce_update)
                self.hrun()
                self.h("s_endpgm")
            if not self.opt.get("x_noy", 0):
                if ks == self.opt.get("ywr", 46):
                    self.s4_y_write()
                if ks == self.opt.get("ywr", 46) + 2:
                    self.s4_y_read()
                if self.opt.get("yshadow", 5) and ks >= self.opt.get("ywr", 46) + 4 and post and not pre:
                    a.wait_lg("yr")
                    for _ in range(self.opt.get("yshadow", 5)):
                        if post:
                            a(post.pop(0))
            if ks in (8, 16, 27, 38, 47):
                self.stamp("s4k%d" % ks)
        for x in pre:
            a(x)
        assert not hitems
        self.s4_out_addr()
        self.s4_post = post

    def s4_epilogue(self):
        a = self.a
        ACK, ACS, B = self.ACK, self.ACS, self.BASE4
        self.exchange_write(ACS, S4_RED)
        a.wait_lg("yr")
        for x in self.s4_post:
            a(x)
        for p in range(8):
            a("v_pk_add_f32 %s, %s, %s" % (vr(ACK + 2 * p, 2), vr(ACK + 2 * p, 2), vr(B + 2 * p, 2)))
        a.wait_lg_all()
        a("s_barrier")
        self.exchange_read(80, S4_RED)
        a.wait_lg_all()
        for p in range(8):
            a("v_pk_add_f32 %s, %s, %s" % (vr(ACK + 2 * p, 2), vr(ACK + 2 * p, 2), vr(80 + 2 * p, 2)))
        for p in range(8):
            a("v_cvt_pk_bf16_f32 v%d, v%d, v%d" % (48 + p, ACK + 2 * p, ACK + 2 * p + 1))
        for j in (0, 4):
            a("v_permlane32_swap_b32 v%d, v%d" % (48 + j, 50 + j))
            a("v_permlane32_swap_b32 v%d, v%d" % (49 + j, 51 + j))
        a.vmem("buffer_store_dwordx4 %s, v146, %s, 0 offen" % (vr(48, 4), sr(S_OUT, 4)), "out")
        a.vmem("buffer_store_dwordx4 %s, v146, %s, 0 offen offset:32" % (vr(52, 4), sr(S_OUT, 4)), "out")

    def nonce_update(self):
        a = self.a
        self.hold += 1
        skip = a.newlabel("nonce")
        a("s_cmp_lg_u32 s2, 0")
        a("s_cbranch_scc1 %s" % skip)
        a("s_cmp_lg_u32 s%d, 0" % sW)
        a("s_cbranch_scc1 %s" % skip)
        saved = list(a.vm)
        for i in range(4):
            a("v_add_u32 v28, %d, v%d" % (64 * i, vL))
            a("v_lshlrev_b32 v28, 2, v28")
            self.poll_issue(F_P0, "pn")
            self.poll_check("pn", 6)
        a.vm = saved
        a("v_mov_b32 v26, 0")
        a("v_mov_b32 v27, s%d" % sN)
        a("s_mov_b64 exec, 1")
        a("buffer_store_dword v27, v26, %s, 0 offen sc1" % sr(S_WS, 4))
        a("s_mov_b64 exec, -1")
        a.label(skip)
        self.hold -= 1

    def finish(self):
        a = self.a
        a.wait_vm_all()
        if self.opt.get("delay", 0):
            lab = a.newlabel("delay")
            a("s_mov_b32 s%d, %d" % (sA, self.opt["delay"] // 64))
            a.label(lab)
            for _ in range(15):
                a("v_mov_b32 v26, v27")
            a("s_sub_u32 s%d, s%d, 1" % (sA, sA))
            a("s_cmp_lg_u32 s%d, 0" % sA)
            a("s_cbranch_scc1 %s" % lab)
        if self.opt.get("dbgtime", 0):
            a("s_memrealtime %s" % sr(sSTA, 2))
            a("s_memtime s[96:97]")
            a("s_waitcnt lgkmcnt(0)")
            a("s_sub_u32 s%d, s%d, s3" % (sSTA, sSTA))
            a("s_sub_u32 s96, s96, s98")
            a("v_mov_b32 v26, 0")
            a("v_mov_b32 v27, s%d" % sSTA)
            a("v_mov_b32 v28, s96")
            a("s_mov_b64 exec, 1")
            a("global_atomic_umax v26, v27, %s" % sr(S_DBG, 2))
            a("global_atomic_umax v26, v28, %s offset:4" % sr(S_DBG, 2))
            a("s_waitcnt vmcnt(0)")
            a("s_mov_b64 exec, -1")
        if self.stamps:
            self.stamp("end")
            skip = a.newlabel("nostamp")
            a("s_cmp_lg_u32 s%d, 0" % sW)
            a("s_cbranch_scc1 %s" % skip)
            if self.opt.get("dbgstamps", 0):
                lab = a.newlabel("nodbg")
                a("s_cmp_lg_u32 s2, %d" % (self.opt["dbgstamps"] - 1))
                a("s_cbranch_scc1 %s" % lab)
                a("v_readlane_b32 s%d, v%d, 0" % (sA, vSTAMP))
                a("v_subrev_u32 v27, s%d, v%d" % (sA, vSTAMP))
                a("v_lshlrev_b32 v26, 2, v%d" % vL)
                a("s_mov_b64 exec, 0xffff")
                a("global_store_dword v26, v27, %s" % sr(S_DBG, 2))
                a("s_mov_b64 exec, -1")
                a.label(lab)
            a("s_lshl_b32 s%d, s2, 8" % sA)
            a("s_add_u32 s%d, s%d, 0x%x" % (sA, sA, WS_STAMP))
            a("v_lshlrev_b32 v26, 2, v%d" % vL)
            a("buffer_store_dword v%d, v26, %s, s%d offen" % (vSTAMP, sr(S_WS, 4), sA))
            if self.opt.get("barstamps", 0):
                a("s_add_u32 s%d, s%d, 0x10000" % (sA, sA))
                a("buffer_store_dword v31, v26, %s, s%d offen" % (sr(S_WS, 4), sA))
            a("s_waitcnt vmcnt(0)")
            a.label(skip)
        a.label("L_end")
        a("s_endpgm")
        self.a.hook = None
        self.h.label("L_codeend")
        self.h("s_endpgm")
        self.a.ins += self.h.ins

    def nonce_load(self):
        a = self.a
        a("v_mov_b32 v26, 0")
        a.vmem("buffer_load_dword v30, v26, %s, 0 offen sc1" % sr(S_WS, 4), "nonce")

    def build(self):
        a = self.a
        o = self.opt
        H = self.hact
        self.prologue()
        H(self.loader_setup)
        if o.get("tcode", 1) == 1:
            H(self.touch_code)
        s1 = [f for st in range(4) for f in self.s1_stage_items(st)]
        n0, n1 = o.get("n0", 16), o.get("n1", 24)
        self.nonce_load()
        self.head_start()
        self.page_touch()
        self.cold_touches()
        self.tr_addresses()
        self.s1_setup()

        def stage(st):
            if st == 0:
                self.hacts(s1[:n0])
                self.hwait("s1_0")
            elif st == 1:
                self.hacts(s1[n0:n1])
                self.hwait("s1_1")
            else:
                self.hacts(s1[n1:])
                if o.get("apos", 0) == 0:
                    self.hstamp(4)
                    H(self.batch_a)
                    self.hstamp(5)
                self.hwait("s1_3")
            self.barrier()
            if st == 2:
                if o.get("apos", 0) == 1:
                    H(self.batch_a)
                H(self.nonce_load)
                H(self.tr_addresses)
                if o.get("hstat", 0):
                    H(self.s1_stats)
        self.s1_main(stage)
        self.stamp("s1main")
        w2 = [self.dma_item(S_W2, vW64, sW2L, grp * 1024, sW2G, grp * 16384, "w2") for grp in range(16)]

        p0late = o.get("p0late", 1)
        w3 = self.w3_items([0, 1, 2, 3])
        cuts = [o.get("c%d" % i, d) for i, d in enumerate((0, 0, 0, 10, 10, 16))]

        def after_x1():
            H(self.w3_setup)
            self.hacts(w3[:cuts[0]])
            if not p0late:
                H(self.nonce_compute)
                H(self.kv_dma)
                H(self.p0_compute)
                H(lambda: self.a.wait_lg_all())
        self.s1_epilogue(after_x1)
        self.stamp("s1epi")
        self.nonce_compute()
        self.team_publish()
        self.wpi_addr(128, 129, LW, 16384, 32768)
        hitems = self.s2_load_items()
        a.wait_vm("hst")
        self.barrier()
        self.flag_store_rc(F_S1)
        self.stamp("s1flag")
        H(self.nonce_compute)
        H(self.kv_dma)
        self.hacts(w2[:o.get("w2a", 4)])
        self.hpaced(w2[o.get("w2a", 4):], o.get("iv2", 70), self.p0_compute)
        self.hacts(w3[cuts[0]:cuts[1]])
        H(lambda: self.a.wait_lg_all())
        self.idx_s1()
        self.barrier()
        H(self.p0_readback)
        H(self.p0_store)
        H(lambda: self.conv_filter_loads(0))
        self.hacts(w3[cuts[1]:cuts[2]])
        self.hwait("w2")
        self.poll_issue(F_S1, "ps1")
        self.poll_check("ps1", 2)
        self.stamp("s1poll")
        nh2 = o.get("nh2", 10)
        for f in hitems[:nh2]:
            f()
        self.barrier()
        self.stamp("hiss")
        H(self.p0_wave_flag)
        if o.get("bpos", 0) == 2:
            H(lambda: self.touch_chip("ssm"))
            H(lambda: self.touch_chip("w3"))
        self.hacts(w3[cuts[2]:cuts[3]])
        H(self.idx_p0)
        H(lambda: self.poll_issue(F_P0, "pp0"))
        self.fq = hitems[nh2:] + [self.team_load]
        self.s2_main()
        self.fill_all()
        self.stamp("s2main")

        def after_x2():
            H(lambda: self.poll_check("pp0", 1))
            H(lambda: self.conv_x_loads(0))
            self.hacts(w3[cuts[3]:cuts[4]])
            H(lambda: self.conv_prep_filter(0))
            H(lambda: self.conv_x_write(0))
        self.s2_epilogue(after_x2)
        self.stamp("s2epi")
        self.barrier()
        H(lambda: self.conv_poly(0))
        self.hacts(w3[cuts[4]:cuts[5]])
        self.conv_addr(0)
        self.team_check()
        a.wait_vm("x1st")
        self.barrier()
        self.flag_store_rc(F_S2)
        self.stamp("s2flag")
        H(self.head_start_w4)
        H(lambda: self.touch_chip("w4"))
        self.hacts(w3[cuts[5]:])

        def hook0(rho):
            if rho == o.get("pollrho2", 3):
                self.idx_s2()
                self.poll_issue(F_S2, "ps2")
        self.conv_main(hook0)
        self.stamp("cv0main")
        xitems = self.s3_load_items()
        nx = o.get("nx", 12)
        self.conv_finish(0)
        self.hwait("w3")
        self.barrier()
        self.stamp("cv0fin")
        H(self.s3_addr)
        H(self.s3_colsum)
        H(self.w4_setup)
        self.s3_addr()
        self.poll_check("ps2", 3)
        self.stamp("s2poll")
        for f in xitems[:nx]:
            f()
        sitems = self.s3_stat_items()
        rest = xitems[nx:]
        self.fq = []
        for i in range(len(rest)):
            self.fq.append(rest[i])
            self.fq.append(sitems[i] if i < 16 else (lambda: None))

        w4r = self.w4_reg_loads(W4_B, 56)

        def s3mid():
            self.barrier()
            H(lambda: self.conv_filter_loads(1))
            H(lambda: self.conv_x_loads(1))
            self.hacts(self.w4_items(0, W4_A, "w4"))
            self.hacts(w4r[:o.get("r1", 8)])
        self.s3_main(s3mid)
        self.fill_all()
        self.stamp("s3main")
        self.barrier()
        H(lambda: self.conv_prep_filter(1))
        H(lambda: self.conv_x_write(1))
        w4m = self.w4_items(W4_A, W4_B, "w4")
        k3 = o.get("k3", 4)

        early = o.get("tbar", 0) >= 2
        if early:
            self.hacts(w4r[o.get("r1", 8):o.get("r2", 20)])
            self.hacts(w4m[:k3])

        def after_tile(p):
            if p == o.get("tbar", 0):
                self.barrier()
                H(lambda: self.conv_poly(1))
                if not early:
                    self.hacts(w4r[o.get("r1", 8):o.get("r2", 20)])
                    self.hacts(w4m[:k3])
        self.s3_epilogue(after_tile)
        self.stamp("s3epi")
        self.conv_addr(1)

        def s3flag():
            a.wait_vm("Hst")
            self.barrier()
            a("s_lshl_b32 s%d, s%d, 4" % (sB, sRP))
            a("s_add_u32 s%d, s%d, s%d" % (sB, sB, sCP))
            self.flag_store(F_S3, sB)
            self.stamp("s3flag")
            self.hacts(w4m[k3:])
            self.hacts(w4r[o.get("r2", 20):])
        early = o.get("cv1early", 0)
        if early:
            self.barrier()
        else:
            s3flag()

        def hook1(rho):
            if early and rho == early:
                s3flag()
            if rho == o.get("pollrho", 3) and not early:
                self.idx_s3()
                self.poll_issue(F_S3, "ps3")
        self.conv_main(hook1)
        self.stamp("cv1main")
        hitems = self.s4_load_items()
        if early:
            self.conv_finish(1)
            self.idx_s3()
            self.poll_issue(F_S3, "ps3")
            self.s4_addr()
            self.poll_check("ps3", 5)
            self.stamp("s3poll")
            for _ in range(o.get("nh", 14) + o.get("nhb", 6)):
                hitems.pop(0)()
        else:
            self.poll_check("ps3", 5)
            self.stamp("s3poll")
            for _ in range(o.get("nh", 14)):
                hitems.pop(0)()
            self.conv_finish(1)
            for _ in range(o.get("nhb", 6)):
                hitems.pop(0)()
            self.s4_addr()
        self.hwait("w4")
        self.barrier()
        self.stamp("cv1fin")
        self.s4_main(hitems)
        self.stamp("s4main")
        self.s4_epilogue()
        self.stamp("s4epi")
        self.finish()


REF = "cdna_kernels/%s.s.ref" % NAME


def emit(stop=None, stamps=False, opt=None, keep=None):
    g = Gen(stop, stamps, opt)
    g.keep = keep
    g.build()
    nops = g.a.fix_hazards()
    top = [l for l in open(REF).read().split("\n") if l.startswith(";") and "@launch" not in l and "Override" not in l
           and "grid=ceil" not in l]
    out = top + ["; @launch grid=(256,1,1) block=(512,1,1) lds=%d" % LDS_BYTES,
                 '.amdgcn_target "amdgcn-amd-amdhsa--gfx950"', ".text", ".globl %s_kernel" % NAME, ".p2align 8",
                 ".type %s_kernel,@function" % NAME, "%s_kernel:" % NAME]
    body = g.a.text()
    tail = ['.section .rodata,"a"', ".p2align 6", ".amdhsa_kernel %s_kernel" % NAME,
            "  .amdhsa_next_free_vgpr 256", "  .amdhsa_next_free_sgpr 102", "  .amdhsa_accum_offset 192",
            "  .amdhsa_group_segment_fixed_size 0", "  .amdhsa_kernarg_size 112", "  .amdhsa_user_sgpr_count 2",
            "  .amdhsa_user_sgpr_kernarg_segment_ptr 1", "  .amdhsa_system_sgpr_workgroup_id_x 1",
            "  .amdhsa_float_denorm_mode_32 3", ".end_amdhsa_kernel"]
    text = "\n".join(out) + "\n" + body + "\n".join(tail) + "\n"
    return text, g, nops


if __name__ == "__main__":
    ap = argparse.ArgumentParser()
    ap.add_argument("-o", default="cdna_kernels/%s.s" % NAME)
    ap.add_argument("--stop", default=None)
    ap.add_argument("--stamps", action="store_true")
    ap.add_argument("--opt", default="")
    ap.add_argument("--keep", default="")
    args = ap.parse_args()
    opt = dict((kv.split("=")[0], int(kv.split("=")[1])) for kv in args.opt.split(",") if kv)
    text, g, nops = emit(args.stop, args.stamps, opt, args.keep.split(",") if args.keep else None)
    open(args.o, "w").write(text)
    n = sum(1 for x in g.a.ins if x.kind != "label")
    print("instructions: %d, hazard nops: %d" % (n, nops))
    if g.stamp_names:
        print(",".join(g.stamp_names))
        open(args.o + ".stamps", "w").write(",".join(g.stamp_names))
```

```python
import re

TRANS = ("v_exp_f32", "v_log_f32", "v_rcp_f32", "v_rsq_f32", "v_sqrt_f32", "v_sin_f32", "v_cos_f32")
REG_RE = re.compile(r"^(-|abs\(|\|)?([vas])(\d+|\[(\d+):(\d+)\])\)?\|?$")


def regs_of(op):
    op = op.strip()
    if op in ("vcc", "vcc_lo", "vcc_hi"):
        return {("s", "vcc")}
    if op in ("exec", "exec_lo", "exec_hi"):
        return {("s", "exec")}
    if op == "m0":
        return {("s", "m0")}
    if op == "scc":
        return set()
    m = REG_RE.match(op)
    if not m:
        return set()
    f = m.group(2)
    if m.group(4) is not None:
        return {(f, i) for i in range(int(m.group(4)), int(m.group(5)) + 1)}
    return {(f, int(m.group(3)))}


class Ins:
    __slots__ = ("text", "op", "ops", "mods", "dst", "src", "kind", "label", "target", "passes", "srcC", "srcAB",
                 "states", "sdata", "note")

    def __init__(self, text):
        self.text = text
        self.label = None
        self.target = None
        self.note = None
        t = text.split(";")[0].strip()
        if t.endswith(":"):
            self.label = t[:-1]
            self.kind = "label"
            self.op = ""
            self.dst = set()
            self.src = set()
            self.states = 0
            return
        parts = t.split(None, 1)
        self.op = parts[0]
        rest = parts[1] if len(parts) > 1 else ""
        toks, depth, cur = [], 0, ""
        for ch in rest:
            if ch in "[(":
                depth += 1
            elif ch in "])":
                depth -= 1
            if ch == "," and depth == 0:
                toks.append(cur.strip())
                cur = ""
            else:
                cur += ch
        if cur.strip():
            toks.append(cur.strip())
        mods = []
        if toks:
            last = toks[-1].split()
            toks[-1] = last[0]
            mods = last[1:]
        fixed = toks
        self.ops = fixed
        self.mods = mods
        self.states = 1
        self.passes = 0
        self.srcC = set()
        self.srcAB = set()
        self.sdata = set()
        op = self.op
        R = [regs_of(x) for x in self.ops]
        dst, src = set(), set()
        if op.startswith("v_mfma"):
            self.kind = "mfma"
            self.passes = 8 if "32x32x16" in op else 4
            dst = R[0]
            self.srcAB = R[1] | R[2]
            self.srcC = R[3]
            src = self.srcAB | self.srcC
        elif op.startswith("v_"):
            self.kind = "valu"
            if op.startswith("v_cmp"):
                dst = R[0]
                for r in R[1:]:
                    src |= r
            elif op.startswith("v_permlane") and "swap" in op:
                dst = R[0] | R[1]
                src = R[0] | R[1]
            elif op.startswith(("v_add_co", "v_sub_co", "v_addc_co", "v_subb_co")):
                dst = R[0] | R[1]
                for r in R[2:]:
                    src |= r
            else:
                dst = R[0]
                for r in R[1:]:
                    src |= r
                if op.startswith(("v_fmac", "v_dot2c", "v_pk_fmac", "v_writelane")) or "dpp" in op or \
                        any(m.startswith(("row_", "quad_perm", "wave_")) for m in mods):
                    src |= R[0]
        elif op.startswith("ds_"):
            self.kind = "ds"
            if op.startswith(("ds_read", "ds_bpermute", "ds_permute", "ds_swizzle")):
                dst = R[0]
                for r in R[1:]:
                    src |= r
            else:
                for r in R:
                    src |= r
        elif op.startswith("buffer_"):
            self.kind = "vmem"
            lds = "lds" in mods
            if op.startswith("buffer_load") and not lds:
                dst = R[0]
                for r in R[1:]:
                    src |= r
            elif op.startswith("buffer_load"):
                for r in R:
                    src |= r
                src |= {("s", "m0")}
            else:
                for r in R:
                    src |= r
                if op.endswith(("x3", "x4")):
                    self.sdata = R[0]
        elif op.startswith("global_"):
            self.kind = "vmem"
            if op.startswith("global_load"):
                dst = R[0]
                for r in R[1:]:
                    src |= r
            else:
                for r in R:
                    src |= r
                if op.endswith(("x3", "x4")):
                    self.sdata = R[1]
        elif op.startswith("s_"):
            self.kind = "salu"
            if op == "s_nop":
                self.states = int(self.ops[0], 0) + 1
            elif op.startswith(("s_cbranch", "s_branch")):
                self.target = self.ops[0]
            elif op.startswith(("s_cmp", "s_waitcnt", "s_barrier", "s_endpgm", "s_sleep", "s_setprio", "s_bitcmp")):
                for r in R:
                    src |= r
            elif op.startswith(("s_and_saveexec", "s_or_saveexec")):
                dst = R[0] | {("s", "exec")}
                src = R[1] | {("s", "exec")}
            else:
                dst = R[0] if R else set()
                for r in R[1:]:
                    src |= r
        else:
            raise ValueError("cannot classify: " + text)
        self.dst = dst
        self.src = src

    def is_trans(self):
        return self.op.replace("_e32", "").replace("_e64", "") in TRANS

    def is_dpp(self):
        return self.kind == "valu" and any(m.startswith(("row_", "quad_perm", "wave_")) for m in self.mods)


def vregs(s):
    return {r for r in s if r[0] in "va"}


def sregs(s):
    return {r for r in s if r[0] == "s"}


def required(p, c):
    need = 0
    if p.kind == "valu":
        pv = vregs(p.dst)
        ps = sregs(p.dst)
        if pv:
            if c.kind == "mfma" and pv & c.src:
                need = max(need, 2)
            if c.kind == "valu":
                if pv & c.src:
                    if c.op.startswith("v_permlane"):
                        need = max(need, 2)
                    if c.is_dpp():
                        need = max(need, 2)
                    if c.op.startswith(("v_readlane", "v_readfirstlane")):
                        need = max(need, 1)
                    if p.is_trans() and not c.is_trans():
                        need = max(need, 1)
        if ps:
            if c.kind == "vmem" and ps & c.src:
                need = max(need, 5)
            if c.kind == "valu" and ps & c.src:
                need = max(need, 4 if c.op.startswith(("v_readlane", "v_writelane")) else 2)
            if c.kind == "salu" and ps & c.src:
                need = max(need, 1)
    if p.kind == "valu" and p.op.startswith("v_dot"):
        if c.kind in ("valu", "mfma", "ds", "vmem") and (vregs(p.dst) & (c.src | c.dst)):
            same_chain = c.op == p.op and (vregs(p.dst) & c.dst) == vregs(p.dst) and \
                not any(vregs(p.dst) & regs_of(x) for x in c.ops[1:])
            if not same_chain:
                need = max(need, 3)
    if p.kind == "mfma":
        big = p.passes == 8
        if c.kind == "mfma":
            if p.dst & c.srcAB:
                need = max(need, 12 if big else 8)
            if p.dst & c.srcC:
                if not (p.dst == c.srcC and p.passes == c.passes):
                    need = max(need, 10 if big else 6)
            if (p.dst & c.dst) and not (p.dst == c.dst and p.passes == c.passes):
                need = max(need, 10 if big else 6)
        elif c.kind in ("valu", "ds", "vmem"):
            if p.dst & (c.src | c.dst):
                need = max(need, 12 if big else 8)
            if c.kind == "valu" and (p.srcC & c.dst):
                need = max(need, 7 if big else 3)
    if p.kind == "salu" and ("s", "m0") in p.dst:
        if c.kind == "vmem" and ("s", "m0") in c.src:
            need = max(need, 1)
    if p.kind == "vmem" and p.sdata:
        if c.kind == "valu" and (p.sdata & c.dst):
            need = max(need, 2)
        elif c.kind in ("ds", "vmem", "mfma") and (p.sdata & c.dst):
            need = max(need, 1)
    return need


MAXLOOK = 14


class Asm:
    def __init__(self):
        self.ins = []
        self.uid = 0
        self.hook = None
        self.vm = []
        self.lg = []

    def __call__(self, text):
        for line in text.strip("\n").split("\n"):
            line = line.strip()
            if not line or line.startswith(";") or line.startswith("//"):
                continue
            x = Ins(line)
            self.ins.append(x)
            if self.hook is not None:
                self.hook(x)

    def comment(self, text):
        x = Ins("c:")
        x.label = None
        x.text = "; " + text
        self.ins.append(x)

    def label(self, name):
        self.ins.append(Ins(name + ":"))

    def newlabel(self, stem):
        self.uid += 1
        return "L_%s_%d" % (stem, self.uid)

    def vmem(self, text, tag=None):
        self.vm.append(tag)
        self(text)

    def lds(self, text, tag=None):
        self.lg.append(tag)
        self(text)

    def wait_vm(self, *tags):
        last = -1
        for i, t in enumerate(self.vm):
            if t in tags:
                last = i
        if last < 0:
            return
        n = len(self.vm) - 1 - last
        assert n <= 63, "vmcnt overflow %d" % n
        self("s_waitcnt vmcnt(%d)" % n)
        self.vm = self.vm[last + 1:]

    def wait_vm_all(self):
        self("s_waitcnt vmcnt(0)")
        self.vm = []

    def wait_lg(self, *tags):
        last = -1
        for i, t in enumerate(self.lg):
            if t in tags:
                last = i
        if last < 0:
            return
        n = len(self.lg) - 1 - last
        if n > 15:
            n = 15
            last = len(self.lg) - 1 - n
        self("s_waitcnt lgkmcnt(%d)" % n)
        self.lg = self.lg[last + 1:]

    def wait_lg_all(self):
        self("s_waitcnt lgkmcnt(0)")
        self.lg = []

    def wait_both(self, vtag, ltag):
        parts = []
        last = max([i for i, t in enumerate(self.vm) if t == vtag], default=-1)
        if last >= 0:
            parts.append("vmcnt(%d)" % (len(self.vm) - 1 - last))
            self.vm = self.vm[last + 1:]
        last = max([i for i, t in enumerate(self.lg) if t == ltag], default=-1)
        if last >= 0:
            n = min(len(self.lg) - 1 - last, 15)
            parts.append("lgkmcnt(%d)" % n)
            self.lg = self.lg[len(self.lg) - n:] if n else []
        if parts:
            self("s_waitcnt " + " ".join(parts))

    def check_vm_depth(self):
        assert len(self.vm) <= 63, "too many outstanding vmem ops: %d" % len(self.vm)

    def fix_hazards(self):
        ins = self.ins
        inserted = 0
        label_of = {id(x): x.label for x in ins if x.kind == "label"}
        branches = [x for x in ins if x.kind != "label" and x.target is not None]
        by_target = {}
        for b in branches:
            by_target.setdefault(b.target, []).append(b)
        i = 0
        pos = {id(x): k for k, x in enumerate(ins)}
        while i < len(ins):
            c = ins[i]
            if c.kind == "label" or c.op in ("s_nop", "s_waitcnt", "s_barrier"):
                i += 1
                continue

            def preds(k):
                out = []
                if k > 0:
                    p = ins[k - 1]
                    if not (p.kind == "salu" and p.op in ("s_branch", "s_endpgm")):
                        out.append(k - 1)
                x = ins[k]
                if x.kind == "label":
                    out += [pos[id(b)] for b in by_target.get(x.label, [])]
                return out

            worst = 0
            stack = [(p, 0) for p in preds(i)]
            seen = {}
            while stack:
                j, dist = stack.pop()
                if dist >= MAXLOOK or seen.get(j, 99) <= dist:
                    continue
                seen[j] = dist
                p = ins[j]
                if p.kind != "label":
                    need = required(p, c)
                    if need > dist:
                        worst = max(worst, need - dist)
                nd = dist + p.states
                for k in preds(j):
                    stack.append((k, nd))
            if worst:
                new = []
                n = worst
                while n > 0:
                    k = min(n, 16)
                    new.append(Ins("s_nop %d" % (k - 1)))
                    n -= k
                ins[i:i] = new
                inserted += worst
                i += len(new)
                pos = {id(x): k for k, x in enumerate(ins)}
            i += 1
        return inserted

    def text(self):
        out = []
        for x in self.ins:
            out.append(x.text if x.kind == "label" else "    " + x.text)
        return "\n".join(out) + "\n"
```

```python
import argparse
import os
import struct
import sys

sys.path.insert(0, os.path.dirname(os.path.abspath(__file__)))
from asmlib import Asm

NAME = "parallel_sum__ssm_conv_h3__mixer_s_mlp__prompt"

WS_FLAGS = 4096
WS_STAMP = 0xD0000
WS_FLAGS_L = 0x90000
WS_TEAM = 0xC0000
WS_KVT = 0x100000
WS_YT = 0x300000
WS_HS = 0x500000
WS_X1 = 0x700000
WS_ST = 0x900000
WS_HH = 0xA00000
WS_SIZE = 0x10000000
OOB = 0x40000000
F_S1, F_S2, F_S3, F_P0, F_CV = 0, 1, 2, 4, 8

LQ = 0
LW = 65536
LSTG = 131072
LRED = 139264
LSTX = 155648
LCSX = 156672
LCS3 = 161280
LKV = LRED
LDS_BYTES = 163840
CV_X = 0
CV_XD = 1152
CV_A = 5248
CV_P = 21760
CV_R = 5248
CV_BASE = 114688
W3_P = 0
W3_H = 98304
CV_BASE1 = 69632
W4_A, W4_B, W4_C = 11, 28, 39
S4_RED = 24576


def w4_off(ks):
    if ks < W4_A:
        return 114688 + ks * 4096
    if ks < W4_B:
        return (ks - W4_A) * 4096
    if ks < W4_C:
        return CV_BASE1 + (ks - W4_B) * 4096
    return w4_off(ks - W4_C)

S_WS, S_Q, S_K, S_V, S_SHK, S_SSM, S_W1, S_W2, S_W3, S_W4, S_OUT = 4, 8, 12, 16, 20, 24, 32, 36, 40, 44, 48
S_DPTR = 28
S_DBG = 30
sR, sC, sW, sTH, sKH, sN, sRP, sCP = 52, 53, 54, 55, 56, 57, 58, 59
sT, sT3 = 60, 61
sD0, sD1 = 62, 63
sA, sB, sCc, sD, sE, sF = 64, 65, 66, 67, 68, 69
sW2L, sW2G, sW3L, sW3G, sW3HL, sW3HG, sW4L, sW4G, sSO, sLD = 70, 71, 72, 73, 74, 75, 76, 77, 78, 79
sONES, sHI = 80, 81
sK4, sK8, sK12 = 82, 83, 84
sEPS, sTMO, sKG1, sKG3, s512I = 85, 86, 87, 88, 89
sSTA = 90
sROT, sQG, sWG, sCP0 = 92, 93, 94, 95
sXCC, sLOC = 20, 21

vL, vL16, vWP, vWN = 0, 1, 2, 3
vQ, vX1 = 4, 12
vMEAN, vR1 = 20, 21
vTID, vHH, vN31, vSTAMP = 22, 23, 24, 25
vW64 = 31
vCH = 172
vPF, vPA = 170, 171
vW3F, vW3H, vQE = 153, 154, 155
vST = 172

GELU_K1 = 2.0 * 0.7978845608028654 * 1.4426950408889634
GELU_K3 = GELU_K1 * 0.044715
MF32 = "v_mfma_f32_32x32x16_bf16"
MF16 = "v_mfma_f32_16x16x32_bf16"


def f32bits(x):
    return struct.unpack("<I", struct.pack("<f", x))[0]


def vr(a, n):
    return "v[%d:%d]" % (a, a + n - 1)


def ar(a, n):
    return "a[%d:%d]" % (a, a + n - 1)


def sr(a, n):
    return "s[%d:%d]" % (a, a + n - 1)


class Gen:
    def __init__(self, stop=None, stamps=False, opt=None):
        self.opt = opt or {}
        self.keep = None
        self.a = Asm()
        self.h = Asm()
        self.h.uid = 100000
        self.hpend = []
        self.nbar = 0
        self.stop = stop
        self.stamps = stamps
        self.nstamp = 0
        self.stamp_names = []
        self.fq = []
        self.pq = []
        self.interval = 0
        self.clock = 0.0
        self.hold = 0
        self.a.hook = self._pace
        self.h.hook = self._pace

    def _pace(self, x):
        if x.kind == "mfma":
            self.clock += 32 if x.passes == 8 else 16
        elif x.kind == "valu":
            self.clock += 8 if x.is_trans() else 4.5
        elif x.kind == "ds":
            self.clock += 13 if x.op == "ds_write_b128" else 2
        elif x.kind == "vmem":
            self.clock += 20
        else:
            return
        if self.hold or not self.pq or not self.interval or x.kind == "vmem":
            return
        if self.clock >= self.interval:
            self.clock = 0.0
            self.hold += 1
            self.pq.pop(0)()
            self.hold -= 1

    def paced(self, items, interval):
        self.pq += items
        self.interval = interval
        self.clock = 0.0

    def pace_flush(self, tag=None):
        self.hold += 1
        if tag is None:
            n = len(self.pq)
        else:
            n = max([i + 1 for i, f in enumerate(self.pq) if f.tag == tag], default=0)
        for _ in range(n):
            self.pq.pop(0)()
        self.hold -= 1

    def stamp(self, name):
        if not self.stamps:
            return
        if self.keep and name not in self.keep and name not in ("start", "end"):
            return
        self.hold += 1
        self._stamp(name)
        self.hold -= 1

    def _stamp(self, name):
        a = self.a
        a("s_memtime %s" % sr(sSTA, 2))
        a("s_waitcnt lgkmcnt(0)")
        a.lg = []
        a("v_writelane_b32 v%d, s%d, %d" % (vSTAMP, sSTA, self.nstamp))
        if name in ("start", "end"):
            a("s_memrealtime %s" % sr(sSTA, 2))
            a("s_waitcnt lgkmcnt(0)")
            a("v_writelane_b32 v%d, s%d, %d" % (vSTAMP, sSTA, 62 if name == "start" else 63))
            if name == "start":
                a("v_writelane_b32 v%d, s3, 61" % vSTAMP)
        self.stamp_names.append(name)
        self.nstamp += 1

    def hact(self, fn):
        self.hpend.append(fn)

    def hacts(self, fns):
        self.hpend += fns

    def hstamp(self, idx):
        if not self.opt.get("barstamps", 0):
            return

        def f():
            a = self.a
            a("s_memtime %s" % sr(sSTA, 2))
            a("s_waitcnt lgkmcnt(0)")
            a.lg = []
            a("v_writelane_b32 v55, s%d, %d" % (sSTA, 32 + idx))
        self.hpend.append(f)

    def hpaced(self, items, interval, fn):
        def f():
            saved = (self.pq, self.interval, self.clock, self.hold)
            self.pq, self.interval, self.clock, self.hold = list(items), interval, 0.0, 0
            fn()
            self.hold = 1
            self.pace_flush()
            self.pq, self.interval, self.clock, self.hold = saved
        self.hpend.append(f)

    def hwait(self, tag):
        self.hpend.append(lambda: self.a.wait_vm(tag))

    def hrun(self):
        c, fq = self.a, self.fq
        self.a, self.fq = self.h, []
        self.hold += 1
        for fn in self.hpend:
            fn()
        self.hold -= 1
        self.hpend = []
        self.a, self.fq = c, fq

    def barrier(self, name=""):
        bs = self.opt.get("barstamps", 0)
        if bs:
            self.hold += 1
            self.a("s_memtime %s" % sr(sSTA, 2))
            self.a("s_waitcnt lgkmcnt(0)")
            self.a.lg = []
            self.a("v_writelane_b32 v31, s%d, %d" % (sSTA, self.nbar))
            self.hold -= 1
        self.a("s_barrier")
        self.hrun()
        if bs:
            self.h("s_memtime %s" % sr(sSTA, 2))
            self.h("s_waitcnt lgkmcnt(0)")
            self.h.lg = []
            self.h("v_writelane_b32 v55, s%d, %d" % (sSTA, self.nbar))
        self.h("s_barrier")
        self.nbar += 1

    def fill(self, n=1):
        for _ in range(n):
            if self.fq:
                self.fq.pop(0)()

    def fill_all(self):
        while self.fq:
            self.fq.pop(0)()

    def dma_item(self, srd, voff, sl, loff, sg, goff, tag):
        def f():
            a = self.a
            a("s_add_u32 m0, s%d, %d" % (sl, loff))
            a("s_add_u32 s%d, s%d, %d" % (sSO, sg, goff))
            a.vmem("buffer_load_dwordx4 v%d, %s, s%d offen lds" % (voff, sr(srd, 4), sSO), tag)
            a.check_vm_depth()
        f.tag = tag
        return f

    def flag_store(self, phase, sidx):
        local = self.opt.get("local", 0) and phase in (F_S2, F_S3)
        a = self.a
        self.hold += 1
        skip = a.newlabel("noflag")
        a("s_cmp_lg_u32 s%d, 0" % sW)
        a("s_cbranch_scc1 %s" % skip)
        a("s_lshl_b32 s%d, s%d, 7" % (sA, sidx))
        a("s_add_u32 s%d, s%d, %d" % (sA, sA, WS_FLAGS + phase * 256 * 128))
        a("v_mov_b32 v26, s%d" % sN)
        a("v_mov_b32 v27, s%d" % sA)
        a("s_mov_b64 exec, 1")
        if local:
            a("s_mov_b32 s%d, 0x%x" % (sSO, WS_FLAGS_L - WS_FLAGS))
            a("buffer_store_dword v26, v27, %s, s%d offen" % (sr(S_WS, 4), sSO))
        a("buffer_store_dword v26, v27, %s, 0 offen sc1" % sr(S_WS, 4))
        a("s_mov_b64 exec, -1")
        a.label(skip)
        self.hold -= 1

    def team_publish(self):
        a = self.a
        if not self.opt.get("local", 0):
            return
        skip = a.newlabel("noteam")
        a("s_getreg_b32 s%d, hwreg(HW_REG_XCC_ID)" % sXCC)
        a("s_and_b32 s%d, s%d, 15" % (sXCC, sXCC))
        a("s_cmp_lg_u32 s%d, 0" % sW)
        a("s_cbranch_scc1 %s" % skip)
        a("s_lshl_b32 s%d, s2, 7" % sA)
        a("s_add_u32 s%d, s%d, 0x%x" % (sA, sA, WS_TEAM))
        a("v_mov_b32 v26, s%d" % sN)
        a("v_mov_b32 v27, s%d" % sXCC)
        a("v_mov_b32 v28, s%d" % sA)
        a("s_mov_b64 exec, 1")
        a("buffer_store_dwordx2 v[26:27], v28, %s, 0 offen sc1" % sr(S_WS, 4))
        a("s_mov_b64 exec, -1")
        a.label(skip)

    def team_load(self):
        a = self.a
        if not self.opt.get("local", 0):
            return
        a("s_and_b32 s%d, s2, 7" % sA)
        a("v_lshlrev_b32 v26, 3, v%d" % vN31)
        a("v_add_u32 v26, s%d, v26" % sA)
        a("v_lshlrev_b32 v26, 7, v26")
        a("v_add_u32 v26, 0x%x, v26" % WS_TEAM)
        a.vmem("buffer_load_dwordx2 v[168:169], v26, %s, 0 offen sc1" % sr(S_WS, 4), "team")

    def team_check(self):
        a = self.a
        if not self.opt.get("local", 0):
            return
        a.wait_vm("team")
        a("v_cmp_ne_u32 vcc, s%d, v168" % sN)
        a("v_cmp_ne_u32 %s, s%d, v169" % (sr(sSTA, 2), sXCC))
        a("s_or_b64 vcc, vcc, %s" % sr(sSTA, 2))
        a("s_cmp_eq_u64 vcc, 0")
        a("s_cselect_b32 s%d, 0x%x, 0" % (sLOC, WS_FLAGS_L - WS_FLAGS))

    def flag_store_rc(self, phase):
        a = self.a
        a("s_lshl_b32 s%d, s%d, 3" % (sB, sR))
        a("s_add_u32 s%d, s%d, s%d" % (sB, sB, sC))
        self.flag_store(phase, sB)

    def poll_issue(self, phase, tag):
        a = self.a
        a("v_lshlrev_b32 v%d, 7, v28" % vPA)
        a("v_add_u32 v%d, %d, v%d" % (vPA, WS_FLAGS + phase * 256 * 128, vPA))
        if self.opt.get("local", 0) and phase in (F_S2, F_S3):
            a("v_add_u32 v%d, s%d, v%d" % (vPA, sLOC, vPA))
        a.vmem("buffer_load_dword v%d, v%d, %s, 0 offen sc1" % (vPF, vPA, sr(S_WS, 4)), tag)

    def poll_check(self, tag, code):
        a = self.a
        self.hold += 1
        loop = a.newlabel("poll")
        done = a.newlabel("polled")
        a.wait_vm(tag)
        a("v_cmp_ne_u32 vcc, s%d, v%d" % (sN, vPF))
        a("s_cmp_eq_u64 vcc, 0")
        a("s_cbranch_scc1 %s" % done)
        a("s_mov_b32 s%d, 0x40000" % sTMO)
        a.label(loop)
        a("buffer_load_dword v%d, v%d, %s, 0 offen sc1" % (vPF, vPA, sr(S_WS, 4)))
        a("s_waitcnt vmcnt(0)")
        a("v_cmp_ne_u32 vcc, s%d, v%d" % (sN, vPF))
        a("s_cmp_eq_u64 vcc, 0")
        a("s_cbranch_scc1 %s" % done)
        a("s_sub_u32 s%d, s%d, 1" % (sTMO, sTMO))
        a("s_cmp_lg_u32 s%d, 0" % sTMO)
        a("s_cbranch_scc1 %s" % loop)
        a("v_mov_b32 v26, 0")
        a("v_mov_b32 v27, %d" % (0x100 + code))
        a("s_mov_b64 exec, 1")
        a("global_store_dword v26, v27, %s" % sr(S_DBG, 2))
        a("s_mov_b64 exec, -1")
        a.label(done)
        self.hold -= 1

    def idx_s1(self):
        a = self.a
        a("s_lshl_b32 s%d, s%d, 1" % (sA, sTH))
        a("s_sub_u32 s%d, s%d, 1" % (sA, sA))
        a("s_add_u32 s%d, s%d, s%d" % (sA, sA, sR))
        a("s_cmp_lt_u32 s%d, 32" % sA)
        a("s_cselect_b32 s%d, s%d, s%d" % (sA, sA, sR))
        a("v_mov_b32 v28, s%d" % sR)
        a("v_mov_b32 v29, s%d" % sA)
        a("v_and_b32 v27, 4, v%d" % vL)
        a("v_cmp_eq_u32 vcc, 0, v27")
        a("v_cndmask_b32 v28, v29, v28, vcc")
        a("v_lshlrev_b32 v28, 3, v28")
        a("v_and_b32 v29, 3, v%d" % vL)
        a("v_add_u32 v28, v28, v29")
        a("s_lshl_b32 s%d, s%d, 2" % (sA, sKH))
        a("v_add_u32 v28, s%d, v28" % sA)

    def idx_p0(self):
        a = self.a
        a("s_lshr_b32 s%d, s2, 5" % sA)
        a("s_lshl_b32 s%d, s%d, 6" % (sB, sW))
        a("s_add_u32 s%d, s%d, s%d" % (sA, sA, sB))
        a("v_and_b32 v28, 7, v%d" % vL)
        a("v_lshlrev_b32 v28, 3, v28")
        a("v_add_u32 v28, s%d, v28" % sA)
        a("s_bfe_u32 s%d, s2, 0x20003" % sA)
        a("v_lshl_add_u32 v28, v28, 2, s%d" % sA)

    def p0_wave_flag(self):
        a = self.a
        a.wait_vm("kvt")
        a("s_lshl_b32 s%d, s%d, 3" % (sA, sR))
        a("s_add_u32 s%d, s%d, s%d" % (sA, sA, sC))
        a("s_lshl_b32 s%d, s%d, 2" % (sA, sA))
        a("s_add_u32 s%d, s%d, s%d" % (sA, sA, sW))
        a("s_lshl_b32 s%d, s%d, 7" % (sA, sA))
        a("s_add_u32 s%d, s%d, %d" % (sA, sA, WS_FLAGS + F_P0 * 256 * 128))
        a("v_mov_b32 v26, s%d" % sN)
        a("v_mov_b32 v27, s%d" % sA)
        a("s_mov_b64 exec, 1")
        a("buffer_store_dword v26, v27, %s, 0 offen sc1" % sr(S_WS, 4))
        a("s_mov_b64 exec, -1")

    def idx_s2(self):
        a = self.a
        a("s_lshr_b32 s%d, s%d, 1" % (sA, sT3))
        a("s_lshl_b32 s%d, s%d, 3" % (sA, sA))
        a("v_and_b32 v28, 7, v%d" % vL)
        a("v_add_u32 v28, s%d, v28" % sA)

    def idx_s3(self):
        a = self.a
        a("s_lshr_b32 s%d, s%d, 1" % (sA, sR))
        a("s_lshl_b32 s%d, s%d, 4" % (sA, sA))
        a("s_lshl_b32 s%d, s%d, 3" % (sB, sKH))
        a("s_add_u32 s%d, s%d, s%d" % (sA, sA, sB))
        a("v_and_b32 v28, 7, v%d" % vL)
        a("v_add_u32 v28, s%d, v28" % sA)

    def idx_cv(self):
        a = self.a
        self.feat0(sA, sKH, 0)
        a("s_lshr_b32 s%d, s%d, 1" % (sA, sA))
        a("v_and_b32 v28, 15, v%d" % vL)
        a("v_add_u32 v28, s%d, v28" % sA)
        a("s_lshr_b32 s%d, s%d, 5" % (sA, sT))
        a("s_lshl_b32 s%d, s%d, 1" % (sA, sA))
        a("s_bfe_u32 s%d, s%d, 0x10003" % (sB, sT))
        a("s_add_u32 s%d, s%d, s%d" % (sA, sA, sB))
        a("v_lshl_add_u32 v28, v28, 2, s%d" % sA)

    def conv_wave_flag(self):
        a = self.a
        a.wait_vm("yt")
        a("s_lshl_b32 s%d, s2, 2" % sA)
        a("s_add_u32 s%d, s%d, s%d" % (sA, sA, sW))
        a("s_lshl_b32 s%d, s%d, 7" % (sA, sA))
        a("s_add_u32 s%d, s%d, %d" % (sA, sA, WS_FLAGS + F_CV * 256 * 128))
        a("v_mov_b32 v26, s%d" % sN)
        a("v_mov_b32 v27, s%d" % sA)
        a("s_mov_b64 exec, 1")
        a.vmem("buffer_store_dword v26, v27, %s, 0 offen sc1" % sr(S_WS, 4), "cvf")
        a("s_mov_b64 exec, -1")

    def prologue(self):
        a = self.a
        if self.stamps or self.opt.get("dbgtime", 0):
            a("s_memrealtime s[100:101]")
            a("s_waitcnt lgkmcnt(0)")
            a("s_mov_b32 s3, s100")
        a("s_cmp_ge_u32 s2, 256")
        a("s_cbranch_scc1 L_end")
        a("s_load_dwordx16 s[64:79], s[0:1], 0")
        a("s_load_dwordx8 s[92:99], s[0:1], 64")
        a("s_load_dwordx2 %s, s[0:1], 96" % sr(S_DBG, 2))
        a("s_load_dwordx2 %s, s[0:1], 104" % sr(S_WS, 2))
        sizes = {S_WS: WS_SIZE, S_Q: 1 << 21, S_K: 1 << 21, S_V: 1 << 21, S_SHK: 4096, S_SSM: 1 << 21,
                 S_W1: 1 << 19, S_W2: 1 << 19, S_W3: 512 * 1792 * 2, S_W4: 512 * 1792 * 2, S_OUT: 1 << 21}
        for s, n in sizes.items():
            a("s_mov_b32 s%d, 0x%x" % (s + 2, n))
            a("s_mov_b32 s%d, 0x20000" % (s + 3))
        a("s_and_b32 s100, s2, 7")
        a("s_lshr_b32 s101, s2, 3")
        a("s_lshr_b32 s%d, s101, 3" % sR)
        a("s_lshl_b32 s%d, s100, 2" % sC)
        a("s_add_u32 s%d, s%d, s%d" % (sR, sR, sC))
        a("s_and_b32 s%d, s101, 7" % sC)
        a("s_lshr_b32 s%d, s101, 4" % sRP)
        a("s_lshl_b32 s100, s100, 1")
        a("s_add_u32 s%d, s%d, s100" % (sRP, sRP))
        a("s_and_b32 s%d, s101, 15" % sCP)
        a("v_and_b32 v%d, 0xff, v0" % vTID)
        a("v_lshrrev_b32 v26, 6, v0")
        a("v_and_b32 v%d, 63, v0" % vL)
        a("v_readfirstlane_b32 s%d, v26" % sTMO)
        a("v_lshlrev_b32 v%d, 4, v%d" % (vL16, vL))
        a("v_lshrrev_b32 v%d, 5, v%d" % (vHH, vL))
        a("v_and_b32 v%d, 31, v%d" % (vN31, vL))
        a("s_and_b32 s%d, s%d, 3" % (sW, sTMO))
        a("s_lshr_b32 s%d, s%d, 1" % (sTH, sW))
        a("s_and_b32 s%d, s%d, 1" % (sKH, sW))
        a("s_lshl_b32 s%d, s%d, 1" % (sT, sR))
        a("s_add_u32 s%d, s%d, s%d" % (sT, sT, sTH))
        a("s_lshl_b32 s%d, s%d, 2" % (sT3, sRP))
        a("s_add_u32 s%d, s%d, s%d" % (sT3, sT3, sW))
        a("s_mov_b32 s%d, 0x3f803f80" % sONES)
        a("s_mov_b32 s%d, 0xffff0000" % sHI)
        a("s_movk_i32 s%d, 0x1000" % sK4)
        a("s_movk_i32 s%d, 0x2000" % sK8)
        a("s_movk_i32 s%d, 0x3000" % sK12)
        a("s_mov_b32 s%d, 0x%x" % (sEPS, f32bits(1e-5)))
        a("s_mov_b32 s%d, 0x%x" % (sKG1, f32bits(-GELU_K1)))
        a("s_mov_b32 s%d, 0x%x" % (sKG3, f32bits(-GELU_K3)))
        a("s_mov_b32 s%d, 0x%x" % (s512I, f32bits(1.0 / 512)))
        a("s_waitcnt lgkmcnt(0)")
        for sreg, src in ((S_Q, 64), (S_W1, 78), (S_K, 66), (S_V, 68), (S_SHK, 70), (S_SSM, 72), (S_DPTR, 74)):
            a("s_mov_b64 %s, %s" % (sr(sreg, 2), sr(src, 2)))
        for i, sreg in enumerate([S_W2, S_W3, S_W4, S_OUT]):
            a("s_mov_b64 %s, %s" % (sr(sreg, 2), sr(92 + 2 * i, 2)))
        a("s_add_u32 s%d, s%d, s%d" % (sROT, sR, sC))
        a("s_and_b32 s%d, s%d, 3" % (sROT, sROT))
        a("s_cmp_ge_u32 s%d, 4" % sTMO)
        a("s_cbranch_scc1 L_loader")
        if self.opt.get("prio", 1):
            a("s_setprio 1")
        if self.stamps:
            a("v_mov_b32 v%d, 0" % vSTAMP)
        self.stamp("start")
        if self.opt.get("dbgtime", 0):
            a("s_memtime s[98:99]")
            a("s_waitcnt lgkmcnt(0)")
        self.ssm_d_load()

    def tr_addresses(self):
        a = self.a
        a("v_bfe_u32 v26, v%d, 2, 2" % vL)
        a("v_and_b32 v27, 3, v%d" % vL)
        a("v_bfe_u32 v28, v%d, 4, 1" % vL)
        a("v_lshlrev_b32 v27, 3, v27")
        a("v_lshl_add_u32 v27, v28, 5, v27")
        a("v_lshl_add_u32 v28, v%d, 2, v26" % vHH)
        a("v_lshl_add_u32 v%d, v28, 6, v27" % vWP)
        a("v_lshl_add_u32 v28, v%d, 3, v26" % vHH)
        a("v_lshl_add_u32 v%d, v28, 6, v27" % vWN)

    def loader_setup(self):
        a = self.a
        a.label("L_loader")
        a("v_lshrrev_b32 v26, 2, v%d" % vL)
        a("v_and_b32 v27, 3, v%d" % vL)
        a("v_lshlrev_b32 v27, 4, v27")
        a("v_lshl_add_u32 v%d, v26, 10, v27" % vW64)
        a("v_lshrrev_b32 v26, 3, v%d" % vL)
        a("v_and_b32 v27, 7, v%d" % vL)
        a("v_lshrrev_b32 v28, 4, v%d" % vL)
        a("v_xor_b32 v27, v27, v28")
        a("v_lshlrev_b32 v27, 4, v27")
        a("v_lshl_add_u32 v%d, v26, 10, v27" % vQE)
        a("v_xor_b32 v%d, 64, v%d" % (vQE + 1, vQE))
        a("s_lshl_b32 s%d, s%d, 14" % (sCc, sW))
        a("s_lshl_b32 s%d, s%d, 15" % (sD, sT))
        a("s_lshl_b32 s%d, s%d, 9" % (sA, sKH))
        a("s_add_u32 s%d, s%d, s%d" % (sD, sD, sA))
        self.w64_bases(sW2L, sW2G)

    def feat0(self, dst, spanel, shift):
        a = self.a
        if self.opt.get("remap", 0):
            a("s_lshl_b32 s%d, s%d, %d" % (dst, sC, 5 + shift))
            a("s_lshl_b32 s%d, s%d, %d" % (sSO, spanel, 8 + shift))
        else:
            a("s_lshl_b32 s%d, s%d, %d" % (dst, sC, 6 + shift))
            a("s_lshl_b32 s%d, s%d, %d" % (sSO, spanel, 5 + shift))
        a("s_add_u32 s%d, s%d, s%d" % (dst, dst, sSO))

    def w64_bases(self, sl, sg):
        a = self.a
        a("s_lshl_b32 s%d, s%d, 15" % (sl, sTH))
        a("s_lshl_b32 s%d, s%d, 14" % (sA, sKH))
        a("s_add_u32 s%d, s%d, s%d" % (sl, sl, sA))
        a("s_add_u32 s%d, s%d, %d" % (sl, sl, LW))
        a("s_lshl_b32 s%d, s%d, 18" % (sg, sKH))
        self.feat0(sA, sTH, 1)
        a("s_add_u32 s%d, s%d, s%d" % (sg, sg, sA))

    def s1_stage_items(self, st):
        items = []

        def head():
            a = self.a
            a("s_add_u32 s%d, s%d, %d" % (sB, sROT, st))
            a("s_and_b32 s%d, s%d, 3" % (sB, sB))
            a("s_lshl_b32 s%d, s%d, 7" % (sQG, sB))
            a("s_add_u32 s%d, s%d, s%d" % (sQG, sQG, sD))
            a("s_lshl_b32 s%d, s%d, 16" % (sWG, sB))
            a("s_add_u32 s%d, s%d, s%d" % (sWG, sWG, sW2G))
        for j in range(4):
            def f(j=j):
                if j == 0:
                    head()
                self.dma_item(S_Q, vQE + (j & 1), sCc, LQ + st * 4096 + j * 1024, sQG, j * 8192, "s1_%d" % st)()
            items.append(f)
        for i in range(4):
            items.append(self.dma_item(S_W1, vW64, sW2L, (4 * st + i) * 1024, sWG, i * 16384, "s1_%d" % st))
        return items

    def touch(self, srd, lanes, sidx, dst):
        a = self.a
        a("s_mul_i32 s%d, s%d, %d" % (sA, sidx, lanes))
        a("v_add_u32 v26, s%d, v%d" % (sA, vL))
        a("v_lshlrev_b32 v26, 7, v26")
        a("v_mov_b32 v27, 0x%x" % OOB)
        a("v_cmp_gt_u32 vcc, %d, v%d" % (lanes, vL))
        a("v_cndmask_b32 v26, v27, v26, vcc")
        a.vmem("buffer_load_dword v%d, v26, %s, 0 offen" % (dst, sr(srd, 4)), "touch")

    def touch_w2(self):
        a = self.a
        if self.opt.get("touch", 1):
            a("s_lshr_b32 s%d, s2, 3" % sE)
            a("s_lshl_b32 s%d, s%d, 2" % (sE, sE))
            a("s_add_u32 s%d, s%d, s%d" % (sE, sE, sW))
            self.touch(S_W2, 32, sE, 53)

    def touch_chip(self, which):
        a = self.a
        srd, lanes, dst = {"w2": (S_W2, 4, 160), "ssm": (S_SSM, 16, 161), "w3": (S_W3, 14, 163), "w4": (S_W4, 14, 162)}[which]
        if not self.opt.get("t" + which, 1):
            return
        a("s_lshl_b32 s%d, s2, 2" % sE)
        a("s_add_u32 s%d, s%d, s%d" % (sE, sE, sW))
        self.touch(srd, lanes, sE, dst)

    def touch_code(self):
        a = self.a
        if not self.opt.get("tcode", 1):
            return
        a("s_getpc_b64 s[96:97]")
        a.label("L_pc")
        a("s_sub_u32 s96, s96, L_pc-%s_kernel" % NAME)
        a("s_subb_u32 s97, s97, 0")
        a("s_lshr_b32 s%d, s2, 3" % sE)
        a("s_lshl_b32 s%d, s%d, 2" % (sE, sE))
        a("s_add_u32 s%d, s%d, s%d" % (sE, sE, sW))
        a("s_mul_i32 s%d, s%d, 3" % (sE, sE))
        a("v_min_u32 v26, 2, v%d" % vL)
        a("v_add_u32 v26, s%d, v26" % sE)
        a("v_min_u32 v26, (L_codeend-%s_kernel)/128-1, v26" % NAME)
        a("v_lshlrev_b32 v26, 7, v26")
        a("v_mov_b32 v135, s97")
        a("v_add_co_u32 v134, vcc, s96, v26")
        a("v_addc_co_u32 v135, vcc, 0, v135, vcc")
        a.vmem("global_load_dword v136, v[134:135], off", "touch")

    def cold_touches(self):
        a = self.a
        o = self.opt
        a("s_lshr_b32 s%d, s2, 3" % sE)
        a("s_lshl_b32 s%d, s%d, 2" % (sE, sE))
        a("s_add_u32 s%d, s%d, s%d" % (sE, sE, sW))
        if o.get("tq", 0):
            a("s_and_b32 s%d, s2, 7" % sF)
            a("s_lshl_b32 s%d, s%d, 7" % (sF, sF))
            a("s_add_u32 s%d, s%d, s%d" % (sF, sF, sE))
            self.touch(S_Q, 16, sF, 160)
            self.touch(S_W1, 32, sE, 161)

    def touch_rows(self, srd, rows_per_wave, srow0, col, dst):
        a = self.a
        a("v_add_u32 v26, s%d, v%d" % (srow0, vL))
        a("v_lshlrev_b32 v26, 10, v26")
        a("v_add_u32 v26, %d, v26" % col)
        a("v_mov_b32 v27, 0x%x" % OOB)
        a("v_cmp_gt_u32 vcc, %d, v%d" % (rows_per_wave, vL))
        a("v_cndmask_b32 v26, v27, v26, vcc")
        a.vmem("buffer_load_dword v%d, v26, %s, 0 offen" % (dst, sr(srd, 4)), "touch")

    def wave_in_group(self, dst):
        a = self.a
        a("s_lshr_b32 s%d, s2, 3" % dst)
        a("s_lshl_b32 s%d, s%d, 2" % (dst, dst))
        a("s_add_u32 s%d, s%d, s%d" % (dst, dst, sW))

    def head_start(self):
        a = self.a
        m = self.opt.get("head", 11)
        self.wave_in_group(sE)
        if m & 1:
            a("s_lshl_b32 s%d, s%d, 2" % (sF, sE))
            self.touch_rows(S_W1, 4, sF, 384, 160)
        if m & 2:
            a("s_and_b32 s%d, s2, 7" % sF)
            a("s_lshl_b32 s%d, s%d, 7" % (sF, sF))
            a("s_add_u32 s%d, s%d, s%d" % (sF, sF, sE))
            a("s_lshl_b32 s%d, s%d, 1" % (sF, sF))
            self.touch_rows(S_K, 2, sF, 384, 161)
            self.touch_rows(S_V, 2, sF, 384, 162)
        if m & 4:
            a("s_lshl_b32 s%d, s%d, 2" % (sF, sE))
            self.touch_rows(S_W2, 4, sF, 384, 163)

    def page_touch(self):
        a = self.a
        m = self.opt.get("tlb", 0)
        if not m:
            return
        a("v_mov_b32 v27, 0x%x" % OOB)
        if m & 1:
            a("v_lshlrev_b32 v26, 21, v%d" % vL)
            a("v_add_u32 v26, 0x70800, v26")
            a("v_cmp_gt_u32 vcc, 10, v%d" % vL)
            a("v_cndmask_b32 v26, v27, v26, vcc")
            a.vmem("buffer_load_dword v164, v26, %s, 0 offen" % sr(S_WS, 4), "touch")
        lst = []
        if m & 2:
            lst += [(S_OUT, 1 << 21, 165)]
        if m & 4:
            lst += [(S_SSM, 1 << 21, 166), (S_W3, 512 * 1792 * 2, 167), (S_W4, 512 * 1792 * 2, 168), (S_W2, 1 << 19, 169)]
        for srd, size, dst in lst:
            a("v_mul_u32_u24 v26, %d, v%d" % (size // 128 - 1, vL))
            a("v_lshlrev_b32 v26, 7, v26")
            a("v_cmp_gt_u32 vcc, 2, v%d" % vL)
            a("v_cndmask_b32 v26, v27, v26, vcc")
            a.vmem("buffer_load_dword v%d, v26, %s, 0 offen" % (dst, sr(srd, 4)), "touch")

    def head_start_w4(self):
        a = self.a
        if self.opt.get("head", 11) & 8:
            self.wave_in_group(sE)
            a("s_mul_i32 s%d, s%d, 14" % (sF, sE))
            self.touch_rows(S_W4, 14, sF, 384, 161)

    def batch_a(self):
        a = self.a
        if self.opt.get("tkv", 0):
            self.touch_kv(157, 158)
        if self.opt.get("tw2", 1):
            a("s_lshr_b32 s%d, s2, 3" % sE)
            a("s_lshl_b32 s%d, s%d, 2" % (sE, sE))
            a("s_add_u32 s%d, s%d, s%d" % (sE, sE, sW))
            self.touch(S_W2, 32, sE, 159)
        if self.opt.get("bpos", 0) == 0:
            self.touch_chip("ssm")
            self.touch_chip("w3")

    def kv_dma(self):
        a = self.a
        a("v_lshrrev_b32 v26, 3, v%d" % vL)
        a("v_and_b32 v27, 7, v%d" % vL)
        a("v_lshlrev_b32 v27, 4, v27")
        a("v_lshl_add_u32 v137, v26, 10, v27")
        a("s_lshl_b32 s%d, s%d, 6" % (sA, sR))
        a("s_lshl_b32 s%d, s%d, 4" % (sB, sW))
        a("s_add_u32 s%d, s%d, s%d" % (sA, sA, sB))
        a("v_add_u32 v26, s%d, v26" % sA)
        a("s_lshl_b32 s%d, s%d, 10" % (sQG, sA))
        a("s_lshl_b32 s%d, s%d, 7" % (sB, sC))
        a("s_add_u32 s%d, s%d, s%d" % (sQG, sQG, sB))
        a("v_add_u32 v138, s%d, v137" % sQG)
        a("v_subrev_u32 v138, 3072, v138")
        a("v_mov_b32 v27, 0x%x" % OOB)
        a("v_cmp_gt_u32 vcc, 3, v26")
        a("v_cndmask_b32 v138, v138, v27, vcc")
        a("s_mul_i32 s%d, s%d, 5120" % (sWG, sW))
        a("s_add_u32 m0, s%d, %d" % (sWG, LKV))
        a.vmem("buffer_load_dwordx4 v138, %s, 0 offen lds" % sr(S_K, 4), "kv")
        for g in (1, 2):
            self.dma_item(S_K, 137, sWG, LKV + 1024 * g, sQG, 8192 * g - 3072, "kv")()
        for g in (0, 1):
            self.dma_item(S_V, 137, sWG, LKV + 3072 + 1024 * g, sQG, 8192 * g, "kv")()
        a("s_lshl_b32 s%d, s%d, 9" % (sB, sC))
        a("v_lshl_add_u32 v26, v%d, 4, s%d" % (vN31, sB))
        a.vmem("buffer_load_dwordx4 %s, v26, %s, 0 offen" % (vr(self.SHRAW, 4), sr(S_SHK, 4)), "kv")

    def p0_reads(self):
        a = self.a
        a.wait_vm("kv")
        a("s_mul_i32 s%d, s%d, 5120" % (sA, sW))
        a("v_lshlrev_b32 v26, 10, v%d" % vHH)
        a("v_lshl_add_u32 v26, v%d, 2, v26" % vN31)
        a("v_add_u32 v26, s%d, v26" % sA)
        a("v_add_u32 v26, %d, v26" % LKV)
        for i in range(11):
            a.lds("ds_read_b32 v%d, v26 offset:%d" % (self.KRAW + i, 128 * i), "p0")
        for i in range(8):
            a.lds("ds_read_b32 v%d, v26 offset:%d" % (self.VRAW + i, 3072 + 128 * i), "p0")

    def touch_kv(self, dk=54, dv=55):
        a = self.a
        for srd, rows, first, dst in ((S_K, 17, -3, dk), (S_V, 16, 0, dv)):
            a("s_lshl_b32 s%d, s%d, 6" % (sA, sR))
            a("s_mul_i32 s%d, s%d, %d" % (sB, sW, rows))
            a("s_add_u32 s%d, s%d, s%d" % (sA, sA, sB))
            a("s_add_i32 s%d, s%d, %d" % (sA, sA, first))
            a("v_add_u32 v26, s%d, v%d" % (sA, vL))
            a("v_lshlrev_b32 v26, 10, v26")
            a("s_lshl_b32 s%d, s%d, 7" % (sB, sC))
            a("v_add_u32 v26, s%d, v26" % sB)
            a("v_mov_b32 v27, 0x%x" % OOB)
            a("v_cmp_gt_u32 vcc, %d, v%d" % (rows, vL))
            a("v_cndmask_b32 v26, v27, v26, vcc")
            a.vmem("buffer_load_dword v%d, v26, %s, 0 offen" % (dst, sr(srd, 4)), "touch")

    def touch_w3_local(self):
        a = self.a
        if self.opt.get("tw3", 1):
            a("s_lshr_b32 s%d, s2, 3" % sE)
            a("s_lshl_b32 s%d, s%d, 2" % (sE, sE))
            a("s_add_u32 s%d, s%d, s%d" % (sE, sE, sW))
            self.touch(S_W3, 64, sE, 50)
            a("s_add_u32 s%d, s%d, 128" % (sE, sE))
            self.touch(S_W3, 64, sE, 51)

    def touch_w4_chip(self):
        a = self.a
        if self.opt.get("tw4", 1):
            a("s_lshl_b32 s%d, s2, 2" % sE)
            a("s_add_u32 s%d, s%d, s%d" % (sE, sE, sW))
            self.touch(S_W4, 14, sE, 52)

    def touch_w34(self):
        a = self.a
        if self.opt.get("touch", 1):
            a("s_lshl_b32 s%d, s2, 2" % sE)
            a("s_add_u32 s%d, s%d, s%d" % (sE, sE, sW))
            if self.opt.get("touchw3", 1):
                self.touch(S_W3, 14, sE, 223)
            if self.opt.get("touchw4", 1):
                self.touch(S_W4, 14, sE, 224)

    def touch_w4_local(self):
        a = self.a
        a("s_lshr_b32 s%d, s2, 3" % sE)
        a("s_lshl_b32 s%d, s%d, 2" % (sE, sE))
        a("s_add_u32 s%d, s%d, s%d" % (sE, sE, sW))
        self.touch(S_W4, 64, sE, 54)
        a("s_add_u32 s%d, s%d, 128" % (sE, sE))
        self.touch(S_W4, 64, sE, 55)

    KRAW, VRAW, SHRAW, POFF = 172, 183, 164, 138

    def p0_loads(self):
        a = self.a
        o = self.POFF
        a("s_lshl_b32 s%d, s%d, 6" % (sA, sR))
        a("s_lshl_b32 s%d, s%d, 4" % (sB, sW))
        a("s_add_u32 s%d, s%d, s%d" % (sA, sA, sB))
        a("v_lshl_add_u32 v26, v%d, 3, s%d" % (vHH, sA))
        a("s_lshl_b32 s%d, s%d, 7" % (sB, sC))
        a("v_lshl_add_u32 v27, v%d, 2, s%d" % (vN31, sB))
        a("v_lshl_add_u32 v%d, v26, 10, v27" % (o + 3))
        a("v_add_u32 v%d, 0x1000, v%d" % (o + 4, o + 3))
        a("v_mov_b32 v28, 0x%x" % OOB)
        for i in range(3):
            a("v_subrev_u32 v%d, %d, v%d" % (o + i, (3 - i) * 1024, o + 3))
            a("v_cmp_gt_u32 vcc, %d, v26" % (3 - i))
            a("v_cndmask_b32 v%d, v%d, v28, vcc" % (o + i, o + i))
        a("s_lshl_b32 s%d, s%d, 9" % (sB, sC))
        a("v_lshl_add_u32 v%d, v%d, 4, s%d" % (o + 5, vN31, sB))

        def item(text):
            return lambda: a.vmem(text, "p0")
        for i in range(3):
            self.fq.append(item("buffer_load_dword v%d, v%d, %s, 0 offen" % (self.KRAW + i, o + i, sr(S_K, 4))))
        for i in range(8):
            self.fq.append(item("buffer_load_dword v%d, v%d, %s, 0 offen offset:%d"
                                % (self.KRAW + 3 + i, o + 3 + i // 4, sr(S_K, 4), (i % 4) * 1024)))
        for i in range(8):
            self.fq.append(item("buffer_load_dword v%d, v%d, %s, 0 offen offset:%d"
                                % (self.VRAW + i, o + 3 + i // 4, sr(S_V, 4), (i % 4) * 1024)))
        self.fq.append(item("buffer_load_dwordx4 %s, v%d, %s, 0 offen" % (vr(self.SHRAW, 4), o + 5, sr(S_SHK, 4))))

    ACK, ACS, ACC_CS = 32, 48, 64
    BF, AK, AS, AC = 80, 96, 104, 112
    SUM, ONE4 = 120, 124

    def s1_setup(self):
        a = self.a
        a("v_bfe_u32 v26, v%d, 1, 3" % vN31)
        a("v_xor_b32 v26, v26, v%d" % vHH)
        a("v_lshlrev_b32 v26, 4, v26")
        a("v_lshl_add_u32 v26, v%d, 7, v26" % vN31)
        a("s_lshl_b32 s%d, s%d, 14" % (sA, sW))
        a("v_add_u32 v128, s%d, v26" % sA)
        for i in range(1, 4):
            a("v_xor_b32 v%d, %d, v128" % (128 + i, 32 * i))
        a("s_lshl_b32 s%d, s%d, 14" % (sA, sKH))
        a("s_add_u32 s%d, s%d, %d" % (sA, sA, LW))
        a("s_lshl_b32 s%d, s%d, 15" % (sB, sKH))
        a("s_add_u32 s%d, s%d, s%d" % (sE, sA, sB))
        a("v_add_u32 v134, s%d, v%d" % (sE, vWN))
        a("s_xor_b32 s%d, s%d, 0x8000" % (sB, sB))
        a("s_add_u32 s%d, s%d, s%d" % (sE, sA, sB))
        a("v_add_u32 v135, s%d, v%d" % (sE, vWN))
        a("s_xor_b32 s%d, s%d, s%d" % (sB, sKH, sTH))
        a("s_lshl_b32 s%d, s%d, 15" % (sB, sB))
        a("s_add_u32 s%d, s%d, s%d" % (sE, sA, sB))
        a("v_add_u32 v136, s%d, v%d" % (sE, vWN))

    def s1_main(self, after_stage):
        a = self.a
        ACK, ACS, ACC_CS, BF, AK, AS, AC, SUM, ONE4 = (self.ACK, self.ACS, self.ACC_CS, self.BF, self.AK, self.AS,
                                                       self.AC, self.SUM, self.ONE4)
        self.selector(ONE4)
        for i in range(4):
            a("v_mov_b32 v%d, 0" % (SUM + i))

        def aread(ks, which):
            base, addr = ((AK, 134), (AS, 135), (AC, 136))[which]
            for hf in range(2):
                a.lds("ds_read_b64_tr_b16 %s, v%d offset:%d"
                      % (vr(base + 4 * (ks & 1) + 2 * hf, 2), addr, ks * 1024 + hf * 256), "f%d_%d" % (ks, which))

        for st in range(4):
            if st < 3:
                after_stage(st)
            for q4 in range(4):
                a.lds("ds_read_b128 %s, v%d offset:%d" % (vr(BF + 4 * q4, 4), 128 + q4, LQ + st * 4096), "b")
            for which in range(3):
                aread(4 * st, which)
            self.fill(1)
            a.wait_lg("b")
            if not self.opt.get("hstat", 0):
                for j in range(16):
                    a("v_dot2c_f32_bf16 v%d, s%d, v%d" % (SUM + (j & 1), sONES, BF + j))
                    a("v_dot2c_f32_bf16 v%d, v%d, v%d" % (SUM + 2 + (j & 1), BF + j, BF + j))
            for q4 in range(4):
                ks = 4 * st + q4
                b = ks & 1
                B = vr(BF + 4 * q4, 4)
                first = ks == 0
                a.wait_lg("f%d_0" % ks)
                a("%s %s, %s, %s, %s" % (MF32, vr(ACK, 16), vr(AK + 4 * b, 4), B, "0" if first else vr(ACK, 16)))
                if q4 < 3:
                    aread(ks + 1, 0)
                self.fill(1)
                a.wait_lg("f%d_1" % ks)
                a("%s %s, %s, %s, %s" % (MF32, vr(ACS, 16), vr(AS + 4 * b, 4), B, "0" if first else vr(ACS, 16)))
                if q4 < 3:
                    aread(ks + 1, 1)
                self.fill(1)
                a.wait_lg("f%d_2" % ks)
                a("%s %s, %s, %s, %s" % (MF16, vr(ACC_CS, 4), vr(AC + 4 * b, 4), vr(ONE4, 4),
                                         "0" if first else vr(ACC_CS, 4)))
                if q4 < 3:
                    aread(ks + 1, 2)
            self.stamp("s1st%d" % st)
        self.fill_all()

    def s1_stats(self):
        a = self.a
        BF, SUM = self.BF, self.SUM
        a("v_bfe_u32 v26, v%d, 1, 3" % vN31)
        a("v_xor_b32 v26, v26, v%d" % vHH)
        a("v_lshlrev_b32 v26, 4, v26")
        a("v_lshl_add_u32 v26, v%d, 7, v26" % vN31)
        a("s_lshl_b32 s%d, s%d, 14" % (sA, sW))
        a("v_add_u32 v128, s%d, v26" % sA)
        for i in range(1, 4):
            a("v_xor_b32 v%d, %d, v128" % (128 + i, 32 * i))
        for i in range(4):
            a("v_mov_b32 v%d, 0" % (SUM + i))
        bufs = (BF, 96)
        for st in range(5):
            if st < 4:
                for q4 in range(4):
                    a.lds("ds_read_b128 %s, v%d offset:%d" % (vr(bufs[st & 1] + 4 * q4, 4), 128 + q4, LQ + st * 4096),
                          "b%d" % st)
            if st:
                a.wait_lg("b%d" % (st - 1))
                B = bufs[(st - 1) & 1]
                for j in range(16):
                    a("v_dot2c_f32_bf16 v%d, s%d, v%d" % (SUM + (j & 1), sONES, B + j))
                    a("v_dot2c_f32_bf16 v%d, v%d, v%d" % (SUM + 2 + (j & 1), B + j, B + j))
        self.stats_write()
        a.wait_lg_all()

    def stats_write(self):
        a = self.a
        SUM = self.SUM
        a("v_add_f32 v%d, v%d, v%d" % (SUM, SUM, SUM + 1))
        a("v_add_f32 v%d, v%d, v%d" % (SUM + 2, SUM + 2, SUM + 3))
        a("v_permlane32_swap_b32 v%d, v%d" % (SUM, SUM + 2))
        a("v_add_f32 v%d, v%d, v%d" % (SUM, SUM, SUM + 2))
        a("s_lshl_b32 s%d, s%d, 8" % (sA, sW))
        a("s_add_u32 s%d, s%d, %d" % (sA, sA, LSTX))
        a("v_lshl_add_u32 v27, v%d, 2, s%d" % (vL, sA))
        a.lds("ds_write_b32 v27, v%d" % SUM)

    def selector(self, dst):
        a = self.a
        a("v_lshrrev_b32 v26, 4, v%d" % vL)
        a("v_xor_b32 v26, v26, v%d" % vL)
        a("v_and_b32 v26, 1, v26")
        a("v_mov_b32 v27, s%d" % sONES)
        a("v_cmp_eq_u32 vcc, 0, v26")
        a("v_cndmask_b32 v%d, 0, v27, vcc" % dst)
        for i in range(1, 4):
            a("v_mov_b32 v%d, v%d" % (dst + i, dst))

    def colsum_write(self, src, sbase):
        a = self.a
        a("v_and_b32 v28, 1, v%d" % vL)
        a("v_lshlrev_b32 v28, 6, v28")
        a("v_lshrrev_b32 v29, 4, v%d" % vL)
        a("v_lshl_add_u32 v28, v29, 4, v28")
        a("v_add_u32 v28, s%d, v28" % sbase)
        self.hold += 1
        a("s_mov_b32 exec_lo, 0x30003")
        a("s_mov_b32 exec_hi, 0x30003")
        a.lds("ds_write_b128 v28, %s" % vr(src, 4))
        a("s_mov_b64 exec, -1")
        self.hold -= 1

    def q_tile_read(self):
        a = self.a
        self.feat0(sE, sKH, 0)
        a("s_lshr_b32 s%d, s%d, 8" % (sA, sE))
        a("s_lshl_b32 s%d, s%d, 1" % (sB, sTH))
        a("s_add_u32 s%d, s%d, s%d" % (sA, sA, sB))
        a("s_lshl_b32 s%d, s%d, 14" % (sA, sA))
        a("s_lshr_b32 s%d, s%d, 6" % (sB, sE))
        a("s_sub_u32 s%d, s%d, s%d" % (sB, sB, sROT))
        a("s_and_b32 s%d, s%d, 3" % (sB, sB))
        a("s_lshl_b32 s%d, s%d, 12" % (sB, sB))
        a("s_add_u32 s%d, s%d, s%d" % (sA, sA, sB))
        a("s_bfe_u32 s%d, s%d, 0x10005" % (sB, sE))
        a("s_lshl_b32 s%d, s%d, 2" % (sB, sB))
        a("v_bfe_u32 v26, v%d, 1, 3" % vN31)
        a("v_xor_b32 v26, s%d, v26" % sB)
        a("v_lshlrev_b32 v27, 7, v%d" % vN31)
        a("v_lshl_add_u32 v27, v%d, 3, v27" % vHH)
        a("v_add_u32 v27, s%d, v27" % sA)
        for j in range(4):
            a("v_xor_b32 v28, %d, v26" % j)
            a("v_lshl_add_u32 v28, v28, 4, v27")
            a.lds("ds_read_b64 %s, v28 offset:%d" % (vr(vQ + 2 * j, 2), LQ), "qt")

    def gelu(self, X, n, vA13, vIA, T, out, fills=0):
        a = self.a
        for g0 in range(0, n // 2, 4):
            ps = list(range(g0, min(g0 + 4, n // 2)))
            t = lambda p: T + 4 * (p - g0)
            x = lambda p: vr(X + 2 * p, 2)
            left = fills

            def hook():
                nonlocal left
                if left > 0:
                    self.fill(1)
                    left -= 1
            for p in ps:
                a("v_pk_mul_f32 %s, %s, %s" % (vr(t(p), 2), x(p), x(p)))
            for p in ps:
                a("v_pk_fma_f32 %s, %s, %s, %s op_sel:[0,1,0] op_sel_hi:[1,1,0]"
                  % (vr(t(p), 2), vr(t(p), 2), vr(vA13, 2), vr(vA13, 2)))
            hook()
            for p in ps:
                a("v_pk_mul_f32 %s, %s, %s" % (vr(t(p), 2), vr(t(p), 2), x(p)))
            for p in ps:
                a("v_exp_f32 v%d, v%d" % (t(p) + 2, t(p)))
                a("v_exp_f32 v%d, v%d" % (t(p) + 3, t(p) + 1))
            hook()
            for p in ps:
                a("v_pk_fma_f32 %s, %s, %s, %s op_sel_hi:[1,0,0]"
                  % (vr(t(p), 2), vr(t(p) + 2, 2), vr(vIA, 2), vr(vIA, 2)))
            hook()
            for p in ps:
                a("v_rcp_f32 v%d, v%d" % (t(p) + 2, t(p)))
                a("v_rcp_f32 v%d, v%d" % (t(p) + 3, t(p) + 1))
            hook()
            for p in ps:
                a("v_pk_mul_f32 %s, %s, %s" % (vr(t(p), 2), vr(t(p) + 2, 2), x(p)))
            for p in ps:
                a("v_cvt_pk_bf16_f32 v%d, v%d, v%d" % (out + p, t(p), t(p) + 1))

    def gelu_consts(self, vA, dst):
        a = self.a
        a("v_mul_f32 v%d, s%d, v%d" % (dst, sKG1, vA))
        a("v_mul_f32 v%d, v%d, v%d" % (dst + 1, vA, vA))
        a("v_mul_f32 v%d, v%d, v%d" % (dst + 1, dst + 1, vA))
        a("v_mul_f32 v%d, s%d, v%d" % (dst + 1, sKG3, dst + 1))
        a("v_rcp_f32 v%d, v%d" % (dst + 2, vA))

    def exchange_write(self, send, base=LRED):
        a = self.a
        a("s_lshl_b32 s%d, s%d, 12" % (sA, sW))
        a("s_add_u32 s%d, s%d, %d" % (sA, sA, base))
        a("v_add_u32 v26, s%d, v%d" % (sA, vL16))
        for j in range(4):
            a.lds("ds_write_b128 v26, %s offset:%d" % (vr(send + 4 * j, 4), 1024 * j))

    def exchange_read(self, dst, base=LRED):
        a = self.a
        a("s_xor_b32 s%d, s%d, 1" % (sA, sW))
        a("s_lshl_b32 s%d, s%d, 12" % (sA, sA))
        a("s_add_u32 s%d, s%d, %d" % (sA, sA, base))
        a("v_add_u32 v26, s%d, v%d" % (sA, vL16))
        for j in range(4):
            a.lds("ds_read_b128 %s, v26 offset:%d" % (vr(dst + 4 * j, 4), 1024 * j), "xr")

    def s1_epilogue(self, after_exchange):
        a = self.a
        ACK, ACS, ACC_CS, SUM = self.ACK, self.ACS, self.ACC_CS, self.SUM
        self.q_tile_read()
        hstat = self.opt.get("hstat", 0)
        if not hstat:
            self.stats_write()
        self.exchange_write(ACS)
        a("s_xor_b32 s%d, s%d, s%d" % (sA, sKH, sTH))
        a("s_lshl_b32 s%d, s%d, 8" % (sA, sA))
        a("s_lshl_b32 s%d, s%d, 7" % (sB, sKH))
        a("s_add_u32 s%d, s%d, s%d" % (sA, sA, sB))
        a("s_add_u32 s%d, s%d, %d" % (sA, sA, LCSX))
        self.colsum_write(ACC_CS, sA)
        a.wait_lg_all()
        self.ssm_d_unpack()
        self.barrier()
        P, C0, C1 = 80, 96, 128
        self.exchange_read(P)
        a("s_xor_b32 s%d, s%d, 1" % (sA, sW))
        a("s_lshl_b32 s%d, s%d, 8" % (sA, sA))
        a("s_add_u32 s%d, s%d, %d" % (sA, sA, LSTX))
        a("v_lshl_add_u32 v27, v%d, 2, s%d" % (vL, sA))
        a.lds("ds_read_b32 v%d, v27" % (SUM + 1), "sx")
        if hstat:
            a("s_lshl_b32 s%d, s%d, 8" % (sA, sW))
            a("s_add_u32 s%d, s%d, %d" % (sA, sA, LSTX))
            a("v_lshl_add_u32 v27, v%d, 2, s%d" % (vL, sA))
            a.lds("ds_read_b32 v%d, v27" % SUM, "sx")
        a("s_lshl_b32 s%d, s%d, 8" % (sA, sKH))
        a("s_add_u32 s%d, s%d, %d" % (sA, sA, LCSX))
        a("v_lshl_add_u32 v28, v%d, 4, s%d" % (vHH, sA))
        for j in range(4):
            a.lds("ds_read_b128 %s, v28 offset:%d" % (vr(C0 + 4 * j, 4), 32 * j))
            a.lds("ds_read_b128 %s, v28 offset:%d" % (vr(C1 + 4 * j, 4), 128 + 32 * j))
        after_exchange()
        a.wait_lg("sx")
        a("v_add_f32 v%d, v%d, v%d" % (SUM, SUM, SUM + 1))
        a("v_mov_b32 v%d, v%d" % (SUM + 2, SUM))
        a("v_permlane32_swap_b32 v%d, v%d" % (SUM, SUM + 2))
        a("v_mul_f32 v%d, s%d, v%d" % (vMEAN, s512I, SUM))
        a("v_mul_f32 v26, s%d, v%d" % (s512I, SUM + 2))
        a("v_fma_f32 v26, -v%d, v%d, v26" % (vMEAN, vMEAN))
        a("v_max_f32 v26, 0, v26")
        a("v_add_f32 v27, s%d, v26" % sEPS)
        a("v_rsq_f32 v%d, v27" % vR1)
        a("v_mul_f32 v27, v%d, v%d" % (vR1, vR1))
        a("v_fma_f32 v27, v27, v26, s%d" % sEPS)
        a("v_rsq_f32 v27, v27")
        a("v_mul_f32 v27, v27, v%d" % vR1)
        G = 112
        self.gelu_consts(27, G)
        a("v_sub_f32 v%d, 0, v%d" % (G + 4, vMEAN))
        a.wait_lg_all()
        for p in range(8):
            a("v_pk_add_f32 %s, %s, %s" % (vr(C0 + 2 * p, 2), vr(C0 + 2 * p, 2), vr(C1 + 2 * p, 2)))
            a("v_pk_add_f32 %s, %s, %s" % (vr(ACK + 2 * p, 2), vr(ACK + 2 * p, 2), vr(P + 2 * p, 2)))
        for p in range(8):
            a("v_pk_fma_f32 %s, %s, %s, %s op_sel_hi:[1,0,1]"
              % (vr(ACK + 2 * p, 2), vr(C0 + 2 * p, 2), vr(G + 4, 2), vr(ACK + 2 * p, 2)))
        self.gelu(ACK, 16, G, G + 2, 144, 48, fills=0)
        self.frag_store(48, WS_HS, "hst")

    def frag_store(self, src, base, tag):
        a = self.a
        a("s_lshl_b32 s%d, s%d, 15" % (sA, sT))
        self.feat0(sB, sKH, 6)
        a("s_add_u32 s%d, s%d, s%d" % (sA, sA, sB))
        a("s_add_u32 s%d, s%d, 0x%x" % (sA, sA, base))
        a.vmem("buffer_store_dwordx4 %s, v%d, %s, s%d offen sc1" % (vr(src, 4), vL16, sr(S_WS, 4), sA), tag)
        a.vmem("buffer_store_dwordx4 %s, v%d, %s, s%d offen offset:1024 sc1"
               % (vr(src + 4, 4), vL16, sr(S_WS, 4), sA), tag)

    PK = 118

    def nonce_compute(self):
        a = self.a
        a.wait_vm("nonce")
        a("v_readfirstlane_b32 s%d, v30" % sN)
        a("s_mul_i32 s%d, s%d, 0x9e3779b1" % (sN, sN))
        a("s_add_u32 s%d, s%d, 0x7f4a7c15" % (sN, sN))

    def p0_compute(self, mid=None):
        a = self.a
        K, V, SH, KV, PK = 56, 78, 94, 102, self.PK
        self.p0_reads()
        a.wait_lg_all()
        d = self.SHRAW
        for j, (x, y, hi) in enumerate([(d, d + 2, 0), (d, d + 2, 1), (d + 1, d + 3, 0), (d + 1, d + 3, 1)]):
            for o, src in ((0, x), (1, y)):
                if hi:
                    a("v_and_b32 v%d, s%d, v%d" % (SH + 2 * j + o, sHI, src))
                else:
                    a("v_lshlrev_b32 v%d, 16, v%d" % (SH + 2 * j + o, src))
        for i in range(11):
            a("v_lshlrev_b32 v%d, 16, v%d" % (K + 2 * i, self.KRAW + i))
            a("v_and_b32 v%d, s%d, v%d" % (K + 2 * i + 1, sHI, self.KRAW + i))
            if i % 4 == 3:
                self.fill(1)
        for i in range(8):
            a("v_lshlrev_b32 v%d, 16, v%d" % (V + 2 * i, self.VRAW + i))
            a("v_and_b32 v%d, s%d, v%d" % (V + 2 * i + 1, sHI, self.VRAW + i))
        self.fill(1)
        for t in range(8):
            a("v_pk_mul_f32 %s, %s, %s" % (vr(KV + 2 * t, 2), vr(K + 2 * (t + 3), 2), vr(SH, 2)))
        self.fill(1)
        for j in range(1, 4):
            for t in range(8):
                a("v_pk_fma_f32 %s, %s, %s, %s" % (vr(KV + 2 * t, 2), vr(K + 2 * (t + 3 - j), 2), vr(SH + 2 * j, 2),
                                                   vr(KV + 2 * t, 2)))
            self.fill(1)
        if mid:
            mid()
            self.fill(4)
        for t in range(8):
            a("v_pk_mul_f32 %s, %s, %s" % (vr(KV + 2 * t, 2), vr(KV + 2 * t, 2), vr(V + 2 * t, 2)))
        self.fill(1)
        for c in range(2):
            for t in range(4):
                a("v_cvt_pk_bf16_f32 v%d, v%d, v%d" % (PK + 4 * c + t, KV + 4 * t + c, KV + 4 * t + 2 + c))
        a("s_lshl_b32 s%d, s%d, 1" % (sA, sW))
        a("v_add_u32 v26, s%d, v%d" % (sA, vHH))
        a("v_and_b32 v27, 7, v%d" % vN31)
        a("v_xor_b32 v26, v26, v27")
        a("v_lshlrev_b32 v26, 4, v26")
        a("v_lshl_add_u32 v26, v%d, 8, v26" % vN31)
        a("v_add_u32 v26, %d, v26" % LSTG)
        a.lds("ds_write_b128 v26, %s" % vr(PK, 4))
        a.lds("ds_write_b128 v26, %s offset:128" % vr(PK + 4, 4))
        self.fill_all()

    def p0_readback(self):
        a = self.a
        PK = 144
        a("v_lshrrev_b32 v26, 3, v%d" % vL)
        a("s_lshl_b32 s%d, s%d, 4" % (sA, sW))
        a("v_add_u32 v26, s%d, v26" % sA)
        a("v_and_b32 v27, 7, v%d" % vL)
        for i in range(2):
            a("v_add_u32 v28, %d, v26" % (8 * i))
            a("v_bfe_u32 v29, v28, 1, 3")
            a("v_xor_b32 v29, v29, v27")
            a("v_lshlrev_b32 v29, 4, v29")
            a("v_lshl_add_u32 v29, v28, 7, v29")
            a("v_add_u32 v29, %d, v29" % LSTG)
            a.lds("ds_read_b128 %s, v29" % vr(PK + 4 * i, 4), "pk")
        a("v_lshlrev_b32 v27, 4, v27")
        a("v_lshl_add_u32 v152, v26, 12, v27")

    def p0_store(self):
        a = self.a
        PK = 144
        a("s_lshl_b32 s%d, s%d, 18" % (sA, sC))
        a("s_lshl_b32 s%d, s%d, 7" % (sB, sR))
        a("s_add_u32 s%d, s%d, s%d" % (sA, sA, sB))
        a("s_add_u32 s%d, s%d, 0x%x" % (sA, sA, WS_KVT))
        a("s_add_u32 s%d, s%d, 0x8000" % (sB, sA))
        a.wait_lg("pk")
        a.vmem("buffer_store_dwordx4 %s, v152, %s, s%d offen sc1" % (vr(PK, 4), sr(S_WS, 4), sA), "kvt")
        a.vmem("buffer_store_dwordx4 %s, v152, %s, s%d offen sc1" % (vr(PK + 4, 4), sr(S_WS, 4), sB), "kvt")

    def conv_filter_loads(self, ch):
        a = self.a
        a("v_lshlrev_b32 v26, 4, v%d" % vTID)
        a("v_subrev_u32 v27, 8, v26")
        a("v_mov_b32 v28, 0x%x" % OOB)
        a("v_cmp_eq_u32 vcc, 0, v%d" % vTID)
        a("v_cndmask_b32 v27, v27, v28, vcc")
        a("s_lshl_b32 s%d, s2, 13" % sA)
        if ch:
            a("s_add_u32 s%d, s%d, 0x1000" % (sA, sA))
        dA, dP = vr(vCH, 4), vr(vCH + 4, 2)
        a.vmem("buffer_load_dwordx4 %s, v26, %s, s%d offen" % (dA, sr(S_SSM, 4), sA), "cf")
        a.vmem("buffer_load_dwordx2 %s, v27, %s, s%d offen" % (dP, sr(S_SSM, 4), sA), "cf")

    def ssm_d_load(self):
        a = self.a
        a("s_lshl_b32 s%d, s2, 2" % sA)
        a("s_load_dword s%d, %s, s%d" % (sD0, sr(S_DPTR, 2), sA))

    def ssm_d_unpack(self):
        a = self.a
        a("s_and_b32 s%d, s%d, s%d" % (sD1, sD0, sHI))
        a("s_lshl_b32 s%d, s%d, 16" % (sD0, sD0))

    def conv_x_loads(self, ch):
        a = self.a
        a("v_lshlrev_b32 v26, 4, v%d" % vTID)
        a("s_lshl_b32 s%d, s2, 13" % sA)
        a("s_add_u32 s%d, s%d, 0x%x" % (sA, sA, WS_KVT + 0x1000 * ch))
        a.vmem("buffer_load_dwordx4 %s, v26, %s, s%d offen sc1" % (vr(vCH + 6, 4), sr(S_WS, 4), sA), "cx")

    def conv_prep_filter(self, ch):
        a = self.a
        base = CV_BASE1 if ch else CV_BASE
        A, P = vCH, vCH + 4
        a.wait_vm("cf")
        a("v_min_u32 v26, 79, v%d" % vTID)
        a("v_subrev_u32 v27, 72, v26")
        a("v_lshrrev_b32 v28, 1, v27")
        a("v_mul_u32_u24 v28, 4128, v28")
        a("v_and_b32 v27, 1, v27")
        a("v_lshl_add_u32 v28, v27, 4, v28")
        a("v_add_u32 v28, %d, v28" % (base + CV_A))
        a("v_lshlrev_b32 v27, 4, v26")
        a("v_add_u32 v27, %d, v27" % (base + CV_X))
        a("v_cmp_gt_u32 vcc, 72, v26")
        a("v_cndmask_b32 v28, v28, v27, vcc")
        for i in range(4):
            a("v_mov_b32 v%d, 0" % (32 + i))
        a.lds("ds_write_b128 v28, %s" % vr(32, 4))
        Z, Y, W = 36, 40, 44
        seq = [P, P + 1, A, A + 1, A + 2, A + 3]
        for j in range(4):
            a("v_alignbit_b32 v%d, v%d, v%d, 16" % (Z + j, seq[j + 1], seq[j]))
            a("v_alignbit_b32 v%d, v%d, v%d, 16" % (Y + j, seq[j + 2], seq[j + 1]))
            a("v_mov_b32 v%d, v%d" % (W + j, seq[j + 1]))
        a("v_lshlrev_b32 v29, 4, v%d" % vTID)
        a("v_add_u32 v29, %d, v29" % base)
        for rho, src in ((0, A), (1, Y), (2, W), (3, Z)):
            a.lds("ds_write_b128 v29, %s offset:%d" % (vr(src, 4), CV_A + 32 + 4128 * rho))
        a.wait_lg_all()

    def conv_x_write(self, ch):
        a = self.a
        base = CV_BASE1 if ch else CV_BASE
        a.wait_vm("cx")
        a("v_lshlrev_b32 v29, 4, v%d" % vTID)
        a("v_add_u32 v29, %d, v29" % base)
        a.lds("ds_write_b128 v29, %s offset:%d" % (vr(vCH + 6, 4), CV_XD))
        a.wait_lg_all()

    def conv_poly(self, ch):
        a = self.a
        base = CV_BASE1 if ch else CV_BASE
        a("s_lshl_b32 s%d, s%d, 5" % (sA, sW))
        a("s_sub_u32 s%d, %d, s%d" % (sA, base + CV_XD - 1024, sA))
        a("v_lshl_add_u32 v26, v%d, 3, s%d" % (vL, sA))
        for u in range(10):
            a.lds("ds_read_b64_tr_b16 %s, v26 offset:%d" % (vr(32 + 2 * u, 2), 512 * u), "u%d" % u)
        a("s_mul_i32 s%d, s%d, 5312" % (sA, sW))
        a("s_add_u32 s%d, s%d, %d" % (sA, sA, base + CV_P))
        a("v_and_b32 v27, 15, v%d" % vL)
        a("v_mul_u32_u24 v27, 328, v27")
        a("v_lshrrev_b32 v28, 4, v%d" % vL)
        a("v_lshl_add_u32 v27, v28, 3, v27")
        a("v_add_u32 v27, s%d, v27" % sA)
        for u in range(10):
            a.wait_lg("u%d" % u)
            a.lds("ds_write_b64 v27, %s offset:%d" % (vr(32 + 2 * u, 2), 32 * u))
        a.wait_lg_all()

    def conv_addr(self, ch):
        a = self.a
        base = CV_BASE1 if ch else CV_BASE
        a("s_lshl_b32 s%d, s%d, 4" % (sA, sTH))
        a("s_sub_u32 s%d, %d, s%d" % (sA, base + CV_A + 24, sA))
        a("v_lshl_add_u32 v160, v%d, 3, s%d" % (vL, sA))
        a("s_mul_i32 s%d, s%d, 2624" % (sA, sTH))
        a("s_lshl_b32 s%d, s%d, 5" % (sB, sKH))
        a("s_add_u32 s%d, s%d, s%d" % (sA, sA, sB))
        a("s_add_u32 s%d, s%d, %d" % (sA, sA, base + CV_P + 32))
        a("v_bfe_u32 v26, v%d, 2, 2" % vL)
        a("v_mul_u32_u24 v26, 5312, v26")
        a("v_and_b32 v27, 3, v%d" % vL)
        a("v_lshrrev_b32 v28, 4, v%d" % vL)
        a("v_sub_u32 v27, v27, v28")
        a("v_lshl_add_u32 v26, v27, 3, v26")
        a("v_add_u32 v161, s%d, v26" % sA)

    CACC, CAF, CBF = 32, 64, 96

    def conv_main(self, hook=None, fill_every=0):
        a = self.a
        CACC, CAF, CBF = self.CACC, self.CAF, self.CBF

        def rd_list(it):
            b = it & 1
            u, rho = it >> 2, it & 3
            out = []
            order = [("A", 0), ("B", 0), ("B", 1), ("B", 2), ("B", 3), ("A", 1), ("A", 2), ("A", 3)]
            for kind, i in order:
                for hf in range(2):
                    if kind == "A":
                        out.append(("ds_read_b64_tr_b16 %s, v160 offset:%d"
                                    % (vr(CAF + 16 * b + 4 * i + 2 * hf, 2),
                                       4128 * rho + 8 * (1 - u) + 1024 * i + 512 * hf), "A%d_%d" % (it, i)))
                    else:
                        out.append(("ds_read_b64_tr_b16 %s, v161 offset:%d"
                                    % (vr(CBF + 16 * b + 4 * i + 2 * hf, 2), 328 * it + 64 * i + 32 * (1 - hf)),
                                    "B%d_%d" % (it, i)))
            return out

        for x, t in rd_list(0):
            a.lds(x, t)
        for it in range(8):
            if hook and it % 2 == 0:
                hook(it // 2)
            b = it & 1
            nxt = rd_list(it + 1) if it < 7 else []
            k = 0
            for q in range(4):
                for i in range(4 - q):
                    a.wait_lg("A%d_%d" % (it, q), "B%d_%d" % (it, i))
                    acc = vr(CACC + 4 * (i + q), 4)
                    a("%s %s, %s, %s, %s" % (MF16, acc, vr(CAF + 16 * b + 4 * q, 4), vr(CBF + 16 * b + 4 * i, 4),
                                             "0" if (it == 0 and q == 0) else acc))
                    for _ in range(2 if k < 6 else 1):
                        if nxt:
                            x, t = nxt.pop(0)
                            a.lds(x, t)
                    k += 1
            assert not nxt

    def conv_finish(self, ch):
        a = self.a
        base = CV_BASE1 if ch else CV_BASE
        CACC = self.CACC
        self.barrier()
        a("s_lshl_b32 s%d, s%d, 11" % (sA, sW))
        a("s_add_u32 s%d, s%d, %d" % (sA, sA, base + CV_R))
        a("v_add_u32 v26, s%d, v%d" % (sA, vL16))
        hi, done = a.newlabel("cvhi"), a.newlabel("cvsent")
        self.hold += 1
        a("s_cmp_lg_u32 s%d, 0" % sTH)
        a("s_cbranch_scc1 %s" % hi)
        for j in range(2):
            a("ds_write_b128 v26, %s offset:%d" % (vr(CACC + 8 + 4 * j, 4), 1024 * j))
        a("s_branch %s" % done)
        a.label(hi)
        for j in range(2):
            a("ds_write_b128 v26, %s offset:%d" % (vr(CACC + 4 * j, 4), 1024 * j))
        a.label(done)
        self.hold -= 1
        a("s_lshl_b32 s%d, s%d, 2" % (sE, sTH))
        a("s_add_u32 s%d, s%d, s%d" % (sE, sE, sKH))
        a("s_lshl_b32 s%d, s%d, 9" % (sE, sE))
        a("s_add_u32 s%d, s%d, %d" % (sA, sE, base + CV_XD))
        a("v_and_b32 v27, 15, v%d" % vL)
        a("v_lshlrev_b32 v27, 5, v27")
        a("v_lshrrev_b32 v28, 4, v%d" % vL)
        a("v_lshl_add_u32 v27, v28, 3, v27")
        a("v_add_u32 v27, s%d, v27" % sA)
        for u in range(2):
            a.lds("ds_read_b64 %s, v27 offset:%d" % (vr(100 + 2 * u, 2), 1024 * u))
        a.wait_lg_all()
        self.barrier()
        a("s_xor_b32 s%d, s%d, 2" % (sA, sW))
        a("s_lshl_b32 s%d, s%d, 11" % (sA, sA))
        a("s_add_u32 s%d, s%d, %d" % (sA, sA, base + CV_R))
        a("v_add_u32 v26, s%d, v%d" % (sA, vL16))
        for u in range(2):
            a.lds("ds_read_b128 %s, v26 offset:%d" % (vr(72 + 4 * u, 4), 1024 * u))
        for u in range(2):
            for j in range(2):
                a("v_lshlrev_b32 v%d, 16, v%d" % (104 + 4 * u + 2 * j, 100 + 2 * u + j))
                a("v_and_b32 v%d, s%d, v%d" % (105 + 4 * u + 2 * j, sHI, 100 + 2 * u + j))
        a("v_mov_b32 v112, s%d" % (sD1 if ch else sD0))
        a("v_lshrrev_b32 v26, 4, v%d" % vL)
        a("v_and_b32 v27, 1, v26")
        a("v_lshlrev_b32 v27, 10, v27")
        a("v_lshrrev_b32 v26, 1, v26")
        a("v_lshl_add_u32 v27, v26, 4, v27")
        a("v_and_b32 v26, 15, v%d" % vL)
        a("v_lshl_add_u32 v27, v26, 5, v27")
        a("v_add_u32 v27, s%d, v27" % sE)
        a("s_lshl_b32 s%d, s2, 13" % sA)
        a("s_add_u32 s%d, s%d, 0x%x" % (sA, sA, WS_YT + 0x1000 * ch))
        a.wait_lg_all()
        hi, done = a.newlabel("cvhi"), a.newlabel("cvsum")
        self.hold += 1
        a("s_cmp_lg_u32 s%d, 0" % sTH)
        a("s_cbranch_scc1 %s" % hi)
        for p in range(4):
            a("v_pk_add_f32 %s, %s, %s" % (vr(64 + 2 * p, 2), vr(CACC + 2 * p, 2), vr(72 + 2 * p, 2)))
        a("s_branch %s" % done)
        a.label(hi)
        for p in range(4):
            a("v_pk_add_f32 %s, %s, %s" % (vr(64 + 2 * p, 2), vr(CACC + 8 + 2 * p, 2), vr(72 + 2 * p, 2)))
        a.label(done)
        self.hold -= 1
        for p in range(4):
            a("v_pk_fma_f32 %s, %s, %s, %s op_sel_hi:[1,0,1]" % (vr(64 + 2 * p, 2), vr(104 + 2 * p, 2), vr(112, 2),
                                                                vr(64 + 2 * p, 2)))
        for p in range(4):
            a("v_cvt_pk_bf16_f32 v%d, v%d, v%d" % (116 + p, 64 + 2 * p, 65 + 2 * p))
        a("v_permlane16_swap_b32 v116, v118")
        a("v_permlane16_swap_b32 v117, v119")
        a.vmem("buffer_store_dwordx4 %s, v27, %s, s%d offen sc1" % (vr(116, 4), sr(S_WS, 4), sA), "yt")

    def s2_load_items(self):
        a = self.a
        a("s_lshl_b32 s%d, s%d, 5" % (sA, sT))
        a("v_add_u32 v26, s%d, v%d" % (sA, vN31))
        a("s_add_u32 s%d, s%d, 1" % (sB, sKH))
        a("s_lshl_b32 s%d, s%d, 14" % (sA, sKH))
        a("s_add_u32 s%d, s%d, 0x%x" % (sA, sA, WS_HS))
        a("v_mov_b32 v29, 0x%x" % OOB)
        for i, op in enumerate(("v_subrev_u32", "v_add_u32")):
            a("%s v27, s%d, v26" % (op, sB))
            a("v_lshrrev_b32 v28, 5, v27")
            a("v_lshlrev_b32 v28, 15, v28")
            a("v_and_b32 v30, 31, v27")
            a("v_lshl_add_u32 v30, v%d, 5, v30" % vHH)
            a("v_lshl_add_u32 v28, v30, 4, v28")
            a("v_add_u32 v28, s%d, v28" % sA)
            a("v_cmp_gt_u32 vcc, 0x800, v27")
            a("v_cndmask_b32 v%d, v29, v28, vcc" % (140 + i))
        so = ["0", "s%d" % sK4, "s%d" % sK8, "s%d" % sK12]
        items = []
        for ks in range(16):
            def f(ks=ks):
                a.vmem("buffer_load_dwordx4 %s, v%d, %s, %s offen offset:%d sc1"
                       % (ar(4 * ks, 4), 140 + (ks >> 3), sr(S_WS, 4), so[ks >> 2], (ks & 3) * 1024), "h%d" % ks)
            items.append(f)
        return items

    def wpi_addr(self, vk, vs, base, khs, ps):
        a = self.a
        a("s_mul_i32 s%d, s%d, %d" % (sA, sKH, khs + ps))
        a("s_add_u32 s%d, s%d, %d" % (sA, sA, base))
        a("v_add_u32 v%d, s%d, v%d" % (vk, sA, vWP))
        a("s_mul_i32 s%d, s%d, %d" % (sA, sKH, khs - ps))
        a("s_add_u32 s%d, s%d, %d" % (sA, sA, base + ps))
        a("v_add_u32 v%d, s%d, v%d" % (vs, sA, vWP))

    def s2_main(self):
        a = self.a
        ACK, ACS, AK, AS = self.ACK, self.ACS, self.AK, self.AS

        def rd(ks, which):
            base, addr = ((AK, 128), (AS, 129))[which]
            for hf in range(2):
                a.lds("ds_read_b64_tr_b16 %s, v%d offset:%d" % (vr(base + 4 * (ks & 1) + 2 * hf, 2), addr,
                                                                ks * 1024 + hf * 512), "f%d_%d" % (ks, which))
        rd(0, 0)
        rd(0, 1)
        for ks in range(16):
            b = ks & 1
            a.wait_both("h%d" % ks, "f%d_0" % ks)
            a("%s %s, %s, %s, %s" % (MF32, vr(ACK, 16), vr(AK + 4 * b, 4), ar(4 * ks, 4), "0" if ks == 0 else vr(ACK, 16)))
            if ks < 15:
                rd(ks + 1, 0)
            self.fill(1)
            a.wait_lg("f%d_1" % ks)
            a("%s %s, %s, %s, %s" % (MF32, vr(ACS, 16), vr(AS + 4 * b, 4), ar(4 * ks, 4), "0" if ks == 0 else vr(ACS, 16)))
            if ks < 15:
                rd(ks + 1, 1)
            if ks in (0, 4, 9, 12):
                self.stamp("s2k%d" % ks)

    def unpack8(self, src, dst):
        a = self.a
        for j in range(8):
            a("v_lshlrev_b32 v%d, 16, v%d" % (dst + 2 * j, src + j))
            a("v_and_b32 v%d, s%d, v%d" % (dst + 2 * j + 1, sHI, src + j))

    def xn_tile(self, dst):
        a = self.a
        self.unpack8(vQ, dst)
        for p in range(8):
            a("v_pk_add_f32 %s, %s, %s op_sel_hi:[1,0] neg_lo:[0,1] neg_hi:[0,1]"
              % (vr(dst + 2 * p, 2), vr(dst + 2 * p, 2), vr(vMEAN, 2)))
        for p in range(8):
            a("v_pk_mul_f32 %s, %s, %s op_sel:[0,1] op_sel_hi:[1,1]"
              % (vr(dst + 2 * p, 2), vr(dst + 2 * p, 2), vr(vMEAN, 2)))

    def s2_epilogue(self, after_exchange):
        a = self.a
        ACK, ACS = self.ACK, self.ACS
        self.exchange_write(ACS)
        self.xn_tile(96)
        a.wait_lg_all()
        self.barrier()
        after_exchange()
        self.exchange_read(80)
        for p in range(8):
            a("v_pk_add_f32 %s, %s, %s" % (vr(ACK + 2 * p, 2), vr(ACK + 2 * p, 2), vr(96 + 2 * p, 2)))
        a.wait_lg_all()
        for p in range(8):
            a("v_pk_add_f32 %s, %s, %s" % (vr(ACK + 2 * p, 2), vr(ACK + 2 * p, 2), vr(80 + 2 * p, 2)))
        for p in range(8):
            a("v_cvt_pk_bf16_f32 v%d, v%d, v%d" % (vX1 + p, ACK + 2 * p, ACK + 2 * p + 1))
        self.frag_store(vX1, WS_X1, "x1st")
        a("v_pk_mul_f32 %s, %s, %s" % (vr(112, 2), vr(ACK, 2), vr(ACK, 2)))
        a("v_pk_add_f32 %s, %s, %s" % (vr(114, 2), vr(ACK, 2), vr(ACK + 2, 2)))
        for p in range(1, 8):
            a("v_pk_fma_f32 %s, %s, %s, %s" % (vr(112, 2), vr(ACK + 2 * p, 2), vr(ACK + 2 * p, 2), vr(112, 2)))
            if p >= 2:
                a("v_pk_add_f32 %s, %s, %s" % (vr(114, 2), vr(114, 2), vr(ACK + 2 * p, 2)))
        a("v_add_f32 v114, v114, v115")
        a("v_add_f32 v112, v112, v113")
        a("v_permlane32_swap_b32 v114, v112")
        a("v_add_f32 v114, v114, v112")
        a("s_lshl_b32 s%d, s%d, 1" % (sA, sC))
        a("s_add_u32 s%d, s%d, s%d" % (sA, sA, sKH))
        a("s_lshl_b32 s%d, s%d, 14" % (sA, sA))
        a("s_lshl_b32 s%d, s%d, 7" % (sB, sT))
        a("s_add_u32 s%d, s%d, s%d" % (sA, sA, sB))
        a("s_add_u32 s%d, s%d, 0x%x" % (sA, sA, WS_ST))
        a("v_lshlrev_b32 v26, 13, v%d" % vHH)
        a("v_lshl_add_u32 v26, v%d, 2, v26" % vN31)
        a.vmem("buffer_store_dword v114, v26, %s, s%d offen sc1" % (sr(S_WS, 4), sA), "x1st")

    def w3_setup(self):
        a = self.a
        a("s_movk_i32 s%d, 3584" % sB)
        a("v_lshrrev_b32 v26, 2, v%d" % vL)
        a("v_mul_lo_u32 v26, v26, s%d" % sB)
        a("v_and_b32 v27, 3, v%d" % vL)
        a("v_lshl_add_u32 v%d, v27, 4, v26" % vW3F)
        a("v_lshrrev_b32 v26, 1, v%d" % vL)
        a("v_mul_lo_u32 v26, v26, s%d" % sB)
        a("v_and_b32 v27, 1, v%d" % vL)
        a("v_lshl_add_u32 v%d, v27, 4, v26" % vW3H)
        a("s_mul_i32 s%d, s%d, %d" % (sW3HG, sW, 128 * 3584))
        a("s_mul_i32 s%d, s%d, 224" % (sA, sCP))
        a("s_add_u32 s%d, s%d, s%d" % (sW3HG, sW3HG, sA))
        a("s_and_b32 s%d, s%d, 1" % (sB, sCP))
        a("s_lshl_b32 s%d, s%d, 5" % (sW3G, sB))
        a("s_add_u32 s%d, s%d, s%d" % (sW3G, sW3G, sW3HG))
        a("s_xor_b32 s%d, s%d, 1" % (sB, sB))
        a("s_mul_i32 s%d, s%d, 192" % (sB, sB))
        a("s_add_u32 s%d, s%d, s%d" % (sW3HG, sW3HG, sB))
        a("s_lshl_b32 s%d, s%d, 13" % (sW3L, sW))
        a("s_lshl_b32 s%d, s%d, 12" % (sW3HL, sW))

    def w3_items(self, panels):
        out = []
        for p in panels:
            if p < 3:
                for i in range(8):
                    out.append(self.dma_item(S_W3, vW3F, sW3L, W3_P + p * 32768 + i * 1024, sW3G,
                                             p * 64 + i * 16 * 3584, "w3"))
            else:
                for i in range(4):
                    out.append(self.dma_item(S_W3, vW3H, sW3HL, W3_H + i * 1024, sW3HG, i * 32 * 3584, "w3"))
        return out

    def s3_load_items(self):
        a = self.a
        a("s_lshl_b32 s%d, s%d, 15" % (sLD, sT3))
        a("s_add_u32 s%d, s%d, 0x%x" % (sLD, sLD, WS_X1))
        items = []
        for ks in range(32):
            def f(ks=ks):
                if ks and ks % 4 == 0:
                    a("s_add_u32 s%d, s%d, 0x1000" % (sLD, sLD))
                a.vmem("buffer_load_dwordx4 %s, v%d, %s, s%d offen offset:%d sc1"
                       % (ar(4 * (ks % 16), 4), vL16, sr(S_WS, 4), sLD, (ks & 3) * 1024), "x%d" % ks)
            items.append(f)
        return items

    def s3_stat_items(self):
        a = self.a
        a("v_lshlrev_b32 v147, 13, v%d" % vHH)
        a("v_lshl_add_u32 v147, v%d, 2, v147" % vN31)
        items = []
        for sl in range(16):
            def f(sl=sl):
                a("s_lshl_b32 s%d, s%d, 7" % (sSO, sT3))
                a("s_add_u32 s%d, s%d, 0x%x" % (sSO, sSO, WS_ST + 0x4000 * sl))
                a.vmem("buffer_load_dword v%d, v147, %s, s%d offen sc1" % (vST + sl, sr(S_WS, 4), sSO), "st")
            items.append(f)
        return items

    def s3_addr(self):
        a = self.a
        a("v_add_u32 v144, %d, v%d" % (W3_P, vWP))
        a("v_add_u32 v145, %d, v%d" % (W3_P + 65536, vWP))
        a("v_bfe_u32 v26, v%d, 2, 2" % vL)
        a("v_lshl_add_u32 v26, v%d, 2, v26" % vHH)
        a("v_and_b32 v27, 3, v%d" % vL)
        a("v_lshlrev_b32 v27, 3, v27")
        a("v_lshl_add_u32 v26, v26, 5, v27")
        a("v_add_u32 v146, %d, v26" % W3_H)

    @staticmethod
    def w3_read(p, ks, hf, dst):
        if p < 2:
            return "ds_read_b64_tr_b16 %s, v144 offset:%d" % (vr(dst, 2), p * 32768 + ks * 1024 + hf * 512)
        if p == 2:
            return "ds_read_b64_tr_b16 %s, v145 offset:%d" % (vr(dst, 2), ks * 1024 + hf * 512)
        return "ds_read_b64_tr_b16 %s, v146 offset:%d" % (vr(dst, 2), ks * 512 + hf * 256)

    def s3_colsum(self):
        self.hold += 1
        self._s3_colsum()
        self.hold -= 1

    def _s3_colsum(self):
        a = self.a
        full = a.newlabel("csfull")
        done = a.newlabel("csdone")
        self.selector(120)
        a("s_cmp_lt_u32 s%d, 3" % sW)
        a("s_cbranch_scc1 %s" % full)
        for is_full in (False, True):
            if is_full:
                a.label(full)
                a("s_lshl_b32 s%d, s%d, 15" % (sA, sW))
                a("v_add_u32 v148, s%d, v144" % sA)
            stride, hstep, addr = (1024, 512, 148) if is_full else (512, 256, 146)
            saved = list(a.lg)
            a.lg = []

            def rd(ks):
                for hf in range(2):
                    a.lds("ds_read_b64_tr_b16 %s, v%d offset:%d" % (vr(96 + 4 * (ks % 6) + 2 * hf, 2), addr,
                                                                    ks * stride + hf * hstep), "c%d" % ks)
            for ks in range(5):
                rd(ks)
            for ks in range(32):
                a.wait_lg("c%d" % ks)
                a("%s %s, %s, %s, %s" % (MF16, vr(32 + 4 * (ks & 1), 4), vr(96 + 4 * (ks % 6), 4), vr(120, 4),
                                         "0" if ks < 2 else vr(32 + 4 * (ks & 1), 4)))
                if ks + 5 < 32:
                    rd(ks + 5)
            a.lg = saved
            if not is_full:
                a("s_branch %s" % done)
        a.label(done)
        a("v_pk_add_f32 v[32:33], v[32:33], v[36:37]")
        a("v_pk_add_f32 v[34:35], v[34:35], v[38:39]")
        a("s_lshl_b32 s%d, s%d, 7" % (sA, sW))
        a("s_add_u32 s%d, s%d, %d" % (sA, sA, LCS3))
        self.colsum_write(32, sA)
        a.wait_lg_all()

    S3G = 128

    def s3_shadow_ops(self):
        G = self.S3G
        ops = []
        for s in (8, 4, 2, 1):
            for i in range(s):
                ops.append("v_add_f32 v%d, v%d, v%d" % (vST + i, vST + i, vST + i + s))
        ops += ["v_mov_b32 v%d, v%d" % (vST + 1, vST),
                "v_lshlrev_b32 v28, 4, v%d" % vHH,
                "v_add_u32 v149, %d, v28" % LCS3,
                "v_permlane32_swap_b32 v%d, v%d" % (vST, vST + 1),
                "s_mul_i32 s%d, s%d, 114688" % (sD, sT3),
                "v_mul_f32 v%d, s%d, v%d" % (vST + 2, s512I, vST),
                "s_mul_i32 s%d, s%d, 7168" % (sA, sCP),
                "v_mul_f32 v26, s%d, v%d" % (s512I, vST + 1),
                "s_add_u32 s%d, s%d, s%d" % (sD, sD, sA),
                "v_fma_f32 v26, -v%d, v%d, v26" % (vST + 2, vST + 2),
                "s_add_u32 s%d, s%d, 0x%x" % (sD, sD, WS_HH),
                "v_max_f32 v26, 0, v26",
                "s_and_b32 s%d, s%d, 1" % (sB, sCP),
                "v_add_f32 v26, s%d, v26" % sEPS,
                "s_lshl_b32 s%d, s%d, 10" % (sE, sB),
                "v_rsq_f32 v27, v26",
                "s_add_u32 s%d, s%d, s%d" % (sE, sE, sD),
                "v_sub_f32 v%d, 0, v%d" % (G + 4, vST + 2),
                "s_xor_b32 s%d, s%d, 1" % (sB, sB),
                "v_mul_f32 v%d, s%d, v27" % (G, sKG1),
                "s_mul_i32 s%d, s%d, 6144" % (sB, sB),
                "v_mul_f32 v%d, v27, v27" % (G + 1),
                "s_add_u32 s%d, s%d, s%d" % (sF, sD, sB),
                "v_mul_f32 v%d, v%d, v27" % (G + 1, G + 1),
                "v_mul_f32 v%d, s%d, v%d" % (G + 1, sKG3, G + 1),
                "v_rcp_f32 v%d, v27" % (G + 2)]
        return ops

    def s3_csread(self, p):
        a = self.a
        n = 16 if p < 3 else 8
        for j in range(n // 4):
            a.lds("ds_read_b128 %s, v149 offset:%d" % (vr(96 + 16 * (p & 1) + 4 * j, 4), 128 * p + 32 * j), "cs%d" % p)

    def s3_main(self, mid):
        a = self.a
        AF = 96
        shadow = self.s3_shadow_ops() if self.opt.get("s3sh", 1) else []
        self.s3_left = shadow
        first = self.opt.get("s3sh0", 24)

        def rd(ks, p):
            for hf in range(2):
                a.lds(self.w3_read(p, ks, hf, AF + 16 * (ks & 1) + 4 * p + 2 * hf), "f%d_%d" % (ks, p))
        for p in range(4):
            rd(0, p)
        for ks in range(32):
            b = ks & 1
            if ks == first and shadow:
                a.wait_vm("st")
            for p in range(4):
                if p == 0:
                    a.wait_both("x%d" % ks, "f%d_0" % ks)
                else:
                    a.wait_lg("f%d_%d" % (ks, p))
                acc = vr(32 + 16 * p, 16)
                a("%s %s, %s, %s, %s" % (MF32, acc, vr(AF + 16 * b + 4 * p, 4), ar(4 * (ks % 16), 4),
                                         "0" if ks == 0 else acc))
                if ks < 31:
                    rd(ks + 1, p)
                if p in (0, 2):
                    self.fill(1)
                if ks >= first:
                    for _ in range(2):
                        if shadow:
                            a(shadow.pop(0))
            if ks == self.opt.get("s3mid", 18):
                mid()
            if ks in (7, 15, 23) and self.opt.get("s3st", 0):
                self.stamp("s3k%d" % ks)

    def s3_epilogue(self, after_tile):
        a = self.a
        G = self.S3G
        if not self.opt.get("s3sh", 1):
            a.wait_vm("st")
            self.s3_left = self.s3_shadow_ops()
        for x in self.s3_left:
            a(x)
        csread = self.s3_csread
        csread(0)
        for p in range(4):
            n = 16 if p < 3 else 8
            C = 96 + 16 * (p & 1)
            if p < 3:
                csread(p + 1)
            a.wait_lg("cs%d" % p)
            acc = 32 + 16 * p
            for i in range(n // 2):
                a("v_pk_fma_f32 %s, %s, %s, %s op_sel_hi:[1,0,1]"
                  % (vr(acc + 2 * i, 2), vr(C + 2 * i, 2), vr(G + 4, 2), vr(acc + 2 * i, 2)))
            out = 152 + 8 * (p & 1)
            self.gelu(acc, n, G, G + 2, 176, out, fills=0)
            if p < 3:
                a("s_add_u32 s%d, s%d, %d" % (sA, sE, 2048 * p))
                a.vmem("buffer_store_dwordx4 %s, v%d, %s, s%d offen sc1" % (vr(out, 4), vL16, sr(S_WS, 4), sA), "Hst")
                a.vmem("buffer_store_dwordx4 %s, v%d, %s, s%d offen offset:1024 sc1"
                       % (vr(out + 4, 4), vL16, sr(S_WS, 4), sA), "Hst")
            else:
                a.vmem("buffer_store_dwordx4 %s, v%d, %s, s%d offen sc1" % (vr(out, 4), vL16, sr(S_WS, 4), sF), "Hst")
            after_tile(p)

    def w4_setup(self):
        a = self.a
        a("s_lshl_b32 s%d, s%d, 11" % (sW4L, sKH))
        a("s_lshl_b32 s%d, s%d, 10" % (sA, sTH))
        a("s_add_u32 s%d, s%d, s%d" % (sW4L, sW4L, sA))
        a("s_mul_i32 s%d, s%d, %d" % (sW4G, sKH, 896 * 1024))
        self.feat0(sA, sTH, 1)
        a("s_add_u32 s%d, s%d, s%d" % (sW4G, sW4G, sA))
        for i in range(8):
            if self.opt.get("rot4", 0):
                a("s_add_u32 s%d, s%d, %d" % (sA, sC, i))
                a("s_and_b32 s%d, s%d, 7" % (sA, sA))
                a("s_mul_i32 s%d, s%d, %d" % (sA, sA, 7 * 16384))
                a("s_add_u32 s%d, s%d, s%d" % (self.SW4B + i, sW4G, sA))
            else:
                a("s_add_u32 s%d, s%d, %d" % (self.SW4B + i, sW4G, i * 7 * 16384))

    SW4B = 12
    W4R = 56

    def w4_reg_loads(self, ks0, ks1):
        def item(ks):
            def f():
                a = self.a
                a("s_add_u32 s%d, s%d, %d" % (sSO, self.SW4B + ks // 7, (ks % 7) * 16384))
                a.vmem("buffer_load_dwordx4 %s, v%d, %s, s%d offen" % (vr(self.W4R + 4 * (ks - W4_B), 4), vW64,
                                                                     sr(S_W4, 4), sSO), "w4r")
                a.check_vm_depth()
            return f
        return [item(ks) for ks in range(ks0, ks1)]

    def w4_reg_writes(self, ks0, ks1):
        def f():
            a = self.a
            a.wait_vm("w4r")
            for i in range(3):
                a("v_add_u32 v%d, s%d, v%d" % (28 + i, sW4L, vL16))
                if i:
                    a("v_add_u32 v%d, %d, v%d" % (28 + i, 65536 * i, 28 + i))
            for ks in range(ks0, ks1):
                off = w4_off(ks)
                if self.opt.get("x_nowr", 0):
                    continue
                a.lds("ds_write_b128 v%d, %s offset:%d" % (28 + off // 65536, vr(self.W4R + 4 * (ks - W4_B), 4),
                                                           off % 65536))
                pace = self.opt.get("wpace", 0)
                if pace and (ks - ks0) % pace == pace - 1:
                    a.wait_lg_all()
            a.wait_lg_all()
        return f

    def w4_items(self, ks0, ks1, tag):
        return [self.dma_item(S_W4, vW64, sW4L, w4_off(ks), self.SW4B + ks // 7, (ks % 7) * 16384, tag)
                for ks in range(ks0, ks1)]

    def hring(self, ks):
        n = self.opt.get("hring", 24)
        i = ks % n
        return ar(4 * i, 4) if i < 16 else vr(64 + 4 * (i - 16), 4)

    def s4_load_items(self):
        a = self.a
        a("s_mul_i32 s%d, s%d, %d" % (sLD, sT, 0 if self.opt.get("x_hot", 0) else 114688))
        a("s_mul_i32 s%d, s%d, %d" % (sB, sKH, 56 * 1024))
        a("s_add_u32 s%d, s%d, s%d" % (sLD, sLD, sB))
        a("s_add_u32 s%d, s%d, 0x%x" % (sLD, sLD, WS_HH))
        items = []
        for ks in range(56):
            def f(ks=ks):
                i, t = divmod(ks, 7)
                if t == 0:
                    if self.opt.get("rot4", 0):
                        a("s_add_u32 s%d, s%d, %d" % (sW4L, sC, i))
                        a("s_and_b32 s%d, s%d, 7" % (sW4L, sW4L))
                        a("s_mul_i32 s%d, s%d, 7168" % (sW4L, sW4L))
                        a("s_add_u32 s%d, s%d, s%d" % (sW4L, sW4L, sLD))
                    else:
                        a("s_add_u32 s%d, s%d, %d" % (sW4L, sLD, i * 7168))
                if t == 4:
                    a("s_add_u32 s%d, s%d, 0x1000" % (sW4L, sW4L))
                a.vmem("buffer_load_dwordx4 %s, v%d, %s, s%d offen offset:%d sc1"
                       % (self.hring(ks), vL16, sr(S_WS, 4), sW4L, (t & 3) * 1024), "H%d" % ks)
                a.check_vm_depth()
            items.append(f)
        return items

    Y_LDS = 49152

    def s4_y_loads(self):
        a = self.a
        self.feat0(sE, sKH, 12)
        a("s_lshl_b32 s%d, s%d, 6" % (sB, sT))
        a("s_add_u32 s%d, s%d, s%d" % (sE, sE, sB))
        a("s_add_u32 s%d, s%d, 0x%x" % (sE, sE, WS_YT))
        a("s_add_u32 s%d, s%d, 0x10000" % (sB, sE))
        a("v_lshrrev_b32 v147, 2, v%d" % vL)
        a("v_lshlrev_b32 v147, 12, v147")
        a("v_and_b32 v26, 3, v%d" % vL)
        a("v_lshl_add_u32 v147, v26, 4, v147")
        a.vmem("buffer_load_dwordx4 %s, v147, %s, s%d offen sc1" % (vr(vST, 4), sr(S_WS, 4), sE), "y")
        a.vmem("buffer_load_dwordx4 %s, v147, %s, s%d offen sc1" % (vr(vST + 4, 4), sr(S_WS, 4), sB), "y")

    def s4_y_write(self):
        a = self.a
        a.wait_vm("y")
        a("s_lshl_b32 s%d, s%d, 11" % (sB, sW))
        a("s_add_u32 s%d, s%d, %d" % (sB, sB, self.Y_LDS))
        a("v_add_u32 v147, s%d, v%d" % (sB, vL16))
        a.lds("ds_write_b128 v147, %s" % vr(vST, 4), "yw")
        a.lds("ds_write_b128 v147, %s offset:1024" % vr(vST + 4, 4), "yw")
        a("v_add_u32 v147, s%d, v%d" % (sB, vWP))

    def s4_y_read(self):
        a = self.a
        a.wait_lg("yw")
        for q in range(4):
            a.lds("ds_read_b64_tr_b16 %s, v147 offset:%d" % (vr(vST + 8 + 2 * q, 2), 512 * q), "yr")

    XN4, BASE4 = 112, 148

    def s4_shadow_ops(self):
        XN, B = self.XN4, self.BASE4
        pre, post = [], []
        for j in range(8):
            pre.append("v_lshlrev_b32 v%d, 16, v%d" % (XN + 2 * j, vQ + j))
            pre.append("v_and_b32 v%d, s%d, v%d" % (XN + 2 * j + 1, sHI, vQ + j))
            pre.append("v_lshlrev_b32 v%d, 16, v%d" % (B + 2 * j, vX1 + j))
            pre.append("v_and_b32 v%d, s%d, v%d" % (B + 2 * j + 1, sHI, vX1 + j))
        for r in range(16):
            pre.append("v_add_f32 v%d, v%d, v%d" % (B + r, B + r, XN + r))
            pre.append("v_sub_f32 v%d, v%d, v%d" % (XN + r, XN + r, vMEAN))
            pre.append("v_mul_f32 v%d, v%d, v%d" % (XN + r, XN + r, vR1))
        for j in range(8):
            post.append("v_lshlrev_b32 v164, 16, v%d" % (vST + 8 + j))
            post.append("v_and_b32 v165, s%d, v%d" % (sHI, vST + 8 + j))
            post.append("v_fmac_f32 v%d, v%d, v164" % (B + 2 * j, XN + 2 * j))
            post.append("v_fmac_f32 v%d, v%d, v165" % (B + 2 * j + 1, XN + 2 * j + 1))
        return pre, post

    def s4_out_addr(self):
        a = self.a
        a("s_lshl_b32 s%d, s%d, 15" % (sE, sT))
        self.feat0(sB, sKH, 1)
        a("s_add_u32 s%d, s%d, s%d" % (sE, sE, sB))
        a("v_lshlrev_b32 v146, 10, v%d" % vN31)
        a("v_lshl_add_u32 v146, v%d, 4, v146" % vHH)
        a("v_add_u32 v146, s%d, v146" % sE)

    def s4_addr(self):
        a = self.a
        self.wpi_addr(128, 131, 0, 2048, 1024)
        for i in (1, 2):
            a("v_add_u32 v%d, %d, v128" % (128 + i, 65536 * i))
            a("v_add_u32 v%d, %d, v131" % (131 + i, 65536 * i))

    def s4_main(self, hitems):
        a = self.a
        ACK, ACS, AK, AS = self.ACK, self.ACS, self.AK, self.AS

        def rd(ks, which):
            off = w4_off(ks)
            base, addr = ((AK, 128), (AS, 131))[which]
            for hf in range(2):
                a.lds("ds_read_b64_tr_b16 %s, v%d offset:%d"
                      % (vr(base + 4 * (ks & 1) + 2 * hf, 2), addr + off // 65536, off % 65536 + hf * 512),
                      "f%d_%d" % (ks, which))
        pre, post = self.s4_shadow_ops()
        yq = []
        f1, f2 = self.opt.get("f1", 10), self.opt.get("f2", 18)
        xb = self.opt.get("x_nobar", 0)
        if xb:
            self.h("s_endpgm")
        else:
            self.hact(self.w4_reg_writes(W4_B, W4_C))
        rd(0, 0)
        rd(0, 1)
        for ks in range(56):
            ahead = ks < 55
            b = ks & 1
            B = self.hring(ks)
            if self.opt.get("x_nowait", 0):
                a.wait_lg("f%d_0" % ks)
            else:
                a.wait_both("H%d" % ks, "f%d_0" % ks)
            a("%s %s, %s, %s, %s" % (MF32, vr(ACK, 16), vr(AK + 4 * b, 4), B, "0" if ks == 0 else vr(ACK, 16)))
            if ahead:
                rd(ks + 1, 0)
            if hitems and ks >= 1:
                hitems.pop(0)()
            a.wait_lg("f%d_1" % ks)
            a("%s %s, %s, %s, %s" % (MF32, vr(ACS, 16), vr(AS + 4 * b, 4), B, "0" if ks == 0 else vr(ACS, 16)))
            if ahead:
                rd(ks + 1, 1)
            for _ in range(self.opt.get("npre", 3)):
                if pre and ks >= 2:
                    a(pre.pop(0))
            if ks == self.opt.get("cvflag", 9):
                self.conv_wave_flag()
            if ks == 56 - W4_C - 1 and not xb:
                self.barrier()
                self.hact(self.w4_reg_writes(W4_C, 56))
            if ks == self.opt.get("ycheck", 34) - self.opt.get("ygap", 12) and not self.opt.get("x_noy", 0):
                self.idx_cv()
                self.poll_issue(F_CV, "pcv")
            if ks == self.opt.get("ycheck", 34) and not self.opt.get("x_noy", 0):
                self.poll_check("pcv", 4)
                self.s4_y_loads()
            if ks == self.opt.get("b2", 30) and not xb:
                self.barrier()
                if self.opt.get("barstamps", 0):
                    h = self.h
                    lab = h.newlabel("nobs")
                    h("s_cmp_lg_u32 s%d, 0" % sW)
                    h("s_cbranch_scc1 %s" % lab)
                    h("s_lshl_b32 s%d, s2, 8" % sA)
                    h("s_add_u32 s%d, s%d, 0x%x" % (sA, sA, WS_STAMP + 0x20000))
                    h("v_lshlrev_b32 v26, 2, v%d" % vL)
                    h("buffer_store_dword v55, v26, %s, s%d offen" % (sr(S_WS, 4), sA))
                    h("s_waitcnt vmcnt(0)")
                    h.label(lab)
                self.hact(self.nonce_update)
                self.hrun()
                self.h("s_endpgm")
            if not self.opt.get("x_noy", 0):
                if ks == self.opt.get("ywr", 46):
                    self.s4_y_write()
                if ks == self.opt.get("ywr", 46) + 2:
                    self.s4_y_read()
                if self.opt.get("yshadow", 5) and ks >= self.opt.get("ywr", 46) + 4 and post and not pre:
                    a.wait_lg("yr")
                    for _ in range(self.opt.get("yshadow", 5)):
                        if post:
                            a(post.pop(0))
            if ks in (8, 16, 27, 38, 47):
                self.stamp("s4k%d" % ks)
        for x in pre:
            a(x)
        assert not hitems
        self.s4_out_addr()
        self.s4_post = post

    def s4_epilogue(self):
        a = self.a
        ACK, ACS, B = self.ACK, self.ACS, self.BASE4
        self.exchange_write(ACS, S4_RED)
        a.wait_lg("yr")
        for x in self.s4_post:
            a(x)
        for p in range(8):
            a("v_pk_add_f32 %s, %s, %s" % (vr(ACK + 2 * p, 2), vr(ACK + 2 * p, 2), vr(B + 2 * p, 2)))
        a.wait_lg_all()
        a("s_barrier")
        self.exchange_read(80, S4_RED)
        a.wait_lg_all()
        for p in range(8):
            a("v_pk_add_f32 %s, %s, %s" % (vr(ACK + 2 * p, 2), vr(ACK + 2 * p, 2), vr(80 + 2 * p, 2)))
        for p in range(8):
            a("v_cvt_pk_bf16_f32 v%d, v%d, v%d" % (48 + p, ACK + 2 * p, ACK + 2 * p + 1))
        for j in (0, 4):
            a("v_permlane32_swap_b32 v%d, v%d" % (48 + j, 50 + j))
            a("v_permlane32_swap_b32 v%d, v%d" % (49 + j, 51 + j))
        a.vmem("buffer_store_dwordx4 %s, v146, %s, 0 offen" % (vr(48, 4), sr(S_OUT, 4)), "out")
        a.vmem("buffer_store_dwordx4 %s, v146, %s, 0 offen offset:32" % (vr(52, 4), sr(S_OUT, 4)), "out")

    def nonce_update(self):
        a = self.a
        self.hold += 1
        skip = a.newlabel("nonce")
        a("s_cmp_lg_u32 s2, 0")
        a("s_cbranch_scc1 %s" % skip)
        a("s_cmp_lg_u32 s%d, 0" % sW)
        a("s_cbranch_scc1 %s" % skip)
        saved = list(a.vm)
        for i in range(4):
            a("v_add_u32 v28, %d, v%d" % (64 * i, vL))
            a("v_lshlrev_b32 v28, 2, v28")
            self.poll_issue(F_P0, "pn")
            self.poll_check("pn", 6)
        a.vm = saved
        a("v_mov_b32 v26, 0")
        a("v_mov_b32 v27, s%d" % sN)
        a("s_mov_b64 exec, 1")
        a("buffer_store_dword v27, v26, %s, 0 offen sc1" % sr(S_WS, 4))
        a("s_mov_b64 exec, -1")
        a.label(skip)
        self.hold -= 1

    def finish(self):
        a = self.a
        a.wait_vm_all()
        if self.opt.get("delay", 0):
            lab = a.newlabel("delay")
            a("s_mov_b32 s%d, %d" % (sA, self.opt["delay"] // 64))
            a.label(lab)
            for _ in range(15):
                a("v_mov_b32 v26, v27")
            a("s_sub_u32 s%d, s%d, 1" % (sA, sA))
            a("s_cmp_lg_u32 s%d, 0" % sA)
            a("s_cbranch_scc1 %s" % lab)
        if self.opt.get("dbgtime", 0):
            a("s_memrealtime %s" % sr(sSTA, 2))
            a("s_memtime s[96:97]")
            a("s_waitcnt lgkmcnt(0)")
            a("s_sub_u32 s%d, s%d, s3" % (sSTA, sSTA))
            a("s_sub_u32 s96, s96, s98")
            a("v_mov_b32 v26, 0")
            a("v_mov_b32 v27, s%d" % sSTA)
            a("v_mov_b32 v28, s96")
            a("s_mov_b64 exec, 1")
            a("global_atomic_umax v26, v27, %s" % sr(S_DBG, 2))
            a("global_atomic_umax v26, v28, %s offset:4" % sr(S_DBG, 2))
            a("s_waitcnt vmcnt(0)")
            a("s_mov_b64 exec, -1")
        if self.stamps:
            self.stamp("end")
            skip = a.newlabel("nostamp")
            a("s_cmp_lg_u32 s%d, 0" % sW)
            a("s_cbranch_scc1 %s" % skip)
            if self.opt.get("dbgstamps", 0):
                lab = a.newlabel("nodbg")
                a("s_cmp_lg_u32 s2, %d" % (self.opt["dbgstamps"] - 1))
                a("s_cbranch_scc1 %s" % lab)
                a("v_readlane_b32 s%d, v%d, 0" % (sA, vSTAMP))
                a("v_subrev_u32 v27, s%d, v%d" % (sA, vSTAMP))
                a("v_lshlrev_b32 v26, 2, v%d" % vL)
                a("s_mov_b64 exec, 0xffff")
                a("global_store_dword v26, v27, %s" % sr(S_DBG, 2))
                a("s_mov_b64 exec, -1")
                a.label(lab)
            a("s_lshl_b32 s%d, s2, 8" % sA)
            a("s_add_u32 s%d, s%d, 0x%x" % (sA, sA, WS_STAMP))
            a("v_lshlrev_b32 v26, 2, v%d" % vL)
            a("buffer_store_dword v%d, v26, %s, s%d offen" % (vSTAMP, sr(S_WS, 4), sA))
            if self.opt.get("barstamps", 0):
                a("s_add_u32 s%d, s%d, 0x10000" % (sA, sA))
                a("buffer_store_dword v31, v26, %s, s%d offen" % (sr(S_WS, 4), sA))
            a("s_waitcnt vmcnt(0)")
            a.label(skip)
        a.label("L_end")
        a("s_endpgm")
        self.a.hook = None
        self.h.label("L_codeend")
        self.h("s_endpgm")
        self.a.ins += self.h.ins

    def nonce_load(self):
        a = self.a
        a("v_mov_b32 v26, 0")
        a.vmem("buffer_load_dword v30, v26, %s, 0 offen sc1" % sr(S_WS, 4), "nonce")

    def build(self):
        a = self.a
        o = self.opt
        H = self.hact
        self.prologue()
        H(self.loader_setup)
        if o.get("tcode", 1) == 1:
            H(self.touch_code)
        s1 = [f for st in range(4) for f in self.s1_stage_items(st)]
        n0, n1 = o.get("n0", 16), o.get("n1", 24)
        self.nonce_load()
        self.head_start()
        self.page_touch()
        self.cold_touches()
        self.tr_addresses()
        self.s1_setup()

        def stage(st):
            if st == 0:
                self.hacts(s1[:n0])
                self.hwait("s1_0")
            elif st == 1:
                self.hacts(s1[n0:n1])
                self.hwait("s1_1")
            else:
                self.hacts(s1[n1:])
                if o.get("apos", 0) == 0:
                    self.hstamp(4)
                    H(self.batch_a)
                    self.hstamp(5)
                self.hwait("s1_3")
            self.barrier()
            if st == 2:
                if o.get("apos", 0) == 1:
                    H(self.batch_a)
                H(self.nonce_load)
                H(self.tr_addresses)
                if o.get("hstat", 0):
                    H(self.s1_stats)
        self.a.comment("---- S1: p = q @ w1 on the raw q tile (row sums / squares and column sums of w1 alongside)")
        self.s1_main(stage)
        self.stamp("s1main")
        w2 = [self.dma_item(S_W2, vW64, sW2L, grp * 1024, sW2G, grp * 16384, "w2") for grp in range(16)]

        p0late = o.get("p0late", 1)
        w3 = self.w3_items([0, 1, 2, 3])
        cuts = [o.get("c%d" % i, d) for i, d in enumerate((0, 0, 0, 10, 10, 16))]

        def after_x1():
            H(self.w3_setup)
            self.hacts(w3[:cuts[0]])
            if not p0late:
                H(self.nonce_compute)
                H(self.kv_dma)
                H(self.p0_compute)
                H(lambda: self.a.wait_lg_all())
        self.a.comment("---- S1 epilogue: K-halves exchanged, LN(LN(q)) folded in as a * (p - mean * colsum), gelu, h fragments stored")
        self.s1_epilogue(after_x1)
        self.stamp("s1epi")
        self.a.comment("---- hand-off 1: h stores drain, flag, poll the producers of this wave's h fragments")
        self.nonce_compute()
        self.team_publish()
        self.wpi_addr(128, 129, LW, 16384, 32768)
        hitems = self.s2_load_items()
        a.wait_vm("hst")
        self.barrier()
        self.flag_store_rc(F_S1)
        self.stamp("s1flag")
        H(self.nonce_compute)
        H(self.kv_dma)
        self.hacts(w2[:o.get("w2a", 4)])
        self.hpaced(w2[o.get("w2a", 4):], o.get("iv2", 70), self.p0_compute)
        self.hacts(w3[cuts[0]:cuts[1]])
        H(lambda: self.a.wait_lg_all())
        self.idx_s1()
        self.barrier()
        H(self.p0_readback)
        H(self.p0_store)
        H(lambda: self.conv_filter_loads(0))
        self.hacts(w3[cuts[1]:cuts[2]])
        self.hwait("w2")
        self.poll_issue(F_S1, "ps1")
        self.poll_check("ps1", 2)
        self.stamp("s1poll")
        nh2 = o.get("nh2", 10)
        for f in hitems[:nh2]:
            f()
        self.barrier()
        self.stamp("hiss")
        H(self.p0_wave_flag)
        if o.get("bpos", 0) == 2:
            H(lambda: self.touch_chip("ssm"))
            H(lambda: self.touch_chip("w3"))
        self.hacts(w3[cuts[2]:cuts[3]])
        H(self.idx_p0)
        H(lambda: self.poll_issue(F_P0, "pp0"))
        self.fq = hitems[nh2:] + [self.team_load]
        self.a.comment("---- S2: shift(h) @ w2 (token shifts are in the load addresses)")
        self.s2_main()
        self.fill_all()
        self.stamp("s2main")

        def after_x2():
            H(lambda: self.poll_check("pp0", 1))
            H(lambda: self.conv_x_loads(0))
            self.hacts(w3[cuts[3]:cuts[4]])
            H(lambda: self.conv_prep_filter(0))
            H(lambda: self.conv_x_write(0))
        self.a.comment("---- S2 epilogue: x1 = xn + hs, fragments and partial row statistics stored")
        self.s2_epilogue(after_x2)
        self.stamp("s2epi")
        self.barrier()
        H(lambda: self.conv_poly(0))
        self.hacts(w3[cuts[4]:cuts[5]])
        self.conv_addr(0)
        self.team_check()
        a.wait_vm("x1st")
        self.barrier()
        self.flag_store_rc(F_S2)
        self.stamp("s2flag")
        H(self.head_start_w4)
        H(lambda: self.touch_chip("w4"))
        self.hacts(w3[cuts[5]:])

        def hook0(rho):
            if rho == o.get("pollrho2", 3):
                self.idx_s2()
                self.poll_issue(F_S2, "ps2")
        self.a.comment("---- long convolution, channel 2b: Toeplitz blocks on the matrix cores")
        self.conv_main(hook0)
        self.stamp("cv0main")
        xitems = self.s3_load_items()
        nx = o.get("nx", 12)
        xe = o.get("xearly", 0)
        if xe:
            self.poll_check("ps2", 3)
            for f in xitems[:nx]:
                f()
        self.conv_finish(0)
        self.hwait("w3")
        self.barrier()
        self.stamp("cv0fin")
        H(self.s3_addr)
        if o.get("csprio", 0):
            H(lambda: self.a("s_setprio %d" % o.get("csprio", 0)))
        H(self.s3_colsum)
        if o.get("csprio", 0):
            H(lambda: self.a("s_setprio 0"))
        H(self.w4_setup)
        self.s3_addr()
        if not xe:
            self.poll_check("ps2", 3)
            self.stamp("s2poll")
            for f in xitems[:nx]:
                f()
        sitems = self.s3_stat_items()
        rest = xitems[nx:]
        self.fq = []
        for i in range(len(rest)):
            self.fq.append(rest[i])
            self.fq.append(sitems[i] if i < 16 else (lambda: None))

        w4r = self.w4_reg_loads(W4_B, 56)

        def s3mid():
            self.barrier()
            H(lambda: self.conv_filter_loads(1))
            H(lambda: self.conv_x_loads(1))
            self.hacts(self.w4_items(0, W4_A, "w4"))
            self.hacts(w4r[:o.get("r1", 8)])
        self.a.comment("---- S3: x1 @ w3, 128 tokens x 112 features")
        self.s3_main(s3mid)
        self.fill_all()
        self.stamp("s3main")
        self.barrier()
        H(lambda: self.conv_prep_filter(1))
        H(lambda: self.conv_x_write(1))
        w4m = self.w4_items(W4_A, W4_B, "w4")
        k3 = o.get("k3", 4)

        early = o.get("tbar", 0) >= 2
        if early:
            self.hacts(w4r[o.get("r1", 8):o.get("r2", 20)])
            self.hacts(w4m[:k3])

        def after_tile(p):
            if p == o.get("tbar", 0):
                self.barrier()
                H(lambda: self.conv_poly(1))
                if not early:
                    self.hacts(w4r[o.get("r1", 8):o.get("r2", 20)])
                    self.hacts(w4m[:k3])
        self.a.comment("---- S3 epilogue: LN(x1) folded in, gelu, H fragments stored")
        self.s3_epilogue(after_tile)
        self.stamp("s3epi")
        self.conv_addr(1)

        def s3flag():
            a.wait_vm("Hst")
            self.barrier()
            a("s_lshl_b32 s%d, s%d, 4" % (sB, sRP))
            a("s_add_u32 s%d, s%d, s%d" % (sB, sB, sCP))
            self.flag_store(F_S3, sB)
            self.stamp("s3flag")
            self.hacts(w4m[k3:])
            self.hacts(w4r[o.get("r2", 20):])
        early = o.get("cv1early", 0)
        if early:
            self.barrier()
        else:
            s3flag()

        def hook1(rho):
            if early and rho == early:
                s3flag()
            if rho == o.get("pollrho", 3) and not early:
                self.idx_s3()
                self.poll_issue(F_S3, "ps3")
        self.a.comment("---- long convolution, channel 2b + 1")
        self.conv_main(hook1)
        self.stamp("cv1main")
        hitems = self.s4_load_items()
        if early:
            self.conv_finish(1)
            self.idx_s3()
            self.poll_issue(F_S3, "ps3")
            self.s4_addr()
            self.poll_check("ps3", 5)
            self.stamp("s3poll")
            for _ in range(o.get("nh", 14) + o.get("nhb", 6)):
                hitems.pop(0)()
        else:
            self.poll_check("ps3", 5)
            self.stamp("s3poll")
            for _ in range(o.get("nh", 14)):
                hitems.pop(0)()
            self.conv_finish(1)
            for _ in range(o.get("nhb", 6)):
                hitems.pop(0)()
            self.s4_addr()
        self.hwait("w4")
        self.barrier()
        self.stamp("cv1fin")
        self.a.comment("---- S4: H @ w4")
        self.s4_main(hitems)
        self.stamp("s4main")
        self.a.comment("---- S4 epilogue: out = q + x1 + H @ w4 + xn * y'")
        self.s4_epilogue()
        self.stamp("s4epi")
        self.finish()


REF = "cdna_kernels/%s.s.ref" % NAME


def emit(stop=None, stamps=False, opt=None, keep=None):
    g = Gen(stop, stamps, opt)
    g.keep = keep
    g.build()
    nops = g.a.fix_hazards()
    top = [l for l in open(REF).read().split("\n") if l.startswith(";") and "@launch" not in l and "Override" not in l
           and "grid=ceil" not in l]
    top += [
        "; Persistent kernel, one workgroup per CU: waves 0-3 run the GEMM chain S1 -> S2 -> S3 -> S4 and the two long",
        "; convolutions of the workgroup's channels, waves 4-7 stream weights and prepare operands. Workgroups hand tiles",
        "; to each other through d_ws: write-through stores, s_waitcnt, barrier, then a flag word equal to a per-launch",
        "; nonce derived from d_ws word 0 (rewritten once per launch by workgroup 0 after every workgroup has read it).",
        "; Generated by a script from hand-written building blocks."]
    out = top + ["; @launch grid=(256,1,1) block=(512,1,1) lds=%d" % LDS_BYTES,
                 '.amdgcn_target "amdgcn-amd-amdhsa--gfx950"', ".text", ".globl %s_kernel" % NAME, ".p2align 8",
                 ".type %s_kernel,@function" % NAME, "%s_kernel:" % NAME]
    body = g.a.text()
    tail = ['.section .rodata,"a"', ".p2align 6", ".amdhsa_kernel %s_kernel" % NAME,
            "  .amdhsa_next_free_vgpr 256", "  .amdhsa_next_free_sgpr 102", "  .amdhsa_accum_offset 192",
            "  .amdhsa_group_segment_fixed_size 0", "  .amdhsa_kernarg_size 112", "  .amdhsa_user_sgpr_count 2",
            "  .amdhsa_user_sgpr_kernarg_segment_ptr 1", "  .amdhsa_system_sgpr_workgroup_id_x 1",
            "  .amdhsa_float_denorm_mode_32 3", ".end_amdhsa_kernel"]
    text = "\n".join(out) + "\n" + body + "\n".join(tail) + "\n"
    return text, g, nops


if __name__ == "__main__":
    ap = argparse.ArgumentParser()
    ap.add_argument("-o", default="cdna_kernels/%s.s" % NAME)
    ap.add_argument("--stop", default=None)
    ap.add_argument("--stamps", action="store_true")
    ap.add_argument("--opt", default="")
    ap.add_argument("--keep", default="")
    args = ap.parse_args()
    opt = dict((kv.split("=")[0], int(kv.split("=")[1])) for kv in args.opt.split(",") if kv)
    text, g, nops = emit(args.stop, args.stamps, opt, args.keep.split(",") if args.keep else None)
    open(args.o, "w").write(text)
    n = sum(1 for x in g.a.ins if x.kind != "label")
    print("instructions: %d, hazard nops: %d" % (n, nops))
    if g.stamp_names:
        print(",".join(g.stamp_names))
        open(args.o + ".stamps", "w").write(",".join(g.stamp_names))
```

```python
import argparse
import os
import struct
import sys

sys.path.insert(0, os.path.dirname(os.path.abspath(__file__)))
from asmlib import Asm

NAME = "parallel_sum__ssm_conv_h3__mixer_s_mlp__prompt"

WS_FLAGS = 4096
WS_STAMP = 0xD0000
WS_FLAGS_L = 0x90000
WS_TEAM = 0xC0000
WS_KVT = 0x100000
WS_YT = 0x300000
WS_HS = 0x500000
WS_X1 = 0x700000
WS_ST = 0x900000
WS_HH = 0xA00000
WS_SIZE = 0x10000000
OOB = 0x40000000
F_S1, F_S2, F_S3, F_P0, F_CV = 0, 1, 2, 4, 8

LQ = 0
LW = 65536
LSTG = 131072
LRED = 139264
LSTX = 155648
LCSX = 156672
LCS3 = 161280
LKV = LRED
LDS_BYTES = 163840
CV_X = 0
CV_XD = 1152
CV_A = 5248
CV_P = 21760
CV_R = 5248
CV_BASE = 114688
W3_P = 0
W3_H = 98304
CV_BASE1 = 69632
W4_A, W4_B, W4_C = 11, 28, 39
S4_RED = 24576


def w4_off(ks):
    if ks < W4_A:
        return 114688 + ks * 4096
    if ks < W4_B:
        return (ks - W4_A) * 4096
    if ks < W4_C:
        return CV_BASE1 + (ks - W4_B) * 4096
    return w4_off(ks - W4_C)

S_WS, S_Q, S_K, S_V, S_SHK, S_SSM, S_W1, S_W2, S_W3, S_W4, S_OUT = 4, 8, 12, 16, 20, 24, 32, 36, 40, 44, 48
S_DPTR = 28
S_DBG = 30
sR, sC, sW, sTH, sKH, sN, sRP, sCP = 52, 53, 54, 55, 56, 57, 58, 59
sT, sT3 = 60, 61
sD0, sD1 = 62, 63
sA, sB, sCc, sD, sE, sF = 64, 65, 66, 67, 68, 69
sW2L, sW2G, sW3L, sW3G, sW3HL, sW3HG, sW4L, sW4G, sSO, sLD = 70, 71, 72, 73, 74, 75, 76, 77, 78, 79
sONES, sHI = 80, 81
sK4, sK8, sK12 = 82, 83, 84
sEPS, sTMO, sKG1, sKG3, s512I = 85, 86, 87, 88, 89
sSTA = 90
sROT, sQG, sWG, sCP0 = 92, 93, 94, 95
sXCC, sLOC = 20, 21

vL, vL16, vWP, vWN = 0, 1, 2, 3
vQ, vX1 = 4, 12
vMEAN, vR1 = 20, 21
vTID, vHH, vN31, vSTAMP = 22, 23, 24, 25
vW64 = 31
vCH = 172
vPF, vPA = 170, 171
vW3F, vW3H, vQE = 153, 154, 155
vST = 172

GELU_K1 = 2.0 * 0.7978845608028654 * 1.4426950408889634
GELU_K3 = GELU_K1 * 0.044715
MF32 = "v_mfma_f32_32x32x16_bf16"
MF16 = "v_mfma_f32_16x16x32_bf16"


def f32bits(x):
    return struct.unpack("<I", struct.pack("<f", x))[0]


def vr(a, n):
    return "v[%d:%d]" % (a, a + n - 1)


def ar(a, n):
    return "a[%d:%d]" % (a, a + n - 1)


def sr(a, n):
    return "s[%d:%d]" % (a, a + n - 1)


class Gen:
    def __init__(self, stop=None, stamps=False, opt=None):
        self.opt = opt or {}
        self.keep = None
        self.a = Asm()
        self.h = Asm()
        self.h.uid = 100000
        self.hpend = []
        self.nbar = 0
        self.stop = stop
        self.stamps = stamps
        self.nstamp = 0
        self.stamp_names = []
        self.fq = []
        self.pq = []
        self.interval = 0
        self.clock = 0.0
        self.hold = 0
        self.a.hook = self._pace
        self.h.hook = self._pace

    def _pace(self, x):
        if x.kind == "mfma":
            self.clock += 32 if x.passes == 8 else 16
        elif x.kind == "valu":
            self.clock += 8 if x.is_trans() else 4.5
        elif x.kind == "ds":
            self.clock += 13 if x.op == "ds_write_b128" else 2
        elif x.kind == "vmem":
            self.clock += 20
        else:
            return
        if self.hold or not self.pq or not self.interval or x.kind == "vmem":
            return
        if self.clock >= self.interval:
            self.clock = 0.0
            self.hold += 1
            self.pq.pop(0)()
            self.hold -= 1

    def paced(self, items, interval):
        self.pq += items
        self.interval = interval
        self.clock = 0.0

    def pace_flush(self, tag=None):
        self.hold += 1
        if tag is None:
            n = len(self.pq)
        else:
            n = max([i + 1 for i, f in enumerate(self.pq) if f.tag == tag], default=0)
        for _ in range(n):
            self.pq.pop(0)()
        self.hold -= 1

    def stamp(self, name):
        if not self.stamps:
            return
        if self.keep and name not in self.keep and name not in ("start", "end"):
            return
        self.hold += 1
        self._stamp(name)
        self.hold -= 1

    def _stamp(self, name):
        a = self.a
        a("s_memtime %s" % sr(sSTA, 2))
        a("s_waitcnt lgkmcnt(0)")
        a.lg = []
        a("v_writelane_b32 v%d, s%d, %d" % (vSTAMP, sSTA, self.nstamp))
        if name in ("start", "end"):
            a("s_memrealtime %s" % sr(sSTA, 2))
            a("s_waitcnt lgkmcnt(0)")
            a("v_writelane_b32 v%d, s%d, %d" % (vSTAMP, sSTA, 62 if name == "start" else 63))
            if name == "start":
                a("v_writelane_b32 v%d, s3, 61" % vSTAMP)
        self.stamp_names.append(name)
        self.nstamp += 1

    def hact(self, fn):
        self.hpend.append(fn)

    def hacts(self, fns):
        self.hpend += fns

    def hstamp(self, idx):
        if not self.opt.get("barstamps", 0):
            return

        def f():
            a = self.a
            a("s_memtime %s" % sr(sSTA, 2))
            a("s_waitcnt lgkmcnt(0)")
            a.lg = []
            a("v_writelane_b32 v55, s%d, %d" % (sSTA, 32 + idx))
        self.hpend.append(f)

    def hpaced(self, items, interval, fn):
        def f():
            saved = (self.pq, self.interval, self.clock, self.hold)
            self.pq, self.interval, self.clock, self.hold = list(items), interval, 0.0, 0
            fn()
            self.hold = 1
            self.pace_flush()
            self.pq, self.interval, self.clock, self.hold = saved
        self.hpend.append(f)

    def hwait(self, tag):
        self.hpend.append(lambda: self.a.wait_vm(tag))

    def hrun(self):
        c, fq = self.a, self.fq
        self.a, self.fq = self.h, []
        self.hold += 1
        for fn in self.hpend:
            fn()
        self.hold -= 1
        self.hpend = []
        self.a, self.fq = c, fq

    def barrier(self, name=""):
        bs = self.opt.get("barstamps", 0)
        if bs:
            self.hold += 1
            self.a("s_memtime %s" % sr(sSTA, 2))
            self.a("s_waitcnt lgkmcnt(0)")
            self.a.lg = []
            self.a("v_writelane_b32 v31, s%d, %d" % (sSTA, self.nbar))
            self.hold -= 1
        self.a("s_barrier")
        self.hrun()
        if bs:
            self.h("s_memtime %s" % sr(sSTA, 2))
            self.h("s_waitcnt lgkmcnt(0)")
            self.h.lg = []
            self.h("v_writelane_b32 v55, s%d, %d" % (sSTA, self.nbar))
        self.h("s_barrier")
        self.nbar += 1

    def fill(self, n=1):
        for _ in range(n):
            if self.fq:
                self.fq.pop(0)()

    def fill_all(self):
        while self.fq:
            self.fq.pop(0)()

    def dma_item(self, srd, voff, sl, loff, sg, goff, tag):
        def f():
            a = self.a
            a("s_add_u32 m0, s%d, %d" % (sl, loff))
            a("s_add_u32 s%d, s%d, %d" % (sSO, sg, goff))
            a.vmem("buffer_load_dwordx4 v%d, %s, s%d offen lds" % (voff, sr(srd, 4), sSO), tag)
            a.check_vm_depth()
        f.tag = tag
        return f

    def flag_store(self, phase, sidx):
        local = self.opt.get("local", 0) and phase in (F_S2, F_S3)
        a = self.a
        self.hold += 1
        skip = a.newlabel("noflag")
        a("s_cmp_lg_u32 s%d, 0" % sW)
        a("s_cbranch_scc1 %s" % skip)
        a("s_lshl_b32 s%d, s%d, 7" % (sA, sidx))
        a("s_add_u32 s%d, s%d, %d" % (sA, sA, WS_FLAGS + phase * 256 * 128))
        a("v_mov_b32 v26, s%d" % sN)
        a("v_mov_b32 v27, s%d" % sA)
        a("s_mov_b64 exec, 1")
        if local:
            a("s_mov_b32 s%d, 0x%x" % (sSO, WS_FLAGS_L - WS_FLAGS))
            a("buffer_store_dword v26, v27, %s, s%d offen" % (sr(S_WS, 4), sSO))
        a("buffer_store_dword v26, v27, %s, 0 offen sc1" % sr(S_WS, 4))
        a("s_mov_b64 exec, -1")
        a.label(skip)
        self.hold -= 1

    def team_publish(self):
        a = self.a
        if not self.opt.get("local", 0):
            return
        skip = a.newlabel("noteam")
        a("s_getreg_b32 s%d, hwreg(HW_REG_XCC_ID)" % sXCC)
        a("s_and_b32 s%d, s%d, 15" % (sXCC, sXCC))
        a("s_cmp_lg_u32 s%d, 0" % sW)
        a("s_cbranch_scc1 %s" % skip)
        a("s_lshl_b32 s%d, s2, 7" % sA)
        a("s_add_u32 s%d, s%d, 0x%x" % (sA, sA, WS_TEAM))
        a("v_mov_b32 v26, s%d" % sN)
        a("v_mov_b32 v27, s%d" % sXCC)
        a("v_mov_b32 v28, s%d" % sA)
        a("s_mov_b64 exec, 1")
        a("buffer_store_dwordx2 v[26:27], v28, %s, 0 offen sc1" % sr(S_WS, 4))
        a("s_mov_b64 exec, -1")
        a.label(skip)

    def team_load(self):
        a = self.a
        if not self.opt.get("local", 0):
            return
        a("s_and_b32 s%d, s2, 7" % sA)
        a("v_lshlrev_b32 v26, 3, v%d" % vN31)
        a("v_add_u32 v26, s%d, v26" % sA)
        a("v_lshlrev_b32 v26, 7, v26")
        a("v_add_u32 v26, 0x%x, v26" % WS_TEAM)
        a.vmem("buffer_load_dwordx2 v[168:169], v26, %s, 0 offen sc1" % sr(S_WS, 4), "team")

    def team_check(self):
        a = self.a
        if not self.opt.get("local", 0):
            return
        a.wait_vm("team")
        a("v_cmp_ne_u32 vcc, s%d, v168" % sN)
        a("v_cmp_ne_u32 %s, s%d, v169" % (sr(sSTA, 2), sXCC))
        a("s_or_b64 vcc, vcc, %s" % sr(sSTA, 2))
        a("s_cmp_eq_u64 vcc, 0")
        a("s_cselect_b32 s%d, 0x%x, 0" % (sLOC, WS_FLAGS_L - WS_FLAGS))

    def flag_store_rc(self, phase):
        a = self.a
        a("s_lshl_b32 s%d, s%d, 3" % (sB, sR))
        a("s_add_u32 s%d, s%d, s%d" % (sB, sB, sC))
        self.flag_store(phase, sB)

    def poll_issue(self, phase, tag):
        a = self.a
        a("v_lshlrev_b32 v%d, 7, v28" % vPA)
        a("v_add_u32 v%d, %d, v%d" % (vPA, WS_FLAGS + phase * 256 * 128, vPA))
        if self.opt.get("local", 0) and phase in (F_S2, F_S3):
            a("v_add_u32 v%d, s%d, v%d" % (vPA, sLOC, vPA))
        a.vmem("buffer_load_dword v%d, v%d, %s, 0 offen sc1" % (vPF, vPA, sr(S_WS, 4)), tag)

    def poll_check(self, tag, code):
        a = self.a
        self.hold += 1
        loop = a.newlabel("poll")
        done = a.newlabel("polled")
        a.wait_vm(tag)
        a("v_cmp_ne_u32 vcc, s%d, v%d" % (sN, vPF))
        a("s_cmp_eq_u64 vcc, 0")
        a("s_cbranch_scc1 %s" % done)
        a("s_mov_b32 s%d, 0x40000" % sTMO)
        a.label(loop)
        a("buffer_load_dword v%d, v%d, %s, 0 offen sc1" % (vPF, vPA, sr(S_WS, 4)))
        a("s_waitcnt vmcnt(0)")
        a("v_cmp_ne_u32 vcc, s%d, v%d" % (sN, vPF))
        a("s_cmp_eq_u64 vcc, 0")
        a("s_cbranch_scc1 %s" % done)
        a("s_sub_u32 s%d, s%d, 1" % (sTMO, sTMO))
        a("s_cmp_lg_u32 s%d, 0" % sTMO)
        a("s_cbranch_scc1 %s" % loop)
        a("v_mov_b32 v26, 0")
        a("v_mov_b32 v27, %d" % (0x100 + code))
        a("s_mov_b64 exec, 1")
        a("global_store_dword v26, v27, %s" % sr(S_DBG, 2))
        a("s_mov_b64 exec, -1")
        a.label(done)
        self.hold -= 1

    def idx_s1(self):
        a = self.a
        a("s_lshl_b32 s%d, s%d, 1" % (sA, sTH))
        a("s_sub_u32 s%d, s%d, 1" % (sA, sA))
        a("s_add_u32 s%d, s%d, s%d" % (sA, sA, sR))
        a("s_cmp_lt_u32 s%d, 32" % sA)
        a("s_cselect_b32 s%d, s%d, s%d" % (sA, sA, sR))
        a("v_mov_b32 v28, s%d" % sR)
        a("v_mov_b32 v29, s%d" % sA)
        a("v_and_b32 v27, 4, v%d" % vL)
        a("v_cmp_eq_u32 vcc, 0, v27")
        a("v_cndmask_b32 v28, v29, v28, vcc")
        a("v_lshlrev_b32 v28, 3, v28")
        a("v_and_b32 v29, 3, v%d" % vL)
        a("v_add_u32 v28, v28, v29")
        a("s_lshl_b32 s%d, s%d, 2" % (sA, sKH))
        a("v_add_u32 v28, s%d, v28" % sA)

    def idx_p0(self):
        a = self.a
        a("s_lshr_b32 s%d, s2, 5" % sA)
        a("s_lshl_b32 s%d, s%d, 6" % (sB, sW))
        a("s_add_u32 s%d, s%d, s%d" % (sA, sA, sB))
        a("v_and_b32 v28, 7, v%d" % vL)
        a("v_lshlrev_b32 v28, 3, v28")
        a("v_add_u32 v28, s%d, v28" % sA)
        a("s_bfe_u32 s%d, s2, 0x20003" % sA)
        a("v_lshl_add_u32 v28, v28, 2, s%d" % sA)

    def p0_wave_flag(self):
        a = self.a
        a.wait_vm("kvt")
        a("s_lshl_b32 s%d, s%d, 3" % (sA, sR))
        a("s_add_u32 s%d, s%d, s%d" % (sA, sA, sC))
        a("s_lshl_b32 s%d, s%d, 2" % (sA, sA))
        a("s_add_u32 s%d, s%d, s%d" % (sA, sA, sW))
        a("s_lshl_b32 s%d, s%d, 7" % (sA, sA))
        a("s_add_u32 s%d, s%d, %d" % (sA, sA, WS_FLAGS + F_P0 * 256 * 128))
        a("v_mov_b32 v26, s%d" % sN)
        a("v_mov_b32 v27, s%d" % sA)
        a("s_mov_b64 exec, 1")
        a("buffer_store_dword v26, v27, %s, 0 offen sc1" % sr(S_WS, 4))
        a("s_mov_b64 exec, -1")

    def idx_s2(self):
        a = self.a
        a("s_lshr_b32 s%d, s%d, 1" % (sA, sT3))
        a("s_lshl_b32 s%d, s%d, 3" % (sA, sA))
        a("v_and_b32 v28, 7, v%d" % vL)
        a("v_add_u32 v28, s%d, v28" % sA)

    def idx_s3(self):
        a = self.a
        a("s_lshr_b32 s%d, s%d, 1" % (sA, sR))
        a("s_lshl_b32 s%d, s%d, 4" % (sA, sA))
        a("s_lshl_b32 s%d, s%d, 3" % (sB, sKH))
        a("s_add_u32 s%d, s%d, s%d" % (sA, sA, sB))
        a("v_and_b32 v28, 7, v%d" % vL)
        a("v_add_u32 v28, s%d, v28" % sA)

    def idx_cv(self):
        a = self.a
        self.feat0(sA, sKH, 0)
        a("s_lshr_b32 s%d, s%d, 1" % (sA, sA))
        a("v_and_b32 v28, 15, v%d" % vL)
        a("v_add_u32 v28, s%d, v28" % sA)
        a("s_lshr_b32 s%d, s%d, 5" % (sA, sT))
        a("s_lshl_b32 s%d, s%d, 1" % (sA, sA))
        a("s_bfe_u32 s%d, s%d, 0x10003" % (sB, sT))
        a("s_add_u32 s%d, s%d, s%d" % (sA, sA, sB))
        a("v_lshl_add_u32 v28, v28, 2, s%d" % sA)

    def conv_wave_flag(self):
        a = self.a
        a.wait_vm("yt")
        a("s_lshl_b32 s%d, s2, 2" % sA)
        a("s_add_u32 s%d, s%d, s%d" % (sA, sA, sW))
        a("s_lshl_b32 s%d, s%d, 7" % (sA, sA))
        a("s_add_u32 s%d, s%d, %d" % (sA, sA, WS_FLAGS + F_CV * 256 * 128))
        a("v_mov_b32 v26, s%d" % sN)
        a("v_mov_b32 v27, s%d" % sA)
        a("s_mov_b64 exec, 1")
        a.vmem("buffer_store_dword v26, v27, %s, 0 offen sc1" % sr(S_WS, 4), "cvf")
        a("s_mov_b64 exec, -1")

    def prologue(self):
        a = self.a
        if self.stamps or self.opt.get("dbgtime", 0):
            a("s_memrealtime s[100:101]")
            a("s_waitcnt lgkmcnt(0)")
            a("s_mov_b32 s3, s100")
        a("s_cmp_ge_u32 s2, 256")
        a("s_cbranch_scc1 L_end")
        a("s_load_dwordx16 s[64:79], s[0:1], 0")
        a("s_load_dwordx8 s[92:99], s[0:1], 64")
        a("s_load_dwordx2 %s, s[0:1], 96" % sr(S_DBG, 2))
        a("s_load_dwordx2 %s, s[0:1], 104" % sr(S_WS, 2))
        sizes = {S_WS: WS_SIZE, S_Q: 1 << 21, S_K: 1 << 21, S_V: 1 << 21, S_SHK: 4096, S_SSM: 1 << 21,
                 S_W1: 1 << 19, S_W2: 1 << 19, S_W3: 512 * 1792 * 2, S_W4: 512 * 1792 * 2, S_OUT: 1 << 21}
        for s, n in sizes.items():
            a("s_mov_b32 s%d, 0x%x" % (s + 2, n))
            a("s_mov_b32 s%d, 0x20000" % (s + 3))
        a("s_and_b32 s100, s2, 7")
        a("s_lshr_b32 s101, s2, 3")
        a("s_lshr_b32 s%d, s101, 3" % sR)
        a("s_lshl_b32 s%d, s100, 2" % sC)
        a("s_add_u32 s%d, s%d, s%d" % (sR, sR, sC))
        a("s_and_b32 s%d, s101, 7" % sC)
        a("s_lshr_b32 s%d, s101, 4" % sRP)
        a("s_lshl_b32 s100, s100, 1")
        a("s_add_u32 s%d, s%d, s100" % (sRP, sRP))
        a("s_and_b32 s%d, s101, 15" % sCP)
        a("v_and_b32 v%d, 0xff, v0" % vTID)
        a("v_lshrrev_b32 v26, 6, v0")
        a("v_and_b32 v%d, 63, v0" % vL)
        a("v_readfirstlane_b32 s%d, v26" % sTMO)
        a("v_lshlrev_b32 v%d, 4, v%d" % (vL16, vL))
        a("v_lshrrev_b32 v%d, 5, v%d" % (vHH, vL))
        a("v_and_b32 v%d, 31, v%d" % (vN31, vL))
        a("s_and_b32 s%d, s%d, 3" % (sW, sTMO))
        a("s_lshr_b32 s%d, s%d, 1" % (sTH, sW))
        a("s_and_b32 s%d, s%d, 1" % (sKH, sW))
        a("s_lshl_b32 s%d, s%d, 1" % (sT, sR))
        a("s_add_u32 s%d, s%d, s%d" % (sT, sT, sTH))
        a("s_lshl_b32 s%d, s%d, 2" % (sT3, sRP))
        a("s_add_u32 s%d, s%d, s%d" % (sT3, sT3, sW))
        a("s_mov_b32 s%d, 0x3f803f80" % sONES)
        a("s_mov_b32 s%d, 0xffff0000" % sHI)
        a("s_movk_i32 s%d, 0x1000" % sK4)
        a("s_movk_i32 s%d, 0x2000" % sK8)
        a("s_movk_i32 s%d, 0x3000" % sK12)
        a("s_mov_b32 s%d, 0x%x" % (sEPS, f32bits(1e-5)))
        a("s_mov_b32 s%d, 0x%x" % (sKG1, f32bits(-GELU_K1)))
        a("s_mov_b32 s%d, 0x%x" % (sKG3, f32bits(-GELU_K3)))
        a("s_mov_b32 s%d, 0x%x" % (s512I, f32bits(1.0 / 512)))
        a("s_waitcnt lgkmcnt(0)")
        for sreg, src in ((S_Q, 64), (S_W1, 78), (S_K, 66), (S_V, 68), (S_SHK, 70), (S_SSM, 72), (S_DPTR, 74)):
            a("s_mov_b64 %s, %s" % (sr(sreg, 2), sr(src, 2)))
        for i, sreg in enumerate([S_W2, S_W3, S_W4, S_OUT]):
            a("s_mov_b64 %s, %s" % (sr(sreg, 2), sr(92 + 2 * i, 2)))
        a("s_add_u32 s%d, s%d, s%d" % (sROT, sR, sC))
        a("s_and_b32 s%d, s%d, 3" % (sROT, sROT))
        a("s_cmp_ge_u32 s%d, 4" % sTMO)
        a("s_cbranch_scc1 L_loader")
        if self.opt.get("prio", 1):
            a("s_setprio 1")
        if self.stamps:
            a("v_mov_b32 v%d, 0" % vSTAMP)
        self.stamp("start")
        if self.opt.get("dbgtime", 0):
            a("s_memtime s[98:99]")
            a("s_waitcnt lgkmcnt(0)")
        self.ssm_d_load()

    def tr_addresses(self):
        a = self.a
        a("v_bfe_u32 v26, v%d, 2, 2" % vL)
        a("v_and_b32 v27, 3, v%d" % vL)
        a("v_bfe_u32 v28, v%d, 4, 1" % vL)
        a("v_lshlrev_b32 v27, 3, v27")
        a("v_lshl_add_u32 v27, v28, 5, v27")
        a("v_lshl_add_u32 v28, v%d, 2, v26" % vHH)
        a("v_lshl_add_u32 v%d, v28, 6, v27" % vWP)
        a("v_lshl_add_u32 v28, v%d, 3, v26" % vHH)
        a("v_lshl_add_u32 v%d, v28, 6, v27" % vWN)

    def loader_setup(self):
        a = self.a
        a.label("L_loader")
        a("v_lshrrev_b32 v26, 2, v%d" % vL)
        a("v_and_b32 v27, 3, v%d" % vL)
        a("v_lshlrev_b32 v27, 4, v27")
        a("v_lshl_add_u32 v%d, v26, 10, v27" % vW64)
        a("v_lshrrev_b32 v26, 3, v%d" % vL)
        a("v_and_b32 v27, 7, v%d" % vL)
        a("v_lshrrev_b32 v28, 4, v%d" % vL)
        a("v_xor_b32 v27, v27, v28")
        a("v_lshlrev_b32 v27, 4, v27")
        a("v_lshl_add_u32 v%d, v26, 10, v27" % vQE)
        a("v_xor_b32 v%d, 64, v%d" % (vQE + 1, vQE))
        a("s_lshl_b32 s%d, s%d, 14" % (sCc, sW))
        a("s_lshl_b32 s%d, s%d, 15" % (sD, sT))
        a("s_lshl_b32 s%d, s%d, 9" % (sA, sKH))
        a("s_add_u32 s%d, s%d, s%d" % (sD, sD, sA))
        self.w64_bases(sW2L, sW2G)

    def feat0(self, dst, spanel, shift):
        a = self.a
        if self.opt.get("remap", 0):
            a("s_lshl_b32 s%d, s%d, %d" % (dst, sC, 5 + shift))
            a("s_lshl_b32 s%d, s%d, %d" % (sSO, spanel, 8 + shift))
        else:
            a("s_lshl_b32 s%d, s%d, %d" % (dst, sC, 6 + shift))
            a("s_lshl_b32 s%d, s%d, %d" % (sSO, spanel, 5 + shift))
        a("s_add_u32 s%d, s%d, s%d" % (dst, dst, sSO))

    def w64_bases(self, sl, sg):
        a = self.a
        a("s_lshl_b32 s%d, s%d, 15" % (sl, sTH))
        a("s_lshl_b32 s%d, s%d, 14" % (sA, sKH))
        a("s_add_u32 s%d, s%d, s%d" % (sl, sl, sA))
        a("s_add_u32 s%d, s%d, %d" % (sl, sl, LW))
        a("s_lshl_b32 s%d, s%d, 18" % (sg, sKH))
        self.feat0(sA, sTH, 1)
        a("s_add_u32 s%d, s%d, s%d" % (sg, sg, sA))

    def s1_stage_items(self, st):
        items = []

        def head():
            a = self.a
            a("s_add_u32 s%d, s%d, %d" % (sB, sROT, st))
            a("s_and_b32 s%d, s%d, 3" % (sB, sB))
            a("s_lshl_b32 s%d, s%d, 7" % (sQG, sB))
            a("s_add_u32 s%d, s%d, s%d" % (sQG, sQG, sD))
            a("s_lshl_b32 s%d, s%d, 16" % (sWG, sB))
            a("s_add_u32 s%d, s%d, s%d" % (sWG, sWG, sW2G))
        for j in range(4):
            def f(j=j):
                if j == 0:
                    head()
                self.dma_item(S_Q, vQE + (j & 1), sCc, LQ + st * 4096 + j * 1024, sQG, j * 8192, "s1_%d" % st)()
            items.append(f)
        for i in range(4):
            items.append(self.dma_item(S_W1, vW64, sW2L, (4 * st + i) * 1024, sWG, i * 16384, "s1_%d" % st))
        return items

    def touch(self, srd, lanes, sidx, dst):
        a = self.a
        a("s_mul_i32 s%d, s%d, %d" % (sA, sidx, lanes))
        a("v_add_u32 v26, s%d, v%d" % (sA, vL))
        a("v_lshlrev_b32 v26, 7, v26")
        a("v_mov_b32 v27, 0x%x" % OOB)
        a("v_cmp_gt_u32 vcc, %d, v%d" % (lanes, vL))
        a("v_cndmask_b32 v26, v27, v26, vcc")
        a.vmem("buffer_load_dword v%d, v26, %s, 0 offen" % (dst, sr(srd, 4)), "touch")

    def touch_w2(self):
        a = self.a
        if self.opt.get("touch", 1):
            a("s_lshr_b32 s%d, s2, 3" % sE)
            a("s_lshl_b32 s%d, s%d, 2" % (sE, sE))
            a("s_add_u32 s%d, s%d, s%d" % (sE, sE, sW))
            self.touch(S_W2, 32, sE, 53)

    def touch_chip(self, which):
        a = self.a
        srd, lanes, dst = {"w2": (S_W2, 4, 160), "ssm": (S_SSM, 16, 161), "w3": (S_W3, 14, 163), "w4": (S_W4, 14, 162)}[which]
        if not self.opt.get("t" + which, 1):
            return
        if which == "ssm" and self.opt.get("tssm", 2) == 2:
            a("s_lshl_b32 s%d, s2, 3" % sE)
            a("s_add_u32 s%d, s%d, s%d" % (sE, sE, sW))
            self.touch(srd, 8, sE, dst)
            return
        a("s_lshl_b32 s%d, s2, 2" % sE)
        a("s_add_u32 s%d, s%d, s%d" % (sE, sE, sW))
        self.touch(srd, lanes, sE, dst)

    def touch_code(self):
        a = self.a
        if not self.opt.get("tcode", 1):
            return
        a("s_getpc_b64 s[96:97]")
        a.label("L_pc")
        a("s_sub_u32 s96, s96, L_pc-%s_kernel" % NAME)
        a("s_subb_u32 s97, s97, 0")
        a("s_lshr_b32 s%d, s2, 3" % sE)
        a("s_lshl_b32 s%d, s%d, 2" % (sE, sE))
        a("s_add_u32 s%d, s%d, s%d" % (sE, sE, sW))
        a("s_mul_i32 s%d, s%d, 3" % (sE, sE))
        a("v_min_u32 v26, 2, v%d" % vL)
        a("v_add_u32 v26, s%d, v26" % sE)
        a("v_min_u32 v26, (L_codeend-%s_kernel)/128-1, v26" % NAME)
        a("v_lshlrev_b32 v26, 7, v26")
        a("v_mov_b32 v135, s97")
        a("v_add_co_u32 v134, vcc, s96, v26")
        a("v_addc_co_u32 v135, vcc, 0, v135, vcc")
        a.vmem("global_load_dword v136, v[134:135], off", "touch")

    def cold_touches(self):
        a = self.a
        o = self.opt
        a("s_lshr_b32 s%d, s2, 3" % sE)
        a("s_lshl_b32 s%d, s%d, 2" % (sE, sE))
        a("s_add_u32 s%d, s%d, s%d" % (sE, sE, sW))
        if o.get("tq", 0):
            a("s_and_b32 s%d, s2, 7" % sF)
            a("s_lshl_b32 s%d, s%d, 7" % (sF, sF))
            a("s_add_u32 s%d, s%d, s%d" % (sF, sF, sE))
            self.touch(S_Q, 16, sF, 160)
            self.touch(S_W1, 32, sE, 161)

    def touch_rows(self, srd, rows_per_wave, srow0, col, dst):
        a = self.a
        a("v_add_u32 v26, s%d, v%d" % (srow0, vL))
        a("v_lshlrev_b32 v26, 10, v26")
        a("v_add_u32 v26, %d, v26" % col)
        a("v_mov_b32 v27, 0x%x" % OOB)
        a("v_cmp_gt_u32 vcc, %d, v%d" % (rows_per_wave, vL))
        a("v_cndmask_b32 v26, v27, v26, vcc")
        a.vmem("buffer_load_dword v%d, v26, %s, 0 offen" % (dst, sr(srd, 4)), "touch")

    def wave_in_group(self, dst):
        a = self.a
        a("s_lshr_b32 s%d, s2, 3" % dst)
        a("s_lshl_b32 s%d, s%d, 2" % (dst, dst))
        a("s_add_u32 s%d, s%d, s%d" % (dst, dst, sW))

    def head_start(self):
        a = self.a
        m = self.opt.get("head", 11)
        self.wave_in_group(sE)
        if m & 1:
            a("s_lshl_b32 s%d, s%d, 2" % (sF, sE))
            self.touch_rows(S_W1, 4, sF, 384, 160)
        if m & 2:
            a("s_and_b32 s%d, s2, 7" % sF)
            a("s_lshl_b32 s%d, s%d, 7" % (sF, sF))
            a("s_add_u32 s%d, s%d, s%d" % (sF, sF, sE))
            a("s_lshl_b32 s%d, s%d, 1" % (sF, sF))
            self.touch_rows(S_K, 2, sF, 384, 161)
            self.touch_rows(S_V, 2, sF, 384, 162)
        if m & 4:
            a("s_lshl_b32 s%d, s%d, 2" % (sF, sE))
            self.touch_rows(S_W2, 4, sF, 384, 163)

    def page_touch(self):
        a = self.a
        m = self.opt.get("tlb", 0)
        if not m:
            return
        a("v_mov_b32 v27, 0x%x" % OOB)
        if m & 1:
            a("v_lshlrev_b32 v26, 21, v%d" % vL)
            a("v_add_u32 v26, 0x70800, v26")
            a("v_cmp_gt_u32 vcc, 10, v%d" % vL)
            a("v_cndmask_b32 v26, v27, v26, vcc")
            a.vmem("buffer_load_dword v164, v26, %s, 0 offen" % sr(S_WS, 4), "touch")
        lst = []
        if m & 2:
            lst += [(S_OUT, 1 << 21, 165)]
        if m & 4:
            lst += [(S_SSM, 1 << 21, 166), (S_W3, 512 * 1792 * 2, 167), (S_W4, 512 * 1792 * 2, 168), (S_W2, 1 << 19, 169)]
        for srd, size, dst in lst:
            a("v_mul_u32_u24 v26, %d, v%d" % (size // 128 - 1, vL))
            a("v_lshlrev_b32 v26, 7, v26")
            a("v_cmp_gt_u32 vcc, 2, v%d" % vL)
            a("v_cndmask_b32 v26, v27, v26, vcc")
            a.vmem("buffer_load_dword v%d, v26, %s, 0 offen" % (dst, sr(srd, 4)), "touch")

    def head_start_w4(self):
        a = self.a
        if self.opt.get("head", 11) & 8:
            self.wave_in_group(sE)
            a("s_mul_i32 s%d, s%d, 14" % (sF, sE))
            self.touch_rows(S_W4, 14, sF, 384, 161)

    def batch_a(self):
        a = self.a
        if self.opt.get("tkv", 1):
            self.touch_kv(157, 158)
        if self.opt.get("tw2", 1):
            a("s_lshr_b32 s%d, s2, 3" % sE)
            a("s_lshl_b32 s%d, s%d, 2" % (sE, sE))
            a("s_add_u32 s%d, s%d, s%d" % (sE, sE, sW))
            self.touch(S_W2, 32, sE, 159)
        if self.opt.get("bpos", 0) == 0:
            self.touch_chip("ssm")
            self.touch_chip("w3")

    def kv_dma(self):
        a = self.a
        a("v_lshrrev_b32 v26, 3, v%d" % vL)
        a("v_and_b32 v27, 7, v%d" % vL)
        a("v_lshlrev_b32 v27, 4, v27")
        a("v_lshl_add_u32 v137, v26, 10, v27")
        a("s_lshl_b32 s%d, s%d, 6" % (sA, sR))
        a("s_lshl_b32 s%d, s%d, 4" % (sB, sW))
        a("s_add_u32 s%d, s%d, s%d" % (sA, sA, sB))
        a("v_add_u32 v26, s%d, v26" % sA)
        a("s_lshl_b32 s%d, s%d, 10" % (sQG, sA))
        a("s_lshl_b32 s%d, s%d, 7" % (sB, sC))
        a("s_add_u32 s%d, s%d, s%d" % (sQG, sQG, sB))
        a("v_add_u32 v138, s%d, v137" % sQG)
        a("v_subrev_u32 v138, 3072, v138")
        a("v_mov_b32 v27, 0x%x" % OOB)
        a("v_cmp_gt_u32 vcc, 3, v26")
        a("v_cndmask_b32 v138, v138, v27, vcc")
        a("s_mul_i32 s%d, s%d, 5120" % (sWG, sW))
        a("s_add_u32 m0, s%d, %d" % (sWG, LKV))
        a.vmem("buffer_load_dwordx4 v138, %s, 0 offen lds" % sr(S_K, 4), "kv")
        for g in (1, 2):
            self.dma_item(S_K, 137, sWG, LKV + 1024 * g, sQG, 8192 * g - 3072, "kv")()
        for g in (0, 1):
            self.dma_item(S_V, 137, sWG, LKV + 3072 + 1024 * g, sQG, 8192 * g, "kv")()
        a("s_lshl_b32 s%d, s%d, 9" % (sB, sC))
        a("v_lshl_add_u32 v26, v%d, 4, s%d" % (vN31, sB))
        a.vmem("buffer_load_dwordx4 %s, v26, %s, 0 offen" % (vr(self.SHRAW, 4), sr(S_SHK, 4)), "kv")

    def p0_reads(self):
        a = self.a
        a.wait_vm("kv")
        a("s_mul_i32 s%d, s%d, 5120" % (sA, sW))
        a("v_lshlrev_b32 v26, 10, v%d" % vHH)
        a("v_lshl_add_u32 v26, v%d, 2, v26" % vN31)
        a("v_add_u32 v26, s%d, v26" % sA)
        a("v_add_u32 v26, %d, v26" % LKV)
        for i in range(11):
            a.lds("ds_read_b32 v%d, v26 offset:%d" % (self.KRAW + i, 128 * i), "p0")
        for i in range(8):
            a.lds("ds_read_b32 v%d, v26 offset:%d" % (self.VRAW + i, 3072 + 128 * i), "p0")

    def touch_kv(self, dk=54, dv=55):
        a = self.a
        for srd, rows, first, dst in ((S_K, 17, -3, dk), (S_V, 16, 0, dv)):
            a("s_lshl_b32 s%d, s%d, 6" % (sA, sR))
            a("s_mul_i32 s%d, s%d, %d" % (sB, sW, rows))
            a("s_add_u32 s%d, s%d, s%d" % (sA, sA, sB))
            a("s_add_i32 s%d, s%d, %d" % (sA, sA, first))
            a("v_add_u32 v26, s%d, v%d" % (sA, vL))
            a("v_lshlrev_b32 v26, 10, v26")
            a("s_lshl_b32 s%d, s%d, 7" % (sB, sC))
            a("v_add_u32 v26, s%d, v26" % sB)
            a("v_mov_b32 v27, 0x%x" % OOB)
            a("v_cmp_gt_u32 vcc, %d, v%d" % (rows, vL))
            a("v_cndmask_b32 v26, v27, v26, vcc")
            a.vmem("buffer_load_dword v%d, v26, %s, 0 offen" % (dst, sr(srd, 4)), "touch")

    def touch_w3_local(self):
        a = self.a
        if self.opt.get("tw3", 1):
            a("s_lshr_b32 s%d, s2, 3" % sE)
            a("s_lshl_b32 s%d, s%d, 2" % (sE, sE))
            a("s_add_u32 s%d, s%d, s%d" % (sE, sE, sW))
            self.touch(S_W3, 64, sE, 50)
            a("s_add_u32 s%d, s%d, 128" % (sE, sE))
            self.touch(S_W3, 64, sE, 51)

    def touch_w4_chip(self):
        a = self.a
        if self.opt.get("tw4", 1):
            a("s_lshl_b32 s%d, s2, 2" % sE)
            a("s_add_u32 s%d, s%d, s%d" % (sE, sE, sW))
            self.touch(S_W4, 14, sE, 52)

    def touch_w34(self):
        a = self.a
        if self.opt.get("touch", 1):
            a("s_lshl_b32 s%d, s2, 2" % sE)
            a("s_add_u32 s%d, s%d, s%d" % (sE, sE, sW))
            if self.opt.get("touchw3", 1):
                self.touch(S_W3, 14, sE, 223)
            if self.opt.get("touchw4", 1):
                self.touch(S_W4, 14, sE, 224)

    def touch_w4_local(self):
        a = self.a
        a("s_lshr_b32 s%d, s2, 3" % sE)
        a("s_lshl_b32 s%d, s%d, 2" % (sE, sE))
        a("s_add_u32 s%d, s%d, s%d" % (sE, sE, sW))
        self.touch(S_W4, 64, sE, 54)
        a("s_add_u32 s%d, s%d, 128" % (sE, sE))
        self.touch(S_W4, 64, sE, 55)

    KRAW, VRAW, SHRAW, POFF = 172, 183, 164, 138

    def p0_loads(self):
        a = self.a
        o = self.POFF
        a("s_lshl_b32 s%d, s%d, 6" % (sA, sR))
        a("s_lshl_b32 s%d, s%d, 4" % (sB, sW))
        a("s_add_u32 s%d, s%d, s%d" % (sA, sA, sB))
        a("v_lshl_add_u32 v26, v%d, 3, s%d" % (vHH, sA))
        a("s_lshl_b32 s%d, s%d, 7" % (sB, sC))
        a("v_lshl_add_u32 v27, v%d, 2, s%d" % (vN31, sB))
        a("v_lshl_add_u32 v%d, v26, 10, v27" % (o + 3))
        a("v_add_u32 v%d, 0x1000, v%d" % (o + 4, o + 3))
        a("v_mov_b32 v28, 0x%x" % OOB)
        for i in range(3):
            a("v_subrev_u32 v%d, %d, v%d" % (o + i, (3 - i) * 1024, o + 3))
            a("v_cmp_gt_u32 vcc, %d, v26" % (3 - i))
            a("v_cndmask_b32 v%d, v%d, v28, vcc" % (o + i, o + i))
        a("s_lshl_b32 s%d, s%d, 9" % (sB, sC))
        a("v_lshl_add_u32 v%d, v%d, 4, s%d" % (o + 5, vN31, sB))

        def item(text):
            return lambda: a.vmem(text, "p0")
        for i in range(3):
            self.fq.append(item("buffer_load_dword v%d, v%d, %s, 0 offen" % (self.KRAW + i, o + i, sr(S_K, 4))))
        for i in range(8):
            self.fq.append(item("buffer_load_dword v%d, v%d, %s, 0 offen offset:%d"
                                % (self.KRAW + 3 + i, o + 3 + i // 4, sr(S_K, 4), (i % 4) * 1024)))
        for i in range(8):
            self.fq.append(item("buffer_load_dword v%d, v%d, %s, 0 offen offset:%d"
                                % (self.VRAW + i, o + 3 + i // 4, sr(S_V, 4), (i % 4) * 1024)))
        self.fq.append(item("buffer_load_dwordx4 %s, v%d, %s, 0 offen" % (vr(self.SHRAW, 4), o + 5, sr(S_SHK, 4))))

    ACK, ACS, ACC_CS = 32, 48, 64
    BF, AK, AS, AC = 80, 96, 104, 112
    SUM, ONE4 = 120, 124

    def s1_setup(self):
        a = self.a
        a("v_bfe_u32 v26, v%d, 1, 3" % vN31)
        a("v_xor_b32 v26, v26, v%d" % vHH)
        a("v_lshlrev_b32 v26, 4, v26")
        a("v_lshl_add_u32 v26, v%d, 7, v26" % vN31)
        a("s_lshl_b32 s%d, s%d, 14" % (sA, sW))
        a("v_add_u32 v128, s%d, v26" % sA)
        for i in range(1, 4):
            a("v_xor_b32 v%d, %d, v128" % (128 + i, 32 * i))
        a("s_lshl_b32 s%d, s%d, 14" % (sA, sKH))
        a("s_add_u32 s%d, s%d, %d" % (sA, sA, LW))
        a("s_lshl_b32 s%d, s%d, 15" % (sB, sKH))
        a("s_add_u32 s%d, s%d, s%d" % (sE, sA, sB))
        a("v_add_u32 v134, s%d, v%d" % (sE, vWN))
        a("s_xor_b32 s%d, s%d, 0x8000" % (sB, sB))
        a("s_add_u32 s%d, s%d, s%d" % (sE, sA, sB))
        a("v_add_u32 v135, s%d, v%d" % (sE, vWN))
        a("s_xor_b32 s%d, s%d, s%d" % (sB, sKH, sTH))
        a("s_lshl_b32 s%d, s%d, 15" % (sB, sB))
        a("s_add_u32 s%d, s%d, s%d" % (sE, sA, sB))
        a("v_add_u32 v136, s%d, v%d" % (sE, vWN))

    def s1_main(self, after_stage):
        a = self.a
        ACK, ACS, ACC_CS, BF, AK, AS, AC, SUM, ONE4 = (self.ACK, self.ACS, self.ACC_CS, self.BF, self.AK, self.AS,
                                                       self.AC, self.SUM, self.ONE4)
        self.selector(ONE4)
        for i in range(4):
            a("v_mov_b32 v%d, 0" % (SUM + i))

        def aread(ks, which):
            base, addr = ((AK, 134), (AS, 135), (AC, 136))[which]
            for hf in range(2):
                a.lds("ds_read_b64_tr_b16 %s, v%d offset:%d"
                      % (vr(base + 4 * (ks & 1) + 2 * hf, 2), addr, ks * 1024 + hf * 256), "f%d_%d" % (ks, which))

        for st in range(4):
            if st < 3:
                after_stage(st)
            for q4 in range(4):
                a.lds("ds_read_b128 %s, v%d offset:%d" % (vr(BF + 4 * q4, 4), 128 + q4, LQ + st * 4096), "b")
            for which in range(3):
                aread(4 * st, which)
            self.fill(1)
            a.wait_lg("b")
            if not self.opt.get("hstat", 0):
                for j in range(16):
                    a("v_dot2c_f32_bf16 v%d, s%d, v%d" % (SUM + (j & 1), sONES, BF + j))
                    a("v_dot2c_f32_bf16 v%d, v%d, v%d" % (SUM + 2 + (j & 1), BF + j, BF + j))
            for q4 in range(4):
                ks = 4 * st + q4
                b = ks & 1
                B = vr(BF + 4 * q4, 4)
                first = ks == 0
                a.wait_lg("f%d_0" % ks)
                a("%s %s, %s, %s, %s" % (MF32, vr(ACK, 16), vr(AK + 4 * b, 4), B, "0" if first else vr(ACK, 16)))
                if q4 < 3:
                    aread(ks + 1, 0)
                self.fill(1)
                a.wait_lg("f%d_1" % ks)
                a("%s %s, %s, %s, %s" % (MF32, vr(ACS, 16), vr(AS + 4 * b, 4), B, "0" if first else vr(ACS, 16)))
                if q4 < 3:
                    aread(ks + 1, 1)
                self.fill(1)
                a.wait_lg("f%d_2" % ks)
                a("%s %s, %s, %s, %s" % (MF16, vr(ACC_CS, 4), vr(AC + 4 * b, 4), vr(ONE4, 4),
                                         "0" if first else vr(ACC_CS, 4)))
                if q4 < 3:
                    aread(ks + 1, 2)
            self.stamp("s1st%d" % st)
        self.fill_all()

    def s1_stats(self):
        a = self.a
        BF, SUM = self.BF, self.SUM
        a("v_bfe_u32 v26, v%d, 1, 3" % vN31)
        a("v_xor_b32 v26, v26, v%d" % vHH)
        a("v_lshlrev_b32 v26, 4, v26")
        a("v_lshl_add_u32 v26, v%d, 7, v26" % vN31)
        a("s_lshl_b32 s%d, s%d, 14" % (sA, sW))
        a("v_add_u32 v128, s%d, v26" % sA)
        for i in range(1, 4):
            a("v_xor_b32 v%d, %d, v128" % (128 + i, 32 * i))
        for i in range(4):
            a("v_mov_b32 v%d, 0" % (SUM + i))
        bufs = (BF, 96)
        for st in range(5):
            if st < 4:
                for q4 in range(4):
                    a.lds("ds_read_b128 %s, v%d offset:%d" % (vr(bufs[st & 1] + 4 * q4, 4), 128 + q4, LQ + st * 4096),
                          "b%d" % st)
            if st:
                a.wait_lg("b%d" % (st - 1))
                B = bufs[(st - 1) & 1]
                for j in range(16):
                    a("v_dot2c_f32_bf16 v%d, s%d, v%d" % (SUM + (j & 1), sONES, B + j))
                    a("v_dot2c_f32_bf16 v%d, v%d, v%d" % (SUM + 2 + (j & 1), B + j, B + j))
        self.stats_write()
        a.wait_lg_all()

    def stats_write(self):
        a = self.a
        SUM = self.SUM
        a("v_add_f32 v%d, v%d, v%d" % (SUM, SUM, SUM + 1))
        a("v_add_f32 v%d, v%d, v%d" % (SUM + 2, SUM + 2, SUM + 3))
        a("v_permlane32_swap_b32 v%d, v%d" % (SUM, SUM + 2))
        a("v_add_f32 v%d, v%d, v%d" % (SUM, SUM, SUM + 2))
        a("s_lshl_b32 s%d, s%d, 8" % (sA, sW))
        a("s_add_u32 s%d, s%d, %d" % (sA, sA, LSTX))
        a("v_lshl_add_u32 v27, v%d, 2, s%d" % (vL, sA))
        a.lds("ds_write_b32 v27, v%d" % SUM)

    def selector(self, dst):
        a = self.a
        a("v_lshrrev_b32 v26, 4, v%d" % vL)
        a("v_xor_b32 v26, v26, v%d" % vL)
        a("v_and_b32 v26, 1, v26")
        a("v_mov_b32 v27, s%d" % sONES)
        a("v_cmp_eq_u32 vcc, 0, v26")
        a("v_cndmask_b32 v%d, 0, v27, vcc" % dst)
        for i in range(1, 4):
            a("v_mov_b32 v%d, v%d" % (dst + i, dst))

    def colsum_write(self, src, sbase):
        a = self.a
        a("v_and_b32 v28, 1, v%d" % vL)
        a("v_lshlrev_b32 v28, 6, v28")
        a("v_lshrrev_b32 v29, 4, v%d" % vL)
        a("v_lshl_add_u32 v28, v29, 4, v28")
        a("v_add_u32 v28, s%d, v28" % sbase)
        self.hold += 1
        a("s_mov_b32 exec_lo, 0x30003")
        a("s_mov_b32 exec_hi, 0x30003")
        a.lds("ds_write_b128 v28, %s" % vr(src, 4))
        a("s_mov_b64 exec, -1")
        self.hold -= 1

    def q_tile_read(self):
        a = self.a
        self.feat0(sE, sKH, 0)
        a("s_lshr_b32 s%d, s%d, 8" % (sA, sE))
        a("s_lshl_b32 s%d, s%d, 1" % (sB, sTH))
        a("s_add_u32 s%d, s%d, s%d" % (sA, sA, sB))
        a("s_lshl_b32 s%d, s%d, 14" % (sA, sA))
        a("s_lshr_b32 s%d, s%d, 6" % (sB, sE))
        a("s_sub_u32 s%d, s%d, s%d" % (sB, sB, sROT))
        a("s_and_b32 s%d, s%d, 3" % (sB, sB))
        a("s_lshl_b32 s%d, s%d, 12" % (sB, sB))
        a("s_add_u32 s%d, s%d, s%d" % (sA, sA, sB))
        a("s_bfe_u32 s%d, s%d, 0x10005" % (sB, sE))
        a("s_lshl_b32 s%d, s%d, 2" % (sB, sB))
        a("v_bfe_u32 v26, v%d, 1, 3" % vN31)
        a("v_xor_b32 v26, s%d, v26" % sB)
        a("v_lshlrev_b32 v27, 7, v%d" % vN31)
        a("v_lshl_add_u32 v27, v%d, 3, v27" % vHH)
        a("v_add_u32 v27, s%d, v27" % sA)
        for j in range(4):
            a("v_xor_b32 v28, %d, v26" % j)
            a("v_lshl_add_u32 v28, v28, 4, v27")
            a.lds("ds_read_b64 %s, v28 offset:%d" % (vr(vQ + 2 * j, 2), LQ), "qt")

    def gelu(self, X, n, vA13, vIA, T, out, fills=0):
        a = self.a
        for g0 in range(0, n // 2, 4):
            ps = list(range(g0, min(g0 + 4, n // 2)))
            t = lambda p: T + 4 * (p - g0)
            x = lambda p: vr(X + 2 * p, 2)
            left = fills

            def hook():
                nonlocal left
                if left > 0:
                    self.fill(1)
                    left -= 1
            for p in ps:
                a("v_pk_mul_f32 %s, %s, %s" % (vr(t(p), 2), x(p), x(p)))
            for p in ps:
                a("v_pk_fma_f32 %s, %s, %s, %s op_sel:[0,1,0] op_sel_hi:[1,1,0]"
                  % (vr(t(p), 2), vr(t(p), 2), vr(vA13, 2), vr(vA13, 2)))
            hook()
            for p in ps:
                a("v_pk_mul_f32 %s, %s, %s" % (vr(t(p), 2), vr(t(p), 2), x(p)))
            for p in ps:
                a("v_exp_f32 v%d, v%d" % (t(p) + 2, t(p)))
                a("v_exp_f32 v%d, v%d" % (t(p) + 3, t(p) + 1))
            hook()
            for p in ps:
                a("v_pk_fma_f32 %s, %s, %s, %s op_sel_hi:[1,0,0]"
                  % (vr(t(p), 2), vr(t(p) + 2, 2), vr(vIA, 2), vr(vIA, 2)))
            hook()
            for p in ps:
                a("v_rcp_f32 v%d, v%d" % (t(p) + 2, t(p)))
                a("v_rcp_f32 v%d, v%d" % (t(p) + 3, t(p) + 1))
            hook()
            for p in ps:
                a("v_pk_mul_f32 %s, %s, %s" % (vr(t(p), 2), vr(t(p) + 2, 2), x(p)))
            for p in ps:
                a("v_cvt_pk_bf16_f32 v%d, v%d, v%d" % (out + p, t(p), t(p) + 1))

    def gelu_consts(self, vA, dst):
        a = self.a
        a("v_mul_f32 v%d, s%d, v%d" % (dst, sKG1, vA))
        a("v_mul_f32 v%d, v%d, v%d" % (dst + 1, vA, vA))
        a("v_mul_f32 v%d, v%d, v%d" % (dst + 1, dst + 1, vA))
        a("v_mul_f32 v%d, s%d, v%d" % (dst + 1, sKG3, dst + 1))
        a("v_rcp_f32 v%d, v%d" % (dst + 2, vA))

    def exchange_write(self, send, base=LRED):
        a = self.a
        a("s_lshl_b32 s%d, s%d, 12" % (sA, sW))
        a("s_add_u32 s%d, s%d, %d" % (sA, sA, base))
        a("v_add_u32 v26, s%d, v%d" % (sA, vL16))
        for j in range(4):
            a.lds("ds_write_b128 v26, %s offset:%d" % (vr(send + 4 * j, 4), 1024 * j))

    def exchange_read(self, dst, base=LRED):
        a = self.a
        a("s_xor_b32 s%d, s%d, 1" % (sA, sW))
        a("s_lshl_b32 s%d, s%d, 12" % (sA, sA))
        a("s_add_u32 s%d, s%d, %d" % (sA, sA, base))
        a("v_add_u32 v26, s%d, v%d" % (sA, vL16))
        for j in range(4):
            a.lds("ds_read_b128 %s, v26 offset:%d" % (vr(dst + 4 * j, 4), 1024 * j), "xr")

    def s1_epilogue(self, after_exchange):
        a = self.a
        ACK, ACS, ACC_CS, SUM = self.ACK, self.ACS, self.ACC_CS, self.SUM
        self.q_tile_read()
        hstat = self.opt.get("hstat", 0)
        if not hstat:
            self.stats_write()
        self.exchange_write(ACS)
        a("s_xor_b32 s%d, s%d, s%d" % (sA, sKH, sTH))
        a("s_lshl_b32 s%d, s%d, 8" % (sA, sA))
        a("s_lshl_b32 s%d, s%d, 7" % (sB, sKH))
        a("s_add_u32 s%d, s%d, s%d" % (sA, sA, sB))
        a("s_add_u32 s%d, s%d, %d" % (sA, sA, LCSX))
        self.colsum_write(ACC_CS, sA)
        a.wait_lg_all()
        self.ssm_d_unpack()
        self.barrier()
        P, C0, C1 = 80, 96, 128
        self.exchange_read(P)
        a("s_xor_b32 s%d, s%d, 1" % (sA, sW))
        a("s_lshl_b32 s%d, s%d, 8" % (sA, sA))
        a("s_add_u32 s%d, s%d, %d" % (sA, sA, LSTX))
        a("v_lshl_add_u32 v27, v%d, 2, s%d" % (vL, sA))
        a.lds("ds_read_b32 v%d, v27" % (SUM + 1), "sx")
        if hstat:
            a("s_lshl_b32 s%d, s%d, 8" % (sA, sW))
            a("s_add_u32 s%d, s%d, %d" % (sA, sA, LSTX))
            a("v_lshl_add_u32 v27, v%d, 2, s%d" % (vL, sA))
            a.lds("ds_read_b32 v%d, v27" % SUM, "sx")
        a("s_lshl_b32 s%d, s%d, 8" % (sA, sKH))
        a("s_add_u32 s%d, s%d, %d" % (sA, sA, LCSX))
        a("v_lshl_add_u32 v28, v%d, 4, s%d" % (vHH, sA))
        for j in range(4):
            a.lds("ds_read_b128 %s, v28 offset:%d" % (vr(C0 + 4 * j, 4), 32 * j))
            a.lds("ds_read_b128 %s, v28 offset:%d" % (vr(C1 + 4 * j, 4), 128 + 32 * j))
        after_exchange()
        a.wait_lg("sx")
        a("v_add_f32 v%d, v%d, v%d" % (SUM, SUM, SUM + 1))
        a("v_mov_b32 v%d, v%d" % (SUM + 2, SUM))
        a("v_permlane32_swap_b32 v%d, v%d" % (SUM, SUM + 2))
        a("v_mul_f32 v%d, s%d, v%d" % (vMEAN, s512I, SUM))
        a("v_mul_f32 v26, s%d, v%d" % (s512I, SUM + 2))
        a("v_fma_f32 v26, -v%d, v%d, v26" % (vMEAN, vMEAN))
        a("v_max_f32 v26, 0, v26")
        a("v_add_f32 v27, s%d, v26" % sEPS)
        a("v_rsq_f32 v%d, v27" % vR1)
        a("v_mul_f32 v27, v%d, v%d" % (vR1, vR1))
        a("v_fma_f32 v27, v27, v26, s%d" % sEPS)
        a("v_rsq_f32 v27, v27")
        a("v_mul_f32 v27, v27, v%d" % vR1)
        G = 112
        self.gelu_consts(27, G)
        a("v_sub_f32 v%d, 0, v%d" % (G + 4, vMEAN))
        a.wait_lg_all()
        for p in range(8):
            a("v_pk_add_f32 %s, %s, %s" % (vr(C0 + 2 * p, 2), vr(C0 + 2 * p, 2), vr(C1 + 2 * p, 2)))
            a("v_pk_add_f32 %s, %s, %s" % (vr(ACK + 2 * p, 2), vr(ACK + 2 * p, 2), vr(P + 2 * p, 2)))
        for p in range(8):
            a("v_pk_fma_f32 %s, %s, %s, %s op_sel_hi:[1,0,1]"
              % (vr(ACK + 2 * p, 2), vr(C0 + 2 * p, 2), vr(G + 4, 2), vr(ACK + 2 * p, 2)))
        self.gelu(ACK, 16, G, G + 2, 144, 48, fills=0)
        self.frag_store(48, WS_HS, "hst")

    def frag_store(self, src, base, tag):
        a = self.a
        a("s_lshl_b32 s%d, s%d, 15" % (sA, sT))
        self.feat0(sB, sKH, 6)
        a("s_add_u32 s%d, s%d, s%d" % (sA, sA, sB))
        a("s_add_u32 s%d, s%d, 0x%x" % (sA, sA, base))
        a.vmem("buffer_store_dwordx4 %s, v%d, %s, s%d offen sc1" % (vr(src, 4), vL16, sr(S_WS, 4), sA), tag)
        a.vmem("buffer_store_dwordx4 %s, v%d, %s, s%d offen offset:1024 sc1"
               % (vr(src + 4, 4), vL16, sr(S_WS, 4), sA), tag)

    PK = 118

    def nonce_compute(self):
        a = self.a
        a.wait_vm("nonce")
        a("v_readfirstlane_b32 s%d, v30" % sN)
        a("s_mul_i32 s%d, s%d, 0x9e3779b1" % (sN, sN))
        a("s_add_u32 s%d, s%d, 0x7f4a7c15" % (sN, sN))

    def p0_compute(self, mid=None):
        a = self.a
        K, V, SH, KV, PK = 56, 78, 94, 102, self.PK
        self.p0_reads()
        a.wait_lg_all()
        d = self.SHRAW
        for j, (x, y, hi) in enumerate([(d, d + 2, 0), (d, d + 2, 1), (d + 1, d + 3, 0), (d + 1, d + 3, 1)]):
            for o, src in ((0, x), (1, y)):
                if hi:
                    a("v_and_b32 v%d, s%d, v%d" % (SH + 2 * j + o, sHI, src))
                else:
                    a("v_lshlrev_b32 v%d, 16, v%d" % (SH + 2 * j + o, src))
        for i in range(11):
            a("v_lshlrev_b32 v%d, 16, v%d" % (K + 2 * i, self.KRAW + i))
            a("v_and_b32 v%d, s%d, v%d" % (K + 2 * i + 1, sHI, self.KRAW + i))
            if i % 4 == 3:
                self.fill(1)
        for i in range(8):
            a("v_lshlrev_b32 v%d, 16, v%d" % (V + 2 * i, self.VRAW + i))
            a("v_and_b32 v%d, s%d, v%d" % (V + 2 * i + 1, sHI, self.VRAW + i))
        self.fill(1)
        for t in range(8):
            a("v_pk_mul_f32 %s, %s, %s" % (vr(KV + 2 * t, 2), vr(K + 2 * (t + 3), 2), vr(SH, 2)))
        self.fill(1)
        for j in range(1, 4):
            for t in range(8):
                a("v_pk_fma_f32 %s, %s, %s, %s" % (vr(KV + 2 * t, 2), vr(K + 2 * (t + 3 - j), 2), vr(SH + 2 * j, 2),
                                                   vr(KV + 2 * t, 2)))
            self.fill(1)
        if mid:
            mid()
            self.fill(4)
        for t in range(8):
            a("v_pk_mul_f32 %s, %s, %s" % (vr(KV + 2 * t, 2), vr(KV + 2 * t, 2), vr(V + 2 * t, 2)))
        self.fill(1)
        for c in range(2):
            for t in range(4):
                a("v_cvt_pk_bf16_f32 v%d, v%d, v%d" % (PK + 4 * c + t, KV + 4 * t + c, KV + 4 * t + 2 + c))
        a("s_lshl_b32 s%d, s%d, 1" % (sA, sW))
        a("v_add_u32 v26, s%d, v%d" % (sA, vHH))
        a("v_and_b32 v27, 7, v%d" % vN31)
        a("v_xor_b32 v26, v26, v27")
        a("v_lshlrev_b32 v26, 4, v26")
        a("v_lshl_add_u32 v26, v%d, 8, v26" % vN31)
        a("v_add_u32 v26, %d, v26" % LSTG)
        a.lds("ds_write_b128 v26, %s" % vr(PK, 4))
        a.lds("ds_write_b128 v26, %s offset:128" % vr(PK + 4, 4))
        self.fill_all()

    def p0_readback(self):
        a = self.a
        PK = 144
        a("v_lshrrev_b32 v26, 3, v%d" % vL)
        a("s_lshl_b32 s%d, s%d, 4" % (sA, sW))
        a("v_add_u32 v26, s%d, v26" % sA)
        a("v_and_b32 v27, 7, v%d" % vL)
        for i in range(2):
            a("v_add_u32 v28, %d, v26" % (8 * i))
            a("v_bfe_u32 v29, v28, 1, 3")
            a("v_xor_b32 v29, v29, v27")
            a("v_lshlrev_b32 v29, 4, v29")
            a("v_lshl_add_u32 v29, v28, 7, v29")
            a("v_add_u32 v29, %d, v29" % LSTG)
            a.lds("ds_read_b128 %s, v29" % vr(PK + 4 * i, 4), "pk")
        a("v_lshlrev_b32 v27, 4, v27")
        a("v_lshl_add_u32 v152, v26, 12, v27")

    def p0_store(self):
        a = self.a
        PK = 144
        a("s_lshl_b32 s%d, s%d, 18" % (sA, sC))
        a("s_lshl_b32 s%d, s%d, 7" % (sB, sR))
        a("s_add_u32 s%d, s%d, s%d" % (sA, sA, sB))
        a("s_add_u32 s%d, s%d, 0x%x" % (sA, sA, WS_KVT))
        a("s_add_u32 s%d, s%d, 0x8000" % (sB, sA))
        a.wait_lg("pk")
        a.vmem("buffer_store_dwordx4 %s, v152, %s, s%d offen sc1" % (vr(PK, 4), sr(S_WS, 4), sA), "kvt")
        a.vmem("buffer_store_dwordx4 %s, v152, %s, s%d offen sc1" % (vr(PK + 4, 4), sr(S_WS, 4), sB), "kvt")

    def conv_filter_loads(self, ch):
        a = self.a
        a("v_lshlrev_b32 v26, 4, v%d" % vTID)
        a("v_subrev_u32 v27, 8, v26")
        a("v_mov_b32 v28, 0x%x" % OOB)
        a("v_cmp_eq_u32 vcc, 0, v%d" % vTID)
        a("v_cndmask_b32 v27, v27, v28, vcc")
        a("s_lshl_b32 s%d, s2, 13" % sA)
        if ch:
            a("s_add_u32 s%d, s%d, 0x1000" % (sA, sA))
        dA, dP = vr(vCH, 4), vr(vCH + 4, 2)
        a.vmem("buffer_load_dwordx4 %s, v26, %s, s%d offen" % (dA, sr(S_SSM, 4), sA), "cf")
        a.vmem("buffer_load_dwordx2 %s, v27, %s, s%d offen" % (dP, sr(S_SSM, 4), sA), "cf")

    def ssm_d_load(self):
        a = self.a
        a("s_lshl_b32 s%d, s2, 2" % sA)
        a("s_load_dword s%d, %s, s%d" % (sD0, sr(S_DPTR, 2), sA))

    def ssm_d_unpack(self):
        a = self.a
        a("s_and_b32 s%d, s%d, s%d" % (sD1, sD0, sHI))
        a("s_lshl_b32 s%d, s%d, 16" % (sD0, sD0))

    def conv_x_loads(self, ch):
        a = self.a
        a("v_lshlrev_b32 v26, 4, v%d" % vTID)
        a("s_lshl_b32 s%d, s2, 13" % sA)
        a("s_add_u32 s%d, s%d, 0x%x" % (sA, sA, WS_KVT + 0x1000 * ch))
        a.vmem("buffer_load_dwordx4 %s, v26, %s, s%d offen sc1" % (vr(vCH + 6, 4), sr(S_WS, 4), sA), "cx")

    def conv_prep_filter(self, ch):
        a = self.a
        base = CV_BASE1 if ch else CV_BASE
        A, P = vCH, vCH + 4
        a.wait_vm("cf")
        a("v_min_u32 v26, 79, v%d" % vTID)
        a("v_subrev_u32 v27, 72, v26")
        a("v_lshrrev_b32 v28, 1, v27")
        a("v_mul_u32_u24 v28, 4128, v28")
        a("v_and_b32 v27, 1, v27")
        a("v_lshl_add_u32 v28, v27, 4, v28")
        a("v_add_u32 v28, %d, v28" % (base + CV_A))
        a("v_lshlrev_b32 v27, 4, v26")
        a("v_add_u32 v27, %d, v27" % (base + CV_X))
        a("v_cmp_gt_u32 vcc, 72, v26")
        a("v_cndmask_b32 v28, v28, v27, vcc")
        for i in range(4):
            a("v_mov_b32 v%d, 0" % (32 + i))
        a.lds("ds_write_b128 v28, %s" % vr(32, 4))
        Z, Y, W = 36, 40, 44
        seq = [P, P + 1, A, A + 1, A + 2, A + 3]
        for j in range(4):
            a("v_alignbit_b32 v%d, v%d, v%d, 16" % (Z + j, seq[j + 1], seq[j]))
            a("v_alignbit_b32 v%d, v%d, v%d, 16" % (Y + j, seq[j + 2], seq[j + 1]))
            a("v_mov_b32 v%d, v%d" % (W + j, seq[j + 1]))
        a("v_lshlrev_b32 v29, 4, v%d" % vTID)
        a("v_add_u32 v29, %d, v29" % base)
        for rho, src in ((0, A), (1, Y), (2, W), (3, Z)):
            a.lds("ds_write_b128 v29, %s offset:%d" % (vr(src, 4), CV_A + 32 + 4128 * rho))
        a.wait_lg_all()

    def conv_x_write(self, ch):
        a = self.a
        base = CV_BASE1 if ch else CV_BASE
        a.wait_vm("cx")
        a("v_lshlrev_b32 v29, 4, v%d" % vTID)
        a("v_add_u32 v29, %d, v29" % base)
        a.lds("ds_write_b128 v29, %s offset:%d" % (vr(vCH + 6, 4), CV_XD))
        a.wait_lg_all()

    def conv_poly(self, ch):
        a = self.a
        base = CV_BASE1 if ch else CV_BASE
        a("s_lshl_b32 s%d, s%d, 5" % (sA, sW))
        a("s_sub_u32 s%d, %d, s%d" % (sA, base + CV_XD - 1024, sA))
        a("v_lshl_add_u32 v26, v%d, 3, s%d" % (vL, sA))
        for u in range(10):
            a.lds("ds_read_b64_tr_b16 %s, v26 offset:%d" % (vr(32 + 2 * u, 2), 512 * u), "u%d" % u)
        a("s_mul_i32 s%d, s%d, 5312" % (sA, sW))
        a("s_add_u32 s%d, s%d, %d" % (sA, sA, base + CV_P))
        a("v_and_b32 v27, 15, v%d" % vL)
        a("v_mul_u32_u24 v27, 328, v27")
        a("v_lshrrev_b32 v28, 4, v%d" % vL)
        a("v_lshl_add_u32 v27, v28, 3, v27")
        a("v_add_u32 v27, s%d, v27" % sA)
        for u in range(10):
            a.wait_lg("u%d" % u)
            a.lds("ds_write_b64 v27, %s offset:%d" % (vr(32 + 2 * u, 2), 32 * u))
        a.wait_lg_all()

    def conv_addr(self, ch):
        a = self.a
        base = CV_BASE1 if ch else CV_BASE
        a("s_lshl_b32 s%d, s%d, 4" % (sA, sTH))
        a("s_sub_u32 s%d, %d, s%d" % (sA, base + CV_A + 24, sA))
        a("v_lshl_add_u32 v160, v%d, 3, s%d" % (vL, sA))
        a("s_mul_i32 s%d, s%d, 2624" % (sA, sTH))
        a("s_lshl_b32 s%d, s%d, 5" % (sB, sKH))
        a("s_add_u32 s%d, s%d, s%d" % (sA, sA, sB))
        a("s_add_u32 s%d, s%d, %d" % (sA, sA, base + CV_P + 32))
        a("v_bfe_u32 v26, v%d, 2, 2" % vL)
        a("v_mul_u32_u24 v26, 5312, v26")
        a("v_and_b32 v27, 3, v%d" % vL)
        a("v_lshrrev_b32 v28, 4, v%d" % vL)
        a("v_sub_u32 v27, v27, v28")
        a("v_lshl_add_u32 v26, v27, 3, v26")
        a("v_add_u32 v161, s%d, v26" % sA)

    CACC, CAF, CBF = 32, 64, 96

    def conv_main(self, hook=None, fill_every=0):
        a = self.a
        CACC, CAF, CBF = self.CACC, self.CAF, self.CBF

        def rd_list(it):
            b = it & 1
            u, rho = it >> 2, it & 3
            out = []
            order = [("A", 0), ("B", 0), ("B", 1), ("B", 2), ("B", 3), ("A", 1), ("A", 2), ("A", 3)]
            for kind, i in order:
                for hf in range(2):
                    if kind == "A":
                        out.append(("ds_read_b64_tr_b16 %s, v160 offset:%d"
                                    % (vr(CAF + 16 * b + 4 * i + 2 * hf, 2),
                                       4128 * rho + 8 * (1 - u) + 1024 * i + 512 * hf), "A%d_%d" % (it, i)))
                    else:
                        out.append(("ds_read_b64_tr_b16 %s, v161 offset:%d"
                                    % (vr(CBF + 16 * b + 4 * i + 2 * hf, 2), 328 * it + 64 * i + 32 * (1 - hf)),
                                    "B%d_%d" % (it, i)))
            return out

        for x, t in rd_list(0):
            a.lds(x, t)
        for it in range(8):
            if hook and it % 2 == 0:
                hook(it // 2)
            b = it & 1
            nxt = rd_list(it + 1) if it < 7 else []
            k = 0
            for q in range(4):
                for i in range(4 - q):
                    a.wait_lg("A%d_%d" % (it, q), "B%d_%d" % (it, i))
                    acc = vr(CACC + 4 * (i + q), 4)
                    a("%s %s, %s, %s, %s" % (MF16, acc, vr(CAF + 16 * b + 4 * q, 4), vr(CBF + 16 * b + 4 * i, 4),
                                             "0" if (it == 0 and q == 0) else acc))
                    for _ in range(2 if k < 6 else 1):
                        if nxt:
                            x, t = nxt.pop(0)
                            a.lds(x, t)
                    k += 1
            assert not nxt

    def conv_finish(self, ch):
        a = self.a
        base = CV_BASE1 if ch else CV_BASE
        CACC = self.CACC
        self.barrier()
        a("s_lshl_b32 s%d, s%d, 11" % (sA, sW))
        a("s_add_u32 s%d, s%d, %d" % (sA, sA, base + CV_R))
        a("v_add_u32 v26, s%d, v%d" % (sA, vL16))
        hi, done = a.newlabel("cvhi"), a.newlabel("cvsent")
        self.hold += 1
        a("s_cmp_lg_u32 s%d, 0" % sTH)
        a("s_cbranch_scc1 %s" % hi)
        for j in range(2):
            a("ds_write_b128 v26, %s offset:%d" % (vr(CACC + 8 + 4 * j, 4), 1024 * j))
        a("s_branch %s" % done)
        a.label(hi)
        for j in range(2):
            a("ds_write_b128 v26, %s offset:%d" % (vr(CACC + 4 * j, 4), 1024 * j))
        a.label(done)
        self.hold -= 1
        a("s_lshl_b32 s%d, s%d, 2" % (sE, sTH))
        a("s_add_u32 s%d, s%d, s%d" % (sE, sE, sKH))
        a("s_lshl_b32 s%d, s%d, 9" % (sE, sE))
        a("s_add_u32 s%d, s%d, %d" % (sA, sE, base + CV_XD))
        a("v_and_b32 v27, 15, v%d" % vL)
        a("v_lshlrev_b32 v27, 5, v27")
        a("v_lshrrev_b32 v28, 4, v%d" % vL)
        a("v_lshl_add_u32 v27, v28, 3, v27")
        a("v_add_u32 v27, s%d, v27" % sA)
        for u in range(2):
            a.lds("ds_read_b64 %s, v27 offset:%d" % (vr(100 + 2 * u, 2), 1024 * u))
        a.wait_lg_all()
        self.barrier()
        a("s_xor_b32 s%d, s%d, 2" % (sA, sW))
        a("s_lshl_b32 s%d, s%d, 11" % (sA, sA))
        a("s_add_u32 s%d, s%d, %d" % (sA, sA, base + CV_R))
        a("v_add_u32 v26, s%d, v%d" % (sA, vL16))
        for u in range(2):
            a.lds("ds_read_b128 %s, v26 offset:%d" % (vr(72 + 4 * u, 4), 1024 * u))
        for u in range(2):
            for j in range(2):
                a("v_lshlrev_b32 v%d, 16, v%d" % (104 + 4 * u + 2 * j, 100 + 2 * u + j))
                a("v_and_b32 v%d, s%d, v%d" % (105 + 4 * u + 2 * j, sHI, 100 + 2 * u + j))
        a("v_mov_b32 v112, s%d" % (sD1 if ch else sD0))
        a("v_lshrrev_b32 v26, 4, v%d" % vL)
        a("v_and_b32 v27, 1, v26")
        a("v_lshlrev_b32 v27, 10, v27")
        a("v_lshrrev_b32 v26, 1, v26")
        a("v_lshl_add_u32 v27, v26, 4, v27")
        a("v_and_b32 v26, 15, v%d" % vL)
        a("v_lshl_add_u32 v27, v26, 5, v27")
        a("v_add_u32 v27, s%d, v27" % sE)
        a("s_lshl_b32 s%d, s2, 13" % sA)
        a("s_add_u32 s%d, s%d, 0x%x" % (sA, sA, WS_YT + 0x1000 * ch))
        a.wait_lg_all()
        hi, done = a.newlabel("cvhi"), a.newlabel("cvsum")
        self.hold += 1
        a("s_cmp_lg_u32 s%d, 0" % sTH)
        a("s_cbranch_scc1 %s" % hi)
        for p in range(4):
            a("v_pk_add_f32 %s, %s, %s" % (vr(64 + 2 * p, 2), vr(CACC + 2 * p, 2), vr(72 + 2 * p, 2)))
        a("s_branch %s" % done)
        a.label(hi)
        for p in range(4):
            a("v_pk_add_f32 %s, %s, %s" % (vr(64 + 2 * p, 2), vr(CACC + 8 + 2 * p, 2), vr(72 + 2 * p, 2)))
        a.label(done)
        self.hold -= 1
        for p in range(4):
            a("v_pk_fma_f32 %s, %s, %s, %s op_sel_hi:[1,0,1]" % (vr(64 + 2 * p, 2), vr(104 + 2 * p, 2), vr(112, 2),
                                                                vr(64 + 2 * p, 2)))
        for p in range(4):
            a("v_cvt_pk_bf16_f32 v%d, v%d, v%d" % (116 + p, 64 + 2 * p, 65 + 2 * p))
        a("v_permlane16_swap_b32 v116, v118")
        a("v_permlane16_swap_b32 v117, v119")
        a.vmem("buffer_store_dwordx4 %s, v27, %s, s%d offen sc1" % (vr(116, 4), sr(S_WS, 4), sA), "yt")

    def s2_load_items(self):
        a = self.a
        a("s_lshl_b32 s%d, s%d, 5" % (sA, sT))
        a("v_add_u32 v26, s%d, v%d" % (sA, vN31))
        a("s_add_u32 s%d, s%d, 1" % (sB, sKH))
        a("s_lshl_b32 s%d, s%d, 14" % (sA, sKH))
        a("s_add_u32 s%d, s%d, 0x%x" % (sA, sA, WS_HS))
        a("v_mov_b32 v29, 0x%x" % OOB)
        for i, op in enumerate(("v_subrev_u32", "v_add_u32")):
            a("%s v27, s%d, v26" % (op, sB))
            a("v_lshrrev_b32 v28, 5, v27")
            a("v_lshlrev_b32 v28, 15, v28")
            a("v_and_b32 v30, 31, v27")
            a("v_lshl_add_u32 v30, v%d, 5, v30" % vHH)
            a("v_lshl_add_u32 v28, v30, 4, v28")
            a("v_add_u32 v28, s%d, v28" % sA)
            a("v_cmp_gt_u32 vcc, 0x800, v27")
            a("v_cndmask_b32 v%d, v29, v28, vcc" % (140 + i))
        so = ["0", "s%d" % sK4, "s%d" % sK8, "s%d" % sK12]
        items = []
        for ks in range(16):
            def f(ks=ks):
                a.vmem("buffer_load_dwordx4 %s, v%d, %s, %s offen offset:%d sc1"
                       % (ar(4 * ks, 4), 140 + (ks >> 3), sr(S_WS, 4), so[ks >> 2], (ks & 3) * 1024), "h%d" % ks)
            items.append(f)
        return items

    def wpi_addr(self, vk, vs, base, khs, ps):
        a = self.a
        a("s_mul_i32 s%d, s%d, %d" % (sA, sKH, khs + ps))
        a("s_add_u32 s%d, s%d, %d" % (sA, sA, base))
        a("v_add_u32 v%d, s%d, v%d" % (vk, sA, vWP))
        a("s_mul_i32 s%d, s%d, %d" % (sA, sKH, khs - ps))
        a("s_add_u32 s%d, s%d, %d" % (sA, sA, base + ps))
        a("v_add_u32 v%d, s%d, v%d" % (vs, sA, vWP))

    def s2_main(self):
        a = self.a
        ACK, ACS, AK, AS = self.ACK, self.ACS, self.AK, self.AS

        def rd(ks, which):
            base, addr = ((AK, 128), (AS, 129))[which]
            for hf in range(2):
                a.lds("ds_read_b64_tr_b16 %s, v%d offset:%d" % (vr(base + 4 * (ks & 1) + 2 * hf, 2), addr,
                                                                ks * 1024 + hf * 512), "f%d_%d" % (ks, which))
        rd(0, 0)
        rd(0, 1)
        for ks in range(16):
            b = ks & 1
            a.wait_both("h%d" % ks, "f%d_0" % ks)
            a("%s %s, %s, %s, %s" % (MF32, vr(ACK, 16), vr(AK + 4 * b, 4), ar(4 * ks, 4), "0" if ks == 0 else vr(ACK, 16)))
            if ks < 15:
                rd(ks + 1, 0)
            self.fill(1)
            a.wait_lg("f%d_1" % ks)
            a("%s %s, %s, %s, %s" % (MF32, vr(ACS, 16), vr(AS + 4 * b, 4), ar(4 * ks, 4), "0" if ks == 0 else vr(ACS, 16)))
            if ks < 15:
                rd(ks + 1, 1)
            if ks in (0, 4, 9, 12):
                self.stamp("s2k%d" % ks)

    def unpack8(self, src, dst):
        a = self.a
        for j in range(8):
            a("v_lshlrev_b32 v%d, 16, v%d" % (dst + 2 * j, src + j))
            a("v_and_b32 v%d, s%d, v%d" % (dst + 2 * j + 1, sHI, src + j))

    def xn_tile(self, dst):
        a = self.a
        self.unpack8(vQ, dst)
        for p in range(8):
            a("v_pk_add_f32 %s, %s, %s op_sel_hi:[1,0] neg_lo:[0,1] neg_hi:[0,1]"
              % (vr(dst + 2 * p, 2), vr(dst + 2 * p, 2), vr(vMEAN, 2)))
        for p in range(8):
            a("v_pk_mul_f32 %s, %s, %s op_sel:[0,1] op_sel_hi:[1,1]"
              % (vr(dst + 2 * p, 2), vr(dst + 2 * p, 2), vr(vMEAN, 2)))

    def s2_epilogue(self, after_exchange):
        a = self.a
        ACK, ACS = self.ACK, self.ACS
        self.exchange_write(ACS)
        self.xn_tile(96)
        a.wait_lg_all()
        self.barrier()
        after_exchange()
        self.exchange_read(80)
        for p in range(8):
            a("v_pk_add_f32 %s, %s, %s" % (vr(ACK + 2 * p, 2), vr(ACK + 2 * p, 2), vr(96 + 2 * p, 2)))
        a.wait_lg_all()
        for p in range(8):
            a("v_pk_add_f32 %s, %s, %s" % (vr(ACK + 2 * p, 2), vr(ACK + 2 * p, 2), vr(80 + 2 * p, 2)))
        for p in range(8):
            a("v_cvt_pk_bf16_f32 v%d, v%d, v%d" % (vX1 + p, ACK + 2 * p, ACK + 2 * p + 1))
        self.frag_store(vX1, WS_X1, "x1st")
        a("v_pk_mul_f32 %s, %s, %s" % (vr(112, 2), vr(ACK, 2), vr(ACK, 2)))
        a("v_pk_add_f32 %s, %s, %s" % (vr(114, 2), vr(ACK, 2), vr(ACK + 2, 2)))
        for p in range(1, 8):
            a("v_pk_fma_f32 %s, %s, %s, %s" % (vr(112, 2), vr(ACK + 2 * p, 2), vr(ACK + 2 * p, 2), vr(112, 2)))
            if p >= 2:
                a("v_pk_add_f32 %s, %s, %s" % (vr(114, 2), vr(114, 2), vr(ACK + 2 * p, 2)))
        a("v_add_f32 v114, v114, v115")
        a("v_add_f32 v112, v112, v113")
        a("v_permlane32_swap_b32 v114, v112")
        a("v_add_f32 v114, v114, v112")
        a("s_lshl_b32 s%d, s%d, 1" % (sA, sC))
        a("s_add_u32 s%d, s%d, s%d" % (sA, sA, sKH))
        a("s_lshl_b32 s%d, s%d, 14" % (sA, sA))
        a("s_lshl_b32 s%d, s%d, 7" % (sB, sT))
        a("s_add_u32 s%d, s%d, s%d" % (sA, sA, sB))
        a("s_add_u32 s%d, s%d, 0x%x" % (sA, sA, WS_ST))
        a("v_lshlrev_b32 v26, 13, v%d" % vHH)
        a("v_lshl_add_u32 v26, v%d, 2, v26" % vN31)
        a.vmem("buffer_store_dword v114, v26, %s, s%d offen sc1" % (sr(S_WS, 4), sA), "x1st")

    def w3_setup(self):
        a = self.a
        a("s_movk_i32 s%d, 3584" % sB)
        a("v_lshrrev_b32 v26, 2, v%d" % vL)
        a("v_mul_lo_u32 v26, v26, s%d" % sB)
        a("v_and_b32 v27, 3, v%d" % vL)
        a("v_lshl_add_u32 v%d, v27, 4, v26" % vW3F)
        a("v_lshrrev_b32 v26, 1, v%d" % vL)
        a("v_mul_lo_u32 v26, v26, s%d" % sB)
        a("v_and_b32 v27, 1, v%d" % vL)
        a("v_lshl_add_u32 v%d, v27, 4, v26" % vW3H)
        a("s_mul_i32 s%d, s%d, %d" % (sW3HG, sW, 128 * 3584))
        a("s_mul_i32 s%d, s%d, 224" % (sA, sCP))
        a("s_add_u32 s%d, s%d, s%d" % (sW3HG, sW3HG, sA))
        a("s_and_b32 s%d, s%d, 1" % (sB, sCP))
        a("s_lshl_b32 s%d, s%d, 5" % (sW3G, sB))
        a("s_add_u32 s%d, s%d, s%d" % (sW3G, sW3G, sW3HG))
        a("s_xor_b32 s%d, s%d, 1" % (sB, sB))
        a("s_mul_i32 s%d, s%d, 192" % (sB, sB))
        a("s_add_u32 s%d, s%d, s%d" % (sW3HG, sW3HG, sB))
        a("s_lshl_b32 s%d, s%d, 13" % (sW3L, sW))
        a("s_lshl_b32 s%d, s%d, 12" % (sW3HL, sW))

    def w3_items(self, panels):
        out = []
        for p in panels:
            if p < 3:
                for i in range(8):
                    out.append(self.dma_item(S_W3, vW3F, sW3L, W3_P + p * 32768 + i * 1024, sW3G,
                                             p * 64 + i * 16 * 3584, "w3"))
            else:
                for i in range(4):
                    out.append(self.dma_item(S_W3, vW3H, sW3HL, W3_H + i * 1024, sW3HG, i * 32 * 3584, "w3"))
        return out

    def s3_load_items(self):
        a = self.a
        a("s_lshl_b32 s%d, s%d, 15" % (sLD, sT3))
        a("s_add_u32 s%d, s%d, 0x%x" % (sLD, sLD, WS_X1))
        items = []
        for ks in range(32):
            def f(ks=ks):
                if ks and ks % 4 == 0:
                    a("s_add_u32 s%d, s%d, 0x1000" % (sLD, sLD))
                a.vmem("buffer_load_dwordx4 %s, v%d, %s, s%d offen offset:%d sc1"
                       % (ar(4 * (ks % 16), 4), vL16, sr(S_WS, 4), sLD, (ks & 3) * 1024), "x%d" % ks)
            items.append(f)
        return items

    def s3_stat_items(self):
        a = self.a
        a("v_lshlrev_b32 v147, 13, v%d" % vHH)
        a("v_lshl_add_u32 v147, v%d, 2, v147" % vN31)
        items = []
        for sl in range(16):
            def f(sl=sl):
                a("s_lshl_b32 s%d, s%d, 7" % (sSO, sT3))
                a("s_add_u32 s%d, s%d, 0x%x" % (sSO, sSO, WS_ST + 0x4000 * sl))
                a.vmem("buffer_load_dword v%d, v147, %s, s%d offen sc1" % (vST + sl, sr(S_WS, 4), sSO), "st")
            items.append(f)
        return items

    def s3_addr(self):
        a = self.a
        a("v_add_u32 v144, %d, v%d" % (W3_P, vWP))
        a("v_add_u32 v145, %d, v%d" % (W3_P + 65536, vWP))
        a("v_bfe_u32 v26, v%d, 2, 2" % vL)
        a("v_lshl_add_u32 v26, v%d, 2, v26" % vHH)
        a("v_and_b32 v27, 3, v%d" % vL)
        a("v_lshlrev_b32 v27, 3, v27")
        a("v_lshl_add_u32 v26, v26, 5, v27")
        a("v_add_u32 v146, %d, v26" % W3_H)

    @staticmethod
    def w3_read(p, ks, hf, dst):
        if p < 2:
            return "ds_read_b64_tr_b16 %s, v144 offset:%d" % (vr(dst, 2), p * 32768 + ks * 1024 + hf * 512)
        if p == 2:
            return "ds_read_b64_tr_b16 %s, v145 offset:%d" % (vr(dst, 2), ks * 1024 + hf * 512)
        return "ds_read_b64_tr_b16 %s, v146 offset:%d" % (vr(dst, 2), ks * 512 + hf * 256)

    def s3_colsum(self):
        self.hold += 1
        self._s3_colsum()
        self.hold -= 1

    def _s3_colsum(self):
        a = self.a
        full = a.newlabel("csfull")
        done = a.newlabel("csdone")
        self.selector(120)
        a("s_cmp_lt_u32 s%d, 3" % sW)
        a("s_cbranch_scc1 %s" % full)
        for is_full in (False, True):
            if is_full:
                a.label(full)
                a("s_lshl_b32 s%d, s%d, 15" % (sA, sW))
                a("v_add_u32 v148, s%d, v144" % sA)
            stride, hstep, addr = (1024, 512, 148) if is_full else (512, 256, 146)
            saved = list(a.lg)
            a.lg = []

            def rd(ks):
                for hf in range(2):
                    a.lds("ds_read_b64_tr_b16 %s, v%d offset:%d" % (vr(96 + 4 * (ks % 6) + 2 * hf, 2), addr,
                                                                    ks * stride + hf * hstep), "c%d" % ks)
            for ks in range(5):
                rd(ks)
            for ks in range(32):
                a.wait_lg("c%d" % ks)
                a("%s %s, %s, %s, %s" % (MF16, vr(32 + 4 * (ks & 1), 4), vr(96 + 4 * (ks % 6), 4), vr(120, 4),
                                         "0" if ks < 2 else vr(32 + 4 * (ks & 1), 4)))
                if ks + 5 < 32:
                    rd(ks + 5)
            a.lg = saved
            if not is_full:
                a("s_branch %s" % done)
        a.label(done)
        a("v_pk_add_f32 v[32:33], v[32:33], v[36:37]")
        a("v_pk_add_f32 v[34:35], v[34:35], v[38:39]")
        a("s_lshl_b32 s%d, s%d, 7" % (sA, sW))
        a("s_add_u32 s%d, s%d, %d" % (sA, sA, LCS3))
        self.colsum_write(32, sA)
        a.wait_lg_all()

    S3G = 128

    def s3_shadow_ops(self):
        G = self.S3G
        ops = []
        for s in (8, 4, 2, 1):
            for i in range(s):
                ops.append("v_add_f32 v%d, v%d, v%d" % (vST + i, vST + i, vST + i + s))
        ops += ["v_mov_b32 v%d, v%d" % (vST + 1, vST),
                "v_lshlrev_b32 v28, 4, v%d" % vHH,
                "v_add_u32 v149, %d, v28" % LCS3,
                "v_permlane32_swap_b32 v%d, v%d" % (vST, vST + 1),
                "s_mul_i32 s%d, s%d, 114688" % (sD, sT3),
                "v_mul_f32 v%d, s%d, v%d" % (vST + 2, s512I, vST),
                "s_mul_i32 s%d, s%d, 7168" % (sA, sCP),
                "v_mul_f32 v26, s%d, v%d" % (s512I, vST + 1),
                "s_add_u32 s%d, s%d, s%d" % (sD, sD, sA),
                "v_fma_f32 v26, -v%d, v%d, v26" % (vST + 2, vST + 2),
                "s_add_u32 s%d, s%d, 0x%x" % (sD, sD, WS_HH),
                "v_max_f32 v26, 0, v26",
                "s_and_b32 s%d, s%d, 1" % (sB, sCP),
                "v_add_f32 v26, s%d, v26" % sEPS,
                "s_lshl_b32 s%d, s%d, 10" % (sE, sB),
                "v_rsq_f32 v27, v26",
                "s_add_u32 s%d, s%d, s%d" % (sE, sE, sD),
                "v_sub_f32 v%d, 0, v%d" % (G + 4, vST + 2),
                "s_xor_b32 s%d, s%d, 1" % (sB, sB),
                "v_mul_f32 v%d, s%d, v27" % (G, sKG1),
                "s_mul_i32 s%d, s%d, 6144" % (sB, sB),
                "v_mul_f32 v%d, v27, v27" % (G + 1),
                "s_add_u32 s%d, s%d, s%d" % (sF, sD, sB),
                "v_mul_f32 v%d, v%d, v27" % (G + 1, G + 1),
                "v_mul_f32 v%d, s%d, v%d" % (G + 1, sKG3, G + 1),
                "v_rcp_f32 v%d, v27" % (G + 2)]
        return ops

    def s3_csread(self, p):
        a = self.a
        n = 16 if p < 3 else 8
        for j in range(n // 4):
            a.lds("ds_read_b128 %s, v149 offset:%d" % (vr(96 + 16 * (p & 1) + 4 * j, 4), 128 * p + 32 * j), "cs%d" % p)

    def s3_main(self, mid):
        a = self.a
        AF = 96
        shadow = self.s3_shadow_ops() if self.opt.get("s3sh", 1) else []
        self.s3_left = shadow
        first = self.opt.get("s3sh0", 24)

        def rd(ks, p):
            for hf in range(2):
                a.lds(self.w3_read(p, ks, hf, AF + 16 * (ks & 1) + 4 * p + 2 * hf), "f%d_%d" % (ks, p))
        for p in range(4):
            rd(0, p)
        for ks in range(32):
            b = ks & 1
            if ks == first and shadow:
                a.wait_vm("st")
            for p in range(4):
                if p == 0:
                    a.wait_both("x%d" % ks, "f%d_0" % ks)
                else:
                    a.wait_lg("f%d_%d" % (ks, p))
                acc = vr(32 + 16 * p, 16)
                a("%s %s, %s, %s, %s" % (MF32, acc, vr(AF + 16 * b + 4 * p, 4), ar(4 * (ks % 16), 4),
                                         "0" if ks == 0 else acc))
                if ks < 31:
                    rd(ks + 1, p)
                if p in (0, 2):
                    self.fill(1)
                if ks >= first:
                    for _ in range(2):
                        if shadow:
                            a(shadow.pop(0))
            if ks == self.opt.get("s3mid", 18):
                mid()
            if ks in (7, 15, 23) and self.opt.get("s3st", 0):
                self.stamp("s3k%d" % ks)

    def s3_epilogue(self, after_tile):
        a = self.a
        G = self.S3G
        if not self.opt.get("s3sh", 1):
            a.wait_vm("st")
            self.s3_left = self.s3_shadow_ops()
        for x in self.s3_left:
            a(x)
        csread = self.s3_csread
        csread(0)
        for p in range(4):
            n = 16 if p < 3 else 8
            C = 96 + 16 * (p & 1)
            if p < 3:
                csread(p + 1)
            a.wait_lg("cs%d" % p)
            acc = 32 + 16 * p
            for i in range(n // 2):
                a("v_pk_fma_f32 %s, %s, %s, %s op_sel_hi:[1,0,1]"
                  % (vr(acc + 2 * i, 2), vr(C + 2 * i, 2), vr(G + 4, 2), vr(acc + 2 * i, 2)))
            out = 152 + 8 * (p & 1)
            self.gelu(acc, n, G, G + 2, 176, out, fills=0)
            if p < 3:
                a("s_add_u32 s%d, s%d, %d" % (sA, sE, 2048 * p))
                a.vmem("buffer_store_dwordx4 %s, v%d, %s, s%d offen sc1" % (vr(out, 4), vL16, sr(S_WS, 4), sA), "Hst")
                a.vmem("buffer_store_dwordx4 %s, v%d, %s, s%d offen offset:1024 sc1"
                       % (vr(out + 4, 4), vL16, sr(S_WS, 4), sA), "Hst")
            else:
                a.vmem("buffer_store_dwordx4 %s, v%d, %s, s%d offen sc1" % (vr(out, 4), vL16, sr(S_WS, 4), sF), "Hst")
            after_tile(p)

    def w4_setup(self):
        a = self.a
        a("s_lshl_b32 s%d, s%d, 11" % (sW4L, sKH))
        a("s_lshl_b32 s%d, s%d, 10" % (sA, sTH))
        a("s_add_u32 s%d, s%d, s%d" % (sW4L, sW4L, sA))
        a("s_mul_i32 s%d, s%d, %d" % (sW4G, sKH, 896 * 1024))
        self.feat0(sA, sTH, 1)
        a("s_add_u32 s%d, s%d, s%d" % (sW4G, sW4G, sA))
        for i in range(8):
            if self.opt.get("rot4", 0):
                a("s_add_u32 s%d, s%d, %d" % (sA, sC, i))
                a("s_and_b32 s%d, s%d, 7" % (sA, sA))
                a("s_mul_i32 s%d, s%d, %d" % (sA, sA, 7 * 16384))
                a("s_add_u32 s%d, s%d, s%d" % (self.SW4B + i, sW4G, sA))
            else:
                a("s_add_u32 s%d, s%d, %d" % (self.SW4B + i, sW4G, i * 7 * 16384))

    SW4B = 12
    W4R = 56

    def w4_reg_loads(self, ks0, ks1):
        def item(ks):
            def f():
                a = self.a
                a("s_add_u32 s%d, s%d, %d" % (sSO, self.SW4B + ks // 7, (ks % 7) * 16384))
                a.vmem("buffer_load_dwordx4 %s, v%d, %s, s%d offen" % (vr(self.W4R + 4 * (ks - W4_B), 4), vW64,
                                                                     sr(S_W4, 4), sSO), "w4r")
                a.check_vm_depth()
            return f
        return [item(ks) for ks in range(ks0, ks1)]

    def w4_reg_writes(self, ks0, ks1):
        def f():
            a = self.a
            a.wait_vm("w4r")
            for i in range(3):
                a("v_add_u32 v%d, s%d, v%d" % (28 + i, sW4L, vL16))
                if i:
                    a("v_add_u32 v%d, %d, v%d" % (28 + i, 65536 * i, 28 + i))
            for ks in range(ks0, ks1):
                off = w4_off(ks)
                if self.opt.get("x_nowr", 0):
                    continue
                a.lds("ds_write_b128 v%d, %s offset:%d" % (28 + off // 65536, vr(self.W4R + 4 * (ks - W4_B), 4),
                                                           off % 65536))
                pace = self.opt.get("wpace", 0)
                if pace and (ks - ks0) % pace == pace - 1:
                    a.wait_lg_all()
            a.wait_lg_all()
        return f

    def w4_items(self, ks0, ks1, tag):
        return [self.dma_item(S_W4, vW64, sW4L, w4_off(ks), self.SW4B + ks // 7, (ks % 7) * 16384, tag)
                for ks in range(ks0, ks1)]

    def hring(self, ks):
        n = self.opt.get("hring", 24)
        i = ks % n
        return ar(4 * i, 4) if i < 16 else vr(64 + 4 * (i - 16), 4)

    def s4_load_items(self):
        a = self.a
        a("s_mul_i32 s%d, s%d, %d" % (sLD, sT, 0 if self.opt.get("x_hot", 0) else 114688))
        a("s_mul_i32 s%d, s%d, %d" % (sB, sKH, 56 * 1024))
        a("s_add_u32 s%d, s%d, s%d" % (sLD, sLD, sB))
        a("s_add_u32 s%d, s%d, 0x%x" % (sLD, sLD, WS_HH))
        items = []
        for ks in range(56):
            def f(ks=ks):
                i, t = divmod(ks, 7)
                if t == 0:
                    if self.opt.get("rot4", 0):
                        a("s_add_u32 s%d, s%d, %d" % (sW4L, sC, i))
                        a("s_and_b32 s%d, s%d, 7" % (sW4L, sW4L))
                        a("s_mul_i32 s%d, s%d, 7168" % (sW4L, sW4L))
                        a("s_add_u32 s%d, s%d, s%d" % (sW4L, sW4L, sLD))
                    else:
                        a("s_add_u32 s%d, s%d, %d" % (sW4L, sLD, i * 7168))
                if t == 4:
                    a("s_add_u32 s%d, s%d, 0x1000" % (sW4L, sW4L))
                a.vmem("buffer_load_dwordx4 %s, v%d, %s, s%d offen offset:%d sc1"
                       % (self.hring(ks), vL16, sr(S_WS, 4), sW4L, (t & 3) * 1024), "H%d" % ks)
                a.check_vm_depth()
            items.append(f)
        return items

    Y_LDS = 49152

    def s4_y_loads(self):
        a = self.a
        self.feat0(sE, sKH, 12)
        a("s_lshl_b32 s%d, s%d, 6" % (sB, sT))
        a("s_add_u32 s%d, s%d, s%d" % (sE, sE, sB))
        a("s_add_u32 s%d, s%d, 0x%x" % (sE, sE, WS_YT))
        a("s_add_u32 s%d, s%d, 0x10000" % (sB, sE))
        a("v_lshrrev_b32 v147, 2, v%d" % vL)
        a("v_lshlrev_b32 v147, 12, v147")
        a("v_and_b32 v26, 3, v%d" % vL)
        a("v_lshl_add_u32 v147, v26, 4, v147")
        a.vmem("buffer_load_dwordx4 %s, v147, %s, s%d offen sc1" % (vr(vST, 4), sr(S_WS, 4), sE), "y")
        a.vmem("buffer_load_dwordx4 %s, v147, %s, s%d offen sc1" % (vr(vST + 4, 4), sr(S_WS, 4), sB), "y")

    def s4_y_write(self):
        a = self.a
        a.wait_vm("y")
        a("s_lshl_b32 s%d, s%d, 11" % (sB, sW))
        a("s_add_u32 s%d, s%d, %d" % (sB, sB, self.Y_LDS))
        a("v_add_u32 v147, s%d, v%d" % (sB, vL16))
        a.lds("ds_write_b128 v147, %s" % vr(vST, 4), "yw")
        a.lds("ds_write_b128 v147, %s offset:1024" % vr(vST + 4, 4), "yw")
        a("v_add_u32 v147, s%d, v%d" % (sB, vWP))

    def s4_y_read(self):
        a = self.a
        a.wait_lg("yw")
        for q in range(4):
            a.lds("ds_read_b64_tr_b16 %s, v147 offset:%d" % (vr(vST + 8 + 2 * q, 2), 512 * q), "yr")

    XN4, BASE4 = 112, 148

    def s4_shadow_ops(self):
        XN, B = self.XN4, self.BASE4
        pre, post = [], []
        for j in range(8):
            pre.append("v_lshlrev_b32 v%d, 16, v%d" % (XN + 2 * j, vQ + j))
            pre.append("v_and_b32 v%d, s%d, v%d" % (XN + 2 * j + 1, sHI, vQ + j))
            pre.append("v_lshlrev_b32 v%d, 16, v%d" % (B + 2 * j, vX1 + j))
            pre.append("v_and_b32 v%d, s%d, v%d" % (B + 2 * j + 1, sHI, vX1 + j))
        for r in range(16):
            pre.append("v_add_f32 v%d, v%d, v%d" % (B + r, B + r, XN + r))
            pre.append("v_sub_f32 v%d, v%d, v%d" % (XN + r, XN + r, vMEAN))
            pre.append("v_mul_f32 v%d, v%d, v%d" % (XN + r, XN + r, vR1))
        for j in range(8):
            post.append("v_lshlrev_b32 v164, 16, v%d" % (vST + 8 + j))
            post.append("v_and_b32 v165, s%d, v%d" % (sHI, vST + 8 + j))
            post.append("v_fmac_f32 v%d, v%d, v164" % (B + 2 * j, XN + 2 * j))
            post.append("v_fmac_f32 v%d, v%d, v165" % (B + 2 * j + 1, XN + 2 * j + 1))
        return pre, post

    def s4_out_addr(self):
        a = self.a
        a("s_lshl_b32 s%d, s%d, 15" % (sE, sT))
        self.feat0(sB, sKH, 1)
        a("s_add_u32 s%d, s%d, s%d" % (sE, sE, sB))
        a("v_lshlrev_b32 v146, 10, v%d" % vN31)
        a("v_lshl_add_u32 v146, v%d, 4, v146" % vHH)
        a("v_add_u32 v146, s%d, v146" % sE)

    def s4_addr(self):
        a = self.a
        self.wpi_addr(128, 131, 0, 2048, 1024)
        for i in (1, 2):
            a("v_add_u32 v%d, %d, v128" % (128 + i, 65536 * i))
            a("v_add_u32 v%d, %d, v131" % (131 + i, 65536 * i))

    def s4_main(self, hitems):
        a = self.a
        ACK, ACS, AK, AS = self.ACK, self.ACS, self.AK, self.AS

        def rd(ks, which):
            off = w4_off(ks)
            base, addr = ((AK, 128), (AS, 131))[which]
            for hf in range(2):
                a.lds("ds_read_b64_tr_b16 %s, v%d offset:%d"
                      % (vr(base + 4 * (ks & 1) + 2 * hf, 2), addr + off // 65536, off % 65536 + hf * 512),
                      "f%d_%d" % (ks, which))
        pre, post = self.s4_shadow_ops()
        yq = []
        f1, f2 = self.opt.get("f1", 10), self.opt.get("f2", 18)
        xb = self.opt.get("x_nobar", 0)
        if xb:
            self.h("s_endpgm")
        else:
            self.hact(self.w4_reg_writes(W4_B, W4_C))
        rd(0, 0)
        rd(0, 1)
        for ks in range(56):
            ahead = ks < 55
            b = ks & 1
            B = self.hring(ks)
            if self.opt.get("x_nowait", 0):
                a.wait_lg("f%d_0" % ks)
            else:
                a.wait_both("H%d" % ks, "f%d_0" % ks)
            a("%s %s, %s, %s, %s" % (MF32, vr(ACK, 16), vr(AK + 4 * b, 4), B, "0" if ks == 0 else vr(ACK, 16)))
            if ahead:
                rd(ks + 1, 0)
            if hitems and ks >= 1:
                hitems.pop(0)()
            a.wait_lg("f%d_1" % ks)
            a("%s %s, %s, %s, %s" % (MF32, vr(ACS, 16), vr(AS + 4 * b, 4), B, "0" if ks == 0 else vr(ACS, 16)))
            if ahead:
                rd(ks + 1, 1)
            for _ in range(self.opt.get("npre", 3)):
                if pre and ks >= 2:
                    a(pre.pop(0))
            if ks == self.opt.get("cvflag", 9):
                self.conv_wave_flag()
            if ks == 56 - W4_C - 1 and not xb:
                self.barrier()
                self.hact(self.w4_reg_writes(W4_C, 56))
            if ks == self.opt.get("ycheck", 34) - self.opt.get("ygap", 12) and not self.opt.get("x_noy", 0):
                self.idx_cv()
                self.poll_issue(F_CV, "pcv")
            if ks == self.opt.get("ycheck", 34) and not self.opt.get("x_noy", 0):
                self.poll_check("pcv", 4)
                self.s4_y_loads()
            if ks == self.opt.get("b2", 30) and not xb:
                self.barrier()
                if self.opt.get("barstamps", 0):
                    h = self.h
                    lab = h.newlabel("nobs")
                    h("s_cmp_lg_u32 s%d, 0" % sW)
                    h("s_cbranch_scc1 %s" % lab)
                    h("s_lshl_b32 s%d, s2, 8" % sA)
                    h("s_add_u32 s%d, s%d, 0x%x" % (sA, sA, WS_STAMP + 0x20000))
                    h("v_lshlrev_b32 v26, 2, v%d" % vL)
                    h("buffer_store_dword v55, v26, %s, s%d offen" % (sr(S_WS, 4), sA))
                    h("s_waitcnt vmcnt(0)")
                    h.label(lab)
                self.hact(self.nonce_update)
                self.hrun()
                self.h("s_endpgm")
            if not self.opt.get("x_noy", 0):
                if ks == self.opt.get("ywr", 46):
                    self.s4_y_write()
                if ks == self.opt.get("ywr", 46) + 2:
                    self.s4_y_read()
                if self.opt.get("yshadow", 5) and ks >= self.opt.get("ywr", 46) + 4 and post and not pre:
                    a.wait_lg("yr")
                    for _ in range(self.opt.get("yshadow", 5)):
                        if post:
                            a(post.pop(0))
            if ks in (8, 16, 27, 38, 47):
                self.stamp("s4k%d" % ks)
        for x in pre:
            a(x)
        assert not hitems
        self.s4_out_addr()
        self.s4_post = post

    def s4_epilogue(self):
        a = self.a
        ACK, ACS, B = self.ACK, self.ACS, self.BASE4
        self.exchange_write(ACS, S4_RED)
        a.wait_lg("yr")
        for x in self.s4_post:
            a(x)
        for p in range(8):
            a("v_pk_add_f32 %s, %s, %s" % (vr(ACK + 2 * p, 2), vr(ACK + 2 * p, 2), vr(B + 2 * p, 2)))
        a.wait_lg_all()
        a("s_barrier")
        self.exchange_read(80, S4_RED)
        a.wait_lg_all()
        for p in range(8):
            a("v_pk_add_f32 %s, %s, %s" % (vr(ACK + 2 * p, 2), vr(ACK + 2 * p, 2), vr(80 + 2 * p, 2)))
        for p in range(8):
            a("v_cvt_pk_bf16_f32 v%d, v%d, v%d" % (48 + p, ACK + 2 * p, ACK + 2 * p + 1))
        for j in (0, 4):
            a("v_permlane32_swap_b32 v%d, v%d" % (48 + j, 50 + j))
            a("v_permlane32_swap_b32 v%d, v%d" % (49 + j, 51 + j))
        a.vmem("buffer_store_dwordx4 %s, v146, %s, 0 offen" % (vr(48, 4), sr(S_OUT, 4)), "out")
        a.vmem("buffer_store_dwordx4 %s, v146, %s, 0 offen offset:32" % (vr(52, 4), sr(S_OUT, 4)), "out")

    def nonce_update(self):
        a = self.a
        self.hold += 1
        skip = a.newlabel("nonce")
        a("s_cmp_lg_u32 s2, 0")
        a("s_cbranch_scc1 %s" % skip)
        a("s_cmp_lg_u32 s%d, 0" % sW)
        a("s_cbranch_scc1 %s" % skip)
        saved = list(a.vm)
        for i in range(4):
            a("v_add_u32 v28, %d, v%d" % (64 * i, vL))
            a("v_lshlrev_b32 v28, 2, v28")
            self.poll_issue(F_P0, "pn")
            self.poll_check("pn", 6)
        a.vm = saved
        a("v_mov_b32 v26, 0")
        a("v_mov_b32 v27, s%d" % sN)
        a("s_mov_b64 exec, 1")
        a("buffer_store_dword v27, v26, %s, 0 offen sc1" % sr(S_WS, 4))
        a("s_mov_b64 exec, -1")
        a.label(skip)
        self.hold -= 1

    def finish(self):
        a = self.a
        a.wait_vm_all()
        if self.opt.get("delay", 0):
            lab = a.newlabel("delay")
            a("s_mov_b32 s%d, %d" % (sA, self.opt["delay"] // 64))
            a.label(lab)
            for _ in range(15):
                a("v_mov_b32 v26, v27")
            a("s_sub_u32 s%d, s%d, 1" % (sA, sA))
            a("s_cmp_lg_u32 s%d, 0" % sA)
            a("s_cbranch_scc1 %s" % lab)
        if self.opt.get("dbgtime", 0):
            a("s_memrealtime %s" % sr(sSTA, 2))
            a("s_memtime s[96:97]")
            a("s_waitcnt lgkmcnt(0)")
            a("s_sub_u32 s%d, s%d, s3" % (sSTA, sSTA))
            a("s_sub_u32 s96, s96, s98")
            a("v_mov_b32 v26, 0")
            a("v_mov_b32 v27, s%d" % sSTA)
            a("v_mov_b32 v28, s96")
            a("s_mov_b64 exec, 1")
            a("global_atomic_umax v26, v27, %s" % sr(S_DBG, 2))
            a("global_atomic_umax v26, v28, %s offset:4" % sr(S_DBG, 2))
            a("s_waitcnt vmcnt(0)")
            a("s_mov_b64 exec, -1")
        if self.stamps:
            self.stamp("end")
            skip = a.newlabel("nostamp")
            a("s_cmp_lg_u32 s%d, 0" % sW)
            a("s_cbranch_scc1 %s" % skip)
            if self.opt.get("dbgstamps", 0):
                lab = a.newlabel("nodbg")
                a("s_cmp_lg_u32 s2, %d" % (self.opt["dbgstamps"] - 1))
                a("s_cbranch_scc1 %s" % lab)
                a("v_readlane_b32 s%d, v%d, 0" % (sA, vSTAMP))
                a("v_subrev_u32 v27, s%d, v%d" % (sA, vSTAMP))
                a("v_lshlrev_b32 v26, 2, v%d" % vL)
                a("s_mov_b64 exec, 0xffff")
                a("global_store_dword v26, v27, %s" % sr(S_DBG, 2))
                a("s_mov_b64 exec, -1")
                a.label(lab)
            a("s_lshl_b32 s%d, s2, 8" % sA)
            a("s_add_u32 s%d, s%d, 0x%x" % (sA, sA, WS_STAMP))
            a("v_lshlrev_b32 v26, 2, v%d" % vL)
            a("buffer_store_dword v%d, v26, %s, s%d offen" % (vSTAMP, sr(S_WS, 4), sA))
            if self.opt.get("barstamps", 0):
                a("s_add_u32 s%d, s%d, 0x10000" % (sA, sA))
                a("buffer_store_dword v31, v26, %s, s%d offen" % (sr(S_WS, 4), sA))
            a("s_waitcnt vmcnt(0)")
            a.label(skip)
        a.label("L_end")
        a("s_endpgm")
        self.a.hook = None
        self.h.label("L_codeend")
        self.h("s_endpgm")
        self.a.ins += self.h.ins

    def nonce_load(self):
        a = self.a
        a("v_mov_b32 v26, 0")
        a.vmem("buffer_load_dword v30, v26, %s, 0 offen sc1" % sr(S_WS, 4), "nonce")

    def build(self):
        a = self.a
        o = self.opt
        H = self.hact
        self.prologue()
        H(self.loader_setup)
        if o.get("tcode", 1) == 1:
            H(self.touch_code)
        s1 = [f for st in range(4) for f in self.s1_stage_items(st)]
        n0, n1 = o.get("n0", 16), o.get("n1", 24)
        self.nonce_load()
        self.head_start()
        if o.get("kvp", 0) == 4:
            self.touch_kv(162, 163)
        self.page_touch()
        self.cold_touches()
        self.tr_addresses()
        self.s1_setup()

        def stage(st):
            kvp = o.get("kvp", 0)
            if st == 0:
                self.hacts(s1[:n0])
                if kvp == 1:
                    H(lambda: self.touch_kv(157, 158))
                self.hwait("s1_0")
            elif st == 1:
                if kvp == 2:
                    H(lambda: self.touch_kv(157, 158))
                self.hacts(s1[n0:n1])
                if kvp == 3:
                    H(lambda: self.touch_kv(157, 158))
                self.hwait("s1_1")
            else:
                self.hacts(s1[n1:])
                if o.get("apos", 0) == 0:
                    self.hstamp(4)
                    H(self.batch_a)
                    self.hstamp(5)
                self.hwait("s1_3")
            self.barrier()
            if st == 2:
                if o.get("apos", 0) == 1:
                    H(self.batch_a)
                H(self.nonce_load)
                H(self.tr_addresses)
                if o.get("hstat", 0):
                    H(self.s1_stats)
        self.a.comment("---- S1: p = q @ w1 on the raw q tile (row sums / squares and column sums of w1 alongside)")
        self.s1_main(stage)
        self.stamp("s1main")
        w2 = [self.dma_item(S_W2, vW64, sW2L, grp * 1024, sW2G, grp * 16384, "w2") for grp in range(16)]

        p0late = o.get("p0late", 1)
        w3 = self.w3_items([0, 1, 2, 3])
        cuts = [o.get("c%d" % i, d) for i, d in enumerate((0, 0, 0, 10, 10, 16))]

        def after_x1():
            H(self.w3_setup)
            self.hacts(w3[:cuts[0]])
            if not p0late:
                H(self.nonce_compute)
                H(self.kv_dma)
                H(self.p0_compute)
                H(lambda: self.a.wait_lg_all())
        self.a.comment("---- S1 epilogue: K-halves exchanged, LN(LN(q)) folded in as a * (p - mean * colsum), gelu, h fragments stored")
        self.s1_epilogue(after_x1)
        self.stamp("s1epi")
        self.a.comment("---- hand-off 1: h stores drain, flag, poll the producers of this wave's h fragments")
        self.nonce_compute()
        self.team_publish()
        self.wpi_addr(128, 129, LW, 16384, 32768)
        hitems = self.s2_load_items()
        a.wait_vm("hst")
        self.barrier()
        self.flag_store_rc(F_S1)
        self.stamp("s1flag")
        H(self.nonce_compute)
        H(self.kv_dma)
        self.hacts(w2[:o.get("w2a", 4)])
        self.hpaced(w2[o.get("w2a", 4):], o.get("iv2", 70), self.p0_compute)
        self.hacts(w3[cuts[0]:cuts[1]])
        H(lambda: self.a.wait_lg_all())
        self.idx_s1()
        self.barrier()
        H(self.p0_readback)
        H(self.p0_store)
        H(lambda: self.conv_filter_loads(0))
        self.hacts(w3[cuts[1]:cuts[2]])
        self.hwait("w2")
        self.poll_issue(F_S1, "ps1")
        self.poll_check("ps1", 2)
        self.stamp("s1poll")
        nh2 = o.get("nh2", 10)
        for f in hitems[:nh2]:
            f()
        self.barrier()
        self.stamp("hiss")
        H(self.p0_wave_flag)
        if o.get("bpos", 0) == 2:
            H(lambda: self.touch_chip("ssm"))
            H(lambda: self.touch_chip("w3"))
        self.hacts(w3[cuts[2]:cuts[3]])
        H(self.idx_p0)
        H(lambda: self.poll_issue(F_P0, "pp0"))
        self.fq = hitems[nh2:] + [self.team_load]
        self.a.comment("---- S2: shift(h) @ w2 (token shifts are in the load addresses)")
        self.s2_main()
        self.fill_all()
        self.stamp("s2main")

        def after_x2():
            H(lambda: self.poll_check("pp0", 1))
            H(lambda: self.conv_x_loads(0))
            self.hacts(w3[cuts[3]:cuts[4]])
            H(lambda: self.conv_prep_filter(0))
            H(lambda: self.conv_x_write(0))
        self.a.comment("---- S2 epilogue: x1 = xn + hs, fragments and partial row statistics stored")
        self.s2_epilogue(after_x2)
        self.stamp("s2epi")
        self.barrier()
        H(lambda: self.conv_poly(0))
        self.hacts(w3[cuts[4]:cuts[5]])
        self.conv_addr(0)
        self.team_check()
        a.wait_vm("x1st")
        self.barrier()
        self.flag_store_rc(F_S2)
        self.stamp("s2flag")
        H(self.head_start_w4)
        H(lambda: self.touch_chip("w4"))
        self.hacts(w3[cuts[5]:])

        def hook0(rho):
            if rho == o.get("pollrho2", 3):
                self.idx_s2()
                self.poll_issue(F_S2, "ps2")
        self.a.comment("---- long convolution, channel 2b: Toeplitz blocks on the matrix cores")
        self.conv_main(hook0)
        self.stamp("cv0main")
        xitems = self.s3_load_items()
        nx = o.get("nx", 12)
        xe = o.get("xearly", 0)
        if xe:
            self.poll_check("ps2", 3)
            for f in xitems[:nx]:
                f()
        self.conv_finish(0)
        self.hwait("w3")
        self.barrier()
        self.stamp("cv0fin")
        H(self.s3_addr)
        if o.get("csprio", 0):
            H(lambda: self.a("s_setprio %d" % o.get("csprio", 0)))
        H(self.s3_colsum)
        if o.get("csprio", 0):
            H(lambda: self.a("s_setprio 0"))
        H(self.w4_setup)
        self.s3_addr()
        if not xe:
            self.poll_check("ps2", 3)
            self.stamp("s2poll")
            for f in xitems[:nx]:
                f()
        sitems = self.s3_stat_items()
        rest = xitems[nx:]
        self.fq = []
        for i in range(len(rest)):
            self.fq.append(rest[i])
            self.fq.append(sitems[i] if i < 16 else (lambda: None))

        w4r = self.w4_reg_loads(W4_B, 56)

        def s3mid():
            self.barrier()
            H(lambda: self.conv_filter_loads(1))
            H(lambda: self.conv_x_loads(1))
            self.hacts(self.w4_items(0, W4_A, "w4"))
            self.hacts(w4r[:o.get("r1", 8)])
        self.a.comment("---- S3: x1 @ w3, 128 tokens x 112 features")
        self.s3_main(s3mid)
        self.fill_all()
        self.stamp("s3main")
        self.barrier()
        H(lambda: self.conv_prep_filter(1))
        H(lambda: self.conv_x_write(1))
        w4m = self.w4_items(W4_A, W4_B, "w4")
        k3 = o.get("k3", 4)

        early = o.get("tbar", 0) >= 2
        if early:
            self.hacts(w4r[o.get("r1", 8):o.get("r2", 20)])
            self.hacts(w4m[:k3])

        def after_tile(p):
            if p == o.get("tbar", 0):
                self.barrier()
                H(lambda: self.conv_poly(1))
                if not early:
                    self.hacts(w4r[o.get("r1", 8):o.get("r2", 20)])
                    self.hacts(w4m[:k3])
        self.a.comment("---- S3 epilogue: LN(x1) folded in, gelu, H fragments stored")
        self.s3_epilogue(after_tile)
        self.stamp("s3epi")
        self.conv_addr(1)

        def s3flag():
            a.wait_vm("Hst")
            self.barrier()
            a("s_lshl_b32 s%d, s%d, 4" % (sB, sRP))
            a("s_add_u32 s%d, s%d, s%d" % (sB, sB, sCP))
            self.flag_store(F_S3, sB)
            self.stamp("s3flag")
            self.hacts(w4m[k3:])
            self.hacts(w4r[o.get("r2", 20):])
        early = o.get("cv1early", 0)
        if early:
            self.barrier()
        else:
            s3flag()

        def hook1(rho):
            if early and rho == early:
                s3flag()
            if rho == o.get("pollrho", 3) and not early:
                self.idx_s3()
                self.poll_issue(F_S3, "ps3")
        self.a.comment("---- long convolution, channel 2b + 1")
        self.conv_main(hook1)
        self.stamp("cv1main")
        hitems = self.s4_load_items()
        if early:
            self.conv_finish(1)
            self.idx_s3()
            self.poll_issue(F_S3, "ps3")
            self.s4_addr()
            self.poll_check("ps3", 5)
            self.stamp("s3poll")
            for _ in range(o.get("nh", 14) + o.get("nhb", 6)):
                hitems.pop(0)()
        else:
            self.poll_check("ps3", 5)
            self.stamp("s3poll")
            for _ in range(o.get("nh", 14)):
                hitems.pop(0)()
            self.conv_finish(1)
            for _ in range(o.get("nhb", 6)):
                hitems.pop(0)()
            self.s4_addr()
        self.hwait("w4")
        self.barrier()
        self.stamp("cv1fin")
        self.a.comment("---- S4: H @ w4")
        self.s4_main(hitems)
        self.stamp("s4main")
        self.a.comment("---- S4 epilogue: out = q + x1 + H @ w4 + xn * y'")
        self.s4_epilogue()
        self.stamp("s4epi")
        self.finish()


REF = "cdna_kernels/%s.s.ref" % NAME


def emit(stop=None, stamps=False, opt=None, keep=None):
    g = Gen(stop, stamps, opt)
    g.keep = keep
    g.build()
    nops = g.a.fix_hazards()
    top = [l for l in open(REF).read().split("\n") if l.startswith(";") and "@launch" not in l and "Override" not in l
           and "grid=ceil" not in l]
    top += [
        "; Persistent kernel, one workgroup per CU: waves 0-3 run the GEMM chain S1 -> S2 -> S3 -> S4 and the two long",
        "; convolutions of the workgroup's channels, waves 4-7 stream weights and prepare operands. Workgroups hand tiles",
        "; to each other through d_ws: write-through stores, s_waitcnt, barrier, then a flag word equal to a per-launch",
        "; nonce derived from d_ws word 0 (rewritten once per launch by workgroup 0 after every workgroup has read it).",
        "; Generated by a script from hand-written building blocks."]
    out = top + ["; @launch grid=(256,1,1) block=(512,1,1) lds=%d" % LDS_BYTES,
                 '.amdgcn_target "amdgcn-amd-amdhsa--gfx950"', ".text", ".globl %s_kernel" % NAME, ".p2align 8",
                 ".type %s_kernel,@function" % NAME, "%s_kernel:" % NAME]
    body = g.a.text()
    tail = ['.section .rodata,"a"', ".p2align 6", ".amdhsa_kernel %s_kernel" % NAME,
            "  .amdhsa_next_free_vgpr 256", "  .amdhsa_next_free_sgpr 102", "  .amdhsa_accum_offset 192",
            "  .amdhsa_group_segment_fixed_size 0", "  .amdhsa_kernarg_size 112", "  .amdhsa_user_sgpr_count 2",
            "  .amdhsa_user_sgpr_kernarg_segment_ptr 1", "  .amdhsa_system_sgpr_workgroup_id_x 1",
            "  .amdhsa_float_denorm_mode_32 3", ".end_amdhsa_kernel"]
    text = "\n".join(out) + "\n" + body + "\n".join(tail) + "\n"
    return text, g, nops


if __name__ == "__main__":
    ap = argparse.ArgumentParser()
    ap.add_argument("-o", default="cdna_kernels/%s.s" % NAME)
    ap.add_argument("--stop", default=None)
    ap.add_argument("--stamps", action="store_true")
    ap.add_argument("--opt", default="")
    ap.add_argument("--keep", default="")
    args = ap.parse_args()
    opt = dict((kv.split("=")[0], int(kv.split("=")[1])) for kv in args.opt.split(",") if kv)
    text, g, nops = emit(args.stop, args.stamps, opt, args.keep.split(",") if args.keep else None)
    open(args.o, "w").write(text)
    n = sum(1 for x in g.a.ins if x.kind != "label")
    print("instructions: %d, hazard nops: %d" % (n, nops))
    if g.stamp_names:
        print(",".join(g.stamp_names))
        open(args.o + ".stamps", "w").write(",".join(g.stamp_names))
```

```python
import argparse
import os
import struct
import sys

sys.path.insert(0, os.path.dirname(os.path.abspath(__file__)))
from asmlib import Asm

NAME = "parallel_sum__ssm_conv_h3__mixer_s_mlp__prompt"

WS_FLAGS = 4096
WS_STAMP = 0xD0000
WS_FLAGS_L = 0x90000
WS_TEAM = 0xC0000
WS_KVT = 0x100000
WS_YT = 0x300000
WS_HS = 0x500000
WS_X1 = 0x700000
WS_ST = 0x900000
WS_HH = 0xA00000
WS_SIZE = 0x10000000
OOB = 0x40000000
F_S1, F_S2, F_S3, F_P0, F_CV = 0, 1, 2, 4, 8

LQ = 0
LW = 65536
LSTG = 131072
LRED = 139264
LSTX = 155648
LCSX = 156672
LCS3 = 161280
LKV = LRED
LDS_BYTES = 163840
CV_X = 0
CV_XD = 1152
CV_A = 5248
CV_P = 21760
CV_R = 5248
CV_BASE = 114688
W3_P = 0
W3_H = 98304
CV_BASE1 = 69632
W4_A, W4_B, W4_C = 11, 28, 39
S4_RED = 24576


def w4_off(ks):
    if ks < W4_A:
        return 114688 + ks * 4096
    if ks < W4_B:
        return (ks - W4_A) * 4096
    if ks < W4_C:
        return CV_BASE1 + (ks - W4_B) * 4096
    return w4_off(ks - W4_C)

S_WS, S_Q, S_K, S_V, S_SHK, S_SSM, S_W1, S_W2, S_W3, S_W4, S_OUT = 4, 8, 12, 16, 20, 24, 32, 36, 40, 44, 48
S_DPTR = 28
S_DBG = 30
sR, sC, sW, sTH, sKH, sN, sRP, sCP = 52, 53, 54, 55, 56, 57, 58, 59
sT, sT3 = 60, 61
sD0, sD1 = 62, 63
sA, sB, sCc, sD, sE, sF = 64, 65, 66, 67, 68, 69
sW2L, sW2G, sW3L, sW3G, sW3HL, sW3HG, sW4L, sW4G, sSO, sLD = 70, 71, 72, 73, 74, 75, 76, 77, 78, 79
sONES, sHI = 80, 81
sK4, sK8, sK12 = 82, 83, 84
sEPS, sTMO, sKG1, sKG3, s512I = 85, 86, 87, 88, 89
sSTA = 90
sROT, sQG, sWG, sCP0 = 92, 93, 94, 95
sXCC, sLOC = 20, 21

vL, vL16, vWP, vWN = 0, 1, 2, 3
vQ, vX1 = 4, 12
vMEAN, vR1 = 20, 21
vTID, vHH, vN31, vSTAMP = 22, 23, 24, 25
vW64 = 31
vCH = 172
vPF, vPA = 170, 171
vW3F, vW3H, vQE = 153, 154, 155
vST = 172

GELU_K1 = 2.0 * 0.7978845608028654 * 1.4426950408889634
GELU_K3 = GELU_K1 * 0.044715
MF32 = "v_mfma_f32_32x32x16_bf16"
MF16 = "v_mfma_f32_16x16x32_bf16"


def f32bits(x):
    return struct.unpack("<I", struct.pack("<f", x))[0]


def vr(a, n):
    return "v[%d:%d]" % (a, a + n - 1)


def ar(a, n):
    return "a[%d:%d]" % (a, a + n - 1)


def sr(a, n):
    return "s[%d:%d]" % (a, a + n - 1)


class Gen:
    def __init__(self, stop=None, stamps=False, opt=None):
        self.opt = opt or {}
        self.keep = None
        self.a = Asm()
        self.h = Asm()
        self.h.uid = 100000
        self.hpend = []
        self.nbar = 0
        self.stop = stop
        self.stamps = stamps
        self.nstamp = 0
        self.stamp_names = []
        self.fq = []
        self.pq = []
        self.interval = 0
        self.clock = 0.0
        self.hold = 0
        self.a.hook = self._pace
        self.h.hook = self._pace

    def _pace(self, x):
        if x.kind == "mfma":
            self.clock += 32 if x.passes == 8 else 16
        elif x.kind == "valu":
            self.clock += 8 if x.is_trans() else 4.5
        elif x.kind == "ds":
            self.clock += 13 if x.op == "ds_write_b128" else 2
        elif x.kind == "vmem":
            self.clock += 20
        else:
            return
        if self.hold or not self.pq or not self.interval or x.kind == "vmem":
            return
        if self.clock >= self.interval:
            self.clock = 0.0
            self.hold += 1
            self.pq.pop(0)()
            self.hold -= 1

    def paced(self, items, interval):
        self.pq += items
        self.interval = interval
        self.clock = 0.0

    def pace_flush(self, tag=None):
        self.hold += 1
        if tag is None:
            n = len(self.pq)
        else:
            n = max([i + 1 for i, f in enumerate(self.pq) if f.tag == tag], default=0)
        for _ in range(n):
            self.pq.pop(0)()
        self.hold -= 1

    def stamp(self, name):
        if not self.stamps:
            return
        if self.keep and name not in self.keep and name not in ("start", "end"):
            return
        self.hold += 1
        self._stamp(name)
        self.hold -= 1

    def _stamp(self, name):
        a = self.a
        a("s_memtime %s" % sr(sSTA, 2))
        a("s_waitcnt lgkmcnt(0)")
        a.lg = []
        a("v_writelane_b32 v%d, s%d, %d" % (vSTAMP, sSTA, self.nstamp))
        if name in ("start", "end"):
            a("s_memrealtime %s" % sr(sSTA, 2))
            a("s_waitcnt lgkmcnt(0)")
            a("v_writelane_b32 v%d, s%d, %d" % (vSTAMP, sSTA, 62 if name == "start" else 63))
            if name == "start":
                a("v_writelane_b32 v%d, s3, 61" % vSTAMP)
        self.stamp_names.append(name)
        self.nstamp += 1

    def hact(self, fn):
        self.hpend.append(fn)

    def hacts(self, fns):
        self.hpend += fns

    def hstamp(self, idx):
        if not self.opt.get("barstamps", 0):
            return

        def f():
            a = self.a
            a("s_memtime %s" % sr(sSTA, 2))
            a("s_waitcnt lgkmcnt(0)")
            a.lg = []
            a("v_writelane_b32 v55, s%d, %d" % (sSTA, 32 + idx))
        self.hpend.append(f)

    def hpaced(self, items, interval, fn):
        def f():
            saved = (self.pq, self.interval, self.clock, self.hold)
            self.pq, self.interval, self.clock, self.hold = list(items), interval, 0.0, 0
            fn()
            self.hold = 1
            self.pace_flush()
            self.pq, self.interval, self.clock, self.hold = saved
        self.hpend.append(f)

    def hwait(self, tag):
        self.hpend.append(lambda: self.a.wait_vm(tag))

    def hrun(self):
        c, fq = self.a, self.fq
        self.a, self.fq = self.h, []
        self.hold += 1
        for fn in self.hpend:
            fn()
        self.hold -= 1
        self.hpend = []
        self.a, self.fq = c, fq

    def barrier(self, name=""):
        bs = self.opt.get("barstamps", 0)
        if bs:
            self.hold += 1
            self.a("s_memtime %s" % sr(sSTA, 2))
            self.a("s_waitcnt lgkmcnt(0)")
            self.a.lg = []
            self.a("v_writelane_b32 v31, s%d, %d" % (sSTA, self.nbar))
            self.hold -= 1
        self.a("s_barrier")
        self.hrun()
        if bs:
            self.h("s_memtime %s" % sr(sSTA, 2))
            self.h("s_waitcnt lgkmcnt(0)")
            self.h.lg = []
            self.h("v_writelane_b32 v55, s%d, %d" % (sSTA, self.nbar))
        self.h("s_barrier")
        self.nbar += 1

    def fill(self, n=1):
        for _ in range(n):
            if self.fq:
                self.fq.pop(0)()

    def fill_all(self):
        while self.fq:
            self.fq.pop(0)()

    def dma_item(self, srd, voff, sl, loff, sg, goff, tag):
        def f():
            a = self.a
            a("s_add_u32 m0, s%d, %d" % (sl, loff))
            a("s_add_u32 s%d, s%d, %d" % (sSO, sg, goff))
            a.vmem("buffer_load_dwordx4 v%d, %s, s%d offen lds" % (voff, sr(srd, 4), sSO), tag)
            a.check_vm_depth()
        f.tag = tag
        return f

    def flag_store(self, phase, sidx):
        local = self.opt.get("local", 0) and phase in (F_S2, F_S3)
        a = self.a
        self.hold += 1
        skip = a.newlabel("noflag")
        a("s_cmp_lg_u32 s%d, 0" % sW)
        a("s_cbranch_scc1 %s" % skip)
        a("s_lshl_b32 s%d, s%d, 7" % (sA, sidx))
        a("s_add_u32 s%d, s%d, %d" % (sA, sA, WS_FLAGS + phase * 256 * 128))
        a("v_mov_b32 v26, s%d" % sN)
        a("v_mov_b32 v27, s%d" % sA)
        a("s_mov_b64 exec, 1")
        if local:
            a("s_mov_b32 s%d, 0x%x" % (sSO, WS_FLAGS_L - WS_FLAGS))
            a("buffer_store_dword v26, v27, %s, s%d offen" % (sr(S_WS, 4), sSO))
        a("buffer_store_dword v26, v27, %s, 0 offen sc1" % sr(S_WS, 4))
        a("s_mov_b64 exec, -1")
        a.label(skip)
        self.hold -= 1

    def team_publish(self):
        a = self.a
        if not self.opt.get("local", 0):
            return
        skip = a.newlabel("noteam")
        a("s_getreg_b32 s%d, hwreg(HW_REG_XCC_ID)" % sXCC)
        a("s_and_b32 s%d, s%d, 15" % (sXCC, sXCC))
        a("s_cmp_lg_u32 s%d, 0" % sW)
        a("s_cbranch_scc1 %s" % skip)
        a("s_lshl_b32 s%d, s2, 7" % sA)
        a("s_add_u32 s%d, s%d, 0x%x" % (sA, sA, WS_TEAM))
        a("v_mov_b32 v26, s%d" % sN)
        a("v_mov_b32 v27, s%d" % sXCC)
        a("v_mov_b32 v28, s%d" % sA)
        a("s_mov_b64 exec, 1")
        a("buffer_store_dwordx2 v[26:27], v28, %s, 0 offen sc1" % sr(S_WS, 4))
        a("s_mov_b64 exec, -1")
        a.label(skip)

    def team_load(self):
        a = self.a
        if not self.opt.get("local", 0):
            return
        a("s_and_b32 s%d, s2, 7" % sA)
        a("v_lshlrev_b32 v26, 3, v%d" % vN31)
        a("v_add_u32 v26, s%d, v26" % sA)
        a("v_lshlrev_b32 v26, 7, v26")
        a("v_add_u32 v26, 0x%x, v26" % WS_TEAM)
        a.vmem("buffer_load_dwordx2 v[168:169], v26, %s, 0 offen sc1" % sr(S_WS, 4), "team")

    def team_check(self):
        a = self.a
        if not self.opt.get("local", 0):
            return
        a.wait_vm("team")
        a("v_cmp_ne_u32 vcc, s%d, v168" % sN)
        a("v_cmp_ne_u32 %s, s%d, v169" % (sr(sSTA, 2), sXCC))
        a("s_or_b64 vcc, vcc, %s" % sr(sSTA, 2))
        a("s_cmp_eq_u64 vcc, 0")
        a("s_cselect_b32 s%d, 0x%x, 0" % (sLOC, WS_FLAGS_L - WS_FLAGS))

    def flag_store_rc(self, phase):
        a = self.a
        a("s_lshl_b32 s%d, s%d, 3" % (sB, sR))
        a("s_add_u32 s%d, s%d, s%d" % (sB, sB, sC))
        self.flag_store(phase, sB)

    def poll_issue(self, phase, tag):
        a = self.a
        a("v_lshlrev_b32 v%d, 7, v28" % vPA)
        a("v_add_u32 v%d, %d, v%d" % (vPA, WS_FLAGS + phase * 256 * 128, vPA))
        if self.opt.get("local", 0) and phase in (F_S2, F_S3):
            a("v_add_u32 v%d, s%d, v%d" % (vPA, sLOC, vPA))
        a.vmem("buffer_load_dword v%d, v%d, %s, 0 offen sc1" % (vPF, vPA, sr(S_WS, 4)), tag)

    def poll_check(self, tag, code):
        a = self.a
        self.hold += 1
        loop = a.newlabel("poll")
        done = a.newlabel("polled")
        a.wait_vm(tag)
        a("v_cmp_ne_u32 vcc, s%d, v%d" % (sN, vPF))
        a("s_cmp_eq_u64 vcc, 0")
        a("s_cbranch_scc1 %s" % done)
        a("s_mov_b32 s%d, 0x40000" % sTMO)
        a.label(loop)
        a("buffer_load_dword v%d, v%d, %s, 0 offen sc1" % (vPF, vPA, sr(S_WS, 4)))
        a("s_waitcnt vmcnt(0)")
        a("v_cmp_ne_u32 vcc, s%d, v%d" % (sN, vPF))
        a("s_cmp_eq_u64 vcc, 0")
        a("s_cbranch_scc1 %s" % done)
        a("s_sub_u32 s%d, s%d, 1" % (sTMO, sTMO))
        a("s_cmp_lg_u32 s%d, 0" % sTMO)
        a("s_cbranch_scc1 %s" % loop)
        a("v_mov_b32 v26, 0")
        a("v_mov_b32 v27, %d" % (0x100 + code))
        a("s_mov_b64 exec, 1")
        a("global_store_dword v26, v27, %s" % sr(S_DBG, 2))
        a("s_mov_b64 exec, -1")
        a.label(done)
        self.hold -= 1

    def idx_s1(self):
        a = self.a
        a("s_lshl_b32 s%d, s%d, 1" % (sA, sTH))
        a("s_sub_u32 s%d, s%d, 1" % (sA, sA))
        a("s_add_u32 s%d, s%d, s%d" % (sA, sA, sR))
        a("s_cmp_lt_u32 s%d, 32" % sA)
        a("s_cselect_b32 s%d, s%d, s%d" % (sA, sA, sR))
        a("v_mov_b32 v28, s%d" % sR)
        a("v_mov_b32 v29, s%d" % sA)
        a("v_and_b32 v27, 4, v%d" % vL)
        a("v_cmp_eq_u32 vcc, 0, v27")
        a("v_cndmask_b32 v28, v29, v28, vcc")
        a("v_lshlrev_b32 v28, 3, v28")
        a("v_and_b32 v29, 3, v%d" % vL)
        a("v_add_u32 v28, v28, v29")
        a("s_lshl_b32 s%d, s%d, 2" % (sA, sKH))
        a("v_add_u32 v28, s%d, v28" % sA)

    def idx_p0(self):
        a = self.a
        a("s_lshr_b32 s%d, s2, 5" % sA)
        a("s_lshl_b32 s%d, s%d, 6" % (sB, sW))
        a("s_add_u32 s%d, s%d, s%d" % (sA, sA, sB))
        a("v_and_b32 v28, 7, v%d" % vL)
        a("v_lshlrev_b32 v28, 3, v28")
        a("v_add_u32 v28, s%d, v28" % sA)
        a("s_bfe_u32 s%d, s2, 0x20003" % sA)
        a("v_lshl_add_u32 v28, v28, 2, s%d" % sA)

    def p0_wave_flag(self):
        a = self.a
        a.wait_vm("kvt")
        a("s_lshl_b32 s%d, s%d, 3" % (sA, sR))
        a("s_add_u32 s%d, s%d, s%d" % (sA, sA, sC))
        a("s_lshl_b32 s%d, s%d, 2" % (sA, sA))
        a("s_add_u32 s%d, s%d, s%d" % (sA, sA, sW))
        a("s_lshl_b32 s%d, s%d, 7" % (sA, sA))
        a("s_add_u32 s%d, s%d, %d" % (sA, sA, WS_FLAGS + F_P0 * 256 * 128))
        a("v_mov_b32 v26, s%d" % sN)
        a("v_mov_b32 v27, s%d" % sA)
        a("s_mov_b64 exec, 1")
        a("buffer_store_dword v26, v27, %s, 0 offen sc1" % sr(S_WS, 4))
        a("s_mov_b64 exec, -1")

    def idx_s2(self):
        a = self.a
        a("s_lshr_b32 s%d, s%d, 1" % (sA, sT3))
        a("s_lshl_b32 s%d, s%d, 3" % (sA, sA))
        a("v_and_b32 v28, 7, v%d" % vL)
        a("v_add_u32 v28, s%d, v28" % sA)

    def idx_s3(self):
        a = self.a
        a("s_lshr_b32 s%d, s%d, 1" % (sA, sR))
        a("s_lshl_b32 s%d, s%d, 4" % (sA, sA))
        a("s_lshl_b32 s%d, s%d, 3" % (sB, sKH))
        a("s_add_u32 s%d, s%d, s%d" % (sA, sA, sB))
        a("v_and_b32 v28, 7, v%d" % vL)
        a("v_add_u32 v28, s%d, v28" % sA)

    def idx_cv(self):
        a = self.a
        self.feat0(sA, sKH, 0)
        a("s_lshr_b32 s%d, s%d, 1" % (sA, sA))
        a("v_and_b32 v28, 15, v%d" % vL)
        a("v_add_u32 v28, s%d, v28" % sA)
        a("s_lshr_b32 s%d, s%d, 5" % (sA, sT))
        a("s_lshl_b32 s%d, s%d, 1" % (sA, sA))
        a("s_bfe_u32 s%d, s%d, 0x10003" % (sB, sT))
        a("s_add_u32 s%d, s%d, s%d" % (sA, sA, sB))
        a("v_lshl_add_u32 v28, v28, 2, s%d" % sA)

    def conv_wave_flag(self):
        a = self.a
        a.wait_vm("yt")
        a("s_lshl_b32 s%d, s2, 2" % sA)
        a("s_add_u32 s%d, s%d, s%d" % (sA, sA, sW))
        a("s_lshl_b32 s%d, s%d, 7" % (sA, sA))
        a("s_add_u32 s%d, s%d, %d" % (sA, sA, WS_FLAGS + F_CV * 256 * 128))
        a("v_mov_b32 v26, s%d" % sN)
        a("v_mov_b32 v27, s%d" % sA)
        a("s_mov_b64 exec, 1")
        a.vmem("buffer_store_dword v26, v27, %s, 0 offen sc1" % sr(S_WS, 4), "cvf")
        a("s_mov_b64 exec, -1")

    def prologue(self):
        a = self.a
        if self.stamps or self.opt.get("dbgtime", 0):
            a("s_memrealtime s[100:101]")
            a("s_waitcnt lgkmcnt(0)")
            a("s_mov_b32 s3, s100")
        a("s_cmp_ge_u32 s2, 256")
        a("s_cbranch_scc1 L_end")
        a("s_load_dwordx16 s[64:79], s[0:1], 0")
        a("s_load_dwordx8 s[92:99], s[0:1], 64")
        a("s_load_dwordx2 %s, s[0:1], 96" % sr(S_DBG, 2))
        a("s_load_dwordx2 %s, s[0:1], 104" % sr(S_WS, 2))
        sizes = {S_WS: WS_SIZE, S_Q: 1 << 21, S_K: 1 << 21, S_V: 1 << 21, S_SHK: 4096, S_SSM: 1 << 21,
                 S_W1: 1 << 19, S_W2: 1 << 19, S_W3: 512 * 1792 * 2, S_W4: 512 * 1792 * 2, S_OUT: 1 << 21}
        for s, n in sizes.items():
            a("s_mov_b32 s%d, 0x%x" % (s + 2, n))
            a("s_mov_b32 s%d, 0x20000" % (s + 3))
        a("s_and_b32 s100, s2, 7")
        a("s_lshr_b32 s101, s2, 3")
        a("s_lshr_b32 s%d, s101, 3" % sR)
        a("s_lshl_b32 s%d, s100, 2" % sC)
        a("s_add_u32 s%d, s%d, s%d" % (sR, sR, sC))
        a("s_and_b32 s%d, s101, 7" % sC)
        a("s_lshr_b32 s%d, s101, 4" % sRP)
        a("s_lshl_b32 s100, s100, 1")
        a("s_add_u32 s%d, s%d, s100" % (sRP, sRP))
        a("s_and_b32 s%d, s101, 15" % sCP)
        a("v_and_b32 v%d, 0xff, v0" % vTID)
        a("v_lshrrev_b32 v26, 6, v0")
        a("v_and_b32 v%d, 63, v0" % vL)
        a("v_readfirstlane_b32 s%d, v26" % sTMO)
        a("v_lshlrev_b32 v%d, 4, v%d" % (vL16, vL))
        a("v_lshrrev_b32 v%d, 5, v%d" % (vHH, vL))
        a("v_and_b32 v%d, 31, v%d" % (vN31, vL))
        a("s_and_b32 s%d, s%d, 3" % (sW, sTMO))
        a("s_lshr_b32 s%d, s%d, 1" % (sTH, sW))
        a("s_and_b32 s%d, s%d, 1" % (sKH, sW))
        a("s_lshl_b32 s%d, s%d, 1" % (sT, sR))
        a("s_add_u32 s%d, s%d, s%d" % (sT, sT, sTH))
        a("s_lshl_b32 s%d, s%d, 2" % (sT3, sRP))
        a("s_add_u32 s%d, s%d, s%d" % (sT3, sT3, sW))
        a("s_mov_b32 s%d, 0x3f803f80" % sONES)
        a("s_mov_b32 s%d, 0xffff0000" % sHI)
        a("s_movk_i32 s%d, 0x1000" % sK4)
        a("s_movk_i32 s%d, 0x2000" % sK8)
        a("s_movk_i32 s%d, 0x3000" % sK12)
        a("s_mov_b32 s%d, 0x%x" % (sEPS, f32bits(1e-5)))
        a("s_mov_b32 s%d, 0x%x" % (sKG1, f32bits(-GELU_K1)))
        a("s_mov_b32 s%d, 0x%x" % (sKG3, f32bits(-GELU_K3)))
        a("s_mov_b32 s%d, 0x%x" % (s512I, f32bits(1.0 / 512)))
        a("s_waitcnt lgkmcnt(0)")
        for sreg, src in ((S_Q, 64), (S_W1, 78), (S_K, 66), (S_V, 68), (S_SHK, 70), (S_SSM, 72), (S_DPTR, 74)):
            a("s_mov_b64 %s, %s" % (sr(sreg, 2), sr(src, 2)))
        for i, sreg in enumerate([S_W2, S_W3, S_W4, S_OUT]):
            a("s_mov_b64 %s, %s" % (sr(sreg, 2), sr(92 + 2 * i, 2)))
        a("s_add_u32 s%d, s%d, s%d" % (sROT, sR, sC))
        a("s_and_b32 s%d, s%d, 3" % (sROT, sROT))
        a("s_cmp_ge_u32 s%d, 4" % sTMO)
        a("s_cbranch_scc1 L_loader")
        if self.opt.get("prio", 1):
            a("s_setprio 1")
        if self.stamps:
            a("v_mov_b32 v%d, 0" % vSTAMP)
        self.stamp("start")
        if self.opt.get("dbgtime", 0):
            a("s_memtime s[98:99]")
            a("s_waitcnt lgkmcnt(0)")
        self.ssm_d_load()

    def tr_addresses(self):
        a = self.a
        a("v_bfe_u32 v26, v%d, 2, 2" % vL)
        a("v_and_b32 v27, 3, v%d" % vL)
        a("v_bfe_u32 v28, v%d, 4, 1" % vL)
        a("v_lshlrev_b32 v27, 3, v27")
        a("v_lshl_add_u32 v27, v28, 5, v27")
        a("v_lshl_add_u32 v28, v%d, 2, v26" % vHH)
        a("v_lshl_add_u32 v%d, v28, 6, v27" % vWP)
        a("v_lshl_add_u32 v28, v%d, 3, v26" % vHH)
        a("v_lshl_add_u32 v%d, v28, 6, v27" % vWN)

    def loader_setup(self):
        a = self.a
        a.label("L_loader")
        a("v_lshrrev_b32 v26, 2, v%d" % vL)
        a("v_and_b32 v27, 3, v%d" % vL)
        a("v_lshlrev_b32 v27, 4, v27")
        a("v_lshl_add_u32 v%d, v26, 10, v27" % vW64)
        a("v_lshrrev_b32 v26, 3, v%d" % vL)
        a("v_and_b32 v27, 7, v%d" % vL)
        a("v_lshrrev_b32 v28, 4, v%d" % vL)
        a("v_xor_b32 v27, v27, v28")
        a("v_lshlrev_b32 v27, 4, v27")
        a("v_lshl_add_u32 v%d, v26, 10, v27" % vQE)
        a("v_xor_b32 v%d, 64, v%d" % (vQE + 1, vQE))
        a("s_lshl_b32 s%d, s%d, 14" % (sCc, sW))
        a("s_lshl_b32 s%d, s%d, 15" % (sD, sT))
        a("s_lshl_b32 s%d, s%d, 9" % (sA, sKH))
        a("s_add_u32 s%d, s%d, s%d" % (sD, sD, sA))
        self.w64_bases(sW2L, sW2G)

    def feat0(self, dst, spanel, shift):
        a = self.a
        if self.opt.get("remap", 0):
            a("s_lshl_b32 s%d, s%d, %d" % (dst, sC, 5 + shift))
            a("s_lshl_b32 s%d, s%d, %d" % (sSO, spanel, 8 + shift))
        else:
            a("s_lshl_b32 s%d, s%d, %d" % (dst, sC, 6 + shift))
            a("s_lshl_b32 s%d, s%d, %d" % (sSO, spanel, 5 + shift))
        a("s_add_u32 s%d, s%d, s%d" % (dst, dst, sSO))

    def w64_bases(self, sl, sg):
        a = self.a
        a("s_lshl_b32 s%d, s%d, 15" % (sl, sTH))
        a("s_lshl_b32 s%d, s%d, 14" % (sA, sKH))
        a("s_add_u32 s%d, s%d, s%d" % (sl, sl, sA))
        a("s_add_u32 s%d, s%d, %d" % (sl, sl, LW))
        a("s_lshl_b32 s%d, s%d, 18" % (sg, sKH))
        self.feat0(sA, sTH, 1)
        a("s_add_u32 s%d, s%d, s%d" % (sg, sg, sA))

    def s1_stage_items(self, st):
        items = []

        def head():
            a = self.a
            a("s_add_u32 s%d, s%d, %d" % (sB, sROT, st))
            a("s_and_b32 s%d, s%d, 3" % (sB, sB))
            a("s_lshl_b32 s%d, s%d, 7" % (sQG, sB))
            a("s_add_u32 s%d, s%d, s%d" % (sQG, sQG, sD))
            a("s_lshl_b32 s%d, s%d, 16" % (sWG, sB))
            a("s_add_u32 s%d, s%d, s%d" % (sWG, sWG, sW2G))
        for j in range(4):
            def f(j=j):
                if j == 0:
                    head()
                self.dma_item(S_Q, vQE + (j & 1), sCc, LQ + st * 4096 + j * 1024, sQG, j * 8192, "s1_%d" % st)()
            items.append(f)
        for i in range(4):
            items.append(self.dma_item(S_W1, vW64, sW2L, (4 * st + i) * 1024, sWG, i * 16384, "s1_%d" % st))
        return items

    def touch(self, srd, lanes, sidx, dst):
        a = self.a
        a("s_mul_i32 s%d, s%d, %d" % (sA, sidx, lanes))
        a("v_add_u32 v26, s%d, v%d" % (sA, vL))
        a("v_lshlrev_b32 v26, 7, v26")
        a("v_mov_b32 v27, 0x%x" % OOB)
        a("v_cmp_gt_u32 vcc, %d, v%d" % (lanes, vL))
        a("v_cndmask_b32 v26, v27, v26, vcc")
        a.vmem("buffer_load_dword v%d, v26, %s, 0 offen" % (dst, sr(srd, 4)), "touch")

    def touch_w2(self):
        a = self.a
        if self.opt.get("touch", 1):
            a("s_lshr_b32 s%d, s2, 3" % sE)
            a("s_lshl_b32 s%d, s%d, 2" % (sE, sE))
            a("s_add_u32 s%d, s%d, s%d" % (sE, sE, sW))
            self.touch(S_W2, 32, sE, 53)

    def touch_chip(self, which):
        a = self.a
        srd, lanes, dst = {"w2": (S_W2, 4, 160), "ssm": (S_SSM, 16, 161), "w3": (S_W3, 14, 163), "w4": (S_W4, 14, 162)}[which]
        if not self.opt.get("t" + which, 1):
            return
        if which == "ssm" and self.opt.get("tssm", 2) == 2:
            a("s_lshl_b32 s%d, s2, 3" % sE)
            a("s_add_u32 s%d, s%d, s%d" % (sE, sE, sW))
            self.touch(srd, 8, sE, dst)
            return
        a("s_lshl_b32 s%d, s2, 2" % sE)
        a("s_add_u32 s%d, s%d, s%d" % (sE, sE, sW))
        self.touch(srd, lanes, sE, dst)

    def touch_code(self):
        a = self.a
        if not self.opt.get("tcode", 1):
            return
        a("s_getpc_b64 s[96:97]")
        a.label("L_pc")
        a("s_sub_u32 s96, s96, L_pc-%s_kernel" % NAME)
        a("s_subb_u32 s97, s97, 0")
        a("s_lshr_b32 s%d, s2, 3" % sE)
        a("s_lshl_b32 s%d, s%d, 2" % (sE, sE))
        a("s_add_u32 s%d, s%d, s%d" % (sE, sE, sW))
        a("s_mul_i32 s%d, s%d, 3" % (sE, sE))
        a("v_min_u32 v26, 2, v%d" % vL)
        a("v_add_u32 v26, s%d, v26" % sE)
        a("v_min_u32 v26, (L_codeend-%s_kernel)/128-1, v26" % NAME)
        a("v_lshlrev_b32 v26, 7, v26")
        a("v_mov_b32 v135, s97")
        a("v_add_co_u32 v134, vcc, s96, v26")
        a("v_addc_co_u32 v135, vcc, 0, v135, vcc")
        a.vmem("global_load_dword v136, v[134:135], off", "touch")

    def cold_touches(self):
        a = self.a
        o = self.opt
        a("s_lshr_b32 s%d, s2, 3" % sE)
        a("s_lshl_b32 s%d, s%d, 2" % (sE, sE))
        a("s_add_u32 s%d, s%d, s%d" % (sE, sE, sW))
        if o.get("tq", 0):
            a("s_and_b32 s%d, s2, 7" % sF)
            a("s_lshl_b32 s%d, s%d, 7" % (sF, sF))
            a("s_add_u32 s%d, s%d, s%d" % (sF, sF, sE))
            self.touch(S_Q, 16, sF, 160)
            self.touch(S_W1, 32, sE, 161)

    def touch_rows(self, srd, rows_per_wave, srow0, col, dst):
        a = self.a
        a("v_add_u32 v26, s%d, v%d" % (srow0, vL))
        a("v_lshlrev_b32 v26, 10, v26")
        a("v_add_u32 v26, %d, v26" % col)
        a("v_mov_b32 v27, 0x%x" % OOB)
        a("v_cmp_gt_u32 vcc, %d, v%d" % (rows_per_wave, vL))
        a("v_cndmask_b32 v26, v27, v26, vcc")
        a.vmem("buffer_load_dword v%d, v26, %s, 0 offen" % (dst, sr(srd, 4)), "touch")

    def wave_in_group(self, dst):
        a = self.a
        a("s_lshr_b32 s%d, s2, 3" % dst)
        a("s_lshl_b32 s%d, s%d, 2" % (dst, dst))
        a("s_add_u32 s%d, s%d, s%d" % (dst, dst, sW))

    def head_start(self):
        a = self.a
        m = self.opt.get("head", 11)
        self.wave_in_group(sE)
        if m & 1:
            a("s_lshl_b32 s%d, s%d, 2" % (sF, sE))
            self.touch_rows(S_W1, 4, sF, 384, 160)
        if m & 2:
            a("s_and_b32 s%d, s2, 7" % sF)
            a("s_lshl_b32 s%d, s%d, 7" % (sF, sF))
            a("s_add_u32 s%d, s%d, s%d" % (sF, sF, sE))
            a("s_lshl_b32 s%d, s%d, 1" % (sF, sF))
            self.touch_rows(S_K, 2, sF, 384, 161)
            self.touch_rows(S_V, 2, sF, 384, 162)
        if m & 4:
            a("s_lshl_b32 s%d, s%d, 2" % (sF, sE))
            self.touch_rows(S_W2, 4, sF, 384, 163)

    def page_touch(self):
        a = self.a
        m = self.opt.get("tlb", 0)
        if not m:
            return
        a("v_mov_b32 v27, 0x%x" % OOB)
        if m & 1:
            a("v_lshlrev_b32 v26, 21, v%d" % vL)
            a("v_add_u32 v26, 0x70800, v26")
            a("v_cmp_gt_u32 vcc, 10, v%d" % vL)
            a("v_cndmask_b32 v26, v27, v26, vcc")
            a.vmem("buffer_load_dword v164, v26, %s, 0 offen" % sr(S_WS, 4), "touch")
        lst = []
        if m & 2:
            lst += [(S_OUT, 1 << 21, 165)]
        if m & 4:
            lst += [(S_SSM, 1 << 21, 166), (S_W3, 512 * 1792 * 2, 167), (S_W4, 512 * 1792 * 2, 168), (S_W2, 1 << 19, 169)]
        for srd, size, dst in lst:
            a("v_mul_u32_u24 v26, %d, v%d" % (size // 128 - 1, vL))
            a("v_lshlrev_b32 v26, 7, v26")
            a("v_cmp_gt_u32 vcc, 2, v%d" % vL)
            a("v_cndmask_b32 v26, v27, v26, vcc")
            a.vmem("buffer_load_dword v%d, v26, %s, 0 offen" % (dst, sr(srd, 4)), "touch")

    def head_start_w4(self):
        a = self.a
        if self.opt.get("head", 11) & 8:
            self.wave_in_group(sE)
            a("s_mul_i32 s%d, s%d, 14" % (sF, sE))
            self.touch_rows(S_W4, 14, sF, 384, 161)

    def batch_a(self):
        a = self.a
        if self.opt.get("tkv", 1):
            self.touch_kv(157, 158)
        if self.opt.get("tw2", 1):
            a("s_lshr_b32 s%d, s2, 3" % sE)
            a("s_lshl_b32 s%d, s%d, 2" % (sE, sE))
            a("s_add_u32 s%d, s%d, s%d" % (sE, sE, sW))
            self.touch(S_W2, 32, sE, 159)
        if self.opt.get("bpos", 0) == 0:
            self.touch_chip("ssm")
            self.touch_chip("w3")
        if self.opt.get("w4early", 0) == 1:
            self.touch_chip("w4")

    def kv_dma(self):
        a = self.a
        a("v_lshrrev_b32 v26, 3, v%d" % vL)
        a("v_and_b32 v27, 7, v%d" % vL)
        a("v_lshlrev_b32 v27, 4, v27")
        a("v_lshl_add_u32 v137, v26, 10, v27")
        a("s_lshl_b32 s%d, s%d, 6" % (sA, sR))
        a("s_lshl_b32 s%d, s%d, 4" % (sB, sW))
        a("s_add_u32 s%d, s%d, s%d" % (sA, sA, sB))
        a("v_add_u32 v26, s%d, v26" % sA)
        a("s_lshl_b32 s%d, s%d, 10" % (sQG, sA))
        a("s_lshl_b32 s%d, s%d, 7" % (sB, sC))
        a("s_add_u32 s%d, s%d, s%d" % (sQG, sQG, sB))
        a("v_add_u32 v138, s%d, v137" % sQG)
        a("v_subrev_u32 v138, 3072, v138")
        a("v_mov_b32 v27, 0x%x" % OOB)
        a("v_cmp_gt_u32 vcc, 3, v26")
        a("v_cndmask_b32 v138, v138, v27, vcc")
        a("s_mul_i32 s%d, s%d, 5120" % (sWG, sW))
        a("s_add_u32 m0, s%d, %d" % (sWG, LKV))
        a.vmem("buffer_load_dwordx4 v138, %s, 0 offen lds" % sr(S_K, 4), "kv")
        for g in (1, 2):
            self.dma_item(S_K, 137, sWG, LKV + 1024 * g, sQG, 8192 * g - 3072, "kv")()
        for g in (0, 1):
            self.dma_item(S_V, 137, sWG, LKV + 3072 + 1024 * g, sQG, 8192 * g, "kv")()
        a("s_lshl_b32 s%d, s%d, 9" % (sB, sC))
        a("v_lshl_add_u32 v26, v%d, 4, s%d" % (vN31, sB))
        a.vmem("buffer_load_dwordx4 %s, v26, %s, 0 offen" % (vr(self.SHRAW, 4), sr(S_SHK, 4)), "kv")

    def p0_reads(self):
        a = self.a
        a.wait_vm("kv")
        a("s_mul_i32 s%d, s%d, 5120" % (sA, sW))
        a("v_lshlrev_b32 v26, 10, v%d" % vHH)
        a("v_lshl_add_u32 v26, v%d, 2, v26" % vN31)
        a("v_add_u32 v26, s%d, v26" % sA)
        a("v_add_u32 v26, %d, v26" % LKV)
        for i in range(11):
            a.lds("ds_read_b32 v%d, v26 offset:%d" % (self.KRAW + i, 128 * i), "p0")
        for i in range(8):
            a.lds("ds_read_b32 v%d, v26 offset:%d" % (self.VRAW + i, 3072 + 128 * i), "p0")

    def touch_kv(self, dk=54, dv=55):
        a = self.a
        for srd, rows, first, dst in ((S_K, 17, -3, dk), (S_V, 16, 0, dv)):
            a("s_lshl_b32 s%d, s%d, 6" % (sA, sR))
            a("s_mul_i32 s%d, s%d, %d" % (sB, sW, rows))
            a("s_add_u32 s%d, s%d, s%d" % (sA, sA, sB))
            a("s_add_i32 s%d, s%d, %d" % (sA, sA, first))
            a("v_add_u32 v26, s%d, v%d" % (sA, vL))
            a("v_lshlrev_b32 v26, 10, v26")
            a("s_lshl_b32 s%d, s%d, 7" % (sB, sC))
            a("v_add_u32 v26, s%d, v26" % sB)
            a("v_mov_b32 v27, 0x%x" % OOB)
            a("v_cmp_gt_u32 vcc, %d, v%d" % (rows, vL))
            a("v_cndmask_b32 v26, v27, v26, vcc")
            a.vmem("buffer_load_dword v%d, v26, %s, 0 offen" % (dst, sr(srd, 4)), "touch")

    def touch_w3_local(self):
        a = self.a
        if self.opt.get("tw3", 1):
            a("s_lshr_b32 s%d, s2, 3" % sE)
            a("s_lshl_b32 s%d, s%d, 2" % (sE, sE))
            a("s_add_u32 s%d, s%d, s%d" % (sE, sE, sW))
            self.touch(S_W3, 64, sE, 50)
            a("s_add_u32 s%d, s%d, 128" % (sE, sE))
            self.touch(S_W3, 64, sE, 51)

    def touch_w4_chip(self):
        a = self.a
        if self.opt.get("tw4", 1):
            a("s_lshl_b32 s%d, s2, 2" % sE)
            a("s_add_u32 s%d, s%d, s%d" % (sE, sE, sW))
            self.touch(S_W4, 14, sE, 52)

    def touch_w34(self):
        a = self.a
        if self.opt.get("touch", 1):
            a("s_lshl_b32 s%d, s2, 2" % sE)
            a("s_add_u32 s%d, s%d, s%d" % (sE, sE, sW))
            if self.opt.get("touchw3", 1):
                self.touch(S_W3, 14, sE, 223)
            if self.opt.get("touchw4", 1):
                self.touch(S_W4, 14, sE, 224)

    def touch_w4_local(self):
        a = self.a
        a("s_lshr_b32 s%d, s2, 3" % sE)
        a("s_lshl_b32 s%d, s%d, 2" % (sE, sE))
        a("s_add_u32 s%d, s%d, s%d" % (sE, sE, sW))
        self.touch(S_W4, 64, sE, 54)
        a("s_add_u32 s%d, s%d, 128" % (sE, sE))
        self.touch(S_W4, 64, sE, 55)

    KRAW, VRAW, SHRAW, POFF = 172, 183, 164, 138

    def p0_loads(self):
        a = self.a
        o = self.POFF
        a("s_lshl_b32 s%d, s%d, 6" % (sA, sR))
        a("s_lshl_b32 s%d, s%d, 4" % (sB, sW))
        a("s_add_u32 s%d, s%d, s%d" % (sA, sA, sB))
        a("v_lshl_add_u32 v26, v%d, 3, s%d" % (vHH, sA))
        a("s_lshl_b32 s%d, s%d, 7" % (sB, sC))
        a("v_lshl_add_u32 v27, v%d, 2, s%d" % (vN31, sB))
        a("v_lshl_add_u32 v%d, v26, 10, v27" % (o + 3))
        a("v_add_u32 v%d, 0x1000, v%d" % (o + 4, o + 3))
        a("v_mov_b32 v28, 0x%x" % OOB)
        for i in range(3):
            a("v_subrev_u32 v%d, %d, v%d" % (o + i, (3 - i) * 1024, o + 3))
            a("v_cmp_gt_u32 vcc, %d, v26" % (3 - i))
            a("v_cndmask_b32 v%d, v%d, v28, vcc" % (o + i, o + i))
        a("s_lshl_b32 s%d, s%d, 9" % (sB, sC))
        a("v_lshl_add_u32 v%d, v%d, 4, s%d" % (o + 5, vN31, sB))

        def item(text):
            return lambda: a.vmem(text, "p0")
        for i in range(3):
            self.fq.append(item("buffer_load_dword v%d, v%d, %s, 0 offen" % (self.KRAW + i, o + i, sr(S_K, 4))))
        for i in range(8):
            self.fq.append(item("buffer_load_dword v%d, v%d, %s, 0 offen offset:%d"
                                % (self.KRAW + 3 + i, o + 3 + i // 4, sr(S_K, 4), (i % 4) * 1024)))
        for i in range(8):
            self.fq.append(item("buffer_load_dword v%d, v%d, %s, 0 offen offset:%d"
                                % (self.VRAW + i, o + 3 + i // 4, sr(S_V, 4), (i % 4) * 1024)))
        self.fq.append(item("buffer_load_dwordx4 %s, v%d, %s, 0 offen" % (vr(self.SHRAW, 4), o + 5, sr(S_SHK, 4))))

    ACK, ACS, ACC_CS = 32, 48, 64
    BF, AK, AS, AC = 80, 96, 104, 112
    SUM, ONE4 = 120, 124

    def s1_setup(self):
        a = self.a
        a("v_bfe_u32 v26, v%d, 1, 3" % vN31)
        a("v_xor_b32 v26, v26, v%d" % vHH)
        a("v_lshlrev_b32 v26, 4, v26")
        a("v_lshl_add_u32 v26, v%d, 7, v26" % vN31)
        a("s_lshl_b32 s%d, s%d, 14" % (sA, sW))
        a("v_add_u32 v128, s%d, v26" % sA)
        for i in range(1, 4):
            a("v_xor_b32 v%d, %d, v128" % (128 + i, 32 * i))
        a("s_lshl_b32 s%d, s%d, 14" % (sA, sKH))
        a("s_add_u32 s%d, s%d, %d" % (sA, sA, LW))
        a("s_lshl_b32 s%d, s%d, 15" % (sB, sKH))
        a("s_add_u32 s%d, s%d, s%d" % (sE, sA, sB))
        a("v_add_u32 v134, s%d, v%d" % (sE, vWN))
        a("s_xor_b32 s%d, s%d, 0x8000" % (sB, sB))
        a("s_add_u32 s%d, s%d, s%d" % (sE, sA, sB))
        a("v_add_u32 v135, s%d, v%d" % (sE, vWN))
        a("s_xor_b32 s%d, s%d, s%d" % (sB, sKH, sTH))
        a("s_lshl_b32 s%d, s%d, 15" % (sB, sB))
        a("s_add_u32 s%d, s%d, s%d" % (sE, sA, sB))
        a("v_add_u32 v136, s%d, v%d" % (sE, vWN))

    def s1_main(self, after_stage):
        a = self.a
        ACK, ACS, ACC_CS, BF, AK, AS, AC, SUM, ONE4 = (self.ACK, self.ACS, self.ACC_CS, self.BF, self.AK, self.AS,
                                                       self.AC, self.SUM, self.ONE4)
        self.selector(ONE4)
        for i in range(4):
            a("v_mov_b32 v%d, 0" % (SUM + i))

        def aread(ks, which):
            base, addr = ((AK, 134), (AS, 135), (AC, 136))[which]
            for hf in range(2):
                a.lds("ds_read_b64_tr_b16 %s, v%d offset:%d"
                      % (vr(base + 4 * (ks & 1) + 2 * hf, 2), addr, ks * 1024 + hf * 256), "f%d_%d" % (ks, which))

        for st in range(4):
            if st < 3:
                after_stage(st)
            for q4 in range(4):
                a.lds("ds_read_b128 %s, v%d offset:%d" % (vr(BF + 4 * q4, 4), 128 + q4, LQ + st * 4096), "b")
            for which in range(3):
                aread(4 * st, which)
            self.fill(1)
            a.wait_lg("b")
            if not self.opt.get("hstat", 0):
                for j in range(16):
                    a("v_dot2c_f32_bf16 v%d, s%d, v%d" % (SUM + (j & 1), sONES, BF + j))
                    a("v_dot2c_f32_bf16 v%d, v%d, v%d" % (SUM + 2 + (j & 1), BF + j, BF + j))
            for q4 in range(4):
                ks = 4 * st + q4
                b = ks & 1
                B = vr(BF + 4 * q4, 4)
                first = ks == 0
                a.wait_lg("f%d_0" % ks)
                a("%s %s, %s, %s, %s" % (MF32, vr(ACK, 16), vr(AK + 4 * b, 4), B, "0" if first else vr(ACK, 16)))
                if q4 < 3:
                    aread(ks + 1, 0)
                self.fill(1)
                a.wait_lg("f%d_1" % ks)
                a("%s %s, %s, %s, %s" % (MF32, vr(ACS, 16), vr(AS + 4 * b, 4), B, "0" if first else vr(ACS, 16)))
                if q4 < 3:
                    aread(ks + 1, 1)
                self.fill(1)
                a.wait_lg("f%d_2" % ks)
                a("%s %s, %s, %s, %s" % (MF16, vr(ACC_CS, 4), vr(AC + 4 * b, 4), vr(ONE4, 4),
                                         "0" if first else vr(ACC_CS, 4)))
                if q4 < 3:
                    aread(ks + 1, 2)
            self.stamp("s1st%d" % st)
        self.fill_all()

    def s1_stats(self):
        a = self.a
        BF, SUM = self.BF, self.SUM
        a("v_bfe_u32 v26, v%d, 1, 3" % vN31)
        a("v_xor_b32 v26, v26, v%d" % vHH)
        a("v_lshlrev_b32 v26, 4, v26")
        a("v_lshl_add_u32 v26, v%d, 7, v26" % vN31)
        a("s_lshl_b32 s%d, s%d, 14" % (sA, sW))
        a("v_add_u32 v128, s%d, v26" % sA)
        for i in range(1, 4):
            a("v_xor_b32 v%d, %d, v128" % (128 + i, 32 * i))
        for i in range(4):
            a("v_mov_b32 v%d, 0" % (SUM + i))
        bufs = (BF, 96)
        for st in range(5):
            if st < 4:
                for q4 in range(4):
                    a.lds("ds_read_b128 %s, v%d offset:%d" % (vr(bufs[st & 1] + 4 * q4, 4), 128 + q4, LQ + st * 4096),
                          "b%d" % st)
            if st:
                a.wait_lg("b%d" % (st - 1))
                B = bufs[(st - 1) & 1]
                for j in range(16):
                    a("v_dot2c_f32_bf16 v%d, s%d, v%d" % (SUM + (j & 1), sONES, B + j))
                    a("v_dot2c_f32_bf16 v%d, v%d, v%d" % (SUM + 2 + (j & 1), B + j, B + j))
        self.stats_write()
        a.wait_lg_all()

    def stats_write(self):
        a = self.a
        SUM = self.SUM
        a("v_add_f32 v%d, v%d, v%d" % (SUM, SUM, SUM + 1))
        a("v_add_f32 v%d, v%d, v%d" % (SUM + 2, SUM + 2, SUM + 3))
        a("v_permlane32_swap_b32 v%d, v%d" % (SUM, SUM + 2))
        a("v_add_f32 v%d, v%d, v%d" % (SUM, SUM, SUM + 2))
        a("s_lshl_b32 s%d, s%d, 8" % (sA, sW))
        a("s_add_u32 s%d, s%d, %d" % (sA, sA, LSTX))
        a("v_lshl_add_u32 v27, v%d, 2, s%d" % (vL, sA))
        a.lds("ds_write_b32 v27, v%d" % SUM)

    def selector(self, dst):
        a = self.a
        a("v_lshrrev_b32 v26, 4, v%d" % vL)
        a("v_xor_b32 v26, v26, v%d" % vL)
        a("v_and_b32 v26, 1, v26")
        a("v_mov_b32 v27, s%d" % sONES)
        a("v_cmp_eq_u32 vcc, 0, v26")
        a("v_cndmask_b32 v%d, 0, v27, vcc" % dst)
        for i in range(1, 4):
            a("v_mov_b32 v%d, v%d" % (dst + i, dst))

    def colsum_write(self, src, sbase):
        a = self.a
        a("v_and_b32 v28, 1, v%d" % vL)
        a("v_lshlrev_b32 v28, 6, v28")
        a("v_lshrrev_b32 v29, 4, v%d" % vL)
        a("v_lshl_add_u32 v28, v29, 4, v28")
        a("v_add_u32 v28, s%d, v28" % sbase)
        self.hold += 1
        a("s_mov_b32 exec_lo, 0x30003")
        a("s_mov_b32 exec_hi, 0x30003")
        a.lds("ds_write_b128 v28, %s" % vr(src, 4))
        a("s_mov_b64 exec, -1")
        self.hold -= 1

    def q_tile_read(self):
        a = self.a
        self.feat0(sE, sKH, 0)
        a("s_lshr_b32 s%d, s%d, 8" % (sA, sE))
        a("s_lshl_b32 s%d, s%d, 1" % (sB, sTH))
        a("s_add_u32 s%d, s%d, s%d" % (sA, sA, sB))
        a("s_lshl_b32 s%d, s%d, 14" % (sA, sA))
        a("s_lshr_b32 s%d, s%d, 6" % (sB, sE))
        a("s_sub_u32 s%d, s%d, s%d" % (sB, sB, sROT))
        a("s_and_b32 s%d, s%d, 3" % (sB, sB))
        a("s_lshl_b32 s%d, s%d, 12" % (sB, sB))
        a("s_add_u32 s%d, s%d, s%d" % (sA, sA, sB))
        a("s_bfe_u32 s%d, s%d, 0x10005" % (sB, sE))
        a("s_lshl_b32 s%d, s%d, 2" % (sB, sB))
        a("v_bfe_u32 v26, v%d, 1, 3" % vN31)
        a("v_xor_b32 v26, s%d, v26" % sB)
        a("v_lshlrev_b32 v27, 7, v%d" % vN31)
        a("v_lshl_add_u32 v27, v%d, 3, v27" % vHH)
        a("v_add_u32 v27, s%d, v27" % sA)
        for j in range(4):
            a("v_xor_b32 v28, %d, v26" % j)
            a("v_lshl_add_u32 v28, v28, 4, v27")
            a.lds("ds_read_b64 %s, v28 offset:%d" % (vr(vQ + 2 * j, 2), LQ), "qt")

    def gelu(self, X, n, vA13, vIA, T, out, fills=0):
        a = self.a
        for g0 in range(0, n // 2, 4):
            ps = list(range(g0, min(g0 + 4, n // 2)))
            t = lambda p: T + 4 * (p - g0)
            x = lambda p: vr(X + 2 * p, 2)
            left = fills

            def hook():
                nonlocal left
                if left > 0:
                    self.fill(1)
                    left -= 1
            for p in ps:
                a("v_pk_mul_f32 %s, %s, %s" % (vr(t(p), 2), x(p), x(p)))
            for p in ps:
                a("v_pk_fma_f32 %s, %s, %s, %s op_sel:[0,1,0] op_sel_hi:[1,1,0]"
                  % (vr(t(p), 2), vr(t(p), 2), vr(vA13, 2), vr(vA13, 2)))
            hook()
            for p in ps:
                a("v_pk_mul_f32 %s, %s, %s" % (vr(t(p), 2), vr(t(p), 2), x(p)))
            for p in ps:
                a("v_exp_f32 v%d, v%d" % (t(p) + 2, t(p)))
                a("v_exp_f32 v%d, v%d" % (t(p) + 3, t(p) + 1))
            hook()
            for p in ps:
                a("v_pk_fma_f32 %s, %s, %s, %s op_sel_hi:[1,0,0]"
                  % (vr(t(p), 2), vr(t(p) + 2, 2), vr(vIA, 2), vr(vIA, 2)))
            hook()
            for p in ps:
                a("v_rcp_f32 v%d, v%d" % (t(p) + 2, t(p)))
                a("v_rcp_f32 v%d, v%d" % (t(p) + 3, t(p) + 1))
            hook()
            for p in ps:
                a("v_pk_mul_f32 %s, %s, %s" % (vr(t(p), 2), vr(t(p) + 2, 2), x(p)))
            for p in ps:
                a("v_cvt_pk_bf16_f32 v%d, v%d, v%d" % (out + p, t(p), t(p) + 1))

    def gelu_consts(self, vA, dst):
        a = self.a
        a("v_mul_f32 v%d, s%d, v%d" % (dst, sKG1, vA))
        a("v_mul_f32 v%d, v%d, v%d" % (dst + 1, vA, vA))
        a("v_mul_f32 v%d, v%d, v%d" % (dst + 1, dst + 1, vA))
        a("v_mul_f32 v%d, s%d, v%d" % (dst + 1, sKG3, dst + 1))
        a("v_rcp_f32 v%d, v%d" % (dst + 2, vA))

    def exchange_write(self, send, base=LRED):
        a = self.a
        a("s_lshl_b32 s%d, s%d, 12" % (sA, sW))
        a("s_add_u32 s%d, s%d, %d" % (sA, sA, base))
        a("v_add_u32 v26, s%d, v%d" % (sA, vL16))
        for j in range(4):
            a.lds("ds_write_b128 v26, %s offset:%d" % (vr(send + 4 * j, 4), 1024 * j))

    def exchange_read(self, dst, base=LRED):
        a = self.a
        a("s_xor_b32 s%d, s%d, 1" % (sA, sW))
        a("s_lshl_b32 s%d, s%d, 12" % (sA, sA))
        a("s_add_u32 s%d, s%d, %d" % (sA, sA, base))
        a("v_add_u32 v26, s%d, v%d" % (sA, vL16))
        for j in range(4):
            a.lds("ds_read_b128 %s, v26 offset:%d" % (vr(dst + 4 * j, 4), 1024 * j), "xr")

    def s1_epilogue(self, after_exchange):
        a = self.a
        ACK, ACS, ACC_CS, SUM = self.ACK, self.ACS, self.ACC_CS, self.SUM
        self.q_tile_read()
        hstat = self.opt.get("hstat", 0)
        if not hstat:
            self.stats_write()
        self.exchange_write(ACS)
        a("s_xor_b32 s%d, s%d, s%d" % (sA, sKH, sTH))
        a("s_lshl_b32 s%d, s%d, 8" % (sA, sA))
        a("s_lshl_b32 s%d, s%d, 7" % (sB, sKH))
        a("s_add_u32 s%d, s%d, s%d" % (sA, sA, sB))
        a("s_add_u32 s%d, s%d, %d" % (sA, sA, LCSX))
        self.colsum_write(ACC_CS, sA)
        a.wait_lg_all()
        self.ssm_d_unpack()
        self.barrier()
        P, C0, C1 = 80, 96, 128
        self.exchange_read(P)
        a("s_xor_b32 s%d, s%d, 1" % (sA, sW))
        a("s_lshl_b32 s%d, s%d, 8" % (sA, sA))
        a("s_add_u32 s%d, s%d, %d" % (sA, sA, LSTX))
        a("v_lshl_add_u32 v27, v%d, 2, s%d" % (vL, sA))
        a.lds("ds_read_b32 v%d, v27" % (SUM + 1), "sx")
        if hstat:
            a("s_lshl_b32 s%d, s%d, 8" % (sA, sW))
            a("s_add_u32 s%d, s%d, %d" % (sA, sA, LSTX))
            a("v_lshl_add_u32 v27, v%d, 2, s%d" % (vL, sA))
            a.lds("ds_read_b32 v%d, v27" % SUM, "sx")
        a("s_lshl_b32 s%d, s%d, 8" % (sA, sKH))
        a("s_add_u32 s%d, s%d, %d" % (sA, sA, LCSX))
        a("v_lshl_add_u32 v28, v%d, 4, s%d" % (vHH, sA))
        for j in range(4):
            a.lds("ds_read_b128 %s, v28 offset:%d" % (vr(C0 + 4 * j, 4), 32 * j))
            a.lds("ds_read_b128 %s, v28 offset:%d" % (vr(C1 + 4 * j, 4), 128 + 32 * j))
        after_exchange()
        a.wait_lg("sx")
        a("v_add_f32 v%d, v%d, v%d" % (SUM, SUM, SUM + 1))
        a("v_mov_b32 v%d, v%d" % (SUM + 2, SUM))
        a("v_permlane32_swap_b32 v%d, v%d" % (SUM, SUM + 2))
        a("v_mul_f32 v%d, s%d, v%d" % (vMEAN, s512I, SUM))
        a("v_mul_f32 v26, s%d, v%d" % (s512I, SUM + 2))
        a("v_fma_f32 v26, -v%d, v%d, v26" % (vMEAN, vMEAN))
        a("v_max_f32 v26, 0, v26")
        a("v_add_f32 v27, s%d, v26" % sEPS)
        a("v_rsq_f32 v%d, v27" % vR1)
        a("v_mul_f32 v27, v%d, v%d" % (vR1, vR1))
        a("v_fma_f32 v27, v27, v26, s%d" % sEPS)
        a("v_rsq_f32 v27, v27")
        a("v_mul_f32 v27, v27, v%d" % vR1)
        G = 112
        self.gelu_consts(27, G)
        a("v_sub_f32 v%d, 0, v%d" % (G + 4, vMEAN))
        a.wait_lg_all()
        for p in range(8):
            a("v_pk_add_f32 %s, %s, %s" % (vr(C0 + 2 * p, 2), vr(C0 + 2 * p, 2), vr(C1 + 2 * p, 2)))
            a("v_pk_add_f32 %s, %s, %s" % (vr(ACK + 2 * p, 2), vr(ACK + 2 * p, 2), vr(P + 2 * p, 2)))
        for p in range(8):
            a("v_pk_fma_f32 %s, %s, %s, %s op_sel_hi:[1,0,1]"
              % (vr(ACK + 2 * p, 2), vr(C0 + 2 * p, 2), vr(G + 4, 2), vr(ACK + 2 * p, 2)))
        self.gelu(ACK, 16, G, G + 2, 144, 48, fills=0)
        self.frag_store(48, WS_HS, "hst")

    def frag_store(self, src, base, tag):
        a = self.a
        a("s_lshl_b32 s%d, s%d, 15" % (sA, sT))
        self.feat0(sB, sKH, 6)
        a("s_add_u32 s%d, s%d, s%d" % (sA, sA, sB))
        a("s_add_u32 s%d, s%d, 0x%x" % (sA, sA, base))
        a.vmem("buffer_store_dwordx4 %s, v%d, %s, s%d offen sc1" % (vr(src, 4), vL16, sr(S_WS, 4), sA), tag)
        a.vmem("buffer_store_dwordx4 %s, v%d, %s, s%d offen offset:1024 sc1"
               % (vr(src + 4, 4), vL16, sr(S_WS, 4), sA), tag)

    PK = 118

    def nonce_compute(self):
        a = self.a
        a.wait_vm("nonce")
        a("v_readfirstlane_b32 s%d, v30" % sN)
        a("s_mul_i32 s%d, s%d, 0x9e3779b1" % (sN, sN))
        a("s_add_u32 s%d, s%d, 0x7f4a7c15" % (sN, sN))

    def p0_compute(self, mid=None):
        a = self.a
        K, V, SH, KV, PK = 56, 78, 94, 102, self.PK
        self.p0_reads()
        a.wait_lg_all()
        d = self.SHRAW
        for j, (x, y, hi) in enumerate([(d, d + 2, 0), (d, d + 2, 1), (d + 1, d + 3, 0), (d + 1, d + 3, 1)]):
            for o, src in ((0, x), (1, y)):
                if hi:
                    a("v_and_b32 v%d, s%d, v%d" % (SH + 2 * j + o, sHI, src))
                else:
                    a("v_lshlrev_b32 v%d, 16, v%d" % (SH + 2 * j + o, src))
        for i in range(11):
            a("v_lshlrev_b32 v%d, 16, v%d" % (K + 2 * i, self.KRAW + i))
            a("v_and_b32 v%d, s%d, v%d" % (K + 2 * i + 1, sHI, self.KRAW + i))
            if i % 4 == 3:
                self.fill(1)
        for i in range(8):
            a("v_lshlrev_b32 v%d, 16, v%d" % (V + 2 * i, self.VRAW + i))
            a("v_and_b32 v%d, s%d, v%d" % (V + 2 * i + 1, sHI, self.VRAW + i))
        self.fill(1)
        for t in range(8):
            a("v_pk_mul_f32 %s, %s, %s" % (vr(KV + 2 * t, 2), vr(K + 2 * (t + 3), 2), vr(SH, 2)))
        self.fill(1)
        for j in range(1, 4):
            for t in range(8):
                a("v_pk_fma_f32 %s, %s, %s, %s" % (vr(KV + 2 * t, 2), vr(K + 2 * (t + 3 - j), 2), vr(SH + 2 * j, 2),
                                                   vr(KV + 2 * t, 2)))
            self.fill(1)
        if mid:
            mid()
            self.fill(4)
        for t in range(8):
            a("v_pk_mul_f32 %s, %s, %s" % (vr(KV + 2 * t, 2), vr(KV + 2 * t, 2), vr(V + 2 * t, 2)))
        self.fill(1)
        for c in range(2):
            for t in range(4):
                a("v_cvt_pk_bf16_f32 v%d, v%d, v%d" % (PK + 4 * c + t, KV + 4 * t + c, KV + 4 * t + 2 + c))
        a("s_lshl_b32 s%d, s%d, 1" % (sA, sW))
        a("v_add_u32 v26, s%d, v%d" % (sA, vHH))
        a("v_and_b32 v27, 7, v%d" % vN31)
        a("v_xor_b32 v26, v26, v27")
        a("v_lshlrev_b32 v26, 4, v26")
        a("v_lshl_add_u32 v26, v%d, 8, v26" % vN31)
        a("v_add_u32 v26, %d, v26" % LSTG)
        a.lds("ds_write_b128 v26, %s" % vr(PK, 4))
        a.lds("ds_write_b128 v26, %s offset:128" % vr(PK + 4, 4))
        self.fill_all()

    def p0_readback(self):
        a = self.a
        PK = 144
        a("v_lshrrev_b32 v26, 3, v%d" % vL)
        a("s_lshl_b32 s%d, s%d, 4" % (sA, sW))
        a("v_add_u32 v26, s%d, v26" % sA)
        a("v_and_b32 v27, 7, v%d" % vL)
        for i in range(2):
            a("v_add_u32 v28, %d, v26" % (8 * i))
            a("v_bfe_u32 v29, v28, 1, 3")
            a("v_xor_b32 v29, v29, v27")
            a("v_lshlrev_b32 v29, 4, v29")
            a("v_lshl_add_u32 v29, v28, 7, v29")
            a("v_add_u32 v29, %d, v29" % LSTG)
            a.lds("ds_read_b128 %s, v29" % vr(PK + 4 * i, 4), "pk")
        a("v_lshlrev_b32 v27, 4, v27")
        a("v_lshl_add_u32 v152, v26, 12, v27")

    def p0_store(self):
        a = self.a
        PK = 144
        a("s_lshl_b32 s%d, s%d, 18" % (sA, sC))
        a("s_lshl_b32 s%d, s%d, 7" % (sB, sR))
        a("s_add_u32 s%d, s%d, s%d" % (sA, sA, sB))
        a("s_add_u32 s%d, s%d, 0x%x" % (sA, sA, WS_KVT))
        a("s_add_u32 s%d, s%d, 0x8000" % (sB, sA))
        a.wait_lg("pk")
        a.vmem("buffer_store_dwordx4 %s, v152, %s, s%d offen sc1" % (vr(PK, 4), sr(S_WS, 4), sA), "kvt")
        a.vmem("buffer_store_dwordx4 %s, v152, %s, s%d offen sc1" % (vr(PK + 4, 4), sr(S_WS, 4), sB), "kvt")

    def conv_filter_loads(self, ch):
        a = self.a
        a("v_lshlrev_b32 v26, 4, v%d" % vTID)
        a("v_subrev_u32 v27, 8, v26")
        a("v_mov_b32 v28, 0x%x" % OOB)
        a("v_cmp_eq_u32 vcc, 0, v%d" % vTID)
        a("v_cndmask_b32 v27, v27, v28, vcc")
        a("s_lshl_b32 s%d, s2, 13" % sA)
        if ch:
            a("s_add_u32 s%d, s%d, 0x1000" % (sA, sA))
        dA, dP = vr(vCH, 4), vr(vCH + 4, 2)
        a.vmem("buffer_load_dwordx4 %s, v26, %s, s%d offen" % (dA, sr(S_SSM, 4), sA), "cf")
        a.vmem("buffer_load_dwordx2 %s, v27, %s, s%d offen" % (dP, sr(S_SSM, 4), sA), "cf")

    def ssm_d_load(self):
        a = self.a
        a("s_lshl_b32 s%d, s2, 2" % sA)
        a("s_load_dword s%d, %s, s%d" % (sD0, sr(S_DPTR, 2), sA))

    def ssm_d_unpack(self):
        a = self.a
        a("s_and_b32 s%d, s%d, s%d" % (sD1, sD0, sHI))
        a("s_lshl_b32 s%d, s%d, 16" % (sD0, sD0))

    def conv_x_loads(self, ch):
        a = self.a
        a("v_lshlrev_b32 v26, 4, v%d" % vTID)
        a("s_lshl_b32 s%d, s2, 13" % sA)
        a("s_add_u32 s%d, s%d, 0x%x" % (sA, sA, WS_KVT + 0x1000 * ch))
        a.vmem("buffer_load_dwordx4 %s, v26, %s, s%d offen sc1" % (vr(vCH + 6, 4), sr(S_WS, 4), sA), "cx")

    def conv_prep_filter(self, ch):
        a = self.a
        base = CV_BASE1 if ch else CV_BASE
        A, P = vCH, vCH + 4
        a.wait_vm("cf")
        a("v_min_u32 v26, 79, v%d" % vTID)
        a("v_subrev_u32 v27, 72, v26")
        a("v_lshrrev_b32 v28, 1, v27")
        a("v_mul_u32_u24 v28, 4128, v28")
        a("v_and_b32 v27, 1, v27")
        a("v_lshl_add_u32 v28, v27, 4, v28")
        a("v_add_u32 v28, %d, v28" % (base + CV_A))
        a("v_lshlrev_b32 v27, 4, v26")
        a("v_add_u32 v27, %d, v27" % (base + CV_X))
        a("v_cmp_gt_u32 vcc, 72, v26")
        a("v_cndmask_b32 v28, v28, v27, vcc")
        for i in range(4):
            a("v_mov_b32 v%d, 0" % (32 + i))
        a.lds("ds_write_b128 v28, %s" % vr(32, 4))
        Z, Y, W = 36, 40, 44
        seq = [P, P + 1, A, A + 1, A + 2, A + 3]
        for j in range(4):
            a("v_alignbit_b32 v%d, v%d, v%d, 16" % (Z + j, seq[j + 1], seq[j]))
            a("v_alignbit_b32 v%d, v%d, v%d, 16" % (Y + j, seq[j + 2], seq[j + 1]))
            a("v_mov_b32 v%d, v%d" % (W + j, seq[j + 1]))
        a("v_lshlrev_b32 v29, 4, v%d" % vTID)
        a("v_add_u32 v29, %d, v29" % base)
        for rho, src in ((0, A), (1, Y), (2, W), (3, Z)):
            a.lds("ds_write_b128 v29, %s offset:%d" % (vr(src, 4), CV_A + 32 + 4128 * rho))
        a.wait_lg_all()

    def conv_x_write(self, ch):
        a = self.a
        base = CV_BASE1 if ch else CV_BASE
        a.wait_vm("cx")
        a("v_lshlrev_b32 v29, 4, v%d" % vTID)
        a("v_add_u32 v29, %d, v29" % base)
        a.lds("ds_write_b128 v29, %s offset:%d" % (vr(vCH + 6, 4), CV_XD))
        a.wait_lg_all()

    def conv_poly(self, ch):
        a = self.a
        base = CV_BASE1 if ch else CV_BASE
        a("s_lshl_b32 s%d, s%d, 5" % (sA, sW))
        a("s_sub_u32 s%d, %d, s%d" % (sA, base + CV_XD - 1024, sA))
        a("v_lshl_add_u32 v26, v%d, 3, s%d" % (vL, sA))
        for u in range(10):
            a.lds("ds_read_b64_tr_b16 %s, v26 offset:%d" % (vr(32 + 2 * u, 2), 512 * u), "u%d" % u)
        a("s_mul_i32 s%d, s%d, 5312" % (sA, sW))
        a("s_add_u32 s%d, s%d, %d" % (sA, sA, base + CV_P))
        a("v_and_b32 v27, 15, v%d" % vL)
        a("v_mul_u32_u24 v27, 328, v27")
        a("v_lshrrev_b32 v28, 4, v%d" % vL)
        a("v_lshl_add_u32 v27, v28, 3, v27")
        a("v_add_u32 v27, s%d, v27" % sA)
        for u in range(10):
            a.wait_lg("u%d" % u)
            a.lds("ds_write_b64 v27, %s offset:%d" % (vr(32 + 2 * u, 2), 32 * u))
        a.wait_lg_all()

    def conv_addr(self, ch):
        a = self.a
        base = CV_BASE1 if ch else CV_BASE
        a("s_lshl_b32 s%d, s%d, 4" % (sA, sTH))
        a("s_sub_u32 s%d, %d, s%d" % (sA, base + CV_A + 24, sA))
        a("v_lshl_add_u32 v160, v%d, 3, s%d" % (vL, sA))
        a("s_mul_i32 s%d, s%d, 2624" % (sA, sTH))
        a("s_lshl_b32 s%d, s%d, 5" % (sB, sKH))
        a("s_add_u32 s%d, s%d, s%d" % (sA, sA, sB))
        a("s_add_u32 s%d, s%d, %d" % (sA, sA, base + CV_P + 32))
        a("v_bfe_u32 v26, v%d, 2, 2" % vL)
        a("v_mul_u32_u24 v26, 5312, v26")
        a("v_and_b32 v27, 3, v%d" % vL)
        a("v_lshrrev_b32 v28, 4, v%d" % vL)
        a("v_sub_u32 v27, v27, v28")
        a("v_lshl_add_u32 v26, v27, 3, v26")
        a("v_add_u32 v161, s%d, v26" % sA)

    CACC, CAF, CBF = 32, 64, 96

    def conv_main(self, hook=None, fill_every=0):
        a = self.a
        CACC, CAF, CBF = self.CACC, self.CAF, self.CBF

        def rd_list(it):
            b = it & 1
            u, rho = it >> 2, it & 3
            out = []
            order = [("A", 0), ("B", 0), ("B", 1), ("B", 2), ("B", 3), ("A", 1), ("A", 2), ("A", 3)]
            for kind, i in order:
                for hf in range(2):
                    if kind == "A":
                        out.append(("ds_read_b64_tr_b16 %s, v160 offset:%d"
                                    % (vr(CAF + 16 * b + 4 * i + 2 * hf, 2),
                                       4128 * rho + 8 * (1 - u) + 1024 * i + 512 * hf), "A%d_%d" % (it, i)))
                    else:
                        out.append(("ds_read_b64_tr_b16 %s, v161 offset:%d"
                                    % (vr(CBF + 16 * b + 4 * i + 2 * hf, 2), 328 * it + 64 * i + 32 * (1 - hf)),
                                    "B%d_%d" % (it, i)))
            return out

        for x, t in rd_list(0):
            a.lds(x, t)
        for it in range(8):
            if hook and it % 2 == 0:
                hook(it // 2)
            b = it & 1
            nxt = rd_list(it + 1) if it < 7 else []
            k = 0
            for q in range(4):
                for i in range(4 - q):
                    a.wait_lg("A%d_%d" % (it, q), "B%d_%d" % (it, i))
                    acc = vr(CACC + 4 * (i + q), 4)
                    a("%s %s, %s, %s, %s" % (MF16, acc, vr(CAF + 16 * b + 4 * q, 4), vr(CBF + 16 * b + 4 * i, 4),
                                             "0" if (it == 0 and q == 0) else acc))
                    for _ in range(2 if k < 6 else 1):
                        if nxt:
                            x, t = nxt.pop(0)
                            a.lds(x, t)
                    k += 1
            assert not nxt

    def conv_finish(self, ch):
        a = self.a
        base = CV_BASE1 if ch else CV_BASE
        CACC = self.CACC
        self.barrier()
        a("s_lshl_b32 s%d, s%d, 11" % (sA, sW))
        a("s_add_u32 s%d, s%d, %d" % (sA, sA, base + CV_R))
        a("v_add_u32 v26, s%d, v%d" % (sA, vL16))
        hi, done = a.newlabel("cvhi"), a.newlabel("cvsent")
        self.hold += 1
        a("s_cmp_lg_u32 s%d, 0" % sTH)
        a("s_cbranch_scc1 %s" % hi)
        for j in range(2):
            a("ds_write_b128 v26, %s offset:%d" % (vr(CACC + 8 + 4 * j, 4), 1024 * j))
        a("s_branch %s" % done)
        a.label(hi)
        for j in range(2):
            a("ds_write_b128 v26, %s offset:%d" % (vr(CACC + 4 * j, 4), 1024 * j))
        a.label(done)
        self.hold -= 1
        a("s_lshl_b32 s%d, s%d, 2" % (sE, sTH))
        a("s_add_u32 s%d, s%d, s%d" % (sE, sE, sKH))
        a("s_lshl_b32 s%d, s%d, 9" % (sE, sE))
        a("s_add_u32 s%d, s%d, %d" % (sA, sE, base + CV_XD))
        a("v_and_b32 v27, 15, v%d" % vL)
        a("v_lshlrev_b32 v27, 5, v27")
        a("v_lshrrev_b32 v28, 4, v%d" % vL)
        a("v_lshl_add_u32 v27, v28, 3, v27")
        a("v_add_u32 v27, s%d, v27" % sA)
        for u in range(2):
            a.lds("ds_read_b64 %s, v27 offset:%d" % (vr(100 + 2 * u, 2), 1024 * u))
        a.wait_lg_all()
        self.barrier()
        a("s_xor_b32 s%d, s%d, 2" % (sA, sW))
        a("s_lshl_b32 s%d, s%d, 11" % (sA, sA))
        a("s_add_u32 s%d, s%d, %d" % (sA, sA, base + CV_R))
        a("v_add_u32 v26, s%d, v%d" % (sA, vL16))
        for u in range(2):
            a.lds("ds_read_b128 %s, v26 offset:%d" % (vr(72 + 4 * u, 4), 1024 * u))
        for u in range(2):
            for j in range(2):
                a("v_lshlrev_b32 v%d, 16, v%d" % (104 + 4 * u + 2 * j, 100 + 2 * u + j))
                a("v_and_b32 v%d, s%d, v%d" % (105 + 4 * u + 2 * j, sHI, 100 + 2 * u + j))
        a("v_mov_b32 v112, s%d" % (sD1 if ch else sD0))
        a("v_lshrrev_b32 v26, 4, v%d" % vL)
        a("v_and_b32 v27, 1, v26")
        a("v_lshlrev_b32 v27, 10, v27")
        a("v_lshrrev_b32 v26, 1, v26")
        a("v_lshl_add_u32 v27, v26, 4, v27")
        a("v_and_b32 v26, 15, v%d" % vL)
        a("v_lshl_add_u32 v27, v26, 5, v27")
        a("v_add_u32 v27, s%d, v27" % sE)
        a("s_lshl_b32 s%d, s2, 13" % sA)
        a("s_add_u32 s%d, s%d, 0x%x" % (sA, sA, WS_YT + 0x1000 * ch))
        a.wait_lg_all()
        hi, done = a.newlabel("cvhi"), a.newlabel("cvsum")
        self.hold += 1
        a("s_cmp_lg_u32 s%d, 0" % sTH)
        a("s_cbranch_scc1 %s" % hi)
        for p in range(4):
            a("v_pk_add_f32 %s, %s, %s" % (vr(64 + 2 * p, 2), vr(CACC + 2 * p, 2), vr(72 + 2 * p, 2)))
        a("s_branch %s" % done)
        a.label(hi)
        for p in range(4):
            a("v_pk_add_f32 %s, %s, %s" % (vr(64 + 2 * p, 2), vr(CACC + 8 + 2 * p, 2), vr(72 + 2 * p, 2)))
        a.label(done)
        self.hold -= 1
        for p in range(4):
            a("v_pk_fma_f32 %s, %s, %s, %s op_sel_hi:[1,0,1]" % (vr(64 + 2 * p, 2), vr(104 + 2 * p, 2), vr(112, 2),
                                                                vr(64 + 2 * p, 2)))
        for p in range(4):
            a("v_cvt_pk_bf16_f32 v%d, v%d, v%d" % (116 + p, 64 + 2 * p, 65 + 2 * p))
        a("v_permlane16_swap_b32 v116, v118")
        a("v_permlane16_swap_b32 v117, v119")
        a.vmem("buffer_store_dwordx4 %s, v27, %s, s%d offen sc1" % (vr(116, 4), sr(S_WS, 4), sA), "yt")

    def s2_load_items(self):
        a = self.a
        a("s_lshl_b32 s%d, s%d, 5" % (sA, sT))
        a("v_add_u32 v26, s%d, v%d" % (sA, vN31))
        a("s_add_u32 s%d, s%d, 1" % (sB, sKH))
        a("s_lshl_b32 s%d, s%d, 14" % (sA, sKH))
        a("s_add_u32 s%d, s%d, 0x%x" % (sA, sA, WS_HS))
        a("v_mov_b32 v29, 0x%x" % OOB)
        for i, op in enumerate(("v_subrev_u32", "v_add_u32")):
            a("%s v27, s%d, v26" % (op, sB))
            a("v_lshrrev_b32 v28, 5, v27")
            a("v_lshlrev_b32 v28, 15, v28")
            a("v_and_b32 v30, 31, v27")
            a("v_lshl_add_u32 v30, v%d, 5, v30" % vHH)
            a("v_lshl_add_u32 v28, v30, 4, v28")
            a("v_add_u32 v28, s%d, v28" % sA)
            a("v_cmp_gt_u32 vcc, 0x800, v27")
            a("v_cndmask_b32 v%d, v29, v28, vcc" % (140 + i))
        so = ["0", "s%d" % sK4, "s%d" % sK8, "s%d" % sK12]
        items = []
        for ks in range(16):
            def f(ks=ks):
                a.vmem("buffer_load_dwordx4 %s, v%d, %s, %s offen offset:%d sc1"
                       % (ar(4 * ks, 4), 140 + (ks >> 3), sr(S_WS, 4), so[ks >> 2], (ks & 3) * 1024), "h%d" % ks)
            items.append(f)
        return items

    def wpi_addr(self, vk, vs, base, khs, ps):
        a = self.a
        a("s_mul_i32 s%d, s%d, %d" % (sA, sKH, khs + ps))
        a("s_add_u32 s%d, s%d, %d" % (sA, sA, base))
        a("v_add_u32 v%d, s%d, v%d" % (vk, sA, vWP))
        a("s_mul_i32 s%d, s%d, %d" % (sA, sKH, khs - ps))
        a("s_add_u32 s%d, s%d, %d" % (sA, sA, base + ps))
        a("v_add_u32 v%d, s%d, v%d" % (vs, sA, vWP))

    def s2_main(self):
        a = self.a
        ACK, ACS, AK, AS = self.ACK, self.ACS, self.AK, self.AS

        def rd(ks, which):
            base, addr = ((AK, 128), (AS, 129))[which]
            for hf in range(2):
                a.lds("ds_read_b64_tr_b16 %s, v%d offset:%d" % (vr(base + 4 * (ks & 1) + 2 * hf, 2), addr,
                                                                ks * 1024 + hf * 512), "f%d_%d" % (ks, which))
        rd(0, 0)
        rd(0, 1)
        for ks in range(16):
            b = ks & 1
            a.wait_both("h%d" % ks, "f%d_0" % ks)
            a("%s %s, %s, %s, %s" % (MF32, vr(ACK, 16), vr(AK + 4 * b, 4), ar(4 * ks, 4), "0" if ks == 0 else vr(ACK, 16)))
            if ks < 15:
                rd(ks + 1, 0)
            self.fill(1)
            a.wait_lg("f%d_1" % ks)
            a("%s %s, %s, %s, %s" % (MF32, vr(ACS, 16), vr(AS + 4 * b, 4), ar(4 * ks, 4), "0" if ks == 0 else vr(ACS, 16)))
            if ks < 15:
                rd(ks + 1, 1)
            if ks in (0, 4, 9, 12):
                self.stamp("s2k%d" % ks)

    def unpack8(self, src, dst):
        a = self.a
        for j in range(8):
            a("v_lshlrev_b32 v%d, 16, v%d" % (dst + 2 * j, src + j))
            a("v_and_b32 v%d, s%d, v%d" % (dst + 2 * j + 1, sHI, src + j))

    def xn_tile(self, dst):
        a = self.a
        self.unpack8(vQ, dst)
        for p in range(8):
            a("v_pk_add_f32 %s, %s, %s op_sel_hi:[1,0] neg_lo:[0,1] neg_hi:[0,1]"
              % (vr(dst + 2 * p, 2), vr(dst + 2 * p, 2), vr(vMEAN, 2)))
        for p in range(8):
            a("v_pk_mul_f32 %s, %s, %s op_sel:[0,1] op_sel_hi:[1,1]"
              % (vr(dst + 2 * p, 2), vr(dst + 2 * p, 2), vr(vMEAN, 2)))

    def s2_epilogue(self, after_exchange):
        a = self.a
        ACK, ACS = self.ACK, self.ACS
        self.exchange_write(ACS)
        self.xn_tile(96)
        a.wait_lg_all()
        self.barrier()
        after_exchange()
        self.exchange_read(80)
        for p in range(8):
            a("v_pk_add_f32 %s, %s, %s" % (vr(ACK + 2 * p, 2), vr(ACK + 2 * p, 2), vr(96 + 2 * p, 2)))
        a.wait_lg_all()
        for p in range(8):
            a("v_pk_add_f32 %s, %s, %s" % (vr(ACK + 2 * p, 2), vr(ACK + 2 * p, 2), vr(80 + 2 * p, 2)))
        for p in range(8):
            a("v_cvt_pk_bf16_f32 v%d, v%d, v%d" % (vX1 + p, ACK + 2 * p, ACK + 2 * p + 1))
        self.frag_store(vX1, WS_X1, "x1st")
        a("v_pk_mul_f32 %s, %s, %s" % (vr(112, 2), vr(ACK, 2), vr(ACK, 2)))
        a("v_pk_add_f32 %s, %s, %s" % (vr(114, 2), vr(ACK, 2), vr(ACK + 2, 2)))
        for p in range(1, 8):
            a("v_pk_fma_f32 %s, %s, %s, %s" % (vr(112, 2), vr(ACK + 2 * p, 2), vr(ACK + 2 * p, 2), vr(112, 2)))
            if p >= 2:
                a("v_pk_add_f32 %s, %s, %s" % (vr(114, 2), vr(114, 2), vr(ACK + 2 * p, 2)))
        a("v_add_f32 v114, v114, v115")
        a("v_add_f32 v112, v112, v113")
        a("v_permlane32_swap_b32 v114, v112")
        a("v_add_f32 v114, v114, v112")
        a("s_lshl_b32 s%d, s%d, 1" % (sA, sC))
        a("s_add_u32 s%d, s%d, s%d" % (sA, sA, sKH))
        a("s_lshl_b32 s%d, s%d, 14" % (sA, sA))
        a("s_lshl_b32 s%d, s%d, 7" % (sB, sT))
        a("s_add_u32 s%d, s%d, s%d" % (sA, sA, sB))
        a("s_add_u32 s%d, s%d, 0x%x" % (sA, sA, WS_ST))
        a("v_lshlrev_b32 v26, 13, v%d" % vHH)
        a("v_lshl_add_u32 v26, v%d, 2, v26" % vN31)
        a.vmem("buffer_store_dword v114, v26, %s, s%d offen sc1" % (sr(S_WS, 4), sA), "x1st")

    def w3_setup(self):
        a = self.a
        a("s_movk_i32 s%d, 3584" % sB)
        a("v_lshrrev_b32 v26, 2, v%d" % vL)
        a("v_mul_lo_u32 v26, v26, s%d" % sB)
        a("v_and_b32 v27, 3, v%d" % vL)
        a("v_lshl_add_u32 v%d, v27, 4, v26" % vW3F)
        a("v_lshrrev_b32 v26, 1, v%d" % vL)
        a("v_mul_lo_u32 v26, v26, s%d" % sB)
        a("v_and_b32 v27, 1, v%d" % vL)
        a("v_lshl_add_u32 v%d, v27, 4, v26" % vW3H)
        a("s_mul_i32 s%d, s%d, %d" % (sW3HG, sW, 128 * 3584))
        a("s_mul_i32 s%d, s%d, 224" % (sA, sCP))
        a("s_add_u32 s%d, s%d, s%d" % (sW3HG, sW3HG, sA))
        a("s_and_b32 s%d, s%d, 1" % (sB, sCP))
        a("s_lshl_b32 s%d, s%d, 5" % (sW3G, sB))
        a("s_add_u32 s%d, s%d, s%d" % (sW3G, sW3G, sW3HG))
        a("s_xor_b32 s%d, s%d, 1" % (sB, sB))
        a("s_mul_i32 s%d, s%d, 192" % (sB, sB))
        a("s_add_u32 s%d, s%d, s%d" % (sW3HG, sW3HG, sB))
        a("s_lshl_b32 s%d, s%d, 13" % (sW3L, sW))
        a("s_lshl_b32 s%d, s%d, 12" % (sW3HL, sW))

    def w3_items(self, panels):
        out = []
        for p in panels:
            if p < 3:
                for i in range(8):
                    out.append(self.dma_item(S_W3, vW3F, sW3L, W3_P + p * 32768 + i * 1024, sW3G,
                                             p * 64 + i * 16 * 3584, "w3"))
            else:
                for i in range(4):
                    out.append(self.dma_item(S_W3, vW3H, sW3HL, W3_H + i * 1024, sW3HG, i * 32 * 3584, "w3"))
        return out

    def s3_load_items(self):
        a = self.a
        a("s_lshl_b32 s%d, s%d, 15" % (sLD, sT3))
        a("s_add_u32 s%d, s%d, 0x%x" % (sLD, sLD, WS_X1))
        items = []
        for ks in range(32):
            def f(ks=ks):
                if ks and ks % 4 == 0:
                    a("s_add_u32 s%d, s%d, 0x1000" % (sLD, sLD))
                a.vmem("buffer_load_dwordx4 %s, v%d, %s, s%d offen offset:%d sc1"
                       % (ar(4 * (ks % 16), 4), vL16, sr(S_WS, 4), sLD, (ks & 3) * 1024), "x%d" % ks)
            items.append(f)
        return items

    def s3_stat_items(self):
        a = self.a
        a("v_lshlrev_b32 v147, 13, v%d" % vHH)
        a("v_lshl_add_u32 v147, v%d, 2, v147" % vN31)
        items = []
        for sl in range(16):
            def f(sl=sl):
                a("s_lshl_b32 s%d, s%d, 7" % (sSO, sT3))
                a("s_add_u32 s%d, s%d, 0x%x" % (sSO, sSO, WS_ST + 0x4000 * sl))
                a.vmem("buffer_load_dword v%d, v147, %s, s%d offen sc1" % (vST + sl, sr(S_WS, 4), sSO), "st")
            items.append(f)
        return items

    def s3_addr(self):
        a = self.a
        a("v_add_u32 v144, %d, v%d" % (W3_P, vWP))
        a("v_add_u32 v145, %d, v%d" % (W3_P + 65536, vWP))
        a("v_bfe_u32 v26, v%d, 2, 2" % vL)
        a("v_lshl_add_u32 v26, v%d, 2, v26" % vHH)
        a("v_and_b32 v27, 3, v%d" % vL)
        a("v_lshlrev_b32 v27, 3, v27")
        a("v_lshl_add_u32 v26, v26, 5, v27")
        a("v_add_u32 v146, %d, v26" % W3_H)

    @staticmethod
    def w3_read(p, ks, hf, dst):
        if p < 2:
            return "ds_read_b64_tr_b16 %s, v144 offset:%d" % (vr(dst, 2), p * 32768 + ks * 1024 + hf * 512)
        if p == 2:
            return "ds_read_b64_tr_b16 %s, v145 offset:%d" % (vr(dst, 2), ks * 1024 + hf * 512)
        return "ds_read_b64_tr_b16 %s, v146 offset:%d" % (vr(dst, 2), ks * 512 + hf * 256)

    def s3_colsum(self):
        self.hold += 1
        self._s3_colsum()
        self.hold -= 1

    def _s3_colsum(self):
        a = self.a
        full = a.newlabel("csfull")
        done = a.newlabel("csdone")
        self.selector(120)
        a("s_cmp_lt_u32 s%d, 3" % sW)
        a("s_cbranch_scc1 %s" % full)
        for is_full in (False, True):
            if is_full:
                a.label(full)
                a("s_lshl_b32 s%d, s%d, 15" % (sA, sW))
                a("v_add_u32 v148, s%d, v144" % sA)
            stride, hstep, addr = (1024, 512, 148) if is_full else (512, 256, 146)
            saved = list(a.lg)
            a.lg = []

            def rd(ks):
                for hf in range(2):
                    a.lds("ds_read_b64_tr_b16 %s, v%d offset:%d" % (vr(96 + 4 * (ks % 6) + 2 * hf, 2), addr,
                                                                    ks * stride + hf * hstep), "c%d" % ks)
            for ks in range(5):
                rd(ks)
            for ks in range(32):
                a.wait_lg("c%d" % ks)
                a("%s %s, %s, %s, %s" % (MF16, vr(32 + 4 * (ks & 1), 4), vr(96 + 4 * (ks % 6), 4), vr(120, 4),
                                         "0" if ks < 2 else vr(32 + 4 * (ks & 1), 4)))
                if ks + 5 < 32:
                    rd(ks + 5)
            a.lg = saved
            if not is_full:
                a("s_branch %s" % done)
        a.label(done)
        a("v_pk_add_f32 v[32:33], v[32:33], v[36:37]")
        a("v_pk_add_f32 v[34:35], v[34:35], v[38:39]")
        a("s_lshl_b32 s%d, s%d, 7" % (sA, sW))
        a("s_add_u32 s%d, s%d, %d" % (sA, sA, LCS3))
        self.colsum_write(32, sA)
        a.wait_lg_all()

    S3G = 128

    def s3_shadow_ops(self):
        G = self.S3G
        ops = []
        for s in (8, 4, 2, 1):
            for i in range(s):
                ops.append("v_add_f32 v%d, v%d, v%d" % (vST + i, vST + i, vST + i + s))
        ops += ["v_mov_b32 v%d, v%d" % (vST + 1, vST),
                "v_lshlrev_b32 v28, 4, v%d" % vHH,
                "v_add_u32 v149, %d, v28" % LCS3,
                "v_permlane32_swap_b32 v%d, v%d" % (vST, vST + 1),
                "s_mul_i32 s%d, s%d, 114688" % (sD, sT3),
                "v_mul_f32 v%d, s%d, v%d" % (vST + 2, s512I, vST),
                "s_mul_i32 s%d, s%d, 7168" % (sA, sCP),
                "v_mul_f32 v26, s%d, v%d" % (s512I, vST + 1),
                "s_add_u32 s%d, s%d, s%d" % (sD, sD, sA),
                "v_fma_f32 v26, -v%d, v%d, v26" % (vST + 2, vST + 2),
                "s_add_u32 s%d, s%d, 0x%x" % (sD, sD, WS_HH),
                "v_max_f32 v26, 0, v26",
                "s_and_b32 s%d, s%d, 1" % (sB, sCP),
                "v_add_f32 v26, s%d, v26" % sEPS,
                "s_lshl_b32 s%d, s%d, 10" % (sE, sB),
                "v_rsq_f32 v27, v26",
                "s_add_u32 s%d, s%d, s%d" % (sE, sE, sD),
                "v_sub_f32 v%d, 0, v%d" % (G + 4, vST + 2),
                "s_xor_b32 s%d, s%d, 1" % (sB, sB),
                "v_mul_f32 v%d, s%d, v27" % (G, sKG1),
                "s_mul_i32 s%d, s%d, 6144" % (sB, sB),
                "v_mul_f32 v%d, v27, v27" % (G + 1),
                "s_add_u32 s%d, s%d, s%d" % (sF, sD, sB),
                "v_mul_f32 v%d, v%d, v27" % (G + 1, G + 1),
                "v_mul_f32 v%d, s%d, v%d" % (G + 1, sKG3, G + 1),
                "v_rcp_f32 v%d, v27" % (G + 2)]
        return ops

    def s3_csread(self, p):
        a = self.a
        n = 16 if p < 3 else 8
        for j in range(n // 4):
            a.lds("ds_read_b128 %s, v149 offset:%d" % (vr(96 + 16 * (p & 1) + 4 * j, 4), 128 * p + 32 * j), "cs%d" % p)

    def s3_main(self, mid):
        a = self.a
        AF = 96
        shadow = self.s3_shadow_ops() if self.opt.get("s3sh", 1) else []
        self.s3_left = shadow
        first = self.opt.get("s3sh0", 24)

        def rd(ks, p):
            for hf in range(2):
                a.lds(self.w3_read(p, ks, hf, AF + 16 * (ks & 1) + 4 * p + 2 * hf), "f%d_%d" % (ks, p))
        for p in range(4):
            rd(0, p)
        for ks in range(32):
            b = ks & 1
            if ks == first and shadow:
                a.wait_vm("st")
            for p in range(4):
                if p == 0:
                    a.wait_both("x%d" % ks, "f%d_0" % ks)
                else:
                    a.wait_lg("f%d_%d" % (ks, p))
                acc = vr(32 + 16 * p, 16)
                a("%s %s, %s, %s, %s" % (MF32, acc, vr(AF + 16 * b + 4 * p, 4), ar(4 * (ks % 16), 4),
                                         "0" if ks == 0 else acc))
                if ks < 31:
                    rd(ks + 1, p)
                if p in (0, 2):
                    self.fill(1)
                if ks >= first:
                    for _ in range(2):
                        if shadow:
                            a(shadow.pop(0))
            if ks == self.opt.get("s3mid", 18):
                mid()
            if ks in (7, 15, 23) and self.opt.get("s3st", 0):
                self.stamp("s3k%d" % ks)

    def s3_epilogue(self, after_tile):
        a = self.a
        G = self.S3G
        if not self.opt.get("s3sh", 1):
            a.wait_vm("st")
            self.s3_left = self.s3_shadow_ops()
        for x in self.s3_left:
            a(x)
        csread = self.s3_csread
        csread(0)
        for p in range(4):
            n = 16 if p < 3 else 8
            C = 96 + 16 * (p & 1)
            if p < 3:
                csread(p + 1)
            a.wait_lg("cs%d" % p)
            acc = 32 + 16 * p
            for i in range(n // 2):
                a("v_pk_fma_f32 %s, %s, %s, %s op_sel_hi:[1,0,1]"
                  % (vr(acc + 2 * i, 2), vr(C + 2 * i, 2), vr(G + 4, 2), vr(acc + 2 * i, 2)))
            out = 152 + 8 * (p & 1)
            self.gelu(acc, n, G, G + 2, 176, out, fills=0)
            if p < 3:
                a("s_add_u32 s%d, s%d, %d" % (sA, sE, 2048 * p))
                a.vmem("buffer_store_dwordx4 %s, v%d, %s, s%d offen sc1" % (vr(out, 4), vL16, sr(S_WS, 4), sA), "Hst")
                a.vmem("buffer_store_dwordx4 %s, v%d, %s, s%d offen offset:1024 sc1"
                       % (vr(out + 4, 4), vL16, sr(S_WS, 4), sA), "Hst")
            else:
                a.vmem("buffer_store_dwordx4 %s, v%d, %s, s%d offen sc1" % (vr(out, 4), vL16, sr(S_WS, 4), sF), "Hst")
            after_tile(p)

    def w4_setup(self):
        a = self.a
        a("s_lshl_b32 s%d, s%d, 11" % (sW4L, sKH))
        a("s_lshl_b32 s%d, s%d, 10" % (sA, sTH))
        a("s_add_u32 s%d, s%d, s%d" % (sW4L, sW4L, sA))
        a("s_mul_i32 s%d, s%d, %d" % (sW4G, sKH, 896 * 1024))
        self.feat0(sA, sTH, 1)
        a("s_add_u32 s%d, s%d, s%d" % (sW4G, sW4G, sA))
        for i in range(8):
            if self.opt.get("rot4", 0):
                a("s_add_u32 s%d, s%d, %d" % (sA, sC, i))
                a("s_and_b32 s%d, s%d, 7" % (sA, sA))
                a("s_mul_i32 s%d, s%d, %d" % (sA, sA, 7 * 16384))
                a("s_add_u32 s%d, s%d, s%d" % (self.SW4B + i, sW4G, sA))
            else:
                a("s_add_u32 s%d, s%d, %d" % (self.SW4B + i, sW4G, i * 7 * 16384))

    SW4B = 12
    W4R = 56

    def w4_reg_loads(self, ks0, ks1):
        def item(ks):
            def f():
                a = self.a
                a("s_add_u32 s%d, s%d, %d" % (sSO, self.SW4B + ks // 7, (ks % 7) * 16384))
                a.vmem("buffer_load_dwordx4 %s, v%d, %s, s%d offen" % (vr(self.W4R + 4 * (ks - W4_B), 4), vW64,
                                                                     sr(S_W4, 4), sSO), "w4r")
                a.check_vm_depth()
            return f
        return [item(ks) for ks in range(ks0, ks1)]

    def w4_reg_writes(self, ks0, ks1):
        def f():
            a = self.a
            a.wait_vm("w4r")
            for i in range(3):
                a("v_add_u32 v%d, s%d, v%d" % (28 + i, sW4L, vL16))
                if i:
                    a("v_add_u32 v%d, %d, v%d" % (28 + i, 65536 * i, 28 + i))
            for ks in range(ks0, ks1):
                off = w4_off(ks)
                if self.opt.get("x_nowr", 0):
                    continue
                a.lds("ds_write_b128 v%d, %s offset:%d" % (28 + off // 65536, vr(self.W4R + 4 * (ks - W4_B), 4),
                                                           off % 65536))
                pace = self.opt.get("wpace", 0)
                if pace and (ks - ks0) % pace == pace - 1:
                    a.wait_lg_all()
            a.wait_lg_all()
        return f

    def w4_items(self, ks0, ks1, tag):
        return [self.dma_item(S_W4, vW64, sW4L, w4_off(ks), self.SW4B + ks // 7, (ks % 7) * 16384, tag)
                for ks in range(ks0, ks1)]

    def hring(self, ks):
        n = self.opt.get("hring", 24)
        i = ks % n
        return ar(4 * i, 4) if i < 16 else vr(64 + 4 * (i - 16), 4)

    def s4_load_items(self):
        a = self.a
        a("s_mul_i32 s%d, s%d, %d" % (sLD, sT, 0 if self.opt.get("x_hot", 0) else 114688))
        a("s_mul_i32 s%d, s%d, %d" % (sB, sKH, 56 * 1024))
        a("s_add_u32 s%d, s%d, s%d" % (sLD, sLD, sB))
        a("s_add_u32 s%d, s%d, 0x%x" % (sLD, sLD, WS_HH))
        items = []
        for ks in range(56):
            def f(ks=ks):
                i, t = divmod(ks, 7)
                if t == 0:
                    if self.opt.get("rot4", 0):
                        a("s_add_u32 s%d, s%d, %d" % (sW4L, sC, i))
                        a("s_and_b32 s%d, s%d, 7" % (sW4L, sW4L))
                        a("s_mul_i32 s%d, s%d, 7168" % (sW4L, sW4L))
                        a("s_add_u32 s%d, s%d, s%d" % (sW4L, sW4L, sLD))
                    else:
                        a("s_add_u32 s%d, s%d, %d" % (sW4L, sLD, i * 7168))
                if t == 4:
                    a("s_add_u32 s%d, s%d, 0x1000" % (sW4L, sW4L))
                a.vmem("buffer_load_dwordx4 %s, v%d, %s, s%d offen offset:%d sc1"
                       % (self.hring(ks), vL16, sr(S_WS, 4), sW4L, (t & 3) * 1024), "H%d" % ks)
                a.check_vm_depth()
            items.append(f)
        return items

    Y_LDS = 49152

    def s4_y_loads(self):
        a = self.a
        self.feat0(sE, sKH, 12)
        a("s_lshl_b32 s%d, s%d, 6" % (sB, sT))
        a("s_add_u32 s%d, s%d, s%d" % (sE, sE, sB))
        a("s_add_u32 s%d, s%d, 0x%x" % (sE, sE, WS_YT))
        a("s_add_u32 s%d, s%d, 0x10000" % (sB, sE))
        a("v_lshrrev_b32 v147, 2, v%d" % vL)
        a("v_lshlrev_b32 v147, 12, v147")
        a("v_and_b32 v26, 3, v%d" % vL)
        a("v_lshl_add_u32 v147, v26, 4, v147")
        a.vmem("buffer_load_dwordx4 %s, v147, %s, s%d offen sc1" % (vr(vST, 4), sr(S_WS, 4), sE), "y")
        a.vmem("buffer_load_dwordx4 %s, v147, %s, s%d offen sc1" % (vr(vST + 4, 4), sr(S_WS, 4), sB), "y")

    def s4_y_write(self):
        a = self.a
        a.wait_vm("y")
        a("s_lshl_b32 s%d, s%d, 11" % (sB, sW))
        a("s_add_u32 s%d, s%d, %d" % (sB, sB, self.Y_LDS))
        a("v_add_u32 v147, s%d, v%d" % (sB, vL16))
        a.lds("ds_write_b128 v147, %s" % vr(vST, 4), "yw")
        a.lds("ds_write_b128 v147, %s offset:1024" % vr(vST + 4, 4), "yw")
        a("v_add_u32 v147, s%d, v%d" % (sB, vWP))

    def s4_y_read(self):
        a = self.a
        a.wait_lg("yw")
        for q in range(4):
            a.lds("ds_read_b64_tr_b16 %s, v147 offset:%d" % (vr(vST + 8 + 2 * q, 2), 512 * q), "yr")

    XN4, BASE4 = 112, 148

    def s4_shadow_ops(self):
        XN, B = self.XN4, self.BASE4
        pre, post = [], []
        for j in range(8):
            pre.append("v_lshlrev_b32 v%d, 16, v%d" % (XN + 2 * j, vQ + j))
            pre.append("v_and_b32 v%d, s%d, v%d" % (XN + 2 * j + 1, sHI, vQ + j))
            pre.append("v_lshlrev_b32 v%d, 16, v%d" % (B + 2 * j, vX1 + j))
            pre.append("v_and_b32 v%d, s%d, v%d" % (B + 2 * j + 1, sHI, vX1 + j))
        for r in range(16):
            pre.append("v_add_f32 v%d, v%d, v%d" % (B + r, B + r, XN + r))
            pre.append("v_sub_f32 v%d, v%d, v%d" % (XN + r, XN + r, vMEAN))
            pre.append("v_mul_f32 v%d, v%d, v%d" % (XN + r, XN + r, vR1))
        for j in range(8):
            post.append("v_lshlrev_b32 v164, 16, v%d" % (vST + 8 + j))
            post.append("v_and_b32 v165, s%d, v%d" % (sHI, vST + 8 + j))
            post.append("v_fmac_f32 v%d, v%d, v164" % (B + 2 * j, XN + 2 * j))
            post.append("v_fmac_f32 v%d, v%d, v165" % (B + 2 * j + 1, XN + 2 * j + 1))
        return pre, post

    def s4_out_addr(self):
        a = self.a
        a("s_lshl_b32 s%d, s%d, 15" % (sE, sT))
        self.feat0(sB, sKH, 1)
        a("s_add_u32 s%d, s%d, s%d" % (sE, sE, sB))
        a("v_lshlrev_b32 v146, 10, v%d" % vN31)
        a("v_lshl_add_u32 v146, v%d, 4, v146" % vHH)
        a("v_add_u32 v146, s%d, v146" % sE)

    def s4_addr(self):
        a = self.a
        self.wpi_addr(128, 131, 0, 2048, 1024)
        for i in (1, 2):
            a("v_add_u32 v%d, %d, v128" % (128 + i, 65536 * i))
            a("v_add_u32 v%d, %d, v131" % (131 + i, 65536 * i))

    def s4_main(self, hitems):
        a = self.a
        ACK, ACS, AK, AS = self.ACK, self.ACS, self.AK, self.AS

        def rd(ks, which):
            off = w4_off(ks)
            base, addr = ((AK, 128), (AS, 131))[which]
            for hf in range(2):
                a.lds("ds_read_b64_tr_b16 %s, v%d offset:%d"
                      % (vr(base + 4 * (ks & 1) + 2 * hf, 2), addr + off // 65536, off % 65536 + hf * 512),
                      "f%d_%d" % (ks, which))
        pre, post = self.s4_shadow_ops()
        yq = []
        f1, f2 = self.opt.get("f1", 10), self.opt.get("f2", 18)
        xb = self.opt.get("x_nobar", 0)
        if xb:
            self.h("s_endpgm")
        else:
            self.hact(self.w4_reg_writes(W4_B, W4_C))
        rd(0, 0)
        rd(0, 1)
        for ks in range(56):
            ahead = ks < 55
            b = ks & 1
            B = self.hring(ks)
            if self.opt.get("x_nowait", 0):
                a.wait_lg("f%d_0" % ks)
            else:
                a.wait_both("H%d" % ks, "f%d_0" % ks)
            a("%s %s, %s, %s, %s" % (MF32, vr(ACK, 16), vr(AK + 4 * b, 4), B, "0" if ks == 0 else vr(ACK, 16)))
            if ahead:
                rd(ks + 1, 0)
            if hitems and ks >= 1:
                hitems.pop(0)()
            a.wait_lg("f%d_1" % ks)
            a("%s %s, %s, %s, %s" % (MF32, vr(ACS, 16), vr(AS + 4 * b, 4), B, "0" if ks == 0 else vr(ACS, 16)))
            if ahead:
                rd(ks + 1, 1)
            for _ in range(self.opt.get("npre", 3)):
                if pre and ks >= 2:
                    a(pre.pop(0))
            if ks == self.opt.get("cvflag", 9):
                self.conv_wave_flag()
            if ks == 56 - W4_C - 1 and not xb:
                self.barrier()
                self.hact(self.w4_reg_writes(W4_C, 56))
            if ks == self.opt.get("ycheck", 34) - self.opt.get("ygap", 12) and not self.opt.get("x_noy", 0):
                self.idx_cv()
                self.poll_issue(F_CV, "pcv")
            if ks == self.opt.get("ycheck", 34) and not self.opt.get("x_noy", 0):
                self.poll_check("pcv", 4)
                self.s4_y_loads()
            if ks == self.opt.get("b2", 30) and not xb:
                self.barrier()
                if self.opt.get("barstamps", 0):
                    h = self.h
                    lab = h.newlabel("nobs")
                    h("s_cmp_lg_u32 s%d, 0" % sW)
                    h("s_cbranch_scc1 %s" % lab)
                    h("s_lshl_b32 s%d, s2, 8" % sA)
                    h("s_add_u32 s%d, s%d, 0x%x" % (sA, sA, WS_STAMP + 0x20000))
                    h("v_lshlrev_b32 v26, 2, v%d" % vL)
                    h("buffer_store_dword v55, v26, %s, s%d offen" % (sr(S_WS, 4), sA))
                    h("s_waitcnt vmcnt(0)")
                    h.label(lab)
                self.hact(self.nonce_update)
                self.hrun()
                self.h("s_endpgm")
            if not self.opt.get("x_noy", 0):
                if ks == self.opt.get("ywr", 46):
                    self.s4_y_write()
                if ks == self.opt.get("ywr", 46) + 2:
                    self.s4_y_read()
                if self.opt.get("yshadow", 5) and ks >= self.opt.get("ywr", 46) + 4 and post and not pre:
                    a.wait_lg("yr")
                    for _ in range(self.opt.get("yshadow", 5)):
                        if post:
                            a(post.pop(0))
            if ks in (8, 16, 27, 38, 47):
                self.stamp("s4k%d" % ks)
        for x in pre:
            a(x)
        assert not hitems
        self.s4_out_addr()
        self.s4_post = post

    def s4_epilogue(self):
        a = self.a
        ACK, ACS, B = self.ACK, self.ACS, self.BASE4
        self.exchange_write(ACS, S4_RED)
        a.wait_lg("yr")
        for x in self.s4_post:
            a(x)
        for p in range(8):
            a("v_pk_add_f32 %s, %s, %s" % (vr(ACK + 2 * p, 2), vr(ACK + 2 * p, 2), vr(B + 2 * p, 2)))
        a.wait_lg_all()
        a("s_barrier")
        self.exchange_read(80, S4_RED)
        a.wait_lg_all()
        for p in range(8):
            a("v_pk_add_f32 %s, %s, %s" % (vr(ACK + 2 * p, 2), vr(ACK + 2 * p, 2), vr(80 + 2 * p, 2)))
        for p in range(8):
            a("v_cvt_pk_bf16_f32 v%d, v%d, v%d" % (48 + p, ACK + 2 * p, ACK + 2 * p + 1))
        for j in (0, 4):
            a("v_permlane32_swap_b32 v%d, v%d" % (48 + j, 50 + j))
            a("v_permlane32_swap_b32 v%d, v%d" % (49 + j, 51 + j))
        a.vmem("buffer_store_dwordx4 %s, v146, %s, 0 offen" % (vr(48, 4), sr(S_OUT, 4)), "out")
        a.vmem("buffer_store_dwordx4 %s, v146, %s, 0 offen offset:32" % (vr(52, 4), sr(S_OUT, 4)), "out")

    def nonce_update(self):
        a = self.a
        self.hold += 1
        skip = a.newlabel("nonce")
        a("s_cmp_lg_u32 s2, 0")
        a("s_cbranch_scc1 %s" % skip)
        a("s_cmp_lg_u32 s%d, 0" % sW)
        a("s_cbranch_scc1 %s" % skip)
        saved = list(a.vm)
        for i in range(4):
            a("v_add_u32 v28, %d, v%d" % (64 * i, vL))
            a("v_lshlrev_b32 v28, 2, v28")
            self.poll_issue(F_P0, "pn")
            self.poll_check("pn", 6)
        a.vm = saved
        a("v_mov_b32 v26, 0")
        a("v_mov_b32 v27, s%d" % sN)
        a("s_mov_b64 exec, 1")
        a("buffer_store_dword v27, v26, %s, 0 offen sc1" % sr(S_WS, 4))
        a("s_mov_b64 exec, -1")
        a.label(skip)
        self.hold -= 1

    def finish(self):
        a = self.a
        a.wait_vm_all()
        if self.opt.get("delay", 0):
            lab = a.newlabel("delay")
            a("s_mov_b32 s%d, %d" % (sA, self.opt["delay"] // 64))
            a.label(lab)
            for _ in range(15):
                a("v_mov_b32 v26, v27")
            a("s_sub_u32 s%d, s%d, 1" % (sA, sA))
            a("s_cmp_lg_u32 s%d, 0" % sA)
            a("s_cbranch_scc1 %s" % lab)
        if self.opt.get("dbgtime", 0):
            a("s_memrealtime %s" % sr(sSTA, 2))
            a("s_memtime s[96:97]")
            a("s_waitcnt lgkmcnt(0)")
            a("s_sub_u32 s%d, s%d, s3" % (sSTA, sSTA))
            a("s_sub_u32 s96, s96, s98")
            a("v_mov_b32 v26, 0")
            a("v_mov_b32 v27, s%d" % sSTA)
            a("v_mov_b32 v28, s96")
            a("s_mov_b64 exec, 1")
            a("global_atomic_umax v26, v27, %s" % sr(S_DBG, 2))
            a("global_atomic_umax v26, v28, %s offset:4" % sr(S_DBG, 2))
            a("s_waitcnt vmcnt(0)")
            a("s_mov_b64 exec, -1")
        if self.stamps:
            self.stamp("end")
            skip = a.newlabel("nostamp")
            a("s_cmp_lg_u32 s%d, 0" % sW)
            a("s_cbranch_scc1 %s" % skip)
            if self.opt.get("dbgstamps", 0):
                lab = a.newlabel("nodbg")
                a("s_cmp_lg_u32 s2, %d" % (self.opt["dbgstamps"] - 1))
                a("s_cbranch_scc1 %s" % lab)
                a("v_readlane_b32 s%d, v%d, 0" % (sA, vSTAMP))
                a("v_subrev_u32 v27, s%d, v%d" % (sA, vSTAMP))
                a("v_lshlrev_b32 v26, 2, v%d" % vL)
                a("s_mov_b64 exec, 0xffff")
                a("global_store_dword v26, v27, %s" % sr(S_DBG, 2))
                a("s_mov_b64 exec, -1")
                a.label(lab)
            a("s_lshl_b32 s%d, s2, 8" % sA)
            a("s_add_u32 s%d, s%d, 0x%x" % (sA, sA, WS_STAMP))
            a("v_lshlrev_b32 v26, 2, v%d" % vL)
            a("buffer_store_dword v%d, v26, %s, s%d offen" % (vSTAMP, sr(S_WS, 4), sA))
            if self.opt.get("barstamps", 0):
                a("s_add_u32 s%d, s%d, 0x10000" % (sA, sA))
                a("buffer_store_dword v31, v26, %s, s%d offen" % (sr(S_WS, 4), sA))
            a("s_waitcnt vmcnt(0)")
            a.label(skip)
        a.label("L_end")
        a("s_endpgm")
        self.a.hook = None
        self.h.label("L_codeend")
        self.h("s_endpgm")
        self.a.ins += self.h.ins

    def nonce_load(self):
        a = self.a
        a("v_mov_b32 v26, 0")
        a.vmem("buffer_load_dword v30, v26, %s, 0 offen sc1" % sr(S_WS, 4), "nonce")

    def build(self):
        a = self.a
        o = self.opt
        H = self.hact
        self.prologue()
        H(self.loader_setup)
        if o.get("tcode", 1) == 1:
            H(self.touch_code)
        s1 = [f for st in range(4) for f in self.s1_stage_items(st)]
        n0, n1 = o.get("n0", 16), o.get("n1", 24)
        self.nonce_load()
        self.head_start()
        if o.get("kvp", 0) == 4:
            self.touch_kv(162, 163)
        self.page_touch()
        self.cold_touches()
        self.tr_addresses()
        self.s1_setup()

        def stage(st):
            kvp = o.get("kvp", 0)
            if st == 0:
                self.hacts(s1[:n0])
                if kvp == 1:
                    H(lambda: self.touch_kv(157, 158))
                self.hwait("s1_0")
            elif st == 1:
                if kvp == 2:
                    H(lambda: self.touch_kv(157, 158))
                self.hacts(s1[n0:n1])
                if kvp == 3:
                    H(lambda: self.touch_kv(157, 158))
                self.hwait("s1_1")
            else:
                self.hacts(s1[n1:])
                if o.get("apos", 0) == 0:
                    self.hstamp(4)
                    H(self.batch_a)
                    self.hstamp(5)
                self.hwait("s1_3")
            self.barrier()
            if st == 2:
                if o.get("apos", 0) == 1:
                    H(self.batch_a)
                H(self.nonce_load)
                H(self.tr_addresses)
                if o.get("hstat", 0):
                    H(self.s1_stats)
        self.a.comment("---- S1: p = q @ w1 on the raw q tile (row sums / squares and column sums of w1 alongside)")
        self.s1_main(stage)
        self.stamp("s1main")
        w2 = [self.dma_item(S_W2, vW64, sW2L, grp * 1024, sW2G, grp * 16384, "w2") for grp in range(16)]

        p0late = o.get("p0late", 1)
        w3 = self.w3_items([0, 1, 2, 3])
        cuts = [o.get("c%d" % i, d) for i, d in enumerate((0, 0, 0, 10, 10, 16))]

        def after_x1():
            H(self.w3_setup)
            self.hacts(w3[:cuts[0]])
            if not p0late:
                H(self.nonce_compute)
                H(self.kv_dma)
                H(self.p0_compute)
                H(lambda: self.a.wait_lg_all())
        self.a.comment("---- S1 epilogue: K-halves exchanged, LN(LN(q)) folded in as a * (p - mean * colsum), gelu, h fragments stored")
        self.s1_epilogue(after_x1)
        self.stamp("s1epi")
        self.a.comment("---- hand-off 1: h stores drain, flag, poll the producers of this wave's h fragments")
        self.nonce_compute()
        self.team_publish()
        self.wpi_addr(128, 129, LW, 16384, 32768)
        hitems = self.s2_load_items()
        a.wait_vm("hst")
        self.barrier()
        self.flag_store_rc(F_S1)
        self.stamp("s1flag")
        H(self.nonce_compute)
        H(self.kv_dma)
        self.hacts(w2[:o.get("w2a", 4)])
        self.hpaced(w2[o.get("w2a", 4):], o.get("iv2", 70), self.p0_compute)
        self.hacts(w3[cuts[0]:cuts[1]])
        H(lambda: self.a.wait_lg_all())
        self.idx_s1()
        self.barrier()
        H(self.p0_readback)
        H(self.p0_store)
        H(lambda: self.conv_filter_loads(0))
        self.hacts(w3[cuts[1]:cuts[2]])
        self.hwait("w2")
        self.poll_issue(F_S1, "ps1")
        self.poll_check("ps1", 2)
        self.stamp("s1poll")
        nh2 = o.get("nh2", 10)
        for f in hitems[:nh2]:
            f()
        self.barrier()
        self.stamp("hiss")
        H(self.p0_wave_flag)
        if o.get("w4early", 0) == 2:
            H(lambda: self.touch_chip("w4"))
        if o.get("bpos", 0) == 2:
            H(lambda: self.touch_chip("ssm"))
            H(lambda: self.touch_chip("w3"))
        self.hacts(w3[cuts[2]:cuts[3]])
        H(self.idx_p0)
        H(lambda: self.poll_issue(F_P0, "pp0"))
        self.fq = hitems[nh2:] + [self.team_load]
        self.a.comment("---- S2: shift(h) @ w2 (token shifts are in the load addresses)")
        self.s2_main()
        self.fill_all()
        self.stamp("s2main")

        def after_x2():
            H(lambda: self.poll_check("pp0", 1))
            H(lambda: self.conv_x_loads(0))
            self.hacts(w3[cuts[3]:cuts[4]])
            H(lambda: self.conv_prep_filter(0))
            H(lambda: self.conv_x_write(0))
        self.a.comment("---- S2 epilogue: x1 = xn + hs, fragments and partial row statistics stored")
        self.s2_epilogue(after_x2)
        self.stamp("s2epi")
        self.barrier()
        H(lambda: self.conv_poly(0))
        self.hacts(w3[cuts[4]:cuts[5]])
        self.conv_addr(0)
        self.team_check()
        a.wait_vm("x1st")
        self.barrier()
        self.flag_store_rc(F_S2)
        self.stamp("s2flag")
        H(self.head_start_w4)
        if o.get("w4early", 0) == 0:
            H(lambda: self.touch_chip("w4"))
        self.hacts(w3[cuts[5]:])

        def hook0(rho):
            if rho == o.get("pollrho2", 3):
                self.idx_s2()
                self.poll_issue(F_S2, "ps2")
        self.a.comment("---- long convolution, channel 2b: Toeplitz blocks on the matrix cores")
        self.conv_main(hook0)
        self.stamp("cv0main")
        xitems = self.s3_load_items()
        nx = o.get("nx", 12)
        xe = o.get("xearly", 0)
        if xe:
            self.poll_check("ps2", 3)
            for f in xitems[:nx]:
                f()
        self.conv_finish(0)
        self.hwait("w3")
        self.barrier()
        self.stamp("cv0fin")
        H(self.s3_addr)
        if o.get("csprio", 0):
            H(lambda: self.a("s_setprio %d" % o.get("csprio", 0)))
        H(self.s3_colsum)
        if o.get("csprio", 0):
            H(lambda: self.a("s_setprio 0"))
        H(self.w4_setup)
        self.s3_addr()
        if not xe:
            self.poll_check("ps2", 3)
            self.stamp("s2poll")
            for f in xitems[:nx]:
                f()
        sitems = self.s3_stat_items()
        rest = xitems[nx:]
        self.fq = []
        for i in range(len(rest)):
            self.fq.append(rest[i])
            self.fq.append(sitems[i] if i < 16 else (lambda: None))

        w4r = self.w4_reg_loads(W4_B, 56)

        def s3mid():
            self.barrier()
            H(lambda: self.conv_filter_loads(1))
            H(lambda: self.conv_x_loads(1))
            self.hacts(self.w4_items(0, W4_A, "w4"))
            self.hacts(w4r[:o.get("r1", 8)])
        self.a.comment("---- S3: x1 @ w3, 128 tokens x 112 features")
        self.s3_main(s3mid)
        self.fill_all()
        self.stamp("s3main")
        self.barrier()
        H(lambda: self.conv_prep_filter(1))
        H(lambda: self.conv_x_write(1))
        w4m = self.w4_items(W4_A, W4_B, "w4")
        k3 = o.get("k3", 4)

        early = o.get("tbar", 0) >= 2
        if early:
            self.hacts(w4r[o.get("r1", 8):o.get("r2", 20)])
            self.hacts(w4m[:k3])

        def after_tile(p):
            if p == o.get("tbar", 0):
                self.barrier()
                H(lambda: self.conv_poly(1))
                if not early:
                    self.hacts(w4r[o.get("r1", 8):o.get("r2", 20)])
                    self.hacts(w4m[:k3])
        self.a.comment("---- S3 epilogue: LN(x1) folded in, gelu, H fragments stored")
        self.s3_epilogue(after_tile)
        self.stamp("s3epi")
        self.conv_addr(1)

        def s3flag():
            a.wait_vm("Hst")
            self.barrier()
            a("s_lshl_b32 s%d, s%d, 4" % (sB, sRP))
            a("s_add_u32 s%d, s%d, s%d" % (sB, sB, sCP))
            self.flag_store(F_S3, sB)
            self.stamp("s3flag")
            self.hacts(w4m[k3:])
            self.hacts(w4r[o.get("r2", 20):])
        early = o.get("cv1early", 0)
        if early:
            self.barrier()
        else:
            s3flag()

        def hook1(rho):
            if early and rho == early:
                s3flag()
            if rho == o.get("pollrho", 3) and not early:
                self.idx_s3()
                self.poll_issue(F_S3, "ps3")
        self.a.comment("---- long convolution, channel 2b + 1")
        self.conv_main(hook1)
        self.stamp("cv1main")
        hitems = self.s4_load_items()
        if early:
            self.conv_finish(1)
            self.idx_s3()
            self.poll_issue(F_S3, "ps3")
            self.s4_addr()
            self.poll_check("ps3", 5)
            self.stamp("s3poll")
            for _ in range(o.get("nh", 14) + o.get("nhb", 6)):
                hitems.pop(0)()
        else:
            self.poll_check("ps3", 5)
            self.stamp("s3poll")
            for _ in range(o.get("nh", 14)):
                hitems.pop(0)()
            self.conv_finish(1)
            for _ in range(o.get("nhb", 6)):
                hitems.pop(0)()
            self.s4_addr()
        self.hwait("w4")
        self.barrier()
        self.stamp("cv1fin")
        self.a.comment("---- S4: H @ w4")
        self.s4_main(hitems)
        self.stamp("s4main")
        self.a.comment("---- S4 epilogue: out = q + x1 + H @ w4 + xn * y'")
        self.s4_epilogue()
        self.stamp("s4epi")
        self.finish()


REF = "cdna_kernels/%s.s.ref" % NAME


def emit(stop=None, stamps=False, opt=None, keep=None):
    g = Gen(stop, stamps, opt)
    g.keep = keep
    g.build()
    nops = g.a.fix_hazards()
    top = [l for l in open(REF).read().split("\n") if l.startswith(";") and "@launch" not in l and "Override" not in l
           and "grid=ceil" not in l]
    top += [
        "; Persistent kernel, one workgroup per CU: waves 0-3 run the GEMM chain S1 -> S2 -> S3 -> S4 and the two long",
        "; convolutions of the workgroup's channels, waves 4-7 stream weights and prepare operands. Workgroups hand tiles",
        "; to each other through d_ws: write-through stores, s_waitcnt, barrier, then a flag word equal to a per-launch",
        "; nonce derived from d_ws word 0 (rewritten once per launch by workgroup 0 after every workgroup has read it).",
        "; Generated by a script from hand-written building blocks."]
    out = top + ["; @launch grid=(256,1,1) block=(512,1,1) lds=%d" % LDS_BYTES,
                 '.amdgcn_target "amdgcn-amd-amdhsa--gfx950"', ".text", ".globl %s_kernel" % NAME, ".p2align 8",
                 ".type %s_kernel,@function" % NAME, "%s_kernel:" % NAME]
    body = g.a.text()
    tail = ['.section .rodata,"a"', ".p2align 6", ".amdhsa_kernel %s_kernel" % NAME,
            "  .amdhsa_next_free_vgpr 256", "  .amdhsa_next_free_sgpr 102", "  .amdhsa_accum_offset 192",
            "  .amdhsa_group_segment_fixed_size 0", "  .amdhsa_kernarg_size 112", "  .amdhsa_user_sgpr_count 2",
            "  .amdhsa_user_sgpr_kernarg_segment_ptr 1", "  .amdhsa_system_sgpr_workgroup_id_x 1",
            "  .amdhsa_float_denorm_mode_32 3", ".end_amdhsa_kernel"]
    text = "\n".join(out) + "\n" + body + "\n".join(tail) + "\n"
    return text, g, nops


if __name__ == "__main__":
    ap = argparse.ArgumentParser()
    ap.add_argument("-o", default="cdna_kernels/%s.s" % NAME)
    ap.add_argument("--stop", default=None)
    ap.add_argument("--stamps", action="store_true")
    ap.add_argument("--opt", default="")
    ap.add_argument("--keep", default="")
    args = ap.parse_args()
    opt = dict((kv.split("=")[0], int(kv.split("=")[1])) for kv in args.opt.split(",") if kv)
    text, g, nops = emit(args.stop, args.stamps, opt, args.keep.split(",") if args.keep else None)
    open(args.o, "w").write(text)
    n = sum(1 for x in g.a.ins if x.kind != "label")
    print("instructions: %d, hazard nops: %d" % (n, nops))
    if g.stamp_names:
        print(",".join(g.stamp_names))
        open(args.o + ".stamps", "w").write(",".join(g.stamp_names))
```

```python
import argparse
import os
import struct
import sys

sys.path.insert(0, os.path.dirname(os.path.abspath(__file__)))
from asmlib import Asm

NAME = "parallel_sum__ssm_conv_h3__mixer_s_mlp__prompt"

WS_FLAGS = 4096
WS_STAMP = 0xD0000
WS_FLAGS_L = 0x90000
WS_TEAM = 0xC0000
WS_KVT = 0x100000
WS_YT = 0x300000
WS_HS = 0x500000
WS_X1 = 0x700000
WS_ST = 0x900000
WS_HH = 0xA00000
WS_SIZE = 0x10000000
OOB = 0x40000000
F_S1, F_S2, F_S3, F_P0, F_CV = 0, 1, 2, 4, 8

LQ = 0
LW = 65536
LSTG = 131072
LRED = 139264
LSTX = 155648
LCSX = 156672
LCS3 = 161280
LKV = LRED
LDS_BYTES = 163840
CV_X = 0
CV_XD = 1152
CV_A = 5248
CV_P = 21760
CV_R = 5248
CV_BASE = 114688
W3_P = 0
W3_H = 98304
CV_BASE1 = 69632
W4_A, W4_B, W4_C = 11, 28, 39
S4_RED = 24576


def w4_off(ks):
    if ks < W4_A:
        return 114688 + ks * 4096
    if ks < W4_B:
        return (ks - W4_A) * 4096
    if ks < W4_C:
        return CV_BASE1 + (ks - W4_B) * 4096
    return w4_off(ks - W4_C)

S_WS, S_Q, S_K, S_V, S_SHK, S_SSM, S_W1, S_W2, S_W3, S_W4, S_OUT = 4, 8, 12, 16, 20, 24, 32, 36, 40, 44, 48
S_DPTR = 28
S_DBG = 30
sR, sC, sW, sTH, sKH, sN, sRP, sCP = 52, 53, 54, 55, 56, 57, 58, 59
sT, sT3 = 60, 61
sD0, sD1 = 62, 63
sA, sB, sCc, sD, sE, sF = 64, 65, 66, 67, 68, 69
sW2L, sW2G, sW3L, sW3G, sW3HL, sW3HG, sW4L, sW4G, sSO, sLD = 70, 71, 72, 73, 74, 75, 76, 77, 78, 79
sONES, sHI = 80, 81
sK4, sK8, sK12 = 82, 83, 84
sEPS, sTMO, sKG1, sKG3, s512I = 85, 86, 87, 88, 89
sSTA = 90
sROT, sQG, sWG, sCP0 = 92, 93, 94, 95
sXCC, sLOC = 20, 21

vL, vL16, vWP, vWN = 0, 1, 2, 3
vQ, vX1 = 4, 12
vMEAN, vR1 = 20, 21
vTID, vHH, vN31, vSTAMP = 22, 23, 24, 25
vW64 = 31
vCH = 172
vPF, vPA = 170, 171
vW3F, vW3H, vQE = 153, 154, 155
vST = 172

GELU_K1 = 2.0 * 0.7978845608028654 * 1.4426950408889634
GELU_K3 = GELU_K1 * 0.044715
MF32 = "v_mfma_f32_32x32x16_bf16"
MF16 = "v_mfma_f32_16x16x32_bf16"


def f32bits(x):
    return struct.unpack("<I", struct.pack("<f", x))[0]


def vr(a, n):
    return "v[%d:%d]" % (a, a + n - 1)


def ar(a, n):
    return "a[%d:%d]" % (a, a + n - 1)


def sr(a, n):
    return "s[%d:%d]" % (a, a + n - 1)


class Gen:
    def __init__(self, stop=None, stamps=False, opt=None):
        self.opt = opt or {}
        self.keep = None
        self.a = Asm()
        self.h = Asm()
        self.h.uid = 100000
        self.hpend = []
        self.nbar = 0
        self.stop = stop
        self.stamps = stamps
        self.nstamp = 0
        self.stamp_names = []
        self.fq = []
        self.pq = []
        self.interval = 0
        self.clock = 0.0
        self.hold = 0
        self.a.hook = self._pace
        self.h.hook = self._pace

    def _pace(self, x):
        if x.kind == "mfma":
            self.clock += 32 if x.passes == 8 else 16
        elif x.kind == "valu":
            self.clock += 8 if x.is_trans() else 4.5
        elif x.kind == "ds":
            self.clock += 13 if x.op == "ds_write_b128" else 2
        elif x.kind == "vmem":
            self.clock += 20
        else:
            return
        if self.hold or not self.pq or not self.interval or x.kind == "vmem":
            return
        if self.clock >= self.interval:
            self.clock = 0.0
            self.hold += 1
            self.pq.pop(0)()
            self.hold -= 1

    def paced(self, items, interval):
        self.pq += items
        self.interval = interval
        self.clock = 0.0

    def pace_flush(self, tag=None):
        self.hold += 1
        if tag is None:
            n = len(self.pq)
        else:
            n = max([i + 1 for i, f in enumerate(self.pq) if f.tag == tag], default=0)
        for _ in range(n):
            self.pq.pop(0)()
        self.hold -= 1

    def stamp(self, name):
        if not self.stamps:
            return
        if self.keep and name not in self.keep and name not in ("start", "end"):
            return
        self.hold += 1
        self._stamp(name)
        self.hold -= 1

    def _stamp(self, name):
        a = self.a
        a("s_memtime %s" % sr(sSTA, 2))
        a("s_waitcnt lgkmcnt(0)")
        a.lg = []
        a("v_writelane_b32 v%d, s%d, %d" % (vSTAMP, sSTA, self.nstamp))
        if name in ("start", "end"):
            a("s_memrealtime %s" % sr(sSTA, 2))
            a("s_waitcnt lgkmcnt(0)")
            a("v_writelane_b32 v%d, s%d, %d" % (vSTAMP, sSTA, 62 if name == "start" else 63))
            if name == "start":
                a("v_writelane_b32 v%d, s3, 61" % vSTAMP)
        self.stamp_names.append(name)
        self.nstamp += 1

    def hact(self, fn):
        self.hpend.append(fn)

    def hacts(self, fns):
        self.hpend += fns

    def hstamp(self, idx):
        if not self.opt.get("barstamps", 0):
            return

        def f():
            a = self.a
            a("s_memtime %s" % sr(sSTA, 2))
            a("s_waitcnt lgkmcnt(0)")
            a.lg = []
            a("v_writelane_b32 v55, s%d, %d" % (sSTA, 32 + idx))
        self.hpend.append(f)

    def hpaced(self, items, interval, fn):
        def f():
            saved = (self.pq, self.interval, self.clock, self.hold)
            self.pq, self.interval, self.clock, self.hold = list(items), interval, 0.0, 0
            fn()
            self.hold = 1
            self.pace_flush()
            self.pq, self.interval, self.clock, self.hold = saved
        self.hpend.append(f)

    def hwait(self, tag):
        self.hpend.append(lambda: self.a.wait_vm(tag))

    def hrun(self):
        c, fq = self.a, self.fq
        self.a, self.fq = self.h, []
        self.hold += 1
        for fn in self.hpend:
            fn()
        self.hold -= 1
        self.hpend = []
        self.a, self.fq = c, fq

    def barrier(self, name=""):
        bs = self.opt.get("barstamps", 0)
        if bs:
            self.hold += 1
            self.a("s_memtime %s" % sr(sSTA, 2))
            self.a("s_waitcnt lgkmcnt(0)")
            self.a.lg = []
            self.a("v_writelane_b32 v31, s%d, %d" % (sSTA, self.nbar))
            self.hold -= 1
        self.a("s_barrier")
        self.hrun()
        if bs:
            self.h("s_memtime %s" % sr(sSTA, 2))
            self.h("s_waitcnt lgkmcnt(0)")
            self.h.lg = []
            self.h("v_writelane_b32 v55, s%d, %d" % (sSTA, self.nbar))
        self.h("s_barrier")
        self.nbar += 1

    def fill(self, n=1):
        for _ in range(n):
            if self.fq:
                self.fq.pop(0)()

    def fill_all(self):
        while self.fq:
            self.fq.pop(0)()

    def dma_item(self, srd, voff, sl, loff, sg, goff, tag):
        def f():
            a = self.a
            a("s_add_u32 m0, s%d, %d" % (sl, loff))
            a("s_add_u32 s%d, s%d, %d" % (sSO, sg, goff))
            a.vmem("buffer_load_dwordx4 v%d, %s, s%d offen lds" % (voff, sr(srd, 4), sSO), tag)
            a.check_vm_depth()
        f.tag = tag
        return f

    def flag_store(self, phase, sidx):
        local = self.opt.get("local", 0) and phase in (F_S2, F_S3)
        a = self.a
        self.hold += 1
        skip = a.newlabel("noflag")
        a("s_cmp_lg_u32 s%d, 0" % sW)
        a("s_cbranch_scc1 %s" % skip)
        a("s_lshl_b32 s%d, s%d, 7" % (sA, sidx))
        a("s_add_u32 s%d, s%d, %d" % (sA, sA, WS_FLAGS + phase * 256 * 128))
        a("v_mov_b32 v26, s%d" % sN)
        a("v_mov_b32 v27, s%d" % sA)
        a("s_mov_b64 exec, 1")
        if local:
            a("s_mov_b32 s%d, 0x%x" % (sSO, WS_FLAGS_L - WS_FLAGS))
            a("buffer_store_dword v26, v27, %s, s%d offen" % (sr(S_WS, 4), sSO))
        a("buffer_store_dword v26, v27, %s, 0 offen sc1" % sr(S_WS, 4))
        a("s_mov_b64 exec, -1")
        a.label(skip)
        self.hold -= 1

    def team_publish(self):
        a = self.a
        if not self.opt.get("local", 0):
            return
        skip = a.newlabel("noteam")
        a("s_getreg_b32 s%d, hwreg(HW_REG_XCC_ID)" % sXCC)
        a("s_and_b32 s%d, s%d, 15" % (sXCC, sXCC))
        a("s_cmp_lg_u32 s%d, 0" % sW)
        a("s_cbranch_scc1 %s" % skip)
        a("s_lshl_b32 s%d, s2, 7" % sA)
        a("s_add_u32 s%d, s%d, 0x%x" % (sA, sA, WS_TEAM))
        a("v_mov_b32 v26, s%d" % sN)
        a("v_mov_b32 v27, s%d" % sXCC)
        a("v_mov_b32 v28, s%d" % sA)
        a("s_mov_b64 exec, 1")
        a("buffer_store_dwordx2 v[26:27], v28, %s, 0 offen sc1" % sr(S_WS, 4))
        a("s_mov_b64 exec, -1")
        a.label(skip)

    def team_load(self):
        a = self.a
        if not self.opt.get("local", 0):
            return
        a("s_and_b32 s%d, s2, 7" % sA)
        a("v_lshlrev_b32 v26, 3, v%d" % vN31)
        a("v_add_u32 v26, s%d, v26" % sA)
        a("v_lshlrev_b32 v26, 7, v26")
        a("v_add_u32 v26, 0x%x, v26" % WS_TEAM)
        a.vmem("buffer_load_dwordx2 v[168:169], v26, %s, 0 offen sc1" % sr(S_WS, 4), "team")

    def team_check(self):
        a = self.a
        if not self.opt.get("local", 0):
            return
        a.wait_vm("team")
        a("v_cmp_ne_u32 vcc, s%d, v168" % sN)
        a("v_cmp_ne_u32 %s, s%d, v169" % (sr(sSTA, 2), sXCC))
        a("s_or_b64 vcc, vcc, %s" % sr(sSTA, 2))
        a("s_cmp_eq_u64 vcc, 0")
        a("s_cselect_b32 s%d, 0x%x, 0" % (sLOC, WS_FLAGS_L - WS_FLAGS))

    def flag_store_rc(self, phase):
        a = self.a
        a("s_lshl_b32 s%d, s%d, 3" % (sB, sR))
        a("s_add_u32 s%d, s%d, s%d" % (sB, sB, sC))
        self.flag_store(phase, sB)

    def poll_issue(self, phase, tag):
        a = self.a
        a("v_lshlrev_b32 v%d, 7, v28" % vPA)
        a("v_add_u32 v%d, %d, v%d" % (vPA, WS_FLAGS + phase * 256 * 128, vPA))
        if self.opt.get("local", 0) and phase in (F_S2, F_S3):
            a("v_add_u32 v%d, s%d, v%d" % (vPA, sLOC, vPA))
        a.vmem("buffer_load_dword v%d, v%d, %s, 0 offen sc1" % (vPF, vPA, sr(S_WS, 4)), tag)

    def poll_check(self, tag, code):
        a = self.a
        self.hold += 1
        loop = a.newlabel("poll")
        done = a.newlabel("polled")
        a.wait_vm(tag)
        a("v_cmp_ne_u32 vcc, s%d, v%d" % (sN, vPF))
        a("s_cmp_eq_u64 vcc, 0")
        a("s_cbranch_scc1 %s" % done)
        a("s_mov_b32 s%d, 0x40000" % sTMO)
        a.label(loop)
        a("buffer_load_dword v%d, v%d, %s, 0 offen sc1" % (vPF, vPA, sr(S_WS, 4)))
        a("s_waitcnt vmcnt(0)")
        a("v_cmp_ne_u32 vcc, s%d, v%d" % (sN, vPF))
        a("s_cmp_eq_u64 vcc, 0")
        a("s_cbranch_scc1 %s" % done)
        a("s_sub_u32 s%d, s%d, 1" % (sTMO, sTMO))
        a("s_cmp_lg_u32 s%d, 0" % sTMO)
        a("s_cbranch_scc1 %s" % loop)
        a("v_mov_b32 v26, 0")
        a("v_mov_b32 v27, %d" % (0x100 + code))
        a("s_mov_b64 exec, 1")
        a("global_store_dword v26, v27, %s" % sr(S_DBG, 2))
        a("s_mov_b64 exec, -1")
        a.label(done)
        self.hold -= 1

    def idx_s1(self):
        a = self.a
        a("s_lshl_b32 s%d, s%d, 1" % (sA, sTH))
        a("s_sub_u32 s%d, s%d, 1" % (sA, sA))
        a("s_add_u32 s%d, s%d, s%d" % (sA, sA, sR))
        a("s_cmp_lt_u32 s%d, 32" % sA)
        a("s_cselect_b32 s%d, s%d, s%d" % (sA, sA, sR))
        a("v_mov_b32 v28, s%d" % sR)
        a("v_mov_b32 v29, s%d" % sA)
        a("v_and_b32 v27, 4, v%d" % vL)
        a("v_cmp_eq_u32 vcc, 0, v27")
        a("v_cndmask_b32 v28, v29, v28, vcc")
        a("v_lshlrev_b32 v28, 3, v28")
        a("v_and_b32 v29, 3, v%d" % vL)
        a("v_add_u32 v28, v28, v29")
        a("s_lshl_b32 s%d, s%d, 2" % (sA, sKH))
        a("v_add_u32 v28, s%d, v28" % sA)

    def idx_p0(self):
        a = self.a
        a("s_lshr_b32 s%d, s2, 5" % sA)
        a("s_lshl_b32 s%d, s%d, 6" % (sB, sW))
        a("s_add_u32 s%d, s%d, s%d" % (sA, sA, sB))
        a("v_and_b32 v28, 7, v%d" % vL)
        a("v_lshlrev_b32 v28, 3, v28")
        a("v_add_u32 v28, s%d, v28" % sA)
        a("s_bfe_u32 s%d, s2, 0x20003" % sA)
        a("v_lshl_add_u32 v28, v28, 2, s%d" % sA)

    def p0_wave_flag(self):
        a = self.a
        a.wait_vm("kvt")
        a("s_lshl_b32 s%d, s%d, 3" % (sA, sR))
        a("s_add_u32 s%d, s%d, s%d" % (sA, sA, sC))
        a("s_lshl_b32 s%d, s%d, 2" % (sA, sA))
        a("s_add_u32 s%d, s%d, s%d" % (sA, sA, sW))
        a("s_lshl_b32 s%d, s%d, 7" % (sA, sA))
        a("s_add_u32 s%d, s%d, %d" % (sA, sA, WS_FLAGS + F_P0 * 256 * 128))
        a("v_mov_b32 v26, s%d" % sN)
        a("v_mov_b32 v27, s%d" % sA)
        a("s_mov_b64 exec, 1")
        a("buffer_store_dword v26, v27, %s, 0 offen sc1" % sr(S_WS, 4))
        a("s_mov_b64 exec, -1")

    def idx_s2(self):
        a = self.a
        a("s_lshr_b32 s%d, s%d, 1" % (sA, sT3))
        a("s_lshl_b32 s%d, s%d, 3" % (sA, sA))
        a("v_and_b32 v28, 7, v%d" % vL)
        a("v_add_u32 v28, s%d, v28" % sA)

    def idx_s3(self):
        a = self.a
        a("s_lshr_b32 s%d, s%d, 1" % (sA, sR))
        a("s_lshl_b32 s%d, s%d, 4" % (sA, sA))
        a("s_lshl_b32 s%d, s%d, 3" % (sB, sKH))
        a("s_add_u32 s%d, s%d, s%d" % (sA, sA, sB))
        a("v_and_b32 v28, 7, v%d" % vL)
        a("v_add_u32 v28, s%d, v28" % sA)

    def idx_cv(self):
        a = self.a
        self.feat0(sA, sKH, 0)
        a("s_lshr_b32 s%d, s%d, 1" % (sA, sA))
        a("v_and_b32 v28, 15, v%d" % vL)
        a("v_add_u32 v28, s%d, v28" % sA)
        a("s_lshr_b32 s%d, s%d, 5" % (sA, sT))
        a("s_lshl_b32 s%d, s%d, 1" % (sA, sA))
        a("s_bfe_u32 s%d, s%d, 0x10003" % (sB, sT))
        a("s_add_u32 s%d, s%d, s%d" % (sA, sA, sB))
        a("v_lshl_add_u32 v28, v28, 2, s%d" % sA)

    def conv_wave_flag(self):
        a = self.a
        a.wait_vm("yt")
        a("s_lshl_b32 s%d, s2, 2" % sA)
        a("s_add_u32 s%d, s%d, s%d" % (sA, sA, sW))
        a("s_lshl_b32 s%d, s%d, 7" % (sA, sA))
        a("s_add_u32 s%d, s%d, %d" % (sA, sA, WS_FLAGS + F_CV * 256 * 128))
        a("v_mov_b32 v26, s%d" % sN)
        a("v_mov_b32 v27, s%d" % sA)
        a("s_mov_b64 exec, 1")
        a.vmem("buffer_store_dword v26, v27, %s, 0 offen sc1" % sr(S_WS, 4), "cvf")
        a("s_mov_b64 exec, -1")

    def prologue(self):
        a = self.a
        if self.stamps or self.opt.get("dbgtime", 0):
            a("s_memrealtime s[100:101]")
            a("s_waitcnt lgkmcnt(0)")
            a("s_mov_b32 s3, s100")
        a("s_cmp_ge_u32 s2, 256")
        a("s_cbranch_scc1 L_end")
        a("s_load_dwordx16 s[64:79], s[0:1], 0")
        a("s_load_dwordx8 s[92:99], s[0:1], 64")
        a("s_load_dwordx2 %s, s[0:1], 96" % sr(S_DBG, 2))
        a("s_load_dwordx2 %s, s[0:1], 104" % sr(S_WS, 2))
        sizes = {S_WS: WS_SIZE, S_Q: 1 << 21, S_K: 1 << 21, S_V: 1 << 21, S_SHK: 4096, S_SSM: 1 << 21,
                 S_W1: 1 << 19, S_W2: 1 << 19, S_W3: 512 * 1792 * 2, S_W4: 512 * 1792 * 2, S_OUT: 1 << 21}
        for s, n in sizes.items():
            a("s_mov_b32 s%d, 0x%x" % (s + 2, n))
            a("s_mov_b32 s%d, 0x20000" % (s + 3))
        a("s_and_b32 s100, s2, 7")
        a("s_lshr_b32 s101, s2, 3")
        a("s_lshr_b32 s%d, s101, 3" % sR)
        a("s_lshl_b32 s%d, s100, 2" % sC)
        a("s_add_u32 s%d, s%d, s%d" % (sR, sR, sC))
        a("s_and_b32 s%d, s101, 7" % sC)
        a("s_lshr_b32 s%d, s101, 4" % sRP)
        a("s_lshl_b32 s100, s100, 1")
        a("s_add_u32 s%d, s%d, s100" % (sRP, sRP))
        a("s_and_b32 s%d, s101, 15" % sCP)
        a("v_and_b32 v%d, 0xff, v0" % vTID)
        a("v_lshrrev_b32 v26, 6, v0")
        a("v_and_b32 v%d, 63, v0" % vL)
        a("v_readfirstlane_b32 s%d, v26" % sTMO)
        a("v_lshlrev_b32 v%d, 4, v%d" % (vL16, vL))
        a("v_lshrrev_b32 v%d, 5, v%d" % (vHH, vL))
        a("v_and_b32 v%d, 31, v%d" % (vN31, vL))
        a("s_and_b32 s%d, s%d, 3" % (sW, sTMO))
        a("s_lshr_b32 s%d, s%d, 1" % (sTH, sW))
        a("s_and_b32 s%d, s%d, 1" % (sKH, sW))
        a("s_lshl_b32 s%d, s%d, 1" % (sT, sR))
        a("s_add_u32 s%d, s%d, s%d" % (sT, sT, sTH))
        a("s_lshl_b32 s%d, s%d, 2" % (sT3, sRP))
        a("s_add_u32 s%d, s%d, s%d" % (sT3, sT3, sW))
        a("s_mov_b32 s%d, 0x3f803f80" % sONES)
        a("s_mov_b32 s%d, 0xffff0000" % sHI)
        a("s_movk_i32 s%d, 0x1000" % sK4)
        a("s_movk_i32 s%d, 0x2000" % sK8)
        a("s_movk_i32 s%d, 0x3000" % sK12)
        a("s_mov_b32 s%d, 0x%x" % (sEPS, f32bits(1e-5)))
        a("s_mov_b32 s%d, 0x%x" % (sKG1, f32bits(-GELU_K1)))
        a("s_mov_b32 s%d, 0x%x" % (sKG3, f32bits(-GELU_K3)))
        a("s_mov_b32 s%d, 0x%x" % (s512I, f32bits(1.0 / 512)))
        a("s_waitcnt lgkmcnt(0)")
        for sreg, src in ((S_Q, 64), (S_W1, 78), (S_K, 66), (S_V, 68), (S_SHK, 70), (S_SSM, 72), (S_DPTR, 74)):
            a("s_mov_b64 %s, %s" % (sr(sreg, 2), sr(src, 2)))
        for i, sreg in enumerate([S_W2, S_W3, S_W4, S_OUT]):
            a("s_mov_b64 %s, %s" % (sr(sreg, 2), sr(92 + 2 * i, 2)))
        a("s_add_u32 s%d, s%d, s%d" % (sROT, sR, sC))
        a("s_and_b32 s%d, s%d, 3" % (sROT, sROT))
        a("s_cmp_ge_u32 s%d, 4" % sTMO)
        a("s_cbranch_scc1 L_loader")
        if self.opt.get("prio", 1):
            a("s_setprio 1")
        if self.stamps:
            a("v_mov_b32 v%d, 0" % vSTAMP)
        self.stamp("start")
        if self.opt.get("dbgtime", 0):
            a("s_memtime s[98:99]")
            a("s_waitcnt lgkmcnt(0)")
        self.ssm_d_load()

    def tr_addresses(self):
        a = self.a
        a("v_bfe_u32 v26, v%d, 2, 2" % vL)
        a("v_and_b32 v27, 3, v%d" % vL)
        a("v_bfe_u32 v28, v%d, 4, 1" % vL)
        a("v_lshlrev_b32 v27, 3, v27")
        a("v_lshl_add_u32 v27, v28, 5, v27")
        a("v_lshl_add_u32 v28, v%d, 2, v26" % vHH)
        a("v_lshl_add_u32 v%d, v28, 6, v27" % vWP)
        a("v_lshl_add_u32 v28, v%d, 3, v26" % vHH)
        a("v_lshl_add_u32 v%d, v28, 6, v27" % vWN)

    def loader_setup(self):
        a = self.a
        a.label("L_loader")
        a("v_lshrrev_b32 v26, 2, v%d" % vL)
        a("v_and_b32 v27, 3, v%d" % vL)
        a("v_lshlrev_b32 v27, 4, v27")
        a("v_lshl_add_u32 v%d, v26, 10, v27" % vW64)
        a("v_lshrrev_b32 v26, 3, v%d" % vL)
        a("v_and_b32 v27, 7, v%d" % vL)
        a("v_lshrrev_b32 v28, 4, v%d" % vL)
        a("v_xor_b32 v27, v27, v28")
        a("v_lshlrev_b32 v27, 4, v27")
        a("v_lshl_add_u32 v%d, v26, 10, v27" % vQE)
        a("v_xor_b32 v%d, 64, v%d" % (vQE + 1, vQE))
        a("s_lshl_b32 s%d, s%d, 14" % (sCc, sW))
        a("s_lshl_b32 s%d, s%d, 15" % (sD, sT))
        a("s_lshl_b32 s%d, s%d, 9" % (sA, sKH))
        a("s_add_u32 s%d, s%d, s%d" % (sD, sD, sA))
        self.w64_bases(sW2L, sW2G)

    def feat0(self, dst, spanel, shift):
        a = self.a
        if self.opt.get("remap", 0):
            a("s_lshl_b32 s%d, s%d, %d" % (dst, sC, 5 + shift))
            a("s_lshl_b32 s%d, s%d, %d" % (sSO, spanel, 8 + shift))
        else:
            a("s_lshl_b32 s%d, s%d, %d" % (dst, sC, 6 + shift))
            a("s_lshl_b32 s%d, s%d, %d" % (sSO, spanel, 5 + shift))
        a("s_add_u32 s%d, s%d, s%d" % (dst, dst, sSO))

    def w64_bases(self, sl, sg):
        a = self.a
        a("s_lshl_b32 s%d, s%d, 15" % (sl, sTH))
        a("s_lshl_b32 s%d, s%d, 14" % (sA, sKH))
        a("s_add_u32 s%d, s%d, s%d" % (sl, sl, sA))
        a("s_add_u32 s%d, s%d, %d" % (sl, sl, LW))
        a("s_lshl_b32 s%d, s%d, 18" % (sg, sKH))
        self.feat0(sA, sTH, 1)
        a("s_add_u32 s%d, s%d, s%d" % (sg, sg, sA))

    def s1_stage_items(self, st):
        items = []

        def head():
            a = self.a
            a("s_add_u32 s%d, s%d, %d" % (sB, sROT, st))
            a("s_and_b32 s%d, s%d, 3" % (sB, sB))
            a("s_lshl_b32 s%d, s%d, 7" % (sQG, sB))
            a("s_add_u32 s%d, s%d, s%d" % (sQG, sQG, sD))
            a("s_lshl_b32 s%d, s%d, 16" % (sWG, sB))
            a("s_add_u32 s%d, s%d, s%d" % (sWG, sWG, sW2G))
        for j in range(4):
            def f(j=j):
                if j == 0:
                    head()
                self.dma_item(S_Q, vQE + (j & 1), sCc, LQ + st * 4096 + j * 1024, sQG, j * 8192, "s1_%d" % st)()
            items.append(f)
        for i in range(4):
            items.append(self.dma_item(S_W1, vW64, sW2L, (4 * st + i) * 1024, sWG, i * 16384, "s1_%d" % st))
        return items

    def touch(self, srd, lanes, sidx, dst):
        a = self.a
        a("s_mul_i32 s%d, s%d, %d" % (sA, sidx, lanes))
        a("v_add_u32 v26, s%d, v%d" % (sA, vL))
        a("v_lshlrev_b32 v26, 7, v26")
        a("v_mov_b32 v27, 0x%x" % OOB)
        a("v_cmp_gt_u32 vcc, %d, v%d" % (lanes, vL))
        a("v_cndmask_b32 v26, v27, v26, vcc")
        a.vmem("buffer_load_dword v%d, v26, %s, 0 offen" % (dst, sr(srd, 4)), "touch")

    def touch_w2(self):
        a = self.a
        if self.opt.get("touch", 1):
            a("s_lshr_b32 s%d, s2, 3" % sE)
            a("s_lshl_b32 s%d, s%d, 2" % (sE, sE))
            a("s_add_u32 s%d, s%d, s%d" % (sE, sE, sW))
            self.touch(S_W2, 32, sE, 53)

    def touch_chip(self, which):
        a = self.a
        srd, lanes, dst = {"w2": (S_W2, 4, 160), "ssm": (S_SSM, 16, 161), "w3": (S_W3, 14, 163), "w4": (S_W4, 14, 162)}[which]
        if not self.opt.get("t" + which, 1):
            return
        if which == "ssm" and self.opt.get("tssm", 2) == 2:
            a("s_lshl_b32 s%d, s2, 3" % sE)
            a("s_add_u32 s%d, s%d, s%d" % (sE, sE, sW))
            self.touch(srd, 8, sE, dst)
            return
        a("s_lshl_b32 s%d, s2, 2" % sE)
        a("s_add_u32 s%d, s%d, s%d" % (sE, sE, sW))
        self.touch(srd, lanes, sE, dst)

    def touch_code(self):
        a = self.a
        if not self.opt.get("tcode", 1):
            return
        a("s_getpc_b64 s[96:97]")
        a.label("L_pc")
        a("s_sub_u32 s96, s96, L_pc-%s_kernel" % NAME)
        a("s_subb_u32 s97, s97, 0")
        a("s_lshr_b32 s%d, s2, 3" % sE)
        a("s_lshl_b32 s%d, s%d, 2" % (sE, sE))
        a("s_add_u32 s%d, s%d, s%d" % (sE, sE, sW))
        a("s_mul_i32 s%d, s%d, 3" % (sE, sE))
        a("v_min_u32 v26, 2, v%d" % vL)
        a("v_add_u32 v26, s%d, v26" % sE)
        a("v_min_u32 v26, (L_codeend-%s_kernel)/128-1, v26" % NAME)
        a("v_lshlrev_b32 v26, 7, v26")
        a("v_mov_b32 v135, s97")
        a("v_add_co_u32 v134, vcc, s96, v26")
        a("v_addc_co_u32 v135, vcc, 0, v135, vcc")
        a.vmem("global_load_dword v136, v[134:135], off", "touch")

    def cold_touches(self):
        a = self.a
        o = self.opt
        a("s_lshr_b32 s%d, s2, 3" % sE)
        a("s_lshl_b32 s%d, s%d, 2" % (sE, sE))
        a("s_add_u32 s%d, s%d, s%d" % (sE, sE, sW))
        if o.get("tq", 0):
            a("s_and_b32 s%d, s2, 7" % sF)
            a("s_lshl_b32 s%d, s%d, 7" % (sF, sF))
            a("s_add_u32 s%d, s%d, s%d" % (sF, sF, sE))
            self.touch(S_Q, 16, sF, 160)
            self.touch(S_W1, 32, sE, 161)

    def touch_rows(self, srd, rows_per_wave, srow0, col, dst):
        a = self.a
        a("v_add_u32 v26, s%d, v%d" % (srow0, vL))
        a("v_lshlrev_b32 v26, 10, v26")
        a("v_add_u32 v26, %d, v26" % col)
        a("v_mov_b32 v27, 0x%x" % OOB)
        a("v_cmp_gt_u32 vcc, %d, v%d" % (rows_per_wave, vL))
        a("v_cndmask_b32 v26, v27, v26, vcc")
        a.vmem("buffer_load_dword v%d, v26, %s, 0 offen" % (dst, sr(srd, 4)), "touch")

    def wave_in_group(self, dst):
        a = self.a
        a("s_lshr_b32 s%d, s2, 3" % dst)
        a("s_lshl_b32 s%d, s%d, 2" % (dst, dst))
        a("s_add_u32 s%d, s%d, s%d" % (dst, dst, sW))

    def head_start(self):
        a = self.a
        m = self.opt.get("head", 11)
        self.wave_in_group(sE)
        if m & 1:
            a("s_lshl_b32 s%d, s%d, 2" % (sF, sE))
            self.touch_rows(S_W1, 4, sF, 384, 160)
        if m & 2:
            a("s_and_b32 s%d, s2, 7" % sF)
            a("s_lshl_b32 s%d, s%d, 7" % (sF, sF))
            a("s_add_u32 s%d, s%d, s%d" % (sF, sF, sE))
            a("s_lshl_b32 s%d, s%d, 1" % (sF, sF))
            self.touch_rows(S_K, 2, sF, 384, 161)
            self.touch_rows(S_V, 2, sF, 384, 162)
        if m & 4:
            a("s_lshl_b32 s%d, s%d, 2" % (sF, sE))
            self.touch_rows(S_W2, 4, sF, 384, 163)

    def page_touch(self):
        a = self.a
        m = self.opt.get("tlb", 4)
        if not m:
            return
        a("v_mov_b32 v27, 0x%x" % OOB)
        if m & 1:
            a("v_lshlrev_b32 v26, 21, v%d" % vL)
            a("v_add_u32 v26, 0x70800, v26")
            a("v_cmp_gt_u32 vcc, 10, v%d" % vL)
            a("v_cndmask_b32 v26, v27, v26, vcc")
            a.vmem("buffer_load_dword v164, v26, %s, 0 offen" % sr(S_WS, 4), "touch")
        lst = []
        if m & 2:
            lst += [(S_OUT, 1 << 21, 165)]
        if m & 4:
            lst += [(S_SSM, 1 << 21, 166), (S_W3, 512 * 1792 * 2, 167), (S_W4, 512 * 1792 * 2, 168), (S_W2, 1 << 19, 169)]
        if m & 8:
            lst += [(S_SHK, 4096, 188)]
        if m & 16:
            lst += [(S_K, 1 << 21, 189), (S_V, 1 << 21, 190)]
        for srd, size, dst in lst:
            a("v_mul_u32_u24 v26, %d, v%d" % (size // 128 - 1, vL))
            a("v_lshlrev_b32 v26, 7, v26")
            a("v_cmp_gt_u32 vcc, 2, v%d" % vL)
            a("v_cndmask_b32 v26, v27, v26, vcc")
            a.vmem("buffer_load_dword v%d, v26, %s, 0 offen" % (dst, sr(srd, 4)), "touch")

    def head_start_w4(self):
        a = self.a
        if self.opt.get("head", 11) & 8:
            self.wave_in_group(sE)
            a("s_mul_i32 s%d, s%d, 14" % (sF, sE))
            self.touch_rows(S_W4, 14, sF, 384, 161)

    def batch_a(self):
        a = self.a
        if self.opt.get("tkv", 1):
            self.touch_kv(157, 158)
        if self.opt.get("tw2", 1):
            a("s_lshr_b32 s%d, s2, 3" % sE)
            a("s_lshl_b32 s%d, s%d, 2" % (sE, sE))
            a("s_add_u32 s%d, s%d, s%d" % (sE, sE, sW))
            self.touch(S_W2, 32, sE, 159)
        if self.opt.get("bpos", 0) == 0:
            self.touch_chip("ssm")
            self.touch_chip("w3")
        if self.opt.get("w4early", 0) == 1:
            self.touch_chip("w4")

    def kv_dma(self):
        a = self.a
        a("v_lshrrev_b32 v26, 3, v%d" % vL)
        a("v_and_b32 v27, 7, v%d" % vL)
        a("v_lshlrev_b32 v27, 4, v27")
        a("v_lshl_add_u32 v137, v26, 10, v27")
        a("s_lshl_b32 s%d, s%d, 6" % (sA, sR))
        a("s_lshl_b32 s%d, s%d, 4" % (sB, sW))
        a("s_add_u32 s%d, s%d, s%d" % (sA, sA, sB))
        a("v_add_u32 v26, s%d, v26" % sA)
        a("s_lshl_b32 s%d, s%d, 10" % (sQG, sA))
        a("s_lshl_b32 s%d, s%d, 7" % (sB, sC))
        a("s_add_u32 s%d, s%d, s%d" % (sQG, sQG, sB))
        a("v_add_u32 v138, s%d, v137" % sQG)
        a("v_subrev_u32 v138, 3072, v138")
        a("v_mov_b32 v27, 0x%x" % OOB)
        a("v_cmp_gt_u32 vcc, 3, v26")
        a("v_cndmask_b32 v138, v138, v27, vcc")
        a("s_mul_i32 s%d, s%d, 5120" % (sWG, sW))
        a("s_add_u32 m0, s%d, %d" % (sWG, LKV))
        a.vmem("buffer_load_dwordx4 v138, %s, 0 offen lds" % sr(S_K, 4), "kv")
        for g in (1, 2):
            self.dma_item(S_K, 137, sWG, LKV + 1024 * g, sQG, 8192 * g - 3072, "kv")()
        for g in (0, 1):
            self.dma_item(S_V, 137, sWG, LKV + 3072 + 1024 * g, sQG, 8192 * g, "kv")()
        a("s_lshl_b32 s%d, s%d, 9" % (sB, sC))
        a("v_lshl_add_u32 v26, v%d, 4, s%d" % (vN31, sB))
        a.vmem("buffer_load_dwordx4 %s, v26, %s, 0 offen" % (vr(self.SHRAW, 4), sr(S_SHK, 4)), "kv")

    def p0_reads(self):
        a = self.a
        a.wait_vm("kv")
        a("s_mul_i32 s%d, s%d, 5120" % (sA, sW))
        a("v_lshlrev_b32 v26, 10, v%d" % vHH)
        a("v_lshl_add_u32 v26, v%d, 2, v26" % vN31)
        a("v_add_u32 v26, s%d, v26" % sA)
        a("v_add_u32 v26, %d, v26" % LKV)
        for i in range(11):
            a.lds("ds_read_b32 v%d, v26 offset:%d" % (self.KRAW + i, 128 * i), "p0")
        for i in range(8):
            a.lds("ds_read_b32 v%d, v26 offset:%d" % (self.VRAW + i, 3072 + 128 * i), "p0")

    def touch_kv(self, dk=54, dv=55):
        a = self.a
        for srd, rows, first, dst in ((S_K, 17, -3, dk), (S_V, 16, 0, dv)):
            a("s_lshl_b32 s%d, s%d, 6" % (sA, sR))
            a("s_mul_i32 s%d, s%d, %d" % (sB, sW, rows))
            a("s_add_u32 s%d, s%d, s%d" % (sA, sA, sB))
            a("s_add_i32 s%d, s%d, %d" % (sA, sA, first))
            a("v_add_u32 v26, s%d, v%d" % (sA, vL))
            a("v_lshlrev_b32 v26, 10, v26")
            a("s_lshl_b32 s%d, s%d, 7" % (sB, sC))
            a("v_add_u32 v26, s%d, v26" % sB)
            a("v_mov_b32 v27, 0x%x" % OOB)
            a("v_cmp_gt_u32 vcc, %d, v%d" % (rows, vL))
            a("v_cndmask_b32 v26, v27, v26, vcc")
            a.vmem("buffer_load_dword v%d, v26, %s, 0 offen" % (dst, sr(srd, 4)), "touch")

    def touch_w3_local(self):
        a = self.a
        if self.opt.get("tw3", 1):
            a("s_lshr_b32 s%d, s2, 3" % sE)
            a("s_lshl_b32 s%d, s%d, 2" % (sE, sE))
            a("s_add_u32 s%d, s%d, s%d" % (sE, sE, sW))
            self.touch(S_W3, 64, sE, 50)
            a("s_add_u32 s%d, s%d, 128" % (sE, sE))
            self.touch(S_W3, 64, sE, 51)

    def touch_w4_chip(self):
        a = self.a
        if self.opt.get("tw4", 1):
            a("s_lshl_b32 s%d, s2, 2" % sE)
            a("s_add_u32 s%d, s%d, s%d" % (sE, sE, sW))
            self.touch(S_W4, 14, sE, 52)

    def touch_w34(self):
        a = self.a
        if self.opt.get("touch", 1):
            a("s_lshl_b32 s%d, s2, 2" % sE)
            a("s_add_u32 s%d, s%d, s%d" % (sE, sE, sW))
            if self.opt.get("touchw3", 1):
                self.touch(S_W3, 14, sE, 223)
            if self.opt.get("touchw4", 1):
                self.touch(S_W4, 14, sE, 224)

    def touch_w4_local(self):
        a = self.a
        a("s_lshr_b32 s%d, s2, 3" % sE)
        a("s_lshl_b32 s%d, s%d, 2" % (sE, sE))
        a("s_add_u32 s%d, s%d, s%d" % (sE, sE, sW))
        self.touch(S_W4, 64, sE, 54)
        a("s_add_u32 s%d, s%d, 128" % (sE, sE))
        self.touch(S_W4, 64, sE, 55)

    KRAW, VRAW, SHRAW, POFF = 172, 183, 164, 138

    def p0_loads(self):
        a = self.a
        o = self.POFF
        a("s_lshl_b32 s%d, s%d, 6" % (sA, sR))
        a("s_lshl_b32 s%d, s%d, 4" % (sB, sW))
        a("s_add_u32 s%d, s%d, s%d" % (sA, sA, sB))
        a("v_lshl_add_u32 v26, v%d, 3, s%d" % (vHH, sA))
        a("s_lshl_b32 s%d, s%d, 7" % (sB, sC))
        a("v_lshl_add_u32 v27, v%d, 2, s%d" % (vN31, sB))
        a("v_lshl_add_u32 v%d, v26, 10, v27" % (o + 3))
        a("v_add_u32 v%d, 0x1000, v%d" % (o + 4, o + 3))
        a("v_mov_b32 v28, 0x%x" % OOB)
        for i in range(3):
            a("v_subrev_u32 v%d, %d, v%d" % (o + i, (3 - i) * 1024, o + 3))
            a("v_cmp_gt_u32 vcc, %d, v26" % (3 - i))
            a("v_cndmask_b32 v%d, v%d, v28, vcc" % (o + i, o + i))
        a("s_lshl_b32 s%d, s%d, 9" % (sB, sC))
        a("v_lshl_add_u32 v%d, v%d, 4, s%d" % (o + 5, vN31, sB))

        def item(text):
            return lambda: a.vmem(text, "p0")
        for i in range(3):
            self.fq.append(item("buffer_load_dword v%d, v%d, %s, 0 offen" % (self.KRAW + i, o + i, sr(S_K, 4))))
        for i in range(8):
            self.fq.append(item("buffer_load_dword v%d, v%d, %s, 0 offen offset:%d"
                                % (self.KRAW + 3 + i, o + 3 + i // 4, sr(S_K, 4), (i % 4) * 1024)))
        for i in range(8):
            self.fq.append(item("buffer_load_dword v%d, v%d, %s, 0 offen offset:%d"
                                % (self.VRAW + i, o + 3 + i // 4, sr(S_V, 4), (i % 4) * 1024)))
        self.fq.append(item("buffer_load_dwordx4 %s, v%d, %s, 0 offen" % (vr(self.SHRAW, 4), o + 5, sr(S_SHK, 4))))

    ACK, ACS, ACC_CS = 32, 48, 64
    BF, AK, AS, AC = 80, 96, 104, 112
    SUM, ONE4 = 120, 124

    def s1_setup(self):
        a = self.a
        a("v_bfe_u32 v26, v%d, 1, 3" % vN31)
        a("v_xor_b32 v26, v26, v%d" % vHH)
        a("v_lshlrev_b32 v26, 4, v26")
        a("v_lshl_add_u32 v26, v%d, 7, v26" % vN31)
        a("s_lshl_b32 s%d, s%d, 14" % (sA, sW))
        a("v_add_u32 v128, s%d, v26" % sA)
        for i in range(1, 4):
            a("v_xor_b32 v%d, %d, v128" % (128 + i, 32 * i))
        a("s_lshl_b32 s%d, s%d, 14" % (sA, sKH))
        a("s_add_u32 s%d, s%d, %d" % (sA, sA, LW))
        a("s_lshl_b32 s%d, s%d, 15" % (sB, sKH))
        a("s_add_u32 s%d, s%d, s%d" % (sE, sA, sB))
        a("v_add_u32 v134, s%d, v%d" % (sE, vWN))
        a("s_xor_b32 s%d, s%d, 0x8000" % (sB, sB))
        a("s_add_u32 s%d, s%d, s%d" % (sE, sA, sB))
        a("v_add_u32 v135, s%d, v%d" % (sE, vWN))
        a("s_xor_b32 s%d, s%d, s%d" % (sB, sKH, sTH))
        a("s_lshl_b32 s%d, s%d, 15" % (sB, sB))
        a("s_add_u32 s%d, s%d, s%d" % (sE, sA, sB))
        a("v_add_u32 v136, s%d, v%d" % (sE, vWN))

    def s1_main(self, after_stage):
        a = self.a
        ACK, ACS, ACC_CS, BF, AK, AS, AC, SUM, ONE4 = (self.ACK, self.ACS, self.ACC_CS, self.BF, self.AK, self.AS,
                                                       self.AC, self.SUM, self.ONE4)
        self.selector(ONE4)
        for i in range(4):
            a("v_mov_b32 v%d, 0" % (SUM + i))

        def aread(ks, which):
            base, addr = ((AK, 134), (AS, 135), (AC, 136))[which]
            for hf in range(2):
                a.lds("ds_read_b64_tr_b16 %s, v%d offset:%d"
                      % (vr(base + 4 * (ks & 1) + 2 * hf, 2), addr, ks * 1024 + hf * 256), "f%d_%d" % (ks, which))

        for st in range(4):
            if st < 3:
                after_stage(st)
            for q4 in range(4):
                a.lds("ds_read_b128 %s, v%d offset:%d" % (vr(BF + 4 * q4, 4), 128 + q4, LQ + st * 4096), "b")
            for which in range(3):
                aread(4 * st, which)
            self.fill(1)
            a.wait_lg("b")
            if not self.opt.get("hstat", 0):
                for j in range(16):
                    a("v_dot2c_f32_bf16 v%d, s%d, v%d" % (SUM + (j & 1), sONES, BF + j))
                    a("v_dot2c_f32_bf16 v%d, v%d, v%d" % (SUM + 2 + (j & 1), BF + j, BF + j))
            for q4 in range(4):
                ks = 4 * st + q4
                b = ks & 1
                B = vr(BF + 4 * q4, 4)
                first = ks == 0
                a.wait_lg("f%d_0" % ks)
                a("%s %s, %s, %s, %s" % (MF32, vr(ACK, 16), vr(AK + 4 * b, 4), B, "0" if first else vr(ACK, 16)))
                if q4 < 3:
                    aread(ks + 1, 0)
                self.fill(1)
                a.wait_lg("f%d_1" % ks)
                a("%s %s, %s, %s, %s" % (MF32, vr(ACS, 16), vr(AS + 4 * b, 4), B, "0" if first else vr(ACS, 16)))
                if q4 < 3:
                    aread(ks + 1, 1)
                self.fill(1)
                a.wait_lg("f%d_2" % ks)
                a("%s %s, %s, %s, %s" % (MF16, vr(ACC_CS, 4), vr(AC + 4 * b, 4), vr(ONE4, 4),
                                         "0" if first else vr(ACC_CS, 4)))
                if q4 < 3:
                    aread(ks + 1, 2)
            self.stamp("s1st%d" % st)
        self.fill_all()

    def s1_stats(self):
        a = self.a
        BF, SUM = self.BF, self.SUM
        a("v_bfe_u32 v26, v%d, 1, 3" % vN31)
        a("v_xor_b32 v26, v26, v%d" % vHH)
        a("v_lshlrev_b32 v26, 4, v26")
        a("v_lshl_add_u32 v26, v%d, 7, v26" % vN31)
        a("s_lshl_b32 s%d, s%d, 14" % (sA, sW))
        a("v_add_u32 v128, s%d, v26" % sA)
        for i in range(1, 4):
            a("v_xor_b32 v%d, %d, v128" % (128 + i, 32 * i))
        for i in range(4):
            a("v_mov_b32 v%d, 0" % (SUM + i))
        bufs = (BF, 96)
        for st in range(5):
            if st < 4:
                for q4 in range(4):
                    a.lds("ds_read_b128 %s, v%d offset:%d" % (vr(bufs[st & 1] + 4 * q4, 4), 128 + q4, LQ + st * 4096),
                          "b%d" % st)
            if st:
                a.wait_lg("b%d" % (st - 1))
                B = bufs[(st - 1) & 1]
                for j in range(16):
                    a("v_dot2c_f32_bf16 v%d, s%d, v%d" % (SUM + (j & 1), sONES, B + j))
                    a("v_dot2c_f32_bf16 v%d, v%d, v%d" % (SUM + 2 + (j & 1), B + j, B + j))
        self.stats_write()
        a.wait_lg_all()

    def stats_write(self):
        a = self.a
        SUM = self.SUM
        a("v_add_f32 v%d, v%d, v%d" % (SUM, SUM, SUM + 1))
        a("v_add_f32 v%d, v%d, v%d" % (SUM + 2, SUM + 2, SUM + 3))
        a("v_permlane32_swap_b32 v%d, v%d" % (SUM, SUM + 2))
        a("v_add_f32 v%d, v%d, v%d" % (SUM, SUM, SUM + 2))
        a("s_lshl_b32 s%d, s%d, 8" % (sA, sW))
        a("s_add_u32 s%d, s%d, %d" % (sA, sA, LSTX))
        a("v_lshl_add_u32 v27, v%d, 2, s%d" % (vL, sA))
        a.lds("ds_write_b32 v27, v%d" % SUM)

    def selector(self, dst):
        a = self.a
        a("v_lshrrev_b32 v26, 4, v%d" % vL)
        a("v_xor_b32 v26, v26, v%d" % vL)
        a("v_and_b32 v26, 1, v26")
        a("v_mov_b32 v27, s%d" % sONES)
        a("v_cmp_eq_u32 vcc, 0, v26")
        a("v_cndmask_b32 v%d, 0, v27, vcc" % dst)
        for i in range(1, 4):
            a("v_mov_b32 v%d, v%d" % (dst + i, dst))

    def colsum_write(self, src, sbase):
        a = self.a
        a("v_and_b32 v28, 1, v%d" % vL)
        a("v_lshlrev_b32 v28, 6, v28")
        a("v_lshrrev_b32 v29, 4, v%d" % vL)
        a("v_lshl_add_u32 v28, v29, 4, v28")
        a("v_add_u32 v28, s%d, v28" % sbase)
        self.hold += 1
        a("s_mov_b32 exec_lo, 0x30003")
        a("s_mov_b32 exec_hi, 0x30003")
        a.lds("ds_write_b128 v28, %s" % vr(src, 4))
        a("s_mov_b64 exec, -1")
        self.hold -= 1

    def q_tile_read(self):
        a = self.a
        self.feat0(sE, sKH, 0)
        a("s_lshr_b32 s%d, s%d, 8" % (sA, sE))
        a("s_lshl_b32 s%d, s%d, 1" % (sB, sTH))
        a("s_add_u32 s%d, s%d, s%d" % (sA, sA, sB))
        a("s_lshl_b32 s%d, s%d, 14" % (sA, sA))
        a("s_lshr_b32 s%d, s%d, 6" % (sB, sE))
        a("s_sub_u32 s%d, s%d, s%d" % (sB, sB, sROT))
        a("s_and_b32 s%d, s%d, 3" % (sB, sB))
        a("s_lshl_b32 s%d, s%d, 12" % (sB, sB))
        a("s_add_u32 s%d, s%d, s%d" % (sA, sA, sB))
        a("s_bfe_u32 s%d, s%d, 0x10005" % (sB, sE))
        a("s_lshl_b32 s%d, s%d, 2" % (sB, sB))
        a("v_bfe_u32 v26, v%d, 1, 3" % vN31)
        a("v_xor_b32 v26, s%d, v26" % sB)
        a("v_lshlrev_b32 v27, 7, v%d" % vN31)
        a("v_lshl_add_u32 v27, v%d, 3, v27" % vHH)
        a("v_add_u32 v27, s%d, v27" % sA)
        for j in range(4):
            a("v_xor_b32 v28, %d, v26" % j)
            a("v_lshl_add_u32 v28, v28, 4, v27")
            a.lds("ds_read_b64 %s, v28 offset:%d" % (vr(vQ + 2 * j, 2), LQ), "qt")

    def gelu(self, X, n, vA13, vIA, T, out, fills=0):
        a = self.a
        for g0 in range(0, n // 2, 4):
            ps = list(range(g0, min(g0 + 4, n // 2)))
            t = lambda p: T + 4 * (p - g0)
            x = lambda p: vr(X + 2 * p, 2)
            left = fills

            def hook():
                nonlocal left
                if left > 0:
                    self.fill(1)
                    left -= 1
            for p in ps:
                a("v_pk_mul_f32 %s, %s, %s" % (vr(t(p), 2), x(p), x(p)))
            for p in ps:
                a("v_pk_fma_f32 %s, %s, %s, %s op_sel:[0,1,0] op_sel_hi:[1,1,0]"
                  % (vr(t(p), 2), vr(t(p), 2), vr(vA13, 2), vr(vA13, 2)))
            hook()
            for p in ps:
                a("v_pk_mul_f32 %s, %s, %s" % (vr(t(p), 2), vr(t(p), 2), x(p)))
            for p in ps:
                a("v_exp_f32 v%d, v%d" % (t(p) + 2, t(p)))
                a("v_exp_f32 v%d, v%d" % (t(p) + 3, t(p) + 1))
            hook()
            for p in ps:
                a("v_pk_fma_f32 %s, %s, %s, %s op_sel_hi:[1,0,0]"
                  % (vr(t(p), 2), vr(t(p) + 2, 2), vr(vIA, 2), vr(vIA, 2)))
            hook()
            for p in ps:
                a("v_rcp_f32 v%d, v%d" % (t(p) + 2, t(p)))
                a("v_rcp_f32 v%d, v%d" % (t(p) + 3, t(p) + 1))
            hook()
            for p in ps:
                a("v_pk_mul_f32 %s, %s, %s" % (vr(t(p), 2), vr(t(p) + 2, 2), x(p)))
            for p in ps:
                a("v_cvt_pk_bf16_f32 v%d, v%d, v%d" % (out + p, t(p), t(p) + 1))

    def gelu_consts(self, vA, dst):
        a = self.a
        a("v_mul_f32 v%d, s%d, v%d" % (dst, sKG1, vA))
        a("v_mul_f32 v%d, v%d, v%d" % (dst + 1, vA, vA))
        a("v_mul_f32 v%d, v%d, v%d" % (dst + 1, dst + 1, vA))
        a("v_mul_f32 v%d, s%d, v%d" % (dst + 1, sKG3, dst + 1))
        a("v_rcp_f32 v%d, v%d" % (dst + 2, vA))

    def exchange_write(self, send, base=LRED):
        a = self.a
        a("s_lshl_b32 s%d, s%d, 12" % (sA, sW))
        a("s_add_u32 s%d, s%d, %d" % (sA, sA, base))
        a("v_add_u32 v26, s%d, v%d" % (sA, vL16))
        for j in range(4):
            a.lds("ds_write_b128 v26, %s offset:%d" % (vr(send + 4 * j, 4), 1024 * j))

    def exchange_read(self, dst, base=LRED):
        a = self.a
        a("s_xor_b32 s%d, s%d, 1" % (sA, sW))
        a("s_lshl_b32 s%d, s%d, 12" % (sA, sA))
        a("s_add_u32 s%d, s%d, %d" % (sA, sA, base))
        a("v_add_u32 v26, s%d, v%d" % (sA, vL16))
        for j in range(4):
            a.lds("ds_read_b128 %s, v26 offset:%d" % (vr(dst + 4 * j, 4), 1024 * j), "xr")

    def s1_epilogue(self, after_exchange):
        a = self.a
        ACK, ACS, ACC_CS, SUM = self.ACK, self.ACS, self.ACC_CS, self.SUM
        self.q_tile_read()
        hstat = self.opt.get("hstat", 0)
        if not hstat:
            self.stats_write()
        self.exchange_write(ACS)
        a("s_xor_b32 s%d, s%d, s%d" % (sA, sKH, sTH))
        a("s_lshl_b32 s%d, s%d, 8" % (sA, sA))
        a("s_lshl_b32 s%d, s%d, 7" % (sB, sKH))
        a("s_add_u32 s%d, s%d, s%d" % (sA, sA, sB))
        a("s_add_u32 s%d, s%d, %d" % (sA, sA, LCSX))
        self.colsum_write(ACC_CS, sA)
        a.wait_lg_all()
        self.ssm_d_unpack()
        self.barrier()
        P, C0, C1 = 80, 96, 128
        self.exchange_read(P)
        a("s_xor_b32 s%d, s%d, 1" % (sA, sW))
        a("s_lshl_b32 s%d, s%d, 8" % (sA, sA))
        a("s_add_u32 s%d, s%d, %d" % (sA, sA, LSTX))
        a("v_lshl_add_u32 v27, v%d, 2, s%d" % (vL, sA))
        a.lds("ds_read_b32 v%d, v27" % (SUM + 1), "sx")
        if hstat:
            a("s_lshl_b32 s%d, s%d, 8" % (sA, sW))
            a("s_add_u32 s%d, s%d, %d" % (sA, sA, LSTX))
            a("v_lshl_add_u32 v27, v%d, 2, s%d" % (vL, sA))
            a.lds("ds_read_b32 v%d, v27" % SUM, "sx")
        a("s_lshl_b32 s%d, s%d, 8" % (sA, sKH))
        a("s_add_u32 s%d, s%d, %d" % (sA, sA, LCSX))
        a("v_lshl_add_u32 v28, v%d, 4, s%d" % (vHH, sA))
        for j in range(4):
            a.lds("ds_read_b128 %s, v28 offset:%d" % (vr(C0 + 4 * j, 4), 32 * j))
            a.lds("ds_read_b128 %s, v28 offset:%d" % (vr(C1 + 4 * j, 4), 128 + 32 * j))
        after_exchange()
        a.wait_lg("sx")
        a("v_add_f32 v%d, v%d, v%d" % (SUM, SUM, SUM + 1))
        a("v_mov_b32 v%d, v%d" % (SUM + 2, SUM))
        a("v_permlane32_swap_b32 v%d, v%d" % (SUM, SUM + 2))
        a("v_mul_f32 v%d, s%d, v%d" % (vMEAN, s512I, SUM))
        a("v_mul_f32 v26, s%d, v%d" % (s512I, SUM + 2))
        a("v_fma_f32 v26, -v%d, v%d, v26" % (vMEAN, vMEAN))
        a("v_max_f32 v26, 0, v26")
        a("v_add_f32 v27, s%d, v26" % sEPS)
        a("v_rsq_f32 v%d, v27" % vR1)
        a("v_mul_f32 v27, v%d, v%d" % (vR1, vR1))
        a("v_fma_f32 v27, v27, v26, s%d" % sEPS)
        a("v_rsq_f32 v27, v27")
        a("v_mul_f32 v27, v27, v%d" % vR1)
        G = 112
        self.gelu_consts(27, G)
        a("v_sub_f32 v%d, 0, v%d" % (G + 4, vMEAN))
        a.wait_lg_all()
        for p in range(8):
            a("v_pk_add_f32 %s, %s, %s" % (vr(C0 + 2 * p, 2), vr(C0 + 2 * p, 2), vr(C1 + 2 * p, 2)))
            a("v_pk_add_f32 %s, %s, %s" % (vr(ACK + 2 * p, 2), vr(ACK + 2 * p, 2), vr(P + 2 * p, 2)))
        for p in range(8):
            a("v_pk_fma_f32 %s, %s, %s, %s op_sel_hi:[1,0,1]"
              % (vr(ACK + 2 * p, 2), vr(C0 + 2 * p, 2), vr(G + 4, 2), vr(ACK + 2 * p, 2)))
        self.gelu(ACK, 16, G, G + 2, 144, 48, fills=0)
        self.frag_store(48, WS_HS, "hst")

    def frag_store(self, src, base, tag):
        a = self.a
        a("s_lshl_b32 s%d, s%d, 15" % (sA, sT))
        self.feat0(sB, sKH, 6)
        a("s_add_u32 s%d, s%d, s%d" % (sA, sA, sB))
        a("s_add_u32 s%d, s%d, 0x%x" % (sA, sA, base))
        a.vmem("buffer_store_dwordx4 %s, v%d, %s, s%d offen sc1" % (vr(src, 4), vL16, sr(S_WS, 4), sA), tag)
        a.vmem("buffer_store_dwordx4 %s, v%d, %s, s%d offen offset:1024 sc1"
               % (vr(src + 4, 4), vL16, sr(S_WS, 4), sA), tag)

    PK = 118

    def nonce_compute(self):
        a = self.a
        a.wait_vm("nonce")
        a("v_readfirstlane_b32 s%d, v30" % sN)
        a("s_mul_i32 s%d, s%d, 0x9e3779b1" % (sN, sN))
        a("s_add_u32 s%d, s%d, 0x7f4a7c15" % (sN, sN))

    def p0_compute(self, mid=None):
        a = self.a
        K, V, SH, KV, PK = 56, 78, 94, 102, self.PK
        self.p0_reads()
        a.wait_lg_all()
        d = self.SHRAW
        for j, (x, y, hi) in enumerate([(d, d + 2, 0), (d, d + 2, 1), (d + 1, d + 3, 0), (d + 1, d + 3, 1)]):
            for o, src in ((0, x), (1, y)):
                if hi:
                    a("v_and_b32 v%d, s%d, v%d" % (SH + 2 * j + o, sHI, src))
                else:
                    a("v_lshlrev_b32 v%d, 16, v%d" % (SH + 2 * j + o, src))
        for i in range(11):
            a("v_lshlrev_b32 v%d, 16, v%d" % (K + 2 * i, self.KRAW + i))
            a("v_and_b32 v%d, s%d, v%d" % (K + 2 * i + 1, sHI, self.KRAW + i))
            if i % 4 == 3:
                self.fill(1)
        for i in range(8):
            a("v_lshlrev_b32 v%d, 16, v%d" % (V + 2 * i, self.VRAW + i))
            a("v_and_b32 v%d, s%d, v%d" % (V + 2 * i + 1, sHI, self.VRAW + i))
        self.fill(1)
        for t in range(8):
            a("v_pk_mul_f32 %s, %s, %s" % (vr(KV + 2 * t, 2), vr(K + 2 * (t + 3), 2), vr(SH, 2)))
        self.fill(1)
        for j in range(1, 4):
            for t in range(8):
                a("v_pk_fma_f32 %s, %s, %s, %s" % (vr(KV + 2 * t, 2), vr(K + 2 * (t + 3 - j), 2), vr(SH + 2 * j, 2),
                                                   vr(KV + 2 * t, 2)))
            self.fill(1)
        if mid:
            mid()
            self.fill(4)
        for t in range(8):
            a("v_pk_mul_f32 %s, %s, %s" % (vr(KV + 2 * t, 2), vr(KV + 2 * t, 2), vr(V + 2 * t, 2)))
        self.fill(1)
        for c in range(2):
            for t in range(4):
                a("v_cvt_pk_bf16_f32 v%d, v%d, v%d" % (PK + 4 * c + t, KV + 4 * t + c, KV + 4 * t + 2 + c))
        a("s_lshl_b32 s%d, s%d, 1" % (sA, sW))
        a("v_add_u32 v26, s%d, v%d" % (sA, vHH))
        a("v_and_b32 v27, 7, v%d" % vN31)
        a("v_xor_b32 v26, v26, v27")
        a("v_lshlrev_b32 v26, 4, v26")
        a("v_lshl_add_u32 v26, v%d, 8, v26" % vN31)
        a("v_add_u32 v26, %d, v26" % LSTG)
        a.lds("ds_write_b128 v26, %s" % vr(PK, 4))
        a.lds("ds_write_b128 v26, %s offset:128" % vr(PK + 4, 4))
        self.fill_all()

    def p0_readback(self):
        a = self.a
        PK = 144
        a("v_lshrrev_b32 v26, 3, v%d" % vL)
        a("s_lshl_b32 s%d, s%d, 4" % (sA, sW))
        a("v_add_u32 v26, s%d, v26" % sA)
        a("v_and_b32 v27, 7, v%d" % vL)
        for i in range(2):
            a("v_add_u32 v28, %d, v26" % (8 * i))
            a("v_bfe_u32 v29, v28, 1, 3")
            a("v_xor_b32 v29, v29, v27")
            a("v_lshlrev_b32 v29, 4, v29")
            a("v_lshl_add_u32 v29, v28, 7, v29")
            a("v_add_u32 v29, %d, v29" % LSTG)
            a.lds("ds_read_b128 %s, v29" % vr(PK + 4 * i, 4), "pk")
        a("v_lshlrev_b32 v27, 4, v27")
        a("v_lshl_add_u32 v152, v26, 12, v27")

    def p0_store(self):
        a = self.a
        PK = 144
        a("s_lshl_b32 s%d, s%d, 18" % (sA, sC))
        a("s_lshl_b32 s%d, s%d, 7" % (sB, sR))
        a("s_add_u32 s%d, s%d, s%d" % (sA, sA, sB))
        a("s_add_u32 s%d, s%d, 0x%x" % (sA, sA, WS_KVT))
        a("s_add_u32 s%d, s%d, 0x8000" % (sB, sA))
        a.wait_lg("pk")
        a.vmem("buffer_store_dwordx4 %s, v152, %s, s%d offen sc1" % (vr(PK, 4), sr(S_WS, 4), sA), "kvt")
        a.vmem("buffer_store_dwordx4 %s, v152, %s, s%d offen sc1" % (vr(PK + 4, 4), sr(S_WS, 4), sB), "kvt")

    def conv_filter_loads(self, ch):
        a = self.a
        a("v_lshlrev_b32 v26, 4, v%d" % vTID)
        a("v_subrev_u32 v27, 8, v26")
        a("v_mov_b32 v28, 0x%x" % OOB)
        a("v_cmp_eq_u32 vcc, 0, v%d" % vTID)
        a("v_cndmask_b32 v27, v27, v28, vcc")
        a("s_lshl_b32 s%d, s2, 13" % sA)
        if ch:
            a("s_add_u32 s%d, s%d, 0x1000" % (sA, sA))
        dA, dP = vr(vCH, 4), vr(vCH + 4, 2)
        a.vmem("buffer_load_dwordx4 %s, v26, %s, s%d offen" % (dA, sr(S_SSM, 4), sA), "cf")
        a.vmem("buffer_load_dwordx2 %s, v27, %s, s%d offen" % (dP, sr(S_SSM, 4), sA), "cf")

    def ssm_d_load(self):
        a = self.a
        a("s_lshl_b32 s%d, s2, 2" % sA)
        a("s_load_dword s%d, %s, s%d" % (sD0, sr(S_DPTR, 2), sA))

    def ssm_d_unpack(self):
        a = self.a
        a("s_and_b32 s%d, s%d, s%d" % (sD1, sD0, sHI))
        a("s_lshl_b32 s%d, s%d, 16" % (sD0, sD0))

    def conv_x_loads(self, ch):
        a = self.a
        a("v_lshlrev_b32 v26, 4, v%d" % vTID)
        a("s_lshl_b32 s%d, s2, 13" % sA)
        a("s_add_u32 s%d, s%d, 0x%x" % (sA, sA, WS_KVT + 0x1000 * ch))
        a.vmem("buffer_load_dwordx4 %s, v26, %s, s%d offen sc1" % (vr(vCH + 6, 4), sr(S_WS, 4), sA), "cx")

    def conv_prep_filter(self, ch):
        a = self.a
        base = CV_BASE1 if ch else CV_BASE
        A, P = vCH, vCH + 4
        a.wait_vm("cf")
        a("v_min_u32 v26, 79, v%d" % vTID)
        a("v_subrev_u32 v27, 72, v26")
        a("v_lshrrev_b32 v28, 1, v27")
        a("v_mul_u32_u24 v28, 4128, v28")
        a("v_and_b32 v27, 1, v27")
        a("v_lshl_add_u32 v28, v27, 4, v28")
        a("v_add_u32 v28, %d, v28" % (base + CV_A))
        a("v_lshlrev_b32 v27, 4, v26")
        a("v_add_u32 v27, %d, v27" % (base + CV_X))
        a("v_cmp_gt_u32 vcc, 72, v26")
        a("v_cndmask_b32 v28, v28, v27, vcc")
        for i in range(4):
            a("v_mov_b32 v%d, 0" % (32 + i))
        a.lds("ds_write_b128 v28, %s" % vr(32, 4))
        Z, Y, W = 36, 40, 44
        seq = [P, P + 1, A, A + 1, A + 2, A + 3]
        for j in range(4):
            a("v_alignbit_b32 v%d, v%d, v%d, 16" % (Z + j, seq[j + 1], seq[j]))
            a("v_alignbit_b32 v%d, v%d, v%d, 16" % (Y + j, seq[j + 2], seq[j + 1]))
            a("v_mov_b32 v%d, v%d" % (W + j, seq[j + 1]))
        a("v_lshlrev_b32 v29, 4, v%d" % vTID)
        a("v_add_u32 v29, %d, v29" % base)
        for rho, src in ((0, A), (1, Y), (2, W), (3, Z)):
            a.lds("ds_write_b128 v29, %s offset:%d" % (vr(src, 4), CV_A + 32 + 4128 * rho))
        a.wait_lg_all()

    def conv_x_write(self, ch):
        a = self.a
        base = CV_BASE1 if ch else CV_BASE
        a.wait_vm("cx")
        a("v_lshlrev_b32 v29, 4, v%d" % vTID)
        a("v_add_u32 v29, %d, v29" % base)
        a.lds("ds_write_b128 v29, %s offset:%d" % (vr(vCH + 6, 4), CV_XD))
        a.wait_lg_all()

    def conv_poly(self, ch):
        a = self.a
        base = CV_BASE1 if ch else CV_BASE
        a("s_lshl_b32 s%d, s%d, 5" % (sA, sW))
        a("s_sub_u32 s%d, %d, s%d" % (sA, base + CV_XD - 1024, sA))
        a("v_lshl_add_u32 v26, v%d, 3, s%d" % (vL, sA))
        for u in range(10):
            a.lds("ds_read_b64_tr_b16 %s, v26 offset:%d" % (vr(32 + 2 * u, 2), 512 * u), "u%d" % u)
        a("s_mul_i32 s%d, s%d, 5312" % (sA, sW))
        a("s_add_u32 s%d, s%d, %d" % (sA, sA, base + CV_P))
        a("v_and_b32 v27, 15, v%d" % vL)
        a("v_mul_u32_u24 v27, 328, v27")
        a("v_lshrrev_b32 v28, 4, v%d" % vL)
        a("v_lshl_add_u32 v27, v28, 3, v27")
        a("v_add_u32 v27, s%d, v27" % sA)
        for u in range(10):
            a.wait_lg("u%d" % u)
            a.lds("ds_write_b64 v27, %s offset:%d" % (vr(32 + 2 * u, 2), 32 * u))
        a.wait_lg_all()

    def conv_addr(self, ch):
        a = self.a
        base = CV_BASE1 if ch else CV_BASE
        a("s_lshl_b32 s%d, s%d, 4" % (sA, sTH))
        a("s_sub_u32 s%d, %d, s%d" % (sA, base + CV_A + 24, sA))
        a("v_lshl_add_u32 v160, v%d, 3, s%d" % (vL, sA))
        a("s_mul_i32 s%d, s%d, 2624" % (sA, sTH))
        a("s_lshl_b32 s%d, s%d, 5" % (sB, sKH))
        a("s_add_u32 s%d, s%d, s%d" % (sA, sA, sB))
        a("s_add_u32 s%d, s%d, %d" % (sA, sA, base + CV_P + 32))
        a("v_bfe_u32 v26, v%d, 2, 2" % vL)
        a("v_mul_u32_u24 v26, 5312, v26")
        a("v_and_b32 v27, 3, v%d" % vL)
        a("v_lshrrev_b32 v28, 4, v%d" % vL)
        a("v_sub_u32 v27, v27, v28")
        a("v_lshl_add_u32 v26, v27, 3, v26")
        a("v_add_u32 v161, s%d, v26" % sA)

    CACC, CAF, CBF = 32, 64, 96

    def conv_main(self, hook=None, fill_every=0):
        a = self.a
        CACC, CAF, CBF = self.CACC, self.CAF, self.CBF

        def rd_list(it):
            b = it & 1
            u, rho = it >> 2, it & 3
            out = []
            order = [("A", 0), ("B", 0), ("B", 1), ("B", 2), ("B", 3), ("A", 1), ("A", 2), ("A", 3)]
            for kind, i in order:
                for hf in range(2):
                    if kind == "A":
                        out.append(("ds_read_b64_tr_b16 %s, v160 offset:%d"
                                    % (vr(CAF + 16 * b + 4 * i + 2 * hf, 2),
                                       4128 * rho + 8 * (1 - u) + 1024 * i + 512 * hf), "A%d_%d" % (it, i)))
                    else:
                        out.append(("ds_read_b64_tr_b16 %s, v161 offset:%d"
                                    % (vr(CBF + 16 * b + 4 * i + 2 * hf, 2), 328 * it + 64 * i + 32 * (1 - hf)),
                                    "B%d_%d" % (it, i)))
            return out

        for x, t in rd_list(0):
            a.lds(x, t)
        for it in range(8):
            if hook and it % 2 == 0:
                hook(it // 2)
            b = it & 1
            nxt = rd_list(it + 1) if it < 7 else []
            k = 0
            for q in range(4):
                for i in range(4 - q):
                    a.wait_lg("A%d_%d" % (it, q), "B%d_%d" % (it, i))
                    acc = vr(CACC + 4 * (i + q), 4)
                    a("%s %s, %s, %s, %s" % (MF16, acc, vr(CAF + 16 * b + 4 * q, 4), vr(CBF + 16 * b + 4 * i, 4),
                                             "0" if (it == 0 and q == 0) else acc))
                    for _ in range(2 if k < 6 else 1):
                        if nxt:
                            x, t = nxt.pop(0)
                            a.lds(x, t)
                    k += 1
            assert not nxt

    def conv_finish(self, ch):
        a = self.a
        base = CV_BASE1 if ch else CV_BASE
        CACC = self.CACC
        self.barrier()
        a("s_lshl_b32 s%d, s%d, 11" % (sA, sW))
        a("s_add_u32 s%d, s%d, %d" % (sA, sA, base + CV_R))
        a("v_add_u32 v26, s%d, v%d" % (sA, vL16))
        hi, done = a.newlabel("cvhi"), a.newlabel("cvsent")
        self.hold += 1
        a("s_cmp_lg_u32 s%d, 0" % sTH)
        a("s_cbranch_scc1 %s" % hi)
        for j in range(2):
            a("ds_write_b128 v26, %s offset:%d" % (vr(CACC + 8 + 4 * j, 4), 1024 * j))
        a("s_branch %s" % done)
        a.label(hi)
        for j in range(2):
            a("ds_write_b128 v26, %s offset:%d" % (vr(CACC + 4 * j, 4), 1024 * j))
        a.label(done)
        self.hold -= 1
        a("s_lshl_b32 s%d, s%d, 2" % (sE, sTH))
        a("s_add_u32 s%d, s%d, s%d" % (sE, sE, sKH))
        a("s_lshl_b32 s%d, s%d, 9" % (sE, sE))
        a("s_add_u32 s%d, s%d, %d" % (sA, sE, base + CV_XD))
        a("v_and_b32 v27, 15, v%d" % vL)
        a("v_lshlrev_b32 v27, 5, v27")
        a("v_lshrrev_b32 v28, 4, v%d" % vL)
        a("v_lshl_add_u32 v27, v28, 3, v27")
        a("v_add_u32 v27, s%d, v27" % sA)
        for u in range(2):
            a.lds("ds_read_b64 %s, v27 offset:%d" % (vr(100 + 2 * u, 2), 1024 * u))
        a.wait_lg_all()
        self.barrier()
        a("s_xor_b32 s%d, s%d, 2" % (sA, sW))
        a("s_lshl_b32 s%d, s%d, 11" % (sA, sA))
        a("s_add_u32 s%d, s%d, %d" % (sA, sA, base + CV_R))
        a("v_add_u32 v26, s%d, v%d" % (sA, vL16))
        for u in range(2):
            a.lds("ds_read_b128 %s, v26 offset:%d" % (vr(72 + 4 * u, 4), 1024 * u))
        for u in range(2):
            for j in range(2):
                a("v_lshlrev_b32 v%d, 16, v%d" % (104 + 4 * u + 2 * j, 100 + 2 * u + j))
                a("v_and_b32 v%d, s%d, v%d" % (105 + 4 * u + 2 * j, sHI, 100 + 2 * u + j))
        a("v_mov_b32 v112, s%d" % (sD1 if ch else sD0))
        a("v_lshrrev_b32 v26, 4, v%d" % vL)
        a("v_and_b32 v27, 1, v26")
        a("v_lshlrev_b32 v27, 10, v27")
        a("v_lshrrev_b32 v26, 1, v26")
        a("v_lshl_add_u32 v27, v26, 4, v27")
        a("v_and_b32 v26, 15, v%d" % vL)
        a("v_lshl_add_u32 v27, v26, 5, v27")
        a("v_add_u32 v27, s%d, v27" % sE)
        a("s_lshl_b32 s%d, s2, 13" % sA)
        a("s_add_u32 s%d, s%d, 0x%x" % (sA, sA, WS_YT + 0x1000 * ch))
        a.wait_lg_all()
        hi, done = a.newlabel("cvhi"), a.newlabel("cvsum")
        self.hold += 1
        a("s_cmp_lg_u32 s%d, 0" % sTH)
        a("s_cbranch_scc1 %s" % hi)
        for p in range(4):
            a("v_pk_add_f32 %s, %s, %s" % (vr(64 + 2 * p, 2), vr(CACC + 2 * p, 2), vr(72 + 2 * p, 2)))
        a("s_branch %s" % done)
        a.label(hi)
        for p in range(4):
            a("v_pk_add_f32 %s, %s, %s" % (vr(64 + 2 * p, 2), vr(CACC + 8 + 2 * p, 2), vr(72 + 2 * p, 2)))
        a.label(done)
        self.hold -= 1
        for p in range(4):
            a("v_pk_fma_f32 %s, %s, %s, %s op_sel_hi:[1,0,1]" % (vr(64 + 2 * p, 2), vr(104 + 2 * p, 2), vr(112, 2),
                                                                vr(64 + 2 * p, 2)))
        for p in range(4):
            a("v_cvt_pk_bf16_f32 v%d, v%d, v%d" % (116 + p, 64 + 2 * p, 65 + 2 * p))
        a("v_permlane16_swap_b32 v116, v118")
        a("v_permlane16_swap_b32 v117, v119")
        a.vmem("buffer_store_dwordx4 %s, v27, %s, s%d offen sc1" % (vr(116, 4), sr(S_WS, 4), sA), "yt")

    def s2_load_items(self):
        a = self.a
        a("s_lshl_b32 s%d, s%d, 5" % (sA, sT))
        a("v_add_u32 v26, s%d, v%d" % (sA, vN31))
        a("s_add_u32 s%d, s%d, 1" % (sB, sKH))
        a("s_lshl_b32 s%d, s%d, 14" % (sA, sKH))
        a("s_add_u32 s%d, s%d, 0x%x" % (sA, sA, WS_HS))
        a("v_mov_b32 v29, 0x%x" % OOB)
        for i, op in enumerate(("v_subrev_u32", "v_add_u32")):
            a("%s v27, s%d, v26" % (op, sB))
            a("v_lshrrev_b32 v28, 5, v27")
            a("v_lshlrev_b32 v28, 15, v28")
            a("v_and_b32 v30, 31, v27")
            a("v_lshl_add_u32 v30, v%d, 5, v30" % vHH)
            a("v_lshl_add_u32 v28, v30, 4, v28")
            a("v_add_u32 v28, s%d, v28" % sA)
            a("v_cmp_gt_u32 vcc, 0x800, v27")
            a("v_cndmask_b32 v%d, v29, v28, vcc" % (140 + i))
        so = ["0", "s%d" % sK4, "s%d" % sK8, "s%d" % sK12]
        items = []
        for ks in range(16):
            def f(ks=ks):
                a.vmem("buffer_load_dwordx4 %s, v%d, %s, %s offen offset:%d sc1"
                       % (ar(4 * ks, 4), 140 + (ks >> 3), sr(S_WS, 4), so[ks >> 2], (ks & 3) * 1024), "h%d" % ks)
            items.append(f)
        return items

    def wpi_addr(self, vk, vs, base, khs, ps):
        a = self.a
        a("s_mul_i32 s%d, s%d, %d" % (sA, sKH, khs + ps))
        a("s_add_u32 s%d, s%d, %d" % (sA, sA, base))
        a("v_add_u32 v%d, s%d, v%d" % (vk, sA, vWP))
        a("s_mul_i32 s%d, s%d, %d" % (sA, sKH, khs - ps))
        a("s_add_u32 s%d, s%d, %d" % (sA, sA, base + ps))
        a("v_add_u32 v%d, s%d, v%d" % (vs, sA, vWP))

    def s2_main(self):
        a = self.a
        ACK, ACS, AK, AS = self.ACK, self.ACS, self.AK, self.AS

        def rd(ks, which):
            base, addr = ((AK, 128), (AS, 129))[which]
            for hf in range(2):
                a.lds("ds_read_b64_tr_b16 %s, v%d offset:%d" % (vr(base + 4 * (ks & 1) + 2 * hf, 2), addr,
                                                                ks * 1024 + hf * 512), "f%d_%d" % (ks, which))
        rd(0, 0)
        rd(0, 1)
        for ks in range(16):
            b = ks & 1
            a.wait_both("h%d" % ks, "f%d_0" % ks)
            a("%s %s, %s, %s, %s" % (MF32, vr(ACK, 16), vr(AK + 4 * b, 4), ar(4 * ks, 4), "0" if ks == 0 else vr(ACK, 16)))
            if ks < 15:
                rd(ks + 1, 0)
            self.fill(1)
            a.wait_lg("f%d_1" % ks)
            a("%s %s, %s, %s, %s" % (MF32, vr(ACS, 16), vr(AS + 4 * b, 4), ar(4 * ks, 4), "0" if ks == 0 else vr(ACS, 16)))
            if ks < 15:
                rd(ks + 1, 1)
            if ks in (0, 4, 9, 12):
                self.stamp("s2k%d" % ks)

    def unpack8(self, src, dst):
        a = self.a
        for j in range(8):
            a("v_lshlrev_b32 v%d, 16, v%d" % (dst + 2 * j, src + j))
            a("v_and_b32 v%d, s%d, v%d" % (dst + 2 * j + 1, sHI, src + j))

    def xn_tile(self, dst):
        a = self.a
        self.unpack8(vQ, dst)
        for p in range(8):
            a("v_pk_add_f32 %s, %s, %s op_sel_hi:[1,0] neg_lo:[0,1] neg_hi:[0,1]"
              % (vr(dst + 2 * p, 2), vr(dst + 2 * p, 2), vr(vMEAN, 2)))
        for p in range(8):
            a("v_pk_mul_f32 %s, %s, %s op_sel:[0,1] op_sel_hi:[1,1]"
              % (vr(dst + 2 * p, 2), vr(dst + 2 * p, 2), vr(vMEAN, 2)))

    def s2_epilogue(self, after_exchange):
        a = self.a
        ACK, ACS = self.ACK, self.ACS
        self.exchange_write(ACS)
        self.xn_tile(96)
        a.wait_lg_all()
        self.barrier()
        after_exchange()
        self.exchange_read(80)
        for p in range(8):
            a("v_pk_add_f32 %s, %s, %s" % (vr(ACK + 2 * p, 2), vr(ACK + 2 * p, 2), vr(96 + 2 * p, 2)))
        a.wait_lg_all()
        for p in range(8):
            a("v_pk_add_f32 %s, %s, %s" % (vr(ACK + 2 * p, 2), vr(ACK + 2 * p, 2), vr(80 + 2 * p, 2)))
        for p in range(8):
            a("v_cvt_pk_bf16_f32 v%d, v%d, v%d" % (vX1 + p, ACK + 2 * p, ACK + 2 * p + 1))
        self.frag_store(vX1, WS_X1, "x1st")
        a("v_pk_mul_f32 %s, %s, %s" % (vr(112, 2), vr(ACK, 2), vr(ACK, 2)))
        a("v_pk_add_f32 %s, %s, %s" % (vr(114, 2), vr(ACK, 2), vr(ACK + 2, 2)))
        for p in range(1, 8):
            a("v_pk_fma_f32 %s, %s, %s, %s" % (vr(112, 2), vr(ACK + 2 * p, 2), vr(ACK + 2 * p, 2), vr(112, 2)))
            if p >= 2:
                a("v_pk_add_f32 %s, %s, %s" % (vr(114, 2), vr(114, 2), vr(ACK + 2 * p, 2)))
        a("v_add_f32 v114, v114, v115")
        a("v_add_f32 v112, v112, v113")
        a("v_permlane32_swap_b32 v114, v112")
        a("v_add_f32 v114, v114, v112")
        a("s_lshl_b32 s%d, s%d, 1" % (sA, sC))
        a("s_add_u32 s%d, s%d, s%d" % (sA, sA, sKH))
        a("s_lshl_b32 s%d, s%d, 14" % (sA, sA))
        a("s_lshl_b32 s%d, s%d, 7" % (sB, sT))
        a("s_add_u32 s%d, s%d, s%d" % (sA, sA, sB))
        a("s_add_u32 s%d, s%d, 0x%x" % (sA, sA, WS_ST))
        a("v_lshlrev_b32 v26, 13, v%d" % vHH)
        a("v_lshl_add_u32 v26, v%d, 2, v26" % vN31)
        a.vmem("buffer_store_dword v114, v26, %s, s%d offen sc1" % (sr(S_WS, 4), sA), "x1st")

    def w3_setup(self):
        a = self.a
        a("s_movk_i32 s%d, 3584" % sB)
        a("v_lshrrev_b32 v26, 2, v%d" % vL)
        a("v_mul_lo_u32 v26, v26, s%d" % sB)
        a("v_and_b32 v27, 3, v%d" % vL)
        a("v_lshl_add_u32 v%d, v27, 4, v26" % vW3F)
        a("v_lshrrev_b32 v26, 1, v%d" % vL)
        a("v_mul_lo_u32 v26, v26, s%d" % sB)
        a("v_and_b32 v27, 1, v%d" % vL)
        a("v_lshl_add_u32 v%d, v27, 4, v26" % vW3H)
        a("s_mul_i32 s%d, s%d, %d" % (sW3HG, sW, 128 * 3584))
        a("s_mul_i32 s%d, s%d, 224" % (sA, sCP))
        a("s_add_u32 s%d, s%d, s%d" % (sW3HG, sW3HG, sA))
        a("s_and_b32 s%d, s%d, 1" % (sB, sCP))
        a("s_lshl_b32 s%d, s%d, 5" % (sW3G, sB))
        a("s_add_u32 s%d, s%d, s%d" % (sW3G, sW3G, sW3HG))
        a("s_xor_b32 s%d, s%d, 1" % (sB, sB))
        a("s_mul_i32 s%d, s%d, 192" % (sB, sB))
        a("s_add_u32 s%d, s%d, s%d" % (sW3HG, sW3HG, sB))
        a("s_lshl_b32 s%d, s%d, 13" % (sW3L, sW))
        a("s_lshl_b32 s%d, s%d, 12" % (sW3HL, sW))

    def w3_items(self, panels):
        out = []
        for p in panels:
            if p < 3:
                for i in range(8):
                    out.append(self.dma_item(S_W3, vW3F, sW3L, W3_P + p * 32768 + i * 1024, sW3G,
                                             p * 64 + i * 16 * 3584, "w3"))
            else:
                for i in range(4):
                    out.append(self.dma_item(S_W3, vW3H, sW3HL, W3_H + i * 1024, sW3HG, i * 32 * 3584, "w3"))
        return out

    def s3_load_items(self):
        a = self.a
        a("s_lshl_b32 s%d, s%d, 15" % (sLD, sT3))
        a("s_add_u32 s%d, s%d, 0x%x" % (sLD, sLD, WS_X1))
        items = []
        for ks in range(32):
            def f(ks=ks):
                if ks and ks % 4 == 0:
                    a("s_add_u32 s%d, s%d, 0x1000" % (sLD, sLD))
                a.vmem("buffer_load_dwordx4 %s, v%d, %s, s%d offen offset:%d sc1"
                       % (ar(4 * (ks % 16), 4), vL16, sr(S_WS, 4), sLD, (ks & 3) * 1024), "x%d" % ks)
            items.append(f)
        return items

    def s3_stat_items(self):
        a = self.a
        a("v_lshlrev_b32 v147, 13, v%d" % vHH)
        a("v_lshl_add_u32 v147, v%d, 2, v147" % vN31)
        items = []
        for sl in range(16):
            def f(sl=sl):
                a("s_lshl_b32 s%d, s%d, 7" % (sSO, sT3))
                a("s_add_u32 s%d, s%d, 0x%x" % (sSO, sSO, WS_ST + 0x4000 * sl))
                a.vmem("buffer_load_dword v%d, v147, %s, s%d offen sc1" % (vST + sl, sr(S_WS, 4), sSO), "st")
            items.append(f)
        return items

    def s3_addr(self):
        a = self.a
        a("v_add_u32 v144, %d, v%d" % (W3_P, vWP))
        a("v_add_u32 v145, %d, v%d" % (W3_P + 65536, vWP))
        a("v_bfe_u32 v26, v%d, 2, 2" % vL)
        a("v_lshl_add_u32 v26, v%d, 2, v26" % vHH)
        a("v_and_b32 v27, 3, v%d" % vL)
        a("v_lshlrev_b32 v27, 3, v27")
        a("v_lshl_add_u32 v26, v26, 5, v27")
        a("v_add_u32 v146, %d, v26" % W3_H)

    @staticmethod
    def w3_read(p, ks, hf, dst):
        if p < 2:
            return "ds_read_b64_tr_b16 %s, v144 offset:%d" % (vr(dst, 2), p * 32768 + ks * 1024 + hf * 512)
        if p == 2:
            return "ds_read_b64_tr_b16 %s, v145 offset:%d" % (vr(dst, 2), ks * 1024 + hf * 512)
        return "ds_read_b64_tr_b16 %s, v146 offset:%d" % (vr(dst, 2), ks * 512 + hf * 256)

    def s3_colsum(self):
        self.hold += 1
        self._s3_colsum()
        self.hold -= 1

    def _s3_colsum(self):
        a = self.a
        full = a.newlabel("csfull")
        done = a.newlabel("csdone")
        self.selector(120)
        a("s_cmp_lt_u32 s%d, 3" % sW)
        a("s_cbranch_scc1 %s" % full)
        for is_full in (False, True):
            if is_full:
                a.label(full)
                a("s_lshl_b32 s%d, s%d, 15" % (sA, sW))
                a("v_add_u32 v148, s%d, v144" % sA)
            stride, hstep, addr = (1024, 512, 148) if is_full else (512, 256, 146)
            saved = list(a.lg)
            a.lg = []

            def rd(ks):
                for hf in range(2):
                    a.lds("ds_read_b64_tr_b16 %s, v%d offset:%d" % (vr(96 + 4 * (ks % 6) + 2 * hf, 2), addr,
                                                                    ks * stride + hf * hstep), "c%d" % ks)
            for ks in range(5):
                rd(ks)
            for ks in range(32):
                a.wait_lg("c%d" % ks)
                a("%s %s, %s, %s, %s" % (MF16, vr(32 + 4 * (ks & 1), 4), vr(96 + 4 * (ks % 6), 4), vr(120, 4),
                                         "0" if ks < 2 else vr(32 + 4 * (ks & 1), 4)))
                if ks + 5 < 32:
                    rd(ks + 5)
            a.lg = saved
            if not is_full:
                a("s_branch %s" % done)
        a.label(done)
        a("v_pk_add_f32 v[32:33], v[32:33], v[36:37]")
        a("v_pk_add_f32 v[34:35], v[34:35], v[38:39]")
        a("s_lshl_b32 s%d, s%d, 7" % (sA, sW))
        a("s_add_u32 s%d, s%d, %d" % (sA, sA, LCS3))
        self.colsum_write(32, sA)
        a.wait_lg_all()

    S3G = 128

    def s3_shadow_ops(self):
        G = self.S3G
        ops = []
        for s in (8, 4, 2, 1):
            for i in range(s):
                ops.append("v_add_f32 v%d, v%d, v%d" % (vST + i, vST + i, vST + i + s))
        ops += ["v_mov_b32 v%d, v%d" % (vST + 1, vST),
                "v_lshlrev_b32 v28, 4, v%d" % vHH,
                "v_add_u32 v149, %d, v28" % LCS3,
                "v_permlane32_swap_b32 v%d, v%d" % (vST, vST + 1),
                "s_mul_i32 s%d, s%d, 114688" % (sD, sT3),
                "v_mul_f32 v%d, s%d, v%d" % (vST + 2, s512I, vST),
                "s_mul_i32 s%d, s%d, 7168" % (sA, sCP),
                "v_mul_f32 v26, s%d, v%d" % (s512I, vST + 1),
                "s_add_u32 s%d, s%d, s%d" % (sD, sD, sA),
                "v_fma_f32 v26, -v%d, v%d, v26" % (vST + 2, vST + 2),
                "s_add_u32 s%d, s%d, 0x%x" % (sD, sD, WS_HH),
                "v_max_f32 v26, 0, v26",
                "s_and_b32 s%d, s%d, 1" % (sB, sCP),
                "v_add_f32 v26, s%d, v26" % sEPS,
                "s_lshl_b32 s%d, s%d, 10" % (sE, sB),
                "v_rsq_f32 v27, v26",
                "s_add_u32 s%d, s%d, s%d" % (sE, sE, sD),
                "v_sub_f32 v%d, 0, v%d" % (G + 4, vST + 2),
                "s_xor_b32 s%d, s%d, 1" % (sB, sB),
                "v_mul_f32 v%d, s%d, v27" % (G, sKG1),
                "s_mul_i32 s%d, s%d, 6144" % (sB, sB),
                "v_mul_f32 v%d, v27, v27" % (G + 1),
                "s_add_u32 s%d, s%d, s%d" % (sF, sD, sB),
                "v_mul_f32 v%d, v%d, v27" % (G + 1, G + 1),
                "v_mul_f32 v%d, s%d, v%d" % (G + 1, sKG3, G + 1),
                "v_rcp_f32 v%d, v27" % (G + 2)]
        return ops

    def s3_csread(self, p):
        a = self.a
        n = 16 if p < 3 else 8
        for j in range(n // 4):
            a.lds("ds_read_b128 %s, v149 offset:%d" % (vr(96 + 16 * (p & 1) + 4 * j, 4), 128 * p + 32 * j), "cs%d" % p)

    def s3_main(self, mid):
        a = self.a
        AF = 96
        shadow = self.s3_shadow_ops() if self.opt.get("s3sh", 1) else []
        self.s3_left = shadow
        first = self.opt.get("s3sh0", 24)

        def rd(ks, p):
            for hf in range(2):
                a.lds(self.w3_read(p, ks, hf, AF + 16 * (ks & 1) + 4 * p + 2 * hf), "f%d_%d" % (ks, p))
        for p in range(4):
            rd(0, p)
        for ks in range(32):
            b = ks & 1
            if ks == first and shadow:
                a.wait_vm("st")
            for p in range(4):
                if p == 0:
                    a.wait_both("x%d" % ks, "f%d_0" % ks)
                else:
                    a.wait_lg("f%d_%d" % (ks, p))
                acc = vr(32 + 16 * p, 16)
                a("%s %s, %s, %s, %s" % (MF32, acc, vr(AF + 16 * b + 4 * p, 4), ar(4 * (ks % 16), 4),
                                         "0" if ks == 0 else acc))
                if ks < 31:
                    rd(ks + 1, p)
                if p in (0, 2):
                    self.fill(1)
                if ks >= first:
                    for _ in range(2):
                        if shadow:
                            a(shadow.pop(0))
            if ks == self.opt.get("s3mid", 18):
                mid()
            if ks in (7, 15, 23) and self.opt.get("s3st", 0):
                self.stamp("s3k%d" % ks)

    def s3_epilogue(self, after_tile):
        a = self.a
        G = self.S3G
        if not self.opt.get("s3sh", 1):
            a.wait_vm("st")
            self.s3_left = self.s3_shadow_ops()
        for x in self.s3_left:
            a(x)
        csread = self.s3_csread
        csread(0)
        for p in range(4):
            n = 16 if p < 3 else 8
            C = 96 + 16 * (p & 1)
            if p < 3:
                csread(p + 1)
            a.wait_lg("cs%d" % p)
            acc = 32 + 16 * p
            for i in range(n // 2):
                a("v_pk_fma_f32 %s, %s, %s, %s op_sel_hi:[1,0,1]"
                  % (vr(acc + 2 * i, 2), vr(C + 2 * i, 2), vr(G + 4, 2), vr(acc + 2 * i, 2)))
            out = 152 + 8 * (p & 1)
            self.gelu(acc, n, G, G + 2, 176, out, fills=0)
            if p < 3:
                a("s_add_u32 s%d, s%d, %d" % (sA, sE, 2048 * p))
                a.vmem("buffer_store_dwordx4 %s, v%d, %s, s%d offen sc1" % (vr(out, 4), vL16, sr(S_WS, 4), sA), "Hst")
                a.vmem("buffer_store_dwordx4 %s, v%d, %s, s%d offen offset:1024 sc1"
                       % (vr(out + 4, 4), vL16, sr(S_WS, 4), sA), "Hst")
            else:
                a.vmem("buffer_store_dwordx4 %s, v%d, %s, s%d offen sc1" % (vr(out, 4), vL16, sr(S_WS, 4), sF), "Hst")
            after_tile(p)

    def w4_setup(self):
        a = self.a
        a("s_lshl_b32 s%d, s%d, 11" % (sW4L, sKH))
        a("s_lshl_b32 s%d, s%d, 10" % (sA, sTH))
        a("s_add_u32 s%d, s%d, s%d" % (sW4L, sW4L, sA))
        a("s_mul_i32 s%d, s%d, %d" % (sW4G, sKH, 896 * 1024))
        self.feat0(sA, sTH, 1)
        a("s_add_u32 s%d, s%d, s%d" % (sW4G, sW4G, sA))
        for i in range(8):
            if self.opt.get("rot4", 0):
                a("s_add_u32 s%d, s%d, %d" % (sA, sC, i))
                a("s_and_b32 s%d, s%d, 7" % (sA, sA))
                a("s_mul_i32 s%d, s%d, %d" % (sA, sA, 7 * 16384))
                a("s_add_u32 s%d, s%d, s%d" % (self.SW4B + i, sW4G, sA))
            else:
                a("s_add_u32 s%d, s%d, %d" % (self.SW4B + i, sW4G, i * 7 * 16384))

    SW4B = 12
    W4R = 56

    def w4_reg_loads(self, ks0, ks1):
        def item(ks):
            def f():
                a = self.a
                a("s_add_u32 s%d, s%d, %d" % (sSO, self.SW4B + ks // 7, (ks % 7) * 16384))
                a.vmem("buffer_load_dwordx4 %s, v%d, %s, s%d offen" % (vr(self.W4R + 4 * (ks - W4_B), 4), vW64,
                                                                     sr(S_W4, 4), sSO), "w4r")
                a.check_vm_depth()
            return f
        return [item(ks) for ks in range(ks0, ks1)]

    def w4_reg_writes(self, ks0, ks1):
        def f():
            a = self.a
            a.wait_vm("w4r")
            for i in range(3):
                a("v_add_u32 v%d, s%d, v%d" % (28 + i, sW4L, vL16))
                if i:
                    a("v_add_u32 v%d, %d, v%d" % (28 + i, 65536 * i, 28 + i))
            for ks in range(ks0, ks1):
                off = w4_off(ks)
                if self.opt.get("x_nowr", 0):
                    continue
                a.lds("ds_write_b128 v%d, %s offset:%d" % (28 + off // 65536, vr(self.W4R + 4 * (ks - W4_B), 4),
                                                           off % 65536))
                pace = self.opt.get("wpace", 0)
                if pace and (ks - ks0) % pace == pace - 1:
                    a.wait_lg_all()
            a.wait_lg_all()
        return f

    def w4_items(self, ks0, ks1, tag):
        return [self.dma_item(S_W4, vW64, sW4L, w4_off(ks), self.SW4B + ks // 7, (ks % 7) * 16384, tag)
                for ks in range(ks0, ks1)]

    def hring(self, ks):
        n = self.opt.get("hring", 24)
        i = ks % n
        return ar(4 * i, 4) if i < 16 else vr(64 + 4 * (i - 16), 4)

    def s4_load_items(self):
        a = self.a
        a("s_mul_i32 s%d, s%d, %d" % (sLD, sT, 0 if self.opt.get("x_hot", 0) else 114688))
        a("s_mul_i32 s%d, s%d, %d" % (sB, sKH, 56 * 1024))
        a("s_add_u32 s%d, s%d, s%d" % (sLD, sLD, sB))
        a("s_add_u32 s%d, s%d, 0x%x" % (sLD, sLD, WS_HH))
        items = []
        for ks in range(56):
            def f(ks=ks):
                i, t = divmod(ks, 7)
                if t == 0:
                    if self.opt.get("rot4", 0):
                        a("s_add_u32 s%d, s%d, %d" % (sW4L, sC, i))
                        a("s_and_b32 s%d, s%d, 7" % (sW4L, sW4L))
                        a("s_mul_i32 s%d, s%d, 7168" % (sW4L, sW4L))
                        a("s_add_u32 s%d, s%d, s%d" % (sW4L, sW4L, sLD))
                    else:
                        a("s_add_u32 s%d, s%d, %d" % (sW4L, sLD, i * 7168))
                if t == 4:
                    a("s_add_u32 s%d, s%d, 0x1000" % (sW4L, sW4L))
                a.vmem("buffer_load_dwordx4 %s, v%d, %s, s%d offen offset:%d sc1"
                       % (self.hring(ks), vL16, sr(S_WS, 4), sW4L, (t & 3) * 1024), "H%d" % ks)
                a.check_vm_depth()
            items.append(f)
        return items

    Y_LDS = 49152

    def s4_y_loads(self):
        a = self.a
        self.feat0(sE, sKH, 12)
        a("s_lshl_b32 s%d, s%d, 6" % (sB, sT))
        a("s_add_u32 s%d, s%d, s%d" % (sE, sE, sB))
        a("s_add_u32 s%d, s%d, 0x%x" % (sE, sE, WS_YT))
        a("s_add_u32 s%d, s%d, 0x10000" % (sB, sE))
        a("v_lshrrev_b32 v147, 2, v%d" % vL)
        a("v_lshlrev_b32 v147, 12, v147")
        a("v_and_b32 v26, 3, v%d" % vL)
        a("v_lshl_add_u32 v147, v26, 4, v147")
        a.vmem("buffer_load_dwordx4 %s, v147, %s, s%d offen sc1" % (vr(vST, 4), sr(S_WS, 4), sE), "y")
        a.vmem("buffer_load_dwordx4 %s, v147, %s, s%d offen sc1" % (vr(vST + 4, 4), sr(S_WS, 4), sB), "y")

    def s4_y_write(self):
        a = self.a
        a.wait_vm("y")
        a("s_lshl_b32 s%d, s%d, 11" % (sB, sW))
        a("s_add_u32 s%d, s%d, %d" % (sB, sB, self.Y_LDS))
        a("v_add_u32 v147, s%d, v%d" % (sB, vL16))
        a.lds("ds_write_b128 v147, %s" % vr(vST, 4), "yw")
        a.lds("ds_write_b128 v147, %s offset:1024" % vr(vST + 4, 4), "yw")
        a("v_add_u32 v147, s%d, v%d" % (sB, vWP))

    def s4_y_read(self):
        a = self.a
        a.wait_lg("yw")
        for q in range(4):
            a.lds("ds_read_b64_tr_b16 %s, v147 offset:%d" % (vr(vST + 8 + 2 * q, 2), 512 * q), "yr")

    XN4, BASE4 = 112, 148

    def s4_shadow_ops(self):
        XN, B = self.XN4, self.BASE4
        pre, post = [], []
        for j in range(8):
            pre.append("v_lshlrev_b32 v%d, 16, v%d" % (XN + 2 * j, vQ + j))
            pre.append("v_and_b32 v%d, s%d, v%d" % (XN + 2 * j + 1, sHI, vQ + j))
            pre.append("v_lshlrev_b32 v%d, 16, v%d" % (B + 2 * j, vX1 + j))
            pre.append("v_and_b32 v%d, s%d, v%d" % (B + 2 * j + 1, sHI, vX1 + j))
        for r in range(16):
            pre.append("v_add_f32 v%d, v%d, v%d" % (B + r, B + r, XN + r))
            pre.append("v_sub_f32 v%d, v%d, v%d" % (XN + r, XN + r, vMEAN))
            pre.append("v_mul_f32 v%d, v%d, v%d" % (XN + r, XN + r, vR1))
        for j in range(8):
            post.append("v_lshlrev_b32 v164, 16, v%d" % (vST + 8 + j))
            post.append("v_and_b32 v165, s%d, v%d" % (sHI, vST + 8 + j))
            post.append("v_fmac_f32 v%d, v%d, v164" % (B + 2 * j, XN + 2 * j))
            post.append("v_fmac_f32 v%d, v%d, v165" % (B + 2 * j + 1, XN + 2 * j + 1))
        return pre, post

    def s4_out_addr(self):
        a = self.a
        a("s_lshl_b32 s%d, s%d, 15" % (sE, sT))
        self.feat0(sB, sKH, 1)
        a("s_add_u32 s%d, s%d, s%d" % (sE, sE, sB))
        a("v_lshlrev_b32 v146, 10, v%d" % vN31)
        a("v_lshl_add_u32 v146, v%d, 4, v146" % vHH)
        a("v_add_u32 v146, s%d, v146" % sE)

    def s4_addr(self):
        a = self.a
        self.wpi_addr(128, 131, 0, 2048, 1024)
        for i in (1, 2):
            a("v_add_u32 v%d, %d, v128" % (128 + i, 65536 * i))
            a("v_add_u32 v%d, %d, v131" % (131 + i, 65536 * i))

    def s4_main(self, hitems):
        a = self.a
        ACK, ACS, AK, AS = self.ACK, self.ACS, self.AK, self.AS

        def rd(ks, which):
            off = w4_off(ks)
            base, addr = ((AK, 128), (AS, 131))[which]
            for hf in range(2):
                a.lds("ds_read_b64_tr_b16 %s, v%d offset:%d"
                      % (vr(base + 4 * (ks & 1) + 2 * hf, 2), addr + off // 65536, off % 65536 + hf * 512),
                      "f%d_%d" % (ks, which))
        pre, post = self.s4_shadow_ops()
        yq = []
        f1, f2 = self.opt.get("f1", 10), self.opt.get("f2", 18)
        xb = self.opt.get("x_nobar", 0)
        if xb:
            self.h("s_endpgm")
        else:
            self.hact(self.w4_reg_writes(W4_B, W4_C))
        rd(0, 0)
        rd(0, 1)
        for ks in range(56):
            ahead = ks < 55
            b = ks & 1
            B = self.hring(ks)
            if self.opt.get("x_nowait", 0):
                a.wait_lg("f%d_0" % ks)
            else:
                a.wait_both("H%d" % ks, "f%d_0" % ks)
            a("%s %s, %s, %s, %s" % (MF32, vr(ACK, 16), vr(AK + 4 * b, 4), B, "0" if ks == 0 else vr(ACK, 16)))
            if ahead:
                rd(ks + 1, 0)
            if hitems and ks >= 1:
                hitems.pop(0)()
            a.wait_lg("f%d_1" % ks)
            a("%s %s, %s, %s, %s" % (MF32, vr(ACS, 16), vr(AS + 4 * b, 4), B, "0" if ks == 0 else vr(ACS, 16)))
            if ahead:
                rd(ks + 1, 1)
            for _ in range(self.opt.get("npre", 3)):
                if pre and ks >= 2:
                    a(pre.pop(0))
            if ks == self.opt.get("cvflag", 9):
                self.conv_wave_flag()
            if ks == 56 - W4_C - 1 and not xb:
                self.barrier()
                self.hact(self.w4_reg_writes(W4_C, 56))
            if ks == self.opt.get("ycheck", 34) - self.opt.get("ygap", 12) and not self.opt.get("x_noy", 0):
                self.idx_cv()
                self.poll_issue(F_CV, "pcv")
            if ks == self.opt.get("ycheck", 34) and not self.opt.get("x_noy", 0):
                self.poll_check("pcv", 4)
                self.s4_y_loads()
            if ks == self.opt.get("b2", 30) and not xb:
                self.barrier()
                if self.opt.get("barstamps", 0):
                    h = self.h
                    lab = h.newlabel("nobs")
                    h("s_cmp_lg_u32 s%d, 0" % sW)
                    h("s_cbranch_scc1 %s" % lab)
                    h("s_lshl_b32 s%d, s2, 8" % sA)
                    h("s_add_u32 s%d, s%d, 0x%x" % (sA, sA, WS_STAMP + 0x20000))
                    h("v_lshlrev_b32 v26, 2, v%d" % vL)
                    h("buffer_store_dword v55, v26, %s, s%d offen" % (sr(S_WS, 4), sA))
                    h("s_waitcnt vmcnt(0)")
                    h.label(lab)
                self.hact(self.nonce_update)
                self.hrun()
                self.h("s_endpgm")
            if not self.opt.get("x_noy", 0):
                if ks == self.opt.get("ywr", 46):
                    self.s4_y_write()
                if ks == self.opt.get("ywr", 46) + 2:
                    self.s4_y_read()
                if self.opt.get("yshadow", 5) and ks >= self.opt.get("ywr", 46) + 4 and post and not pre:
                    a.wait_lg("yr")
                    for _ in range(self.opt.get("yshadow", 5)):
                        if post:
                            a(post.pop(0))
            if ks in (8, 16, 27, 38, 47):
                self.stamp("s4k%d" % ks)
        for x in pre:
            a(x)
        assert not hitems
        self.s4_out_addr()
        self.s4_post = post

    def s4_epilogue(self):
        a = self.a
        ACK, ACS, B = self.ACK, self.ACS, self.BASE4
        self.exchange_write(ACS, S4_RED)
        a.wait_lg("yr")
        for x in self.s4_post:
            a(x)
        for p in range(8):
            a("v_pk_add_f32 %s, %s, %s" % (vr(ACK + 2 * p, 2), vr(ACK + 2 * p, 2), vr(B + 2 * p, 2)))
        a.wait_lg_all()
        a("s_barrier")
        self.exchange_read(80, S4_RED)
        a.wait_lg_all()
        for p in range(8):
            a("v_pk_add_f32 %s, %s, %s" % (vr(ACK + 2 * p, 2), vr(ACK + 2 * p, 2), vr(80 + 2 * p, 2)))
        for p in range(8):
            a("v_cvt_pk_bf16_f32 v%d, v%d, v%d" % (48 + p, ACK + 2 * p, ACK + 2 * p + 1))
        for j in (0, 4):
            a("v_permlane32_swap_b32 v%d, v%d" % (48 + j, 50 + j))
            a("v_permlane32_swap_b32 v%d, v%d" % (49 + j, 51 + j))
        a.vmem("buffer_store_dwordx4 %s, v146, %s, 0 offen" % (vr(48, 4), sr(S_OUT, 4)), "out")
        a.vmem("buffer_store_dwordx4 %s, v146, %s, 0 offen offset:32" % (vr(52, 4), sr(S_OUT, 4)), "out")

    def nonce_update(self):
        a = self.a
        self.hold += 1
        skip = a.newlabel("nonce")
        a("s_cmp_lg_u32 s2, 0")
        a("s_cbranch_scc1 %s" % skip)
        a("s_cmp_lg_u32 s%d, 0" % sW)
        a("s_cbranch_scc1 %s" % skip)
        saved = list(a.vm)
        for i in range(4):
            a("v_add_u32 v28, %d, v%d" % (64 * i, vL))
            a("v_lshlrev_b32 v28, 2, v28")
            self.poll_issue(F_P0, "pn")
            self.poll_check("pn", 6)
        a.vm = saved
        a("v_mov_b32 v26, 0")
        a("v_mov_b32 v27, s%d" % sN)
        a("s_mov_b64 exec, 1")
        a("buffer_store_dword v27, v26, %s, 0 offen sc1" % sr(S_WS, 4))
        a("s_mov_b64 exec, -1")
        a.label(skip)
        self.hold -= 1

    def finish(self):
        a = self.a
        a.wait_vm_all()
        if self.opt.get("delay", 0):
            lab = a.newlabel("delay")
            a("s_mov_b32 s%d, %d" % (sA, self.opt["delay"] // 64))
            a.label(lab)
            for _ in range(15):
                a("v_mov_b32 v26, v27")
            a("s_sub_u32 s%d, s%d, 1" % (sA, sA))
            a("s_cmp_lg_u32 s%d, 0" % sA)
            a("s_cbranch_scc1 %s" % lab)
        if self.opt.get("dbgtime", 0):
            a("s_memrealtime %s" % sr(sSTA, 2))
            a("s_memtime s[96:97]")
            a("s_waitcnt lgkmcnt(0)")
            a("s_sub_u32 s%d, s%d, s3" % (sSTA, sSTA))
            a("s_sub_u32 s96, s96, s98")
            a("v_mov_b32 v26, 0")
            a("v_mov_b32 v27, s%d" % sSTA)
            a("v_mov_b32 v28, s96")
            a("s_mov_b64 exec, 1")
            a("global_atomic_umax v26, v27, %s" % sr(S_DBG, 2))
            a("global_atomic_umax v26, v28, %s offset:4" % sr(S_DBG, 2))
            a("s_waitcnt vmcnt(0)")
            a("s_mov_b64 exec, -1")
        if self.stamps:
            self.stamp("end")
            skip = a.newlabel("nostamp")
            a("s_cmp_lg_u32 s%d, 0" % sW)
            a("s_cbranch_scc1 %s" % skip)
            if self.opt.get("dbgstamps", 0):
                lab = a.newlabel("nodbg")
                a("s_cmp_lg_u32 s2, %d" % (self.opt["dbgstamps"] - 1))
                a("s_cbranch_scc1 %s" % lab)
                a("v_readlane_b32 s%d, v%d, 0" % (sA, vSTAMP))
                a("v_subrev_u32 v27, s%d, v%d" % (sA, vSTAMP))
                a("v_lshlrev_b32 v26, 2, v%d" % vL)
                a("s_mov_b64 exec, 0xffff")
                a("global_store_dword v26, v27, %s" % sr(S_DBG, 2))
                a("s_mov_b64 exec, -1")
                a.label(lab)
            a("s_lshl_b32 s%d, s2, 8" % sA)
            a("s_add_u32 s%d, s%d, 0x%x" % (sA, sA, WS_STAMP))
            a("v_lshlrev_b32 v26, 2, v%d" % vL)
            a("buffer_store_dword v%d, v26, %s, s%d offen" % (vSTAMP, sr(S_WS, 4), sA))
            if self.opt.get("barstamps", 0):
                a("s_add_u32 s%d, s%d, 0x10000" % (sA, sA))
                a("buffer_store_dword v31, v26, %s, s%d offen" % (sr(S_WS, 4), sA))
            a("s_waitcnt vmcnt(0)")
            a.label(skip)
        a.label("L_end")
        a("s_endpgm")
        self.a.hook = None
        self.h.label("L_codeend")
        self.h("s_endpgm")
        self.a.ins += self.h.ins

    def nonce_load(self):
        a = self.a
        a("v_mov_b32 v26, 0")
        a.vmem("buffer_load_dword v30, v26, %s, 0 offen sc1" % sr(S_WS, 4), "nonce")

    def build(self):
        a = self.a
        o = self.opt
        H = self.hact
        self.prologue()
        H(self.loader_setup)
        if o.get("tcode", 1) == 1:
            H(self.touch_code)
        s1 = [f for st in range(4) for f in self.s1_stage_items(st)]
        n0, n1 = o.get("n0", 16), o.get("n1", 24)
        self.nonce_load()
        if o.get("tlbfirst", 0):
            self.page_touch()
        self.head_start()
        if o.get("kvp", 0) == 4:
            self.touch_kv(162, 163)
        if not o.get("tlbfirst", 0):
            self.page_touch()
        self.cold_touches()
        self.tr_addresses()
        self.s1_setup()

        def stage(st):
            kvp = o.get("kvp", 0)
            if st == 0:
                self.hacts(s1[:n0])
                if kvp == 1:
                    H(lambda: self.touch_kv(157, 158))
                self.hwait("s1_0")
            elif st == 1:
                if kvp == 2:
                    H(lambda: self.touch_kv(157, 158))
                self.hacts(s1[n0:n1])
                if kvp == 3:
                    H(lambda: self.touch_kv(157, 158))
                self.hwait("s1_1")
            else:
                self.hacts(s1[n1:])
                if o.get("apos", 0) == 0:
                    self.hstamp(4)
                    H(self.batch_a)
                    self.hstamp(5)
                self.hwait("s1_3")
            self.barrier()
            if st == 2:
                if o.get("apos", 0) == 1:
                    H(self.batch_a)
                H(self.nonce_load)
                H(self.tr_addresses)
                if o.get("hstat", 0):
                    H(self.s1_stats)
        self.a.comment("---- S1: p = q @ w1 on the raw q tile (row sums / squares and column sums of w1 alongside)")
        self.s1_main(stage)
        self.stamp("s1main")
        w2 = [self.dma_item(S_W2, vW64, sW2L, grp * 1024, sW2G, grp * 16384, "w2") for grp in range(16)]

        p0late = o.get("p0late", 1)
        w3 = self.w3_items([0, 1, 2, 3])
        cuts = [o.get("c%d" % i, d) for i, d in enumerate((0, 0, 0, 10, 10, 16))]

        def after_x1():
            H(self.w3_setup)
            self.hacts(w3[:cuts[0]])
            if not p0late:
                H(self.nonce_compute)
                H(self.kv_dma)
                H(self.p0_compute)
                H(lambda: self.a.wait_lg_all())
        self.a.comment("---- S1 epilogue: K-halves exchanged, LN(LN(q)) folded in as a * (p - mean * colsum), gelu, h fragments stored")
        self.s1_epilogue(after_x1)
        self.stamp("s1epi")
        self.a.comment("---- hand-off 1: h stores drain, flag, poll the producers of this wave's h fragments")
        self.nonce_compute()
        self.team_publish()
        self.wpi_addr(128, 129, LW, 16384, 32768)
        hitems = self.s2_load_items()
        a.wait_vm("hst")
        self.barrier()
        self.flag_store_rc(F_S1)
        self.stamp("s1flag")
        H(self.nonce_compute)
        H(self.kv_dma)
        self.hacts(w2[:o.get("w2a", 4)])
        self.hpaced(w2[o.get("w2a", 4):], o.get("iv2", 70), self.p0_compute)
        self.hacts(w3[cuts[0]:cuts[1]])
        H(lambda: self.a.wait_lg_all())
        self.idx_s1()
        self.barrier()
        H(self.p0_readback)
        H(self.p0_store)
        H(lambda: self.conv_filter_loads(0))
        self.hacts(w3[cuts[1]:cuts[2]])
        self.hwait("w2")
        self.poll_issue(F_S1, "ps1")
        self.poll_check("ps1", 2)
        self.stamp("s1poll")
        nh2 = o.get("nh2", 10)
        for f in hitems[:nh2]:
            f()
        self.barrier()
        self.stamp("hiss")
        H(self.p0_wave_flag)
        if o.get("w4early", 0) == 2:
            H(lambda: self.touch_chip("w4"))
        if o.get("bpos", 0) == 2:
            H(lambda: self.touch_chip("ssm"))
            H(lambda: self.touch_chip("w3"))
        self.hacts(w3[cuts[2]:cuts[3]])
        H(self.idx_p0)
        H(lambda: self.poll_issue(F_P0, "pp0"))
        self.fq = hitems[nh2:] + [self.team_load]
        self.a.comment("---- S2: shift(h) @ w2 (token shifts are in the load addresses)")
        self.s2_main()
        self.fill_all()
        self.stamp("s2main")

        def after_x2():
            H(lambda: self.poll_check("pp0", 1))
            H(lambda: self.conv_x_loads(0))
            self.hacts(w3[cuts[3]:cuts[4]])
            H(lambda: self.conv_prep_filter(0))
            H(lambda: self.conv_x_write(0))
        self.a.comment("---- S2 epilogue: x1 = xn + hs, fragments and partial row statistics stored")
        self.s2_epilogue(after_x2)
        self.stamp("s2epi")
        self.barrier()
        H(lambda: self.conv_poly(0))
        self.hacts(w3[cuts[4]:cuts[5]])
        self.conv_addr(0)
        self.team_check()
        a.wait_vm("x1st")
        self.barrier()
        self.flag_store_rc(F_S2)
        self.stamp("s2flag")
        H(self.head_start_w4)
        if o.get("w4early", 0) == 0:
            H(lambda: self.touch_chip("w4"))
        self.hacts(w3[cuts[5]:])

        def hook0(rho):
            if rho == o.get("pollrho2", 3):
                self.idx_s2()
                self.poll_issue(F_S2, "ps2")
        self.a.comment("---- long convolution, channel 2b: Toeplitz blocks on the matrix cores")
        self.conv_main(hook0)
        self.stamp("cv0main")
        xitems = self.s3_load_items()
        nx = o.get("nx", 12)
        xe = o.get("xearly", 0)
        if xe:
            self.poll_check("ps2", 3)
            for f in xitems[:nx]:
                f()
        self.conv_finish(0)
        self.hwait("w3")
        self.barrier()
        self.stamp("cv0fin")
        H(self.s3_addr)
        if o.get("csprio", 0):
            H(lambda: self.a("s_setprio %d" % o.get("csprio", 0)))
        H(self.s3_colsum)
        if o.get("csprio", 0):
            H(lambda: self.a("s_setprio 0"))
        H(self.w4_setup)
        self.s3_addr()
        if not xe:
            self.poll_check("ps2", 3)
            self.stamp("s2poll")
            for f in xitems[:nx]:
                f()
        sitems = self.s3_stat_items()
        rest = xitems[nx:]
        self.fq = []
        for i in range(len(rest)):
            self.fq.append(rest[i])
            self.fq.append(sitems[i] if i < 16 else (lambda: None))

        w4r = self.w4_reg_loads(W4_B, 56)

        def s3mid():
            self.barrier()
            H(lambda: self.conv_filter_loads(1))
            H(lambda: self.conv_x_loads(1))
            self.hacts(self.w4_items(0, W4_A, "w4"))
            self.hacts(w4r[:o.get("r1", 8)])
        self.a.comment("---- S3: x1 @ w3, 128 tokens x 112 features")
        self.s3_main(s3mid)
        self.fill_all()
        self.stamp("s3main")
        self.barrier()
        H(lambda: self.conv_prep_filter(1))
        H(lambda: self.conv_x_write(1))
        w4m = self.w4_items(W4_A, W4_B, "w4")
        k3 = o.get("k3", 4)

        early = o.get("tbar", 0) >= 2
        if early:
            self.hacts(w4r[o.get("r1", 8):o.get("r2", 20)])
            self.hacts(w4m[:k3])

        def after_tile(p):
            if p == o.get("tbar", 0):
                self.barrier()
                H(lambda: self.conv_poly(1))
                if not early:
                    self.hacts(w4r[o.get("r1", 8):o.get("r2", 20)])
                    self.hacts(w4m[:k3])
        self.a.comment("---- S3 epilogue: LN(x1) folded in, gelu, H fragments stored")
        self.s3_epilogue(after_tile)
        self.stamp("s3epi")
        self.conv_addr(1)

        def s3flag():
            a.wait_vm("Hst")
            self.barrier()
            a("s_lshl_b32 s%d, s%d, 4" % (sB, sRP))
            a("s_add_u32 s%d, s%d, s%d" % (sB, sB, sCP))
            self.flag_store(F_S3, sB)
            self.stamp("s3flag")
            self.hacts(w4m[k3:])
            self.hacts(w4r[o.get("r2", 20):])
        early = o.get("cv1early", 0)
        if early:
            self.barrier()
        else:
            s3flag()

        def hook1(rho):
            if early and rho == early:
                s3flag()
            if rho == o.get("pollrho", 3) and not early:
                self.idx_s3()
                self.poll_issue(F_S3, "ps3")
        self.a.comment("---- long convolution, channel 2b + 1")
        self.conv_main(hook1)
        self.stamp("cv1main")
        hitems = self.s4_load_items()
        if early:
            self.conv_finish(1)
            self.idx_s3()
            self.poll_issue(F_S3, "ps3")
            self.s4_addr()
            self.poll_check("ps3", 5)
            self.stamp("s3poll")
            for _ in range(o.get("nh", 14) + o.get("nhb", 6)):
                hitems.pop(0)()
        else:
            self.poll_check("ps3", 5)
            self.stamp("s3poll")
            for _ in range(o.get("nh", 14)):
                hitems.pop(0)()
            self.conv_finish(1)
            for _ in range(o.get("nhb", 6)):
                hitems.pop(0)()
            self.s4_addr()
        self.hwait("w4")
        self.barrier()
        self.stamp("cv1fin")
        self.a.comment("---- S4: H @ w4")
        self.s4_main(hitems)
        self.stamp("s4main")
        self.a.comment("---- S4 epilogue: out = q + x1 + H @ w4 + xn * y'")
        self.s4_epilogue()
        self.stamp("s4epi")
        self.finish()


REF = "cdna_kernels/%s.s.ref" % NAME


def emit(stop=None, stamps=False, opt=None, keep=None):
    g = Gen(stop, stamps, opt)
    g.keep = keep
    g.build()
    nops = g.a.fix_hazards()
    top = [l for l in open(REF).read().split("\n") if l.startswith(";") and "@launch" not in l and "Override" not in l
           and "grid=ceil" not in l]
    top += [
        "; Persistent kernel, one workgroup per CU: waves 0-3 run the GEMM chain S1 -> S2 -> S3 -> S4 and the two long",
        "; convolutions of the workgroup's channels, waves 4-7 stream weights and prepare operands. Workgroups hand tiles",
        "; to each other through d_ws: write-through stores, s_waitcnt, barrier, then a flag word equal to a per-launch",
        "; nonce derived from d_ws word 0 (rewritten once per launch by workgroup 0 after every workgroup has read it).",
        "; Generated by a script from hand-written building blocks."]
    out = top + ["; @launch grid=(256,1,1) block=(512,1,1) lds=%d" % LDS_BYTES,
                 '.amdgcn_target "amdgcn-amd-amdhsa--gfx950"', ".text", ".globl %s_kernel" % NAME, ".p2align 8",
                 ".type %s_kernel,@function" % NAME, "%s_kernel:" % NAME]
    body = g.a.text()
    tail = ['.section .rodata,"a"', ".p2align 6", ".amdhsa_kernel %s_kernel" % NAME,
            "  .amdhsa_next_free_vgpr 256", "  .amdhsa_next_free_sgpr 102", "  .amdhsa_accum_offset 192",
            "  .amdhsa_group_segment_fixed_size 0", "  .amdhsa_kernarg_size 112", "  .amdhsa_user_sgpr_count 2",
            "  .amdhsa_user_sgpr_kernarg_segment_ptr 1", "  .amdhsa_system_sgpr_workgroup_id_x 1",
            "  .amdhsa_float_denorm_mode_32 3", ".end_amdhsa_kernel"]
    text = "\n".join(out) + "\n" + body + "\n".join(tail) + "\n"
    return text, g, nops


if __name__ == "__main__":
    ap = argparse.ArgumentParser()
    ap.add_argument("-o", default="cdna_kernels/%s.s" % NAME)
    ap.add_argument("--stop", default=None)
    ap.add_argument("--stamps", action="store_true")
    ap.add_argument("--opt", default="")
    ap.add_argument("--keep", default="")
    args = ap.parse_args()
    opt = dict((kv.split("=")[0], int(kv.split("=")[1])) for kv in args.opt.split(",") if kv)
    text, g, nops = emit(args.stop, args.stamps, opt, args.keep.split(",") if args.keep else None)
    open(args.o, "w").write(text)
    n = sum(1 for x in g.a.ins if x.kind != "label")
    print("instructions: %d, hazard nops: %d" % (n, nops))
    if g.stamp_names:
        print(",".join(g.stamp_names))
        open(args.o + ".stamps", "w").write(",".join(g.stamp_names))
```

```python
import argparse
import os
import struct
import sys

sys.path.insert(0, os.path.dirname(os.path.abspath(__file__)))
from asmlib import Asm

NAME = "parallel_sum__ssm_conv_h3__mixer_s_mlp__prompt"

WS_FLAGS = 4096
WS_STAMP = 0xD0000
WS_FLAGS_L = 0x90000
WS_TEAM = 0xC0000
WS_KVT = 0x100000
WS_YT = 0x300000
WS_HS = 0x500000
WS_X1 = 0x700000
WS_ST = 0x900000
WS_HH = 0xA00000
WS_SIZE = 0x10000000
OOB = 0x40000000
F_S1, F_S2, F_S3, F_P0, F_CV = 0, 1, 2, 4, 8

LQ = 0
LW = 65536
LSTG = 131072
LRED = 139264
LSTX = 155648
LCSX = 156672
LCS3 = 161280
LKV = LRED
LDS_BYTES = 163840
CV_X = 0
CV_XD = 1152
CV_A = 5248
CV_P = 21760
CV_R = 5248
CV_BASE = 114688
W3_P = 0
W3_H = 98304
CV_BASE1 = 69632
W4_A, W4_B, W4_C = 11, 28, 39
S4_RED = 24576


def w4_off(ks):
    if ks < W4_A:
        return 114688 + ks * 4096
    if ks < W4_B:
        return (ks - W4_A) * 4096
    if ks < W4_C:
        return CV_BASE1 + (ks - W4_B) * 4096
    return w4_off(ks - W4_C)

S_WS, S_Q, S_K, S_V, S_SHK, S_SSM, S_W1, S_W2, S_W3, S_W4, S_OUT = 4, 8, 12, 16, 20, 24, 32, 36, 40, 44, 48
S_DPTR = 28
S_DBG = 30
sR, sC, sW, sTH, sKH, sN, sRP, sCP = 52, 53, 54, 55, 56, 57, 58, 59
sT, sT3 = 60, 61
sD0, sD1 = 62, 63
sA, sB, sCc, sD, sE, sF = 64, 65, 66, 67, 68, 69
sW2L, sW2G, sW3L, sW3G, sW3HL, sW3HG, sW4L, sW4G, sSO, sLD = 70, 71, 72, 73, 74, 75, 76, 77, 78, 79
sONES, sHI = 80, 81
sK4, sK8, sK12 = 82, 83, 84
sEPS, sTMO, sKG1, sKG3, s512I = 85, 86, 87, 88, 89
sSTA = 90
sROT, sQG, sWG, sCP0 = 92, 93, 94, 95
sXCC, sLOC = 20, 21

vL, vL16, vWP, vWN = 0, 1, 2, 3
vQ, vX1 = 4, 12
vMEAN, vR1 = 20, 21
vTID, vHH, vN31, vSTAMP = 22, 23, 24, 25
vW64 = 31
vCH = 172
vPF, vPA = 170, 171
vW3F, vW3H, vQE = 153, 154, 155
vST = 172

GELU_K1 = 2.0 * 0.7978845608028654 * 1.4426950408889634
GELU_K3 = GELU_K1 * 0.044715
MF32 = "v_mfma_f32_32x32x16_bf16"
MF16 = "v_mfma_f32_16x16x32_bf16"


def f32bits(x):
    return struct.unpack("<I", struct.pack("<f", x))[0]


def vr(a, n):
    return "v[%d:%d]" % (a, a + n - 1)


def ar(a, n):
    return "a[%d:%d]" % (a, a + n - 1)


def sr(a, n):
    return "s[%d:%d]" % (a, a + n - 1)


class Gen:
    def __init__(self, stop=None, stamps=False, opt=None):
        self.opt = opt or {}
        self.keep = None
        self.a = Asm()
        self.h = Asm()
        self.h.uid = 100000
        self.hpend = []
        self.nbar = 0
        self.stop = stop
        self.stamps = stamps
        self.nstamp = 0
        self.stamp_names = []
        self.fq = []
        self.pq = []
        self.interval = 0
        self.clock = 0.0
        self.hold = 0
        self.a.hook = self._pace
        self.h.hook = self._pace

    def _pace(self, x):
        if x.kind == "mfma":
            self.clock += 32 if x.passes == 8 else 16
        elif x.kind == "valu":
            self.clock += 8 if x.is_trans() else 4.5
        elif x.kind == "ds":
            self.clock += 13 if x.op == "ds_write_b128" else 2
        elif x.kind == "vmem":
            self.clock += 20
        else:
            return
        if self.hold or not self.pq or not self.interval or x.kind == "vmem":
            return
        if self.clock >= self.interval:
            self.clock = 0.0
            self.hold += 1
            self.pq.pop(0)()
            self.hold -= 1

    def paced(self, items, interval):
        self.pq += items
        self.interval = interval
        self.clock = 0.0

    def pace_flush(self, tag=None):
        self.hold += 1
        if tag is None:
            n = len(self.pq)
        else:
            n = max([i + 1 for i, f in enumerate(self.pq) if f.tag == tag], default=0)
        for _ in range(n):
            self.pq.pop(0)()
        self.hold -= 1

    def stamp(self, name):
        if not self.stamps:
            return
        if self.keep and name not in self.keep and name not in ("start", "end"):
            return
        self.hold += 1
        self._stamp(name)
        self.hold -= 1

    def _stamp(self, name):
        a = self.a
        a("s_memtime %s" % sr(sSTA, 2))
        a("s_waitcnt lgkmcnt(0)")
        a.lg = []
        a("v_writelane_b32 v%d, s%d, %d" % (vSTAMP, sSTA, self.nstamp))
        if name in ("start", "end"):
            a("s_memrealtime %s" % sr(sSTA, 2))
            a("s_waitcnt lgkmcnt(0)")
            a("v_writelane_b32 v%d, s%d, %d" % (vSTAMP, sSTA, 62 if name == "start" else 63))
            if name == "start":
                a("v_writelane_b32 v%d, s3, 61" % vSTAMP)
        self.stamp_names.append(name)
        self.nstamp += 1

    def hact(self, fn):
        self.hpend.append(fn)

    def hacts(self, fns):
        self.hpend += fns

    def hstamp(self, idx):
        if not self.opt.get("barstamps", 0):
            return

        def f():
            a = self.a
            a("s_memtime %s" % sr(sSTA, 2))
            a("s_waitcnt lgkmcnt(0)")
            a.lg = []
            a("v_writelane_b32 v55, s%d, %d" % (sSTA, 32 + idx))
        self.hpend.append(f)

    def hpaced(self, items, interval, fn):
        def f():
            saved = (self.pq, self.interval, self.clock, self.hold)
            self.pq, self.interval, self.clock, self.hold = list(items), interval, 0.0, 0
            fn()
            self.hold = 1
            self.pace_flush()
            self.pq, self.interval, self.clock, self.hold = saved
        self.hpend.append(f)

    def hwait(self, tag):
        self.hpend.append(lambda: self.a.wait_vm(tag))

    def hrun(self):
        c, fq = self.a, self.fq
        self.a, self.fq = self.h, []
        self.hold += 1
        for fn in self.hpend:
            fn()
        self.hold -= 1
        self.hpend = []
        self.a, self.fq = c, fq

    def barrier(self, name=""):
        bs = self.opt.get("barstamps", 0)
        if bs:
            self.hold += 1
            self.a("s_memtime %s" % sr(sSTA, 2))
            self.a("s_waitcnt lgkmcnt(0)")
            self.a.lg = []
            self.a("v_writelane_b32 v31, s%d, %d" % (sSTA, self.nbar))
            self.hold -= 1
        self.a("s_barrier")
        self.hrun()
        if bs:
            self.h("s_memtime %s" % sr(sSTA, 2))
            self.h("s_waitcnt lgkmcnt(0)")
            self.h.lg = []
            self.h("v_writelane_b32 v55, s%d, %d" % (sSTA, self.nbar))
        self.h("s_barrier")
        self.nbar += 1

    def fill(self, n=1):
        for _ in range(n):
            if self.fq:
                self.fq.pop(0)()

    def fill_all(self):
        while self.fq:
            self.fq.pop(0)()

    def dma_item(self, srd, voff, sl, loff, sg, goff, tag):
        def f():
            a = self.a
            a("s_add_u32 m0, s%d, %d" % (sl, loff))
            a("s_add_u32 s%d, s%d, %d" % (sSO, sg, goff))
            a.vmem("buffer_load_dwordx4 v%d, %s, s%d offen lds" % (voff, sr(srd, 4), sSO), tag)
            a.check_vm_depth()
        f.tag = tag
        return f

    def flag_store(self, phase, sidx):
        local = self.opt.get("local", 0) and phase in (F_S2, F_S3)
        a = self.a
        self.hold += 1
        skip = a.newlabel("noflag")
        a("s_cmp_lg_u32 s%d, 0" % sW)
        a("s_cbranch_scc1 %s" % skip)
        a("s_lshl_b32 s%d, s%d, 7" % (sA, sidx))
        a("s_add_u32 s%d, s%d, %d" % (sA, sA, WS_FLAGS + phase * 256 * 128))
        a("v_mov_b32 v26, s%d" % sN)
        a("v_mov_b32 v27, s%d" % sA)
        a("s_mov_b64 exec, 1")
        if local:
            a("s_mov_b32 s%d, 0x%x" % (sSO, WS_FLAGS_L - WS_FLAGS))
            a("buffer_store_dword v26, v27, %s, s%d offen" % (sr(S_WS, 4), sSO))
        a("buffer_store_dword v26, v27, %s, 0 offen sc1" % sr(S_WS, 4))
        a("s_mov_b64 exec, -1")
        a.label(skip)
        self.hold -= 1

    def team_publish(self):
        a = self.a
        if not self.opt.get("local", 0):
            return
        skip = a.newlabel("noteam")
        a("s_getreg_b32 s%d, hwreg(HW_REG_XCC_ID)" % sXCC)
        a("s_and_b32 s%d, s%d, 15" % (sXCC, sXCC))
        a("s_cmp_lg_u32 s%d, 0" % sW)
        a("s_cbranch_scc1 %s" % skip)
        a("s_lshl_b32 s%d, s2, 7" % sA)
        a("s_add_u32 s%d, s%d, 0x%x" % (sA, sA, WS_TEAM))
        a("v_mov_b32 v26, s%d" % sN)
        a("v_mov_b32 v27, s%d" % sXCC)
        a("v_mov_b32 v28, s%d" % sA)
        a("s_mov_b64 exec, 1")
        a("buffer_store_dwordx2 v[26:27], v28, %s, 0 offen sc1" % sr(S_WS, 4))
        a("s_mov_b64 exec, -1")
        a.label(skip)

    def team_load(self):
        a = self.a
        if not self.opt.get("local", 0):
            return
        a("s_and_b32 s%d, s2, 7" % sA)
        a("v_lshlrev_b32 v26, 3, v%d" % vN31)
        a("v_add_u32 v26, s%d, v26" % sA)
        a("v_lshlrev_b32 v26, 7, v26")
        a("v_add_u32 v26, 0x%x, v26" % WS_TEAM)
        a.vmem("buffer_load_dwordx2 v[168:169], v26, %s, 0 offen sc1" % sr(S_WS, 4), "team")

    def team_check(self):
        a = self.a
        if not self.opt.get("local", 0):
            return
        a.wait_vm("team")
        a("v_cmp_ne_u32 vcc, s%d, v168" % sN)
        a("v_cmp_ne_u32 %s, s%d, v169" % (sr(sSTA, 2), sXCC))
        a("s_or_b64 vcc, vcc, %s" % sr(sSTA, 2))
        a("s_cmp_eq_u64 vcc, 0")
        a("s_cselect_b32 s%d, 0x%x, 0" % (sLOC, WS_FLAGS_L - WS_FLAGS))

    def flag_store_rc(self, phase):
        a = self.a
        a("s_lshl_b32 s%d, s%d, 3" % (sB, sR))
        a("s_add_u32 s%d, s%d, s%d" % (sB, sB, sC))
        self.flag_store(phase, sB)

    def poll_issue(self, phase, tag):
        a = self.a
        a("v_lshlrev_b32 v%d, 7, v28" % vPA)
        a("v_add_u32 v%d, %d, v%d" % (vPA, WS_FLAGS + phase * 256 * 128, vPA))
        if self.opt.get("local", 0) and phase in (F_S2, F_S3):
            a("v_add_u32 v%d, s%d, v%d" % (vPA, sLOC, vPA))
        a.vmem("buffer_load_dword v%d, v%d, %s, 0 offen sc1" % (vPF, vPA, sr(S_WS, 4)), tag)

    def poll_check(self, tag, code):
        a = self.a
        self.hold += 1
        loop = a.newlabel("poll")
        done = a.newlabel("polled")
        a.wait_vm(tag)
        a("v_cmp_ne_u32 vcc, s%d, v%d" % (sN, vPF))
        a("s_cmp_eq_u64 vcc, 0")
        a("s_cbranch_scc1 %s" % done)
        a("s_mov_b32 s%d, 0x40000" % sTMO)
        a.label(loop)
        a("buffer_load_dword v%d, v%d, %s, 0 offen sc1" % (vPF, vPA, sr(S_WS, 4)))
        a("s_waitcnt vmcnt(0)")
        a("v_cmp_ne_u32 vcc, s%d, v%d" % (sN, vPF))
        a("s_cmp_eq_u64 vcc, 0")
        a("s_cbranch_scc1 %s" % done)
        a("s_sub_u32 s%d, s%d, 1" % (sTMO, sTMO))
        a("s_cmp_lg_u32 s%d, 0" % sTMO)
        a("s_cbranch_scc1 %s" % loop)
        a("v_mov_b32 v26, 0")
        a("v_mov_b32 v27, %d" % (0x100 + code))
        a("s_mov_b64 exec, 1")
        a("global_store_dword v26, v27, %s" % sr(S_DBG, 2))
        a("s_mov_b64 exec, -1")
        a.label(done)
        self.hold -= 1

    def idx_s1(self):
        a = self.a
        a("s_lshl_b32 s%d, s%d, 1" % (sA, sTH))
        a("s_sub_u32 s%d, s%d, 1" % (sA, sA))
        a("s_add_u32 s%d, s%d, s%d" % (sA, sA, sR))
        a("s_cmp_lt_u32 s%d, 32" % sA)
        a("s_cselect_b32 s%d, s%d, s%d" % (sA, sA, sR))
        a("v_mov_b32 v28, s%d" % sR)
        a("v_mov_b32 v29, s%d" % sA)
        a("v_and_b32 v27, 4, v%d" % vL)
        a("v_cmp_eq_u32 vcc, 0, v27")
        a("v_cndmask_b32 v28, v29, v28, vcc")
        a("v_lshlrev_b32 v28, 3, v28")
        a("v_and_b32 v29, 3, v%d" % vL)
        a("v_add_u32 v28, v28, v29")
        a("s_lshl_b32 s%d, s%d, 2" % (sA, sKH))
        a("v_add_u32 v28, s%d, v28" % sA)

    def idx_p0(self):
        a = self.a
        a("s_lshr_b32 s%d, s2, 5" % sA)
        a("s_lshl_b32 s%d, s%d, 6" % (sB, sW))
        a("s_add_u32 s%d, s%d, s%d" % (sA, sA, sB))
        a("v_and_b32 v28, 7, v%d" % vL)
        a("v_lshlrev_b32 v28, 3, v28")
        a("v_add_u32 v28, s%d, v28" % sA)
        a("s_bfe_u32 s%d, s2, 0x20003" % sA)
        a("v_lshl_add_u32 v28, v28, 2, s%d" % sA)

    def p0_wave_flag(self):
        a = self.a
        a.wait_vm("kvt")
        a("s_lshl_b32 s%d, s%d, 3" % (sA, sR))
        a("s_add_u32 s%d, s%d, s%d" % (sA, sA, sC))
        a("s_lshl_b32 s%d, s%d, 2" % (sA, sA))
        a("s_add_u32 s%d, s%d, s%d" % (sA, sA, sW))
        a("s_lshl_b32 s%d, s%d, 7" % (sA, sA))
        a("s_add_u32 s%d, s%d, %d" % (sA, sA, WS_FLAGS + F_P0 * 256 * 128))
        a("v_mov_b32 v26, s%d" % sN)
        a("v_mov_b32 v27, s%d" % sA)
        a("s_mov_b64 exec, 1")
        a("buffer_store_dword v26, v27, %s, 0 offen sc1" % sr(S_WS, 4))
        a("s_mov_b64 exec, -1")

    def idx_s2(self):
        a = self.a
        a("s_lshr_b32 s%d, s%d, 1" % (sA, sT3))
        a("s_lshl_b32 s%d, s%d, 3" % (sA, sA))
        a("v_and_b32 v28, 7, v%d" % vL)
        a("v_add_u32 v28, s%d, v28" % sA)

    def idx_s3(self):
        a = self.a
        a("s_lshr_b32 s%d, s%d, 1" % (sA, sR))
        a("s_lshl_b32 s%d, s%d, 4" % (sA, sA))
        a("s_lshl_b32 s%d, s%d, 3" % (sB, sKH))
        a("s_add_u32 s%d, s%d, s%d" % (sA, sA, sB))
        a("v_and_b32 v28, 7, v%d" % vL)
        a("v_add_u32 v28, s%d, v28" % sA)

    def idx_cv(self):
        a = self.a
        self.feat0(sA, sKH, 0)
        a("s_lshr_b32 s%d, s%d, 1" % (sA, sA))
        a("v_and_b32 v28, 15, v%d" % vL)
        a("v_add_u32 v28, s%d, v28" % sA)
        a("s_lshr_b32 s%d, s%d, 5" % (sA, sT))
        a("s_lshl_b32 s%d, s%d, 1" % (sA, sA))
        a("s_bfe_u32 s%d, s%d, 0x10003" % (sB, sT))
        a("s_add_u32 s%d, s%d, s%d" % (sA, sA, sB))
        a("v_lshl_add_u32 v28, v28, 2, s%d" % sA)

    def conv_wave_flag(self):
        a = self.a
        a.wait_vm("yt")
        a("s_lshl_b32 s%d, s2, 2" % sA)
        a("s_add_u32 s%d, s%d, s%d" % (sA, sA, sW))
        a("s_lshl_b32 s%d, s%d, 7" % (sA, sA))
        a("s_add_u32 s%d, s%d, %d" % (sA, sA, WS_FLAGS + F_CV * 256 * 128))
        a("v_mov_b32 v26, s%d" % sN)
        a("v_mov_b32 v27, s%d" % sA)
        a("s_mov_b64 exec, 1")
        a.vmem("buffer_store_dword v26, v27, %s, 0 offen sc1" % sr(S_WS, 4), "cvf")
        a("s_mov_b64 exec, -1")

    def prologue(self):
        a = self.a
        if self.stamps or self.opt.get("dbgtime", 0):
            a("s_memrealtime s[100:101]")
            a("s_waitcnt lgkmcnt(0)")
            a("s_mov_b32 s3, s100")
        a("s_cmp_ge_u32 s2, 256")
        a("s_cbranch_scc1 L_end")
        a("s_load_dwordx16 s[64:79], s[0:1], 0")
        a("s_load_dwordx8 s[92:99], s[0:1], 64")
        a("s_load_dwordx2 %s, s[0:1], 96" % sr(S_DBG, 2))
        a("s_load_dwordx2 %s, s[0:1], 104" % sr(S_WS, 2))
        sizes = {S_WS: WS_SIZE, S_Q: 1 << 21, S_K: 1 << 21, S_V: 1 << 21, S_SHK: 4096, S_SSM: 1 << 21,
                 S_W1: 1 << 19, S_W2: 1 << 19, S_W3: 512 * 1792 * 2, S_W4: 512 * 1792 * 2, S_OUT: 1 << 21}
        for s, n in sizes.items():
            a("s_mov_b32 s%d, 0x%x" % (s + 2, n))
            a("s_mov_b32 s%d, 0x20000" % (s + 3))
        a("s_and_b32 s100, s2, 7")
        a("s_lshr_b32 s101, s2, 3")
        a("s_lshr_b32 s%d, s101, 3" % sR)
        a("s_lshl_b32 s%d, s100, 2" % sC)
        a("s_add_u32 s%d, s%d, s%d" % (sR, sR, sC))
        a("s_and_b32 s%d, s101, 7" % sC)
        a("s_lshr_b32 s%d, s101, 4" % sRP)
        a("s_lshl_b32 s100, s100, 1")
        a("s_add_u32 s%d, s%d, s100" % (sRP, sRP))
        a("s_and_b32 s%d, s101, 15" % sCP)
        a("v_and_b32 v%d, 0xff, v0" % vTID)
        a("v_lshrrev_b32 v26, 6, v0")
        a("v_and_b32 v%d, 63, v0" % vL)
        a("v_readfirstlane_b32 s%d, v26" % sTMO)
        a("v_lshlrev_b32 v%d, 4, v%d" % (vL16, vL))
        a("v_lshrrev_b32 v%d, 5, v%d" % (vHH, vL))
        a("v_and_b32 v%d, 31, v%d" % (vN31, vL))
        a("s_and_b32 s%d, s%d, 3" % (sW, sTMO))
        a("s_lshr_b32 s%d, s%d, 1" % (sTH, sW))
        a("s_and_b32 s%d, s%d, 1" % (sKH, sW))
        a("s_lshl_b32 s%d, s%d, 1" % (sT, sR))
        a("s_add_u32 s%d, s%d, s%d" % (sT, sT, sTH))
        a("s_lshl_b32 s%d, s%d, 2" % (sT3, sRP))
        a("s_add_u32 s%d, s%d, s%d" % (sT3, sT3, sW))
        a("s_mov_b32 s%d, 0x3f803f80" % sONES)
        a("s_mov_b32 s%d, 0xffff0000" % sHI)
        a("s_movk_i32 s%d, 0x1000" % sK4)
        a("s_movk_i32 s%d, 0x2000" % sK8)
        a("s_movk_i32 s%d, 0x3000" % sK12)
        a("s_mov_b32 s%d, 0x%x" % (sEPS, f32bits(1e-5)))
        a("s_mov_b32 s%d, 0x%x" % (sKG1, f32bits(-GELU_K1)))
        a("s_mov_b32 s%d, 0x%x" % (sKG3, f32bits(-GELU_K3)))
        a("s_mov_b32 s%d, 0x%x" % (s512I, f32bits(1.0 / 512)))
        a("s_waitcnt lgkmcnt(0)")
        for sreg, src in ((S_Q, 64), (S_W1, 78), (S_K, 66), (S_V, 68), (S_SHK, 70), (S_SSM, 72), (S_DPTR, 74)):
            a("s_mov_b64 %s, %s" % (sr(sreg, 2), sr(src, 2)))
        for i, sreg in enumerate([S_W2, S_W3, S_W4, S_OUT]):
            a("s_mov_b64 %s, %s" % (sr(sreg, 2), sr(92 + 2 * i, 2)))
        a("s_add_u32 s%d, s%d, s%d" % (sROT, sR, sC))
        a("s_and_b32 s%d, s%d, 3" % (sROT, sROT))
        a("s_cmp_ge_u32 s%d, 4" % sTMO)
        a("s_cbranch_scc1 L_loader")
        if self.opt.get("prio", 1):
            a("s_setprio 1")
        if self.stamps:
            a("v_mov_b32 v%d, 0" % vSTAMP)
        self.stamp("start")
        if self.opt.get("dbgtime", 0):
            a("s_memtime s[98:99]")
            a("s_waitcnt lgkmcnt(0)")
        self.ssm_d_load()

    def tr_addresses(self):
        a = self.a
        a("v_bfe_u32 v26, v%d, 2, 2" % vL)
        a("v_and_b32 v27, 3, v%d" % vL)
        a("v_bfe_u32 v28, v%d, 4, 1" % vL)
        a("v_lshlrev_b32 v27, 3, v27")
        a("v_lshl_add_u32 v27, v28, 5, v27")
        a("v_lshl_add_u32 v28, v%d, 2, v26" % vHH)
        a("v_lshl_add_u32 v%d, v28, 6, v27" % vWP)
        a("v_lshl_add_u32 v28, v%d, 3, v26" % vHH)
        a("v_lshl_add_u32 v%d, v28, 6, v27" % vWN)

    def loader_setup(self):
        a = self.a
        a.label("L_loader")
        a("v_lshrrev_b32 v26, 2, v%d" % vL)
        a("v_and_b32 v27, 3, v%d" % vL)
        a("v_lshlrev_b32 v27, 4, v27")
        a("v_lshl_add_u32 v%d, v26, 10, v27" % vW64)
        a("v_lshrrev_b32 v26, 3, v%d" % vL)
        a("v_and_b32 v27, 7, v%d" % vL)
        a("v_lshrrev_b32 v28, 4, v%d" % vL)
        a("v_xor_b32 v27, v27, v28")
        a("v_lshlrev_b32 v27, 4, v27")
        a("v_lshl_add_u32 v%d, v26, 10, v27" % vQE)
        a("v_xor_b32 v%d, 64, v%d" % (vQE + 1, vQE))
        a("s_lshl_b32 s%d, s%d, 14" % (sCc, sW))
        a("s_lshl_b32 s%d, s%d, 15" % (sD, sT))
        a("s_lshl_b32 s%d, s%d, 9" % (sA, sKH))
        a("s_add_u32 s%d, s%d, s%d" % (sD, sD, sA))
        self.w64_bases(sW2L, sW2G)

    def feat0(self, dst, spanel, shift):
        a = self.a
        if self.opt.get("remap", 0):
            a("s_lshl_b32 s%d, s%d, %d" % (dst, sC, 5 + shift))
            a("s_lshl_b32 s%d, s%d, %d" % (sSO, spanel, 8 + shift))
        else:
            a("s_lshl_b32 s%d, s%d, %d" % (dst, sC, 6 + shift))
            a("s_lshl_b32 s%d, s%d, %d" % (sSO, spanel, 5 + shift))
        a("s_add_u32 s%d, s%d, s%d" % (dst, dst, sSO))

    def w64_bases(self, sl, sg):
        a = self.a
        a("s_lshl_b32 s%d, s%d, 15" % (sl, sTH))
        a("s_lshl_b32 s%d, s%d, 14" % (sA, sKH))
        a("s_add_u32 s%d, s%d, s%d" % (sl, sl, sA))
        a("s_add_u32 s%d, s%d, %d" % (sl, sl, LW))
        a("s_lshl_b32 s%d, s%d, 18" % (sg, sKH))
        self.feat0(sA, sTH, 1)
        a("s_add_u32 s%d, s%d, s%d" % (sg, sg, sA))

    def s1_stage_items(self, st):
        items = []

        def head():
            a = self.a
            a("s_add_u32 s%d, s%d, %d" % (sB, sROT, st))
            a("s_and_b32 s%d, s%d, 3" % (sB, sB))
            a("s_lshl_b32 s%d, s%d, 7" % (sQG, sB))
            a("s_add_u32 s%d, s%d, s%d" % (sQG, sQG, sD))
            a("s_lshl_b32 s%d, s%d, 16" % (sWG, sB))
            a("s_add_u32 s%d, s%d, s%d" % (sWG, sWG, sW2G))
        for j in range(4):
            def f(j=j):
                if j == 0:
                    head()
                self.dma_item(S_Q, vQE + (j & 1), sCc, LQ + st * 4096 + j * 1024, sQG, j * 8192, "s1_%d" % st)()
            items.append(f)
        for i in range(4):
            items.append(self.dma_item(S_W1, vW64, sW2L, (4 * st + i) * 1024, sWG, i * 16384, "s1_%d" % st))
        return items

    def touch(self, srd, lanes, sidx, dst):
        a = self.a
        a("s_mul_i32 s%d, s%d, %d" % (sA, sidx, lanes))
        a("v_add_u32 v26, s%d, v%d" % (sA, vL))
        a("v_lshlrev_b32 v26, 7, v26")
        a("v_mov_b32 v27, 0x%x" % OOB)
        a("v_cmp_gt_u32 vcc, %d, v%d" % (lanes, vL))
        a("v_cndmask_b32 v26, v27, v26, vcc")
        a.vmem("buffer_load_dword v%d, v26, %s, 0 offen" % (dst, sr(srd, 4)), "touch")

    def touch_w2(self):
        a = self.a
        if self.opt.get("touch", 1):
            a("s_lshr_b32 s%d, s2, 3" % sE)
            a("s_lshl_b32 s%d, s%d, 2" % (sE, sE))
            a("s_add_u32 s%d, s%d, s%d" % (sE, sE, sW))
            self.touch(S_W2, 32, sE, 53)

    def touch_chip(self, which):
        a = self.a
        srd, lanes, dst = {"w2": (S_W2, 4, 160), "ssm": (S_SSM, 16, 161), "w3": (S_W3, 14, 163), "w4": (S_W4, 14, 162)}[which]
        if not self.opt.get("t" + which, 1):
            return
        if which == "ssm" and self.opt.get("tssm", 2) == 2:
            a("s_lshl_b32 s%d, s2, 3" % sE)
            a("s_add_u32 s%d, s%d, s%d" % (sE, sE, sW))
            self.touch(srd, 8, sE, dst)
            return
        a("s_lshl_b32 s%d, s2, 2" % sE)
        a("s_add_u32 s%d, s%d, s%d" % (sE, sE, sW))
        self.touch(srd, lanes, sE, dst)

    def touch_code(self):
        a = self.a
        if not self.opt.get("tcode", 1):
            return
        a("s_getpc_b64 s[96:97]")
        a.label("L_pc")
        a("s_sub_u32 s96, s96, L_pc-%s_kernel" % NAME)
        a("s_subb_u32 s97, s97, 0")
        a("s_lshr_b32 s%d, s2, 3" % sE)
        a("s_lshl_b32 s%d, s%d, 2" % (sE, sE))
        a("s_add_u32 s%d, s%d, s%d" % (sE, sE, sW))
        a("s_mul_i32 s%d, s%d, 3" % (sE, sE))
        a("v_min_u32 v26, 2, v%d" % vL)
        a("v_add_u32 v26, s%d, v26" % sE)
        a("v_min_u32 v26, (L_codeend-%s_kernel)/128-1, v26" % NAME)
        a("v_lshlrev_b32 v26, 7, v26")
        a("v_mov_b32 v135, s97")
        a("v_add_co_u32 v134, vcc, s96, v26")
        a("v_addc_co_u32 v135, vcc, 0, v135, vcc")
        a.vmem("global_load_dword v136, v[134:135], off", "touch")

    def cold_touches(self):
        a = self.a
        o = self.opt
        a("s_lshr_b32 s%d, s2, 3" % sE)
        a("s_lshl_b32 s%d, s%d, 2" % (sE, sE))
        a("s_add_u32 s%d, s%d, s%d" % (sE, sE, sW))
        if o.get("tq", 0):
            a("s_and_b32 s%d, s2, 7" % sF)
            a("s_lshl_b32 s%d, s%d, 7" % (sF, sF))
            a("s_add_u32 s%d, s%d, s%d" % (sF, sF, sE))
            self.touch(S_Q, 16, sF, 160)
            self.touch(S_W1, 32, sE, 161)

    def touch_rows(self, srd, rows_per_wave, srow0, col, dst):
        a = self.a
        a("v_add_u32 v26, s%d, v%d" % (srow0, vL))
        a("v_lshlrev_b32 v26, 10, v26")
        a("v_add_u32 v26, %d, v26" % col)
        a("v_mov_b32 v27, 0x%x" % OOB)
        a("v_cmp_gt_u32 vcc, %d, v%d" % (rows_per_wave, vL))
        a("v_cndmask_b32 v26, v27, v26, vcc")
        a.vmem("buffer_load_dword v%d, v26, %s, 0 offen" % (dst, sr(srd, 4)), "touch")

    def wave_in_group(self, dst):
        a = self.a
        a("s_lshr_b32 s%d, s2, 3" % dst)
        a("s_lshl_b32 s%d, s%d, 2" % (dst, dst))
        a("s_add_u32 s%d, s%d, s%d" % (dst, dst, sW))

    def head_start(self):
        a = self.a
        m = self.opt.get("head", 11)
        self.wave_in_group(sE)
        if m & 1:
            a("s_lshl_b32 s%d, s%d, 2" % (sF, sE))
            self.touch_rows(S_W1, 4, sF, 384, 160)
        if m & 2:
            a("s_and_b32 s%d, s2, 7" % sF)
            a("s_lshl_b32 s%d, s%d, 7" % (sF, sF))
            a("s_add_u32 s%d, s%d, s%d" % (sF, sF, sE))
            a("s_lshl_b32 s%d, s%d, 1" % (sF, sF))
            self.touch_rows(S_K, 2, sF, 384, 161)
            self.touch_rows(S_V, 2, sF, 384, 162)
        if m & 4:
            a("s_lshl_b32 s%d, s%d, 2" % (sF, sE))
            self.touch_rows(S_W2, 4, sF, 384, 163)

    def page_touch(self):
        a = self.a
        m = self.opt.get("tlb", 4)
        if not m:
            return
        a("v_mov_b32 v27, 0x%x" % OOB)
        if m & 1:
            a("v_lshlrev_b32 v26, 21, v%d" % vL)
            a("v_add_u32 v26, 0x70800, v26")
            a("v_cmp_gt_u32 vcc, 10, v%d" % vL)
            a("v_cndmask_b32 v26, v27, v26, vcc")
            a.vmem("buffer_load_dword v164, v26, %s, 0 offen" % sr(S_WS, 4), "touch")
        lst = []
        if m & 2:
            lst += [(S_OUT, 1 << 21, 165)]
        if m & 4:
            lst += [(S_SSM, 1 << 21, 166), (S_W3, 512 * 1792 * 2, 167), (S_W4, 512 * 1792 * 2, 168), (S_W2, 1 << 19, 169)]
        if m & 8:
            lst += [(S_SHK, 4096, 188)]
        if m & 16:
            lst += [(S_K, 1 << 21, 189), (S_V, 1 << 21, 190)]
        for srd, size, dst in lst:
            a("v_mul_u32_u24 v26, %d, v%d" % (size // 128 - 1, vL))
            a("v_lshlrev_b32 v26, 7, v26")
            a("v_cmp_gt_u32 vcc, 2, v%d" % vL)
            a("v_cndmask_b32 v26, v27, v26, vcc")
            a.vmem("buffer_load_dword v%d, v26, %s, 0 offen" % (dst, sr(srd, 4)), "touch")

    def touch_ssm1(self):
        a = self.a
        if self.opt.get("tssm1", 0):
            a("s_lshl_b32 s%d, s2, 3" % sE)
            a("s_add_u32 s%d, s%d, s%d" % (sE, sE, sW))
            a("s_add_u32 s%d, s%d, 4" % (sE, sE))
            self.touch(S_SSM, 8, sE, 160)

    def head_start_w4(self):
        a = self.a
        if self.opt.get("head", 11) & 8:
            self.wave_in_group(sE)
            a("s_mul_i32 s%d, s%d, 14" % (sF, sE))
            self.touch_rows(S_W4, 14, sF, 384, 161)

    def batch_a(self):
        a = self.a
        if self.opt.get("tkv", 1):
            self.touch_kv(157, 158)
        if self.opt.get("tw2", 1):
            a("s_lshr_b32 s%d, s2, 3" % sE)
            a("s_lshl_b32 s%d, s%d, 2" % (sE, sE))
            a("s_add_u32 s%d, s%d, s%d" % (sE, sE, sW))
            self.touch(S_W2, 32, sE, 159)
        if self.opt.get("bpos", 0) == 0:
            self.touch_chip("ssm")
            self.touch_chip("w3")
        if self.opt.get("w4early", 0) == 1:
            self.touch_chip("w4")

    def kv_dma(self):
        a = self.a
        a("v_lshrrev_b32 v26, 3, v%d" % vL)
        a("v_and_b32 v27, 7, v%d" % vL)
        a("v_lshlrev_b32 v27, 4, v27")
        a("v_lshl_add_u32 v137, v26, 10, v27")
        a("s_lshl_b32 s%d, s%d, 6" % (sA, sR))
        a("s_lshl_b32 s%d, s%d, 4" % (sB, sW))
        a("s_add_u32 s%d, s%d, s%d" % (sA, sA, sB))
        a("v_add_u32 v26, s%d, v26" % sA)
        a("s_lshl_b32 s%d, s%d, 10" % (sQG, sA))
        a("s_lshl_b32 s%d, s%d, 7" % (sB, sC))
        a("s_add_u32 s%d, s%d, s%d" % (sQG, sQG, sB))
        a("v_add_u32 v138, s%d, v137" % sQG)
        a("v_subrev_u32 v138, 3072, v138")
        a("v_mov_b32 v27, 0x%x" % OOB)
        a("v_cmp_gt_u32 vcc, 3, v26")
        a("v_cndmask_b32 v138, v138, v27, vcc")
        a("s_mul_i32 s%d, s%d, 5120" % (sWG, sW))
        a("s_add_u32 m0, s%d, %d" % (sWG, LKV))
        a.vmem("buffer_load_dwordx4 v138, %s, 0 offen lds" % sr(S_K, 4), "kv")
        for g in (1, 2):
            self.dma_item(S_K, 137, sWG, LKV + 1024 * g, sQG, 8192 * g - 3072, "kv")()
        for g in (0, 1):
            self.dma_item(S_V, 137, sWG, LKV + 3072 + 1024 * g, sQG, 8192 * g, "kv")()
        a("s_lshl_b32 s%d, s%d, 9" % (sB, sC))
        a("v_lshl_add_u32 v26, v%d, 4, s%d" % (vN31, sB))
        a.vmem("buffer_load_dwordx4 %s, v26, %s, 0 offen" % (vr(self.SHRAW, 4), sr(S_SHK, 4)), "kv")

    def p0_reads(self):
        a = self.a
        a.wait_vm("kv")
        a("s_mul_i32 s%d, s%d, 5120" % (sA, sW))
        a("v_lshlrev_b32 v26, 10, v%d" % vHH)
        a("v_lshl_add_u32 v26, v%d, 2, v26" % vN31)
        a("v_add_u32 v26, s%d, v26" % sA)
        a("v_add_u32 v26, %d, v26" % LKV)
        for i in range(11):
            a.lds("ds_read_b32 v%d, v26 offset:%d" % (self.KRAW + i, 128 * i), "p0")
        for i in range(8):
            a.lds("ds_read_b32 v%d, v26 offset:%d" % (self.VRAW + i, 3072 + 128 * i), "p0")

    def touch_kv(self, dk=54, dv=55):
        a = self.a
        for srd, rows, first, dst in ((S_K, 17, -3, dk), (S_V, 16, 0, dv)):
            a("s_lshl_b32 s%d, s%d, 6" % (sA, sR))
            a("s_mul_i32 s%d, s%d, %d" % (sB, sW, rows))
            a("s_add_u32 s%d, s%d, s%d" % (sA, sA, sB))
            a("s_add_i32 s%d, s%d, %d" % (sA, sA, first))
            a("v_add_u32 v26, s%d, v%d" % (sA, vL))
            a("v_lshlrev_b32 v26, 10, v26")
            a("s_lshl_b32 s%d, s%d, 7" % (sB, sC))
            a("v_add_u32 v26, s%d, v26" % sB)
            a("v_mov_b32 v27, 0x%x" % OOB)
            a("v_cmp_gt_u32 vcc, %d, v%d" % (rows, vL))
            a("v_cndmask_b32 v26, v27, v26, vcc")
            a.vmem("buffer_load_dword v%d, v26, %s, 0 offen" % (dst, sr(srd, 4)), "touch")

    def touch_w3_local(self):
        a = self.a
        if self.opt.get("tw3", 1):
            a("s_lshr_b32 s%d, s2, 3" % sE)
            a("s_lshl_b32 s%d, s%d, 2" % (sE, sE))
            a("s_add_u32 s%d, s%d, s%d" % (sE, sE, sW))
            self.touch(S_W3, 64, sE, 50)
            a("s_add_u32 s%d, s%d, 128" % (sE, sE))
            self.touch(S_W3, 64, sE, 51)

    def touch_w4_chip(self):
        a = self.a
        if self.opt.get("tw4", 1):
            a("s_lshl_b32 s%d, s2, 2" % sE)
            a("s_add_u32 s%d, s%d, s%d" % (sE, sE, sW))
            self.touch(S_W4, 14, sE, 52)

    def touch_w34(self):
        a = self.a
        if self.opt.get("touch", 1):
            a("s_lshl_b32 s%d, s2, 2" % sE)
            a("s_add_u32 s%d, s%d, s%d" % (sE, sE, sW))
            if self.opt.get("touchw3", 1):
                self.touch(S_W3, 14, sE, 223)
            if self.opt.get("touchw4", 1):
                self.touch(S_W4, 14, sE, 224)

    def touch_w4_local(self):
        a = self.a
        a("s_lshr_b32 s%d, s2, 3" % sE)
        a("s_lshl_b32 s%d, s%d, 2" % (sE, sE))
        a("s_add_u32 s%d, s%d, s%d" % (sE, sE, sW))
        self.touch(S_W4, 64, sE, 54)
        a("s_add_u32 s%d, s%d, 128" % (sE, sE))
        self.touch(S_W4, 64, sE, 55)

    KRAW, VRAW, SHRAW, POFF = 172, 183, 164, 138

    def p0_loads(self):
        a = self.a
        o = self.POFF
        a("s_lshl_b32 s%d, s%d, 6" % (sA, sR))
        a("s_lshl_b32 s%d, s%d, 4" % (sB, sW))
        a("s_add_u32 s%d, s%d, s%d" % (sA, sA, sB))
        a("v_lshl_add_u32 v26, v%d, 3, s%d" % (vHH, sA))
        a("s_lshl_b32 s%d, s%d, 7" % (sB, sC))
        a("v_lshl_add_u32 v27, v%d, 2, s%d" % (vN31, sB))
        a("v_lshl_add_u32 v%d, v26, 10, v27" % (o + 3))
        a("v_add_u32 v%d, 0x1000, v%d" % (o + 4, o + 3))
        a("v_mov_b32 v28, 0x%x" % OOB)
        for i in range(3):
            a("v_subrev_u32 v%d, %d, v%d" % (o + i, (3 - i) * 1024, o + 3))
            a("v_cmp_gt_u32 vcc, %d, v26" % (3 - i))
            a("v_cndmask_b32 v%d, v%d, v28, vcc" % (o + i, o + i))
        a("s_lshl_b32 s%d, s%d, 9" % (sB, sC))
        a("v_lshl_add_u32 v%d, v%d, 4, s%d" % (o + 5, vN31, sB))

        def item(text):
            return lambda: a.vmem(text, "p0")
        for i in range(3):
            self.fq.append(item("buffer_load_dword v%d, v%d, %s, 0 offen" % (self.KRAW + i, o + i, sr(S_K, 4))))
        for i in range(8):
            self.fq.append(item("buffer_load_dword v%d, v%d, %s, 0 offen offset:%d"
                                % (self.KRAW + 3 + i, o + 3 + i // 4, sr(S_K, 4), (i % 4) * 1024)))
        for i in range(8):
            self.fq.append(item("buffer_load_dword v%d, v%d, %s, 0 offen offset:%d"
                                % (self.VRAW + i, o + 3 + i // 4, sr(S_V, 4), (i % 4) * 1024)))
        self.fq.append(item("buffer_load_dwordx4 %s, v%d, %s, 0 offen" % (vr(self.SHRAW, 4), o + 5, sr(S_SHK, 4))))

    ACK, ACS, ACC_CS = 32, 48, 64
    BF, AK, AS, AC = 80, 96, 104, 112
    SUM, ONE4 = 120, 124

    def s1_setup(self):
        a = self.a
        a("v_bfe_u32 v26, v%d, 1, 3" % vN31)
        a("v_xor_b32 v26, v26, v%d" % vHH)
        a("v_lshlrev_b32 v26, 4, v26")
        a("v_lshl_add_u32 v26, v%d, 7, v26" % vN31)
        a("s_lshl_b32 s%d, s%d, 14" % (sA, sW))
        a("v_add_u32 v128, s%d, v26" % sA)
        for i in range(1, 4):
            a("v_xor_b32 v%d, %d, v128" % (128 + i, 32 * i))
        a("s_lshl_b32 s%d, s%d, 14" % (sA, sKH))
        a("s_add_u32 s%d, s%d, %d" % (sA, sA, LW))
        a("s_lshl_b32 s%d, s%d, 15" % (sB, sKH))
        a("s_add_u32 s%d, s%d, s%d" % (sE, sA, sB))
        a("v_add_u32 v134, s%d, v%d" % (sE, vWN))
        a("s_xor_b32 s%d, s%d, 0x8000" % (sB, sB))
        a("s_add_u32 s%d, s%d, s%d" % (sE, sA, sB))
        a("v_add_u32 v135, s%d, v%d" % (sE, vWN))
        a("s_xor_b32 s%d, s%d, s%d" % (sB, sKH, sTH))
        a("s_lshl_b32 s%d, s%d, 15" % (sB, sB))
        a("s_add_u32 s%d, s%d, s%d" % (sE, sA, sB))
        a("v_add_u32 v136, s%d, v%d" % (sE, vWN))

    def s1_main(self, after_stage):
        a = self.a
        ACK, ACS, ACC_CS, BF, AK, AS, AC, SUM, ONE4 = (self.ACK, self.ACS, self.ACC_CS, self.BF, self.AK, self.AS,
                                                       self.AC, self.SUM, self.ONE4)
        self.selector(ONE4)
        for i in range(4):
            a("v_mov_b32 v%d, 0" % (SUM + i))

        def aread(ks, which):
            base, addr = ((AK, 134), (AS, 135), (AC, 136))[which]
            for hf in range(2):
                a.lds("ds_read_b64_tr_b16 %s, v%d offset:%d"
                      % (vr(base + 4 * (ks & 1) + 2 * hf, 2), addr, ks * 1024 + hf * 256), "f%d_%d" % (ks, which))

        for st in range(4):
            if st < 3:
                after_stage(st)
            for q4 in range(4):
                a.lds("ds_read_b128 %s, v%d offset:%d" % (vr(BF + 4 * q4, 4), 128 + q4, LQ + st * 4096), "b")
            for which in range(3):
                aread(4 * st, which)
            self.fill(1)
            a.wait_lg("b")
            if not self.opt.get("hstat", 0):
                for j in range(16):
                    a("v_dot2c_f32_bf16 v%d, s%d, v%d" % (SUM + (j & 1), sONES, BF + j))
                    a("v_dot2c_f32_bf16 v%d, v%d, v%d" % (SUM + 2 + (j & 1), BF + j, BF + j))
            for q4 in range(4):
                ks = 4 * st + q4
                b = ks & 1
                B = vr(BF + 4 * q4, 4)
                first = ks == 0
                a.wait_lg("f%d_0" % ks)
                a("%s %s, %s, %s, %s" % (MF32, vr(ACK, 16), vr(AK + 4 * b, 4), B, "0" if first else vr(ACK, 16)))
                if q4 < 3:
                    aread(ks + 1, 0)
                self.fill(1)
                a.wait_lg("f%d_1" % ks)
                a("%s %s, %s, %s, %s" % (MF32, vr(ACS, 16), vr(AS + 4 * b, 4), B, "0" if first else vr(ACS, 16)))
                if q4 < 3:
                    aread(ks + 1, 1)
                self.fill(1)
                a.wait_lg("f%d_2" % ks)
                a("%s %s, %s, %s, %s" % (MF16, vr(ACC_CS, 4), vr(AC + 4 * b, 4), vr(ONE4, 4),
                                         "0" if first else vr(ACC_CS, 4)))
                if q4 < 3:
                    aread(ks + 1, 2)
            self.stamp("s1st%d" % st)
        self.fill_all()

    def s1_stats(self):
        a = self.a
        BF, SUM = self.BF, self.SUM
        a("v_bfe_u32 v26, v%d, 1, 3" % vN31)
        a("v_xor_b32 v26, v26, v%d" % vHH)
        a("v_lshlrev_b32 v26, 4, v26")
        a("v_lshl_add_u32 v26, v%d, 7, v26" % vN31)
        a("s_lshl_b32 s%d, s%d, 14" % (sA, sW))
        a("v_add_u32 v128, s%d, v26" % sA)
        for i in range(1, 4):
            a("v_xor_b32 v%d, %d, v128" % (128 + i, 32 * i))
        for i in range(4):
            a("v_mov_b32 v%d, 0" % (SUM + i))
        bufs = (BF, 96)
        for st in range(5):
            if st < 4:
                for q4 in range(4):
                    a.lds("ds_read_b128 %s, v%d offset:%d" % (vr(bufs[st & 1] + 4 * q4, 4), 128 + q4, LQ + st * 4096),
                          "b%d" % st)
            if st:
                a.wait_lg("b%d" % (st - 1))
                B = bufs[(st - 1) & 1]
                for j in range(16):
                    a("v_dot2c_f32_bf16 v%d, s%d, v%d" % (SUM + (j & 1), sONES, B + j))
                    a("v_dot2c_f32_bf16 v%d, v%d, v%d" % (SUM + 2 + (j & 1), B + j, B + j))
        self.stats_write()
        a.wait_lg_all()

    def stats_write(self):
        a = self.a
        SUM = self.SUM
        a("v_add_f32 v%d, v%d, v%d" % (SUM, SUM, SUM + 1))
        a("v_add_f32 v%d, v%d, v%d" % (SUM + 2, SUM + 2, SUM + 3))
        a("v_permlane32_swap_b32 v%d, v%d" % (SUM, SUM + 2))
        a("v_add_f32 v%d, v%d, v%d" % (SUM, SUM, SUM + 2))
        a("s_lshl_b32 s%d, s%d, 8" % (sA, sW))
        a("s_add_u32 s%d, s%d, %d" % (sA, sA, LSTX))
        a("v_lshl_add_u32 v27, v%d, 2, s%d" % (vL, sA))
        a.lds("ds_write_b32 v27, v%d" % SUM)

    def selector(self, dst):
        a = self.a
        a("v_lshrrev_b32 v26, 4, v%d" % vL)
        a("v_xor_b32 v26, v26, v%d" % vL)
        a("v_and_b32 v26, 1, v26")
        a("v_mov_b32 v27, s%d" % sONES)
        a("v_cmp_eq_u32 vcc, 0, v26")
        a("v_cndmask_b32 v%d, 0, v27, vcc" % dst)
        for i in range(1, 4):
            a("v_mov_b32 v%d, v%d" % (dst + i, dst))

    def colsum_write(self, src, sbase):
        a = self.a
        a("v_and_b32 v28, 1, v%d" % vL)
        a("v_lshlrev_b32 v28, 6, v28")
        a("v_lshrrev_b32 v29, 4, v%d" % vL)
        a("v_lshl_add_u32 v28, v29, 4, v28")
        a("v_add_u32 v28, s%d, v28" % sbase)
        self.hold += 1
        a("s_mov_b32 exec_lo, 0x30003")
        a("s_mov_b32 exec_hi, 0x30003")
        a.lds("ds_write_b128 v28, %s" % vr(src, 4))
        a("s_mov_b64 exec, -1")
        self.hold -= 1

    def q_tile_read(self):
        a = self.a
        self.feat0(sE, sKH, 0)
        a("s_lshr_b32 s%d, s%d, 8" % (sA, sE))
        a("s_lshl_b32 s%d, s%d, 1" % (sB, sTH))
        a("s_add_u32 s%d, s%d, s%d" % (sA, sA, sB))
        a("s_lshl_b32 s%d, s%d, 14" % (sA, sA))
        a("s_lshr_b32 s%d, s%d, 6" % (sB, sE))
        a("s_sub_u32 s%d, s%d, s%d" % (sB, sB, sROT))
        a("s_and_b32 s%d, s%d, 3" % (sB, sB))
        a("s_lshl_b32 s%d, s%d, 12" % (sB, sB))
        a("s_add_u32 s%d, s%d, s%d" % (sA, sA, sB))
        a("s_bfe_u32 s%d, s%d, 0x10005" % (sB, sE))
        a("s_lshl_b32 s%d, s%d, 2" % (sB, sB))
        a("v_bfe_u32 v26, v%d, 1, 3" % vN31)
        a("v_xor_b32 v26, s%d, v26" % sB)
        a("v_lshlrev_b32 v27, 7, v%d" % vN31)
        a("v_lshl_add_u32 v27, v%d, 3, v27" % vHH)
        a("v_add_u32 v27, s%d, v27" % sA)
        for j in range(4):
            a("v_xor_b32 v28, %d, v26" % j)
            a("v_lshl_add_u32 v28, v28, 4, v27")
            a.lds("ds_read_b64 %s, v28 offset:%d" % (vr(vQ + 2 * j, 2), LQ), "qt")

    def gelu(self, X, n, vA13, vIA, T, out, fills=0):
        a = self.a
        for g0 in range(0, n // 2, 4):
            ps = list(range(g0, min(g0 + 4, n // 2)))
            t = lambda p: T + 4 * (p - g0)
            x = lambda p: vr(X + 2 * p, 2)
            left = fills

            def hook():
                nonlocal left
                if left > 0:
                    self.fill(1)
                    left -= 1
            for p in ps:
                a("v_pk_mul_f32 %s, %s, %s" % (vr(t(p), 2), x(p), x(p)))
            for p in ps:
                a("v_pk_fma_f32 %s, %s, %s, %s op_sel:[0,1,0] op_sel_hi:[1,1,0]"
                  % (vr(t(p), 2), vr(t(p), 2), vr(vA13, 2), vr(vA13, 2)))
            hook()
            for p in ps:
                a("v_pk_mul_f32 %s, %s, %s" % (vr(t(p), 2), vr(t(p), 2), x(p)))
            for p in ps:
                a("v_exp_f32 v%d, v%d" % (t(p) + 2, t(p)))
                a("v_exp_f32 v%d, v%d" % (t(p) + 3, t(p) + 1))
            hook()
            for p in ps:
                a("v_pk_fma_f32 %s, %s, %s, %s op_sel_hi:[1,0,0]"
                  % (vr(t(p), 2), vr(t(p) + 2, 2), vr(vIA, 2), vr(vIA, 2)))
            hook()
            for p in ps:
                a("v_rcp_f32 v%d, v%d" % (t(p) + 2, t(p)))
                a("v_rcp_f32 v%d, v%d" % (t(p) + 3, t(p) + 1))
            hook()
            for p in ps:
                a("v_pk_mul_f32 %s, %s, %s" % (vr(t(p), 2), vr(t(p) + 2, 2), x(p)))
            for p in ps:
                a("v_cvt_pk_bf16_f32 v%d, v%d, v%d" % (out + p, t(p), t(p) + 1))

    def gelu_consts(self, vA, dst):
        a = self.a
        a("v_mul_f32 v%d, s%d, v%d" % (dst, sKG1, vA))
        a("v_mul_f32 v%d, v%d, v%d" % (dst + 1, vA, vA))
        a("v_mul_f32 v%d, v%d, v%d" % (dst + 1, dst + 1, vA))
        a("v_mul_f32 v%d, s%d, v%d" % (dst + 1, sKG3, dst + 1))
        a("v_rcp_f32 v%d, v%d" % (dst + 2, vA))

    def exchange_write(self, send, base=LRED):
        a = self.a
        a("s_lshl_b32 s%d, s%d, 12" % (sA, sW))
        a("s_add_u32 s%d, s%d, %d" % (sA, sA, base))
        a("v_add_u32 v26, s%d, v%d" % (sA, vL16))
        for j in range(4):
            a.lds("ds_write_b128 v26, %s offset:%d" % (vr(send + 4 * j, 4), 1024 * j))

    def exchange_read(self, dst, base=LRED):
        a = self.a
        a("s_xor_b32 s%d, s%d, 1" % (sA, sW))
        a("s_lshl_b32 s%d, s%d, 12" % (sA, sA))
        a("s_add_u32 s%d, s%d, %d" % (sA, sA, base))
        a("v_add_u32 v26, s%d, v%d" % (sA, vL16))
        for j in range(4):
            a.lds("ds_read_b128 %s, v26 offset:%d" % (vr(dst + 4 * j, 4), 1024 * j), "xr")

    def s1_epilogue(self, after_exchange):
        a = self.a
        ACK, ACS, ACC_CS, SUM = self.ACK, self.ACS, self.ACC_CS, self.SUM
        self.q_tile_read()
        hstat = self.opt.get("hstat", 0)
        if not hstat:
            self.stats_write()
        self.exchange_write(ACS)
        a("s_xor_b32 s%d, s%d, s%d" % (sA, sKH, sTH))
        a("s_lshl_b32 s%d, s%d, 8" % (sA, sA))
        a("s_lshl_b32 s%d, s%d, 7" % (sB, sKH))
        a("s_add_u32 s%d, s%d, s%d" % (sA, sA, sB))
        a("s_add_u32 s%d, s%d, %d" % (sA, sA, LCSX))
        self.colsum_write(ACC_CS, sA)
        a.wait_lg_all()
        self.ssm_d_unpack()
        self.barrier()
        P, C0, C1 = 80, 96, 128
        self.exchange_read(P)
        a("s_xor_b32 s%d, s%d, 1" % (sA, sW))
        a("s_lshl_b32 s%d, s%d, 8" % (sA, sA))
        a("s_add_u32 s%d, s%d, %d" % (sA, sA, LSTX))
        a("v_lshl_add_u32 v27, v%d, 2, s%d" % (vL, sA))
        a.lds("ds_read_b32 v%d, v27" % (SUM + 1), "sx")
        if hstat:
            a("s_lshl_b32 s%d, s%d, 8" % (sA, sW))
            a("s_add_u32 s%d, s%d, %d" % (sA, sA, LSTX))
            a("v_lshl_add_u32 v27, v%d, 2, s%d" % (vL, sA))
            a.lds("ds_read_b32 v%d, v27" % SUM, "sx")
        a("s_lshl_b32 s%d, s%d, 8" % (sA, sKH))
        a("s_add_u32 s%d, s%d, %d" % (sA, sA, LCSX))
        a("v_lshl_add_u32 v28, v%d, 4, s%d" % (vHH, sA))
        for j in range(4):
            a.lds("ds_read_b128 %s, v28 offset:%d" % (vr(C0 + 4 * j, 4), 32 * j))
            a.lds("ds_read_b128 %s, v28 offset:%d" % (vr(C1 + 4 * j, 4), 128 + 32 * j))
        after_exchange()
        a.wait_lg("sx")
        a("v_add_f32 v%d, v%d, v%d" % (SUM, SUM, SUM + 1))
        a("v_mov_b32 v%d, v%d" % (SUM + 2, SUM))
        a("v_permlane32_swap_b32 v%d, v%d" % (SUM, SUM + 2))
        a("v_mul_f32 v%d, s%d, v%d" % (vMEAN, s512I, SUM))
        a("v_mul_f32 v26, s%d, v%d" % (s512I, SUM + 2))
        a("v_fma_f32 v26, -v%d, v%d, v26" % (vMEAN, vMEAN))
        a("v_max_f32 v26, 0, v26")
        a("v_add_f32 v27, s%d, v26" % sEPS)
        a("v_rsq_f32 v%d, v27" % vR1)
        a("v_mul_f32 v27, v%d, v%d" % (vR1, vR1))
        a("v_fma_f32 v27, v27, v26, s%d" % sEPS)
        a("v_rsq_f32 v27, v27")
        a("v_mul_f32 v27, v27, v%d" % vR1)
        G = 112
        self.gelu_consts(27, G)
        a("v_sub_f32 v%d, 0, v%d" % (G + 4, vMEAN))
        a.wait_lg_all()
        for p in range(8):
            a("v_pk_add_f32 %s, %s, %s" % (vr(C0 + 2 * p, 2), vr(C0 + 2 * p, 2), vr(C1 + 2 * p, 2)))
            a("v_pk_add_f32 %s, %s, %s" % (vr(ACK + 2 * p, 2), vr(ACK + 2 * p, 2), vr(P + 2 * p, 2)))
        for p in range(8):
            a("v_pk_fma_f32 %s, %s, %s, %s op_sel_hi:[1,0,1]"
              % (vr(ACK + 2 * p, 2), vr(C0 + 2 * p, 2), vr(G + 4, 2), vr(ACK + 2 * p, 2)))
        self.gelu(ACK, 16, G, G + 2, 144, 48, fills=0)
        self.frag_store(48, WS_HS, "hst")

    def frag_store(self, src, base, tag):
        a = self.a
        a("s_lshl_b32 s%d, s%d, 15" % (sA, sT))
        self.feat0(sB, sKH, 6)
        a("s_add_u32 s%d, s%d, s%d" % (sA, sA, sB))
        a("s_add_u32 s%d, s%d, 0x%x" % (sA, sA, base))
        a.vmem("buffer_store_dwordx4 %s, v%d, %s, s%d offen sc1" % (vr(src, 4), vL16, sr(S_WS, 4), sA), tag)
        a.vmem("buffer_store_dwordx4 %s, v%d, %s, s%d offen offset:1024 sc1"
               % (vr(src + 4, 4), vL16, sr(S_WS, 4), sA), tag)

    PK = 118

    def nonce_compute(self):
        a = self.a
        a.wait_vm("nonce")
        a("v_readfirstlane_b32 s%d, v30" % sN)
        a("s_mul_i32 s%d, s%d, 0x9e3779b1" % (sN, sN))
        a("s_add_u32 s%d, s%d, 0x7f4a7c15" % (sN, sN))

    def p0_compute(self, mid=None):
        a = self.a
        K, V, SH, KV, PK = 56, 78, 94, 102, self.PK
        self.p0_reads()
        a.wait_lg_all()
        d = self.SHRAW
        for j, (x, y, hi) in enumerate([(d, d + 2, 0), (d, d + 2, 1), (d + 1, d + 3, 0), (d + 1, d + 3, 1)]):
            for o, src in ((0, x), (1, y)):
                if hi:
                    a("v_and_b32 v%d, s%d, v%d" % (SH + 2 * j + o, sHI, src))
                else:
                    a("v_lshlrev_b32 v%d, 16, v%d" % (SH + 2 * j + o, src))
        for i in range(11):
            a("v_lshlrev_b32 v%d, 16, v%d" % (K + 2 * i, self.KRAW + i))
            a("v_and_b32 v%d, s%d, v%d" % (K + 2 * i + 1, sHI, self.KRAW + i))
            if i % 4 == 3:
                self.fill(1)
        for i in range(8):
            a("v_lshlrev_b32 v%d, 16, v%d" % (V + 2 * i, self.VRAW + i))
            a("v_and_b32 v%d, s%d, v%d" % (V + 2 * i + 1, sHI, self.VRAW + i))
        self.fill(1)
        for t in range(8):
            a("v_pk_mul_f32 %s, %s, %s" % (vr(KV + 2 * t, 2), vr(K + 2 * (t + 3), 2), vr(SH, 2)))
        self.fill(1)
        for j in range(1, 4):
            for t in range(8):
                a("v_pk_fma_f32 %s, %s, %s, %s" % (vr(KV + 2 * t, 2), vr(K + 2 * (t + 3 - j), 2), vr(SH + 2 * j, 2),
                                                   vr(KV + 2 * t, 2)))
            self.fill(1)
        if mid:
            mid()
            self.fill(4)
        for t in range(8):
            a("v_pk_mul_f32 %s, %s, %s" % (vr(KV + 2 * t, 2), vr(KV + 2 * t, 2), vr(V + 2 * t, 2)))
        self.fill(1)
        for c in range(2):
            for t in range(4):
                a("v_cvt_pk_bf16_f32 v%d, v%d, v%d" % (PK + 4 * c + t, KV + 4 * t + c, KV + 4 * t + 2 + c))
        a("s_lshl_b32 s%d, s%d, 1" % (sA, sW))
        a("v_add_u32 v26, s%d, v%d" % (sA, vHH))
        a("v_and_b32 v27, 7, v%d" % vN31)
        a("v_xor_b32 v26, v26, v27")
        a("v_lshlrev_b32 v26, 4, v26")
        a("v_lshl_add_u32 v26, v%d, 8, v26" % vN31)
        a("v_add_u32 v26, %d, v26" % LSTG)
        a.lds("ds_write_b128 v26, %s" % vr(PK, 4))
        a.lds("ds_write_b128 v26, %s offset:128" % vr(PK + 4, 4))
        self.fill_all()

    def p0_readback(self):
        a = self.a
        PK = 144
        a("v_lshrrev_b32 v26, 3, v%d" % vL)
        a("s_lshl_b32 s%d, s%d, 4" % (sA, sW))
        a("v_add_u32 v26, s%d, v26" % sA)
        a("v_and_b32 v27, 7, v%d" % vL)
        for i in range(2):
            a("v_add_u32 v28, %d, v26" % (8 * i))
            a("v_bfe_u32 v29, v28, 1, 3")
            a("v_xor_b32 v29, v29, v27")
            a("v_lshlrev_b32 v29, 4, v29")
            a("v_lshl_add_u32 v29, v28, 7, v29")
            a("v_add_u32 v29, %d, v29" % LSTG)
            a.lds("ds_read_b128 %s, v29" % vr(PK + 4 * i, 4), "pk")
        a("v_lshlrev_b32 v27, 4, v27")
        a("v_lshl_add_u32 v152, v26, 12, v27")

    def p0_store(self):
        a = self.a
        PK = 144
        a("s_lshl_b32 s%d, s%d, 18" % (sA, sC))
        a("s_lshl_b32 s%d, s%d, 7" % (sB, sR))
        a("s_add_u32 s%d, s%d, s%d" % (sA, sA, sB))
        a("s_add_u32 s%d, s%d, 0x%x" % (sA, sA, WS_KVT))
        a("s_add_u32 s%d, s%d, 0x8000" % (sB, sA))
        a.wait_lg("pk")
        a.vmem("buffer_store_dwordx4 %s, v152, %s, s%d offen sc1" % (vr(PK, 4), sr(S_WS, 4), sA), "kvt")
        a.vmem("buffer_store_dwordx4 %s, v152, %s, s%d offen sc1" % (vr(PK + 4, 4), sr(S_WS, 4), sB), "kvt")

    def conv_filter_loads(self, ch):
        a = self.a
        a("v_lshlrev_b32 v26, 4, v%d" % vTID)
        a("v_subrev_u32 v27, 8, v26")
        a("v_mov_b32 v28, 0x%x" % OOB)
        a("v_cmp_eq_u32 vcc, 0, v%d" % vTID)
        a("v_cndmask_b32 v27, v27, v28, vcc")
        a("s_lshl_b32 s%d, s2, 13" % sA)
        if ch:
            a("s_add_u32 s%d, s%d, 0x1000" % (sA, sA))
        dA, dP = vr(vCH, 4), vr(vCH + 4, 2)
        a.vmem("buffer_load_dwordx4 %s, v26, %s, s%d offen" % (dA, sr(S_SSM, 4), sA), "cf")
        a.vmem("buffer_load_dwordx2 %s, v27, %s, s%d offen" % (dP, sr(S_SSM, 4), sA), "cf")

    def ssm_d_load(self):
        a = self.a
        a("s_lshl_b32 s%d, s2, 2" % sA)
        a("s_load_dword s%d, %s, s%d" % (sD0, sr(S_DPTR, 2), sA))

    def ssm_d_unpack(self):
        a = self.a
        a("s_and_b32 s%d, s%d, s%d" % (sD1, sD0, sHI))
        a("s_lshl_b32 s%d, s%d, 16" % (sD0, sD0))

    def conv_x_loads(self, ch):
        a = self.a
        a("v_lshlrev_b32 v26, 4, v%d" % vTID)
        a("s_lshl_b32 s%d, s2, 13" % sA)
        a("s_add_u32 s%d, s%d, 0x%x" % (sA, sA, WS_KVT + 0x1000 * ch))
        a.vmem("buffer_load_dwordx4 %s, v26, %s, s%d offen sc1" % (vr(vCH + 6, 4), sr(S_WS, 4), sA), "cx")

    def conv_prep_filter(self, ch):
        a = self.a
        base = CV_BASE1 if ch else CV_BASE
        A, P = vCH, vCH + 4
        a.wait_vm("cf")
        a("v_min_u32 v26, 79, v%d" % vTID)
        a("v_subrev_u32 v27, 72, v26")
        a("v_lshrrev_b32 v28, 1, v27")
        a("v_mul_u32_u24 v28, 4128, v28")
        a("v_and_b32 v27, 1, v27")
        a("v_lshl_add_u32 v28, v27, 4, v28")
        a("v_add_u32 v28, %d, v28" % (base + CV_A))
        a("v_lshlrev_b32 v27, 4, v26")
        a("v_add_u32 v27, %d, v27" % (base + CV_X))
        a("v_cmp_gt_u32 vcc, 72, v26")
        a("v_cndmask_b32 v28, v28, v27, vcc")
        for i in range(4):
            a("v_mov_b32 v%d, 0" % (32 + i))
        a.lds("ds_write_b128 v28, %s" % vr(32, 4))
        Z, Y, W = 36, 40, 44
        seq = [P, P + 1, A, A + 1, A + 2, A + 3]
        for j in range(4):
            a("v_alignbit_b32 v%d, v%d, v%d, 16" % (Z + j, seq[j + 1], seq[j]))
            a("v_alignbit_b32 v%d, v%d, v%d, 16" % (Y + j, seq[j + 2], seq[j + 1]))
            a("v_mov_b32 v%d, v%d" % (W + j, seq[j + 1]))
        a("v_lshlrev_b32 v29, 4, v%d" % vTID)
        a("v_add_u32 v29, %d, v29" % base)
        for rho, src in ((0, A), (1, Y), (2, W), (3, Z)):
            a.lds("ds_write_b128 v29, %s offset:%d" % (vr(src, 4), CV_A + 32 + 4128 * rho))
        a.wait_lg_all()

    def conv_x_write(self, ch):
        a = self.a
        base = CV_BASE1 if ch else CV_BASE
        a.wait_vm("cx")
        a("v_lshlrev_b32 v29, 4, v%d" % vTID)
        a("v_add_u32 v29, %d, v29" % base)
        a.lds("ds_write_b128 v29, %s offset:%d" % (vr(vCH + 6, 4), CV_XD))
        a.wait_lg_all()

    def conv_poly(self, ch):
        a = self.a
        base = CV_BASE1 if ch else CV_BASE
        a("s_lshl_b32 s%d, s%d, 5" % (sA, sW))
        a("s_sub_u32 s%d, %d, s%d" % (sA, base + CV_XD - 1024, sA))
        a("v_lshl_add_u32 v26, v%d, 3, s%d" % (vL, sA))
        for u in range(10):
            a.lds("ds_read_b64_tr_b16 %s, v26 offset:%d" % (vr(32 + 2 * u, 2), 512 * u), "u%d" % u)
        a("s_mul_i32 s%d, s%d, 5312" % (sA, sW))
        a("s_add_u32 s%d, s%d, %d" % (sA, sA, base + CV_P))
        a("v_and_b32 v27, 15, v%d" % vL)
        a("v_mul_u32_u24 v27, 328, v27")
        a("v_lshrrev_b32 v28, 4, v%d" % vL)
        a("v_lshl_add_u32 v27, v28, 3, v27")
        a("v_add_u32 v27, s%d, v27" % sA)
        for u in range(10):
            a.wait_lg("u%d" % u)
            a.lds("ds_write_b64 v27, %s offset:%d" % (vr(32 + 2 * u, 2), 32 * u))
        a.wait_lg_all()

    def conv_addr(self, ch):
        a = self.a
        base = CV_BASE1 if ch else CV_BASE
        a("s_lshl_b32 s%d, s%d, 4" % (sA, sTH))
        a("s_sub_u32 s%d, %d, s%d" % (sA, base + CV_A + 24, sA))
        a("v_lshl_add_u32 v160, v%d, 3, s%d" % (vL, sA))
        a("s_mul_i32 s%d, s%d, 2624" % (sA, sTH))
        a("s_lshl_b32 s%d, s%d, 5" % (sB, sKH))
        a("s_add_u32 s%d, s%d, s%d" % (sA, sA, sB))
        a("s_add_u32 s%d, s%d, %d" % (sA, sA, base + CV_P + 32))
        a("v_bfe_u32 v26, v%d, 2, 2" % vL)
        a("v_mul_u32_u24 v26, 5312, v26")
        a("v_and_b32 v27, 3, v%d" % vL)
        a("v_lshrrev_b32 v28, 4, v%d" % vL)
        a("v_sub_u32 v27, v27, v28")
        a("v_lshl_add_u32 v26, v27, 3, v26")
        a("v_add_u32 v161, s%d, v26" % sA)

    CACC, CAF, CBF = 32, 64, 96

    def conv_main(self, hook=None, fill_every=0):
        a = self.a
        CACC, CAF, CBF = self.CACC, self.CAF, self.CBF

        def rd_list(it):
            b = it & 1
            u, rho = it >> 2, it & 3
            out = []
            order = [("A", 0), ("B", 0), ("B", 1), ("B", 2), ("B", 3), ("A", 1), ("A", 2), ("A", 3)]
            for kind, i in order:
                for hf in range(2):
                    if kind == "A":
                        out.append(("ds_read_b64_tr_b16 %s, v160 offset:%d"
                                    % (vr(CAF + 16 * b + 4 * i + 2 * hf, 2),
                                       4128 * rho + 8 * (1 - u) + 1024 * i + 512 * hf), "A%d_%d" % (it, i)))
                    else:
                        out.append(("ds_read_b64_tr_b16 %s, v161 offset:%d"
                                    % (vr(CBF + 16 * b + 4 * i + 2 * hf, 2), 328 * it + 64 * i + 32 * (1 - hf)),
                                    "B%d_%d" % (it, i)))
            return out

        for x, t in rd_list(0):
            a.lds(x, t)
        for it in range(8):
            if hook and it % 2 == 0:
                hook(it // 2)
            b = it & 1
            nxt = rd_list(it + 1) if it < 7 else []
            k = 0
            for q in range(4):
                for i in range(4 - q):
                    a.wait_lg("A%d_%d" % (it, q), "B%d_%d" % (it, i))
                    acc = vr(CACC + 4 * (i + q), 4)
                    a("%s %s, %s, %s, %s" % (MF16, acc, vr(CAF + 16 * b + 4 * q, 4), vr(CBF + 16 * b + 4 * i, 4),
                                             "0" if (it == 0 and q == 0) else acc))
                    for _ in range(2 if k < 6 else 1):
                        if nxt:
                            x, t = nxt.pop(0)
                            a.lds(x, t)
                    k += 1
            assert not nxt

    def conv_finish(self, ch):
        a = self.a
        base = CV_BASE1 if ch else CV_BASE
        CACC = self.CACC
        self.barrier()
        a("s_lshl_b32 s%d, s%d, 11" % (sA, sW))
        a("s_add_u32 s%d, s%d, %d" % (sA, sA, base + CV_R))
        a("v_add_u32 v26, s%d, v%d" % (sA, vL16))
        hi, done = a.newlabel("cvhi"), a.newlabel("cvsent")
        self.hold += 1
        a("s_cmp_lg_u32 s%d, 0" % sTH)
        a("s_cbranch_scc1 %s" % hi)
        for j in range(2):
            a("ds_write_b128 v26, %s offset:%d" % (vr(CACC + 8 + 4 * j, 4), 1024 * j))
        a("s_branch %s" % done)
        a.label(hi)
        for j in range(2):
            a("ds_write_b128 v26, %s offset:%d" % (vr(CACC + 4 * j, 4), 1024 * j))
        a.label(done)
        self.hold -= 1
        a("s_lshl_b32 s%d, s%d, 2" % (sE, sTH))
        a("s_add_u32 s%d, s%d, s%d" % (sE, sE, sKH))
        a("s_lshl_b32 s%d, s%d, 9" % (sE, sE))
        a("s_add_u32 s%d, s%d, %d" % (sA, sE, base + CV_XD))
        a("v_and_b32 v27, 15, v%d" % vL)
        a("v_lshlrev_b32 v27, 5, v27")
        a("v_lshrrev_b32 v28, 4, v%d" % vL)
        a("v_lshl_add_u32 v27, v28, 3, v27")
        a("v_add_u32 v27, s%d, v27" % sA)
        for u in range(2):
            a.lds("ds_read_b64 %s, v27 offset:%d" % (vr(100 + 2 * u, 2), 1024 * u))
        a.wait_lg_all()
        self.barrier()
        a("s_xor_b32 s%d, s%d, 2" % (sA, sW))
        a("s_lshl_b32 s%d, s%d, 11" % (sA, sA))
        a("s_add_u32 s%d, s%d, %d" % (sA, sA, base + CV_R))
        a("v_add_u32 v26, s%d, v%d" % (sA, vL16))
        for u in range(2):
            a.lds("ds_read_b128 %s, v26 offset:%d" % (vr(72 + 4 * u, 4), 1024 * u))
        for u in range(2):
            for j in range(2):
                a("v_lshlrev_b32 v%d, 16, v%d" % (104 + 4 * u + 2 * j, 100 + 2 * u + j))
                a("v_and_b32 v%d, s%d, v%d" % (105 + 4 * u + 2 * j, sHI, 100 + 2 * u + j))
        a("v_mov_b32 v112, s%d" % (sD1 if ch else sD0))
        a("v_lshrrev_b32 v26, 4, v%d" % vL)
        a("v_and_b32 v27, 1, v26")
        a("v_lshlrev_b32 v27, 10, v27")
        a("v_lshrrev_b32 v26, 1, v26")
        a("v_lshl_add_u32 v27, v26, 4, v27")
        a("v_and_b32 v26, 15, v%d" % vL)
        a("v_lshl_add_u32 v27, v26, 5, v27")
        a("v_add_u32 v27, s%d, v27" % sE)
        a("s_lshl_b32 s%d, s2, 13" % sA)
        a("s_add_u32 s%d, s%d, 0x%x" % (sA, sA, WS_YT + 0x1000 * ch))
        a.wait_lg_all()
        hi, done = a.newlabel("cvhi"), a.newlabel("cvsum")
        self.hold += 1
        a("s_cmp_lg_u32 s%d, 0" % sTH)
        a("s_cbranch_scc1 %s" % hi)
        for p in range(4):
            a("v_pk_add_f32 %s, %s, %s" % (vr(64 + 2 * p, 2), vr(CACC + 2 * p, 2), vr(72 + 2 * p, 2)))
        a("s_branch %s" % done)
        a.label(hi)
        for p in range(4):
            a("v_pk_add_f32 %s, %s, %s" % (vr(64 + 2 * p, 2), vr(CACC + 8 + 2 * p, 2), vr(72 + 2 * p, 2)))
        a.label(done)
        self.hold -= 1
        for p in range(4):
            a("v_pk_fma_f32 %s, %s, %s, %s op_sel_hi:[1,0,1]" % (vr(64 + 2 * p, 2), vr(104 + 2 * p, 2), vr(112, 2),
                                                                vr(64 + 2 * p, 2)))
        for p in range(4):
            a("v_cvt_pk_bf16_f32 v%d, v%d, v%d" % (116 + p, 64 + 2 * p, 65 + 2 * p))
        a("v_permlane16_swap_b32 v116, v118")
        a("v_permlane16_swap_b32 v117, v119")
        a.vmem("buffer_store_dwordx4 %s, v27, %s, s%d offen sc1" % (vr(116, 4), sr(S_WS, 4), sA), "yt")

    def s2_load_items(self):
        a = self.a
        a("s_lshl_b32 s%d, s%d, 5" % (sA, sT))
        a("v_add_u32 v26, s%d, v%d" % (sA, vN31))
        a("s_add_u32 s%d, s%d, 1" % (sB, sKH))
        a("s_lshl_b32 s%d, s%d, 14" % (sA, sKH))
        a("s_add_u32 s%d, s%d, 0x%x" % (sA, sA, WS_HS))
        a("v_mov_b32 v29, 0x%x" % OOB)
        for i, op in enumerate(("v_subrev_u32", "v_add_u32")):
            a("%s v27, s%d, v26" % (op, sB))
            a("v_lshrrev_b32 v28, 5, v27")
            a("v_lshlrev_b32 v28, 15, v28")
            a("v_and_b32 v30, 31, v27")
            a("v_lshl_add_u32 v30, v%d, 5, v30" % vHH)
            a("v_lshl_add_u32 v28, v30, 4, v28")
            a("v_add_u32 v28, s%d, v28" % sA)
            a("v_cmp_gt_u32 vcc, 0x800, v27")
            a("v_cndmask_b32 v%d, v29, v28, vcc" % (140 + i))
        so = ["0", "s%d" % sK4, "s%d" % sK8, "s%d" % sK12]
        items = []
        for ks in range(16):
            def f(ks=ks):
                a.vmem("buffer_load_dwordx4 %s, v%d, %s, %s offen offset:%d sc1"
                       % (ar(4 * ks, 4), 140 + (ks >> 3), sr(S_WS, 4), so[ks >> 2], (ks & 3) * 1024), "h%d" % ks)
            items.append(f)
        return items

    def wpi_addr(self, vk, vs, base, khs, ps):
        a = self.a
        a("s_mul_i32 s%d, s%d, %d" % (sA, sKH, khs + ps))
        a("s_add_u32 s%d, s%d, %d" % (sA, sA, base))
        a("v_add_u32 v%d, s%d, v%d" % (vk, sA, vWP))
        a("s_mul_i32 s%d, s%d, %d" % (sA, sKH, khs - ps))
        a("s_add_u32 s%d, s%d, %d" % (sA, sA, base + ps))
        a("v_add_u32 v%d, s%d, v%d" % (vs, sA, vWP))

    def s2_main(self):
        a = self.a
        ACK, ACS, AK, AS = self.ACK, self.ACS, self.AK, self.AS

        def rd(ks, which):
            base, addr = ((AK, 128), (AS, 129))[which]
            for hf in range(2):
                a.lds("ds_read_b64_tr_b16 %s, v%d offset:%d" % (vr(base + 4 * (ks & 1) + 2 * hf, 2), addr,
                                                                ks * 1024 + hf * 512), "f%d_%d" % (ks, which))
        rd(0, 0)
        rd(0, 1)
        for ks in range(16):
            b = ks & 1
            a.wait_both("h%d" % ks, "f%d_0" % ks)
            a("%s %s, %s, %s, %s" % (MF32, vr(ACK, 16), vr(AK + 4 * b, 4), ar(4 * ks, 4), "0" if ks == 0 else vr(ACK, 16)))
            if ks < 15:
                rd(ks + 1, 0)
            self.fill(1)
            a.wait_lg("f%d_1" % ks)
            a("%s %s, %s, %s, %s" % (MF32, vr(ACS, 16), vr(AS + 4 * b, 4), ar(4 * ks, 4), "0" if ks == 0 else vr(ACS, 16)))
            if ks < 15:
                rd(ks + 1, 1)
            if ks in (0, 4, 9, 12):
                self.stamp("s2k%d" % ks)

    def unpack8(self, src, dst):
        a = self.a
        for j in range(8):
            a("v_lshlrev_b32 v%d, 16, v%d" % (dst + 2 * j, src + j))
            a("v_and_b32 v%d, s%d, v%d" % (dst + 2 * j + 1, sHI, src + j))

    def xn_tile(self, dst):
        a = self.a
        self.unpack8(vQ, dst)
        for p in range(8):
            a("v_pk_add_f32 %s, %s, %s op_sel_hi:[1,0] neg_lo:[0,1] neg_hi:[0,1]"
              % (vr(dst + 2 * p, 2), vr(dst + 2 * p, 2), vr(vMEAN, 2)))
        for p in range(8):
            a("v_pk_mul_f32 %s, %s, %s op_sel:[0,1] op_sel_hi:[1,1]"
              % (vr(dst + 2 * p, 2), vr(dst + 2 * p, 2), vr(vMEAN, 2)))

    def s2_epilogue(self, after_exchange):
        a = self.a
        ACK, ACS = self.ACK, self.ACS
        self.exchange_write(ACS)
        self.xn_tile(96)
        a.wait_lg_all()
        self.barrier()
        after_exchange()
        self.exchange_read(80)
        for p in range(8):
            a("v_pk_add_f32 %s, %s, %s" % (vr(ACK + 2 * p, 2), vr(ACK + 2 * p, 2), vr(96 + 2 * p, 2)))
        a.wait_lg_all()
        for p in range(8):
            a("v_pk_add_f32 %s, %s, %s" % (vr(ACK + 2 * p, 2), vr(ACK + 2 * p, 2), vr(80 + 2 * p, 2)))
        for p in range(8):
            a("v_cvt_pk_bf16_f32 v%d, v%d, v%d" % (vX1 + p, ACK + 2 * p, ACK + 2 * p + 1))
        self.frag_store(vX1, WS_X1, "x1st")
        a("v_pk_mul_f32 %s, %s, %s" % (vr(112, 2), vr(ACK, 2), vr(ACK, 2)))
        a("v_pk_add_f32 %s, %s, %s" % (vr(114, 2), vr(ACK, 2), vr(ACK + 2, 2)))
        for p in range(1, 8):
            a("v_pk_fma_f32 %s, %s, %s, %s" % (vr(112, 2), vr(ACK + 2 * p, 2), vr(ACK + 2 * p, 2), vr(112, 2)))
            if p >= 2:
                a("v_pk_add_f32 %s, %s, %s" % (vr(114, 2), vr(114, 2), vr(ACK + 2 * p, 2)))
        a("v_add_f32 v114, v114, v115")
        a("v_add_f32 v112, v112, v113")
        a("v_permlane32_swap_b32 v114, v112")
        a("v_add_f32 v114, v114, v112")
        a("s_lshl_b32 s%d, s%d, 1" % (sA, sC))
        a("s_add_u32 s%d, s%d, s%d" % (sA, sA, sKH))
        a("s_lshl_b32 s%d, s%d, 14" % (sA, sA))
        a("s_lshl_b32 s%d, s%d, 7" % (sB, sT))
        a("s_add_u32 s%d, s%d, s%d" % (sA, sA, sB))
        a("s_add_u32 s%d, s%d, 0x%x" % (sA, sA, WS_ST))
        a("v_lshlrev_b32 v26, 13, v%d" % vHH)
        a("v_lshl_add_u32 v26, v%d, 2, v26" % vN31)
        a.vmem("buffer_store_dword v114, v26, %s, s%d offen sc1" % (sr(S_WS, 4), sA), "x1st")

    def w3_setup(self):
        a = self.a
        a("s_movk_i32 s%d, 3584" % sB)
        a("v_lshrrev_b32 v26, 2, v%d" % vL)
        a("v_mul_lo_u32 v26, v26, s%d" % sB)
        a("v_and_b32 v27, 3, v%d" % vL)
        a("v_lshl_add_u32 v%d, v27, 4, v26" % vW3F)
        a("v_lshrrev_b32 v26, 1, v%d" % vL)
        a("v_mul_lo_u32 v26, v26, s%d" % sB)
        a("v_and_b32 v27, 1, v%d" % vL)
        a("v_lshl_add_u32 v%d, v27, 4, v26" % vW3H)
        a("s_mul_i32 s%d, s%d, %d" % (sW3HG, sW, 128 * 3584))
        a("s_mul_i32 s%d, s%d, 224" % (sA, sCP))
        a("s_add_u32 s%d, s%d, s%d" % (sW3HG, sW3HG, sA))
        a("s_and_b32 s%d, s%d, 1" % (sB, sCP))
        a("s_lshl_b32 s%d, s%d, 5" % (sW3G, sB))
        a("s_add_u32 s%d, s%d, s%d" % (sW3G, sW3G, sW3HG))
        a("s_xor_b32 s%d, s%d, 1" % (sB, sB))
        a("s_mul_i32 s%d, s%d, 192" % (sB, sB))
        a("s_add_u32 s%d, s%d, s%d" % (sW3HG, sW3HG, sB))
        a("s_lshl_b32 s%d, s%d, 13" % (sW3L, sW))
        a("s_lshl_b32 s%d, s%d, 12" % (sW3HL, sW))

    def w3_items(self, panels):
        out = []
        for p in panels:
            if p < 3:
                for i in range(8):
                    out.append(self.dma_item(S_W3, vW3F, sW3L, W3_P + p * 32768 + i * 1024, sW3G,
                                             p * 64 + i * 16 * 3584, "w3"))
            else:
                for i in range(4):
                    out.append(self.dma_item(S_W3, vW3H, sW3HL, W3_H + i * 1024, sW3HG, i * 32 * 3584, "w3"))
        return out

    def s3_load_items(self):
        a = self.a
        a("s_lshl_b32 s%d, s%d, 15" % (sLD, sT3))
        a("s_add_u32 s%d, s%d, 0x%x" % (sLD, sLD, WS_X1))
        items = []
        for ks in range(32):
            def f(ks=ks):
                if ks and ks % 4 == 0:
                    a("s_add_u32 s%d, s%d, 0x1000" % (sLD, sLD))
                a.vmem("buffer_load_dwordx4 %s, v%d, %s, s%d offen offset:%d sc1"
                       % (ar(4 * (ks % 16), 4), vL16, sr(S_WS, 4), sLD, (ks & 3) * 1024), "x%d" % ks)
            items.append(f)
        return items

    def s3_stat_items(self):
        a = self.a
        a("v_lshlrev_b32 v147, 13, v%d" % vHH)
        a("v_lshl_add_u32 v147, v%d, 2, v147" % vN31)
        items = []
        for sl in range(16):
            def f(sl=sl):
                a("s_lshl_b32 s%d, s%d, 7" % (sSO, sT3))
                a("s_add_u32 s%d, s%d, 0x%x" % (sSO, sSO, WS_ST + 0x4000 * sl))
                a.vmem("buffer_load_dword v%d, v147, %s, s%d offen sc1" % (vST + sl, sr(S_WS, 4), sSO), "st")
            items.append(f)
        return items

    def s3_addr(self):
        a = self.a
        a("v_add_u32 v144, %d, v%d" % (W3_P, vWP))
        a("v_add_u32 v145, %d, v%d" % (W3_P + 65536, vWP))
        a("v_bfe_u32 v26, v%d, 2, 2" % vL)
        a("v_lshl_add_u32 v26, v%d, 2, v26" % vHH)
        a("v_and_b32 v27, 3, v%d" % vL)
        a("v_lshlrev_b32 v27, 3, v27")
        a("v_lshl_add_u32 v26, v26, 5, v27")
        a("v_add_u32 v146, %d, v26" % W3_H)

    @staticmethod
    def w3_read(p, ks, hf, dst):
        if p < 2:
            return "ds_read_b64_tr_b16 %s, v144 offset:%d" % (vr(dst, 2), p * 32768 + ks * 1024 + hf * 512)
        if p == 2:
            return "ds_read_b64_tr_b16 %s, v145 offset:%d" % (vr(dst, 2), ks * 1024 + hf * 512)
        return "ds_read_b64_tr_b16 %s, v146 offset:%d" % (vr(dst, 2), ks * 512 + hf * 256)

    def s3_colsum(self):
        self.hold += 1
        self._s3_colsum()
        self.hold -= 1

    def _s3_colsum(self):
        a = self.a
        full = a.newlabel("csfull")
        done = a.newlabel("csdone")
        self.selector(120)
        a("s_cmp_lt_u32 s%d, 3" % sW)
        a("s_cbranch_scc1 %s" % full)
        for is_full in (False, True):
            if is_full:
                a.label(full)
                a("s_lshl_b32 s%d, s%d, 15" % (sA, sW))
                a("v_add_u32 v148, s%d, v144" % sA)
            stride, hstep, addr = (1024, 512, 148) if is_full else (512, 256, 146)
            saved = list(a.lg)
            a.lg = []

            def rd(ks):
                for hf in range(2):
                    a.lds("ds_read_b64_tr_b16 %s, v%d offset:%d" % (vr(96 + 4 * (ks % 6) + 2 * hf, 2), addr,
                                                                    ks * stride + hf * hstep), "c%d" % ks)
            for ks in range(5):
                rd(ks)
            for ks in range(32):
                a.wait_lg("c%d" % ks)
                a("%s %s, %s, %s, %s" % (MF16, vr(32 + 4 * (ks & 1), 4), vr(96 + 4 * (ks % 6), 4), vr(120, 4),
                                         "0" if ks < 2 else vr(32 + 4 * (ks & 1), 4)))
                if ks + 5 < 32:
                    rd(ks + 5)
            a.lg = saved
            if not is_full:
                a("s_branch %s" % done)
        a.label(done)
        a("v_pk_add_f32 v[32:33], v[32:33], v[36:37]")
        a("v_pk_add_f32 v[34:35], v[34:35], v[38:39]")
        a("s_lshl_b32 s%d, s%d, 7" % (sA, sW))
        a("s_add_u32 s%d, s%d, %d" % (sA, sA, LCS3))
        self.colsum_write(32, sA)
        a.wait_lg_all()

    S3G = 128

    def s3_shadow_ops(self):
        G = self.S3G
        ops = []
        for s in (8, 4, 2, 1):
            for i in range(s):
                ops.append("v_add_f32 v%d, v%d, v%d" % (vST + i, vST + i, vST + i + s))
        ops += ["v_mov_b32 v%d, v%d" % (vST + 1, vST),
                "v_lshlrev_b32 v28, 4, v%d" % vHH,
                "v_add_u32 v149, %d, v28" % LCS3,
                "v_permlane32_swap_b32 v%d, v%d" % (vST, vST + 1),
                "s_mul_i32 s%d, s%d, 114688" % (sD, sT3),
                "v_mul_f32 v%d, s%d, v%d" % (vST + 2, s512I, vST),
                "s_mul_i32 s%d, s%d, 7168" % (sA, sCP),
                "v_mul_f32 v26, s%d, v%d" % (s512I, vST + 1),
                "s_add_u32 s%d, s%d, s%d" % (sD, sD, sA),
                "v_fma_f32 v26, -v%d, v%d, v26" % (vST + 2, vST + 2),
                "s_add_u32 s%d, s%d, 0x%x" % (sD, sD, WS_HH),
                "v_max_f32 v26, 0, v26",
                "s_and_b32 s%d, s%d, 1" % (sB, sCP),
                "v_add_f32 v26, s%d, v26" % sEPS,
                "s_lshl_b32 s%d, s%d, 10" % (sE, sB),
                "v_rsq_f32 v27, v26",
                "s_add_u32 s%d, s%d, s%d" % (sE, sE, sD),
                "v_sub_f32 v%d, 0, v%d" % (G + 4, vST + 2),
                "s_xor_b32 s%d, s%d, 1" % (sB, sB),
                "v_mul_f32 v%d, s%d, v27" % (G, sKG1),
                "s_mul_i32 s%d, s%d, 6144" % (sB, sB),
                "v_mul_f32 v%d, v27, v27" % (G + 1),
                "s_add_u32 s%d, s%d, s%d" % (sF, sD, sB),
                "v_mul_f32 v%d, v%d, v27" % (G + 1, G + 1),
                "v_mul_f32 v%d, s%d, v%d" % (G + 1, sKG3, G + 1),
                "v_rcp_f32 v%d, v27" % (G + 2)]
        return ops

    def s3_csread(self, p):
        a = self.a
        n = 16 if p < 3 else 8
        for j in range(n // 4):
            a.lds("ds_read_b128 %s, v149 offset:%d" % (vr(96 + 16 * (p & 1) + 4 * j, 4), 128 * p + 32 * j), "cs%d" % p)

    def s3_main(self, mid):
        a = self.a
        AF = 96
        shadow = self.s3_shadow_ops() if self.opt.get("s3sh", 1) else []
        self.s3_left = shadow
        first = self.opt.get("s3sh0", 24)

        def rd(ks, p):
            for hf in range(2):
                a.lds(self.w3_read(p, ks, hf, AF + 16 * (ks & 1) + 4 * p + 2 * hf), "f%d_%d" % (ks, p))
        for p in range(4):
            rd(0, p)
        for ks in range(32):
            b = ks & 1
            if ks == first and shadow:
                a.wait_vm("st")
            for p in range(4):
                if p == 0:
                    a.wait_both("x%d" % ks, "f%d_0" % ks)
                else:
                    a.wait_lg("f%d_%d" % (ks, p))
                acc = vr(32 + 16 * p, 16)
                a("%s %s, %s, %s, %s" % (MF32, acc, vr(AF + 16 * b + 4 * p, 4), ar(4 * (ks % 16), 4),
                                         "0" if ks == 0 else acc))
                if ks < 31:
                    rd(ks + 1, p)
                if p in (0, 2):
                    self.fill(1)
                if ks >= first:
                    for _ in range(2):
                        if shadow:
                            a(shadow.pop(0))
            if ks == self.opt.get("s3mid", 18):
                mid()
            if ks in (7, 15, 23) and self.opt.get("s3st", 0):
                self.stamp("s3k%d" % ks)

    def s3_epilogue(self, after_tile):
        a = self.a
        G = self.S3G
        if not self.opt.get("s3sh", 1):
            a.wait_vm("st")
            self.s3_left = self.s3_shadow_ops()
        for x in self.s3_left:
            a(x)
        csread = self.s3_csread
        csread(0)
        for p in range(4):
            n = 16 if p < 3 else 8
            C = 96 + 16 * (p & 1)
            if p < 3:
                csread(p + 1)
            a.wait_lg("cs%d" % p)
            acc = 32 + 16 * p
            for i in range(n // 2):
                a("v_pk_fma_f32 %s, %s, %s, %s op_sel_hi:[1,0,1]"
                  % (vr(acc + 2 * i, 2), vr(C + 2 * i, 2), vr(G + 4, 2), vr(acc + 2 * i, 2)))
            out = 152 + 8 * (p & 1)
            self.gelu(acc, n, G, G + 2, 176, out, fills=0)
            if p < 3:
                a("s_add_u32 s%d, s%d, %d" % (sA, sE, 2048 * p))
                a.vmem("buffer_store_dwordx4 %s, v%d, %s, s%d offen sc1" % (vr(out, 4), vL16, sr(S_WS, 4), sA), "Hst")
                a.vmem("buffer_store_dwordx4 %s, v%d, %s, s%d offen offset:1024 sc1"
                       % (vr(out + 4, 4), vL16, sr(S_WS, 4), sA), "Hst")
            else:
                a.vmem("buffer_store_dwordx4 %s, v%d, %s, s%d offen sc1" % (vr(out, 4), vL16, sr(S_WS, 4), sF), "Hst")
            after_tile(p)

    def w4_setup(self):
        a = self.a
        a("s_lshl_b32 s%d, s%d, 11" % (sW4L, sKH))
        a("s_lshl_b32 s%d, s%d, 10" % (sA, sTH))
        a("s_add_u32 s%d, s%d, s%d" % (sW4L, sW4L, sA))
        a("s_mul_i32 s%d, s%d, %d" % (sW4G, sKH, 896 * 1024))
        self.feat0(sA, sTH, 1)
        a("s_add_u32 s%d, s%d, s%d" % (sW4G, sW4G, sA))
        for i in range(8):
            if self.opt.get("rot4", 0):
                a("s_add_u32 s%d, s%d, %d" % (sA, sC, i))
                a("s_and_b32 s%d, s%d, 7" % (sA, sA))
                a("s_mul_i32 s%d, s%d, %d" % (sA, sA, 7 * 16384))
                a("s_add_u32 s%d, s%d, s%d" % (self.SW4B + i, sW4G, sA))
            else:
                a("s_add_u32 s%d, s%d, %d" % (self.SW4B + i, sW4G, i * 7 * 16384))

    SW4B = 12
    W4R = 56

    def w4_reg_loads(self, ks0, ks1):
        def item(ks):
            def f():
                a = self.a
                a("s_add_u32 s%d, s%d, %d" % (sSO, self.SW4B + ks // 7, (ks % 7) * 16384))
                a.vmem("buffer_load_dwordx4 %s, v%d, %s, s%d offen" % (vr(self.W4R + 4 * (ks - W4_B), 4), vW64,
                                                                     sr(S_W4, 4), sSO), "w4r")
                a.check_vm_depth()
            return f
        return [item(ks) for ks in range(ks0, ks1)]

    def w4_reg_writes(self, ks0, ks1):
        def f():
            a = self.a
            a.wait_vm("w4r")
            for i in range(3):
                a("v_add_u32 v%d, s%d, v%d" % (28 + i, sW4L, vL16))
                if i:
                    a("v_add_u32 v%d, %d, v%d" % (28 + i, 65536 * i, 28 + i))
            for ks in range(ks0, ks1):
                off = w4_off(ks)
                if self.opt.get("x_nowr", 0):
                    continue
                a.lds("ds_write_b128 v%d, %s offset:%d" % (28 + off // 65536, vr(self.W4R + 4 * (ks - W4_B), 4),
                                                           off % 65536))
                pace = self.opt.get("wpace", 0)
                if pace and (ks - ks0) % pace == pace - 1:
                    a.wait_lg_all()
            a.wait_lg_all()
        return f

    def w4_items(self, ks0, ks1, tag):
        return [self.dma_item(S_W4, vW64, sW4L, w4_off(ks), self.SW4B + ks // 7, (ks % 7) * 16384, tag)
                for ks in range(ks0, ks1)]

    def hring(self, ks):
        n = self.opt.get("hring", 24)
        i = ks % n
        return ar(4 * i, 4) if i < 16 else vr(64 + 4 * (i - 16), 4)

    def s4_load_items(self):
        a = self.a
        a("s_mul_i32 s%d, s%d, %d" % (sLD, sT, 0 if self.opt.get("x_hot", 0) else 114688))
        a("s_mul_i32 s%d, s%d, %d" % (sB, sKH, 56 * 1024))
        a("s_add_u32 s%d, s%d, s%d" % (sLD, sLD, sB))
        a("s_add_u32 s%d, s%d, 0x%x" % (sLD, sLD, WS_HH))
        items = []
        for ks in range(56):
            def f(ks=ks):
                i, t = divmod(ks, 7)
                if t == 0:
                    if self.opt.get("rot4", 0):
                        a("s_add_u32 s%d, s%d, %d" % (sW4L, sC, i))
                        a("s_and_b32 s%d, s%d, 7" % (sW4L, sW4L))
                        a("s_mul_i32 s%d, s%d, 7168" % (sW4L, sW4L))
                        a("s_add_u32 s%d, s%d, s%d" % (sW4L, sW4L, sLD))
                    else:
                        a("s_add_u32 s%d, s%d, %d" % (sW4L, sLD, i * 7168))
                if t == 4:
                    a("s_add_u32 s%d, s%d, 0x1000" % (sW4L, sW4L))
                a.vmem("buffer_load_dwordx4 %s, v%d, %s, s%d offen offset:%d sc1"
                       % (self.hring(ks), vL16, sr(S_WS, 4), sW4L, (t & 3) * 1024), "H%d" % ks)
                a.check_vm_depth()
            items.append(f)
        return items

    Y_LDS = 49152

    def s4_y_loads(self):
        a = self.a
        self.feat0(sE, sKH, 12)
        a("s_lshl_b32 s%d, s%d, 6" % (sB, sT))
        a("s_add_u32 s%d, s%d, s%d" % (sE, sE, sB))
        a("s_add_u32 s%d, s%d, 0x%x" % (sE, sE, WS_YT))
        a("s_add_u32 s%d, s%d, 0x10000" % (sB, sE))
        a("v_lshrrev_b32 v147, 2, v%d" % vL)
        a("v_lshlrev_b32 v147, 12, v147")
        a("v_and_b32 v26, 3, v%d" % vL)
        a("v_lshl_add_u32 v147, v26, 4, v147")
        a.vmem("buffer_load_dwordx4 %s, v147, %s, s%d offen sc1" % (vr(vST, 4), sr(S_WS, 4), sE), "y")
        a.vmem("buffer_load_dwordx4 %s, v147, %s, s%d offen sc1" % (vr(vST + 4, 4), sr(S_WS, 4), sB), "y")

    def s4_y_write(self):
        a = self.a
        a.wait_vm("y")
        a("s_lshl_b32 s%d, s%d, 11" % (sB, sW))
        a("s_add_u32 s%d, s%d, %d" % (sB, sB, self.Y_LDS))
        a("v_add_u32 v147, s%d, v%d" % (sB, vL16))
        a.lds("ds_write_b128 v147, %s" % vr(vST, 4), "yw")
        a.lds("ds_write_b128 v147, %s offset:1024" % vr(vST + 4, 4), "yw")
        a("v_add_u32 v147, s%d, v%d" % (sB, vWP))

    def s4_y_read(self):
        a = self.a
        a.wait_lg("yw")
        for q in range(4):
            a.lds("ds_read_b64_tr_b16 %s, v147 offset:%d" % (vr(vST + 8 + 2 * q, 2), 512 * q), "yr")

    XN4, BASE4 = 112, 148

    def s4_shadow_ops(self):
        XN, B = self.XN4, self.BASE4
        pre, post = [], []
        for j in range(8):
            pre.append("v_lshlrev_b32 v%d, 16, v%d" % (XN + 2 * j, vQ + j))
            pre.append("v_and_b32 v%d, s%d, v%d" % (XN + 2 * j + 1, sHI, vQ + j))
            pre.append("v_lshlrev_b32 v%d, 16, v%d" % (B + 2 * j, vX1 + j))
            pre.append("v_and_b32 v%d, s%d, v%d" % (B + 2 * j + 1, sHI, vX1 + j))
        for r in range(16):
            pre.append("v_add_f32 v%d, v%d, v%d" % (B + r, B + r, XN + r))
            pre.append("v_sub_f32 v%d, v%d, v%d" % (XN + r, XN + r, vMEAN))
            pre.append("v_mul_f32 v%d, v%d, v%d" % (XN + r, XN + r, vR1))
        for j in range(8):
            post.append("v_lshlrev_b32 v164, 16, v%d" % (vST + 8 + j))
            post.append("v_and_b32 v165, s%d, v%d" % (sHI, vST + 8 + j))
            post.append("v_fmac_f32 v%d, v%d, v164" % (B + 2 * j, XN + 2 * j))
            post.append("v_fmac_f32 v%d, v%d, v165" % (B + 2 * j + 1, XN + 2 * j + 1))
        return pre, post

    def s4_out_addr(self):
        a = self.a
        a("s_lshl_b32 s%d, s%d, 15" % (sE, sT))
        self.feat0(sB, sKH, 1)
        a("s_add_u32 s%d, s%d, s%d" % (sE, sE, sB))
        a("v_lshlrev_b32 v146, 10, v%d" % vN31)
        a("v_lshl_add_u32 v146, v%d, 4, v146" % vHH)
        a("v_add_u32 v146, s%d, v146" % sE)

    def s4_addr(self):
        a = self.a
        self.wpi_addr(128, 131, 0, 2048, 1024)
        for i in (1, 2):
            a("v_add_u32 v%d, %d, v128" % (128 + i, 65536 * i))
            a("v_add_u32 v%d, %d, v131" % (131 + i, 65536 * i))

    def s4_main(self, hitems):
        a = self.a
        ACK, ACS, AK, AS = self.ACK, self.ACS, self.AK, self.AS

        def rd(ks, which):
            off = w4_off(ks)
            base, addr = ((AK, 128), (AS, 131))[which]
            for hf in range(2):
                a.lds("ds_read_b64_tr_b16 %s, v%d offset:%d"
                      % (vr(base + 4 * (ks & 1) + 2 * hf, 2), addr + off // 65536, off % 65536 + hf * 512),
                      "f%d_%d" % (ks, which))
        pre, post = self.s4_shadow_ops()
        yq = []
        f1, f2 = self.opt.get("f1", 10), self.opt.get("f2", 18)
        xb = self.opt.get("x_nobar", 0)
        if xb:
            self.h("s_endpgm")
        else:
            self.hact(self.w4_reg_writes(W4_B, W4_C))
        rd(0, 0)
        rd(0, 1)
        for ks in range(56):
            ahead = ks < 55
            b = ks & 1
            B = self.hring(ks)
            if self.opt.get("x_nowait", 0):
                a.wait_lg("f%d_0" % ks)
            else:
                a.wait_both("H%d" % ks, "f%d_0" % ks)
            a("%s %s, %s, %s, %s" % (MF32, vr(ACK, 16), vr(AK + 4 * b, 4), B, "0" if ks == 0 else vr(ACK, 16)))
            if ahead:
                rd(ks + 1, 0)
            if hitems and ks >= 1:
                hitems.pop(0)()
            a.wait_lg("f%d_1" % ks)
            a("%s %s, %s, %s, %s" % (MF32, vr(ACS, 16), vr(AS + 4 * b, 4), B, "0" if ks == 0 else vr(ACS, 16)))
            if ahead:
                rd(ks + 1, 1)
            for _ in range(self.opt.get("npre", 3)):
                if pre and ks >= 2:
                    a(pre.pop(0))
            if ks == self.opt.get("cvflag", 9):
                self.conv_wave_flag()
            if ks == 56 - W4_C - 1 and not xb:
                self.barrier()
                self.hact(self.w4_reg_writes(W4_C, 56))
            if ks == self.opt.get("ycheck", 34) - self.opt.get("ygap", 12) and not self.opt.get("x_noy", 0):
                self.idx_cv()
                self.poll_issue(F_CV, "pcv")
            if ks == self.opt.get("ycheck", 34) and not self.opt.get("x_noy", 0):
                self.poll_check("pcv", 4)
                self.s4_y_loads()
            if ks == self.opt.get("b2", 30) and not xb:
                self.barrier()
                if self.opt.get("barstamps", 0):
                    h = self.h
                    lab = h.newlabel("nobs")
                    h("s_cmp_lg_u32 s%d, 0" % sW)
                    h("s_cbranch_scc1 %s" % lab)
                    h("s_lshl_b32 s%d, s2, 8" % sA)
                    h("s_add_u32 s%d, s%d, 0x%x" % (sA, sA, WS_STAMP + 0x20000))
                    h("v_lshlrev_b32 v26, 2, v%d" % vL)
                    h("buffer_store_dword v55, v26, %s, s%d offen" % (sr(S_WS, 4), sA))
                    h("s_waitcnt vmcnt(0)")
                    h.label(lab)
                self.hact(self.nonce_update)
                self.hrun()
                self.h("s_endpgm")
            if not self.opt.get("x_noy", 0):
                if ks == self.opt.get("ywr", 46):
                    self.s4_y_write()
                if ks == self.opt.get("ywr", 46) + 2:
                    self.s4_y_read()
                if self.opt.get("yshadow", 5) and ks >= self.opt.get("ywr", 46) + 4 and post and not pre:
                    a.wait_lg("yr")
                    for _ in range(self.opt.get("yshadow", 5)):
                        if post:
                            a(post.pop(0))
            if ks in (8, 16, 27, 38, 47):
                self.stamp("s4k%d" % ks)
        for x in pre:
            a(x)
        assert not hitems
        self.s4_out_addr()
        self.s4_post = post

    def s4_epilogue(self):
        a = self.a
        ACK, ACS, B = self.ACK, self.ACS, self.BASE4
        self.exchange_write(ACS, S4_RED)
        a.wait_lg("yr")
        for x in self.s4_post:
            a(x)
        for p in range(8):
            a("v_pk_add_f32 %s, %s, %s" % (vr(ACK + 2 * p, 2), vr(ACK + 2 * p, 2), vr(B + 2 * p, 2)))
        a.wait_lg_all()
        a("s_barrier")
        self.exchange_read(80, S4_RED)
        a.wait_lg_all()
        for p in range(8):
            a("v_pk_add_f32 %s, %s, %s" % (vr(ACK + 2 * p, 2), vr(ACK + 2 * p, 2), vr(80 + 2 * p, 2)))
        for p in range(8):
            a("v_cvt_pk_bf16_f32 v%d, v%d, v%d" % (48 + p, ACK + 2 * p, ACK + 2 * p + 1))
        for j in (0, 4):
            a("v_permlane32_swap_b32 v%d, v%d" % (48 + j, 50 + j))
            a("v_permlane32_swap_b32 v%d, v%d" % (49 + j, 51 + j))
        a.vmem("buffer_store_dwordx4 %s, v146, %s, 0 offen" % (vr(48, 4), sr(S_OUT, 4)), "out")
        a.vmem("buffer_store_dwordx4 %s, v146, %s, 0 offen offset:32" % (vr(52, 4), sr(S_OUT, 4)), "out")

    def nonce_update(self):
        a = self.a
        self.hold += 1
        skip = a.newlabel("nonce")
        a("s_cmp_lg_u32 s2, 0")
        a("s_cbranch_scc1 %s" % skip)
        a("s_cmp_lg_u32 s%d, 0" % sW)
        a("s_cbranch_scc1 %s" % skip)
        saved = list(a.vm)
        for i in range(4):
            a("v_add_u32 v28, %d, v%d" % (64 * i, vL))
            a("v_lshlrev_b32 v28, 2, v28")
            self.poll_issue(F_P0, "pn")
            self.poll_check("pn", 6)
        a.vm = saved
        a("v_mov_b32 v26, 0")
        a("v_mov_b32 v27, s%d" % sN)
        a("s_mov_b64 exec, 1")
        a("buffer_store_dword v27, v26, %s, 0 offen sc1" % sr(S_WS, 4))
        a("s_mov_b64 exec, -1")
        a.label(skip)
        self.hold -= 1

    def finish(self):
        a = self.a
        a.wait_vm_all()
        if self.opt.get("delay", 0):
            lab = a.newlabel("delay")
            a("s_mov_b32 s%d, %d" % (sA, self.opt["delay"] // 64))
            a.label(lab)
            for _ in range(15):
                a("v_mov_b32 v26, v27")
            a("s_sub_u32 s%d, s%d, 1" % (sA, sA))
            a("s_cmp_lg_u32 s%d, 0" % sA)
            a("s_cbranch_scc1 %s" % lab)
        if self.opt.get("dbgtime", 0):
            a("s_memrealtime %s" % sr(sSTA, 2))
            a("s_memtime s[96:97]")
            a("s_waitcnt lgkmcnt(0)")
            a("s_sub_u32 s%d, s%d, s3" % (sSTA, sSTA))
            a("s_sub_u32 s96, s96, s98")
            a("v_mov_b32 v26, 0")
            a("v_mov_b32 v27, s%d" % sSTA)
            a("v_mov_b32 v28, s96")
            a("s_mov_b64 exec, 1")
            a("global_atomic_umax v26, v27, %s" % sr(S_DBG, 2))
            a("global_atomic_umax v26, v28, %s offset:4" % sr(S_DBG, 2))
            a("s_waitcnt vmcnt(0)")
            a("s_mov_b64 exec, -1")
        if self.stamps:
            self.stamp("end")
            skip = a.newlabel("nostamp")
            a("s_cmp_lg_u32 s%d, 0" % sW)
            a("s_cbranch_scc1 %s" % skip)
            if self.opt.get("dbgstamps", 0):
                lab = a.newlabel("nodbg")
                a("s_cmp_lg_u32 s2, %d" % (self.opt["dbgstamps"] - 1))
                a("s_cbranch_scc1 %s" % lab)
                a("v_readlane_b32 s%d, v%d, 0" % (sA, vSTAMP))
                a("v_subrev_u32 v27, s%d, v%d" % (sA, vSTAMP))
                a("v_lshlrev_b32 v26, 2, v%d" % vL)
                a("s_mov_b64 exec, 0xffff")
                a("global_store_dword v26, v27, %s" % sr(S_DBG, 2))
                a("s_mov_b64 exec, -1")
                a.label(lab)
            a("s_lshl_b32 s%d, s2, 8" % sA)
            a("s_add_u32 s%d, s%d, 0x%x" % (sA, sA, WS_STAMP))
            a("v_lshlrev_b32 v26, 2, v%d" % vL)
            a("buffer_store_dword v%d, v26, %s, s%d offen" % (vSTAMP, sr(S_WS, 4), sA))
            if self.opt.get("barstamps", 0):
                a("s_add_u32 s%d, s%d, 0x10000" % (sA, sA))
                a("buffer_store_dword v31, v26, %s, s%d offen" % (sr(S_WS, 4), sA))
            a("s_waitcnt vmcnt(0)")
            a.label(skip)
        a.label("L_end")
        a("s_endpgm")
        self.a.hook = None
        self.h.label("L_codeend")
        self.h("s_endpgm")
        self.a.ins += self.h.ins

    def nonce_load(self):
        a = self.a
        a("v_mov_b32 v26, 0")
        a.vmem("buffer_load_dword v30, v26, %s, 0 offen sc1" % sr(S_WS, 4), "nonce")

    def build(self):
        a = self.a
        o = self.opt
        H = self.hact
        self.prologue()
        H(self.loader_setup)
        if o.get("tcode", 1) == 1:
            H(self.touch_code)
        s1 = [f for st in range(4) for f in self.s1_stage_items(st)]
        n0, n1 = o.get("n0", 16), o.get("n1", 24)
        self.nonce_load()
        if o.get("tlbfirst", 0):
            self.page_touch()
        self.head_start()
        if o.get("kvp", 0) == 4:
            self.touch_kv(162, 163)
        if not o.get("tlbfirst", 0):
            self.page_touch()
        self.cold_touches()
        self.tr_addresses()
        self.s1_setup()

        def stage(st):
            kvp = o.get("kvp", 0)
            if st == 0:
                self.hacts(s1[:n0])
                if kvp == 1:
                    H(lambda: self.touch_kv(157, 158))
                self.hwait("s1_0")
            elif st == 1:
                if kvp == 2:
                    H(lambda: self.touch_kv(157, 158))
                self.hacts(s1[n0:n1])
                if kvp == 3:
                    H(lambda: self.touch_kv(157, 158))
                self.hwait("s1_1")
            else:
                self.hacts(s1[n1:])
                if o.get("apos", 0) == 0:
                    self.hstamp(4)
                    H(self.batch_a)
                    self.hstamp(5)
                self.hwait("s1_3")
            self.barrier()
            if st == 2:
                if o.get("apos", 0) == 1:
                    H(self.batch_a)
                H(self.nonce_load)
                H(self.tr_addresses)
                if o.get("hstat", 0):
                    H(self.s1_stats)
        self.a.comment("---- S1: p = q @ w1 on the raw q tile (row sums / squares and column sums of w1 alongside)")
        self.s1_main(stage)
        self.stamp("s1main")
        w2 = [self.dma_item(S_W2, vW64, sW2L, grp * 1024, sW2G, grp * 16384, "w2") for grp in range(16)]

        p0late = o.get("p0late", 1)
        w3 = self.w3_items([0, 1, 2, 3])
        cuts = [o.get("c%d" % i, d) for i, d in enumerate((0, 0, 0, 10, 10, 16))]

        def after_x1():
            H(self.w3_setup)
            self.hacts(w3[:cuts[0]])
            if not p0late:
                H(self.nonce_compute)
                H(self.kv_dma)
                H(self.p0_compute)
                H(lambda: self.a.wait_lg_all())
        self.a.comment("---- S1 epilogue: K-halves exchanged, LN(LN(q)) folded in as a * (p - mean * colsum), gelu, h fragments stored")
        self.s1_epilogue(after_x1)
        self.stamp("s1epi")
        self.a.comment("---- hand-off 1: h stores drain, flag, poll the producers of this wave's h fragments")
        self.nonce_compute()
        self.team_publish()
        self.wpi_addr(128, 129, LW, 16384, 32768)
        hitems = self.s2_load_items()
        a.wait_vm("hst")
        self.barrier()
        self.flag_store_rc(F_S1)
        self.stamp("s1flag")
        H(self.nonce_compute)
        H(self.kv_dma)
        self.hacts(w2[:o.get("w2a", 4)])
        self.hpaced(w2[o.get("w2a", 4):], o.get("iv2", 70), self.p0_compute)
        self.hacts(w3[cuts[0]:cuts[1]])
        H(lambda: self.a.wait_lg_all())
        self.idx_s1()
        self.barrier()
        H(self.p0_readback)
        H(self.p0_store)
        H(lambda: self.conv_filter_loads(0))
        self.hacts(w3[cuts[1]:cuts[2]])
        self.hwait("w2")
        self.poll_issue(F_S1, "ps1")
        self.poll_check("ps1", 2)
        self.stamp("s1poll")
        nh2 = o.get("nh2", 10)
        for f in hitems[:nh2]:
            f()
        self.barrier()
        self.stamp("hiss")
        H(self.p0_wave_flag)
        if o.get("w4early", 0) == 2:
            H(lambda: self.touch_chip("w4"))
        if o.get("bpos", 0) == 2:
            H(lambda: self.touch_chip("ssm"))
            H(lambda: self.touch_chip("w3"))
        self.hacts(w3[cuts[2]:cuts[3]])
        H(self.idx_p0)
        H(lambda: self.poll_issue(F_P0, "pp0"))
        self.fq = hitems[nh2:] + [self.team_load]
        self.a.comment("---- S2: shift(h) @ w2 (token shifts are in the load addresses)")
        self.s2_main()
        self.fill_all()
        self.stamp("s2main")

        def after_x2():
            H(lambda: self.poll_check("pp0", 1))
            H(lambda: self.conv_x_loads(0))
            self.hacts(w3[cuts[3]:cuts[4]])
            H(lambda: self.conv_prep_filter(0))
            H(lambda: self.conv_x_write(0))
        self.a.comment("---- S2 epilogue: x1 = xn + hs, fragments and partial row statistics stored")
        self.s2_epilogue(after_x2)
        self.stamp("s2epi")
        self.barrier()
        H(lambda: self.conv_poly(0))
        self.hacts(w3[cuts[4]:cuts[5]])
        self.conv_addr(0)
        self.team_check()
        a.wait_vm("x1st")
        self.barrier()
        self.flag_store_rc(F_S2)
        self.stamp("s2flag")
        H(self.touch_ssm1)
        H(self.head_start_w4)
        if o.get("w4early", 0) == 0:
            H(lambda: self.touch_chip("w4"))
        self.hacts(w3[cuts[5]:])

        def hook0(rho):
            if rho == o.get("pollrho2", 3):
                self.idx_s2()
                self.poll_issue(F_S2, "ps2")
        self.a.comment("---- long convolution, channel 2b: Toeplitz blocks on the matrix cores")
        self.conv_main(hook0)
        self.stamp("cv0main")
        xitems = self.s3_load_items()
        nx = o.get("nx", 12)
        xe = o.get("xearly", 0)
        if xe:
            self.poll_check("ps2", 3)
            for f in xitems[:nx]:
                f()
        self.conv_finish(0)
        self.hwait("w3")
        self.barrier()
        self.stamp("cv0fin")
        H(self.s3_addr)
        if o.get("csprio", 0):
            H(lambda: self.a("s_setprio %d" % o.get("csprio", 0)))
        H(self.s3_colsum)
        if o.get("csprio", 0):
            H(lambda: self.a("s_setprio 0"))
        H(self.w4_setup)
        self.s3_addr()
        if not xe:
            self.poll_check("ps2", 3)
            self.stamp("s2poll")
            for f in xitems[:nx]:
                f()
        sitems = self.s3_stat_items()
        rest = xitems[nx:]
        self.fq = []
        for i in range(len(rest)):
            self.fq.append(rest[i])
            self.fq.append(sitems[i] if i < 16 else (lambda: None))

        w4r = self.w4_reg_loads(W4_B, 56)

        def s3mid():
            self.barrier()
            H(lambda: self.conv_filter_loads(1))
            H(lambda: self.conv_x_loads(1))
            self.hacts(self.w4_items(0, W4_A, "w4"))
            self.hacts(w4r[:o.get("r1", 8)])
        self.a.comment("---- S3: x1 @ w3, 128 tokens x 112 features")
        self.s3_main(s3mid)
        self.fill_all()
        self.stamp("s3main")
        self.barrier()
        H(lambda: self.conv_prep_filter(1))
        H(lambda: self.conv_x_write(1))
        w4m = self.w4_items(W4_A, W4_B, "w4")
        k3 = o.get("k3", 4)

        early = o.get("tbar", 0) >= 2
        if early:
            self.hacts(w4r[o.get("r1", 8):o.get("r2", 20)])
            self.hacts(w4m[:k3])

        def after_tile(p):
            if p == o.get("tbar", 0):
                self.barrier()
                H(lambda: self.conv_poly(1))
                if not early:
                    self.hacts(w4r[o.get("r1", 8):o.get("r2", 20)])
                    self.hacts(w4m[:k3])
        self.a.comment("---- S3 epilogue: LN(x1) folded in, gelu, H fragments stored")
        self.s3_epilogue(after_tile)
        self.stamp("s3epi")
        self.conv_addr(1)

        def s3flag():
            a.wait_vm("Hst")
            self.barrier()
            a("s_lshl_b32 s%d, s%d, 4" % (sB, sRP))
            a("s_add_u32 s%d, s%d, s%d" % (sB, sB, sCP))
            self.flag_store(F_S3, sB)
            self.stamp("s3flag")
            self.hacts(w4m[k3:])
            self.hacts(w4r[o.get("r2", 20):])
        early = o.get("cv1early", 0)
        if early:
            self.barrier()
        else:
            s3flag()

        def hook1(rho):
            if early and rho == early:
                s3flag()
            if rho == o.get("pollrho", 3) and not early:
                self.idx_s3()
                self.poll_issue(F_S3, "ps3")
        self.a.comment("---- long convolution, channel 2b + 1")
        self.conv_main(hook1)
        self.stamp("cv1main")
        hitems = self.s4_load_items()
        if early:
            self.conv_finish(1)
            self.idx_s3()
            self.poll_issue(F_S3, "ps3")
            self.s4_addr()
            self.poll_check("ps3", 5)
            self.stamp("s3poll")
            for _ in range(o.get("nh", 14) + o.get("nhb", 6)):
                hitems.pop(0)()
        else:
            self.poll_check("ps3", 5)
            self.stamp("s3poll")
            for _ in range(o.get("nh", 14)):
                hitems.pop(0)()
            self.conv_finish(1)
            for _ in range(o.get("nhb", 6)):
                hitems.pop(0)()
            self.s4_addr()
        self.hwait("w4")
        self.barrier()
        self.stamp("cv1fin")
        self.a.comment("---- S4: H @ w4")
        self.s4_main(hitems)
        self.stamp("s4main")
        self.a.comment("---- S4 epilogue: out = q + x1 + H @ w4 + xn * y'")
        self.s4_epilogue()
        self.stamp("s4epi")
        self.finish()


REF = "cdna_kernels/%s.s.ref" % NAME


def emit(stop=None, stamps=False, opt=None, keep=None):
    g = Gen(stop, stamps, opt)
    g.keep = keep
    g.build()
    nops = g.a.fix_hazards()
    top = [l for l in open(REF).read().split("\n") if l.startswith(";") and "@launch" not in l and "Override" not in l
           and "grid=ceil" not in l]
    top += [
        "; Persistent kernel, one workgroup per CU: waves 0-3 run the GEMM chain S1 -> S2 -> S3 -> S4 and the two long",
        "; convolutions of the workgroup's channels, waves 4-7 stream weights and prepare operands. Workgroups hand tiles",
        "; to each other through d_ws: write-through stores, s_waitcnt, barrier, then a flag word equal to a per-launch",
        "; nonce derived from d_ws word 0 (rewritten once per launch by workgroup 0 after every workgroup has read it).",
        "; Generated by a script from hand-written building blocks."]
    out = top + ["; @launch grid=(256,1,1) block=(512,1,1) lds=%d" % LDS_BYTES,
                 '.amdgcn_target "amdgcn-amd-amdhsa--gfx950"', ".text", ".globl %s_kernel" % NAME, ".p2align 8",
                 ".type %s_kernel,@function" % NAME, "%s_kernel:" % NAME]
    body = g.a.text()
    tail = ['.section .rodata,"a"', ".p2align 6", ".amdhsa_kernel %s_kernel" % NAME,
            "  .amdhsa_next_free_vgpr 256", "  .amdhsa_next_free_sgpr 102", "  .amdhsa_accum_offset 192",
            "  .amdhsa_group_segment_fixed_size 0", "  .amdhsa_kernarg_size 112", "  .amdhsa_user_sgpr_count 2",
            "  .amdhsa_user_sgpr_kernarg_segment_ptr 1", "  .amdhsa_system_sgpr_workgroup_id_x 1",
            "  .amdhsa_float_denorm_mode_32 3", ".end_amdhsa_kernel"]
    text = "\n".join(out) + "\n" + body + "\n".join(tail) + "\n"
    return text, g, nops


if __name__ == "__main__":
    ap = argparse.ArgumentParser()
    ap.add_argument("-o", default="cdna_kernels/%s.s" % NAME)
    ap.add_argument("--stop", default=None)
    ap.add_argument("--stamps", action="store_true")
    ap.add_argument("--opt", default="")
    ap.add_argument("--keep", default="")
    args = ap.parse_args()
    opt = dict((kv.split("=")[0], int(kv.split("=")[1])) for kv in args.opt.split(",") if kv)
    text, g, nops = emit(args.stop, args.stamps, opt, args.keep.split(",") if args.keep else None)
    open(args.o, "w").write(text)
    n = sum(1 for x in g.a.ins if x.kind != "label")
    print("instructions: %d, hazard nops: %d" % (n, nops))
    if g.stamp_names:
        print(",".join(g.stamp_names))
        open(args.o + ".stamps", "w").write(",".join(g.stamp_names))
```
